```python
import torch

def _softmax(x, axis=-1):
    return torch.softmax(x, dim=axis)
def _gelu(x):
    return torch.nn.functional.gelu(x, approximate="tanh")
def _silu(x):
    return torch.nn.functional.silu(x)
def _sigmoid(x):
    return torch.sigmoid(x)
def _layernorm(x, axis=-1, eps=1e-5):
    m = x.mean(dim=axis, keepdim=True)
    v = x.var(dim=axis, keepdim=True, unbiased=False)
    return (x - m) / torch.sqrt(v + eps)
def _scatter_add(tgt, idx, src, axis=0):
    return tgt.clone().index_add_(axis, idx, src)
def _segment_sum(src, seg, n):
    out = torch.zeros((n,) + src.shape[1:], dtype=src.dtype)
    return out.index_add_(0, seg, src)
def _pad(x, pw):
    flat = tuple(v for pair in reversed(pw) for v in pair)
    return torch.nn.functional.pad(x, flat)

kernel_name = 'recurrent_scan__gqa_block_cached__mixer_token_mlp__decode'

def setup_inputs():

    _w = (lambda a: (lambda t: t.to(torch.bfloat16) if t.is_floating_point() else t)(torch.as_tensor(a)))
    def _A_setup():
        B, Sq, D = 8, 1, 512
        Hq, Hkv, Sk, Dh = 32, 8, 4096, 128
        assert Hq % Hkv == 0, (Hq, Hkv)
        return {
            "x": _w((lambda *s: torch.randn(*s, dtype=torch.bfloat16) * 0.4)(B, Sq, D)),
            "k_cache": _w((lambda *s: torch.randn(*s, dtype=torch.bfloat16) * 1.6)(B, Hkv, Sk, Dh)),
            "v_cache": _w((lambda *s: torch.randn(*s, dtype=torch.bfloat16) * 1.6)(B, Hkv, Sk, Dh)),
            "wq": _w((lambda *s: torch.randn(*s, dtype=torch.bfloat16) * 1.6)(D, Hq * Dh) * (D ** -0.5)),
            "wo": _w((lambda *s: torch.randn(*s, dtype=torch.bfloat16) * 1.6)(Hq * Dh, D) * ((Hq * Dh) ** -0.5)),
        }
    _A_in = _A_setup()

    def _B_setup():
        B, S, D, F = 8, 1, 512, 1792
        return {
            "x": _w((lambda *s: torch.randn(*s, dtype=torch.bfloat16) * 0.4)(B, S, D)),
            "w1": _w((lambda *s: torch.randn(*s, dtype=torch.bfloat16) * 1.6)(S, F) * (S ** -0.5)),
            "b1": _w((lambda *s: torch.randn(*s, dtype=torch.bfloat16) * 1.6)(F) * 0.02),
            "w2": _w((lambda *s: torch.randn(*s, dtype=torch.bfloat16) * 1.6)(F, S) * (F ** -0.5)),
            "b2": _w((lambda *s: torch.randn(*s, dtype=torch.bfloat16) * 1.6)(S) * 0.02),
        }
    _B_in = _B_setup()

    return {
        "A_x": _A_in["x"],
        "A_k_cache": _A_in["k_cache"],
        "A_v_cache": _A_in["v_cache"],
        "A_wq": _A_in["wq"],
        "A_wo": _A_in["wo"],
        "B_x": _B_in["x"],
        "B_w1": _B_in["w1"],
        "B_b1": _B_in["b1"],
        "B_w2": _B_in["w2"],
        "B_b2": _B_in["b2"],
    }

def reference(A_x, A_k_cache, A_v_cache, A_wq, A_wo, B_x, B_w1, B_b1, B_w2, B_b2):
    def _A_ref(x, k_cache, v_cache, wq, wo):
        B, Sq, D = x.shape
        Hq, Dh = 32, 128
        Hkv = k_cache.shape[1]
        rep = Hq // Hkv
        q = (lambda x, *d: x.permute(*d))((x @ wq).reshape(B, Sq, Hq, Dh), 0, 2, 1, 3)
        k = (lambda x, n, axis: torch.repeat_interleave(x, n, dim=axis))(k_cache, rep, axis=1)
        v = (lambda x, n, axis: torch.repeat_interleave(x, n, dim=axis))(v_cache, rep, axis=1)
        scores = torch.einsum("bhqd,bhkd->bhqk", q, k) * (Dh ** -0.5)
        p = _softmax(scores, axis=-1)
        o = torch.einsum("bhqk,bhkd->bhqd", p, v)
        return (lambda x, *d: x.permute(*d))(o, 0, 2, 1, 3).reshape(B, Sq, Hq * Dh) @ wo

    def _B_ref(x, w1, b1, w2, b2):
        B, S, D = x.shape
        h = _layernorm(x, axis=-1)
        u = torch.einsum("bsd,sf->bdf", h, w1) + b1
        u = _gelu(u)
        y = torch.einsum("bdf,fs->bds", u, w2) + b2
        return (lambda x, *d: x.permute(*d))(y, 0, 2, 1)

    x = A_x
    xn = _layernorm(x, axis=-1)
    s = _A_ref(xn, A_k_cache, A_v_cache, A_wq, A_wo)
    g = _silu(_B_ref(xn, B_w1, B_b1, B_w2, B_b2))
    return x + s * g
```

```python
import re
TRANS = ("v_exp_f32", "v_log_f32", "v_rcp_f32", "v_rsq_f32", "v_sqrt_f32", "v_sin_f32", "v_cos_f32")
def regs(tok):
    tok = tok.strip()
    neg = tok.lstrip("-")
    m = re.fullmatch(r"abs\((.*)\)|\|(.*)\|", neg)
    if m: neg = m.group(1) or m.group(2)
    m = re.fullmatch(r"([vsa])(\d+)", neg)
    if m: return m.group(1), {int(m.group(2))}
    m = re.fullmatch(r"([vsa])\[(\d+):(\d+)\]", neg)
    if m: return m.group(1), set(range(int(m.group(2)), int(m.group(3)) + 1))
    if neg == "vcc": return "s", {106, 107}
    if neg == "vcc_lo": return "s", {106}
    if neg == "vcc_hi": return "s", {107}
    if neg == "exec": return "x", {0}
    if neg == "m0": return "s", {124}
    return None, set()
class I:
    def __init__(self, text):
        self.text = text
        t = text.split(";")[0].strip()
        self.op = t.split()[0] if t else ""
        rest = t[len(self.op):].strip()
        ops = []; cur = ""; depth = 0
        for ch in rest:
            if ch == "[": depth += 1
            if ch == "]": depth -= 1
            if ch == "," and depth == 0: ops.append(cur.strip()); cur = ""
            else: cur += ch
        if cur.strip(): ops.append(cur.strip())
        mods = ""
        if ops:
            parts = ops[-1].split(None, 1)
            ops[-1] = parts[0]; mods = parts[1] if len(parts) > 1 else ""
        self.ops = ops; self.mods = mods
        op = self.op
        self.vw = set(); self.vr = set(); self.sw = set(); self.sr = set()
        self.valu = op.startswith("v_") and not op.startswith("v_mfma")
        self.mfma = op.startswith("v_mfma")
        self.vmem = op.startswith(("buffer_", "global_", "flat_"))
        self.ds = op.startswith("ds_")
        self.salu = op.startswith("s_")
        self.dpp = "_dpp" in op
        self.trans = any(op.startswith(x) for x in TRANS)
        self.dot = op.startswith("v_dot")
        self.permlane = op.startswith("v_permlane")
        self.readlane = op.startswith(("v_readlane", "v_readfirstlane"))
        self.lanesel = set()
        self.widestore = set()
        def R(tok):
            k, s = regs(tok)
            if k == "v": self.vr |= s
            elif k == "a": self.vr |= {x + 1000 for x in s}
            elif k == "s": self.sr |= s
        def W(tok):
            k, s = regs(tok)
            if k == "v": self.vw |= s
            elif k == "a": self.vw |= {x + 1000 for x in s}
            elif k == "s": self.sw |= s
        if self.mfma:
            W(ops[0]); self.D = set(self.vw)
            a = I._vs(ops[1]); b = I._vs(ops[2]); c = I._vs(ops[3])
            self.AB = a | b; self.C = c; self.vr = a | b | c
            self.passes = 8 if "32x32x16" in op else 4
        elif self.valu:
            if op.startswith("v_cmp"):
                W(ops[0]); [R(o) for o in ops[1:]]
            elif self.readlane:
                W(ops[0]); R(ops[1])
                if len(ops) > 2:
                    k, s = regs(ops[2])
                    if k == "s": self.lanesel = s
            elif op.startswith("v_writelane"):
                W(ops[0]); R(ops[0]); R(ops[1])
                k, s = regs(ops[2])
                if k == "s": self.lanesel = s
            elif self.permlane:
                W(ops[0]); W(ops[1]); R(ops[0]); R(ops[1])
            elif op.startswith(("v_add_co", "v_sub_co", "v_addc_co", "v_subb_co")):
                W(ops[0]); W(ops[1]); [R(o) for o in ops[2:]]
            elif op == "v_nop":
                pass
            else:
                W(ops[0]); [R(o) for o in ops[1:]]
                if op.startswith(("v_fmac", "v_dot2c")) or self.dpp: R(ops[0])
                if op.startswith("v_cndmask") and len(ops) == 3: self.sr |= {106, 107}
        elif self.vmem:
            if "load" in op and " lds" not in (" " + mods):
                W(ops[0]); [R(o) for o in ops[1:]]
            elif "atomic" in op:
                [R(o) for o in ops]
                if "sc0" in mods: W(ops[0])
            else:
                [R(o) for o in ops]
                if "store" in op and ("x4" in op or "x3" in op):
                    self.widestore = I._vs(ops[0] if op.startswith("buffer") else ops[1])
        elif self.ds:
            if op.startswith(("ds_read", "ds_bpermute", "ds_permute", "ds_swizzle")) or "_rtn" in op:
                W(ops[0]); [R(o) for o in ops[1:]]
            else:
                [R(o) for o in ops]
        elif self.salu:
            if op.startswith(("s_cmp", "s_cbranch", "s_branch", "s_waitcnt", "s_nop", "s_barrier", "s_sleep", "s_setprio", "s_endpgm", "s_bitcmp")):
                [R(o) for o in ops]
            elif ops:
                W(ops[0]); [R(o) for o in ops[1:]]
    @staticmethod
    def _vs(tok):
        k, s = regs(tok)
        if k == "v": return s
        if k == "a": return {x + 1000 for x in s}
        return set()
    def states(self):
        if ";nc" in self.text: return 0
        if self.op == "s_nop": return int(self.ops[0], 0) + 1
        return 1
def need(p, c):
    n = 0
    if p.valu:
        if p.vw & c.vr:
            if c.dpp: n = max(n, 2)
            if c.readlane: n = max(n, 1)
            if c.permlane: n = max(n, 2)
            if c.mfma: n = max(n, 2)
            if p.trans and c.valu and not c.trans: n = max(n, 1)
        if p.dot and (p.vw & (c.vr | c.vw)) and (c.valu or c.mfma or c.vmem or c.ds):
            same_c = c.op == p.op and not (p.vw & (I._vs(c.ops[1]) | I._vs(c.ops[2])))
            if not same_c: n = max(n, 3)
        if p.sw:
            if c.valu and (p.sw & c.sr): n = max(n, 2)
            if p.sw & c.lanesel: n = max(n, 4)
            if c.vmem and (p.sw & c.sr): n = max(n, 5)
            if c.salu and (p.sw & c.sr): n = max(n, 1)
            if c.op.startswith("s_cbranch_vcc") and (p.sw & {106, 107}): n = max(n, 1)
    if p.mfma:
        big = {4: 8, 8: 12}[p.passes]; ov = {4: 6, 8: 10}[p.passes]; war = {4: 3, 8: 7}[p.passes]
        if c.mfma:
            if p.D & c.AB: n = max(n, big)
            if p.D & c.C and p.D != c.C: n = max(n, ov)
            if (p.D & c.D) and not (p.D == c.C): n = max(n, big)
        elif c.valu or c.vmem or c.ds:
            if p.D & (c.vr | c.vw): n = max(n, big)
            if c.valu and (p.C & c.vw): n = max(n, war)
    if p.widestore and (p.widestore & c.vw): n = max(n, 2)
    return n
class Asm:
    def __init__(self):
        self.L = []
    def __call__(self, text):
        for line in text.strip("\n").split("\n"):
            s = line.strip()
            if not s: continue
            self.L.append(s)
    def label(self, name): self.L.append(name + ":")
    def render(self):
        out = []; hist = []
        for s in self.L:
            t = s.split(";")[0].strip()
            if not t or t.endswith(":") or t.startswith("."):
                out.append(s if (t.endswith(":") or t.startswith(".")) else "  " + s); continue
            c = I(s)
            dist = 0; req = 0
            for p in reversed(hist):
                r = need(p, c)
                if r > dist: req = max(req, r - dist)
                dist += p.states()
                if dist >= 20: break
            while req > 0:
                k = min(req, 16)
                nop = I(f"s_nop {k-1}"); hist.append(nop); out.append(f"  s_nop {k-1}"); req -= k
            hist.append(c); out.append("  " + s)
            if len(hist) > 64: hist = hist[-32:]
        return "\n".join(out) + "\n"
```

```python
import sys, struct, math
from asmlib import Asm
KN = "recurrent_scan__gqa_block_cached__mixer_token_mlp__decode"
def f32(x): return "0x%08x" % struct.unpack("<I", struct.pack("<f", x))[0]
LOG2E = 1.4426950408889634
FLG = 0; QP = 64; QL = QP + 4096; ST = QL + 1024; YP = ST + 128; OP = YP + 256; LDSZ = OP + 4 * 2304
QOFF = 64 << 10; H1OFF = 1 << 20; H2OFF = 2 << 20; STAMP = 128 << 20
HDR = open("cdna_kernels/" + KN + ".s.ref").read().split("; Override launch")[0]

def gen(fname, WIN=6, G=2, RING=40, prof=False, wo_thr=4, ntw="", woflags="", spin=400000):
    a = Asm()
    NST = 8
    def stamp(i):
        if prof: a(f"s_memrealtime s[{84+2*i}:{85+2*i}]")
    a(f"""
s_cmp_ge_u32 s2, 256
s_cbranch_scc1 L_end
""")
    stamp(0)
    a(f"""
s_load_dwordx16 s[16:31], s[0:1], 0
s_load_dwordx8 s[32:39], s[0:1], 64
s_load_dwordx2 s[40:41], s[0:1], 96
v_and_b32 v1, 63, v0
v_lshrrev_b32 v2, 6, v0
v_and_b32 v3, 15, v0
v_lshlrev_b32 v3, 2, v3
v_mov_b32 v4, 0
v_readfirstlane_b32 s3, v2
ds_write_b32 v3, v4
s_waitcnt lgkmcnt(0)
s_barrier
s_cmp_ge_u32 s3, 4
s_cbranch_scc1 L_helper
""")
    a(f"""
s_setprio 2
s_mov_b32 s44, s18
s_mov_b32 s45, s19
s_mov_b32 s46, 0x4000000
s_mov_b32 s47, 0x20000
s_mov_b32 s48, s20
s_mov_b32 s49, s21
s_mov_b32 s50, 0x4000000
s_mov_b32 s51, 0x20000
s_lshl_b32 s52, s2, 18
s_lshl_b32 s53, s3, 12
s_add_u32 s52, s52, s53
v_lshrrev_b32 v5, 4, v1
v_bfe_u32 v6, v1, 2, 2
v_and_b32 v7, 3, v1
v_lshlrev_b32 v2, 8, v6
v_lshl_add_u32 v2, v5, 6, v2
v_lshl_add_u32 v2, v7, 4, v2
v_lshlrev_b32 v3, 4, v1
""")
    RB = 256 - RING * 4
    def rreg(n): return RB + (n % RING) * 4
    NL = 128
    st = {"tile": None}
    def issue(n):
        isv = n >= 64; t = (n & 63) >> 2; q = n & 3
        if st["tile"] != (isv, t):
            st["tile"] = (isv, t)
            a(f"s_add_u32 s53, s52, {t*16384}")
        r = rreg(n)
        a(f"buffer_load_dwordx4 v[{r}:{r+3}], {'v3' if isv else 'v2'}, {'s[48:51]' if isv else 's[44:47]'}, s53 offen offset:{q*1024} nt")
    QB = 8; Y = 12; ACC = 28; DT = 28; TT = 44; PT = 60; PA = 76; M = 80
    def setup_consts():
        a(f"""
s_mov_b32 s54, 0x05040100
s_mov_b32 s55, 0x07060302
s_mov_b32 s56, {f32(128**-0.5)}
s_mov_b32 s57, {f32(LOG2E)}
v_lshlrev_b32 v4, 8, v7
v_lshl_add_u32 v4, v5, 6, v4
v_lshl_add_u32 v4, v6, 4, v4
v_mov_b32 v84, 0
""")
    def wait_q():
        stamp(1)
        a(f"""
s_mov_b32 s58, {spin*8}
L_sq:
ds_read_b32 v85, v84 offset:{FLG+4}
s_waitcnt lgkmcnt(0)
v_readfirstlane_b32 s59, v85
s_sub_u32 s58, s58, 1
s_cbranch_scc1 L_sq_done
s_cmp_lg_u32 s59, 0
s_cbranch_scc1 L_sq_done
s_sleep 1
s_branch L_sq
L_sq_done:
ds_read_b128 v[{QB}:{QB+3}], v4 offset:{QL}
s_waitcnt lgkmcnt(0)
""")
        stamp(2)
    def ktile(t):
        for q in range(4):
            r = rreg(4 * t + q)
            a(f"v_mfma_f32_16x16x32_bf16 v[{DT+4*q}:{DT+4*q+3}], v[{r}:{r+3}], v[{QB}:{QB+3}], 0")
        for c in range(4):
            for r in range(4):
                n = 4 * ((c - r) % 4)
                ctl = f"row_ror:{n}" if n else "quad_perm:[0,1,2,3]"
                a(f"v_mov_b32_dpp v{TT+r}, v{DT+4*c+r} {ctl} row_mask:0xf bank_mask:{hex(1<<c)}")
        y = Y + t
        a(f"""
v_add_f32 v{TT}, v{TT}, v{TT+1}
v_add_f32 v{TT+2}, v{TT+2}, v{TT+3}
v_add_f32 v{y}, v{TT}, v{TT+2}
v_cvt_pk_bf16_f32 v{y}, v{y}, v{y}
v_lshlrev_b32 v{y}, 16, v{y}
v_mul_f32 v{y}, s56, v{y}
v_cvt_pk_bf16_f32 v{y}, v{y}, v{y}
v_lshlrev_b32 v{y}, 16, v{y}
""")
    def xlane(op, r, t):
        a(f"""
{op}_dpp v{r}, v{r}, v{r} row_ror:4 row_mask:0xf bank_mask:0xf
""") if op != "v_add_f32" else a(f"""
v_add_f32_dpp v{r}, v{r}, v{r} row_ror:4 row_mask:0xf bank_mask:0xf
""")
        a(f"""
{op}_dpp v{r}, v{r}, v{r} row_ror:8 row_mask:0xf bank_mask:0xf
v_mov_b32 v{t}, v{r}
v_permlane16_swap_b32 v{r}, v{t}
{op} v{r}, v{r}, v{t}
v_mov_b32 v{t}, v{r}
v_permlane32_swap_b32 v{r}, v{t}
{op} v{r}, v{r}, v{t}
""")
    def softmax():
        m = M; l = M + 1; t = M + 2
        a(f"v_max3_f32 v{m}, v{Y}, v{Y+1}, v{Y+2}")
        for i in range(3, 15, 2): a(f"v_max3_f32 v{m}, v{m}, v{Y+i}, v{Y+i+1}")
        a(f"v_max_f32 v{m}, v{m}, v{Y+15}")
        xlane("v_max_f32", m, t)
        a(f"v_mul_f32 v{m}, s57, v{m}")
        for i in range(16): a(f"v_fma_f32 v{Y+i}, v{Y+i}, s57, -v{m}")
        for i in range(16): a(f"v_exp_f32 v{Y+i}, v{Y+i}")
        a(f"v_add_f32 v{l}, v{Y}, v{Y+1}")
        a(f"v_add_f32 v{t}, v{Y+2}, v{Y+3}")
        for i in range(4, 16, 2):
            a(f"v_add_f32 v{l}, v{l}, v{Y+i}")
            a(f"v_add_f32 v{t}, v{t}, v{Y+i+1}")
        a(f"v_add_f32 v{l}, v{l}, v{t}")
        for v in range(8): a(f"v_cvt_pk_bf16_f32 v{Y+v}, v{Y+2*v}, v{Y+2*v+1}")
        xlane("v_add_f32", l, t)
        a(f"""
s_lshl_b32 s59, s3, 5
v_lshl_add_u32 v{t}, v1, 3, s59
s_mov_b64 exec, 15
ds_write_b64 v{t}, v[{m}:{m+1}] offset:{ST}
s_mov_b64 exec, -1
""")
    def vchunk(v):
        a(f"v_mov_b32 v{PA}, v{Y+v}")
        for p in (1, 2, 3):
            a(f"v_mov_b32_dpp v{PA+p}, v{Y+v} row_ror:{4*((0-p)%4)} row_mask:0xf bank_mask:0xf")
        for half in range(2):
            for jj in range(4 * half, 4 * half + 4):
                o = PT + 4 * (jj & 3)
                for p in range(4):
                    lo = rreg(64 + 8 * v + p) + (jj >> 1); hi = rreg(64 + 8 * v + 4 + p) + (jj >> 1)
                    a(f"v_perm_b32 v{o+p}, v{hi}, v{lo}, {'s55' if jj & 1 else 's54'}")
            for jj in range(4 * half, 4 * half + 4):
                o = PT + 4 * (jj & 3); d = ACC + 4 * jj
                c = "0" if v == 0 else f"v[{d}:{d+3}]"
                a(f"v_mfma_f32_16x16x32_bf16 v[{d}:{d+3}], v[{PA}:{PA+3}], v[{o}:{o+3}], {c}")
    work = [("K", t, 4 * t + 3) for t in range(16)] + [("S", 0, 63)] + [("V", v, 64 + 8 * v + 7) for v in range(8)]
    consumed = -1
    wi = 0
    def do_work():
        nonlocal wi, consumed
        k, i, last = work[wi]
        if k == "K":
            if i == 0: wait_q()
            ktile(i); consumed = last
        elif k == "S":
            softmax(); stamp(3)
        else:
            vchunk(i); consumed = last
        wi += 1
    issued = 0
    for n in range(WIN): issue(n)
    issued = WIN
    setup_consts()
    arrived = -1
    while issued < NL:
        a(f"s_waitcnt vmcnt({WIN-G})")
        arrived = issued - (WIN - G) - 1
        g = min(G, NL - issued)
        while issued + g - 1 - RING > consumed:
            assert work[wi][2] <= arrived, "ring too small"
            do_work()
        for n in range(issued, issued + g): issue(n)
        issued += g
        if wi < len(work) and work[wi][2] <= arrived and (wi > 0 or issued + G - 1 - RING > consumed):
            do_work()
    while wi < len(work):
        need_ = work[wi][2]
        if need_ > arrived:
            a(f"s_waitcnt vmcnt({NL-1-need_})"); arrived = need_
        do_work()
    stamp(4)
    a(f"""
s_mul_i32 s59, s3, 2304
v_mul_u32_u24 v4, 144, v1
v_add_u32 v4, s59, v4
s_mov_b64 exec, 0xffff
""")
    for jj in range(8):
        a(f"ds_write_b128 v4, v[{ACC+4*jj}:{ACC+4*jj+3}] offset:{OP+16*jj}")
    a("""
s_mov_b64 exec, -1
s_waitcnt lgkmcnt(0)
s_barrier
""")
    if prof:
        a(f"""
s_cmp_lg_u32 s3, 0
s_cbranch_scc1 L_end
s_mov_b32 s44, s40
s_mov_b32 s45, s41
s_mov_b32 s46, 0x10000000
s_mov_b32 s47, 0x20000
s_waitcnt lgkmcnt(0)
s_mul_i32 s59, s2, {16*8}
s_add_u32 s59, s59, {STAMP}
v_mov_b32 v4, 0
s_mov_b64 exec, 1
""")
        for i in range(5):
            a(f"v_mov_b32 v8, s{84+2*i}\nv_mov_b32 v9, s{85+2*i}\nbuffer_store_dwordx2 v[8:9], v4, s[44:47], s59 offen offset:{8*i}\ns_waitcnt vmcnt(0)")
    a("s_endpgm")
    X = 32; WQ = 64
    a(f"""
L_helper:
s_setprio 3
s_sub_u32 s3, s3, 4
s_mov_b32 s44, s16
s_mov_b32 s45, s17
s_mov_b32 s46, 8192
s_mov_b32 s47, 0x20000
s_mov_b32 s48, s22
s_mov_b32 s49, s23
s_mov_b32 s50, 0x400000
s_mov_b32 s51, 0x20000
s_mov_b32 s52, s40
s_mov_b32 s53, s41
s_mov_b32 s54, 0x10000000
s_mov_b32 s55, 0x20000
v_lshrrev_b32 v5, 4, v1
v_and_b32 v6, 7, v1
v_bfe_u32 v7, v1, 3, 1
s_lshr_b32 s4, s3, 1
s_and_b32 s5, s3, 1
v_xor_b32 v7, s4, v7
v_lshlrev_b32 v2, 10, v6
v_lshl_add_u32 v2, v7, 9, v2
v_lshl_add_u32 v2, v5, 4, v2
s_lshl_b32 s6, s5, 8
s_xor_b32 s7, s6, 256
v_mov_b32 v9, 0
""")
    for t in range(8):
        a(f"buffer_load_dwordx4 v[{X+4*t}:{X+4*t+3}], v2, s[44:47], {'s6' if t < 4 else 's7'} offen offset:{(t&3)*64}")
    a(f"""
buffer_load_dword v10, v9, s[52:55], 0 offen sc1
v_and_b32 v8, 15, v1
v_lshlrev_b32 v3, 16, v5
v_lshl_add_u32 v3, v8, 1, v3
s_and_b32 s8, s2, 7
s_lshl_b32 s8, s8, 5
s_lshr_b32 s9, s2, 3
s_add_u32 s8, s8, s9
s_lshl_b32 s9, s8, 5
s_lshl_b32 s10, s3, 20
s_add_u32 s9, s9, s10
""")
    for t in range(4):
        for j in range(8):
            a(f"buffer_load_ushort v{WQ+8*t+j}, v3, s[48:51], s9 offen {ntw}")
            if not (t == 3 and j == 7): a(f"s_add_u32 s9, s9, {8192 if j < 7 else 25*8192}")
    S1 = 12; S2 = 13; T0 = 14; T1 = 15; NM = 16; RS = 18
    def bfround(r): a(f"v_cvt_pk_bf16_f32 v{r}, v{r}, v{r}\nv_lshlrev_b32 v{r}, 16, v{r}")
    def stats_finish():
        a(f"""
v_mul_f32 v{S1}, {f32(1/512)}, v{S1}
v_mul_f32 v{S2}, {f32(1/512)}, v{S2}
v_fma_f32 v{S2}, -v{S1}, v{S1}, v{S2}
v_max_f32 v{S2}, 0, v{S2}
""")
        bfround(S1); bfround(S2)
        a(f"v_add_f32 v{S2}, {f32(1e-5)}, v{S2}")
        bfround(S2)
        a(f"v_sqrt_f32 v{S2}, v{S2}")
        bfround(S2)
        a(f"""
v_rcp_f32 v{RS}, v{S2}
v_sub_f32 v{NM}, 0, v{S1}
v_sub_f32 v{NM+1}, 0, v{S1}
v_mov_b32 v{RS+1}, v{RS}
""")
    def swaps_add(r, t):
        a(f"""
v_mov_b32 v{t}, v{r}
v_permlane16_swap_b32 v{r}, v{t}
v_add_f32 v{r}, v{r}, v{t}
v_mov_b32 v{t}, v{r}
v_permlane32_swap_b32 v{r}, v{t}
v_add_f32 v{r}, v{r}, v{t}
""")
    def normalize(src, dst, n, tmp, keep_f32=None):
        for i0 in range(0, n, 4):
            idx = list(range(i0, min(n, i0 + 4)))
            for i in idx:
                t = tmp + 2 * (i - i0)
                a(f"v_lshlrev_b32 v{t}, 16, v{src+i}\nv_and_b32 v{t+1}, 0xffff0000, v{src+i}")
            for i in idx:
                t = tmp + 2 * (i - i0)
                a(f"v_pk_add_f32 v[{t}:{t+1}], v[{t}:{t+1}], v[{NM}:{NM+1}]")
            for i in idx:
                t = tmp + 2 * (i - i0)
                a(f"v_cvt_pk_bf16_f32 v{t}, v{t}, v{t+1}")
            for i in idx:
                t = tmp + 2 * (i - i0)
                a(f"v_and_b32 v{t+1}, 0xffff0000, v{t}\nv_lshlrev_b32 v{t}, 16, v{t}")
            for i in idx:
                t = tmp + 2 * (i - i0)
                a(f"v_pk_mul_f32 v[{t}:{t+1}], v[{t}:{t+1}], v[{RS}:{RS+1}]")
            for i in idx:
                t = tmp + 2 * (i - i0)
                a(f"v_cvt_pk_bf16_f32 v{dst+i}, v{t}, v{t+1}")
    a(f"""
s_mov_b32 s11, 0x3f803f80
v_mov_b32 v{S1}, 0
v_mov_b32 v{S2}, 0
s_waitcnt vmcnt(33)
""")
    for i in range(32):
        a(f"v_dot2_f32_bf16 v{S1}, v{X+i}, s11, v{S1}")
        a(f"v_dot2_f32_bf16 v{S2}, v{X+i}, v{X+i}, v{S2}")
    a(f"""
v_add_f32_dpp v{S1}, v{S1}, v{S1} row_ror:8 row_mask:0xf bank_mask:0xf
v_add_f32_dpp v{S2}, v{S2}, v{S2} row_ror:8 row_mask:0xf bank_mask:0xf
""")
    swaps_add(S1, T0); swaps_add(S2, T1)
    stats_finish()
    normalize(X, X, 16, 20)
    a("s_waitcnt vmcnt(0)")
    stamp(1)
    for t in range(4):
        for p in range(4):
            a(f"v_lshl_or_b32 v{X+16+4*t+p}, v{WQ+8*t+2*p+1}, 16, v{WQ+8*t+2*p}")
    for t in range(4):
        a(f"v_mfma_f32_16x16x32_bf16 v[20:23], v[{X+4*t}:{X+4*t+3}], v[{X+16+4*t}:{X+16+4*t+3}], {'0' if t == 0 else 'v[20:23]'}")
    a(f"""
v_add_u32 v10, 1, v10
s_lshl_b32 s4, s3, 10
v_lshlrev_b32 v2, 8, v5
v_lshl_add_u32 v2, v8, 2, v2
v_add_u32 v2, s4, v2
v_readfirstlane_b32 s12, v10
v_mov_b32 v4, 1
ds_write_b32 v2, v20 offset:{QP}
ds_write_b32 v2, v21 offset:{QP+64}
ds_write_b32 v2, v22 offset:{QP+128}
ds_write_b32 v2, v23 offset:{QP+192}
s_waitcnt lgkmcnt(0)
s_mov_b64 exec, 1
ds_add_u32 v9, v4 offset:{FLG}
s_mov_b64 exec, -1
s_cmp_eq_u32 s3, 1
s_cbranch_scc1 L_gather
s_cmp_lg_u32 s3, 0
s_cbranch_scc1 L_bg
s_mov_b32 s58, {spin*8}
L_rw:
ds_read_b32 v4, v9 offset:{FLG}
s_waitcnt lgkmcnt(0)
v_readfirstlane_b32 s59, v4
s_sub_u32 s58, s58, 1
s_cbranch_scc1 L_rw_done
s_cmp_lt_u32 s59, 4
s_cbranch_scc1 L_rw
L_rw_done:
v_lshrrev_b32 v2, 3, v1
v_lshlrev_b32 v3, 6, v2
v_lshl_add_u32 v3, v6, 3, v3
ds_read_b64 v[20:21], v3 offset:{QP}
ds_read_b64 v[22:23], v3 offset:{QP+1024}
ds_read_b64 v[24:25], v3 offset:{QP+2048}
ds_read_b64 v[26:27], v3 offset:{QP+3072}
v_lshlrev_b32 v2, 14, v2
v_lshl_add_u32 v2, v6, 3, v2
s_lshl_b32 s4, s8, 6
s_add_u32 s4, s4, {QOFF}
s_waitcnt lgkmcnt(0)
v_pk_add_f32 v[20:21], v[20:21], v[22:23]
v_pk_add_f32 v[24:25], v[24:25], v[26:27]
v_pk_add_f32 v[20:21], v[20:21], v[24:25]
v_cvt_pk_bf16_f32 v20, v20, v21
v_mov_b32 v21, v10
buffer_store_dwordx2 v[20:21], v2, s[52:55], s4 offen sc1
""")
    stamp(2)
    a(f"""
s_branch L_bg
L_gather:
s_lshr_b32 s4, s2, 2
s_lshl_b32 s4, s4, 11
s_add_u32 s4, s4, {QOFF}
v_lshlrev_b32 v2, 5, v1
s_mov_b32 s58, {spin}
L_gq:
buffer_load_dwordx4 v[20:23], v2, s[52:55], s4 offen sc1
buffer_load_dwordx4 v[24:27], v2, s[52:55], s4 offen offset:16 sc1
s_waitcnt vmcnt(0)
v_xor_b32 v21, s12, v21
v_xor_b32 v23, s12, v23
v_xor_b32 v25, s12, v25
v_xor_b32 v27, s12, v27
v_or3_b32 v21, v21, v23, v25
v_or_b32 v21, v21, v27
v_cmp_ne_u32 vcc, 0, v21
s_sub_u32 s58, s58, 1
s_cbranch_scc1 L_gq_done
s_cbranch_vccnz L_gq
L_gq_done:
v_mov_b32 v21, v22
v_mov_b32 v22, v24
v_mov_b32 v23, v26
v_lshlrev_b32 v2, 4, v1
v_mov_b32 v4, 1
ds_write_b128 v2, v[20:23] offset:{QL}
s_waitcnt lgkmcnt(0)
s_mov_b64 exec, 1
ds_write_b32 v9, v4 offset:{FLG+4}
s_mov_b64 exec, -1
""")
    stamp(2)
    W1 = 32; B1 = 39; W2 = 46; HX = 56; U = 60; AA = 67; EE = 74; ACC2 = 81; C1 = 82; YA = 83; WOV = 84
    Z = [96, 128, 160, 192, 224]
    a(f"""
L_bg:
s_setprio 0
s_lshr_b32 s13, s2, 5
s_and_b32 s14, s2, 31
s_lshl_b32 s4, s13, 10
v_lshlrev_b32 v2, 4, v1
buffer_load_dwordx4 v[{HX}:{HX+3}], v2, s[44:47], s4 offen
s_mov_b32 s60, s28
s_mov_b32 s61, s29
s_mov_b32 s62, 3584
s_mov_b32 s63, 0x20000
s_mov_b32 s64, s30
s_mov_b32 s65, s31
s_mov_b32 s66, 3584
s_mov_b32 s67, 0x20000
s_mov_b32 s68, s32
s_mov_b32 s69, s33
s_mov_b32 s70, 3584
s_mov_b32 s71, 0x20000
s_mul_i32 s4, s3, 896
v_lshlrev_b32 v2, 1, v1
""")
    for t in range(7):
        a(f"buffer_load_ushort v{W1+t}, v2, s[60:63], s4 offen offset:{128*t}")
        a(f"buffer_load_ushort v{B1+t}, v2, s[64:67], s4 offen offset:{128*t}")
        a(f"buffer_load_ushort v{W2+t}, v2, s[68:71], s4 offen offset:{128*t}")
    a(f"""
v_readlane_b32 s4, v{NM}, s13
v_readlane_b32 s5, v{RS}, s13
s_mov_b32 s56, s24
s_mov_b32 s57, s25
s_mov_b32 s58, 0x400000
s_mov_b32 s59, 0x20000
v_mov_b32 v{NM}, s4
v_mov_b32 v{NM+1}, s4
v_mov_b32 v{RS}, s5
v_mov_b32 v{RS+1}, s5
v_mov_b32 v{S1}, 0
v_mov_b32 v{S2}, 0
s_waitcnt vmcnt(21)
""")
    normalize(HX, HX, 4, 20)
    for i in range(4):
        a(f"v_dot2_f32_bf16 v{S1}, v{HX+i}, s11, v{S1}")
        a(f"v_dot2_f32_bf16 v{S2}, v{HX+i}, v{HX+i}, v{S2}")
    for n in (8, 4, 2, 1):
        a(f"v_add_f32_dpp v{S1}, v{S1}, v{S1} row_ror:{n} row_mask:0xf bank_mask:0xf")
        a(f"v_add_f32_dpp v{S2}, v{S2}, v{S2} row_ror:{n} row_mask:0xf bank_mask:0xf")
    swaps_add(S1, T0); swaps_add(S2, T1)
    stats_finish()
    normalize(HX, HX, 4, 20)
    a("s_lshl_b32 s4, s14, 1\ns_add_u32 s5, s4, 1")
    for i in range(4): a(f"v_readlane_b32 s{72+i}, v{HX+i}, s4")
    for i in range(4): a(f"v_readlane_b32 s{76+i}, v{HX+i}, s5")
    a("s_waitcnt vmcnt(0)")
    for i in range(21): a(f"v_lshlrev_b32 v{W1+i}, 16, v{W1+i}")
    c0 = -2 * LOG2E * math.sqrt(2 / math.pi); c1 = c0 * 0.044715
    a(f"""
v_mov_b32 v{C1}, {f32(c1)}
s_lshl_b32 s4, s3, 6
v_mov_b32 v{YA}, s4
v_lshlrev_b32 v{WOV}, 13, v5
v_lshl_add_u32 v{WOV}, v8, 4, v{WOV}
s_lshl_b32 s6, s14, 17
s_lshl_b32 s7, s3, 8
s_add_u32 s6, s6, s7
s_and_b32 s15, s13, 3
""")
    for d in range(16):
        kk = d >> 2; j0 = (d & 3) * 2
        if j0 == 0:
            a(f"s_add_u32 s7, s15, {kk}\ns_and_b32 s7, s7, 3\ns_lshl_b32 s7, s7, 15\ns_add_u32 s7, s7, s6")
        if j0 == 4: a("s_add_u32 s7, s7, 4096")
        if wo_thr is not None and d > 0: a(f"s_waitcnt vmcnt({wo_thr-2})")
        for j in (j0, j0 + 1):
            r = Z[kk + 1] + 4 * j
            a(f"buffer_load_dwordx4 v[{r}:{r+3}], v{WOV}, s[56:59], s7 offen offset:{(j&3)*1024} {woflags}")
        if d & 1: a(f"s_and_b32 s4, s{72+(d>>1)}, 0xffff0000")
        else: a(f"s_lshl_b32 s4, s{72+(d>>1)}, 16")
        a("s_call_b64 s[80:81], L_mlp")
    stamp(3)
    a("s_mov_b32 s4, 0x05040100\ns_mov_b32 s5, 0x07060302\ns_waitcnt vmcnt(0)")
    for kk in range(4):
        for jj in range(8):
            for p in range(4):
                lo = Z[kk + 1] + 4 * (2 * p) + (jj >> 1); hi = Z[kk + 1] + 4 * (2 * p + 1) + (jj >> 1)
                a(f"v_perm_b32 v{Z[kk]+4*jj+p}, v{hi}, v{lo}, {'s5' if jj & 1 else 's4'}")
    a(f"""
v_lshrrev_b32 v2, 2, v1
v_mul_u32_u24 v20, 144, v2
v_and_b32 v3, 3, v1
v_lshl_add_u32 v20, v3, 5, v20
s_lshl_b32 s4, s3, 2
s_add_u32 s4, s4, {OP}
v_add_u32 v20, s4, v20
v_add_u32 v21, 2304, v20
v_add_u32 v22, 4608, v20
v_add_u32 v23, 6912, v20
s_lshl_b32 s4, s3, 3
v_mov_b32 v24, s4
v_lshlrev_b32 v25, 3, v1
v_and_b32 v2, 3, v2
v_add_u32 v2, s15, v2
v_and_b32 v2, 3, v2
v_lshlrev_b32 v27, 10, v3
v_lshl_add_u32 v26, v2, 7, v27
v_lshl_add_u32 v26, v5, 5, v26
s_and_b32 s4, s2, 0xfc
s_add_u32 s4, s4, s3
s_lshl_b32 s4, s4, 12
s_and_b32 s5, s2, 3
s_lshl_b32 s5, s5, 10
s_add_u32 s4, s4, s5
s_add_u32 s6, s4, {H1OFF}
s_lshl_b32 s7, s2, 12
s_add_u32 s9, s7, {H2OFF}
s_add_u32 s7, s7, {H1OFF}
v_lshrrev_b32 v2, 1, v8
v_lshlrev_b32 v28, 12, v2
v_and_b32 v2, 1, v8
v_lshl_add_u32 v28, v2, 6, v28
s_and_b32 s4, s2, 0xe0
s_lshl_b32 s5, s3, 3
s_add_u32 s4, s4, s5
s_lshl_b32 s4, s4, 12
s_lshl_b32 s5, s14, 7
s_add_u32 s4, s4, s5
s_add_u32 s8, s4, {H2OFF}
v_lshlrev_b32 v29, 4, v1
s_mov_b32 s60, s34
s_mov_b32 s61, s35
s_mov_b32 s62, 2
s_mov_b32 s63, 0x20000
s_mov_b32 s64, s36
s_mov_b32 s65, s37
s_mov_b32 s66, 8192
s_mov_b32 s67, 0x20000
v_lshlrev_b32 v30, 2, v6
s_lshl_b32 s10, s2, 5
buffer_load_ushort v31, v9, s[60:63], 0 offen
buffer_load_dword v19, v30, s[44:47], s10 offen
s_setprio 3
s_waitcnt vmcnt(0) lgkmcnt(0)
""")
    stamp(4)
    a("s_barrier")
    if prof: a("s_waitcnt lgkmcnt(0)")
    a(f"""
ds_read_b64 v[32:33], v24 offset:{ST}
ds_read_b64 v[34:35], v24 offset:{ST+32}
ds_read_b64 v[36:37], v24 offset:{ST+64}
ds_read_b64 v[38:39], v24 offset:{ST+96}
ds_read2_b32 v[40:41], v20 offset0:0 offset1:4
ds_read2_b32 v[42:43], v21 offset0:0 offset1:4
ds_read2_b32 v[44:45], v22 offset0:0 offset1:4
ds_read2_b32 v[46:47], v23 offset0:0 offset1:4
s_waitcnt lgkmcnt(4)
v_max3_f32 v48, v32, v34, v36
v_max_f32 v48, v48, v38
v_sub_f32 v32, v32, v48
v_sub_f32 v34, v34, v48
v_sub_f32 v36, v36, v48
v_sub_f32 v38, v38, v48
v_exp_f32 v32, v32
v_exp_f32 v34, v34
v_exp_f32 v36, v36
v_exp_f32 v38, v38
v_mov_b32 v49, v10
v_mov_b32 v51, v10
v_mul_f32 v50, v32, v33
s_waitcnt lgkmcnt(0)
v_mul_f32 v52, v32, v40
v_mul_f32 v53, v32, v41
v_fmac_f32 v52, v34, v42
v_fmac_f32 v53, v34, v43
v_fmac_f32 v52, v36, v44
v_fmac_f32 v53, v36, v45
v_fmac_f32 v52, v38, v46
v_fmac_f32 v53, v38, v47
v_fmac_f32 v50, v34, v35
v_fmac_f32 v50, v36, v37
v_cvt_pk_bf16_f32 v52, v52, v53
v_mov_b32 v53, v10
v_fmac_f32 v50, v38, v39
buffer_store_dwordx2 v[52:53], v25, s[52:55], s6 offen sc1
s_mov_b64 exec, 1
buffer_store_dwordx4 v[48:51], v9, s[52:55], s6 offen offset:512 sc1
s_mov_b64 exec, -1
""")
    stamp(5)
    a(f"""
s_mov_b32 s58, {spin}
L_h1:
buffer_load_dwordx4 v[32:35], v26, s[52:55], s7 offen sc1
buffer_load_dwordx4 v[36:39], v26, s[52:55], s7 offen offset:16 sc1
buffer_load_dwordx4 v[40:43], v27, s[52:55], s7 offen offset:512 sc1
s_waitcnt vmcnt(0)
v_xor_b32 v33, s12, v33
v_xor_b32 v35, s12, v35
v_xor_b32 v37, s12, v37
v_xor_b32 v39, s12, v39
v_xor_b32 v41, s12, v41
v_xor_b32 v43, s12, v43
v_or3_b32 v33, v33, v35, v37
v_or3_b32 v39, v39, v41, v43
v_or_b32 v33, v33, v39
v_cmp_ne_u32 vcc, 0, v33
s_sub_u32 s58, s58, 1
s_cbranch_scc1 L_h1_done
s_cbranch_vccnz L_h1
L_h1_done:
""")
    stamp(6)
    AO = 48
    for kk in range(4):
        for p in range(4):
            n = 4 * ((0 - kk) % 4)
            if n: a(f"v_mov_b32_dpp v{AO+4*kk+p}, v{32+2*p} row_ror:{n} row_mask:0xf bank_mask:0xf")
            else: a(f"v_mov_b32 v{AO+4*kk+p}, v{32+2*p}")
    DD = 64
    seq = []
    for kk in range(4):
        for jj in range(8):
            d = DD + 4 * jj; b = Z[kk] + 4 * jj
            seq.append(f"v_mfma_f32_16x16x32_bf16 v[{d}:{d+3}], v[{AO+4*kk}:{AO+4*kk+3}], v[{b}:{b+3}], {'0' if kk == 0 else f'v[{d}:{d+3}]'}")
    wv = f"""v_max_f32_dpp v44, v40, v40 quad_perm:[1,0,3,2] row_mask:0xf bank_mask:0xf
v_max_f32_dpp v45, v44, v44 quad_perm:[2,3,0,1] row_mask:0xf bank_mask:0xf
v_sub_f32 v40, v40, v45
v_exp_f32 v40, v40
v_mul_f32 v42, v40, v42
v_add_f32_dpp v44, v42, v42 quad_perm:[1,0,3,2] row_mask:0xf bank_mask:0xf
v_add_f32_dpp v45, v44, v44 quad_perm:[2,3,0,1] row_mask:0xf bank_mask:0xf
v_rcp_f32 v45, v45
v_mul_f32 v40, v40, v45
v_mov_b32_dpp v44, v40 quad_perm:[0,0,0,0] row_mask:0xf bank_mask:0xf
v_mov_b32_dpp v45, v40 quad_perm:[1,1,1,1] row_mask:0xf bank_mask:0xf
v_mov_b32_dpp v46, v40 quad_perm:[2,2,2,2] row_mask:0xf bank_mask:0xf
v_mov_b32_dpp v47, v40 quad_perm:[3,3,3,3] row_mask:0xf bank_mask:0xf""".split("\n")
    for i, m in enumerate(seq):
        a(m)
        if i >= 2 and i % 2 == 0 and wv: a(wv.pop(0))
    assert not wv
    GO = 224
    for jj in range(8): a(f"v_mov_b32 v{GO+2*jj+1}, v10")
    for jj in range(8): a(f"v_mul_f32 v{GO+2*jj}, v44, v{DD+4*jj}")
    for r in (1, 2, 3):
        for jj in range(8): a(f"v_fmac_f32 v{GO+2*jj}, v{44+r}, v{DD+4*jj+r}")
    a("s_mov_b64 exec, 0xffff")
    for i in range(4):
        a(f"buffer_store_dwordx4 v[{GO+4*i}:{GO+4*i+3}], v28, s[52:55], s8 offen offset:{16*i} sc1")
    a(f"""
s_mov_b64 exec, -1
s_cmp_lg_u32 s3, 0
s_cbranch_scc1 L_hend
""")
    stamp(7) if not prof else None
    a(f"""
v_lshlrev_b32 v2, 3, v6
ds_read_b64 v[32:33], v2 offset:{YP}
ds_read_b64 v[34:35], v2 offset:{YP+64}
ds_read_b64 v[36:37], v2 offset:{YP+128}
ds_read_b64 v[38:39], v2 offset:{YP+192}
v_lshlrev_b32 v31, 16, v31
s_waitcnt lgkmcnt(0)
v_pk_add_f32 v[32:33], v[32:33], v[34:35]
v_pk_add_f32 v[36:37], v[36:37], v[38:39]
v_pk_add_f32 v[32:33], v[32:33], v[36:37]
v_cvt_pk_bf16_f32 v32, v32, v33
v_and_b32 v33, 0xffff0000, v32
v_lshlrev_b32 v32, 16, v32
v_add_f32 v32, v32, v31
v_add_f32 v33, v33, v31
v_cvt_pk_bf16_f32 v32, v32, v33
v_and_b32 v33, 0xffff0000, v32
v_lshlrev_b32 v32, 16, v32
v_mul_f32 v34, {f32(-LOG2E)}, v32
v_mul_f32 v35, {f32(-LOG2E)}, v33
v_exp_f32 v34, v34
v_exp_f32 v35, v35
v_add_f32 v34, 1.0, v34
v_add_f32 v35, 1.0, v35
v_rcp_f32 v34, v34
v_rcp_f32 v35, v35
v_mul_f32 v32, v32, v34
v_mul_f32 v33, v33, v35
v_cvt_pk_bf16_f32 v32, v32, v33
v_and_b32 v33, 0xffff0000, v32
v_lshlrev_b32 v32, 16, v32
v_lshlrev_b32 v34, 16, v19
v_and_b32 v35, 0xffff0000, v19
s_mov_b32 s58, {spin}
L_h2:
buffer_load_dwordx4 v[48:51], v29, s[52:55], s9 offen sc1
buffer_load_dwordx4 v[52:55], v29, s[52:55], s9 offen offset:1024 sc1
buffer_load_dwordx4 v[56:59], v29, s[52:55], s9 offen offset:2048 sc1
buffer_load_dwordx4 v[60:63], v29, s[52:55], s9 offen offset:3072 sc1
s_waitcnt vmcnt(0)
v_xor_b32 v49, s12, v49
v_xor_b32 v51, s12, v51
v_xor_b32 v53, s12, v53
v_xor_b32 v55, s12, v55
v_xor_b32 v57, s12, v57
v_xor_b32 v59, s12, v59
v_xor_b32 v61, s12, v61
v_xor_b32 v63, s12, v63
v_or3_b32 v49, v49, v51, v53
v_or3_b32 v55, v55, v57, v59
v_or3_b32 v49, v49, v61, v63
v_or_b32 v49, v49, v55
v_cmp_ne_u32 vcc, 0, v49
s_sub_u32 s58, s58, 1
s_cbranch_scc1 L_h2_done
s_cbranch_vccnz L_h2
L_h2_done:
v_add_f32 v48, v48, v52
v_add_f32 v50, v50, v54
v_add_f32 v56, v56, v60
v_add_f32 v58, v58, v62
v_add_f32 v48, v48, v56
v_add_f32 v50, v50, v58
v_add_f32_dpp v48, v48, v48 row_ror:8 row_mask:0xf bank_mask:0xf
v_add_f32_dpp v50, v50, v50 row_ror:8 row_mask:0xf bank_mask:0xf
v_mov_b32 v52, v48
v_mov_b32 v53, v50
v_permlane16_swap_b32 v48, v52
v_permlane16_swap_b32 v50, v53
v_add_f32 v48, v48, v52
v_add_f32 v50, v50, v53
v_mov_b32 v52, v48
v_mov_b32 v53, v50
v_permlane32_swap_b32 v48, v52
v_permlane32_swap_b32 v50, v53
v_add_f32 v48, v48, v52
v_add_f32 v50, v50, v53
v_cvt_pk_bf16_f32 v48, v48, v50
v_and_b32 v49, 0xffff0000, v48
v_lshlrev_b32 v48, 16, v48
v_pk_mul_f32 v[48:49], v[48:49], v[32:33]
v_cvt_pk_bf16_f32 v48, v48, v49
v_and_b32 v49, 0xffff0000, v48
v_lshlrev_b32 v48, 16, v48
v_pk_add_f32 v[48:49], v[48:49], v[34:35]
v_cvt_pk_bf16_f32 v48, v48, v49
s_mov_b64 exec, 0xff
buffer_store_dword v48, v30, s[64:67], s10 offen
s_mov_b64 exec, 1
s_cmp_lg_u32 s2, 0
s_cbranch_scc1 L_hend
buffer_store_dword v10, v9, s[52:55], 0 offen sc1
L_hend:
""")
    if prof:
        stamp(7)
        a(f"""
s_mov_b64 exec, 1
s_cmp_gt_u32 s3, 1
s_cbranch_scc1 L_end
s_waitcnt lgkmcnt(0)
s_mul_i32 s59, s2, {16*8}
s_add_u32 s59, s59, {STAMP}
s_cmp_eq_u32 s3, 1
s_cbranch_scc1 L_p1
""")
        for i in range(1, 8):
            a(f"v_mov_b32 v12, s{84+2*i}\nv_mov_b32 v13, s{85+2*i}\nbuffer_store_dwordx2 v[12:13], v9, s[52:55], s59 offen offset:{8*(i+8)}\ns_waitcnt vmcnt(0)")
        a("s_endpgm\nL_p1:")
        for i, o in ((1, 5), (2, 6), (3, 7), (4, 8)):
            a(f"v_mov_b32 v12, s{84+2*i}\nv_mov_b32 v13, s{85+2*i}\nbuffer_store_dwordx2 v[12:13], v9, s[52:55], s59 offen offset:{8*o}\ns_waitcnt vmcnt(0)")
    a("L_end:\ns_endpgm")
    a("L_mlp:")
    for t in range(7): a(f"v_fma_f32 v{U+t}, s4, v{W1+t}, v{B1+t}")
    for t in range(7): a(f"v_mul_f32 v{AA+t}, v{U+t}, v{U+t}")
    for t in range(7): a(f"v_fmaak_f32 v{AA+t}, v{AA+t}, v{C1}, {f32(c0)}")
    for t in range(7): a(f"v_mul_f32 v{AA+t}, v{AA+t}, v{U+t}")
    for t in range(7): a(f"v_exp_f32 v{EE+t}, v{AA+t}")
    for t in range(7): a(f"v_mul_f32 v{U+t}, v{U+t}, v{W2+t}")
    for t in range(7): a(f"v_add_f32 v{EE+t}, 1.0, v{EE+t}")
    for t in range(7): a(f"v_rcp_f32 v{EE+t}, v{EE+t}")
    a(f"v_mul_f32 v{ACC2}, v{U}, v{EE}")
    a(f"v_mul_f32 v{AA}, v{U+1}, v{EE+1}")
    for t in range(2, 7): a(f"v_fmac_f32 v{ACC2 if t % 2 == 0 else AA}, v{U+t}, v{EE+t}")
    a(f"v_add_f32 v{ACC2}, v{ACC2}, v{AA}")
    for n in (8, 4, 2, 1): a(f"v_add_f32_dpp v{ACC2}, v{ACC2}, v{ACC2} row_ror:{n} row_mask:0xf bank_mask:0xf")
    swaps_add(ACC2, AA)
    a(f"""
s_mov_b64 exec, 1
ds_write_b32 v{YA}, v{ACC2} offset:{YP}
s_mov_b64 exec, -1
v_add_u32 v{YA}, 4, v{YA}
s_setpc_b64 s[80:81]
""")
    body = a.render()
    txt = HDR + f"""; @launch grid=(256,1,1) block=(512,1,1) lds={LDSZ}
.amdgcn_target "amdgcn-amd-amdhsa--gfx950"
.text
.globl {KN}_kernel
.p2align 8
.type {KN}_kernel,@function
{KN}_kernel:
""" + body + f""".section .rodata,"a"
.p2align 6
.amdhsa_kernel {KN}_kernel
  .amdhsa_next_free_vgpr 256
  .amdhsa_next_free_sgpr 102
  .amdhsa_accum_offset 256
  .amdhsa_group_segment_fixed_size 0
  .amdhsa_kernarg_size 104
  .amdhsa_user_sgpr_count 2
  .amdhsa_user_sgpr_kernarg_segment_ptr 1
  .amdhsa_system_sgpr_workgroup_id_x 1
.end_amdhsa_kernel
"""
    open(fname, "w").write(txt)
if __name__ == "__main__":
    gen("k1.s")
    gen("k1p.s", prof=True)
```

```python
import sys, struct, math
from asmlib import Asm
KN = "recurrent_scan__gqa_block_cached__mixer_token_mlp__decode"
def f32(x): return "0x%08x" % struct.unpack("<I", struct.pack("<f", x))[0]
LOG2E = 1.4426950408889634
FLG = 0; QL = 64; ST = QL + 1024; YP = ST + 128; OP = YP + 256; XN = OP + 4 * 2304; XRS = 1040; WQL = XN + 8 * XRS; KL = WQL + 32768
QOFF = 64 << 10; H1OFF = QOFF + (1 << 20); H1S = 640; H2OFF = H1OFF + (640 << 10); STAMP = 128 << 20
HDR = open("cdna_kernels/" + KN + ".s.ref").read().split("; Override launch")[0]

def gen(fname, WIN=6, G=2, RING=40, prof=False, wo_thr=4, ntw="", woflags="", spin=400000, dbg="", WPS=1, dry=False, tailprof=False, NLT=6, slp=2, wqdma=True, sprio=2, bgprio=0, mlp1=8):
    a = Asm()
    LDSZ = KL + 4 * NLT * 4096
    NLL = 4 * NLT
    NST = 8
    def stamp(i):
        if prof: a(f"s_memrealtime s[{84+2*i}:{85+2*i}]")
    a(f"""
s_cmp_ge_u32 s2, 256
s_cbranch_scc1 L_end
""")
    stamp(0)
    a(f"""
s_load_dwordx16 s[16:31], s[0:1], 0
s_load_dwordx8 s[32:39], s[0:1], 64
s_load_dwordx2 s[40:41], s[0:1], 96
v_and_b32 v1, 63, v0
v_lshrrev_b32 v2, 6, v0
v_and_b32 v3, 15, v0
v_lshlrev_b32 v3, 2, v3
v_mov_b32 v4, 0
v_readfirstlane_b32 s3, v2
ds_write_b32 v3, v4
s_waitcnt lgkmcnt(0)
s_cmp_ge_u32 s3, 4
s_cbranch_scc1 L_helper
""")
    a(f"""
s_setprio {sprio}
s_mov_b32 s44, s18
s_mov_b32 s45, s19
s_mov_b32 s46, 0x4000000
s_mov_b32 s47, 0x20000
s_mov_b32 s48, s20
s_mov_b32 s49, s21
s_mov_b32 s50, 0x4000000
s_mov_b32 s51, 0x20000
s_lshl_b32 s52, s2, 18
s_lshl_b32 s53, s3, 12
s_add_u32 s52, s52, s53
s_mul_i32 s60, s3, {NLT*4096}
s_add_u32 s60, s60, {KL}
v_lshrrev_b32 v5, 4, v1
v_bfe_u32 v6, v1, 2, 2
v_and_b32 v7, 3, v1
v_lshlrev_b32 v2, 8, v6
v_lshl_add_u32 v2, v5, 6, v2
v_lshl_add_u32 v2, v7, 4, v2
v_lshlrev_b32 v3, 4, v1
""")
    RB = 256 - RING * 4
    def rreg(n): return RB + ((n - NLL) % RING) * 4
    NL = 128
    st = {"tile": None}
    def issue(n):
        isv = n >= 64; t = (n & 63) >> 2; q = n & 3
        if st["tile"] != (isv, t):
            st["tile"] = (isv, t)
            a(f"s_add_u32 s53, s52, {t*16384}")
            if n < NLL: a(f"s_add_u32 m0, s60, {t*4096}\ns_nop 0")
        if n < NLL:
            a(f"buffer_load_dwordx4 v2, s[44:47], s53 offen offset:{q*1024} nt lds"); return
        r = rreg(n)
        a(f"buffer_load_dwordx4 v[{r}:{r+3}], {'v3' if isv else 'v2'}, {'s[48:51]' if isv else 's[44:47]'}, s53 offen offset:{q*1024} nt")
    QB = 8; Y = 12; ACC = 28; DT = 28; TT = 44; PT = 60; PA = 76; M = 80
    def setup_consts():
        a(f"""
s_mov_b32 s54, 0x05040100
s_mov_b32 s55, 0x07060302
s_mov_b32 s56, {f32(128**-0.5)}
s_mov_b32 s57, {f32(LOG2E)}
v_lshlrev_b32 v4, 8, v7
v_lshl_add_u32 v4, v5, 6, v4
v_lshl_add_u32 v4, v6, 4, v4
v_mov_b32 v84, 0
v_add_u32 v86, s60, v3
""")
    def wait_q():
        stamp(1)
        if "noq" in dbg:
            a(f"ds_read_b128 v[{QB}:{QB+3}], v4 offset:{QL}\ns_waitcnt lgkmcnt(0)"); stamp(2); return
        a(f"""
s_mov_b32 s58, {spin*8}
L_sq:
ds_read_b32 v85, v84 offset:{FLG+4}
s_waitcnt lgkmcnt(0)
v_readfirstlane_b32 s59, v85
s_sub_u32 s58, s58, 1
s_cbranch_scc1 L_sq_done
s_cmp_ge_u32 s59, 4
s_cbranch_scc1 L_sq_done
s_sleep 1
s_branch L_sq
L_sq_done:
ds_read_b128 v[{QB}:{QB+3}], v4 offset:{QL}
s_waitcnt lgkmcnt(0)
""")
        stamp(2)
        if prof: a("s_waitcnt lgkmcnt(0)")
    def ktile(t):
        if t < NLT:
            for q in range(4): a(f"ds_read_b128 v[{PT+4*q}:{PT+4*q+3}], v86 offset:{t*4096+q*1024}")
        for q in range(4):
            r = rreg(4 * t + q) if t >= NLT else PT + 4 * q
            if t < NLT: a(f"s_waitcnt lgkmcnt({3-q})")
            a(f"v_mfma_f32_16x16x32_bf16 v[{DT+4*q}:{DT+4*q+3}], v[{r}:{r+3}], v[{QB}:{QB+3}], 0")
        for c in range(4):
            for r in range(4):
                n = 4 * ((c - r) % 4)
                ctl = f"row_ror:{n}" if n else "quad_perm:[0,1,2,3]"
                a(f"v_mov_b32_dpp v{TT+r}, v{DT+4*c+r} {ctl} row_mask:0xf bank_mask:{hex(1<<c)}")
        y = Y + t
        a(f"""
v_add_f32 v{TT}, v{TT}, v{TT+1}
v_add_f32 v{TT+2}, v{TT+2}, v{TT+3}
v_add_f32 v{y}, v{TT}, v{TT+2}
v_cvt_pk_bf16_f32 v{y}, v{y}, v{y}
v_lshlrev_b32 v{y}, 16, v{y}
v_mul_f32 v{y}, s56, v{y}
v_cvt_pk_bf16_f32 v{y}, v{y}, v{y}
v_lshlrev_b32 v{y}, 16, v{y}
""")
    def xlane(op, r, t):
        a(f"""
{op}_dpp v{r}, v{r}, v{r} row_ror:4 row_mask:0xf bank_mask:0xf
""") if op != "v_add_f32" else a(f"""
v_add_f32_dpp v{r}, v{r}, v{r} row_ror:4 row_mask:0xf bank_mask:0xf
""")
        a(f"""
{op}_dpp v{r}, v{r}, v{r} row_ror:8 row_mask:0xf bank_mask:0xf
v_mov_b32 v{t}, v{r}
v_permlane16_swap_b32 v{r}, v{t}
{op} v{r}, v{r}, v{t}
v_mov_b32 v{t}, v{r}
v_permlane32_swap_b32 v{r}, v{t}
{op} v{r}, v{r}, v{t}
""")
    def softmax():
        m = M; l = M + 1; t = M + 2
        a(f"v_max3_f32 v{m}, v{Y}, v{Y+1}, v{Y+2}")
        for i in range(3, 15, 2): a(f"v_max3_f32 v{m}, v{m}, v{Y+i}, v{Y+i+1}")
        a(f"v_max_f32 v{m}, v{m}, v{Y+15}")
        xlane("v_max_f32", m, t)
        a(f"v_mul_f32 v{m}, s57, v{m}")
        for i in range(16): a(f"v_fma_f32 v{Y+i}, v{Y+i}, s57, -v{m}")
        for i in range(16): a(f"v_exp_f32 v{Y+i}, v{Y+i}")
        a(f"v_add_f32 v{l}, v{Y}, v{Y+1}")
        a(f"v_add_f32 v{t}, v{Y+2}, v{Y+3}")
        for i in range(4, 16, 2):
            a(f"v_add_f32 v{l}, v{l}, v{Y+i}")
            a(f"v_add_f32 v{t}, v{t}, v{Y+i+1}")
        a(f"v_add_f32 v{l}, v{l}, v{t}")
        for v in range(8): a(f"v_cvt_pk_bf16_f32 v{Y+v}, v{Y+2*v}, v{Y+2*v+1}")
        xlane("v_add_f32", l, t)
        a(f"""
s_lshl_b32 s59, s3, 5
v_lshl_add_u32 v{t}, v1, 3, s59
s_mov_b64 exec, 15
ds_write_b64 v{t}, v[{m}:{m+1}] offset:{ST}
s_mov_b64 exec, -1
""")
    def vchunk(v):
        a(f"v_mov_b32 v{PA}, v{Y+v}")
        for p in (1, 2, 3):
            a(f"v_mov_b32_dpp v{PA+p}, v{Y+v} row_ror:{4*((0-p)%4)} row_mask:0xf bank_mask:0xf")
        for half in range(2):
            for jj in range(4 * half, 4 * half + 4):
                o = PT + 4 * (jj & 3)
                for p in range(4):
                    lo = rreg(64 + 8 * v + p) + (jj >> 1); hi = rreg(64 + 8 * v + 4 + p) + (jj >> 1)
                    a(f"v_perm_b32 v{o+p}, v{hi}, v{lo}, {'s55' if jj & 1 else 's54'}")
            for jj in range(4 * half, 4 * half + 4):
                o = PT + 4 * (jj & 3); d = ACC + 4 * jj
                c = "0" if v == 0 else f"v[{d}:{d+3}]"
                a(f"v_mfma_f32_16x16x32_bf16 v[{d}:{d+3}], v[{PA}:{PA+3}], v[{o}:{o+3}], {c}")
    work = [("K", t, 4 * t + 3) for t in list(range(NLT, 16)) + list(range(NLT))] + [("S", 0, 63)] + [("V", v, 64 + 8 * v + 7) for v in range(8)]
    consumed = NLL - 1
    wi = 0
    def do_work():
        nonlocal wi, consumed
        k, i, last = work[wi]
        if k == "K":
            if wi == 0: wait_q()
            ktile(i); consumed = max(consumed, last)
        elif k == "S":
            softmax(); stamp(3)
        else:
            vchunk(i); consumed = last
        wi += 1
    issued = 0
    for n in range(WIN): issue(n)
    issued = WIN
    a("s_barrier")
    setup_consts()
    arrived = -1
    while issued < NL:
        a(f"s_waitcnt vmcnt({WIN-G})")
        arrived = issued - (WIN - G) - 1
        g = min(G, NL - issued)
        while issued + g - 1 - RING > consumed:
            assert work[wi][2] <= arrived, "ring too small"
            do_work()
        for n in range(issued, issued + g): issue(n)
        issued += g
        for _ in range(WPS):
            if wi < len(work) and work[wi][2] <= arrived and (wi > 0 or issued + G - 1 - RING > consumed):
                do_work()
    while wi < len(work):
        need_ = work[wi][2]
        if need_ > arrived:
            a(f"s_waitcnt vmcnt({NL-1-need_})"); arrived = need_
        do_work()
    stamp(4)
    a(f"""
s_mul_i32 s59, s3, 2304
v_mul_u32_u24 v4, 144, v1
v_add_u32 v4, s59, v4
s_mov_b64 exec, 0xffff
""")
    for jj in range(8):
        a(f"ds_write_b128 v4, v[{ACC+4*jj}:{ACC+4*jj+3}] offset:{OP+16*jj}")
    a("""
s_mov_b64 exec, -1
s_waitcnt lgkmcnt(0)
s_barrier
""")
    if prof:
        a(f"""
s_mov_b32 s44, s40
s_mov_b32 s45, s41
s_mov_b32 s46, 0x10000000
s_mov_b32 s47, 0x20000
s_sleep 127
s_sleep 127
s_sleep 127
s_waitcnt lgkmcnt(0)
s_lshl_b32 s59, s2, 3
s_add_u32 s59, s59, s3
s_lshl_b32 s59, s59, 6
s_add_u32 s59, s59, {STAMP}
v_mov_b32 v4, 0
s_mov_b64 exec, 1
""")
        for i in range(8):
            a(f"v_mov_b32 v8, s{84+2*min(i,4)}\nv_mov_b32 v9, s{85+2*min(i,4)}\nbuffer_store_dwordx2 v[8:9], v4, s[44:47], s59 offen offset:{8*i}\ns_waitcnt vmcnt(0)")
    a("s_endpgm")
    X = 32
    S1 = 12; S2 = 13; T0 = 14; T1 = 15; NM = 16; RS = 18
    W1 = 40; B1 = 47; W2 = 54; HX = 62; U = 66; AA = 73; EE = 80; ACC2 = 87; C1 = 88; YA = 89
    WB = 192
    def srd(base, lo, size): a(f"s_mov_b32 s{base}, s{lo}\ns_mov_b32 s{base+1}, s{lo+1}\ns_mov_b32 s{base+2}, {size}\ns_mov_b32 s{base+3}, 0x20000")
    def bfround(r): a(f"v_cvt_pk_bf16_f32 v{r}, v{r}, v{r}\nv_lshlrev_b32 v{r}, 16, v{r}")
    def stats_finish():
        a(f"""
v_mul_f32 v{S1}, {f32(1/512)}, v{S1}
v_mul_f32 v{S2}, {f32(1/512)}, v{S2}
v_fma_f32 v{S2}, -v{S1}, v{S1}, v{S2}
v_max_f32 v{S2}, 0, v{S2}
""")
        bfround(S1); bfround(S2)
        a(f"v_add_f32 v{S2}, {f32(1e-5)}, v{S2}")
        bfround(S2)
        a(f"v_sqrt_f32 v{S2}, v{S2}")
        bfround(S2)
        a(f"""
v_rcp_f32 v{RS}, v{S2}
v_sub_f32 v{NM}, 0, v{S1}
v_sub_f32 v{NM+1}, 0, v{S1}
v_mov_b32 v{RS+1}, v{RS}
""")
    def swaps_add(r, t):
        a(f"""
v_mov_b32 v{t}, v{r}
v_permlane16_swap_b32 v{r}, v{t}
v_add_f32 v{r}, v{r}, v{t}
v_mov_b32 v{t}, v{r}
v_permlane32_swap_b32 v{r}, v{t}
v_add_f32 v{r}, v{r}, v{t}
""")
    def normalize(src, dst, n, tmp):
        for i0 in range(0, n, 4):
            idx = list(range(i0, min(n, i0 + 4)))
            for i in idx:
                t = tmp + 2 * (i - i0)
                a(f"v_lshlrev_b32 v{t}, 16, v{src+i}\nv_and_b32 v{t+1}, 0xffff0000, v{src+i}")
            for i in idx:
                t = tmp + 2 * (i - i0)
                a(f"v_pk_add_f32 v[{t}:{t+1}], v[{t}:{t+1}], v[{NM}:{NM+1}]")
            for i in idx:
                t = tmp + 2 * (i - i0)
                a(f"v_cvt_pk_bf16_f32 v{t}, v{t}, v{t+1}")
            for i in idx:
                t = tmp + 2 * (i - i0)
                a(f"v_and_b32 v{t+1}, 0xffff0000, v{t}\nv_lshlrev_b32 v{t}, 16, v{t}")
            for i in idx:
                t = tmp + 2 * (i - i0)
                a(f"v_pk_mul_f32 v[{t}:{t+1}], v[{t}:{t+1}], v[{RS}:{RS+1}]")
            for i in idx:
                t = tmp + 2 * (i - i0)
                a(f"v_cvt_pk_bf16_f32 v{dst+i}, v{t}, v{t+1}")
    def lds_wait(lbl, off, cnt):
        a(f"""
s_mov_b32 s58, {spin*8}
{lbl}:
ds_read_b32 v4, v9 offset:{off}
s_waitcnt lgkmcnt(0)
v_readfirstlane_b32 s59, v4
s_sub_u32 s58, s58, 1
s_cbranch_scc1 {lbl}_done
s_cmp_lt_u32 s59, {cnt}
s_cbranch_scc1 {lbl}
{lbl}_done:
""")
    def lds_signal(off):
        a(f"""
s_mov_b64 exec, 1
ds_add_u32 v9, v11 offset:{off}
s_mov_b64 exec, -1
""")
    def poll(lbl, loads, tags):
        a(f"s_mov_b32 s58, {spin}\n{lbl}:")
        for l in loads: a(l)
        a("s_waitcnt vmcnt(0)")
        for t in tags: a(f"v_xor_b32 v{t}, s12, v{t}")
        ts = list(tags)
        while len(ts) > 1:
            if len(ts) >= 3:
                a(f"v_or3_b32 v{ts[0]}, v{ts[0]}, v{ts[1]}, v{ts[2]}"); ts = ts[3:] + [ts[0]]
            else:
                a(f"v_or_b32 v{ts[0]}, v{ts[0]}, v{ts[1]}"); ts = [ts[0]]
        a(f"""
v_cmp_ne_u32 vcc, 0, v{ts[0]}
s_sub_u32 s58, s58, 1
s_cbranch_scc1 {lbl}_done
s_and_b64 exec, exec, vcc
s_cbranch_execz {lbl}_done
s_sleep {slp}
s_branch {lbl}
{lbl}_done:
s_mov_b64 exec, -1
""")
    a("L_helper:\ns_setprio 3\ns_sub_u32 s3, s3, 4")
    srd(44, 16, 8192); srd(48, 22, 0x400000); srd(52, 40, 0x10000000); srd(56, 24, 0x400000)
    srd(60, 28, 3584); srd(64, 30, 3584); srd(68, 32, 3584)
    a(f"""
v_lshrrev_b32 v5, 4, v1
v_and_b32 v6, 7, v1
v_and_b32 v8, 15, v1
v_lshrrev_b32 v7, 5, v1
v_and_b32 v4, 31, v1
v_lshlrev_b32 v4, 4, v4
v_lshl_add_u32 v2, v7, 10, v4
s_lshl_b32 s6, s3, 11
v_mov_b32 v9, 0
v_mov_b32 v11, 1
v_lshrrev_b32 v20, 3, v1
v_lshlrev_b32 v21, 13, v20
v_lshl_add_u32 v21, v6, 4, v21
v_lshlrev_b32 v22, 10, v20
v_lshl_add_u32 v22, v6, 4, v22
s_and_b32 s8, s2, 63
s_lshr_b32 s9, s2, 6
s_lshl_b32 s4, s9, 2
s_add_u32 s4, s4, s3
s_lshl_b32 s4, s4, 18
s_lshl_b32 s5, s8, 7
s_add_u32 s72, s4, s5
s_lshr_b32 s13, s2, 3
s_and_b32 s14, s2, 7
s_lshl_b32 s4, s13, 2
s_add_u32 s4, s4, s3
s_lshl_b32 s4, s4, 15
s_lshl_b32 s5, s14, 7
s_add_u32 s73, s4, s5
s_lshl_b32 s4, s3, 12
s_add_u32 s74, s4, {WQL}
s_mul_i32 s75, s3, 896
v_lshlrev_b32 v23, 1, v1
s_barrier
buffer_load_dwordx4 v[{X}:{X+3}], v2, s[44:47], s6 offen
buffer_load_dwordx4 v[{X+4}:{X+7}], v2, s[44:47], s6 offen offset:512
buffer_load_dword v10, v9, s[52:55], 0 offen sc1
""")
    for t in range(4):
        a(f"s_add_u32 m0, s74, {t*1024}\ns_nop 0\nbuffer_load_dwordx4 v21, s[48:51], s72 offen nt lds")
        if t < 3: a(f"s_add_u32 s72, s72, {8*8192}")
    for t in range(4):
        a(f"s_add_u32 m0, s74, {16384+t*1024}\ns_nop 0\nbuffer_load_dwordx4 v22, s[56:59], s73 offen nt lds")
        if t < 3: a(f"s_add_u32 s73, s73, {8*1024}")
    for t in range(7):
        a(f"buffer_load_ushort v{W1+t}, v23, s[60:63], s75 offen offset:{128*t}")
        a(f"buffer_load_ushort v{B1+t}, v23, s[64:67], s75 offen offset:{128*t}")
        a(f"buffer_load_ushort v{W2+t}, v23, s[68:71], s75 offen offset:{128*t}")
    srd(60, 34, 2); srd(64, 36, 8192)
    a(f"""
v_lshlrev_b32 v30, 2, v6
s_lshl_b32 s10, s2, 5
buffer_load_ushort v31, v9, s[60:63], 0 offen
buffer_load_dword v29, v30, s[44:47], s10 offen
s_mov_b32 s11, 0x3f803f80
v_mov_b32 v{S1}, 0
v_mov_b32 v{S2}, 0
s_waitcnt vmcnt(32)
""")
    for i in range(8):
        a(f"v_dot2_f32_bf16 v{S1}, v{X+i}, s11, v{S1}")
        a(f"v_dot2_f32_bf16 v{S2}, v{X+i}, v{X+i}, v{S2}")
    for n in (8, 4, 2, 1):
        a(f"v_add_f32_dpp v{S1}, v{S1}, v{S1} row_ror:{n} row_mask:0xf bank_mask:0xf")
        a(f"v_add_f32_dpp v{S2}, v{S2}, v{S2} row_ror:{n} row_mask:0xf bank_mask:0xf")
    a(f"""
v_mov_b32 v{T0}, v{S1}
v_mov_b32 v{T1}, v{S2}
v_permlane16_swap_b32 v{S1}, v{T0}
v_permlane16_swap_b32 v{S2}, v{T1}
v_add_f32 v{S1}, v{S1}, v{T0}
v_add_f32 v{S2}, v{S2}, v{T1}
""")
    stats_finish()
    normalize(X, X, 8, 20)
    a(f"""
s_mul_i32 s4, s3, {2*XRS}
v_mul_u32_u24 v2, {XRS}, v7
v_add3_u32 v2, v2, v4, s4
ds_write_b128 v2, v[{X}:{X+3}] offset:{XN}
ds_write_b128 v2, v[{X+4}:{X+7}] offset:{XN+512}
v_mul_u32_u24 v2, {XRS}, v6
v_lshl_add_u32 v2, v5, 4, v2
s_lshl_b32 s4, s9, 8
v_add_u32 v2, s4, v2
v_bfe_u32 v3, v1, 2, 2
v_lshl_add_u32 v3, v5, 3, v3
v_lshlrev_b32 v3, 7, v3
v_and_b32 v20, 3, v1
v_lshl_add_u32 v3, v20, 3, v3
s_lshl_b32 s4, s3, 5
v_add_u32 v24, s4, v3
s_waitcnt vmcnt(23) lgkmcnt(0)
""")
    lds_signal(FLG + 8)
    a(f"""
v_add_u32 v10, 1, v10
v_lshlrev_b32 v25, 19, v5
v_lshl_add_u32 v25, v8, 3, v25
s_lshl_b32 s4, s8, 11
s_lshl_b32 s5, s9, 9
s_add_u32 s4, s4, s5
s_lshl_b32 s5, s3, 7
s_add_u32 s4, s4, s5
s_add_u32 s72, s4, {QOFF}
v_readfirstlane_b32 s12, v10
v_mov_b32 v21, v10
v_mov_b32 v23, v10
v_mov_b32 v27, v10
""")
    lds_wait("L_xw", FLG + 8, 4)
    for t in range(4):
        a(f"ds_read_b128 v[{96+4*t}:{99+4*t}], v2 offset:{XN+64*t}")
        for u in range(2): a(f"ds_read_b64_tr_b16 v[{112+4*t+2*u}:{113+4*t+2*u}], v24 offset:{WQL+t*4096+u*512}")
    a("s_waitcnt lgkmcnt(0)")
    stamp(1)
    for t in range(4):
        a(f"v_mfma_f32_16x16x32_bf16 v[128:131], v[{96+4*t}:{99+4*t}], v[{112+4*t}:{115+4*t}], {'0' if t == 0 else 'v[128:131]'}")
    a(f"""
s_add_u32 s73, s72, {1<<17}
s_add_u32 s76, s72, {2<<17}
s_add_u32 s77, s72, {3<<17}
v_mov_b32 v33, v10
v_mov_b32 v20, v128
v_mov_b32 v22, v129
v_mov_b32 v26, v130
v_mov_b32 v32, v131
s_mov_b64 exec, 0xffffffff
buffer_store_dwordx2 v[20:21], v25, s[52:55], s72 offen sc1
buffer_store_dwordx2 v[22:23], v25, s[52:55], s73 offen sc1
buffer_store_dwordx2 v[26:27], v25, s[52:55], s76 offen sc1
buffer_store_dwordx2 v[32:33], v25, s[52:55], s77 offen sc1
s_mov_b64 exec, -1
""")
    stamp(2)
    a(f"s_setprio {bgprio}")
    for nt_ in range(4):
        for kk in range(4):
            for u in range(2):
                r = WB + 16 * nt_ + 4 * kk + 2 * u
                a(f"ds_read_b64_tr_b16 v[{r}:{r+1}], v3 offset:{WQL+16384+kk*4096+u*512+nt_*32}")
    a(f"""
s_lshr_b32 s4, s2, 5
s_mul_i32 s4, s4, {XRS}
v_lshl_add_u32 v2, v1, 4, s4
ds_read_b128 v[{HX}:{HX+3}], v2 offset:{XN}
v_mov_b32 v{S1}, 0
v_mov_b32 v{S2}, 0
s_waitcnt lgkmcnt(0)
""")
    for i in range(4):
        a(f"v_dot2_f32_bf16 v{S1}, v{HX+i}, s11, v{S1}")
        a(f"v_dot2_f32_bf16 v{S2}, v{HX+i}, v{HX+i}, v{S2}")
    for n in (8, 4, 2, 1):
        a(f"v_add_f32_dpp v{S1}, v{S1}, v{S1} row_ror:{n} row_mask:0xf bank_mask:0xf")
        a(f"v_add_f32_dpp v{S2}, v{S2}, v{S2} row_ror:{n} row_mask:0xf bank_mask:0xf")
    swaps_add(S1, T0); swaps_add(S2, T1)
    stats_finish()
    normalize(HX, HX, 4, 20)
    a("s_and_b32 s4, s2, 31\ns_lshl_b32 s4, s4, 1\ns_add_u32 s5, s4, 1")
    for i in range(4): a(f"v_readlane_b32 s{72+i}, v{HX+i}, s4")
    for i in range(4): a(f"v_readlane_b32 s{76+i}, v{HX+i}, s5")
    a("s_waitcnt vmcnt(4)")
    for i in range(21): a(f"v_lshlrev_b32 v{W1+i}, 16, v{W1+i}")
    c0 = -2 * LOG2E * math.sqrt(2 / math.pi); c1 = c0 * 0.044715
    a(f"""
v_mov_b32 v{C1}, {f32(c1)}
s_lshl_b32 s4, s3, 6
v_mov_b32 v{YA}, s4
""")
    def mlp_steps(lo, hi):
        for d in range(lo, hi):
            if d & 1: a(f"s_and_b32 s4, s{72+(d>>1)}, 0xffff0000")
            else: a(f"s_lshl_b32 s4, s{72+(d>>1)}, 16")
            if "nomlp" not in dbg: a("s_call_b64 s[80:81], L_mlp")
    mlp_steps(0, mlp1)
    a(f"""
s_setprio 3
s_lshr_b32 s4, s2, 5
s_lshl_b32 s4, s4, 17
s_bfe_u32 s5, s2, 0x30002
s_lshl_b32 s5, s5, 2
s_add_u32 s5, s5, s3
s_lshl_b32 s5, s5, 12
s_add_u32 s4, s4, s5
s_add_u32 s6, s4, {QOFF}
v_and_b32 v2, 31, v1
v_lshlrev_b32 v2, 4, v2
v_lshl_add_u32 v2, v7, 11, v2
""")
    poll("L_gq", [f"buffer_load_dwordx4 v[{96+4*k}:{99+4*k}], v2, s[52:55], s6 offen offset:{512*k} sc1" for k in range(4)],
         [97, 99, 101, 103, 105, 107, 109, 111])
    a(f"""
v_add_f32 v96, v96, v100
v_add_f32 v98, v98, v102
v_add_f32 v104, v104, v108
v_add_f32 v106, v106, v110
v_add_f32 v96, v96, v104
v_add_f32 v98, v98, v106
s_lshl_b32 s4, s3, 8
v_lshl_add_u32 v2, v1, 2, s4
v_cvt_pk_bf16_f32 v96, v96, v98
ds_write_b32 v2, v96 offset:{QL}
s_waitcnt lgkmcnt(0)
""")
    lds_signal(FLG + 4)
    stamp(3)
    a(f"s_setprio {bgprio}")
    mlp_steps(mlp1, 16)
    a("s_waitcnt lgkmcnt(0)")
    lds_signal(FLG + 12)
    a(f"""
v_lshrrev_b32 v2, 2, v1
v_mul_u32_u24 v20, 144, v2
v_and_b32 v3, 3, v1
v_lshl_add_u32 v20, v3, 5, v20
s_lshl_b32 s4, s3, 2
s_add_u32 s4, s4, {OP}
v_add_u32 v20, s4, v20
v_add_u32 v21, 2304, v20
v_add_u32 v22, 4608, v20
v_add_u32 v23, 6912, v20
s_lshl_b32 s4, s3, 3
v_mov_b32 v24, s4
v_lshlrev_b32 v25, 3, v1
v_mul_u32_u24 v26, {H1S}, v6
v_bfe_u32 v2, v1, 3, 1
v_lshl_add_u32 v26, v2, 8, v26
v_lshl_add_u32 v26, v5, 5, v26
v_and_b32 v2, 1, v5
v_lshl_add_u32 v27, v2, 2, v3
v_mul_u32_u24 v27, {H1S}, v27
v_lshlrev_b32 v28, 17, v2
v_lshl_add_u32 v28, v8, 3, v28
v_lshlrev_b32 v19, 4, v1
s_bfe_u32 s4, s2, 0x30002
s_lshl_b32 s4, s4, 2
s_add_u32 s4, s4, s3
s_lshl_b32 s4, s4, 5
s_lshr_b32 s5, s2, 5
s_lshl_b32 s5, s5, 2
s_add_u32 s4, s4, s5
s_and_b32 s5, s2, 3
s_add_u32 s4, s4, s5
s_mul_i32 s4, s4, {H1S}
s_add_u32 s6, s4, {H1OFF}
s_lshl_b32 s4, s13, 2
s_add_u32 s4, s4, s3
s_mul_i32 s4, s4, {8*H1S}
s_add_u32 s7, s4, {H1OFF}
s_lshl_b32 s4, s3, 6
s_lshl_b32 s5, s14, 2
s_add_u32 s4, s4, s5
s_lshl_b32 s4, s4, 12
s_lshl_b32 s5, s13, 7
s_add_u32 s4, s4, s5
s_add_u32 s8, s4, {H2OFF}
s_add_u32 s72, s8, 4096
s_add_u32 s73, s8, 8192
s_add_u32 s74, s8, 12288
s_lshl_b32 s9, s2, 12
s_add_u32 s9, s9, {H2OFF}
s_cmp_lg_u32 s3, 0
s_cbranch_scc1 L_ready
""")
    lds_wait("L_yw", FLG + 12, 4)
    a(f"""
v_lshlrev_b32 v2, 3, v6
ds_read_b64 v[32:33], v2 offset:{YP}
ds_read_b64 v[34:35], v2 offset:{YP+64}
ds_read_b64 v[36:37], v2 offset:{YP+128}
ds_read_b64 v[38:39], v2 offset:{YP+192}
v_lshlrev_b32 v31, 16, v31
s_waitcnt lgkmcnt(0)
v_pk_add_f32 v[32:33], v[32:33], v[34:35]
v_pk_add_f32 v[36:37], v[36:37], v[38:39]
v_pk_add_f32 v[32:33], v[32:33], v[36:37]
v_cvt_pk_bf16_f32 v32, v32, v33
v_and_b32 v33, 0xffff0000, v32
v_lshlrev_b32 v32, 16, v32
v_add_f32 v32, v32, v31
v_add_f32 v33, v33, v31
v_cvt_pk_bf16_f32 v32, v32, v33
v_and_b32 v33, 0xffff0000, v32
v_lshlrev_b32 v32, 16, v32
v_mul_f32 v34, {f32(-LOG2E)}, v32
v_mul_f32 v35, {f32(-LOG2E)}, v33
v_exp_f32 v34, v34
v_exp_f32 v35, v35
v_add_f32 v34, 1.0, v34
v_add_f32 v35, 1.0, v35
v_rcp_f32 v34, v34
v_rcp_f32 v35, v35
v_mul_f32 v32, v32, v34
v_mul_f32 v33, v33, v35
v_cvt_pk_bf16_f32 v32, v32, v33
v_and_b32 v17, 0xffff0000, v32
v_lshlrev_b32 v16, 16, v32
v_lshlrev_b32 v14, 16, v29
v_and_b32 v15, 0xffff0000, v29
L_ready:
s_setprio 3
s_waitcnt vmcnt(0) lgkmcnt(0)
""")
    stamp(4)
    a("s_barrier")
    if prof: a("s_waitcnt lgkmcnt(0)")
    if "notail" in dbg:
        stamp(5); stamp(6); a("s_branch L_hend")
    if tailprof: stamp(1); a("s_waitcnt lgkmcnt(0)")
    a(f"""
ds_read_b64 v[32:33], v24 offset:{ST}
ds_read_b64 v[34:35], v24 offset:{ST+32}
ds_read_b64 v[36:37], v24 offset:{ST+64}
ds_read_b64 v[38:39], v24 offset:{ST+96}
ds_read2_b32 v[40:41], v20 offset0:0 offset1:4
ds_read2_b32 v[42:43], v21 offset0:0 offset1:4
ds_read2_b32 v[44:45], v22 offset0:0 offset1:4
ds_read2_b32 v[46:47], v23 offset0:0 offset1:4
s_waitcnt lgkmcnt(4)
v_max3_f32 v48, v32, v34, v36
v_max_f32 v48, v48, v38
v_sub_f32 v32, v32, v48
v_sub_f32 v34, v34, v48
v_sub_f32 v36, v36, v48
v_sub_f32 v38, v38, v48
v_exp_f32 v32, v32
v_exp_f32 v34, v34
v_exp_f32 v36, v36
v_exp_f32 v38, v38
v_mov_b32 v49, v10
v_mov_b32 v51, v10
v_mul_f32 v50, v32, v33
s_waitcnt lgkmcnt(0)
v_mul_f32 v52, v32, v40
v_mul_f32 v53, v32, v41
v_fmac_f32 v52, v34, v42
v_fmac_f32 v53, v34, v43
v_fmac_f32 v52, v36, v44
v_fmac_f32 v53, v36, v45
v_fmac_f32 v52, v38, v46
v_fmac_f32 v53, v38, v47
v_fmac_f32 v50, v34, v35
v_fmac_f32 v50, v36, v37
v_cvt_pk_bf16_f32 v52, v52, v53
v_mov_b32 v53, v10
v_fmac_f32 v50, v38, v39
buffer_store_dwordx2 v[52:53], v25, s[52:55], s6 offen sc1
s_mov_b64 exec, 1
buffer_store_dwordx4 v[48:51], v9, s[52:55], s6 offen offset:512 sc1
s_mov_b64 exec, -1
""")
    stamp(5)
    poll("L_h1", [f"buffer_load_dwordx4 v[{64+4*k}:{67+4*k}], v26, s[52:55], s7 offen offset:{(k>>1)*128+(k&1)*16} sc1" for k in range(4)]
         + ["buffer_load_dwordx4 v[40:43], v27, s[52:55], s7 offen offset:512 sc1"],
         [65, 67, 69, 71, 73, 75, 77, 79, 41, 43])
    stamp(6)
    AO = 96; DD = 112
    for kk in range(4):
        for p in range(4):
            src = 64 + 8 * (kk & 1) + 2 * p
            if kk >= 2: a(f"v_mov_b32_dpp v{AO+4*kk+p}, v{src} row_ror:8 row_mask:0xf bank_mask:0xf")
            else: a(f"v_mov_b32 v{AO+4*kk+p}, v{src}")
    seq = []
    for kk in range(4):
        for nt_ in range(4):
            d = DD + 4 * nt_; b = WB + 16 * nt_ + 4 * kk
            seq.append(f"v_mfma_f32_16x16x32_bf16 v[{d}:{d+3}], v[{AO+4*kk}:{AO+4*kk+3}], v[{b}:{b+3}], {'0' if kk == 0 else f'v[{d}:{d+3}]'}")
    wv = f"""v_max_f32_dpp v44, v40, v40 quad_perm:[1,0,3,2] row_mask:0xf bank_mask:0xf
v_max_f32_dpp v45, v44, v44 quad_perm:[2,3,0,1] row_mask:0xf bank_mask:0xf
v_sub_f32 v40, v40, v45
v_exp_f32 v40, v40
v_mul_f32 v42, v40, v42
v_add_f32_dpp v44, v42, v42 quad_perm:[1,0,3,2] row_mask:0xf bank_mask:0xf
v_add_f32_dpp v45, v44, v44 quad_perm:[2,3,0,1] row_mask:0xf bank_mask:0xf
v_rcp_f32 v45, v45
v_mul_f32 v40, v40, v45
v_mov_b32_dpp v44, v40 quad_perm:[0,0,0,0] row_mask:0xf bank_mask:0xf
v_mov_b32_dpp v45, v40 quad_perm:[1,1,1,1] row_mask:0xf bank_mask:0xf
v_mov_b32_dpp v46, v40 quad_perm:[2,2,2,2] row_mask:0xf bank_mask:0xf
v_mov_b32_dpp v47, v40 quad_perm:[3,3,3,3] row_mask:0xf bank_mask:0xf""".split("\n")
    for i, m in enumerate(seq):
        a(m)
        if wv: a(wv.pop(0))
    assert not wv
    GO = 128
    for t in range(4): a(f"v_mov_b32 v{GO+2*t+1}, v10")
    for t in range(4): a(f"v_mul_f32 v{GO+2*t}, v44, v{DD+4*t}")
    for r in (1, 2, 3):
        for t in range(4): a(f"v_fmac_f32 v{GO+2*t}, v{44+r}, v{DD+4*t+r}")
    a("s_mov_b64 exec, 0xffffffff")
    for t, so in enumerate(("s8", "s72", "s73", "s74")):
        a(f"buffer_store_dwordx2 v[{GO+2*t}:{GO+2*t+1}], v28, s[52:55], {so} offen sc1")
    if tailprof: stamp(2)
    a(f"""
s_mov_b64 exec, -1
s_cmp_lg_u32 s3, 0
s_cbranch_scc1 L_hend
""")
    if tailprof: stamp(3)
    poll("L_h2", [f"buffer_load_dwordx4 v[{48+4*k}:{51+4*k}], v19, s[52:55], s9 offen offset:{1024*k} sc1" for k in range(4)],
         [49, 51, 53, 55, 57, 59, 61, 63])
    a(f"""
v_add_f32 v48, v48, v52
v_add_f32 v50, v50, v54
v_add_f32 v56, v56, v60
v_add_f32 v58, v58, v62
v_add_f32 v48, v48, v56
v_add_f32 v50, v50, v58
v_add_f32_dpp v48, v48, v48 row_ror:8 row_mask:0xf bank_mask:0xf
v_add_f32_dpp v50, v50, v50 row_ror:8 row_mask:0xf bank_mask:0xf
v_mov_b32 v52, v48
v_mov_b32 v53, v50
v_permlane16_swap_b32 v48, v52
v_permlane16_swap_b32 v50, v53
v_add_f32 v48, v48, v52
v_add_f32 v50, v50, v53
v_mov_b32 v52, v48
v_mov_b32 v53, v50
v_permlane32_swap_b32 v48, v52
v_permlane32_swap_b32 v50, v53
v_add_f32 v48, v48, v52
v_add_f32 v50, v50, v53
v_cvt_pk_bf16_f32 v48, v48, v50
v_and_b32 v49, 0xffff0000, v48
v_lshlrev_b32 v48, 16, v48
v_pk_mul_f32 v[48:49], v[48:49], v[16:17]
v_cvt_pk_bf16_f32 v48, v48, v49
v_and_b32 v49, 0xffff0000, v48
v_lshlrev_b32 v48, 16, v48
v_pk_add_f32 v[48:49], v[48:49], v[14:15]
v_cvt_pk_bf16_f32 v48, v48, v49
s_mov_b64 exec, 0xff
buffer_store_dword v48, v30, s[64:67], s10 offen
s_mov_b64 exec, 1
s_cmp_lg_u32 s2, 0
s_cbranch_scc1 L_hend
buffer_store_dword v10, v9, s[52:55], 0 offen sc1
L_hend:
""")
    if prof:
        stamp(7)
        a(f"""
s_mov_b64 exec, 1
s_sleep 127
s_waitcnt lgkmcnt(0)
s_lshl_b32 s59, s2, 3
s_add_u32 s59, s59, s3
s_add_u32 s59, s59, 4
s_lshl_b32 s59, s59, 6
s_add_u32 s59, s59, {STAMP}
""")
        for i in range(0, 8):
            a(f"v_mov_b32 v12, s{84+2*i}\nv_mov_b32 v13, s{85+2*i}\nbuffer_store_dwordx2 v[12:13], v9, s[52:55], s59 offen offset:{8*i}\ns_waitcnt vmcnt(0)")
    a("L_end:\ns_endpgm")
    a("L_mlp:")
    for t in range(7): a(f"v_fma_f32 v{U+t}, s4, v{W1+t}, v{B1+t}")
    for t in range(7): a(f"v_mul_f32 v{AA+t}, v{U+t}, v{U+t}")
    for t in range(7): a(f"v_fmaak_f32 v{AA+t}, v{AA+t}, v{C1}, {f32(c0)}")
    for t in range(7): a(f"v_mul_f32 v{AA+t}, v{AA+t}, v{U+t}")
    for t in range(7): a(f"v_exp_f32 v{EE+t}, v{AA+t}")
    for t in range(7): a(f"v_mul_f32 v{U+t}, v{U+t}, v{W2+t}")
    for t in range(7): a(f"v_add_f32 v{EE+t}, 1.0, v{EE+t}")
    for t in range(7): a(f"v_rcp_f32 v{EE+t}, v{EE+t}")
    a(f"v_mul_f32 v{ACC2}, v{U}, v{EE}")
    a(f"v_mul_f32 v{AA}, v{U+1}, v{EE+1}")
    for t in range(2, 7): a(f"v_fmac_f32 v{ACC2 if t % 2 == 0 else AA}, v{U+t}, v{EE+t}")
    a(f"v_add_f32 v{ACC2}, v{ACC2}, v{AA}")
    for n in (8, 4, 2, 1): a(f"v_add_f32_dpp v{ACC2}, v{ACC2}, v{ACC2} row_ror:{n} row_mask:0xf bank_mask:0xf")
    swaps_add(ACC2, AA)
    a(f"""
s_mov_b64 exec, 1
ds_write_b32 v{YA}, v{ACC2} offset:{YP}
s_mov_b64 exec, -1
v_add_u32 v{YA}, 4, v{YA}
s_setpc_b64 s[80:81]
""")
    body = a.render()
    txt = HDR + f"""; @launch grid=(256,1,1) block=(512,1,1) lds={LDSZ}
.amdgcn_target "amdgcn-amd-amdhsa--gfx950"
.text
.globl {KN}_kernel
.p2align 8
.type {KN}_kernel,@function
{KN}_kernel:
""" + body + f""".section .rodata,"a"
.p2align 6
.amdhsa_kernel {KN}_kernel
  .amdhsa_next_free_vgpr 256
  .amdhsa_next_free_sgpr 102
  .amdhsa_accum_offset 256
  .amdhsa_group_segment_fixed_size 0
  .amdhsa_kernarg_size 104
  .amdhsa_user_sgpr_count 2
  .amdhsa_user_sgpr_kernarg_segment_ptr 1
  .amdhsa_system_sgpr_workgroup_id_x 1
.end_amdhsa_kernel
"""
    open(fname, "w").write(txt)
if __name__ == "__main__":
    import glob, os
    for f in glob.glob("kp_*.s"): os.remove(f)
    gen("k1.s")
    gen("kp_a.s", prof=True, tailprof=True)
    gen("kp_b_w8.s", prof=True, tailprof=True, WIN=8)
    gen("kp_c_w12.s", prof=True, tailprof=True, WIN=12, sprio=0, bgprio=3)
    gen("kp_d_mlp16.s", prof=True, tailprof=True, mlp1=16)
    gen("kp_e_mlp4.s", prof=True, tailprof=True, mlp1=4)
    gen("kp_f_notailprof.s", prof=True)
```

```python
import sys, struct, math
from asmlib import Asm
KN = "recurrent_scan__gqa_block_cached__mixer_token_mlp__decode"
def f32(x): return "0x%08x" % struct.unpack("<I", struct.pack("<f", x))[0]
LOG2E = 1.4426950408889634
FLG = 0; QL = 64; ST = QL + 1024; YP = ST + 128; OP = YP + 256; XN = OP + 4 * 2304; XRS = 1040; WQL = XN + 8 * XRS; KL = WQL + 32768
QOFF = 64 << 10; H1OFF = QOFF + (1 << 20); H1S = 4224; H2OFF = H1OFF + (640 << 10); BD = 4 << 20; PGOFF = 8 << 10; STAMP = 128 << 20
HDR = open("cdna_kernels/" + KN + ".s.ref").read().split("; Override launch")[0]

def gen(fname, WIN=6, G=2, RING=40, prof=False, wo_thr=4, ntw="", woflags="", spin=400000, dbg="", WPS=1, dry=False, tailprof=False, NLT=6, slp=2, wqdma=True, sprio=2, bgprio=0, mlp1=8, local=True, fb=31, deferB=True, pretouch=False, pat=None, pat2=None, rot=None, cmap=0, light=False, lslp=0, h1fl='nt', h2sync=True, fc=None, est=None, rq=0, ro=0, sE=True, wolate=None, n0=64, pipe1=1, pipe2=1, stag1=3, stag2=3, h2late=True, h2ack=True, h2pre=False, h2full=False, slp2=0, dbgt=False):
    a = Asm()
    LDSZ = KL + 4 * NLT * 4096
    NLL = 4 * NLT
    NST = 8
    def stamp(i):
        if prof: a(f"s_memrealtime s[{84+2*i}:{85+2*i}]")
    a(f"""
s_cmp_ge_u32 s2, 256
s_cbranch_scc1 L_end
""")
    stamp(0)
    if dbgt: a("s_memrealtime s[84:85]\ns_memtime s[86:87]")
    a(f"""
s_load_dwordx16 s[16:31], s[0:1], 0
s_load_dwordx8 s[32:39], s[0:1], 64
s_load_dwordx2 s[40:41], s[0:1], 96
v_and_b32 v1, 63, v0
v_lshrrev_b32 v2, 6, v0
v_and_b32 v3, 15, v0
v_lshlrev_b32 v3, 2, v3
v_mov_b32 v4, 0
v_readfirstlane_b32 s3, v2
ds_write_b32 v3, v4
s_waitcnt lgkmcnt(0)
s_cmp_ge_u32 s3, 4
s_cbranch_scc1 L_helper
""")
    a(f"""
s_setprio {sprio}
s_mov_b32 s44, s18
s_mov_b32 s45, s19
s_mov_b32 s46, 0x4000000
s_mov_b32 s47, 0x20000
s_mov_b32 s48, s20
s_mov_b32 s49, s21
s_mov_b32 s50, 0x4000000
s_mov_b32 s51, 0x20000
s_and_b32 s52, s2, 7
s_lshl_b32 s52, s52, 2
s_bfe_u32 s53, s2, 0x20003
s_add_u32 s52, s52, s53
s_andn2_b32 s53, s2, 31
s_add_u32 s52, s52, s53
s_lshl_b32 s52, s52, 18
s_lshl_b32 s53, s3, 12
s_add_u32 s52, s52, s53
s_mul_i32 s60, s3, {NLT*4096}
s_add_u32 s60, s60, {KL}
v_lshrrev_b32 v5, 4, v1
v_bfe_u32 v6, v1, 2, 2
v_and_b32 v7, 3, v1
v_lshlrev_b32 v2, 8, v6
v_lshl_add_u32 v2, v5, 6, v2
v_lshl_add_u32 v2, v7, 4, v2
v_lshlrev_b32 v3, 4, v1
""")
    if fc:
        a(f"""
s_load_dword s73, s[40:41], 0
s_mov_b32 s76, s40
s_mov_b32 s77, s41
s_mov_b32 s78, 0x10000000
s_mov_b32 s79, 0x20000
s_lshr_b32 s64, s2, 3
s_cmp_eq_u32 s3, 0
s_cselect_b32 s64, s64, 64
s_and_b32 s65, s2, 7
s_lshl_b32 s65, s65, 2
v_mov_b32 v83, s65
s_mov_b32 s62, {fc.get('l0', 0)}
s_mov_b64 s[82:83], 0
s_mov_b32 s12, s38
s_mov_b32 s13, s39
s_mov_b32 s14, 256
s_mov_b32 s15, 0x20000
s_getreg_b32 s66, hwreg(HW_REG_XCC_ID, 0, 3)
s_lshl_b32 s66, s66, 5
s_lshr_b32 s67, s2, 3
s_add_u32 s67, s67, s66
v_mov_b32 v88, s67
v_and_b32 v87, 7, v1
v_lshl_add_u32 v87, v87, 2, s66
s_mov_b32 s74, 0
s_mov_b32 s75, 0
s_cmp_eq_u32 s3, 0
s_cselect_b64 vcc, 1, 0
""")
    if cmap == 1: a("s_lshl_b32 s52, s2, 18\ns_lshl_b32 s53, s3, 12\ns_add_u32 s52, s52, s53")
    if rot is not None: a(rot + "\ns_and_b32 s61, s61, 15\ns_lshl_b32 s61, s61, 14")
    RB = 256 - RING * 4
    def rreg(n): return RB + ((n - NLL) % RING) * 4
    NL = 128
    st = {"tile": None}
    def issue(n):
        isv = n >= 64; t = (n & 63) >> 2; q = n & 3
        if st["tile"] != (isv, t):
            st["tile"] = (isv, t)
            if rot is None: a(f"s_add_u32 s53, s52, {t*16384}")
            else: a(f"s_add_u32 s53, s61, {t*16384}\ns_and_b32 s53, s53, 0x3ffff\ns_add_u32 s53, s53, s52")
            if n < NLL: a(f"s_add_u32 m0, s60, {t*4096}\ns_nop 0")
        if n < NLL:
            a(f"buffer_load_dwordx4 v2, s[44:47], s53 offen offset:{q*1024} nt lds"); return
        r = rreg(n)
        a(f"buffer_load_dwordx4 v[{r}:{r+3}], {'v3' if isv else 'v2'}, {'s[48:51]' if isv else 's[44:47]'}, s53 offen offset:{q*1024} nt")
    QB = 8; Y = 12; ACC = 28; DT = 28; TT = 44; PT = 60; PA = 76; M = 80
    def setup_consts():
        a(f"""
s_mov_b32 s54, 0x05040100
s_mov_b32 s55, 0x07060302
s_mov_b32 s56, {f32(128**-0.5)}
s_mov_b32 s57, {f32(LOG2E)}
v_lshlrev_b32 v4, 8, v7
v_lshl_add_u32 v4, v5, 6, v4
v_lshl_add_u32 v4, v6, 4, v4
v_mov_b32 v84, 0
v_add_u32 v86, s60, v3
""")
    def wait_q():
        stamp(1)
        if "noq" in dbg:
            a(f"ds_read_b128 v[{QB}:{QB+3}], v4 offset:{QL}\ns_waitcnt lgkmcnt(0)"); stamp(2); return
        a(f"""
s_mov_b32 s58, {spin*8}
L_sq:
ds_read_b32 v85, v84 offset:{FLG+4}
s_waitcnt lgkmcnt(0)
v_readfirstlane_b32 s59, v85
s_sub_u32 s58, s58, 1
s_cbranch_scc1 L_sq_done
s_cmp_ge_u32 s59, 4
s_cbranch_scc1 L_sq_done
s_sleep 1
s_branch L_sq
L_sq_done:
ds_read_b128 v[{QB}:{QB+3}], v4 offset:{QL}
s_waitcnt lgkmcnt(0)
""")
        stamp(2)
        if prof: a("s_waitcnt lgkmcnt(0)")
    def ktile(t):
        if t < NLT:
            for q in range(4): a(f"ds_read_b128 v[{PT+4*q}:{PT+4*q+3}], v86 offset:{t*4096+q*1024}")
        for q in range(4):
            r = rreg(4 * t + q) if t >= NLT else PT + 4 * q
            if t < NLT: a(f"s_waitcnt lgkmcnt({3-q})")
            a(f"v_mfma_f32_16x16x32_bf16 v[{DT+4*q}:{DT+4*q+3}], v[{r}:{r+3}], v[{QB}:{QB+3}], 0")
        for c in range(4):
            for r in range(4):
                n = 4 * ((c - r) % 4)
                ctl = f"row_ror:{n}" if n else "quad_perm:[0,1,2,3]"
                a(f"v_mov_b32_dpp v{TT+r}, v{DT+4*c+r} {ctl} row_mask:0xf bank_mask:{hex(1<<c)}")
        y = Y + t
        a(f"""
v_add_f32 v{TT}, v{TT}, v{TT+1}
v_add_f32 v{TT+2}, v{TT+2}, v{TT+3}
v_add_f32 v{y}, v{TT}, v{TT+2}
v_cvt_pk_bf16_f32 v{y}, v{y}, v{y}
v_lshlrev_b32 v{y}, 16, v{y}
v_mul_f32 v{y}, s56, v{y}
v_cvt_pk_bf16_f32 v{y}, v{y}, v{y}
v_lshlrev_b32 v{y}, 16, v{y}
""")
    def xlane(op, r, t):
        a(f"""
{op}_dpp v{r}, v{r}, v{r} row_ror:4 row_mask:0xf bank_mask:0xf
""") if op != "v_add_f32" else a(f"""
v_add_f32_dpp v{r}, v{r}, v{r} row_ror:4 row_mask:0xf bank_mask:0xf
""")
        a(f"""
{op}_dpp v{r}, v{r}, v{r} row_ror:8 row_mask:0xf bank_mask:0xf
v_mov_b32 v{t}, v{r}
v_permlane16_swap_b32 v{r}, v{t}
{op} v{r}, v{r}, v{t}
v_mov_b32 v{t}, v{r}
v_permlane32_swap_b32 v{r}, v{t}
{op} v{r}, v{r}, v{t}
""")
    def softmax():
        m = M; l = M + 1; t = M + 2
        a(f"v_max3_f32 v{m}, v{Y}, v{Y+1}, v{Y+2}")
        for i in range(3, 15, 2): a(f"v_max3_f32 v{m}, v{m}, v{Y+i}, v{Y+i+1}")
        a(f"v_max_f32 v{m}, v{m}, v{Y+15}")
        xlane("v_max_f32", m, t)
        a(f"v_mul_f32 v{m}, s57, v{m}")
        for i in range(16): a(f"v_fma_f32 v{Y+i}, v{Y+i}, s57, -v{m}")
        for i in range(16): a(f"v_exp_f32 v{Y+i}, v{Y+i}")
        a(f"v_add_f32 v{l}, v{Y}, v{Y+1}")
        a(f"v_add_f32 v{t}, v{Y+2}, v{Y+3}")
        for i in range(4, 16, 2):
            a(f"v_add_f32 v{l}, v{l}, v{Y+i}")
            a(f"v_add_f32 v{t}, v{t}, v{Y+i+1}")
        a(f"v_add_f32 v{l}, v{l}, v{t}")
        for v in range(8): a(f"v_cvt_pk_bf16_f32 v{Y+v}, v{Y+2*v}, v{Y+2*v+1}")
        xlane("v_add_f32", l, t)
        a(f"""
s_lshl_b32 s59, s3, 5
v_lshl_add_u32 v{t}, v1, 3, s59
s_mov_b64 exec, 15
ds_write_b64 v{t}, v[{m}:{m+1}] offset:{ST}
s_mov_b64 exec, 1
v_mov_b32 v{t}, 1
ds_add_u32 v84, v{t} offset:{FLG+16}
s_mov_b64 exec, -1
""")
    def vchunk(v):
        a(f"v_mov_b32 v{PA}, v{Y+v}")
        for p in (1, 2, 3):
            a(f"v_mov_b32_dpp v{PA+p}, v{Y+v} row_ror:{4*((0-p)%4)} row_mask:0xf bank_mask:0xf")
        for half in range(2):
            for jj in range(4 * half, 4 * half + 4):
                o = PT + 4 * (jj & 3)
                for p in range(4):
                    lo = rreg(64 + 8 * v + p) + (jj >> 1); hi = rreg(64 + 8 * v + 4 + p) + (jj >> 1)
                    a(f"v_perm_b32 v{o+p}, v{hi}, v{lo}, {'s55' if jj & 1 else 's54'}")
            for jj in range(4 * half, 4 * half + 4):
                o = PT + 4 * (jj & 3); d = ACC + 4 * jj
                c = "0" if v == 0 else f"v[{d}:{d+3}]"
                a(f"v_mfma_f32_16x16x32_bf16 v[{d}:{d+3}], v[{PA}:{PA+3}], v[{o}:{o+3}], {c}")
    work = [("K", t, 4 * t + 3) for t in list(range(NLT, 16)) + list(range(NLT))] + [("S", 0, 63)] + [("V", v, 64 + 8 * v + 7) for v in range(8)]
    consumed = NLL - 1
    wi = 0
    def do_work():
        nonlocal wi, consumed
        k, i, last = work[wi]
        if k == "K":
            if wi == 0: wait_q()
            if "nok" not in dbg: ktile(i)
            consumed = max(consumed, last)
        elif k == "S":
            if "nosm" in dbg: a(f"s_mov_b64 exec, 1\nv_mov_b32 v82, 1\nds_add_u32 v84, v82 offset:{FLG+16}\ns_mov_b64 exec, -1")
            else: softmax()
            stamp(3)
        else:
            if "nov" not in dbg: vchunk(i)
            consumed = last
        wi += 1
    issued = 0
    ops = []
    def iss(n): issue(n); ops.append(("L", n))
    def vm_for(X):
        li = [i for i, o in enumerate(ops) if o[0] == "L"]
        if len(li) <= X: return None
        p = li[len(li) - X - 1]
        return len(ops) - 1 - p, p
    if pat is None: pat = [(WIN, G)]
    if fc: pat = [(fc["W"][1], fc["G"])]
    for n in range(pat[0][0]): iss(n)
    issued = pat[0][0]
    a("s_barrier")
    setup_consts()
    arrived = -1
    step = 0
    done_op = -1; nw = 0; ph = 0; nctl = 0; evalq = []; PAIRS = [88, 92, 94]; tagdone = False
    while issued < NL:
        pp = pat2 if (pat2 is not None and issued >= n0) else pat
        WIN, G = pp[step % len(pp)]; step += 1
        if not fc:
            if issued - (WIN - G) - 1 > arrived: a(f"s_waitcnt vmcnt({WIN-G})")
            arrived = max(arrived, issued - (WIN - G) - 1)
        else:
            Wl, Wm, Wh = fc["W"]
            r = vm_for(Wh - G)
            if r: a(f"s_waitcnt vmcnt({r[0]})"); done_op = max(done_op, r[1]); arrived = max(arrived, issued - (Wh - G) - 1)
            a(f"""
s_cmp_eq_u32 s62, 2 ;nc
s_cbranch_scc1 L_fs{step} ;nc
s_waitcnt vmcnt({vm_for(Wm - G)[0]}) ;nc
s_cmp_eq_u32 s62, 0 ;nc
s_cbranch_scc1 L_fs{step} ;nc
s_waitcnt vmcnt({vm_for(Wl - G)[0]}) ;nc
L_fs{step}:
""")
        if est:
            for i_, e_ in enumerate(est):
                if e_ is not None and arrived >= e_: stamp(5 + i_); est[i_] = None
        g = min(G, NL - issued)
        while issued + g - 1 - RING > consumed:
            if work[wi][2] > arrived:
                assert not fc
                a(f"s_waitcnt vmcnt({issued - 1 - work[wi][2]})"); arrived = work[wi][2]
            do_work()
        for n in range(issued, issued + g): iss(n)
        if fc:
            d = fc["d"]; k0 = fc.get("k0", 2); last = (NL - fc.get("stop", 8) - fc["W"][1]) // G
            if step == k0:
                a("s_waitcnt lgkmcnt(0)\ns_add_u32 s73, s73, 1\nv_mov_b32 v90, s73")
            if fc.get("wg"):
                for e in [e for e in evalq if e[0] <= done_op]:
                    evalq.remove(e)
                    a(f"v_sad_u8 v85, v{e[1]}, 0, 0\ns_movk_i32 s68, {32 * e[2]}\ns_call_b64 s[80:81], L_cw")
                if step >= fc.get("kw", 4) and step % fc["CW"] == 0 and step <= last:
                    r_ = [91, 92, 93, 94, 95, 86 if NLT == 0 else 5][nw % 6]; nw += 1; assert len(evalq) < 6
                    a(f"""
v_mov_b32 v89, {step}
s_mov_b64 exec, vcc
buffer_store_byte v89, v88, s[12:15], 0 offen
s_mov_b64 exec, -1
buffer_load_dword v{r_}, v87, s[12:15], 0 offen nt
""")
                    ops.append(("S", 0)); ops.append(("C", 0)); evalq.append((len(ops) - 1, r_, step))
            if k0 <= step <= last - d and fc.get("x", 1):
                a(f"""
s_movk_i32 s65, {PGOFF + step * 256}
s_cmp_eq_u32 s64, {step % 32}
s_cselect_b64 exec, 1, 0
buffer_store_dword v90, v83, s[76:79], s65 offen sc1
s_mov_b64 exec, -1
""")
                ops.append(("S", 0))
            if step >= k0 + d and (step - k0 - d) % fc["C"] == 0:
                if nctl > 0: a("s_call_b64 s[80:81], L_cb"); nctl = 0
                if step <= last and fc.get("x", 1):
                    a(f"s_load_dwordx8 s[4:11], s[40:41], {PGOFF + (step - d) * 256}"); nctl = 1
        issued += g
        for _ in range(WPS):
            if wi < len(work) and work[wi][2] <= arrived and (wi > 0 or issued + G - 1 - RING > consumed):
                do_work()
    while wi < len(work):
        need_ = work[wi][2]
        if need_ > arrived:
            r = vm_for(NL - 1 - need_) if fc else (NL - 1 - need_,)
            a(f"s_waitcnt vmcnt({r[0]})"); arrived = need_
        do_work()
    stamp(4)
    a(f"""
s_mul_i32 s59, s3, 2304
v_mul_u32_u24 v4, 144, v1
v_add_u32 v4, s59, v4
s_mov_b64 exec, 0xffff
""")
    for jj in range(8):
        a(f"ds_write_b128 v4, v[{ACC+4*jj}:{ACC+4*jj+3}] offset:{OP+16*jj}")
    a("""
s_mov_b64 exec, -1
s_waitcnt lgkmcnt(0)
s_barrier
""")
    if prof:
        a(f"""
s_mov_b32 s44, s40
s_mov_b32 s45, s41
s_mov_b32 s46, 0x10000000
s_mov_b32 s47, 0x20000
s_sleep 127
s_sleep 127
s_sleep 127
s_waitcnt lgkmcnt(0)
s_lshl_b32 s59, s2, 3
s_add_u32 s59, s59, s3
s_lshl_b32 s59, s59, 6
s_add_u32 s59, s59, {STAMP}
v_mov_b32 v4, 0
s_mov_b64 exec, 1
""")
        for i in range(8):
            sr = 82 if (i == 5 and fc) else 84 + 2 * (i if est else min(i, 4))
            a(f"v_mov_b32 v8, s{sr}\nv_mov_b32 v9, s{sr+1}\nbuffer_store_dwordx2 v[8:9], v4, s[44:47], s59 offen offset:{8*i}\ns_waitcnt vmcnt(0)")
    a("s_endpgm")
    X = 32
    S1 = 12; S2 = 13; T0 = 14; T1 = 15; NM = 16; RS = 18
    W1 = 40; B1 = 47; W2 = 54; HX = 62; U = 66; AA = 73; EE = 80; ACC2 = 87; C1 = 88; YA = 89
    WB = 192
    def srd(base, lo, size): a(f"s_mov_b32 s{base}, s{lo}\ns_mov_b32 s{base+1}, s{lo+1}\ns_mov_b32 s{base+2}, {size}\ns_mov_b32 s{base+3}, 0x20000")
    def bfround(r): a(f"v_cvt_pk_bf16_f32 v{r}, v{r}, v{r}\nv_lshlrev_b32 v{r}, 16, v{r}")
    def stats_finish():
        a(f"""
v_mul_f32 v{S1}, {f32(1/512)}, v{S1}
v_mul_f32 v{S2}, {f32(1/512)}, v{S2}
v_fma_f32 v{S2}, -v{S1}, v{S1}, v{S2}
v_max_f32 v{S2}, 0, v{S2}
""")
        bfround(S1); bfround(S2)
        a(f"v_add_f32 v{S2}, {f32(1e-5)}, v{S2}")
        bfround(S2)
        a(f"v_sqrt_f32 v{S2}, v{S2}")
        bfround(S2)
        a(f"""
v_rcp_f32 v{RS}, v{S2}
v_sub_f32 v{NM}, 0, v{S1}
v_sub_f32 v{NM+1}, 0, v{S1}
v_mov_b32 v{RS+1}, v{RS}
""")
    def swaps_add(r, t):
        a(f"""
v_mov_b32 v{t}, v{r}
v_permlane16_swap_b32 v{r}, v{t}
v_add_f32 v{r}, v{r}, v{t}
v_mov_b32 v{t}, v{r}
v_permlane32_swap_b32 v{r}, v{t}
v_add_f32 v{r}, v{r}, v{t}
""")
    def normalize(src, dst, n, tmp):
        for i0 in range(0, n, 4):
            idx = list(range(i0, min(n, i0 + 4)))
            for i in idx:
                t = tmp + 2 * (i - i0)
                a(f"v_lshlrev_b32 v{t}, 16, v{src+i}\nv_and_b32 v{t+1}, 0xffff0000, v{src+i}")
            for i in idx:
                t = tmp + 2 * (i - i0)
                a(f"v_pk_add_f32 v[{t}:{t+1}], v[{t}:{t+1}], v[{NM}:{NM+1}]")
            for i in idx:
                t = tmp + 2 * (i - i0)
                a(f"v_cvt_pk_bf16_f32 v{t}, v{t}, v{t+1}")
            for i in idx:
                t = tmp + 2 * (i - i0)
                a(f"v_and_b32 v{t+1}, 0xffff0000, v{t}\nv_lshlrev_b32 v{t}, 16, v{t}")
            for i in idx:
                t = tmp + 2 * (i - i0)
                a(f"v_pk_mul_f32 v[{t}:{t+1}], v[{t}:{t+1}], v[{RS}:{RS+1}]")
            for i in idx:
                t = tmp + 2 * (i - i0)
                a(f"v_cvt_pk_bf16_f32 v{dst+i}, v{t}, v{t+1}")
    def lds_wait(lbl, off, cnt, sl=0):
        a(f"""
s_mov_b32 s58, {spin*8}
{lbl}:
ds_read_b32 v4, v9 offset:{off}
s_waitcnt lgkmcnt(0)
v_readfirstlane_b32 s59, v4
s_sub_u32 s58, s58, 1
s_cbranch_scc1 {lbl}_done
s_cmp_lt_u32 s59, {cnt}
{f"s_sleep {sl}" if sl else ""}
s_cbranch_scc1 {lbl}
{lbl}_done:
""")
    def lds_signal(off):
        a(f"""
s_mov_b64 exec, 1
ds_add_u32 v9, v11 offset:{off}
s_mov_b64 exec, -1
""")
    def orred(ts):
        ts = list(ts)
        while len(ts) > 1:
            if len(ts) >= 3:
                a(f"v_or3_b32 v{ts[0]}, v{ts[0]}, v{ts[1]}, v{ts[2]}"); ts = ts[3:] + [ts[0]]
            else:
                a(f"v_or_b32 v{ts[0]}, v{ts[0]}, v{ts[1]}"); ts = [ts[0]]
        return ts[0]
    def chk8(tags, tmp):
        for i, t in enumerate(tags): a(f"v_xor_b32 v{tmp+i}, s12, v{t}")
        return orred([tmp + i for i in range(len(tags))])
    def chk16(bases, tmp, tagreg):
        out = []
        for i, b in enumerate(bases):
            a(f"v_perm_b32 v{tmp+2*i}, v{b+1}, v{b}, s20\nv_perm_b32 v{tmp+2*i+1}, v{b+3}, v{b+2}, s21")
        for i, b in enumerate(bases):
            a(f"v_or_b32 v{tmp+2*i}, v{tmp+2*i}, v{tmp+2*i+1}")
        for i, b in enumerate(bases):
            a(f"v_xor_b32 v{tmp+2*i}, s{tagreg}, v{tmp+2*i}"); out.append(tmp + 2 * i)
        return orred(out)
    def pack16(dst, srcs, tagv):
        for i, r in enumerate(srcs): a(f"v_perm_b32 v{dst+i}, v{r}, v{tagv}, s{16+i}")
    def poll(lbl, loads, chk, fbr=None, post=None, st=None, pipe=1, stag=0, sl=None):
        if sl is None: sl = slp
        if fbr is not None: a(f"s_mov_b32 s82, s{fbr}\ns_add_u32 s83, s{fbr}, {BD}")
        a(f"s_mov_b32 s58, {spin}")
        for _ in range(pipe - 1):
            for l in loads: a(l)
            if stag: a(f"s_sleep {stag}")
        a(f"{lbl}:")
        if st is not None and tailprof: stamp(st)
        for l in loads: a(l)
        a(f"s_waitcnt vmcnt({len(loads) * (pipe - 1)})")
        r = chk()
        if post: r = post(r)
        a(f"""
v_cmp_ne_u32 vcc, 0, v{r}
s_sub_u32 s58, s58, 1
s_cbranch_scc1 {lbl}_done
s_and_b64 exec, exec, vcc
s_cbranch_execz {lbl}_done
""")
        if fbr is not None: a(f"s_and_b32 s59, s58, {fb}\ns_cselect_b32 s{fbr}, s82, s83")
        if sl: a(f"s_sleep {sl}")
        a(f"""
s_branch {lbl}
{lbl}_done:
s_mov_b64 exec, -1
""")
    a("L_helper:\ns_setprio 3\ns_sub_u32 s3, s3, 4")
    srd(44, 16, 8192); srd(48, 22, 0x400000); srd(52, 40, 0x10000000); srd(56, 24, 0x400000)
    srd(60, 28, 3584); srd(64, 30, 3584); srd(68, 32, 3584)
    a(f"""
v_lshrrev_b32 v5, 4, v1
v_and_b32 v6, 7, v1
v_and_b32 v8, 15, v1
v_lshrrev_b32 v7, 5, v1
v_and_b32 v4, 31, v1
v_lshlrev_b32 v4, 4, v4
v_lshl_add_u32 v2, v7, 10, v4
s_lshl_b32 s6, s3, 11
v_mov_b32 v9, 0
v_mov_b32 v11, 1
v_lshrrev_b32 v20, 3, v1
v_lshlrev_b32 v21, 13, v20
v_lshl_add_u32 v21, v6, 4, v21
v_lshlrev_b32 v22, 10, v20
v_lshl_add_u32 v22, v6, 4, v22
s_and_b32 s15, s2, 7
s_lshr_b32 s14, s2, 3
s_add_u32 s4, s14, {rq}
s_and_b32 s4, s4, 7
s_add_u32 s14, s14, {ro}
s_and_b32 s14, s14, 7
s_lshl_b32 s8, s15, 3
s_add_u32 s8, s8, s4
s_lshr_b32 s9, s2, 6
s_lshl_b32 s4, s9, 2
s_add_u32 s4, s4, s3
s_lshl_b32 s4, s4, 18
s_lshl_b32 s5, s8, 7
s_add_u32 s72, s4, s5
s_lshl_b32 s13, s15, 2
s_add_u32 s13, s13, s9
s_lshl_b32 s4, s13, 2
s_add_u32 s4, s4, s3
s_lshl_b32 s4, s4, 15
s_lshl_b32 s5, s14, 7
s_add_u32 s73, s4, s5
s_lshl_b32 s4, s3, 12
s_add_u32 s74, s4, {WQL}
s_mul_i32 s75, s3, 896
v_lshlrev_b32 v23, 1, v1
s_barrier
""")
    a(f"""
buffer_load_dwordx4 v[{X}:{X+3}], v2, s[44:47], s6 offen
buffer_load_dwordx4 v[{X+4}:{X+7}], v2, s[44:47], s6 offen offset:512
{"s_load_dword s42, s[40:41], 0" if sE else "buffer_load_dword v10, v9, s[52:55], 0 offen sc1"}
""")
    if "nowq" in dbg: a("s_mov_b32 s50, 0\ns_mov_b32 s58, 0")
    for t in range(4):
        a(f"s_add_u32 m0, s74, {t*1024}\ns_nop 0\nbuffer_load_dwordx4 v21, s[48:51], s72 offen nt lds")
        if t < 3: a(f"s_add_u32 s72, s72, {8*8192}")
    def wodma(t, vr, so, sl):
        a(f"s_add_u32 m0, s{sl}, {16384+t*1024}\ns_nop 0\nbuffer_load_dwordx4 v{vr}, {'s[56:59]' if wolate is None else 's[68:71]'}, s{so} offen nt lds")
        if t < 3: a(f"s_add_u32 s{so}, s{so}, {8*1024}")
    if wolate is None:
        for t in range(4): wodma(t, 22, 73, 74)
    else:
        a("v_mov_b32 v90, v22\ns_mov_b32 s22, s73\ns_mov_b32 s23, s74")
    NW = 0 if wolate is None else 4
    for t in range(7):
        a(f"buffer_load_ushort v{W1+t}, v23, s[60:63], s75 offen offset:{128*t}")
        a(f"buffer_load_ushort v{B1+t}, v23, s[64:67], s75 offen offset:{128*t}")
        a(f"buffer_load_ushort v{W2+t}, v23, s[68:71], s75 offen offset:{128*t}")
    srd(60, 34, 2); srd(64, 36, 8192); srd(68, 24, 0 if 'nowq' in dbg else 0x400000)
    a(f"""
v_and_b32 v30, 3, v1
v_lshlrev_b32 v30, 1, v30
v_lshl_add_u32 v30, v5, 5, v30
s_lshr_b32 s10, s2, 2
s_lshl_b32 s10, s10, 7
s_and_b32 s4, s2, 3
s_lshl_b32 s4, s4, 3
s_add_u32 s10, s10, s4
buffer_load_ushort v31, v9, s[60:63], 0 offen
buffer_load_ushort v29, v30, s[44:47], s10 offen
s_mov_b32 s16, 0x07060500
s_mov_b32 s17, 0x07060501
s_mov_b32 s18, 0x07060502
s_mov_b32 s19, 0x07060503
s_mov_b32 s20, 0x0c0c0400
s_mov_b32 s21, 0x04000c0c
s_getreg_b32 s43, hwreg(HW_REG_XCC_ID, 0, 4)
s_lshl_b32 s43, s43, 28
s_mov_b32 s11, 0x3f803f80
v_mov_b32 v{S1}, 0
v_mov_b32 v{S2}, 0
s_waitcnt vmcnt({(31 if sE else 32) - NW})
""")
    for i in range(8):
        a(f"v_dot2_f32_bf16 v{S1}, v{X+i}, s11, v{S1}")
        a(f"v_dot2_f32_bf16 v{S2}, v{X+i}, v{X+i}, v{S2}")
    for n in (8, 4, 2, 1):
        a(f"v_add_f32_dpp v{S1}, v{S1}, v{S1} row_ror:{n} row_mask:0xf bank_mask:0xf")
        a(f"v_add_f32_dpp v{S2}, v{S2}, v{S2} row_ror:{n} row_mask:0xf bank_mask:0xf")
    a(f"""
v_mov_b32 v{T0}, v{S1}
v_mov_b32 v{T1}, v{S2}
v_permlane16_swap_b32 v{S1}, v{T0}
v_permlane16_swap_b32 v{S2}, v{T1}
v_add_f32 v{S1}, v{S1}, v{T0}
v_add_f32 v{S2}, v{S2}, v{T1}
""")
    stats_finish()
    normalize(X, X, 8, 20)
    a(f"""
s_mul_i32 s4, s3, {2*XRS}
v_mul_u32_u24 v2, {XRS}, v7
v_add3_u32 v2, v2, v4, s4
ds_write_b128 v2, v[{X}:{X+3}] offset:{XN}
ds_write_b128 v2, v[{X+4}:{X+7}] offset:{XN+512}
v_mul_u32_u24 v2, {XRS}, v6
v_lshl_add_u32 v2, v5, 4, v2
s_lshl_b32 s4, s9, 8
v_add_u32 v2, s4, v2
v_bfe_u32 v3, v1, 2, 2
v_lshl_add_u32 v3, v5, 3, v3
v_lshlrev_b32 v3, 7, v3
v_and_b32 v20, 3, v1
v_lshl_add_u32 v3, v20, 3, v3
s_lshl_b32 s4, s3, 5
v_add_u32 v24, s4, v3
s_waitcnt vmcnt(23) lgkmcnt(0)
""")
    lds_signal(FLG + 8)
    a(f"""
{"s_add_u32 s42, s42, 1" if sE else "v_add_u32 v10, 1, v10"}
v_lshlrev_b32 v25, 7, v5
v_lshl_add_u32 v25, v6, 4, v25
s_lshl_b32 s4, s8, 2
s_add_u32 s4, s4, s9
s_lshl_b32 s4, s4, 2
s_add_u32 s4, s4, s3
s_lshl_b32 s4, s4, 9
s_add_u32 s72, s4, {QOFF}
{"" if sE else "v_readfirstlane_b32 s42, v10"}
s_add_u32 s73, s72, {BD}
s_mul_i32 s12, s42, 0x01010101
s_xor_b32 s43, s43, s12
v_mov_b32 v10, s12
v_mov_b32 v21, s43
""")
    lds_wait("L_xw", FLG + 8, 4)
    for t in range(4):
        a(f"ds_read_b128 v[{96+4*t}:{99+4*t}], v2 offset:{XN+64*t}")
        for u in range(2): a(f"ds_read_b64_tr_b16 v[{112+4*t+2*u}:{113+4*t+2*u}], v24 offset:{WQL+t*4096+u*512}")
    a("s_waitcnt lgkmcnt(0)")
    stamp(1)
    for t in range(4):
        a(f"v_mfma_f32_16x16x32_bf16 v[128:131], v[{112+4*t}:{115+4*t}], v[{96+4*t}:{99+4*t}], {'0' if t == 0 else 'v[128:131]'}")
    pack16(132, [128, 129, 130, 131], 21)
    a(f"""
s_mov_b32 exec_lo, 0x00ff00ff
s_mov_b32 exec_hi, 0x00ff00ff
buffer_store_dwordx4 v[132:135], v25, s[52:55], s72 offen
buffer_store_dwordx4 v[132:135], v25, s[52:55], s73 offen sc1
s_mov_b64 exec, -1
""")
    stamp(2)
    a(f"s_setprio {bgprio}")
    def woread(vr):
        for nt_ in range(4):
            for kk in range(4):
                for u in range(2):
                    r = WB + 16 * nt_ + 4 * kk + 2 * u
                    a(f"ds_read_b64_tr_b16 v[{r}:{r+1}], v{vr} offset:{WQL+16384+kk*4096+u*512+nt_*32}")
    if wolate is None: woread(3)
    else: a("v_mov_b32 v91, v3")
    a(f"""
s_lshr_b32 s4, s2, 5
s_mul_i32 s4, s4, {XRS}
v_lshl_add_u32 v2, v1, 4, s4
ds_read_b128 v[{HX}:{HX+3}], v2 offset:{XN}
v_mov_b32 v{S1}, 0
v_mov_b32 v{S2}, 0
s_waitcnt lgkmcnt(0)
""")
    for i in range(4):
        a(f"v_dot2_f32_bf16 v{S1}, v{HX+i}, s11, v{S1}")
        a(f"v_dot2_f32_bf16 v{S2}, v{HX+i}, v{HX+i}, v{S2}")
    for n in (8, 4, 2, 1):
        a(f"v_add_f32_dpp v{S1}, v{S1}, v{S1} row_ror:{n} row_mask:0xf bank_mask:0xf")
        a(f"v_add_f32_dpp v{S2}, v{S2}, v{S2} row_ror:{n} row_mask:0xf bank_mask:0xf")
    swaps_add(S1, T0); swaps_add(S2, T1)
    stats_finish()
    normalize(HX, HX, 4, 20)
    a(f"""
s_bitcmp1_b32 s2, 0
s_cselect_b64 vcc, -1, 0
s_bfe_u32 s4, s2, 0x30002
s_lshl_b32 s4, s4, 3
s_bfe_u32 s5, s2, 0x10001
s_add_u32 s4, s4, s5
v_cndmask_b32 v{HX}, v{HX}, v{HX+2}, vcc
v_cndmask_b32 v{HX+1}, v{HX+1}, v{HX+3}, vcc
""")
    for i in range(4):
        a(f"v_readlane_b32 s{72+2*i}, v{HX}, s4\nv_readlane_b32 s{73+2*i}, v{HX+1}, s4")
        if i < 3: a("s_add_u32 s4, s4, 2")
    a("s_waitcnt vmcnt(2)")
    for i in range(21): a(f"v_lshlrev_b32 v{W1+i}, 16, v{W1+i}")
    c0 = -2 * LOG2E * math.sqrt(2 / math.pi); c1 = c0 * 0.044715
    a(f"""
v_mov_b32 v{C1}, {f32(c1)}
s_lshl_b32 s4, s3, 6
v_mov_b32 v{YA}, s4
""")
    def mlp_steps(lo, hi):
        for d in range(lo, hi):
            if d & 1: a(f"s_and_b32 s4, s{72+(d>>1)}, 0xffff0000")
            else: a(f"s_lshl_b32 s4, s{72+(d>>1)}, 16")
            if "nomlp" not in dbg: a("s_call_b64 s[80:81], L_mlp")
            if wolate is not None and d in wolate: wodma(wolate.index(d), 90, 22, 23)
    mlp_steps(0, mlp1)
    a(f"""
s_setprio 3
s_lshr_b32 s4, s2, 5
s_lshl_b32 s4, s4, 4
s_lshl_b32 s5, s15, 2
s_add_u32 s5, s5, s3
s_lshl_b32 s5, s5, 14
s_add_u32 s4, s4, s5
s_add_u32 s6, s4, {QOFF}
v_bfe_u32 v2, v1, 1, 4
v_lshlrev_b32 v2, 7, v2
v_lshl_add_u32 v2, v7, 13, v2
v_and_b32 v3, 1, v1
v_lshl_add_u32 v2, v3, 12, v2
""")
    def qpost(r):
        a(f"v_mov_b32 v108, v{r}\nv_and_b32 v{r}, 0x0fffffff, v{r}"); return r
    poll("L_gq", [f"buffer_load_dwordx4 v[{96+4*k}:{99+4*k}], v2, s[52:55], s6 offen offset:{2048*k} sc1" for k in range(2)],
         lambda: chk16([96, 100], 104, 43), fbr=6, post=qpost)
    for i in range(8): a(f"v_and_b32 v{96+i}, 0xffffff00, v{96+i}")
    for i in range(4): a(f"v_add_f32 v{96+i}, v{96+i}, v{100+i}")
    for i in range(4): a(f"v_add_f32_dpp v{96+i}, v{96+i}, v{96+i} quad_perm:[1,0,3,2] row_mask:0xf bank_mask:0xf")
    a(f"""
v_cmp_ne_u32 vcc, 0, v108
s_lshl_b32 s4, s3, 8
v_lshrrev_b32 v2, 1, v1
v_lshl_add_u32 v2, v2, 3, s4
v_cvt_pk_bf16_f32 v96, v96, v97
v_cvt_pk_bf16_f32 v97, v98, v99
ds_write_b64 v2, v[96:97] offset:{QL}
s_cbranch_vccz L_gq_loc
ds_write_b32 v9, v11 offset:{FLG+20}
L_gq_loc:
s_waitcnt lgkmcnt(0)
""")
    lds_signal(FLG + 4)
    stamp(3)
    a(f"s_setprio {bgprio}")
    mlp_steps(mlp1, 16)
    a("s_waitcnt vmcnt(0) lgkmcnt(0)")
    lds_signal(FLG + 12)
    a(f"""
v_lshrrev_b32 v2, 2, v1
v_mul_u32_u24 v20, 144, v2
v_and_b32 v3, 3, v1
v_lshl_add_u32 v20, v3, 5, v20
s_lshl_b32 s4, s3, 2
s_add_u32 s4, s4, {OP}
v_add_u32 v20, s4, v20
v_add_u32 v21, 2304, v20
v_add_u32 v22, 4608, v20
v_add_u32 v23, 6912, v20
s_lshl_b32 s4, s3, 3
v_mov_b32 v24, s4
v_lshrrev_b32 v25, 5, v1
v_lshlrev_b32 v25, 7, v25
v_bfe_u32 v2, v1, 4, 1
v_lshl_add_u32 v25, v2, 11, v25
v_bfe_u32 v2, v1, 1, 1
v_lshl_add_u32 v25, v2, 10, v25
v_bfe_u32 v2, v1, 2, 2
v_lshl_add_u32 v25, v2, 8, v25
v_and_b32 v2, 1, v1
v_lshl_add_u32 v25, v2, 3, v25
v_lshlrev_b32 v26, 4, v1
v_and_b32 v2, 1, v5
v_lshl_add_u32 v27, v2, 2, v3
v_lshlrev_b32 v27, 4, v27
v_lshlrev_b32 v28, {6 if h2full else 16}, v2
v_bfe_u32 v2, v1, 2, 2
v_lshl_add_u32 v28, v2, {12 if h2full else 11}, v28
v_lshl_add_u32 v28, v3, 4, v28
v_lshrrev_b32 v19, 2, v1
v_lshlrev_b32 v19, {7 if h2full else 6}, v19
v_lshl_add_u32 v19, v3, 4, v19
s_lshl_b32 s4, s15, 2
s_add_u32 s4, s4, s3
s_lshl_b32 s4, s4, 2
s_add_u32 s4, s4, s9
s_mul_i32 s4, s4, {H1S}
s_bfe_u32 s5, s2, 0x30003
s_lshl_b32 s5, s5, 4
s_add_u32 s4, s4, s5
s_add_u32 s6, s4, {H1OFF}
s_lshl_b32 s4, s13, 2
s_add_u32 s4, s4, s3
s_mul_i32 s4, s4, {H1S}
s_add_u32 s7, s4, {H1OFF}
s_lshl_b32 s4, s3, {5 if h2full else 6}
s_lshl_b32 s5, s14, 2
s_add_u32 s4, s4, s5
s_lshl_b32 s4, s4, {12 if h2full else 11}
s_lshl_b32 s5, s13, {7 if h2full else 6}
s_add_u32 s4, s4, s5
s_add_u32 s8, s4, {H2OFF}
""")
    if not h2full: a("s_lshl_b32 s9, s2, 11")
    else: a("""
s_lshr_b32 s9, s2, 6
s_lshl_b32 s9, s9, 5
s_and_b32 s4, s2, 31
s_add_u32 s9, s9, s4
s_lshl_b32 s9, s9, 12
s_bfe_u32 s4, s2, 0x10005
s_lshl_b32 s4, s4, 6
s_add_u32 s9, s9, s4
""")
    h2l = [f"buffer_load_dwordx4 v[{136+4*k}:{139+4*k}], v19, s[52:55], s9 offen offset:{(2048 if h2full else 1024)*k} sc1" for k in range(2)]
    a(f"""
s_add_u32 s9, s9, {H2OFF}
""")
    if wolate is not None:
        lds_wait("L_yw", FLG + 12, 4); woread(91)
    a("""
s_cmp_lg_u32 s3, 0
s_cbranch_scc1 L_ready
""")
    if wolate is None: lds_wait("L_yw", FLG + 12, 4)
    if h2pre:
        for l in h2l: a(l)
    a(f"""
v_lshl_add_u32 v2, v5, 2, v3
v_lshlrev_b32 v2, 2, v2
ds_read_b32 v32, v2 offset:{YP}
ds_read_b32 v33, v2 offset:{YP+64}
ds_read_b32 v34, v2 offset:{YP+128}
ds_read_b32 v35, v2 offset:{YP+192}
v_lshlrev_b32 v31, 16, v31
s_waitcnt lgkmcnt(0)
v_add_f32 v32, v32, v33
v_add_f32 v34, v34, v35
v_add_f32 v32, v32, v34
v_cvt_pk_bf16_f32 v32, v32, v32
v_lshlrev_b32 v32, 16, v32
v_add_f32 v32, v32, v31
v_cvt_pk_bf16_f32 v32, v32, v32
v_lshlrev_b32 v32, 16, v32
v_mul_f32 v34, {f32(-LOG2E)}, v32
v_exp_f32 v34, v34
v_add_f32 v34, 1.0, v34
v_rcp_f32 v34, v34
v_mul_f32 v32, v32, v34
v_cvt_pk_bf16_f32 v32, v32, v32
v_lshlrev_b32 v16, 16, v32
v_lshlrev_b32 v14, 16, v29
L_ready:
""")
    lds_wait("L_sw", FLG + 16, 4, sl=8)
    a(f"""
ds_read_b64 v[32:33], v24 offset:{ST}
ds_read_b64 v[34:35], v24 offset:{ST+32}
ds_read_b64 v[36:37], v24 offset:{ST+64}
ds_read_b64 v[38:39], v24 offset:{ST+96}
ds_read_b32 v54, v9 offset:{FLG+20}
s_waitcnt lgkmcnt(0)
v_max3_f32 v48, v32, v34, v36
v_max_f32 v48, v48, v38
v_sub_f32 v32, v32, v48
v_sub_f32 v34, v34, v48
v_sub_f32 v36, v36, v48
v_sub_f32 v38, v38, v48
v_exp_f32 v32, v32
v_exp_f32 v34, v34
v_exp_f32 v36, v36
v_exp_f32 v38, v38
v_mov_b32 v49, v10
v_mov_b32 v51, v10
v_mul_f32 v50, v32, v33
v_fmac_f32 v50, v34, v35
v_fmac_f32 v50, v36, v37
v_fmac_f32 v50, v38, v39
v_mov_b32 v53, v10
v_readfirstlane_b32 s75, v54
s_mov_b64 exec, 1
s_cmp_lg_u32 s75, 0
s_cbranch_scc1 L_st_far
buffer_store_dwordx4 v[48:51], v9, s[52:55], s6 offen
s_mov_b64 exec, -1
""")
    poll("L_sp", [f"buffer_load_dwordx4 v[40:43], v27, s[52:55], s7 offen {h1fl}"], lambda: chk8([41, 43], 80), sl=8)
    a(f"""
s_branch L_st_done
L_st_far:
buffer_store_dwordx4 v[48:51], v9, s[52:55], s6 offen sc1
s_mov_b64 exec, -1
""")
    poll("L_spx", ["buffer_load_dwordx4 v[40:43], v27, s[52:55], s7 offen sc1"], lambda: chk8([41, 43], 80), sl=8)
    a("L_st_done:")
    a("""
v_max_f32_dpp v44, v40, v40 quad_perm:[1,0,3,2] row_mask:0xf bank_mask:0xf
v_max_f32_dpp v45, v44, v44 quad_perm:[2,3,0,1] row_mask:0xf bank_mask:0xf
v_sub_f32 v40, v40, v45
v_exp_f32 v40, v40
v_mul_f32 v42, v40, v42
v_add_f32_dpp v44, v42, v42 quad_perm:[1,0,3,2] row_mask:0xf bank_mask:0xf
v_add_f32_dpp v45, v44, v44 quad_perm:[2,3,0,1] row_mask:0xf bank_mask:0xf
v_rcp_f32 v45, v45
v_mul_f32 v40, v40, v45
v_mov_b32_dpp v56, v40 quad_perm:[0,0,0,0] row_mask:0xf bank_mask:0xf
v_mov_b32_dpp v57, v40 quad_perm:[1,1,1,1] row_mask:0xf bank_mask:0xf
v_mov_b32_dpp v58, v40 quad_perm:[2,2,2,2] row_mask:0xf bank_mask:0xf
v_mov_b32_dpp v59, v40 quad_perm:[3,3,3,3] row_mask:0xf bank_mask:0xf
s_setprio 3
s_waitcnt vmcnt(0) lgkmcnt(0)
""")
    stamp(4)
    a("s_barrier")
    if prof: a("s_waitcnt lgkmcnt(0)")
    if "notail" in dbg:
        stamp(5); stamp(6); a("s_branch L_hend")
    if tailprof: stamp(1); a("s_waitcnt lgkmcnt(0)")
    a(f"""
ds_read2_b32 v[40:41], v20 offset0:0 offset1:4
ds_read2_b32 v[42:43], v21 offset0:0 offset1:4
ds_read2_b32 v[44:45], v22 offset0:0 offset1:4
ds_read2_b32 v[46:47], v23 offset0:0 offset1:4
s_waitcnt lgkmcnt(2)
v_mul_f32 v40, v32, v40
v_mul_f32 v41, v32, v41
v_fmac_f32 v40, v34, v42
v_fmac_f32 v41, v34, v43
s_waitcnt lgkmcnt(0)
v_mul_f32 v44, v36, v44
v_mul_f32 v45, v36, v45
v_fmac_f32 v40, v38, v46
v_fmac_f32 v41, v38, v47
v_add_f32 v40, v40, v44
v_add_f32 v41, v41, v45
s_cmp_lg_u32 s75, 0
v_cvt_pk_bf16_f32 v52, v40, v41
s_cbranch_scc1 L_h1_far
buffer_store_dwordx2 v[52:53], v25, s[52:55], s6 offen offset:128
""")
    stamp(5)
    def h1poll(sfx, fl, pipe):
        full = [f"buffer_load_dwordx4 v[{64+4*k}:{67+4*k}], v26, s[52:55], s7 offen offset:{128+k*1024} {fl}" for k in range(4)]
        poll("L_h1" + sfx, full, lambda: chk8([65, 67, 69, 71, 73, 75, 77, 79], 80), st=4, pipe=pipe, stag=stag1)
    h1poll("", h1fl, pipe1)
    a("L_h1_got:")
    stamp(6)
    AO = 96; DD = 112
    if h2late: a(f"s_mov_b64 exec, 1\nds_add_rtn_u32 v54, v9, v11 offset:{FLG+24}\ns_mov_b64 exec, -1")
    def mv(kk, p):
        src = 64 + 8 * (kk & 1) + 2 * p
        if kk >= 2: a(f"v_mov_b32_dpp v{AO+4*kk+p}, v{src} row_ror:8 row_mask:0xf bank_mask:0xf")
        else: a(f"v_mov_b32 v{AO+4*kk+p}, v{src}")
    for p in range(4): mv(0, p)
    for kk in range(4):
        for nt_ in range(4):
            d = DD + 4 * nt_; b = WB + 16 * nt_ + 4 * kk
            if kk < 3 and nt_ < 2: mv(kk + 1, 2 * nt_); mv(kk + 1, 2 * nt_ + 1)
            a(f"v_mfma_f32_16x16x32_bf16 v[{d}:{d+3}], v[{AO+4*kk}:{AO+4*kk+3}], v[{b}:{b+3}], {'0' if kk == 0 else f'v[{d}:{d+3}]'}")
    GO = 128
    if h2late: a("s_waitcnt lgkmcnt(0)\nv_readfirstlane_b32 s59, v54")
    for t in range(4):
        a(f"v_mul_f32 v{GO+t}, v56, v{DD+4*t}")
        a(f"v_mul_f32 v{GO+4+t}, v58, v{DD+4*t+2}")
    for t in range(4):
        a(f"v_fmac_f32 v{GO+t}, v57, v{DD+4*t+1}")
        a(f"v_fmac_f32 v{GO+4+t}, v59, v{DD+4*t+3}")
    for t in range(4): a(f"v_add_f32 v{GO+t}, v{GO+t}, v{GO+4+t}")
    pack16(GO, [GO, GO + 1, GO + 2, GO + 3], 10)
    if h2late:
        a("s_cmp_eq_u32 s59, 3\ns_cbranch_scc1 L_hl_done")
        lds_wait("L_hl", FLG + 24, 4)
    a(f"s_mov_b64 exec, 0xffffffff\nbuffer_store_dwordx4 v[{GO}:{GO+3}], v28, s[52:55], s8 offen sc1")
    if tailprof: stamp(2)
    if h2sync and not h2late: lds_signal(FLG + 24)
    a(f"""
s_mov_b64 exec, -1
s_cmp_lg_u32 s3, 0
s_cbranch_scc1 L_hend
""")
    if h2sync and not h2late: lds_wait("L_hw", FLG + 24, 4)
    if h2ack: a("s_waitcnt vmcnt(0)")
    poll("L_h2", h2l, lambda: chk16([136, 140], 56, 12), st=3, pipe=pipe2, stag=stag2, sl=slp2)
    for i in range(8): a(f"v_and_b32 v{48+i}, 0xffffff00, v{136+i}")
    for i in range(4): a(f"v_add_f32 v{48+i}, v{48+i}, v{52+i}")
    a(f"""
v_permlane32_swap_b32 v48, v50
v_permlane32_swap_b32 v49, v51
v_add_f32 v48, v48, v50
v_add_f32 v49, v49, v51
v_permlane16_swap_b32 v48, v49
v_add_f32 v48, v48, v49
v_add_f32_dpp v48, v48, v48 row_ror:4 row_mask:0xf bank_mask:0xf
v_add_f32_dpp v48, v48, v48 row_ror:8 row_mask:0xf bank_mask:0xf
s_mov_b32 exec_lo, 0x000f000f
s_mov_b32 exec_hi, 0x000f000f
v_cvt_pk_bf16_f32 v48, v48, v48
v_lshlrev_b32 v48, 16, v48
v_mul_f32 v48, v48, v16
v_cvt_pk_bf16_f32 v48, v48, v48
v_lshlrev_b32 v48, 16, v48
v_add_f32 v48, v48, v14
v_cvt_pk_bf16_f32 v48, v48, v48
buffer_store_short v48, v30, s[64:67], s10 offen
s_mov_b64 exec, 1
s_cmp_lg_u32 s2, 0
s_cbranch_scc1 L_hend
v_mov_b32 v10, s42
buffer_store_dword v10, v9, s[52:55], 0 offen sc1
L_hend:
""")
    stamp(7)
    a("s_waitcnt vmcnt(0)")
    if dbgt:
        a(f"""
s_memrealtime s[88:89]
s_memtime s[90:91]
s_mov_b32 s44, s38
s_mov_b32 s45, s39
s_mov_b32 s46, 256
s_mov_b32 s47, 0x20000
s_mov_b64 exec, 1
s_waitcnt lgkmcnt(0)
s_not_b32 s59, s84
v_mov_b32 v12, s88
v_mov_b32 v13, s59
buffer_atomic_umax v12, v9, s[44:47], 0 offen sc1
buffer_atomic_umax v13, v9, s[44:47], 0 offen offset:4 sc1
s_cmp_lg_u32 s3, 0
s_cbranch_scc1 L_dbgt
s_and_b32 s59, s2, 0x7f
s_cmp_lg_u32 s59, 0
s_cbranch_scc1 L_dbgt
s_lshr_b32 s59, s2, 3
v_mov_b32 v12, s84
v_mov_b32 v13, s88
v_mov_b32 v14, s86
v_mov_b32 v15, s90
buffer_store_dwordx4 v[12:15], v9, s[44:47], s59 offen offset:16 sc1
L_dbgt:
s_waitcnt vmcnt(0)
""")
    if prof:
        a(f"""
s_mov_b64 exec, 1
s_sleep 127
s_waitcnt lgkmcnt(0)
s_lshl_b32 s59, s2, 3
s_add_u32 s59, s59, s3
s_add_u32 s59, s59, 4
s_lshl_b32 s59, s59, 6
s_add_u32 s59, s59, {STAMP}
""")
        for i in range(0, 8):
            a(f"v_mov_b32 v12, s{84+2*i}\nv_mov_b32 v13, s{85+2*i}\nbuffer_store_dwordx2 v[12:13], v9, s[52:55], s59 offen offset:{8*i}\ns_waitcnt vmcnt(0)")
    a("""L_end:
s_endpgm
L_h1_far:
buffer_store_dwordx2 v[52:53], v25, s[52:55], s6 offen offset:128 sc1
""")
    h1poll("x", "sc1", 1)
    a("s_branch L_h1_got")
    if fc:
        a("L_cb:\ns_waitcnt lgkmcnt(0)\ns_mov_b32 s71, 0")
        for i in range(8): a(f"s_cmp_lg_u32 s{4+i}, s73\ns_addc_u32 s71, s71, 0")
        if not fc.get("wg"):
            a(f"""
s_cmp_lt_u32 s71, {fc['th1']}
s_cselect_b32 s62, 2, 0
s_cmp_ge_u32 s71, {fc['th2']}
s_cselect_b32 s62, 1, s62
""")
            if prof: a("s_lshl_b64 s[82:83], s[82:83], 2\ns_or_b32 s82, s82, s62")
            a("s_setpc_b64 s[80:81]")
        else:
            bias = 16 * fc["CW"]
            a(f"""
s_mul_i32 s74, s71, {fc.get('kx', 0)}
{"s_lshl_b64 s[82:83], s[82:83], 4" if prof and fc.get("tm") else ""}
{"s_or_b32 s82, s82, s71" if prof and fc.get("tm") else ""}
s_branch L_cc
L_cw:
v_add_u32_dpp v85, v85, v85 row_ror:4 row_mask:0xf bank_mask:0xf
v_add_u32_dpp v85, v85, v85 row_ror:2 row_mask:0xf bank_mask:0xf
v_add_u32_dpp v85, v85, v85 row_ror:1 row_mask:0xf bank_mask:0xf
v_readfirstlane_b32 s69, v85
s_sub_u32 s75, s68, s69
s_sub_u32 s75, s75, {bias}
L_cc:
s_add_u32 s68, s75, s74
s_cmp_lt_i32 s68, {-fc['b']}
s_cselect_b32 s62, 2, 0
s_cmp_gt_i32 s68, {fc['a']}
s_cselect_b32 s62, 1, s62
""")
            if prof and not fc.get("tm"): a("s_lshl_b64 s[82:83], s[82:83], 2\ns_or_b32 s82, s82, s62")
            a("s_setpc_b64 s[80:81]")
    a("L_mlp:")
    for t in range(7): a(f"v_fma_f32 v{U+t}, s4, v{W1+t}, v{B1+t}")
    for t in range(7): a(f"v_mul_f32 v{AA+t}, v{U+t}, v{U+t}")
    for t in range(7): a(f"v_fmaak_f32 v{AA+t}, v{AA+t}, v{C1}, {f32(c0)}")
    for t in range(7): a(f"v_mul_f32 v{AA+t}, v{AA+t}, v{U+t}")
    for t in range(7): a(f"v_exp_f32 v{EE+t}, v{AA+t}")
    for t in range(7): a(f"v_mul_f32 v{U+t}, v{U+t}, v{W2+t}")
    for t in range(7): a(f"v_add_f32 v{EE+t}, 1.0, v{EE+t}")
    for t in range(7): a(f"v_rcp_f32 v{EE+t}, v{EE+t}")
    a(f"v_mul_f32 v{ACC2}, v{U}, v{EE}")
    a(f"v_mul_f32 v{AA}, v{U+1}, v{EE+1}")
    for t in range(2, 7): a(f"v_fmac_f32 v{ACC2 if t % 2 == 0 else AA}, v{U+t}, v{EE+t}")
    a(f"v_add_f32 v{ACC2}, v{ACC2}, v{AA}")
    for n in (8, 4, 2, 1): a(f"v_add_f32_dpp v{ACC2}, v{ACC2}, v{ACC2} row_ror:{n} row_mask:0xf bank_mask:0xf")
    swaps_add(ACC2, AA)
    a(f"""
s_mov_b64 exec, 1
ds_write_b32 v{YA}, v{ACC2} offset:{YP}
s_mov_b64 exec, -1
v_add_u32 v{YA}, 4, v{YA}
s_setpc_b64 s[80:81]
""")
    body = a.render()
    txt = HDR + f"""; @launch grid=(256,1,1) block=(512,1,1) lds={LDSZ}
.amdgcn_target "amdgcn-amd-amdhsa--gfx950"
.text
.globl {KN}_kernel
.p2align 8
.type {KN}_kernel,@function
{KN}_kernel:
""" + body + f""".section .rodata,"a"
.p2align 6
.amdhsa_kernel {KN}_kernel
  .amdhsa_next_free_vgpr 256
  .amdhsa_next_free_sgpr 102
  .amdhsa_accum_offset 256
  .amdhsa_group_segment_fixed_size 0
  .amdhsa_kernarg_size 104
  .amdhsa_user_sgpr_count 2
  .amdhsa_user_sgpr_kernarg_segment_ptr 1
  .amdhsa_system_sgpr_workgroup_id_x 1
.end_amdhsa_kernel
"""
    open(fname, "w").write(txt)
if __name__ == "__main__":
    import glob, os
    for f in glob.glob("kp_*.s"): os.remove(f)
    gen("k1.s", mlp1=4, slp=0)
    kw = dict(prof=True, tailprof=True, mlp1=4, slp=0, rq=1, wolate=[5, 7, 9, 11])
    gen("kp_00.s", **kw)
    F = dict(wg=1, x=1, G=2, kx=24, a=64, b=-16, W=(4,6,12), d=6, C=3, CW=2)
    gen("kp_01.s", fc=F, **kw)
    gen("kp_02_nowork.s", fc=F, dbg="nok nosm nov", **kw)
    gen("kp_03_nosm.s", fc=F, dbg="nosm", **kw)
    gen("kp_04_nowq.s", fc=F, dbg="nowq", **kw)
    gen("kp_05_nowork_nowq.s", fc=F, dbg="nok nosm nov nowq", **kw)
    gen("kp_06_nowork_nowq_nomlp.s", fc=F, dbg="nok nosm nov nowq nomlp", **kw)
    gen("kp_07_nofc_nowork.s", dbg="nok nosm nov", **kw)
    gen("kp_08_nofc_nowork_nowq.s", dbg="nok nosm nov nowq", **kw)
```

```python
import gen
F = dict(wg=1, x=1, G=2, kx=24, a=64, b=-16, W=(4,6,12), d=6, C=3, CW=2)
gen.gen("k6.s", mlp1=4, slp=0, rq=1, wolate=[5,7,9,11], fc=F)
gen.gen("k6n.s", mlp1=4, slp=0, rq=1, wolate=[5,7,9,11])
gen.gen("k6t.s", mlp1=4, slp=0, rq=1, wolate=[5,7,9,11], dbgt=True)
gen.gen("k6u.s", mlp1=4, slp=0, rq=1, wolate=[5,7,9,11], dbgt=2)
gen.gen("k6v.s", mlp1=4, slp=0, rq=1, wolate=[5,7,9,11], dbgt=2, fc=F)
```

```python
import sys, struct, math
from asmlib import Asm
KN = "recurrent_scan__gqa_block_cached__mixer_token_mlp__decode"
def f32(x): return "0x%08x" % struct.unpack("<I", struct.pack("<f", x))[0]
LOG2E = 1.4426950408889634
FLG = 0; QL = 64; ST = QL + 1024; YP = ST + 128; OP = YP + 256; XN = OP + 4 * 2304; XRS = 1040; WQL = XN + 8 * XRS; KL = WQL + 32768
QOFF = 64 << 10; H1OFF = QOFF + (1 << 20); H1S = 4224; H2OFF = H1OFF + (640 << 10); BD = 4 << 20; PGOFF = 8 << 10; STAMP = 128 << 20
HDR = open("cdna_kernels/" + KN + ".s.ref").read().split("; Override launch")[0]

def gen(fname, WIN=6, G=2, RING=40, prof=False, wo_thr=4, ntw="", woflags="", spin=400000, dbg="", WPS=1, dry=False, tailprof=False, NLT=6, slp=2, wqdma=True, sprio=2, bgprio=0, mlp1=8, local=True, fb=31, deferB=True, pretouch=False, pat=None, pat2=None, rot=None, cmap=0, light=False, lslp=0, h1fl='nt', h2sync=True, fc=None, est=None, rq=0, ro=0, sE=True, wolate=None, n0=64, pipe1=1, pipe2=1, stag1=3, stag2=3, h2late=True, h2ack=True, h2pre=False, h2full=False, slp2=0, dbgt=False):
    a = Asm()
    LDSZ = KL + 4 * NLT * 4096
    NLL = 4 * NLT
    NST = 8
    def stamp(i):
        if prof: a(f"s_memrealtime s[{84+2*i}:{85+2*i}]")
    a(f"""
s_cmp_ge_u32 s2, 256
s_cbranch_scc1 L_end
""")
    stamp(0)
    if dbgt: a("s_memrealtime s[84:85]\ns_memtime s[86:87]")
    a(f"""
s_load_dwordx16 s[16:31], s[0:1], 0
s_load_dwordx8 s[32:39], s[0:1], 64
s_load_dwordx2 s[40:41], s[0:1], 96
v_and_b32 v1, 63, v0
v_lshrrev_b32 v2, 6, v0
v_and_b32 v3, 15, v0
v_lshlrev_b32 v3, 2, v3
v_mov_b32 v4, 0
v_readfirstlane_b32 s3, v2
ds_write_b32 v3, v4
s_waitcnt lgkmcnt(0)
s_cmp_ge_u32 s3, 4
s_cbranch_scc1 L_helper
""")
    a(f"""
s_setprio {sprio}
s_mov_b32 s44, s18
s_mov_b32 s45, s19
s_mov_b32 s46, 0x4000000
s_mov_b32 s47, 0x20000
s_mov_b32 s48, s20
s_mov_b32 s49, s21
s_mov_b32 s50, 0x4000000
s_mov_b32 s51, 0x20000
s_and_b32 s52, s2, 7
s_lshl_b32 s52, s52, 2
s_bfe_u32 s53, s2, 0x20003
s_add_u32 s52, s52, s53
s_andn2_b32 s53, s2, 31
s_add_u32 s52, s52, s53
s_lshl_b32 s52, s52, 18
s_lshl_b32 s53, s3, 12
s_add_u32 s52, s52, s53
s_mul_i32 s60, s3, {NLT*4096}
s_add_u32 s60, s60, {KL}
v_lshrrev_b32 v5, 4, v1
v_bfe_u32 v6, v1, 2, 2
v_and_b32 v7, 3, v1
v_lshlrev_b32 v2, 8, v6
v_lshl_add_u32 v2, v5, 6, v2
v_lshl_add_u32 v2, v7, 4, v2
v_lshlrev_b32 v3, 4, v1
""")
    if fc:
        a(f"""
s_load_dword s73, s[40:41], 0
s_mov_b32 s76, s40
s_mov_b32 s77, s41
s_mov_b32 s78, 0x10000000
s_mov_b32 s79, 0x20000
s_lshr_b32 s64, s2, 3
s_cmp_eq_u32 s3, 0
s_cselect_b32 s64, s64, 64
s_and_b32 s65, s2, 7
s_lshl_b32 s65, s65, 2
v_mov_b32 v83, s65
s_mov_b32 s62, {fc.get('l0', 0)}
s_mov_b64 s[82:83], 0
s_mov_b32 s12, s38
s_mov_b32 s13, s39
s_mov_b32 s14, 256
s_mov_b32 s15, 0x20000
s_getreg_b32 s66, hwreg(HW_REG_XCC_ID, 0, 3)
s_lshl_b32 s66, s66, 5
s_lshr_b32 s67, s2, 3
s_add_u32 s67, s67, s66
v_mov_b32 v88, s67
v_and_b32 v87, 7, v1
v_lshl_add_u32 v87, v87, 2, s66
s_mov_b32 s74, 0
s_mov_b32 s75, 0
s_cmp_eq_u32 s3, 0
s_cselect_b64 vcc, 1, 0
""")
    if cmap == 1: a("s_lshl_b32 s52, s2, 18\ns_lshl_b32 s53, s3, 12\ns_add_u32 s52, s52, s53")
    if rot is not None: a(rot + "\ns_and_b32 s61, s61, 15\ns_lshl_b32 s61, s61, 14")
    RB = 256 - RING * 4
    def rreg(n): return RB + ((n - NLL) % RING) * 4
    NL = 128
    st = {"tile": None}
    def issue(n):
        isv = n >= 64; t = (n & 63) >> 2; q = n & 3
        if st["tile"] != (isv, t):
            st["tile"] = (isv, t)
            if rot is None: a(f"s_add_u32 s53, s52, {t*16384}")
            else: a(f"s_add_u32 s53, s61, {t*16384}\ns_and_b32 s53, s53, 0x3ffff\ns_add_u32 s53, s53, s52")
            if n < NLL: a(f"s_add_u32 m0, s60, {t*4096}\ns_nop 0")
        if n < NLL:
            a(f"buffer_load_dwordx4 v2, s[44:47], s53 offen offset:{q*1024} nt lds"); return
        r = rreg(n)
        a(f"buffer_load_dwordx4 v[{r}:{r+3}], {'v3' if isv else 'v2'}, {'s[48:51]' if isv else 's[44:47]'}, s53 offen offset:{q*1024} nt")
    QB = 8; Y = 12; ACC = 28; DT = 28; TT = 44; PT = 60; PA = 76; M = 80
    def setup_consts():
        a(f"""
s_mov_b32 s54, 0x05040100
s_mov_b32 s55, 0x07060302
s_mov_b32 s56, {f32(128**-0.5)}
s_mov_b32 s57, {f32(LOG2E)}
v_lshlrev_b32 v4, 8, v7
v_lshl_add_u32 v4, v5, 6, v4
v_lshl_add_u32 v4, v6, 4, v4
v_mov_b32 v84, 0
v_add_u32 v86, s60, v3
""")
    def wait_q():
        stamp(1)
        if "noq" in dbg:
            a(f"ds_read_b128 v[{QB}:{QB+3}], v4 offset:{QL}\ns_waitcnt lgkmcnt(0)"); stamp(2); return
        a(f"""
s_mov_b32 s58, {spin*8}
L_sq:
ds_read_b32 v85, v84 offset:{FLG+4}
s_waitcnt lgkmcnt(0)
v_readfirstlane_b32 s59, v85
s_sub_u32 s58, s58, 1
s_cbranch_scc1 L_sq_done
s_cmp_ge_u32 s59, 4
s_cbranch_scc1 L_sq_done
s_sleep 1
s_branch L_sq
L_sq_done:
ds_read_b128 v[{QB}:{QB+3}], v4 offset:{QL}
s_waitcnt lgkmcnt(0)
""")
        stamp(2)
        if prof: a("s_waitcnt lgkmcnt(0)")
    def ktile(t):
        if t < NLT:
            for q in range(4): a(f"ds_read_b128 v[{PT+4*q}:{PT+4*q+3}], v86 offset:{t*4096+q*1024}")
        for q in range(4):
            r = rreg(4 * t + q) if t >= NLT else PT + 4 * q
            if t < NLT: a(f"s_waitcnt lgkmcnt({3-q})")
            a(f"v_mfma_f32_16x16x32_bf16 v[{DT+4*q}:{DT+4*q+3}], v[{r}:{r+3}], v[{QB}:{QB+3}], 0")
        for c in range(4):
            for r in range(4):
                n = 4 * ((c - r) % 4)
                ctl = f"row_ror:{n}" if n else "quad_perm:[0,1,2,3]"
                a(f"v_mov_b32_dpp v{TT+r}, v{DT+4*c+r} {ctl} row_mask:0xf bank_mask:{hex(1<<c)}")
        y = Y + t
        a(f"""
v_add_f32 v{TT}, v{TT}, v{TT+1}
v_add_f32 v{TT+2}, v{TT+2}, v{TT+3}
v_add_f32 v{y}, v{TT}, v{TT+2}
v_cvt_pk_bf16_f32 v{y}, v{y}, v{y}
v_lshlrev_b32 v{y}, 16, v{y}
v_mul_f32 v{y}, s56, v{y}
v_cvt_pk_bf16_f32 v{y}, v{y}, v{y}
v_lshlrev_b32 v{y}, 16, v{y}
""")
    def xlane(op, r, t):
        a(f"""
{op}_dpp v{r}, v{r}, v{r} row_ror:4 row_mask:0xf bank_mask:0xf
""") if op != "v_add_f32" else a(f"""
v_add_f32_dpp v{r}, v{r}, v{r} row_ror:4 row_mask:0xf bank_mask:0xf
""")
        a(f"""
{op}_dpp v{r}, v{r}, v{r} row_ror:8 row_mask:0xf bank_mask:0xf
v_mov_b32 v{t}, v{r}
v_permlane16_swap_b32 v{r}, v{t}
{op} v{r}, v{r}, v{t}
v_mov_b32 v{t}, v{r}
v_permlane32_swap_b32 v{r}, v{t}
{op} v{r}, v{r}, v{t}
""")
    def softmax():
        m = M; l = M + 1; t = M + 2
        a(f"v_max3_f32 v{m}, v{Y}, v{Y+1}, v{Y+2}")
        for i in range(3, 15, 2): a(f"v_max3_f32 v{m}, v{m}, v{Y+i}, v{Y+i+1}")
        a(f"v_max_f32 v{m}, v{m}, v{Y+15}")
        xlane("v_max_f32", m, t)
        a(f"v_mul_f32 v{m}, s57, v{m}")
        for i in range(16): a(f"v_fma_f32 v{Y+i}, v{Y+i}, s57, -v{m}")
        for i in range(16): a(f"v_exp_f32 v{Y+i}, v{Y+i}")
        a(f"v_add_f32 v{l}, v{Y}, v{Y+1}")
        a(f"v_add_f32 v{t}, v{Y+2}, v{Y+3}")
        for i in range(4, 16, 2):
            a(f"v_add_f32 v{l}, v{l}, v{Y+i}")
            a(f"v_add_f32 v{t}, v{t}, v{Y+i+1}")
        a(f"v_add_f32 v{l}, v{l}, v{t}")
        for v in range(8): a(f"v_cvt_pk_bf16_f32 v{Y+v}, v{Y+2*v}, v{Y+2*v+1}")
        xlane("v_add_f32", l, t)
        a(f"""
s_lshl_b32 s59, s3, 5
v_lshl_add_u32 v{t}, v1, 3, s59
s_mov_b64 exec, 15
ds_write_b64 v{t}, v[{m}:{m+1}] offset:{ST}
s_mov_b64 exec, 1
v_mov_b32 v{t}, 1
ds_add_u32 v84, v{t} offset:{FLG+16}
s_mov_b64 exec, -1
""")
    def vchunk(v):
        a(f"v_mov_b32 v{PA}, v{Y+v}")
        for p in (1, 2, 3):
            a(f"v_mov_b32_dpp v{PA+p}, v{Y+v} row_ror:{4*((0-p)%4)} row_mask:0xf bank_mask:0xf")
        for half in range(2):
            for jj in range(4 * half, 4 * half + 4):
                o = PT + 4 * (jj & 3)
                for p in range(4):
                    lo = rreg(64 + 8 * v + p) + (jj >> 1); hi = rreg(64 + 8 * v + 4 + p) + (jj >> 1)
                    a(f"v_perm_b32 v{o+p}, v{hi}, v{lo}, {'s55' if jj & 1 else 's54'}")
            for jj in range(4 * half, 4 * half + 4):
                o = PT + 4 * (jj & 3); d = ACC + 4 * jj
                c = "0" if v == 0 else f"v[{d}:{d+3}]"
                a(f"v_mfma_f32_16x16x32_bf16 v[{d}:{d+3}], v[{PA}:{PA+3}], v[{o}:{o+3}], {c}")
    work = [("K", t, 4 * t + 3) for t in list(range(NLT, 16)) + list(range(NLT))] + [("S", 0, 63)] + [("V", v, 64 + 8 * v + 7) for v in range(8)]
    consumed = NLL - 1
    wi = 0
    def do_work():
        nonlocal wi, consumed
        k, i, last = work[wi]
        if k == "K":
            if wi == 0: wait_q()
            if "nok" not in dbg: ktile(i)
            consumed = max(consumed, last)
        elif k == "S":
            if "nosm" in dbg: a(f"s_mov_b64 exec, 1\nv_mov_b32 v82, 1\nds_add_u32 v84, v82 offset:{FLG+16}\ns_mov_b64 exec, -1")
            else: softmax()
            stamp(3)
        else:
            if "nov" not in dbg: vchunk(i)
            consumed = last
        wi += 1
    issued = 0
    ops = []
    def iss(n): issue(n); ops.append(("L", n))
    def vm_for(X):
        li = [i for i, o in enumerate(ops) if o[0] == "L"]
        if len(li) <= X: return None
        p = li[len(li) - X - 1]
        return len(ops) - 1 - p, p
    if pat is None: pat = [(WIN, G)]
    if fc: pat = [(fc["W"][1], fc["G"])]
    for n in range(pat[0][0]): iss(n)
    issued = pat[0][0]
    a("s_barrier")
    setup_consts()
    arrived = -1
    step = 0
    done_op = -1; nw = 0; ph = 0; nctl = 0; evalq = []; PAIRS = [88, 92, 94]; tagdone = False
    while issued < NL:
        pp = pat2 if (pat2 is not None and issued >= n0) else pat
        WIN, G = pp[step % len(pp)]; step += 1
        if not fc:
            if issued - (WIN - G) - 1 > arrived: a(f"s_waitcnt vmcnt({WIN-G})")
            arrived = max(arrived, issued - (WIN - G) - 1)
        else:
            Wl, Wm, Wh = fc["W"]
            r = vm_for(Wh - G)
            if r: a(f"s_waitcnt vmcnt({r[0]})"); done_op = max(done_op, r[1]); arrived = max(arrived, issued - (Wh - G) - 1)
            a(f"""
s_cmp_eq_u32 s62, 2 ;nc
s_cbranch_scc1 L_fs{step} ;nc
s_waitcnt vmcnt({vm_for(Wm - G)[0]}) ;nc
s_cmp_eq_u32 s62, 0 ;nc
s_cbranch_scc1 L_fs{step} ;nc
s_waitcnt vmcnt({vm_for(Wl - G)[0]}) ;nc
L_fs{step}:
""")
        if est:
            for i_, e_ in enumerate(est):
                if e_ is not None and arrived >= e_: stamp(5 + i_); est[i_] = None
        g = min(G, NL - issued)
        while issued + g - 1 - RING > consumed:
            if work[wi][2] > arrived:
                assert not fc
                a(f"s_waitcnt vmcnt({issued - 1 - work[wi][2]})"); arrived = work[wi][2]
            do_work()
        for n in range(issued, issued + g): iss(n)
        if fc:
            d = fc["d"]; k0 = fc.get("k0", 2); last = (NL - fc.get("stop", 8) - fc["W"][1]) // G
            if step == k0:
                a("s_waitcnt lgkmcnt(0)\ns_add_u32 s73, s73, 1\nv_mov_b32 v90, s73")
            if fc.get("wg"):
                for e in [e for e in evalq if e[0] <= done_op]:
                    evalq.remove(e)
                    a(f"v_sad_u8 v85, v{e[1]}, 0, 0\ns_movk_i32 s68, {32 * e[2]}\ns_call_b64 s[80:81], L_cw")
                if step >= fc.get("kw", 4) and step % fc["CW"] == 0 and step <= last:
                    r_ = [91, 92, 93, 94, 95, 86 if NLT == 0 else 5][nw % 6]; nw += 1; assert len(evalq) < 6
                    a(f"""
v_mov_b32 v89, {step}
s_mov_b64 exec, vcc
buffer_store_byte v89, v88, s[12:15], 0 offen
s_mov_b64 exec, -1
buffer_load_dword v{r_}, v87, s[12:15], 0 offen nt
""")
                    ops.append(("S", 0)); ops.append(("C", 0)); evalq.append((len(ops) - 1, r_, step))
            if k0 <= step <= last - d and fc.get("x", 1):
                a(f"""
s_movk_i32 s65, {PGOFF + step * 256}
s_cmp_eq_u32 s64, {step % 32}
s_cselect_b64 exec, 1, 0
buffer_store_dword v90, v83, s[76:79], s65 offen sc1
s_mov_b64 exec, -1
""")
                ops.append(("S", 0))
            if step >= k0 + d and (step - k0 - d) % fc["C"] == 0:
                if nctl > 0: a("s_call_b64 s[80:81], L_cb"); nctl = 0
                if step <= last and fc.get("x", 1):
                    a(f"s_load_dwordx8 s[4:11], s[40:41], {PGOFF + (step - d) * 256}"); nctl = 1
        issued += g
        for _ in range(WPS):
            if wi < len(work) and work[wi][2] <= arrived and (wi > 0 or issued + G - 1 - RING > consumed):
                do_work()
    while wi < len(work):
        need_ = work[wi][2]
        if need_ > arrived:
            r = vm_for(NL - 1 - need_) if fc else (NL - 1 - need_,)
            a(f"s_waitcnt vmcnt({r[0]})"); arrived = need_
        do_work()
    stamp(4)
    a(f"""
s_mul_i32 s59, s3, 2304
v_mul_u32_u24 v4, 144, v1
v_add_u32 v4, s59, v4
s_mov_b64 exec, 0xffff
""")
    for jj in range(8):
        a(f"ds_write_b128 v4, v[{ACC+4*jj}:{ACC+4*jj+3}] offset:{OP+16*jj}")
    a("""
s_mov_b64 exec, -1
s_waitcnt lgkmcnt(0)
s_barrier
""")
    if prof:
        a(f"""
s_mov_b32 s44, s40
s_mov_b32 s45, s41
s_mov_b32 s46, 0x10000000
s_mov_b32 s47, 0x20000
s_sleep 127
s_sleep 127
s_sleep 127
s_waitcnt lgkmcnt(0)
s_lshl_b32 s59, s2, 3
s_add_u32 s59, s59, s3
s_lshl_b32 s59, s59, 6
s_add_u32 s59, s59, {STAMP}
v_mov_b32 v4, 0
s_mov_b64 exec, 1
""")
        for i in range(8):
            sr = 82 if (i == 5 and fc) else 84 + 2 * (i if est else min(i, 4))
            a(f"v_mov_b32 v8, s{sr}\nv_mov_b32 v9, s{sr+1}\nbuffer_store_dwordx2 v[8:9], v4, s[44:47], s59 offen offset:{8*i}\ns_waitcnt vmcnt(0)")
    a("s_endpgm")
    X = 32
    S1 = 12; S2 = 13; T0 = 14; T1 = 15; NM = 16; RS = 18
    W1 = 40; B1 = 47; W2 = 54; HX = 62; U = 66; AA = 73; EE = 80; ACC2 = 87; C1 = 88; YA = 89
    WB = 192
    def srd(base, lo, size): a(f"s_mov_b32 s{base}, s{lo}\ns_mov_b32 s{base+1}, s{lo+1}\ns_mov_b32 s{base+2}, {size}\ns_mov_b32 s{base+3}, 0x20000")
    def bfround(r): a(f"v_cvt_pk_bf16_f32 v{r}, v{r}, v{r}\nv_lshlrev_b32 v{r}, 16, v{r}")
    def stats_finish():
        a(f"""
v_mul_f32 v{S1}, {f32(1/512)}, v{S1}
v_mul_f32 v{S2}, {f32(1/512)}, v{S2}
v_fma_f32 v{S2}, -v{S1}, v{S1}, v{S2}
v_max_f32 v{S2}, 0, v{S2}
""")
        bfround(S1); bfround(S2)
        a(f"v_add_f32 v{S2}, {f32(1e-5)}, v{S2}")
        bfround(S2)
        a(f"v_sqrt_f32 v{S2}, v{S2}")
        bfround(S2)
        a(f"""
v_rcp_f32 v{RS}, v{S2}
v_sub_f32 v{NM}, 0, v{S1}
v_sub_f32 v{NM+1}, 0, v{S1}
v_mov_b32 v{RS+1}, v{RS}
""")
    def swaps_add(r, t):
        a(f"""
v_mov_b32 v{t}, v{r}
v_permlane16_swap_b32 v{r}, v{t}
v_add_f32 v{r}, v{r}, v{t}
v_mov_b32 v{t}, v{r}
v_permlane32_swap_b32 v{r}, v{t}
v_add_f32 v{r}, v{r}, v{t}
""")
    def normalize(src, dst, n, tmp):
        for i0 in range(0, n, 4):
            idx = list(range(i0, min(n, i0 + 4)))
            for i in idx:
                t = tmp + 2 * (i - i0)
                a(f"v_lshlrev_b32 v{t}, 16, v{src+i}\nv_and_b32 v{t+1}, 0xffff0000, v{src+i}")
            for i in idx:
                t = tmp + 2 * (i - i0)
                a(f"v_pk_add_f32 v[{t}:{t+1}], v[{t}:{t+1}], v[{NM}:{NM+1}]")
            for i in idx:
                t = tmp + 2 * (i - i0)
                a(f"v_cvt_pk_bf16_f32 v{t}, v{t}, v{t+1}")
            for i in idx:
                t = tmp + 2 * (i - i0)
                a(f"v_and_b32 v{t+1}, 0xffff0000, v{t}\nv_lshlrev_b32 v{t}, 16, v{t}")
            for i in idx:
                t = tmp + 2 * (i - i0)
                a(f"v_pk_mul_f32 v[{t}:{t+1}], v[{t}:{t+1}], v[{RS}:{RS+1}]")
            for i in idx:
                t = tmp + 2 * (i - i0)
                a(f"v_cvt_pk_bf16_f32 v{dst+i}, v{t}, v{t+1}")
    def lds_wait(lbl, off, cnt, sl=0):
        a(f"""
s_mov_b32 s58, {spin*8}
{lbl}:
ds_read_b32 v4, v9 offset:{off}
s_waitcnt lgkmcnt(0)
v_readfirstlane_b32 s59, v4
s_sub_u32 s58, s58, 1
s_cbranch_scc1 {lbl}_done
s_cmp_lt_u32 s59, {cnt}
{f"s_sleep {sl}" if sl else ""}
s_cbranch_scc1 {lbl}
{lbl}_done:
""")
    def lds_signal(off):
        a(f"""
s_mov_b64 exec, 1
ds_add_u32 v9, v11 offset:{off}
s_mov_b64 exec, -1
""")
    def orred(ts):
        ts = list(ts)
        while len(ts) > 1:
            if len(ts) >= 3:
                a(f"v_or3_b32 v{ts[0]}, v{ts[0]}, v{ts[1]}, v{ts[2]}"); ts = ts[3:] + [ts[0]]
            else:
                a(f"v_or_b32 v{ts[0]}, v{ts[0]}, v{ts[1]}"); ts = [ts[0]]
        return ts[0]
    def chk8(tags, tmp):
        for i, t in enumerate(tags): a(f"v_xor_b32 v{tmp+i}, s12, v{t}")
        return orred([tmp + i for i in range(len(tags))])
    def chk16(bases, tmp, tagreg):
        out = []
        for i, b in enumerate(bases):
            a(f"v_perm_b32 v{tmp+2*i}, v{b+1}, v{b}, s20\nv_perm_b32 v{tmp+2*i+1}, v{b+3}, v{b+2}, s21")
        for i, b in enumerate(bases):
            a(f"v_or_b32 v{tmp+2*i}, v{tmp+2*i}, v{tmp+2*i+1}")
        for i, b in enumerate(bases):
            a(f"v_xor_b32 v{tmp+2*i}, s{tagreg}, v{tmp+2*i}"); out.append(tmp + 2 * i)
        return orred(out)
    def pack16(dst, srcs, tagv):
        for i, r in enumerate(srcs): a(f"v_perm_b32 v{dst+i}, v{r}, v{tagv}, s{16+i}")
    def poll(lbl, loads, chk, fbr=None, post=None, st=None, pipe=1, stag=0, sl=None):
        if sl is None: sl = slp
        if fbr is not None: a(f"s_mov_b32 s82, s{fbr}\ns_add_u32 s83, s{fbr}, {BD}")
        a(f"s_mov_b32 s58, {spin}")
        for _ in range(pipe - 1):
            for l in loads: a(l)
            if stag: a(f"s_sleep {stag}")
        a(f"{lbl}:")
        if st is not None and tailprof: stamp(st)
        for l in loads: a(l)
        a(f"s_waitcnt vmcnt({len(loads) * (pipe - 1)})")
        r = chk()
        if post: r = post(r)
        a(f"""
v_cmp_ne_u32 vcc, 0, v{r}
s_sub_u32 s58, s58, 1
s_cbranch_scc1 {lbl}_done
s_and_b64 exec, exec, vcc
s_cbranch_execz {lbl}_done
""")
        if fbr is not None: a(f"s_and_b32 s59, s58, {fb}\ns_cselect_b32 s{fbr}, s82, s83")
        if sl: a(f"s_sleep {sl}")
        a(f"""
s_branch {lbl}
{lbl}_done:
s_mov_b64 exec, -1
""")
    a("L_helper:\ns_setprio 3\ns_sub_u32 s3, s3, 4")
    srd(44, 16, 8192); srd(48, 22, 0x400000); srd(52, 40, 0x10000000); srd(56, 24, 0x400000)
    srd(60, 28, 3584); srd(64, 30, 3584); srd(68, 32, 3584)
    a(f"""
v_lshrrev_b32 v5, 4, v1
v_and_b32 v6, 7, v1
v_and_b32 v8, 15, v1
v_lshrrev_b32 v7, 5, v1
v_and_b32 v4, 31, v1
v_lshlrev_b32 v4, 4, v4
v_lshl_add_u32 v2, v7, 10, v4
s_lshl_b32 s6, s3, 11
v_mov_b32 v9, 0
v_mov_b32 v11, 1
v_lshrrev_b32 v20, 3, v1
v_lshlrev_b32 v21, 13, v20
v_lshl_add_u32 v21, v6, 4, v21
v_lshlrev_b32 v22, 10, v20
v_lshl_add_u32 v22, v6, 4, v22
s_and_b32 s15, s2, 7
s_lshr_b32 s14, s2, 3
s_add_u32 s4, s14, {rq}
s_and_b32 s4, s4, 7
s_add_u32 s14, s14, {ro}
s_and_b32 s14, s14, 7
s_lshl_b32 s8, s15, 3
s_add_u32 s8, s8, s4
s_lshr_b32 s9, s2, 6
s_lshl_b32 s4, s9, 2
s_add_u32 s4, s4, s3
s_lshl_b32 s4, s4, 18
s_lshl_b32 s5, s8, 7
s_add_u32 s72, s4, s5
s_lshl_b32 s13, s15, 2
s_add_u32 s13, s13, s9
s_lshl_b32 s4, s13, 2
s_add_u32 s4, s4, s3
s_lshl_b32 s4, s4, 15
s_lshl_b32 s5, s14, 7
s_add_u32 s73, s4, s5
s_lshl_b32 s4, s3, 12
s_add_u32 s74, s4, {WQL}
s_mul_i32 s75, s3, 896
v_lshlrev_b32 v23, 1, v1
s_barrier
""")
    a(f"""
buffer_load_dwordx4 v[{X}:{X+3}], v2, s[44:47], s6 offen
buffer_load_dwordx4 v[{X+4}:{X+7}], v2, s[44:47], s6 offen offset:512
{"s_load_dword s42, s[40:41], 0" if sE else "buffer_load_dword v10, v9, s[52:55], 0 offen sc1"}
""")
    if "nowq" in dbg: a("s_mov_b32 s50, 0\ns_mov_b32 s58, 0")
    for t in range(4):
        a(f"s_add_u32 m0, s74, {t*1024}\ns_nop 0\nbuffer_load_dwordx4 v21, s[48:51], s72 offen nt lds")
        if t < 3: a(f"s_add_u32 s72, s72, {8*8192}")
    def wodma(t, vr, so, sl):
        a(f"s_add_u32 m0, s{sl}, {16384+t*1024}\ns_nop 0\nbuffer_load_dwordx4 v{vr}, {'s[56:59]' if wolate is None else 's[68:71]'}, s{so} offen nt lds")
        if t < 3: a(f"s_add_u32 s{so}, s{so}, {8*1024}")
    if wolate is None:
        for t in range(4): wodma(t, 22, 73, 74)
    else:
        a("v_mov_b32 v90, v22\ns_mov_b32 s22, s73\ns_mov_b32 s23, s74")
    NW = 0 if wolate is None else 4
    for t in range(7):
        a(f"buffer_load_ushort v{W1+t}, v23, s[60:63], s75 offen offset:{128*t}")
        a(f"buffer_load_ushort v{B1+t}, v23, s[64:67], s75 offen offset:{128*t}")
        a(f"buffer_load_ushort v{W2+t}, v23, s[68:71], s75 offen offset:{128*t}")
    srd(60, 34, 2); srd(64, 36, 8192); srd(68, 24, 0 if 'nowq' in dbg else 0x400000)
    a(f"""
v_and_b32 v30, 3, v1
v_lshlrev_b32 v30, 1, v30
v_lshl_add_u32 v30, v5, 5, v30
s_lshr_b32 s10, s2, 2
s_lshl_b32 s10, s10, 7
s_and_b32 s4, s2, 3
s_lshl_b32 s4, s4, 3
s_add_u32 s10, s10, s4
buffer_load_ushort v31, v9, s[60:63], 0 offen
buffer_load_ushort v29, v30, s[44:47], s10 offen
s_mov_b32 s16, 0x07060500
s_mov_b32 s17, 0x07060501
s_mov_b32 s18, 0x07060502
s_mov_b32 s19, 0x07060503
s_mov_b32 s20, 0x0c0c0400
s_mov_b32 s21, 0x04000c0c
s_getreg_b32 s43, hwreg(HW_REG_XCC_ID, 0, 4)
s_lshl_b32 s43, s43, 28
s_mov_b32 s11, 0x3f803f80
v_mov_b32 v{S1}, 0
v_mov_b32 v{S2}, 0
s_waitcnt vmcnt({(31 if sE else 32) - NW})
""")
    for i in range(8):
        a(f"v_dot2_f32_bf16 v{S1}, v{X+i}, s11, v{S1}")
        a(f"v_dot2_f32_bf16 v{S2}, v{X+i}, v{X+i}, v{S2}")
    for n in (8, 4, 2, 1):
        a(f"v_add_f32_dpp v{S1}, v{S1}, v{S1} row_ror:{n} row_mask:0xf bank_mask:0xf")
        a(f"v_add_f32_dpp v{S2}, v{S2}, v{S2} row_ror:{n} row_mask:0xf bank_mask:0xf")
    a(f"""
v_mov_b32 v{T0}, v{S1}
v_mov_b32 v{T1}, v{S2}
v_permlane16_swap_b32 v{S1}, v{T0}
v_permlane16_swap_b32 v{S2}, v{T1}
v_add_f32 v{S1}, v{S1}, v{T0}
v_add_f32 v{S2}, v{S2}, v{T1}
""")
    stats_finish()
    normalize(X, X, 8, 20)
    a(f"""
s_mul_i32 s4, s3, {2*XRS}
v_mul_u32_u24 v2, {XRS}, v7
v_add3_u32 v2, v2, v4, s4
ds_write_b128 v2, v[{X}:{X+3}] offset:{XN}
ds_write_b128 v2, v[{X+4}:{X+7}] offset:{XN+512}
v_mul_u32_u24 v2, {XRS}, v6
v_lshl_add_u32 v2, v5, 4, v2
s_lshl_b32 s4, s9, 8
v_add_u32 v2, s4, v2
v_bfe_u32 v3, v1, 2, 2
v_lshl_add_u32 v3, v5, 3, v3
v_lshlrev_b32 v3, 7, v3
v_and_b32 v20, 3, v1
v_lshl_add_u32 v3, v20, 3, v3
s_lshl_b32 s4, s3, 5
v_add_u32 v24, s4, v3
s_waitcnt vmcnt(23) lgkmcnt(0)
""")
    lds_signal(FLG + 8)
    a(f"""
{"s_add_u32 s42, s42, 1" if sE else "v_add_u32 v10, 1, v10"}
v_lshlrev_b32 v25, 7, v5
v_lshl_add_u32 v25, v6, 4, v25
s_lshl_b32 s4, s8, 2
s_add_u32 s4, s4, s9
s_lshl_b32 s4, s4, 2
s_add_u32 s4, s4, s3
s_lshl_b32 s4, s4, 9
s_add_u32 s72, s4, {QOFF}
{"" if sE else "v_readfirstlane_b32 s42, v10"}
s_add_u32 s73, s72, {BD}
s_mul_i32 s12, s42, 0x01010101
s_xor_b32 s43, s43, s12
v_mov_b32 v10, s12
v_mov_b32 v21, s43
""")
    lds_wait("L_xw", FLG + 8, 4)
    for t in range(4):
        a(f"ds_read_b128 v[{96+4*t}:{99+4*t}], v2 offset:{XN+64*t}")
        for u in range(2): a(f"ds_read_b64_tr_b16 v[{112+4*t+2*u}:{113+4*t+2*u}], v24 offset:{WQL+t*4096+u*512}")
    a("s_waitcnt lgkmcnt(0)")
    stamp(1)
    for t in range(4):
        a(f"v_mfma_f32_16x16x32_bf16 v[128:131], v[{112+4*t}:{115+4*t}], v[{96+4*t}:{99+4*t}], {'0' if t == 0 else 'v[128:131]'}")
    pack16(132, [128, 129, 130, 131], 21)
    a(f"""
s_mov_b32 exec_lo, 0x00ff00ff
s_mov_b32 exec_hi, 0x00ff00ff
buffer_store_dwordx4 v[132:135], v25, s[52:55], s72 offen
buffer_store_dwordx4 v[132:135], v25, s[52:55], s73 offen sc1
s_mov_b64 exec, -1
""")
    stamp(2)
    a(f"s_setprio {bgprio}")
    def woread(vr):
        for nt_ in range(4):
            for kk in range(4):
                for u in range(2):
                    r = WB + 16 * nt_ + 4 * kk + 2 * u
                    a(f"ds_read_b64_tr_b16 v[{r}:{r+1}], v{vr} offset:{WQL+16384+kk*4096+u*512+nt_*32}")
    if wolate is None: woread(3)
    else: a("v_mov_b32 v91, v3")
    a(f"""
s_lshr_b32 s4, s2, 5
s_mul_i32 s4, s4, {XRS}
v_lshl_add_u32 v2, v1, 4, s4
ds_read_b128 v[{HX}:{HX+3}], v2 offset:{XN}
v_mov_b32 v{S1}, 0
v_mov_b32 v{S2}, 0
s_waitcnt lgkmcnt(0)
""")
    for i in range(4):
        a(f"v_dot2_f32_bf16 v{S1}, v{HX+i}, s11, v{S1}")
        a(f"v_dot2_f32_bf16 v{S2}, v{HX+i}, v{HX+i}, v{S2}")
    for n in (8, 4, 2, 1):
        a(f"v_add_f32_dpp v{S1}, v{S1}, v{S1} row_ror:{n} row_mask:0xf bank_mask:0xf")
        a(f"v_add_f32_dpp v{S2}, v{S2}, v{S2} row_ror:{n} row_mask:0xf bank_mask:0xf")
    swaps_add(S1, T0); swaps_add(S2, T1)
    stats_finish()
    normalize(HX, HX, 4, 20)
    a(f"""
s_bitcmp1_b32 s2, 0
s_cselect_b64 vcc, -1, 0
s_bfe_u32 s4, s2, 0x30002
s_lshl_b32 s4, s4, 3
s_bfe_u32 s5, s2, 0x10001
s_add_u32 s4, s4, s5
v_cndmask_b32 v{HX}, v{HX}, v{HX+2}, vcc
v_cndmask_b32 v{HX+1}, v{HX+1}, v{HX+3}, vcc
""")
    for i in range(4):
        a(f"v_readlane_b32 s{72+2*i}, v{HX}, s4\nv_readlane_b32 s{73+2*i}, v{HX+1}, s4")
        if i < 3: a("s_add_u32 s4, s4, 2")
    a("s_waitcnt vmcnt(2)")
    for i in range(21): a(f"v_lshlrev_b32 v{W1+i}, 16, v{W1+i}")
    c0 = -2 * LOG2E * math.sqrt(2 / math.pi); c1 = c0 * 0.044715
    a(f"""
v_mov_b32 v{C1}, {f32(c1)}
s_lshl_b32 s4, s3, 6
v_mov_b32 v{YA}, s4
""")
    def mlp_steps(lo, hi):
        for d in range(lo, hi):
            if d & 1: a(f"s_and_b32 s4, s{72+(d>>1)}, 0xffff0000")
            else: a(f"s_lshl_b32 s4, s{72+(d>>1)}, 16")
            if "nomlp" not in dbg: a("s_call_b64 s[80:81], L_mlp")
            if wolate is not None and d in wolate: wodma(wolate.index(d), 90, 22, 23)
    mlp_steps(0, mlp1)
    a(f"""
s_setprio 3
s_lshr_b32 s4, s2, 5
s_lshl_b32 s4, s4, 4
s_lshl_b32 s5, s15, 2
s_add_u32 s5, s5, s3
s_lshl_b32 s5, s5, 14
s_add_u32 s4, s4, s5
s_add_u32 s6, s4, {QOFF}
v_bfe_u32 v2, v1, 1, 4
v_lshlrev_b32 v2, 7, v2
v_lshl_add_u32 v2, v7, 13, v2
v_and_b32 v3, 1, v1
v_lshl_add_u32 v2, v3, 12, v2
""")
    def qpost(r):
        a(f"v_mov_b32 v108, v{r}\nv_and_b32 v{r}, 0x0fffffff, v{r}"); return r
    poll("L_gq", [f"buffer_load_dwordx4 v[{96+4*k}:{99+4*k}], v2, s[52:55], s6 offen offset:{2048*k} sc1" for k in range(2)],
         lambda: chk16([96, 100], 104, 43), fbr=6, post=qpost)
    for i in range(8): a(f"v_and_b32 v{96+i}, 0xffffff00, v{96+i}")
    for i in range(4): a(f"v_add_f32 v{96+i}, v{96+i}, v{100+i}")
    for i in range(4): a(f"v_add_f32_dpp v{96+i}, v{96+i}, v{96+i} quad_perm:[1,0,3,2] row_mask:0xf bank_mask:0xf")
    a(f"""
v_cmp_ne_u32 vcc, 0, v108
s_lshl_b32 s4, s3, 8
v_lshrrev_b32 v2, 1, v1
v_lshl_add_u32 v2, v2, 3, s4
v_cvt_pk_bf16_f32 v96, v96, v97
v_cvt_pk_bf16_f32 v97, v98, v99
ds_write_b64 v2, v[96:97] offset:{QL}
s_cbranch_vccz L_gq_loc
ds_write_b32 v9, v11 offset:{FLG+20}
L_gq_loc:
s_waitcnt lgkmcnt(0)
""")
    lds_signal(FLG + 4)
    stamp(3)
    a(f"s_setprio {bgprio}")
    mlp_steps(mlp1, 16)
    a("s_waitcnt vmcnt(0) lgkmcnt(0)")
    lds_signal(FLG + 12)
    a(f"""
v_lshrrev_b32 v2, 2, v1
v_mul_u32_u24 v20, 144, v2
v_and_b32 v3, 3, v1
v_lshl_add_u32 v20, v3, 5, v20
s_lshl_b32 s4, s3, 2
s_add_u32 s4, s4, {OP}
v_add_u32 v20, s4, v20
v_add_u32 v21, 2304, v20
v_add_u32 v22, 4608, v20
v_add_u32 v23, 6912, v20
s_lshl_b32 s4, s3, 3
v_mov_b32 v24, s4
v_lshrrev_b32 v25, 5, v1
v_lshlrev_b32 v25, 7, v25
v_bfe_u32 v2, v1, 4, 1
v_lshl_add_u32 v25, v2, 11, v25
v_bfe_u32 v2, v1, 1, 1
v_lshl_add_u32 v25, v2, 10, v25
v_bfe_u32 v2, v1, 2, 2
v_lshl_add_u32 v25, v2, 8, v25
v_and_b32 v2, 1, v1
v_lshl_add_u32 v25, v2, 3, v25
v_lshlrev_b32 v26, 4, v1
v_and_b32 v2, 1, v5
v_lshl_add_u32 v27, v2, 2, v3
v_lshlrev_b32 v27, 4, v27
v_lshlrev_b32 v28, {6 if h2full else 16}, v2
v_bfe_u32 v2, v1, 2, 2
v_lshl_add_u32 v28, v2, {12 if h2full else 11}, v28
v_lshl_add_u32 v28, v3, 4, v28
v_lshrrev_b32 v19, 2, v1
v_lshlrev_b32 v19, {7 if h2full else 6}, v19
v_lshl_add_u32 v19, v3, 4, v19
s_lshl_b32 s4, s15, 2
s_add_u32 s4, s4, s3
s_lshl_b32 s4, s4, 2
s_add_u32 s4, s4, s9
s_mul_i32 s4, s4, {H1S}
s_bfe_u32 s5, s2, 0x30003
s_lshl_b32 s5, s5, 4
s_add_u32 s4, s4, s5
s_add_u32 s6, s4, {H1OFF}
s_lshl_b32 s4, s13, 2
s_add_u32 s4, s4, s3
s_mul_i32 s4, s4, {H1S}
s_add_u32 s7, s4, {H1OFF}
s_lshl_b32 s4, s3, {5 if h2full else 6}
s_lshl_b32 s5, s14, 2
s_add_u32 s4, s4, s5
s_lshl_b32 s4, s4, {12 if h2full else 11}
s_lshl_b32 s5, s13, {7 if h2full else 6}
s_add_u32 s4, s4, s5
s_add_u32 s8, s4, {H2OFF}
""")
    if not h2full: a("s_lshl_b32 s9, s2, 11")
    else: a("""
s_lshr_b32 s9, s2, 6
s_lshl_b32 s9, s9, 5
s_and_b32 s4, s2, 31
s_add_u32 s9, s9, s4
s_lshl_b32 s9, s9, 12
s_bfe_u32 s4, s2, 0x10005
s_lshl_b32 s4, s4, 6
s_add_u32 s9, s9, s4
""")
    h2l = [f"buffer_load_dwordx4 v[{136+4*k}:{139+4*k}], v19, s[52:55], s9 offen offset:{(2048 if h2full else 1024)*k} sc1" for k in range(2)]
    a(f"""
s_add_u32 s9, s9, {H2OFF}
""")
    if wolate is not None:
        lds_wait("L_yw", FLG + 12, 4); woread(91)
    a("""
s_cmp_lg_u32 s3, 0
s_cbranch_scc1 L_ready
""")
    if wolate is None: lds_wait("L_yw", FLG + 12, 4)
    if h2pre:
        for l in h2l: a(l)
    a(f"""
v_lshl_add_u32 v2, v5, 2, v3
v_lshlrev_b32 v2, 2, v2
ds_read_b32 v32, v2 offset:{YP}
ds_read_b32 v33, v2 offset:{YP+64}
ds_read_b32 v34, v2 offset:{YP+128}
ds_read_b32 v35, v2 offset:{YP+192}
v_lshlrev_b32 v31, 16, v31
s_waitcnt lgkmcnt(0)
v_add_f32 v32, v32, v33
v_add_f32 v34, v34, v35
v_add_f32 v32, v32, v34
v_cvt_pk_bf16_f32 v32, v32, v32
v_lshlrev_b32 v32, 16, v32
v_add_f32 v32, v32, v31
v_cvt_pk_bf16_f32 v32, v32, v32
v_lshlrev_b32 v32, 16, v32
v_mul_f32 v34, {f32(-LOG2E)}, v32
v_exp_f32 v34, v34
v_add_f32 v34, 1.0, v34
v_rcp_f32 v34, v34
v_mul_f32 v32, v32, v34
v_cvt_pk_bf16_f32 v32, v32, v32
v_lshlrev_b32 v16, 16, v32
v_lshlrev_b32 v14, 16, v29
L_ready:
""")
    lds_wait("L_sw", FLG + 16, 4, sl=8)
    a(f"""
ds_read_b64 v[32:33], v24 offset:{ST}
ds_read_b64 v[34:35], v24 offset:{ST+32}
ds_read_b64 v[36:37], v24 offset:{ST+64}
ds_read_b64 v[38:39], v24 offset:{ST+96}
ds_read_b32 v54, v9 offset:{FLG+20}
s_waitcnt lgkmcnt(0)
v_max3_f32 v48, v32, v34, v36
v_max_f32 v48, v48, v38
v_sub_f32 v32, v32, v48
v_sub_f32 v34, v34, v48
v_sub_f32 v36, v36, v48
v_sub_f32 v38, v38, v48
v_exp_f32 v32, v32
v_exp_f32 v34, v34
v_exp_f32 v36, v36
v_exp_f32 v38, v38
v_mov_b32 v49, v10
v_mov_b32 v51, v10
v_mul_f32 v50, v32, v33
v_fmac_f32 v50, v34, v35
v_fmac_f32 v50, v36, v37
v_fmac_f32 v50, v38, v39
v_mov_b32 v53, v10
v_readfirstlane_b32 s75, v54
s_mov_b64 exec, 1
s_cmp_lg_u32 s75, 0
s_cbranch_scc1 L_st_far
buffer_store_dwordx4 v[48:51], v9, s[52:55], s6 offen
s_mov_b64 exec, -1
""")
    poll("L_sp", [f"buffer_load_dwordx4 v[40:43], v27, s[52:55], s7 offen {h1fl}"], lambda: chk8([41, 43], 80), sl=8)
    a(f"""
s_branch L_st_done
L_st_far:
buffer_store_dwordx4 v[48:51], v9, s[52:55], s6 offen sc1
s_mov_b64 exec, -1
""")
    poll("L_spx", ["buffer_load_dwordx4 v[40:43], v27, s[52:55], s7 offen sc1"], lambda: chk8([41, 43], 80), sl=8)
    a("L_st_done:")
    a("""
v_max_f32_dpp v44, v40, v40 quad_perm:[1,0,3,2] row_mask:0xf bank_mask:0xf
v_max_f32_dpp v45, v44, v44 quad_perm:[2,3,0,1] row_mask:0xf bank_mask:0xf
v_sub_f32 v40, v40, v45
v_exp_f32 v40, v40
v_mul_f32 v42, v40, v42
v_add_f32_dpp v44, v42, v42 quad_perm:[1,0,3,2] row_mask:0xf bank_mask:0xf
v_add_f32_dpp v45, v44, v44 quad_perm:[2,3,0,1] row_mask:0xf bank_mask:0xf
v_rcp_f32 v45, v45
v_mul_f32 v40, v40, v45
v_mov_b32_dpp v56, v40 quad_perm:[0,0,0,0] row_mask:0xf bank_mask:0xf
v_mov_b32_dpp v57, v40 quad_perm:[1,1,1,1] row_mask:0xf bank_mask:0xf
v_mov_b32_dpp v58, v40 quad_perm:[2,2,2,2] row_mask:0xf bank_mask:0xf
v_mov_b32_dpp v59, v40 quad_perm:[3,3,3,3] row_mask:0xf bank_mask:0xf
s_setprio 3
s_waitcnt vmcnt(0) lgkmcnt(0)
""")
    stamp(4)
    a("s_barrier")
    if prof: a("s_waitcnt lgkmcnt(0)")
    if "notail" in dbg:
        stamp(5); stamp(6); a("s_branch L_hend")
    if tailprof: stamp(1); a("s_waitcnt lgkmcnt(0)")
    a(f"""
ds_read2_b32 v[40:41], v20 offset0:0 offset1:4
ds_read2_b32 v[42:43], v21 offset0:0 offset1:4
ds_read2_b32 v[44:45], v22 offset0:0 offset1:4
ds_read2_b32 v[46:47], v23 offset0:0 offset1:4
s_waitcnt lgkmcnt(2)
v_mul_f32 v40, v32, v40
v_mul_f32 v41, v32, v41
v_fmac_f32 v40, v34, v42
v_fmac_f32 v41, v34, v43
s_waitcnt lgkmcnt(0)
v_mul_f32 v44, v36, v44
v_mul_f32 v45, v36, v45
v_fmac_f32 v40, v38, v46
v_fmac_f32 v41, v38, v47
v_add_f32 v40, v40, v44
v_add_f32 v41, v41, v45
s_cmp_lg_u32 s75, 0
v_cvt_pk_bf16_f32 v52, v40, v41
s_cbranch_scc1 L_h1_far
buffer_store_dwordx2 v[52:53], v25, s[52:55], s6 offen offset:128
""")
    stamp(5)
    def h1poll(sfx, fl, pipe):
        full = [f"buffer_load_dwordx4 v[{64+4*k}:{67+4*k}], v26, s[52:55], s7 offen offset:{128+k*1024} {fl}" for k in range(4)]
        poll("L_h1" + sfx, full, lambda: chk8([65, 67, 69, 71, 73, 75, 77, 79], 80), st=4, pipe=pipe, stag=stag1)
    h1poll("", h1fl, pipe1)
    a("L_h1_got:")
    stamp(6)
    AO = 96; DD = 112
    if h2late: a(f"s_mov_b64 exec, 1\nds_add_rtn_u32 v54, v9, v11 offset:{FLG+24}\ns_mov_b64 exec, -1")
    def mv(kk, p):
        src = 64 + 8 * (kk & 1) + 2 * p
        if kk >= 2: a(f"v_mov_b32_dpp v{AO+4*kk+p}, v{src} row_ror:8 row_mask:0xf bank_mask:0xf")
        else: a(f"v_mov_b32 v{AO+4*kk+p}, v{src}")
    for p in range(4): mv(0, p)
    for kk in range(4):
        for nt_ in range(4):
            d = DD + 4 * nt_; b = WB + 16 * nt_ + 4 * kk
            if kk < 3 and nt_ < 2: mv(kk + 1, 2 * nt_); mv(kk + 1, 2 * nt_ + 1)
            a(f"v_mfma_f32_16x16x32_bf16 v[{d}:{d+3}], v[{AO+4*kk}:{AO+4*kk+3}], v[{b}:{b+3}], {'0' if kk == 0 else f'v[{d}:{d+3}]'}")
    GO = 128
    if h2late: a("s_waitcnt lgkmcnt(0)\nv_readfirstlane_b32 s59, v54")
    for t in range(4):
        a(f"v_mul_f32 v{GO+t}, v56, v{DD+4*t}")
        a(f"v_mul_f32 v{GO+4+t}, v58, v{DD+4*t+2}")
    for t in range(4):
        a(f"v_fmac_f32 v{GO+t}, v57, v{DD+4*t+1}")
        a(f"v_fmac_f32 v{GO+4+t}, v59, v{DD+4*t+3}")
    for t in range(4): a(f"v_add_f32 v{GO+t}, v{GO+t}, v{GO+4+t}")
    pack16(GO, [GO, GO + 1, GO + 2, GO + 3], 10)
    if h2late:
        a("s_cmp_eq_u32 s59, 3\ns_cbranch_scc1 L_hl_done")
        lds_wait("L_hl", FLG + 24, 4)
    a(f"s_mov_b64 exec, 0xffffffff\nbuffer_store_dwordx4 v[{GO}:{GO+3}], v28, s[52:55], s8 offen sc1")
    if tailprof: stamp(2)
    if h2sync and not h2late: lds_signal(FLG + 24)
    a(f"""
s_mov_b64 exec, -1
s_cmp_lg_u32 s3, 0
s_cbranch_scc1 L_hend
""")
    if h2sync and not h2late: lds_wait("L_hw", FLG + 24, 4)
    if h2ack: a("s_waitcnt vmcnt(0)")
    poll("L_h2", h2l, lambda: chk16([136, 140], 56, 12), st=3, pipe=pipe2, stag=stag2, sl=slp2)
    for i in range(8): a(f"v_and_b32 v{48+i}, 0xffffff00, v{136+i}")
    for i in range(4): a(f"v_add_f32 v{48+i}, v{48+i}, v{52+i}")
    a(f"""
v_permlane32_swap_b32 v48, v50
v_permlane32_swap_b32 v49, v51
v_add_f32 v48, v48, v50
v_add_f32 v49, v49, v51
v_permlane16_swap_b32 v48, v49
v_add_f32 v48, v48, v49
v_add_f32_dpp v48, v48, v48 row_ror:4 row_mask:0xf bank_mask:0xf
v_add_f32_dpp v48, v48, v48 row_ror:8 row_mask:0xf bank_mask:0xf
s_mov_b32 exec_lo, 0x000f000f
s_mov_b32 exec_hi, 0x000f000f
v_cvt_pk_bf16_f32 v48, v48, v48
v_lshlrev_b32 v48, 16, v48
v_mul_f32 v48, v48, v16
v_cvt_pk_bf16_f32 v48, v48, v48
v_lshlrev_b32 v48, 16, v48
v_add_f32 v48, v48, v14
v_cvt_pk_bf16_f32 v48, v48, v48
buffer_store_short v48, v30, s[64:67], s10 offen
s_mov_b64 exec, 1
s_cmp_lg_u32 s2, 0
s_cbranch_scc1 L_hend
v_mov_b32 v10, s42
buffer_store_dword v10, v9, s[52:55], 0 offen sc1
L_hend:
""")
    stamp(7)
    a("s_waitcnt vmcnt(0)")
    if dbgt == 2:
        a(f"""
s_or_b32 s59, s2, s3
s_cmp_lg_u32 s59, 0
s_cbranch_scc1 L_dbgt
s_memrealtime s[88:89]
s_waitcnt lgkmcnt(0)
s_sub_u32 s59, s88, s84
s_mul_i32 s59, s59, 10
s_min_u32 s59, s59, 100000
L_dbgs:
s_memrealtime s[90:91]
s_waitcnt lgkmcnt(0)
s_sub_u32 s58, s90, s88
s_cmp_lt_u32 s58, s59
s_cbranch_scc1 L_dbgs
L_dbgt:
""")
    elif dbgt:
        a(f"""
s_memrealtime s[88:89]
s_memtime s[90:91]
s_mov_b32 s44, s38
s_mov_b32 s45, s39
s_mov_b32 s46, 256
s_mov_b32 s47, 0x20000
s_mov_b64 exec, 1
s_waitcnt lgkmcnt(0)
s_not_b32 s59, s84
v_mov_b32 v12, s88
v_mov_b32 v13, s59
buffer_atomic_umax v12, v9, s[44:47], 0 offen sc1
buffer_atomic_umax v13, v9, s[44:47], 0 offen offset:4 sc1
s_cmp_lg_u32 s3, 0
s_cbranch_scc1 L_dbgt
s_and_b32 s59, s2, 0x7f
s_cmp_lg_u32 s59, 0
s_cbranch_scc1 L_dbgt
s_lshr_b32 s59, s2, 3
v_mov_b32 v12, s84
v_mov_b32 v13, s88
v_mov_b32 v14, s86
v_mov_b32 v15, s90
buffer_store_dwordx4 v[12:15], v9, s[44:47], s59 offen offset:16 sc1
L_dbgt:
s_waitcnt vmcnt(0)
""")
    if prof:
        a(f"""
s_mov_b64 exec, 1
s_sleep 127
s_waitcnt lgkmcnt(0)
s_lshl_b32 s59, s2, 3
s_add_u32 s59, s59, s3
s_add_u32 s59, s59, 4
s_lshl_b32 s59, s59, 6
s_add_u32 s59, s59, {STAMP}
""")
        for i in range(0, 8):
            a(f"v_mov_b32 v12, s{84+2*i}\nv_mov_b32 v13, s{85+2*i}\nbuffer_store_dwordx2 v[12:13], v9, s[52:55], s59 offen offset:{8*i}\ns_waitcnt vmcnt(0)")
    a("""L_end:
s_endpgm
L_h1_far:
buffer_store_dwordx2 v[52:53], v25, s[52:55], s6 offen offset:128 sc1
""")
    h1poll("x", "sc1", 1)
    a("s_branch L_h1_got")
    if fc:
        a("L_cb:\ns_waitcnt lgkmcnt(0)\ns_mov_b32 s71, 0")
        for i in range(8): a(f"s_cmp_lg_u32 s{4+i}, s73\ns_addc_u32 s71, s71, 0")
        if not fc.get("wg"):
            a(f"""
s_cmp_lt_u32 s71, {fc['th1']}
s_cselect_b32 s62, 2, 0
s_cmp_ge_u32 s71, {fc['th2']}
s_cselect_b32 s62, 1, s62
""")
            if prof: a("s_lshl_b64 s[82:83], s[82:83], 2\ns_or_b32 s82, s82, s62")
            a("s_setpc_b64 s[80:81]")
        else:
            bias = 16 * fc["CW"]
            a(f"""
s_mul_i32 s74, s71, {fc.get('kx', 0)}
{"s_lshl_b64 s[82:83], s[82:83], 4" if prof and fc.get("tm") else ""}
{"s_or_b32 s82, s82, s71" if prof and fc.get("tm") else ""}
s_branch L_cc
L_cw:
v_add_u32_dpp v85, v85, v85 row_ror:4 row_mask:0xf bank_mask:0xf
v_add_u32_dpp v85, v85, v85 row_ror:2 row_mask:0xf bank_mask:0xf
v_add_u32_dpp v85, v85, v85 row_ror:1 row_mask:0xf bank_mask:0xf
v_readfirstlane_b32 s69, v85
s_sub_u32 s75, s68, s69
s_sub_u32 s75, s75, {bias}
L_cc:
s_add_u32 s68, s75, s74
s_cmp_lt_i32 s68, {-fc['b']}
s_cselect_b32 s62, 2, 0
s_cmp_gt_i32 s68, {fc['a']}
s_cselect_b32 s62, 1, s62
""")
            if prof and not fc.get("tm"): a("s_lshl_b64 s[82:83], s[82:83], 2\ns_or_b32 s82, s82, s62")
            a("s_setpc_b64 s[80:81]")
    a("L_mlp:")
    for t in range(7): a(f"v_fma_f32 v{U+t}, s4, v{W1+t}, v{B1+t}")
    for t in range(7): a(f"v_mul_f32 v{AA+t}, v{U+t}, v{U+t}")
    for t in range(7): a(f"v_fmaak_f32 v{AA+t}, v{AA+t}, v{C1}, {f32(c0)}")
    for t in range(7): a(f"v_mul_f32 v{AA+t}, v{AA+t}, v{U+t}")
    for t in range(7): a(f"v_exp_f32 v{EE+t}, v{AA+t}")
    for t in range(7): a(f"v_mul_f32 v{U+t}, v{U+t}, v{W2+t}")
    for t in range(7): a(f"v_add_f32 v{EE+t}, 1.0, v{EE+t}")
    for t in range(7): a(f"v_rcp_f32 v{EE+t}, v{EE+t}")
    a(f"v_mul_f32 v{ACC2}, v{U}, v{EE}")
    a(f"v_mul_f32 v{AA}, v{U+1}, v{EE+1}")
    for t in range(2, 7): a(f"v_fmac_f32 v{ACC2 if t % 2 == 0 else AA}, v{U+t}, v{EE+t}")
    a(f"v_add_f32 v{ACC2}, v{ACC2}, v{AA}")
    for n in (8, 4, 2, 1): a(f"v_add_f32_dpp v{ACC2}, v{ACC2}, v{ACC2} row_ror:{n} row_mask:0xf bank_mask:0xf")
    swaps_add(ACC2, AA)
    a(f"""
s_mov_b64 exec, 1
ds_write_b32 v{YA}, v{ACC2} offset:{YP}
s_mov_b64 exec, -1
v_add_u32 v{YA}, 4, v{YA}
s_setpc_b64 s[80:81]
""")
    body = a.render()
    txt = HDR + f"""; @launch grid=(256,1,1) block=(512,1,1) lds={LDSZ}
.amdgcn_target "amdgcn-amd-amdhsa--gfx950"
.text
.globl {KN}_kernel
.p2align 8
.type {KN}_kernel,@function
{KN}_kernel:
""" + body + f""".section .rodata,"a"
.p2align 6
.amdhsa_kernel {KN}_kernel
  .amdhsa_next_free_vgpr 256
  .amdhsa_next_free_sgpr 102
  .amdhsa_accum_offset 256
  .amdhsa_group_segment_fixed_size 0
  .amdhsa_kernarg_size 104
  .amdhsa_user_sgpr_count 2
  .amdhsa_user_sgpr_kernarg_segment_ptr 1
  .amdhsa_system_sgpr_workgroup_id_x 1
.end_amdhsa_kernel
"""
    open(fname, "w").write(txt)
if __name__ == "__main__":
    import glob, os
    for f in glob.glob("kp_*.s"): os.remove(f)
    gen("k1.s", mlp1=4, slp=0)
    kw = dict(prof=True, tailprof=True, mlp1=4, slp=0, rq=1, wolate=[5, 7, 9, 11])
    gen("kp_00.s", **kw)
    F = dict(wg=1, x=1, G=2, kx=24, a=64, b=-16, W=(4,6,12), d=6, C=3, CW=2)
    gen("kp_01.s", fc=F, **kw)
    gen("kp_02_nowork.s", fc=F, dbg="nok nosm nov", **kw)
    gen("kp_03_nosm.s", fc=F, dbg="nosm", **kw)
    gen("kp_04_nowq.s", fc=F, dbg="nowq", **kw)
    gen("kp_05_nowork_nowq.s", fc=F, dbg="nok nosm nov nowq", **kw)
    gen("kp_06_nowork_nowq_nomlp.s", fc=F, dbg="nok nosm nov nowq nomlp", **kw)
    gen("kp_07_nofc_nowork.s", dbg="nok nosm nov", **kw)
    gen("kp_08_nofc_nowork_nowq.s", dbg="nok nosm nov nowq", **kw)
```

```python
import sys, struct, math
from asmlib import Asm
KN = "recurrent_scan__gqa_block_cached__mixer_token_mlp__decode"
def f32(x): return "0x%08x" % struct.unpack("<I", struct.pack("<f", x))[0]
LOG2E = 1.4426950408889634
FLG = 0; QL = 64; ST = QL + 1024; YP = ST + 128; OP = YP + 256; XN = OP + 4 * 2304; XRS = 1040; WQL = XN + 8 * XRS; KL = WQL + 32768
QOFF = 64 << 10; H1OFF = QOFF + (1 << 20); H1S = 4224; H2OFF = H1OFF + (640 << 10); BD = 4 << 20; PGOFF = 8 << 10; STAMP = 128 << 20
HDR = open("cdna_kernels/" + KN + ".s.ref").read().split("; Override launch")[0]

def gen(fname, WIN=6, G=2, RING=40, prof=False, wo_thr=4, ntw="", woflags="", spin=400000, dbg="", WPS=1, dry=False, tailprof=False, NLT=6, slp=2, wqdma=True, sprio=2, bgprio=0, mlp1=8, local=True, fb=31, deferB=True, pretouch=False, pat=None, pat2=None, rot=None, cmap=0, light=False, lslp=0, h1fl='nt', h2sync=True, fc=None, est=None, rq=0, ro=0, sE=True, wolate=None, n0=64, pipe1=1, pipe2=1, stag1=3, stag2=3, h2late=True, h2ack=True, h2pre=False, h2full=False, slp2=0, dbgt=False, dirty=0, clean=False):
    a = Asm()
    LDSZ = KL + 4 * NLT * 4096
    NLL = 4 * NLT
    NST = 8
    def stamp(i):
        if prof: a(f"s_memrealtime s[{84+2*i}:{85+2*i}]")
    a(f"""
s_cmp_ge_u32 s2, 256
s_cbranch_scc1 L_end
""")
    stamp(0)
    if dbgt: a("s_memrealtime s[84:85]\ns_memtime s[86:87]")
    a(f"""
s_load_dwordx16 s[16:31], s[0:1], 0
s_load_dwordx8 s[32:39], s[0:1], 64
s_load_dwordx2 s[40:41], s[0:1], 96
v_and_b32 v1, 63, v0
v_lshrrev_b32 v2, 6, v0
v_and_b32 v3, 15, v0
v_lshlrev_b32 v3, 2, v3
v_mov_b32 v4, 0
v_readfirstlane_b32 s3, v2
ds_write_b32 v3, v4
s_waitcnt lgkmcnt(0)
s_cmp_ge_u32 s3, 4
s_cbranch_scc1 L_helper
""")
    a(f"""
s_setprio {sprio}
s_mov_b32 s44, s18
s_mov_b32 s45, s19
s_mov_b32 s46, 0x4000000
s_mov_b32 s47, 0x20000
s_mov_b32 s48, s20
s_mov_b32 s49, s21
s_mov_b32 s50, 0x4000000
s_mov_b32 s51, 0x20000
s_and_b32 s52, s2, 7
s_lshl_b32 s52, s52, 2
s_bfe_u32 s53, s2, 0x20003
s_add_u32 s52, s52, s53
s_andn2_b32 s53, s2, 31
s_add_u32 s52, s52, s53
s_lshl_b32 s52, s52, 18
s_lshl_b32 s53, s3, 12
s_add_u32 s52, s52, s53
s_mul_i32 s60, s3, {NLT*4096}
s_add_u32 s60, s60, {KL}
v_lshrrev_b32 v5, 4, v1
v_bfe_u32 v6, v1, 2, 2
v_and_b32 v7, 3, v1
v_lshlrev_b32 v2, 8, v6
v_lshl_add_u32 v2, v5, 6, v2
v_lshl_add_u32 v2, v7, 4, v2
v_lshlrev_b32 v3, 4, v1
""")
    if fc:
        a(f"""
s_load_dword s73, s[40:41], 0
s_mov_b32 s76, s40
s_mov_b32 s77, s41
s_mov_b32 s78, 0x10000000
s_mov_b32 s79, 0x20000
s_lshr_b32 s64, s2, 3
s_cmp_eq_u32 s3, 0
s_cselect_b32 s64, s64, 64
s_and_b32 s65, s2, 7
s_lshl_b32 s65, s65, 2
v_mov_b32 v83, s65
s_mov_b32 s62, {fc.get('l0', 0)}
s_mov_b64 s[82:83], 0
s_mov_b32 s12, s38
s_mov_b32 s13, s39
s_mov_b32 s14, 256
s_mov_b32 s15, 0x20000
s_getreg_b32 s66, hwreg(HW_REG_XCC_ID, 0, 3)
s_lshl_b32 s66, s66, 5
s_lshr_b32 s67, s2, 3
s_add_u32 s67, s67, s66
v_mov_b32 v88, s67
v_and_b32 v87, 7, v1
v_lshl_add_u32 v87, v87, 2, s66
s_mov_b32 s74, 0
s_mov_b32 s75, 0
s_cmp_eq_u32 s3, 0
s_cselect_b64 vcc, 1, 0
""")
    if cmap == 1: a("s_lshl_b32 s52, s2, 18\ns_lshl_b32 s53, s3, 12\ns_add_u32 s52, s52, s53")
    if rot is not None: a(rot + "\ns_and_b32 s61, s61, 15\ns_lshl_b32 s61, s61, 14")
    RB = 256 - RING * 4
    def rreg(n): return RB + ((n - NLL) % RING) * 4
    NL = 128
    st = {"tile": None}
    def issue(n):
        isv = n >= 64; t = (n & 63) >> 2; q = n & 3
        if st["tile"] != (isv, t):
            st["tile"] = (isv, t)
            if rot is None: a(f"s_add_u32 s53, s52, {t*16384}")
            else: a(f"s_add_u32 s53, s61, {t*16384}\ns_and_b32 s53, s53, 0x3ffff\ns_add_u32 s53, s53, s52")
            if n < NLL: a(f"s_add_u32 m0, s60, {t*4096}\ns_nop 0")
        if n < NLL:
            a(f"buffer_load_dwordx4 v2, s[44:47], s53 offen offset:{q*1024} nt lds"); return
        r = rreg(n)
        a(f"buffer_load_dwordx4 v[{r}:{r+3}], {'v3' if isv else 'v2'}, {'s[48:51]' if isv else 's[44:47]'}, s53 offen offset:{q*1024} nt")
    QB = 8; Y = 12; ACC = 28; DT = 28; TT = 44; PT = 60; PA = 76; M = 80
    def setup_consts():
        a(f"""
s_mov_b32 s54, 0x05040100
s_mov_b32 s55, 0x07060302
s_mov_b32 s56, {f32(128**-0.5)}
s_mov_b32 s57, {f32(LOG2E)}
v_lshlrev_b32 v4, 8, v7
v_lshl_add_u32 v4, v5, 6, v4
v_lshl_add_u32 v4, v6, 4, v4
v_mov_b32 v84, 0
v_add_u32 v86, s60, v3
""")
    def wait_q():
        stamp(1)
        if "noq" in dbg:
            a(f"ds_read_b128 v[{QB}:{QB+3}], v4 offset:{QL}\ns_waitcnt lgkmcnt(0)"); stamp(2); return
        a(f"""
s_mov_b32 s58, {spin*8}
L_sq:
ds_read_b32 v85, v84 offset:{FLG+4}
s_waitcnt lgkmcnt(0)
v_readfirstlane_b32 s59, v85
s_sub_u32 s58, s58, 1
s_cbranch_scc1 L_sq_done
s_cmp_ge_u32 s59, 4
s_cbranch_scc1 L_sq_done
s_sleep 1
s_branch L_sq
L_sq_done:
ds_read_b128 v[{QB}:{QB+3}], v4 offset:{QL}
s_waitcnt lgkmcnt(0)
""")
        stamp(2)
        if prof: a("s_waitcnt lgkmcnt(0)")
    def ktile(t):
        if t < NLT:
            for q in range(4): a(f"ds_read_b128 v[{PT+4*q}:{PT+4*q+3}], v86 offset:{t*4096+q*1024}")
        for q in range(4):
            r = rreg(4 * t + q) if t >= NLT else PT + 4 * q
            if t < NLT: a(f"s_waitcnt lgkmcnt({3-q})")
            a(f"v_mfma_f32_16x16x32_bf16 v[{DT+4*q}:{DT+4*q+3}], v[{r}:{r+3}], v[{QB}:{QB+3}], 0")
        for c in range(4):
            for r in range(4):
                n = 4 * ((c - r) % 4)
                ctl = f"row_ror:{n}" if n else "quad_perm:[0,1,2,3]"
                a(f"v_mov_b32_dpp v{TT+r}, v{DT+4*c+r} {ctl} row_mask:0xf bank_mask:{hex(1<<c)}")
        y = Y + t
        a(f"""
v_add_f32 v{TT}, v{TT}, v{TT+1}
v_add_f32 v{TT+2}, v{TT+2}, v{TT+3}
v_add_f32 v{y}, v{TT}, v{TT+2}
v_cvt_pk_bf16_f32 v{y}, v{y}, v{y}
v_lshlrev_b32 v{y}, 16, v{y}
v_mul_f32 v{y}, s56, v{y}
v_cvt_pk_bf16_f32 v{y}, v{y}, v{y}
v_lshlrev_b32 v{y}, 16, v{y}
""")
    def xlane(op, r, t):
        a(f"""
{op}_dpp v{r}, v{r}, v{r} row_ror:4 row_mask:0xf bank_mask:0xf
""") if op != "v_add_f32" else a(f"""
v_add_f32_dpp v{r}, v{r}, v{r} row_ror:4 row_mask:0xf bank_mask:0xf
""")
        a(f"""
{op}_dpp v{r}, v{r}, v{r} row_ror:8 row_mask:0xf bank_mask:0xf
v_mov_b32 v{t}, v{r}
v_permlane16_swap_b32 v{r}, v{t}
{op} v{r}, v{r}, v{t}
v_mov_b32 v{t}, v{r}
v_permlane32_swap_b32 v{r}, v{t}
{op} v{r}, v{r}, v{t}
""")
    def softmax():
        m = M; l = M + 1; t = M + 2
        a(f"v_max3_f32 v{m}, v{Y}, v{Y+1}, v{Y+2}")
        for i in range(3, 15, 2): a(f"v_max3_f32 v{m}, v{m}, v{Y+i}, v{Y+i+1}")
        a(f"v_max_f32 v{m}, v{m}, v{Y+15}")
        xlane("v_max_f32", m, t)
        a(f"v_mul_f32 v{m}, s57, v{m}")
        for i in range(16): a(f"v_fma_f32 v{Y+i}, v{Y+i}, s57, -v{m}")
        for i in range(16): a(f"v_exp_f32 v{Y+i}, v{Y+i}")
        a(f"v_add_f32 v{l}, v{Y}, v{Y+1}")
        a(f"v_add_f32 v{t}, v{Y+2}, v{Y+3}")
        for i in range(4, 16, 2):
            a(f"v_add_f32 v{l}, v{l}, v{Y+i}")
            a(f"v_add_f32 v{t}, v{t}, v{Y+i+1}")
        a(f"v_add_f32 v{l}, v{l}, v{t}")
        for v in range(8): a(f"v_cvt_pk_bf16_f32 v{Y+v}, v{Y+2*v}, v{Y+2*v+1}")
        xlane("v_add_f32", l, t)
        a(f"""
s_lshl_b32 s59, s3, 5
v_lshl_add_u32 v{t}, v1, 3, s59
s_mov_b64 exec, 15
ds_write_b64 v{t}, v[{m}:{m+1}] offset:{ST}
s_mov_b64 exec, 1
v_mov_b32 v{t}, 1
ds_add_u32 v84, v{t} offset:{FLG+16}
s_mov_b64 exec, -1
""")
    def vchunk(v):
        a(f"v_mov_b32 v{PA}, v{Y+v}")
        for p in (1, 2, 3):
            a(f"v_mov_b32_dpp v{PA+p}, v{Y+v} row_ror:{4*((0-p)%4)} row_mask:0xf bank_mask:0xf")
        for half in range(2):
            for jj in range(4 * half, 4 * half + 4):
                o = PT + 4 * (jj & 3)
                for p in range(4):
                    lo = rreg(64 + 8 * v + p) + (jj >> 1); hi = rreg(64 + 8 * v + 4 + p) + (jj >> 1)
                    a(f"v_perm_b32 v{o+p}, v{hi}, v{lo}, {'s55' if jj & 1 else 's54'}")
            for jj in range(4 * half, 4 * half + 4):
                o = PT + 4 * (jj & 3); d = ACC + 4 * jj
                c = "0" if v == 0 else f"v[{d}:{d+3}]"
                a(f"v_mfma_f32_16x16x32_bf16 v[{d}:{d+3}], v[{PA}:{PA+3}], v[{o}:{o+3}], {c}")
    work = [("K", t, 4 * t + 3) for t in list(range(NLT, 16)) + list(range(NLT))] + [("S", 0, 63)] + [("V", v, 64 + 8 * v + 7) for v in range(8)]
    consumed = NLL - 1
    wi = 0
    def do_work():
        nonlocal wi, consumed
        k, i, last = work[wi]
        if k == "K":
            if wi == 0: wait_q()
            if "nok" not in dbg: ktile(i)
            consumed = max(consumed, last)
        elif k == "S":
            if "nosm" in dbg: a(f"s_mov_b64 exec, 1\nv_mov_b32 v82, 1\nds_add_u32 v84, v82 offset:{FLG+16}\ns_mov_b64 exec, -1")
            else: softmax()
            stamp(3)
        else:
            if "nov" not in dbg: vchunk(i)
            consumed = last
        wi += 1
    issued = 0
    ops = []
    def iss(n): issue(n); ops.append(("L", n))
    def vm_for(X):
        li = [i for i, o in enumerate(ops) if o[0] == "L"]
        if len(li) <= X: return None
        p = li[len(li) - X - 1]
        return len(ops) - 1 - p, p
    if pat is None: pat = [(WIN, G)]
    if fc: pat = [(fc["W"][1], fc["G"])]
    for n in range(pat[0][0]): iss(n)
    issued = pat[0][0]
    a("s_barrier")
    setup_consts()
    arrived = -1
    step = 0
    done_op = -1; nw = 0; ph = 0; nctl = 0; evalq = []; PAIRS = [88, 92, 94]; tagdone = False
    while issued < NL:
        pp = pat2 if (pat2 is not None and issued >= n0) else pat
        WIN, G = pp[step % len(pp)]; step += 1
        if not fc:
            if issued - (WIN - G) - 1 > arrived: a(f"s_waitcnt vmcnt({WIN-G})")
            arrived = max(arrived, issued - (WIN - G) - 1)
        else:
            Wl, Wm, Wh = fc["W"]
            r = vm_for(Wh - G)
            if r: a(f"s_waitcnt vmcnt({r[0]})"); done_op = max(done_op, r[1]); arrived = max(arrived, issued - (Wh - G) - 1)
            a(f"""
s_cmp_eq_u32 s62, 2 ;nc
s_cbranch_scc1 L_fs{step} ;nc
s_waitcnt vmcnt({vm_for(Wm - G)[0]}) ;nc
s_cmp_eq_u32 s62, 0 ;nc
s_cbranch_scc1 L_fs{step} ;nc
s_waitcnt vmcnt({vm_for(Wl - G)[0]}) ;nc
L_fs{step}:
""")
        if est:
            for i_, e_ in enumerate(est):
                if e_ is not None and arrived >= e_: stamp(5 + i_); est[i_] = None
        g = min(G, NL - issued)
        while issued + g - 1 - RING > consumed:
            if work[wi][2] > arrived:
                assert not fc
                a(f"s_waitcnt vmcnt({issued - 1 - work[wi][2]})"); arrived = work[wi][2]
            do_work()
        for n in range(issued, issued + g): iss(n)
        if fc:
            d = fc["d"]; k0 = fc.get("k0", 2); last = (NL - fc.get("stop", 8) - fc["W"][1]) // G
            if step == k0:
                a("s_waitcnt lgkmcnt(0)\ns_add_u32 s73, s73, 1\nv_mov_b32 v90, s73")
            if fc.get("wg"):
                for e in [e for e in evalq if e[0] <= done_op]:
                    evalq.remove(e)
                    a(f"v_sad_u8 v85, v{e[1]}, 0, 0\ns_movk_i32 s68, {32 * e[2]}\ns_call_b64 s[80:81], L_cw")
                if step >= fc.get("kw", 4) and step % fc["CW"] == 0 and step <= last:
                    r_ = [91, 92, 93, 94, 95, 86 if NLT == 0 else 5][nw % 6]; nw += 1; assert len(evalq) < 6
                    a(f"""
v_mov_b32 v89, {step}
s_mov_b64 exec, vcc
buffer_store_byte v89, v88, s[12:15], 0 offen
s_mov_b64 exec, -1
buffer_load_dword v{r_}, v87, s[12:15], 0 offen nt
""")
                    ops.append(("S", 0)); ops.append(("C", 0)); evalq.append((len(ops) - 1, r_, step))
            if k0 <= step <= last - d and fc.get("x", 1):
                a(f"""
s_movk_i32 s65, {PGOFF + step * 256}
s_cmp_eq_u32 s64, {step % 32}
s_cselect_b64 exec, 1, 0
buffer_store_dword v90, v83, s[76:79], s65 offen sc1
s_mov_b64 exec, -1
""")
                ops.append(("S", 0))
            if step >= k0 + d and (step - k0 - d) % fc["C"] == 0:
                if nctl > 0: a("s_call_b64 s[80:81], L_cb"); nctl = 0
                if step <= last and fc.get("x", 1):
                    a(f"s_load_dwordx8 s[4:11], s[40:41], {PGOFF + (step - d) * 256}"); nctl = 1
        issued += g
        for _ in range(WPS):
            if wi < len(work) and work[wi][2] <= arrived and (wi > 0 or issued + G - 1 - RING > consumed):
                do_work()
    while wi < len(work):
        need_ = work[wi][2]
        if need_ > arrived:
            r = vm_for(NL - 1 - need_) if fc else (NL - 1 - need_,)
            a(f"s_waitcnt vmcnt({r[0]})"); arrived = need_
        do_work()
    stamp(4)
    a(f"""
s_mul_i32 s59, s3, 2304
v_mul_u32_u24 v4, 144, v1
v_add_u32 v4, s59, v4
s_mov_b64 exec, 0xffff
""")
    for jj in range(8):
        a(f"ds_write_b128 v4, v[{ACC+4*jj}:{ACC+4*jj+3}] offset:{OP+16*jj}")
    a("""
s_mov_b64 exec, -1
s_waitcnt lgkmcnt(0)
s_barrier
""")
    if dirty:
        a(f"""
s_mov_b32 s44, s40
s_mov_b32 s45, s41
s_mov_b32 s46, 0x10000000
s_mov_b32 s47, 0x20000
s_lshl_b32 s59, s2, 2
s_add_u32 s59, s59, s3
s_mul_i32 s59, s59, {dirty*1024}
s_add_u32 s59, s59, {64 << 20}
s_sleep 64
""")
        for i in range(dirty): a(f"buffer_store_dwordx4 v[28:31], v3, s[44:47], s59 offen\ns_add_u32 s59, s59, 1024")
    if prof:
        a(f"""
s_mov_b32 s44, s40
s_mov_b32 s45, s41
s_mov_b32 s46, 0x10000000
s_mov_b32 s47, 0x20000
s_sleep 127
s_sleep 127
s_sleep 127
s_waitcnt lgkmcnt(0)
s_lshl_b32 s59, s2, 3
s_add_u32 s59, s59, s3
s_lshl_b32 s59, s59, 6
s_add_u32 s59, s59, {STAMP}
v_mov_b32 v4, 0
s_mov_b64 exec, 1
""")
        for i in range(8):
            sr = 82 if (i == 5 and fc) else 84 + 2 * (i if est else min(i, 4))
            a(f"v_mov_b32 v8, s{sr}\nv_mov_b32 v9, s{sr+1}\nbuffer_store_dwordx2 v[8:9], v4, s[44:47], s59 offen offset:{8*i}\ns_waitcnt vmcnt(0)")
    a("s_endpgm")
    X = 32
    S1 = 12; S2 = 13; T0 = 14; T1 = 15; NM = 16; RS = 18
    W1 = 40; B1 = 47; W2 = 54; HX = 62; U = 66; AA = 73; EE = 80; ACC2 = 87; C1 = 88; YA = 89
    WB = 192
    def srd(base, lo, size): a(f"s_mov_b32 s{base}, s{lo}\ns_mov_b32 s{base+1}, s{lo+1}\ns_mov_b32 s{base+2}, {size}\ns_mov_b32 s{base+3}, 0x20000")
    def bfround(r): a(f"v_cvt_pk_bf16_f32 v{r}, v{r}, v{r}\nv_lshlrev_b32 v{r}, 16, v{r}")
    def stats_finish():
        a(f"""
v_mul_f32 v{S1}, {f32(1/512)}, v{S1}
v_mul_f32 v{S2}, {f32(1/512)}, v{S2}
v_fma_f32 v{S2}, -v{S1}, v{S1}, v{S2}
v_max_f32 v{S2}, 0, v{S2}
""")
        bfround(S1); bfround(S2)
        a(f"v_add_f32 v{S2}, {f32(1e-5)}, v{S2}")
        bfround(S2)
        a(f"v_sqrt_f32 v{S2}, v{S2}")
        bfround(S2)
        a(f"""
v_rcp_f32 v{RS}, v{S2}
v_sub_f32 v{NM}, 0, v{S1}
v_sub_f32 v{NM+1}, 0, v{S1}
v_mov_b32 v{RS+1}, v{RS}
""")
    def swaps_add(r, t):
        a(f"""
v_mov_b32 v{t}, v{r}
v_permlane16_swap_b32 v{r}, v{t}
v_add_f32 v{r}, v{r}, v{t}
v_mov_b32 v{t}, v{r}
v_permlane32_swap_b32 v{r}, v{t}
v_add_f32 v{r}, v{r}, v{t}
""")
    def normalize(src, dst, n, tmp):
        for i0 in range(0, n, 4):
            idx = list(range(i0, min(n, i0 + 4)))
            for i in idx:
                t = tmp + 2 * (i - i0)
                a(f"v_lshlrev_b32 v{t}, 16, v{src+i}\nv_and_b32 v{t+1}, 0xffff0000, v{src+i}")
            for i in idx:
                t = tmp + 2 * (i - i0)
                a(f"v_pk_add_f32 v[{t}:{t+1}], v[{t}:{t+1}], v[{NM}:{NM+1}]")
            for i in idx:
                t = tmp + 2 * (i - i0)
                a(f"v_cvt_pk_bf16_f32 v{t}, v{t}, v{t+1}")
            for i in idx:
                t = tmp + 2 * (i - i0)
                a(f"v_and_b32 v{t+1}, 0xffff0000, v{t}\nv_lshlrev_b32 v{t}, 16, v{t}")
            for i in idx:
                t = tmp + 2 * (i - i0)
                a(f"v_pk_mul_f32 v[{t}:{t+1}], v[{t}:{t+1}], v[{RS}:{RS+1}]")
            for i in idx:
                t = tmp + 2 * (i - i0)
                a(f"v_cvt_pk_bf16_f32 v{dst+i}, v{t}, v{t+1}")
    def lds_wait(lbl, off, cnt, sl=0):
        a(f"""
s_mov_b32 s58, {spin*8}
{lbl}:
ds_read_b32 v4, v9 offset:{off}
s_waitcnt lgkmcnt(0)
v_readfirstlane_b32 s59, v4
s_sub_u32 s58, s58, 1
s_cbranch_scc1 {lbl}_done
s_cmp_lt_u32 s59, {cnt}
{f"s_sleep {sl}" if sl else ""}
s_cbranch_scc1 {lbl}
{lbl}_done:
""")
    def lds_signal(off):
        a(f"""
s_mov_b64 exec, 1
ds_add_u32 v9, v11 offset:{off}
s_mov_b64 exec, -1
""")
    def orred(ts):
        ts = list(ts)
        while len(ts) > 1:
            if len(ts) >= 3:
                a(f"v_or3_b32 v{ts[0]}, v{ts[0]}, v{ts[1]}, v{ts[2]}"); ts = ts[3:] + [ts[0]]
            else:
                a(f"v_or_b32 v{ts[0]}, v{ts[0]}, v{ts[1]}"); ts = [ts[0]]
        return ts[0]
    def chk8(tags, tmp):
        for i, t in enumerate(tags): a(f"v_xor_b32 v{tmp+i}, s12, v{t}")
        return orred([tmp + i for i in range(len(tags))])
    def chk16(bases, tmp, tagreg):
        out = []
        for i, b in enumerate(bases):
            a(f"v_perm_b32 v{tmp+2*i}, v{b+1}, v{b}, s20\nv_perm_b32 v{tmp+2*i+1}, v{b+3}, v{b+2}, s21")
        for i, b in enumerate(bases):
            a(f"v_or_b32 v{tmp+2*i}, v{tmp+2*i}, v{tmp+2*i+1}")
        for i, b in enumerate(bases):
            a(f"v_xor_b32 v{tmp+2*i}, s{tagreg}, v{tmp+2*i}"); out.append(tmp + 2 * i)
        return orred(out)
    def pack16(dst, srcs, tagv):
        for i, r in enumerate(srcs): a(f"v_perm_b32 v{dst+i}, v{r}, v{tagv}, s{16+i}")
    def poll(lbl, loads, chk, fbr=None, post=None, st=None, pipe=1, stag=0, sl=None):
        if sl is None: sl = slp
        if fbr is not None: a(f"s_mov_b32 s82, s{fbr}\ns_add_u32 s83, s{fbr}, {BD}")
        a(f"s_mov_b32 s58, {spin}")
        for _ in range(pipe - 1):
            for l in loads: a(l)
            if stag: a(f"s_sleep {stag}")
        a(f"{lbl}:")
        if st is not None and tailprof: stamp(st)
        for l in loads: a(l)
        a(f"s_waitcnt vmcnt({len(loads) * (pipe - 1)})")
        r = chk()
        if post: r = post(r)
        a(f"""
v_cmp_ne_u32 vcc, 0, v{r}
s_sub_u32 s58, s58, 1
s_cbranch_scc1 {lbl}_done
s_and_b64 exec, exec, vcc
s_cbranch_execz {lbl}_done
""")
        if fbr is not None: a(f"s_and_b32 s59, s58, {fb}\ns_cselect_b32 s{fbr}, s82, s83")
        if sl: a(f"s_sleep {sl}")
        a(f"""
s_branch {lbl}
{lbl}_done:
s_mov_b64 exec, -1
""")
    a("L_helper:\ns_setprio 3\ns_sub_u32 s3, s3, 4")
    srd(44, 16, 8192); srd(48, 22, 0x400000); srd(52, 40, 0x10000000); srd(56, 24, 0x400000)
    srd(60, 28, 3584); srd(64, 30, 3584); srd(68, 32, 3584)
    a(f"""
v_lshrrev_b32 v5, 4, v1
v_and_b32 v6, 7, v1
v_and_b32 v8, 15, v1
v_lshrrev_b32 v7, 5, v1
v_and_b32 v4, 31, v1
v_lshlrev_b32 v4, 4, v4
v_lshl_add_u32 v2, v7, 10, v4
s_lshl_b32 s6, s3, 11
v_mov_b32 v9, 0
v_mov_b32 v11, 1
v_lshrrev_b32 v20, 3, v1
v_lshlrev_b32 v21, 13, v20
v_lshl_add_u32 v21, v6, 4, v21
v_lshlrev_b32 v22, 10, v20
v_lshl_add_u32 v22, v6, 4, v22
s_and_b32 s15, s2, 7
s_lshr_b32 s14, s2, 3
s_add_u32 s4, s14, {rq}
s_and_b32 s4, s4, 7
s_add_u32 s14, s14, {ro}
s_and_b32 s14, s14, 7
s_lshl_b32 s8, s15, 3
s_add_u32 s8, s8, s4
s_lshr_b32 s9, s2, 6
s_lshl_b32 s4, s9, 2
s_add_u32 s4, s4, s3
s_lshl_b32 s4, s4, 18
s_lshl_b32 s5, s8, 7
s_add_u32 s72, s4, s5
s_lshl_b32 s13, s15, 2
s_add_u32 s13, s13, s9
s_lshl_b32 s4, s13, 2
s_add_u32 s4, s4, s3
s_lshl_b32 s4, s4, 15
s_lshl_b32 s5, s14, 7
s_add_u32 s73, s4, s5
s_lshl_b32 s4, s3, 12
s_add_u32 s74, s4, {WQL}
s_mul_i32 s75, s3, 896
v_lshlrev_b32 v23, 1, v1
s_barrier
""")
    a(f"""
buffer_load_dwordx4 v[{X}:{X+3}], v2, s[44:47], s6 offen
buffer_load_dwordx4 v[{X+4}:{X+7}], v2, s[44:47], s6 offen offset:512
{"s_load_dword s42, s[40:41], 0" if sE else "buffer_load_dword v10, v9, s[52:55], 0 offen sc1"}
""")
    if "nowq" in dbg: a("s_mov_b32 s50, 0\ns_mov_b32 s58, 0")
    for t in range(4):
        a(f"s_add_u32 m0, s74, {t*1024}\ns_nop 0\nbuffer_load_dwordx4 v21, s[48:51], s72 offen nt lds")
        if t < 3: a(f"s_add_u32 s72, s72, {8*8192}")
    def wodma(t, vr, so, sl):
        a(f"s_add_u32 m0, s{sl}, {16384+t*1024}\ns_nop 0\nbuffer_load_dwordx4 v{vr}, {'s[56:59]' if wolate is None else 's[68:71]'}, s{so} offen nt lds")
        if t < 3: a(f"s_add_u32 s{so}, s{so}, {8*1024}")
    if wolate is None:
        for t in range(4): wodma(t, 22, 73, 74)
    else:
        a("v_mov_b32 v90, v22\ns_mov_b32 s22, s73\ns_mov_b32 s23, s74")
    NW = 0 if wolate is None else 4
    for t in range(7):
        a(f"buffer_load_ushort v{W1+t}, v23, s[60:63], s75 offen offset:{128*t}")
        a(f"buffer_load_ushort v{B1+t}, v23, s[64:67], s75 offen offset:{128*t}")
        a(f"buffer_load_ushort v{W2+t}, v23, s[68:71], s75 offen offset:{128*t}")
    srd(60, 34, 2); srd(64, 36, 8192); srd(68, 24, 0 if 'nowq' in dbg else 0x400000)
    a(f"""
v_and_b32 v30, 3, v1
v_lshlrev_b32 v30, 1, v30
v_lshl_add_u32 v30, v5, 5, v30
s_lshr_b32 s10, s2, 2
s_lshl_b32 s10, s10, 7
s_and_b32 s4, s2, 3
s_lshl_b32 s4, s4, 3
s_add_u32 s10, s10, s4
buffer_load_ushort v31, v9, s[60:63], 0 offen
buffer_load_ushort v29, v30, s[44:47], s10 offen
s_mov_b32 s16, 0x07060500
s_mov_b32 s17, 0x07060501
s_mov_b32 s18, 0x07060502
s_mov_b32 s19, 0x07060503
s_mov_b32 s20, 0x0c0c0400
s_mov_b32 s21, 0x04000c0c
s_getreg_b32 s43, hwreg(HW_REG_XCC_ID, 0, 4)
s_lshl_b32 s43, s43, 28
s_mov_b32 s11, 0x3f803f80
v_mov_b32 v{S1}, 0
v_mov_b32 v{S2}, 0
s_waitcnt vmcnt({(31 if sE else 32) - NW})
""")
    for i in range(8):
        a(f"v_dot2_f32_bf16 v{S1}, v{X+i}, s11, v{S1}")
        a(f"v_dot2_f32_bf16 v{S2}, v{X+i}, v{X+i}, v{S2}")
    for n in (8, 4, 2, 1):
        a(f"v_add_f32_dpp v{S1}, v{S1}, v{S1} row_ror:{n} row_mask:0xf bank_mask:0xf")
        a(f"v_add_f32_dpp v{S2}, v{S2}, v{S2} row_ror:{n} row_mask:0xf bank_mask:0xf")
    a(f"""
v_mov_b32 v{T0}, v{S1}
v_mov_b32 v{T1}, v{S2}
v_permlane16_swap_b32 v{S1}, v{T0}
v_permlane16_swap_b32 v{S2}, v{T1}
v_add_f32 v{S1}, v{S1}, v{T0}
v_add_f32 v{S2}, v{S2}, v{T1}
""")
    stats_finish()
    normalize(X, X, 8, 20)
    a(f"""
s_mul_i32 s4, s3, {2*XRS}
v_mul_u32_u24 v2, {XRS}, v7
v_add3_u32 v2, v2, v4, s4
ds_write_b128 v2, v[{X}:{X+3}] offset:{XN}
ds_write_b128 v2, v[{X+4}:{X+7}] offset:{XN+512}
v_mul_u32_u24 v2, {XRS}, v6
v_lshl_add_u32 v2, v5, 4, v2
s_lshl_b32 s4, s9, 8
v_add_u32 v2, s4, v2
v_bfe_u32 v3, v1, 2, 2
v_lshl_add_u32 v3, v5, 3, v3
v_lshlrev_b32 v3, 7, v3
v_and_b32 v20, 3, v1
v_lshl_add_u32 v3, v20, 3, v3
s_lshl_b32 s4, s3, 5
v_add_u32 v24, s4, v3
s_waitcnt vmcnt(23) lgkmcnt(0)
""")
    lds_signal(FLG + 8)
    a(f"""
{"s_add_u32 s42, s42, 1" if sE else "v_add_u32 v10, 1, v10"}
v_lshlrev_b32 v25, 7, v5
v_lshl_add_u32 v25, v6, 4, v25
s_lshl_b32 s4, s8, 2
s_add_u32 s4, s4, s9
s_lshl_b32 s4, s4, 2
s_add_u32 s4, s4, s3
s_lshl_b32 s4, s4, 9
s_add_u32 s72, s4, {QOFF}
{"" if sE else "v_readfirstlane_b32 s42, v10"}
s_add_u32 s73, s72, {BD}
s_mul_i32 s12, s42, 0x01010101
s_xor_b32 s43, s43, s12
v_mov_b32 v10, s12
v_mov_b32 v21, s43
""")
    lds_wait("L_xw", FLG + 8, 4)
    for t in range(4):
        a(f"ds_read_b128 v[{96+4*t}:{99+4*t}], v2 offset:{XN+64*t}")
        for u in range(2): a(f"ds_read_b64_tr_b16 v[{112+4*t+2*u}:{113+4*t+2*u}], v24 offset:{WQL+t*4096+u*512}")
    a("s_waitcnt lgkmcnt(0)")
    stamp(1)
    for t in range(4):
        a(f"v_mfma_f32_16x16x32_bf16 v[128:131], v[{112+4*t}:{115+4*t}], v[{96+4*t}:{99+4*t}], {'0' if t == 0 else 'v[128:131]'}")
    pack16(132, [128, 129, 130, 131], 21)
    a(f"""
s_mov_b32 exec_lo, 0x00ff00ff
s_mov_b32 exec_hi, 0x00ff00ff
buffer_store_dwordx4 v[132:135], v25, s[52:55], s72 offen {"sc1" if clean else ""}
buffer_store_dwordx4 v[132:135], v25, s[52:55], s73 offen sc1
s_mov_b64 exec, -1
""")
    stamp(2)
    a(f"s_setprio {bgprio}")
    def woread(vr):
        for nt_ in range(4):
            for kk in range(4):
                for u in range(2):
                    r = WB + 16 * nt_ + 4 * kk + 2 * u
                    a(f"ds_read_b64_tr_b16 v[{r}:{r+1}], v{vr} offset:{WQL+16384+kk*4096+u*512+nt_*32}")
    if wolate is None: woread(3)
    else: a("v_mov_b32 v91, v3")
    a(f"""
s_lshr_b32 s4, s2, 5
s_mul_i32 s4, s4, {XRS}
v_lshl_add_u32 v2, v1, 4, s4
ds_read_b128 v[{HX}:{HX+3}], v2 offset:{XN}
v_mov_b32 v{S1}, 0
v_mov_b32 v{S2}, 0
s_waitcnt lgkmcnt(0)
""")
    for i in range(4):
        a(f"v_dot2_f32_bf16 v{S1}, v{HX+i}, s11, v{S1}")
        a(f"v_dot2_f32_bf16 v{S2}, v{HX+i}, v{HX+i}, v{S2}")
    for n in (8, 4, 2, 1):
        a(f"v_add_f32_dpp v{S1}, v{S1}, v{S1} row_ror:{n} row_mask:0xf bank_mask:0xf")
        a(f"v_add_f32_dpp v{S2}, v{S2}, v{S2} row_ror:{n} row_mask:0xf bank_mask:0xf")
    swaps_add(S1, T0); swaps_add(S2, T1)
    stats_finish()
    normalize(HX, HX, 4, 20)
    a(f"""
s_bitcmp1_b32 s2, 0
s_cselect_b64 vcc, -1, 0
s_bfe_u32 s4, s2, 0x30002
s_lshl_b32 s4, s4, 3
s_bfe_u32 s5, s2, 0x10001
s_add_u32 s4, s4, s5
v_cndmask_b32 v{HX}, v{HX}, v{HX+2}, vcc
v_cndmask_b32 v{HX+1}, v{HX+1}, v{HX+3}, vcc
""")
    for i in range(4):
        a(f"v_readlane_b32 s{72+2*i}, v{HX}, s4\nv_readlane_b32 s{73+2*i}, v{HX+1}, s4")
        if i < 3: a("s_add_u32 s4, s4, 2")
    a("s_waitcnt vmcnt(2)")
    for i in range(21): a(f"v_lshlrev_b32 v{W1+i}, 16, v{W1+i}")
    c0 = -2 * LOG2E * math.sqrt(2 / math.pi); c1 = c0 * 0.044715
    a(f"""
v_mov_b32 v{C1}, {f32(c1)}
s_lshl_b32 s4, s3, 6
v_mov_b32 v{YA}, s4
""")
    def mlp_steps(lo, hi):
        for d in range(lo, hi):
            if d & 1: a(f"s_and_b32 s4, s{72+(d>>1)}, 0xffff0000")
            else: a(f"s_lshl_b32 s4, s{72+(d>>1)}, 16")
            if "nomlp" not in dbg: a("s_call_b64 s[80:81], L_mlp")
            if wolate is not None and d in wolate: wodma(wolate.index(d), 90, 22, 23)
    mlp_steps(0, mlp1)
    a(f"""
s_setprio 3
s_lshr_b32 s4, s2, 5
s_lshl_b32 s4, s4, 4
s_lshl_b32 s5, s15, 2
s_add_u32 s5, s5, s3
s_lshl_b32 s5, s5, 14
s_add_u32 s4, s4, s5
s_add_u32 s6, s4, {QOFF}
v_bfe_u32 v2, v1, 1, 4
v_lshlrev_b32 v2, 7, v2
v_lshl_add_u32 v2, v7, 13, v2
v_and_b32 v3, 1, v1
v_lshl_add_u32 v2, v3, 12, v2
""")
    def qpost(r):
        a(f"v_mov_b32 v108, v{r}\nv_and_b32 v{r}, 0x0fffffff, v{r}"); return r
    poll("L_gq", [f"buffer_load_dwordx4 v[{96+4*k}:{99+4*k}], v2, s[52:55], s6 offen offset:{2048*k} sc1" for k in range(2)],
         lambda: chk16([96, 100], 104, 43), fbr=6, post=qpost)
    for i in range(8): a(f"v_and_b32 v{96+i}, 0xffffff00, v{96+i}")
    for i in range(4): a(f"v_add_f32 v{96+i}, v{96+i}, v{100+i}")
    for i in range(4): a(f"v_add_f32_dpp v{96+i}, v{96+i}, v{96+i} quad_perm:[1,0,3,2] row_mask:0xf bank_mask:0xf")
    a(f"""
v_cmp_ne_u32 vcc, 0, v108
s_lshl_b32 s4, s3, 8
v_lshrrev_b32 v2, 1, v1
v_lshl_add_u32 v2, v2, 3, s4
v_cvt_pk_bf16_f32 v96, v96, v97
v_cvt_pk_bf16_f32 v97, v98, v99
ds_write_b64 v2, v[96:97] offset:{QL}
{"" if clean else "s_cbranch_vccz L_gq_loc"}
ds_write_b32 v9, v11 offset:{FLG+20}
L_gq_loc:
s_waitcnt lgkmcnt(0)
""")
    lds_signal(FLG + 4)
    stamp(3)
    a(f"s_setprio {bgprio}")
    mlp_steps(mlp1, 16)
    a("s_waitcnt vmcnt(0) lgkmcnt(0)")
    lds_signal(FLG + 12)
    a(f"""
v_lshrrev_b32 v2, 2, v1
v_mul_u32_u24 v20, 144, v2
v_and_b32 v3, 3, v1
v_lshl_add_u32 v20, v3, 5, v20
s_lshl_b32 s4, s3, 2
s_add_u32 s4, s4, {OP}
v_add_u32 v20, s4, v20
v_add_u32 v21, 2304, v20
v_add_u32 v22, 4608, v20
v_add_u32 v23, 6912, v20
s_lshl_b32 s4, s3, 3
v_mov_b32 v24, s4
v_lshrrev_b32 v25, 5, v1
v_lshlrev_b32 v25, 7, v25
v_bfe_u32 v2, v1, 4, 1
v_lshl_add_u32 v25, v2, 11, v25
v_bfe_u32 v2, v1, 1, 1
v_lshl_add_u32 v25, v2, 10, v25
v_bfe_u32 v2, v1, 2, 2
v_lshl_add_u32 v25, v2, 8, v25
v_and_b32 v2, 1, v1
v_lshl_add_u32 v25, v2, 3, v25
v_lshlrev_b32 v26, 4, v1
v_and_b32 v2, 1, v5
v_lshl_add_u32 v27, v2, 2, v3
v_lshlrev_b32 v27, 4, v27
v_lshlrev_b32 v28, {6 if h2full else 16}, v2
v_bfe_u32 v2, v1, 2, 2
v_lshl_add_u32 v28, v2, {12 if h2full else 11}, v28
v_lshl_add_u32 v28, v3, 4, v28
v_lshrrev_b32 v19, 2, v1
v_lshlrev_b32 v19, {7 if h2full else 6}, v19
v_lshl_add_u32 v19, v3, 4, v19
s_lshl_b32 s4, s15, 2
s_add_u32 s4, s4, s3
s_lshl_b32 s4, s4, 2
s_add_u32 s4, s4, s9
s_mul_i32 s4, s4, {H1S}
s_bfe_u32 s5, s2, 0x30003
s_lshl_b32 s5, s5, 4
s_add_u32 s4, s4, s5
s_add_u32 s6, s4, {H1OFF}
s_lshl_b32 s4, s13, 2
s_add_u32 s4, s4, s3
s_mul_i32 s4, s4, {H1S}
s_add_u32 s7, s4, {H1OFF}
s_lshl_b32 s4, s3, {5 if h2full else 6}
s_lshl_b32 s5, s14, 2
s_add_u32 s4, s4, s5
s_lshl_b32 s4, s4, {12 if h2full else 11}
s_lshl_b32 s5, s13, {7 if h2full else 6}
s_add_u32 s4, s4, s5
s_add_u32 s8, s4, {H2OFF}
""")
    if not h2full: a("s_lshl_b32 s9, s2, 11")
    else: a("""
s_lshr_b32 s9, s2, 6
s_lshl_b32 s9, s9, 5
s_and_b32 s4, s2, 31
s_add_u32 s9, s9, s4
s_lshl_b32 s9, s9, 12
s_bfe_u32 s4, s2, 0x10005
s_lshl_b32 s4, s4, 6
s_add_u32 s9, s9, s4
""")
    h2l = [f"buffer_load_dwordx4 v[{136+4*k}:{139+4*k}], v19, s[52:55], s9 offen offset:{(2048 if h2full else 1024)*k} sc1" for k in range(2)]
    a(f"""
s_add_u32 s9, s9, {H2OFF}
""")
    if wolate is not None:
        lds_wait("L_yw", FLG + 12, 4); woread(91)
    a("""
s_cmp_lg_u32 s3, 0
s_cbranch_scc1 L_ready
""")
    if wolate is None: lds_wait("L_yw", FLG + 12, 4)
    if h2pre:
        for l in h2l: a(l)
    a(f"""
v_lshl_add_u32 v2, v5, 2, v3
v_lshlrev_b32 v2, 2, v2
ds_read_b32 v32, v2 offset:{YP}
ds_read_b32 v33, v2 offset:{YP+64}
ds_read_b32 v34, v2 offset:{YP+128}
ds_read_b32 v35, v2 offset:{YP+192}
v_lshlrev_b32 v31, 16, v31
s_waitcnt lgkmcnt(0)
v_add_f32 v32, v32, v33
v_add_f32 v34, v34, v35
v_add_f32 v32, v32, v34
v_cvt_pk_bf16_f32 v32, v32, v32
v_lshlrev_b32 v32, 16, v32
v_add_f32 v32, v32, v31
v_cvt_pk_bf16_f32 v32, v32, v32
v_lshlrev_b32 v32, 16, v32
v_mul_f32 v34, {f32(-LOG2E)}, v32
v_exp_f32 v34, v34
v_add_f32 v34, 1.0, v34
v_rcp_f32 v34, v34
v_mul_f32 v32, v32, v34
v_cvt_pk_bf16_f32 v32, v32, v32
v_lshlrev_b32 v16, 16, v32
v_lshlrev_b32 v14, 16, v29
L_ready:
""")
    lds_wait("L_sw", FLG + 16, 4, sl=8)
    a(f"""
ds_read_b64 v[32:33], v24 offset:{ST}
ds_read_b64 v[34:35], v24 offset:{ST+32}
ds_read_b64 v[36:37], v24 offset:{ST+64}
ds_read_b64 v[38:39], v24 offset:{ST+96}
ds_read_b32 v54, v9 offset:{FLG+20}
s_waitcnt lgkmcnt(0)
v_max3_f32 v48, v32, v34, v36
v_max_f32 v48, v48, v38
v_sub_f32 v32, v32, v48
v_sub_f32 v34, v34, v48
v_sub_f32 v36, v36, v48
v_sub_f32 v38, v38, v48
v_exp_f32 v32, v32
v_exp_f32 v34, v34
v_exp_f32 v36, v36
v_exp_f32 v38, v38
v_mov_b32 v49, v10
v_mov_b32 v51, v10
v_mul_f32 v50, v32, v33
v_fmac_f32 v50, v34, v35
v_fmac_f32 v50, v36, v37
v_fmac_f32 v50, v38, v39
v_mov_b32 v53, v10
v_readfirstlane_b32 s75, v54
s_mov_b64 exec, 1
s_cmp_lg_u32 s75, 0
s_cbranch_scc1 L_st_far
buffer_store_dwordx4 v[48:51], v9, s[52:55], s6 offen
s_mov_b64 exec, -1
""")
    poll("L_sp", [f"buffer_load_dwordx4 v[40:43], v27, s[52:55], s7 offen {h1fl}"], lambda: chk8([41, 43], 80), sl=8)
    a(f"""
s_branch L_st_done
L_st_far:
buffer_store_dwordx4 v[48:51], v9, s[52:55], s6 offen sc1
s_mov_b64 exec, -1
""")
    poll("L_spx", ["buffer_load_dwordx4 v[40:43], v27, s[52:55], s7 offen sc1"], lambda: chk8([41, 43], 80), sl=8)
    a("L_st_done:")
    a("""
v_max_f32_dpp v44, v40, v40 quad_perm:[1,0,3,2] row_mask:0xf bank_mask:0xf
v_max_f32_dpp v45, v44, v44 quad_perm:[2,3,0,1] row_mask:0xf bank_mask:0xf
v_sub_f32 v40, v40, v45
v_exp_f32 v40, v40
v_mul_f32 v42, v40, v42
v_add_f32_dpp v44, v42, v42 quad_perm:[1,0,3,2] row_mask:0xf bank_mask:0xf
v_add_f32_dpp v45, v44, v44 quad_perm:[2,3,0,1] row_mask:0xf bank_mask:0xf
v_rcp_f32 v45, v45
v_mul_f32 v40, v40, v45
v_mov_b32_dpp v56, v40 quad_perm:[0,0,0,0] row_mask:0xf bank_mask:0xf
v_mov_b32_dpp v57, v40 quad_perm:[1,1,1,1] row_mask:0xf bank_mask:0xf
v_mov_b32_dpp v58, v40 quad_perm:[2,2,2,2] row_mask:0xf bank_mask:0xf
v_mov_b32_dpp v59, v40 quad_perm:[3,3,3,3] row_mask:0xf bank_mask:0xf
s_setprio 3
s_waitcnt vmcnt(0) lgkmcnt(0)
""")
    stamp(4)
    a("s_barrier")
    if prof: a("s_waitcnt lgkmcnt(0)")
    if "notail" in dbg:
        stamp(5); stamp(6); a("s_branch L_hend")
    if tailprof: stamp(1); a("s_waitcnt lgkmcnt(0)")
    a(f"""
ds_read2_b32 v[40:41], v20 offset0:0 offset1:4
ds_read2_b32 v[42:43], v21 offset0:0 offset1:4
ds_read2_b32 v[44:45], v22 offset0:0 offset1:4
ds_read2_b32 v[46:47], v23 offset0:0 offset1:4
s_waitcnt lgkmcnt(2)
v_mul_f32 v40, v32, v40
v_mul_f32 v41, v32, v41
v_fmac_f32 v40, v34, v42
v_fmac_f32 v41, v34, v43
s_waitcnt lgkmcnt(0)
v_mul_f32 v44, v36, v44
v_mul_f32 v45, v36, v45
v_fmac_f32 v40, v38, v46
v_fmac_f32 v41, v38, v47
v_add_f32 v40, v40, v44
v_add_f32 v41, v41, v45
s_cmp_lg_u32 s75, 0
v_cvt_pk_bf16_f32 v52, v40, v41
s_cbranch_scc1 L_h1_far
buffer_store_dwordx2 v[52:53], v25, s[52:55], s6 offen offset:128
""")
    stamp(5)
    def h1poll(sfx, fl, pipe):
        full = [f"buffer_load_dwordx4 v[{64+4*k}:{67+4*k}], v26, s[52:55], s7 offen offset:{128+k*1024} {fl}" for k in range(4)]
        poll("L_h1" + sfx, full, lambda: chk8([65, 67, 69, 71, 73, 75, 77, 79], 80), st=4, pipe=pipe, stag=stag1)
    h1poll("", h1fl, pipe1)
    a("L_h1_got:")
    stamp(6)
    AO = 96; DD = 112
    if h2late: a(f"s_mov_b64 exec, 1\nds_add_rtn_u32 v54, v9, v11 offset:{FLG+24}\ns_mov_b64 exec, -1")
    def mv(kk, p):
        src = 64 + 8 * (kk & 1) + 2 * p
        if kk >= 2: a(f"v_mov_b32_dpp v{AO+4*kk+p}, v{src} row_ror:8 row_mask:0xf bank_mask:0xf")
        else: a(f"v_mov_b32 v{AO+4*kk+p}, v{src}")
    for p in range(4): mv(0, p)
    for kk in range(4):
        for nt_ in range(4):
            d = DD + 4 * nt_; b = WB + 16 * nt_ + 4 * kk
            if kk < 3 and nt_ < 2: mv(kk + 1, 2 * nt_); mv(kk + 1, 2 * nt_ + 1)
            a(f"v_mfma_f32_16x16x32_bf16 v[{d}:{d+3}], v[{AO+4*kk}:{AO+4*kk+3}], v[{b}:{b+3}], {'0' if kk == 0 else f'v[{d}:{d+3}]'}")
    GO = 128
    if h2late: a("s_waitcnt lgkmcnt(0)\nv_readfirstlane_b32 s59, v54")
    for t in range(4):
        a(f"v_mul_f32 v{GO+t}, v56, v{DD+4*t}")
        a(f"v_mul_f32 v{GO+4+t}, v58, v{DD+4*t+2}")
    for t in range(4):
        a(f"v_fmac_f32 v{GO+t}, v57, v{DD+4*t+1}")
        a(f"v_fmac_f32 v{GO+4+t}, v59, v{DD+4*t+3}")
    for t in range(4): a(f"v_add_f32 v{GO+t}, v{GO+t}, v{GO+4+t}")
    pack16(GO, [GO, GO + 1, GO + 2, GO + 3], 10)
    if h2late:
        a("s_cmp_eq_u32 s59, 3\ns_cbranch_scc1 L_hl_done")
        lds_wait("L_hl", FLG + 24, 4)
    a(f"s_mov_b64 exec, 0xffffffff\nbuffer_store_dwordx4 v[{GO}:{GO+3}], v28, s[52:55], s8 offen sc1")
    if tailprof: stamp(2)
    if h2sync and not h2late: lds_signal(FLG + 24)
    a(f"""
s_mov_b64 exec, -1
s_cmp_lg_u32 s3, 0
s_cbranch_scc1 L_hend
""")
    if h2sync and not h2late: lds_wait("L_hw", FLG + 24, 4)
    if h2ack: a("s_waitcnt vmcnt(0)")
    poll("L_h2", h2l, lambda: chk16([136, 140], 56, 12), st=3, pipe=pipe2, stag=stag2, sl=slp2)
    for i in range(8): a(f"v_and_b32 v{48+i}, 0xffffff00, v{136+i}")
    for i in range(4): a(f"v_add_f32 v{48+i}, v{48+i}, v{52+i}")
    a(f"""
v_permlane32_swap_b32 v48, v50
v_permlane32_swap_b32 v49, v51
v_add_f32 v48, v48, v50
v_add_f32 v49, v49, v51
v_permlane16_swap_b32 v48, v49
v_add_f32 v48, v48, v49
v_add_f32_dpp v48, v48, v48 row_ror:4 row_mask:0xf bank_mask:0xf
v_add_f32_dpp v48, v48, v48 row_ror:8 row_mask:0xf bank_mask:0xf
s_mov_b32 exec_lo, 0x000f000f
s_mov_b32 exec_hi, 0x000f000f
v_cvt_pk_bf16_f32 v48, v48, v48
v_lshlrev_b32 v48, 16, v48
v_mul_f32 v48, v48, v16
v_cvt_pk_bf16_f32 v48, v48, v48
v_lshlrev_b32 v48, 16, v48
v_add_f32 v48, v48, v14
v_cvt_pk_bf16_f32 v48, v48, v48
buffer_store_short v48, v30, s[64:67], s10 offen {"sc1" if clean else ""}
s_mov_b64 exec, 1
s_cmp_lg_u32 s2, 0
s_cbranch_scc1 L_hend
v_mov_b32 v10, s42
buffer_store_dword v10, v9, s[52:55], 0 offen sc1
L_hend:
""")
    stamp(7)
    a("s_waitcnt vmcnt(0)")
    if dbgt == 2:
        a(f"""
s_or_b32 s59, s2, s3
s_cmp_lg_u32 s59, 0
s_cbranch_scc1 L_dbgt
s_memrealtime s[88:89]
s_waitcnt lgkmcnt(0)
s_sub_u32 s59, s88, s84
s_mul_i32 s59, s59, 10
s_min_u32 s59, s59, 100000
L_dbgs:
s_memrealtime s[90:91]
s_waitcnt lgkmcnt(0)
s_sub_u32 s58, s90, s88
s_cmp_lt_u32 s58, s59
s_cbranch_scc1 L_dbgs
L_dbgt:
""")
    elif dbgt:
        a(f"""
s_memrealtime s[88:89]
s_memtime s[90:91]
s_mov_b32 s44, s38
s_mov_b32 s45, s39
s_mov_b32 s46, 256
s_mov_b32 s47, 0x20000
s_mov_b64 exec, 1
s_waitcnt lgkmcnt(0)
s_not_b32 s59, s84
v_mov_b32 v12, s88
v_mov_b32 v13, s59
buffer_atomic_umax v12, v9, s[44:47], 0 offen sc1
buffer_atomic_umax v13, v9, s[44:47], 0 offen offset:4 sc1
s_cmp_lg_u32 s3, 0
s_cbranch_scc1 L_dbgt
s_and_b32 s59, s2, 0x7f
s_cmp_lg_u32 s59, 0
s_cbranch_scc1 L_dbgt
s_lshr_b32 s59, s2, 3
v_mov_b32 v12, s84
v_mov_b32 v13, s88
v_mov_b32 v14, s86
v_mov_b32 v15, s90
buffer_store_dwordx4 v[12:15], v9, s[44:47], s59 offen offset:16 sc1
L_dbgt:
s_waitcnt vmcnt(0)
""")
    if prof:
        a(f"""
s_mov_b64 exec, 1
s_sleep 127
s_waitcnt lgkmcnt(0)
s_lshl_b32 s59, s2, 3
s_add_u32 s59, s59, s3
s_add_u32 s59, s59, 4
s_lshl_b32 s59, s59, 6
s_add_u32 s59, s59, {STAMP}
""")
        for i in range(0, 8):
            a(f"v_mov_b32 v12, s{84+2*i}\nv_mov_b32 v13, s{85+2*i}\nbuffer_store_dwordx2 v[12:13], v9, s[52:55], s59 offen offset:{8*i}\ns_waitcnt vmcnt(0)")
    a("""L_end:
s_endpgm
L_h1_far:
buffer_store_dwordx2 v[52:53], v25, s[52:55], s6 offen offset:128 sc1
""")
    h1poll("x", "sc1", 1)
    a("s_branch L_h1_got")
    if fc:
        a("L_cb:\ns_waitcnt lgkmcnt(0)\ns_mov_b32 s71, 0")
        for i in range(8): a(f"s_cmp_lg_u32 s{4+i}, s73\ns_addc_u32 s71, s71, 0")
        if not fc.get("wg"):
            a(f"""
s_cmp_lt_u32 s71, {fc['th1']}
s_cselect_b32 s62, 2, 0
s_cmp_ge_u32 s71, {fc['th2']}
s_cselect_b32 s62, 1, s62
""")
            if prof: a("s_lshl_b64 s[82:83], s[82:83], 2\ns_or_b32 s82, s82, s62")
            a("s_setpc_b64 s[80:81]")
        else:
            bias = 16 * fc["CW"]
            a(f"""
s_mul_i32 s74, s71, {fc.get('kx', 0)}
{"s_lshl_b64 s[82:83], s[82:83], 4" if prof and fc.get("tm") else ""}
{"s_or_b32 s82, s82, s71" if prof and fc.get("tm") else ""}
s_branch L_cc
L_cw:
v_add_u32_dpp v85, v85, v85 row_ror:4 row_mask:0xf bank_mask:0xf
v_add_u32_dpp v85, v85, v85 row_ror:2 row_mask:0xf bank_mask:0xf
v_add_u32_dpp v85, v85, v85 row_ror:1 row_mask:0xf bank_mask:0xf
v_readfirstlane_b32 s69, v85
s_sub_u32 s75, s68, s69
s_sub_u32 s75, s75, {bias}
L_cc:
s_add_u32 s68, s75, s74
s_cmp_lt_i32 s68, {-fc['b']}
s_cselect_b32 s62, 2, 0
s_cmp_gt_i32 s68, {fc['a']}
s_cselect_b32 s62, 1, s62
""")
            if prof and not fc.get("tm"): a("s_lshl_b64 s[82:83], s[82:83], 2\ns_or_b32 s82, s82, s62")
            a("s_setpc_b64 s[80:81]")
    a("L_mlp:")
    for t in range(7): a(f"v_fma_f32 v{U+t}, s4, v{W1+t}, v{B1+t}")
    for t in range(7): a(f"v_mul_f32 v{AA+t}, v{U+t}, v{U+t}")
    for t in range(7): a(f"v_fmaak_f32 v{AA+t}, v{AA+t}, v{C1}, {f32(c0)}")
    for t in range(7): a(f"v_mul_f32 v{AA+t}, v{AA+t}, v{U+t}")
    for t in range(7): a(f"v_exp_f32 v{EE+t}, v{AA+t}")
    for t in range(7): a(f"v_mul_f32 v{U+t}, v{U+t}, v{W2+t}")
    for t in range(7): a(f"v_add_f32 v{EE+t}, 1.0, v{EE+t}")
    for t in range(7): a(f"v_rcp_f32 v{EE+t}, v{EE+t}")
    a(f"v_mul_f32 v{ACC2}, v{U}, v{EE}")
    a(f"v_mul_f32 v{AA}, v{U+1}, v{EE+1}")
    for t in range(2, 7): a(f"v_fmac_f32 v{ACC2 if t % 2 == 0 else AA}, v{U+t}, v{EE+t}")
    a(f"v_add_f32 v{ACC2}, v{ACC2}, v{AA}")
    for n in (8, 4, 2, 1): a(f"v_add_f32_dpp v{ACC2}, v{ACC2}, v{ACC2} row_ror:{n} row_mask:0xf bank_mask:0xf")
    swaps_add(ACC2, AA)
    a(f"""
s_mov_b64 exec, 1
ds_write_b32 v{YA}, v{ACC2} offset:{YP}
s_mov_b64 exec, -1
v_add_u32 v{YA}, 4, v{YA}
s_setpc_b64 s[80:81]
""")
    body = a.render()
    txt = HDR + f"""; @launch grid=(256,1,1) block=(512,1,1) lds={LDSZ}
.amdgcn_target "amdgcn-amd-amdhsa--gfx950"
.text
.globl {KN}_kernel
.p2align 8
.type {KN}_kernel,@function
{KN}_kernel:
""" + body + f""".section .rodata,"a"
.p2align 6
.amdhsa_kernel {KN}_kernel
  .amdhsa_next_free_vgpr 256
  .amdhsa_next_free_sgpr 102
  .amdhsa_accum_offset 256
  .amdhsa_group_segment_fixed_size 0
  .amdhsa_kernarg_size 104
  .amdhsa_user_sgpr_count 2
  .amdhsa_user_sgpr_kernarg_segment_ptr 1
  .amdhsa_system_sgpr_workgroup_id_x 1
.end_amdhsa_kernel
"""
    open(fname, "w").write(txt)
if __name__ == "__main__":
    import glob, os
    for f in glob.glob("kp_*.s"): os.remove(f)
    gen("k1.s", mlp1=4, slp=0)
    kw = dict(prof=True, tailprof=True, mlp1=4, slp=0, rq=1, wolate=[5, 7, 9, 11])
    gen("kp_00.s", **kw)
    F = dict(wg=1, x=1, G=2, kx=24, a=64, b=-16, W=(4,6,12), d=6, C=3, CW=2)
    gen("kp_01.s", fc=F, **kw)
    gen("kp_02_nowork.s", fc=F, dbg="nok nosm nov", **kw)
    gen("kp_03_nosm.s", fc=F, dbg="nosm", **kw)
    gen("kp_04_nowq.s", fc=F, dbg="nowq", **kw)
    gen("kp_05_nowork_nowq.s", fc=F, dbg="nok nosm nov nowq", **kw)
    gen("kp_06_nowork_nowq_nomlp.s", fc=F, dbg="nok nosm nov nowq nomlp", **kw)
    gen("kp_07_nofc_nowork.s", dbg="nok nosm nov", **kw)
    gen("kp_08_nofc_nowork_nowq.s", dbg="nok nosm nov nowq", **kw)
```

```python
import gen
kw = dict(mlp1=4, slp=0, rq=1, wolate=[5,7,9,11])
gen.gen("b1_amp.s", dbgt=2, **kw)
gen.gen("b2.s", **kw)
gen.gen("b3_dirty_amp.s", dbgt=2, dirty=8, **kw)
gen.gen("b4_dirty.s", dirty=8, **kw)
gen.gen("b5_clean_amp.s", dbgt=2, clean=True, **kw)
gen.gen("b6_clean.s", clean=True, **kw)
```

```python
import sys, struct, math
from asmlib import Asm
KN = "recurrent_scan__gqa_block_cached__mixer_token_mlp__decode"
def f32(x): return "0x%08x" % struct.unpack("<I", struct.pack("<f", x))[0]
LOG2E = 1.4426950408889634
FLG = 0; QL = 64; ST = QL + 1024; YP = ST + 128; OP = YP + 256; XN = OP + 4 * 2304; XRS = 1040; WQL = XN + 8 * XRS; KL = WQL + 32768
QOFF = 64 << 10; H1OFF = QOFF + (1 << 20); H1S = 4224; H2OFF = H1OFF + (640 << 10); BD = 4 << 20; PGOFF = 8 << 10; LOCOFF = 32 << 10; STAMP = 128 << 20
HDR = open("cdna_kernels/" + KN + ".s.ref").read().split("; Override launch")[0]

def gen(fname, WIN=6, G=2, RING=40, prof=False, wo_thr=4, ntw="", woflags="", spin=400000, dbg="", WPS=1, dry=False, tailprof=False, NLT=6, slp=2, wqdma=True, sprio=2, bgprio=0, mlp1=8, local=True, fb=31, deferB=True, pretouch=False, pat=None, pat2=None, rot=None, cmap=0, light=False, lslp=0, h1fl='nt', h2sync=True, fc=None, est=None, rq=0, ro=0, sE=True, wolate=None, n0=64, pipe1=1, pipe2=1, stag1=3, stag2=3, h2late=True, h2ack=True, h2pre=False, h2full=False, slp2=0, dbgt=False, dirty=0, clean=False, qslp=None, nloc=200, tmap=None):
    a = Asm()
    LDSZ = KL + 4 * NLT * 4096
    NLL = 4 * NLT
    NST = 8
    def stamp(i):
        if prof: a(f"s_memrealtime s[{84+2*i}:{85+2*i}]")
    a(f"""
s_cmp_ge_u32 s2, 256
s_cbranch_scc1 L_end
""")
    stamp(0)
    if dbgt: a("s_memrealtime s[84:85]\ns_memtime s[86:87]")
    a(f"""
s_load_dwordx16 s[16:31], s[0:1], 0
s_load_dwordx8 s[32:39], s[0:1], 64
s_load_dwordx2 s[40:41], s[0:1], 96
v_and_b32 v1, 63, v0
v_lshrrev_b32 v2, 6, v0
v_and_b32 v3, 15, v0
v_lshlrev_b32 v3, 2, v3
v_mov_b32 v4, 0
v_readfirstlane_b32 s3, v2
ds_write_b32 v3, v4
s_waitcnt lgkmcnt(0)
s_cmp_ge_u32 s3, 4
s_cbranch_scc1 L_helper
""")
    a(f"""
s_setprio {sprio}
s_mov_b32 s44, s18
s_mov_b32 s45, s19
s_mov_b32 s46, 0x4000000
s_mov_b32 s47, 0x20000
s_mov_b32 s48, s20
s_mov_b32 s49, s21
s_mov_b32 s50, 0x4000000
s_mov_b32 s51, 0x20000
s_and_b32 s52, s2, 7
s_lshl_b32 s52, s52, 2
s_bfe_u32 s53, s2, 0x20003
s_add_u32 s52, s52, s53
s_andn2_b32 s53, s2, 31
s_add_u32 s52, s52, s53
s_lshl_b32 s52, s52, 18
s_lshl_b32 s53, s3, 12
s_add_u32 s52, s52, s53
s_mul_i32 s60, s3, {NLT*4096}
s_add_u32 s60, s60, {KL}
v_lshrrev_b32 v5, 4, v1
v_bfe_u32 v6, v1, 2, 2
v_and_b32 v7, 3, v1
v_lshlrev_b32 v2, 8, v6
v_lshl_add_u32 v2, v5, 6, v2
v_lshl_add_u32 v2, v7, 4, v2
v_lshlrev_b32 v3, 4, v1
""")
    if fc:
        a(f"""
s_load_dword s73, s[40:41], 0
s_mov_b32 s76, s40
s_mov_b32 s77, s41
s_mov_b32 s78, 0x10000000
s_mov_b32 s79, 0x20000
s_lshr_b32 s64, s2, 3
s_cmp_eq_u32 s3, 0
s_cselect_b32 s64, s64, 64
s_and_b32 s65, s2, 7
s_lshl_b32 s65, s65, 2
v_mov_b32 v83, s65
s_mov_b32 s62, {fc.get('l0', 0)}
s_mov_b64 s[82:83], 0
s_mov_b32 s12, s38
s_mov_b32 s13, s39
s_mov_b32 s14, 256
s_mov_b32 s15, 0x20000
s_getreg_b32 s66, hwreg(HW_REG_XCC_ID, 0, 3)
s_lshl_b32 s66, s66, 5
s_lshr_b32 s67, s2, 3
s_add_u32 s67, s67, s66
v_mov_b32 v88, s67
v_and_b32 v87, 7, v1
v_lshl_add_u32 v87, v87, 2, s66
s_mov_b32 s74, 0
s_mov_b32 s75, 0
s_cmp_eq_u32 s3, 0
s_cselect_b64 vcc, 1, 0
""")
    if tmap:
        a(f"""
s_and_b32 s52, s2, 7
s_lshl_b32 s52, s52, 20
s_lshr_b32 s53, s2, 5
s_lshl_b32 s53, s53, 23
s_or_b32 s52, s52, s53
s_bfe_u32 s53, s2, 0x20003
s_lshl_b32 s53, s53, {tmap[0]}
s_or_b32 s52, s52, s53
s_lshl_b32 s53, s3, 12
s_or_b32 s52, s52, s53
""")
        if tmap[2]: a(f"s_and_b32 s53, s2, 7\ns_lshl_b32 s53, s53, {tmap[2]}\ns_xor_b32 s52, s52, s53")
    if cmap == 1: a("s_lshl_b32 s52, s2, 18\ns_lshl_b32 s53, s3, 12\ns_add_u32 s52, s52, s53")
    if rot is not None: a(rot + "\ns_and_b32 s61, s61, 15\ns_lshl_b32 s61, s61, 14")
    RB = 256 - RING * 4
    def rreg(n): return RB + ((n - NLL) % RING) * 4
    NL = 128
    st = {"tile": None}
    def issue(n):
        isv = n >= 64; t = (n & 63) >> 2; q = n & 3
        if st["tile"] != (isv, t):
            st["tile"] = (isv, t)
            if tmap: a(f"s_xor_b32 s53, s52, {t << tmap[1]}")
            elif rot is None: a(f"s_add_u32 s53, s52, {t*16384}")
            else: a(f"s_add_u32 s53, s61, {t*16384}\ns_and_b32 s53, s53, 0x3ffff\ns_add_u32 s53, s53, s52")
            if n < NLL: a(f"s_add_u32 m0, s60, {t*4096}\ns_nop 0")
        if n < NLL:
            a(f"buffer_load_dwordx4 v2, s[44:47], s53 offen offset:{q*1024} nt lds"); return
        r = rreg(n)
        a(f"buffer_load_dwordx4 v[{r}:{r+3}], {'v3' if isv else 'v2'}, {'s[48:51]' if isv else 's[44:47]'}, s53 offen offset:{q*1024} nt")
    QB = 8; Y = 12; ACC = 28; DT = 28; TT = 44; PT = 60; PA = 76; M = 80
    def setup_consts():
        a(f"""
s_mov_b32 s54, 0x05040100
s_mov_b32 s55, 0x07060302
s_mov_b32 s56, {f32(128**-0.5)}
s_mov_b32 s57, {f32(LOG2E)}
v_lshlrev_b32 v4, 8, v7
v_lshl_add_u32 v4, v5, 6, v4
v_lshl_add_u32 v4, v6, 4, v4
v_mov_b32 v84, 0
v_add_u32 v86, s60, v3
""")
    def wait_q():
        stamp(1)
        if "noq" in dbg:
            a(f"ds_read_b128 v[{QB}:{QB+3}], v4 offset:{QL}\ns_waitcnt lgkmcnt(0)"); stamp(2); return
        a(f"""
s_mov_b32 s58, {spin*8}
L_sq:
ds_read_b32 v85, v84 offset:{FLG+4}
s_waitcnt lgkmcnt(0)
v_readfirstlane_b32 s59, v85
s_sub_u32 s58, s58, 1
s_cbranch_scc1 L_sq_done
s_cmp_ge_u32 s59, 4
s_cbranch_scc1 L_sq_done
s_sleep 1
s_branch L_sq
L_sq_done:
ds_read_b128 v[{QB}:{QB+3}], v4 offset:{QL}
s_waitcnt lgkmcnt(0)
""")
        stamp(2)
        if prof: a("s_waitcnt lgkmcnt(0)")
    def ktile(t):
        if t < NLT:
            for q in range(4): a(f"ds_read_b128 v[{PT+4*q}:{PT+4*q+3}], v86 offset:{t*4096+q*1024}")
        for q in range(4):
            r = rreg(4 * t + q) if t >= NLT else PT + 4 * q
            if t < NLT: a(f"s_waitcnt lgkmcnt({3-q})")
            a(f"v_mfma_f32_16x16x32_bf16 v[{DT+4*q}:{DT+4*q+3}], v[{r}:{r+3}], v[{QB}:{QB+3}], 0")
        for c in range(4):
            for r in range(4):
                n = 4 * ((c - r) % 4)
                ctl = f"row_ror:{n}" if n else "quad_perm:[0,1,2,3]"
                a(f"v_mov_b32_dpp v{TT+r}, v{DT+4*c+r} {ctl} row_mask:0xf bank_mask:{hex(1<<c)}")
        y = Y + t
        a(f"""
v_add_f32 v{TT}, v{TT}, v{TT+1}
v_add_f32 v{TT+2}, v{TT+2}, v{TT+3}
v_add_f32 v{y}, v{TT}, v{TT+2}
v_cvt_pk_bf16_f32 v{y}, v{y}, v{y}
v_lshlrev_b32 v{y}, 16, v{y}
v_mul_f32 v{y}, s56, v{y}
v_cvt_pk_bf16_f32 v{y}, v{y}, v{y}
v_lshlrev_b32 v{y}, 16, v{y}
""")
    def xlane(op, r, t):
        a(f"""
{op}_dpp v{r}, v{r}, v{r} row_ror:4 row_mask:0xf bank_mask:0xf
""") if op != "v_add_f32" else a(f"""
v_add_f32_dpp v{r}, v{r}, v{r} row_ror:4 row_mask:0xf bank_mask:0xf
""")
        a(f"""
{op}_dpp v{r}, v{r}, v{r} row_ror:8 row_mask:0xf bank_mask:0xf
v_mov_b32 v{t}, v{r}
v_permlane16_swap_b32 v{r}, v{t}
{op} v{r}, v{r}, v{t}
v_mov_b32 v{t}, v{r}
v_permlane32_swap_b32 v{r}, v{t}
{op} v{r}, v{r}, v{t}
""")
    def softmax():
        m = M; l = M + 1; t = M + 2
        a(f"v_max3_f32 v{m}, v{Y}, v{Y+1}, v{Y+2}")
        for i in range(3, 15, 2): a(f"v_max3_f32 v{m}, v{m}, v{Y+i}, v{Y+i+1}")
        a(f"v_max_f32 v{m}, v{m}, v{Y+15}")
        xlane("v_max_f32", m, t)
        a(f"v_mul_f32 v{m}, s57, v{m}")
        for i in range(16): a(f"v_fma_f32 v{Y+i}, v{Y+i}, s57, -v{m}")
        for i in range(16): a(f"v_exp_f32 v{Y+i}, v{Y+i}")
        a(f"v_add_f32 v{l}, v{Y}, v{Y+1}")
        a(f"v_add_f32 v{t}, v{Y+2}, v{Y+3}")
        for i in range(4, 16, 2):
            a(f"v_add_f32 v{l}, v{l}, v{Y+i}")
            a(f"v_add_f32 v{t}, v{t}, v{Y+i+1}")
        a(f"v_add_f32 v{l}, v{l}, v{t}")
        for v in range(8): a(f"v_cvt_pk_bf16_f32 v{Y+v}, v{Y+2*v}, v{Y+2*v+1}")
        xlane("v_add_f32", l, t)
        a(f"""
s_lshl_b32 s59, s3, 5
v_lshl_add_u32 v{t}, v1, 3, s59
s_mov_b64 exec, 15
ds_write_b64 v{t}, v[{m}:{m+1}] offset:{ST}
s_mov_b64 exec, 1
v_mov_b32 v{t}, 1
ds_add_u32 v84, v{t} offset:{FLG+16}
s_mov_b64 exec, -1
""")
    def vchunk(v):
        a(f"v_mov_b32 v{PA}, v{Y+v}")
        for p in (1, 2, 3):
            a(f"v_mov_b32_dpp v{PA+p}, v{Y+v} row_ror:{4*((0-p)%4)} row_mask:0xf bank_mask:0xf")
        for half in range(2):
            for jj in range(4 * half, 4 * half + 4):
                o = PT + 4 * (jj & 3)
                for p in range(4):
                    lo = rreg(64 + 8 * v + p) + (jj >> 1); hi = rreg(64 + 8 * v + 4 + p) + (jj >> 1)
                    a(f"v_perm_b32 v{o+p}, v{hi}, v{lo}, {'s55' if jj & 1 else 's54'}")
            for jj in range(4 * half, 4 * half + 4):
                o = PT + 4 * (jj & 3); d = ACC + 4 * jj
                c = "0" if v == 0 else f"v[{d}:{d+3}]"
                a(f"v_mfma_f32_16x16x32_bf16 v[{d}:{d+3}], v[{PA}:{PA+3}], v[{o}:{o+3}], {c}")
    work = [("K", t, 4 * t + 3) for t in list(range(NLT, 16)) + list(range(NLT))] + [("S", 0, 63)] + [("V", v, 64 + 8 * v + 7) for v in range(8)]
    consumed = NLL - 1
    wi = 0
    def do_work():
        nonlocal wi, consumed
        k, i, last = work[wi]
        if k == "K":
            if wi == 0: wait_q()
            if "nok" not in dbg: ktile(i)
            consumed = max(consumed, last)
        elif k == "S":
            if "nosm" in dbg: a(f"s_mov_b64 exec, 1\nv_mov_b32 v82, 1\nds_add_u32 v84, v82 offset:{FLG+16}\ns_mov_b64 exec, -1")
            else: softmax()
            stamp(3)
        else:
            if "nov" not in dbg: vchunk(i)
            consumed = last
        wi += 1
    issued = 0
    ops = []
    def iss(n): issue(n); ops.append(("L", n))
    def vm_for(X):
        li = [i for i, o in enumerate(ops) if o[0] == "L"]
        if len(li) <= X: return None
        p = li[len(li) - X - 1]
        return len(ops) - 1 - p, p
    if pat is None: pat = [(WIN, G)]
    if fc: pat = [(fc["W"][1], fc["G"])]
    for n in range(pat[0][0]): iss(n)
    issued = pat[0][0]
    a("s_barrier")
    setup_consts()
    arrived = -1
    step = 0
    done_op = -1; nw = 0; ph = 0; nctl = 0; evalq = []; PAIRS = [88, 92, 94]; tagdone = False
    while issued < NL:
        pp = pat2 if (pat2 is not None and issued >= n0) else pat
        WIN, G = pp[step % len(pp)]; step += 1
        if not fc:
            if issued - (WIN - G) - 1 > arrived: a(f"s_waitcnt vmcnt({WIN-G})")
            arrived = max(arrived, issued - (WIN - G) - 1)
        else:
            Wl, Wm, Wh = fc["W"]
            r = vm_for(Wh - G)
            if r: a(f"s_waitcnt vmcnt({r[0]})"); done_op = max(done_op, r[1]); arrived = max(arrived, issued - (Wh - G) - 1)
            a(f"""
s_cmp_eq_u32 s62, 2 ;nc
s_cbranch_scc1 L_fs{step} ;nc
s_waitcnt vmcnt({vm_for(Wm - G)[0]}) ;nc
s_cmp_eq_u32 s62, 0 ;nc
s_cbranch_scc1 L_fs{step} ;nc
s_waitcnt vmcnt({vm_for(Wl - G)[0]}) ;nc
L_fs{step}:
""")
        if est:
            for i_, e_ in enumerate(est):
                if e_ is not None and arrived >= e_: stamp(5 + i_); est[i_] = None
        g = min(G, NL - issued)
        while issued + g - 1 - RING > consumed:
            if work[wi][2] > arrived:
                assert not fc
                a(f"s_waitcnt vmcnt({issued - 1 - work[wi][2]})"); arrived = work[wi][2]
            do_work()
        for n in range(issued, issued + g): iss(n)
        if fc:
            d = fc["d"]; k0 = fc.get("k0", 2); last = (NL - fc.get("stop", 8) - fc["W"][1]) // G
            if step == k0:
                a("s_waitcnt lgkmcnt(0)\ns_add_u32 s73, s73, 1\nv_mov_b32 v90, s73")
            if fc.get("wg"):
                for e in [e for e in evalq if e[0] <= done_op]:
                    evalq.remove(e)
                    a(f"v_sad_u8 v85, v{e[1]}, 0, 0\ns_movk_i32 s68, {32 * e[2]}\ns_call_b64 s[80:81], L_cw")
                if step >= fc.get("kw", 4) and step % fc["CW"] == 0 and step <= last:
                    r_ = [91, 92, 93, 94, 95, 86 if NLT == 0 else 5][nw % 6]; nw += 1; assert len(evalq) < 6
                    a(f"""
v_mov_b32 v89, {step}
s_mov_b64 exec, vcc
buffer_store_byte v89, v88, s[12:15], 0 offen
s_mov_b64 exec, -1
buffer_load_dword v{r_}, v87, s[12:15], 0 offen nt
""")
                    ops.append(("S", 0)); ops.append(("C", 0)); evalq.append((len(ops) - 1, r_, step))
            if k0 <= step <= last - d and fc.get("x", 1):
                a(f"""
s_movk_i32 s65, {PGOFF + step * 256}
s_cmp_eq_u32 s64, {step % 32}
s_cselect_b64 exec, 1, 0
buffer_store_dword v90, v83, s[76:79], s65 offen sc1
s_mov_b64 exec, -1
""")
                ops.append(("S", 0))
            if step >= k0 + d and (step - k0 - d) % fc["C"] == 0:
                if nctl > 0: a("s_call_b64 s[80:81], L_cb"); nctl = 0
                if step <= last and fc.get("x", 1):
                    a(f"s_load_dwordx8 s[4:11], s[40:41], {PGOFF + (step - d) * 256}"); nctl = 1
        issued += g
        for _ in range(WPS):
            if wi < len(work) and work[wi][2] <= arrived and (wi > 0 or issued + G - 1 - RING > consumed):
                do_work()
    while wi < len(work):
        need_ = work[wi][2]
        if need_ > arrived:
            r = vm_for(NL - 1 - need_) if fc else (NL - 1 - need_,)
            a(f"s_waitcnt vmcnt({r[0]})"); arrived = need_
        do_work()
    stamp(4)
    a(f"""
s_mul_i32 s59, s3, 2304
v_mul_u32_u24 v4, 144, v1
v_add_u32 v4, s59, v4
s_mov_b64 exec, 0xffff
""")
    for jj in range(8):
        a(f"ds_write_b128 v4, v[{ACC+4*jj}:{ACC+4*jj+3}] offset:{OP+16*jj}")
    a("""
s_mov_b64 exec, -1
s_waitcnt lgkmcnt(0)
s_barrier
""")
    if dirty:
        a(f"""
s_mov_b32 s44, s40
s_mov_b32 s45, s41
s_mov_b32 s46, 0x10000000
s_mov_b32 s47, 0x20000
s_lshl_b32 s59, s2, 2
s_add_u32 s59, s59, s3
s_mul_i32 s59, s59, {dirty*1024}
s_add_u32 s59, s59, {64 << 20}
s_sleep 64
""")
        for i in range(dirty): a(f"buffer_store_dwordx4 v[28:31], v3, s[44:47], s59 offen\ns_add_u32 s59, s59, 1024")
    if prof:
        a(f"""
s_mov_b32 s44, s40
s_mov_b32 s45, s41
s_mov_b32 s46, 0x10000000
s_mov_b32 s47, 0x20000
s_sleep 127
s_sleep 127
s_sleep 127
s_waitcnt lgkmcnt(0)
s_lshl_b32 s59, s2, 3
s_add_u32 s59, s59, s3
s_lshl_b32 s59, s59, 6
s_add_u32 s59, s59, {STAMP}
v_mov_b32 v4, 0
s_mov_b64 exec, 1
""")
        for i in range(8):
            sr = 82 if (i == 5 and fc) else 84 + 2 * (i if est else min(i, 4))
            a(f"v_mov_b32 v8, s{sr}\nv_mov_b32 v9, s{sr+1}\nbuffer_store_dwordx2 v[8:9], v4, s[44:47], s59 offen offset:{8*i}\ns_waitcnt vmcnt(0)")
    a("s_endpgm")
    X = 32
    S1 = 12; S2 = 13; T0 = 14; T1 = 15; NM = 16; RS = 18
    W1 = 40; B1 = 47; W2 = 54; HX = 62; U = 66; AA = 73; EE = 80; ACC2 = 87; C1 = 88; YA = 89
    WB = 192
    def srd(base, lo, size): a(f"s_mov_b32 s{base}, s{lo}\ns_mov_b32 s{base+1}, s{lo+1}\ns_mov_b32 s{base+2}, {size}\ns_mov_b32 s{base+3}, 0x20000")
    def bfround(r): a(f"v_cvt_pk_bf16_f32 v{r}, v{r}, v{r}\nv_lshlrev_b32 v{r}, 16, v{r}")
    def stats_finish():
        a(f"""
v_mul_f32 v{S1}, {f32(1/512)}, v{S1}
v_mul_f32 v{S2}, {f32(1/512)}, v{S2}
v_fma_f32 v{S2}, -v{S1}, v{S1}, v{S2}
v_max_f32 v{S2}, 0, v{S2}
""")
        bfround(S1); bfround(S2)
        a(f"v_add_f32 v{S2}, {f32(1e-5)}, v{S2}")
        bfround(S2)
        a(f"v_sqrt_f32 v{S2}, v{S2}")
        bfround(S2)
        a(f"""
v_rcp_f32 v{RS}, v{S2}
v_sub_f32 v{NM}, 0, v{S1}
v_sub_f32 v{NM+1}, 0, v{S1}
v_mov_b32 v{RS+1}, v{RS}
""")
    def swaps_add(r, t):
        a(f"""
v_mov_b32 v{t}, v{r}
v_permlane16_swap_b32 v{r}, v{t}
v_add_f32 v{r}, v{r}, v{t}
v_mov_b32 v{t}, v{r}
v_permlane32_swap_b32 v{r}, v{t}
v_add_f32 v{r}, v{r}, v{t}
""")
    def normalize(src, dst, n, tmp):
        for i0 in range(0, n, 4):
            idx = list(range(i0, min(n, i0 + 4)))
            for i in idx:
                t = tmp + 2 * (i - i0)
                a(f"v_lshlrev_b32 v{t}, 16, v{src+i}\nv_and_b32 v{t+1}, 0xffff0000, v{src+i}")
            for i in idx:
                t = tmp + 2 * (i - i0)
                a(f"v_pk_add_f32 v[{t}:{t+1}], v[{t}:{t+1}], v[{NM}:{NM+1}]")
            for i in idx:
                t = tmp + 2 * (i - i0)
                a(f"v_cvt_pk_bf16_f32 v{t}, v{t}, v{t+1}")
            for i in idx:
                t = tmp + 2 * (i - i0)
                a(f"v_and_b32 v{t+1}, 0xffff0000, v{t}\nv_lshlrev_b32 v{t}, 16, v{t}")
            for i in idx:
                t = tmp + 2 * (i - i0)
                a(f"v_pk_mul_f32 v[{t}:{t+1}], v[{t}:{t+1}], v[{RS}:{RS+1}]")
            for i in idx:
                t = tmp + 2 * (i - i0)
                a(f"v_cvt_pk_bf16_f32 v{dst+i}, v{t}, v{t+1}")
    def lds_wait(lbl, off, cnt, sl=0):
        a(f"""
s_mov_b32 s58, {spin*8}
{lbl}:
ds_read_b32 v4, v9 offset:{off}
s_waitcnt lgkmcnt(0)
v_readfirstlane_b32 s59, v4
s_sub_u32 s58, s58, 1
s_cbranch_scc1 {lbl}_done
s_cmp_lt_u32 s59, {cnt}
{f"s_sleep {sl}" if sl else ""}
s_cbranch_scc1 {lbl}
{lbl}_done:
""")
    def lds_signal(off):
        a(f"""
s_mov_b64 exec, 1
ds_add_u32 v9, v11 offset:{off}
s_mov_b64 exec, -1
""")
    def orred(ts):
        ts = list(ts)
        while len(ts) > 1:
            if len(ts) >= 3:
                a(f"v_or3_b32 v{ts[0]}, v{ts[0]}, v{ts[1]}, v{ts[2]}"); ts = ts[3:] + [ts[0]]
            else:
                a(f"v_or_b32 v{ts[0]}, v{ts[0]}, v{ts[1]}"); ts = [ts[0]]
        return ts[0]
    def chk8(tags, tmp):
        for i, t in enumerate(tags): a(f"v_xor_b32 v{tmp+i}, s12, v{t}")
        return orred([tmp + i for i in range(len(tags))])
    def chk16(bases, tmp, tagreg):
        out = []
        for i, b in enumerate(bases):
            a(f"v_perm_b32 v{tmp+2*i}, v{b+1}, v{b}, s20\nv_perm_b32 v{tmp+2*i+1}, v{b+3}, v{b+2}, s21")
        for i, b in enumerate(bases):
            a(f"v_or_b32 v{tmp+2*i}, v{tmp+2*i}, v{tmp+2*i+1}")
        for i, b in enumerate(bases):
            a(f"v_xor_b32 v{tmp+2*i}, s{tagreg}, v{tmp+2*i}"); out.append(tmp + 2 * i)
        return orred(out)
    def pack16(dst, srcs, tagv):
        for i, r in enumerate(srcs): a(f"v_perm_b32 v{dst+i}, v{r}, v{tagv}, s{16+i}")
    def poll(lbl, loads, chk, fbr=None, post=None, st=None, pipe=1, stag=0, sl=None):
        if sl is None: sl = slp
        if fbr is not None: a(f"s_mov_b32 s82, s{fbr}\ns_add_u32 s83, s{fbr}, {BD}")
        a(f"s_mov_b32 s58, {spin}")
        for _ in range(pipe - 1):
            for l in loads: a(l)
            if stag: a(f"s_sleep {stag}")
        a(f"{lbl}:")
        if st is not None and tailprof: stamp(st)
        for l in loads: a(l)
        a(f"s_waitcnt vmcnt({len(loads) * (pipe - 1)})")
        r = chk()
        if post: r = post(r)
        a(f"""
v_cmp_ne_u32 vcc, 0, v{r}
s_sub_u32 s58, s58, 1
s_cbranch_scc1 {lbl}_done
s_and_b64 exec, exec, vcc
s_cbranch_execz {lbl}_done
""")
        if fbr is not None: a(f"s_and_b32 s59, s58, {fb}\ns_cselect_b32 s{fbr}, s82, s83")
        if sl: a(f"s_sleep {sl}")
        a(f"""
s_branch {lbl}
{lbl}_done:
s_mov_b64 exec, -1
""")
    a("L_helper:\ns_setprio 3\ns_sub_u32 s3, s3, 4")
    srd(44, 16, 8192); srd(48, 22, 0x400000); srd(52, 40, 0x10000000); srd(56, 24, 0x400000)
    srd(60, 28, 3584); srd(64, 30, 3584); srd(68, 32, 3584)
    a(f"""
v_lshrrev_b32 v5, 4, v1
v_and_b32 v6, 7, v1
v_and_b32 v8, 15, v1
v_lshrrev_b32 v7, 5, v1
v_and_b32 v4, 31, v1
v_lshlrev_b32 v4, 4, v4
v_lshl_add_u32 v2, v7, 10, v4
s_lshl_b32 s6, s3, 11
v_mov_b32 v9, 0
v_mov_b32 v11, 1
v_lshrrev_b32 v20, 3, v1
v_lshlrev_b32 v21, 13, v20
v_lshl_add_u32 v21, v6, 4, v21
v_lshlrev_b32 v22, 10, v20
v_lshl_add_u32 v22, v6, 4, v22
s_and_b32 s15, s2, 7
s_lshr_b32 s14, s2, 3
s_add_u32 s4, s14, {rq}
s_and_b32 s4, s4, 7
s_add_u32 s14, s14, {ro}
s_and_b32 s14, s14, 7
s_lshl_b32 s8, s15, 3
s_add_u32 s8, s8, s4
s_lshr_b32 s9, s2, 6
s_lshl_b32 s4, s9, 2
s_add_u32 s4, s4, s3
s_lshl_b32 s4, s4, 18
s_lshl_b32 s5, s8, 7
s_add_u32 s72, s4, s5
s_lshl_b32 s13, s15, 2
s_add_u32 s13, s13, s9
s_lshl_b32 s4, s13, 2
s_add_u32 s4, s4, s3
s_lshl_b32 s4, s4, 15
s_lshl_b32 s5, s14, 7
s_add_u32 s73, s4, s5
s_lshl_b32 s4, s3, 12
s_add_u32 s74, s4, {WQL}
s_mul_i32 s75, s3, 896
v_lshlrev_b32 v23, 1, v1
s_barrier
""")
    if "nohelp" in dbg: a("s_branch L_pre2")
    a(f"""
buffer_load_dwordx4 v[{X}:{X+3}], v2, s[44:47], s6 offen
buffer_load_dwordx4 v[{X+4}:{X+7}], v2, s[44:47], s6 offen offset:512
{"s_load_dword s42, s[40:41], 0" if sE else "buffer_load_dword v10, v9, s[52:55], 0 offen sc1"}
""")
    if "nowq" in dbg: a("s_mov_b32 s50, 0\ns_mov_b32 s58, 0")
    for t in range(4):
        a(f"s_add_u32 m0, s74, {t*1024}\ns_nop 0\nbuffer_load_dwordx4 v21, s[48:51], s72 offen nt lds")
        if t < 3: a(f"s_add_u32 s72, s72, {8*8192}")
    def wodma(t, vr, so, sl):
        a(f"s_add_u32 m0, s{sl}, {16384+t*1024}\ns_nop 0\nbuffer_load_dwordx4 v{vr}, {'s[56:59]' if wolate is None else 's[68:71]'}, s{so} offen nt lds")
        if t < 3: a(f"s_add_u32 s{so}, s{so}, {8*1024}")
    if wolate is None:
        for t in range(4): wodma(t, 22, 73, 74)
    else:
        a("v_mov_b32 v90, v22\ns_mov_b32 s22, s73\ns_mov_b32 s23, s74")
    NW = 0 if wolate is None else 4
    for t in range(7):
        a(f"buffer_load_ushort v{W1+t}, v23, s[60:63], s75 offen offset:{128*t}")
        a(f"buffer_load_ushort v{B1+t}, v23, s[64:67], s75 offen offset:{128*t}")
        a(f"buffer_load_ushort v{W2+t}, v23, s[68:71], s75 offen offset:{128*t}")
    srd(60, 34, 2); srd(64, 36, 8192); srd(68, 24, 0 if 'nowq' in dbg else 0x400000)
    a(f"""
v_and_b32 v30, 3, v1
v_lshlrev_b32 v30, 1, v30
v_lshl_add_u32 v30, v5, 5, v30
s_lshr_b32 s10, s2, 2
s_lshl_b32 s10, s10, 7
s_and_b32 s4, s2, 3
s_lshl_b32 s4, s4, 3
s_add_u32 s10, s10, s4
buffer_load_ushort v31, v9, s[60:63], 0 offen
buffer_load_ushort v29, v30, s[44:47], s10 offen
s_mov_b32 s16, 0x07060500
s_mov_b32 s17, 0x07060501
s_mov_b32 s18, 0x07060502
s_mov_b32 s19, 0x07060503
s_mov_b32 s20, 0x0c0c0400
s_mov_b32 s21, 0x04000c0c
s_getreg_b32 s43, hwreg(HW_REG_XCC_ID, 0, 4)
s_lshl_b32 s43, s43, 3
s_add_u32 s43, s43, s15
s_lshl_b32 s43, s43, 7
s_add_u32 s43, s43, {LOCOFF}
s_lshr_b32 s59, s2, 3
s_lshl_b32 s59, s59, 2
s_add_u32 s59, s59, s43
s_mov_b32 s11, 0x3f803f80
v_mov_b32 v{S1}, 0
v_mov_b32 v{S2}, 0
s_waitcnt lgkmcnt(0)
s_add_u32 s42, s42, 1
s_mul_i32 s12, s42, 0x01010101
v_mov_b32 v10, s12
s_cmp_eq_u32 s3, 0
s_cselect_b64 exec, 1, 0
buffer_store_dword v10, v9, s[52:55], s59 offen
s_mov_b64 exec, -1
s_waitcnt vmcnt({32 - NW})
""")
    for i in range(8):
        a(f"v_dot2_f32_bf16 v{S1}, v{X+i}, s11, v{S1}")
        a(f"v_dot2_f32_bf16 v{S2}, v{X+i}, v{X+i}, v{S2}")
    for n in (8, 4, 2, 1):
        a(f"v_add_f32_dpp v{S1}, v{S1}, v{S1} row_ror:{n} row_mask:0xf bank_mask:0xf")
        a(f"v_add_f32_dpp v{S2}, v{S2}, v{S2} row_ror:{n} row_mask:0xf bank_mask:0xf")
    a(f"""
v_mov_b32 v{T0}, v{S1}
v_mov_b32 v{T1}, v{S2}
v_permlane16_swap_b32 v{S1}, v{T0}
v_permlane16_swap_b32 v{S2}, v{T1}
v_add_f32 v{S1}, v{S1}, v{T0}
v_add_f32 v{S2}, v{S2}, v{T1}
""")
    stats_finish()
    normalize(X, X, 8, 20)
    a(f"""
s_mul_i32 s4, s3, {2*XRS}
v_mul_u32_u24 v2, {XRS}, v7
v_add3_u32 v2, v2, v4, s4
ds_write_b128 v2, v[{X}:{X+3}] offset:{XN}
ds_write_b128 v2, v[{X+4}:{X+7}] offset:{XN+512}
v_mul_u32_u24 v2, {XRS}, v6
v_lshl_add_u32 v2, v5, 4, v2
s_lshl_b32 s4, s9, 8
v_add_u32 v2, s4, v2
v_bfe_u32 v3, v1, 2, 2
v_lshl_add_u32 v3, v5, 3, v3
v_lshlrev_b32 v3, 7, v3
v_and_b32 v20, 3, v1
v_lshl_add_u32 v3, v20, 3, v3
s_lshl_b32 s4, s3, 5
v_add_u32 v24, s4, v3
s_waitcnt vmcnt(24) lgkmcnt(0)
""")
    lds_signal(FLG + 8)
    a(f"""
v_and_b32 v27, 31, v1
v_lshlrev_b32 v27, 2, v27
buffer_load_dword v150, v27, s[52:55], s43 offen nt
v_lshlrev_b32 v25, 4, v5
v_lshl_add_u32 v25, v6, 11, v25
s_lshr_b32 s4, s8, 1
s_lshl_b32 s4, s4, 5
s_add_u32 s4, s4, s9
s_lshl_b32 s4, s4, 1
s_and_b32 s5, s8, 1
s_add_u32 s4, s4, s5
s_lshl_b32 s4, s4, 2
s_add_u32 s4, s4, s3
s_lshl_b32 s4, s4, 6
s_add_u32 s72, s4, {QOFF}
s_mov_b32 s26, 0
""")
    lds_wait("L_xw", FLG + 8, 4)
    for t in range(4):
        a(f"ds_read_b128 v[{96+4*t}:{99+4*t}], v2 offset:{XN+64*t}")
        for u in range(2): a(f"ds_read_b64_tr_b16 v[{112+4*t+2*u}:{113+4*t+2*u}], v24 offset:{WQL+t*4096+u*512}")
    a("s_waitcnt lgkmcnt(0)")
    stamp(1)
    for t in range(4):
        a(f"v_mfma_f32_16x16x32_bf16 v[128:131], v[{112+4*t}:{115+4*t}], v[{96+4*t}:{99+4*t}], {'0' if t == 0 else 'v[128:131]'}")
    pack16(132, [128, 129, 130, 131], 10)
    if "cutq" in dbg: a("s_branch L_pre2")
    a(f"""
s_movk_i32 s58, {nloc}
L_lc:
s_waitcnt vmcnt(0)
v_cmp_ne_u32 vcc, s12, v150
s_cbranch_vccz L_lc_done
buffer_load_dword v150, v27, s[52:55], s43 offen nt
s_sub_u32 s58, s58, 1
s_cbranch_scc0 L_lc
s_mov_b32 s26, 1
L_lc_done:
{"s_mov_b32 s26, 1" if clean else ""}
{"s_and_b32 s26, s3, 1" if "mixw" in dbg else ""}
{"s_bfe_u32 s26, s2, 0x10003" if "mixj" in dbg else ""}
s_mov_b32 exec_lo, 0x00ff00ff
s_mov_b32 exec_hi, 0x00ff00ff
s_cmp_lg_u32 s26, 0
s_cbranch_scc1 L_qs_far
buffer_store_dwordx4 v[132:135], v25, s[52:55], s72 offen
L_qs_done:
s_mov_b64 exec, -1
""")
    if "cutp" in dbg: a("s_branch L_pre2")
    stamp(2)
    a(f"s_setprio {bgprio}")
    def woread(vr):
        for nt_ in range(4):
            for kk in range(4):
                for u in range(2):
                    r = WB + 16 * nt_ + 4 * kk + 2 * u
                    a(f"ds_read_b64_tr_b16 v[{r}:{r+1}], v{vr} offset:{WQL+16384+kk*4096+u*512+nt_*32}")
    if wolate is None: woread(3)
    else: a("v_mov_b32 v91, v3")
    a(f"""
s_lshr_b32 s4, s2, 5
s_mul_i32 s4, s4, {XRS}
v_lshl_add_u32 v2, v1, 4, s4
ds_read_b128 v[{HX}:{HX+3}], v2 offset:{XN}
v_mov_b32 v{S1}, 0
v_mov_b32 v{S2}, 0
s_waitcnt lgkmcnt(0)
""")
    for i in range(4):
        a(f"v_dot2_f32_bf16 v{S1}, v{HX+i}, s11, v{S1}")
        a(f"v_dot2_f32_bf16 v{S2}, v{HX+i}, v{HX+i}, v{S2}")
    for n in (8, 4, 2, 1):
        a(f"v_add_f32_dpp v{S1}, v{S1}, v{S1} row_ror:{n} row_mask:0xf bank_mask:0xf")
        a(f"v_add_f32_dpp v{S2}, v{S2}, v{S2} row_ror:{n} row_mask:0xf bank_mask:0xf")
    swaps_add(S1, T0); swaps_add(S2, T1)
    stats_finish()
    normalize(HX, HX, 4, 20)
    a(f"""
s_bitcmp1_b32 s2, 0
s_cselect_b64 vcc, -1, 0
s_bfe_u32 s4, s2, 0x30002
s_lshl_b32 s4, s4, 3
s_bfe_u32 s5, s2, 0x10001
s_add_u32 s4, s4, s5
v_cndmask_b32 v{HX}, v{HX}, v{HX+2}, vcc
v_cndmask_b32 v{HX+1}, v{HX+1}, v{HX+3}, vcc
""")
    for i in range(4):
        a(f"v_readlane_b32 s{72+2*i}, v{HX}, s4\nv_readlane_b32 s{73+2*i}, v{HX+1}, s4")
        if i < 3: a("s_add_u32 s4, s4, 2")
    a("s_waitcnt vmcnt(2)")
    for i in range(21): a(f"v_lshlrev_b32 v{W1+i}, 16, v{W1+i}")
    c0 = -2 * LOG2E * math.sqrt(2 / math.pi); c1 = c0 * 0.044715
    a(f"""
v_mov_b32 v{C1}, {f32(c1)}
s_lshl_b32 s4, s3, 6
v_mov_b32 v{YA}, s4
""")
    def mlp_steps(lo, hi):
        for d in range(lo, hi):
            if d & 1: a(f"s_and_b32 s4, s{72+(d>>1)}, 0xffff0000")
            else: a(f"s_lshl_b32 s4, s{72+(d>>1)}, 16")
            if "nomlp" not in dbg: a("s_call_b64 s[80:81], L_mlp")
            if wolate is not None and d in wolate: wodma(wolate.index(d), 90, 22, 23)
    mlp_steps(0, mlp1)
    a(f"""
s_setprio 3
s_lshr_b32 s4, s2, 5
s_lshl_b32 s4, s4, 11
s_lshl_b32 s5, s15, 2
s_add_u32 s5, s5, s3
s_lshl_b32 s5, s5, 14
s_add_u32 s4, s4, s5
s_add_u32 s6, s4, {QOFF}
v_lshlrev_b32 v2, 4, v1
s_cmp_lg_u32 s26, 0
s_cbranch_scc1 L_gq_far
""")
    def qpoll(sfx, fl):
        poll("L_gq" + sfx, [f"buffer_load_dwordx4 v[{96+4*k}:{99+4*k}], v2, s[52:55], s6 offen offset:{1024*k} {fl}" for k in range(2)],
             lambda: chk16([96, 100], 104, 12), sl=qslp)
    qpoll("", "nt")
    a("L_gq_got:")
    for i in range(8): a(f"v_and_b32 v{96+i}, 0xffffff00, v{96+i}")
    for i in range(4): a(f"v_add_f32 v{96+i}, v{96+i}, v{100+i}")
    a(f"""
s_lshl_b32 s4, s3, 8
v_and_b32 v2, 31, v1
v_lshl_add_u32 v2, v2, 3, s4
v_lshl_add_u32 v2, v7, 2, v2
v_permlane32_swap_b32 v96, v98
v_permlane32_swap_b32 v97, v99
v_add_f32 v96, v96, v98
v_add_f32 v97, v97, v99
v_cvt_pk_bf16_f32 v96, v96, v97
ds_write_b32 v2, v96 offset:{QL}
s_waitcnt lgkmcnt(0)
""")
    lds_signal(FLG + 4)
    stamp(3)
    if "cutg" in dbg: a("s_branch L_pre2")
    a(f"s_setprio {bgprio}")
    mlp_steps(mlp1, 16)
    a("s_waitcnt vmcnt(0) lgkmcnt(0)")
    lds_signal(FLG + 12)
    a(f"""
v_lshrrev_b32 v2, 2, v1
v_mul_u32_u24 v20, 144, v2
v_and_b32 v3, 3, v1
v_lshl_add_u32 v20, v3, 5, v20
s_lshl_b32 s4, s3, 2
s_add_u32 s4, s4, {OP}
v_add_u32 v20, s4, v20
v_add_u32 v21, 2304, v20
v_add_u32 v22, 4608, v20
v_add_u32 v23, 6912, v20
s_lshl_b32 s4, s3, 3
v_mov_b32 v24, s4
v_lshrrev_b32 v25, 5, v1
v_lshlrev_b32 v25, 7, v25
v_bfe_u32 v2, v1, 4, 1
v_lshl_add_u32 v25, v2, 11, v25
v_bfe_u32 v2, v1, 1, 1
v_lshl_add_u32 v25, v2, 10, v25
v_bfe_u32 v2, v1, 2, 2
v_lshl_add_u32 v25, v2, 8, v25
v_and_b32 v2, 1, v1
v_lshl_add_u32 v25, v2, 3, v25
v_lshlrev_b32 v26, 4, v1
v_and_b32 v2, 1, v5
v_lshl_add_u32 v27, v2, 2, v3
v_lshlrev_b32 v27, 4, v27
v_lshlrev_b32 v28, {6 if h2full else 16}, v2
v_bfe_u32 v2, v1, 2, 2
v_lshl_add_u32 v28, v2, {12 if h2full else 11}, v28
v_lshl_add_u32 v28, v3, 4, v28
v_lshrrev_b32 v19, 2, v1
v_lshlrev_b32 v19, {7 if h2full else 6}, v19
v_lshl_add_u32 v19, v3, 4, v19
s_lshl_b32 s4, s15, 2
s_add_u32 s4, s4, s3
s_lshl_b32 s4, s4, 2
s_add_u32 s4, s4, s9
s_mul_i32 s4, s4, {H1S}
s_bfe_u32 s5, s2, 0x30003
s_lshl_b32 s5, s5, 4
s_add_u32 s4, s4, s5
s_add_u32 s6, s4, {H1OFF}
s_lshl_b32 s4, s13, 2
s_add_u32 s4, s4, s3
s_mul_i32 s4, s4, {H1S}
s_add_u32 s7, s4, {H1OFF}
s_lshl_b32 s4, s3, {5 if h2full else 6}
s_lshl_b32 s5, s14, 2
s_add_u32 s4, s4, s5
s_lshl_b32 s4, s4, {12 if h2full else 11}
s_lshl_b32 s5, s13, {7 if h2full else 6}
s_add_u32 s4, s4, s5
s_add_u32 s8, s4, {H2OFF}
""")
    if not h2full: a("s_lshl_b32 s9, s2, 11")
    else: a("""
s_lshr_b32 s9, s2, 6
s_lshl_b32 s9, s9, 5
s_and_b32 s4, s2, 31
s_add_u32 s9, s9, s4
s_lshl_b32 s9, s9, 12
s_bfe_u32 s4, s2, 0x10005
s_lshl_b32 s4, s4, 6
s_add_u32 s9, s9, s4
""")
    h2l = [f"buffer_load_dwordx4 v[{136+4*k}:{139+4*k}], v19, s[52:55], s9 offen offset:{(2048 if h2full else 1024)*k} sc1" for k in range(2)]
    a(f"""
s_add_u32 s9, s9, {H2OFF}
""")
    if wolate is not None:
        lds_wait("L_yw", FLG + 12, 4); woread(91)
    a("""
s_cmp_lg_u32 s3, 0
s_cbranch_scc1 L_ready
""")
    if wolate is None: lds_wait("L_yw", FLG + 12, 4)
    if h2pre:
        for l in h2l: a(l)
    a(f"""
v_lshl_add_u32 v2, v5, 2, v3
v_lshlrev_b32 v2, 2, v2
ds_read_b32 v32, v2 offset:{YP}
ds_read_b32 v33, v2 offset:{YP+64}
ds_read_b32 v34, v2 offset:{YP+128}
ds_read_b32 v35, v2 offset:{YP+192}
v_lshlrev_b32 v31, 16, v31
s_waitcnt lgkmcnt(0)
v_add_f32 v32, v32, v33
v_add_f32 v34, v34, v35
v_add_f32 v32, v32, v34
v_cvt_pk_bf16_f32 v32, v32, v32
v_lshlrev_b32 v32, 16, v32
v_add_f32 v32, v32, v31
v_cvt_pk_bf16_f32 v32, v32, v32
v_lshlrev_b32 v32, 16, v32
v_mul_f32 v34, {f32(-LOG2E)}, v32
v_exp_f32 v34, v34
v_add_f32 v34, 1.0, v34
v_rcp_f32 v34, v34
v_mul_f32 v32, v32, v34
v_cvt_pk_bf16_f32 v32, v32, v32
v_lshlrev_b32 v16, 16, v32
v_lshlrev_b32 v14, 16, v29
L_ready:
""")
    if "cuts" in dbg: a("s_branch L_pre2")
    lds_wait("L_sw", FLG + 16, 4, sl=8)
    a(f"""
ds_read_b64 v[32:33], v24 offset:{ST}
ds_read_b64 v[34:35], v24 offset:{ST+32}
ds_read_b64 v[36:37], v24 offset:{ST+64}
ds_read_b64 v[38:39], v24 offset:{ST+96}
s_waitcnt lgkmcnt(0)
v_max3_f32 v48, v32, v34, v36
v_max_f32 v48, v48, v38
v_sub_f32 v32, v32, v48
v_sub_f32 v34, v34, v48
v_sub_f32 v36, v36, v48
v_sub_f32 v38, v38, v48
v_exp_f32 v32, v32
v_exp_f32 v34, v34
v_exp_f32 v36, v36
v_exp_f32 v38, v38
v_mov_b32 v49, v10
v_mov_b32 v51, v10
v_mul_f32 v50, v32, v33
v_fmac_f32 v50, v34, v35
v_fmac_f32 v50, v36, v37
v_fmac_f32 v50, v38, v39
v_mov_b32 v53, v10
s_mov_b64 exec, 1
s_cmp_lg_u32 s26, 0
s_cbranch_scc1 L_st_far
buffer_store_dwordx4 v[48:51], v9, s[52:55], s6 offen
s_mov_b64 exec, -1
""")
    poll("L_sp", [f"buffer_load_dwordx4 v[40:43], v27, s[52:55], s7 offen {h1fl}"], lambda: chk8([41, 43], 80), sl=8)
    a(f"""
s_branch L_st_done
L_st_far:
buffer_store_dwordx4 v[48:51], v9, s[52:55], s6 offen sc1
s_mov_b64 exec, -1
""")
    poll("L_spx", ["buffer_load_dwordx4 v[40:43], v27, s[52:55], s7 offen sc1"], lambda: chk8([41, 43], 80), sl=8)
    a("L_st_done:")
    a("""
v_max_f32_dpp v44, v40, v40 quad_perm:[1,0,3,2] row_mask:0xf bank_mask:0xf
v_max_f32_dpp v45, v44, v44 quad_perm:[2,3,0,1] row_mask:0xf bank_mask:0xf
v_sub_f32 v40, v40, v45
v_exp_f32 v40, v40
v_mul_f32 v42, v40, v42
v_add_f32_dpp v44, v42, v42 quad_perm:[1,0,3,2] row_mask:0xf bank_mask:0xf
v_add_f32_dpp v45, v44, v44 quad_perm:[2,3,0,1] row_mask:0xf bank_mask:0xf
v_rcp_f32 v45, v45
v_mul_f32 v40, v40, v45
v_mov_b32_dpp v56, v40 quad_perm:[0,0,0,0] row_mask:0xf bank_mask:0xf
v_mov_b32_dpp v57, v40 quad_perm:[1,1,1,1] row_mask:0xf bank_mask:0xf
v_mov_b32_dpp v58, v40 quad_perm:[2,2,2,2] row_mask:0xf bank_mask:0xf
v_mov_b32_dpp v59, v40 quad_perm:[3,3,3,3] row_mask:0xf bank_mask:0xf
L_pre2:
s_setprio 3
s_waitcnt vmcnt(0) lgkmcnt(0)
""")
    stamp(4)
    a("s_barrier")
    if isinstance(dbgt, str): a("s_memrealtime s[92:93]")
    if prof: a("s_waitcnt lgkmcnt(0)")
    if "notail" in dbg:
        stamp(5); stamp(6); a("s_branch L_hend")
    if tailprof: stamp(1); a("s_waitcnt lgkmcnt(0)")
    a(f"""
ds_read2_b32 v[40:41], v20 offset0:0 offset1:4
ds_read2_b32 v[42:43], v21 offset0:0 offset1:4
ds_read2_b32 v[44:45], v22 offset0:0 offset1:4
ds_read2_b32 v[46:47], v23 offset0:0 offset1:4
s_waitcnt lgkmcnt(2)
v_mul_f32 v40, v32, v40
v_mul_f32 v41, v32, v41
v_fmac_f32 v40, v34, v42
v_fmac_f32 v41, v34, v43
s_waitcnt lgkmcnt(0)
v_mul_f32 v44, v36, v44
v_mul_f32 v45, v36, v45
v_fmac_f32 v40, v38, v46
v_fmac_f32 v41, v38, v47
v_add_f32 v40, v40, v44
v_add_f32 v41, v41, v45
s_cmp_lg_u32 s26, 0
v_cvt_pk_bf16_f32 v52, v40, v41
s_cbranch_scc1 L_h1_far
buffer_store_dwordx2 v[52:53], v25, s[52:55], s6 offen offset:128
""")
    stamp(5)
    def h1poll(sfx, fl, pipe):
        full = [f"buffer_load_dwordx4 v[{64+4*k}:{67+4*k}], v26, s[52:55], s7 offen offset:{128+k*1024} {fl}" for k in range(4)]
        poll("L_h1" + sfx, full, lambda: chk8([65, 67, 69, 71, 73, 75, 77, 79], 80), st=4, pipe=pipe, stag=stag1)
    h1poll("", h1fl, pipe1)
    a("L_h1_got:")
    stamp(6)
    AO = 96; DD = 112
    if h2late: a(f"s_mov_b64 exec, 1\nds_add_rtn_u32 v54, v9, v11 offset:{FLG+24}\ns_mov_b64 exec, -1")
    def mv(kk, p):
        src = 64 + 8 * (kk & 1) + 2 * p
        if kk >= 2: a(f"v_mov_b32_dpp v{AO+4*kk+p}, v{src} row_ror:8 row_mask:0xf bank_mask:0xf")
        else: a(f"v_mov_b32 v{AO+4*kk+p}, v{src}")
    for p in range(4): mv(0, p)
    for kk in range(4):
        for nt_ in range(4):
            d = DD + 4 * nt_; b = WB + 16 * nt_ + 4 * kk
            if kk < 3 and nt_ < 2: mv(kk + 1, 2 * nt_); mv(kk + 1, 2 * nt_ + 1)
            a(f"v_mfma_f32_16x16x32_bf16 v[{d}:{d+3}], v[{AO+4*kk}:{AO+4*kk+3}], v[{b}:{b+3}], {'0' if kk == 0 else f'v[{d}:{d+3}]'}")
    GO = 128
    if h2late: a("s_waitcnt lgkmcnt(0)\nv_readfirstlane_b32 s59, v54")
    for t in range(4):
        a(f"v_mul_f32 v{GO+t}, v56, v{DD+4*t}")
        a(f"v_mul_f32 v{GO+4+t}, v58, v{DD+4*t+2}")
    for t in range(4):
        a(f"v_fmac_f32 v{GO+t}, v57, v{DD+4*t+1}")
        a(f"v_fmac_f32 v{GO+4+t}, v59, v{DD+4*t+3}")
    for t in range(4): a(f"v_add_f32 v{GO+t}, v{GO+t}, v{GO+4+t}")
    pack16(GO, [GO, GO + 1, GO + 2, GO + 3], 10)
    if h2late:
        a("s_cmp_eq_u32 s59, 3\ns_cbranch_scc1 L_hl_done")
        lds_wait("L_hl", FLG + 24, 4)
    a(f"s_mov_b64 exec, 0xffffffff\nbuffer_store_dwordx4 v[{GO}:{GO+3}], v28, s[52:55], s8 offen sc1")
    if tailprof: stamp(2)
    if h2sync and not h2late: lds_signal(FLG + 24)
    a(f"""
s_mov_b64 exec, -1
s_cmp_lg_u32 s3, 0
s_cbranch_scc1 L_hend
""")
    if h2sync and not h2late: lds_wait("L_hw", FLG + 24, 4)
    if h2ack: a("s_waitcnt vmcnt(0)")
    poll("L_h2", h2l, lambda: chk16([136, 140], 56, 12), st=3, pipe=pipe2, stag=stag2, sl=slp2)
    for i in range(8): a(f"v_and_b32 v{48+i}, 0xffffff00, v{136+i}")
    for i in range(4): a(f"v_add_f32 v{48+i}, v{48+i}, v{52+i}")
    a(f"""
v_permlane32_swap_b32 v48, v50
v_permlane32_swap_b32 v49, v51
v_add_f32 v48, v48, v50
v_add_f32 v49, v49, v51
v_permlane16_swap_b32 v48, v49
v_add_f32 v48, v48, v49
v_add_f32_dpp v48, v48, v48 row_ror:4 row_mask:0xf bank_mask:0xf
v_add_f32_dpp v48, v48, v48 row_ror:8 row_mask:0xf bank_mask:0xf
s_mov_b32 exec_lo, 0x000f000f
s_mov_b32 exec_hi, 0x000f000f
v_cvt_pk_bf16_f32 v48, v48, v48
v_lshlrev_b32 v48, 16, v48
v_mul_f32 v48, v48, v16
v_cvt_pk_bf16_f32 v48, v48, v48
v_lshlrev_b32 v48, 16, v48
v_add_f32 v48, v48, v14
v_cvt_pk_bf16_f32 v48, v48, v48
buffer_store_short v48, v30, s[64:67], s10 offen {"sc1" if clean else ""}
s_mov_b64 exec, 1
s_cmp_lg_u32 s2, 0
s_cbranch_scc1 L_hend
v_mov_b32 v10, s42
buffer_store_dword v10, v9, s[52:55], 0 offen sc1
L_hend:
""")
    stamp(7)
    a("s_waitcnt vmcnt(0)")
    if isinstance(dbgt, str):
        AMP = 96 << 20
        def red(op, r, steps, t=70):
            for n in steps:
                if n < 16: a(f"{op}_dpp v{r}, v{r}, v{r} row_ror:{n} row_mask:0xf bank_mask:0xf")
                else: a(f"v_mov_b32 v{t}, v{r}\nv_permlane{n}_swap_b32 v{r}, v{t}\n{op} v{r}, v{r}, v{t}")
        a(f"""
s_cmp_lg_u32 s3, 0
s_cbranch_scc1 L_dbgt
s_memrealtime s[88:89]
s_mov_b64 exec, 1
s_waitcnt lgkmcnt(0)
v_mov_b32 v12, s84
v_mov_b32 v13, s92
v_mov_b32 v14, s88
v_mov_b32 v15, s12
s_lshl_b32 s59, s2, 4
s_add_u32 s59, s59, {AMP}
buffer_store_dwordx4 v[12:15], v9, s[52:55], s59 offen sc1
s_waitcnt vmcnt(0)
s_mov_b64 exec, -1
s_cmp_lg_u32 s2, 0
s_cbranch_scc1 L_dbgt
v_lshlrev_b32 v2, 4, v1
s_mov_b32 s6, {AMP}
""")
        poll("L_amp", [f"buffer_load_dwordx4 v[{40+4*k}:{43+4*k}], v2, s[52:55], s6 offen offset:{1024*k} sc1" for k in range(4)], lambda: chk8([43, 47, 51, 55], 80), sl=8)
        for k in range(4):
            for c in range(3): a(f"v_subrev_u32 v{40+4*k+c}, s84, v{40+4*k+c}")
        ALL = [8, 4, 2, 1, 16, 32]
        def stat(op, c, dst, steps=ALL):
            a(f"{op} v{dst}, v{40+c}, v{44+c}\n{op} v71, v{48+c}, v{52+c}\n{op} v{dst}, v{dst}, v71")
            red(op, dst, steps)
        stat("v_min_i32", 0, 60)
        if dbgt == "startmax": stat("v_max_i32", 0, 61)
        if dbgt == "bmin": stat("v_min_i32", 1, 61)
        if dbgt == "bmax": stat("v_max_i32", 1, 61)
        if dbgt == "emax": stat("v_max_i32", 2, 61)
        if dbgt == "bmean": stat("v_add_u32", 1, 61); a("v_ashrrev_i32 v61, 8, v61")
        if dbgt == "xs":
            stat("v_add_u32", 1, 61, [8, 16, 32]); a("v_ashrrev_i32 v61, 5, v61\nv_mov_b32 v60, v61")
            red("v_max_i32", 61, [4, 2, 1]); red("v_min_i32", 60, [4, 2, 1])
        a(f"""
v_sub_u32 v61, v61, v60
s_nop 1
v_readfirstlane_b32 s59, v61
s_mul_i32 s59, s59, 10
s_add_u32 s59, s59, 5000
s_min_u32 s59, s59, 100000
L_dbgs:
s_memrealtime s[90:91]
s_waitcnt lgkmcnt(0)
s_sub_u32 s58, s90, s84
s_cmp_lt_u32 s58, s59
s_cbranch_scc1 L_dbgs
L_dbgt:
""")
    elif dbgt == 2:
        a(f"""
s_or_b32 s59, s2, s3
s_cmp_lg_u32 s59, 0
s_cbranch_scc1 L_dbgt
s_memrealtime s[88:89]
s_waitcnt lgkmcnt(0)
s_sub_u32 s59, s88, s84
s_mul_i32 s59, s59, 10
s_min_u32 s59, s59, 100000
L_dbgs:
s_memrealtime s[90:91]
s_waitcnt lgkmcnt(0)
s_sub_u32 s58, s90, s88
s_cmp_lt_u32 s58, s59
s_cbranch_scc1 L_dbgs
L_dbgt:
""")
    elif dbgt:
        a(f"""
s_memrealtime s[88:89]
s_memtime s[90:91]
s_mov_b32 s44, s38
s_mov_b32 s45, s39
s_mov_b32 s46, 256
s_mov_b32 s47, 0x20000
s_mov_b64 exec, 1
s_waitcnt lgkmcnt(0)
s_not_b32 s59, s84
v_mov_b32 v12, s88
v_mov_b32 v13, s59
buffer_atomic_umax v12, v9, s[44:47], 0 offen sc1
buffer_atomic_umax v13, v9, s[44:47], 0 offen offset:4 sc1
s_cmp_lg_u32 s3, 0
s_cbranch_scc1 L_dbgt
s_and_b32 s59, s2, 0x7f
s_cmp_lg_u32 s59, 0
s_cbranch_scc1 L_dbgt
s_lshr_b32 s59, s2, 3
v_mov_b32 v12, s84
v_mov_b32 v13, s88
v_mov_b32 v14, s86
v_mov_b32 v15, s90
buffer_store_dwordx4 v[12:15], v9, s[44:47], s59 offen offset:16 sc1
L_dbgt:
s_waitcnt vmcnt(0)
""")
    if prof:
        a(f"""
s_mov_b64 exec, 1
s_sleep 127
s_waitcnt lgkmcnt(0)
s_lshl_b32 s59, s2, 3
s_add_u32 s59, s59, s3
s_add_u32 s59, s59, 4
s_lshl_b32 s59, s59, 6
s_add_u32 s59, s59, {STAMP}
""")
        for i in range(0, 8):
            a(f"v_mov_b32 v12, s{84+2*i}\nv_mov_b32 v13, s{85+2*i}\nbuffer_store_dwordx2 v[12:13], v9, s[52:55], s59 offen offset:{8*i}\ns_waitcnt vmcnt(0)")
    a("""L_end:
s_endpgm
L_h1_far:
buffer_store_dwordx2 v[52:53], v25, s[52:55], s6 offen offset:128 sc1
""")
    h1poll("x", "sc1", 1)
    a("s_branch L_h1_got")
    a("L_qs_far:\nbuffer_store_dwordx4 v[132:135], v25, s[52:55], s72 offen sc1\ns_branch L_qs_done\nL_gq_far:")
    qpoll("x", "sc1")
    a("s_branch L_gq_got")
    if fc:
        a("L_cb:\ns_waitcnt lgkmcnt(0)\ns_mov_b32 s71, 0")
        for i in range(8): a(f"s_cmp_lg_u32 s{4+i}, s73\ns_addc_u32 s71, s71, 0")
        if not fc.get("wg"):
            a(f"""
s_cmp_lt_u32 s71, {fc['th1']}
s_cselect_b32 s62, 2, 0
s_cmp_ge_u32 s71, {fc['th2']}
s_cselect_b32 s62, 1, s62
""")
            if prof: a("s_lshl_b64 s[82:83], s[82:83], 2\ns_or_b32 s82, s82, s62")
            a("s_setpc_b64 s[80:81]")
        else:
            bias = 16 * fc["CW"]
            a(f"""
s_mul_i32 s74, s71, {fc.get('kx', 0)}
{"s_lshl_b64 s[82:83], s[82:83], 4" if prof and fc.get("tm") else ""}
{"s_or_b32 s82, s82, s71" if prof and fc.get("tm") else ""}
s_branch L_cc
L_cw:
v_add_u32_dpp v85, v85, v85 row_ror:4 row_mask:0xf bank_mask:0xf
v_add_u32_dpp v85, v85, v85 row_ror:2 row_mask:0xf bank_mask:0xf
v_add_u32_dpp v85, v85, v85 row_ror:1 row_mask:0xf bank_mask:0xf
v_readfirstlane_b32 s69, v85
s_sub_u32 s75, s68, s69
s_sub_u32 s75, s75, {bias}
L_cc:
s_add_u32 s68, s75, s74
s_cmp_lt_i32 s68, {-fc['b']}
s_cselect_b32 s62, 2, 0
s_cmp_gt_i32 s68, {fc['a']}
s_cselect_b32 s62, 1, s62
""")
            if prof and not fc.get("tm"): a("s_lshl_b64 s[82:83], s[82:83], 2\ns_or_b32 s82, s82, s62")
            a("s_setpc_b64 s[80:81]")
    a("L_mlp:")
    for t in range(7): a(f"v_fma_f32 v{U+t}, s4, v{W1+t}, v{B1+t}")
    for t in range(7): a(f"v_mul_f32 v{AA+t}, v{U+t}, v{U+t}")
    for t in range(7): a(f"v_fmaak_f32 v{AA+t}, v{AA+t}, v{C1}, {f32(c0)}")
    for t in range(7): a(f"v_mul_f32 v{AA+t}, v{AA+t}, v{U+t}")
    for t in range(7): a(f"v_exp_f32 v{EE+t}, v{AA+t}")
    for t in range(7): a(f"v_mul_f32 v{U+t}, v{U+t}, v{W2+t}")
    for t in range(7): a(f"v_add_f32 v{EE+t}, 1.0, v{EE+t}")
    for t in range(7): a(f"v_rcp_f32 v{EE+t}, v{EE+t}")
    a(f"v_mul_f32 v{ACC2}, v{U}, v{EE}")
    a(f"v_mul_f32 v{AA}, v{U+1}, v{EE+1}")
    for t in range(2, 7): a(f"v_fmac_f32 v{ACC2 if t % 2 == 0 else AA}, v{U+t}, v{EE+t}")
    a(f"v_add_f32 v{ACC2}, v{ACC2}, v{AA}")
    for n in (8, 4, 2, 1): a(f"v_add_f32_dpp v{ACC2}, v{ACC2}, v{ACC2} row_ror:{n} row_mask:0xf bank_mask:0xf")
    swaps_add(ACC2, AA)
    a(f"""
s_mov_b64 exec, 1
ds_write_b32 v{YA}, v{ACC2} offset:{YP}
s_mov_b64 exec, -1
v_add_u32 v{YA}, 4, v{YA}
s_setpc_b64 s[80:81]
""")
    body = a.render()
    if "allsc1st" in dbg:
        import re
        body = re.sub(r"(buffer_store_dwordx[24] v\[\d+:\d+\], v\d+, s\[52:55\], s(6|72) offen( offset:128)?)\n", r"\1 sc1\n", body)
    if "allsc1ld" in dbg:
        import re
        body = re.sub(r"(buffer_load_dwordx4 v\[\d+:\d+\], v\d+, s\[52:55\], s[67] offen( offset:\d+)?) nt\n", r"\1 sc1\n", body)
    txt = HDR + f"""; @launch grid=(256,1,1) block=(512,1,1) lds={LDSZ}
.amdgcn_target "amdgcn-amd-amdhsa--gfx950"
.text
.globl {KN}_kernel
.p2align 8
.type {KN}_kernel,@function
{KN}_kernel:
""" + body + f""".section .rodata,"a"
.p2align 6
.amdhsa_kernel {KN}_kernel
  .amdhsa_next_free_vgpr 256
  .amdhsa_next_free_sgpr 102
  .amdhsa_accum_offset 256
  .amdhsa_group_segment_fixed_size 0
  .amdhsa_kernarg_size 104
  .amdhsa_user_sgpr_count 2
  .amdhsa_user_sgpr_kernarg_segment_ptr 1
  .amdhsa_system_sgpr_workgroup_id_x 1
.end_amdhsa_kernel
"""
    open(fname, "w").write(txt)
if __name__ == "__main__":
    import glob, os
    for f in glob.glob("kp_*.s"): os.remove(f)
    gen("k1.s", mlp1=4, slp=0)
    kw = dict(prof=True, tailprof=True, mlp1=4, slp=0, rq=1, wolate=[5, 7, 9, 11])
    gen("kp_00.s", **kw)
    F = dict(wg=1, x=1, G=2, kx=24, a=64, b=-16, W=(4,6,12), d=6, C=3, CW=2)
    gen("kp_01.s", fc=F, **kw)
    gen("kp_02_nowork.s", fc=F, dbg="nok nosm nov", **kw)
    gen("kp_03_nosm.s", fc=F, dbg="nosm", **kw)
    gen("kp_04_nowq.s", fc=F, dbg="nowq", **kw)
    gen("kp_05_nowork_nowq.s", fc=F, dbg="nok nosm nov nowq", **kw)
    gen("kp_06_nowork_nowq_nomlp.s", fc=F, dbg="nok nosm nov nowq nomlp", **kw)
    gen("kp_07_nofc_nowork.s", dbg="nok nosm nov", **kw)
    gen("kp_08_nofc_nowork_nowq.s", dbg="nok nosm nov nowq", **kw)
```

```python
import sys, struct, math
from asmlib import Asm
KN = "recurrent_scan__gqa_block_cached__mixer_token_mlp__decode"
def f32(x): return "0x%08x" % struct.unpack("<I", struct.pack("<f", x))[0]
LOG2E = 1.4426950408889634
FLG = 0; QL = 64; ST = QL + 1024; YP = ST + 128; OP = YP + 256; XN = OP + 4 * 2304; XRS = 1040; WQL = XN + 8 * XRS; KL = WQL + 32768
QOFF = 64 << 10; H1OFF = QOFF + (1 << 20); H1S = 4224; H2OFF = H1OFF + (640 << 10); BD = 4 << 20; PGOFF = 8 << 10; STAMP = 128 << 20
HDR = open("cdna_kernels/" + KN + ".s.ref").read().split("; Override launch")[0]

def gen(fname, WIN=6, G=2, RING=40, prof=False, wo_thr=4, ntw="", woflags="", spin=400000, dbg="", WPS=1, dry=False, tailprof=False, NLT=6, slp=2, wqdma=True, sprio=2, bgprio=0, mlp1=8, local=True, fb=31, deferB=True, pretouch=False, pat=None, pat2=None, rot=None, cmap=0, light=False, lslp=0, h1fl='nt', h2sync=True, fc=None, est=None, rq=0, ro=0, sE=True, wolate=None, n0=64, pipe1=1, pipe2=1, stag1=3, stag2=3, h2late=True, h2ack=True, h2pre=False, h2full=False, slp2=0, dbgt=False, dirty=0, clean=False, qfl='sc1', qslp=None):
    a = Asm()
    LDSZ = KL + 4 * NLT * 4096
    NLL = 4 * NLT
    NST = 8
    def stamp(i):
        if prof: a(f"s_memrealtime s[{84+2*i}:{85+2*i}]")
    a(f"""
s_cmp_ge_u32 s2, 256
s_cbranch_scc1 L_end
""")
    stamp(0)
    if dbgt: a("s_memrealtime s[84:85]\ns_memtime s[86:87]")
    a(f"""
s_load_dwordx16 s[16:31], s[0:1], 0
s_load_dwordx8 s[32:39], s[0:1], 64
s_load_dwordx2 s[40:41], s[0:1], 96
v_and_b32 v1, 63, v0
v_lshrrev_b32 v2, 6, v0
v_and_b32 v3, 15, v0
v_lshlrev_b32 v3, 2, v3
v_mov_b32 v4, 0
v_readfirstlane_b32 s3, v2
ds_write_b32 v3, v4
s_waitcnt lgkmcnt(0)
s_cmp_ge_u32 s3, 4
s_cbranch_scc1 L_helper
""")
    a(f"""
s_setprio {sprio}
s_mov_b32 s44, s18
s_mov_b32 s45, s19
s_mov_b32 s46, 0x4000000
s_mov_b32 s47, 0x20000
s_mov_b32 s48, s20
s_mov_b32 s49, s21
s_mov_b32 s50, 0x4000000
s_mov_b32 s51, 0x20000
s_and_b32 s52, s2, 7
s_lshl_b32 s52, s52, 2
s_bfe_u32 s53, s2, 0x20003
s_add_u32 s52, s52, s53
s_andn2_b32 s53, s2, 31
s_add_u32 s52, s52, s53
s_lshl_b32 s52, s52, 18
s_lshl_b32 s53, s3, 12
s_add_u32 s52, s52, s53
s_mul_i32 s60, s3, {NLT*4096}
s_add_u32 s60, s60, {KL}
v_lshrrev_b32 v5, 4, v1
v_bfe_u32 v6, v1, 2, 2
v_and_b32 v7, 3, v1
v_lshlrev_b32 v2, 8, v6
v_lshl_add_u32 v2, v5, 6, v2
v_lshl_add_u32 v2, v7, 4, v2
v_lshlrev_b32 v3, 4, v1
""")
    if fc:
        a(f"""
s_load_dword s73, s[40:41], 0
s_mov_b32 s76, s40
s_mov_b32 s77, s41
s_mov_b32 s78, 0x10000000
s_mov_b32 s79, 0x20000
s_lshr_b32 s64, s2, 3
s_cmp_eq_u32 s3, 0
s_cselect_b32 s64, s64, 64
s_and_b32 s65, s2, 7
s_lshl_b32 s65, s65, 2
v_mov_b32 v83, s65
s_mov_b32 s62, {fc.get('l0', 0)}
s_mov_b64 s[82:83], 0
s_mov_b32 s12, s38
s_mov_b32 s13, s39
s_mov_b32 s14, 256
s_mov_b32 s15, 0x20000
s_getreg_b32 s66, hwreg(HW_REG_XCC_ID, 0, 3)
s_lshl_b32 s66, s66, 5
s_lshr_b32 s67, s2, 3
s_add_u32 s67, s67, s66
v_mov_b32 v88, s67
v_and_b32 v87, 7, v1
v_lshl_add_u32 v87, v87, 2, s66
s_mov_b32 s74, 0
s_mov_b32 s75, 0
s_cmp_eq_u32 s3, 0
s_cselect_b64 vcc, 1, 0
""")
    if cmap == 1: a("s_lshl_b32 s52, s2, 18\ns_lshl_b32 s53, s3, 12\ns_add_u32 s52, s52, s53")
    if rot is not None: a(rot + "\ns_and_b32 s61, s61, 15\ns_lshl_b32 s61, s61, 14")
    RB = 256 - RING * 4
    def rreg(n): return RB + ((n - NLL) % RING) * 4
    NL = 128
    st = {"tile": None}
    def issue(n):
        isv = n >= 64; t = (n & 63) >> 2; q = n & 3
        if st["tile"] != (isv, t):
            st["tile"] = (isv, t)
            if rot is None: a(f"s_add_u32 s53, s52, {t*16384}")
            else: a(f"s_add_u32 s53, s61, {t*16384}\ns_and_b32 s53, s53, 0x3ffff\ns_add_u32 s53, s53, s52")
            if n < NLL: a(f"s_add_u32 m0, s60, {t*4096}\ns_nop 0")
        if n < NLL:
            a(f"buffer_load_dwordx4 v2, s[44:47], s53 offen offset:{q*1024} nt lds"); return
        r = rreg(n)
        a(f"buffer_load_dwordx4 v[{r}:{r+3}], {'v3' if isv else 'v2'}, {'s[48:51]' if isv else 's[44:47]'}, s53 offen offset:{q*1024} nt")
    QB = 8; Y = 12; ACC = 28; DT = 28; TT = 44; PT = 60; PA = 76; M = 80
    def setup_consts():
        a(f"""
s_mov_b32 s54, 0x05040100
s_mov_b32 s55, 0x07060302
s_mov_b32 s56, {f32(128**-0.5)}
s_mov_b32 s57, {f32(LOG2E)}
v_lshlrev_b32 v4, 8, v7
v_lshl_add_u32 v4, v5, 6, v4
v_lshl_add_u32 v4, v6, 4, v4
v_mov_b32 v84, 0
v_add_u32 v86, s60, v3
""")
    def wait_q():
        stamp(1)
        if "noq" in dbg:
            a(f"ds_read_b128 v[{QB}:{QB+3}], v4 offset:{QL}\ns_waitcnt lgkmcnt(0)"); stamp(2); return
        a(f"""
s_mov_b32 s58, {spin*8}
L_sq:
ds_read_b32 v85, v84 offset:{FLG+4}
s_waitcnt lgkmcnt(0)
v_readfirstlane_b32 s59, v85
s_sub_u32 s58, s58, 1
s_cbranch_scc1 L_sq_done
s_cmp_ge_u32 s59, 4
s_cbranch_scc1 L_sq_done
s_sleep 1
s_branch L_sq
L_sq_done:
ds_read_b128 v[{QB}:{QB+3}], v4 offset:{QL}
s_waitcnt lgkmcnt(0)
""")
        stamp(2)
        if prof: a("s_waitcnt lgkmcnt(0)")
    def ktile(t):
        if t < NLT:
            for q in range(4): a(f"ds_read_b128 v[{PT+4*q}:{PT+4*q+3}], v86 offset:{t*4096+q*1024}")
        for q in range(4):
            r = rreg(4 * t + q) if t >= NLT else PT + 4 * q
            if t < NLT: a(f"s_waitcnt lgkmcnt({3-q})")
            a(f"v_mfma_f32_16x16x32_bf16 v[{DT+4*q}:{DT+4*q+3}], v[{r}:{r+3}], v[{QB}:{QB+3}], 0")
        for c in range(4):
            for r in range(4):
                n = 4 * ((c - r) % 4)
                ctl = f"row_ror:{n}" if n else "quad_perm:[0,1,2,3]"
                a(f"v_mov_b32_dpp v{TT+r}, v{DT+4*c+r} {ctl} row_mask:0xf bank_mask:{hex(1<<c)}")
        y = Y + t
        a(f"""
v_add_f32 v{TT}, v{TT}, v{TT+1}
v_add_f32 v{TT+2}, v{TT+2}, v{TT+3}
v_add_f32 v{y}, v{TT}, v{TT+2}
v_cvt_pk_bf16_f32 v{y}, v{y}, v{y}
v_lshlrev_b32 v{y}, 16, v{y}
v_mul_f32 v{y}, s56, v{y}
v_cvt_pk_bf16_f32 v{y}, v{y}, v{y}
v_lshlrev_b32 v{y}, 16, v{y}
""")
    def xlane(op, r, t):
        a(f"""
{op}_dpp v{r}, v{r}, v{r} row_ror:4 row_mask:0xf bank_mask:0xf
""") if op != "v_add_f32" else a(f"""
v_add_f32_dpp v{r}, v{r}, v{r} row_ror:4 row_mask:0xf bank_mask:0xf
""")
        a(f"""
{op}_dpp v{r}, v{r}, v{r} row_ror:8 row_mask:0xf bank_mask:0xf
v_mov_b32 v{t}, v{r}
v_permlane16_swap_b32 v{r}, v{t}
{op} v{r}, v{r}, v{t}
v_mov_b32 v{t}, v{r}
v_permlane32_swap_b32 v{r}, v{t}
{op} v{r}, v{r}, v{t}
""")
    def softmax():
        m = M; l = M + 1; t = M + 2
        a(f"v_max3_f32 v{m}, v{Y}, v{Y+1}, v{Y+2}")
        for i in range(3, 15, 2): a(f"v_max3_f32 v{m}, v{m}, v{Y+i}, v{Y+i+1}")
        a(f"v_max_f32 v{m}, v{m}, v{Y+15}")
        xlane("v_max_f32", m, t)
        a(f"v_mul_f32 v{m}, s57, v{m}")
        for i in range(16): a(f"v_fma_f32 v{Y+i}, v{Y+i}, s57, -v{m}")
        for i in range(16): a(f"v_exp_f32 v{Y+i}, v{Y+i}")
        a(f"v_add_f32 v{l}, v{Y}, v{Y+1}")
        a(f"v_add_f32 v{t}, v{Y+2}, v{Y+3}")
        for i in range(4, 16, 2):
            a(f"v_add_f32 v{l}, v{l}, v{Y+i}")
            a(f"v_add_f32 v{t}, v{t}, v{Y+i+1}")
        a(f"v_add_f32 v{l}, v{l}, v{t}")
        for v in range(8): a(f"v_cvt_pk_bf16_f32 v{Y+v}, v{Y+2*v}, v{Y+2*v+1}")
        xlane("v_add_f32", l, t)
        a(f"""
s_lshl_b32 s59, s3, 5
v_lshl_add_u32 v{t}, v1, 3, s59
s_mov_b64 exec, 15
ds_write_b64 v{t}, v[{m}:{m+1}] offset:{ST}
s_mov_b64 exec, 1
v_mov_b32 v{t}, 1
ds_add_u32 v84, v{t} offset:{FLG+16}
s_mov_b64 exec, -1
""")
    def vchunk(v):
        a(f"v_mov_b32 v{PA}, v{Y+v}")
        for p in (1, 2, 3):
            a(f"v_mov_b32_dpp v{PA+p}, v{Y+v} row_ror:{4*((0-p)%4)} row_mask:0xf bank_mask:0xf")
        for half in range(2):
            for jj in range(4 * half, 4 * half + 4):
                o = PT + 4 * (jj & 3)
                for p in range(4):
                    lo = rreg(64 + 8 * v + p) + (jj >> 1); hi = rreg(64 + 8 * v + 4 + p) + (jj >> 1)
                    a(f"v_perm_b32 v{o+p}, v{hi}, v{lo}, {'s55' if jj & 1 else 's54'}")
            for jj in range(4 * half, 4 * half + 4):
                o = PT + 4 * (jj & 3); d = ACC + 4 * jj
                c = "0" if v == 0 else f"v[{d}:{d+3}]"
                a(f"v_mfma_f32_16x16x32_bf16 v[{d}:{d+3}], v[{PA}:{PA+3}], v[{o}:{o+3}], {c}")
    work = [("K", t, 4 * t + 3) for t in list(range(NLT, 16)) + list(range(NLT))] + [("S", 0, 63)] + [("V", v, 64 + 8 * v + 7) for v in range(8)]
    consumed = NLL - 1
    wi = 0
    def do_work():
        nonlocal wi, consumed
        k, i, last = work[wi]
        if k == "K":
            if wi == 0: wait_q()
            if "nok" not in dbg: ktile(i)
            consumed = max(consumed, last)
        elif k == "S":
            if "nosm" in dbg: a(f"s_mov_b64 exec, 1\nv_mov_b32 v82, 1\nds_add_u32 v84, v82 offset:{FLG+16}\ns_mov_b64 exec, -1")
            else: softmax()
            stamp(3)
        else:
            if "nov" not in dbg: vchunk(i)
            consumed = last
        wi += 1
    issued = 0
    ops = []
    def iss(n): issue(n); ops.append(("L", n))
    def vm_for(X):
        li = [i for i, o in enumerate(ops) if o[0] == "L"]
        if len(li) <= X: return None
        p = li[len(li) - X - 1]
        return len(ops) - 1 - p, p
    if pat is None: pat = [(WIN, G)]
    if fc: pat = [(fc["W"][1], fc["G"])]
    for n in range(pat[0][0]): iss(n)
    issued = pat[0][0]
    a("s_barrier")
    setup_consts()
    arrived = -1
    step = 0
    done_op = -1; nw = 0; ph = 0; nctl = 0; evalq = []; PAIRS = [88, 92, 94]; tagdone = False
    while issued < NL:
        pp = pat2 if (pat2 is not None and issued >= n0) else pat
        WIN, G = pp[step % len(pp)]; step += 1
        if not fc:
            if issued - (WIN - G) - 1 > arrived: a(f"s_waitcnt vmcnt({WIN-G})")
            arrived = max(arrived, issued - (WIN - G) - 1)
        else:
            Wl, Wm, Wh = fc["W"]
            r = vm_for(Wh - G)
            if r: a(f"s_waitcnt vmcnt({r[0]})"); done_op = max(done_op, r[1]); arrived = max(arrived, issued - (Wh - G) - 1)
            a(f"""
s_cmp_eq_u32 s62, 2 ;nc
s_cbranch_scc1 L_fs{step} ;nc
s_waitcnt vmcnt({vm_for(Wm - G)[0]}) ;nc
s_cmp_eq_u32 s62, 0 ;nc
s_cbranch_scc1 L_fs{step} ;nc
s_waitcnt vmcnt({vm_for(Wl - G)[0]}) ;nc
L_fs{step}:
""")
        if est:
            for i_, e_ in enumerate(est):
                if e_ is not None and arrived >= e_: stamp(5 + i_); est[i_] = None
        g = min(G, NL - issued)
        while issued + g - 1 - RING > consumed:
            if work[wi][2] > arrived:
                assert not fc
                a(f"s_waitcnt vmcnt({issued - 1 - work[wi][2]})"); arrived = work[wi][2]
            do_work()
        for n in range(issued, issued + g): iss(n)
        if fc:
            d = fc["d"]; k0 = fc.get("k0", 2); last = (NL - fc.get("stop", 8) - fc["W"][1]) // G
            if step == k0:
                a("s_waitcnt lgkmcnt(0)\ns_add_u32 s73, s73, 1\nv_mov_b32 v90, s73")
            if fc.get("wg"):
                for e in [e for e in evalq if e[0] <= done_op]:
                    evalq.remove(e)
                    a(f"v_sad_u8 v85, v{e[1]}, 0, 0\ns_movk_i32 s68, {32 * e[2]}\ns_call_b64 s[80:81], L_cw")
                if step >= fc.get("kw", 4) and step % fc["CW"] == 0 and step <= last:
                    r_ = [91, 92, 93, 94, 95, 86 if NLT == 0 else 5][nw % 6]; nw += 1; assert len(evalq) < 6
                    a(f"""
v_mov_b32 v89, {step}
s_mov_b64 exec, vcc
buffer_store_byte v89, v88, s[12:15], 0 offen
s_mov_b64 exec, -1
buffer_load_dword v{r_}, v87, s[12:15], 0 offen nt
""")
                    ops.append(("S", 0)); ops.append(("C", 0)); evalq.append((len(ops) - 1, r_, step))
            if k0 <= step <= last - d and fc.get("x", 1):
                a(f"""
s_movk_i32 s65, {PGOFF + step * 256}
s_cmp_eq_u32 s64, {step % 32}
s_cselect_b64 exec, 1, 0
buffer_store_dword v90, v83, s[76:79], s65 offen sc1
s_mov_b64 exec, -1
""")
                ops.append(("S", 0))
            if step >= k0 + d and (step - k0 - d) % fc["C"] == 0:
                if nctl > 0: a("s_call_b64 s[80:81], L_cb"); nctl = 0
                if step <= last and fc.get("x", 1):
                    a(f"s_load_dwordx8 s[4:11], s[40:41], {PGOFF + (step - d) * 256}"); nctl = 1
        issued += g
        for _ in range(WPS):
            if wi < len(work) and work[wi][2] <= arrived and (wi > 0 or issued + G - 1 - RING > consumed):
                do_work()
    while wi < len(work):
        need_ = work[wi][2]
        if need_ > arrived:
            r = vm_for(NL - 1 - need_) if fc else (NL - 1 - need_,)
            a(f"s_waitcnt vmcnt({r[0]})"); arrived = need_
        do_work()
    stamp(4)
    a(f"""
s_mul_i32 s59, s3, 2304
v_mul_u32_u24 v4, 144, v1
v_add_u32 v4, s59, v4
s_mov_b64 exec, 0xffff
""")
    for jj in range(8):
        a(f"ds_write_b128 v4, v[{ACC+4*jj}:{ACC+4*jj+3}] offset:{OP+16*jj}")
    a("""
s_mov_b64 exec, -1
s_waitcnt lgkmcnt(0)
s_barrier
""")
    if dirty:
        a(f"""
s_mov_b32 s44, s40
s_mov_b32 s45, s41
s_mov_b32 s46, 0x10000000
s_mov_b32 s47, 0x20000
s_lshl_b32 s59, s2, 2
s_add_u32 s59, s59, s3
s_mul_i32 s59, s59, {dirty*1024}
s_add_u32 s59, s59, {64 << 20}
s_sleep 64
""")
        for i in range(dirty): a(f"buffer_store_dwordx4 v[28:31], v3, s[44:47], s59 offen\ns_add_u32 s59, s59, 1024")
    if prof:
        a(f"""
s_mov_b32 s44, s40
s_mov_b32 s45, s41
s_mov_b32 s46, 0x10000000
s_mov_b32 s47, 0x20000
s_sleep 127
s_sleep 127
s_sleep 127
s_waitcnt lgkmcnt(0)
s_lshl_b32 s59, s2, 3
s_add_u32 s59, s59, s3
s_lshl_b32 s59, s59, 6
s_add_u32 s59, s59, {STAMP}
v_mov_b32 v4, 0
s_mov_b64 exec, 1
""")
        for i in range(8):
            sr = 82 if (i == 5 and fc) else 84 + 2 * (i if est else min(i, 4))
            a(f"v_mov_b32 v8, s{sr}\nv_mov_b32 v9, s{sr+1}\nbuffer_store_dwordx2 v[8:9], v4, s[44:47], s59 offen offset:{8*i}\ns_waitcnt vmcnt(0)")
    a("s_endpgm")
    X = 32
    S1 = 12; S2 = 13; T0 = 14; T1 = 15; NM = 16; RS = 18
    W1 = 40; B1 = 47; W2 = 54; HX = 62; U = 66; AA = 73; EE = 80; ACC2 = 87; C1 = 88; YA = 89
    WB = 192
    def srd(base, lo, size): a(f"s_mov_b32 s{base}, s{lo}\ns_mov_b32 s{base+1}, s{lo+1}\ns_mov_b32 s{base+2}, {size}\ns_mov_b32 s{base+3}, 0x20000")
    def bfround(r): a(f"v_cvt_pk_bf16_f32 v{r}, v{r}, v{r}\nv_lshlrev_b32 v{r}, 16, v{r}")
    def stats_finish():
        a(f"""
v_mul_f32 v{S1}, {f32(1/512)}, v{S1}
v_mul_f32 v{S2}, {f32(1/512)}, v{S2}
v_fma_f32 v{S2}, -v{S1}, v{S1}, v{S2}
v_max_f32 v{S2}, 0, v{S2}
""")
        bfround(S1); bfround(S2)
        a(f"v_add_f32 v{S2}, {f32(1e-5)}, v{S2}")
        bfround(S2)
        a(f"v_sqrt_f32 v{S2}, v{S2}")
        bfround(S2)
        a(f"""
v_rcp_f32 v{RS}, v{S2}
v_sub_f32 v{NM}, 0, v{S1}
v_sub_f32 v{NM+1}, 0, v{S1}
v_mov_b32 v{RS+1}, v{RS}
""")
    def swaps_add(r, t):
        a(f"""
v_mov_b32 v{t}, v{r}
v_permlane16_swap_b32 v{r}, v{t}
v_add_f32 v{r}, v{r}, v{t}
v_mov_b32 v{t}, v{r}
v_permlane32_swap_b32 v{r}, v{t}
v_add_f32 v{r}, v{r}, v{t}
""")
    def normalize(src, dst, n, tmp):
        for i0 in range(0, n, 4):
            idx = list(range(i0, min(n, i0 + 4)))
            for i in idx:
                t = tmp + 2 * (i - i0)
                a(f"v_lshlrev_b32 v{t}, 16, v{src+i}\nv_and_b32 v{t+1}, 0xffff0000, v{src+i}")
            for i in idx:
                t = tmp + 2 * (i - i0)
                a(f"v_pk_add_f32 v[{t}:{t+1}], v[{t}:{t+1}], v[{NM}:{NM+1}]")
            for i in idx:
                t = tmp + 2 * (i - i0)
                a(f"v_cvt_pk_bf16_f32 v{t}, v{t}, v{t+1}")
            for i in idx:
                t = tmp + 2 * (i - i0)
                a(f"v_and_b32 v{t+1}, 0xffff0000, v{t}\nv_lshlrev_b32 v{t}, 16, v{t}")
            for i in idx:
                t = tmp + 2 * (i - i0)
                a(f"v_pk_mul_f32 v[{t}:{t+1}], v[{t}:{t+1}], v[{RS}:{RS+1}]")
            for i in idx:
                t = tmp + 2 * (i - i0)
                a(f"v_cvt_pk_bf16_f32 v{dst+i}, v{t}, v{t+1}")
    def lds_wait(lbl, off, cnt, sl=0):
        a(f"""
s_mov_b32 s58, {spin*8}
{lbl}:
ds_read_b32 v4, v9 offset:{off}
s_waitcnt lgkmcnt(0)
v_readfirstlane_b32 s59, v4
s_sub_u32 s58, s58, 1
s_cbranch_scc1 {lbl}_done
s_cmp_lt_u32 s59, {cnt}
{f"s_sleep {sl}" if sl else ""}
s_cbranch_scc1 {lbl}
{lbl}_done:
""")
    def lds_signal(off):
        a(f"""
s_mov_b64 exec, 1
ds_add_u32 v9, v11 offset:{off}
s_mov_b64 exec, -1
""")
    def orred(ts):
        ts = list(ts)
        while len(ts) > 1:
            if len(ts) >= 3:
                a(f"v_or3_b32 v{ts[0]}, v{ts[0]}, v{ts[1]}, v{ts[2]}"); ts = ts[3:] + [ts[0]]
            else:
                a(f"v_or_b32 v{ts[0]}, v{ts[0]}, v{ts[1]}"); ts = [ts[0]]
        return ts[0]
    def chk8(tags, tmp):
        for i, t in enumerate(tags): a(f"v_xor_b32 v{tmp+i}, s12, v{t}")
        return orred([tmp + i for i in range(len(tags))])
    def chk16(bases, tmp, tagreg):
        out = []
        for i, b in enumerate(bases):
            a(f"v_perm_b32 v{tmp+2*i}, v{b+1}, v{b}, s20\nv_perm_b32 v{tmp+2*i+1}, v{b+3}, v{b+2}, s21")
        for i, b in enumerate(bases):
            a(f"v_or_b32 v{tmp+2*i}, v{tmp+2*i}, v{tmp+2*i+1}")
        for i, b in enumerate(bases):
            a(f"v_xor_b32 v{tmp+2*i}, s{tagreg}, v{tmp+2*i}"); out.append(tmp + 2 * i)
        return orred(out)
    def pack16(dst, srcs, tagv):
        for i, r in enumerate(srcs): a(f"v_perm_b32 v{dst+i}, v{r}, v{tagv}, s{16+i}")
    def poll(lbl, loads, chk, fbr=None, post=None, st=None, pipe=1, stag=0, sl=None):
        if sl is None: sl = slp
        if fbr is not None: a(f"s_mov_b32 s82, s{fbr}\ns_add_u32 s83, s{fbr}, {BD}")
        a(f"s_mov_b32 s58, {spin}")
        for _ in range(pipe - 1):
            for l in loads: a(l)
            if stag: a(f"s_sleep {stag}")
        a(f"{lbl}:")
        if st is not None and tailprof: stamp(st)
        for l in loads: a(l)
        a(f"s_waitcnt vmcnt({len(loads) * (pipe - 1)})")
        r = chk()
        if post: r = post(r)
        a(f"""
v_cmp_ne_u32 vcc, 0, v{r}
s_sub_u32 s58, s58, 1
s_cbranch_scc1 {lbl}_done
s_and_b64 exec, exec, vcc
s_cbranch_execz {lbl}_done
""")
        if fbr is not None: a(f"s_and_b32 s59, s58, {fb}\ns_cselect_b32 s{fbr}, s82, s83")
        if sl: a(f"s_sleep {sl}")
        a(f"""
s_branch {lbl}
{lbl}_done:
s_mov_b64 exec, -1
""")
    a("L_helper:\ns_setprio 3\ns_sub_u32 s3, s3, 4")
    srd(44, 16, 8192); srd(48, 22, 0x400000); srd(52, 40, 0x10000000); srd(56, 24, 0x400000)
    srd(60, 28, 3584); srd(64, 30, 3584); srd(68, 32, 3584)
    a(f"""
v_lshrrev_b32 v5, 4, v1
v_and_b32 v6, 7, v1
v_and_b32 v8, 15, v1
v_lshrrev_b32 v7, 5, v1
v_and_b32 v4, 31, v1
v_lshlrev_b32 v4, 4, v4
v_lshl_add_u32 v2, v7, 10, v4
s_lshl_b32 s6, s3, 11
v_mov_b32 v9, 0
v_mov_b32 v11, 1
v_lshrrev_b32 v20, 3, v1
v_lshlrev_b32 v21, 13, v20
v_lshl_add_u32 v21, v6, 4, v21
v_lshlrev_b32 v22, 10, v20
v_lshl_add_u32 v22, v6, 4, v22
s_and_b32 s15, s2, 7
s_lshr_b32 s14, s2, 3
s_add_u32 s4, s14, {rq}
s_and_b32 s4, s4, 7
s_add_u32 s14, s14, {ro}
s_and_b32 s14, s14, 7
s_lshl_b32 s8, s15, 3
s_add_u32 s8, s8, s4
s_lshr_b32 s9, s2, 6
s_lshl_b32 s4, s9, 2
s_add_u32 s4, s4, s3
s_lshl_b32 s4, s4, 18
s_lshl_b32 s5, s8, 7
s_add_u32 s72, s4, s5
s_lshl_b32 s13, s15, 2
s_add_u32 s13, s13, s9
s_lshl_b32 s4, s13, 2
s_add_u32 s4, s4, s3
s_lshl_b32 s4, s4, 15
s_lshl_b32 s5, s14, 7
s_add_u32 s73, s4, s5
s_lshl_b32 s4, s3, 12
s_add_u32 s74, s4, {WQL}
s_mul_i32 s75, s3, 896
v_lshlrev_b32 v23, 1, v1
s_barrier
""")
    if "nohelp" in dbg: a("s_branch L_pre2")
    a(f"""
buffer_load_dwordx4 v[{X}:{X+3}], v2, s[44:47], s6 offen
buffer_load_dwordx4 v[{X+4}:{X+7}], v2, s[44:47], s6 offen offset:512
{"s_load_dword s42, s[40:41], 0" if sE else "buffer_load_dword v10, v9, s[52:55], 0 offen sc1"}
""")
    if "nowq" in dbg: a("s_mov_b32 s50, 0\ns_mov_b32 s58, 0")
    for t in range(4):
        a(f"s_add_u32 m0, s74, {t*1024}\ns_nop 0\nbuffer_load_dwordx4 v21, s[48:51], s72 offen nt lds")
        if t < 3: a(f"s_add_u32 s72, s72, {8*8192}")
    def wodma(t, vr, so, sl):
        a(f"s_add_u32 m0, s{sl}, {16384+t*1024}\ns_nop 0\nbuffer_load_dwordx4 v{vr}, {'s[56:59]' if wolate is None else 's[68:71]'}, s{so} offen nt lds")
        if t < 3: a(f"s_add_u32 s{so}, s{so}, {8*1024}")
    if wolate is None:
        for t in range(4): wodma(t, 22, 73, 74)
    else:
        a("v_mov_b32 v90, v22\ns_mov_b32 s22, s73\ns_mov_b32 s23, s74")
    NW = 0 if wolate is None else 4
    for t in range(7):
        a(f"buffer_load_ushort v{W1+t}, v23, s[60:63], s75 offen offset:{128*t}")
        a(f"buffer_load_ushort v{B1+t}, v23, s[64:67], s75 offen offset:{128*t}")
        a(f"buffer_load_ushort v{W2+t}, v23, s[68:71], s75 offen offset:{128*t}")
    srd(60, 34, 2); srd(64, 36, 8192); srd(68, 24, 0 if 'nowq' in dbg else 0x400000)
    a(f"""
v_and_b32 v30, 3, v1
v_lshlrev_b32 v30, 1, v30
v_lshl_add_u32 v30, v5, 5, v30
s_lshr_b32 s10, s2, 2
s_lshl_b32 s10, s10, 7
s_and_b32 s4, s2, 3
s_lshl_b32 s4, s4, 3
s_add_u32 s10, s10, s4
buffer_load_ushort v31, v9, s[60:63], 0 offen
buffer_load_ushort v29, v30, s[44:47], s10 offen
s_mov_b32 s16, 0x07060500
s_mov_b32 s17, 0x07060501
s_mov_b32 s18, 0x07060502
s_mov_b32 s19, 0x07060503
s_mov_b32 s20, 0x0c0c0400
s_mov_b32 s21, 0x04000c0c
s_getreg_b32 s43, hwreg(HW_REG_XCC_ID, 0, 4)
s_lshl_b32 s43, s43, 28
s_mov_b32 s11, 0x3f803f80
v_mov_b32 v{S1}, 0
v_mov_b32 v{S2}, 0
s_waitcnt vmcnt({(31 if sE else 32) - NW})
""")
    for i in range(8):
        a(f"v_dot2_f32_bf16 v{S1}, v{X+i}, s11, v{S1}")
        a(f"v_dot2_f32_bf16 v{S2}, v{X+i}, v{X+i}, v{S2}")
    for n in (8, 4, 2, 1):
        a(f"v_add_f32_dpp v{S1}, v{S1}, v{S1} row_ror:{n} row_mask:0xf bank_mask:0xf")
        a(f"v_add_f32_dpp v{S2}, v{S2}, v{S2} row_ror:{n} row_mask:0xf bank_mask:0xf")
    a(f"""
v_mov_b32 v{T0}, v{S1}
v_mov_b32 v{T1}, v{S2}
v_permlane16_swap_b32 v{S1}, v{T0}
v_permlane16_swap_b32 v{S2}, v{T1}
v_add_f32 v{S1}, v{S1}, v{T0}
v_add_f32 v{S2}, v{S2}, v{T1}
""")
    stats_finish()
    normalize(X, X, 8, 20)
    a(f"""
s_mul_i32 s4, s3, {2*XRS}
v_mul_u32_u24 v2, {XRS}, v7
v_add3_u32 v2, v2, v4, s4
ds_write_b128 v2, v[{X}:{X+3}] offset:{XN}
ds_write_b128 v2, v[{X+4}:{X+7}] offset:{XN+512}
v_mul_u32_u24 v2, {XRS}, v6
v_lshl_add_u32 v2, v5, 4, v2
s_lshl_b32 s4, s9, 8
v_add_u32 v2, s4, v2
v_bfe_u32 v3, v1, 2, 2
v_lshl_add_u32 v3, v5, 3, v3
v_lshlrev_b32 v3, 7, v3
v_and_b32 v20, 3, v1
v_lshl_add_u32 v3, v20, 3, v3
s_lshl_b32 s4, s3, 5
v_add_u32 v24, s4, v3
s_waitcnt vmcnt(23) lgkmcnt(0)
""")
    lds_signal(FLG + 8)
    a(f"""
{"s_add_u32 s42, s42, 1" if sE else "v_add_u32 v10, 1, v10"}
v_lshlrev_b32 v25, 7, v5
v_lshl_add_u32 v25, v6, 4, v25
s_lshl_b32 s4, s8, 2
s_add_u32 s4, s4, s9
s_lshl_b32 s4, s4, 2
s_add_u32 s4, s4, s3
s_lshl_b32 s4, s4, 9
s_add_u32 s72, s4, {QOFF}
{"" if sE else "v_readfirstlane_b32 s42, v10"}
s_add_u32 s73, s72, {BD}
s_mul_i32 s12, s42, 0x01010101
s_xor_b32 s43, s43, s12
v_mov_b32 v10, s12
v_mov_b32 v21, s43
""")
    lds_wait("L_xw", FLG + 8, 4)
    for t in range(4):
        a(f"ds_read_b128 v[{96+4*t}:{99+4*t}], v2 offset:{XN+64*t}")
        for u in range(2): a(f"ds_read_b64_tr_b16 v[{112+4*t+2*u}:{113+4*t+2*u}], v24 offset:{WQL+t*4096+u*512}")
    a("s_waitcnt lgkmcnt(0)")
    stamp(1)
    for t in range(4):
        a(f"v_mfma_f32_16x16x32_bf16 v[128:131], v[{112+4*t}:{115+4*t}], v[{96+4*t}:{99+4*t}], {'0' if t == 0 else 'v[128:131]'}")
    pack16(132, [128, 129, 130, 131], 21)
    if "cutq" in dbg: a("s_branch L_pre2")
    a(f"""
s_mov_b32 exec_lo, 0x00ff00ff
s_mov_b32 exec_hi, 0x00ff00ff
buffer_store_dwordx4 v[132:135], v25, s[52:55], s72 offen {"sc1" if clean else ""}
{"" if "noB" in dbg else "buffer_store_dwordx4 v[132:135], v25, s[52:55], s73 offen sc1"}
s_mov_b64 exec, -1
""")
    if "cutp" in dbg: a("s_branch L_pre2")
    stamp(2)
    a(f"s_setprio {bgprio}")
    def woread(vr):
        for nt_ in range(4):
            for kk in range(4):
                for u in range(2):
                    r = WB + 16 * nt_ + 4 * kk + 2 * u
                    a(f"ds_read_b64_tr_b16 v[{r}:{r+1}], v{vr} offset:{WQL+16384+kk*4096+u*512+nt_*32}")
    if wolate is None: woread(3)
    else: a("v_mov_b32 v91, v3")
    a(f"""
s_lshr_b32 s4, s2, 5
s_mul_i32 s4, s4, {XRS}
v_lshl_add_u32 v2, v1, 4, s4
ds_read_b128 v[{HX}:{HX+3}], v2 offset:{XN}
v_mov_b32 v{S1}, 0
v_mov_b32 v{S2}, 0
s_waitcnt lgkmcnt(0)
""")
    for i in range(4):
        a(f"v_dot2_f32_bf16 v{S1}, v{HX+i}, s11, v{S1}")
        a(f"v_dot2_f32_bf16 v{S2}, v{HX+i}, v{HX+i}, v{S2}")
    for n in (8, 4, 2, 1):
        a(f"v_add_f32_dpp v{S1}, v{S1}, v{S1} row_ror:{n} row_mask:0xf bank_mask:0xf")
        a(f"v_add_f32_dpp v{S2}, v{S2}, v{S2} row_ror:{n} row_mask:0xf bank_mask:0xf")
    swaps_add(S1, T0); swaps_add(S2, T1)
    stats_finish()
    normalize(HX, HX, 4, 20)
    a(f"""
s_bitcmp1_b32 s2, 0
s_cselect_b64 vcc, -1, 0
s_bfe_u32 s4, s2, 0x30002
s_lshl_b32 s4, s4, 3
s_bfe_u32 s5, s2, 0x10001
s_add_u32 s4, s4, s5
v_cndmask_b32 v{HX}, v{HX}, v{HX+2}, vcc
v_cndmask_b32 v{HX+1}, v{HX+1}, v{HX+3}, vcc
""")
    for i in range(4):
        a(f"v_readlane_b32 s{72+2*i}, v{HX}, s4\nv_readlane_b32 s{73+2*i}, v{HX+1}, s4")
        if i < 3: a("s_add_u32 s4, s4, 2")
    a("s_waitcnt vmcnt(2)")
    for i in range(21): a(f"v_lshlrev_b32 v{W1+i}, 16, v{W1+i}")
    c0 = -2 * LOG2E * math.sqrt(2 / math.pi); c1 = c0 * 0.044715
    a(f"""
v_mov_b32 v{C1}, {f32(c1)}
s_lshl_b32 s4, s3, 6
v_mov_b32 v{YA}, s4
""")
    def mlp_steps(lo, hi):
        for d in range(lo, hi):
            if d & 1: a(f"s_and_b32 s4, s{72+(d>>1)}, 0xffff0000")
            else: a(f"s_lshl_b32 s4, s{72+(d>>1)}, 16")
            if "nomlp" not in dbg: a("s_call_b64 s[80:81], L_mlp")
            if wolate is not None and d in wolate: wodma(wolate.index(d), 90, 22, 23)
    mlp_steps(0, mlp1)
    a(f"""
s_setprio 3
s_lshr_b32 s4, s2, 5
s_lshl_b32 s4, s4, 4
s_lshl_b32 s5, s15, 2
s_add_u32 s5, s5, s3
s_lshl_b32 s5, s5, 14
s_add_u32 s4, s4, s5
s_add_u32 s6, s4, {QOFF}
v_bfe_u32 v2, v1, 1, 4
v_lshlrev_b32 v2, 7, v2
v_lshl_add_u32 v2, v7, 13, v2
v_and_b32 v3, 1, v1
v_lshl_add_u32 v2, v3, 12, v2
""")
    def qpost(r):
        a(f"v_mov_b32 v108, v{r}\nv_and_b32 v{r}, 0x0fffffff, v{r}"); return r
    poll("L_gq", [f"buffer_load_dwordx4 v[{96+4*k}:{99+4*k}], v2, s[52:55], s6 offen offset:{2048*k} {qfl}" for k in range(2)],
         lambda: chk16([96, 100], 104, 43), fbr=None if "noB" in dbg else 6, post=qpost, sl=qslp)
    for i in range(8): a(f"v_and_b32 v{96+i}, 0xffffff00, v{96+i}")
    for i in range(4): a(f"v_add_f32 v{96+i}, v{96+i}, v{100+i}")
    for i in range(4): a(f"v_add_f32_dpp v{96+i}, v{96+i}, v{96+i} quad_perm:[1,0,3,2] row_mask:0xf bank_mask:0xf")
    a(f"""
v_cmp_ne_u32 vcc, 0, v108
s_lshl_b32 s4, s3, 8
v_lshrrev_b32 v2, 1, v1
v_lshl_add_u32 v2, v2, 3, s4
v_cvt_pk_bf16_f32 v96, v96, v97
v_cvt_pk_bf16_f32 v97, v98, v99
ds_write_b64 v2, v[96:97] offset:{QL}
{"" if clean else "s_cbranch_vccz L_gq_loc"}
ds_write_b32 v9, v11 offset:{FLG+20}
L_gq_loc:
s_waitcnt lgkmcnt(0)
""")
    lds_signal(FLG + 4)
    stamp(3)
    if "cutg" in dbg: a("s_branch L_pre2")
    a(f"s_setprio {bgprio}")
    mlp_steps(mlp1, 16)
    a("s_waitcnt vmcnt(0) lgkmcnt(0)")
    lds_signal(FLG + 12)
    a(f"""
v_lshrrev_b32 v2, 2, v1
v_mul_u32_u24 v20, 144, v2
v_and_b32 v3, 3, v1
v_lshl_add_u32 v20, v3, 5, v20
s_lshl_b32 s4, s3, 2
s_add_u32 s4, s4, {OP}
v_add_u32 v20, s4, v20
v_add_u32 v21, 2304, v20
v_add_u32 v22, 4608, v20
v_add_u32 v23, 6912, v20
s_lshl_b32 s4, s3, 3
v_mov_b32 v24, s4
v_lshrrev_b32 v25, 5, v1
v_lshlrev_b32 v25, 7, v25
v_bfe_u32 v2, v1, 4, 1
v_lshl_add_u32 v25, v2, 11, v25
v_bfe_u32 v2, v1, 1, 1
v_lshl_add_u32 v25, v2, 10, v25
v_bfe_u32 v2, v1, 2, 2
v_lshl_add_u32 v25, v2, 8, v25
v_and_b32 v2, 1, v1
v_lshl_add_u32 v25, v2, 3, v25
v_lshlrev_b32 v26, 4, v1
v_and_b32 v2, 1, v5
v_lshl_add_u32 v27, v2, 2, v3
v_lshlrev_b32 v27, 4, v27
v_lshlrev_b32 v28, {6 if h2full else 16}, v2
v_bfe_u32 v2, v1, 2, 2
v_lshl_add_u32 v28, v2, {12 if h2full else 11}, v28
v_lshl_add_u32 v28, v3, 4, v28
v_lshrrev_b32 v19, 2, v1
v_lshlrev_b32 v19, {7 if h2full else 6}, v19
v_lshl_add_u32 v19, v3, 4, v19
s_lshl_b32 s4, s15, 2
s_add_u32 s4, s4, s3
s_lshl_b32 s4, s4, 2
s_add_u32 s4, s4, s9
s_mul_i32 s4, s4, {H1S}
s_bfe_u32 s5, s2, 0x30003
s_lshl_b32 s5, s5, 4
s_add_u32 s4, s4, s5
s_add_u32 s6, s4, {H1OFF}
s_lshl_b32 s4, s13, 2
s_add_u32 s4, s4, s3
s_mul_i32 s4, s4, {H1S}
s_add_u32 s7, s4, {H1OFF}
s_lshl_b32 s4, s3, {5 if h2full else 6}
s_lshl_b32 s5, s14, 2
s_add_u32 s4, s4, s5
s_lshl_b32 s4, s4, {12 if h2full else 11}
s_lshl_b32 s5, s13, {7 if h2full else 6}
s_add_u32 s4, s4, s5
s_add_u32 s8, s4, {H2OFF}
""")
    if not h2full: a("s_lshl_b32 s9, s2, 11")
    else: a("""
s_lshr_b32 s9, s2, 6
s_lshl_b32 s9, s9, 5
s_and_b32 s4, s2, 31
s_add_u32 s9, s9, s4
s_lshl_b32 s9, s9, 12
s_bfe_u32 s4, s2, 0x10005
s_lshl_b32 s4, s4, 6
s_add_u32 s9, s9, s4
""")
    h2l = [f"buffer_load_dwordx4 v[{136+4*k}:{139+4*k}], v19, s[52:55], s9 offen offset:{(2048 if h2full else 1024)*k} sc1" for k in range(2)]
    a(f"""
s_add_u32 s9, s9, {H2OFF}
""")
    if wolate is not None:
        lds_wait("L_yw", FLG + 12, 4); woread(91)
    a("""
s_cmp_lg_u32 s3, 0
s_cbranch_scc1 L_ready
""")
    if wolate is None: lds_wait("L_yw", FLG + 12, 4)
    if h2pre:
        for l in h2l: a(l)
    a(f"""
v_lshl_add_u32 v2, v5, 2, v3
v_lshlrev_b32 v2, 2, v2
ds_read_b32 v32, v2 offset:{YP}
ds_read_b32 v33, v2 offset:{YP+64}
ds_read_b32 v34, v2 offset:{YP+128}
ds_read_b32 v35, v2 offset:{YP+192}
v_lshlrev_b32 v31, 16, v31
s_waitcnt lgkmcnt(0)
v_add_f32 v32, v32, v33
v_add_f32 v34, v34, v35
v_add_f32 v32, v32, v34
v_cvt_pk_bf16_f32 v32, v32, v32
v_lshlrev_b32 v32, 16, v32
v_add_f32 v32, v32, v31
v_cvt_pk_bf16_f32 v32, v32, v32
v_lshlrev_b32 v32, 16, v32
v_mul_f32 v34, {f32(-LOG2E)}, v32
v_exp_f32 v34, v34
v_add_f32 v34, 1.0, v34
v_rcp_f32 v34, v34
v_mul_f32 v32, v32, v34
v_cvt_pk_bf16_f32 v32, v32, v32
v_lshlrev_b32 v16, 16, v32
v_lshlrev_b32 v14, 16, v29
L_ready:
""")
    if "cuts" in dbg: a("s_branch L_pre2")
    lds_wait("L_sw", FLG + 16, 4, sl=8)
    a(f"""
ds_read_b64 v[32:33], v24 offset:{ST}
ds_read_b64 v[34:35], v24 offset:{ST+32}
ds_read_b64 v[36:37], v24 offset:{ST+64}
ds_read_b64 v[38:39], v24 offset:{ST+96}
ds_read_b32 v54, v9 offset:{FLG+20}
s_waitcnt lgkmcnt(0)
v_max3_f32 v48, v32, v34, v36
v_max_f32 v48, v48, v38
v_sub_f32 v32, v32, v48
v_sub_f32 v34, v34, v48
v_sub_f32 v36, v36, v48
v_sub_f32 v38, v38, v48
v_exp_f32 v32, v32
v_exp_f32 v34, v34
v_exp_f32 v36, v36
v_exp_f32 v38, v38
v_mov_b32 v49, v10
v_mov_b32 v51, v10
v_mul_f32 v50, v32, v33
v_fmac_f32 v50, v34, v35
v_fmac_f32 v50, v36, v37
v_fmac_f32 v50, v38, v39
v_mov_b32 v53, v10
v_readfirstlane_b32 s75, v54
s_mov_b64 exec, 1
s_cmp_lg_u32 s75, 0
s_cbranch_scc1 L_st_far
buffer_store_dwordx4 v[48:51], v9, s[52:55], s6 offen
s_mov_b64 exec, -1
""")
    poll("L_sp", [f"buffer_load_dwordx4 v[40:43], v27, s[52:55], s7 offen {h1fl}"], lambda: chk8([41, 43], 80), sl=8)
    a(f"""
s_branch L_st_done
L_st_far:
buffer_store_dwordx4 v[48:51], v9, s[52:55], s6 offen sc1
s_mov_b64 exec, -1
""")
    poll("L_spx", ["buffer_load_dwordx4 v[40:43], v27, s[52:55], s7 offen sc1"], lambda: chk8([41, 43], 80), sl=8)
    a("L_st_done:")
    a("""
v_max_f32_dpp v44, v40, v40 quad_perm:[1,0,3,2] row_mask:0xf bank_mask:0xf
v_max_f32_dpp v45, v44, v44 quad_perm:[2,3,0,1] row_mask:0xf bank_mask:0xf
v_sub_f32 v40, v40, v45
v_exp_f32 v40, v40
v_mul_f32 v42, v40, v42
v_add_f32_dpp v44, v42, v42 quad_perm:[1,0,3,2] row_mask:0xf bank_mask:0xf
v_add_f32_dpp v45, v44, v44 quad_perm:[2,3,0,1] row_mask:0xf bank_mask:0xf
v_rcp_f32 v45, v45
v_mul_f32 v40, v40, v45
v_mov_b32_dpp v56, v40 quad_perm:[0,0,0,0] row_mask:0xf bank_mask:0xf
v_mov_b32_dpp v57, v40 quad_perm:[1,1,1,1] row_mask:0xf bank_mask:0xf
v_mov_b32_dpp v58, v40 quad_perm:[2,2,2,2] row_mask:0xf bank_mask:0xf
v_mov_b32_dpp v59, v40 quad_perm:[3,3,3,3] row_mask:0xf bank_mask:0xf
L_pre2:
s_setprio 3
s_waitcnt vmcnt(0) lgkmcnt(0)
""")
    stamp(4)
    a("s_barrier")
    if isinstance(dbgt, str): a("s_memrealtime s[92:93]")
    if prof: a("s_waitcnt lgkmcnt(0)")
    if "notail" in dbg:
        stamp(5); stamp(6); a("s_branch L_hend")
    if tailprof: stamp(1); a("s_waitcnt lgkmcnt(0)")
    a(f"""
ds_read2_b32 v[40:41], v20 offset0:0 offset1:4
ds_read2_b32 v[42:43], v21 offset0:0 offset1:4
ds_read2_b32 v[44:45], v22 offset0:0 offset1:4
ds_read2_b32 v[46:47], v23 offset0:0 offset1:4
s_waitcnt lgkmcnt(2)
v_mul_f32 v40, v32, v40
v_mul_f32 v41, v32, v41
v_fmac_f32 v40, v34, v42
v_fmac_f32 v41, v34, v43
s_waitcnt lgkmcnt(0)
v_mul_f32 v44, v36, v44
v_mul_f32 v45, v36, v45
v_fmac_f32 v40, v38, v46
v_fmac_f32 v41, v38, v47
v_add_f32 v40, v40, v44
v_add_f32 v41, v41, v45
s_cmp_lg_u32 s75, 0
v_cvt_pk_bf16_f32 v52, v40, v41
s_cbranch_scc1 L_h1_far
buffer_store_dwordx2 v[52:53], v25, s[52:55], s6 offen offset:128
""")
    stamp(5)
    def h1poll(sfx, fl, pipe):
        full = [f"buffer_load_dwordx4 v[{64+4*k}:{67+4*k}], v26, s[52:55], s7 offen offset:{128+k*1024} {fl}" for k in range(4)]
        poll("L_h1" + sfx, full, lambda: chk8([65, 67, 69, 71, 73, 75, 77, 79], 80), st=4, pipe=pipe, stag=stag1)
    h1poll("", h1fl, pipe1)
    a("L_h1_got:")
    stamp(6)
    AO = 96; DD = 112
    if h2late: a(f"s_mov_b64 exec, 1\nds_add_rtn_u32 v54, v9, v11 offset:{FLG+24}\ns_mov_b64 exec, -1")
    def mv(kk, p):
        src = 64 + 8 * (kk & 1) + 2 * p
        if kk >= 2: a(f"v_mov_b32_dpp v{AO+4*kk+p}, v{src} row_ror:8 row_mask:0xf bank_mask:0xf")
        else: a(f"v_mov_b32 v{AO+4*kk+p}, v{src}")
    for p in range(4): mv(0, p)
    for kk in range(4):
        for nt_ in range(4):
            d = DD + 4 * nt_; b = WB + 16 * nt_ + 4 * kk
            if kk < 3 and nt_ < 2: mv(kk + 1, 2 * nt_); mv(kk + 1, 2 * nt_ + 1)
            a(f"v_mfma_f32_16x16x32_bf16 v[{d}:{d+3}], v[{AO+4*kk}:{AO+4*kk+3}], v[{b}:{b+3}], {'0' if kk == 0 else f'v[{d}:{d+3}]'}")
    GO = 128
    if h2late: a("s_waitcnt lgkmcnt(0)\nv_readfirstlane_b32 s59, v54")
    for t in range(4):
        a(f"v_mul_f32 v{GO+t}, v56, v{DD+4*t}")
        a(f"v_mul_f32 v{GO+4+t}, v58, v{DD+4*t+2}")
    for t in range(4):
        a(f"v_fmac_f32 v{GO+t}, v57, v{DD+4*t+1}")
        a(f"v_fmac_f32 v{GO+4+t}, v59, v{DD+4*t+3}")
    for t in range(4): a(f"v_add_f32 v{GO+t}, v{GO+t}, v{GO+4+t}")
    pack16(GO, [GO, GO + 1, GO + 2, GO + 3], 10)
    if h2late:
        a("s_cmp_eq_u32 s59, 3\ns_cbranch_scc1 L_hl_done")
        lds_wait("L_hl", FLG + 24, 4)
    a(f"s_mov_b64 exec, 0xffffffff\nbuffer_store_dwordx4 v[{GO}:{GO+3}], v28, s[52:55], s8 offen sc1")
    if tailprof: stamp(2)
    if h2sync and not h2late: lds_signal(FLG + 24)
    a(f"""
s_mov_b64 exec, -1
s_cmp_lg_u32 s3, 0
s_cbranch_scc1 L_hend
""")
    if h2sync and not h2late: lds_wait("L_hw", FLG + 24, 4)
    if h2ack: a("s_waitcnt vmcnt(0)")
    poll("L_h2", h2l, lambda: chk16([136, 140], 56, 12), st=3, pipe=pipe2, stag=stag2, sl=slp2)
    for i in range(8): a(f"v_and_b32 v{48+i}, 0xffffff00, v{136+i}")
    for i in range(4): a(f"v_add_f32 v{48+i}, v{48+i}, v{52+i}")
    a(f"""
v_permlane32_swap_b32 v48, v50
v_permlane32_swap_b32 v49, v51
v_add_f32 v48, v48, v50
v_add_f32 v49, v49, v51
v_permlane16_swap_b32 v48, v49
v_add_f32 v48, v48, v49
v_add_f32_dpp v48, v48, v48 row_ror:4 row_mask:0xf bank_mask:0xf
v_add_f32_dpp v48, v48, v48 row_ror:8 row_mask:0xf bank_mask:0xf
s_mov_b32 exec_lo, 0x000f000f
s_mov_b32 exec_hi, 0x000f000f
v_cvt_pk_bf16_f32 v48, v48, v48
v_lshlrev_b32 v48, 16, v48
v_mul_f32 v48, v48, v16
v_cvt_pk_bf16_f32 v48, v48, v48
v_lshlrev_b32 v48, 16, v48
v_add_f32 v48, v48, v14
v_cvt_pk_bf16_f32 v48, v48, v48
buffer_store_short v48, v30, s[64:67], s10 offen {"sc1" if clean else ""}
s_mov_b64 exec, 1
s_cmp_lg_u32 s2, 0
s_cbranch_scc1 L_hend
v_mov_b32 v10, s42
buffer_store_dword v10, v9, s[52:55], 0 offen sc1
L_hend:
""")
    stamp(7)
    a("s_waitcnt vmcnt(0)")
    if isinstance(dbgt, str):
        AMP = 96 << 20
        def red(op, r, steps, t=70):
            for n in steps:
                if n < 16: a(f"{op}_dpp v{r}, v{r}, v{r} row_ror:{n} row_mask:0xf bank_mask:0xf")
                else: a(f"v_mov_b32 v{t}, v{r}\nv_permlane{n}_swap_b32 v{r}, v{t}\n{op} v{r}, v{r}, v{t}")
        a(f"""
s_cmp_lg_u32 s3, 0
s_cbranch_scc1 L_dbgt
s_memrealtime s[88:89]
s_mov_b64 exec, 1
s_waitcnt lgkmcnt(0)
v_mov_b32 v12, s84
v_mov_b32 v13, s92
v_mov_b32 v14, s88
v_mov_b32 v15, s12
s_lshl_b32 s59, s2, 4
s_add_u32 s59, s59, {AMP}
buffer_store_dwordx4 v[12:15], v9, s[52:55], s59 offen sc1
s_waitcnt vmcnt(0)
s_mov_b64 exec, -1
s_cmp_lg_u32 s2, 0
s_cbranch_scc1 L_dbgt
v_lshlrev_b32 v2, 4, v1
s_mov_b32 s6, {AMP}
""")
        poll("L_amp", [f"buffer_load_dwordx4 v[{40+4*k}:{43+4*k}], v2, s[52:55], s6 offen offset:{1024*k} sc1" for k in range(4)], lambda: chk8([43, 47, 51, 55], 80), sl=8)
        for k in range(4):
            for c in range(3): a(f"v_subrev_u32 v{40+4*k+c}, s84, v{40+4*k+c}")
        ALL = [8, 4, 2, 1, 16, 32]
        def stat(op, c, dst, steps=ALL):
            a(f"{op} v{dst}, v{40+c}, v{44+c}\n{op} v71, v{48+c}, v{52+c}\n{op} v{dst}, v{dst}, v71")
            red(op, dst, steps)
        stat("v_min_i32", 0, 60)
        if dbgt == "startmax": stat("v_max_i32", 0, 61)
        if dbgt == "bmin": stat("v_min_i32", 1, 61)
        if dbgt == "bmax": stat("v_max_i32", 1, 61)
        if dbgt == "emax": stat("v_max_i32", 2, 61)
        if dbgt == "bmean": stat("v_add_u32", 1, 61); a("v_ashrrev_i32 v61, 8, v61")
        if dbgt == "xs":
            stat("v_add_u32", 1, 61, [8, 16, 32]); a("v_ashrrev_i32 v61, 5, v61\nv_mov_b32 v60, v61")
            red("v_max_i32", 61, [4, 2, 1]); red("v_min_i32", 60, [4, 2, 1])
        a(f"""
v_sub_u32 v61, v61, v60
s_nop 1
v_readfirstlane_b32 s59, v61
s_mul_i32 s59, s59, 10
s_add_u32 s59, s59, 5000
s_min_u32 s59, s59, 100000
L_dbgs:
s_memrealtime s[90:91]
s_waitcnt lgkmcnt(0)
s_sub_u32 s58, s90, s84
s_cmp_lt_u32 s58, s59
s_cbranch_scc1 L_dbgs
L_dbgt:
""")
    elif dbgt == 2:
        a(f"""
s_or_b32 s59, s2, s3
s_cmp_lg_u32 s59, 0
s_cbranch_scc1 L_dbgt
s_memrealtime s[88:89]
s_waitcnt lgkmcnt(0)
s_sub_u32 s59, s88, s84
s_mul_i32 s59, s59, 10
s_min_u32 s59, s59, 100000
L_dbgs:
s_memrealtime s[90:91]
s_waitcnt lgkmcnt(0)
s_sub_u32 s58, s90, s88
s_cmp_lt_u32 s58, s59
s_cbranch_scc1 L_dbgs
L_dbgt:
""")
    elif dbgt:
        a(f"""
s_memrealtime s[88:89]
s_memtime s[90:91]
s_mov_b32 s44, s38
s_mov_b32 s45, s39
s_mov_b32 s46, 256
s_mov_b32 s47, 0x20000
s_mov_b64 exec, 1
s_waitcnt lgkmcnt(0)
s_not_b32 s59, s84
v_mov_b32 v12, s88
v_mov_b32 v13, s59
buffer_atomic_umax v12, v9, s[44:47], 0 offen sc1
buffer_atomic_umax v13, v9, s[44:47], 0 offen offset:4 sc1
s_cmp_lg_u32 s3, 0
s_cbranch_scc1 L_dbgt
s_and_b32 s59, s2, 0x7f
s_cmp_lg_u32 s59, 0
s_cbranch_scc1 L_dbgt
s_lshr_b32 s59, s2, 3
v_mov_b32 v12, s84
v_mov_b32 v13, s88
v_mov_b32 v14, s86
v_mov_b32 v15, s90
buffer_store_dwordx4 v[12:15], v9, s[44:47], s59 offen offset:16 sc1
L_dbgt:
s_waitcnt vmcnt(0)
""")
    if prof:
        a(f"""
s_mov_b64 exec, 1
s_sleep 127
s_waitcnt lgkmcnt(0)
s_lshl_b32 s59, s2, 3
s_add_u32 s59, s59, s3
s_add_u32 s59, s59, 4
s_lshl_b32 s59, s59, 6
s_add_u32 s59, s59, {STAMP}
""")
        for i in range(0, 8):
            a(f"v_mov_b32 v12, s{84+2*i}\nv_mov_b32 v13, s{85+2*i}\nbuffer_store_dwordx2 v[12:13], v9, s[52:55], s59 offen offset:{8*i}\ns_waitcnt vmcnt(0)")
    a("""L_end:
s_endpgm
L_h1_far:
buffer_store_dwordx2 v[52:53], v25, s[52:55], s6 offen offset:128 sc1
""")
    h1poll("x", "sc1", 1)
    a("s_branch L_h1_got")
    if fc:
        a("L_cb:\ns_waitcnt lgkmcnt(0)\ns_mov_b32 s71, 0")
        for i in range(8): a(f"s_cmp_lg_u32 s{4+i}, s73\ns_addc_u32 s71, s71, 0")
        if not fc.get("wg"):
            a(f"""
s_cmp_lt_u32 s71, {fc['th1']}
s_cselect_b32 s62, 2, 0
s_cmp_ge_u32 s71, {fc['th2']}
s_cselect_b32 s62, 1, s62
""")
            if prof: a("s_lshl_b64 s[82:83], s[82:83], 2\ns_or_b32 s82, s82, s62")
            a("s_setpc_b64 s[80:81]")
        else:
            bias = 16 * fc["CW"]
            a(f"""
s_mul_i32 s74, s71, {fc.get('kx', 0)}
{"s_lshl_b64 s[82:83], s[82:83], 4" if prof and fc.get("tm") else ""}
{"s_or_b32 s82, s82, s71" if prof and fc.get("tm") else ""}
s_branch L_cc
L_cw:
v_add_u32_dpp v85, v85, v85 row_ror:4 row_mask:0xf bank_mask:0xf
v_add_u32_dpp v85, v85, v85 row_ror:2 row_mask:0xf bank_mask:0xf
v_add_u32_dpp v85, v85, v85 row_ror:1 row_mask:0xf bank_mask:0xf
v_readfirstlane_b32 s69, v85
s_sub_u32 s75, s68, s69
s_sub_u32 s75, s75, {bias}
L_cc:
s_add_u32 s68, s75, s74
s_cmp_lt_i32 s68, {-fc['b']}
s_cselect_b32 s62, 2, 0
s_cmp_gt_i32 s68, {fc['a']}
s_cselect_b32 s62, 1, s62
""")
            if prof and not fc.get("tm"): a("s_lshl_b64 s[82:83], s[82:83], 2\ns_or_b32 s82, s82, s62")
            a("s_setpc_b64 s[80:81]")
    a("L_mlp:")
    for t in range(7): a(f"v_fma_f32 v{U+t}, s4, v{W1+t}, v{B1+t}")
    for t in range(7): a(f"v_mul_f32 v{AA+t}, v{U+t}, v{U+t}")
    for t in range(7): a(f"v_fmaak_f32 v{AA+t}, v{AA+t}, v{C1}, {f32(c0)}")
    for t in range(7): a(f"v_mul_f32 v{AA+t}, v{AA+t}, v{U+t}")
    for t in range(7): a(f"v_exp_f32 v{EE+t}, v{AA+t}")
    for t in range(7): a(f"v_mul_f32 v{U+t}, v{U+t}, v{W2+t}")
    for t in range(7): a(f"v_add_f32 v{EE+t}, 1.0, v{EE+t}")
    for t in range(7): a(f"v_rcp_f32 v{EE+t}, v{EE+t}")
    a(f"v_mul_f32 v{ACC2}, v{U}, v{EE}")
    a(f"v_mul_f32 v{AA}, v{U+1}, v{EE+1}")
    for t in range(2, 7): a(f"v_fmac_f32 v{ACC2 if t % 2 == 0 else AA}, v{U+t}, v{EE+t}")
    a(f"v_add_f32 v{ACC2}, v{ACC2}, v{AA}")
    for n in (8, 4, 2, 1): a(f"v_add_f32_dpp v{ACC2}, v{ACC2}, v{ACC2} row_ror:{n} row_mask:0xf bank_mask:0xf")
    swaps_add(ACC2, AA)
    a(f"""
s_mov_b64 exec, 1
ds_write_b32 v{YA}, v{ACC2} offset:{YP}
s_mov_b64 exec, -1
v_add_u32 v{YA}, 4, v{YA}
s_setpc_b64 s[80:81]
""")
    body = a.render()
    txt = HDR + f"""; @launch grid=(256,1,1) block=(512,1,1) lds={LDSZ}
.amdgcn_target "amdgcn-amd-amdhsa--gfx950"
.text
.globl {KN}_kernel
.p2align 8
.type {KN}_kernel,@function
{KN}_kernel:
""" + body + f""".section .rodata,"a"
.p2align 6
.amdhsa_kernel {KN}_kernel
  .amdhsa_next_free_vgpr 256
  .amdhsa_next_free_sgpr 102
  .amdhsa_accum_offset 256
  .amdhsa_group_segment_fixed_size 0
  .amdhsa_kernarg_size 104
  .amdhsa_user_sgpr_count 2
  .amdhsa_user_sgpr_kernarg_segment_ptr 1
  .amdhsa_system_sgpr_workgroup_id_x 1
.end_amdhsa_kernel
"""
    open(fname, "w").write(txt)
if __name__ == "__main__":
    import glob, os
    for f in glob.glob("kp_*.s"): os.remove(f)
    gen("k1.s", mlp1=4, slp=0)
    kw = dict(prof=True, tailprof=True, mlp1=4, slp=0, rq=1, wolate=[5, 7, 9, 11])
    gen("kp_00.s", **kw)
    F = dict(wg=1, x=1, G=2, kx=24, a=64, b=-16, W=(4,6,12), d=6, C=3, CW=2)
    gen("kp_01.s", fc=F, **kw)
    gen("kp_02_nowork.s", fc=F, dbg="nok nosm nov", **kw)
    gen("kp_03_nosm.s", fc=F, dbg="nosm", **kw)
    gen("kp_04_nowq.s", fc=F, dbg="nowq", **kw)
    gen("kp_05_nowork_nowq.s", fc=F, dbg="nok nosm nov nowq", **kw)
    gen("kp_06_nowork_nowq_nomlp.s", fc=F, dbg="nok nosm nov nowq nomlp", **kw)
    gen("kp_07_nofc_nowork.s", dbg="nok nosm nov", **kw)
    gen("kp_08_nofc_nowork_nowq.s", dbg="nok nosm nov nowq", **kw)
```

```python
import gen, gen_v6, glob, os
for f in glob.glob("e?_*.s"): os.remove(f)
kw = dict(mlp1=2, slp=0, rq=1, wolate=[5, 7, 9, 11], dbgt="emax")
F = dict(wg=1, x=1, G=2, kx=24, a=64, b=-16, W=(4,6,12), d=6, C=3, CW=2)
gen_v6.gen("e1_v6fc.s", fc=F, **{**kw, "mlp1": 4})
gen.gen("e2_new.s", **kw)
gen.gen("e3_new_fc.s", fc=F, **kw)
gen.gen("e4_wSt.s", tmap=(14, 16, None), **kw)
gen.gen("e5_wSt_fc.s", tmap=(14, 16, None), fc=F, **kw)
gen.gen("e6_wStx_fc.s", tmap=(14, 16, 16), fc=F, **kw)
```

```python
import gen, gen_v6, glob, os
for f in glob.glob("e?_*.s"): os.remove(f)
kw = dict(mlp1=2, slp=0, rq=1, wolate=[5, 7, 9, 11], dbgt="emax", tmap=(14, 16, None))
F = dict(wg=1, x=1, G=2, kx=24, a=64, b=-16, W=(4,6,12), d=6, C=3, CW=2)
gen.gen("e1_nofc.s", **kw)
gen.gen("e2_fc.s", fc=F, **kw)
gen.gen("e3_wgonly.s", fc={**F, "x": 0, "b": 40}, **kw)
gen.gen("e4_boost.s", fc={**F, "W": (6, 6, 12)}, **kw)
gen.gen("e5_soft.s", fc={**F, "W": (5, 6, 10)}, **kw)
gen.gen("e6_cw4.s", fc={**F, "CW": 4, "C": 6}, **kw)
```

```python
import gen
F = dict(wg=1, x=1, G=2, kx=24, a=64, b=-16, W=(4,6,12), d=6, C=3, CW=2)
kw = dict(mlp1=2, slp=0, rq=1, wolate=[5, 7, 9, 11], tmap=(14, 16, None))
gen.gen("k7.s", fc=F, **kw)
gen.gen("k7w.s", fc={**F, "x": 0, "b": 40}, **kw)
gen.gen("k7n.s", **kw)
```

```python
import sys, struct, math
from asmlib import Asm
KN = "recurrent_scan__gqa_block_cached__mixer_token_mlp__decode"
def f32(x): return "0x%08x" % struct.unpack("<I", struct.pack("<f", x))[0]
LOG2E = 1.4426950408889634
FLG = 0; QL = 64; ST = QL + 1024; YP = ST + 128; OP = YP + 256; XN = OP + 4 * 2304; XRS = 1040; WQL = XN + 8 * XRS; KL = WQL + 32768
QOFF = 64 << 10; H1OFF = QOFF + (1 << 20); H1S = 4224; H2OFF = H1OFF + (640 << 10); BD = 4 << 20; PGOFF = 8 << 10; LOCOFF = 32 << 10; STAMP = 128 << 20
HDR = open("cdna_kernels/" + KN + ".s.ref").read().split("; Override launch")[0]

def gen(fname, WIN=6, G=2, RING=40, prof=False, wo_thr=4, ntw="", woflags="", spin=400000, dbg="", WPS=1, dry=False, tailprof=False, NLT=6, slp=2, wqdma=True, sprio=2, bgprio=0, mlp1=8, local=True, fb=31, deferB=True, pretouch=False, pat=None, pat2=None, rot=None, cmap=0, light=False, lslp=0, h1fl='nt', h2sync=True, fc=None, est=None, rq=0, ro=0, sE=True, wolate=None, n0=64, pipe1=1, pipe2=1, stag1=3, stag2=3, h2late=True, h2ack=True, h2pre=False, h2full=False, slp2=0, dbgt=False, dirty=0, clean=False, qslp=None, nloc=200, tmap=(14, 16, None), wotrig=None, wothr=2, wosl=2, womid=True, palign=0):
    a = Asm()
    LDSZ = KL + 4 * NLT * 4096
    NLL = 4 * NLT
    NST = 8
    def stamp(i):
        if prof: a(f"s_memrealtime s[{84+2*i}:{85+2*i}]")
    stamp(0)
    if dbgt: a("s_memrealtime s[84:85]\ns_memtime s[86:87]")
    a(f"""
s_load_dwordx2 s[44:45], s[0:1], 8
s_load_dwordx2 s[48:49], s[0:1], 16
v_lshrrev_b32 v2, 6, v0
s_cmp_ge_u32 s2, 256
v_and_b32 v1, 63, v0
v_readfirstlane_b32 s3, v2
s_cbranch_scc1 L_end
s_cmp_ge_u32 s3, 4
s_cbranch_scc1 L_helper
""")
    a(f"""
s_setprio {sprio}
s_mov_b32 s46, 0x4000000
s_mov_b32 s47, 0x20000
s_and_b32 s52, s2, 7
s_lshl_b32 s52, s52, 20
s_lshr_b32 s53, s2, 5
s_lshl_b32 s53, s53, 23
s_or_b32 s52, s52, s53
s_bfe_u32 s53, s2, 0x20003
s_lshl_b32 s53, s53, {tmap[0]}
s_or_b32 s52, s52, s53
s_lshl_b32 s53, s3, 12
s_or_b32 s52, s52, s53
s_mul_i32 s60, s3, {NLT*4096}
s_add_u32 s60, s60, {KL}
v_lshrrev_b32 v5, 4, v1
v_bfe_u32 v6, v1, 2, 2
v_and_b32 v7, 3, v1
v_lshlrev_b32 v2, 8, v6
v_lshl_add_u32 v2, v5, 6, v2
v_lshl_add_u32 v2, v7, 4, v2
""")
    if tmap[2]: a(f"s_and_b32 s53, s2, 7\ns_lshl_b32 s53, s53, {tmap[2]}\ns_xor_b32 s52, s52, s53")
    def late_setup():
        a(f"""
s_load_dwordx2 s[38:39], s[0:1], 88
s_load_dwordx2 s[40:41], s[0:1], 96
s_mov_b32 s50, 0x4000000
s_mov_b32 s51, 0x20000
v_lshlrev_b32 v3, 4, v1
""")
        if fc: a(f"""
s_lshr_b32 s64, s2, 3
s_cmp_eq_u32 s3, 0
s_cselect_b32 s64, s64, 64
s_and_b32 s65, s2, 7
s_lshl_b32 s63, s65, 3
s_lshl_b32 s65, s65, {3 if fc.get("ts") else 2}
v_mov_b32 v83, s65
s_mov_b32 s62, {fc.get('l0', 0)}
s_mov_b64 s[82:83], 0
s_getreg_b32 s66, hwreg(HW_REG_XCC_ID, 0, 3)
s_lshl_b32 s66, s66, 5
s_lshr_b32 s67, s2, 3
s_add_u32 s67, s67, s66
v_mov_b32 v88, s67
v_and_b32 v87, 7, v1
v_lshl_add_u32 v87, v87, 2, s66
s_mov_b32 s74, 0
s_mov_b32 s75, 0
s_cmp_eq_u32 s3, 0
s_cselect_b64 vcc, 1, 0
s_waitcnt lgkmcnt(0)
s_load_dword s73, s[40:41], 0
s_mov_b32 s76, s40
s_mov_b32 s77, s41
s_mov_b32 s78, 0x10000000
s_mov_b32 s79, 0x20000
s_mov_b32 s12, s38
s_mov_b32 s13, s39
s_mov_b32 s14, 256
s_mov_b32 s15, 0x20000
""")
    RB = 256 - RING * 4
    def rreg(n): return RB + ((n - NLL) % RING) * 4
    NL = 128
    st = {"tile": None}
    def issue(n):
        isv = n >= 64; t = (n & 63) >> 2; q = n & 3
        if st["tile"] != (isv, t):
            st["tile"] = (isv, t)
            if tmap: a(f"s_xor_b32 s53, s52, {t << tmap[1]}")
            elif rot is None: a(f"s_add_u32 s53, s52, {t*16384}")
            else: a(f"s_add_u32 s53, s61, {t*16384}\ns_and_b32 s53, s53, 0x3ffff\ns_add_u32 s53, s53, s52")
            if n < NLL: a(f"s_add_u32 m0, s60, {t*4096}\ns_nop 0")
            if n == 0:
                if palign: a(f".p2align {palign}")
                a("s_waitcnt lgkmcnt(0)")
                if st.get("ks"): stamp(7)
        if n < NLL:
            a(f"buffer_load_dwordx4 v2, s[44:47], s53 offen offset:{q*1024} nt lds"); return
        r = rreg(n)
        a(f"buffer_load_dwordx4 v[{r}:{r+3}], {'v3' if isv else 'v2'}, {'s[48:51]' if isv else 's[44:47]'}, s53 offen offset:{q*1024} nt")
    TSR = 6
    QB = 8; Y = 12; ACC = 28; DT = 28; TT = 44; PT = 60; PA = 76; M = 80
    def setup_consts():
        a(f"""
s_mov_b32 s54, 0x05040100
s_mov_b32 s55, 0x07060302
s_mov_b32 s56, {f32(128**-0.5)}
s_mov_b32 s57, {f32(LOG2E)}
v_lshlrev_b32 v4, 8, v7
v_lshl_add_u32 v4, v5, 6, v4
v_lshl_add_u32 v4, v6, 4, v4
v_mov_b32 v84, 0
v_add_u32 v86, s60, v3
""")
    def wait_q():
        stamp(1)
        if "noq" in dbg:
            a(f"ds_read_b128 v[{QB}:{QB+3}], v4 offset:{QL}\ns_waitcnt lgkmcnt(0)"); stamp(2); return
        a(f"""
s_mov_b32 s58, {spin*8}
L_sq:
ds_read_b32 v85, v84 offset:{FLG+4}
s_waitcnt lgkmcnt(0)
v_readfirstlane_b32 s59, v85
s_sub_u32 s58, s58, 1
s_cbranch_scc1 L_sq_done
s_cmp_ge_u32 s59, 4
s_cbranch_scc1 L_sq_done
s_sleep 1
s_branch L_sq
L_sq_done:
ds_read_b128 v[{QB}:{QB+3}], v4 offset:{QL}
s_waitcnt lgkmcnt(0)
""")
        stamp(2)
        if prof: a("s_waitcnt lgkmcnt(0)")
    def ktile(t):
        if t < NLT:
            for q in range(4): a(f"ds_read_b128 v[{PT+4*q}:{PT+4*q+3}], v86 offset:{t*4096+q*1024}")
        for q in range(4):
            r = rreg(4 * t + q) if t >= NLT else PT + 4 * q
            if t < NLT: a(f"s_waitcnt lgkmcnt({3-q})")
            a(f"v_mfma_f32_16x16x32_bf16 v[{DT+4*q}:{DT+4*q+3}], v[{r}:{r+3}], v[{QB}:{QB+3}], 0")
        for c in range(4):
            for r in range(4):
                n = 4 * ((c - r) % 4)
                ctl = f"row_ror:{n}" if n else "quad_perm:[0,1,2,3]"
                a(f"v_mov_b32_dpp v{TT+r}, v{DT+4*c+r} {ctl} row_mask:0xf bank_mask:{hex(1<<c)}")
        y = Y + t
        a(f"""
v_add_f32 v{TT}, v{TT}, v{TT+1}
v_add_f32 v{TT+2}, v{TT+2}, v{TT+3}
v_add_f32 v{y}, v{TT}, v{TT+2}
v_cvt_pk_bf16_f32 v{y}, v{y}, v{y}
v_lshlrev_b32 v{y}, 16, v{y}
v_mul_f32 v{y}, s56, v{y}
v_cvt_pk_bf16_f32 v{y}, v{y}, v{y}
v_lshlrev_b32 v{y}, 16, v{y}
""")
    def xlane(op, r, t):
        a(f"""
{op}_dpp v{r}, v{r}, v{r} row_ror:4 row_mask:0xf bank_mask:0xf
""") if op != "v_add_f32" else a(f"""
v_add_f32_dpp v{r}, v{r}, v{r} row_ror:4 row_mask:0xf bank_mask:0xf
""")
        a(f"""
{op}_dpp v{r}, v{r}, v{r} row_ror:8 row_mask:0xf bank_mask:0xf
v_mov_b32 v{t}, v{r}
v_permlane16_swap_b32 v{r}, v{t}
{op} v{r}, v{r}, v{t}
v_mov_b32 v{t}, v{r}
v_permlane32_swap_b32 v{r}, v{t}
{op} v{r}, v{r}, v{t}
""")
    def softmax():
        m = M; l = M + 1; t = M + 2
        a(f"v_max3_f32 v{m}, v{Y}, v{Y+1}, v{Y+2}")
        for i in range(3, 15, 2): a(f"v_max3_f32 v{m}, v{m}, v{Y+i}, v{Y+i+1}")
        a(f"v_max_f32 v{m}, v{m}, v{Y+15}")
        xlane("v_max_f32", m, t)
        a(f"v_mul_f32 v{m}, s57, v{m}")
        for i in range(16): a(f"v_fma_f32 v{Y+i}, v{Y+i}, s57, -v{m}")
        for i in range(16): a(f"v_exp_f32 v{Y+i}, v{Y+i}")
        a(f"v_add_f32 v{l}, v{Y}, v{Y+1}")
        a(f"v_add_f32 v{t}, v{Y+2}, v{Y+3}")
        for i in range(4, 16, 2):
            a(f"v_add_f32 v{l}, v{l}, v{Y+i}")
            a(f"v_add_f32 v{t}, v{t}, v{Y+i+1}")
        a(f"v_add_f32 v{l}, v{l}, v{t}")
        for v in range(8): a(f"v_cvt_pk_bf16_f32 v{Y+v}, v{Y+2*v}, v{Y+2*v+1}")
        xlane("v_add_f32", l, t)
        a(f"""
s_lshl_b32 s59, s3, 5
v_lshl_add_u32 v{t}, v1, 3, s59
s_mov_b64 exec, 15
ds_write_b64 v{t}, v[{m}:{m+1}] offset:{ST}
s_mov_b64 exec, 1
v_mov_b32 v{t}, 1
ds_add_u32 v84, v{t} offset:{FLG+16}
s_mov_b64 exec, -1
""")
    def vchunk(v):
        a(f"v_mov_b32 v{PA}, v{Y+v}")
        for p in (1, 2, 3):
            a(f"v_mov_b32_dpp v{PA+p}, v{Y+v} row_ror:{4*((0-p)%4)} row_mask:0xf bank_mask:0xf")
        for half in range(2):
            for jj in range(4 * half, 4 * half + 4):
                o = PT + 4 * (jj & 3)
                for p in range(4):
                    lo = rreg(64 + 8 * v + p) + (jj >> 1); hi = rreg(64 + 8 * v + 4 + p) + (jj >> 1)
                    a(f"v_perm_b32 v{o+p}, v{hi}, v{lo}, {'s55' if jj & 1 else 's54'}")
            for jj in range(4 * half, 4 * half + 4):
                o = PT + 4 * (jj & 3); d = ACC + 4 * jj
                c = "0" if v == 0 else f"v[{d}:{d+3}]"
                a(f"v_mfma_f32_16x16x32_bf16 v[{d}:{d+3}], v[{PA}:{PA+3}], v[{o}:{o+3}], {c}")
    work = [("K", t, 4 * t + 3) for t in list(range(NLT, 16)) + list(range(NLT))] + [("S", 0, 63)] + [("V", v, 64 + 8 * v + 7) for v in range(8)]
    consumed = NLL - 1
    wi = 0
    def do_work():
        nonlocal wi, consumed
        k, i, last = work[wi]
        if k == "K":
            if wi == 0: wait_q()
            if "nok" not in dbg: ktile(i)
            consumed = max(consumed, last)
        elif k == "S":
            if "nosm" in dbg: a(f"s_mov_b64 exec, 1\nv_mov_b32 v82, 1\nds_add_u32 v84, v82 offset:{FLG+16}\ns_mov_b64 exec, -1")
            else: softmax()
            stamp(3)
        else:
            if "nov" not in dbg: vchunk(i)
            consumed = last
        wi += 1
    issued = 0
    ops = []
    def iss(n): issue(n); ops.append(("L", n))
    def vm_for(X):
        li = [i for i, o in enumerate(ops) if o[0] == "L"]
        if len(li) <= X: return None
        p = li[len(li) - X - 1]
        return len(ops) - 1 - p, p
    if pat is None: pat = [(WIN, G)]
    if fc: pat = [(fc["W"][1], fc["G"])]
    if est == [-1, -1]: stamp(5); st["ks"] = 1
    for n in range(pat[0][0]): iss(n)
    if est == [-1, -1]: stamp(6); est = [None, None]
    issued = pat[0][0]
    late_setup()
    a("s_barrier")
    setup_consts()
    arrived = -1
    step = 0
    done_op = -1; nw = 0; ph = 0; nctl = 0; evalq = []; PAIRS = [88, 92, 94]; tagdone = False
    while issued < NL:
        pp = pat2 if (pat2 is not None and issued >= n0) else pat
        WIN, G = pp[step % len(pp)]; step += 1
        if not fc:
            if issued - (WIN - G) - 1 > arrived: a(f"s_waitcnt vmcnt({WIN-G})")
            arrived = max(arrived, issued - (WIN - G) - 1)
        else:
            Wl, Wm, Wh = fc["W"]
            opened = False
            for n_, W_ in fc.get("open", []):
                if issued >= n_: Wl, Wm, Wh = W_; opened = Wl == Wh
            while issued + G - 1 - RING > consumed and work[wi][2] > max(arrived, issued - (Wh - G) - 1): Wh -= 1; Wm = min(Wm, Wh); Wl = min(Wl, Wh)
            r = vm_for(Wh - G)
            if r and issued - (Wh - G) - 1 > arrived: a(f"s_waitcnt vmcnt({r[0]})"); done_op = max(done_op, r[1]); arrived = max(arrived, issued - (Wh - G) - 1)
            if not opened: a(f"""
s_cmp_eq_u32 s62, 2 ;nc
s_cbranch_scc1 L_fs{step} ;nc
s_waitcnt vmcnt({vm_for(Wm - G)[0]}) ;nc
s_cmp_eq_u32 s62, 0 ;nc
s_cbranch_scc1 L_fs{step} ;nc
s_waitcnt vmcnt({vm_for(Wl - G)[0]}) ;nc
L_fs{step}:
""")
        if est:
            for i_, e_ in enumerate(est):
                if e_ is not None and arrived >= e_: stamp(5 + i_); est[i_] = None
        g = min(G, NL - issued)
        while issued + g - 1 - RING > consumed:
            if work[wi][2] > arrived:
                assert not fc
                a(f"s_waitcnt vmcnt({issued - 1 - work[wi][2]})"); arrived = work[wi][2]
            do_work()
        for n in range(issued, issued + g): iss(n)
        if wotrig is not None and wotrig >= 0 and issued <= wotrig < issued + g:
            a(f"s_mov_b64 exec, 1\nv_mov_b32 v82, 1\nds_add_u32 v84, v82 offset:{FLG+28}\ns_mov_b64 exec, -1")
        if fc:
            d = fc["d"]; k0 = fc.get("k0", 2); last = (NL - fc.get("stop", 8) - fc["W"][1]) // G
            if step == k0:
                a("s_waitcnt lgkmcnt(0)\ns_add_u32 s73, s73, 1\nv_mov_b32 v90, s73")
            if fc.get("wg"):
                for e in [e for e in evalq if e[0] <= done_op]:
                    evalq.remove(e)
                    a(f"v_sad_u8 v85, v{e[1]}, 0, 0\ns_movk_i32 s68, {32 * e[2]}\ns_call_b64 s[80:81], L_cw")
                if step >= fc.get("kw", 4) and step % fc["CW"] == 0 and step <= last and not opened:
                    r_ = [91, 92, 93, 94, 95, 86 if NLT == 0 else 5][nw % 6]; nw += 1; assert len(evalq) < 6
                    a(f"""
v_mov_b32 v89, {step}
s_mov_b64 exec, vcc
buffer_store_byte v89, v88, s[12:15], 0 offen
s_mov_b64 exec, -1
buffer_load_dword v{r_}, v87, s[12:15], 0 offen nt
""")
                    ops.append(("S", 0)); ops.append(("C", 0)); evalq.append((len(ops) - 1, r_, step))
            if fc.get("ts"):
                for i_, k_ in enumerate(fc["ts"]):
                    if step == k_ - 1: a("s_memrealtime s[34:35]")
                    if step == k_:
                        a(f"""
s_waitcnt lgkmcnt(0)
s_add_u32 s34, s34, s75
v_mov_b32 v96, s34
v_mov_b32 v97, s73
s_movk_i32 s65, {PGOFF + i_ * 256}
s_cmp_eq_u32 s64, {(5 * i_ + 3) % 32}
s_cselect_b64 exec, 1, 0
buffer_store_dwordx2 v[96:97], v83, s[76:79], s65 offen sc1
s_mov_b64 exec, -1
""".replace("v96", f"v{TSR}").replace("v97", f"v{TSR+1}").replace("v[96:97]", f"v[{TSR}:{TSR+1}]"))
                        ops.append(("S", 0))
                    if step == k_ + d:
                        a(f"s_load_dwordx16 s[16:31], s[40:41], {PGOFF + i_ * 256}\ns_load_dwordx2 s[32:33], s[40:41], s63 offset:{PGOFF + i_ * 256}\ns_memrealtime s[36:37]")
                    if step == k_ + d + fc.get("dl", 3): a("s_call_b64 s[80:81], L_cx")
            if k0 <= step <= last - d and fc.get("x", 1):
                a(f"""
s_movk_i32 s65, {PGOFF + step * 256}
s_cmp_eq_u32 s64, {step % 32}
s_cselect_b64 exec, 1, 0
buffer_store_dword v90, v83, s[76:79], s65 offen sc1
s_mov_b64 exec, -1
""")
                ops.append(("S", 0))
            if step >= k0 + d and (step - k0 - d) % fc["C"] == 0:
                if nctl > 0: a("s_call_b64 s[80:81], L_cb"); nctl = 0
                if step <= last and fc.get("x", 1):
                    a(f"s_load_dwordx8 s[4:11], s[40:41], {PGOFF + (step - d) * 256}"); nctl = 1
        issued += g
        for _ in range(WPS):
            if wi < len(work) and work[wi][2] <= arrived and (wi > 0 or issued + G - 1 - RING > consumed):
                do_work()
    while wi < len(work):
        need_ = work[wi][2]
        if wi == len(work) - 1 and wotrig is not None and wotrig >= 200:
            a(f"s_waitcnt vmcnt({vm_for(wotrig - 200)[0]})")
            a(f"s_mov_b64 exec, 1\nv_mov_b32 v82, 1\nds_add_u32 v84, v82 offset:{FLG+28}\ns_mov_b64 exec, -1")
        if need_ > arrived:
            r = vm_for(NL - 1 - need_) if fc else (NL - 1 - need_,)
            a(f"s_waitcnt vmcnt({r[0]})"); arrived = need_
        do_work()
    stamp(4)
    a(f"""
s_mul_i32 s59, s3, 2304
v_mul_u32_u24 v4, 144, v1
v_add_u32 v4, s59, v4
s_mov_b64 exec, 0xffff
""")
    for jj in range(8):
        a(f"ds_write_b128 v4, v[{ACC+4*jj}:{ACC+4*jj+3}] offset:{OP+16*jj}")
    a("""
s_mov_b64 exec, -1
s_waitcnt lgkmcnt(0)
s_barrier
""")
    if dirty:
        a(f"""
s_mov_b32 s44, s40
s_mov_b32 s45, s41
s_mov_b32 s46, 0x10000000
s_mov_b32 s47, 0x20000
s_lshl_b32 s59, s2, 2
s_add_u32 s59, s59, s3
s_mul_i32 s59, s59, {dirty*1024}
s_add_u32 s59, s59, {64 << 20}
s_sleep 64
""")
        for i in range(dirty): a(f"buffer_store_dwordx4 v[28:31], v3, s[44:47], s59 offen\ns_add_u32 s59, s59, 1024")
    if prof:
        a(f"""
s_mov_b32 s44, s40
s_mov_b32 s45, s41
s_mov_b32 s46, 0x10000000
s_mov_b32 s47, 0x20000
s_sleep 127
s_sleep 127
s_sleep 127
s_waitcnt lgkmcnt(0)
s_lshl_b32 s59, s2, 3
s_add_u32 s59, s59, s3
s_lshl_b32 s59, s59, 6
s_add_u32 s59, s59, {STAMP}
v_mov_b32 v4, 0
s_mov_b64 exec, 1
""")
        for i in range(8):
            sr = 82 if (i == 5 and fc and not est) else 84 + 2 * (i if est else min(i, 4))
            a(f"v_mov_b32 v8, s{sr}\nv_mov_b32 v9, s{sr+1}\nbuffer_store_dwordx2 v[8:9], v4, s[44:47], s59 offen offset:{8*i}\ns_waitcnt vmcnt(0)")
    a("s_endpgm")
    X = 32
    S1 = 12; S2 = 13; T0 = 14; T1 = 15; NM = 16; RS = 18
    W1 = 40; B1 = 47; W2 = 54; HX = 62; U = 66; AA = 73; EE = 80; ACC2 = 87; C1 = 88; YA = 89
    WB = 192
    def srd(base, lo, size): a(f"s_mov_b32 s{base}, s{lo}\ns_mov_b32 s{base+1}, s{lo+1}\ns_mov_b32 s{base+2}, {size}\ns_mov_b32 s{base+3}, 0x20000")
    def bfround(r): a(f"v_cvt_pk_bf16_f32 v{r}, v{r}, v{r}\nv_lshlrev_b32 v{r}, 16, v{r}")
    def stats_finish():
        a(f"""
v_mul_f32 v{S1}, {f32(1/512)}, v{S1}
v_mul_f32 v{S2}, {f32(1/512)}, v{S2}
v_fma_f32 v{S2}, -v{S1}, v{S1}, v{S2}
v_max_f32 v{S2}, 0, v{S2}
""")
        bfround(S1); bfround(S2)
        a(f"v_add_f32 v{S2}, {f32(1e-5)}, v{S2}")
        bfround(S2)
        a(f"v_sqrt_f32 v{S2}, v{S2}")
        bfround(S2)
        a(f"""
v_rcp_f32 v{RS}, v{S2}
v_sub_f32 v{NM}, 0, v{S1}
v_sub_f32 v{NM+1}, 0, v{S1}
v_mov_b32 v{RS+1}, v{RS}
""")
    def swaps_add(r, t):
        a(f"""
v_mov_b32 v{t}, v{r}
v_permlane16_swap_b32 v{r}, v{t}
v_add_f32 v{r}, v{r}, v{t}
v_mov_b32 v{t}, v{r}
v_permlane32_swap_b32 v{r}, v{t}
v_add_f32 v{r}, v{r}, v{t}
""")
    def normalize(src, dst, n, tmp):
        for i0 in range(0, n, 4):
            idx = list(range(i0, min(n, i0 + 4)))
            for i in idx:
                t = tmp + 2 * (i - i0)
                a(f"v_lshlrev_b32 v{t}, 16, v{src+i}\nv_and_b32 v{t+1}, 0xffff0000, v{src+i}")
            for i in idx:
                t = tmp + 2 * (i - i0)
                a(f"v_pk_add_f32 v[{t}:{t+1}], v[{t}:{t+1}], v[{NM}:{NM+1}]")
            for i in idx:
                t = tmp + 2 * (i - i0)
                a(f"v_cvt_pk_bf16_f32 v{t}, v{t}, v{t+1}")
            for i in idx:
                t = tmp + 2 * (i - i0)
                a(f"v_and_b32 v{t+1}, 0xffff0000, v{t}\nv_lshlrev_b32 v{t}, 16, v{t}")
            for i in idx:
                t = tmp + 2 * (i - i0)
                a(f"v_pk_mul_f32 v[{t}:{t+1}], v[{t}:{t+1}], v[{RS}:{RS+1}]")
            for i in idx:
                t = tmp + 2 * (i - i0)
                a(f"v_cvt_pk_bf16_f32 v{dst+i}, v{t}, v{t+1}")
    def lds_wait(lbl, off, cnt, sl=0):
        a(f"""
s_mov_b32 s58, {spin*8}
{lbl}:
ds_read_b32 v4, v9 offset:{off}
s_waitcnt lgkmcnt(0)
v_readfirstlane_b32 s59, v4
s_sub_u32 s58, s58, 1
s_cbranch_scc1 {lbl}_done
s_cmp_lt_u32 s59, {cnt}
{f"s_sleep {sl}" if sl else ""}
s_cbranch_scc1 {lbl}
{lbl}_done:
""")
    def lds_signal(off):
        a(f"""
s_mov_b64 exec, 1
ds_add_u32 v9, v11 offset:{off}
s_mov_b64 exec, -1
""")
    def orred(ts):
        ts = list(ts)
        while len(ts) > 1:
            if len(ts) >= 3:
                a(f"v_or3_b32 v{ts[0]}, v{ts[0]}, v{ts[1]}, v{ts[2]}"); ts = ts[3:] + [ts[0]]
            else:
                a(f"v_or_b32 v{ts[0]}, v{ts[0]}, v{ts[1]}"); ts = [ts[0]]
        return ts[0]
    def chk8(tags, tmp):
        for i, t in enumerate(tags): a(f"v_xor_b32 v{tmp+i}, s12, v{t}")
        return orred([tmp + i for i in range(len(tags))])
    def chk16(bases, tmp, tagreg):
        out = []
        for i, b in enumerate(bases):
            a(f"v_perm_b32 v{tmp+2*i}, v{b+1}, v{b}, s20\nv_perm_b32 v{tmp+2*i+1}, v{b+3}, v{b+2}, s21")
        for i, b in enumerate(bases):
            a(f"v_or_b32 v{tmp+2*i}, v{tmp+2*i}, v{tmp+2*i+1}")
        for i, b in enumerate(bases):
            a(f"v_xor_b32 v{tmp+2*i}, s{tagreg}, v{tmp+2*i}"); out.append(tmp + 2 * i)
        return orred(out)
    def pack16(dst, srcs, tagv):
        for i, r in enumerate(srcs): a(f"v_perm_b32 v{dst+i}, v{r}, v{tagv}, s{16+i}")
    def poll(lbl, loads, chk, fbr=None, post=None, st=None, pipe=1, stag=0, sl=None, mid=None):
        if sl is None: sl = slp
        if fbr is not None: a(f"s_mov_b32 s82, s{fbr}\ns_add_u32 s83, s{fbr}, {BD}")
        a(f"s_mov_b32 s58, {spin}")
        for _ in range(pipe - 1):
            for l in loads: a(l)
            if stag: a(f"s_sleep {stag}")
        if mid:
            for l in loads: a(l)
            mid(); a(f"s_branch {lbl}_chk")
        a(f"{lbl}:")
        if st is not None and tailprof: stamp(st)
        for l in loads: a(l)
        if mid: a(f"{lbl}_chk:")
        a(f"s_waitcnt vmcnt({len(loads) * (pipe - 1)})")
        r = chk()
        if post: r = post(r)
        a(f"""
v_cmp_ne_u32 vcc, 0, v{r}
s_sub_u32 s58, s58, 1
s_cbranch_scc1 {lbl}_done
s_and_b64 exec, exec, vcc
s_cbranch_execz {lbl}_done
""")
        if fbr is not None: a(f"s_and_b32 s59, s58, {fb}\ns_cselect_b32 s{fbr}, s82, s83")
        if sl: a(f"s_sleep {sl}")
        a(f"""
s_branch {lbl}
{lbl}_done:
s_mov_b64 exec, -1
""")
    a("""L_helper:
s_load_dwordx16 s[16:31], s[0:1], 0
s_load_dwordx8 s[32:39], s[0:1], 64
s_load_dwordx2 s[40:41], s[0:1], 96
v_and_b32 v3, 15, v0
v_lshlrev_b32 v3, 2, v3
v_mov_b32 v4, 0
ds_write_b32 v3, v4
s_setprio 3
s_sub_u32 s3, s3, 4
s_waitcnt lgkmcnt(0)
""")
    srd(44, 16, 8192); srd(48, 22, 0x400000); srd(52, 40, 0x10000000); srd(56, 24, 0x400000)
    srd(60, 28, 3584); srd(64, 30, 3584); srd(68, 32, 3584)
    a(f"""
v_lshrrev_b32 v5, 4, v1
v_and_b32 v6, 7, v1
v_and_b32 v8, 15, v1
v_lshrrev_b32 v7, 5, v1
v_and_b32 v4, 31, v1
v_lshlrev_b32 v4, 4, v4
v_lshl_add_u32 v2, v7, 10, v4
s_lshl_b32 s6, s3, 11
v_mov_b32 v9, 0
v_mov_b32 v11, 1
v_lshrrev_b32 v20, 3, v1
v_lshlrev_b32 v21, 13, v20
v_lshl_add_u32 v21, v6, 4, v21
v_lshlrev_b32 v22, 10, v20
v_lshl_add_u32 v22, v6, 4, v22
s_and_b32 s15, s2, 7
s_lshr_b32 s14, s2, 3
s_add_u32 s4, s14, {rq}
s_and_b32 s4, s4, 7
s_add_u32 s14, s14, {ro}
s_and_b32 s14, s14, 7
s_lshl_b32 s8, s15, 3
s_add_u32 s8, s8, s4
s_lshr_b32 s9, s2, 6
s_lshl_b32 s4, s9, 2
s_add_u32 s4, s4, s3
s_lshl_b32 s4, s4, 18
s_lshl_b32 s5, s8, 7
s_add_u32 s72, s4, s5
s_lshl_b32 s13, s15, 2
s_add_u32 s13, s13, s9
s_lshl_b32 s4, s13, 2
s_add_u32 s4, s4, s3
s_lshl_b32 s4, s4, 15
s_lshl_b32 s5, s14, 7
s_add_u32 s73, s4, s5
s_lshl_b32 s4, s3, 12
s_add_u32 s74, s4, {WQL}
s_mul_i32 s75, s3, 896
v_lshlrev_b32 v23, 1, v1
s_barrier
""")
    if "nohelp" in dbg: a("s_branch L_pre2")
    a(f"""
buffer_load_dwordx4 v[{X}:{X+3}], v2, s[44:47], s6 offen
buffer_load_dwordx4 v[{X+4}:{X+7}], v2, s[44:47], s6 offen offset:512
{"s_load_dword s42, s[40:41], 0" if sE else "buffer_load_dword v10, v9, s[52:55], 0 offen sc1"}
""")
    if "nowq" in dbg: a("s_mov_b32 s50, 0\ns_mov_b32 s58, 0")
    for t in range(4):
        a(f"s_add_u32 m0, s74, {t*1024}\ns_nop 0\nbuffer_load_dwordx4 v21, s[48:51], s72 offen nt lds")
        if t < 3: a(f"s_add_u32 s72, s72, {8*8192}")
    def wodma(t, vr, so, sl):
        a(f"s_add_u32 m0, s{sl}, {16384+t*1024}\ns_nop 0\nbuffer_load_dwordx4 v{vr}, {'s[56:59]' if wolate is None else 's[68:71]'}, s{so} offen nt lds")
        if t < 3: a(f"s_add_u32 s{so}, s{so}, {8*1024}")
    if wolate is None:
        for t in range(4): wodma(t, 22, 73, 74)
    else:
        a("v_mov_b32 v90, v22\ns_mov_b32 s22, s73\ns_mov_b32 s23, s74")
    NW = 0 if wolate is None else 4
    for t in range(7):
        a(f"buffer_load_ushort v{W1+t}, v23, s[60:63], s75 offen offset:{128*t}")
        a(f"buffer_load_ushort v{B1+t}, v23, s[64:67], s75 offen offset:{128*t}")
        a(f"buffer_load_ushort v{W2+t}, v23, s[68:71], s75 offen offset:{128*t}")
    srd(60, 34, 2); srd(64, 36, 8192); srd(68, 24, 0 if 'nowq' in dbg else 0x400000)
    a(f"""
v_and_b32 v30, 3, v1
v_lshlrev_b32 v30, 1, v30
v_lshl_add_u32 v30, v5, 5, v30
s_lshr_b32 s10, s2, 2
s_lshl_b32 s10, s10, 7
s_and_b32 s4, s2, 3
s_lshl_b32 s4, s4, 3
s_add_u32 s10, s10, s4
buffer_load_ushort v31, v9, s[60:63], 0 offen
buffer_load_ushort v29, v30, s[44:47], s10 offen
s_mov_b32 s16, 0x07060500
s_mov_b32 s17, 0x07060501
s_mov_b32 s18, 0x07060502
s_mov_b32 s19, 0x07060503
s_mov_b32 s20, 0x0c0c0400
s_mov_b32 s21, 0x04000c0c
s_getreg_b32 s43, hwreg(HW_REG_XCC_ID, 0, 4)
s_lshl_b32 s43, s43, 3
s_add_u32 s43, s43, s15
s_lshl_b32 s43, s43, 7
s_add_u32 s43, s43, {LOCOFF}
s_lshr_b32 s59, s2, 3
s_lshl_b32 s59, s59, 2
s_add_u32 s59, s59, s43
s_mov_b32 s11, 0x3f803f80
v_mov_b32 v{S1}, 0
v_mov_b32 v{S2}, 0
s_waitcnt lgkmcnt(0)
s_add_u32 s42, s42, 1
s_mul_i32 s12, s42, 0x01010101
v_mov_b32 v10, s12
s_cmp_eq_u32 s3, 0
s_cselect_b64 exec, 1, 0
buffer_store_dword v10, v9, s[52:55], s59 offen
s_mov_b64 exec, -1
s_waitcnt vmcnt({32 - NW})
""")
    for i in range(8):
        a(f"v_dot2_f32_bf16 v{S1}, v{X+i}, s11, v{S1}")
        a(f"v_dot2_f32_bf16 v{S2}, v{X+i}, v{X+i}, v{S2}")
    for n in (8, 4, 2, 1):
        a(f"v_add_f32_dpp v{S1}, v{S1}, v{S1} row_ror:{n} row_mask:0xf bank_mask:0xf")
        a(f"v_add_f32_dpp v{S2}, v{S2}, v{S2} row_ror:{n} row_mask:0xf bank_mask:0xf")
    a(f"""
v_mov_b32 v{T0}, v{S1}
v_mov_b32 v{T1}, v{S2}
v_permlane16_swap_b32 v{S1}, v{T0}
v_permlane16_swap_b32 v{S2}, v{T1}
v_add_f32 v{S1}, v{S1}, v{T0}
v_add_f32 v{S2}, v{S2}, v{T1}
""")
    stats_finish()
    normalize(X, X, 8, 20)
    a(f"""
s_mul_i32 s4, s3, {2*XRS}
v_mul_u32_u24 v2, {XRS}, v7
v_add3_u32 v2, v2, v4, s4
ds_write_b128 v2, v[{X}:{X+3}] offset:{XN}
ds_write_b128 v2, v[{X+4}:{X+7}] offset:{XN+512}
v_mul_u32_u24 v2, {XRS}, v6
v_lshl_add_u32 v2, v5, 4, v2
s_lshl_b32 s4, s9, 8
v_add_u32 v2, s4, v2
v_bfe_u32 v3, v1, 2, 2
v_lshl_add_u32 v3, v5, 3, v3
v_lshlrev_b32 v3, 7, v3
v_and_b32 v20, 3, v1
v_lshl_add_u32 v3, v20, 3, v3
s_lshl_b32 s4, s3, 5
v_add_u32 v24, s4, v3
s_waitcnt vmcnt(24) lgkmcnt(0)
""")
    lds_signal(FLG + 8)
    a(f"""
v_and_b32 v27, 31, v1
v_lshlrev_b32 v27, 2, v27
buffer_load_dword v150, v27, s[52:55], s43 offen nt
v_lshlrev_b32 v25, 4, v5
v_lshl_add_u32 v25, v6, 11, v25
s_lshr_b32 s4, s8, 1
s_lshl_b32 s4, s4, 5
s_add_u32 s4, s4, s9
s_lshl_b32 s4, s4, 1
s_and_b32 s5, s8, 1
s_add_u32 s4, s4, s5
s_lshl_b32 s4, s4, 2
s_add_u32 s4, s4, s3
s_lshl_b32 s4, s4, 6
s_add_u32 s72, s4, {QOFF}
s_mov_b32 s26, 0
""")
    lds_wait("L_xw", FLG + 8, 4)
    for t in range(4):
        a(f"ds_read_b128 v[{96+4*t}:{99+4*t}], v2 offset:{XN+64*t}")
        for u in range(2): a(f"ds_read_b64_tr_b16 v[{112+4*t+2*u}:{113+4*t+2*u}], v24 offset:{WQL+t*4096+u*512}")
    a("s_waitcnt lgkmcnt(0)")
    stamp(1)
    for t in range(4):
        a(f"v_mfma_f32_16x16x32_bf16 v[128:131], v[{112+4*t}:{115+4*t}], v[{96+4*t}:{99+4*t}], {'0' if t == 0 else 'v[128:131]'}")
    pack16(132, [128, 129, 130, 131], 10)
    if "cutq" in dbg: a("s_branch L_pre2")
    a(f"""
s_movk_i32 s58, {nloc}
L_lc:
s_waitcnt vmcnt(0)
v_cmp_ne_u32 vcc, s12, v150
s_cbranch_vccz L_lc_done
buffer_load_dword v150, v27, s[52:55], s43 offen nt
s_sub_u32 s58, s58, 1
s_cbranch_scc0 L_lc
s_mov_b32 s26, 1
L_lc_done:
{"s_mov_b32 s26, 1" if clean else ""}
{"s_and_b32 s26, s3, 1" if "mixw" in dbg else ""}
{"s_bfe_u32 s26, s2, 0x10003" if "mixj" in dbg else ""}
s_mov_b32 exec_lo, 0x00ff00ff
s_mov_b32 exec_hi, 0x00ff00ff
s_cmp_lg_u32 s26, 0
s_cbranch_scc1 L_qs_far
buffer_store_dwordx4 v[132:135], v25, s[52:55], s72 offen
L_qs_done:
s_mov_b64 exec, -1
""")
    if "cutp" in dbg: a("s_branch L_pre2")
    stamp(2)
    a(f"s_setprio {bgprio}")
    def woread(vr):
        for nt_ in range(4):
            for kk in range(4):
                for u in range(2):
                    r = WB + 16 * nt_ + 4 * kk + 2 * u
                    a(f"ds_read_b64_tr_b16 v[{r}:{r+1}], v{vr} offset:{WQL+16384+kk*4096+u*512+nt_*32}")
    if wolate is None: woread(3)
    else: a("v_mov_b32 v91, v3")
    a(f"""
s_lshr_b32 s4, s2, 5
s_mul_i32 s4, s4, {XRS}
v_lshl_add_u32 v2, v1, 4, s4
ds_read_b128 v[{HX}:{HX+3}], v2 offset:{XN}
v_mov_b32 v{S1}, 0
v_mov_b32 v{S2}, 0
s_waitcnt lgkmcnt(0)
""")
    for i in range(4):
        a(f"v_dot2_f32_bf16 v{S1}, v{HX+i}, s11, v{S1}")
        a(f"v_dot2_f32_bf16 v{S2}, v{HX+i}, v{HX+i}, v{S2}")
    for n in (8, 4, 2, 1):
        a(f"v_add_f32_dpp v{S1}, v{S1}, v{S1} row_ror:{n} row_mask:0xf bank_mask:0xf")
        a(f"v_add_f32_dpp v{S2}, v{S2}, v{S2} row_ror:{n} row_mask:0xf bank_mask:0xf")
    swaps_add(S1, T0); swaps_add(S2, T1)
    stats_finish()
    normalize(HX, HX, 4, 20)
    a(f"""
s_bitcmp1_b32 s2, 0
s_cselect_b64 vcc, -1, 0
s_bfe_u32 s4, s2, 0x30002
s_lshl_b32 s4, s4, 3
s_bfe_u32 s5, s2, 0x10001
s_add_u32 s4, s4, s5
v_cndmask_b32 v{HX}, v{HX}, v{HX+2}, vcc
v_cndmask_b32 v{HX+1}, v{HX+1}, v{HX+3}, vcc
""")
    for i in range(4):
        a(f"v_readlane_b32 s{72+2*i}, v{HX}, s4\nv_readlane_b32 s{73+2*i}, v{HX+1}, s4")
        if i < 3: a("s_add_u32 s4, s4, 2")
    a("s_waitcnt vmcnt(2)")
    for i in range(21): a(f"v_lshlrev_b32 v{W1+i}, 16, v{W1+i}")
    c0 = -2 * LOG2E * math.sqrt(2 / math.pi); c1 = c0 * 0.044715
    a(f"""
v_mov_b32 v{C1}, {f32(c1)}
s_lshl_b32 s4, s3, 6
v_mov_b32 v{YA}, s4
""")
    def mlp_steps(lo, hi):
        for d in range(lo, hi):
            if d & 1: a(f"s_and_b32 s4, s{72+(d>>1)}, 0xffff0000")
            else: a(f"s_lshl_b32 s4, s{72+(d>>1)}, 16")
            if "nomlp" not in dbg: a("s_call_b64 s[80:81], L_mlp")
            if wolate is not None and wotrig is None and d in wolate: wodma(wolate.index(d), 90, 22, 23)
    mlp_steps(0, mlp1)
    a(f"""
s_setprio 3
s_lshr_b32 s4, s2, 5
s_lshl_b32 s4, s4, 11
s_lshl_b32 s5, s15, 2
s_add_u32 s5, s5, s3
s_lshl_b32 s5, s5, 14
s_add_u32 s4, s4, s5
s_add_u32 s6, s4, {QOFF}
v_lshlrev_b32 v2, 4, v1
s_cmp_lg_u32 s26, 0
s_cbranch_scc1 L_gq_far
""")
    def qpoll(sfx, fl):
        poll("L_gq" + sfx, [f"buffer_load_dwordx4 v[{96+4*k}:{99+4*k}], v2, s[52:55], s6 offen offset:{1024*k} {fl}" for k in range(2)],
             lambda: chk16([96, 100], 104, 12), sl=qslp)
    qpoll("", "nt")
    a("L_gq_got:")
    for i in range(8): a(f"v_and_b32 v{96+i}, 0xffffff00, v{96+i}")
    for i in range(4): a(f"v_add_f32 v{96+i}, v{96+i}, v{100+i}")
    a(f"""
s_lshl_b32 s4, s3, 8
v_and_b32 v2, 31, v1
v_lshl_add_u32 v2, v2, 3, s4
v_lshl_add_u32 v2, v7, 2, v2
v_permlane32_swap_b32 v96, v98
v_permlane32_swap_b32 v97, v99
v_add_f32 v96, v96, v98
v_add_f32 v97, v97, v99
v_cvt_pk_bf16_f32 v96, v96, v97
ds_write_b32 v2, v96 offset:{QL}
s_waitcnt lgkmcnt(0)
""")
    lds_signal(FLG + 4)
    stamp(3)
    if "cutg" in dbg: a("s_branch L_pre2")
    a(f"s_setprio {bgprio}")
    mlp_steps(mlp1, 16)
    a("s_waitcnt vmcnt(0) lgkmcnt(0)")
    lds_signal(FLG + 12)
    a(f"""
v_lshrrev_b32 v2, 2, v1
v_mul_u32_u24 v20, 144, v2
v_and_b32 v3, 3, v1
v_lshl_add_u32 v20, v3, 5, v20
s_lshl_b32 s4, s3, 2
s_add_u32 s4, s4, {OP}
v_add_u32 v20, s4, v20
v_add_u32 v21, 2304, v20
v_add_u32 v22, 4608, v20
v_add_u32 v23, 6912, v20
s_lshl_b32 s4, s3, 3
v_mov_b32 v24, s4
v_lshrrev_b32 v25, 5, v1
v_lshlrev_b32 v25, 7, v25
v_bfe_u32 v2, v1, 4, 1
v_lshl_add_u32 v25, v2, 11, v25
v_bfe_u32 v2, v1, 1, 1
v_lshl_add_u32 v25, v2, 10, v25
v_bfe_u32 v2, v1, 2, 2
v_lshl_add_u32 v25, v2, 8, v25
v_and_b32 v2, 1, v1
v_lshl_add_u32 v25, v2, 3, v25
v_lshlrev_b32 v26, 4, v1
v_and_b32 v2, 1, v5
v_lshl_add_u32 v27, v2, 2, v3
v_lshlrev_b32 v27, 4, v27
v_lshlrev_b32 v28, {6 if h2full else 16}, v2
v_bfe_u32 v2, v1, 2, 2
v_lshl_add_u32 v28, v2, {12 if h2full else 11}, v28
v_lshl_add_u32 v28, v3, 4, v28
v_lshrrev_b32 v19, 2, v1
v_lshlrev_b32 v19, {7 if h2full else 6}, v19
v_lshl_add_u32 v19, v3, 4, v19
s_lshl_b32 s4, s15, 2
s_add_u32 s4, s4, s3
s_lshl_b32 s4, s4, 2
s_add_u32 s4, s4, s9
s_mul_i32 s4, s4, {H1S}
s_bfe_u32 s5, s2, 0x30003
s_lshl_b32 s5, s5, 4
s_add_u32 s4, s4, s5
s_add_u32 s6, s4, {H1OFF}
s_lshl_b32 s4, s13, 2
s_add_u32 s4, s4, s3
s_mul_i32 s4, s4, {H1S}
s_add_u32 s7, s4, {H1OFF}
s_lshl_b32 s4, s3, {5 if h2full else 6}
s_lshl_b32 s5, s14, 2
s_add_u32 s4, s4, s5
s_lshl_b32 s4, s4, {12 if h2full else 11}
s_lshl_b32 s5, s13, {7 if h2full else 6}
s_add_u32 s4, s4, s5
s_add_u32 s8, s4, {H2OFF}
""")
    if not h2full: a("s_lshl_b32 s9, s2, 11")
    else: a("""
s_lshr_b32 s9, s2, 6
s_lshl_b32 s9, s9, 5
s_and_b32 s4, s2, 31
s_add_u32 s9, s9, s4
s_lshl_b32 s9, s9, 12
s_bfe_u32 s4, s2, 0x10005
s_lshl_b32 s4, s4, 6
s_add_u32 s9, s9, s4
""")
    h2l = [f"buffer_load_dwordx4 v[{136+4*k}:{139+4*k}], v19, s[52:55], s9 offen offset:{(2048 if h2full else 1024)*k} sc1" for k in range(2)]
    a(f"""
s_add_u32 s9, s9, {H2OFF}
""")
    if wolate is not None and wotrig is None:
        lds_wait("L_yw", FLG + 12, 4); woread(91)
    a("""
s_cmp_lg_u32 s3, 0
s_cbranch_scc1 L_ready
""")
    if wolate is None or wotrig is not None: lds_wait("L_yw", FLG + 12, 4)
    if h2pre:
        for l in h2l: a(l)
    a(f"""
v_lshl_add_u32 v2, v5, 2, v3
v_lshlrev_b32 v2, 2, v2
ds_read_b32 v32, v2 offset:{YP}
ds_read_b32 v33, v2 offset:{YP+64}
ds_read_b32 v34, v2 offset:{YP+128}
ds_read_b32 v35, v2 offset:{YP+192}
v_lshlrev_b32 v31, 16, v31
s_waitcnt lgkmcnt(0)
v_add_f32 v32, v32, v33
v_add_f32 v34, v34, v35
v_add_f32 v32, v32, v34
v_cvt_pk_bf16_f32 v32, v32, v32
v_lshlrev_b32 v32, 16, v32
v_add_f32 v32, v32, v31
v_cvt_pk_bf16_f32 v32, v32, v32
v_lshlrev_b32 v32, 16, v32
v_mul_f32 v34, {f32(-LOG2E)}, v32
v_exp_f32 v34, v34
v_add_f32 v34, 1.0, v34
v_rcp_f32 v34, v34
v_mul_f32 v32, v32, v34
v_cvt_pk_bf16_f32 v32, v32, v32
v_lshlrev_b32 v16, 16, v32
v_lshlrev_b32 v14, 16, v29
L_ready:
""")
    if "cuts" in dbg: a("s_branch L_pre2")
    lds_wait("L_sw", FLG + 16, 4, sl=8)
    a(f"""
ds_read_b64 v[32:33], v24 offset:{ST}
ds_read_b64 v[34:35], v24 offset:{ST+32}
ds_read_b64 v[36:37], v24 offset:{ST+64}
ds_read_b64 v[38:39], v24 offset:{ST+96}
s_waitcnt lgkmcnt(0)
v_max3_f32 v48, v32, v34, v36
v_max_f32 v48, v48, v38
v_sub_f32 v32, v32, v48
v_sub_f32 v34, v34, v48
v_sub_f32 v36, v36, v48
v_sub_f32 v38, v38, v48
v_exp_f32 v32, v32
v_exp_f32 v34, v34
v_exp_f32 v36, v36
v_exp_f32 v38, v38
v_mov_b32 v49, v10
v_mov_b32 v51, v10
v_mul_f32 v50, v32, v33
v_fmac_f32 v50, v34, v35
v_fmac_f32 v50, v36, v37
v_fmac_f32 v50, v38, v39
v_mov_b32 v53, v10
s_mov_b64 exec, 1
s_cmp_lg_u32 s26, 0
s_cbranch_scc1 L_st_far
buffer_store_dwordx4 v[48:51], v9, s[52:55], s6 offen
s_mov_b64 exec, -1
""")
    poll("L_sp", [f"buffer_load_dwordx4 v[40:43], v27, s[52:55], s7 offen {h1fl}"], lambda: chk8([41, 43], 80), sl=8)
    a(f"""
s_branch L_st_done
L_st_far:
buffer_store_dwordx4 v[48:51], v9, s[52:55], s6 offen sc1
s_mov_b64 exec, -1
""")
    poll("L_spx", ["buffer_load_dwordx4 v[40:43], v27, s[52:55], s7 offen sc1"], lambda: chk8([41, 43], 80), sl=8)
    a("L_st_done:")
    a("""
v_max_f32_dpp v44, v40, v40 quad_perm:[1,0,3,2] row_mask:0xf bank_mask:0xf
v_max_f32_dpp v45, v44, v44 quad_perm:[2,3,0,1] row_mask:0xf bank_mask:0xf
v_sub_f32 v40, v40, v45
v_exp_f32 v40, v40
v_mul_f32 v42, v40, v42
v_add_f32_dpp v44, v42, v42 quad_perm:[1,0,3,2] row_mask:0xf bank_mask:0xf
v_add_f32_dpp v45, v44, v44 quad_perm:[2,3,0,1] row_mask:0xf bank_mask:0xf
v_rcp_f32 v45, v45
v_mul_f32 v40, v40, v45
v_mov_b32_dpp v56, v40 quad_perm:[0,0,0,0] row_mask:0xf bank_mask:0xf
v_mov_b32_dpp v57, v40 quad_perm:[1,1,1,1] row_mask:0xf bank_mask:0xf
v_mov_b32_dpp v58, v40 quad_perm:[2,2,2,2] row_mask:0xf bank_mask:0xf
v_mov_b32_dpp v59, v40 quad_perm:[3,3,3,3] row_mask:0xf bank_mask:0xf
L_pre2:
s_setprio 3
s_waitcnt vmcnt(0) lgkmcnt(0)
""")
    if wotrig is not None and wotrig >= 0:
        lds_wait("L_wt", FLG + 28, wothr, sl=wosl)
        for t in range(4): wodma(t, 90, 22, 23)
    stamp(4)
    a("s_barrier")
    if wotrig is not None and wotrig < 0:
        for t in range(4): wodma(t, 90, 22, 23)
    if isinstance(dbgt, str): a("s_memrealtime s[92:93]")
    if prof: a("s_waitcnt lgkmcnt(0)")
    if "notail" in dbg:
        stamp(5); stamp(6); a("s_branch L_hend")
    if tailprof: stamp(1); a("s_waitcnt lgkmcnt(0)")
    a(f"""
ds_read2_b32 v[40:41], v20 offset0:0 offset1:4
ds_read2_b32 v[42:43], v21 offset0:0 offset1:4
ds_read2_b32 v[44:45], v22 offset0:0 offset1:4
ds_read2_b32 v[46:47], v23 offset0:0 offset1:4
s_waitcnt lgkmcnt(2)
v_mul_f32 v40, v32, v40
v_mul_f32 v41, v32, v41
v_fmac_f32 v40, v34, v42
v_fmac_f32 v41, v34, v43
s_waitcnt lgkmcnt(0)
v_mul_f32 v44, v36, v44
v_mul_f32 v45, v36, v45
v_fmac_f32 v40, v38, v46
v_fmac_f32 v41, v38, v47
v_add_f32 v40, v40, v44
v_add_f32 v41, v41, v45
s_cmp_lg_u32 s26, 0
v_cvt_pk_bf16_f32 v52, v40, v41
s_cbranch_scc1 L_h1_far
buffer_store_dwordx2 v[52:53], v25, s[52:55], s6 offen offset:128
L_h1_st:
""")
    stamp(5)
    if wotrig is not None:
        a("s_waitcnt vmcnt(1)")
        lds_signal(FLG + 20)
        lds_wait("L_wl", FLG + 20, 4)
        if not womid: woread(91)
    a("s_cmp_lg_u32 s26, 0\ns_cbranch_scc1 L_h1_farp")
    def h1poll(sfx, fl, pipe):
        full = [f"buffer_load_dwordx4 v[{64+4*k}:{67+4*k}], v26, s[52:55], s7 offen offset:{128+k*1024} {fl}" for k in range(4)]
        poll("L_h1" + sfx, full, lambda: chk8([65, 67, 69, 71, 73, 75, 77, 79], 80), st=4, pipe=pipe, stag=stag1, mid=(lambda: woread(91)) if (womid and wotrig is not None) else None)
    h1poll("", h1fl, pipe1)
    a("L_h1_got:")
    if wotrig is not None: a("s_waitcnt lgkmcnt(0)")
    stamp(6)
    AO = 96; DD = 112
    if h2late: a(f"s_mov_b64 exec, 1\nds_add_rtn_u32 v54, v9, v11 offset:{FLG+24}\ns_mov_b64 exec, -1")
    def mv(kk, p):
        src = 64 + 8 * (kk & 1) + 2 * p
        if kk >= 2: a(f"v_mov_b32_dpp v{AO+4*kk+p}, v{src} row_ror:8 row_mask:0xf bank_mask:0xf")
        else: a(f"v_mov_b32 v{AO+4*kk+p}, v{src}")
    for p in range(4): mv(0, p)
    for kk in range(4):
        for nt_ in range(4):
            d = DD + 4 * nt_; b = WB + 16 * nt_ + 4 * kk
            if kk < 3 and nt_ < 2: mv(kk + 1, 2 * nt_); mv(kk + 1, 2 * nt_ + 1)
            a(f"v_mfma_f32_16x16x32_bf16 v[{d}:{d+3}], v[{AO+4*kk}:{AO+4*kk+3}], v[{b}:{b+3}], {'0' if kk == 0 else f'v[{d}:{d+3}]'}")
    GO = 128
    if h2late: a("s_waitcnt lgkmcnt(0)\nv_readfirstlane_b32 s59, v54")
    for t in range(4):
        a(f"v_mul_f32 v{GO+t}, v56, v{DD+4*t}")
        a(f"v_mul_f32 v{GO+4+t}, v58, v{DD+4*t+2}")
    for t in range(4):
        a(f"v_fmac_f32 v{GO+t}, v57, v{DD+4*t+1}")
        a(f"v_fmac_f32 v{GO+4+t}, v59, v{DD+4*t+3}")
    for t in range(4): a(f"v_add_f32 v{GO+t}, v{GO+t}, v{GO+4+t}")
    pack16(GO, [GO, GO + 1, GO + 2, GO + 3], 10)
    if h2late:
        a("s_cmp_eq_u32 s59, 3\ns_cbranch_scc1 L_hl_done")
        lds_wait("L_hl", FLG + 24, 4)
    a(f"s_mov_b64 exec, 0xffffffff\nbuffer_store_dwordx4 v[{GO}:{GO+3}], v28, s[52:55], s8 offen sc1")
    if tailprof: stamp(2)
    if h2sync and not h2late: lds_signal(FLG + 24)
    a(f"""
s_mov_b64 exec, -1
s_cmp_lg_u32 s3, 0
s_cbranch_scc1 L_hend
""")
    if h2sync and not h2late: lds_wait("L_hw", FLG + 24, 4)
    if h2ack: a("s_waitcnt vmcnt(0)")
    poll("L_h2", h2l, lambda: chk16([136, 140], 56, 12), st=3, pipe=pipe2, stag=stag2, sl=slp2)
    for i in range(8): a(f"v_and_b32 v{48+i}, 0xffffff00, v{136+i}")
    for i in range(4): a(f"v_add_f32 v{48+i}, v{48+i}, v{52+i}")
    a(f"""
v_permlane32_swap_b32 v48, v50
v_permlane32_swap_b32 v49, v51
v_add_f32 v48, v48, v50
v_add_f32 v49, v49, v51
v_permlane16_swap_b32 v48, v49
v_add_f32 v48, v48, v49
v_add_f32_dpp v48, v48, v48 row_ror:4 row_mask:0xf bank_mask:0xf
v_add_f32_dpp v48, v48, v48 row_ror:8 row_mask:0xf bank_mask:0xf
s_mov_b32 exec_lo, 0x000f000f
s_mov_b32 exec_hi, 0x000f000f
v_cvt_pk_bf16_f32 v48, v48, v48
v_lshlrev_b32 v48, 16, v48
v_mul_f32 v48, v48, v16
v_cvt_pk_bf16_f32 v48, v48, v48
v_lshlrev_b32 v48, 16, v48
v_add_f32 v48, v48, v14
v_cvt_pk_bf16_f32 v48, v48, v48
buffer_store_short v48, v30, s[64:67], s10 offen {"sc1" if clean else ""}
s_mov_b64 exec, 1
s_cmp_lg_u32 s2, 0
s_cbranch_scc1 L_hend
v_mov_b32 v10, s42
buffer_store_dword v10, v9, s[52:55], 0 offen sc1
L_hend:
""")
    stamp(7)
    a("s_waitcnt vmcnt(0)")
    if isinstance(dbgt, str):
        AMP = 96 << 20
        def red(op, r, steps, t=70):
            for n in steps:
                if n < 16: a(f"{op}_dpp v{r}, v{r}, v{r} row_ror:{n} row_mask:0xf bank_mask:0xf")
                else: a(f"v_mov_b32 v{t}, v{r}\nv_permlane{n}_swap_b32 v{r}, v{t}\n{op} v{r}, v{r}, v{t}")
        a(f"""
s_cmp_lg_u32 s3, 0
s_cbranch_scc1 L_dbgt
s_memrealtime s[88:89]
s_mov_b64 exec, 1
s_waitcnt lgkmcnt(0)
v_mov_b32 v12, s84
v_mov_b32 v13, s92
v_mov_b32 v14, s88
v_mov_b32 v15, s12
s_lshl_b32 s59, s2, 4
s_add_u32 s59, s59, {AMP}
buffer_store_dwordx4 v[12:15], v9, s[52:55], s59 offen sc1
s_waitcnt vmcnt(0)
s_mov_b64 exec, -1
s_cmp_lg_u32 s2, 0
s_cbranch_scc1 L_dbgt
v_lshlrev_b32 v2, 4, v1
s_mov_b32 s6, {AMP}
""")
        poll("L_amp", [f"buffer_load_dwordx4 v[{40+4*k}:{43+4*k}], v2, s[52:55], s6 offen offset:{1024*k} sc1" for k in range(4)], lambda: chk8([43, 47, 51, 55], 80), sl=8)
        for k in range(4):
            for c in range(3): a(f"v_subrev_u32 v{40+4*k+c}, s84, v{40+4*k+c}")
        ALL = [8, 4, 2, 1, 16, 32]
        def stat(op, c, dst, steps=ALL):
            a(f"{op} v{dst}, v{40+c}, v{44+c}\n{op} v71, v{48+c}, v{52+c}\n{op} v{dst}, v{dst}, v71")
            red(op, dst, steps)
        stat("v_min_i32", 0, 60)
        if dbgt == "startmax": stat("v_max_i32", 0, 61)
        if dbgt == "bmin": stat("v_min_i32", 1, 61)
        if dbgt == "bmax": stat("v_max_i32", 1, 61)
        if dbgt == "emax": stat("v_max_i32", 2, 61)
        if dbgt == "bmean": stat("v_add_u32", 1, 61); a("v_ashrrev_i32 v61, 8, v61")
        if dbgt == "xs":
            stat("v_add_u32", 1, 61, [8, 16, 32]); a("v_ashrrev_i32 v61, 5, v61\nv_mov_b32 v60, v61")
            red("v_max_i32", 61, [4, 2, 1]); red("v_min_i32", 60, [4, 2, 1])
        a(f"""
v_sub_u32 v61, v61, v60
s_nop 1
v_readfirstlane_b32 s59, v61
s_mul_i32 s59, s59, 10
s_add_u32 s59, s59, 5000
s_min_u32 s59, s59, 100000
L_dbgs:
s_memrealtime s[90:91]
s_waitcnt lgkmcnt(0)
s_sub_u32 s58, s90, s84
s_cmp_lt_u32 s58, s59
s_cbranch_scc1 L_dbgs
L_dbgt:
""")
    elif dbgt == 2:
        a(f"""
s_or_b32 s59, s2, s3
s_cmp_lg_u32 s59, 0
s_cbranch_scc1 L_dbgt
s_memrealtime s[88:89]
s_waitcnt lgkmcnt(0)
s_sub_u32 s59, s88, s84
s_mul_i32 s59, s59, 10
s_min_u32 s59, s59, 100000
L_dbgs:
s_memrealtime s[90:91]
s_waitcnt lgkmcnt(0)
s_sub_u32 s58, s90, s88
s_cmp_lt_u32 s58, s59
s_cbranch_scc1 L_dbgs
L_dbgt:
""")
    elif dbgt:
        a(f"""
s_memrealtime s[88:89]
s_memtime s[90:91]
s_mov_b32 s44, s38
s_mov_b32 s45, s39
s_mov_b32 s46, 256
s_mov_b32 s47, 0x20000
s_mov_b64 exec, 1
s_waitcnt lgkmcnt(0)
s_not_b32 s59, s84
v_mov_b32 v12, s88
v_mov_b32 v13, s59
buffer_atomic_umax v12, v9, s[44:47], 0 offen sc1
buffer_atomic_umax v13, v9, s[44:47], 0 offen offset:4 sc1
s_cmp_lg_u32 s3, 0
s_cbranch_scc1 L_dbgt
s_and_b32 s59, s2, 0x7f
s_cmp_lg_u32 s59, 0
s_cbranch_scc1 L_dbgt
s_lshr_b32 s59, s2, 3
v_mov_b32 v12, s84
v_mov_b32 v13, s88
v_mov_b32 v14, s86
v_mov_b32 v15, s90
buffer_store_dwordx4 v[12:15], v9, s[44:47], s59 offen offset:16 sc1
L_dbgt:
s_waitcnt vmcnt(0)
""")
    if prof:
        a(f"""
s_mov_b64 exec, 1
s_sleep 127
s_waitcnt lgkmcnt(0)
s_lshl_b32 s59, s2, 3
s_add_u32 s59, s59, s3
s_add_u32 s59, s59, 4
s_lshl_b32 s59, s59, 6
s_add_u32 s59, s59, {STAMP}
""")
        for i in range(0, 8):
            a(f"v_mov_b32 v12, s{84+2*i}\nv_mov_b32 v13, s{85+2*i}\nbuffer_store_dwordx2 v[12:13], v9, s[52:55], s59 offen offset:{8*i}\ns_waitcnt vmcnt(0)")
    a("""L_end:
s_endpgm
L_h1_far:
buffer_store_dwordx2 v[52:53], v25, s[52:55], s6 offen offset:128 sc1
s_branch L_h1_st
L_h1_farp:
""")
    h1poll("x", "sc1", 1)
    a("s_branch L_h1_got")
    a("L_qs_far:\nbuffer_store_dwordx4 v[132:135], v25, s[52:55], s72 offen sc1\ns_branch L_qs_done\nL_gq_far:")
    qpoll("x", "sc1")
    a("s_branch L_gq_got")
    if fc:
        a("L_cb:\ns_waitcnt lgkmcnt(0)\ns_mov_b32 s71, 0")
        for i in range(8): a(f"s_cmp_lg_u32 s{4+i}, s73\ns_addc_u32 s71, s71, 0")
        if not fc.get("wg"):
            a(f"""
s_cmp_lt_u32 s71, {fc['th1']}
s_cselect_b32 s62, 2, 0
s_cmp_ge_u32 s71, {fc['th2']}
s_cselect_b32 s62, 1, s62
""")
            if prof: a("s_lshl_b64 s[82:83], s[82:83], 2\ns_or_b32 s82, s82, s62")
            a("s_setpc_b64 s[80:81]")
        else:
            bias = 16 * fc["CW"]
            TSX = ""; DEC = ""
            if fc.get("dec"):
                DEC = f"s_cmp_eq_u32 s62, 1\ns_cselect_b32 s71, {-fc['dec'][0]}, 0\ns_cmp_eq_u32 s62, 2\ns_cselect_b32 s71, {fc['dec'][1]}, s71\ns_add_u32 s74, s74, s71"
            if fc.get("ts"):
                TSX = "L_cx:\ns_waitcnt lgkmcnt(0)\ns_mov_b32 s71, 0\n"
                for i in range(8): TSX += f"s_sub_u32 s{16+2*i}, s36, s{16+2*i}\ns_cmp_eq_u32 s{17+2*i}, s73\ns_cselect_b32 s{16+2*i}, s{16+2*i}, 0\ns_add_u32 s71, s71, s{16+2*i}\n"
                TSX += f"""s_sub_u32 s32, s36, s32
s_cmp_eq_u32 s33, s73
s_cselect_b32 s32, s32, 0
s_lshl_b32 s32, s32, 3
s_sub_u32 s32, s32, s71
s_mul_i32 s32, s32, {fc['tg']}
s_ashr_i32 s74, s32, 5
s_branch L_cc
"""
            a(f"""
s_mul_i32 s74, s71, {fc.get('kx', 0)}
{"s_lshl_b64 s[82:83], s[82:83], 4" if prof and fc.get("tm") else ""}
{"s_or_b32 s82, s82, s71" if prof and fc.get("tm") else ""}
s_branch L_cc
{TSX}
L_cw:
v_add_u32_dpp v85, v85, v85 row_ror:4 row_mask:0xf bank_mask:0xf
v_add_u32_dpp v85, v85, v85 row_ror:2 row_mask:0xf bank_mask:0xf
v_add_u32_dpp v85, v85, v85 row_ror:1 row_mask:0xf bank_mask:0xf
v_readfirstlane_b32 s69, v85
s_sub_u32 s75, s68, s69
s_sub_u32 s75, s75, {bias}
{DEC}
L_cc:
s_add_u32 s68, s75, s74
s_cmp_lt_i32 s68, {-fc['b']}
s_cselect_b32 s62, 2, 0
s_cmp_gt_i32 s68, {fc['a']}
s_cselect_b32 s62, 1, s62
""")
            if prof and not fc.get("tm"): a("s_lshl_b64 s[82:83], s[82:83], 2\ns_or_b32 s82, s82, s62")
            a("s_setpc_b64 s[80:81]")
    a("L_mlp:")
    for t in range(7): a(f"v_fma_f32 v{U+t}, s4, v{W1+t}, v{B1+t}")
    for t in range(7): a(f"v_mul_f32 v{AA+t}, v{U+t}, v{U+t}")
    for t in range(7): a(f"v_fmaak_f32 v{AA+t}, v{AA+t}, v{C1}, {f32(c0)}")
    for t in range(7): a(f"v_mul_f32 v{AA+t}, v{AA+t}, v{U+t}")
    for t in range(7): a(f"v_exp_f32 v{EE+t}, v{AA+t}")
    for t in range(7): a(f"v_mul_f32 v{U+t}, v{U+t}, v{W2+t}")
    for t in range(7): a(f"v_add_f32 v{EE+t}, 1.0, v{EE+t}")
    for t in range(7): a(f"v_rcp_f32 v{EE+t}, v{EE+t}")
    a(f"v_mul_f32 v{ACC2}, v{U}, v{EE}")
    a(f"v_mul_f32 v{AA}, v{U+1}, v{EE+1}")
    for t in range(2, 7): a(f"v_fmac_f32 v{ACC2 if t % 2 == 0 else AA}, v{U+t}, v{EE+t}")
    a(f"v_add_f32 v{ACC2}, v{ACC2}, v{AA}")
    for n in (8, 4, 2, 1): a(f"v_add_f32_dpp v{ACC2}, v{ACC2}, v{ACC2} row_ror:{n} row_mask:0xf bank_mask:0xf")
    swaps_add(ACC2, AA)
    a(f"""
s_mov_b64 exec, 1
ds_write_b32 v{YA}, v{ACC2} offset:{YP}
s_mov_b64 exec, -1
v_add_u32 v{YA}, 4, v{YA}
s_setpc_b64 s[80:81]
""")
    body = a.render()
    if "allsc1st" in dbg:
        import re
        body = re.sub(r"(buffer_store_dwordx[24] v\[\d+:\d+\], v\d+, s\[52:55\], s(6|72) offen( offset:128)?)\n", r"\1 sc1\n", body)
    if "allsc1ld" in dbg:
        import re
        body = re.sub(r"(buffer_load_dwordx4 v\[\d+:\d+\], v\d+, s\[52:55\], s[67] offen( offset:\d+)?) nt\n", r"\1 sc1\n", body)
    txt = HDR + f"""; @launch grid=(256,1,1) block=(512,1,1) lds={LDSZ}
.amdgcn_target "amdgcn-amd-amdhsa--gfx950"
.text
.globl {KN}_kernel
.p2align 8
.type {KN}_kernel,@function
{KN}_kernel:
""" + body + f""".section .rodata,"a"
.p2align 6
.amdhsa_kernel {KN}_kernel
  .amdhsa_next_free_vgpr 256
  .amdhsa_next_free_sgpr 102
  .amdhsa_accum_offset 256
  .amdhsa_group_segment_fixed_size 0
  .amdhsa_kernarg_size 104
  .amdhsa_user_sgpr_count 2
  .amdhsa_user_sgpr_kernarg_segment_ptr 1
  .amdhsa_system_sgpr_workgroup_id_x 1
.end_amdhsa_kernel
"""
    open(fname, "w").write(txt)
if __name__ == "__main__":
    import glob, os
    for f in glob.glob("kp_*.s"): os.remove(f)
    gen("k1.s", mlp1=4, slp=0)
    kw = dict(prof=True, tailprof=True, mlp1=4, slp=0, rq=1, wolate=[5, 7, 9, 11])
    gen("kp_00.s", **kw)
    F = dict(wg=1, x=1, G=2, kx=24, a=64, b=-16, W=(4,6,12), d=6, C=3, CW=2)
    gen("kp_01.s", fc=F, **kw)
    gen("kp_02_nowork.s", fc=F, dbg="nok nosm nov", **kw)
    gen("kp_03_nosm.s", fc=F, dbg="nosm", **kw)
    gen("kp_04_nowq.s", fc=F, dbg="nowq", **kw)
    gen("kp_05_nowork_nowq.s", fc=F, dbg="nok nosm nov nowq", **kw)
    gen("kp_06_nowork_nowq_nomlp.s", fc=F, dbg="nok nosm nov nowq nomlp", **kw)
    gen("kp_07_nofc_nowork.s", dbg="nok nosm nov", **kw)
    gen("kp_08_nofc_nowork_nowq.s", dbg="nok nosm nov nowq", **kw)
```

```python
import gen, gen_v7, glob, os
for f in glob.glob("e?_*.s"): os.remove(f)
kw = dict(mlp1=2, slp=0, rq=1, wolate=[5, 7, 9, 11], dbgt="emax", tmap=(14, 16, None))
FX = dict(wg=1, x=1, G=2, kx=24, a=64, b=-16, W=(4,6,12), d=6, C=3, CW=2)
F = dict(wg=1, x=0, G=2, kx=24, a=64, b=40, W=(4,6,12), d=6, C=3, CW=2)
T5 = [8, 17, 26, 35, 44]
FT = {**F, "ts": T5, "tg": 4, "d": 5, "stop": 0}
gen_v7.gen("e1_k7.s", fc=FX, **kw)
gen.gen("e2_nofc.s", wotrig=203, palign=7, **kw)
gen.gen("e3_ft.s", fc=FT, wotrig=203, palign=7, **kw)
gen.gen("e4_wg.s", fc={**F, "stop": 0}, wotrig=203, palign=7, **kw)
gen.gen("e5_ft_nowt.s", fc=FT, palign=7, **kw)
gen.gen("e6_ft_127.s", fc=FT, wotrig=127, palign=7, **kw)
```

```python
import gen, glob, os
for f in glob.glob("e?_*.s"): os.remove(f)
kw = dict(mlp1=2, slp=0, rq=1, wolate=[5, 7, 9, 11], dbgt="emax", palign=7)
F = dict(wg=1, x=0, G=2, kx=24, a=64, b=40, W=(4,6,12), d=6, C=3, CW=2, stop=0)
T5 = [8, 17, 26, 35, 44]
FT = {**F, "ts": T5, "tg": 4, "d": 5}
gen.gen("e1_203.s", fc=F, wotrig=203, **kw)
gen.gen("e2_202.s", fc=F, wotrig=202, **kw)
gen.gen("e3_201.s", fc=F, wotrig=201, **kw)
gen.gen("e4_200.s", fc=F, wotrig=200, wothr=1, wosl=1, **kw)
gen.gen("e5_203_4.s", fc=F, wotrig=203, wothr=4, **kw)
gen.gen("e6_ft3.s", fc={**FT, "ts": [10, 24, 38], "tg": 3}, wotrig=203, **kw)
kw2 = dict(mlp1=2, slp=0, rq=1, wolate=[5, 7, 9, 11], palign=7)
gen.gen("k8.s", fc=F, wotrig=203, **kw2)
gen.gen("k8t.s", fc=FT, wotrig=203, **kw2)
```

```python
import gen, glob, os
for f in glob.glob("e?_*.s"): os.remove(f)
kw = dict(mlp1=2, slp=0, rq=1, wolate=[5, 7, 9, 11], dbgt="emax", palign=7, wotrig=203)
F = dict(wg=1, x=0, G=2, kx=24, a=64, b=40, W=(4,6,12), d=6, C=3, CW=2, stop=0)
gen.gen("e1_base.s", fc=F, **kw)
gen.gen("e2_a32b24.s", fc={**F, "a": 32, "b": 24}, **kw)
gen.gen("e3_a96b40.s", fc={**F, "a": 96}, **kw)
gen.gen("e4_w5610.s", fc={**F, "W": (5, 6, 10), "a": 40, "b": 24}, **kw)
gen.gen("e5_204_1.s", fc=F, **{**kw, "wotrig": 203, "wothr": 1})
gen.gen("e6_noack.s", fc=F, h2ack=False, **kw)
```

```python
import gen, glob, os
for f in glob.glob("e?_*.s"): os.remove(f)
kw = dict(mlp1=2, slp=0, rq=1, wolate=[5, 7, 9, 11], dbgt="emax", palign=7, wotrig=203)
F0 = dict(wg=1, x=0, G=2, kx=24, a=64, b=40, W=(4,6,12), d=6, C=3, CW=2, stop=0)
F = {**F0, "W": (5, 6, 10), "a": 40, "b": 24}
gen.gen("e1_base.s", fc=F, **kw)
gen.gen("e2_slp2.s", fc=F, slp2=2, **kw)
gen.gen("e3_slp6.s", fc=F, slp2=6, **kw)
gen.gen("e4_h2pre.s", fc=F, h2pre=True, **kw)
gen.gen("e5_h2full.s", fc=F, h2full=True, **kw)
gen.gen("e6_f0.s", fc=F0, **kw)
```

```python
import sys, struct, math
from asmlib import Asm
KN = "recurrent_scan__gqa_block_cached__mixer_token_mlp__decode"
def f32(x): return "0x%08x" % struct.unpack("<I", struct.pack("<f", x))[0]
LOG2E = 1.4426950408889634
FLG = 0; QL = 64; ST = QL + 1024; YP = ST + 128; OP = YP + 256; XN = OP + 4 * 2304; XRS = 1040; WQL = XN + 8 * XRS; KL = WQL + 32768
QOFF = 64 << 10; H1OFF = QOFF + (1 << 20); H1S = 4224; H2OFF = H1OFF + (640 << 10); BD = 4 << 20; PGOFF = 8 << 10; LOCOFF = 32 << 10; STAMP = 128 << 20
HDR = open("cdna_kernels/" + KN + ".s.ref").read().split("; Override launch")[0]

def gen(fname, WIN=6, G=2, RING=40, prof=False, wo_thr=4, ntw="", woflags="", spin=400000, dbg="", WPS=1, dry=False, tailprof=False, NLT=6, slp=2, wqdma=True, sprio=2, bgprio=0, mlp1=8, local=True, fb=31, deferB=True, pretouch=False, pat=None, pat2=None, rot=None, cmap=0, light=False, lslp=0, h1fl='nt', h2sync=True, fc=None, est=None, rq=0, ro=0, sE=True, wolate=None, n0=64, pipe1=1, pipe2=1, stag1=3, stag2=3, h2late=True, h2ack=True, h2pre=False, h2full=False, slp2=0, dbgt=False, dirty=0, clean=False, qslp=None, nloc=200, tmap=(14, 16, None), wotrig=None, wothr=2, wosl=2, womid=True, palign=0, defer=None, h2off=None, tlbw=False, near=None, endwait=False):
    H2OFF = (576 << 10) if h2off is None else h2off
    MEAS = 48 << 10; CWOFF = 16 << 10
    a = Asm()
    LDSZ = KL + 4 * NLT * 4096
    NLL = 4 * NLT
    NST = 8
    def stamp(i):
        if prof: a(f"s_memrealtime s[{84+2*i}:{85+2*i}]")
    stamp(0)
    if dbgt: a("s_memrealtime s[84:85]\ns_memtime s[86:87]")
    a(f"""
s_load_dwordx2 s[44:45], s[0:1], 8
s_load_dwordx2 s[48:49], s[0:1], 16
v_lshrrev_b32 v2, 6, v0
s_cmp_ge_u32 s2, 256
v_and_b32 v1, 63, v0
v_readfirstlane_b32 s3, v2
s_cbranch_scc1 L_end
s_cmp_ge_u32 s3, 4
s_cbranch_scc1 L_helper
""")
    a(f"""
s_setprio {sprio}
s_mov_b32 s46, 0x4000000
s_mov_b32 s47, 0x20000
s_and_b32 s52, s2, 7
s_lshl_b32 s52, s52, 20
s_lshr_b32 s53, s2, 5
s_lshl_b32 s53, s53, 23
s_or_b32 s52, s52, s53
s_bfe_u32 s53, s2, 0x20003
s_lshl_b32 s53, s53, {tmap[0]}
s_or_b32 s52, s52, s53
s_lshl_b32 s53, s3, 12
s_or_b32 s52, s52, s53
s_mul_i32 s60, s3, {NLT*4096}
s_add_u32 s60, s60, {KL}
v_lshrrev_b32 v5, 4, v1
v_bfe_u32 v6, v1, 2, 2
v_and_b32 v7, 3, v1
v_lshlrev_b32 v2, 8, v6
v_lshl_add_u32 v2, v5, 6, v2
v_lshl_add_u32 v2, v7, 4, v2
""")
    if tmap[2]: a(f"s_and_b32 s53, s2, 7\ns_lshl_b32 s53, s53, {tmap[2]}\ns_xor_b32 s52, s52, s53")
    def late_setup():
        a(f"""
s_load_dwordx2 s[38:39], s[0:1], 88
s_load_dwordx2 s[40:41], s[0:1], 96
s_mov_b32 s50, 0x4000000
s_mov_b32 s51, 0x20000
v_lshlrev_b32 v3, 4, v1
""")
        if fc: a(f"""
s_lshr_b32 s64, s2, 3
s_cmp_eq_u32 s3, 0
s_cselect_b32 s64, s64, 64
s_and_b32 s65, s2, 7
s_lshl_b32 s63, s65, 3
s_lshl_b32 s65, s65, {3 if fc.get("ts") else 2}
v_mov_b32 v83, s65
s_mov_b32 s62, {fc.get('l0', 0)}
s_mov_b64 s[82:83], 0
s_getreg_b32 s66, hwreg(HW_REG_XCC_ID, 0, 3)
s_lshl_b32 s66, s66, 5
s_lshr_b32 s67, s2, 3
s_add_u32 s67, s67, s66
v_mov_b32 v88, s67
v_and_b32 v87, 7, v1
v_lshl_add_u32 v87, v87, 2, s66
s_mov_b32 s74, 0
s_mov_b32 s75, 0
s_cmp_eq_u32 s3, 0
s_cselect_b64 vcc, 1, 0
s_waitcnt lgkmcnt(0)
s_load_dword s73, s[40:41], 0
s_mov_b32 s76, s40
s_mov_b32 s77, s41
s_mov_b32 s78, 0x10000000
s_mov_b32 s79, 0x20000
s_mov_b32 s12, s38
s_mov_b32 s13, s39
s_mov_b32 s14, 256
s_mov_b32 s15, 0x20000
""")
    RB = 256 - RING * 4
    def rreg(n): return RB + ((n - NLL) % RING) * 4
    NL = 128
    st = {"tile": None}
    def issue(n):
        isv = n >= 64; t = (n & 63) >> 2; q = n & 3
        if st["tile"] != (isv, t):
            st["tile"] = (isv, t)
            if tmap: a(f"s_xor_b32 s53, s52, {t << tmap[1]}")
            elif rot is None: a(f"s_add_u32 s53, s52, {t*16384}")
            else: a(f"s_add_u32 s53, s61, {t*16384}\ns_and_b32 s53, s53, 0x3ffff\ns_add_u32 s53, s53, s52")
            if n < NLL: a(f"s_add_u32 m0, s60, {t*4096}\ns_nop 0")
            if n == 0:
                if palign: a(f".p2align {palign}")
                a("s_waitcnt lgkmcnt(0)")
                if st.get("ks"): stamp(7)
        if n < NLL:
            a(f"buffer_load_dwordx4 v2, s[44:47], s53 offen offset:{q*1024} nt lds"); return
        r = rreg(n)
        a(f"buffer_load_dwordx4 v[{r}:{r+3}], {'v3' if isv else 'v2'}, {'s[48:51]' if isv else 's[44:47]'}, s53 offen offset:{q*1024} nt")
    TSR = 6
    QB = 8; Y = 12; ACC = 28; DT = 28; TT = 44; PT = 60; PA = 76; M = 80
    def setup_consts():
        a(f"""
s_mov_b32 s54, 0x05040100
s_mov_b32 s55, 0x07060302
s_mov_b32 s56, {f32(128**-0.5)}
s_mov_b32 s57, {f32(LOG2E)}
v_lshlrev_b32 v4, 8, v7
v_lshl_add_u32 v4, v5, 6, v4
v_lshl_add_u32 v4, v6, 4, v4
v_mov_b32 v84, 0
v_add_u32 v86, s60, v3
""")
    def wait_q():
        stamp(1)
        if "noq" in dbg:
            a(f"ds_read_b128 v[{QB}:{QB+3}], v4 offset:{QL}\ns_waitcnt lgkmcnt(0)"); stamp(2); return
        a(f"""
s_mov_b32 s58, {spin*8}
L_sq:
ds_read_b32 v85, v84 offset:{FLG+4}
s_waitcnt lgkmcnt(0)
v_readfirstlane_b32 s59, v85
s_sub_u32 s58, s58, 1
s_cbranch_scc1 L_sq_done
s_cmp_ge_u32 s59, 4
s_cbranch_scc1 L_sq_done
s_sleep 1
s_branch L_sq
L_sq_done:
ds_read_b128 v[{QB}:{QB+3}], v4 offset:{QL}
s_waitcnt lgkmcnt(0)
""")
        stamp(2)
        if prof: a("s_waitcnt lgkmcnt(0)")
    def ktile(t):
        if t < NLT:
            for q in range(4): a(f"ds_read_b128 v[{PT+4*q}:{PT+4*q+3}], v86 offset:{t*4096+q*1024}")
        for q in range(4):
            r = rreg(4 * t + q) if t >= NLT else PT + 4 * q
            if t < NLT: a(f"s_waitcnt lgkmcnt({3-q})")
            a(f"v_mfma_f32_16x16x32_bf16 v[{DT+4*q}:{DT+4*q+3}], v[{r}:{r+3}], v[{QB}:{QB+3}], 0")
        for c in range(4):
            for r in range(4):
                n = 4 * ((c - r) % 4)
                ctl = f"row_ror:{n}" if n else "quad_perm:[0,1,2,3]"
                a(f"v_mov_b32_dpp v{TT+r}, v{DT+4*c+r} {ctl} row_mask:0xf bank_mask:{hex(1<<c)}")
        y = Y + t
        a(f"""
v_add_f32 v{TT}, v{TT}, v{TT+1}
v_add_f32 v{TT+2}, v{TT+2}, v{TT+3}
v_add_f32 v{y}, v{TT}, v{TT+2}
v_cvt_pk_bf16_f32 v{y}, v{y}, v{y}
v_lshlrev_b32 v{y}, 16, v{y}
v_mul_f32 v{y}, s56, v{y}
v_cvt_pk_bf16_f32 v{y}, v{y}, v{y}
v_lshlrev_b32 v{y}, 16, v{y}
""")
    def xlane(op, r, t):
        a(f"""
{op}_dpp v{r}, v{r}, v{r} row_ror:4 row_mask:0xf bank_mask:0xf
""") if op != "v_add_f32" else a(f"""
v_add_f32_dpp v{r}, v{r}, v{r} row_ror:4 row_mask:0xf bank_mask:0xf
""")
        a(f"""
{op}_dpp v{r}, v{r}, v{r} row_ror:8 row_mask:0xf bank_mask:0xf
v_mov_b32 v{t}, v{r}
v_permlane16_swap_b32 v{r}, v{t}
{op} v{r}, v{r}, v{t}
v_mov_b32 v{t}, v{r}
v_permlane32_swap_b32 v{r}, v{t}
{op} v{r}, v{r}, v{t}
""")
    def softmax():
        m = M; l = M + 1; t = M + 2
        a(f"v_max3_f32 v{m}, v{Y}, v{Y+1}, v{Y+2}")
        for i in range(3, 15, 2): a(f"v_max3_f32 v{m}, v{m}, v{Y+i}, v{Y+i+1}")
        a(f"v_max_f32 v{m}, v{m}, v{Y+15}")
        xlane("v_max_f32", m, t)
        a(f"v_mul_f32 v{m}, s57, v{m}")
        for i in range(16): a(f"v_fma_f32 v{Y+i}, v{Y+i}, s57, -v{m}")
        for i in range(16): a(f"v_exp_f32 v{Y+i}, v{Y+i}")
        a(f"v_add_f32 v{l}, v{Y}, v{Y+1}")
        a(f"v_add_f32 v{t}, v{Y+2}, v{Y+3}")
        for i in range(4, 16, 2):
            a(f"v_add_f32 v{l}, v{l}, v{Y+i}")
            a(f"v_add_f32 v{t}, v{t}, v{Y+i+1}")
        a(f"v_add_f32 v{l}, v{l}, v{t}")
        for v in range(8): a(f"v_cvt_pk_bf16_f32 v{Y+v}, v{Y+2*v}, v{Y+2*v+1}")
        xlane("v_add_f32", l, t)
        a(f"""
s_lshl_b32 s59, s3, 5
v_lshl_add_u32 v{t}, v1, 3, s59
s_mov_b64 exec, 15
ds_write_b64 v{t}, v[{m}:{m+1}] offset:{ST}
s_mov_b64 exec, 1
v_mov_b32 v{t}, 1
ds_add_u32 v84, v{t} offset:{FLG+16}
s_mov_b64 exec, -1
""")
    def vchunk(v):
        a(f"v_mov_b32 v{PA}, v{Y+v}")
        for p in (1, 2, 3):
            a(f"v_mov_b32_dpp v{PA+p}, v{Y+v} row_ror:{4*((0-p)%4)} row_mask:0xf bank_mask:0xf")
        for half in range(2):
            for jj in range(4 * half, 4 * half + 4):
                o = PT + 4 * (jj & 3)
                for p in range(4):
                    lo = rreg(64 + 8 * v + p) + (jj >> 1); hi = rreg(64 + 8 * v + 4 + p) + (jj >> 1)
                    a(f"v_perm_b32 v{o+p}, v{hi}, v{lo}, {'s55' if jj & 1 else 's54'}")
            for jj in range(4 * half, 4 * half + 4):
                o = PT + 4 * (jj & 3); d = ACC + 4 * jj
                c = "0" if v == 0 else f"v[{d}:{d+3}]"
                a(f"v_mfma_f32_16x16x32_bf16 v[{d}:{d+3}], v[{PA}:{PA+3}], v[{o}:{o+3}], {c}")
    work = [("K", t, 4 * t + 3) for t in list(range(NLT, 16)) + list(range(NLT))] + [("S", 0, 63)] + [("V", v, 64 + 8 * v + 7) for v in range(8)]
    consumed = NLL - 1
    wi = 0
    def do_work():
        nonlocal wi, consumed
        k, i, last = work[wi]
        if k == "K":
            if wi == 0: wait_q()
            if "nok" not in dbg: ktile(i)
            consumed = max(consumed, last)
        elif k == "S":
            if "nosm" in dbg: a(f"s_mov_b64 exec, 1\nv_mov_b32 v82, 1\nds_add_u32 v84, v82 offset:{FLG+16}\ns_mov_b64 exec, -1")
            else: softmax()
            stamp(3)
        else:
            if "nov" not in dbg: vchunk(i)
            consumed = last
        wi += 1
    issued = 0
    ops = []
    def iss(n): issue(n); ops.append(("L", n))
    def vm_for(X):
        li = [i for i, o in enumerate(ops) if o[0] == "L"]
        if len(li) <= X: return None
        p = li[len(li) - X - 1]
        return len(ops) - 1 - p, p
    if pat is None: pat = [(WIN, G)]
    if fc: pat = [(fc["W"][1], fc["G"])]
    if est == [-1, -1]: stamp(5); st["ks"] = 1
    for n in range(pat[0][0]): iss(n)
    if est == [-1, -1]: stamp(6); est = [None, None]
    issued = pat[0][0]
    late_setup()
    a("s_barrier")
    setup_consts()
    arrived = -1
    step = 0
    done_op = -1; nw = 0; ph = 0; nctl = 0; evalq = []; PAIRS = [88, 92, 94]; tagdone = False
    while issued < NL:
        pp = pat2 if (pat2 is not None and issued >= n0) else pat
        WIN, G = pp[step % len(pp)]; step += 1
        if not fc:
            if issued - (WIN - G) - 1 > arrived: a(f"s_waitcnt vmcnt({WIN-G})")
            arrived = max(arrived, issued - (WIN - G) - 1)
        else:
            Wl, Wm, Wh = fc["W"]
            opened = False
            for n_, W_ in fc.get("open", []):
                if issued >= n_: Wl, Wm, Wh = W_; opened = Wl == Wh
            while issued + G - 1 - RING > consumed and work[wi][2] > max(arrived, issued - (Wh - G) - 1): Wh -= 1; Wm = min(Wm, Wh); Wl = min(Wl, Wh)
            r = vm_for(Wh - G)
            if r and issued - (Wh - G) - 1 > arrived: a(f"s_waitcnt vmcnt({r[0]})"); done_op = max(done_op, r[1]); arrived = max(arrived, issued - (Wh - G) - 1)
            if not opened: a(f"""
s_cmp_eq_u32 s62, 2 ;nc
s_cbranch_scc1 L_fs{step} ;nc
s_waitcnt vmcnt({vm_for(Wm - G)[0]}) ;nc
s_cmp_eq_u32 s62, 0 ;nc
s_cbranch_scc1 L_fs{step} ;nc
s_waitcnt vmcnt({vm_for(Wl - G)[0]}) ;nc
L_fs{step}:
""")
        if est:
            for i_, e_ in enumerate(est):
                if e_ is not None and arrived >= e_: stamp(5 + i_); est[i_] = None
        g = min(G, NL - issued)
        while issued + g - 1 - RING > consumed:
            if work[wi][2] > arrived:
                assert not fc
                a(f"s_waitcnt vmcnt({issued - 1 - work[wi][2]})"); arrived = work[wi][2]
            do_work()
        for n in range(issued, issued + g): iss(n)
        if wotrig is not None and wotrig >= 0 and issued <= wotrig < issued + g:
            a(f"s_mov_b64 exec, 1\nv_mov_b32 v82, 1\nds_add_u32 v84, v82 offset:{FLG+28}\ns_mov_b64 exec, -1")
        if fc:
            d = fc["d"]; k0 = fc.get("k0", 2); last = (NL - fc.get("stop", 8) - fc["W"][1]) // G
            if step == k0:
                a("s_waitcnt lgkmcnt(0)\ns_add_u32 s73, s73, 1\nv_mov_b32 v90, s73")
            if fc.get("wg"):
                for e in [e for e in evalq if e[0] <= done_op]:
                    evalq.remove(e)
                    a(f"v_sad_u8 v85, v{e[1]}, 0, 0\ns_movk_i32 s68, {32 * e[2]}\ns_call_b64 s[80:81], L_cw")
                if step >= fc.get("kw", 4) and step % fc["CW"] == 0 and step <= last and not opened:
                    r_ = [91, 92, 93, 94, 95, 86 if NLT == 0 else 5][nw % 6]; nw += 1; assert len(evalq) < 6
                    a(f"""
v_mov_b32 v89, {step}
s_mov_b64 exec, vcc
buffer_store_byte v89, v88, s[12:15], 0 offen
s_mov_b64 exec, -1
buffer_load_dword v{r_}, v87, s[12:15], 0 offen nt
""")
                    ops.append(("S", 0)); ops.append(("C", 0)); evalq.append((len(ops) - 1, r_, step))
            if fc.get("ts"):
                for i_, k_ in enumerate(fc["ts"]):
                    if step == k_ - 1: a("s_memrealtime s[34:35]")
                    if step == k_:
                        a(f"""
s_waitcnt lgkmcnt(0)
s_add_u32 s34, s34, s75
v_mov_b32 v96, s34
v_mov_b32 v97, s73
s_movk_i32 s65, {PGOFF + i_ * 256}
s_cmp_eq_u32 s64, {(5 * i_ + 3) % 32}
s_cselect_b64 exec, 1, 0
buffer_store_dwordx2 v[96:97], v83, s[76:79], s65 offen sc1
s_mov_b64 exec, -1
""".replace("v96", f"v{TSR}").replace("v97", f"v{TSR+1}").replace("v[96:97]", f"v[{TSR}:{TSR+1}]"))
                        ops.append(("S", 0))
                    if step == k_ + d:
                        a(f"s_load_dwordx16 s[16:31], s[40:41], {PGOFF + i_ * 256}\ns_load_dwordx2 s[32:33], s[40:41], s63 offset:{PGOFF + i_ * 256}\ns_memrealtime s[36:37]")
                    if step == k_ + d + fc.get("dl", 3): a("s_call_b64 s[80:81], L_cx")
            if k0 <= step <= last - d and fc.get("x", 1):
                a(f"""
s_movk_i32 s65, {PGOFF + step * 256}
s_cmp_eq_u32 s64, {step % 32}
s_cselect_b64 exec, 1, 0
buffer_store_dword v90, v83, s[76:79], s65 offen sc1
s_mov_b64 exec, -1
""")
                ops.append(("S", 0))
            if step >= k0 + d and (step - k0 - d) % fc["C"] == 0:
                if nctl > 0: a("s_call_b64 s[80:81], L_cb"); nctl = 0
                if step <= last and fc.get("x", 1):
                    a(f"s_load_dwordx8 s[4:11], s[40:41], {PGOFF + (step - d) * 256}"); nctl = 1
        issued += g
        for _ in range(WPS):
            if wi < len(work) and work[wi][2] <= arrived and (wi > 0 or issued + G - 1 - RING > consumed):
                do_work()
    while wi < len(work):
        need_ = work[wi][2]
        if wi == len(work) - 1 and wotrig is not None and wotrig >= 200:
            a(f"s_waitcnt vmcnt({vm_for(wotrig - 200)[0]})")
            if defer:
                a(f"s_cmp_gt_i32 s75, {defer[0]}\ns_cselect_b32 s59, 0x101, 1\ns_mov_b64 exec, 1\nv_mov_b32 v82, s59\nds_add_u32 v84, v82 offset:{FLG+28}")
                if defer[2] > 60:
                    a("v_mov_b32 v89, 62\ns_mov_b64 exec, vcc\nbuffer_store_byte v89, v88, s[12:15], 0 offen"); ops.append(("S", 0))
                a("s_mov_b64 exec, -1")
            else: a(f"s_mov_b64 exec, 1\nv_mov_b32 v82, 1\nds_add_u32 v84, v82 offset:{FLG+28}\ns_mov_b64 exec, -1")
        if need_ > arrived:
            r = vm_for(NL - 1 - need_) if fc else (NL - 1 - need_,)
            a(f"s_waitcnt vmcnt({r[0]})"); arrived = need_
        do_work()
    stamp(4)
    a(f"""
s_mul_i32 s59, s3, 2304
v_mul_u32_u24 v4, 144, v1
v_add_u32 v4, s59, v4
s_mov_b64 exec, 0xffff
""")
    for jj in range(8):
        a(f"ds_write_b128 v4, v[{ACC+4*jj}:{ACC+4*jj+3}] offset:{OP+16*jj}")
    a("""
s_mov_b64 exec, -1
s_waitcnt lgkmcnt(0)
s_barrier
""")
    if dirty:
        a(f"""
s_mov_b32 s44, s40
s_mov_b32 s45, s41
s_mov_b32 s46, 0x10000000
s_mov_b32 s47, 0x20000
s_lshl_b32 s59, s2, 2
s_add_u32 s59, s59, s3
s_mul_i32 s59, s59, {dirty*1024}
s_add_u32 s59, s59, {64 << 20}
s_sleep 64
""")
        for i in range(dirty): a(f"buffer_store_dwordx4 v[28:31], v3, s[44:47], s59 offen\ns_add_u32 s59, s59, 1024")
    if prof:
        a(f"""
s_mov_b32 s44, s40
s_mov_b32 s45, s41
s_mov_b32 s46, 0x10000000
s_mov_b32 s47, 0x20000
s_sleep 127
s_sleep 127
s_sleep 127
s_waitcnt lgkmcnt(0)
s_lshl_b32 s59, s2, 3
s_add_u32 s59, s59, s3
s_lshl_b32 s59, s59, 6
s_add_u32 s59, s59, {STAMP}
v_mov_b32 v4, 0
s_mov_b64 exec, 1
""")
        for i in range(8):
            sr = 82 if (i == 5 and fc and not est) else 84 + 2 * (i if est else min(i, 4))
            a(f"v_mov_b32 v8, s{sr}\nv_mov_b32 v9, s{sr+1}\nbuffer_store_dwordx2 v[8:9], v4, s[44:47], s59 offen offset:{8*i}\ns_waitcnt vmcnt(0)")
    a("s_endpgm")
    X = 32
    S1 = 12; S2 = 13; T0 = 14; T1 = 15; NM = 16; RS = 18
    W1 = 40; B1 = 47; W2 = 54; HX = 62; U = 66; AA = 73; EE = 80; ACC2 = 87; C1 = 88; YA = 89
    WB = 192
    def srd(base, lo, size): a(f"s_mov_b32 s{base}, s{lo}\ns_mov_b32 s{base+1}, s{lo+1}\ns_mov_b32 s{base+2}, {size}\ns_mov_b32 s{base+3}, 0x20000")
    def bfround(r): a(f"v_cvt_pk_bf16_f32 v{r}, v{r}, v{r}\nv_lshlrev_b32 v{r}, 16, v{r}")
    def stats_finish():
        a(f"""
v_mul_f32 v{S1}, {f32(1/512)}, v{S1}
v_mul_f32 v{S2}, {f32(1/512)}, v{S2}
v_fma_f32 v{S2}, -v{S1}, v{S1}, v{S2}
v_max_f32 v{S2}, 0, v{S2}
""")
        bfround(S1); bfround(S2)
        a(f"v_add_f32 v{S2}, {f32(1e-5)}, v{S2}")
        bfround(S2)
        a(f"v_sqrt_f32 v{S2}, v{S2}")
        bfround(S2)
        a(f"""
v_rcp_f32 v{RS}, v{S2}
v_sub_f32 v{NM}, 0, v{S1}
v_sub_f32 v{NM+1}, 0, v{S1}
v_mov_b32 v{RS+1}, v{RS}
""")
    def swaps_add(r, t):
        a(f"""
v_mov_b32 v{t}, v{r}
v_permlane16_swap_b32 v{r}, v{t}
v_add_f32 v{r}, v{r}, v{t}
v_mov_b32 v{t}, v{r}
v_permlane32_swap_b32 v{r}, v{t}
v_add_f32 v{r}, v{r}, v{t}
""")
    def normalize(src, dst, n, tmp):
        for i0 in range(0, n, 4):
            idx = list(range(i0, min(n, i0 + 4)))
            for i in idx:
                t = tmp + 2 * (i - i0)
                a(f"v_lshlrev_b32 v{t}, 16, v{src+i}\nv_and_b32 v{t+1}, 0xffff0000, v{src+i}")
            for i in idx:
                t = tmp + 2 * (i - i0)
                a(f"v_pk_add_f32 v[{t}:{t+1}], v[{t}:{t+1}], v[{NM}:{NM+1}]")
            for i in idx:
                t = tmp + 2 * (i - i0)
                a(f"v_cvt_pk_bf16_f32 v{t}, v{t}, v{t+1}")
            for i in idx:
                t = tmp + 2 * (i - i0)
                a(f"v_and_b32 v{t+1}, 0xffff0000, v{t}\nv_lshlrev_b32 v{t}, 16, v{t}")
            for i in idx:
                t = tmp + 2 * (i - i0)
                a(f"v_pk_mul_f32 v[{t}:{t+1}], v[{t}:{t+1}], v[{RS}:{RS+1}]")
            for i in idx:
                t = tmp + 2 * (i - i0)
                a(f"v_cvt_pk_bf16_f32 v{dst+i}, v{t}, v{t+1}")
    def lds_wait(lbl, off, cnt, sl=0, msk=False):
        a(f"""
s_mov_b32 s58, {spin*8}
{lbl}:
ds_read_b32 v4, v9 offset:{off}
s_waitcnt lgkmcnt(0)
v_readfirstlane_b32 s59, v4
s_sub_u32 s58, s58, 1
s_cbranch_scc1 {lbl}_done
{"s_and_b32 s27, s59, 255" if msk else ""}
s_cmp_lt_u32 {"s27" if msk else "s59"}, {cnt}
{f"s_sleep {sl}" if sl else ""}
s_cbranch_scc1 {lbl}
{lbl}_done:
""")
    def lds_signal(off):
        a(f"""
s_mov_b64 exec, 1
ds_add_u32 v9, v11 offset:{off}
s_mov_b64 exec, -1
""")
    def orred(ts):
        ts = list(ts)
        while len(ts) > 1:
            if len(ts) >= 3:
                a(f"v_or3_b32 v{ts[0]}, v{ts[0]}, v{ts[1]}, v{ts[2]}"); ts = ts[3:] + [ts[0]]
            else:
                a(f"v_or_b32 v{ts[0]}, v{ts[0]}, v{ts[1]}"); ts = [ts[0]]
        return ts[0]
    def chk8(tags, tmp):
        for i, t in enumerate(tags): a(f"v_xor_b32 v{tmp+i}, s12, v{t}")
        return orred([tmp + i for i in range(len(tags))])
    def chk16(bases, tmp, tagreg):
        out = []
        for i, b in enumerate(bases):
            a(f"v_perm_b32 v{tmp+2*i}, v{b+1}, v{b}, s20\nv_perm_b32 v{tmp+2*i+1}, v{b+3}, v{b+2}, s21")
        for i, b in enumerate(bases):
            a(f"v_or_b32 v{tmp+2*i}, v{tmp+2*i}, v{tmp+2*i+1}")
        for i, b in enumerate(bases):
            a(f"v_xor_b32 v{tmp+2*i}, s{tagreg}, v{tmp+2*i}"); out.append(tmp + 2 * i)
        return orred(out)
    def pack16(dst, srcs, tagv):
        for i, r in enumerate(srcs): a(f"v_perm_b32 v{dst+i}, v{r}, v{tagv}, s{16+i}")
    def poll(lbl, loads, chk, fbr=None, post=None, st=None, pipe=1, stag=0, sl=None, mid=None):
        if sl is None: sl = slp
        if fbr is not None: a(f"s_mov_b32 s82, s{fbr}\ns_add_u32 s83, s{fbr}, {BD}")
        a(f"s_mov_b32 s58, {spin}")
        for _ in range(pipe - 1):
            for l in loads: a(l)
            if stag: a(f"s_sleep {stag}")
        if mid:
            for l in loads: a(l)
            mid(); a(f"s_branch {lbl}_chk")
        a(f"{lbl}:")
        if st is not None and tailprof: stamp(st)
        for l in loads: a(l)
        if mid: a(f"{lbl}_chk:")
        a(f"s_waitcnt vmcnt({len(loads) * (pipe - 1)})")
        r = chk()
        if post: r = post(r)
        a(f"""
v_cmp_ne_u32 vcc, 0, v{r}
s_sub_u32 s58, s58, 1
s_cbranch_scc1 {lbl}_done
s_and_b64 exec, exec, vcc
s_cbranch_execz {lbl}_done
""")
        if fbr is not None: a(f"s_and_b32 s59, s58, {fb}\ns_cselect_b32 s{fbr}, s82, s83")
        if sl: a(f"s_sleep {sl}")
        a(f"""
s_branch {lbl}
{lbl}_done:
s_mov_b64 exec, -1
""")
    a("""L_helper:
s_load_dwordx16 s[16:31], s[0:1], 0
s_load_dwordx8 s[32:39], s[0:1], 64
s_load_dwordx2 s[40:41], s[0:1], 96
v_and_b32 v3, 15, v0
v_lshlrev_b32 v3, 2, v3
v_mov_b32 v4, 0
ds_write_b32 v3, v4
s_setprio 3
s_sub_u32 s3, s3, 4
s_waitcnt lgkmcnt(0)
""")
    if "probe" in dbg:
        srd(52, 40, 0x10000000)
        pl = "probel" in dbg
        a(f"""
s_cmp_lt_u32 s3, 2
s_cbranch_scc1 L_noprobe
s_and_b32 s4, s3, 1
s_lshl_b32 s4, s4, 13
s_lshl_b32 s5, s2, 14
s_add_u32 s4, s4, s5
s_add_u32 s4, s4, {8 << 20}
s_mov_b64 exec, 1
s_memtime s[76:77]
s_waitcnt lgkmcnt(0)
{"s_load_dword s5, s[40:41], s4 offset:128" if "probew" in dbg else ""}
s_waitcnt lgkmcnt(0)
{"s_memtime s[76:77]" if "probew" in dbg else ""}
s_waitcnt lgkmcnt(0)
{"s_load_dword s5, s[40:41], s4" if "probes" in dbg else "buffer_load_dword v5, v4, s[52:55], s4 offen sc1" if pl else "buffer_store_dword v4, v4, s[52:55], s4 offen sc1"}
s_waitcnt vmcnt(0) lgkmcnt(0)
s_memtime s[78:79]
s_waitcnt lgkmcnt(0)
s_sub_u32 s98, s78, s76
s_mov_b32 s99, 0
s_mov_b64 exec, -1
L_noprobe:
""")
    if near: a(f"s_cmp_lt_u32 s2, {8 * near['nw']}\ns_cbranch_scc1 L_meas\nL_meas_done:")
    srd(44, 16, 8192); srd(48, 22, 0x400000); srd(52, 40, 0x10000000); srd(56, 24, 0x400000)
    srd(60, 28, 3584); srd(64, 30, 3584); srd(68, 32, 3584)
    a(f"""
v_lshrrev_b32 v5, 4, v1
v_and_b32 v6, 7, v1
v_and_b32 v8, 15, v1
v_lshrrev_b32 v7, 5, v1
v_and_b32 v4, 31, v1
v_lshlrev_b32 v4, 4, v4
v_lshl_add_u32 v2, v7, 10, v4
s_lshl_b32 s6, s3, 11
v_mov_b32 v9, 0
v_mov_b32 v11, 1
v_lshrrev_b32 v20, 3, v1
v_lshlrev_b32 v21, 13, v20
v_lshl_add_u32 v21, v6, 4, v21
v_lshlrev_b32 v22, 10, v20
v_lshl_add_u32 v22, v6, 4, v22
s_and_b32 s15, s2, 7
s_lshr_b32 s14, s2, 3
s_add_u32 s4, s14, {rq}
s_and_b32 s4, s4, 7
s_add_u32 s14, s14, {ro}
s_and_b32 s14, s14, 7
s_lshl_b32 s8, s15, 3
s_add_u32 s8, s8, s4
s_lshr_b32 s9, s2, 6
s_lshl_b32 s4, s9, 2
s_add_u32 s4, s4, s3
s_lshl_b32 s4, s4, 18
s_lshl_b32 s5, s8, 7
s_add_u32 s72, s4, s5
s_lshl_b32 s13, s15, 2
s_add_u32 s13, s13, s9
s_lshl_b32 s4, s13, 2
s_add_u32 s4, s4, s3
s_lshl_b32 s4, s4, 15
s_lshl_b32 s5, s14, 7
s_add_u32 s73, s4, s5
s_lshl_b32 s4, s3, 12
s_add_u32 s74, s4, {WQL}
s_mul_i32 s75, s3, 896
v_lshlrev_b32 v23, 1, v1
s_barrier
""")
    if "nohelp" in dbg: a("s_branch L_pre2")
    a(f"""
buffer_load_dwordx4 v[{X}:{X+3}], v2, s[44:47], s6 offen
buffer_load_dwordx4 v[{X+4}:{X+7}], v2, s[44:47], s6 offen offset:512
{"s_load_dword s42, s[40:41], 0" if sE else "buffer_load_dword v10, v9, s[52:55], 0 offen sc1"}
""")
    if "nowq" in dbg: a("s_mov_b32 s50, 0\ns_mov_b32 s58, 0")
    for t in range(4):
        a(f"s_add_u32 m0, s74, {t*1024}\ns_nop 0\nbuffer_load_dwordx4 v21, s[48:51], s72 offen nt lds")
        if t < 3: a(f"s_add_u32 s72, s72, {8*8192}")
    def wodma(t, vr, so, sl):
        a(f"s_add_u32 m0, s{sl}, {16384+t*1024}\ns_nop 0\nbuffer_load_dwordx4 v{vr}, {'s[56:59]' if wolate is None else 's[68:71]'}, s{so} offen nt lds")
        if t < 3: a(f"s_add_u32 s{so}, s{so}, {8*1024}")
    if wolate is None:
        for t in range(4): wodma(t, 22, 73, 74)
    else:
        a("v_mov_b32 v90, v22\ns_mov_b32 s22, s73\ns_mov_b32 s23, s74")
    NW = 0 if wolate is None else 4
    for t in range(7):
        a(f"buffer_load_ushort v{W1+t}, v23, s[60:63], s75 offen offset:{128*t}")
        a(f"buffer_load_ushort v{B1+t}, v23, s[64:67], s75 offen offset:{128*t}")
        a(f"buffer_load_ushort v{W2+t}, v23, s[68:71], s75 offen offset:{128*t}")
    srd(60, 34, 2); srd(64, 36, 8192); srd(68, 24, 0 if 'nowq' in dbg else 0x400000)
    a(f"""
v_and_b32 v30, 3, v1
v_lshlrev_b32 v30, 1, v30
v_lshl_add_u32 v30, v5, 5, v30
s_lshr_b32 s10, s2, 2
s_lshl_b32 s10, s10, 7
s_and_b32 s4, s2, 3
s_lshl_b32 s4, s4, 3
s_add_u32 s10, s10, s4
buffer_load_ushort v31, v9, s[60:63], 0 offen
buffer_load_ushort v29, v30, s[44:47], s10 offen
s_mov_b32 s16, 0x07060500
s_mov_b32 s17, 0x07060501
s_mov_b32 s18, 0x07060502
s_mov_b32 s19, 0x07060503
s_mov_b32 s20, 0x0c0c0400
s_mov_b32 s21, 0x04000c0c
s_getreg_b32 s43, hwreg(HW_REG_XCC_ID, 0, 4)
s_lshl_b32 s43, s43, 3
s_add_u32 s43, s43, s15
s_lshl_b32 s43, s43, 7
s_add_u32 s43, s43, {LOCOFF}
s_lshr_b32 s59, s2, 3
s_lshl_b32 s59, s59, 2
s_add_u32 s59, s59, s43
s_mov_b32 s11, 0x3f803f80
v_mov_b32 v{S1}, 0
v_mov_b32 v{S2}, 0
s_waitcnt lgkmcnt(0)
s_add_u32 s42, s42, 1
s_mul_i32 s12, s42, 0x01010101
v_mov_b32 v10, s12
s_cmp_eq_u32 s3, 0
s_cselect_b64 exec, 1, 0
buffer_store_dword v10, v9, s[52:55], s59 offen
s_mov_b64 exec, -1
s_waitcnt vmcnt({32 - NW})
""")
    for i in range(8):
        a(f"v_dot2_f32_bf16 v{S1}, v{X+i}, s11, v{S1}")
        a(f"v_dot2_f32_bf16 v{S2}, v{X+i}, v{X+i}, v{S2}")
    for n in (8, 4, 2, 1):
        a(f"v_add_f32_dpp v{S1}, v{S1}, v{S1} row_ror:{n} row_mask:0xf bank_mask:0xf")
        a(f"v_add_f32_dpp v{S2}, v{S2}, v{S2} row_ror:{n} row_mask:0xf bank_mask:0xf")
    a(f"""
v_mov_b32 v{T0}, v{S1}
v_mov_b32 v{T1}, v{S2}
v_permlane16_swap_b32 v{S1}, v{T0}
v_permlane16_swap_b32 v{S2}, v{T1}
v_add_f32 v{S1}, v{S1}, v{T0}
v_add_f32 v{S2}, v{S2}, v{T1}
""")
    stats_finish()
    normalize(X, X, 8, 20)
    a(f"""
s_mul_i32 s4, s3, {2*XRS}
v_mul_u32_u24 v2, {XRS}, v7
v_add3_u32 v2, v2, v4, s4
ds_write_b128 v2, v[{X}:{X+3}] offset:{XN}
ds_write_b128 v2, v[{X+4}:{X+7}] offset:{XN+512}
v_mul_u32_u24 v2, {XRS}, v6
v_lshl_add_u32 v2, v5, 4, v2
s_lshl_b32 s4, s9, 8
v_add_u32 v2, s4, v2
v_bfe_u32 v3, v1, 2, 2
v_lshl_add_u32 v3, v5, 3, v3
v_lshlrev_b32 v3, 7, v3
v_and_b32 v20, 3, v1
v_lshl_add_u32 v3, v20, 3, v3
s_lshl_b32 s4, s3, 5
v_add_u32 v24, s4, v3
s_waitcnt vmcnt(24) lgkmcnt(0)
""")
    lds_signal(FLG + 8)
    a(f"""
v_and_b32 v27, 31, v1
v_lshlrev_b32 v27, 2, v27
buffer_load_dword v150, v27, s[52:55], s43 offen nt
v_lshlrev_b32 v25, 4, v5
v_lshl_add_u32 v25, v6, 11, v25
s_lshr_b32 s4, s8, 1
s_lshl_b32 s4, s4, 5
s_add_u32 s4, s4, s9
s_lshl_b32 s4, s4, 1
s_and_b32 s5, s8, 1
s_add_u32 s4, s4, s5
s_lshl_b32 s4, s4, 2
s_add_u32 s4, s4, s3
s_lshl_b32 s4, s4, 6
s_add_u32 s72, s4, {QOFF}
s_mov_b32 s26, 0
""")
    lds_wait("L_xw", FLG + 8, 4)
    for t in range(4):
        a(f"ds_read_b128 v[{96+4*t}:{99+4*t}], v2 offset:{XN+64*t}")
        for u in range(2): a(f"ds_read_b64_tr_b16 v[{112+4*t+2*u}:{113+4*t+2*u}], v24 offset:{WQL+t*4096+u*512}")
    a("s_waitcnt lgkmcnt(0)")
    stamp(1)
    for t in range(4):
        a(f"v_mfma_f32_16x16x32_bf16 v[128:131], v[{112+4*t}:{115+4*t}], v[{96+4*t}:{99+4*t}], {'0' if t == 0 else 'v[128:131]'}")
    pack16(132, [128, 129, 130, 131], 10)
    if "cutq" in dbg: a("s_branch L_pre2")
    a(f"""
s_movk_i32 s58, {nloc}
L_lc:
s_waitcnt vmcnt(0)
v_cmp_ne_u32 vcc, s12, v150
s_cbranch_vccz L_lc_done
buffer_load_dword v150, v27, s[52:55], s43 offen nt
s_sub_u32 s58, s58, 1
s_cbranch_scc0 L_lc
s_mov_b32 s26, 1
L_lc_done:
{"s_mov_b32 s26, 1" if clean else ""}
{"s_and_b32 s26, s3, 1" if "mixw" in dbg else ""}
{"s_bfe_u32 s26, s2, 0x10003" if "mixj" in dbg else ""}
s_mov_b32 exec_lo, 0x00ff00ff
s_mov_b32 exec_hi, 0x00ff00ff
s_cmp_lg_u32 s26, 0
s_cbranch_scc1 L_qs_far
buffer_store_dwordx4 v[132:135], v25, s[52:55], s72 offen
L_qs_done:
s_mov_b64 exec, -1
""")
    if near: a(f"s_lshl_b32 s4, s3, 8\ns_add_u32 s4, s4, s2\ns_sub_u32 s4, s4, 512\ns_cmp_lt_u32 s4, {8 * near['nw']}\ns_cbranch_scc1 L_mpub\nL_mpub_done:")
    if "cutp" in dbg: a("s_branch L_pre2")
    stamp(2)
    a(f"s_setprio {bgprio}")
    def woread(vr):
        for nt_ in range(4):
            for kk in range(4):
                for u in range(2):
                    r = WB + 16 * nt_ + 4 * kk + 2 * u
                    a(f"ds_read_b64_tr_b16 v[{r}:{r+1}], v{vr} offset:{WQL+16384+kk*4096+u*512+nt_*32}")
    if wolate is None: woread(3)
    else: a("v_mov_b32 v91, v3")
    a(f"""
s_lshr_b32 s4, s2, 5
s_mul_i32 s4, s4, {XRS}
v_lshl_add_u32 v2, v1, 4, s4
ds_read_b128 v[{HX}:{HX+3}], v2 offset:{XN}
v_mov_b32 v{S1}, 0
v_mov_b32 v{S2}, 0
s_waitcnt lgkmcnt(0)
""")
    for i in range(4):
        a(f"v_dot2_f32_bf16 v{S1}, v{HX+i}, s11, v{S1}")
        a(f"v_dot2_f32_bf16 v{S2}, v{HX+i}, v{HX+i}, v{S2}")
    for n in (8, 4, 2, 1):
        a(f"v_add_f32_dpp v{S1}, v{S1}, v{S1} row_ror:{n} row_mask:0xf bank_mask:0xf")
        a(f"v_add_f32_dpp v{S2}, v{S2}, v{S2} row_ror:{n} row_mask:0xf bank_mask:0xf")
    swaps_add(S1, T0); swaps_add(S2, T1)
    stats_finish()
    normalize(HX, HX, 4, 20)
    a(f"""
s_bitcmp1_b32 s2, 0
s_cselect_b64 vcc, -1, 0
s_bfe_u32 s4, s2, 0x30002
s_lshl_b32 s4, s4, 3
s_bfe_u32 s5, s2, 0x10001
s_add_u32 s4, s4, s5
v_cndmask_b32 v{HX}, v{HX}, v{HX+2}, vcc
v_cndmask_b32 v{HX+1}, v{HX+1}, v{HX+3}, vcc
""")
    for i in range(4):
        a(f"v_readlane_b32 s{72+2*i}, v{HX}, s4\nv_readlane_b32 s{73+2*i}, v{HX+1}, s4")
        if i < 3: a("s_add_u32 s4, s4, 2")
    a("s_waitcnt vmcnt(2)")
    for i in range(21): a(f"v_lshlrev_b32 v{W1+i}, 16, v{W1+i}")
    c0 = -2 * LOG2E * math.sqrt(2 / math.pi); c1 = c0 * 0.044715
    a(f"""
v_mov_b32 v{C1}, {f32(c1)}
s_lshl_b32 s4, s3, 6
v_mov_b32 v{YA}, s4
""")
    def mlp_steps(lo, hi):
        for d in range(lo, hi):
            if d & 1: a(f"s_and_b32 s4, s{72+(d>>1)}, 0xffff0000")
            else: a(f"s_lshl_b32 s4, s{72+(d>>1)}, 16")
            if "nomlp" not in dbg: a("s_call_b64 s[80:81], L_mlp")
            if wolate is not None and wotrig is None and d in wolate: wodma(wolate.index(d), 90, 22, 23)
    mlp_steps(0, mlp1)
    a(f"""
s_setprio 3
s_lshr_b32 s4, s2, 5
s_lshl_b32 s4, s4, 11
s_lshl_b32 s5, s15, 2
s_add_u32 s5, s5, s3
s_lshl_b32 s5, s5, 14
s_add_u32 s4, s4, s5
s_add_u32 s6, s4, {QOFF}
v_lshlrev_b32 v2, 4, v1
s_cmp_lg_u32 s26, 0
s_cbranch_scc1 L_gq_far
""")
    def qpoll(sfx, fl):
        poll("L_gq" + sfx, [f"buffer_load_dwordx4 v[{96+4*k}:{99+4*k}], v2, s[52:55], s6 offen offset:{1024*k} {fl}" for k in range(2)],
             lambda: chk16([96, 100], 104, 12), sl=qslp)
    qpoll("", "nt")
    a("L_gq_got:")
    for i in range(8): a(f"v_and_b32 v{96+i}, 0xffffff00, v{96+i}")
    for i in range(4): a(f"v_add_f32 v{96+i}, v{96+i}, v{100+i}")
    a(f"""
s_lshl_b32 s4, s3, 8
v_and_b32 v2, 31, v1
v_lshl_add_u32 v2, v2, 3, s4
v_lshl_add_u32 v2, v7, 2, v2
v_permlane32_swap_b32 v96, v98
v_permlane32_swap_b32 v97, v99
v_add_f32 v96, v96, v98
v_add_f32 v97, v97, v99
v_cvt_pk_bf16_f32 v96, v96, v97
ds_write_b32 v2, v96 offset:{QL}
s_waitcnt lgkmcnt(0)
""")
    lds_signal(FLG + 4)
    stamp(3)
    if "cutg" in dbg: a("s_branch L_pre2")
    a(f"s_setprio {bgprio}")
    mlp_steps(mlp1, 16)
    a("s_waitcnt vmcnt(0) lgkmcnt(0)")
    lds_signal(FLG + 12)
    a(f"""
v_lshrrev_b32 v2, 2, v1
v_mul_u32_u24 v20, 144, v2
v_and_b32 v3, 3, v1
v_lshl_add_u32 v20, v3, 5, v20
s_lshl_b32 s4, s3, 2
s_add_u32 s4, s4, {OP}
v_add_u32 v20, s4, v20
v_add_u32 v21, 2304, v20
v_add_u32 v22, 4608, v20
v_add_u32 v23, 6912, v20
s_lshl_b32 s4, s3, 3
v_mov_b32 v24, s4
v_lshrrev_b32 v25, 5, v1
v_lshlrev_b32 v25, 7, v25
v_bfe_u32 v2, v1, 4, 1
v_lshl_add_u32 v25, v2, 11, v25
v_bfe_u32 v2, v1, 1, 1
v_lshl_add_u32 v25, v2, 10, v25
v_bfe_u32 v2, v1, 2, 2
v_lshl_add_u32 v25, v2, 8, v25
v_and_b32 v2, 1, v1
v_lshl_add_u32 v25, v2, 3, v25
v_lshlrev_b32 v26, 4, v1
v_and_b32 v2, 1, v5
v_lshl_add_u32 v27, v2, 2, v3
v_lshlrev_b32 v27, 4, v27
v_lshlrev_b32 v28, {6 if h2full else 16}, v2
v_bfe_u32 v2, v1, 2, 2
v_lshl_add_u32 v28, v2, {12 if h2full else 11}, v28
v_lshl_add_u32 v28, v3, 4, v28
v_lshrrev_b32 v19, 2, v1
v_lshlrev_b32 v19, {7 if h2full else 6}, v19
v_lshl_add_u32 v19, v3, 4, v19
s_lshl_b32 s4, s15, 2
s_add_u32 s4, s4, s3
s_lshl_b32 s4, s4, 2
s_add_u32 s4, s4, s9
s_mul_i32 s4, s4, {H1S}
s_bfe_u32 s5, s2, 0x30003
s_lshl_b32 s5, s5, 4
s_add_u32 s4, s4, s5
s_add_u32 s6, s4, {H1OFF}
s_lshl_b32 s4, s13, 2
s_add_u32 s4, s4, s3
s_mul_i32 s4, s4, {H1S}
s_add_u32 s7, s4, {H1OFF}
s_lshl_b32 s4, s3, {5 if h2full else 6}
s_lshl_b32 s5, s14, 2
s_add_u32 s4, s4, s5
s_lshl_b32 s4, s4, {12 if h2full else 11}
s_lshl_b32 s5, s13, {7 if h2full else 6}
s_add_u32 s4, s4, s5
s_add_u32 s8, s4, {H2OFF}
""")
    if not h2full: a("s_lshl_b32 s9, s2, 11")
    else: a("""
s_lshr_b32 s9, s2, 6
s_lshl_b32 s9, s9, 5
s_and_b32 s4, s2, 31
s_add_u32 s9, s9, s4
s_lshl_b32 s9, s9, 12
s_bfe_u32 s4, s2, 0x10005
s_lshl_b32 s4, s4, 6
s_add_u32 s9, s9, s4
""")
    h2l = [f"buffer_load_dwordx4 v[{136+4*k}:{139+4*k}], v19, s[52:55], s9 offen offset:{(2048 if h2full else 1024)*k} sc1" for k in range(2)]
    a(f"""
s_add_u32 s9, s9, {H2OFF}
""")
    if near:
        a(f"s_mov_b32 s5, {CWOFF}\nv_and_b32 v2, {8 * near['nw'] - 1}, v1\nv_lshlrev_b32 v2, 3, v2")
        poll("L_cwp", ["buffer_load_dwordx2 v[94:95], v2, s[52:55], s5 offen sc1"], lambda: chk8([95], 80), sl=4)
        a(f"""
v_sub_u32 v95, 0, v94
v_cmp_gt_u32 vcc, 4, v6
v_cndmask_b32 v94, v95, v94, vcc
v_add_u32_dpp v94, v94, v94 row_ror:8 row_mask:0xf bank_mask:0xf
v_add_u32_dpp v94, v94, v94 row_ror:4 row_mask:0xf bank_mask:0xf
v_add_u32_dpp v94, v94, v94 row_ror:2 row_mask:0xf bank_mask:0xf
v_add_u32_dpp v94, v94, v94 row_ror:1 row_mask:0xf bank_mask:0xf
v_readfirstlane_b32 s4, v94
s_cmp_gt_i32 s4, 0
s_cselect_b32 s4, {0x2000 if not near.get("inv") else 0}, {0x2000 if near.get("inv") else 0}
s_xor_b32 s8, s8, s4
s_xor_b32 s9, s9, s4
""")
    if wolate is not None and wotrig is None:
        lds_wait("L_yw", FLG + 12, 4); woread(91)
    a("""
s_cmp_lg_u32 s3, 0
s_cbranch_scc1 L_ready
""")
    if wolate is None or wotrig is not None: lds_wait("L_yw", FLG + 12, 4)
    if h2pre:
        for l in h2l: a(l)
    if tlbw: a(f"s_mov_b32 s4, {H2OFF + (1 << 20) - 4096}\nbuffer_load_dword v94, v9, s[52:55], s4 offen")
    a(f"""
v_lshl_add_u32 v2, v5, 2, v3
v_lshlrev_b32 v2, 2, v2
ds_read_b32 v32, v2 offset:{YP}
ds_read_b32 v33, v2 offset:{YP+64}
ds_read_b32 v34, v2 offset:{YP+128}
ds_read_b32 v35, v2 offset:{YP+192}
v_lshlrev_b32 v31, 16, v31
s_waitcnt lgkmcnt(0)
v_add_f32 v32, v32, v33
v_add_f32 v34, v34, v35
v_add_f32 v32, v32, v34
v_cvt_pk_bf16_f32 v32, v32, v32
v_lshlrev_b32 v32, 16, v32
v_add_f32 v32, v32, v31
v_cvt_pk_bf16_f32 v32, v32, v32
v_lshlrev_b32 v32, 16, v32
v_mul_f32 v34, {f32(-LOG2E)}, v32
v_exp_f32 v34, v34
v_add_f32 v34, 1.0, v34
v_rcp_f32 v34, v34
v_mul_f32 v32, v32, v34
v_cvt_pk_bf16_f32 v32, v32, v32
v_lshlrev_b32 v16, 16, v32
v_lshlrev_b32 v14, 16, v29
L_ready:
""")
    if "cuts" in dbg: a("s_branch L_pre2")
    lds_wait("L_sw", FLG + 16, 4, sl=8)
    a(f"""
ds_read_b64 v[32:33], v24 offset:{ST}
ds_read_b64 v[34:35], v24 offset:{ST+32}
ds_read_b64 v[36:37], v24 offset:{ST+64}
ds_read_b64 v[38:39], v24 offset:{ST+96}
s_waitcnt lgkmcnt(0)
v_max3_f32 v48, v32, v34, v36
v_max_f32 v48, v48, v38
v_sub_f32 v32, v32, v48
v_sub_f32 v34, v34, v48
v_sub_f32 v36, v36, v48
v_sub_f32 v38, v38, v48
v_exp_f32 v32, v32
v_exp_f32 v34, v34
v_exp_f32 v36, v36
v_exp_f32 v38, v38
v_mov_b32 v49, v10
v_mov_b32 v51, v10
v_mul_f32 v50, v32, v33
v_fmac_f32 v50, v34, v35
v_fmac_f32 v50, v36, v37
v_fmac_f32 v50, v38, v39
v_mov_b32 v53, v10
s_mov_b64 exec, 1
s_cmp_lg_u32 s26, 0
s_cbranch_scc1 L_st_far
buffer_store_dwordx4 v[48:51], v9, s[52:55], s6 offen
s_mov_b64 exec, -1
""")
    poll("L_sp", [f"buffer_load_dwordx4 v[40:43], v27, s[52:55], s7 offen {h1fl}"], lambda: chk8([41, 43], 80), sl=8)
    a(f"""
s_branch L_st_done
L_st_far:
buffer_store_dwordx4 v[48:51], v9, s[52:55], s6 offen sc1
s_mov_b64 exec, -1
""")
    poll("L_spx", ["buffer_load_dwordx4 v[40:43], v27, s[52:55], s7 offen sc1"], lambda: chk8([41, 43], 80), sl=8)
    a("L_st_done:")
    a("""
v_max_f32_dpp v44, v40, v40 quad_perm:[1,0,3,2] row_mask:0xf bank_mask:0xf
v_max_f32_dpp v45, v44, v44 quad_perm:[2,3,0,1] row_mask:0xf bank_mask:0xf
v_sub_f32 v40, v40, v45
v_exp_f32 v40, v40
v_mul_f32 v42, v40, v42
v_add_f32_dpp v44, v42, v42 quad_perm:[1,0,3,2] row_mask:0xf bank_mask:0xf
v_add_f32_dpp v45, v44, v44 quad_perm:[2,3,0,1] row_mask:0xf bank_mask:0xf
v_rcp_f32 v45, v45
v_mul_f32 v40, v40, v45
v_mov_b32_dpp v56, v40 quad_perm:[0,0,0,0] row_mask:0xf bank_mask:0xf
v_mov_b32_dpp v57, v40 quad_perm:[1,1,1,1] row_mask:0xf bank_mask:0xf
v_mov_b32_dpp v58, v40 quad_perm:[2,2,2,2] row_mask:0xf bank_mask:0xf
v_mov_b32_dpp v59, v40 quad_perm:[3,3,3,3] row_mask:0xf bank_mask:0xf
L_pre2:
s_setprio 3
s_waitcnt vmcnt(0) lgkmcnt(0)
""")
    if wotrig is not None and wotrig >= 0:
        if defer:
            srd(48, 38, 256)
            a(f"""
s_getreg_b32 s4, hwreg(HW_REG_XCC_ID, 0, 3)
s_lshl_b32 s4, s4, 5
v_lshl_add_u32 v92, v6, 2, s4
s_mov_b32 s28, {(0x80 - defer[2]) * 0x01010101}
s_mov_b32 s29, 0x80808080
""")
        lds_wait("L_wt", FLG + 28, wothr, sl=wosl, msk=bool(defer))
        if defer: a(f"s_lshr_b32 s27, s59, 8\ns_cmp_ge_u32 s27, {defer[1]}\ns_cselect_b32 s27, 1, 0\ns_andn2_b32 s27, s27, s26\ns_cbranch_scc1 L_wt_skip")
        for t in range(4): wodma(t, 90, 22, 23)
        if defer: a("L_wt_skip:")
    stamp(4)
    a("s_barrier")
    if wotrig is not None and wotrig < 0:
        for t in range(4): wodma(t, 90, 22, 23)
    if isinstance(dbgt, str): a("s_memrealtime s[92:93]")
    if prof: a("s_waitcnt lgkmcnt(0)")
    if "notail" in dbg:
        stamp(5); stamp(6); a("s_branch L_hend")
    if tailprof: stamp(1); a("s_waitcnt lgkmcnt(0)")
    a(f"""
ds_read2_b32 v[40:41], v20 offset0:0 offset1:4
ds_read2_b32 v[42:43], v21 offset0:0 offset1:4
ds_read2_b32 v[44:45], v22 offset0:0 offset1:4
ds_read2_b32 v[46:47], v23 offset0:0 offset1:4
s_waitcnt lgkmcnt(2)
v_mul_f32 v40, v32, v40
v_mul_f32 v41, v32, v41
v_fmac_f32 v40, v34, v42
v_fmac_f32 v41, v34, v43
s_waitcnt lgkmcnt(0)
v_mul_f32 v44, v36, v44
v_mul_f32 v45, v36, v45
v_fmac_f32 v40, v38, v46
v_fmac_f32 v41, v38, v47
v_add_f32 v40, v40, v44
v_add_f32 v41, v41, v45
s_cmp_lg_u32 s26, 0
v_cvt_pk_bf16_f32 v52, v40, v41
s_cbranch_scc1 L_h1_far
buffer_store_dwordx2 v[52:53], v25, s[52:55], s6 offen offset:128
L_h1_st:
""")
    stamp(5)
    if wotrig is not None:
        if defer: a("s_cmp_lg_u32 s27, 0\ns_cbranch_scc1 L_dfr")
        a("s_waitcnt vmcnt(1)")
        if defer: a("L_dfr_done:")
        lds_signal(FLG + 20)
        lds_wait("L_wl", FLG + 20, 4)
        if not womid: woread(91)
    a("s_cmp_lg_u32 s26, 0\ns_cbranch_scc1 L_h1_farp")
    def h1poll(sfx, fl, pipe):
        full = [f"buffer_load_dwordx4 v[{64+4*k}:{67+4*k}], v26, s[52:55], s7 offen offset:{128+k*1024} {fl}" for k in range(4)]
        poll("L_h1" + sfx, full, lambda: chk8([65, 67, 69, 71, 73, 75, 77, 79], 80), st=4, pipe=pipe, stag=stag1, mid=(lambda: woread(91)) if (womid and wotrig is not None) else None)
    h1poll("", h1fl, pipe1)
    a("L_h1_got:")
    if wotrig is not None: a("s_waitcnt lgkmcnt(0)")
    stamp(6)
    AO = 96; DD = 112
    if h2late: a(f"s_mov_b64 exec, 1\nds_add_rtn_u32 v54, v9, v11 offset:{FLG+24}\ns_mov_b64 exec, -1")
    def mv(kk, p):
        src = 64 + 8 * (kk & 1) + 2 * p
        if kk >= 2: a(f"v_mov_b32_dpp v{AO+4*kk+p}, v{src} row_ror:8 row_mask:0xf bank_mask:0xf")
        else: a(f"v_mov_b32 v{AO+4*kk+p}, v{src}")
    for p in range(4): mv(0, p)
    for kk in range(4):
        for nt_ in range(4):
            d = DD + 4 * nt_; b = WB + 16 * nt_ + 4 * kk
            if kk < 3 and nt_ < 2: mv(kk + 1, 2 * nt_); mv(kk + 1, 2 * nt_ + 1)
            a(f"v_mfma_f32_16x16x32_bf16 v[{d}:{d+3}], v[{AO+4*kk}:{AO+4*kk+3}], v[{b}:{b+3}], {'0' if kk == 0 else f'v[{d}:{d+3}]'}")
    GO = 128
    if h2late: a("s_waitcnt lgkmcnt(0)\nv_readfirstlane_b32 s59, v54")
    for t in range(4):
        a(f"v_mul_f32 v{GO+t}, v56, v{DD+4*t}")
        a(f"v_mul_f32 v{GO+4+t}, v58, v{DD+4*t+2}")
    for t in range(4):
        a(f"v_fmac_f32 v{GO+t}, v57, v{DD+4*t+1}")
        a(f"v_fmac_f32 v{GO+4+t}, v59, v{DD+4*t+3}")
    for t in range(4): a(f"v_add_f32 v{GO+t}, v{GO+t}, v{GO+4+t}")
    pack16(GO, [GO, GO + 1, GO + 2, GO + 3], 10)
    if h2late:
        a("s_cmp_eq_u32 s59, 3\ns_cbranch_scc1 L_hl_done")
        lds_wait("L_hl", FLG + 24, 4)
    a(f"s_mov_b64 exec, 0xffffffff\nbuffer_store_dwordx4 v[{GO}:{GO+3}], v28, s[52:55], s8 offen sc1")
    if tailprof: stamp(2)
    if h2sync and not h2late: lds_signal(FLG + 24)
    a(f"""
s_mov_b64 exec, -1
s_cmp_lg_u32 s3, 0
s_cbranch_scc1 L_hend
""")
    if h2sync and not h2late: lds_wait("L_hw", FLG + 24, 4)
    if h2ack: a("s_waitcnt vmcnt(0)")
    poll("L_h2", h2l, lambda: chk16([136, 140], 56, 12), st=3, pipe=pipe2, stag=stag2, sl=slp2)
    for i in range(8): a(f"v_and_b32 v{48+i}, 0xffffff00, v{136+i}")
    for i in range(4): a(f"v_add_f32 v{48+i}, v{48+i}, v{52+i}")
    a(f"""
v_permlane32_swap_b32 v48, v50
v_permlane32_swap_b32 v49, v51
v_add_f32 v48, v48, v50
v_add_f32 v49, v49, v51
v_permlane16_swap_b32 v48, v49
v_add_f32 v48, v48, v49
v_add_f32_dpp v48, v48, v48 row_ror:4 row_mask:0xf bank_mask:0xf
v_add_f32_dpp v48, v48, v48 row_ror:8 row_mask:0xf bank_mask:0xf
s_mov_b32 exec_lo, 0x000f000f
s_mov_b32 exec_hi, 0x000f000f
v_cvt_pk_bf16_f32 v48, v48, v48
v_lshlrev_b32 v48, 16, v48
v_mul_f32 v48, v48, v16
v_cvt_pk_bf16_f32 v48, v48, v48
v_lshlrev_b32 v48, 16, v48
v_add_f32 v48, v48, v14
v_cvt_pk_bf16_f32 v48, v48, v48
buffer_store_short v48, v30, s[64:67], s10 offen {"sc1" if clean else ""}
s_mov_b64 exec, 1
s_cmp_lg_u32 s2, 0
s_cbranch_scc1 L_hend
v_mov_b32 v10, s42
buffer_store_dword v10, v9, s[52:55], 0 offen sc1
L_hend:
""")
    if "probe" in dbg: a("s_cmp_ge_u32 s3, 2\ns_cbranch_scc1 L_np7")
    stamp(7)
    if "probe" in dbg: a("L_np7:")
    if endwait or prof or dbgt: a("s_waitcnt vmcnt(0)")
    if isinstance(dbgt, str):
        AMP = 96 << 20
        def red(op, r, steps, t=70):
            for n in steps:
                if n < 16: a(f"{op}_dpp v{r}, v{r}, v{r} row_ror:{n} row_mask:0xf bank_mask:0xf")
                else: a(f"v_mov_b32 v{t}, v{r}\nv_permlane{n}_swap_b32 v{r}, v{t}\n{op} v{r}, v{r}, v{t}")
        a(f"""
s_cmp_lg_u32 s3, 0
s_cbranch_scc1 L_dbgt
s_memrealtime s[88:89]
s_mov_b64 exec, 1
s_waitcnt lgkmcnt(0)
v_mov_b32 v12, s84
v_mov_b32 v13, s92
v_mov_b32 v14, s88
v_mov_b32 v15, s12
s_lshl_b32 s59, s2, 4
s_add_u32 s59, s59, {AMP}
buffer_store_dwordx4 v[12:15], v9, s[52:55], s59 offen sc1
s_waitcnt vmcnt(0)
s_mov_b64 exec, -1
s_cmp_lg_u32 s2, 0
s_cbranch_scc1 L_dbgt
v_lshlrev_b32 v2, 4, v1
s_mov_b32 s6, {AMP}
""")
        poll("L_amp", [f"buffer_load_dwordx4 v[{40+4*k}:{43+4*k}], v2, s[52:55], s6 offen offset:{1024*k} sc1" for k in range(4)], lambda: chk8([43, 47, 51, 55], 80), sl=8)
        for k in range(4):
            for c in range(3): a(f"v_subrev_u32 v{40+4*k+c}, s84, v{40+4*k+c}")
        ALL = [8, 4, 2, 1, 16, 32]
        def stat(op, c, dst, steps=ALL):
            a(f"{op} v{dst}, v{40+c}, v{44+c}\n{op} v71, v{48+c}, v{52+c}\n{op} v{dst}, v{dst}, v71")
            red(op, dst, steps)
        stat("v_min_i32", 0, 60)
        if dbgt == "startmax": stat("v_max_i32", 0, 61)
        if dbgt == "bmin": stat("v_min_i32", 1, 61)
        if dbgt == "bmax": stat("v_max_i32", 1, 61)
        if dbgt == "emax": stat("v_max_i32", 2, 61)
        if dbgt == "bmean": stat("v_add_u32", 1, 61); a("v_ashrrev_i32 v61, 8, v61")
        if dbgt == "xs":
            stat("v_add_u32", 1, 61, [8, 16, 32]); a("v_ashrrev_i32 v61, 5, v61\nv_mov_b32 v60, v61")
            red("v_max_i32", 61, [4, 2, 1]); red("v_min_i32", 60, [4, 2, 1])
        a(f"""
v_sub_u32 v61, v61, v60
s_nop 1
v_readfirstlane_b32 s59, v61
s_mul_i32 s59, s59, 10
s_add_u32 s59, s59, 5000
s_min_u32 s59, s59, 100000
L_dbgs:
s_memrealtime s[90:91]
s_waitcnt lgkmcnt(0)
s_sub_u32 s58, s90, s84
s_cmp_lt_u32 s58, s59
s_cbranch_scc1 L_dbgs
L_dbgt:
""")
    elif dbgt == 2:
        a(f"""
s_or_b32 s59, s2, s3
s_cmp_lg_u32 s59, 0
s_cbranch_scc1 L_dbgt
s_memrealtime s[88:89]
s_waitcnt lgkmcnt(0)
s_sub_u32 s59, s88, s84
s_mul_i32 s59, s59, 10
s_min_u32 s59, s59, 100000
L_dbgs:
s_memrealtime s[90:91]
s_waitcnt lgkmcnt(0)
s_sub_u32 s58, s90, s88
s_cmp_lt_u32 s58, s59
s_cbranch_scc1 L_dbgs
L_dbgt:
""")
    elif dbgt:
        a(f"""
s_memrealtime s[88:89]
s_memtime s[90:91]
s_mov_b32 s44, s38
s_mov_b32 s45, s39
s_mov_b32 s46, 256
s_mov_b32 s47, 0x20000
s_mov_b64 exec, 1
s_waitcnt lgkmcnt(0)
s_not_b32 s59, s84
v_mov_b32 v12, s88
v_mov_b32 v13, s59
buffer_atomic_umax v12, v9, s[44:47], 0 offen sc1
buffer_atomic_umax v13, v9, s[44:47], 0 offen offset:4 sc1
s_cmp_lg_u32 s3, 0
s_cbranch_scc1 L_dbgt
s_and_b32 s59, s2, 0x7f
s_cmp_lg_u32 s59, 0
s_cbranch_scc1 L_dbgt
s_lshr_b32 s59, s2, 3
v_mov_b32 v12, s84
v_mov_b32 v13, s88
v_mov_b32 v14, s86
v_mov_b32 v15, s90
buffer_store_dwordx4 v[12:15], v9, s[44:47], s59 offen offset:16 sc1
L_dbgt:
s_waitcnt vmcnt(0)
""")
    if prof:
        a(f"""
s_mov_b64 exec, 1
s_sleep 127
s_waitcnt lgkmcnt(0)
s_lshl_b32 s59, s2, 3
s_add_u32 s59, s59, s3
s_add_u32 s59, s59, 4
s_lshl_b32 s59, s59, 6
s_add_u32 s59, s59, {STAMP}
""")
        for i in range(0, 8):
            a(f"v_mov_b32 v12, s{84+2*i}\nv_mov_b32 v13, s{85+2*i}\nbuffer_store_dwordx2 v[12:13], v9, s[52:55], s59 offen offset:{8*i}\ns_waitcnt vmcnt(0)")
    a("""L_end:
s_endpgm
L_h1_far:
buffer_store_dwordx2 v[52:53], v25, s[52:55], s6 offen offset:128 sc1
s_branch L_h1_st
L_h1_farp:
""")
    h1poll("x", "sc1", 1)
    a("s_branch L_h1_got")
    if defer:
        a(f"""
L_dfr:
s_movk_i32 s58, 2000
L_dfr_l:
buffer_load_dword v93, v92, s[48:51], 0 offen nt
s_waitcnt vmcnt(0)
v_add_u32 v93, s28, v93
v_and_b32 v93, s29, v93
v_cmp_ne_u32 vcc, s29, v93
s_cbranch_vccz L_dfr_go
s_sub_u32 s58, s58, 1
s_cbranch_scc0 L_dfr_l
L_dfr_go:
""")
        for t in range(4): wodma(t, 90, 22, 23)
        a("s_waitcnt vmcnt(0)\ns_branch L_dfr_done")
    if near:
        assert near["nw"] in (1, 2)
        a(f"""L_meas:
s_cmp_lt_u32 s3, 2
s_cbranch_scc1 L_meas_done
s_and_b32 s4, s3, 1
s_lshl_b32 s4, s4, 13
s_lshl_b32 s5, s2, 7
s_add_u32 s4, s4, s5
s_memtime s[76:77]
s_waitcnt lgkmcnt(0)
s_load_dword s5, s[40:41], s4 offset:{MEAS}
s_waitcnt lgkmcnt(0)
s_memtime s[78:79]
s_lshl_b32 s4, s3, 2
v_mov_b32 v5, s4
s_waitcnt lgkmcnt(0)
s_sub_u32 s78, s78, s76
v_mov_b32 v6, s78
ds_write_b32 v5, v6 offset:{OP - 8}
s_waitcnt lgkmcnt(0)
s_branch L_meas_done
L_mpub:
ds_read_b64 v[94:95], v9 offset:{OP}
s_lshl_b32 s4, s2, 3
s_add_u32 s4, s4, {CWOFF}
s_movk_i32 s5, {near.get("cap", 600)}
s_mov_b64 exec, 1
s_waitcnt lgkmcnt(0)
v_sub_u32 v94, v94, v95
v_min_i32 v94, s5, v94
v_sub_u32 v95, 0, v94
v_min_i32 v95, s5, v95
v_sub_u32 v94, 0, v95
v_mov_b32 v95, s12
buffer_store_dwordx2 v[94:95], v9, s[52:55], s4 offen sc1
s_mov_b64 exec, -1
s_branch L_mpub_done
""")
    a("L_qs_far:\nbuffer_store_dwordx4 v[132:135], v25, s[52:55], s72 offen sc1\ns_branch L_qs_done\nL_gq_far:")
    qpoll("x", "sc1")
    a("s_branch L_gq_got")
    if fc:
        a("L_cb:\ns_waitcnt lgkmcnt(0)\ns_mov_b32 s71, 0")
        for i in range(8): a(f"s_cmp_lg_u32 s{4+i}, s73\ns_addc_u32 s71, s71, 0")
        if not fc.get("wg"):
            a(f"""
s_cmp_lt_u32 s71, {fc['th1']}
s_cselect_b32 s62, 2, 0
s_cmp_ge_u32 s71, {fc['th2']}
s_cselect_b32 s62, 1, s62
""")
            if prof: a("s_lshl_b64 s[82:83], s[82:83], 2\ns_or_b32 s82, s82, s62")
            a("s_setpc_b64 s[80:81]")
        else:
            bias = 16 * fc["CW"]
            TSX = ""; DEC = ""
            if fc.get("dec"):
                DEC = f"s_cmp_eq_u32 s62, 1\ns_cselect_b32 s71, {-fc['dec'][0]}, 0\ns_cmp_eq_u32 s62, 2\ns_cselect_b32 s71, {fc['dec'][1]}, s71\ns_add_u32 s74, s74, s71"
            if fc.get("ts"):
                TSX = "L_cx:\ns_waitcnt lgkmcnt(0)\ns_mov_b32 s71, 0\n"
                for i in range(8): TSX += f"s_sub_u32 s{16+2*i}, s36, s{16+2*i}\ns_cmp_eq_u32 s{17+2*i}, s73\ns_cselect_b32 s{16+2*i}, s{16+2*i}, 0\ns_add_u32 s71, s71, s{16+2*i}\n"
                TSX += f"""s_sub_u32 s32, s36, s32
s_cmp_eq_u32 s33, s73
s_cselect_b32 s32, s32, 0
s_lshl_b32 s32, s32, 3
s_sub_u32 s32, s32, s71
s_mul_i32 s32, s32, {fc['tg']}
s_ashr_i32 s74, s32, 5
s_branch L_cc
"""
            a(f"""
s_mul_i32 s74, s71, {fc.get('kx', 0)}
{"s_lshl_b64 s[82:83], s[82:83], 4" if prof and fc.get("tm") else ""}
{"s_or_b32 s82, s82, s71" if prof and fc.get("tm") else ""}
s_branch L_cc
{TSX}
L_cw:
v_add_u32_dpp v85, v85, v85 row_ror:4 row_mask:0xf bank_mask:0xf
v_add_u32_dpp v85, v85, v85 row_ror:2 row_mask:0xf bank_mask:0xf
v_add_u32_dpp v85, v85, v85 row_ror:1 row_mask:0xf bank_mask:0xf
v_readfirstlane_b32 s69, v85
s_sub_u32 s75, s68, s69
s_sub_u32 s75, s75, {bias}
{DEC}
L_cc:
s_add_u32 s68, s75, s74
s_cmp_lt_i32 s68, {-fc['b']}
s_cselect_b32 s62, 2, 0
s_cmp_gt_i32 s68, {fc['a']}
s_cselect_b32 s62, 1, s62
""")
            if prof and not fc.get("tm"): a("s_lshl_b64 s[82:83], s[82:83], 2\ns_or_b32 s82, s82, s62")
            a("s_setpc_b64 s[80:81]")
    a("L_mlp:")
    for t in range(7): a(f"v_fma_f32 v{U+t}, s4, v{W1+t}, v{B1+t}")
    for t in range(7): a(f"v_mul_f32 v{AA+t}, v{U+t}, v{U+t}")
    for t in range(7): a(f"v_fmaak_f32 v{AA+t}, v{AA+t}, v{C1}, {f32(c0)}")
    for t in range(7): a(f"v_mul_f32 v{AA+t}, v{AA+t}, v{U+t}")
    for t in range(7): a(f"v_exp_f32 v{EE+t}, v{AA+t}")
    for t in range(7): a(f"v_mul_f32 v{U+t}, v{U+t}, v{W2+t}")
    for t in range(7): a(f"v_add_f32 v{EE+t}, 1.0, v{EE+t}")
    for t in range(7): a(f"v_rcp_f32 v{EE+t}, v{EE+t}")
    a(f"v_mul_f32 v{ACC2}, v{U}, v{EE}")
    a(f"v_mul_f32 v{AA}, v{U+1}, v{EE+1}")
    for t in range(2, 7): a(f"v_fmac_f32 v{ACC2 if t % 2 == 0 else AA}, v{U+t}, v{EE+t}")
    a(f"v_add_f32 v{ACC2}, v{ACC2}, v{AA}")
    for n in (8, 4, 2, 1): a(f"v_add_f32_dpp v{ACC2}, v{ACC2}, v{ACC2} row_ror:{n} row_mask:0xf bank_mask:0xf")
    swaps_add(ACC2, AA)
    a(f"""
s_mov_b64 exec, 1
ds_write_b32 v{YA}, v{ACC2} offset:{YP}
s_mov_b64 exec, -1
v_add_u32 v{YA}, 4, v{YA}
s_setpc_b64 s[80:81]
""")
    body = a.render()
    if "allsc1st" in dbg:
        import re
        body = re.sub(r"(buffer_store_dwordx[24] v\[\d+:\d+\], v\d+, s\[52:55\], s(6|72) offen( offset:128)?)\n", r"\1 sc1\n", body)
    if "allsc1ld" in dbg:
        import re
        body = re.sub(r"(buffer_load_dwordx4 v\[\d+:\d+\], v\d+, s\[52:55\], s[67] offen( offset:\d+)?) nt\n", r"\1 sc1\n", body)
    txt = HDR + f"""; @launch grid=(256,1,1) block=(512,1,1) lds={LDSZ}
.amdgcn_target "amdgcn-amd-amdhsa--gfx950"
.text
.globl {KN}_kernel
.p2align 8
.type {KN}_kernel,@function
{KN}_kernel:
""" + body + f""".section .rodata,"a"
.p2align 6
.amdhsa_kernel {KN}_kernel
  .amdhsa_next_free_vgpr 256
  .amdhsa_next_free_sgpr 102
  .amdhsa_accum_offset 256
  .amdhsa_group_segment_fixed_size 0
  .amdhsa_kernarg_size 104
  .amdhsa_user_sgpr_count 2
  .amdhsa_user_sgpr_kernarg_segment_ptr 1
  .amdhsa_system_sgpr_workgroup_id_x 1
.end_amdhsa_kernel
"""
    open(fname, "w").write(txt)
if __name__ == "__main__":
    import glob, os
    for f in glob.glob("kp_*.s"): os.remove(f)
    gen("k1.s", mlp1=4, slp=0)
    kw = dict(prof=True, tailprof=True, mlp1=4, slp=0, rq=1, wolate=[5, 7, 9, 11])
    gen("kp_00.s", **kw)
    F = dict(wg=1, x=1, G=2, kx=24, a=64, b=-16, W=(4,6,12), d=6, C=3, CW=2)
    gen("kp_01.s", fc=F, **kw)
    gen("kp_02_nowork.s", fc=F, dbg="nok nosm nov", **kw)
    gen("kp_03_nosm.s", fc=F, dbg="nosm", **kw)
    gen("kp_04_nowq.s", fc=F, dbg="nowq", **kw)
    gen("kp_05_nowork_nowq.s", fc=F, dbg="nok nosm nov nowq", **kw)
    gen("kp_06_nowork_nowq_nomlp.s", fc=F, dbg="nok nosm nov nowq nomlp", **kw)
    gen("kp_07_nofc_nowork.s", dbg="nok nosm nov", **kw)
    gen("kp_08_nofc_nowork_nowq.s", dbg="nok nosm nov nowq", **kw)
```

```python
import gen
kw = dict(mlp1=2, slp=0, rq=1, wolate=[5, 7, 9, 11], palign=7, wotrig=203, near=dict(nw=2))
F = dict(wg=1, x=0, G=2, kx=24, a=64, b=40, W=(4,6,12), d=6, C=3, CW=2, stop=0)
FT = {**F, "ts": [8, 17, 26, 35, 44], "tg": 4, "d": 5}
gen.gen("k9.s", fc=FT, **kw)
gen.gen("k9w.s", fc=F, **kw)
gen.gen("k9e.s", fc=FT, endwait=True, **kw)
```

```python
import sys, struct, math
from asmlib import Asm
KN = "recurrent_scan__gqa_block_cached__mixer_token_mlp__decode"
def f32(x): return "0x%08x" % struct.unpack("<I", struct.pack("<f", x))[0]
LOG2E = 1.4426950408889634
FLG = 0; QL = 64; ST = QL + 1024; YP = ST + 128; OP = YP + 256; XN = OP + 4 * 2304; XRS = 1040; WQL = XN + 8 * XRS; KL = WQL + 32768
QOFF = 64 << 10; H1OFF = QOFF + (1 << 20); H1S = 4224; H2OFF = H1OFF + (640 << 10); BD = 4 << 20; PGOFF = 8 << 10; LOCOFF = 32 << 10; STAMP = 128 << 20
HDR = open("cdna_kernels/" + KN + ".s.ref").read().split("; Override launch")[0]

def gen(fname, WIN=6, G=2, RING=40, prof=False, wo_thr=4, ntw="", woflags="", spin=400000, dbg="", WPS=1, dry=False, tailprof=False, NLT=6, slp=2, wqdma=True, sprio=2, bgprio=0, mlp1=8, local=True, fb=31, deferB=True, pretouch=False, pat=None, pat2=None, rot=None, cmap=0, light=False, lslp=0, h1fl='nt', h2sync=True, fc=None, est=None, rq=0, ro=0, sE=True, wolate=None, n0=64, pipe1=1, pipe2=1, stag1=3, stag2=3, h2late=True, h2ack=True, h2pre=False, h2full=False, slp2=0, dbgt=False, dirty=0, clean=False, qslp=None, nloc=200, tmap=(14, 16, None), wotrig=None, wothr=2, wosl=2, womid=True, palign=0, defer=None, h2off=None, tlbw=False, near=None, endwait=False, lastopt=True, pkc=True, warm='', hdel=0, wqdel=0, dp=False, dpt='c3', dpf=4, dpw=0, dpc=6, dpfl="nt", dpp=0, hp=3, hp2=None, h1e=None, wosw=False):
    if dp: assert fc and tmap[2] is None and wotrig is not None and wotrig >= 200
    H2OFF = (576 << 10) if h2off is None else h2off
    MEAS = 48 << 10; CWOFF = 16 << 10
    a = Asm()
    LDSZ = KL + 4 * NLT * 4096
    NLL = 4 * NLT
    NST = 8
    def stamp(i):
        if prof: a(f"s_memrealtime s[{84+2*i}:{85+2*i}]")
    stamp(0)
    if dbgt: a("s_memrealtime s[84:85]\ns_memtime s[86:87]")
    a(f"""
s_load_dwordx2 s[44:45], s[0:1], 8
s_load_dwordx2 s[48:49], s[0:1], 16
v_lshrrev_b32 v2, 6, v0
s_cmp_ge_u32 s2, 256
v_and_b32 v1, 63, v0
v_readfirstlane_b32 s3, v2
s_cbranch_scc1 L_end
s_cmp_ge_u32 s3, 4
s_cbranch_scc1 L_helper
""")
    a(f"""
s_setprio {sprio}
s_mov_b32 s46, 0x4000000
s_mov_b32 s47, 0x20000
s_and_b32 s52, s2, 7
s_lshl_b32 s52, s52, 20
s_lshr_b32 s53, s2, 5
s_lshl_b32 s53, s53, 23
s_or_b32 s52, s52, s53
s_bfe_u32 s53, s2, 0x20003
s_lshl_b32 s53, s53, {tmap[0]}
s_or_b32 s52, s52, s53
s_lshl_b32 s53, s3, 12
s_or_b32 s52, s52, s53
s_mul_i32 s60, s3, {NLT*4096}
s_add_u32 s60, s60, {KL}
v_lshrrev_b32 v5, 4, v1
v_bfe_u32 v6, v1, 2, 2
v_and_b32 v7, 3, v1
v_lshlrev_b32 v2, 8, v6
v_lshl_add_u32 v2, v5, 6, v2
v_lshl_add_u32 v2, v7, 4, v2
""")
    if tmap[2]: a(f"s_and_b32 s53, s2, 7\ns_lshl_b32 s53, s53, {tmap[2]}\ns_xor_b32 s52, s52, s53")
    def late_setup():
        a(f"""
s_load_dwordx2 s[38:39], s[0:1], 88
s_load_dwordx2 s[40:41], s[0:1], 96
s_mov_b32 s50, 0x4000000
s_mov_b32 s51, 0x20000
v_lshlrev_b32 v3, 4, v1
""")
        if fc: a(f"""
s_lshr_b32 s64, s2, 3
s_cmp_eq_u32 s3, 0
s_cselect_b32 s64, s64, 64
s_and_b32 s65, s2, 7
s_lshl_b32 s63, s65, 3
s_lshl_b32 s65, s65, {3 if fc.get("ts") else 2}
v_mov_b32 v83, s65
s_mov_b32 s62, {fc.get('l0', 0)}
s_mov_b64 s[82:83], 0
s_getreg_b32 s66, hwreg(HW_REG_XCC_ID, 0, 3)
s_lshl_b32 s66, s66, 5
s_lshr_b32 s67, s2, 3
s_add_u32 s67, s67, s66
v_mov_b32 v88, s67
v_and_b32 v87, 7, v1
v_lshl_add_u32 v87, v87, 2, s66
s_mov_b32 s74, 0
s_mov_b32 s75, 0
s_cmp_eq_u32 s3, 0
s_cselect_b64 vcc, 1, 0
s_waitcnt lgkmcnt(0)
s_load_dword s73, s[40:41], 0
s_mov_b32 s76, s40
s_mov_b32 s77, s41
s_mov_b32 s78, 0x10000000
s_mov_b32 s79, 0x20000
s_mov_b32 s12, s38
s_mov_b32 s13, s39
s_mov_b32 s14, 256
s_mov_b32 s15, 0x20000
""")
    RB = 256 - RING * 4
    def rreg(n): return RB + ((n - NLL) % RING) * 4
    NL = 128
    st = {"tile": None}
    def issue(n):
        isv = n >= 64; t = (n & 63) >> 2; q = n & 3
        if st["tile"] != (isv, t):
            st["tile"] = (isv, t)
            if tmap: a(f"s_xor_b32 s53, s52, {t << tmap[1]}")
            elif rot is None: a(f"s_add_u32 s53, s52, {t*16384}")
            else: a(f"s_add_u32 s53, s61, {t*16384}\ns_and_b32 s53, s53, 0x3ffff\ns_add_u32 s53, s53, s52")
            if n < NLL: a(f"s_add_u32 m0, s60, {t*4096}\ns_nop 0")
            if n == 0:
                if palign: a(f".p2align {palign}")
                a("s_waitcnt lgkmcnt(0)")
                if st.get("ks"): stamp(7)
        if n < NLL:
            a(f"buffer_load_dwordx4 v2, s[44:47], s53 offen offset:{q*1024} nt lds"); return
        r = rreg(n)
        a(f"buffer_load_dwordx4 v[{r}:{r+3}], {'v3' if isv else 'v2'}, {'s[48:51]' if isv else 's[44:47]'}, s53 offen offset:{q*1024} nt")
    TSR = 6
    QB = 8; Y = 12; ACC = 28; DT = 28; TT = 44; PT = 60; PA = 76; M = 80
    def setup_consts():
        a(f"""
s_mov_b32 s54, 0x05040100
s_mov_b32 s55, 0x07060302
s_mov_b32 s56, {f32(128**-0.5)}
s_mov_b32 s57, {f32(LOG2E)}
v_lshlrev_b32 v4, 8, v7
v_lshl_add_u32 v4, v5, 6, v4
v_lshl_add_u32 v4, v6, 4, v4
v_mov_b32 v84, 0
v_add_u32 v86, s60, v3
""")
    def wait_q():
        stamp(1)
        if "noq" in dbg:
            a(f"ds_read_b128 v[{QB}:{QB+3}], v4 offset:{QL}\ns_waitcnt lgkmcnt(0)"); stamp(2); return
        a(f"""
s_mov_b32 s58, {spin*8}
L_sq:
ds_read_b32 v85, v84 offset:{FLG+4}
s_waitcnt lgkmcnt(0)
v_readfirstlane_b32 s59, v85
s_sub_u32 s58, s58, 1
s_cbranch_scc1 L_sq_done
s_cmp_ge_u32 s59, 4
s_cbranch_scc1 L_sq_done
s_sleep 1
s_branch L_sq
L_sq_done:
ds_read_b128 v[{QB}:{QB+3}], v4 offset:{QL}
{f"ds_read_b32 v85, v84 offset:{FLG+32}" if dp else ""}
s_waitcnt lgkmcnt(0)
{"v_readfirstlane_b32 s42, v85" if dp else ""}
""")
        stamp(2)
        if prof: a("s_waitcnt lgkmcnt(0)")
    def ktile(t):
        if t < NLT:
            for q in range(4): a(f"ds_read_b128 v[{PT+4*q}:{PT+4*q+3}], v86 offset:{t*4096+q*1024}")
        for q in range(4):
            r = rreg(4 * t + q) if t >= NLT else PT + 4 * q
            if t < NLT: a(f"s_waitcnt lgkmcnt({3-q})")
            a(f"v_mfma_f32_16x16x32_bf16 v[{DT+4*q}:{DT+4*q+3}], v[{r}:{r+3}], v[{QB}:{QB+3}], 0")
        for c in range(4):
            for r in range(4):
                n = 4 * ((c - r) % 4)
                ctl = f"row_ror:{n}" if n else "quad_perm:[0,1,2,3]"
                a(f"v_mov_b32_dpp v{TT+r}, v{DT+4*c+r} {ctl} row_mask:0xf bank_mask:{hex(1<<c)}")
        y = Y + t
        a(f"""
v_add_f32 v{TT}, v{TT}, v{TT+1}
v_add_f32 v{TT+2}, v{TT+2}, v{TT+3}
v_add_f32 v{y}, v{TT}, v{TT+2}
v_cvt_pk_bf16_f32 v{y}, v{y}, v{y}
v_lshlrev_b32 v{y}, 16, v{y}
v_mul_f32 v{y}, s56, v{y}
v_cvt_pk_bf16_f32 v{y}, v{y}, v{y}
v_lshlrev_b32 v{y}, 16, v{y}
""")
    def xlane(op, r, t):
        a(f"""
{op}_dpp v{r}, v{r}, v{r} row_ror:4 row_mask:0xf bank_mask:0xf
""") if op != "v_add_f32" else a(f"""
v_add_f32_dpp v{r}, v{r}, v{r} row_ror:4 row_mask:0xf bank_mask:0xf
""")
        a(f"""
{op}_dpp v{r}, v{r}, v{r} row_ror:8 row_mask:0xf bank_mask:0xf
v_mov_b32 v{t}, v{r}
v_permlane16_swap_b32 v{r}, v{t}
{op} v{r}, v{r}, v{t}
v_mov_b32 v{t}, v{r}
v_permlane32_swap_b32 v{r}, v{t}
{op} v{r}, v{r}, v{t}
""")
    def softmax():
        m = M; l = M + 1; t = M + 2
        a(f"v_max3_f32 v{m}, v{Y}, v{Y+1}, v{Y+2}")
        for i in range(3, 15, 2): a(f"v_max3_f32 v{m}, v{m}, v{Y+i}, v{Y+i+1}")
        a(f"v_max_f32 v{m}, v{m}, v{Y+15}")
        xlane("v_max_f32", m, t)
        a(f"v_mul_f32 v{m}, s57, v{m}")
        for i in range(16): a(f"v_fma_f32 v{Y+i}, v{Y+i}, s57, -v{m}")
        for i in range(16): a(f"v_exp_f32 v{Y+i}, v{Y+i}")
        a(f"v_add_f32 v{l}, v{Y}, v{Y+1}")
        a(f"v_add_f32 v{t}, v{Y+2}, v{Y+3}")
        for i in range(4, 16, 2):
            a(f"v_add_f32 v{l}, v{l}, v{Y+i}")
            a(f"v_add_f32 v{t}, v{t}, v{Y+i+1}")
        a(f"v_add_f32 v{l}, v{l}, v{t}")
        for v in range(8): a(f"v_cvt_pk_bf16_f32 v{Y+v}, v{Y+2*v}, v{Y+2*v+1}")
        xlane("v_add_f32", l, t)
        a(f"""
s_lshl_b32 s59, s3, 5
v_lshl_add_u32 v{t}, v1, 3, s59
s_mov_b64 exec, 15
ds_write_b64 v{t}, v[{m}:{m+1}] offset:{ST}
s_mov_b64 exec, 1
v_mov_b32 v{t}, 1
ds_add_u32 v84, v{t} offset:{FLG+16}
s_mov_b64 exec, -1
""")
    def vchunk(v):
        a(f"v_mov_b32 v{PA}, v{Y+v}")
        for p in (1, 2, 3):
            a(f"v_mov_b32_dpp v{PA+p}, v{Y+v} row_ror:{4*((0-p)%4)} row_mask:0xf bank_mask:0xf")
        for half in range(2):
            for jj in range(4 * half, 4 * half + 4):
                o = PT + 4 * (jj & 3)
                for p in range(4):
                    lo = rreg(64 + 8 * v + p) + (jj >> 1); hi = rreg(64 + 8 * v + 4 + p) + (jj >> 1)
                    a(f"v_perm_b32 v{o+p}, v{hi}, v{lo}, {'s55' if jj & 1 else 's54'}")
            for jj in range(4 * half, 4 * half + 4):
                o = PT + 4 * (jj & 3); d = ACC + 4 * jj
                c = "0" if v == 0 else f"v[{d}:{d+3}]"
                a(f"v_mfma_f32_16x16x32_bf16 v[{d}:{d+3}], v[{PA}:{PA+3}], v[{o}:{o+3}], {c}")
    def s_wait(lbl, off, cnt):
        a(f"""
s_mov_b32 s58, {spin*8}
{lbl}:
ds_read_b32 v85, v84 offset:{off}
s_waitcnt lgkmcnt(0)
v_readfirstlane_b32 s59, v85
s_sub_u32 s58, s58, 1
s_cbranch_scc1 {lbl}_done
s_cmp_lt_u32 s59, {cnt}
s_cbranch_scc1 {lbl}
{lbl}_done:
""")
    def s_sig(off): a(f"s_mov_b64 exec, 1\nv_mov_b32 v82, 1\nds_add_u32 v84, v82 offset:{off}\ns_mov_b64 exec, -1")
    AQ = [20, 24, 12, PA]
    def fitem(v0):
        T_ = PT
        s_wait("L_d1", FLG + 16, 4)
        a(f"""
v_and_b32 v4, 3, v1
v_lshlrev_b32 v4, 3, v4
ds_read_b32 v{T_}, v4 offset:{ST}
ds_read_b32 v{T_+1}, v4 offset:{ST+32}
ds_read_b32 v{T_+2}, v4 offset:{ST+64}
ds_read_b32 v{T_+3}, v4 offset:{ST+96}
v_lshlrev_b32 v4, 1, v4
v_lshrrev_b32 v10, 4, v1
v_lshl_add_u32 v4, v10, 6, v4
v_bfe_u32 v11, v1, 2, 2
v_lshl_add_u32 v4, v11, 2, v4
s_lshl_b32 s59, s3, 8
v_add_u32 v4, s59, v4
s_waitcnt lgkmcnt(0)
v_max3_f32 v{T_}, v{T_}, v{T_+1}, v{T_+2}
v_max_f32 v{T_}, v{T_}, v{T_+3}
v_sub_f32 v{T_}, v{M}, v{T_}
v_exp_f32 v{T_}, v{T_}
""")
        for v in range(v0, 8): a(f"v_lshlrev_b32 v{T_+8+2*(v-v0)}, 16, v{Y+v}\nv_and_b32 v{T_+9+2*(v-v0)}, 0xffff0000, v{Y+v}")
        for i in range(4): a(f"v_mov_b32_dpp v{T_+4+i}, v{T_} quad_perm:[{i},{i},{i},{i}] row_mask:0xf bank_mask:0xf")
        for v in range(v0, 8): a(f"v_pk_mul_f32 v[{T_+8+2*(v-v0)}:{T_+9+2*(v-v0)}], v[{T_+8+2*(v-v0)}:{T_+9+2*(v-v0)}], v[{T_}:{T_+1}] op_sel_hi:[1,0]")
        for v in range(v0, 8): a(f"v_cvt_pk_bf16_f32 v{Y+v}, v{T_+8+2*(v-v0)}, v{T_+9+2*(v-v0)}")
        a(f"ds_write_b32 v4, v{Y+7} offset:{QL}")
        s_sig(FLG + 44)
        for jj in range(8):
            d_ = ACC + 4 * jj
            a(f"v_pk_mul_f32 v[{d_}:{d_+1}], v[{d_}:{d_+1}], v[{T_+4}:{T_+5}]\nv_pk_mul_f32 v[{d_+2}:{d_+3}], v[{d_+2}:{d_+3}], v[{T_+6}:{T_+7}]")
        a(f"""
v_lshlrev_b32 v9, 6, v10
v_lshl_add_u32 v9, v11, 4, v9
s_lshl_b32 s59, s3, 2
v_add_u32 v4, s59, v11
v_mul_u32_u24 v4, 144, v4
v_lshl_add_u32 v4, v10, 2, v4
v_and_b32 v8, 3, v1
v_lshl_add_u32 v4, v8, 5, v4
v_mul_u32_u24 v10, {4*H1S}, v10
v_lshl_add_u32 v10, v11, 8, v10
v_bfe_u32 v8, v1, 1, 1
v_lshl_add_u32 v10, v8, 10, v10
v_and_b32 v8, 1, v1
v_lshl_add_u32 v10, v8, 3, v10
v_mov_b32 v11, v9
s_and_b32 s43, s2, 7
s_lshl_b32 s43, s43, 4
s_lshr_b32 s59, s2, 6
s_add_u32 s43, s43, s59
s_mul_i32 s43, s43, {H1S}
s_bfe_u32 s59, s2, 0x30003
s_lshl_b32 s59, s59, 4
s_add_u32 s43, s43, s59
s_lshr_b32 s59, s3, 1
s_lshl_b32 s59, s59, 7
s_add_u32 s43, s43, s59
s_and_b32 s59, s3, 1
s_lshl_b32 s59, s59, 11
s_add_u32 s43, s43, s59
s_add_u32 s43, s43, {H1OFF + 128}
s_mul_i32 s72, s73, 0x01010101
v_mov_b32 v9, s72
s_mul_i32 s59, s3, 2304
v_mul_u32_u24 v8, 144, v1
v_add_u32 v8, s59, v8
""")
    work = [("K", t, 4 * t + 3) for t in list(range(NLT, 16)) + list(range(NLT))] + [("S", 0, 63)] + [("V", v, 64 + 8 * v + 7) for v in range(8)]
    if dp: work.insert(17 + dpf, ("F", dpf, 0))
    consumed = NLL - 1
    wi = 0
    def do_work():
        nonlocal wi, consumed
        k, i, last = work[wi]
        if k == "K":
            if wi == 0: wait_q()
            if "nok" not in dbg: ktile(i)
            consumed = max(consumed, last)
        elif k == "S":
            if "nosm" in dbg: a(f"s_mov_b64 exec, 1\nv_mov_b32 v82, 1\nds_add_u32 v84, v82 offset:{FLG+16}\ns_mov_b64 exec, -1")
            else: softmax()
            stamp(3)
        elif k == "F": fitem(i)
        else:
            if "nov" not in dbg: vchunk(i)
            consumed = last
        wi += 1
    issued = 0
    ops = []
    def iss(n):
        if dp == 1 and n >= 120:
            i = n - 120; u = i >> 1
            if n == 120: a(f"s_andn2_b32 s70, s52, 0x3000\nv_lshrrev_b32 v2, 4, v1\nv_lshlrev_b32 v2, 8, v2\nv_and_b32 v85, 15, v1\nv_lshl_add_u32 v2, v85, 2, v2\ns_lshl_b32 s59, s3, 6\nv_add_u32 v2, s59, v2")
            if i & 1 == 0: a(f"s_xor_b32 s53, s70, {(14 << tmap[1]) | (u << 12)}\ns_xor_b32 s61, s70, {(15 << tmap[1]) | (u << 12)}")
            for p in (2 * (i & 1), 2 * (i & 1) + 1):
                for hi in range(2):
                    a(f"buffer_load_dword v{rreg(120) + 8*u + 2*p + hi}, v2, s[48:51], s{61 if hi else 53} offen offset:{p*1024} {dpfl}")
                    ops.append(("L", n) if (p & 1 and hi) else ("s", n))
            return
        issue(n); ops.append(("L", n))
    def vm_for(X):
        li = [i for i, o in enumerate(ops) if o[0] == "L"]
        if len(li) <= X: return None
        p = li[len(li) - X - 1]
        return len(ops) - 1 - p, p
    if pat is None: pat = [(WIN, G)]
    if fc: pat = [(fc.get("w0", fc["W"][1]), fc["G"])]
    if est == [-1, -1]: stamp(5); st["ks"] = 1
    for n in range(pat[0][0]): iss(n)
    if est == [-1, -1]: stamp(6); est = [None, None]
    issued = pat[0][0]
    late_setup()
    a("s_barrier")
    setup_consts()
    arrived = -1
    step = 0
    done_op = -1; nw = 0; ph = 0; nctl = 0; evalq = []; PAIRS = [88, 92, 94]; tagdone = False
    while issued < NL:
        pp = pat2 if (pat2 is not None and issued >= n0) else pat
        WIN, G = pp[step % len(pp)]; step += 1
        if not fc:
            if issued - (WIN - G) - 1 > arrived: a(f"s_waitcnt vmcnt({WIN-G})")
            arrived = max(arrived, issued - (WIN - G) - 1)
        else:
            Wl, Wm, Wh = fc["W"]
            opened = False
            for n_, W_ in fc.get("open", []):
                if issued >= n_: Wl, Wm, Wh = W_; opened = Wl == Wh
            while issued + G - 1 - RING > consumed and work[wi][2] > max(arrived, issued - (Wh - G) - 1): Wh -= 1; Wm = min(Wm, Wh); Wl = min(Wl, Wh)
            r = vm_for(Wh - G)
            if r and issued - (Wh - G) - 1 > arrived: a(f"s_waitcnt vmcnt({r[0]})"); done_op = max(done_op, r[1]); arrived = max(arrived, issued - (Wh - G) - 1)
            tt = fc.get("tt")
            if tt:
                if not st.get("ev"):
                    a(f"s_waitcnt vmcnt({vm_for(Wm - G)[0]}) ;nc")
                else:
                    if not st.get("sl"):
                        a(f"s_waitcnt lgkmcnt(0)\ns_add_u32 s68, s70, {round(tt['U'] * (step - 1))}\ns_sub_u32 s68, s68, s{st['cur']}"); st["ok"] |= st["pend"]; st["pend"] = set()
                    lv = tt["lv"]
                    for n_, l_ in tt.get("lv2", []):
                        if issued >= n_: lv = l_
                    pw = Wh
                    for i_ in range(len(lv) - 1):
                        w_ = min(lv[i_ + 1][0], Wh)
                        if w_ >= pw: continue
                        pw = w_
                        a(f"s_cmpk_lt_i32 s68, {lv[i_][1] & 0xffff} ;nc\ns_cbranch_scc1 L_fs{step} ;nc\ns_waitcnt vmcnt({vm_for(w_ - G)[0]}) ;nc")
                    a(f"L_fs{step}:")
                    if prof and tt.get("tr") and step in tt["tr"]: a("s_lshl_b64 s[82:83], s[82:83], 16\ns_and_b32 s69, s68, 0xffff\ns_or_b32 s82, s82, s69")
            elif not opened: a(f"""
s_cmp_eq_u32 s62, 2 ;nc
s_cbranch_scc1 L_fs{step} ;nc
s_waitcnt vmcnt({vm_for(Wm - G)[0]}) ;nc
s_cmp_eq_u32 s62, 0 ;nc
s_cbranch_scc1 L_fs{step} ;nc
s_waitcnt vmcnt({vm_for(Wl - G)[0]}) ;nc
L_fs{step}:
""")
        if est:
            for i_, e_ in enumerate(est):
                if e_ is not None and arrived >= e_: stamp(5 + i_); est[i_] = None
        g = min(G, NL - issued)
        while issued + g - 1 - RING > consumed:
            if work[wi][2] > arrived:
                assert not fc
                a(f"s_waitcnt vmcnt({issued - 1 - work[wi][2]})"); arrived = work[wi][2]
            do_work()
        for n in range(issued, issued + g): iss(n)
        if wotrig is not None and wotrig >= 0 and issued <= wotrig < issued + g:
            a(f"s_mov_b64 exec, 1\nv_mov_b32 v82, 1\nds_add_u32 v84, v82 offset:{FLG+28}\ns_mov_b64 exec, -1")
        if fc:
            d = fc["d"]; k0 = fc.get("k0", 2); last = (NL - fc.get("stop", 8) - fc["W"][1]) // G
            if step == k0:
                a("s_waitcnt lgkmcnt(0)\ns_add_u32 s73, s73, 1\nv_mov_b32 v90, s73")
            if fc.get("wg"):
                tt = fc.get("tt")
                tab = step >= fc.get("kw", 4) and step % fc["CW"] == 0 and step <= last and not opened
                if tt and tt.get("notab"): tab = False
                if tt:
                    st.setdefault("ok", set()); st.setdefault("pend", set())
                    if step >= fc.get("kw", 4):
                        st["cur"] = [6, 8, 10, 34, 42][nw % 5] if tab else 4; assert len(evalq) < 5
                        if tab or not st.get("sl"):
                            a(f"s_memrealtime s[{st['cur']}:{st['cur']+1}]"); st["pend"].add(st["cur"]); st["ok"].discard(st["cur"])
                for e in [e for e in evalq if e[0] <= done_op]:
                    evalq.remove(e)
                    if tt:
                        if e[2] > tt.get("kstop", 99): continue
                        if e[3] not in st["ok"]:
                            assert not st.get("sl"); a("s_waitcnt lgkmcnt(0)"); st["ok"] |= st["pend"]; st["pend"] = set()
                        a(f"v_sad_u8 v85, v{e[1]}, 0, 0\ns_mov_b32 s62, s{e[3]}\ns_call_b64 s[80:81], {'L_cw' if st.get('ev1') else 'L_cw0'}"); st["ev"] = 1; st["ev1"] = 1
                        if tt.get("gl") and not st.get("gx"): a("s_mov_b32 s70, s75")
                    else: a(f"v_sad_u8 v85, v{e[1]}, 0, 0\ns_movk_i32 s68, {32 * e[2]}\ns_call_b64 s[80:81], L_cw")
                if tab and tt and step > tt.get("kstop", 99):
                    a(f"v_mov_b32 v89, {step}\ns_mov_b64 exec, vcc\nbuffer_store_byte v89, v88, s[12:15], 0 offen\ns_mov_b64 exec, -1"); ops.append(("S", 0))
                elif tab:
                    r_ = [91, 92, 93, 94, 95, 86 if NLT == 0 else 5][nw % 6]; nw += 1; assert len(evalq) < 6
                    a(f"""
v_mov_b32 v89, {step}
s_mov_b64 exec, vcc
buffer_store_byte v89, v88, s[12:15], 0 offen
s_mov_b64 exec, -1
buffer_load_dword v{r_}, v87, s[12:15], 0 offen nt
""")
                    ops.append(("S", 0)); ops.append(("C", 0)); evalq.append((len(ops) - 1, r_, step, st.get("cur")))
            if fc.get("ts"):
                for i_, k_ in enumerate(fc["ts"]):
                    if step == k_ - 1 and not fc.get("tt"): a("s_memrealtime s[34:35]")
                    if step == k_:
                        if not fc.get("tt"): a("s_waitcnt lgkmcnt(0)\ns_add_u32 s34, s34, s75\nv_mov_b32 v{TSR}, s34".replace("{TSR}", str(TSR)))
                        elif st.get("ev1"): a(f"s_add_u32 s65, s75, {round(fc['tt']['U'] * step)}\nv_mov_b32 v{TSR}, s65")
                        else:
                            a(f"s_waitcnt lgkmcnt(0)\nv_mov_b32 v{TSR}, s{st['cur']}"); st["ok"] |= st["pend"]; st["pend"] = set()
                            if fc["tt"].get("gl") == 2 and i_ == 0: a(f"s_sub_u32 s70, s{st['cur']}, {round(fc['tt']['U'] * step)}")
                        a(f"""
v_mov_b32 v97, s73
s_movk_i32 s65, {PGOFF + i_ * 256}
s_cmp_eq_u32 s64, {(5 * i_ + 3) % 32}
s_cselect_b64 exec, 1, 0
buffer_store_dwordx2 v[96:97], v83, s[76:79], s65 offen sc1
s_mov_b64 exec, -1
""".replace("v96", f"v{TSR}").replace("v97", f"v{TSR+1}").replace("v[96:97]", f"v[{TSR}:{TSR+1}]"))
                        ops.append(("S", 0))
                    if step == k_ + d:
                        a(f"s_load_dwordx16 s[16:31], s[40:41], {PGOFF + i_ * 256}\ns_load_dwordx2 s[32:33], s[40:41], s63 offset:{PGOFF + i_ * 256}\ns_memrealtime s[36:37]" if fc.get("tt", {}).get("gl") != 2 else f"s_load_dwordx16 s[16:31], s[40:41], {PGOFF + i_ * 256}"); st["sl"] = 1
                    if step == k_ + d + fc.get("dl", 3):
                        if fc.get("tt", {}).get("gl"):
                            a(f"s_movk_i32 s62, {round(fc['tt']['U'] * k_)}\ns_call_b64 s[80:81], {'L_cx' if st.get('gx') or not fc['tt'].get('gsm') else 'L_cx0'}"); st["gx"] = 1; st["ev"] = 1
                        else: a("s_call_b64 s[80:81], L_cx")
                        st["sl"] = 0
                        if fc.get("tt"):
                            st["ok"] |= st["pend"]; st["pend"] = set()
                            if st["cur"] == 4: a("s_memrealtime s[4:5]"); st["pend"].add(4)
            if k0 <= step <= last - d and fc.get("x", 1):
                a(f"""
s_movk_i32 s65, {PGOFF + step * 256}
s_cmp_eq_u32 s64, {step % 32}
s_cselect_b64 exec, 1, 0
buffer_store_dword v90, v83, s[76:79], s65 offen sc1
s_mov_b64 exec, -1
""")
                ops.append(("S", 0))
            if step >= k0 + d and (step - k0 - d) % fc["C"] == 0:
                if nctl > 0: a("s_call_b64 s[80:81], L_cb"); nctl = 0
                if step <= last and fc.get("x", 1):
                    a(f"s_load_dwordx8 s[4:11], s[40:41], {PGOFF + (step - d) * 256}"); nctl = 1
        issued += g
        for _ in range(WPS):
            if wi < len(work) and work[wi][2] <= arrived and (wi > 0 or issued + G - 1 - RING > consumed):
                do_work()
    if "dpst" in dbg: stamp(5); print("drain work:", work[wi:])
    while wi < len(work):
        need_ = work[wi][2]
        if dp == 1 and wi == len(work) - 1:
            if "dpst" in dbg: stamp(6)
            if dpt == "a": s_sig(FLG + 28)
            a("s_mov_b64 exec, 0xffff")
            for jj in range(8): a(f"ds_write_b128 v8, v[{ACC+4*jj}:{ACC+4*jj+3}] offset:{OP+16*jj}")
            s_sig(FLG + 36)
            s_wait("L_d3", FLG + 44, 4)
            for u in range(4): a(f"ds_read_b128 v[{AQ[u]}:{AQ[u]+3}], v11 offset:{QL+256*u}")
            if dpt == "b": s_sig(FLG + 28)
            R0 = rreg(120)
            def dperm(u, p):
                a(f"v_perm_b32 v{PT+8*(u&1)+p}, v{R0+8*u+2*p+1}, v{R0+8*u+2*p}, s54\nv_perm_b32 v{PT+8*(u&1)+4+p}, v{R0+8*u+2*p+1}, v{R0+8*u+2*p}, s55")
            for i in range(8):
                u = i >> 1
                if i == dpc:
                    s_wait("L_d2", FLG + 36, 4)
                    for u_ in range(4): a(f"ds_read_b32 v{36+2*u_}, v4 offset:{OP+2304*u_}\nds_read_b32 v{37+2*u_}, v4 offset:{OP+2304*u_+16}")
                    if "dpst" in dbg: stamp(7)
                if i == 7: a("s_waitcnt lgkmcnt(0)\nv_pk_add_f32 v[36:37], v[36:37], v[38:39]\nv_pk_add_f32 v[40:41], v[40:41], v[42:43]\nv_pk_add_f32 v[36:37], v[36:37], v[40:41]")
                if i < 7:
                    a(f"s_waitcnt vmcnt({vm_for(7 - i)[0]})")
                    if dpt == f"c{7 - i}": s_sig(FLG + 28)
                    dperm(u, 2 * (i & 1)); dperm(u, 2 * (i & 1) + 1)
                else:
                    a("s_waitcnt vmcnt(2)"); dperm(u, 2); a("s_cmp_lg_u32 s42, 0\ns_waitcnt vmcnt(0)"); dperm(u, 3)
                if i == 1: a("s_waitcnt lgkmcnt(0)")
                if i & 1:
                    for e in range(2): a(f"v_mfma_f32_16x16x32_bf16 v[{28+4*e}:{31+4*e}], v[{AQ[u]}:{AQ[u]+3}], v[{PT+8*(u&1)+4*e}:{PT+8*(u&1)+4*e+3}], {f'v[{28+4*e}:{31+4*e}]' if u else '0'}")
            a("v_add_f32 v28, v28, v36\nv_add_f32 v32, v32, v37")
            assert ops[-1] == ("L", 127)
            a(f"""
v_cvt_pk_bf16_f32 v8, v28, v32
s_cbranch_scc1 L_dp_far
buffer_store_dwordx2 v[8:9], v10, s[76:79], s43 offen
L_dp_done:
""")
            stamp(4)
            if dpw: s_sig(FLG + 40)
            break
        if wi == len(work) - 1 and wotrig is not None and wotrig >= 200:
            a(f"s_waitcnt vmcnt({vm_for(wotrig - 200)[0]})")
            if defer:
                a(f"s_cmp_gt_i32 s75, {defer[0]}\ns_cselect_b32 s59, 0x101, 1\ns_mov_b64 exec, 1\nv_mov_b32 v82, s59\nds_add_u32 v84, v82 offset:{FLG+28}")
                if defer[2] > 60:
                    a("v_mov_b32 v89, 62\ns_mov_b64 exec, vcc\nbuffer_store_byte v89, v88, s[12:15], 0 offen"); ops.append(("S", 0))
                a("s_mov_b64 exec, -1")
            else: a(f"s_mov_b64 exec, 1\nv_mov_b32 v82, 1\nds_add_u32 v84, v82 offset:{FLG+28}\ns_mov_b64 exec, -1")
        if wi == len(work) - 1 and lastopt and "nov" not in dbg:
            v = 7; OB = rreg(112)
            def lp(p, jj): a(f"v_perm_b32 v{OB+4*jj+p}, v{rreg(124+p)+(jj>>1)}, v{rreg(120+p)+(jj>>1)}, {'s55' if jj & 1 else 's54'}")
            def lm(jj): a(f"v_mfma_f32_16x16x32_bf16 v[{ACC+4*jj}:{ACC+4*jj+3}], v[{PA}:{PA+3}], v[{OB+4*jj}:{OB+4*jj+3}], v[{ACC+4*jj}:{ACC+4*jj+3}]")
            def lw(jj): a(f"ds_write_b128 v{8 if dp else 4}, v[{ACC+4*jj}:{ACC+4*jj+3}] offset:{OP+16*jj}")
            if not dp: a(f"s_mul_i32 s59, s3, 2304\nv_mul_u32_u24 v4, 144, v1\nv_add_u32 v4, s59, v4")
            a(f"v_mov_b32 v82, 1\nv_mov_b32 v{PA}, v{Y+v}")
            for p in (1, 2, 3): a(f"v_mov_b32_dpp v{PA+p}, v{Y+v} row_ror:{4*((0-p)%4)} row_mask:0xf bank_mask:0xf")
            for p in range(3):
                a(f"s_waitcnt vmcnt({vm_for(3 - p)[0]})")
                for jj in range(8): lp(p, jj)
            a("s_waitcnt vmcnt(0)")
            if dpp: a(f"s_setprio {dpp}")
            lp(3, 0); lp(3, 1)
            for jj in range(6): lp(3, jj + 2); lm(jj)
            stamp(4)
            a("s_mov_b64 exec, 0xffff"); lw(0); lm(6); lw(1); lm(7)
            for jj in range(2, 8): lw(jj)
            if dp:
                a(f"""
s_mov_b64 exec, 1
ds_add_u32 v84, v82 offset:{FLG+36}
s_mov_b64 exec, -1
s_mov_b32 s58, {spin*8}
L_d2:
ds_read_b32 v85, v84 offset:{FLG+36}
""")
                for u_ in range(4): a(f"ds_read_b32 v{PT+2*u_}, v4 offset:{OP+2304*u_}\nds_read_b32 v{PT+1+2*u_}, v4 offset:{OP+2304*u_+16}")
                a(f"""
s_waitcnt lgkmcnt(8)
v_readfirstlane_b32 s59, v85
s_sub_u32 s58, s58, 1
s_cbranch_scc1 L_d2_done
s_cmp_lt_u32 s59, 4
s_cbranch_scc1 L_d2
L_d2_done:
s_cmp_lg_u32 s42, 0
s_waitcnt lgkmcnt(4)
v_pk_add_f32 v[{PT}:{PT+1}], v[{PT}:{PT+1}], v[{PT+2}:{PT+3}]
s_waitcnt lgkmcnt(0)
v_pk_add_f32 v[{PT+4}:{PT+5}], v[{PT+4}:{PT+5}], v[{PT+6}:{PT+7}]
v_pk_add_f32 v[{PT}:{PT+1}], v[{PT}:{PT+1}], v[{PT+4}:{PT+5}]
v_cvt_pk_bf16_f32 v8, v{PT}, v{PT+1}
s_cbranch_scc1 L_dp_far
buffer_store_dwordx2 v[8:9], v10, s[76:79], s43 offen
L_dp_done:
""")
                if est: stamp(7)
                if dpw: s_sig(FLG + 40)
            break
        if need_ > arrived:
            r = vm_for(NL - 1 - need_) if fc else (NL - 1 - need_,)
            a(f"s_waitcnt vmcnt({r[0]})"); arrived = need_
        do_work()
    else:
        stamp(4)
        a(f"""
s_mul_i32 s59, s3, 2304
v_mul_u32_u24 v4, 144, v1
v_add_u32 v4, s59, v4
s_mov_b64 exec, 0xffff
""")
        for jj in range(8):
            a(f"ds_write_b128 v4, v[{ACC+4*jj}:{ACC+4*jj+3}] offset:{OP+16*jj}")
    if not dp: a("""
s_mov_b64 exec, -1
s_waitcnt lgkmcnt(0)
s_barrier
""")
    if dirty:
        a(f"""
s_mov_b32 s44, s40
s_mov_b32 s45, s41
s_mov_b32 s46, 0x10000000
s_mov_b32 s47, 0x20000
s_lshl_b32 s59, s2, 2
s_add_u32 s59, s59, s3
s_mul_i32 s59, s59, {dirty*1024}
s_add_u32 s59, s59, {64 << 20}
s_sleep 64
""")
        for i in range(dirty): a(f"buffer_store_dwordx4 v[28:31], v3, s[44:47], s59 offen\ns_add_u32 s59, s59, 1024")
    if prof:
        a(f"""
s_mov_b32 s44, s40
s_mov_b32 s45, s41
s_mov_b32 s46, 0x10000000
s_mov_b32 s47, 0x20000
s_sleep 127
s_sleep 127
s_sleep 127
s_waitcnt lgkmcnt(0)
s_lshl_b32 s59, s2, 3
s_add_u32 s59, s59, s3
s_lshl_b32 s59, s59, 6
s_add_u32 s59, s59, {STAMP}
v_mov_b32 v4, 0
s_mov_b64 exec, 1
""")
        for i in range(8):
            sr = 82 if (i == 5 and fc and not est) else 84 + 2 * (i if est else min(i, 4))
            a(f"v_mov_b32 v8, s{sr}\nv_mov_b32 v9, s{sr+1}\nbuffer_store_dwordx2 v[8:9], v4, s[44:47], s59 offen offset:{8*i}\ns_waitcnt vmcnt(0)")
    a("s_endpgm")
    if dp: a("L_dp_far:\nbuffer_store_dwordx2 v[8:9], v10, s[76:79], s43 offen sc1\ns_branch L_dp_done")
    X = 32
    S1 = 12; S2 = 13; T0 = 14; T1 = 15; NM = 16; RS = 18
    W1 = 40; B1 = 47; W2 = 54; HX = 62; U = 66; AA = 73; EE = 80; ACC2 = 87; C1 = 88; YA = 89
    WB = 192
    def srd(base, lo, size): a(f"s_mov_b32 s{base}, s{lo}\ns_mov_b32 s{base+1}, s{lo+1}\ns_mov_b32 s{base+2}, {size}\ns_mov_b32 s{base+3}, 0x20000")
    def bfround(r): a(f"v_cvt_pk_bf16_f32 v{r}, v{r}, v{r}\nv_lshlrev_b32 v{r}, 16, v{r}")
    def stats_finish():
        a(f"""
v_mul_f32 v{S1}, {f32(1/512)}, v{S1}
v_mul_f32 v{S2}, {f32(1/512)}, v{S2}
v_fma_f32 v{S2}, -v{S1}, v{S1}, v{S2}
v_max_f32 v{S2}, 0, v{S2}
""")
        bfround(S1); bfround(S2)
        a(f"v_add_f32 v{S2}, {f32(1e-5)}, v{S2}")
        bfround(S2)
        a(f"v_sqrt_f32 v{S2}, v{S2}")
        bfround(S2)
        a(f"""
v_rcp_f32 v{RS}, v{S2}
v_sub_f32 v{NM}, 0, v{S1}
v_sub_f32 v{NM+1}, 0, v{S1}
v_mov_b32 v{RS+1}, v{RS}
""")
    def swaps_add(r, t):
        a(f"""
v_mov_b32 v{t}, v{r}
v_permlane16_swap_b32 v{r}, v{t}
v_add_f32 v{r}, v{r}, v{t}
v_mov_b32 v{t}, v{r}
v_permlane32_swap_b32 v{r}, v{t}
v_add_f32 v{r}, v{r}, v{t}
""")
    def normalize(src, dst, n, tmp):
        for i0 in range(0, n, 4):
            idx = list(range(i0, min(n, i0 + 4)))
            for i in idx:
                t = tmp + 2 * (i - i0)
                a(f"v_lshlrev_b32 v{t}, 16, v{src+i}\nv_and_b32 v{t+1}, 0xffff0000, v{src+i}")
            for i in idx:
                t = tmp + 2 * (i - i0)
                a(f"v_pk_add_f32 v[{t}:{t+1}], v[{t}:{t+1}], v[{NM}:{NM+1}]")
            for i in idx:
                t = tmp + 2 * (i - i0)
                a(f"v_cvt_pk_bf16_f32 v{t}, v{t}, v{t+1}")
            for i in idx:
                t = tmp + 2 * (i - i0)
                a(f"v_and_b32 v{t+1}, 0xffff0000, v{t}\nv_lshlrev_b32 v{t}, 16, v{t}")
            for i in idx:
                t = tmp + 2 * (i - i0)
                a(f"v_pk_mul_f32 v[{t}:{t+1}], v[{t}:{t+1}], v[{RS}:{RS+1}]")
            for i in idx:
                t = tmp + 2 * (i - i0)
                a(f"v_cvt_pk_bf16_f32 v{dst+i}, v{t}, v{t+1}")
    def lds_wait(lbl, off, cnt, sl=0, msk=False):
        a(f"""
s_mov_b32 s58, {spin*8}
{lbl}:
ds_read_b32 v4, v9 offset:{off}
s_waitcnt lgkmcnt(0)
v_readfirstlane_b32 s59, v4
s_sub_u32 s58, s58, 1
s_cbranch_scc1 {lbl}_done
{"s_and_b32 s27, s59, 255" if msk else ""}
s_cmp_lt_u32 {"s27" if msk else "s59"}, {cnt}
{f"s_sleep {sl}" if sl else ""}
s_cbranch_scc1 {lbl}
{lbl}_done:
""")
    def lds_signal(off):
        a(f"""
s_mov_b64 exec, 1
ds_add_u32 v9, v11 offset:{off}
s_mov_b64 exec, -1
""")
    def orred(ts):
        ts = list(ts)
        while len(ts) > 1:
            if len(ts) >= 3:
                a(f"v_or3_b32 v{ts[0]}, v{ts[0]}, v{ts[1]}, v{ts[2]}"); ts = ts[3:] + [ts[0]]
            else:
                a(f"v_or_b32 v{ts[0]}, v{ts[0]}, v{ts[1]}"); ts = [ts[0]]
        return ts[0]
    def chk8(tags, tmp):
        for i, t in enumerate(tags): a(f"v_xor_b32 v{tmp+i}, s12, v{t}")
        return orred([tmp + i for i in range(len(tags))])
    def chk16(bases, tmp, tagreg):
        out = []
        for i, b in enumerate(bases):
            a(f"v_perm_b32 v{tmp+2*i}, v{b+1}, v{b}, s20\nv_perm_b32 v{tmp+2*i+1}, v{b+3}, v{b+2}, s21")
        for i, b in enumerate(bases):
            a(f"v_or_b32 v{tmp+2*i}, v{tmp+2*i}, v{tmp+2*i+1}")
        for i, b in enumerate(bases):
            a(f"v_xor_b32 v{tmp+2*i}, s{tagreg}, v{tmp+2*i}"); out.append(tmp + 2 * i)
        return orred(out)
    def pack16(dst, srcs, tagv):
        for i, r in enumerate(srcs): a(f"v_perm_b32 v{dst+i}, v{r}, v{tagv}, s{16+i}")
    def poll(lbl, loads, chk, fbr=None, post=None, st=None, pipe=1, stag=0, sl=None, mid=None, pre=False):
        if sl is None: sl = slp
        if fbr is not None: a(f"s_mov_b32 s82, s{fbr}\ns_add_u32 s83, s{fbr}, {BD}")
        a(f"s_mov_b32 s58, {spin}")
        for _ in range(pipe - 1):
            for l in loads: a(l)
            if stag: a(f"s_sleep {stag}")
        if mid:
            if not pre:
                for l in loads: a(l)
            mid(); a(f"s_branch {lbl}_chk")
        a(f"{lbl}:")
        if st is not None and tailprof: stamp(st)
        for l in loads: a(l)
        if mid: a(f"{lbl}_chk:")
        a(f"s_waitcnt vmcnt({len(loads) * (pipe - 1)})")
        r = chk()
        if post: r = post(r)
        a(f"""
v_cmp_ne_u32 vcc, 0, v{r}
s_sub_u32 s58, s58, 1
s_cbranch_scc1 {lbl}_done
s_and_b64 exec, exec, vcc
s_cbranch_execz {lbl}_done
""")
        if fbr is not None: a(f"s_and_b32 s59, s58, {fb}\ns_cselect_b32 s{fbr}, s82, s83")
        if sl: a(f"s_sleep {sl}")
        a(f"""
s_branch {lbl}
{lbl}_done:
s_mov_b64 exec, -1
""")
    a("""L_helper:
s_load_dwordx16 s[16:31], s[0:1], 0
s_load_dwordx8 s[32:39], s[0:1], 64
s_load_dwordx2 s[40:41], s[0:1], 96
v_and_b32 v3, 15, v0
v_lshlrev_b32 v3, 2, v3
v_mov_b32 v4, 0
ds_write_b32 v3, v4
s_setprio 3
s_sub_u32 s3, s3, 4
s_waitcnt lgkmcnt(0)
""")
    if "probe" in dbg:
        srd(52, 40, 0x10000000)
        pl = "probel" in dbg
        a(f"""
s_cmp_lt_u32 s3, 2
s_cbranch_scc1 L_noprobe
s_and_b32 s4, s3, 1
s_lshl_b32 s4, s4, 13
s_lshl_b32 s5, s2, 14
s_add_u32 s4, s4, s5
s_add_u32 s4, s4, {8 << 20}
s_mov_b64 exec, 1
s_memtime s[76:77]
s_waitcnt lgkmcnt(0)
{"s_load_dword s5, s[40:41], s4 offset:128" if "probew" in dbg else ""}
s_waitcnt lgkmcnt(0)
{"s_memtime s[76:77]" if "probew" in dbg else ""}
s_waitcnt lgkmcnt(0)
{"s_load_dword s5, s[40:41], s4" if "probes" in dbg else "buffer_load_dword v5, v4, s[52:55], s4 offen sc1" if pl else "buffer_store_dword v4, v4, s[52:55], s4 offen sc1"}
s_waitcnt vmcnt(0) lgkmcnt(0)
s_memtime s[78:79]
s_waitcnt lgkmcnt(0)
s_sub_u32 s98, s78, s76
s_mov_b32 s99, 0
s_mov_b64 exec, -1
L_noprobe:
""")
    if near: a(f"s_cmp_lt_u32 s2, {8 * near['nw']}\ns_cbranch_scc1 L_meas\nL_meas_done:")
    if "s" in warm:
        a("""
s_and_b32 s4, s2, 7
s_lshl_b32 s4, s4, 20
s_lshr_b32 s5, s2, 5
s_lshl_b32 s5, s5, 23
s_or_b32 s4, s4, s5
s_load_dword s76, s[20:21], s4
s_and_b32 s4, s2, 4
s_lshl_b32 s4, s4, 19
s_load_dword s77, s[24:25], s4
s_load_dword s78, s[36:37], 0
s_load_dword s79, s[38:39], 0
""")
    if "m" in warm:
        a("""
s_load_dword s76, s[16:17], 0
s_load_dword s77, s[22:23], 0
s_load_dword s78, s[22:23], 0x200000
s_load_dword s79, s[28:29], 0
s_load_dword s76, s[30:31], 0
s_load_dword s77, s[32:33], 0
s_load_dword s78, s[34:35], 0
""".replace("0x200000", "0xffffc"))
    srd(44, 16, 8192); srd(48, 22, 0x400000); srd(52, 40, 0x10000000); srd(56, 24, 0x400000)
    srd(60, 28, 3584); srd(64, 30, 3584); srd(68, 32, 3584)
    a(f"""
v_lshrrev_b32 v5, 4, v1
v_and_b32 v6, 7, v1
v_and_b32 v8, 15, v1
v_lshrrev_b32 v7, 5, v1
v_and_b32 v4, 31, v1
v_lshlrev_b32 v4, 4, v4
v_lshl_add_u32 v2, v7, 10, v4
s_lshl_b32 s6, s3, 11
v_mov_b32 v9, 0
v_mov_b32 v11, 1
v_lshrrev_b32 v20, 3, v1
v_lshlrev_b32 v21, 13, v20
v_lshl_add_u32 v21, v6, 4, v21
v_lshlrev_b32 v22, 10, v20
v_lshl_add_u32 v22, v6, 4, v22
s_and_b32 s15, s2, 7
s_lshr_b32 s14, s2, 3
s_add_u32 s4, s14, {rq}
s_and_b32 s4, s4, 7
s_add_u32 s14, s14, {ro}
s_and_b32 s14, s14, 7
s_lshl_b32 s8, s15, 3
s_add_u32 s8, s8, s4
s_lshr_b32 s9, s2, 6
s_lshl_b32 s4, s9, 2
s_add_u32 s4, s4, s3
s_lshl_b32 s4, s4, 18
s_lshl_b32 s5, s8, 7
s_add_u32 s72, s4, s5
s_lshl_b32 s13, s15, 2
s_add_u32 s13, s13, s9
s_lshl_b32 s4, s13, 2
s_add_u32 s4, s4, s3
s_lshl_b32 s4, s4, 15
s_lshl_b32 s5, s14, 7
s_add_u32 s73, s4, s5
s_lshl_b32 s4, s3, 12
s_add_u32 s74, s4, {WQL}
s_mul_i32 s75, s3, 896
v_lshlrev_b32 v23, 1, v1
s_barrier
""")
    if "nohelp" in dbg: a("s_branch L_pre2")
    if hdel: a(f"s_sleep {hdel}")
    a(f"""
buffer_load_dwordx4 v[{X}:{X+3}], v2, s[44:47], s6 offen
buffer_load_dwordx4 v[{X+4}:{X+7}], v2, s[44:47], s6 offen offset:512
{"s_load_dword s42, s[40:41], 0" if sE else "buffer_load_dword v10, v9, s[52:55], 0 offen sc1"}
""")
    if "nowq" in dbg: a("s_mov_b32 s50, 0\ns_mov_b32 s58, 0")
    if wqdel: a(f"s_sleep {wqdel}")
    for t in range(4):
        a(f"s_add_u32 m0, s74, {t*1024}\ns_nop 0\nbuffer_load_dwordx4 v21, s[48:51], s72 offen nt lds")
        if t < 3: a(f"s_add_u32 s72, s72, {8*8192}")
    def wodma(t, vr, so, sl):
        if wosw and t & 1: vr = 152
        a(f"s_add_u32 m0, s{sl}, {16384+t*1024}\ns_nop 0\nbuffer_load_dwordx4 v{vr}, {'s[56:59]' if wolate is None else 's[68:71]'}, s{so} offen nt lds")
        if t < 3: a(f"s_add_u32 s{so}, s{so}, {8*1024}")
    if wolate is None:
        for t in range(4): wodma(t, 22, 73, 74)
    else:
        if wosw: a("v_and_b32 v90, 1, v5\nv_lshlrev_b32 v90, 5, v90\nv_xor_b32 v90, v90, v22\nv_xor_b32 v152, 64, v90\ns_mov_b32 s22, s73\ns_mov_b32 s23, s74")
        else: a("v_mov_b32 v90, v22\ns_mov_b32 s22, s73\ns_mov_b32 s23, s74")
    NW = 0 if wolate is None else 4
    for t in range(7):
        a(f"buffer_load_ushort v{W1+t}, v23, s[60:63], s75 offen offset:{128*t}")
        a(f"buffer_load_ushort v{B1+t}, v23, s[64:67], s75 offen offset:{128*t}")
        a(f"buffer_load_ushort v{W2+t}, v23, s[68:71], s75 offen offset:{128*t}")
    srd(60, 34, 2); srd(64, 36, 8192); srd(68, 24, 0 if 'nowq' in dbg else 0x400000)
    a(f"""
v_and_b32 v30, 3, v1
v_lshlrev_b32 v30, 1, v30
v_lshl_add_u32 v30, v5, 5, v30
s_lshr_b32 s10, s2, 2
s_lshl_b32 s10, s10, 7
s_and_b32 s4, s2, 3
s_lshl_b32 s4, s4, 3
s_add_u32 s10, s10, s4
buffer_load_ushort v31, v9, s[60:63], 0 offen
buffer_load_ushort v29, v30, s[44:47], s10 offen
s_mov_b32 s16, 0x07060500
s_mov_b32 s17, 0x07060501
s_mov_b32 s18, 0x07060502
s_mov_b32 s19, 0x07060503
s_mov_b32 s20, 0x0c0c0400
s_mov_b32 s21, 0x04000c0c
s_getreg_b32 s43, hwreg(HW_REG_XCC_ID, 0, 4)
s_lshl_b32 s43, s43, 3
s_add_u32 s43, s43, s15
s_lshl_b32 s43, s43, 7
s_add_u32 s43, s43, {LOCOFF}
s_lshr_b32 s59, s2, 3
s_lshl_b32 s59, s59, 2
s_add_u32 s59, s59, s43
s_mov_b32 s11, 0x3f803f80
v_mov_b32 v{S1}, 0
v_mov_b32 v{S2}, 0
s_waitcnt lgkmcnt(0)
s_add_u32 s42, s42, 1
s_mul_i32 s12, s42, 0x01010101
v_mov_b32 v10, s12
s_cmp_eq_u32 s3, 0
s_cselect_b64 exec, 1, 0
buffer_store_dword v10, v9, s[52:55], s59 offen
s_mov_b64 exec, -1
s_waitcnt vmcnt({32 - NW})
""")
    for i in range(8):
        a(f"v_dot2_f32_bf16 v{S1}, v{X+i}, s11, v{S1}")
        a(f"v_dot2_f32_bf16 v{S2}, v{X+i}, v{X+i}, v{S2}")
    for n in (8, 4, 2, 1):
        a(f"v_add_f32_dpp v{S1}, v{S1}, v{S1} row_ror:{n} row_mask:0xf bank_mask:0xf")
        a(f"v_add_f32_dpp v{S2}, v{S2}, v{S2} row_ror:{n} row_mask:0xf bank_mask:0xf")
    a(f"""
v_mov_b32 v{T0}, v{S1}
v_mov_b32 v{T1}, v{S2}
v_permlane16_swap_b32 v{S1}, v{T0}
v_permlane16_swap_b32 v{S2}, v{T1}
v_add_f32 v{S1}, v{S1}, v{T0}
v_add_f32 v{S2}, v{S2}, v{T1}
""")
    stats_finish()
    normalize(X, X, 8, 20)
    a(f"""
s_mul_i32 s4, s3, {2*XRS}
v_mul_u32_u24 v2, {XRS}, v7
v_add3_u32 v2, v2, v4, s4
ds_write_b128 v2, v[{X}:{X+3}] offset:{XN}
ds_write_b128 v2, v[{X+4}:{X+7}] offset:{XN+512}
v_mul_u32_u24 v2, {XRS}, v6
v_lshl_add_u32 v2, v5, 4, v2
s_lshl_b32 s4, s9, 8
v_add_u32 v2, s4, v2
v_bfe_u32 v3, v1, 2, 2
v_lshl_add_u32 v3, v5, 3, v3
v_lshlrev_b32 v3, 7, v3
v_and_b32 v20, 3, v1
v_lshl_add_u32 v3, v20, 3, v3
s_lshl_b32 s4, s3, 5
v_add_u32 v24, s4, v3
s_waitcnt vmcnt(24) lgkmcnt(0)
""")
    lds_signal(FLG + 8)
    a(f"""
v_and_b32 v27, 31, v1
v_lshlrev_b32 v27, 2, v27
buffer_load_dword v150, v27, s[52:55], s43 offen nt
v_lshlrev_b32 v25, 4, v5
v_lshl_add_u32 v25, v6, 11, v25
s_lshr_b32 s4, s8, 1
s_lshl_b32 s4, s4, 5
s_add_u32 s4, s4, s9
s_lshl_b32 s4, s4, 1
s_and_b32 s5, s8, 1
s_add_u32 s4, s4, s5
s_lshl_b32 s4, s4, 2
s_add_u32 s4, s4, s3
s_lshl_b32 s4, s4, 6
s_add_u32 s72, s4, {QOFF}
s_mov_b32 s26, 0
""")
    lds_wait("L_xw", FLG + 8, 4)
    for t in range(4):
        a(f"ds_read_b128 v[{96+4*t}:{99+4*t}], v2 offset:{XN+64*t}")
        for u in range(2): a(f"ds_read_b64_tr_b16 v[{112+4*t+2*u}:{113+4*t+2*u}], v24 offset:{WQL+t*4096+u*512}")
    a("s_waitcnt lgkmcnt(0)")
    stamp(1)
    for t in range(4):
        a(f"v_mfma_f32_16x16x32_bf16 v[128:131], v[{112+4*t}:{115+4*t}], v[{96+4*t}:{99+4*t}], {'0' if t == 0 else 'v[128:131]'}")
    pack16(132, [128, 129, 130, 131], 10)
    if "cutq" in dbg: a("s_branch L_pre2")
    a(f"""
s_movk_i32 s58, {nloc}
L_lc:
s_waitcnt vmcnt(0)
v_cmp_ne_u32 vcc, s12, v150
s_cbranch_vccz L_lc_done
buffer_load_dword v150, v27, s[52:55], s43 offen nt
s_sub_u32 s58, s58, 1
s_cbranch_scc0 L_lc
s_mov_b32 s26, 1
L_lc_done:
{"s_mov_b32 s26, 1" if clean else ""}
{"s_and_b32 s26, s3, 1" if "mixw" in dbg else ""}
{"s_bfe_u32 s26, s2, 0x10003" if "mixj" in dbg else ""}
s_mov_b32 exec_lo, 0x00ff00ff
s_mov_b32 exec_hi, 0x00ff00ff
s_cmp_lg_u32 s26, 0
s_cbranch_scc1 L_qs_far
buffer_store_dwordx4 v[132:135], v25, s[52:55], s72 offen
L_qs_done:
s_mov_b64 exec, -1
""")
    if near: a(f"s_lshl_b32 s4, s3, 8\ns_add_u32 s4, s4, s2\ns_sub_u32 s4, s4, 512\ns_cmp_lt_u32 s4, {8 * near['nw']}\ns_cbranch_scc1 L_mpub\nL_mpub_done:")
    if "cutp" in dbg: a("s_branch L_pre2")
    stamp(2)
    a(f"s_setprio {bgprio}")
    def woread(vr):
        for nt_ in range(4):
            for kk in range(4):
                for u in range(2):
                    r = WB + 16 * nt_ + 4 * kk + 2 * u
                    if wosw: a(f"ds_read_b64_tr_b16 v[{r}:{r+1}], v{153+nt_} offset:{WQL+16384+kk*4096+u*512}")
                    else: a(f"ds_read_b64_tr_b16 v[{r}:{r+1}], v{vr} offset:{WQL+16384+kk*4096+u*512+nt_*32}")
    if wolate is None: woread(3)
    elif wosw: a("v_bfe_u32 v153, v1, 3, 2\nv_lshl_add_u32 v153, v153, 5, v3\nv_xor_b32 v154, 32, v153\nv_xor_b32 v155, 64, v153\nv_xor_b32 v156, 0x60, v153")
    else: a("v_mov_b32 v91, v3")
    a(f"""
s_lshr_b32 s4, s2, 5
s_mul_i32 s4, s4, {XRS}
v_lshl_add_u32 v2, v1, 4, s4
ds_read_b128 v[{HX}:{HX+3}], v2 offset:{XN}
v_mov_b32 v{S1}, 0
v_mov_b32 v{S2}, 0
s_waitcnt lgkmcnt(0)
""")
    for i in range(4):
        a(f"v_dot2_f32_bf16 v{S1}, v{HX+i}, s11, v{S1}")
        a(f"v_dot2_f32_bf16 v{S2}, v{HX+i}, v{HX+i}, v{S2}")
    for n in (8, 4, 2, 1):
        a(f"v_add_f32_dpp v{S1}, v{S1}, v{S1} row_ror:{n} row_mask:0xf bank_mask:0xf")
        a(f"v_add_f32_dpp v{S2}, v{S2}, v{S2} row_ror:{n} row_mask:0xf bank_mask:0xf")
    swaps_add(S1, T0); swaps_add(S2, T1)
    stats_finish()
    normalize(HX, HX, 4, 20)
    a(f"""
s_bitcmp1_b32 s2, 0
s_cselect_b64 vcc, -1, 0
s_bfe_u32 s4, s2, 0x30002
s_lshl_b32 s4, s4, 3
s_bfe_u32 s5, s2, 0x10001
s_add_u32 s4, s4, s5
v_cndmask_b32 v{HX}, v{HX}, v{HX+2}, vcc
v_cndmask_b32 v{HX+1}, v{HX+1}, v{HX+3}, vcc
""")
    for i in range(4):
        a(f"v_readlane_b32 s{72+2*i}, v{HX}, s4\nv_readlane_b32 s{73+2*i}, v{HX+1}, s4")
        if i < 3: a("s_add_u32 s4, s4, 2")
    a("s_waitcnt vmcnt(2)")
    for i in range(21): a(f"v_lshlrev_b32 v{W1+i}, 16, v{W1+i}")
    c0 = -2 * LOG2E * math.sqrt(2 / math.pi); c1 = c0 * 0.044715
    a(f"""
v_mov_b32 v{C1}, {f32(c1)}
s_lshl_b32 s4, s3, 6
v_mov_b32 v{YA}, s4
""")
    def mlp_steps(lo, hi):
        for d in range(lo, hi):
            if d & 1: a(f"s_and_b32 s4, s{72+(d>>1)}, 0xffff0000")
            else: a(f"s_lshl_b32 s4, s{72+(d>>1)}, 16")
            if "nomlp" not in dbg: a("s_call_b64 s[80:81], L_mlp")
            if wolate is not None and wotrig is None and d in wolate: wodma(wolate.index(d), 90, 22, 23)
    mlp_steps(0, mlp1)
    a(f"""
s_setprio 3
s_lshr_b32 s4, s2, 5
s_lshl_b32 s4, s4, 11
s_lshl_b32 s5, s15, 2
s_add_u32 s5, s5, s3
s_lshl_b32 s5, s5, 14
s_add_u32 s4, s4, s5
s_add_u32 s6, s4, {QOFF}
v_lshlrev_b32 v2, 4, v1
s_cmp_lg_u32 s26, 0
s_cbranch_scc1 L_gq_far
""")
    def qpoll(sfx, fl):
        poll("L_gq" + sfx, [f"buffer_load_dwordx4 v[{96+4*k}:{99+4*k}], v2, s[52:55], s6 offen offset:{1024*k} {fl}" for k in range(2)],
             lambda: chk16([96, 100], 104, 12), sl=qslp)
    qpoll("", "nt")
    a("L_gq_got:")
    for i in range(8): a(f"v_and_b32 v{96+i}, 0xffffff00, v{96+i}")
    for i in range(4): a(f"v_add_f32 v{96+i}, v{96+i}, v{100+i}")
    a(f"""
s_lshl_b32 s4, s3, 8
v_and_b32 v2, 31, v1
v_lshl_add_u32 v2, v2, 3, s4
v_lshl_add_u32 v2, v7, 2, v2
v_permlane32_swap_b32 v96, v98
v_permlane32_swap_b32 v97, v99
v_add_f32 v96, v96, v98
v_add_f32 v97, v97, v99
v_cvt_pk_bf16_f32 v96, v96, v97
ds_write_b32 v2, v96 offset:{QL}
s_waitcnt lgkmcnt(0)
""")
    lds_signal(FLG + 4)
    stamp(3)
    if "cutg" in dbg: a("s_branch L_pre2")
    a(f"s_setprio {bgprio}")
    mlp_steps(mlp1, 16)
    a("s_waitcnt vmcnt(0) lgkmcnt(0)")
    lds_signal(FLG + 12)
    a(f"""
v_lshrrev_b32 v2, 2, v1
v_mul_u32_u24 v20, 144, v2
v_and_b32 v3, 3, v1
v_lshl_add_u32 v20, v3, 5, v20
s_lshl_b32 s4, s3, 2
s_add_u32 s4, s4, {OP}
v_add_u32 v20, s4, v20
v_add_u32 v21, 2304, v20
v_add_u32 v22, 4608, v20
v_add_u32 v23, 6912, v20
s_lshl_b32 s4, s3, 3
v_mov_b32 v24, s4
v_lshrrev_b32 v25, 5, v1
v_lshlrev_b32 v25, 7, v25
v_bfe_u32 v2, v1, 4, 1
v_lshl_add_u32 v25, v2, 11, v25
v_bfe_u32 v2, v1, 1, 1
v_lshl_add_u32 v25, v2, 10, v25
v_bfe_u32 v2, v1, 2, 2
v_lshl_add_u32 v25, v2, 8, v25
v_and_b32 v2, 1, v1
v_lshl_add_u32 v25, v2, 3, v25
v_lshlrev_b32 v26, 4, v1
v_and_b32 v2, 1, v5
v_lshl_add_u32 v27, v2, 2, v3
v_lshlrev_b32 v27, 4, v27
v_lshlrev_b32 v28, {6 if h2full else 16}, v2
v_bfe_u32 v2, v1, 2, 2
v_lshl_add_u32 v28, v2, {12 if h2full else 11}, v28
v_lshl_add_u32 v28, v3, 4, v28
v_lshrrev_b32 v19, 2, v1
v_lshlrev_b32 v19, {7 if h2full else 6}, v19
v_lshl_add_u32 v19, v3, 4, v19
s_lshl_b32 s4, s15, 2
s_add_u32 s4, s4, s3
s_lshl_b32 s4, s4, 2
s_add_u32 s4, s4, s9
s_mul_i32 s4, s4, {H1S}
s_bfe_u32 s5, s2, 0x30003
s_lshl_b32 s5, s5, 4
s_add_u32 s4, s4, s5
s_add_u32 s6, s4, {H1OFF}
s_lshl_b32 s4, s13, 2
s_add_u32 s4, s4, s3
s_mul_i32 s4, s4, {H1S}
s_add_u32 s7, s4, {H1OFF}
s_lshl_b32 s4, s3, {5 if h2full else 6}
s_lshl_b32 s5, s14, 2
s_add_u32 s4, s4, s5
s_lshl_b32 s4, s4, {12 if h2full else 11}
s_lshl_b32 s5, s13, {7 if h2full else 6}
s_add_u32 s4, s4, s5
s_add_u32 s8, s4, {H2OFF}
""")
    if not h2full: a("s_lshl_b32 s9, s2, 11")
    else: a("""
s_lshr_b32 s9, s2, 6
s_lshl_b32 s9, s9, 5
s_and_b32 s4, s2, 31
s_add_u32 s9, s9, s4
s_lshl_b32 s9, s9, 12
s_bfe_u32 s4, s2, 0x10005
s_lshl_b32 s4, s4, 6
s_add_u32 s9, s9, s4
""")
    h2l = [f"buffer_load_dwordx4 v[{136+4*k}:{139+4*k}], v19, s[52:55], s9 offen offset:{(2048 if h2full else 1024)*k} sc1" for k in range(2)]
    a(f"""
s_add_u32 s9, s9, {H2OFF}
""")
    if near:
        a(f"s_mov_b32 s5, {CWOFF}\nv_and_b32 v2, {8 * near['nw'] - 1}, v1\nv_lshlrev_b32 v2, 3, v2")
        poll("L_cwp", ["buffer_load_dwordx2 v[94:95], v2, s[52:55], s5 offen sc1"], lambda: chk8([95], 80), sl=4)
        a(f"""
v_sub_u32 v95, 0, v94
v_cmp_gt_u32 vcc, 4, v6
v_cndmask_b32 v94, v95, v94, vcc
v_add_u32_dpp v94, v94, v94 row_ror:8 row_mask:0xf bank_mask:0xf
v_add_u32_dpp v94, v94, v94 row_ror:4 row_mask:0xf bank_mask:0xf
v_add_u32_dpp v94, v94, v94 row_ror:2 row_mask:0xf bank_mask:0xf
v_add_u32_dpp v94, v94, v94 row_ror:1 row_mask:0xf bank_mask:0xf
v_readfirstlane_b32 s4, v94
s_cmp_gt_i32 s4, 0
s_cselect_b32 s4, {0x2000 if not near.get("inv") else 0}, {0x2000 if near.get("inv") else 0}
s_xor_b32 s8, s8, s4
s_xor_b32 s9, s9, s4
""")
    if wolate is not None and wotrig is None:
        lds_wait("L_yw", FLG + 12, 4); woread(91)
    a("""
s_cmp_lg_u32 s3, 0
s_cbranch_scc1 L_ready
""")
    if wolate is None or wotrig is not None: lds_wait("L_yw", FLG + 12, 4)
    if h2pre:
        for l in h2l: a(l)
    if "o" in warm: a("buffer_load_ushort v94, v30, s[64:67], s10 offen")
    if tlbw: a(f"s_mov_b32 s4, {H2OFF + (1 << 20) - 4096}\nbuffer_load_dword v94, v9, s[52:55], s4 offen")
    a(f"""
v_lshl_add_u32 v2, v5, 2, v3
v_lshlrev_b32 v2, 2, v2
ds_read_b32 v32, v2 offset:{YP}
ds_read_b32 v33, v2 offset:{YP+64}
ds_read_b32 v34, v2 offset:{YP+128}
ds_read_b32 v35, v2 offset:{YP+192}
v_lshlrev_b32 v31, 16, v31
s_waitcnt lgkmcnt(0)
v_add_f32 v32, v32, v33
v_add_f32 v34, v34, v35
v_add_f32 v32, v32, v34
v_cvt_pk_bf16_f32 v32, v32, v32
v_lshlrev_b32 v32, 16, v32
v_add_f32 v32, v32, v31
v_cvt_pk_bf16_f32 v32, v32, v32
v_lshlrev_b32 v32, 16, v32
v_mul_f32 v34, {f32(-LOG2E)}, v32
v_exp_f32 v34, v34
v_add_f32 v34, 1.0, v34
v_rcp_f32 v34, v34
v_mul_f32 v32, v32, v34
v_cvt_pk_bf16_f32 v32, v32, v32
v_lshlrev_b32 v16, 16, v32
v_lshlrev_b32 v14, 16, v29
L_ready:
""")
    if "cuts" in dbg: a("s_branch L_pre2")
    lds_wait("L_sw", FLG + 16, 4, sl=8)
    a(f"""
ds_read_b64 v[32:33], v24 offset:{ST}
ds_read_b64 v[34:35], v24 offset:{ST+32}
ds_read_b64 v[36:37], v24 offset:{ST+64}
ds_read_b64 v[38:39], v24 offset:{ST+96}
s_waitcnt lgkmcnt(0)
v_max3_f32 v48, v32, v34, v36
v_max_f32 v48, v48, v38
v_sub_f32 v32, v32, v48
v_sub_f32 v34, v34, v48
v_sub_f32 v36, v36, v48
v_sub_f32 v38, v38, v48
v_exp_f32 v32, v32
v_exp_f32 v34, v34
v_exp_f32 v36, v36
v_exp_f32 v38, v38
v_mov_b32 v49, v10
v_mov_b32 v51, v10
v_mul_f32 v50, v32, v33
v_fmac_f32 v50, v34, v35
v_fmac_f32 v50, v36, v37
v_fmac_f32 v50, v38, v39
v_mov_b32 v53, v10
s_mov_b64 exec, 1
s_cmp_lg_u32 s26, 0
s_cbranch_scc1 L_st_far
buffer_store_dwordx4 v[48:51], v9, s[52:55], s6 offen
s_mov_b64 exec, -1
""")
    poll("L_sp", [f"buffer_load_dwordx4 v[40:43], v27, s[52:55], s7 offen {h1fl}"], lambda: chk8([41, 43], 80), sl=8)
    a(f"""
s_branch L_st_done
L_st_far:
buffer_store_dwordx4 v[48:51], v9, s[52:55], s6 offen sc1
s_mov_b64 exec, -1
""")
    poll("L_spx", ["buffer_load_dwordx4 v[40:43], v27, s[52:55], s7 offen sc1"], lambda: chk8([41, 43], 80), sl=8)
    a("L_st_done:")
    a("""
v_max_f32_dpp v44, v40, v40 quad_perm:[1,0,3,2] row_mask:0xf bank_mask:0xf
v_max_f32_dpp v45, v44, v44 quad_perm:[2,3,0,1] row_mask:0xf bank_mask:0xf
v_sub_f32 v40, v40, v45
v_exp_f32 v40, v40
v_mul_f32 v42, v40, v42
v_add_f32_dpp v44, v42, v42 quad_perm:[1,0,3,2] row_mask:0xf bank_mask:0xf
v_add_f32_dpp v45, v44, v44 quad_perm:[2,3,0,1] row_mask:0xf bank_mask:0xf
v_rcp_f32 v45, v45
v_mul_f32 v40, v40, v45
v_mov_b32_dpp v56, v40 quad_perm:[0,0,0,0] row_mask:0xf bank_mask:0xf
v_mov_b32_dpp v57, v40 quad_perm:[1,1,1,1] row_mask:0xf bank_mask:0xf
v_mov_b32_dpp v58, v40 quad_perm:[2,2,2,2] row_mask:0xf bank_mask:0xf
v_mov_b32_dpp v59, v40 quad_perm:[3,3,3,3] row_mask:0xf bank_mask:0xf
L_pre2:
s_setprio """ + str(hp) + """
s_waitcnt vmcnt(0) lgkmcnt(0)
""")
    if wotrig is not None and wotrig >= 0:
        if defer:
            srd(48, 38, 256)
            a(f"""
s_getreg_b32 s4, hwreg(HW_REG_XCC_ID, 0, 3)
s_lshl_b32 s4, s4, 5
v_lshl_add_u32 v92, v6, 2, s4
s_mov_b32 s28, {(0x80 - defer[2]) * 0x01010101}
s_mov_b32 s29, 0x80808080
""")
        lds_wait("L_wt", FLG + 28, wothr, sl=wosl, msk=bool(defer))
        if defer: a(f"s_lshr_b32 s27, s59, 8\ns_cmp_ge_u32 s27, {defer[1]}\ns_cselect_b32 s27, 1, 0\ns_andn2_b32 s27, s27, s26\ns_cbranch_scc1 L_wt_skip")
        for t in range(4): wodma(t, 90, 22, 23)
        if defer: a("L_wt_skip:")
    stamp(4)
    if not dp: a("s_barrier")
    if wotrig is not None and wotrig < 0:
        for t in range(4): wodma(t, 90, 22, 23)
    if isinstance(dbgt, str): a("s_memrealtime s[92:93]")
    if prof: a("s_waitcnt lgkmcnt(0)")
    if "notail" in dbg:
        stamp(5); stamp(6); a("s_branch L_hend")
    if tailprof: stamp(1); a("s_waitcnt lgkmcnt(0)")
    PKC = """s_waitcnt lgkmcnt(2)
v_mul_f32 v40, v32, v40
v_mul_f32 v41, v32, v41
v_fmac_f32 v40, v34, v42
v_fmac_f32 v41, v34, v43
s_waitcnt lgkmcnt(0)
v_mul_f32 v44, v36, v44
v_mul_f32 v45, v36, v45
v_fmac_f32 v40, v38, v46
v_fmac_f32 v41, v38, v47
v_add_f32 v40, v40, v44
v_add_f32 v41, v41, v45""" if not pkc else """s_waitcnt lgkmcnt(3)
v_pk_mul_f32 v[40:41], v[40:41], v[32:33] op_sel_hi:[1,0]
s_waitcnt lgkmcnt(2)
v_pk_fma_f32 v[40:41], v[42:43], v[34:35], v[40:41] op_sel_hi:[1,0,1]
s_waitcnt lgkmcnt(1)
v_pk_fma_f32 v[40:41], v[44:45], v[36:37], v[40:41] op_sel_hi:[1,0,1]
s_waitcnt lgkmcnt(0)
v_pk_fma_f32 v[40:41], v[46:47], v[38:39], v[40:41] op_sel_hi:[1,0,1]"""
    if not dp: a(f"""
ds_read2_b32 v[40:41], v20 offset0:0 offset1:4
ds_read2_b32 v[42:43], v21 offset0:0 offset1:4
ds_read2_b32 v[44:45], v22 offset0:0 offset1:4
ds_read2_b32 v[46:47], v23 offset0:0 offset1:4
{PKC}
s_cmp_lg_u32 s26, 0
v_cvt_pk_bf16_f32 v52, v40, v41
s_cbranch_scc1 L_h1_far
buffer_store_dwordx2 v[52:53], v25, s[52:55], s6 offen offset:128
L_h1_st:
""")
    stamp(5)
    if wotrig is not None:
        if defer: a("s_cmp_lg_u32 s27, 0\ns_cbranch_scc1 L_dfr")
        if h1e:
            a("s_cmp_lg_u32 s26, 0\ns_cbranch_scc1 L_h1e_far")
            for e_ in range(h1e[0]):
                if e_: a(f"s_sleep {h1e[1]}")
                for k in range(4): a(f"buffer_load_dwordx4 v[{64+4*k}:{67+4*k}], v26, s[52:55], s7 offen offset:{128+k*1024} {h1fl}")
            a(f"s_waitcnt vmcnt({1 + 4 * h1e[0]})\nL_h1e_done:")
        else: a(f"s_waitcnt vmcnt({0 if dp else 1})")
        if defer: a("L_dfr_done:")
        if dp: stamp(5)
        if "wol" in dbg: stamp(3)
        lds_signal(FLG + 20)
        lds_wait("L_wl", FLG + 20, 4)
        if "wol" in dbg: stamp(1)
        if not womid: woread(91)
        if dp and dpw: lds_wait("L_pw", FLG + 40, dpw)
    a("s_cmp_lg_u32 s26, 0\ns_cbranch_scc1 L_h1_farp")
    def h1poll(sfx, fl, pipe):
        full = [f"buffer_load_dwordx4 v[{64+4*k}:{67+4*k}], v26, s[52:55], s7 offen offset:{128+k*1024} {fl}" for k in range(4)]
        poll("L_h1" + sfx, full, lambda: chk8([65, 67, 69, 71, 73, 75, 77, 79], 80), st=4, pipe=pipe, stag=stag1, mid=(lambda: woread(91)) if (womid and wotrig is not None) else None, pre=bool(h1e) and sfx == "")
    h1poll("", h1fl, pipe1)
    a("L_h1_got:")
    if hp2 is not None: a(f"s_setprio {hp2}")
    if wotrig is not None: a("s_waitcnt lgkmcnt(0)")
    stamp(6)
    AO = 96; DD = 112
    if h2late: a(f"s_mov_b64 exec, 1\nds_add_rtn_u32 v54, v9, v11 offset:{FLG+24}\ns_mov_b64 exec, -1")
    def mv(kk, p):
        src = 64 + 8 * (kk & 1) + 2 * p
        if kk >= 2: a(f"v_mov_b32_dpp v{AO+4*kk+p}, v{src} row_ror:8 row_mask:0xf bank_mask:0xf")
        else: a(f"v_mov_b32 v{AO+4*kk+p}, v{src}")
    for p in range(4): mv(0, p)
    for kk in range(4):
        for nt_ in range(4):
            d = DD + 4 * nt_; b = WB + 16 * nt_ + 4 * kk
            if kk < 3 and nt_ < 2: mv(kk + 1, 2 * nt_); mv(kk + 1, 2 * nt_ + 1)
            a(f"v_mfma_f32_16x16x32_bf16 v[{d}:{d+3}], v[{AO+4*kk}:{AO+4*kk+3}], v[{b}:{b+3}], {'0' if kk == 0 else f'v[{d}:{d+3}]'}")
    GO = 128
    if h2late: a("s_waitcnt lgkmcnt(0)\nv_readfirstlane_b32 s59, v54")
    for t in range(4):
        a(f"v_mul_f32 v{GO+t}, v56, v{DD+4*t}")
        a(f"v_mul_f32 v{GO+4+t}, v58, v{DD+4*t+2}")
    for t in range(4):
        a(f"v_fmac_f32 v{GO+t}, v57, v{DD+4*t+1}")
        a(f"v_fmac_f32 v{GO+4+t}, v59, v{DD+4*t+3}")
    for t in range(4): a(f"v_add_f32 v{GO+t}, v{GO+t}, v{GO+4+t}")
    pack16(GO, [GO, GO + 1, GO + 2, GO + 3], 10)
    if h2late:
        a("s_cmp_eq_u32 s59, 3\ns_cbranch_scc1 L_hl_done")
        lds_wait("L_hl", FLG + 24, 4)
    a(f"s_mov_b64 exec, 0xffffffff\nbuffer_store_dwordx4 v[{GO}:{GO+3}], v28, s[52:55], s8 offen sc1")
    if tailprof or "wol" in dbg: stamp(2)
    if h2sync and not h2late: lds_signal(FLG + 24)
    a(f"""
s_mov_b64 exec, -1
s_cmp_lg_u32 s3, 0
s_cbranch_scc1 L_hend
""")
    if h2sync and not h2late: lds_wait("L_hw", FLG + 24, 4)
    if h2ack: a("s_waitcnt vmcnt(0)")
    poll("L_h2", h2l, lambda: chk16([136, 140], 56, 12), st=3, pipe=pipe2, stag=stag2, sl=slp2)
    for i in range(8): a(f"v_and_b32 v{48+i}, 0xffffff00, v{136+i}")
    for i in range(4): a(f"v_add_f32 v{48+i}, v{48+i}, v{52+i}")
    a(f"""
v_permlane32_swap_b32 v48, v50
v_permlane32_swap_b32 v49, v51
v_add_f32 v48, v48, v50
v_add_f32 v49, v49, v51
v_permlane16_swap_b32 v48, v49
v_add_f32 v48, v48, v49
v_add_f32_dpp v48, v48, v48 row_ror:4 row_mask:0xf bank_mask:0xf
v_add_f32_dpp v48, v48, v48 row_ror:8 row_mask:0xf bank_mask:0xf
s_mov_b32 exec_lo, 0x000f000f
s_mov_b32 exec_hi, 0x000f000f
v_cvt_pk_bf16_f32 v48, v48, v48
v_lshlrev_b32 v48, 16, v48
v_mul_f32 v48, v48, v16
v_cvt_pk_bf16_f32 v48, v48, v48
v_lshlrev_b32 v48, 16, v48
v_add_f32 v48, v48, v14
v_cvt_pk_bf16_f32 v48, v48, v48
buffer_store_short v48, v30, s[64:67], s10 offen {"sc1" if clean else ""}
s_mov_b64 exec, 1
s_cmp_lg_u32 s2, 0
s_cbranch_scc1 L_hend
v_mov_b32 v10, s42
buffer_store_dword v10, v9, s[52:55], 0 offen sc1
L_hend:
""")
    if "probe" in dbg: a("s_cmp_ge_u32 s3, 2\ns_cbranch_scc1 L_np7")
    stamp(7)
    if "probe" in dbg: a("L_np7:")
    if endwait or prof or dbgt: a("s_waitcnt vmcnt(0)")
    if "endst" in dbg: stamp(1)
    if isinstance(dbgt, str):
        AMP = 96 << 20
        def red(op, r, steps, t=70):
            for n in steps:
                if n < 16: a(f"{op}_dpp v{r}, v{r}, v{r} row_ror:{n} row_mask:0xf bank_mask:0xf")
                else: a(f"v_mov_b32 v{t}, v{r}\nv_permlane{n}_swap_b32 v{r}, v{t}\n{op} v{r}, v{r}, v{t}")
        a(f"""
s_cmp_lg_u32 s3, 0
s_cbranch_scc1 L_dbgt
s_memrealtime s[88:89]
s_mov_b64 exec, 1
s_waitcnt lgkmcnt(0)
v_mov_b32 v12, s84
v_mov_b32 v13, s92
v_mov_b32 v14, s88
v_mov_b32 v15, s12
s_lshl_b32 s59, s2, 4
s_add_u32 s59, s59, {AMP}
buffer_store_dwordx4 v[12:15], v9, s[52:55], s59 offen sc1
s_waitcnt vmcnt(0)
s_mov_b64 exec, -1
s_cmp_lg_u32 s2, 0
s_cbranch_scc1 L_dbgt
v_lshlrev_b32 v2, 4, v1
s_mov_b32 s6, {AMP}
""")
        poll("L_amp", [f"buffer_load_dwordx4 v[{40+4*k}:{43+4*k}], v2, s[52:55], s6 offen offset:{1024*k} sc1" for k in range(4)], lambda: chk8([43, 47, 51, 55], 80), sl=8)
        for k in range(4):
            for c in range(3): a(f"v_subrev_u32 v{40+4*k+c}, s84, v{40+4*k+c}")
        ALL = [8, 4, 2, 1, 16, 32]
        def stat(op, c, dst, steps=ALL):
            a(f"{op} v{dst}, v{40+c}, v{44+c}\n{op} v71, v{48+c}, v{52+c}\n{op} v{dst}, v{dst}, v71")
            red(op, dst, steps)
        stat("v_min_i32", 0, 60)
        if dbgt == "startmax": stat("v_max_i32", 0, 61)
        if dbgt == "bmin": stat("v_min_i32", 1, 61)
        if dbgt == "bmax": stat("v_max_i32", 1, 61)
        if dbgt == "emax": stat("v_max_i32", 2, 61)
        if dbgt == "bmean": stat("v_add_u32", 1, 61); a("v_ashrrev_i32 v61, 8, v61")
        if dbgt == "xs":
            stat("v_add_u32", 1, 61, [8, 16, 32]); a("v_ashrrev_i32 v61, 5, v61\nv_mov_b32 v60, v61")
            red("v_max_i32", 61, [4, 2, 1]); red("v_min_i32", 60, [4, 2, 1])
        a(f"""
v_sub_u32 v61, v61, v60
s_nop 1
v_readfirstlane_b32 s59, v61
s_mul_i32 s59, s59, 10
s_add_u32 s59, s59, 5000
s_min_u32 s59, s59, 100000
L_dbgs:
s_memrealtime s[90:91]
s_waitcnt lgkmcnt(0)
s_sub_u32 s58, s90, s84
s_cmp_lt_u32 s58, s59
s_cbranch_scc1 L_dbgs
L_dbgt:
""")
    elif dbgt == 2:
        a(f"""
s_or_b32 s59, s2, s3
s_cmp_lg_u32 s59, 0
s_cbranch_scc1 L_dbgt
s_memrealtime s[88:89]
s_waitcnt lgkmcnt(0)
s_sub_u32 s59, s88, s84
s_mul_i32 s59, s59, 10
s_min_u32 s59, s59, 100000
L_dbgs:
s_memrealtime s[90:91]
s_waitcnt lgkmcnt(0)
s_sub_u32 s58, s90, s88
s_cmp_lt_u32 s58, s59
s_cbranch_scc1 L_dbgs
L_dbgt:
""")
    elif dbgt:
        a(f"""
s_memrealtime s[88:89]
s_memtime s[90:91]
s_mov_b32 s44, s38
s_mov_b32 s45, s39
s_mov_b32 s46, 256
s_mov_b32 s47, 0x20000
s_mov_b64 exec, 1
s_waitcnt lgkmcnt(0)
s_not_b32 s59, s84
v_mov_b32 v12, s88
v_mov_b32 v13, s59
buffer_atomic_umax v12, v9, s[44:47], 0 offen sc1
buffer_atomic_umax v13, v9, s[44:47], 0 offen offset:4 sc1
s_cmp_lg_u32 s3, 0
s_cbranch_scc1 L_dbgt
s_and_b32 s59, s2, 0x7f
s_cmp_lg_u32 s59, 0
s_cbranch_scc1 L_dbgt
s_lshr_b32 s59, s2, 3
v_mov_b32 v12, s84
v_mov_b32 v13, s88
v_mov_b32 v14, s86
v_mov_b32 v15, s90
buffer_store_dwordx4 v[12:15], v9, s[44:47], s59 offen offset:16 sc1
L_dbgt:
s_waitcnt vmcnt(0)
""")
    if prof:
        a(f"""
s_mov_b64 exec, 1
s_sleep 127
s_waitcnt lgkmcnt(0)
s_lshl_b32 s59, s2, 3
s_add_u32 s59, s59, s3
s_add_u32 s59, s59, 4
s_lshl_b32 s59, s59, 6
s_add_u32 s59, s59, {STAMP}
""")
        for i in range(0, 8):
            a(f"v_mov_b32 v12, s{84+2*i}\nv_mov_b32 v13, s{85+2*i}\nbuffer_store_dwordx2 v[12:13], v9, s[52:55], s59 offen offset:{8*i}\ns_waitcnt vmcnt(0)")
    a("L_end:\ns_endpgm")
    if not dp: a("""L_h1_far:
buffer_store_dwordx2 v[52:53], v25, s[52:55], s6 offen offset:128 sc1
s_branch L_h1_st
""")
    if h1e: a("L_h1e_far:\ns_waitcnt vmcnt(1)\ns_branch L_h1e_done")
    a("L_h1_farp:")
    h1poll("x", "sc1", 1)
    a("s_branch L_h1_got")
    if defer:
        a(f"""
L_dfr:
s_movk_i32 s58, 2000
L_dfr_l:
buffer_load_dword v93, v92, s[48:51], 0 offen nt
s_waitcnt vmcnt(0)
v_add_u32 v93, s28, v93
v_and_b32 v93, s29, v93
v_cmp_ne_u32 vcc, s29, v93
s_cbranch_vccz L_dfr_go
s_sub_u32 s58, s58, 1
s_cbranch_scc0 L_dfr_l
L_dfr_go:
""")
        for t in range(4): wodma(t, 90, 22, 23)
        a("s_waitcnt vmcnt(0)\ns_branch L_dfr_done")
    if near:
        assert near["nw"] in (1, 2)
        a(f"""L_meas:
s_cmp_lt_u32 s3, 2
s_cbranch_scc1 L_meas_done
s_and_b32 s4, s3, 1
s_lshl_b32 s4, s4, 13
s_lshl_b32 s5, s2, 7
s_add_u32 s4, s4, s5
s_memtime s[76:77]
s_waitcnt lgkmcnt(0)
s_load_dword s5, s[40:41], s4 offset:{MEAS}
s_waitcnt lgkmcnt(0)
s_memtime s[78:79]
s_lshl_b32 s4, s3, 2
v_mov_b32 v5, s4
s_waitcnt lgkmcnt(0)
s_sub_u32 s78, s78, s76
v_mov_b32 v6, s78
ds_write_b32 v5, v6 offset:{OP - 8}
s_waitcnt lgkmcnt(0)
s_branch L_meas_done
L_mpub:
ds_read_b64 v[94:95], v9 offset:{OP}
s_lshl_b32 s4, s2, 3
s_add_u32 s4, s4, {CWOFF}
s_movk_i32 s5, {near.get("cap", 600)}
s_mov_b64 exec, 1
s_waitcnt lgkmcnt(0)
v_sub_u32 v94, v94, v95
v_min_i32 v94, s5, v94
v_sub_u32 v95, 0, v94
v_min_i32 v95, s5, v95
v_sub_u32 v94, 0, v95
v_mov_b32 v95, s12
buffer_store_dwordx2 v[94:95], v9, s[52:55], s4 offen sc1
s_mov_b64 exec, -1
s_branch L_mpub_done
""")
    a("L_qs_far:\n" + (f"ds_write_b32 v9, v11 offset:{FLG+32}\n" if dp else "") + "buffer_store_dwordx4 v[132:135], v25, s[52:55], s72 offen sc1\ns_branch L_qs_done\nL_gq_far:")
    qpoll("x", "sc1")
    a("s_branch L_gq_got")
    if fc:
        a("L_cb:\ns_waitcnt lgkmcnt(0)\ns_mov_b32 s71, 0")
        for i in range(8): a(f"s_cmp_lg_u32 s{4+i}, s73\ns_addc_u32 s71, s71, 0")
        if not fc.get("wg"):
            a(f"""
s_cmp_lt_u32 s71, {fc['th1']}
s_cselect_b32 s62, 2, 0
s_cmp_ge_u32 s71, {fc['th2']}
s_cselect_b32 s62, 1, s62
""")
            if prof: a("s_lshl_b64 s[82:83], s[82:83], 2\ns_or_b32 s82, s82, s62")
            a("s_setpc_b64 s[80:81]")
        else:
            bias = 16 * fc["CW"]
            TSX = ""; DEC = ""
            if fc.get("dec"):
                DEC = f"s_cmp_eq_u32 s62, 1\ns_cselect_b32 s71, {-fc['dec'][0]}, 0\ns_cmp_eq_u32 s62, 2\ns_cselect_b32 s71, {fc['dec'][1]}, s71\ns_add_u32 s74, s74, s71"
            if fc.get("ts"):
                TSX = "L_cx:\ns_waitcnt lgkmcnt(0)\ns_mov_b32 s71, 0\n"
                for i in range(8): TSX += f"s_sub_u32 s{16+2*i}, s36, s{16+2*i}\ns_cmp_eq_u32 s{17+2*i}, s73\ns_cselect_b32 s{16+2*i}, s{16+2*i}, 0\ns_add_u32 s71, s71, s{16+2*i}\n"
                TSX += f"""s_sub_u32 s32, s36, s32
s_cmp_eq_u32 s33, s73
s_cselect_b32 s32, s32, 0
s_lshl_b32 s32, s32, 3
s_sub_u32 s32, s32, s71
s_mul_i32 s32, s32, {fc['tg']}
s_ashr_i32 s74, s32, 5
s_branch L_cc
"""
            if fc.get("tt"):
                tt = fc["tt"]
                RED = "\n".join(f"v_add_u32_dpp v85, v85, v85 row_ror:{n} row_mask:0xf bank_mask:0xf" for n in (4, 2, 1))
                CW_ = f"""{RED}
v_readfirstlane_b32 s69, v85
s_mul_i32 s69, s69, {round(tt['U'])}
s_lshr_b32 s69, s69, 5
s_sub_u32 s62, s62, s69
"""
                if tt.get("gl"):
                    SUMX = "s_waitcnt lgkmcnt(0)\ns_mov_b32 s71, 0\n"
                    for i in range(8): SUMX += f"s_sub_u32 s{16+2*i}, s36, s{16+2*i}\ns_cmp_eq_u32 s{17+2*i}, s73\ns_cselect_b32 s{16+2*i}, s{16+2*i}, {tt.get('inv', 0)}\ns_add_u32 s71, s71, s{16+2*i}\n"
                    SUMX += "s_ashr_i32 s71, s71, 3\ns_sub_u32 s71, s36, s71\n"
                    TSX = "L_cx:\n" + SUMX
                    if tt["gl"] == 2:
                        TSX = "L_cx:\ns_waitcnt lgkmcnt(0)\ns_add_u32 s62, s62, s70\ns_mov_b32 s71, 0\n"
                        if prof and tt.get("tv"): TSX += "s_lshl_b64 s[82:83], s[82:83], 4\n"
                        for i in range(8):
                            TSX += f"s_sub_u32 s{16+2*i}, s{16+2*i}, s62\ns_cmp_eq_u32 s{17+2*i}, s73\ns_cselect_b32 s{16+2*i}, s{16+2*i}, 0\n"
                            if prof and tt.get("tv"): TSX += "s_addc_u32 s82, s82, 0\n"
                            TSX += f"s_add_u32 s71, s71, s{16+2*i}\n"
                        TSX += f"s_ashr_i32 s71, s71, {3 + tt.get('gsm2', 0)}\ns_add_u32 s70, s70, s71\ns_setpc_b64 s[80:81]\n"
                        SUMX = None
                    if tt.get("gsm"): TSX += f"s_sub_u32 s71, s71, s62\ns_sub_u32 s71, s71, s70\ns_ashr_i32 s71, s71, {tt['gsm']}\ns_add_u32 s70, s70, s71\ns_setpc_b64 s[80:81]\nL_cx0:\n" + SUMX
                    if SUMX: TSX += "s_sub_u32 s70, s71, s62\ns_setpc_b64 s[80:81]\n"
                a(f"""
s_setpc_b64 s[80:81]
{TSX}
L_cw0:
{CW_}
s_sub_u32 s75, s62, {round(tt['U'] * fc['CW'] / 2)}
s_branch L_cc
L_cw:
{CW_}
s_sub_u32 s62, s62, {round(tt['U'] * fc['CW'] / 2)}
""" + (f"s_sub_u32 s62, s62, s75\ns_ashr_i32 s62, s62, {tt['sm']}\ns_add_u32 s75, s75, s62" if tt.get("sm") else "s_mov_b32 s75, s62") + """
L_cc:
""" + ("" if tt.get("gl") else "s_add_u32 s70, s75, s74") + """
s_setpc_b64 s[80:81]
""")
            else: a(f"""
s_mul_i32 s74, s71, {fc.get('kx', 0)}
{"s_lshl_b64 s[82:83], s[82:83], 4" if prof and fc.get("tm") else ""}
{"s_or_b32 s82, s82, s71" if prof and fc.get("tm") else ""}
s_branch L_cc
{TSX}
L_cw:
v_add_u32_dpp v85, v85, v85 row_ror:4 row_mask:0xf bank_mask:0xf
v_add_u32_dpp v85, v85, v85 row_ror:2 row_mask:0xf bank_mask:0xf
v_add_u32_dpp v85, v85, v85 row_ror:1 row_mask:0xf bank_mask:0xf
v_readfirstlane_b32 s69, v85
s_sub_u32 s75, s68, s69
s_sub_u32 s75, s75, {bias}
{DEC}
L_cc:
s_add_u32 s68, s75, s74
s_cmp_lt_i32 s68, {-fc['b']}
s_cselect_b32 s62, 2, 0
s_cmp_gt_i32 s68, {fc['a']}
s_cselect_b32 s62, 1, s62
""")
            if prof and not fc.get("tm") and not fc.get("tt"): a("s_lshl_b64 s[82:83], s[82:83], 2\ns_or_b32 s82, s82, s62")
            if not fc.get("tt"): a("s_setpc_b64 s[80:81]")
    a("L_mlp:")
    for t in range(7): a(f"v_fma_f32 v{U+t}, s4, v{W1+t}, v{B1+t}")
    for t in range(7): a(f"v_mul_f32 v{AA+t}, v{U+t}, v{U+t}")
    for t in range(7): a(f"v_fmaak_f32 v{AA+t}, v{AA+t}, v{C1}, {f32(c0)}")
    for t in range(7): a(f"v_mul_f32 v{AA+t}, v{AA+t}, v{U+t}")
    for t in range(7): a(f"v_exp_f32 v{EE+t}, v{AA+t}")
    for t in range(7): a(f"v_mul_f32 v{U+t}, v{U+t}, v{W2+t}")
    for t in range(7): a(f"v_add_f32 v{EE+t}, 1.0, v{EE+t}")
    for t in range(7): a(f"v_rcp_f32 v{EE+t}, v{EE+t}")
    a(f"v_mul_f32 v{ACC2}, v{U}, v{EE}")
    a(f"v_mul_f32 v{AA}, v{U+1}, v{EE+1}")
    for t in range(2, 7): a(f"v_fmac_f32 v{ACC2 if t % 2 == 0 else AA}, v{U+t}, v{EE+t}")
    a(f"v_add_f32 v{ACC2}, v{ACC2}, v{AA}")
    for n in (8, 4, 2, 1): a(f"v_add_f32_dpp v{ACC2}, v{ACC2}, v{ACC2} row_ror:{n} row_mask:0xf bank_mask:0xf")
    swaps_add(ACC2, AA)
    a(f"""
s_mov_b64 exec, 1
ds_write_b32 v{YA}, v{ACC2} offset:{YP}
s_mov_b64 exec, -1
v_add_u32 v{YA}, 4, v{YA}
s_setpc_b64 s[80:81]
""")
    body = a.render()
    if "allsc1st" in dbg:
        import re
        body = re.sub(r"(buffer_store_dwordx[24] v\[\d+:\d+\], v\d+, s\[52:55\], s(6|72) offen( offset:128)?)\n", r"\1 sc1\n", body)
    if "allsc1ld" in dbg:
        import re
        body = re.sub(r"(buffer_load_dwordx4 v\[\d+:\d+\], v\d+, s\[52:55\], s[67] offen( offset:\d+)?) nt\n", r"\1 sc1\n", body)
    txt = HDR + f"""; @launch grid=(256,1,1) block=(512,1,1) lds={LDSZ}
.amdgcn_target "amdgcn-amd-amdhsa--gfx950"
.text
.globl {KN}_kernel
.p2align 8
.type {KN}_kernel,@function
{KN}_kernel:
""" + body + f""".section .rodata,"a"
.p2align 6
.amdhsa_kernel {KN}_kernel
  .amdhsa_next_free_vgpr 256
  .amdhsa_next_free_sgpr 102
  .amdhsa_accum_offset 256
  .amdhsa_group_segment_fixed_size 0
  .amdhsa_kernarg_size 104
  .amdhsa_user_sgpr_count 2
  .amdhsa_user_sgpr_kernarg_segment_ptr 1
  .amdhsa_system_sgpr_workgroup_id_x 1
.end_amdhsa_kernel
"""
    open(fname, "w").write(txt)
if __name__ == "__main__":
    import glob, os
    for f in glob.glob("kp_*.s"): os.remove(f)
    gen("k1.s", mlp1=4, slp=0)
    kw = dict(prof=True, tailprof=True, mlp1=4, slp=0, rq=1, wolate=[5, 7, 9, 11])
    gen("kp_00.s", **kw)
    F = dict(wg=1, x=1, G=2, kx=24, a=64, b=-16, W=(4,6,12), d=6, C=3, CW=2)
    gen("kp_01.s", fc=F, **kw)
    gen("kp_02_nowork.s", fc=F, dbg="nok nosm nov", **kw)
    gen("kp_03_nosm.s", fc=F, dbg="nosm", **kw)
    gen("kp_04_nowq.s", fc=F, dbg="nowq", **kw)
    gen("kp_05_nowork_nowq.s", fc=F, dbg="nok nosm nov nowq", **kw)
    gen("kp_06_nowork_nowq_nomlp.s", fc=F, dbg="nok nosm nov nowq nomlp", **kw)
    gen("kp_07_nofc_nowork.s", dbg="nok nosm nov", **kw)
    gen("kp_08_nofc_nowork_nowq.s", dbg="nok nosm nov nowq", **kw)
```

```python
import gen
kw = dict(mlp1=2, slp=0, rq=1, wolate=[5, 7, 9, 11], palign=7, near=dict(nw=2), wotrig=203, wosw=1)
F = dict(wg=1, x=0, G=2, kx=24, a=64, b=40, W=(4,6,12), d=5, C=3, CW=2, stop=0, tg=4, dl=3)
T6 = [4, 13, 22, 31, 40, 49]
P2 = [(12,-40),(8,-15),(6,15),(5,40),(4,0)]
def g(n, U=28.5, lv=P2, **kw2): gen.gen(n, fc={**F, "tt": dict(gl=2, notab=1, U=U, lv=lv), "ts": T6}, **{**kw, **kw2})
g("k10a.s"); g("k10b.s", wotrig=204); g("k10c.s", U=29)
```

```python
import sys, struct, math
from asmlib import Asm
KN = "recurrent_scan__gqa_block_cached__mixer_token_mlp__decode"
def f32(x): return "0x%08x" % struct.unpack("<I", struct.pack("<f", x))[0]
LOG2E = 1.4426950408889634
FLG = 0; QL = 64; ST = QL + 1024; YP = ST + 128; OP = YP + 256; XN = OP + 4 * 2304; XRS = 1040; WQL = XN + 8 * XRS; KL = WQL + 32768
QOFF = 64 << 10; H1OFF = QOFF + (1 << 20); H1S = 4224; H2OFF = H1OFF + (640 << 10); BD = 4 << 20; PGOFF = 8 << 10; LOCOFF = 32 << 10; STAMP = 128 << 20
HDR = open("cdna_kernels/" + KN + ".s.ref").read().split("; Override launch")[0]

def gen(fname, WIN=6, G=2, RING=40, prof=False, wo_thr=4, ntw="", woflags="", spin=400000, dbg="", WPS=1, dry=False, tailprof=False, NLT=6, slp=2, wqdma=True, sprio=2, bgprio=0, mlp1=8, local=True, fb=31, deferB=True, pretouch=False, pat=None, pat2=None, rot=None, cmap=0, light=False, lslp=0, h1fl='nt', h2sync=True, fc=None, est=None, rq=0, ro=0, sE=True, wolate=None, n0=64, pipe1=1, pipe2=1, stag1=3, stag2=3, h2late=True, h2ack=True, h2pre=False, h2full=False, slp2=0, dbgt=False, dirty=0, clean=False, qslp=None, nloc=200, tmap=(14, 16, None), wotrig=None, wothr=2, wosl=2, womid=True, palign=0, defer=None, h2off=None, tlbw=False, near=None, endwait=False, lastopt=True, pkc=True, warm='', hdel=0, wqdel=0, dp=False, dpt='c3', dpf=4, dpw=0, dpc=6, dpfl="nt", dpp=0, hp=3, hp2=None, h1e=None, wosw=False, t2=False, prew=True, b3=False, wodl=None):
    if t2: assert not dp and lastopt and wosw and not h2full and pkc and not defer
    if dp: assert fc and tmap[2] is None and wotrig is not None and wotrig >= 200
    H2OFF = (576 << 10) if h2off is None else h2off
    MEAS = 48 << 10; CWOFF = 16 << 10
    a = Asm()
    LDSZ = KL + 4 * NLT * 4096
    NLL = 4 * NLT
    NST = 8
    def stamp(i):
        if prof: a(f"s_memrealtime s[{84+2*i}:{85+2*i}]")
    stamp(0)
    if dbgt: a("s_memrealtime s[84:85]\ns_memtime s[86:87]")
    a(f"""
s_load_dwordx2 s[44:45], s[0:1], 8
s_load_dwordx2 s[48:49], s[0:1], 16
v_lshrrev_b32 v2, 6, v0
s_cmp_ge_u32 s2, 256
v_and_b32 v1, 63, v0
v_readfirstlane_b32 s3, v2
s_cbranch_scc1 L_end
s_cmp_ge_u32 s3, 4
s_cbranch_scc1 L_helper
""")
    a(f"""
s_setprio {sprio}
s_mov_b32 s46, 0x4000000
s_mov_b32 s47, 0x20000
s_and_b32 s52, s2, 7
s_lshl_b32 s52, s52, 20
s_lshr_b32 s53, s2, 5
s_lshl_b32 s53, s53, 23
s_or_b32 s52, s52, s53
s_bfe_u32 s53, s2, 0x20003
s_lshl_b32 s53, s53, {tmap[0]}
s_or_b32 s52, s52, s53
s_lshl_b32 s53, s3, 12
s_or_b32 s52, s52, s53
s_mul_i32 s60, s3, {NLT*4096}
s_add_u32 s60, s60, {KL}
v_lshrrev_b32 v5, 4, v1
v_bfe_u32 v6, v1, 2, 2
v_and_b32 v7, 3, v1
v_lshlrev_b32 v2, 8, v6
v_lshl_add_u32 v2, v5, 6, v2
v_lshl_add_u32 v2, v7, 4, v2
""")
    if tmap[2]: a(f"s_and_b32 s53, s2, 7\ns_lshl_b32 s53, s53, {tmap[2]}\ns_xor_b32 s52, s52, s53")
    def late_setup():
        a(f"""
s_load_dwordx2 s[38:39], s[0:1], 88
s_load_dwordx2 s[40:41], s[0:1], 96
s_mov_b32 s50, 0x4000000
s_mov_b32 s51, 0x20000
v_lshlrev_b32 v3, 4, v1
""")
        if fc: a(f"""
s_lshr_b32 s64, s2, 3
s_cmp_eq_u32 s3, 0
s_cselect_b32 s64, s64, 64
s_and_b32 s65, s2, 7
s_lshl_b32 s63, s65, 3
s_lshl_b32 s65, s65, {3 if fc.get("ts") else 2}
v_mov_b32 v83, s65
s_mov_b32 s62, {fc.get('l0', 0)}
s_mov_b64 s[82:83], 0
s_getreg_b32 s66, hwreg(HW_REG_XCC_ID, 0, 3)
s_lshl_b32 s66, s66, 5
s_lshr_b32 s67, s2, 3
s_add_u32 s67, s67, s66
v_mov_b32 v88, s67
v_and_b32 v87, 7, v1
v_lshl_add_u32 v87, v87, 2, s66
s_mov_b32 s74, 0
s_mov_b32 s75, 0
s_cmp_eq_u32 s3, 0
s_cselect_b64 vcc, 1, 0
s_waitcnt lgkmcnt(0)
s_load_dword s73, s[40:41], 0
s_mov_b32 s76, s40
s_mov_b32 s77, s41
s_mov_b32 s78, 0x10000000
s_mov_b32 s79, 0x20000
s_mov_b32 s12, s38
s_mov_b32 s13, s39
s_mov_b32 s14, 256
s_mov_b32 s15, 0x20000
""")
    RB = 256 - RING * 4
    def rreg(n): return RB + ((n - NLL) % RING) * 4
    NL = 128
    st = {"tile": None}
    def issue(n):
        isv = n >= 64; t = (n & 63) >> 2; q = n & 3
        if st["tile"] != (isv, t):
            st["tile"] = (isv, t)
            if tmap: a(f"s_xor_b32 s53, s52, {t << tmap[1]}")
            elif rot is None: a(f"s_add_u32 s53, s52, {t*16384}")
            else: a(f"s_add_u32 s53, s61, {t*16384}\ns_and_b32 s53, s53, 0x3ffff\ns_add_u32 s53, s53, s52")
            if n < NLL: a(f"s_add_u32 m0, s60, {t*4096}\ns_nop 0")
            if n == 0:
                if palign: a(f".p2align {palign}")
                a("s_waitcnt lgkmcnt(0)")
                if st.get("ks"): stamp(7)
        if n < NLL:
            a(f"buffer_load_dwordx4 v2, s[44:47], s53 offen offset:{q*1024} nt lds"); return
        r = rreg(n)
        a(f"buffer_load_dwordx4 v[{r}:{r+3}], {'v3' if isv else 'v2'}, {'s[48:51]' if isv else 's[44:47]'}, s53 offen offset:{q*1024} nt")
    TSR = 6
    QB = 8; Y = 12; ACC = 28; DT = 28; TT = 44; PT = 60; PA = 76; M = 80
    def setup_consts():
        a(f"""
s_mov_b32 s54, 0x05040100
s_mov_b32 s55, 0x07060302
s_mov_b32 s56, {f32(128**-0.5)}
s_mov_b32 s57, {f32(LOG2E)}
v_lshlrev_b32 v4, 8, v7
v_lshl_add_u32 v4, v5, 6, v4
v_lshl_add_u32 v4, v6, 4, v4
v_mov_b32 v84, 0
v_add_u32 v86, s60, v3
""")
    def wait_q():
        stamp(1)
        if "noq" in dbg:
            a(f"ds_read_b128 v[{QB}:{QB+3}], v4 offset:{QL}\ns_waitcnt lgkmcnt(0)"); stamp(2); return
        a(f"""
s_mov_b32 s58, {spin*8}
L_sq:
ds_read_b32 v85, v84 offset:{FLG+4}
s_waitcnt lgkmcnt(0)
v_readfirstlane_b32 s59, v85
s_sub_u32 s58, s58, 1
s_cbranch_scc1 L_sq_done
s_cmp_ge_u32 s59, 4
s_cbranch_scc1 L_sq_done
s_sleep 1
s_branch L_sq
L_sq_done:
ds_read_b128 v[{QB}:{QB+3}], v4 offset:{QL}
{f"ds_read_b32 v85, v84 offset:{FLG+32}" if dp else ""}
s_waitcnt lgkmcnt(0)
{"v_readfirstlane_b32 s42, v85" if dp else ""}
""")
        stamp(2)
        if prof: a("s_waitcnt lgkmcnt(0)")
    def ktile(t):
        if t < NLT:
            for q in range(4): a(f"ds_read_b128 v[{PT+4*q}:{PT+4*q+3}], v86 offset:{t*4096+q*1024}")
        for q in range(4):
            r = rreg(4 * t + q) if t >= NLT else PT + 4 * q
            if t < NLT: a(f"s_waitcnt lgkmcnt({3-q})")
            a(f"v_mfma_f32_16x16x32_bf16 v[{DT+4*q}:{DT+4*q+3}], v[{r}:{r+3}], v[{QB}:{QB+3}], 0")
        for c in range(4):
            for r in range(4):
                n = 4 * ((c - r) % 4)
                ctl = f"row_ror:{n}" if n else "quad_perm:[0,1,2,3]"
                a(f"v_mov_b32_dpp v{TT+r}, v{DT+4*c+r} {ctl} row_mask:0xf bank_mask:{hex(1<<c)}")
        y = Y + t
        a(f"""
v_add_f32 v{TT}, v{TT}, v{TT+1}
v_add_f32 v{TT+2}, v{TT+2}, v{TT+3}
v_add_f32 v{y}, v{TT}, v{TT+2}
v_cvt_pk_bf16_f32 v{y}, v{y}, v{y}
v_lshlrev_b32 v{y}, 16, v{y}
v_mul_f32 v{y}, s56, v{y}
v_cvt_pk_bf16_f32 v{y}, v{y}, v{y}
v_lshlrev_b32 v{y}, 16, v{y}
""")
    def xlane(op, r, t):
        a(f"""
{op}_dpp v{r}, v{r}, v{r} row_ror:4 row_mask:0xf bank_mask:0xf
""") if op != "v_add_f32" else a(f"""
v_add_f32_dpp v{r}, v{r}, v{r} row_ror:4 row_mask:0xf bank_mask:0xf
""")
        a(f"""
{op}_dpp v{r}, v{r}, v{r} row_ror:8 row_mask:0xf bank_mask:0xf
v_mov_b32 v{t}, v{r}
v_permlane16_swap_b32 v{r}, v{t}
{op} v{r}, v{r}, v{t}
v_mov_b32 v{t}, v{r}
v_permlane32_swap_b32 v{r}, v{t}
{op} v{r}, v{r}, v{t}
""")
    def softmax():
        m = M; l = M + 1; t = M + 2
        a(f"v_max3_f32 v{m}, v{Y}, v{Y+1}, v{Y+2}")
        for i in range(3, 15, 2): a(f"v_max3_f32 v{m}, v{m}, v{Y+i}, v{Y+i+1}")
        a(f"v_max_f32 v{m}, v{m}, v{Y+15}")
        xlane("v_max_f32", m, t)
        a(f"v_mul_f32 v{m}, s57, v{m}")
        for i in range(16): a(f"v_fma_f32 v{Y+i}, v{Y+i}, s57, -v{m}")
        for i in range(16): a(f"v_exp_f32 v{Y+i}, v{Y+i}")
        a(f"v_add_f32 v{l}, v{Y}, v{Y+1}")
        a(f"v_add_f32 v{t}, v{Y+2}, v{Y+3}")
        for i in range(4, 16, 2):
            a(f"v_add_f32 v{l}, v{l}, v{Y+i}")
            a(f"v_add_f32 v{t}, v{t}, v{Y+i+1}")
        a(f"v_add_f32 v{l}, v{l}, v{t}")
        for v in range(8): a(f"v_cvt_pk_bf16_f32 v{Y+v}, v{Y+2*v}, v{Y+2*v+1}")
        if t2:
            for i in range(16): a(f"v_mov_b32 v{PA4+i}, 0")
        xlane("v_add_f32", l, t)
        a(f"""
s_lshl_b32 s59, s3, 5
v_lshl_add_u32 v{t}, v1, 3, s59
s_mov_b64 exec, 15
ds_write_b64 v{t}, v[{m}:{m+1}] offset:{ST}
s_mov_b64 exec, 1
v_mov_b32 v{t}, 1
ds_add_u32 v84, v{t} offset:{FLG+16}
s_mov_b64 exec, -1
""")
    PA4 = 36
    def mkpa(v):
        if t2:
            for c in range(4):
                for p in range(4):
                    n = 4 * ((c - p) % 4)
                    a(f"v_mov_b32_dpp v{PA4+4*c+p}, v{Y+v} {f'row_ror:{n}' if n else 'quad_perm:[0,1,2,3]'} row_mask:0xf bank_mask:{hex(1<<c)}")
            return
        a(f"v_mov_b32 v{PA}, v{Y+v}")
        for p in (1, 2, 3):
            a(f"v_mov_b32_dpp v{PA+p}, v{Y+v} row_ror:{4*((0-p)%4)} row_mask:0xf bank_mask:0xf")
    def vchunk(v):
        mkpa(v)
        for half in range(2):
            for jj in range(4 * half, 4 * half + 4):
                o = PT + 4 * (jj & 3)
                for p in range(4):
                    lo = rreg(64 + 8 * v + p) + (jj >> 1); hi = rreg(64 + 8 * v + 4 + p) + (jj >> 1)
                    a(f"v_perm_b32 v{o+p}, v{hi}, v{lo}, {'s55' if jj & 1 else 's54'}")
            for jj in range(4 * half, 4 * half + 4):
                o = PT + 4 * (jj & 3); d = ACC + 4 * jj
                pa = PA
                if t2: d = ACC + 4 * half; pa = PA4 + 4 * (jj & 3)
                c = "0" if (v == 0 and (not t2 or jj & 3 == 0)) else f"v[{d}:{d+3}]"
                a(f"v_mfma_f32_16x16x32_bf16 v[{d}:{d+3}], v[{pa}:{pa+3}], v[{o}:{o+3}], {c}")
    def s_wait(lbl, off, cnt):
        a(f"""
s_mov_b32 s58, {spin*8}
{lbl}:
ds_read_b32 v85, v84 offset:{off}
s_waitcnt lgkmcnt(0)
v_readfirstlane_b32 s59, v85
s_sub_u32 s58, s58, 1
s_cbranch_scc1 {lbl}_done
s_cmp_lt_u32 s59, {cnt}
s_cbranch_scc1 {lbl}
{lbl}_done:
""")
    def s_sig(off): a(f"s_mov_b64 exec, 1\nv_mov_b32 v82, 1\nds_add_u32 v84, v82 offset:{off}\ns_mov_b64 exec, -1")
    AQ = [20, 24, 12, PA]
    def fitem(v0):
        T_ = PT
        s_wait("L_d1", FLG + 16, 4)
        a(f"""
v_and_b32 v4, 3, v1
v_lshlrev_b32 v4, 3, v4
ds_read_b32 v{T_}, v4 offset:{ST}
ds_read_b32 v{T_+1}, v4 offset:{ST+32}
ds_read_b32 v{T_+2}, v4 offset:{ST+64}
ds_read_b32 v{T_+3}, v4 offset:{ST+96}
v_lshlrev_b32 v4, 1, v4
v_lshrrev_b32 v10, 4, v1
v_lshl_add_u32 v4, v10, 6, v4
v_bfe_u32 v11, v1, 2, 2
v_lshl_add_u32 v4, v11, 2, v4
s_lshl_b32 s59, s3, 8
v_add_u32 v4, s59, v4
s_waitcnt lgkmcnt(0)
v_max3_f32 v{T_}, v{T_}, v{T_+1}, v{T_+2}
v_max_f32 v{T_}, v{T_}, v{T_+3}
v_sub_f32 v{T_}, v{M}, v{T_}
v_exp_f32 v{T_}, v{T_}
""")
        for v in range(v0, 8): a(f"v_lshlrev_b32 v{T_+8+2*(v-v0)}, 16, v{Y+v}\nv_and_b32 v{T_+9+2*(v-v0)}, 0xffff0000, v{Y+v}")
        for i in range(4): a(f"v_mov_b32_dpp v{T_+4+i}, v{T_} quad_perm:[{i},{i},{i},{i}] row_mask:0xf bank_mask:0xf")
        for v in range(v0, 8): a(f"v_pk_mul_f32 v[{T_+8+2*(v-v0)}:{T_+9+2*(v-v0)}], v[{T_+8+2*(v-v0)}:{T_+9+2*(v-v0)}], v[{T_}:{T_+1}] op_sel_hi:[1,0]")
        for v in range(v0, 8): a(f"v_cvt_pk_bf16_f32 v{Y+v}, v{T_+8+2*(v-v0)}, v{T_+9+2*(v-v0)}")
        a(f"ds_write_b32 v4, v{Y+7} offset:{QL}")
        s_sig(FLG + 44)
        for jj in range(8):
            d_ = ACC + 4 * jj
            a(f"v_pk_mul_f32 v[{d_}:{d_+1}], v[{d_}:{d_+1}], v[{T_+4}:{T_+5}]\nv_pk_mul_f32 v[{d_+2}:{d_+3}], v[{d_+2}:{d_+3}], v[{T_+6}:{T_+7}]")
        a(f"""
v_lshlrev_b32 v9, 6, v10
v_lshl_add_u32 v9, v11, 4, v9
s_lshl_b32 s59, s3, 2
v_add_u32 v4, s59, v11
v_mul_u32_u24 v4, 144, v4
v_lshl_add_u32 v4, v10, 2, v4
v_and_b32 v8, 3, v1
v_lshl_add_u32 v4, v8, 5, v4
v_mul_u32_u24 v10, {4*H1S}, v10
v_lshl_add_u32 v10, v11, 8, v10
v_bfe_u32 v8, v1, 1, 1
v_lshl_add_u32 v10, v8, 10, v10
v_and_b32 v8, 1, v1
v_lshl_add_u32 v10, v8, 3, v10
v_mov_b32 v11, v9
s_and_b32 s43, s2, 7
s_lshl_b32 s43, s43, 4
s_lshr_b32 s59, s2, 6
s_add_u32 s43, s43, s59
s_mul_i32 s43, s43, {H1S}
s_bfe_u32 s59, s2, 0x30003
s_lshl_b32 s59, s59, 4
s_add_u32 s43, s43, s59
s_lshr_b32 s59, s3, 1
s_lshl_b32 s59, s59, 7
s_add_u32 s43, s43, s59
s_and_b32 s59, s3, 1
s_lshl_b32 s59, s59, 11
s_add_u32 s43, s43, s59
s_add_u32 s43, s43, {H1OFF + 128}
s_mul_i32 s72, s73, 0x01010101
v_mov_b32 v9, s72
s_mul_i32 s59, s3, 2304
v_mul_u32_u24 v8, 144, v1
v_add_u32 v8, s59, v8
""")
    work = [("K", t, 4 * t + 3) for t in list(range(NLT, 16)) + list(range(NLT))] + [("S", 0, 63)] + [("V", v, 64 + 8 * v + 7) for v in range(8)]
    if dp: work.insert(17 + dpf, ("F", dpf, 0))
    consumed = NLL - 1
    wi = 0
    def do_work():
        nonlocal wi, consumed
        k, i, last = work[wi]
        if k == "K":
            if wi == 0: wait_q()
            if "nok" not in dbg: ktile(i)
            consumed = max(consumed, last)
        elif k == "S":
            if "nosm" in dbg: a(f"s_mov_b64 exec, 1\nv_mov_b32 v82, 1\nds_add_u32 v84, v82 offset:{FLG+16}\ns_mov_b64 exec, -1")
            else: softmax()
            stamp(3)
        elif k == "F": fitem(i)
        else:
            if "nov" not in dbg: vchunk(i)
            consumed = last
        wi += 1
    issued = 0
    ops = []
    def iss(n):
        if dp == 1 and n >= 120:
            i = n - 120; u = i >> 1
            if n == 120: a(f"s_andn2_b32 s70, s52, 0x3000\nv_lshrrev_b32 v2, 4, v1\nv_lshlrev_b32 v2, 8, v2\nv_and_b32 v85, 15, v1\nv_lshl_add_u32 v2, v85, 2, v2\ns_lshl_b32 s59, s3, 6\nv_add_u32 v2, s59, v2")
            if i & 1 == 0: a(f"s_xor_b32 s53, s70, {(14 << tmap[1]) | (u << 12)}\ns_xor_b32 s61, s70, {(15 << tmap[1]) | (u << 12)}")
            for p in (2 * (i & 1), 2 * (i & 1) + 1):
                for hi in range(2):
                    a(f"buffer_load_dword v{rreg(120) + 8*u + 2*p + hi}, v2, s[48:51], s{61 if hi else 53} offen offset:{p*1024} {dpfl}")
                    ops.append(("L", n) if (p & 1 and hi) else ("s", n))
            return
        issue(n); ops.append(("L", n))
    def vm_for(X):
        li = [i for i, o in enumerate(ops) if o[0] == "L"]
        if len(li) <= X: return None
        p = li[len(li) - X - 1]
        return len(ops) - 1 - p, p
    if pat is None: pat = [(WIN, G)]
    if fc: pat = [(fc.get("w0", fc["W"][1]), fc["G"])]
    if est == [-1, -1]: stamp(5); st["ks"] = 1
    for n in range(pat[0][0]): iss(n)
    if est == [-1, -1]: stamp(6); est = [None, None]
    issued = pat[0][0]
    late_setup()
    a("s_barrier")
    setup_consts()
    arrived = -1
    step = 0
    done_op = -1; nw = 0; ph = 0; nctl = 0; evalq = []; PAIRS = [88, 92, 94]; tagdone = False
    while issued < NL:
        pp = pat2 if (pat2 is not None and issued >= n0) else pat
        WIN, G = pp[step % len(pp)]; step += 1
        if not fc:
            if issued - (WIN - G) - 1 > arrived: a(f"s_waitcnt vmcnt({WIN-G})")
            arrived = max(arrived, issued - (WIN - G) - 1)
        else:
            Wl, Wm, Wh = fc["W"]
            opened = False
            for n_, W_ in fc.get("open", []):
                if issued >= n_: Wl, Wm, Wh = W_; opened = Wl == Wh
            while issued + G - 1 - RING > consumed and work[wi][2] > max(arrived, issued - (Wh - G) - 1): Wh -= 1; Wm = min(Wm, Wh); Wl = min(Wl, Wh)
            r = vm_for(Wh - G)
            if r and issued - (Wh - G) - 1 > arrived: a(f"s_waitcnt vmcnt({r[0]})"); done_op = max(done_op, r[1]); arrived = max(arrived, issued - (Wh - G) - 1)
            tt = fc.get("tt")
            if tt:
                if not st.get("ev"):
                    r_ = vm_for(min(tt.get("wp", Wm), Wh) - G)
                    if r_: a(f"s_waitcnt vmcnt({r_[0]}) ;nc")
                else:
                    if not st.get("sl"):
                        a(f"s_waitcnt lgkmcnt(0)\ns_add_u32 s68, s70, {round(tt['U'] * (step - 1))}\ns_sub_u32 s68, s68, s{st['cur']}"); st["ok"] |= st["pend"]; st["pend"] = set()
                    lv = tt["lv"]
                    for n_, l_ in tt.get("lv2", []):
                        if issued >= n_: lv = l_
                    pw = Wh
                    for i_ in range(len(lv) - 1):
                        w_ = min(lv[i_ + 1][0], Wh)
                        if w_ >= pw: continue
                        pw = w_
                        a(f"s_cmpk_lt_i32 s68, {lv[i_][1] & 0xffff} ;nc\ns_cbranch_scc1 L_fs{step} ;nc\ns_waitcnt vmcnt({vm_for(w_ - G)[0]}) ;nc")
                    a(f"L_fs{step}:")
                    if prof and tt.get("tr") and step in tt["tr"]: a("s_lshl_b64 s[82:83], s[82:83], 16\ns_and_b32 s69, s68, 0xffff\ns_or_b32 s82, s82, s69")
            elif not opened: a(f"""
s_cmp_eq_u32 s62, 2 ;nc
s_cbranch_scc1 L_fs{step} ;nc
s_waitcnt vmcnt({vm_for(Wm - G)[0]}) ;nc
s_cmp_eq_u32 s62, 0 ;nc
s_cbranch_scc1 L_fs{step} ;nc
s_waitcnt vmcnt({vm_for(Wl - G)[0]}) ;nc
L_fs{step}:
""")
        if est:
            for i_, e_ in enumerate(est):
                if e_ is not None and arrived >= e_: stamp(5 + i_); est[i_] = None
        g = min(G, NL - issued)
        while issued + g - 1 - RING > consumed:
            if work[wi][2] > arrived:
                assert not fc
                a(f"s_waitcnt vmcnt({issued - 1 - work[wi][2]})"); arrived = work[wi][2]
            do_work()
        for n in range(issued, issued + g): iss(n)
        if wotrig is not None and wotrig >= 0 and issued <= wotrig < issued + g:
            a(f"s_mov_b64 exec, 1\nv_mov_b32 v82, 1\nds_add_u32 v84, v82 offset:{FLG+28}\ns_mov_b64 exec, -1")
        if fc:
            d = fc["d"]; k0 = fc.get("k0", 2); last = (NL - fc.get("stop", 8) - fc["W"][1]) // G
            if step == k0:
                a("s_waitcnt lgkmcnt(0)\ns_add_u32 s73, s73, 1\nv_mov_b32 v90, s73")
            if fc.get("wg"):
                tt = fc.get("tt")
                tab = step >= fc.get("kw", 4) and step % fc["CW"] == 0 and step <= last and not opened
                if tt and tt.get("notab"): tab = False
                if tt:
                    st.setdefault("ok", set()); st.setdefault("pend", set())
                    if step >= fc.get("kw", 4):
                        st["cur"] = [6, 8, 10, 34, 42][nw % 5] if tab else 4; assert len(evalq) < 5
                        if tab or not st.get("sl"):
                            a(f"s_memrealtime s[{st['cur']}:{st['cur']+1}]"); st["pend"].add(st["cur"]); st["ok"].discard(st["cur"])
                    if prof and step in tt.get("trt", []): stamp([5, 6, 7][tt["trt"].index(step)])
                for e in [e for e in evalq if e[0] <= done_op]:
                    evalq.remove(e)
                    if tt:
                        if e[2] > tt.get("kstop", 99): continue
                        if e[3] not in st["ok"]:
                            assert not st.get("sl"); a("s_waitcnt lgkmcnt(0)"); st["ok"] |= st["pend"]; st["pend"] = set()
                        a(f"v_sad_u8 v85, v{e[1]}, 0, 0\ns_mov_b32 s62, s{e[3]}\ns_call_b64 s[80:81], {'L_cw' if st.get('ev1') else 'L_cw0'}"); st["ev"] = 1; st["ev1"] = 1
                        if tt.get("gl") and not st.get("gx"): a("s_mov_b32 s70, s75")
                    else: a(f"v_sad_u8 v85, v{e[1]}, 0, 0\ns_movk_i32 s68, {32 * e[2]}\ns_call_b64 s[80:81], L_cw")
                if tab and tt and step > tt.get("kstop", 99):
                    a(f"v_mov_b32 v89, {step}\ns_mov_b64 exec, vcc\nbuffer_store_byte v89, v88, s[12:15], 0 offen\ns_mov_b64 exec, -1"); ops.append(("S", 0))
                elif tab:
                    r_ = [91, 92, 93, 94, 95, 86 if NLT == 0 else 5][nw % 6]; nw += 1; assert len(evalq) < 6
                    a(f"""
v_mov_b32 v89, {step}
s_mov_b64 exec, vcc
buffer_store_byte v89, v88, s[12:15], 0 offen
s_mov_b64 exec, -1
buffer_load_dword v{r_}, v87, s[12:15], 0 offen nt
""")
                    ops.append(("S", 0)); ops.append(("C", 0)); evalq.append((len(ops) - 1, r_, step, st.get("cur")))
            if fc.get("ts"):
                for i_, k_ in enumerate(fc["ts"]):
                    if step == k_ - 1 and not fc.get("tt"): a("s_memrealtime s[34:35]")
                    if step == k_:
                        if not fc.get("tt"): a("s_waitcnt lgkmcnt(0)\ns_add_u32 s34, s34, s75\nv_mov_b32 v{TSR}, s34".replace("{TSR}", str(TSR)))
                        elif st.get("ev1"): a(f"s_add_u32 s65, s75, {round(fc['tt']['U'] * step)}\nv_mov_b32 v{TSR}, s65")
                        else:
                            a(f"s_waitcnt lgkmcnt(0)\nv_mov_b32 v{TSR}, s{st['cur']}"); st["ok"] |= st["pend"]; st["pend"] = set()
                            if fc["tt"].get("gl") == 2 and i_ == 0: a(f"s_sub_u32 s70, s{st['cur']}, {round(fc['tt']['U'] * step)}")
                        a(f"""
v_mov_b32 v97, s73
s_movk_i32 s65, {PGOFF + i_ * 256}
s_cmp_eq_u32 s64, {(5 * i_ + 3) % 32}
s_cselect_b64 exec, 1, 0
buffer_store_dwordx2 v[96:97], v83, s[76:79], s65 offen sc1
s_mov_b64 exec, -1
""".replace("v96", f"v{TSR}").replace("v97", f"v{TSR+1}").replace("v[96:97]", f"v[{TSR}:{TSR+1}]"))
                        ops.append(("S", 0))
                    if step == k_ + d:
                        a(f"s_load_dwordx16 s[16:31], s[40:41], {PGOFF + i_ * 256}\ns_load_dwordx2 s[32:33], s[40:41], s63 offset:{PGOFF + i_ * 256}\ns_memrealtime s[36:37]" if fc.get("tt", {}).get("gl") != 2 else f"s_load_dwordx16 s[16:31], s[40:41], {PGOFF + i_ * 256}"); st["sl"] = 1
                    if step == k_ + d + fc.get("dl", 3):
                        if fc.get("tt", {}).get("gl"):
                            a(f"s_movk_i32 s62, {round(fc['tt']['U'] * k_)}\ns_call_b64 s[80:81], {'L_cx' if st.get('gx') or not fc['tt'].get('gsm') else 'L_cx0'}"); st["gx"] = 1; st["ev"] = 1
                        else: a("s_call_b64 s[80:81], L_cx")
                        st["sl"] = 0
                        if wodl is not None and i_ == len(fc["ts"]) - 1:
                            a(f"s_add_u32 s69, s70, {round(fc['tt']['U'] * 61) + wodl}\ns_mov_b64 exec, 1\nv_mov_b32 v82, s69\nds_write_b32 v84, v82 offset:{FLG+48}\ns_mov_b64 exec, -1")
                        if fc.get("tt"):
                            st["ok"] |= st["pend"]; st["pend"] = set()
                            if st["cur"] == 4: a("s_memrealtime s[4:5]"); st["pend"].add(4)
            if k0 <= step <= last - d and fc.get("x", 1):
                a(f"""
s_movk_i32 s65, {PGOFF + step * 256}
s_cmp_eq_u32 s64, {step % 32}
s_cselect_b64 exec, 1, 0
buffer_store_dword v90, v83, s[76:79], s65 offen sc1
s_mov_b64 exec, -1
""")
                ops.append(("S", 0))
            if step >= k0 + d and (step - k0 - d) % fc["C"] == 0:
                if nctl > 0: a("s_call_b64 s[80:81], L_cb"); nctl = 0
                if step <= last and fc.get("x", 1):
                    a(f"s_load_dwordx8 s[4:11], s[40:41], {PGOFF + (step - d) * 256}"); nctl = 1
        issued += g
        for _ in range(WPS):
            if wi < len(work) and work[wi][2] <= arrived and (wi > 0 or issued + G - 1 - RING > consumed):
                do_work()
    if "dpst" in dbg: stamp(5); print("drain work:", work[wi:])
    while wi < len(work):
        need_ = work[wi][2]
        if dp == 1 and wi == len(work) - 1:
            if "dpst" in dbg: stamp(6)
            if dpt == "a": s_sig(FLG + 28)
            a("s_mov_b64 exec, 0xffff")
            for jj in range(8): a(f"ds_write_b128 v8, v[{ACC+4*jj}:{ACC+4*jj+3}] offset:{OP+16*jj}")
            s_sig(FLG + 36)
            s_wait("L_d3", FLG + 44, 4)
            for u in range(4): a(f"ds_read_b128 v[{AQ[u]}:{AQ[u]+3}], v11 offset:{QL+256*u}")
            if dpt == "b": s_sig(FLG + 28)
            R0 = rreg(120)
            def dperm(u, p):
                a(f"v_perm_b32 v{PT+8*(u&1)+p}, v{R0+8*u+2*p+1}, v{R0+8*u+2*p}, s54\nv_perm_b32 v{PT+8*(u&1)+4+p}, v{R0+8*u+2*p+1}, v{R0+8*u+2*p}, s55")
            for i in range(8):
                u = i >> 1
                if i == dpc:
                    s_wait("L_d2", FLG + 36, 4)
                    for u_ in range(4): a(f"ds_read_b32 v{36+2*u_}, v4 offset:{OP+2304*u_}\nds_read_b32 v{37+2*u_}, v4 offset:{OP+2304*u_+16}")
                    if "dpst" in dbg: stamp(7)
                if i == 7: a("s_waitcnt lgkmcnt(0)\nv_pk_add_f32 v[36:37], v[36:37], v[38:39]\nv_pk_add_f32 v[40:41], v[40:41], v[42:43]\nv_pk_add_f32 v[36:37], v[36:37], v[40:41]")
                if i < 7:
                    a(f"s_waitcnt vmcnt({vm_for(7 - i)[0]})")
                    if dpt == f"c{7 - i}": s_sig(FLG + 28)
                    dperm(u, 2 * (i & 1)); dperm(u, 2 * (i & 1) + 1)
                else:
                    a("s_waitcnt vmcnt(2)"); dperm(u, 2); a("s_cmp_lg_u32 s42, 0\ns_waitcnt vmcnt(0)"); dperm(u, 3)
                if i == 1: a("s_waitcnt lgkmcnt(0)")
                if i & 1:
                    for e in range(2): a(f"v_mfma_f32_16x16x32_bf16 v[{28+4*e}:{31+4*e}], v[{AQ[u]}:{AQ[u]+3}], v[{PT+8*(u&1)+4*e}:{PT+8*(u&1)+4*e+3}], {f'v[{28+4*e}:{31+4*e}]' if u else '0'}")
            a("v_add_f32 v28, v28, v36\nv_add_f32 v32, v32, v37")
            assert ops[-1] == ("L", 127)
            a(f"""
v_cvt_pk_bf16_f32 v8, v28, v32
s_cbranch_scc1 L_dp_far
buffer_store_dwordx2 v[8:9], v10, s[76:79], s43 offen
L_dp_done:
""")
            stamp(4)
            if dpw: s_sig(FLG + 40)
            break
        if wi == len(work) - 1 and wotrig is not None and wotrig >= 200:
            a(f"s_waitcnt vmcnt({vm_for(wotrig - 200)[0]})")
            if defer:
                a(f"s_cmp_gt_i32 s75, {defer[0]}\ns_cselect_b32 s59, 0x101, 1\ns_mov_b64 exec, 1\nv_mov_b32 v82, s59\nds_add_u32 v84, v82 offset:{FLG+28}")
                if defer[2] > 60:
                    a("v_mov_b32 v89, 62\ns_mov_b64 exec, vcc\nbuffer_store_byte v89, v88, s[12:15], 0 offen"); ops.append(("S", 0))
                a("s_mov_b64 exec, -1")
            else: a(f"s_mov_b64 exec, 1\nv_mov_b32 v82, 1\nds_add_u32 v84, v82 offset:{FLG+28}\ns_mov_b64 exec, -1")
        if wi == len(work) - 1 and lastopt and "nov" not in dbg:
            v = 7; OB = rreg(112)
            def lp(p, jj): a(f"v_perm_b32 v{OB+4*jj+p}, v{rreg(124+p)+(jj>>1)}, v{rreg(120+p)+(jj>>1)}, {'s55' if jj & 1 else 's54'}")
            def lm(jj): a(f"v_mfma_f32_16x16x32_bf16 v[{ACC+4*jj}:{ACC+4*jj+3}], v[{PA}:{PA+3}], v[{OB+4*jj}:{OB+4*jj+3}], v[{ACC+4*jj}:{ACC+4*jj+3}]")
            def lw(jj): a(f"ds_write_b128 v{8 if dp else 4}, v[{ACC+4*jj}:{ACC+4*jj+3}] offset:{OP+16*jj}")
            if t2:
                def lm(jj): a(f"v_mfma_f32_16x16x32_bf16 v[{ACC+4*(jj>>2)}:{ACC+4*(jj>>2)+3}], v[{PA4+4*(jj&3)}:{PA4+4*(jj&3)+3}], v[{OB+4*jj}:{OB+4*jj+3}], v[{ACC+4*(jj>>2)}:{ACC+4*(jj>>2)+3}]")
                a(f"s_lshl_b32 s59, s3, 11\nv_add_u32 v4, s59, v3")
            elif not dp: a(f"s_mul_i32 s59, s3, 2304\nv_mul_u32_u24 v4, 144, v1\nv_add_u32 v4, s59, v4")
            a("v_mov_b32 v82, 1"); mkpa(v)
            for p in range(3):
                a(f"s_waitcnt vmcnt({vm_for(3 - p)[0]})")
                for jj in range(8): lp(p, jj)
            a("s_waitcnt vmcnt(0)")
            if dpp: a(f"s_setprio {dpp}")
            lp(3, 0); lp(3, 1)
            for jj in range(6): lp(3, jj + 2); lm(jj)
            stamp(4)
            if t2:
                lm(6); lm(7)
                a(f"ds_write_b128 v4, v[{ACC}:{ACC+3}] offset:{OP}\nds_write_b128 v4, v[{ACC+4}:{ACC+7}] offset:{OP+1024}")
            else:
                a("s_mov_b64 exec, 0xffff"); lw(0); lm(6); lw(1); lm(7)
                for jj in range(2, 8): lw(jj)
            if dp:
                a(f"""
s_mov_b64 exec, 1
ds_add_u32 v84, v82 offset:{FLG+36}
s_mov_b64 exec, -1
s_mov_b32 s58, {spin*8}
L_d2:
ds_read_b32 v85, v84 offset:{FLG+36}
""")
                for u_ in range(4): a(f"ds_read_b32 v{PT+2*u_}, v4 offset:{OP+2304*u_}\nds_read_b32 v{PT+1+2*u_}, v4 offset:{OP+2304*u_+16}")
                a(f"""
s_waitcnt lgkmcnt(8)
v_readfirstlane_b32 s59, v85
s_sub_u32 s58, s58, 1
s_cbranch_scc1 L_d2_done
s_cmp_lt_u32 s59, 4
s_cbranch_scc1 L_d2
L_d2_done:
s_cmp_lg_u32 s42, 0
s_waitcnt lgkmcnt(4)
v_pk_add_f32 v[{PT}:{PT+1}], v[{PT}:{PT+1}], v[{PT+2}:{PT+3}]
s_waitcnt lgkmcnt(0)
v_pk_add_f32 v[{PT+4}:{PT+5}], v[{PT+4}:{PT+5}], v[{PT+6}:{PT+7}]
v_pk_add_f32 v[{PT}:{PT+1}], v[{PT}:{PT+1}], v[{PT+4}:{PT+5}]
v_cvt_pk_bf16_f32 v8, v{PT}, v{PT+1}
s_cbranch_scc1 L_dp_far
buffer_store_dwordx2 v[8:9], v10, s[76:79], s43 offen
L_dp_done:
""")
                if est: stamp(7)
                if dpw: s_sig(FLG + 40)
            break
        if need_ > arrived:
            r = vm_for(NL - 1 - need_) if fc else (NL - 1 - need_,)
            a(f"s_waitcnt vmcnt({r[0]})"); arrived = need_
        do_work()
    else:
        stamp(4)
        a(f"""
s_mul_i32 s59, s3, 2304
v_mul_u32_u24 v4, 144, v1
v_add_u32 v4, s59, v4
s_mov_b64 exec, 0xffff
""")
        for jj in range(8):
            a(f"ds_write_b128 v4, v[{ACC+4*jj}:{ACC+4*jj+3}] offset:{OP+16*jj}")
    if not dp: a("""
s_mov_b64 exec, -1
s_waitcnt lgkmcnt(0)
s_barrier
""")
    if dirty:
        a(f"""
s_mov_b32 s44, s40
s_mov_b32 s45, s41
s_mov_b32 s46, 0x10000000
s_mov_b32 s47, 0x20000
s_lshl_b32 s59, s2, 2
s_add_u32 s59, s59, s3
s_mul_i32 s59, s59, {dirty*1024}
s_add_u32 s59, s59, {64 << 20}
s_sleep 64
""")
        for i in range(dirty): a(f"buffer_store_dwordx4 v[28:31], v3, s[44:47], s59 offen\ns_add_u32 s59, s59, 1024")
    if prof:
        a(f"""
s_mov_b32 s44, s40
s_mov_b32 s45, s41
s_mov_b32 s46, 0x10000000
s_mov_b32 s47, 0x20000
s_sleep 127
s_sleep 127
s_sleep 127
s_waitcnt lgkmcnt(0)
s_lshl_b32 s59, s2, 3
s_add_u32 s59, s59, s3
s_lshl_b32 s59, s59, 6
s_add_u32 s59, s59, {STAMP}
v_mov_b32 v4, 0
s_mov_b64 exec, 1
""")
        for i in range(8):
            trt = fc and fc.get("tt", {}).get("trt")
            sr = 82 if (i == 5 and fc and not est and not trt) else 84 + 2 * (i if est or trt else min(i, 4))
            a(f"v_mov_b32 v8, s{sr}\nv_mov_b32 v9, s{sr+1}\nbuffer_store_dwordx2 v[8:9], v4, s[44:47], s59 offen offset:{8*i}\ns_waitcnt vmcnt(0)")
    a("s_endpgm")
    if dp: a("L_dp_far:\nbuffer_store_dwordx2 v[8:9], v10, s[76:79], s43 offen sc1\ns_branch L_dp_done")
    X = 32
    S1 = 12; S2 = 13; T0 = 14; T1 = 15; NM = 16; RS = 18
    W1 = 40; B1 = 47; W2 = 54; HX = 62; U = 66; AA = 73; EE = 80; ACC2 = 87; C1 = 88; YA = 89
    WB = 192
    def srd(base, lo, size): a(f"s_mov_b32 s{base}, s{lo}\ns_mov_b32 s{base+1}, s{lo+1}\ns_mov_b32 s{base+2}, {size}\ns_mov_b32 s{base+3}, 0x20000")
    def bfround(r): a(f"v_cvt_pk_bf16_f32 v{r}, v{r}, v{r}\nv_lshlrev_b32 v{r}, 16, v{r}")
    def stats_finish():
        a(f"""
v_mul_f32 v{S1}, {f32(1/512)}, v{S1}
v_mul_f32 v{S2}, {f32(1/512)}, v{S2}
v_fma_f32 v{S2}, -v{S1}, v{S1}, v{S2}
v_max_f32 v{S2}, 0, v{S2}
""")
        bfround(S1); bfround(S2)
        a(f"v_add_f32 v{S2}, {f32(1e-5)}, v{S2}")
        bfround(S2)
        a(f"v_sqrt_f32 v{S2}, v{S2}")
        bfround(S2)
        a(f"""
v_rcp_f32 v{RS}, v{S2}
v_sub_f32 v{NM}, 0, v{S1}
v_sub_f32 v{NM+1}, 0, v{S1}
v_mov_b32 v{RS+1}, v{RS}
""")
    def swaps_add(r, t):
        a(f"""
v_mov_b32 v{t}, v{r}
v_permlane16_swap_b32 v{r}, v{t}
v_add_f32 v{r}, v{r}, v{t}
v_mov_b32 v{t}, v{r}
v_permlane32_swap_b32 v{r}, v{t}
v_add_f32 v{r}, v{r}, v{t}
""")
    def normalize(src, dst, n, tmp):
        for i0 in range(0, n, 4):
            idx = list(range(i0, min(n, i0 + 4)))
            for i in idx:
                t = tmp + 2 * (i - i0)
                a(f"v_lshlrev_b32 v{t}, 16, v{src+i}\nv_and_b32 v{t+1}, 0xffff0000, v{src+i}")
            for i in idx:
                t = tmp + 2 * (i - i0)
                a(f"v_pk_add_f32 v[{t}:{t+1}], v[{t}:{t+1}], v[{NM}:{NM+1}]")
            for i in idx:
                t = tmp + 2 * (i - i0)
                a(f"v_cvt_pk_bf16_f32 v{t}, v{t}, v{t+1}")
            for i in idx:
                t = tmp + 2 * (i - i0)
                a(f"v_and_b32 v{t+1}, 0xffff0000, v{t}\nv_lshlrev_b32 v{t}, 16, v{t}")
            for i in idx:
                t = tmp + 2 * (i - i0)
                a(f"v_pk_mul_f32 v[{t}:{t+1}], v[{t}:{t+1}], v[{RS}:{RS+1}]")
            for i in idx:
                t = tmp + 2 * (i - i0)
                a(f"v_cvt_pk_bf16_f32 v{dst+i}, v{t}, v{t+1}")
    def lds_wait(lbl, off, cnt, sl=0, msk=False):
        a(f"""
s_mov_b32 s58, {spin*8}
{lbl}:
ds_read_b32 v4, v9 offset:{off}
s_waitcnt lgkmcnt(0)
v_readfirstlane_b32 s59, v4
s_sub_u32 s58, s58, 1
s_cbranch_scc1 {lbl}_done
{"s_and_b32 s27, s59, 255" if msk else ""}
s_cmp_lt_u32 {"s27" if msk else "s59"}, {cnt}
{f"s_sleep {sl}" if sl else ""}
s_cbranch_scc1 {lbl}
{lbl}_done:
""")
    def lds_signal(off):
        a(f"""
s_mov_b64 exec, 1
ds_add_u32 v9, v11 offset:{off}
s_mov_b64 exec, -1
""")
    def orred(ts):
        ts = list(ts)
        while len(ts) > 1:
            if len(ts) >= 3:
                a(f"v_or3_b32 v{ts[0]}, v{ts[0]}, v{ts[1]}, v{ts[2]}"); ts = ts[3:] + [ts[0]]
            else:
                a(f"v_or_b32 v{ts[0]}, v{ts[0]}, v{ts[1]}"); ts = [ts[0]]
        return ts[0]
    def chk8(tags, tmp):
        if b3 and len(tags) % 2 == 0:
            for i in range(len(tags) // 2): a(f"v_bitop3_b32 v{tmp+i}, v{tags[2*i]}, v{tags[2*i+1]}, s12 bitop3:0x7e")
            return orred([tmp + i for i in range(len(tags) // 2)])
        for i, t in enumerate(tags): a(f"v_xor_b32 v{tmp+i}, s12, v{t}")
        return orred([tmp + i for i in range(len(tags))])
    def chk16(bases, tmp, tagreg):
        out = []
        for i, b in enumerate(bases):
            a(f"v_perm_b32 v{tmp+2*i}, v{b+1}, v{b}, s20\nv_perm_b32 v{tmp+2*i+1}, v{b+3}, v{b+2}, s21")
        for i, b in enumerate(bases):
            a(f"v_or_b32 v{tmp+2*i}, v{tmp+2*i}, v{tmp+2*i+1}")
        for i, b in enumerate(bases):
            a(f"v_xor_b32 v{tmp+2*i}, s{tagreg}, v{tmp+2*i}"); out.append(tmp + 2 * i)
        return orred(out)
    def pack16(dst, srcs, tagv):
        for i, r in enumerate(srcs): a(f"v_perm_b32 v{dst+i}, v{r}, v{tagv}, s{16+i}")
    def poll(lbl, loads, chk, fbr=None, post=None, st=None, pipe=1, stag=0, sl=None, mid=None, pre=False):
        if sl is None: sl = slp
        if fbr is not None: a(f"s_mov_b32 s82, s{fbr}\ns_add_u32 s83, s{fbr}, {BD}")
        a(f"s_mov_b32 s58, {spin}")
        for _ in range(pipe - 1):
            for l in loads: a(l)
            if stag: a(f"s_sleep {stag}")
        if mid:
            if not pre:
                for l in loads: a(l)
            mid()
            if "h1vm" in dbg: stamp(4)
            a(f"s_branch {lbl}_chk")
        a(f"{lbl}:")
        if st is not None and (tailprof or (st == 4 and "h1it" in dbg) or (st == 3 and "h2it" in dbg)): stamp(4 if "h2it" in dbg else st)
        for l in loads: a(l)
        if mid: a(f"{lbl}_chk:")
        a(f"s_waitcnt vmcnt({len(loads) * (pipe - 1)})")
        r = chk()
        if post: r = post(r)
        a(f"""
v_cmp_ne_u32 vcc, 0, v{r}
s_sub_u32 s58, s58, 1
s_cbranch_scc1 {lbl}_done
s_and_b64 exec, exec, vcc
s_cbranch_execz {lbl}_done
""")
        if fbr is not None: a(f"s_and_b32 s59, s58, {fb}\ns_cselect_b32 s{fbr}, s82, s83")
        if sl: a(f"s_sleep {sl}")
        a(f"""
s_branch {lbl}
{lbl}_done:
s_mov_b64 exec, -1
""")
    a("""L_helper:
s_load_dwordx16 s[16:31], s[0:1], 0
s_load_dwordx8 s[32:39], s[0:1], 64
s_load_dwordx2 s[40:41], s[0:1], 96
v_and_b32 v3, 15, v0
v_lshlrev_b32 v3, 2, v3
v_mov_b32 v4, 0
ds_write_b32 v3, v4
s_setprio 3
s_sub_u32 s3, s3, 4
s_waitcnt lgkmcnt(0)
""")
    if "probe" in dbg:
        srd(52, 40, 0x10000000)
        pl = "probel" in dbg
        a(f"""
s_cmp_lt_u32 s3, 2
s_cbranch_scc1 L_noprobe
s_and_b32 s4, s3, 1
s_lshl_b32 s4, s4, 13
s_lshl_b32 s5, s2, 14
s_add_u32 s4, s4, s5
s_add_u32 s4, s4, {8 << 20}
s_mov_b64 exec, 1
s_memtime s[76:77]
s_waitcnt lgkmcnt(0)
{"s_load_dword s5, s[40:41], s4 offset:128" if "probew" in dbg else ""}
s_waitcnt lgkmcnt(0)
{"s_memtime s[76:77]" if "probew" in dbg else ""}
s_waitcnt lgkmcnt(0)
{"s_load_dword s5, s[40:41], s4" if "probes" in dbg else "buffer_load_dword v5, v4, s[52:55], s4 offen sc1" if pl else "buffer_store_dword v4, v4, s[52:55], s4 offen sc1"}
s_waitcnt vmcnt(0) lgkmcnt(0)
s_memtime s[78:79]
s_waitcnt lgkmcnt(0)
s_sub_u32 s98, s78, s76
s_mov_b32 s99, 0
s_mov_b64 exec, -1
L_noprobe:
""")
    if near: a(f"s_cmp_lt_u32 s2, {8 * near['nw']}\ns_cbranch_scc1 L_meas\nL_meas_done:")
    if "s" in warm:
        a("""
s_and_b32 s4, s2, 7
s_lshl_b32 s4, s4, 20
s_lshr_b32 s5, s2, 5
s_lshl_b32 s5, s5, 23
s_or_b32 s4, s4, s5
s_load_dword s76, s[20:21], s4
s_and_b32 s4, s2, 4
s_lshl_b32 s4, s4, 19
s_load_dword s77, s[24:25], s4
s_load_dword s78, s[36:37], 0
s_load_dword s79, s[38:39], 0
""")
    if "m" in warm:
        a("""
s_load_dword s76, s[16:17], 0
s_load_dword s77, s[22:23], 0
s_load_dword s78, s[22:23], 0x200000
s_load_dword s79, s[28:29], 0
s_load_dword s76, s[30:31], 0
s_load_dword s77, s[32:33], 0
s_load_dword s78, s[34:35], 0
""".replace("0x200000", "0xffffc"))
    srd(44, 16, 8192); srd(48, 22, 0x400000); srd(52, 40, 0x10000000); srd(56, 24, 0x400000)
    srd(60, 28, 3584); srd(64, 30, 3584); srd(68, 32, 3584)
    a(f"""
v_lshrrev_b32 v5, 4, v1
v_and_b32 v6, 7, v1
v_and_b32 v8, 15, v1
v_lshrrev_b32 v7, 5, v1
v_and_b32 v4, 31, v1
v_lshlrev_b32 v4, 4, v4
v_lshl_add_u32 v2, v7, 10, v4
s_lshl_b32 s6, s3, 11
v_mov_b32 v9, 0
v_mov_b32 v11, 1
v_lshrrev_b32 v20, 3, v1
v_lshlrev_b32 v21, 13, v20
v_lshl_add_u32 v21, v6, 4, v21
v_lshlrev_b32 v22, {12 if t2 else 10}, v20
v_lshl_add_u32 v22, v6, 4, v22
s_and_b32 s15, s2, 7
s_lshr_b32 s14, s2, 3
s_add_u32 s4, s14, {rq}
s_and_b32 s4, s4, 7
s_add_u32 s14, s14, {ro}
s_and_b32 s14, s14, 7
s_lshl_b32 s8, s15, 3
s_add_u32 s8, s8, s4
s_lshr_b32 s9, s2, 6
s_lshl_b32 s4, s9, 2
s_add_u32 s4, s4, s3
s_lshl_b32 s4, s4, 18
s_lshl_b32 s5, s8, 7
s_add_u32 s72, s4, s5
s_lshl_b32 s13, s15, 2
s_add_u32 s13, s13, s9
s_lshl_b32 s4, s13, 2
s_add_u32 s4, s4, s3
s_lshl_b32 s4, s4, 15
s_lshl_b32 s5, s14, 7
s_add_u32 s73, s4, s5
s_lshl_b32 s4, s3, 12
s_add_u32 s74, s4, {WQL}
s_mul_i32 s75, s3, 896
v_lshlrev_b32 v23, 1, v1
s_barrier
""")
    if "nohelp" in dbg: a("s_branch L_pre2")
    if hdel: a(f"s_sleep {hdel}")
    a(f"""
buffer_load_dwordx4 v[{X}:{X+3}], v2, s[44:47], s6 offen
buffer_load_dwordx4 v[{X+4}:{X+7}], v2, s[44:47], s6 offen offset:512
{"s_load_dword s42, s[40:41], 0" if sE else "buffer_load_dword v10, v9, s[52:55], 0 offen sc1"}
""")
    if "nowq" in dbg: a("s_mov_b32 s50, 0\ns_mov_b32 s58, 0")
    if wqdel: a(f"s_sleep {wqdel}")
    for t in range(4):
        a(f"s_add_u32 m0, s74, {t*1024}\ns_nop 0\nbuffer_load_dwordx4 v21, s[48:51], s72 offen nt lds")
        if t < 3: a(f"s_add_u32 s72, s72, {8*8192}")
    def wodma(t, vr, so, sl):
        if wosw and t & 1: vr = 152
        a(f"s_add_u32 m0, s{sl}, {16384+t*1024}\ns_nop 0\nbuffer_load_dwordx4 v{vr}, {'s[56:59]' if wolate is None else 's[68:71]'}, s{so} offen nt lds")
        if t < 3: a(f"s_add_u32 s{so}, s{so}, {1024 if t2 else 8*1024}")
    if wolate is None:
        for t in range(4): wodma(t, 22, 73, 74)
    else:
        if wosw: a("v_and_b32 v90, 1, v5\nv_lshlrev_b32 v90, 5, v90\nv_xor_b32 v90, v90, v22\nv_xor_b32 v152, 64, v90\ns_mov_b32 s22, s73\ns_mov_b32 s23, s74")
        else: a("v_mov_b32 v90, v22\ns_mov_b32 s22, s73\ns_mov_b32 s23, s74")
    NW = 0 if wolate is None else 4
    for t in range(7):
        a(f"buffer_load_ushort v{W1+t}, v23, s[60:63], s75 offen offset:{128*t}")
        a(f"buffer_load_ushort v{B1+t}, v23, s[64:67], s75 offen offset:{128*t}")
        a(f"buffer_load_ushort v{W2+t}, v23, s[68:71], s75 offen offset:{128*t}")
    srd(60, 34, 2); srd(64, 36, 8192); srd(68, 24, 0 if ('nowq' in dbg or 'nowo2' in dbg) else 0x400000)
    a(f"""
v_and_b32 v30, 3, v1
v_lshlrev_b32 v30, 1, v30
v_lshl_add_u32 v30, v5, 5, v30
s_lshr_b32 s10, s2, 2
s_lshl_b32 s10, s10, 7
s_and_b32 s4, s2, 3
s_lshl_b32 s4, s4, 3
s_add_u32 s10, s10, s4
buffer_load_ushort v31, v9, s[60:63], 0 offen
buffer_load_ushort v29, v30, s[44:47], s10 offen
s_mov_b32 s16, 0x07060500
s_mov_b32 s17, 0x07060501
s_mov_b32 s18, 0x07060502
s_mov_b32 s19, 0x07060503
s_mov_b32 s20, 0x0c0c0400
s_mov_b32 s21, 0x04000c0c
s_getreg_b32 s43, hwreg(HW_REG_XCC_ID, 0, 4)
s_lshl_b32 s43, s43, 3
s_add_u32 s43, s43, s15
s_lshl_b32 s43, s43, 7
s_add_u32 s43, s43, {LOCOFF}
s_lshr_b32 s59, s2, 3
s_lshl_b32 s59, s59, 2
s_add_u32 s59, s59, s43
s_mov_b32 s11, 0x3f803f80
v_mov_b32 v{S1}, 0
v_mov_b32 v{S2}, 0
s_waitcnt lgkmcnt(0)
s_add_u32 s42, s42, 1
s_mul_i32 s12, s42, 0x01010101
v_mov_b32 v10, s12
s_cmp_eq_u32 s3, 0
s_cselect_b64 exec, 1, 0
buffer_store_dword v10, v9, s[52:55], s59 offen
s_mov_b64 exec, -1
s_waitcnt vmcnt({32 - NW})
""")
    for i in range(8):
        a(f"v_dot2_f32_bf16 v{S1}, v{X+i}, s11, v{S1}")
        a(f"v_dot2_f32_bf16 v{S2}, v{X+i}, v{X+i}, v{S2}")
    for n in (8, 4, 2, 1):
        a(f"v_add_f32_dpp v{S1}, v{S1}, v{S1} row_ror:{n} row_mask:0xf bank_mask:0xf")
        a(f"v_add_f32_dpp v{S2}, v{S2}, v{S2} row_ror:{n} row_mask:0xf bank_mask:0xf")
    a(f"""
v_mov_b32 v{T0}, v{S1}
v_mov_b32 v{T1}, v{S2}
v_permlane16_swap_b32 v{S1}, v{T0}
v_permlane16_swap_b32 v{S2}, v{T1}
v_add_f32 v{S1}, v{S1}, v{T0}
v_add_f32 v{S2}, v{S2}, v{T1}
""")
    stats_finish()
    normalize(X, X, 8, 20)
    a(f"""
s_mul_i32 s4, s3, {2*XRS}
v_mul_u32_u24 v2, {XRS}, v7
v_add3_u32 v2, v2, v4, s4
ds_write_b128 v2, v[{X}:{X+3}] offset:{XN}
ds_write_b128 v2, v[{X+4}:{X+7}] offset:{XN+512}
v_mul_u32_u24 v2, {XRS}, v6
v_lshl_add_u32 v2, v5, 4, v2
s_lshl_b32 s4, s9, 8
v_add_u32 v2, s4, v2
v_bfe_u32 v3, v1, 2, 2
v_lshl_add_u32 v3, v5, 3, v3
v_lshlrev_b32 v3, 7, v3
v_and_b32 v20, 3, v1
v_lshl_add_u32 v3, v20, 3, v3
s_lshl_b32 s4, s3, 5
v_add_u32 v24, s4, v3
s_waitcnt vmcnt(24) lgkmcnt(0)
""")
    lds_signal(FLG + 8)
    a(f"""
v_and_b32 v27, 31, v1
v_lshlrev_b32 v27, 2, v27
buffer_load_dword v150, v27, s[52:55], s43 offen nt
v_lshlrev_b32 v25, 4, v5
v_lshl_add_u32 v25, v6, 11, v25
s_lshr_b32 s4, s8, 1
s_lshl_b32 s4, s4, 5
s_add_u32 s4, s4, s9
s_lshl_b32 s4, s4, 1
s_and_b32 s5, s8, 1
s_add_u32 s4, s4, s5
s_lshl_b32 s4, s4, 2
s_add_u32 s4, s4, s3
s_lshl_b32 s4, s4, 6
s_add_u32 s72, s4, {QOFF}
s_mov_b32 s26, 0
""")
    lds_wait("L_xw", FLG + 8, 4)
    for t in range(4):
        a(f"ds_read_b128 v[{96+4*t}:{99+4*t}], v2 offset:{XN+64*t}")
        for u in range(2): a(f"ds_read_b64_tr_b16 v[{112+4*t+2*u}:{113+4*t+2*u}], v24 offset:{WQL+t*4096+u*512}")
    a("s_waitcnt lgkmcnt(0)")
    stamp(1)
    for t in range(4):
        a(f"v_mfma_f32_16x16x32_bf16 v[128:131], v[{112+4*t}:{115+4*t}], v[{96+4*t}:{99+4*t}], {'0' if t == 0 else 'v[128:131]'}")
    pack16(132, [128, 129, 130, 131], 10)
    if "cutq" in dbg: a("s_branch L_pre2")
    a(f"""
s_movk_i32 s58, {nloc}
L_lc:
s_waitcnt vmcnt(0)
v_cmp_ne_u32 vcc, s12, v150
s_cbranch_vccz L_lc_done
buffer_load_dword v150, v27, s[52:55], s43 offen nt
s_sub_u32 s58, s58, 1
s_cbranch_scc0 L_lc
s_mov_b32 s26, 1
L_lc_done:
{"s_mov_b32 s26, 1" if clean else ""}
{"s_and_b32 s26, s3, 1" if "mixw" in dbg else ""}
{"s_bfe_u32 s26, s2, 0x10003" if "mixj" in dbg else ""}
s_mov_b32 exec_lo, 0x00ff00ff
s_mov_b32 exec_hi, 0x00ff00ff
s_cmp_lg_u32 s26, 0
s_cbranch_scc1 L_qs_far
buffer_store_dwordx4 v[132:135], v25, s[52:55], s72 offen
L_qs_done:
s_mov_b64 exec, -1
""")
    if near: a(f"s_lshl_b32 s4, s3, 8\ns_add_u32 s4, s4, s2\ns_sub_u32 s4, s4, 512\ns_cmp_lt_u32 s4, {8 * near['nw']}\ns_cbranch_scc1 L_mpub\nL_mpub_done:")
    if "cutp" in dbg: a("s_branch L_pre2")
    stamp(2)
    a(f"s_setprio {bgprio}")
    def woread(vr):
        for nt_ in range(4):
            for kk in range(4):
                for u in range(2):
                    r = WB + 16 * nt_ + 4 * kk + 2 * u
                    if wosw: a(f"ds_read_b64_tr_b16 v[{r}:{r+1}], v{153+nt_} offset:{WQL+16384+kk*4096+u*512}")
                    else: a(f"ds_read_b64_tr_b16 v[{r}:{r+1}], v{vr} offset:{WQL+16384+kk*4096+u*512+nt_*32}")
    if wolate is None: woread(3)
    elif wosw: a("v_bfe_u32 v153, v1, 3, 2\nv_lshl_add_u32 v153, v153, 5, v3\nv_xor_b32 v154, 32, v153\nv_xor_b32 v155, 64, v153\nv_xor_b32 v156, 0x60, v153")
    else: a("v_mov_b32 v91, v3")
    a(f"""
s_lshr_b32 s4, s2, 5
s_mul_i32 s4, s4, {XRS}
v_lshl_add_u32 v2, v1, 4, s4
ds_read_b128 v[{HX}:{HX+3}], v2 offset:{XN}
v_mov_b32 v{S1}, 0
v_mov_b32 v{S2}, 0
s_waitcnt lgkmcnt(0)
""")
    for i in range(4):
        a(f"v_dot2_f32_bf16 v{S1}, v{HX+i}, s11, v{S1}")
        a(f"v_dot2_f32_bf16 v{S2}, v{HX+i}, v{HX+i}, v{S2}")
    for n in (8, 4, 2, 1):
        a(f"v_add_f32_dpp v{S1}, v{S1}, v{S1} row_ror:{n} row_mask:0xf bank_mask:0xf")
        a(f"v_add_f32_dpp v{S2}, v{S2}, v{S2} row_ror:{n} row_mask:0xf bank_mask:0xf")
    swaps_add(S1, T0); swaps_add(S2, T1)
    stats_finish()
    normalize(HX, HX, 4, 20)
    a(f"""
s_bitcmp1_b32 s2, 0
s_cselect_b64 vcc, -1, 0
s_bfe_u32 s4, s2, 0x30002
s_lshl_b32 s4, s4, 3
s_bfe_u32 s5, s2, 0x10001
s_add_u32 s4, s4, s5
v_cndmask_b32 v{HX}, v{HX}, v{HX+2}, vcc
v_cndmask_b32 v{HX+1}, v{HX+1}, v{HX+3}, vcc
""")
    for i in range(4):
        a(f"v_readlane_b32 s{72+2*i}, v{HX}, s4\nv_readlane_b32 s{73+2*i}, v{HX+1}, s4")
        if i < 3: a("s_add_u32 s4, s4, 2")
    a("s_waitcnt vmcnt(2)")
    for i in range(21): a(f"v_lshlrev_b32 v{W1+i}, 16, v{W1+i}")
    c0 = -2 * LOG2E * math.sqrt(2 / math.pi); c1 = c0 * 0.044715
    a(f"""
v_mov_b32 v{C1}, {f32(c1)}
s_lshl_b32 s4, s3, 6
v_mov_b32 v{YA}, s4
""")
    def mlp_steps(lo, hi):
        for d in range(lo, hi):
            if d & 1: a(f"s_and_b32 s4, s{72+(d>>1)}, 0xffff0000")
            else: a(f"s_lshl_b32 s4, s{72+(d>>1)}, 16")
            if "nomlp" not in dbg: a("s_call_b64 s[80:81], L_mlp")
            if wolate is not None and wotrig is None and d in wolate: wodma(wolate.index(d), 90, 22, 23)
    mlp_steps(0, mlp1)
    a(f"""
s_setprio 3
s_lshr_b32 s4, s2, 5
s_lshl_b32 s4, s4, 11
s_lshl_b32 s5, s15, 2
s_add_u32 s5, s5, s3
s_lshl_b32 s5, s5, 14
s_add_u32 s4, s4, s5
s_add_u32 s6, s4, {QOFF}
v_lshlrev_b32 v2, 4, v1
s_cmp_lg_u32 s26, 0
s_cbranch_scc1 L_gq_far
""")
    def qpoll(sfx, fl):
        poll("L_gq" + sfx, [f"buffer_load_dwordx4 v[{96+4*k}:{99+4*k}], v2, s[52:55], s6 offen offset:{1024*k} {fl}" for k in range(2)],
             lambda: chk16([96, 100], 104, 12), sl=qslp)
    qpoll("", "nt")
    a("L_gq_got:")
    for i in range(8): a(f"v_and_b32 v{96+i}, 0xffffff00, v{96+i}")
    for i in range(4): a(f"v_add_f32 v{96+i}, v{96+i}, v{100+i}")
    a(f"""
s_lshl_b32 s4, s3, 8
v_and_b32 v2, 31, v1
v_lshl_add_u32 v2, v2, 3, s4
v_lshl_add_u32 v2, v7, 2, v2
v_permlane32_swap_b32 v96, v98
v_permlane32_swap_b32 v97, v99
v_add_f32 v96, v96, v98
v_add_f32 v97, v97, v99
v_cvt_pk_bf16_f32 v96, v96, v97
ds_write_b32 v2, v96 offset:{QL}
s_waitcnt lgkmcnt(0)
""")
    lds_signal(FLG + 4)
    stamp(3)
    if "cutg" in dbg: a("s_branch L_pre2")
    a(f"s_setprio {bgprio}")
    mlp_steps(mlp1, 16)
    a("s_waitcnt vmcnt(0) lgkmcnt(0)")
    lds_signal(FLG + 12)
    a(f"""
v_lshrrev_b32 v2, 2, v1
v_mul_u32_u24 v20, 144, v2
v_and_b32 v3, 3, v1
v_lshl_add_u32 v20, v3, 5, v20
s_lshl_b32 s4, s3, 2
s_add_u32 s4, s4, {OP}
v_add_u32 v20, s4, v20
v_add_u32 v21, 2304, v20
v_add_u32 v22, 4608, v20
v_add_u32 v23, 6912, v20
s_lshl_b32 s4, s3, 3
v_mov_b32 v24, s4
v_lshrrev_b32 v25, 5, v1
v_lshlrev_b32 v25, 7, v25
v_bfe_u32 v2, v1, 4, 1
v_lshl_add_u32 v25, v2, 11, v25
v_bfe_u32 v2, v1, 1, 1
v_lshl_add_u32 v25, v2, 10, v25
v_bfe_u32 v2, v1, 2, 2
v_lshl_add_u32 v25, v2, 8, v25
v_and_b32 v2, 1, v1
v_lshl_add_u32 v25, v2, 3, v25
v_lshlrev_b32 v26, 4, v1
v_and_b32 v2, 1, v5
v_lshl_add_u32 v27, v2, 2, v3
v_lshlrev_b32 v27, 4, v27
v_lshlrev_b32 v28, {6 if h2full else 16}, v2
v_bfe_u32 v2, v1, 2, 2
v_lshl_add_u32 v28, v2, {12 if h2full else 11}, v28
v_lshl_add_u32 v28, v3, 4, v28
v_lshrrev_b32 v19, 2, v1
v_lshlrev_b32 v19, {7 if h2full else 6}, v19
v_lshl_add_u32 v19, v3, 4, v19
s_lshl_b32 s4, s15, 2
s_add_u32 s4, s4, s3
s_lshl_b32 s4, s4, 2
s_add_u32 s4, s4, s9
s_mul_i32 s4, s4, {H1S}
s_bfe_u32 s5, s2, 0x30003
s_lshl_b32 s5, s5, 4
s_add_u32 s4, s4, s5
s_add_u32 s6, s4, {H1OFF}
s_lshl_b32 s4, s13, 2
s_add_u32 s4, s4, s3
s_mul_i32 s4, s4, {H1S}
s_add_u32 s7, s4, {H1OFF}
s_lshl_b32 s4, s3, {5 if h2full else 6}
s_lshl_b32 s5, s14, 2
s_add_u32 s4, s4, s5
s_lshl_b32 s4, s4, {12 if h2full else 11}
s_lshl_b32 s5, s13, {7 if h2full else 6}
s_add_u32 s4, s4, s5
s_add_u32 s8, s4, {H2OFF}
""")
    if t2: a(f"""
v_lshlrev_b32 v20, 4, v8
v_lshl_add_u32 v20, v5, 2, v20
s_lshl_b32 s4, s3, 8
s_add_u32 s4, s4, {OP}
v_add_u32 v20, s4, v20
v_lshlrev_b32 v24, 3, v5
v_mul_u32_u24 v25, {4*H1S}, v5
v_lshl_add_u32 v25, v8, 3, v25
s_lshl_b32 s4, s15, 4
s_add_u32 s4, s4, s9
s_mul_i32 s4, s4, {H1S}
s_bfe_u32 s5, s2, 0x30003
s_lshl_b32 s5, s5, 9
s_add_u32 s4, s4, s5
s_lshl_b32 s5, s3, 7
s_add_u32 s4, s4, s5
s_add_u32 s28, s4, {H1OFF}
v_bfe_u32 v2, v1, 3, 1
v_lshlrev_b32 v26, 11, v2
v_lshl_add_u32 v26, v5, 7, v26
v_lshl_add_u32 v26, v6, 4, v26
v_lshl_add_u32 v27, v2, 2, v3
v_lshlrev_b32 v27, 4, v27
v_lshlrev_b32 v28, 16, v7
v_bfe_u32 v2, v1, 2, 2
v_lshl_add_u32 v28, v2, 11, v28
v_lshl_add_u32 v28, v3, 4, v28
s_lshl_b32 s29, s3, 4
""")
    if not h2full: a("s_lshl_b32 s9, s2, 11")
    else: a("""
s_lshr_b32 s9, s2, 6
s_lshl_b32 s9, s9, 5
s_and_b32 s4, s2, 31
s_add_u32 s9, s9, s4
s_lshl_b32 s9, s9, 12
s_bfe_u32 s4, s2, 0x10005
s_lshl_b32 s4, s4, 6
s_add_u32 s9, s9, s4
""")
    h2l = [f"buffer_load_dwordx4 v[{136+4*k}:{139+4*k}], v19, s[52:55], s9 offen offset:{(2048 if h2full else 1024)*k} sc1" for k in range(2)]
    a(f"""
s_add_u32 s9, s9, {H2OFF}
""")
    if near:
        a(f"s_mov_b32 s5, {CWOFF}\nv_and_b32 v2, {8 * near['nw'] - 1}, v1\nv_lshlrev_b32 v2, 3, v2")
        poll("L_cwp", ["buffer_load_dwordx2 v[94:95], v2, s[52:55], s5 offen sc1"], lambda: chk8([95], 80), sl=4)
        a(f"""
v_sub_u32 v95, 0, v94
v_cmp_gt_u32 vcc, 4, v6
v_cndmask_b32 v94, v95, v94, vcc
v_add_u32_dpp v94, v94, v94 row_ror:8 row_mask:0xf bank_mask:0xf
v_add_u32_dpp v94, v94, v94 row_ror:4 row_mask:0xf bank_mask:0xf
v_add_u32_dpp v94, v94, v94 row_ror:2 row_mask:0xf bank_mask:0xf
v_add_u32_dpp v94, v94, v94 row_ror:1 row_mask:0xf bank_mask:0xf
v_readfirstlane_b32 s4, v94
s_cmp_gt_i32 s4, 0
s_cselect_b32 s4, {0x2000 if not near.get("inv") else 0}, {0x2000 if near.get("inv") else 0}
s_xor_b32 s8, s8, s4
s_xor_b32 s9, s9, s4
""")
    if wolate is not None and wotrig is None:
        lds_wait("L_yw", FLG + 12, 4); woread(91)
    a("""
s_cmp_lg_u32 s3, 0
s_cbranch_scc1 L_ready
""")
    if wolate is None or wotrig is not None: lds_wait("L_yw", FLG + 12, 4)
    if h2pre:
        for l in h2l: a(l)
    if "o" in warm: a("buffer_load_ushort v94, v30, s[64:67], s10 offen")
    if tlbw: a(f"s_mov_b32 s4, {H2OFF + (1 << 20) - 4096}\nbuffer_load_dword v94, v9, s[52:55], s4 offen")
    a(f"""
v_lshl_add_u32 v2, v5, 2, v3
v_lshlrev_b32 v2, 2, v2
ds_read_b32 v32, v2 offset:{YP}
ds_read_b32 v33, v2 offset:{YP+64}
ds_read_b32 v34, v2 offset:{YP+128}
ds_read_b32 v35, v2 offset:{YP+192}
v_lshlrev_b32 v31, 16, v31
s_waitcnt lgkmcnt(0)
v_add_f32 v32, v32, v33
v_add_f32 v34, v34, v35
v_add_f32 v32, v32, v34
v_cvt_pk_bf16_f32 v32, v32, v32
v_lshlrev_b32 v32, 16, v32
v_add_f32 v32, v32, v31
v_cvt_pk_bf16_f32 v32, v32, v32
v_lshlrev_b32 v32, 16, v32
v_mul_f32 v34, {f32(-LOG2E)}, v32
v_exp_f32 v34, v34
v_add_f32 v34, 1.0, v34
v_rcp_f32 v34, v34
v_mul_f32 v32, v32, v34
v_cvt_pk_bf16_f32 v32, v32, v32
v_lshlrev_b32 v16, 16, v32
v_lshlrev_b32 v14, 16, v29
L_ready:
""")
    if "cuts" in dbg: a("s_branch L_pre2")
    lds_wait("L_sw", FLG + 16, 4, sl=8)
    a(f"""
ds_read_b64 v[32:33], v24 offset:{ST}
ds_read_b64 v[34:35], v24 offset:{ST+32}
ds_read_b64 v[36:37], v24 offset:{ST+64}
ds_read_b64 v[38:39], v24 offset:{ST+96}
s_waitcnt lgkmcnt(0)
v_max3_f32 v48, v32, v34, v36
v_max_f32 v48, v48, v38
v_sub_f32 v32, v32, v48
v_sub_f32 v34, v34, v48
v_sub_f32 v36, v36, v48
v_sub_f32 v38, v38, v48
v_exp_f32 v32, v32
v_exp_f32 v34, v34
v_exp_f32 v36, v36
v_exp_f32 v38, v38
v_mov_b32 v49, v10
v_mov_b32 v51, v10
v_mul_f32 v50, v32, v33
v_fmac_f32 v50, v34, v35
v_fmac_f32 v50, v36, v37
v_fmac_f32 v50, v38, v39
v_mov_b32 v53, v10
{"s_lshl_b64 exec, 1, s29" if t2 else "s_mov_b64 exec, 1"}
s_cmp_lg_u32 s26, 0
s_cbranch_scc1 L_st_far
buffer_store_dwordx4 v[48:51], v9, s[52:55], s6 offen
s_mov_b64 exec, -1
""")
    if t2 and prew: a("v_not_b32 v60, v10\nv_not_b32 v61, v10\nbuffer_store_dwordx2 v[60:61], v25, s[52:55], s28 offen offset:128")
    poll("L_sp", [f"buffer_load_dwordx4 v[40:43], v27, s[52:55], s7 offen {h1fl}"], lambda: chk8([41, 43], 80), sl=8)
    a(f"""
s_branch L_st_done
L_st_far:
buffer_store_dwordx4 v[48:51], v9, s[52:55], s6 offen sc1
s_mov_b64 exec, -1
""")
    poll("L_spx", ["buffer_load_dwordx4 v[40:43], v27, s[52:55], s7 offen sc1"], lambda: chk8([41, 43], 80), sl=8)
    a("L_st_done:")
    def ptouch(mode, fl):
        if mode == 8: a(f"s_lshl_b32 s4, s14, 9\ns_add_u32 s4, s4, s7\ns_mov_b64 exec, 0xffffffff\nbuffer_load_dwordx4 v[64:67], v26, s[52:55], s4 offen offset:128 {fl}\ns_mov_b64 exec, -1")
        else:
            for k in range(4): a(f"buffer_load_dwordx4 v[{64+4*k}:{67+4*k}], v26, s[52:55], s7 offen offset:{128+k*1024} {fl}")
    if pretouch and pretouch[0] == "s": ptouch(pretouch[1], pretouch[2])
    a("""
v_max_f32_dpp v44, v40, v40 quad_perm:[1,0,3,2] row_mask:0xf bank_mask:0xf
v_max_f32_dpp v45, v44, v44 quad_perm:[2,3,0,1] row_mask:0xf bank_mask:0xf
v_sub_f32 v40, v40, v45
v_exp_f32 v40, v40
v_mul_f32 v42, v40, v42
v_add_f32_dpp v44, v42, v42 quad_perm:[1,0,3,2] row_mask:0xf bank_mask:0xf
v_add_f32_dpp v45, v44, v44 quad_perm:[2,3,0,1] row_mask:0xf bank_mask:0xf
v_rcp_f32 v45, v45
v_mul_f32 v40, v40, v45
v_mov_b32_dpp v56, v40 quad_perm:[0,0,0,0] row_mask:0xf bank_mask:0xf
v_mov_b32_dpp v57, v40 quad_perm:[1,1,1,1] row_mask:0xf bank_mask:0xf
v_mov_b32_dpp v58, v40 quad_perm:[2,2,2,2] row_mask:0xf bank_mask:0xf
v_mov_b32_dpp v59, v40 quad_perm:[3,3,3,3] row_mask:0xf bank_mask:0xf
L_pre2:
s_setprio """ + str(hp) + """
s_waitcnt vmcnt(0) lgkmcnt(0)
""")
    if wotrig is not None and wotrig >= 0:
        if defer:
            srd(48, 38, 256)
            a(f"""
s_getreg_b32 s4, hwreg(HW_REG_XCC_ID, 0, 3)
s_lshl_b32 s4, s4, 5
v_lshl_add_u32 v92, v6, 2, s4
s_mov_b32 s28, {(0x80 - defer[2]) * 0x01010101}
s_mov_b32 s29, 0x80808080
""")
        if wodl is not None: a(f"""
s_mov_b32 s58, {spin*8}
L_wt:
ds_read2_b32 v[60:61], v9 offset0:{(FLG+28)//4} offset1:{(FLG+48)//4}
s_memrealtime s[76:77]
{f"s_sleep {wosl}" if wosl else ""}
s_waitcnt lgkmcnt(0)
v_readfirstlane_b32 s59, v60
v_readfirstlane_b32 s27, v61
s_sub_u32 s58, s58, 1
s_cbranch_scc1 L_wt_done
s_cmp_ge_u32 s59, {wothr}
s_cbranch_scc1 L_wt_done
s_cmp_eq_u32 s27, 0
s_cbranch_scc1 L_wt
s_sub_u32 s27, s76, s27
s_cmp_lt_i32 s27, 0
s_cbranch_scc1 L_wt
L_wt_done:
""")
        else: lds_wait("L_wt", FLG + 28, wothr, sl=wosl, msk=bool(defer))
        if defer: a(f"s_lshr_b32 s27, s59, 8\ns_cmp_ge_u32 s27, {defer[1]}\ns_cselect_b32 s27, 1, 0\ns_andn2_b32 s27, s27, s26\ns_cbranch_scc1 L_wt_skip")
        if pretouch and pretouch[0] == "b": ptouch(pretouch[1], pretouch[2])
        for t in range(4): wodma(t, 90, 22, 23)
        if pretouch and pretouch[0] == "a": ptouch(pretouch[1], pretouch[2])
        if defer: a("L_wt_skip:")
    stamp(4)
    if not dp: a("s_barrier")
    if wotrig is not None and wotrig < 0:
        for t in range(4): wodma(t, 90, 22, 23)
    if isinstance(dbgt, str): a("s_memrealtime s[92:93]")
    if prof: a("s_waitcnt lgkmcnt(0)")
    if "notail" in dbg:
        stamp(5); stamp(6); a("s_branch L_hend")
    if tailprof: stamp(1); a("s_waitcnt lgkmcnt(0)")
    PKC = """s_waitcnt lgkmcnt(2)
v_mul_f32 v40, v32, v40
v_mul_f32 v41, v32, v41
v_fmac_f32 v40, v34, v42
v_fmac_f32 v41, v34, v43
s_waitcnt lgkmcnt(0)
v_mul_f32 v44, v36, v44
v_mul_f32 v45, v36, v45
v_fmac_f32 v40, v38, v46
v_fmac_f32 v41, v38, v47
v_add_f32 v40, v40, v44
v_add_f32 v41, v41, v45""" if not pkc else """s_waitcnt lgkmcnt(3)
v_pk_mul_f32 v[40:41], v[40:41], v[32:33] op_sel_hi:[1,0]
s_waitcnt lgkmcnt(2)
v_pk_fma_f32 v[40:41], v[42:43], v[34:35], v[40:41] op_sel_hi:[1,0,1]
s_waitcnt lgkmcnt(1)
v_pk_fma_f32 v[40:41], v[44:45], v[36:37], v[40:41] op_sel_hi:[1,0,1]
s_waitcnt lgkmcnt(0)
v_pk_fma_f32 v[40:41], v[46:47], v[38:39], v[40:41] op_sel_hi:[1,0,1]"""
    if t2:
        for w_ in range(4): a(f"ds_read2st64_b32 v[{40+2*w_}:{41+2*w_}], v20 offset0:{8*w_} offset1:{8*w_+4}")
    elif not dp: a("""
ds_read2_b32 v[40:41], v20 offset0:0 offset1:4
ds_read2_b32 v[42:43], v21 offset0:0 offset1:4
ds_read2_b32 v[44:45], v22 offset0:0 offset1:4
ds_read2_b32 v[46:47], v23 offset0:0 offset1:4
""")
    if not dp: a(f"""
{PKC}
s_cmp_lg_u32 s26, 0
v_cvt_pk_bf16_f32 v52, v40, v41
s_cbranch_scc1 L_h1_far
buffer_store_dwordx2 v[52:53], v25, s[52:55], s{28 if t2 else 6} offen offset:128
L_h1_st:
""")
    stamp(5)
    if wotrig is not None:
        if defer: a("s_cmp_lg_u32 s27, 0\ns_cbranch_scc1 L_dfr")
        if h1e:
            a("s_cmp_lg_u32 s26, 0\ns_cbranch_scc1 L_h1e_far")
            for e_ in range(h1e[0]):
                if len(h1e) > 2: a(f"s_waitcnt vmcnt({h1e[2][e_] + 4 * e_})")
                elif e_: a(f"s_sleep {h1e[1]}")
                for k in range(4): a(f"buffer_load_dwordx4 v[{64+4*k}:{67+4*k}], v26, s[52:55], s7 offen offset:{128+k*(512 if t2 else 1024)} {h1fl}")
            a(f"s_waitcnt vmcnt({1 + 4 * h1e[0]})\nL_h1e_done:")
        else: a(f"s_waitcnt vmcnt({0 if dp else 1})")
        if defer: a("L_dfr_done:")
        if dp: stamp(5)
        if "wol" in dbg and "h1it" not in dbg and "h1vm" not in dbg: stamp(3)
        lds_signal(FLG + 20)
        lds_wait("L_wl", FLG + 20, 4)
        if "wol" in dbg: stamp(1)
        if not womid: woread(91)
        if dp and dpw: lds_wait("L_pw", FLG + 40, dpw)
    a("s_cmp_lg_u32 s26, 0\ns_cbranch_scc1 L_h1_farp")
    def h1poll(sfx, fl, pipe):
        full = [f"buffer_load_dwordx4 v[{64+4*k}:{67+4*k}], v26, s[52:55], s7 offen offset:{128+k*(512 if t2 else 1024)} {fl}" for k in range(4)]
        poll("L_h1" + sfx, full, lambda: chk8([65, 67, 69, 71, 73, 75, 77, 79], 80), st=4, pipe=pipe, stag=stag1, mid=(lambda: woread(91)) if (womid and wotrig is not None) else None, pre=bool(h1e) and sfx == "")
    h1poll("", h1fl, pipe1)
    a("L_h1_got:")
    if "h1it" in dbg: a(f"s_sub_u32 s90, {spin}, s58\ns_mov_b32 s91, 0")
    if "h1vm" in dbg: stamp(3); a(f"s_sub_u32 s98, {spin}, s58\ns_mov_b32 s99, 0")
    if hp2 is not None: a(f"s_setprio {hp2}")
    if wotrig is not None: a("s_waitcnt lgkmcnt(0)")
    stamp(6)
    AO = 96; DD = 112
    if h2late: a(f"s_mov_b64 exec, 1\nds_add_rtn_u32 v54, v9, v11 offset:{FLG+24}\ns_mov_b64 exec, -1")
    if t2:
        for k in range(4):
            for g_ in range(2):
                a(f"v_lshlrev_b32 v{160+4*k+2*g_}, 16, v{64+4*k+2*g_}\nv_and_b32 v{161+4*k+2*g_}, 0xffff0000, v{64+4*k+2*g_}")
            for g_ in range(2):
                r_ = 160 + 4 * k + 2 * g_; w_ = 56 + (k & 2); sel = k & 1
                if k == 0: a(f"v_pk_mul_f32 v[{84+2*g_}:{85+2*g_}], v[{r_}:{r_+1}], v[{w_}:{w_+1}] op_sel:[0,{sel}] op_sel_hi:[1,{sel}]")
                else: a(f"v_pk_fma_f32 v[{84+2*g_}:{85+2*g_}], v[{r_}:{r_+1}], v[{w_}:{w_+1}], v[{84+2*g_}:{85+2*g_}] op_sel:[0,{sel},0] op_sel_hi:[1,{sel},1]")
        a("v_cvt_pk_bf16_f32 v88, v84, v85\nv_cvt_pk_bf16_f32 v89, v86, v87")
    def mv(kk, p):
        if t2:
            j_ = 2 * kk + (p >> 1)
            if j_: a(f"v_mov_b32_dpp v{AO+4*kk+p}, v{88+(p&1)} row_ror:{16-j_} row_mask:0xf bank_mask:0xf")
            else: a(f"v_mov_b32 v{AO+4*kk+p}, v{88+(p&1)}")
            return
        src = 64 + 8 * (kk & 1) + 2 * p
        if kk >= 2: a(f"v_mov_b32_dpp v{AO+4*kk+p}, v{src} row_ror:8 row_mask:0xf bank_mask:0xf")
        else: a(f"v_mov_b32 v{AO+4*kk+p}, v{src}")
    for p in range(4): mv(0, p)
    for kk in range(4):
        for nt_ in range(4):
            d = DD + 4 * nt_; b = WB + 16 * nt_ + 4 * kk
            if kk < 3 and nt_ < 2: mv(kk + 1, 2 * nt_); mv(kk + 1, 2 * nt_ + 1)
            a(f"v_mfma_f32_16x16x32_bf16 v[{d}:{d+3}], v[{AO+4*kk}:{AO+4*kk+3}], v[{b}:{b+3}], {'0' if kk == 0 else f'v[{d}:{d+3}]'}")
    GO = 128
    if h2late: a("s_waitcnt lgkmcnt(0)\nv_readfirstlane_b32 s59, v54")
    if t2: pack16(GO, [DD, DD + 4, DD + 8, DD + 12], 10)
    else:
        for t in range(4):
            a(f"v_mul_f32 v{GO+t}, v56, v{DD+4*t}")
            a(f"v_mul_f32 v{GO+4+t}, v58, v{DD+4*t+2}")
        for t in range(4):
            a(f"v_fmac_f32 v{GO+t}, v57, v{DD+4*t+1}")
            a(f"v_fmac_f32 v{GO+4+t}, v59, v{DD+4*t+3}")
        for t in range(4): a(f"v_add_f32 v{GO+t}, v{GO+t}, v{GO+4+t}")
        pack16(GO, [GO, GO + 1, GO + 2, GO + 3], 10)
    if h2late:
        a("s_cmp_eq_u32 s59, 3\ns_cbranch_scc1 L_hl_done")
        lds_wait("L_hl", FLG + 24, 4)
    a(("s_mov_b32 exec_lo, 0xffff\ns_mov_b32 exec_hi, 0xffff" if t2 else "s_mov_b64 exec, 0xffffffff") + f"\nbuffer_store_dwordx4 v[{GO}:{GO+3}], v28, s[52:55], s8 offen sc1")
    if tailprof or "wol" in dbg: stamp(2)
    if h2sync and not h2late: lds_signal(FLG + 24)
    a(f"""
s_mov_b64 exec, -1
s_cmp_lg_u32 s3, 0
s_cbranch_scc1 L_hend
""")
    if h2sync and not h2late: lds_wait("L_hw", FLG + 24, 4)
    if h2ack: a("s_waitcnt vmcnt(0)")
    poll("L_h2", h2l, lambda: chk16([136, 140], 56, 12), st=3, pipe=pipe2, stag=stag2, sl=slp2)
    for i in range(8): a(f"v_and_b32 v{48+i}, 0xffffff00, v{136+i}")
    for i in range(4): a(f"v_add_f32 v{48+i}, v{48+i}, v{52+i}")
    a(f"""
v_permlane32_swap_b32 v48, v50
v_permlane32_swap_b32 v49, v51
v_add_f32 v48, v48, v50
v_add_f32 v49, v49, v51
v_permlane16_swap_b32 v48, v49
v_add_f32 v48, v48, v49
v_add_f32_dpp v48, v48, v48 row_ror:4 row_mask:0xf bank_mask:0xf
v_add_f32_dpp v48, v48, v48 row_ror:8 row_mask:0xf bank_mask:0xf
s_mov_b32 exec_lo, 0x000f000f
s_mov_b32 exec_hi, 0x000f000f
v_cvt_pk_bf16_f32 v48, v48, v48
v_lshlrev_b32 v48, 16, v48
v_mul_f32 v48, v48, v16
v_cvt_pk_bf16_f32 v48, v48, v48
v_lshlrev_b32 v48, 16, v48
v_add_f32 v48, v48, v14
v_cvt_pk_bf16_f32 v48, v48, v48
buffer_store_short v48, v30, s[64:67], s10 offen {"sc1" if clean else ""}
s_mov_b64 exec, 1
s_cmp_lg_u32 s2, 0
s_cbranch_scc1 L_hend
v_mov_b32 v10, s42
buffer_store_dword v10, v9, s[52:55], 0 offen sc1
L_hend:
""")
    if "probe" in dbg: a("s_cmp_ge_u32 s3, 2\ns_cbranch_scc1 L_np7")
    if "h1vm" not in dbg: stamp(7)
    if "probe" in dbg: a("L_np7:")
    if endwait or prof or dbgt: a("s_waitcnt vmcnt(0)")
    if "endst" in dbg: stamp(1)
    if isinstance(dbgt, str):
        AMP = 96 << 20
        def red(op, r, steps, t=70):
            for n in steps:
                if n < 16: a(f"{op}_dpp v{r}, v{r}, v{r} row_ror:{n} row_mask:0xf bank_mask:0xf")
                else: a(f"v_mov_b32 v{t}, v{r}\nv_permlane{n}_swap_b32 v{r}, v{t}\n{op} v{r}, v{r}, v{t}")
        a(f"""
s_cmp_lg_u32 s3, 0
s_cbranch_scc1 L_dbgt
s_memrealtime s[88:89]
s_mov_b64 exec, 1
s_waitcnt lgkmcnt(0)
v_mov_b32 v12, s84
v_mov_b32 v13, s92
v_mov_b32 v14, s88
v_mov_b32 v15, s12
s_lshl_b32 s59, s2, 4
s_add_u32 s59, s59, {AMP}
buffer_store_dwordx4 v[12:15], v9, s[52:55], s59 offen sc1
s_waitcnt vmcnt(0)
s_mov_b64 exec, -1
s_cmp_lg_u32 s2, 0
s_cbranch_scc1 L_dbgt
v_lshlrev_b32 v2, 4, v1
s_mov_b32 s6, {AMP}
""")
        poll("L_amp", [f"buffer_load_dwordx4 v[{40+4*k}:{43+4*k}], v2, s[52:55], s6 offen offset:{1024*k} sc1" for k in range(4)], lambda: chk8([43, 47, 51, 55], 80), sl=8)
        for k in range(4):
            for c in range(3): a(f"v_subrev_u32 v{40+4*k+c}, s84, v{40+4*k+c}")
        ALL = [8, 4, 2, 1, 16, 32]
        def stat(op, c, dst, steps=ALL):
            a(f"{op} v{dst}, v{40+c}, v{44+c}\n{op} v71, v{48+c}, v{52+c}\n{op} v{dst}, v{dst}, v71")
            red(op, dst, steps)
        stat("v_min_i32", 0, 60)
        if dbgt == "startmax": stat("v_max_i32", 0, 61)
        if dbgt == "bmin": stat("v_min_i32", 1, 61)
        if dbgt == "bmax": stat("v_max_i32", 1, 61)
        if dbgt == "emax": stat("v_max_i32", 2, 61)
        if dbgt == "bmean": stat("v_add_u32", 1, 61); a("v_ashrrev_i32 v61, 8, v61")
        if dbgt == "xs":
            stat("v_add_u32", 1, 61, [8, 16, 32]); a("v_ashrrev_i32 v61, 5, v61\nv_mov_b32 v60, v61")
            red("v_max_i32", 61, [4, 2, 1]); red("v_min_i32", 60, [4, 2, 1])
        a(f"""
v_sub_u32 v61, v61, v60
s_nop 1
v_readfirstlane_b32 s59, v61
s_mul_i32 s59, s59, 10
s_add_u32 s59, s59, 5000
s_min_u32 s59, s59, 100000
L_dbgs:
s_memrealtime s[90:91]
s_waitcnt lgkmcnt(0)
s_sub_u32 s58, s90, s84
s_cmp_lt_u32 s58, s59
s_cbranch_scc1 L_dbgs
L_dbgt:
""")
    elif dbgt == 2:
        a(f"""
s_or_b32 s59, s2, s3
s_cmp_lg_u32 s59, 0
s_cbranch_scc1 L_dbgt
s_memrealtime s[88:89]
s_waitcnt lgkmcnt(0)
s_sub_u32 s59, s88, s84
s_mul_i32 s59, s59, 10
s_min_u32 s59, s59, 100000
L_dbgs:
s_memrealtime s[90:91]
s_waitcnt lgkmcnt(0)
s_sub_u32 s58, s90, s88
s_cmp_lt_u32 s58, s59
s_cbranch_scc1 L_dbgs
L_dbgt:
""")
    elif dbgt:
        a(f"""
s_memrealtime s[88:89]
s_memtime s[90:91]
s_mov_b32 s44, s38
s_mov_b32 s45, s39
s_mov_b32 s46, 256
s_mov_b32 s47, 0x20000
s_mov_b64 exec, 1
s_waitcnt lgkmcnt(0)
s_not_b32 s59, s84
v_mov_b32 v12, s88
v_mov_b32 v13, s59
buffer_atomic_umax v12, v9, s[44:47], 0 offen sc1
buffer_atomic_umax v13, v9, s[44:47], 0 offen offset:4 sc1
s_cmp_lg_u32 s3, 0
s_cbranch_scc1 L_dbgt
s_and_b32 s59, s2, 0x7f
s_cmp_lg_u32 s59, 0
s_cbranch_scc1 L_dbgt
s_lshr_b32 s59, s2, 3
v_mov_b32 v12, s84
v_mov_b32 v13, s88
v_mov_b32 v14, s86
v_mov_b32 v15, s90
buffer_store_dwordx4 v[12:15], v9, s[44:47], s59 offen offset:16 sc1
L_dbgt:
s_waitcnt vmcnt(0)
""")
    if prof:
        a(f"""
s_mov_b64 exec, 1
s_sleep 127
s_waitcnt lgkmcnt(0)
s_lshl_b32 s59, s2, 3
s_add_u32 s59, s59, s3
s_add_u32 s59, s59, 4
s_lshl_b32 s59, s59, 6
s_add_u32 s59, s59, {STAMP}
""")
        for i in range(0, 8):
            a(f"v_mov_b32 v12, s{84+2*i}\nv_mov_b32 v13, s{85+2*i}\nbuffer_store_dwordx2 v[12:13], v9, s[52:55], s59 offen offset:{8*i}\ns_waitcnt vmcnt(0)")
    a("L_end:\ns_endpgm")
    if not dp: a("""L_h1_far:
buffer_store_dwordx2 v[52:53], v25, s[52:55], s""" + ("28" if t2 else "6") + """ offen offset:128 sc1
s_branch L_h1_st
""")
    if h1e: a("L_h1e_far:\ns_waitcnt vmcnt(1)\ns_branch L_h1e_done")
    a("L_h1_farp:")
    h1poll("x", "sc1", 1)
    a("s_branch L_h1_got")
    if defer:
        a(f"""
L_dfr:
s_movk_i32 s58, 2000
L_dfr_l:
buffer_load_dword v93, v92, s[48:51], 0 offen nt
s_waitcnt vmcnt(0)
v_add_u32 v93, s28, v93
v_and_b32 v93, s29, v93
v_cmp_ne_u32 vcc, s29, v93
s_cbranch_vccz L_dfr_go
s_sub_u32 s58, s58, 1
s_cbranch_scc0 L_dfr_l
L_dfr_go:
""")
        for t in range(4): wodma(t, 90, 22, 23)
        a("s_waitcnt vmcnt(0)\ns_branch L_dfr_done")
    if near:
        assert near["nw"] in (1, 2)
        a(f"""L_meas:
s_cmp_lt_u32 s3, 2
s_cbranch_scc1 L_meas_done
s_and_b32 s4, s3, 1
s_lshl_b32 s4, s4, 13
s_lshl_b32 s5, s2, 7
s_add_u32 s4, s4, s5
s_memtime s[76:77]
s_waitcnt lgkmcnt(0)
s_load_dword s5, s[40:41], s4 offset:{MEAS}
s_waitcnt lgkmcnt(0)
s_memtime s[78:79]
s_lshl_b32 s4, s3, 2
v_mov_b32 v5, s4
s_waitcnt lgkmcnt(0)
s_sub_u32 s78, s78, s76
v_mov_b32 v6, s78
ds_write_b32 v5, v6 offset:{OP - 8}
s_waitcnt lgkmcnt(0)
s_branch L_meas_done
L_mpub:
ds_read_b64 v[94:95], v9 offset:{OP}
s_lshl_b32 s4, s2, 3
s_add_u32 s4, s4, {CWOFF}
s_movk_i32 s5, {near.get("cap", 600)}
s_mov_b64 exec, 1
s_waitcnt lgkmcnt(0)
v_sub_u32 v94, v94, v95
v_min_i32 v94, s5, v94
v_sub_u32 v95, 0, v94
v_min_i32 v95, s5, v95
v_sub_u32 v94, 0, v95
v_mov_b32 v95, s12
buffer_store_dwordx2 v[94:95], v9, s[52:55], s4 offen sc1
s_mov_b64 exec, -1
s_branch L_mpub_done
""")
    a("L_qs_far:\n" + (f"ds_write_b32 v9, v11 offset:{FLG+32}\n" if dp else "") + "buffer_store_dwordx4 v[132:135], v25, s[52:55], s72 offen sc1\ns_branch L_qs_done\nL_gq_far:")
    qpoll("x", "sc1")
    a("s_branch L_gq_got")
    if fc:
        a("L_cb:\ns_waitcnt lgkmcnt(0)\ns_mov_b32 s71, 0")
        for i in range(8): a(f"s_cmp_lg_u32 s{4+i}, s73\ns_addc_u32 s71, s71, 0")
        if not fc.get("wg"):
            a(f"""
s_cmp_lt_u32 s71, {fc['th1']}
s_cselect_b32 s62, 2, 0
s_cmp_ge_u32 s71, {fc['th2']}
s_cselect_b32 s62, 1, s62
""")
            if prof: a("s_lshl_b64 s[82:83], s[82:83], 2\ns_or_b32 s82, s82, s62")
            a("s_setpc_b64 s[80:81]")
        else:
            bias = 16 * fc["CW"]
            TSX = ""; DEC = ""
            if fc.get("dec"):
                DEC = f"s_cmp_eq_u32 s62, 1\ns_cselect_b32 s71, {-fc['dec'][0]}, 0\ns_cmp_eq_u32 s62, 2\ns_cselect_b32 s71, {fc['dec'][1]}, s71\ns_add_u32 s74, s74, s71"
            if fc.get("ts"):
                TSX = "L_cx:\ns_waitcnt lgkmcnt(0)\ns_mov_b32 s71, 0\n"
                for i in range(8): TSX += f"s_sub_u32 s{16+2*i}, s36, s{16+2*i}\ns_cmp_eq_u32 s{17+2*i}, s73\ns_cselect_b32 s{16+2*i}, s{16+2*i}, 0\ns_add_u32 s71, s71, s{16+2*i}\n"
                TSX += f"""s_sub_u32 s32, s36, s32
s_cmp_eq_u32 s33, s73
s_cselect_b32 s32, s32, 0
s_lshl_b32 s32, s32, 3
s_sub_u32 s32, s32, s71
s_mul_i32 s32, s32, {fc['tg']}
s_ashr_i32 s74, s32, 5
s_branch L_cc
"""
            if fc.get("tt"):
                tt = fc["tt"]
                RED = "\n".join(f"v_add_u32_dpp v85, v85, v85 row_ror:{n} row_mask:0xf bank_mask:0xf" for n in (4, 2, 1))
                CW_ = f"""{RED}
v_readfirstlane_b32 s69, v85
s_mul_i32 s69, s69, {round(tt['U'])}
s_lshr_b32 s69, s69, 5
s_sub_u32 s62, s62, s69
"""
                if tt.get("gl"):
                    SUMX = "s_waitcnt lgkmcnt(0)\ns_mov_b32 s71, 0\n"
                    for i in range(8): SUMX += f"s_sub_u32 s{16+2*i}, s36, s{16+2*i}\ns_cmp_eq_u32 s{17+2*i}, s73\ns_cselect_b32 s{16+2*i}, s{16+2*i}, {tt.get('inv', 0)}\ns_add_u32 s71, s71, s{16+2*i}\n"
                    SUMX += "s_ashr_i32 s71, s71, 3\ns_sub_u32 s71, s36, s71\n"
                    TSX = "L_cx:\n" + SUMX
                    if tt["gl"] == 2:
                        TSX = "L_cx:\ns_waitcnt lgkmcnt(0)\ns_add_u32 s62, s62, s70\ns_mov_b32 s71, 0\n"
                        if prof and tt.get("tv"): TSX += "s_lshl_b64 s[82:83], s[82:83], 4\n"
                        for i in range(8):
                            TSX += f"s_sub_u32 s{16+2*i}, s{16+2*i}, s62\ns_cmp_eq_u32 s{17+2*i}, s73\ns_cselect_b32 s{16+2*i}, s{16+2*i}, 0\n"
                            if prof and tt.get("tv"): TSX += "s_addc_u32 s82, s82, 0\n"
                            TSX += f"s_add_u32 s71, s71, s{16+2*i}\n"
                        TSX += f"s_ashr_i32 s71, s71, {3 + tt.get('gsm2', 0)}\ns_add_u32 s70, s70, s71\ns_setpc_b64 s[80:81]\n"
                        SUMX = None
                    if tt.get("gsm"): TSX += f"s_sub_u32 s71, s71, s62\ns_sub_u32 s71, s71, s70\ns_ashr_i32 s71, s71, {tt['gsm']}\ns_add_u32 s70, s70, s71\ns_setpc_b64 s[80:81]\nL_cx0:\n" + SUMX
                    if SUMX: TSX += "s_sub_u32 s70, s71, s62\ns_setpc_b64 s[80:81]\n"
                a(f"""
s_setpc_b64 s[80:81]
{TSX}
L_cw0:
{CW_}
s_sub_u32 s75, s62, {round(tt['U'] * fc['CW'] / 2)}
s_branch L_cc
L_cw:
{CW_}
s_sub_u32 s62, s62, {round(tt['U'] * fc['CW'] / 2)}
""" + (f"s_sub_u32 s62, s62, s75\ns_ashr_i32 s62, s62, {tt['sm']}\ns_add_u32 s75, s75, s62" if tt.get("sm") else "s_mov_b32 s75, s62") + """
L_cc:
""" + ("" if tt.get("gl") else "s_add_u32 s70, s75, s74") + """
s_setpc_b64 s[80:81]
""")
            else: a(f"""
s_mul_i32 s74, s71, {fc.get('kx', 0)}
{"s_lshl_b64 s[82:83], s[82:83], 4" if prof and fc.get("tm") else ""}
{"s_or_b32 s82, s82, s71" if prof and fc.get("tm") else ""}
s_branch L_cc
{TSX}
L_cw:
v_add_u32_dpp v85, v85, v85 row_ror:4 row_mask:0xf bank_mask:0xf
v_add_u32_dpp v85, v85, v85 row_ror:2 row_mask:0xf bank_mask:0xf
v_add_u32_dpp v85, v85, v85 row_ror:1 row_mask:0xf bank_mask:0xf
v_readfirstlane_b32 s69, v85
s_sub_u32 s75, s68, s69
s_sub_u32 s75, s75, {bias}
{DEC}
L_cc:
s_add_u32 s68, s75, s74
s_cmp_lt_i32 s68, {-fc['b']}
s_cselect_b32 s62, 2, 0
s_cmp_gt_i32 s68, {fc['a']}
s_cselect_b32 s62, 1, s62
""")
            if prof and not fc.get("tm") and not fc.get("tt"): a("s_lshl_b64 s[82:83], s[82:83], 2\ns_or_b32 s82, s82, s62")
            if not fc.get("tt"): a("s_setpc_b64 s[80:81]")
    a("L_mlp:")
    for t in range(7): a(f"v_fma_f32 v{U+t}, s4, v{W1+t}, v{B1+t}")
    for t in range(7): a(f"v_mul_f32 v{AA+t}, v{U+t}, v{U+t}")
    for t in range(7): a(f"v_fmaak_f32 v{AA+t}, v{AA+t}, v{C1}, {f32(c0)}")
    for t in range(7): a(f"v_mul_f32 v{AA+t}, v{AA+t}, v{U+t}")
    for t in range(7): a(f"v_exp_f32 v{EE+t}, v{AA+t}")
    for t in range(7): a(f"v_mul_f32 v{U+t}, v{U+t}, v{W2+t}")
    for t in range(7): a(f"v_add_f32 v{EE+t}, 1.0, v{EE+t}")
    for t in range(7): a(f"v_rcp_f32 v{EE+t}, v{EE+t}")
    a(f"v_mul_f32 v{ACC2}, v{U}, v{EE}")
    a(f"v_mul_f32 v{AA}, v{U+1}, v{EE+1}")
    for t in range(2, 7): a(f"v_fmac_f32 v{ACC2 if t % 2 == 0 else AA}, v{U+t}, v{EE+t}")
    a(f"v_add_f32 v{ACC2}, v{ACC2}, v{AA}")
    for n in (8, 4, 2, 1): a(f"v_add_f32_dpp v{ACC2}, v{ACC2}, v{ACC2} row_ror:{n} row_mask:0xf bank_mask:0xf")
    swaps_add(ACC2, AA)
    a(f"""
s_mov_b64 exec, 1
ds_write_b32 v{YA}, v{ACC2} offset:{YP}
s_mov_b64 exec, -1
v_add_u32 v{YA}, 4, v{YA}
s_setpc_b64 s[80:81]
""")
    body = a.render()
    if "allsc1st" in dbg:
        import re
        body = re.sub(r"(buffer_store_dwordx[24] v\[\d+:\d+\], v\d+, s\[52:55\], s(6|72) offen( offset:128)?)\n", r"\1 sc1\n", body)
    if "allsc1ld" in dbg:
        import re
        body = re.sub(r"(buffer_load_dwordx4 v\[\d+:\d+\], v\d+, s\[52:55\], s[67] offen( offset:\d+)?) nt\n", r"\1 sc1\n", body)
    txt = HDR + f"""; @launch grid=(256,1,1) block=(512,1,1) lds={LDSZ}
.amdgcn_target "amdgcn-amd-amdhsa--gfx950"
.text
.globl {KN}_kernel
.p2align 8
.type {KN}_kernel,@function
{KN}_kernel:
""" + body + f""".section .rodata,"a"
.p2align 6
.amdhsa_kernel {KN}_kernel
  .amdhsa_next_free_vgpr 256
  .amdhsa_next_free_sgpr 102
  .amdhsa_accum_offset 256
  .amdhsa_group_segment_fixed_size 0
  .amdhsa_kernarg_size 104
  .amdhsa_user_sgpr_count 2
  .amdhsa_user_sgpr_kernarg_segment_ptr 1
  .amdhsa_system_sgpr_workgroup_id_x 1
.end_amdhsa_kernel
"""
    open(fname, "w").write(txt)
if __name__ == "__main__":
    import glob, os
    for f in glob.glob("kp_*.s"): os.remove(f)
    gen("k1.s", mlp1=4, slp=0)
    kw = dict(prof=True, tailprof=True, mlp1=4, slp=0, rq=1, wolate=[5, 7, 9, 11])
    gen("kp_00.s", **kw)
    F = dict(wg=1, x=1, G=2, kx=24, a=64, b=-16, W=(4,6,12), d=6, C=3, CW=2)
    gen("kp_01.s", fc=F, **kw)
    gen("kp_02_nowork.s", fc=F, dbg="nok nosm nov", **kw)
    gen("kp_03_nosm.s", fc=F, dbg="nosm", **kw)
    gen("kp_04_nowq.s", fc=F, dbg="nowq", **kw)
    gen("kp_05_nowork_nowq.s", fc=F, dbg="nok nosm nov nowq", **kw)
    gen("kp_06_nowork_nowq_nomlp.s", fc=F, dbg="nok nosm nov nowq nomlp", **kw)
    gen("kp_07_nofc_nowork.s", dbg="nok nosm nov", **kw)
    gen("kp_08_nofc_nowork_nowq.s", dbg="nok nosm nov nowq", **kw)
```

```python
import gen
kw = dict(mlp1=2, slp=0, rq=1, wolate=[5, 7, 9, 11], palign=7, near=dict(nw=2), wotrig=203, wosw=1, t2=1, b3=1, wodl=80, wosl=1, h1e=(1,0,[4]))
F = dict(wg=1, x=0, G=2, kx=24, a=64, b=40, W=(4,6,12), d=5, C=3, CW=2, stop=0, tg=4, dl=3)
T6 = [4, 13, 22, 31, 40, 49]
P2 = [(12,-40),(8,-15),(6,15),(5,40),(4,0)]
def g(n, U=28, lv=P2, **kw2): gen.gen(n, fc={**F, "tt": dict(gl=2, notab=1, U=U, lv=lv), "ts": T6}, **{**kw, **kw2})
g("k11a.s"); g("k11b.s", wodl=None, wosl=2); g("k11c.s", U=28.5); g("k11d.s", U=27.5)
g("k11_mixw.s", dbg="mixw"); g("k11_mixj.s", dbg="mixj"); g("k11_clean.s", clean=True)
```

```python
import sys, struct, math
from asmlib import Asm
KN = "recurrent_scan__gqa_block_cached__mixer_token_mlp__decode"
def f32(x): return "0x%08x" % struct.unpack("<I", struct.pack("<f", x))[0]
LOG2E = 1.4426950408889634
FLG = 0; QL = 64; ST = QL + 1024; YP = ST + 128; OP = YP + 256; XN = OP + 4 * 2304; XRS = 1040; WQL = XN + 8 * XRS; KL = WQL + 32768
QOFF = 64 << 10; H1OFF = QOFF + (1 << 20); H1S = 4224; H2OFF = H1OFF + (640 << 10); BD = 4 << 20; PGOFF = 8 << 10; LOCOFF = 32 << 10; STAMP = 128 << 20
HDR = open("cdna_kernels/" + KN + ".s.ref").read().split("; Override launch")[0]

def gen(fname, WIN=6, G=2, RING=40, prof=False, wo_thr=4, ntw="", woflags="", spin=400000, dbg="", WPS=1, dry=False, tailprof=False, NLT=6, slp=2, wqdma=True, sprio=2, bgprio=0, mlp1=8, local=True, fb=31, deferB=True, pretouch=False, pat=None, pat2=None, rot=None, cmap=0, light=False, lslp=0, h1fl='nt', h2sync=True, fc=None, est=None, rq=0, ro=0, sE=True, wolate=None, n0=64, pipe1=1, pipe2=1, stag1=3, stag2=3, h2late=True, h2ack=True, h2pre=False, h2full=False, slp2=0, dbgt=False, dirty=0, clean=False, qslp=None, nloc=200, tmap=(14, 16, None), wotrig=None, wothr=2, wosl=2, womid=True, palign=0, defer=None, h2off=None, tlbw=False, near=None, endwait=False, lastopt=True, pkc=True, warm='', hdel=0, wqdel=0, dp=False, dpt='c3', dpf=4, dpw=0, dpc=6, dpfl="nt", dpp=0, hp=3, hp2=None, h1e=None, wosw=False, t2=False, prew=True, b3=False, wodl=None, t3=False, h1m=0, h2fl='sc1', h2e=False, h2sf='sc1', qprew=False):
    if t3: t2 = True; h2late = False; h2sync = False; assert womid and wotrig is not None
    if t2: assert not dp and lastopt and wosw and not h2full and pkc and not defer
    if dp: assert fc and tmap[2] is None and wotrig is not None and wotrig >= 200
    H2OFF = (576 << 10) if h2off is None else h2off
    MEAS = 48 << 10; CWOFF = 16 << 10
    a = Asm()
    LDSZ = KL + 4 * NLT * 4096
    NLL = 4 * NLT
    NST = 8
    def stamp(i):
        if prof: a(f"s_memrealtime s[{84+2*i}:{85+2*i}]")
    stamp(0)
    if dbgt: a("s_memrealtime s[84:85]\ns_memtime s[86:87]")
    a(f"""
s_load_dwordx2 s[44:45], s[0:1], 8
s_load_dwordx2 s[48:49], s[0:1], 16
v_lshrrev_b32 v2, 6, v0
s_cmp_ge_u32 s2, 256
v_and_b32 v1, 63, v0
v_readfirstlane_b32 s3, v2
s_cbranch_scc1 L_end
s_cmp_ge_u32 s3, 4
s_cbranch_scc1 L_helper
""")
    a(f"""
s_setprio {sprio}
s_mov_b32 s46, 0x4000000
s_mov_b32 s47, 0x20000
s_and_b32 s52, s2, 7
s_lshl_b32 s52, s52, 20
s_lshr_b32 s53, s2, 5
s_lshl_b32 s53, s53, 23
s_or_b32 s52, s52, s53
s_bfe_u32 s53, s2, 0x20003
s_lshl_b32 s53, s53, {tmap[0]}
s_or_b32 s52, s52, s53
s_lshl_b32 s53, s3, 12
s_or_b32 s52, s52, s53
s_mul_i32 s60, s3, {NLT*4096}
s_add_u32 s60, s60, {KL}
v_lshrrev_b32 v5, 4, v1
v_bfe_u32 v6, v1, 2, 2
v_and_b32 v7, 3, v1
v_lshlrev_b32 v2, 8, v6
v_lshl_add_u32 v2, v5, 6, v2
v_lshl_add_u32 v2, v7, 4, v2
""")
    if tmap[2]: a(f"s_and_b32 s53, s2, 7\ns_lshl_b32 s53, s53, {tmap[2]}\ns_xor_b32 s52, s52, s53")
    def late_setup():
        a(f"""
s_load_dwordx2 s[38:39], s[0:1], 88
s_load_dwordx2 s[40:41], s[0:1], 96
s_mov_b32 s50, 0x4000000
s_mov_b32 s51, 0x20000
v_lshlrev_b32 v3, 4, v1
""")
        if fc: a(f"""
s_lshr_b32 s64, s2, 3
s_cmp_eq_u32 s3, 0
s_cselect_b32 s64, s64, 64
s_and_b32 s65, s2, 7
s_lshl_b32 s63, s65, 3
s_lshl_b32 s65, s65, {3 if fc.get("ts") else 2}
v_mov_b32 v83, s65
s_mov_b32 s62, {fc.get('l0', 0)}
s_mov_b64 s[82:83], 0
s_getreg_b32 s66, hwreg(HW_REG_XCC_ID, 0, 3)
s_lshl_b32 s66, s66, 5
s_lshr_b32 s67, s2, 3
s_add_u32 s67, s67, s66
v_mov_b32 v88, s67
v_and_b32 v87, 7, v1
v_lshl_add_u32 v87, v87, 2, s66
s_mov_b32 s74, 0
s_mov_b32 s75, 0
s_cmp_eq_u32 s3, 0
s_cselect_b64 vcc, 1, 0
s_waitcnt lgkmcnt(0)
s_load_dword s73, s[40:41], 0
s_mov_b32 s76, s40
s_mov_b32 s77, s41
s_mov_b32 s78, 0x10000000
s_mov_b32 s79, 0x20000
s_mov_b32 s12, s38
s_mov_b32 s13, s39
s_mov_b32 s14, 256
s_mov_b32 s15, 0x20000
""")
    RB = 256 - RING * 4
    def rreg(n): return RB + ((n - NLL) % RING) * 4
    NL = 128
    st = {"tile": None}
    def issue(n):
        isv = n >= 64; t = (n & 63) >> 2; q = n & 3
        if st["tile"] != (isv, t):
            st["tile"] = (isv, t)
            if tmap: a(f"s_xor_b32 s53, s52, {t << tmap[1]}")
            elif rot is None: a(f"s_add_u32 s53, s52, {t*16384}")
            else: a(f"s_add_u32 s53, s61, {t*16384}\ns_and_b32 s53, s53, 0x3ffff\ns_add_u32 s53, s53, s52")
            if n < NLL: a(f"s_add_u32 m0, s60, {t*4096}\ns_nop 0")
            if n == 0:
                if palign: a(f".p2align {palign}")
                a("s_waitcnt lgkmcnt(0)")
                if st.get("ks"): stamp(7)
        if n < NLL:
            a(f"buffer_load_dwordx4 v2, s[44:47], s53 offen offset:{q*1024} nt lds"); return
        r = rreg(n)
        a(f"buffer_load_dwordx4 v[{r}:{r+3}], {'v3' if isv else 'v2'}, {'s[48:51]' if isv else 's[44:47]'}, s53 offen offset:{q*1024} nt")
    TSR = 6
    QB = 8; Y = 12; ACC = 28; DT = 28; TT = 44; PT = 60; PA = 76; M = 80
    def setup_consts():
        a(f"""
s_mov_b32 s54, 0x05040100
s_mov_b32 s55, 0x07060302
s_mov_b32 s56, {f32(128**-0.5)}
s_mov_b32 s57, {f32(LOG2E)}
v_lshlrev_b32 v4, 8, v7
v_lshl_add_u32 v4, v5, 6, v4
v_lshl_add_u32 v4, v6, 4, v4
v_mov_b32 v84, 0
v_add_u32 v86, s60, v3
""")
    def wait_q():
        stamp(1)
        if "noq" in dbg:
            a(f"ds_read_b128 v[{QB}:{QB+3}], v4 offset:{QL}\ns_waitcnt lgkmcnt(0)"); stamp(2); return
        a(f"""
s_mov_b32 s58, {spin*8}
L_sq:
ds_read_b32 v85, v84 offset:{FLG+4}
s_waitcnt lgkmcnt(0)
v_readfirstlane_b32 s59, v85
s_sub_u32 s58, s58, 1
s_cbranch_scc1 L_sq_done
s_cmp_ge_u32 s59, 4
s_cbranch_scc1 L_sq_done
s_sleep 1
s_branch L_sq
L_sq_done:
ds_read_b128 v[{QB}:{QB+3}], v4 offset:{QL}
{f"ds_read_b32 v85, v84 offset:{FLG+32}" if dp else ""}
s_waitcnt lgkmcnt(0)
{"v_readfirstlane_b32 s42, v85" if dp else ""}
""")
        stamp(2)
        if prof: a("s_waitcnt lgkmcnt(0)")
    def ktile(t):
        if t < NLT:
            for q in range(4): a(f"ds_read_b128 v[{PT+4*q}:{PT+4*q+3}], v86 offset:{t*4096+q*1024}")
        for q in range(4):
            r = rreg(4 * t + q) if t >= NLT else PT + 4 * q
            if t < NLT: a(f"s_waitcnt lgkmcnt({3-q})")
            a(f"v_mfma_f32_16x16x32_bf16 v[{DT+4*q}:{DT+4*q+3}], v[{r}:{r+3}], v[{QB}:{QB+3}], 0")
        for c in range(4):
            for r in range(4):
                n = 4 * ((c - r) % 4)
                ctl = f"row_ror:{n}" if n else "quad_perm:[0,1,2,3]"
                a(f"v_mov_b32_dpp v{TT+r}, v{DT+4*c+r} {ctl} row_mask:0xf bank_mask:{hex(1<<c)}")
        y = Y + t
        a(f"""
v_add_f32 v{TT}, v{TT}, v{TT+1}
v_add_f32 v{TT+2}, v{TT+2}, v{TT+3}
v_add_f32 v{y}, v{TT}, v{TT+2}
v_cvt_pk_bf16_f32 v{y}, v{y}, v{y}
v_lshlrev_b32 v{y}, 16, v{y}
v_mul_f32 v{y}, s56, v{y}
v_cvt_pk_bf16_f32 v{y}, v{y}, v{y}
v_lshlrev_b32 v{y}, 16, v{y}
""")
    def xlane(op, r, t):
        a(f"""
{op}_dpp v{r}, v{r}, v{r} row_ror:4 row_mask:0xf bank_mask:0xf
""") if op != "v_add_f32" else a(f"""
v_add_f32_dpp v{r}, v{r}, v{r} row_ror:4 row_mask:0xf bank_mask:0xf
""")
        a(f"""
{op}_dpp v{r}, v{r}, v{r} row_ror:8 row_mask:0xf bank_mask:0xf
v_mov_b32 v{t}, v{r}
v_permlane16_swap_b32 v{r}, v{t}
{op} v{r}, v{r}, v{t}
v_mov_b32 v{t}, v{r}
v_permlane32_swap_b32 v{r}, v{t}
{op} v{r}, v{r}, v{t}
""")
    def softmax():
        m = M; l = M + 1; t = M + 2
        a(f"v_max3_f32 v{m}, v{Y}, v{Y+1}, v{Y+2}")
        for i in range(3, 15, 2): a(f"v_max3_f32 v{m}, v{m}, v{Y+i}, v{Y+i+1}")
        a(f"v_max_f32 v{m}, v{m}, v{Y+15}")
        xlane("v_max_f32", m, t)
        a(f"v_mul_f32 v{m}, s57, v{m}")
        for i in range(16): a(f"v_fma_f32 v{Y+i}, v{Y+i}, s57, -v{m}")
        for i in range(16): a(f"v_exp_f32 v{Y+i}, v{Y+i}")
        a(f"v_add_f32 v{l}, v{Y}, v{Y+1}")
        a(f"v_add_f32 v{t}, v{Y+2}, v{Y+3}")
        for i in range(4, 16, 2):
            a(f"v_add_f32 v{l}, v{l}, v{Y+i}")
            a(f"v_add_f32 v{t}, v{t}, v{Y+i+1}")
        a(f"v_add_f32 v{l}, v{l}, v{t}")
        for v in range(8): a(f"v_cvt_pk_bf16_f32 v{Y+v}, v{Y+2*v}, v{Y+2*v+1}")
        if t2:
            for i in range(16): a(f"v_mov_b32 v{PA4+i}, 0")
        xlane("v_add_f32", l, t)
        a(f"""
s_lshl_b32 s59, s3, 5
v_lshl_add_u32 v{t}, v1, 3, s59
s_mov_b64 exec, 15
ds_write_b64 v{t}, v[{m}:{m+1}] offset:{ST}
s_mov_b64 exec, 1
v_mov_b32 v{t}, 1
ds_add_u32 v84, v{t} offset:{FLG+16}
s_mov_b64 exec, -1
""")
    PA4 = 36
    def mkpa(v):
        if t2:
            for c in range(4):
                for p in range(4):
                    n = 4 * ((c - p) % 4)
                    a(f"v_mov_b32_dpp v{PA4+4*c+p}, v{Y+v} {f'row_ror:{n}' if n else 'quad_perm:[0,1,2,3]'} row_mask:0xf bank_mask:{hex(1<<c)}")
            return
        a(f"v_mov_b32 v{PA}, v{Y+v}")
        for p in (1, 2, 3):
            a(f"v_mov_b32_dpp v{PA+p}, v{Y+v} row_ror:{4*((0-p)%4)} row_mask:0xf bank_mask:0xf")
    def vchunk(v):
        mkpa(v)
        for half in range(2):
            for jj in range(4 * half, 4 * half + 4):
                o = PT + 4 * (jj & 3)
                for p in range(4):
                    lo = rreg(64 + 8 * v + p) + (jj >> 1); hi = rreg(64 + 8 * v + 4 + p) + (jj >> 1)
                    a(f"v_perm_b32 v{o+p}, v{hi}, v{lo}, {'s55' if jj & 1 else 's54'}")
            for jj in range(4 * half, 4 * half + 4):
                o = PT + 4 * (jj & 3); d = ACC + 4 * jj
                pa = PA
                if t2: d = ACC + 4 * half; pa = PA4 + 4 * (jj & 3)
                c = "0" if (v == 0 and (not t2 or jj & 3 == 0)) else f"v[{d}:{d+3}]"
                a(f"v_mfma_f32_16x16x32_bf16 v[{d}:{d+3}], v[{pa}:{pa+3}], v[{o}:{o+3}], {c}")
    def s_wait(lbl, off, cnt):
        a(f"""
s_mov_b32 s58, {spin*8}
{lbl}:
ds_read_b32 v85, v84 offset:{off}
s_waitcnt lgkmcnt(0)
v_readfirstlane_b32 s59, v85
s_sub_u32 s58, s58, 1
s_cbranch_scc1 {lbl}_done
s_cmp_lt_u32 s59, {cnt}
s_cbranch_scc1 {lbl}
{lbl}_done:
""")
    def s_sig(off): a(f"s_mov_b64 exec, 1\nv_mov_b32 v82, 1\nds_add_u32 v84, v82 offset:{off}\ns_mov_b64 exec, -1")
    AQ = [20, 24, 12, PA]
    def fitem(v0):
        T_ = PT
        s_wait("L_d1", FLG + 16, 4)
        a(f"""
v_and_b32 v4, 3, v1
v_lshlrev_b32 v4, 3, v4
ds_read_b32 v{T_}, v4 offset:{ST}
ds_read_b32 v{T_+1}, v4 offset:{ST+32}
ds_read_b32 v{T_+2}, v4 offset:{ST+64}
ds_read_b32 v{T_+3}, v4 offset:{ST+96}
v_lshlrev_b32 v4, 1, v4
v_lshrrev_b32 v10, 4, v1
v_lshl_add_u32 v4, v10, 6, v4
v_bfe_u32 v11, v1, 2, 2
v_lshl_add_u32 v4, v11, 2, v4
s_lshl_b32 s59, s3, 8
v_add_u32 v4, s59, v4
s_waitcnt lgkmcnt(0)
v_max3_f32 v{T_}, v{T_}, v{T_+1}, v{T_+2}
v_max_f32 v{T_}, v{T_}, v{T_+3}
v_sub_f32 v{T_}, v{M}, v{T_}
v_exp_f32 v{T_}, v{T_}
""")
        for v in range(v0, 8): a(f"v_lshlrev_b32 v{T_+8+2*(v-v0)}, 16, v{Y+v}\nv_and_b32 v{T_+9+2*(v-v0)}, 0xffff0000, v{Y+v}")
        for i in range(4): a(f"v_mov_b32_dpp v{T_+4+i}, v{T_} quad_perm:[{i},{i},{i},{i}] row_mask:0xf bank_mask:0xf")
        for v in range(v0, 8): a(f"v_pk_mul_f32 v[{T_+8+2*(v-v0)}:{T_+9+2*(v-v0)}], v[{T_+8+2*(v-v0)}:{T_+9+2*(v-v0)}], v[{T_}:{T_+1}] op_sel_hi:[1,0]")
        for v in range(v0, 8): a(f"v_cvt_pk_bf16_f32 v{Y+v}, v{T_+8+2*(v-v0)}, v{T_+9+2*(v-v0)}")
        a(f"ds_write_b32 v4, v{Y+7} offset:{QL}")
        s_sig(FLG + 44)
        for jj in range(8):
            d_ = ACC + 4 * jj
            a(f"v_pk_mul_f32 v[{d_}:{d_+1}], v[{d_}:{d_+1}], v[{T_+4}:{T_+5}]\nv_pk_mul_f32 v[{d_+2}:{d_+3}], v[{d_+2}:{d_+3}], v[{T_+6}:{T_+7}]")
        a(f"""
v_lshlrev_b32 v9, 6, v10
v_lshl_add_u32 v9, v11, 4, v9
s_lshl_b32 s59, s3, 2
v_add_u32 v4, s59, v11
v_mul_u32_u24 v4, 144, v4
v_lshl_add_u32 v4, v10, 2, v4
v_and_b32 v8, 3, v1
v_lshl_add_u32 v4, v8, 5, v4
v_mul_u32_u24 v10, {4*H1S}, v10
v_lshl_add_u32 v10, v11, 8, v10
v_bfe_u32 v8, v1, 1, 1
v_lshl_add_u32 v10, v8, 10, v10
v_and_b32 v8, 1, v1
v_lshl_add_u32 v10, v8, 3, v10
v_mov_b32 v11, v9
s_and_b32 s43, s2, 7
s_lshl_b32 s43, s43, 4
s_lshr_b32 s59, s2, 6
s_add_u32 s43, s43, s59
s_mul_i32 s43, s43, {H1S}
s_bfe_u32 s59, s2, 0x30003
s_lshl_b32 s59, s59, 4
s_add_u32 s43, s43, s59
s_lshr_b32 s59, s3, 1
s_lshl_b32 s59, s59, 7
s_add_u32 s43, s43, s59
s_and_b32 s59, s3, 1
s_lshl_b32 s59, s59, 11
s_add_u32 s43, s43, s59
s_add_u32 s43, s43, {H1OFF + 128}
s_mul_i32 s72, s73, 0x01010101
v_mov_b32 v9, s72
s_mul_i32 s59, s3, 2304
v_mul_u32_u24 v8, 144, v1
v_add_u32 v8, s59, v8
""")
    work = [("K", t, 4 * t + 3) for t in list(range(NLT, 16)) + list(range(NLT))] + [("S", 0, 63)] + [("V", v, 64 + 8 * v + 7) for v in range(8)]
    if dp: work.insert(17 + dpf, ("F", dpf, 0))
    consumed = NLL - 1
    wi = 0
    def do_work():
        nonlocal wi, consumed
        k, i, last = work[wi]
        if k == "K":
            if wi == 0: wait_q()
            if "nok" not in dbg: ktile(i)
            consumed = max(consumed, last)
        elif k == "S":
            if "nosm" in dbg: a(f"s_mov_b64 exec, 1\nv_mov_b32 v82, 1\nds_add_u32 v84, v82 offset:{FLG+16}\ns_mov_b64 exec, -1")
            else: softmax()
            stamp(3)
        elif k == "F": fitem(i)
        else:
            if "nov" not in dbg: vchunk(i)
            consumed = last
        wi += 1
    def ztouch():
        a(f"s_lshl_b32 s4, s2, 2\ns_add_u32 s4, s4, s3\ns_lshl_b32 s4, s4, 9\ns_add_u32 s4, s4, {H2OFF}")
        for i in range(512 // h2pre[1]): a(f"s_load_dword s{16 + i}, s[40:41], s4 offset:{i * h2pre[1]}")
    issued = 0
    ops = []
    def iss(n):
        if dp == 1 and n >= 120:
            i = n - 120; u = i >> 1
            if n == 120: a(f"s_andn2_b32 s70, s52, 0x3000\nv_lshrrev_b32 v2, 4, v1\nv_lshlrev_b32 v2, 8, v2\nv_and_b32 v85, 15, v1\nv_lshl_add_u32 v2, v85, 2, v2\ns_lshl_b32 s59, s3, 6\nv_add_u32 v2, s59, v2")
            if i & 1 == 0: a(f"s_xor_b32 s53, s70, {(14 << tmap[1]) | (u << 12)}\ns_xor_b32 s61, s70, {(15 << tmap[1]) | (u << 12)}")
            for p in (2 * (i & 1), 2 * (i & 1) + 1):
                for hi in range(2):
                    a(f"buffer_load_dword v{rreg(120) + 8*u + 2*p + hi}, v2, s[48:51], s{61 if hi else 53} offen offset:{p*1024} {dpfl}")
                    ops.append(("L", n) if (p & 1 and hi) else ("s", n))
            return
        issue(n); ops.append(("L", n))
    def vm_for(X):
        li = [i for i, o in enumerate(ops) if o[0] == "L"]
        if len(li) <= X: return None
        p = li[len(li) - X - 1]
        return len(ops) - 1 - p, p
    if pat is None: pat = [(WIN, G)]
    if fc: pat = [(fc.get("w0", fc["W"][1]), fc["G"])]
    if est == [-1, -1]: stamp(5); st["ks"] = 1
    for n in range(pat[0][0]): iss(n)
    if est == [-1, -1]: stamp(6); est = [None, None]
    issued = pat[0][0]
    late_setup()
    a("s_barrier")
    setup_consts()
    arrived = -1
    step = 0
    done_op = -1; nw = 0; ph = 0; nctl = 0; evalq = []; PAIRS = [88, 92, 94]; tagdone = False
    while issued < NL:
        pp = pat2 if (pat2 is not None and issued >= n0) else pat
        WIN, G = pp[step % len(pp)]; step += 1
        if not fc:
            if issued - (WIN - G) - 1 > arrived: a(f"s_waitcnt vmcnt({WIN-G})")
            arrived = max(arrived, issued - (WIN - G) - 1)
        else:
            Wl, Wm, Wh = fc["W"]
            opened = False
            for n_, W_ in fc.get("open", []):
                if issued >= n_: Wl, Wm, Wh = W_; opened = Wl == Wh
            while issued + G - 1 - RING > consumed and work[wi][2] > max(arrived, issued - (Wh - G) - 1): Wh -= 1; Wm = min(Wm, Wh); Wl = min(Wl, Wh)
            r = vm_for(Wh - G)
            if r and issued - (Wh - G) - 1 > arrived: a(f"s_waitcnt vmcnt({r[0]})"); done_op = max(done_op, r[1]); arrived = max(arrived, issued - (Wh - G) - 1)
            tt = fc.get("tt")
            if tt:
                if not st.get("ev"):
                    r_ = vm_for(min(tt.get("wp", Wm), Wh) - G)
                    if r_: a(f"s_waitcnt vmcnt({r_[0]}) ;nc")
                else:
                    if not st.get("sl"):
                        a(f"s_waitcnt lgkmcnt(0)\ns_add_u32 s68, s70, {round(tt['U'] * (step - 1))}\ns_sub_u32 s68, s68, s{st['cur']}"); st["ok"] |= st["pend"]; st["pend"] = set()
                    lv = tt["lv"]
                    for n_, l_ in tt.get("lv2", []):
                        if issued >= n_: lv = l_
                    pw = Wh
                    for i_ in range(len(lv) - 1):
                        w_ = min(lv[i_ + 1][0], Wh)
                        if w_ >= pw: continue
                        pw = w_
                        a(f"s_cmpk_lt_i32 s68, {lv[i_][1] & 0xffff} ;nc\ns_cbranch_scc1 L_fs{step} ;nc\ns_waitcnt vmcnt({vm_for(w_ - G)[0]}) ;nc")
                    a(f"L_fs{step}:")
                    if prof and tt.get("tr") and step in tt["tr"]: a("s_lshl_b64 s[82:83], s[82:83], 16\ns_and_b32 s69, s68, 0xffff\ns_or_b32 s82, s82, s69")
            elif not opened: a(f"""
s_cmp_eq_u32 s62, 2 ;nc
s_cbranch_scc1 L_fs{step} ;nc
s_waitcnt vmcnt({vm_for(Wm - G)[0]}) ;nc
s_cmp_eq_u32 s62, 0 ;nc
s_cbranch_scc1 L_fs{step} ;nc
s_waitcnt vmcnt({vm_for(Wl - G)[0]}) ;nc
L_fs{step}:
""")
        if est:
            for i_, e_ in enumerate(est):
                if e_ is not None and arrived >= e_: stamp(5 + i_); est[i_] = None
        g = min(G, NL - issued)
        while issued + g - 1 - RING > consumed:
            if work[wi][2] > arrived:
                assert not fc
                a(f"s_waitcnt vmcnt({issued - 1 - work[wi][2]})"); arrived = work[wi][2]
            do_work()
        for n in range(issued, issued + g): iss(n)
        if wotrig is not None and wotrig >= 0 and issued <= wotrig < issued + g:
            a(f"s_mov_b64 exec, 1\nv_mov_b32 v82, 1\nds_add_u32 v84, v82 offset:{FLG+28}\ns_mov_b64 exec, -1")
        if fc:
            d = fc["d"]; k0 = fc.get("k0", 2); last = (NL - fc.get("stop", 8) - fc["W"][1]) // G
            if step == k0:
                a("s_waitcnt lgkmcnt(0)\ns_add_u32 s73, s73, 1\nv_mov_b32 v90, s73")
            if step == fc.get("vw"):
                a("s_mov_b64 exec, vcc\nbuffer_load_dword v91, v84, s[48:51], s52 offen nt\ns_mov_b64 exec, -1"); ops.append(("C", 0))
            if fc.get("wg"):
                tt = fc.get("tt")
                tab = step >= fc.get("kw", 4) and step % fc["CW"] == 0 and step <= last and not opened
                if tt and tt.get("notab"): tab = False
                if tt:
                    st.setdefault("ok", set()); st.setdefault("pend", set())
                    if step >= fc.get("kw", 4):
                        st["cur"] = [6, 8, 10, 34, 42][nw % 5] if tab else 4; assert len(evalq) < 5
                        if tab or not st.get("sl"):
                            a(f"s_memrealtime s[{st['cur']}:{st['cur']+1}]"); st["pend"].add(st["cur"]); st["ok"].discard(st["cur"])
                    if prof and step in tt.get("trt", []): stamp([5, 6, 7][tt["trt"].index(step)])
                for e in [e for e in evalq if e[0] <= done_op]:
                    evalq.remove(e)
                    if tt:
                        if e[2] > tt.get("kstop", 99): continue
                        if e[3] not in st["ok"]:
                            assert not st.get("sl"); a("s_waitcnt lgkmcnt(0)"); st["ok"] |= st["pend"]; st["pend"] = set()
                        a(f"v_sad_u8 v85, v{e[1]}, 0, 0\ns_mov_b32 s62, s{e[3]}\ns_call_b64 s[80:81], {'L_cw' if st.get('ev1') else 'L_cw0'}"); st["ev"] = 1; st["ev1"] = 1
                        if tt.get("gl") and not st.get("gx"): a("s_mov_b32 s70, s75")
                    else: a(f"v_sad_u8 v85, v{e[1]}, 0, 0\ns_movk_i32 s68, {32 * e[2]}\ns_call_b64 s[80:81], L_cw")
                if tab and tt and step > tt.get("kstop", 99):
                    a(f"v_mov_b32 v89, {step}\ns_mov_b64 exec, vcc\nbuffer_store_byte v89, v88, s[12:15], 0 offen\ns_mov_b64 exec, -1"); ops.append(("S", 0))
                elif tab:
                    r_ = [91, 92, 93, 94, 95, 86 if NLT == 0 else 5][nw % 6]; nw += 1; assert len(evalq) < 6
                    a(f"""
v_mov_b32 v89, {step}
s_mov_b64 exec, vcc
buffer_store_byte v89, v88, s[12:15], 0 offen
s_mov_b64 exec, -1
buffer_load_dword v{r_}, v87, s[12:15], 0 offen nt
""")
                    ops.append(("S", 0)); ops.append(("C", 0)); evalq.append((len(ops) - 1, r_, step, st.get("cur")))
            if fc.get("ts"):
                for i_, k_ in enumerate(fc["ts"]):
                    if step == k_ - 1 and not fc.get("tt"): a("s_memrealtime s[34:35]")
                    if step == k_:
                        if not fc.get("tt"): a("s_waitcnt lgkmcnt(0)\ns_add_u32 s34, s34, s75\nv_mov_b32 v{TSR}, s34".replace("{TSR}", str(TSR)))
                        elif st.get("ev1"): a(f"s_add_u32 s65, s75, {round(fc['tt']['U'] * step)}\nv_mov_b32 v{TSR}, s65")
                        else:
                            a(f"s_waitcnt lgkmcnt(0)\nv_mov_b32 v{TSR}, s{st['cur']}"); st["ok"] |= st["pend"]; st["pend"] = set()
                            if fc["tt"].get("gl") == 2 and i_ == 0: a(f"s_sub_u32 s70, s{st['cur']}, {round(fc['tt']['U'] * step)}")
                        a(f"""
v_mov_b32 v97, s73
s_movk_i32 s65, {PGOFF + i_ * 256}
s_cmp_eq_u32 s64, {(5 * i_ + 3) % 32}
s_cselect_b64 exec, 1, 0
buffer_store_dwordx2 v[96:97], v83, s[76:79], s65 offen sc1
s_mov_b64 exec, -1
""".replace("v96", f"v{TSR}").replace("v97", f"v{TSR+1}").replace("v[96:97]", f"v[{TSR}:{TSR+1}]"))
                        ops.append(("S", 0))
                    if step == k_ + d:
                        a(f"s_load_dwordx16 s[16:31], s[40:41], {PGOFF + i_ * 256}\ns_load_dwordx2 s[32:33], s[40:41], s63 offset:{PGOFF + i_ * 256}\ns_memrealtime s[36:37]" if fc.get("tt", {}).get("gl") != 2 else f"s_load_dwordx16 s[16:31], s[40:41], {PGOFF + i_ * 256}"); st["sl"] = 1
                    if step == k_ + d + fc.get("dl", 3):
                        if fc.get("tt", {}).get("gl"):
                            a(f"s_movk_i32 s62, {round(fc['tt']['U'] * k_)}\ns_call_b64 s[80:81], {'L_cx' if st.get('gx') or not fc['tt'].get('gsm') else 'L_cx0'}"); st["gx"] = 1; st["ev"] = 1
                        else: a("s_call_b64 s[80:81], L_cx")
                        st["sl"] = 0
                        if wodl is not None and i_ == len(fc["ts"]) - 1:
                            a(f"s_add_u32 s69, s70, {round(fc['tt']['U'] * 61) + wodl}\ns_mov_b64 exec, 1\nv_mov_b32 v82, s69\nds_write_b32 v84, v82 offset:{FLG+48}\ns_mov_b64 exec, -1")
                        if fc.get("tt"):
                            st["ok"] |= st["pend"]; st["pend"] = set()
                            if st["cur"] == 4: a("s_memrealtime s[4:5]"); st["pend"].add(4)
            if k0 <= step <= last - d and fc.get("x", 1):
                a(f"""
s_movk_i32 s65, {PGOFF + step * 256}
s_cmp_eq_u32 s64, {step % 32}
s_cselect_b64 exec, 1, 0
buffer_store_dword v90, v83, s[76:79], s65 offen sc1
s_mov_b64 exec, -1
""")
                ops.append(("S", 0))
            if step >= k0 + d and (step - k0 - d) % fc["C"] == 0:
                if nctl > 0: a("s_call_b64 s[80:81], L_cb"); nctl = 0
                if step <= last and fc.get("x", 1):
                    a(f"s_load_dwordx8 s[4:11], s[40:41], {PGOFF + (step - d) * 256}"); nctl = 1
        issued += g
        for _ in range(WPS):
            if wi < len(work) and work[wi][2] <= arrived and (wi > 0 or issued + G - 1 - RING > consumed):
                do_work()
    if "dpst" in dbg: stamp(5); print("drain work:", work[wi:])
    while wi < len(work):
        need_ = work[wi][2]
        if dp == 1 and wi == len(work) - 1:
            if "dpst" in dbg: stamp(6)
            if dpt == "a": s_sig(FLG + 28)
            a("s_mov_b64 exec, 0xffff")
            for jj in range(8): a(f"ds_write_b128 v8, v[{ACC+4*jj}:{ACC+4*jj+3}] offset:{OP+16*jj}")
            s_sig(FLG + 36)
            s_wait("L_d3", FLG + 44, 4)
            for u in range(4): a(f"ds_read_b128 v[{AQ[u]}:{AQ[u]+3}], v11 offset:{QL+256*u}")
            if dpt == "b": s_sig(FLG + 28)
            R0 = rreg(120)
            def dperm(u, p):
                a(f"v_perm_b32 v{PT+8*(u&1)+p}, v{R0+8*u+2*p+1}, v{R0+8*u+2*p}, s54\nv_perm_b32 v{PT+8*(u&1)+4+p}, v{R0+8*u+2*p+1}, v{R0+8*u+2*p}, s55")
            for i in range(8):
                u = i >> 1
                if i == dpc:
                    s_wait("L_d2", FLG + 36, 4)
                    for u_ in range(4): a(f"ds_read_b32 v{36+2*u_}, v4 offset:{OP+2304*u_}\nds_read_b32 v{37+2*u_}, v4 offset:{OP+2304*u_+16}")
                    if "dpst" in dbg: stamp(7)
                if i == 7: a("s_waitcnt lgkmcnt(0)\nv_pk_add_f32 v[36:37], v[36:37], v[38:39]\nv_pk_add_f32 v[40:41], v[40:41], v[42:43]\nv_pk_add_f32 v[36:37], v[36:37], v[40:41]")
                if i < 7:
                    a(f"s_waitcnt vmcnt({vm_for(7 - i)[0]})")
                    if dpt == f"c{7 - i}": s_sig(FLG + 28)
                    dperm(u, 2 * (i & 1)); dperm(u, 2 * (i & 1) + 1)
                else:
                    a("s_waitcnt vmcnt(2)"); dperm(u, 2); a("s_cmp_lg_u32 s42, 0\ns_waitcnt vmcnt(0)"); dperm(u, 3)
                if i == 1: a("s_waitcnt lgkmcnt(0)")
                if i & 1:
                    for e in range(2): a(f"v_mfma_f32_16x16x32_bf16 v[{28+4*e}:{31+4*e}], v[{AQ[u]}:{AQ[u]+3}], v[{PT+8*(u&1)+4*e}:{PT+8*(u&1)+4*e+3}], {f'v[{28+4*e}:{31+4*e}]' if u else '0'}")
            a("v_add_f32 v28, v28, v36\nv_add_f32 v32, v32, v37")
            assert ops[-1] == ("L", 127)
            a(f"""
v_cvt_pk_bf16_f32 v8, v28, v32
s_cbranch_scc1 L_dp_far
buffer_store_dwordx2 v[8:9], v10, s[76:79], s43 offen
L_dp_done:
""")
            stamp(4)
            if dpw: s_sig(FLG + 40)
            break
        if wi == len(work) - 1 and wotrig is not None and wotrig >= 200:
            a(f"s_waitcnt vmcnt({vm_for(wotrig - 200)[0]})")
            if defer:
                a(f"s_cmp_gt_i32 s75, {defer[0]}\ns_cselect_b32 s59, 0x101, 1\ns_mov_b64 exec, 1\nv_mov_b32 v82, s59\nds_add_u32 v84, v82 offset:{FLG+28}")
                if defer[2] > 60:
                    a("v_mov_b32 v89, 62\ns_mov_b64 exec, vcc\nbuffer_store_byte v89, v88, s[12:15], 0 offen"); ops.append(("S", 0))
                a("s_mov_b64 exec, -1")
            else: a(f"s_mov_b64 exec, 1\nv_mov_b32 v82, 1\nds_add_u32 v84, v82 offset:{FLG+28}\ns_mov_b64 exec, -1")
        if wi == len(work) - 1 and lastopt and "nov" not in dbg:
            v = 7; OB = rreg(112)
            def lp(p, jj): a(f"v_perm_b32 v{OB+4*jj+p}, v{rreg(124+p)+(jj>>1)}, v{rreg(120+p)+(jj>>1)}, {'s55' if jj & 1 else 's54'}")
            def lm(jj): a(f"v_mfma_f32_16x16x32_bf16 v[{ACC+4*jj}:{ACC+4*jj+3}], v[{PA}:{PA+3}], v[{OB+4*jj}:{OB+4*jj+3}], v[{ACC+4*jj}:{ACC+4*jj+3}]")
            def lw(jj): a(f"ds_write_b128 v{8 if dp else 4}, v[{ACC+4*jj}:{ACC+4*jj+3}] offset:{OP+16*jj}")
            if t2:
                def lm(jj): a(f"v_mfma_f32_16x16x32_bf16 v[{ACC+4*(jj>>2)}:{ACC+4*(jj>>2)+3}], v[{PA4+4*(jj&3)}:{PA4+4*(jj&3)+3}], v[{OB+4*jj}:{OB+4*jj+3}], v[{ACC+4*(jj>>2)}:{ACC+4*(jj>>2)+3}]")
                a(f"s_lshl_b32 s59, s3, 11\nv_add_u32 v4, s59, v3")
            elif not dp: a(f"s_mul_i32 s59, s3, 2304\nv_mul_u32_u24 v4, 144, v1\nv_add_u32 v4, s59, v4")
            a("v_mov_b32 v82, 1"); mkpa(v)
            if h2pre and h2pre is not True and h2pre[0] == "y": ztouch()
            for p in range(3):
                a(f"s_waitcnt vmcnt({vm_for(3 - p)[0]})")
                for jj in range(8): lp(p, jj)
            a("s_waitcnt vmcnt(0)")
            if dpp: a(f"s_setprio {dpp}")
            lp(3, 0); lp(3, 1)
            for jj in range(6): lp(3, jj + 2); lm(jj)
            stamp(4)
            if t2:
                lm(6); lm(7)
                a(f"ds_write_b128 v4, v[{ACC}:{ACC+3}] offset:{OP}\nds_write_b128 v4, v[{ACC+4}:{ACC+7}] offset:{OP+1024}")
            else:
                a("s_mov_b64 exec, 0xffff"); lw(0); lm(6); lw(1); lm(7)
                for jj in range(2, 8): lw(jj)
            if dp:
                a(f"""
s_mov_b64 exec, 1
ds_add_u32 v84, v82 offset:{FLG+36}
s_mov_b64 exec, -1
s_mov_b32 s58, {spin*8}
L_d2:
ds_read_b32 v85, v84 offset:{FLG+36}
""")
                for u_ in range(4): a(f"ds_read_b32 v{PT+2*u_}, v4 offset:{OP+2304*u_}\nds_read_b32 v{PT+1+2*u_}, v4 offset:{OP+2304*u_+16}")
                a(f"""
s_waitcnt lgkmcnt(8)
v_readfirstlane_b32 s59, v85
s_sub_u32 s58, s58, 1
s_cbranch_scc1 L_d2_done
s_cmp_lt_u32 s59, 4
s_cbranch_scc1 L_d2
L_d2_done:
s_cmp_lg_u32 s42, 0
s_waitcnt lgkmcnt(4)
v_pk_add_f32 v[{PT}:{PT+1}], v[{PT}:{PT+1}], v[{PT+2}:{PT+3}]
s_waitcnt lgkmcnt(0)
v_pk_add_f32 v[{PT+4}:{PT+5}], v[{PT+4}:{PT+5}], v[{PT+6}:{PT+7}]
v_pk_add_f32 v[{PT}:{PT+1}], v[{PT}:{PT+1}], v[{PT+4}:{PT+5}]
v_cvt_pk_bf16_f32 v8, v{PT}, v{PT+1}
s_cbranch_scc1 L_dp_far
buffer_store_dwordx2 v[8:9], v10, s[76:79], s43 offen
L_dp_done:
""")
                if est: stamp(7)
                if dpw: s_sig(FLG + 40)
            break
        if need_ > arrived:
            r = vm_for(NL - 1 - need_) if fc else (NL - 1 - need_,)
            a(f"s_waitcnt vmcnt({r[0]})"); arrived = need_
        do_work()
    else:
        stamp(4)
        a(f"""
s_mul_i32 s59, s3, 2304
v_mul_u32_u24 v4, 144, v1
v_add_u32 v4, s59, v4
s_mov_b64 exec, 0xffff
""")
        for jj in range(8):
            a(f"ds_write_b128 v4, v[{ACC+4*jj}:{ACC+4*jj+3}] offset:{OP+16*jj}")
    if not dp: a("""
s_mov_b64 exec, -1
s_waitcnt lgkmcnt(0)
s_barrier
""")
    if h2pre and h2pre is not True and h2pre[0] == "z": ztouch()
    if t3 and (prof or dirty): a("s_barrier")
    if dirty:
        a(f"""
s_mov_b32 s44, s40
s_mov_b32 s45, s41
s_mov_b32 s46, 0x10000000
s_mov_b32 s47, 0x20000
s_lshl_b32 s59, s2, 2
s_add_u32 s59, s59, s3
s_mul_i32 s59, s59, {dirty*1024}
s_add_u32 s59, s59, {64 << 20}
s_sleep 64
""")
        for i in range(dirty): a(f"buffer_store_dwordx4 v[28:31], v3, s[44:47], s59 offen\ns_add_u32 s59, s59, 1024")
    if prof:
        a(f"""
s_mov_b32 s44, s40
s_mov_b32 s45, s41
s_mov_b32 s46, 0x10000000
s_mov_b32 s47, 0x20000
s_sleep 127
s_sleep 127
s_sleep 127
s_waitcnt lgkmcnt(0)
s_lshl_b32 s59, s2, 3
s_add_u32 s59, s59, s3
s_lshl_b32 s59, s59, 6
s_add_u32 s59, s59, {STAMP}
v_mov_b32 v4, 0
s_mov_b64 exec, 1
""")
        for i in range(8):
            trt = fc and fc.get("tt", {}).get("trt")
            sr = 82 if (i == 5 and fc and not est and not trt) else 84 + 2 * (i if est or trt else min(i, 4))
            a(f"v_mov_b32 v8, s{sr}\nv_mov_b32 v9, s{sr+1}\nbuffer_store_dwordx2 v[8:9], v4, s[44:47], s59 offen offset:{8*i}\ns_waitcnt vmcnt(0)")
    a("s_endpgm")
    if dp: a("L_dp_far:\nbuffer_store_dwordx2 v[8:9], v10, s[76:79], s43 offen sc1\ns_branch L_dp_done")
    X = 32
    S1 = 12; S2 = 13; T0 = 14; T1 = 15; NM = 16; RS = 18
    W1 = 40; B1 = 47; W2 = 54; HX = 62; U = 66; AA = 73; EE = 80; ACC2 = 87; C1 = 88; YA = 89
    WB = 192
    def srd(base, lo, size): a(f"s_mov_b32 s{base}, s{lo}\ns_mov_b32 s{base+1}, s{lo+1}\ns_mov_b32 s{base+2}, {size}\ns_mov_b32 s{base+3}, 0x20000")
    def bfround(r): a(f"v_cvt_pk_bf16_f32 v{r}, v{r}, v{r}\nv_lshlrev_b32 v{r}, 16, v{r}")
    def stats_finish():
        a(f"""
v_mul_f32 v{S1}, {f32(1/512)}, v{S1}
v_mul_f32 v{S2}, {f32(1/512)}, v{S2}
v_fma_f32 v{S2}, -v{S1}, v{S1}, v{S2}
v_max_f32 v{S2}, 0, v{S2}
""")
        bfround(S1); bfround(S2)
        a(f"v_add_f32 v{S2}, {f32(1e-5)}, v{S2}")
        bfround(S2)
        a(f"v_sqrt_f32 v{S2}, v{S2}")
        bfround(S2)
        a(f"""
v_rcp_f32 v{RS}, v{S2}
v_sub_f32 v{NM}, 0, v{S1}
v_sub_f32 v{NM+1}, 0, v{S1}
v_mov_b32 v{RS+1}, v{RS}
""")
    def swaps_add(r, t):
        a(f"""
v_mov_b32 v{t}, v{r}
v_permlane16_swap_b32 v{r}, v{t}
v_add_f32 v{r}, v{r}, v{t}
v_mov_b32 v{t}, v{r}
v_permlane32_swap_b32 v{r}, v{t}
v_add_f32 v{r}, v{r}, v{t}
""")
    def normalize(src, dst, n, tmp):
        for i0 in range(0, n, 4):
            idx = list(range(i0, min(n, i0 + 4)))
            for i in idx:
                t = tmp + 2 * (i - i0)
                a(f"v_lshlrev_b32 v{t}, 16, v{src+i}\nv_and_b32 v{t+1}, 0xffff0000, v{src+i}")
            for i in idx:
                t = tmp + 2 * (i - i0)
                a(f"v_pk_add_f32 v[{t}:{t+1}], v[{t}:{t+1}], v[{NM}:{NM+1}]")
            for i in idx:
                t = tmp + 2 * (i - i0)
                a(f"v_cvt_pk_bf16_f32 v{t}, v{t}, v{t+1}")
            for i in idx:
                t = tmp + 2 * (i - i0)
                a(f"v_and_b32 v{t+1}, 0xffff0000, v{t}\nv_lshlrev_b32 v{t}, 16, v{t}")
            for i in idx:
                t = tmp + 2 * (i - i0)
                a(f"v_pk_mul_f32 v[{t}:{t+1}], v[{t}:{t+1}], v[{RS}:{RS+1}]")
            for i in idx:
                t = tmp + 2 * (i - i0)
                a(f"v_cvt_pk_bf16_f32 v{dst+i}, v{t}, v{t+1}")
    def lds_wait(lbl, off, cnt, sl=0, msk=False):
        a(f"""
s_mov_b32 s58, {spin*8}
{lbl}:
ds_read_b32 v4, v9 offset:{off}
s_waitcnt lgkmcnt(0)
v_readfirstlane_b32 s59, v4
s_sub_u32 s58, s58, 1
s_cbranch_scc1 {lbl}_done
{"s_and_b32 s27, s59, 255" if msk else ""}
s_cmp_lt_u32 {"s27" if msk else "s59"}, {cnt}
{f"s_sleep {sl}" if sl else ""}
s_cbranch_scc1 {lbl}
{lbl}_done:
""")
    def lds_signal(off):
        a(f"""
s_mov_b64 exec, 1
ds_add_u32 v9, v11 offset:{off}
s_mov_b64 exec, -1
""")
    def orred(ts):
        ts = list(ts)
        while len(ts) > 1:
            if len(ts) >= 3:
                a(f"v_or3_b32 v{ts[0]}, v{ts[0]}, v{ts[1]}, v{ts[2]}"); ts = ts[3:] + [ts[0]]
            else:
                a(f"v_or_b32 v{ts[0]}, v{ts[0]}, v{ts[1]}"); ts = [ts[0]]
        return ts[0]
    def chk8(tags, tmp):
        if b3 and len(tags) % 2 == 0:
            for i in range(len(tags) // 2): a(f"v_bitop3_b32 v{tmp+i}, v{tags[2*i]}, v{tags[2*i+1]}, s12 bitop3:0x7e")
            return orred([tmp + i for i in range(len(tags) // 2)])
        for i, t in enumerate(tags): a(f"v_xor_b32 v{tmp+i}, s12, v{t}")
        return orred([tmp + i for i in range(len(tags))])
    def chk16(bases, tmp, tagreg):
        out = []
        for i, b in enumerate(bases):
            a(f"v_perm_b32 v{tmp+2*i}, v{b+1}, v{b}, s20\nv_perm_b32 v{tmp+2*i+1}, v{b+3}, v{b+2}, s21")
        for i, b in enumerate(bases):
            a(f"v_or_b32 v{tmp+2*i}, v{tmp+2*i}, v{tmp+2*i+1}")
        for i, b in enumerate(bases):
            a(f"v_xor_b32 v{tmp+2*i}, s{tagreg}, v{tmp+2*i}"); out.append(tmp + 2 * i)
        return orred(out)
    def pack16(dst, srcs, tagv):
        for i, r in enumerate(srcs): a(f"v_perm_b32 v{dst+i}, v{r}, v{tagv}, s{16+i}")
    def poll(lbl, loads, chk, fbr=None, post=None, st=None, pipe=1, stag=0, sl=None, mid=None, pre=False):
        if sl is None: sl = slp
        if fbr is not None: a(f"s_mov_b32 s82, s{fbr}\ns_add_u32 s83, s{fbr}, {BD}")
        a(f"s_mov_b32 s58, {spin}")
        for _ in range(pipe - 1):
            for l in loads: a(l)
            if stag: a(f"s_sleep {stag}")
        if mid:
            if not pre:
                for l in loads: a(l)
            mid()
            if "h1vm" in dbg: stamp(4)
            a(f"s_branch {lbl}_chk")
        a(f"{lbl}:")
        if st is not None and (tailprof or (st == 4 and "h1it" in dbg) or (st == 3 and "h2it" in dbg)): stamp(4 if "h2it" in dbg else st)
        for l in loads: a(l)
        if mid: a(f"{lbl}_chk:")
        a(f"s_waitcnt vmcnt({len(loads) * (pipe - 1)})")
        r = chk()
        if post: r = post(r)
        a(f"""
v_cmp_ne_u32 vcc, 0, v{r}
s_sub_u32 s58, s58, 1
s_cbranch_scc1 {lbl}_done
s_and_b64 exec, exec, vcc
s_cbranch_execz {lbl}_done
""")
        if fbr is not None: a(f"s_and_b32 s59, s58, {fb}\ns_cselect_b32 s{fbr}, s82, s83")
        if sl: a(f"s_sleep {sl}")
        a(f"""
s_branch {lbl}
{lbl}_done:
s_mov_b64 exec, -1
""")
    a("""L_helper:
s_load_dwordx16 s[16:31], s[0:1], 0
s_load_dwordx8 s[32:39], s[0:1], 64
s_load_dwordx2 s[40:41], s[0:1], 96
v_and_b32 v3, 15, v0
v_lshlrev_b32 v3, 2, v3
v_mov_b32 v4, 0
ds_write_b32 v3, v4
s_setprio 3
s_sub_u32 s3, s3, 4
s_waitcnt lgkmcnt(0)
""")
    if "probe" in dbg:
        srd(52, 40, 0x10000000)
        pl = "probel" in dbg
        a(f"""
s_cmp_lt_u32 s3, 2
s_cbranch_scc1 L_noprobe
s_and_b32 s4, s3, 1
s_lshl_b32 s4, s4, 13
s_lshl_b32 s5, s2, 14
s_add_u32 s4, s4, s5
s_add_u32 s4, s4, {8 << 20}
s_mov_b64 exec, 1
s_memtime s[76:77]
s_waitcnt lgkmcnt(0)
{"s_load_dword s5, s[40:41], s4 offset:128" if "probew" in dbg else ""}
s_waitcnt lgkmcnt(0)
{"s_memtime s[76:77]" if "probew" in dbg else ""}
s_waitcnt lgkmcnt(0)
{"s_load_dword s5, s[40:41], s4" if "probes" in dbg else "buffer_load_dword v5, v4, s[52:55], s4 offen sc1" if pl else "buffer_store_dword v4, v4, s[52:55], s4 offen sc1"}
s_waitcnt vmcnt(0) lgkmcnt(0)
s_memtime s[78:79]
s_waitcnt lgkmcnt(0)
s_sub_u32 s98, s78, s76
s_mov_b32 s99, 0
s_mov_b64 exec, -1
L_noprobe:
""")
    if near: a(f"s_cmp_lt_u32 s2, {8 * near['nw']}\ns_cbranch_scc1 L_meas\nL_meas_done:")
    if "s" in warm:
        a("""
s_and_b32 s4, s2, 7
s_lshl_b32 s4, s4, 20
s_lshr_b32 s5, s2, 5
s_lshl_b32 s5, s5, 23
s_or_b32 s4, s4, s5
s_load_dword s76, s[20:21], s4
s_and_b32 s4, s2, 4
s_lshl_b32 s4, s4, 19
s_load_dword s77, s[24:25], s4
s_load_dword s78, s[36:37], 0
s_load_dword s79, s[38:39], 0
""")
    if "m" in warm:
        a("""
s_load_dword s76, s[16:17], 0
s_load_dword s77, s[22:23], 0
s_load_dword s78, s[22:23], 0x200000
s_load_dword s79, s[28:29], 0
s_load_dword s76, s[30:31], 0
s_load_dword s77, s[32:33], 0
s_load_dword s78, s[34:35], 0
""".replace("0x200000", "0xffffc"))
    srd(44, 16, 8192); srd(48, 22, 0x400000); srd(52, 40, 0x10000000); srd(56, 24, 0x400000)
    srd(60, 28, 3584); srd(64, 30, 3584); srd(68, 32, 3584)
    a(f"""
v_lshrrev_b32 v5, 4, v1
v_and_b32 v6, 7, v1
v_and_b32 v8, 15, v1
v_lshrrev_b32 v7, 5, v1
v_and_b32 v4, 31, v1
v_lshlrev_b32 v4, 4, v4
v_lshl_add_u32 v2, v7, 10, v4
s_lshl_b32 s6, s3, 11
v_mov_b32 v9, 0
v_mov_b32 v11, 1
v_lshrrev_b32 v20, 3, v1
v_lshlrev_b32 v21, 13, v20
v_lshl_add_u32 v21, v6, 4, v21
v_lshlrev_b32 v22, {12 if t2 else 10}, v20
v_lshl_add_u32 v22, v6, 4, v22
s_and_b32 s15, s2, 7
s_lshr_b32 s14, s2, 3
s_add_u32 s4, s14, {rq}
s_and_b32 s4, s4, 7
s_add_u32 s14, s14, {ro}
s_and_b32 s14, s14, 7
s_lshl_b32 s8, s15, 3
s_add_u32 s8, s8, s4
s_lshr_b32 s9, s2, 6
s_lshl_b32 s4, s9, 2
s_add_u32 s4, s4, s3
s_lshl_b32 s4, s4, 18
s_lshl_b32 s5, s8, 7
s_add_u32 s72, s4, s5
s_lshl_b32 s13, s15, 2
s_add_u32 s13, s13, s9
s_lshl_b32 s4, s13, {7 if t3 else 2}
s_add_u32 s4, s4, s3
s_lshl_b32 s4, s4, {10 if t3 else 15}
s_lshl_b32 s5, s14, 7
s_add_u32 s73, s4, s5
s_lshl_b32 s4, s3, 12
s_add_u32 s74, s4, {WQL}
s_mul_i32 s75, s3, 896
v_lshlrev_b32 v23, 1, v1
s_barrier
""")
    if "nohelp" in dbg: a("s_branch L_pre2")
    if hdel: a(f"s_sleep {hdel}")
    a(f"""
buffer_load_dwordx4 v[{X}:{X+3}], v2, s[44:47], s6 offen
buffer_load_dwordx4 v[{X+4}:{X+7}], v2, s[44:47], s6 offen offset:512
{"s_load_dword s42, s[40:41], 0" if sE else "buffer_load_dword v10, v9, s[52:55], 0 offen sc1"}
""")
    def h2touch():
        stp = h2pre[1]
        if stp == "v":
            a(f"s_lshl_b32 s4, s2, 2\ns_add_u32 s4, s4, s3\ns_lshl_b32 s4, s4, 9\ns_add_u32 s4, s4, {H2OFF}\nv_lshlrev_b32 v94, 3, v1\nbuffer_load_dwordx2 v[94:95], v94, s[52:55], s4 offen {h2pre[2]}")
            return
        a(f"s_lshl_b32 s4, s2, 2\ns_add_u32 s4, s4, s3\ns_lshl_b32 s4, s4, 9\ns_add_u32 s4, s4, {H2OFF}")
        for i in range(512 // stp): a(f"s_load_dword s{96 + (i & 3) if not prof else 27}, s[40:41], s4 offset:{i * stp}")
    if h2pre and h2pre is not True and h2pre[0] == "e": h2touch()
    if "nowq" in dbg: a("s_mov_b32 s50, 0\ns_mov_b32 s58, 0")
    if wqdel: a(f"s_sleep {wqdel}")
    for t in range(4):
        a(f"s_add_u32 m0, s74, {t*1024}\ns_nop 0\nbuffer_load_dwordx4 v21, s[48:51], s72 offen nt lds")
        if t < 3: a(f"s_add_u32 s72, s72, {8*8192}")
    def wodma(t, vr, so, sl):
        if wosw and t & 1: vr = 152
        a(f"s_add_u32 m0, s{sl}, {16384+t*1024}\ns_nop 0\nbuffer_load_dwordx4 v{vr}, {'s[56:59]' if wolate is None else 's[68:71]'}, s{so} offen nt lds")
        if t < 3: a(f"s_add_u32 s{so}, s{so}, {32768 if t3 else 1024 if t2 else 8*1024}")
    if wolate is None:
        for t in range(4): wodma(t, 22, 73, 74)
    else:
        if wosw: a("v_and_b32 v90, 1, v5\nv_lshlrev_b32 v90, 5, v90\nv_xor_b32 v90, v90, v22\nv_xor_b32 v152, 64, v90\ns_mov_b32 s22, s73\ns_mov_b32 s23, s74")
        else: a("v_mov_b32 v90, v22\ns_mov_b32 s22, s73\ns_mov_b32 s23, s74")
    NW = 0 if wolate is None else 4
    for t in range(7):
        a(f"buffer_load_ushort v{W1+t}, v23, s[60:63], s75 offen offset:{128*t}")
        a(f"buffer_load_ushort v{B1+t}, v23, s[64:67], s75 offen offset:{128*t}")
        a(f"buffer_load_ushort v{W2+t}, v23, s[68:71], s75 offen offset:{128*t}")
    srd(60, 34, 2); srd(64, 36, 8192); srd(68, 24, 0 if ('nowq' in dbg or 'nowo2' in dbg) else 0x400000)
    a(f"""
v_and_b32 v30, 3, v1
v_lshlrev_b32 v30, {3 if t3 else 1}, v30
v_lshl_add_u32 v30, v5, {1 if t3 else 5}, v30
""" + ("s_lshl_b32 s10, s2, 5" if t3 else """s_lshr_b32 s10, s2, 2
s_lshl_b32 s10, s10, 7
s_and_b32 s4, s2, 3
s_lshl_b32 s4, s4, 3
s_add_u32 s10, s10, s4""") + f"""
buffer_load_ushort v31, v9, s[60:63], 0 offen
buffer_load_ushort v29, v30, s[44:47], s10 offen
s_mov_b32 s16, 0x07060500
s_mov_b32 s17, 0x07060501
s_mov_b32 s18, 0x07060502
s_mov_b32 s19, 0x07060503
s_mov_b32 s20, 0x0c0c0400
s_mov_b32 s21, 0x04000c0c
s_getreg_b32 s43, hwreg(HW_REG_XCC_ID, 0, 4)
s_lshl_b32 s43, s43, 3
s_add_u32 s43, s43, s15
s_lshl_b32 s43, s43, 7
s_add_u32 s43, s43, {LOCOFF}
s_lshr_b32 s59, s2, 3
s_lshl_b32 s59, s59, 2
s_add_u32 s59, s59, s43
s_mov_b32 s11, 0x3f803f80
v_mov_b32 v{S1}, 0
v_mov_b32 v{S2}, 0
s_waitcnt lgkmcnt(0)
s_add_u32 s42, s42, 1
s_mul_i32 s12, s42, 0x01010101
v_mov_b32 v10, s12
s_cmp_eq_u32 s3, 0
s_cselect_b64 exec, 1, 0
buffer_store_dword v10, v9, s[52:55], s59 offen
s_mov_b64 exec, -1
s_waitcnt vmcnt({32 - NW + (1 if h2pre and h2pre is not True and h2pre[:2] == ('e', 'v') else 0)})
""")
    for i in range(8):
        a(f"v_dot2_f32_bf16 v{S1}, v{X+i}, s11, v{S1}")
        a(f"v_dot2_f32_bf16 v{S2}, v{X+i}, v{X+i}, v{S2}")
    for n in (8, 4, 2, 1):
        a(f"v_add_f32_dpp v{S1}, v{S1}, v{S1} row_ror:{n} row_mask:0xf bank_mask:0xf")
        a(f"v_add_f32_dpp v{S2}, v{S2}, v{S2} row_ror:{n} row_mask:0xf bank_mask:0xf")
    a(f"""
v_mov_b32 v{T0}, v{S1}
v_mov_b32 v{T1}, v{S2}
v_permlane16_swap_b32 v{S1}, v{T0}
v_permlane16_swap_b32 v{S2}, v{T1}
v_add_f32 v{S1}, v{S1}, v{T0}
v_add_f32 v{S2}, v{S2}, v{T1}
""")
    stats_finish()
    normalize(X, X, 8, 20)
    a(f"""
s_mul_i32 s4, s3, {2*XRS}
v_mul_u32_u24 v2, {XRS}, v7
v_add3_u32 v2, v2, v4, s4
ds_write_b128 v2, v[{X}:{X+3}] offset:{XN}
ds_write_b128 v2, v[{X+4}:{X+7}] offset:{XN+512}
v_mul_u32_u24 v2, {XRS}, v6
v_lshl_add_u32 v2, v5, 4, v2
s_lshl_b32 s4, s9, 8
v_add_u32 v2, s4, v2
v_bfe_u32 v3, v1, 2, 2
v_lshl_add_u32 v3, v5, 3, v3
v_lshlrev_b32 v3, 7, v3
v_and_b32 v20, 3, v1
v_lshl_add_u32 v3, v20, 3, v3
s_lshl_b32 s4, s3, 5
v_add_u32 v24, s4, v3
s_waitcnt vmcnt(24) lgkmcnt(0)
""")
    lds_signal(FLG + 8)
    a(f"""
v_and_b32 v27, 31, v1
v_lshlrev_b32 v27, 2, v27
buffer_load_dword v150, v27, s[52:55], s43 offen nt
v_lshlrev_b32 v25, 4, v5
v_lshl_add_u32 v25, v6, 11, v25
s_lshr_b32 s4, s8, 1
s_lshl_b32 s4, s4, 5
s_add_u32 s4, s4, s9
s_lshl_b32 s4, s4, 1
s_and_b32 s5, s8, 1
s_add_u32 s4, s4, s5
s_lshl_b32 s4, s4, 2
s_add_u32 s4, s4, s3
s_lshl_b32 s4, s4, 6
s_add_u32 s72, s4, {QOFF}
s_mov_b32 s26, 0
""")
    if qprew: a("v_not_b32 v132, v10\nv_not_b32 v133, v10\nv_not_b32 v134, v10\nv_not_b32 v135, v10\ns_mov_b32 exec_lo, 0x00ff00ff\ns_mov_b32 exec_hi, 0x00ff00ff\nbuffer_store_dwordx4 v[132:135], v25, s[52:55], s72 offen\ns_mov_b64 exec, -1")
    lds_wait("L_xw", FLG + 8, 4)
    for t in range(4):
        a(f"ds_read_b128 v[{96+4*t}:{99+4*t}], v2 offset:{XN+64*t}")
        for u in range(2): a(f"ds_read_b64_tr_b16 v[{112+4*t+2*u}:{113+4*t+2*u}], v24 offset:{WQL+t*4096+u*512}")
    a("s_waitcnt lgkmcnt(0)")
    stamp(1)
    for t in range(4):
        a(f"v_mfma_f32_16x16x32_bf16 v[128:131], v[{112+4*t}:{115+4*t}], v[{96+4*t}:{99+4*t}], {'0' if t == 0 else 'v[128:131]'}")
    pack16(132, [128, 129, 130, 131], 10)
    if "cutq" in dbg: a("s_branch L_pre2")
    a(f"""
s_movk_i32 s58, {nloc}
L_lc:
s_waitcnt vmcnt(0)
v_cmp_ne_u32 vcc, s12, v150
s_cbranch_vccz L_lc_done
buffer_load_dword v150, v27, s[52:55], s43 offen nt
s_sub_u32 s58, s58, 1
s_cbranch_scc0 L_lc
s_mov_b32 s26, 1
L_lc_done:
{"s_mov_b32 s26, 1" if clean else ""}
{"s_and_b32 s26, s3, 1" if "mixw" in dbg else ""}
{"s_bfe_u32 s26, s2, 0x10003" if "mixj" in dbg else ""}
s_mov_b32 exec_lo, 0x00ff00ff
s_mov_b32 exec_hi, 0x00ff00ff
s_cmp_lg_u32 s26, 0
s_cbranch_scc1 L_qs_far
buffer_store_dwordx4 v[132:135], v25, s[52:55], s72 offen
L_qs_done:
s_mov_b64 exec, -1
""")
    if near: a(f"s_lshl_b32 s4, s3, 8\ns_add_u32 s4, s4, s2\ns_sub_u32 s4, s4, 512\ns_cmp_lt_u32 s4, {8 * near['nw']}\ns_cbranch_scc1 L_mpub\nL_mpub_done:")
    if "cutp" in dbg: a("s_branch L_pre2")
    stamp(2)
    a(f"s_setprio {bgprio}")
    def woread(vr):
        if t3:
            for nt_ in range(4):
                for u in range(2): a(f"ds_read_b64_tr_b16 v[{WB+4*nt_+2*u}:{WB+4*nt_+2*u+1}], v{153+nt_} offset:{WQL+16384+u*512}")
            return
        for nt_ in range(4):
            for kk in range(4):
                for u in range(2):
                    r = WB + 16 * nt_ + 4 * kk + 2 * u
                    if wosw: a(f"ds_read_b64_tr_b16 v[{r}:{r+1}], v{153+nt_} offset:{WQL+16384+kk*4096+u*512}")
                    else: a(f"ds_read_b64_tr_b16 v[{r}:{r+1}], v{vr} offset:{WQL+16384+kk*4096+u*512+nt_*32}")
    if wolate is None: woread(3)
    elif wosw: a("v_bfe_u32 v153, v1, 3, 2\nv_lshl_add_u32 v153, v153, 5, v3\n" + ("s_lshl_b32 s4, s3, 12\nv_add_u32 v153, s4, v153\n" if t3 else "") + "v_xor_b32 v154, 32, v153\nv_xor_b32 v155, 64, v153\nv_xor_b32 v156, 0x60, v153")
    else: a("v_mov_b32 v91, v3")
    a(f"""
s_lshr_b32 s4, s2, 5
s_mul_i32 s4, s4, {XRS}
v_lshl_add_u32 v2, v1, 4, s4
ds_read_b128 v[{HX}:{HX+3}], v2 offset:{XN}
v_mov_b32 v{S1}, 0
v_mov_b32 v{S2}, 0
s_waitcnt lgkmcnt(0)
""")
    for i in range(4):
        a(f"v_dot2_f32_bf16 v{S1}, v{HX+i}, s11, v{S1}")
        a(f"v_dot2_f32_bf16 v{S2}, v{HX+i}, v{HX+i}, v{S2}")
    for n in (8, 4, 2, 1):
        a(f"v_add_f32_dpp v{S1}, v{S1}, v{S1} row_ror:{n} row_mask:0xf bank_mask:0xf")
        a(f"v_add_f32_dpp v{S2}, v{S2}, v{S2} row_ror:{n} row_mask:0xf bank_mask:0xf")
    swaps_add(S1, T0); swaps_add(S2, T1)
    stats_finish()
    normalize(HX, HX, 4, 20)
    if t3:
        a("s_and_b32 s4, s2, 31\ns_lshl_b32 s4, s4, 1")
        for i in range(4): a(f"v_readlane_b32 s{72+i}, v{HX+i}, s4")
        a("s_add_u32 s4, s4, 1")
        for i in range(4): a(f"v_readlane_b32 s{76+i}, v{HX+i}, s4")
    else: a(f"""
s_bitcmp1_b32 s2, 0
s_cselect_b64 vcc, -1, 0
s_bfe_u32 s4, s2, 0x30002
s_lshl_b32 s4, s4, 3
s_bfe_u32 s5, s2, 0x10001
s_add_u32 s4, s4, s5
v_cndmask_b32 v{HX}, v{HX}, v{HX+2}, vcc
v_cndmask_b32 v{HX+1}, v{HX+1}, v{HX+3}, vcc
""")
    for i in range(0 if t3 else 4):
        a(f"v_readlane_b32 s{72+2*i}, v{HX}, s4\nv_readlane_b32 s{73+2*i}, v{HX+1}, s4")
        if i < 3: a("s_add_u32 s4, s4, 2")
    a("s_waitcnt vmcnt(2)")
    for i in range(21): a(f"v_lshlrev_b32 v{W1+i}, 16, v{W1+i}")
    c0 = -2 * LOG2E * math.sqrt(2 / math.pi); c1 = c0 * 0.044715
    a(f"""
v_mov_b32 v{C1}, {f32(c1)}
s_lshl_b32 s4, s3, 6
v_mov_b32 v{YA}, s4
""")
    def mlp_steps(lo, hi):
        for d in range(lo, hi):
            if d & 1: a(f"s_and_b32 s4, s{72+(d>>1)}, 0xffff0000")
            else: a(f"s_lshl_b32 s4, s{72+(d>>1)}, 16")
            if "nomlp" not in dbg: a("s_call_b64 s[80:81], L_mlp")
            if wolate is not None and wotrig is None and d in wolate: wodma(wolate.index(d), 90, 22, 23)
    mlp_steps(0, mlp1)
    a(f"""
s_setprio 3
s_lshr_b32 s4, s2, 5
s_lshl_b32 s4, s4, 11
s_lshl_b32 s5, s15, 2
s_add_u32 s5, s5, s3
s_lshl_b32 s5, s5, 14
s_add_u32 s4, s4, s5
s_add_u32 s6, s4, {QOFF}
v_lshlrev_b32 v2, 4, v1
s_cmp_lg_u32 s26, 0
s_cbranch_scc1 L_gq_far
""")
    def qpoll(sfx, fl):
        poll("L_gq" + sfx, [f"buffer_load_dwordx4 v[{96+4*k}:{99+4*k}], v2, s[52:55], s6 offen offset:{1024*k} {fl}" for k in range(2)],
             lambda: chk16([96, 100], 104, 12), sl=qslp)
    qpoll("", "nt")
    a("L_gq_got:")
    for i in range(8): a(f"v_and_b32 v{96+i}, 0xffffff00, v{96+i}")
    for i in range(4): a(f"v_add_f32 v{96+i}, v{96+i}, v{100+i}")
    a(f"""
s_lshl_b32 s4, s3, 8
v_and_b32 v2, 31, v1
v_lshl_add_u32 v2, v2, 3, s4
v_lshl_add_u32 v2, v7, 2, v2
v_permlane32_swap_b32 v96, v98
v_permlane32_swap_b32 v97, v99
v_add_f32 v96, v96, v98
v_add_f32 v97, v97, v99
v_cvt_pk_bf16_f32 v96, v96, v97
ds_write_b32 v2, v96 offset:{QL}
s_waitcnt lgkmcnt(0)
""")
    lds_signal(FLG + 4)
    stamp(3)
    if "cutg" in dbg: a("s_branch L_pre2")
    a(f"s_setprio {bgprio}")
    if h2pre and h2pre is not True and h2pre[0] == "q": h2touch()
    mlp_steps(mlp1, 16)
    a("s_waitcnt vmcnt(0) lgkmcnt(0)")
    lds_signal(FLG + 12)
    a(f"""
v_lshrrev_b32 v2, 2, v1
v_mul_u32_u24 v20, 144, v2
v_and_b32 v3, 3, v1
v_lshl_add_u32 v20, v3, 5, v20
s_lshl_b32 s4, s3, 2
s_add_u32 s4, s4, {OP}
v_add_u32 v20, s4, v20
v_add_u32 v21, 2304, v20
v_add_u32 v22, 4608, v20
v_add_u32 v23, 6912, v20
s_lshl_b32 s4, s3, 3
v_mov_b32 v24, s4
v_lshrrev_b32 v25, 5, v1
v_lshlrev_b32 v25, 7, v25
v_bfe_u32 v2, v1, 4, 1
v_lshl_add_u32 v25, v2, 11, v25
v_bfe_u32 v2, v1, 1, 1
v_lshl_add_u32 v25, v2, 10, v25
v_bfe_u32 v2, v1, 2, 2
v_lshl_add_u32 v25, v2, 8, v25
v_and_b32 v2, 1, v1
v_lshl_add_u32 v25, v2, 3, v25
v_lshlrev_b32 v26, 4, v1
v_and_b32 v2, 1, v5
v_lshl_add_u32 v27, v2, 2, v3
v_lshlrev_b32 v27, 4, v27
v_lshlrev_b32 v28, {6 if h2full else 16}, v2
v_bfe_u32 v2, v1, 2, 2
v_lshl_add_u32 v28, v2, {12 if h2full else 11}, v28
v_lshl_add_u32 v28, v3, 4, v28
v_lshrrev_b32 v19, 2, v1
v_lshlrev_b32 v19, {7 if h2full else 6}, v19
v_lshl_add_u32 v19, v3, 4, v19
s_lshl_b32 s4, s15, 2
s_add_u32 s4, s4, s3
s_lshl_b32 s4, s4, 2
s_add_u32 s4, s4, s9
s_mul_i32 s4, s4, {H1S}
s_bfe_u32 s5, s2, 0x30003
s_lshl_b32 s5, s5, 4
s_add_u32 s4, s4, s5
s_add_u32 s6, s4, {H1OFF}
s_lshl_b32 s4, s13, 2
s_add_u32 s4, s4, s3
s_mul_i32 s4, s4, {H1S}
s_add_u32 s7, s4, {H1OFF}
s_lshl_b32 s4, s3, {5 if h2full else 6}
s_lshl_b32 s5, s14, 2
s_add_u32 s4, s4, s5
s_lshl_b32 s4, s4, {12 if h2full else 11}
s_lshl_b32 s5, s13, {7 if h2full else 6}
s_add_u32 s4, s4, s5
s_add_u32 s8, s4, {H2OFF}
""")
    if t2: a(f"""
v_lshlrev_b32 v20, 4, v8
v_lshl_add_u32 v20, v5, 2, v20
s_lshl_b32 s4, s3, 8
s_add_u32 s4, s4, {OP}
v_add_u32 v20, s4, v20
v_lshlrev_b32 v24, 3, v5
v_mul_u32_u24 v25, {4*H1S}, v5
v_lshl_add_u32 v25, v8, 3, v25
s_lshl_b32 s4, s15, 4
s_add_u32 s4, s4, s9
s_mul_i32 s4, s4, {H1S}
s_bfe_u32 s5, s2, 0x30003
s_lshl_b32 s5, s5, 9
s_add_u32 s4, s4, s5
s_lshl_b32 s5, s3, 7
s_add_u32 s4, s4, s5
s_add_u32 s28, s4, {H1OFF}
v_bfe_u32 v2, v1, 3, 1
v_lshlrev_b32 v26, 11, v2
v_lshl_add_u32 v26, v5, 7, v26
v_lshl_add_u32 v26, v6, 4, v26
v_lshl_add_u32 v27, v2, 2, v3
v_lshlrev_b32 v27, 4, v27
v_lshlrev_b32 v28, 16, v7
v_bfe_u32 v2, v1, 2, 2
v_lshl_add_u32 v28, v2, 11, v28
v_lshl_add_u32 v28, v3, 4, v28
s_lshl_b32 s29, s3, 4
""")
    RBB = WQL
    if t3:
        a(f"""
v_mul_u32_u24 v25, {4*H1S}, v5
v_lshrrev_b32 v2, 1, v8
v_lshl_add_u32 v25, v2, 7, v25
v_and_b32 v2, 1, v1
v_lshl_add_u32 v25, v2, 3, v25
s_lshl_b32 s4, s15, 4
s_add_u32 s4, s4, s3
s_mul_i32 s4, s4, {H1S}
s_bfe_u32 s5, s2, 0x20003
s_lshl_b32 s5, s5, 10
s_add_u32 s4, s4, s5
s_lshr_b32 s5, s2, 5
s_lshl_b32 s5, s5, 4
s_add_u32 s4, s4, s5
s_add_u32 s28, s4, {H1OFF}
v_lshlrev_b32 v26, 4, v1
v_bfe_u32 v2, v1, 3, 2
v_mul_u32_u24 v27, {H1S}, v2
v_lshl_add_u32 v27, v6, 4, v27
s_mul_i32 s30, s13, {4*H1S}
s_add_u32 s30, s30, {H1OFF}
v_lshrrev_b32 v2, 2, v1
v_lshlrev_b32 v28, 16, v2
v_lshl_add_u32 v28, v3, 4, v28
s_lshl_b32 s4, s14, 2
s_add_u32 s4, s4, s3
s_lshl_b32 s4, s4, 11
s_lshl_b32 s5, s13, 6
s_add_u32 s4, s4, s5
s_add_u32 s8, s4, {H2OFF}
v_mul_u32_u24 v21, 320, v5
v_lshl_add_u32 v21, v8, 4, v21
s_mul_i32 s4, s3, 2560
v_add_u32 v21, s4, v21
v_mul_u32_u24 v22, 320, v3
v_and_b32 v2, 7, v2
v_lshl_add_u32 v22, v2, 4, v22
s_lshr_b32 s4, s3, 1
s_mul_i32 s4, s4, 1280
s_and_b32 s5, s3, 1
s_lshl_b32 s5, s5, 7
s_add_u32 s4, s4, s5
v_add_u32 v22, s4, v22
v_lshlrev_b32 v23, 4, v6
""")
        if t3 == 2: a(f"""
v_mul_u32_u24 v25, {4*H1S}, v5
v_lshl_add_u32 v25, v8, 3, v25
s_lshr_b32 s5, s2, 5
s_mul_i32 s5, s5, 112
s_add_u32 s28, s28, s5
v_lshrrev_b32 v23, 3, v1
v_lshlrev_b32 v23, 4, v23
v_lshlrev_b32 v184, 5, v6
v_lshl_add_u32 v184, v5, 3, v184
v_add_u32 v185, 4, v184
s_mov_b32 s32, 0x00ff00ff
s_mov_b32 s33, 0x00ff00ff
""")
        for i in range(8 if t3 == 1 else 0): a(f"v_mov_b32 v{176+i}, 0")
    if not h2full: a("s_lshl_b32 s9, s2, 11")
    else: a("""
s_lshr_b32 s9, s2, 6
s_lshl_b32 s9, s9, 5
s_and_b32 s4, s2, 31
s_add_u32 s9, s9, s4
s_lshl_b32 s9, s9, 12
s_bfe_u32 s4, s2, 0x10005
s_lshl_b32 s4, s4, 6
s_add_u32 s9, s9, s4
""")
    h2l = [f"buffer_load_dwordx4 v[{136+4*k}:{139+4*k}], v19, s[52:55], s9 offen offset:{(2048 if h2full else 1024)*k} {h2fl}" for k in range(2)]
    a(f"""
s_add_u32 s9, s9, {H2OFF}
""")
    if near:
        a(f"s_mov_b32 s5, {CWOFF}\nv_and_b32 v2, {8 * near['nw'] - 1}, v1\nv_lshlrev_b32 v2, 3, v2")
        poll("L_cwp", ["buffer_load_dwordx2 v[94:95], v2, s[52:55], s5 offen sc1"], lambda: chk8([95], 80), sl=4)
        a(f"""
v_sub_u32 v95, 0, v94
v_cmp_gt_u32 vcc, 4, v6
v_cndmask_b32 v94, v95, v94, vcc
v_add_u32_dpp v94, v94, v94 row_ror:8 row_mask:0xf bank_mask:0xf
v_add_u32_dpp v94, v94, v94 row_ror:4 row_mask:0xf bank_mask:0xf
v_add_u32_dpp v94, v94, v94 row_ror:2 row_mask:0xf bank_mask:0xf
v_add_u32_dpp v94, v94, v94 row_ror:1 row_mask:0xf bank_mask:0xf
v_readfirstlane_b32 s4, v94
s_cmp_gt_i32 s4, 0
s_cselect_b32 s4, {0x2000 if not near.get("inv") else 0}, {0x2000 if near.get("inv") else 0}
s_xor_b32 s8, s8, s4
s_xor_b32 s9, s9, s4
""")
    if h2pre and h2pre is not True and h2pre[0] == "m": h2touch()
    if wolate is not None and wotrig is None:
        lds_wait("L_yw", FLG + 12, 4); woread(91)
    a("""
s_cmp_lg_u32 s3, 0
s_cbranch_scc1 L_ready
""")
    if wolate is None or wotrig is not None: lds_wait("L_yw", FLG + 12, 4)
    if h2pre is True:
        for l in h2l: a(l)
    if "o" in warm: a("buffer_load_ushort v94, v30, s[64:67], s10 offen")
    if tlbw: a(f"s_mov_b32 s4, {H2OFF + (1 << 20) - 4096}\nbuffer_load_dword v94, v9, s[52:55], s4 offen")
    a(f"""
{"v_lshl_add_u32 v2, v3, 2, v5" if t3 else "v_lshl_add_u32 v2, v5, 2, v3"}
v_lshlrev_b32 v2, 2, v2
ds_read_b32 v32, v2 offset:{YP}
ds_read_b32 v33, v2 offset:{YP+64}
ds_read_b32 v34, v2 offset:{YP+128}
ds_read_b32 v35, v2 offset:{YP+192}
v_lshlrev_b32 v31, 16, v31
s_waitcnt lgkmcnt(0)
v_add_f32 v32, v32, v33
v_add_f32 v34, v34, v35
v_add_f32 v32, v32, v34
v_cvt_pk_bf16_f32 v32, v32, v32
v_lshlrev_b32 v32, 16, v32
v_add_f32 v32, v32, v31
v_cvt_pk_bf16_f32 v32, v32, v32
v_lshlrev_b32 v32, 16, v32
v_mul_f32 v34, {f32(-LOG2E)}, v32
v_exp_f32 v34, v34
v_add_f32 v34, 1.0, v34
v_rcp_f32 v34, v34
v_mul_f32 v32, v32, v34
v_cvt_pk_bf16_f32 v32, v32, v32
v_lshlrev_b32 v16, 16, v32
v_lshlrev_b32 v14, 16, v29
L_ready:
""")
    if "cuts" in dbg: a("s_branch L_pre2")
    lds_wait("L_sw", FLG + 16, 4, sl=8)
    a(f"""
ds_read_b64 v[32:33], v24 offset:{ST}
ds_read_b64 v[34:35], v24 offset:{ST+32}
ds_read_b64 v[36:37], v24 offset:{ST+64}
ds_read_b64 v[38:39], v24 offset:{ST+96}
s_waitcnt lgkmcnt(0)
v_max3_f32 v48, v32, v34, v36
v_max_f32 v48, v48, v38
v_sub_f32 v32, v32, v48
v_sub_f32 v34, v34, v48
v_sub_f32 v36, v36, v48
v_sub_f32 v38, v38, v48
v_exp_f32 v32, v32
v_exp_f32 v34, v34
v_exp_f32 v36, v36
v_exp_f32 v38, v38
v_mov_b32 v49, v10
v_mov_b32 v51, v10
v_mul_f32 v50, v32, v33
v_fmac_f32 v50, v34, v35
v_fmac_f32 v50, v36, v37
v_fmac_f32 v50, v38, v39
v_mov_b32 v53, v10
{"s_lshl_b64 exec, 1, s29" if t2 else "s_mov_b64 exec, 1"}
s_cmp_lg_u32 s26, 0
s_cbranch_scc1 L_st_far
buffer_store_dwordx4 v[48:51], v9, s[52:55], s6 offen
s_mov_b64 exec, -1
""")
    if t2 and prew: a("v_not_b32 v60, v10\nv_not_b32 v61, v10\nbuffer_store_dwordx2 v[60:61], v25, s[52:55], s28 offen offset:128")
    poll("L_sp", [f"buffer_load_dwordx4 v[40:43], v27, s[52:55], s{30 if t3 else 7} offen {h1fl}"], lambda: chk8([41, 43], 80), sl=8)
    a(f"""
s_branch L_st_done
L_st_far:
buffer_store_dwordx4 v[48:51], v9, s[52:55], s6 offen sc1
s_mov_b64 exec, -1
""")
    poll("L_spx", [f"buffer_load_dwordx4 v[40:43], v27, s[52:55], s{30 if t3 else 7} offen sc1"], lambda: chk8([41, 43], 80), sl=8)
    a("L_st_done:")
    def ptouch(mode, fl):
        if mode == 8: a(f"s_lshl_b32 s4, s14, 9\ns_add_u32 s4, s4, s7\ns_mov_b64 exec, 0xffffffff\nbuffer_load_dwordx4 v[64:67], v26, s[52:55], s4 offen offset:128 {fl}\ns_mov_b64 exec, -1")
        else:
            for k in range(4): a(f"buffer_load_dwordx4 v[{64+4*k}:{67+4*k}], v26, s[52:55], s7 offen offset:{128+k*1024} {fl}")
    if pretouch and pretouch[0] == "s": ptouch(pretouch[1], pretouch[2])
    a("""
v_max_f32_dpp v44, v40, v40 quad_perm:[1,0,3,2] row_mask:0xf bank_mask:0xf
v_max_f32_dpp v45, v44, v44 quad_perm:[2,3,0,1] row_mask:0xf bank_mask:0xf
v_sub_f32 v40, v40, v45
v_exp_f32 v40, v40
v_mul_f32 v42, v40, v42
v_add_f32_dpp v44, v42, v42 quad_perm:[1,0,3,2] row_mask:0xf bank_mask:0xf
v_add_f32_dpp v45, v44, v44 quad_perm:[2,3,0,1] row_mask:0xf bank_mask:0xf
v_rcp_f32 v45, v45
v_mul_f32 v40, v40, v45
v_mov_b32_dpp v56, v40 quad_perm:[0,0,0,0] row_mask:0xf bank_mask:0xf
v_mov_b32_dpp v57, v40 quad_perm:[1,1,1,1] row_mask:0xf bank_mask:0xf
v_mov_b32_dpp v58, v40 quad_perm:[2,2,2,2] row_mask:0xf bank_mask:0xf
v_mov_b32_dpp v59, v40 quad_perm:[3,3,3,3] row_mask:0xf bank_mask:0xf
""" + ("\n".join(f"ds_bpermute_b32 v{56+i}, v23, v{56+i}" for i in range(4)) if t3 else "") + """
L_pre2:
s_setprio """ + str(hp) + """
s_waitcnt vmcnt(0) lgkmcnt(0)
""")
    if wotrig is not None and wotrig >= 0:
        if defer:
            srd(48, 38, 256)
            a(f"""
s_getreg_b32 s4, hwreg(HW_REG_XCC_ID, 0, 3)
s_lshl_b32 s4, s4, 5
v_lshl_add_u32 v92, v6, 2, s4
s_mov_b32 s28, {(0x80 - defer[2]) * 0x01010101}
s_mov_b32 s29, 0x80808080
""")
        if wodl is not None: a(f"""
s_mov_b32 s58, {spin*8}
L_wt:
ds_read2_b32 v[60:61], v9 offset0:{(FLG+28)//4} offset1:{(FLG+48)//4}
s_memrealtime s[76:77]
{f"s_sleep {wosl}" if wosl else ""}
s_waitcnt lgkmcnt(0)
v_readfirstlane_b32 s59, v60
v_readfirstlane_b32 s27, v61
s_sub_u32 s58, s58, 1
s_cbranch_scc1 L_wt_done
s_cmp_ge_u32 s59, {wothr}
s_cbranch_scc1 L_wt_done
s_cmp_eq_u32 s27, 0
s_cbranch_scc1 L_wt
s_sub_u32 s27, s76, s27
s_cmp_lt_i32 s27, 0
s_cbranch_scc1 L_wt
L_wt_done:
""")
        else: lds_wait("L_wt", FLG + 28, wothr, sl=wosl, msk=bool(defer))
        if defer: a(f"s_lshr_b32 s27, s59, 8\ns_cmp_ge_u32 s27, {defer[1]}\ns_cselect_b32 s27, 1, 0\ns_andn2_b32 s27, s27, s26\ns_cbranch_scc1 L_wt_skip")
        if pretouch and pretouch[0] == "b": ptouch(pretouch[1], pretouch[2])
        for t in range(4): wodma(t, 90, 22, 23)
        if pretouch and pretouch[0] == "a": ptouch(pretouch[1], pretouch[2])
        if defer: a("L_wt_skip:")
    stamp(4)
    if not dp: a("s_barrier")
    if wotrig is not None and wotrig < 0:
        for t in range(4): wodma(t, 90, 22, 23)
    if isinstance(dbgt, str): a("s_memrealtime s[92:93]")
    if prof: a("s_waitcnt lgkmcnt(0)")
    if "notail" in dbg:
        stamp(5); stamp(6); a("s_branch L_hend")
    if tailprof: stamp(1); a("s_waitcnt lgkmcnt(0)")
    PKC = """s_waitcnt lgkmcnt(2)
v_mul_f32 v40, v32, v40
v_mul_f32 v41, v32, v41
v_fmac_f32 v40, v34, v42
v_fmac_f32 v41, v34, v43
s_waitcnt lgkmcnt(0)
v_mul_f32 v44, v36, v44
v_mul_f32 v45, v36, v45
v_fmac_f32 v40, v38, v46
v_fmac_f32 v41, v38, v47
v_add_f32 v40, v40, v44
v_add_f32 v41, v41, v45""" if not pkc else """s_waitcnt lgkmcnt(3)
v_pk_mul_f32 v[40:41], v[40:41], v[32:33] op_sel_hi:[1,0]
s_waitcnt lgkmcnt(2)
v_pk_fma_f32 v[40:41], v[42:43], v[34:35], v[40:41] op_sel_hi:[1,0,1]
s_waitcnt lgkmcnt(1)
v_pk_fma_f32 v[40:41], v[44:45], v[36:37], v[40:41] op_sel_hi:[1,0,1]
s_waitcnt lgkmcnt(0)
v_pk_fma_f32 v[40:41], v[46:47], v[38:39], v[40:41] op_sel_hi:[1,0,1]"""
    if t2:
        for w_ in range(4): a(f"ds_read2st64_b32 v[{40+2*w_}:{41+2*w_}], v20 offset0:{8*w_} offset1:{8*w_+4}")
    elif not dp: a("""
ds_read2_b32 v[40:41], v20 offset0:0 offset1:4
ds_read2_b32 v[42:43], v21 offset0:0 offset1:4
ds_read2_b32 v[44:45], v22 offset0:0 offset1:4
ds_read2_b32 v[46:47], v23 offset0:0 offset1:4
""")
    if not dp: a(f"""
{PKC}
s_cmp_lg_u32 s26, 0
v_cvt_pk_bf16_f32 v52, v40, v41
s_cbranch_scc1 L_h1_far
buffer_store_dwordx2 v[52:53], v25, s[52:55], s{28 if t2 else 6} offen offset:128
L_h1_st:
""")
    stamp(5)
    if wotrig is not None:
        if defer: a("s_cmp_lg_u32 s27, 0\ns_cbranch_scc1 L_dfr")
        if h1e:
            a("s_cmp_lg_u32 s26, 0\ns_cbranch_scc1 L_h1e_far")
            for e_ in range(h1e[0]):
                if len(h1e) > 2: a(f"s_waitcnt vmcnt({h1e[2][e_] + 4 * e_})")
                elif e_: a(f"s_sleep {h1e[1]}")
                for k in range(4): a(f"buffer_load_dwordx4 v[{64+4*k}:{67+4*k}], v26, s[52:55], s7 offen offset:{128+k*(512 if t2 and not t3 else 1024)} {h1fl}")
            a(f"s_waitcnt vmcnt({1 + 4 * h1e[0]})\nL_h1e_done:")
        else: a(f"s_waitcnt vmcnt({0 if dp else 1})")
        if defer: a("L_dfr_done:")
        if dp: stamp(5)
        if "wol" in dbg and "h1it" not in dbg and "h1vm" not in dbg: stamp(3)
        if not t3:
            lds_signal(FLG + 20)
            lds_wait("L_wl", FLG + 20, 4)
        if "wol" in dbg: stamp(1)
        if not womid: woread(91)
        if dp and dpw: lds_wait("L_pw", FLG + 40, dpw)
    a("s_cmp_lg_u32 s26, 0\ns_cbranch_scc1 L_h1_farp")
    def h1poll(sfx, fl, pipe):
        full = [f"buffer_load_dwordx4 v[{64+4*k}:{67+4*k}], v26, s[52:55], s7 offen offset:{128+k*(512 if t2 and not t3 else 1024)} {fl}" for k in range(4)]
        if h1m and sfx == "":
            assert h1e
            a(f"s_mov_b32 s58, {spin}"); woread(91)
            a("L_h1_chk:\ns_waitcnt vmcnt(0)" if h1m == 1 else "s_waitcnt vmcnt(0)\nL_h1_chk:")
            for k in range(4): a(f"v_bitop3_b32 v{80+k}, v{65+4*k}, v{67+4*k}, s12 bitop3:0x7e")
            for k in range(4): a(f"v_cmp_ne_u32 s[{72+2*k}:{73+2*k}], 0, v{80+k}")
            a("s_or_b64 vcc, s[72:73], s[74:75]\ns_or_b64 s[82:83], s[76:77], s[78:79]\ns_or_b64 vcc, vcc, s[82:83]\ns_cbranch_scc0 L_h1_got\ns_sub_u32 s58, s58, 1\ns_cbranch_scc1 L_h1_got")
            if "h1it" in dbg: stamp(4)
            for k in range(4): a(f"s_mov_b64 exec, s[{72+2*k}:{73+2*k}]\n" + full[k])
            a("s_mov_b64 exec, -1")
            if slp: a(f"s_sleep {slp}")
            if h1m > 1: a(f"s_waitcnt vmcnt({4 * (h1m - 1)})")
            a("s_branch L_h1_chk")
            return
        poll("L_h1" + sfx, full, lambda: chk8([65, 67, 69, 71, 73, 75, 77, 79], 80), st=4, pipe=pipe, stag=stag1, mid=(lambda: woread(91)) if (womid and wotrig is not None) else None, pre=bool(h1e) and sfx == "")
    h1poll("", h1fl, pipe1)
    a("L_h1_got:")
    if "h1it" in dbg: a(f"s_sub_u32 s90, {spin}, s58\ns_mov_b32 s91, 0")
    if "h1vm" in dbg: stamp(3); a(f"s_sub_u32 s98, {spin}, s58\ns_mov_b32 s99, 0")
    if hp2 is not None: a(f"s_setprio {hp2}")
    if wotrig is not None: a("s_waitcnt lgkmcnt(0)")
    stamp(6)
    AO = 96; DD = 112
    if h2e:
        a("s_cmp_lg_u32 s3, 0\ns_cbranch_scc1 L_h2e")
        for l in h2l: a(l)
        a("L_h2e:")
    if h2late: a(f"s_mov_b64 exec, 1\nds_add_rtn_u32 v54, v9, v11 offset:{FLG+24}\ns_mov_b64 exec, -1")
    if t2:
        for k in range(4):
            for g_ in range(2):
                a(f"v_lshlrev_b32 v{160+4*k+2*g_}, 16, v{64+4*k+2*g_}\nv_and_b32 v{161+4*k+2*g_}, 0xffff0000, v{64+4*k+2*g_}")
            for g_ in range(2):
                r_ = 160 + 4 * k + 2 * g_; w_ = 56 + (k & 2); sel = k & 1
                if k == 0: a(f"v_pk_mul_f32 v[{84+2*g_}:{85+2*g_}], v[{r_}:{r_+1}], v[{w_}:{w_+1}] op_sel:[0,{sel}] op_sel_hi:[1,{sel}]")
                else: a(f"v_pk_fma_f32 v[{84+2*g_}:{85+2*g_}], v[{r_}:{r_+1}], v[{w_}:{w_+1}], v[{84+2*g_}:{85+2*g_}] op_sel:[0,{sel},0] op_sel_hi:[1,{sel},1]")
        a("v_cvt_pk_bf16_f32 v88, v84, v85\nv_cvt_pk_bf16_f32 v89, v86, v87")
    def mv(kk, p):
        if t2:
            j_ = 2 * kk + (p >> 1)
            if j_: a(f"v_mov_b32_dpp v{AO+4*kk+p}, v{88+(p&1)} row_ror:{16-j_} row_mask:0xf bank_mask:0xf")
            else: a(f"v_mov_b32 v{AO+4*kk+p}, v{88+(p&1)}")
            return
        src = 64 + 8 * (kk & 1) + 2 * p
        if kk >= 2: a(f"v_mov_b32_dpp v{AO+4*kk+p}, v{src} row_ror:8 row_mask:0xf bank_mask:0xf")
        else: a(f"v_mov_b32 v{AO+4*kk+p}, v{src}")
    if t3 == 2:
        for p in range(4): a(f"ds_bpermute_b32 v{176+p}, v{184+(p>>1)}, v{88+(p&1)}")
        a("s_waitcnt lgkmcnt(0)")
        for nt_ in (0, 2, 1, 3): a(f"v_mfma_f32_16x16x32_bf16 v[{DD+4*nt_}:{DD+4*nt_+3}], v[{WB+4*nt_}:{WB+4*nt_+3}], v[176:179], 0")
        a(f"""
s_mov_b64 exec, s[32:33]
ds_write_b128 v21, v[{DD}:{DD+3}] offset:{RBB}
ds_write_b128 v21, v[{DD+8}:{DD+11}] offset:{RBB+1280}
s_not_b64 exec, s[32:33]
ds_write_b128 v21, v[{DD+4}:{DD+7}] offset:{RBB}
ds_write_b128 v21, v[{DD+12}:{DD+15}] offset:{RBB+1280}
""")
    if t3 == 1:
        ID = "quad_perm:[0,1,2,3]"
        for p in range(4): a(f"v_mov_b32_dpp v{176+p}, v{88+(p&1)} {'row_ror:8' if p >> 1 else ID} row_mask:0xf bank_mask:0x3")
        for p in range(4): a(f"v_mov_b32_dpp v{180+p}, v{88+(p&1)} {ID if p >> 1 else 'row_ror:8'} row_mask:0xf bank_mask:0xc")
        for h_ in range(2):
            for a_ in range(2):
                d = DD + 4 * a_; w_ = WB + 4 * (2 * a_ + h_)
                a(f"v_mfma_f32_16x16x32_bf16 v[{d}:{d+3}], v[{w_}:{w_+3}], v[{176+4*h_}:{179+4*h_}], {'0' if h_ == 0 else f'v[{d}:{d+3}]'}")
        a(f"""
ds_write_b128 v21, v[{DD}:{DD+3}] offset:{RBB}
ds_write_b128 v21, v[{DD+4}:{DD+7}] offset:{RBB+1280}
""")
    if t3:
        a(f"""
s_mov_b64 exec, 0xffffffff
s_waitcnt lgkmcnt(0)
s_barrier
""")
        for w_ in range(4): a(f"ds_read_b128 v[{96+4*w_}:{99+4*w_}], v22 offset:{RBB+2560*w_}")
        a("""
s_waitcnt lgkmcnt(2)
v_pk_add_f32 v[96:97], v[96:97], v[100:101]
v_pk_add_f32 v[98:99], v[98:99], v[102:103]
s_waitcnt lgkmcnt(0)
v_pk_add_f32 v[104:105], v[104:105], v[108:109]
v_pk_add_f32 v[106:107], v[106:107], v[110:111]
v_pk_add_f32 v[96:97], v[96:97], v[104:105]
v_pk_add_f32 v[98:99], v[98:99], v[106:107]
""")
    for p in range(0 if t3 else 4): mv(0, p)
    for kk in range(0 if t3 else 4):
        for nt_ in range(4):
            d = DD + 4 * nt_; b = WB + 16 * nt_ + 4 * kk
            if kk < 3 and nt_ < 2: mv(kk + 1, 2 * nt_); mv(kk + 1, 2 * nt_ + 1)
            a(f"v_mfma_f32_16x16x32_bf16 v[{d}:{d+3}], v[{AO+4*kk}:{AO+4*kk+3}], v[{b}:{b+3}], {'0' if kk == 0 else f'v[{d}:{d+3}]'}")
    GO = 128
    if h2late: a("s_waitcnt lgkmcnt(0)\nv_readfirstlane_b32 s59, v54")
    if t3: pack16(GO, [96, 97, 98, 99], 10)
    elif t2: pack16(GO, [DD, DD + 4, DD + 8, DD + 12], 10)
    else:
        for t in range(4):
            a(f"v_mul_f32 v{GO+t}, v56, v{DD+4*t}")
            a(f"v_mul_f32 v{GO+4+t}, v58, v{DD+4*t+2}")
        for t in range(4):
            a(f"v_fmac_f32 v{GO+t}, v57, v{DD+4*t+1}")
            a(f"v_fmac_f32 v{GO+4+t}, v59, v{DD+4*t+3}")
        for t in range(4): a(f"v_add_f32 v{GO+t}, v{GO+t}, v{GO+4+t}")
        pack16(GO, [GO, GO + 1, GO + 2, GO + 3], 10)
    if h2late:
        a("s_cmp_eq_u32 s59, 3\ns_cbranch_scc1 L_hl_done")
        lds_wait("L_hl", FLG + 24, 4)
    a(("" if t3 else "s_mov_b32 exec_lo, 0xffff\ns_mov_b32 exec_hi, 0xffff" if t2 else "s_mov_b64 exec, 0xffffffff") + f"\nbuffer_store_dwordx4 v[{GO}:{GO+3}], v28, s[52:55], s8 offen {h2sf}")
    if tailprof or "wol" in dbg: stamp(2)
    if h2sync and not h2late: lds_signal(FLG + 24)
    a(f"""
s_mov_b64 exec, -1
s_cmp_lg_u32 s3, 0
s_cbranch_scc1 L_hend
""")
    if h2sync and not h2late: lds_wait("L_hw", FLG + 24, 4)
    if h2e:
        a("s_waitcnt vmcnt(1)")
        r_ = chk16([136, 140], 56, 12)
        a(f"v_cmp_ne_u32 vcc, 0, v{r_}\ns_mov_b32 s58, {spin}\ns_and_b64 exec, exec, vcc\ns_cbranch_execz L_h2_done")
    if h2ack: a("s_waitcnt vmcnt(0)")
    if "h2it" in dbg: stamp(1)
    poll("L_h2", h2l, lambda: chk16([136, 140], 56, 12), st=3, pipe=pipe2, stag=stag2, sl=slp2)
    if "h2it" in dbg: stamp(5); a(f"s_sub_u32 s90, {spin}, s58\ns_mov_b32 s91, 0")
    for i in range(8): a(f"v_and_b32 v{48+i}, 0xffffff00, v{136+i}")
    for i in range(4): a(f"v_add_f32 v{48+i}, v{48+i}, v{52+i}")
    a(f"""
v_permlane32_swap_b32 v48, v50
v_permlane32_swap_b32 v49, v51
v_add_f32 v48, v48, v50
v_add_f32 v49, v49, v51
v_permlane16_swap_b32 v48, v49
v_add_f32 v48, v48, v49
v_add_f32_dpp v48, v48, v48 row_ror:4 row_mask:0xf bank_mask:0xf
v_add_f32_dpp v48, v48, v48 row_ror:8 row_mask:0xf bank_mask:0xf
s_mov_b32 exec_lo, 0x000f000f
s_mov_b32 exec_hi, 0x000f000f
v_cvt_pk_bf16_f32 v48, v48, v48
v_lshlrev_b32 v48, 16, v48
v_mul_f32 v48, v48, v16
v_cvt_pk_bf16_f32 v48, v48, v48
v_lshlrev_b32 v48, 16, v48
v_add_f32 v48, v48, v14
v_cvt_pk_bf16_f32 v48, v48, v48
buffer_store_short v48, v30, s[64:67], s10 offen {"sc1" if clean else ""}
s_mov_b64 exec, 1
s_cmp_lg_u32 s2, 0
s_cbranch_scc1 L_hend
v_mov_b32 v10, s42
buffer_store_dword v10, v9, s[52:55], 0 offen sc1
L_hend:
""")
    if "probe" in dbg: a("s_cmp_ge_u32 s3, 2\ns_cbranch_scc1 L_np7")
    if "h1vm" not in dbg: stamp(7)
    if "probe" in dbg: a("L_np7:")
    if endwait or prof or dbgt: a("s_waitcnt vmcnt(0)")
    if "endst" in dbg: stamp(1)
    if isinstance(dbgt, str):
        AMP = 96 << 20
        def red(op, r, steps, t=70):
            for n in steps:
                if n < 16: a(f"{op}_dpp v{r}, v{r}, v{r} row_ror:{n} row_mask:0xf bank_mask:0xf")
                else: a(f"v_mov_b32 v{t}, v{r}\nv_permlane{n}_swap_b32 v{r}, v{t}\n{op} v{r}, v{r}, v{t}")
        a(f"""
s_cmp_lg_u32 s3, 0
s_cbranch_scc1 L_dbgt
s_memrealtime s[88:89]
s_mov_b64 exec, 1
s_waitcnt lgkmcnt(0)
v_mov_b32 v12, s84
v_mov_b32 v13, s92
v_mov_b32 v14, s88
v_mov_b32 v15, s12
s_lshl_b32 s59, s2, 4
s_add_u32 s59, s59, {AMP}
buffer_store_dwordx4 v[12:15], v9, s[52:55], s59 offen sc1
s_waitcnt vmcnt(0)
s_mov_b64 exec, -1
s_cmp_lg_u32 s2, 0
s_cbranch_scc1 L_dbgt
v_lshlrev_b32 v2, 4, v1
s_mov_b32 s6, {AMP}
""")
        poll("L_amp", [f"buffer_load_dwordx4 v[{40+4*k}:{43+4*k}], v2, s[52:55], s6 offen offset:{1024*k} sc1" for k in range(4)], lambda: chk8([43, 47, 51, 55], 80), sl=8)
        for k in range(4):
            for c in range(3): a(f"v_subrev_u32 v{40+4*k+c}, s84, v{40+4*k+c}")
        ALL = [8, 4, 2, 1, 16, 32]
        def stat(op, c, dst, steps=ALL):
            a(f"{op} v{dst}, v{40+c}, v{44+c}\n{op} v71, v{48+c}, v{52+c}\n{op} v{dst}, v{dst}, v71")
            red(op, dst, steps)
        stat("v_min_i32", 0, 60)
        if dbgt == "startmax": stat("v_max_i32", 0, 61)
        if dbgt == "bmin": stat("v_min_i32", 1, 61)
        if dbgt == "bmax": stat("v_max_i32", 1, 61)
        if dbgt == "emax": stat("v_max_i32", 2, 61)
        if dbgt == "bmean": stat("v_add_u32", 1, 61); a("v_ashrrev_i32 v61, 8, v61")
        if dbgt == "xs":
            stat("v_add_u32", 1, 61, [8, 16, 32]); a("v_ashrrev_i32 v61, 5, v61\nv_mov_b32 v60, v61")
            red("v_max_i32", 61, [4, 2, 1]); red("v_min_i32", 60, [4, 2, 1])
        a(f"""
v_sub_u32 v61, v61, v60
s_nop 1
v_readfirstlane_b32 s59, v61
s_mul_i32 s59, s59, 10
s_add_u32 s59, s59, 5000
s_min_u32 s59, s59, 100000
L_dbgs:
s_memrealtime s[90:91]
s_waitcnt lgkmcnt(0)
s_sub_u32 s58, s90, s84
s_cmp_lt_u32 s58, s59
s_cbranch_scc1 L_dbgs
L_dbgt:
""")
    elif dbgt == 2:
        a(f"""
s_or_b32 s59, s2, s3
s_cmp_lg_u32 s59, 0
s_cbranch_scc1 L_dbgt
s_memrealtime s[88:89]
s_waitcnt lgkmcnt(0)
s_sub_u32 s59, s88, s84
s_mul_i32 s59, s59, 10
s_min_u32 s59, s59, 100000
L_dbgs:
s_memrealtime s[90:91]
s_waitcnt lgkmcnt(0)
s_sub_u32 s58, s90, s88
s_cmp_lt_u32 s58, s59
s_cbranch_scc1 L_dbgs
L_dbgt:
""")
    elif dbgt:
        a(f"""
s_memrealtime s[88:89]
s_memtime s[90:91]
s_mov_b32 s44, s38
s_mov_b32 s45, s39
s_mov_b32 s46, 256
s_mov_b32 s47, 0x20000
s_mov_b64 exec, 1
s_waitcnt lgkmcnt(0)
s_not_b32 s59, s84
v_mov_b32 v12, s88
v_mov_b32 v13, s59
buffer_atomic_umax v12, v9, s[44:47], 0 offen sc1
buffer_atomic_umax v13, v9, s[44:47], 0 offen offset:4 sc1
s_cmp_lg_u32 s3, 0
s_cbranch_scc1 L_dbgt
s_and_b32 s59, s2, 0x7f
s_cmp_lg_u32 s59, 0
s_cbranch_scc1 L_dbgt
s_lshr_b32 s59, s2, 3
v_mov_b32 v12, s84
v_mov_b32 v13, s88
v_mov_b32 v14, s86
v_mov_b32 v15, s90
buffer_store_dwordx4 v[12:15], v9, s[44:47], s59 offen offset:16 sc1
L_dbgt:
s_waitcnt vmcnt(0)
""")
    if prof:
        a(f"""
s_mov_b64 exec, 1
s_sleep 127
s_waitcnt lgkmcnt(0)
s_lshl_b32 s59, s2, 3
s_add_u32 s59, s59, s3
s_add_u32 s59, s59, 4
s_lshl_b32 s59, s59, 6
s_add_u32 s59, s59, {STAMP}
""")
        for i in range(0, 8):
            a(f"v_mov_b32 v12, s{84+2*i}\nv_mov_b32 v13, s{85+2*i}\nbuffer_store_dwordx2 v[12:13], v9, s[52:55], s59 offen offset:{8*i}\ns_waitcnt vmcnt(0)")
    a("L_end:\ns_endpgm")
    if not dp: a("""L_h1_far:
buffer_store_dwordx2 v[52:53], v25, s[52:55], s""" + ("28" if t2 else "6") + """ offen offset:128 sc1
s_branch L_h1_st
""")
    if h1e: a("L_h1e_far:\ns_waitcnt vmcnt(1)\ns_branch L_h1e_done")
    a("L_h1_farp:")
    h1poll("x", "sc1", 1)
    a("s_branch L_h1_got")
    if defer:
        a(f"""
L_dfr:
s_movk_i32 s58, 2000
L_dfr_l:
buffer_load_dword v93, v92, s[48:51], 0 offen nt
s_waitcnt vmcnt(0)
v_add_u32 v93, s28, v93
v_and_b32 v93, s29, v93
v_cmp_ne_u32 vcc, s29, v93
s_cbranch_vccz L_dfr_go
s_sub_u32 s58, s58, 1
s_cbranch_scc0 L_dfr_l
L_dfr_go:
""")
        for t in range(4): wodma(t, 90, 22, 23)
        a("s_waitcnt vmcnt(0)\ns_branch L_dfr_done")
    if near:
        assert near["nw"] in (1, 2)
        a(f"""L_meas:
s_cmp_lt_u32 s3, 2
s_cbranch_scc1 L_meas_done
s_and_b32 s4, s3, 1
s_lshl_b32 s4, s4, 13
s_lshl_b32 s5, s2, 7
s_add_u32 s4, s4, s5
s_memtime s[76:77]
s_waitcnt lgkmcnt(0)
s_load_dword s5, s[40:41], s4 offset:{MEAS}
s_waitcnt lgkmcnt(0)
s_memtime s[78:79]
s_lshl_b32 s4, s3, 2
v_mov_b32 v5, s4
s_waitcnt lgkmcnt(0)
s_sub_u32 s78, s78, s76
v_mov_b32 v6, s78
ds_write_b32 v5, v6 offset:{OP - 8}
s_waitcnt lgkmcnt(0)
s_branch L_meas_done
L_mpub:
ds_read_b64 v[94:95], v9 offset:{OP}
s_lshl_b32 s4, s2, 3
s_add_u32 s4, s4, {CWOFF}
s_movk_i32 s5, {near.get("cap", 600)}
s_mov_b64 exec, 1
s_waitcnt lgkmcnt(0)
v_sub_u32 v94, v94, v95
v_min_i32 v94, s5, v94
v_sub_u32 v95, 0, v94
v_min_i32 v95, s5, v95
v_sub_u32 v94, 0, v95
v_mov_b32 v95, s12
buffer_store_dwordx2 v[94:95], v9, s[52:55], s4 offen sc1
s_mov_b64 exec, -1
s_branch L_mpub_done
""")
    a("L_qs_far:\n" + (f"ds_write_b32 v9, v11 offset:{FLG+32}\n" if dp else "") + "buffer_store_dwordx4 v[132:135], v25, s[52:55], s72 offen sc1\ns_branch L_qs_done\nL_gq_far:")
    qpoll("x", "sc1")
    a("s_branch L_gq_got")
    if fc:
        a("L_cb:\ns_waitcnt lgkmcnt(0)\ns_mov_b32 s71, 0")
        for i in range(8): a(f"s_cmp_lg_u32 s{4+i}, s73\ns_addc_u32 s71, s71, 0")
        if not fc.get("wg"):
            a(f"""
s_cmp_lt_u32 s71, {fc['th1']}
s_cselect_b32 s62, 2, 0
s_cmp_ge_u32 s71, {fc['th2']}
s_cselect_b32 s62, 1, s62
""")
            if prof: a("s_lshl_b64 s[82:83], s[82:83], 2\ns_or_b32 s82, s82, s62")
            a("s_setpc_b64 s[80:81]")
        else:
            bias = 16 * fc["CW"]
            TSX = ""; DEC = ""
            if fc.get("dec"):
                DEC = f"s_cmp_eq_u32 s62, 1\ns_cselect_b32 s71, {-fc['dec'][0]}, 0\ns_cmp_eq_u32 s62, 2\ns_cselect_b32 s71, {fc['dec'][1]}, s71\ns_add_u32 s74, s74, s71"
            if fc.get("ts"):
                TSX = "L_cx:\ns_waitcnt lgkmcnt(0)\ns_mov_b32 s71, 0\n"
                for i in range(8): TSX += f"s_sub_u32 s{16+2*i}, s36, s{16+2*i}\ns_cmp_eq_u32 s{17+2*i}, s73\ns_cselect_b32 s{16+2*i}, s{16+2*i}, 0\ns_add_u32 s71, s71, s{16+2*i}\n"
                TSX += f"""s_sub_u32 s32, s36, s32
s_cmp_eq_u32 s33, s73
s_cselect_b32 s32, s32, 0
s_lshl_b32 s32, s32, 3
s_sub_u32 s32, s32, s71
s_mul_i32 s32, s32, {fc['tg']}
s_ashr_i32 s74, s32, 5
s_branch L_cc
"""
            if fc.get("tt"):
                tt = fc["tt"]
                RED = "\n".join(f"v_add_u32_dpp v85, v85, v85 row_ror:{n} row_mask:0xf bank_mask:0xf" for n in (4, 2, 1))
                CW_ = f"""{RED}
v_readfirstlane_b32 s69, v85
s_mul_i32 s69, s69, {round(tt['U'])}
s_lshr_b32 s69, s69, 5
s_sub_u32 s62, s62, s69
"""
                if tt.get("gl"):
                    SUMX = "s_waitcnt lgkmcnt(0)\ns_mov_b32 s71, 0\n"
                    for i in range(8): SUMX += f"s_sub_u32 s{16+2*i}, s36, s{16+2*i}\ns_cmp_eq_u32 s{17+2*i}, s73\ns_cselect_b32 s{16+2*i}, s{16+2*i}, {tt.get('inv', 0)}\ns_add_u32 s71, s71, s{16+2*i}\n"
                    SUMX += "s_ashr_i32 s71, s71, 3\ns_sub_u32 s71, s36, s71\n"
                    TSX = "L_cx:\n" + SUMX
                    if tt["gl"] == 2:
                        TSX = "L_cx:\ns_waitcnt lgkmcnt(0)\ns_add_u32 s62, s62, s70\ns_mov_b32 s71, 0\n"
                        if prof and tt.get("tv"): TSX += "s_lshl_b64 s[82:83], s[82:83], 4\n"
                        for i in range(8):
                            TSX += f"s_sub_u32 s{16+2*i}, s{16+2*i}, s62\ns_cmp_eq_u32 s{17+2*i}, s73\ns_cselect_b32 s{16+2*i}, s{16+2*i}, 0\n"
                            if prof and tt.get("tv"): TSX += "s_addc_u32 s82, s82, 0\n"
                            TSX += f"s_add_u32 s71, s71, s{16+2*i}\n"
                        TSX += f"s_ashr_i32 s71, s71, {3 + tt.get('gsm2', 0)}\ns_add_u32 s70, s70, s71\ns_setpc_b64 s[80:81]\n"
                        SUMX = None
                    if tt.get("gsm"): TSX += f"s_sub_u32 s71, s71, s62\ns_sub_u32 s71, s71, s70\ns_ashr_i32 s71, s71, {tt['gsm']}\ns_add_u32 s70, s70, s71\ns_setpc_b64 s[80:81]\nL_cx0:\n" + SUMX
                    if SUMX: TSX += "s_sub_u32 s70, s71, s62\ns_setpc_b64 s[80:81]\n"
                a(f"""
s_setpc_b64 s[80:81]
{TSX}
L_cw0:
{CW_}
s_sub_u32 s75, s62, {round(tt['U'] * fc['CW'] / 2)}
s_branch L_cc
L_cw:
{CW_}
s_sub_u32 s62, s62, {round(tt['U'] * fc['CW'] / 2)}
""" + (f"s_sub_u32 s62, s62, s75\ns_ashr_i32 s62, s62, {tt['sm']}\ns_add_u32 s75, s75, s62" if tt.get("sm") else "s_mov_b32 s75, s62") + """
L_cc:
""" + ("" if tt.get("gl") else "s_add_u32 s70, s75, s74") + """
s_setpc_b64 s[80:81]
""")
            else: a(f"""
s_mul_i32 s74, s71, {fc.get('kx', 0)}
{"s_lshl_b64 s[82:83], s[82:83], 4" if prof and fc.get("tm") else ""}
{"s_or_b32 s82, s82, s71" if prof and fc.get("tm") else ""}
s_branch L_cc
{TSX}
L_cw:
v_add_u32_dpp v85, v85, v85 row_ror:4 row_mask:0xf bank_mask:0xf
v_add_u32_dpp v85, v85, v85 row_ror:2 row_mask:0xf bank_mask:0xf
v_add_u32_dpp v85, v85, v85 row_ror:1 row_mask:0xf bank_mask:0xf
v_readfirstlane_b32 s69, v85
s_sub_u32 s75, s68, s69
s_sub_u32 s75, s75, {bias}
{DEC}
L_cc:
s_add_u32 s68, s75, s74
s_cmp_lt_i32 s68, {-fc['b']}
s_cselect_b32 s62, 2, 0
s_cmp_gt_i32 s68, {fc['a']}
s_cselect_b32 s62, 1, s62
""")
            if prof and not fc.get("tm") and not fc.get("tt"): a("s_lshl_b64 s[82:83], s[82:83], 2\ns_or_b32 s82, s82, s62")
            if not fc.get("tt"): a("s_setpc_b64 s[80:81]")
    a("L_mlp:")
    for t in range(7): a(f"v_fma_f32 v{U+t}, s4, v{W1+t}, v{B1+t}")
    for t in range(7): a(f"v_mul_f32 v{AA+t}, v{U+t}, v{U+t}")
    for t in range(7): a(f"v_fmaak_f32 v{AA+t}, v{AA+t}, v{C1}, {f32(c0)}")
    for t in range(7): a(f"v_mul_f32 v{AA+t}, v{AA+t}, v{U+t}")
    for t in range(7): a(f"v_exp_f32 v{EE+t}, v{AA+t}")
    for t in range(7): a(f"v_mul_f32 v{U+t}, v{U+t}, v{W2+t}")
    for t in range(7): a(f"v_add_f32 v{EE+t}, 1.0, v{EE+t}")
    for t in range(7): a(f"v_rcp_f32 v{EE+t}, v{EE+t}")
    a(f"v_mul_f32 v{ACC2}, v{U}, v{EE}")
    a(f"v_mul_f32 v{AA}, v{U+1}, v{EE+1}")
    for t in range(2, 7): a(f"v_fmac_f32 v{ACC2 if t % 2 == 0 else AA}, v{U+t}, v{EE+t}")
    a(f"v_add_f32 v{ACC2}, v{ACC2}, v{AA}")
    for n in (8, 4, 2, 1): a(f"v_add_f32_dpp v{ACC2}, v{ACC2}, v{ACC2} row_ror:{n} row_mask:0xf bank_mask:0xf")
    swaps_add(ACC2, AA)
    a(f"""
s_mov_b64 exec, 1
ds_write_b32 v{YA}, v{ACC2} offset:{YP}
s_mov_b64 exec, -1
v_add_u32 v{YA}, 4, v{YA}
s_setpc_b64 s[80:81]
""")
    body = a.render()
    if "allsc1st" in dbg:
        import re
        body = re.sub(r"(buffer_store_dwordx[24] v\[\d+:\d+\], v\d+, s\[52:55\], s(6|72) offen( offset:128)?)\n", r"\1 sc1\n", body)
    if "allsc1ld" in dbg:
        import re
        body = re.sub(r"(buffer_load_dwordx4 v\[\d+:\d+\], v\d+, s\[52:55\], s[67] offen( offset:\d+)?) nt\n", r"\1 sc1\n", body)
    txt = HDR + f"""; @launch grid=(256,1,1) block=(512,1,1) lds={LDSZ}
.amdgcn_target "amdgcn-amd-amdhsa--gfx950"
.text
.globl {KN}_kernel
.p2align 8
.type {KN}_kernel,@function
{KN}_kernel:
""" + body + f""".section .rodata,"a"
.p2align 6
.amdhsa_kernel {KN}_kernel
  .amdhsa_next_free_vgpr 256
  .amdhsa_next_free_sgpr 102
  .amdhsa_accum_offset 256
  .amdhsa_group_segment_fixed_size 0
  .amdhsa_kernarg_size 104
  .amdhsa_user_sgpr_count 2
  .amdhsa_user_sgpr_kernarg_segment_ptr 1
  .amdhsa_system_sgpr_workgroup_id_x 1
.end_amdhsa_kernel
"""
    open(fname, "w").write(txt)
if __name__ == "__main__":
    import glob, os
    for f in glob.glob("kp_*.s"): os.remove(f)
    gen("k1.s", mlp1=4, slp=0)
    kw = dict(prof=True, tailprof=True, mlp1=4, slp=0, rq=1, wolate=[5, 7, 9, 11])
    gen("kp_00.s", **kw)
    F = dict(wg=1, x=1, G=2, kx=24, a=64, b=-16, W=(4,6,12), d=6, C=3, CW=2)
    gen("kp_01.s", fc=F, **kw)
    gen("kp_02_nowork.s", fc=F, dbg="nok nosm nov", **kw)
    gen("kp_03_nosm.s", fc=F, dbg="nosm", **kw)
    gen("kp_04_nowq.s", fc=F, dbg="nowq", **kw)
    gen("kp_05_nowork_nowq.s", fc=F, dbg="nok nosm nov nowq", **kw)
    gen("kp_06_nowork_nowq_nomlp.s", fc=F, dbg="nok nosm nov nowq nomlp", **kw)
    gen("kp_07_nofc_nowork.s", dbg="nok nosm nov", **kw)
    gen("kp_08_nofc_nowork_nowq.s", dbg="nok nosm nov nowq", **kw)
```

```python
import gen
kw = dict(mlp1=2, slp=0, rq=1, wolate=[5, 7, 9, 11], palign=7, near=dict(nw=2), wotrig=203, wosw=1, t2=1, b3=1, wodl=80, wosl=1, h1e=(1,0,[4]), h1m=1, h2pre=("z", 64))
F = dict(wg=1, x=0, G=2, kx=24, a=64, b=40, W=(4,6,12), d=5, C=3, CW=2, stop=0, tg=4, dl=3)
T6 = [4, 13, 22, 31, 40, 49]
P2 = [(12,-40),(8,-15),(6,15),(5,40),(4,0)]
def g(n, U=28, lv=P2, **kw2): gen.gen(n, fc={**F, "tt": dict(gl=2, notab=1, U=U, lv=lv), "ts": T6}, **{**kw, **kw2})
g("k12a.s"); g("k12b.s", prew=False); g("k12c.s", h2pre=False)
g("e12a.s", dbgt="emax"); g("e12b.s", prew=False, dbgt="emax"); g("e12c.s", h2pre=False, dbgt="emax")
g("e11a.s", h2pre=False, h1m=0, dbgt="emax")
```

```python
import sys, struct, math
from asmlib import Asm
KN = "recurrent_scan__gqa_block_cached__mixer_token_mlp__decode"
def f32(x): return "0x%08x" % struct.unpack("<I", struct.pack("<f", x))[0]
LOG2E = 1.4426950408889634
FLG = 0; QL = 64; ST = QL + 1024; YP = ST + 128; OP = YP + 256; XN = OP + 4 * 2304; XRS = 1040; WQL = XN + 8 * XRS; KL = WQL + 32768
QOFF = 64 << 10; H1OFF = QOFF + (1 << 20); H1S = 4224; H2OFF = H1OFF + (640 << 10); BD = 4 << 20; PGOFF = 8 << 10; LOCOFF = 32 << 10; STAMP = 128 << 20
HDR = open("cdna_kernels/" + KN + ".s.ref").read().split("; Override launch")[0]

def gen(fname, WIN=6, G=2, RING=40, prof=False, wo_thr=4, ntw="", woflags="", spin=400000, dbg="", WPS=1, dry=False, tailprof=False, NLT=6, slp=2, wqdma=True, sprio=2, bgprio=0, mlp1=8, local=True, fb=31, deferB=True, pretouch=False, pat=None, pat2=None, rot=None, cmap=0, light=False, lslp=0, h1fl='nt', h2sync=True, fc=None, est=None, rq=0, ro=0, sE=True, wolate=None, n0=64, pipe1=1, pipe2=1, stag1=3, stag2=3, h2late=True, h2ack=True, h2pre=False, h2full=False, slp2=0, dbgt=False, dirty=0, clean=False, qslp=None, nloc=200, tmap=(14, 16, None), wotrig=None, wothr=2, wosl=2, womid=True, palign=0, defer=None, h2off=None, tlbw=False, near=None, endwait=False, lastopt=True, pkc=True, warm='', hdel=0, wqdel=0, dp=False, dpt='c3', dpf=4, dpw=0, dpc=6, dpfl="nt", dpp=0, hp=3, hp2=None, h1e=None, wosw=False, t2=False, prew=True, b3=False, wodl=None, t3=False, h1m=0, h2fl='sc1', h2e=False, h2sf='sc1', qprew=False, trot=None, trotw=0, wbar=0, own1=False, lbar=False, fin=0):
    if fin: assert h2late and not h2e
    if lbar: h2late = False; h2sync = False
    if t3: t2 = True; h2late = False; h2sync = False; assert womid and wotrig is not None
    if t2: assert not dp and lastopt and wosw and not h2full and pkc and not defer
    if dp: assert fc and tmap[2] is None and wotrig is not None and wotrig >= 200
    H2OFF = (576 << 10) if h2off is None else h2off
    MEAS = 48 << 10; CWOFF = 16 << 10
    a = Asm()
    LDSZ = KL + 4 * NLT * 4096
    NLL = 4 * NLT
    NST = 8
    def stamp(i):
        if prof: a(f"s_memrealtime s[{84+2*i}:{85+2*i}]")
    stamp(0)
    if dbgt: a("s_memrealtime s[84:85]\ns_memtime s[86:87]")
    a(f"""
s_load_dwordx2 s[44:45], s[0:1], 8
s_load_dwordx2 s[48:49], s[0:1], 16
v_lshrrev_b32 v2, 6, v0
s_cmp_ge_u32 s2, 256
v_and_b32 v1, 63, v0
v_readfirstlane_b32 s3, v2
s_cbranch_scc1 L_end
s_cmp_ge_u32 s3, 4
s_cbranch_scc1 L_helper
""")
    a(f"""
s_setprio {sprio}
s_mov_b32 s46, 0x4000000
s_mov_b32 s47, 0x20000
s_and_b32 s52, s2, 7
s_lshl_b32 s52, s52, 20
s_lshr_b32 s53, s2, 5
s_lshl_b32 s53, s53, 23
s_or_b32 s52, s52, s53
s_bfe_u32 s53, s2, 0x20003
s_lshl_b32 s53, s53, {tmap[0]}
s_or_b32 s52, s52, s53
s_lshl_b32 s53, s3, 12
s_or_b32 s52, s52, s53
s_mul_i32 s60, s3, {NLT*4096}
s_add_u32 s60, s60, {KL}
v_lshrrev_b32 v5, 4, v1
v_bfe_u32 v6, v1, 2, 2
v_and_b32 v7, 3, v1
v_lshlrev_b32 v2, 8, v6
v_lshl_add_u32 v2, v5, 6, v2
v_lshl_add_u32 v2, v7, 4, v2
""")
    if trot: a(f"s_bfe_u32 s53, s2, {hex((trot[1] << 16) | trot[0])}\ns_lshl_b32 s53, s53, {trot[2]}\ns_xor_b32 s52, s52, s53")
    if trotw: a(f"s_lshl_b32 s53, s3, {trotw}\ns_xor_b32 s52, s52, s53")
    if tmap[2]: a(f"s_and_b32 s53, s2, 7\ns_lshl_b32 s53, s53, {tmap[2]}\ns_xor_b32 s52, s52, s53")
    def late_setup():
        a(f"""
{"" if fc and fc.get("tt", {}).get("notab") else "s_load_dwordx2 s[38:39], s[0:1], 88"}
s_load_dwordx2 s[40:41], s[0:1], 96
s_mov_b32 s50, 0x4000000
s_mov_b32 s51, 0x20000
v_lshlrev_b32 v3, 4, v1
""")
        if fc and fc.get("tt", {}).get("notab"): a(f"""
; schedule exchange: wave 0 of one workgroup per group publishes its clock at a few steps (slot = id&7)
s_lshr_b32 s64, s2, 3
s_cmp_eq_u32 s3, 0
s_cselect_b32 s64, s64, 64
s_and_b32 s65, s2, 7
s_lshl_b32 s65, s65, 3
v_mov_b32 v83, s65
{"s_mov_b64 s[82:83], 0" if prof else ""}
{"s_cselect_b64 vcc, 1, 0" if fc.get("vw") else ""}
s_waitcnt lgkmcnt(0)
s_load_dword s73, s[40:41], 0
s_mov_b32 s76, s40
s_mov_b32 s77, s41
s_mov_b32 s78, 0x10000000
s_mov_b32 s79, 0x20000
""")
        elif fc: a(f"""
s_lshr_b32 s64, s2, 3
s_cmp_eq_u32 s3, 0
s_cselect_b32 s64, s64, 64
s_and_b32 s65, s2, 7
s_lshl_b32 s63, s65, 3
s_lshl_b32 s65, s65, {3 if fc.get("ts") else 2}
v_mov_b32 v83, s65
s_mov_b32 s62, {fc.get('l0', 0)}
s_mov_b64 s[82:83], 0
s_getreg_b32 s66, hwreg(HW_REG_XCC_ID, 0, 3)
s_lshl_b32 s66, s66, 5
s_lshr_b32 s67, s2, 3
s_add_u32 s67, s67, s66
v_mov_b32 v88, s67
v_and_b32 v87, 7, v1
v_lshl_add_u32 v87, v87, 2, s66
s_mov_b32 s74, 0
s_mov_b32 s75, 0
s_cmp_eq_u32 s3, 0
s_cselect_b64 vcc, 1, 0
s_waitcnt lgkmcnt(0)
s_load_dword s73, s[40:41], 0
s_mov_b32 s76, s40
s_mov_b32 s77, s41
s_mov_b32 s78, 0x10000000
s_mov_b32 s79, 0x20000
s_mov_b32 s12, s38
s_mov_b32 s13, s39
s_mov_b32 s14, 256
s_mov_b32 s15, 0x20000
""")
    RB = 256 - RING * 4
    def rreg(n): return RB + ((n - NLL) % RING) * 4
    NL = 128
    st = {"tile": None}
    def issue(n):
        isv = n >= 64; t = (n & 63) >> 2; q = n & 3
        if st["tile"] != (isv, t):
            st["tile"] = (isv, t)
            if tmap: a(f"s_xor_b32 s53, s52, {t << tmap[1]}")
            elif rot is None: a(f"s_add_u32 s53, s52, {t*16384}")
            else: a(f"s_add_u32 s53, s61, {t*16384}\ns_and_b32 s53, s53, 0x3ffff\ns_add_u32 s53, s53, s52")
            if n < NLL: a(f"s_add_u32 m0, s60, {t*4096}\ns_nop 0")
            if n == 0:
                if palign: a(f".p2align {palign}")
                a("s_waitcnt lgkmcnt(0)")
                if st.get("ks"): stamp(7)
        if n < NLL:
            a(f"buffer_load_dwordx4 v2, s[44:47], s53 offen offset:{q*1024} nt lds"); return
        r = rreg(n)
        a(f"buffer_load_dwordx4 v[{r}:{r+3}], {'v3' if isv else 'v2'}, {'s[48:51]' if isv else 's[44:47]'}, s53 offen offset:{q*1024} nt")
    TSR = 6
    QB = 8; Y = 12; ACC = 28; DT = 28; TT = 44; PT = 60; PA = 76; M = 80
    def setup_consts():
        a(f"""
s_mov_b32 s54, 0x05040100
s_mov_b32 s55, 0x07060302
s_mov_b32 s56, {f32(128**-0.5)}
s_mov_b32 s57, {f32(LOG2E)}
v_lshlrev_b32 v4, 8, v7
v_lshl_add_u32 v4, v5, 6, v4
v_lshl_add_u32 v4, v6, 4, v4
v_mov_b32 v84, 0
v_add_u32 v86, s60, v3
""")
    def wait_q():
        stamp(1)
        if "noq" in dbg:
            a(f"ds_read_b128 v[{QB}:{QB+3}], v4 offset:{QL}\ns_waitcnt lgkmcnt(0)"); stamp(2); return
        a(f"""
s_mov_b32 s58, {spin*8}
L_sq:
ds_read_b32 v85, v84 offset:{FLG+4}
s_waitcnt lgkmcnt(0)
v_readfirstlane_b32 s59, v85
s_sub_u32 s58, s58, 1
s_cbranch_scc1 L_sq_done
s_cmp_ge_u32 s59, 4
s_cbranch_scc1 L_sq_done
s_sleep 1
s_branch L_sq
L_sq_done:
ds_read_b128 v[{QB}:{QB+3}], v4 offset:{QL}
{f"ds_read_b32 v85, v84 offset:{FLG+32}" if dp else ""}
s_waitcnt lgkmcnt(0)
{"v_readfirstlane_b32 s42, v85" if dp else ""}
""")
        stamp(2)
        if prof: a("s_waitcnt lgkmcnt(0)")
    def ktile(t):
        if t < NLT:
            for q in range(4): a(f"ds_read_b128 v[{PT+4*q}:{PT+4*q+3}], v86 offset:{t*4096+q*1024}")
        for q in range(4):
            r = rreg(4 * t + q) if t >= NLT else PT + 4 * q
            if t < NLT: a(f"s_waitcnt lgkmcnt({3-q})")
            a(f"v_mfma_f32_16x16x32_bf16 v[{DT+4*q}:{DT+4*q+3}], v[{r}:{r+3}], v[{QB}:{QB+3}], 0")
        for c in range(4):
            for r in range(4):
                n = 4 * ((c - r) % 4)
                ctl = f"row_ror:{n}" if n else "quad_perm:[0,1,2,3]"
                a(f"v_mov_b32_dpp v{TT+r}, v{DT+4*c+r} {ctl} row_mask:0xf bank_mask:{hex(1<<c)}")
        y = Y + t
        a(f"""
v_add_f32 v{TT}, v{TT}, v{TT+1}
v_add_f32 v{TT+2}, v{TT+2}, v{TT+3}
v_add_f32 v{y}, v{TT}, v{TT+2}
v_cvt_pk_bf16_f32 v{y}, v{y}, v{y}
v_lshlrev_b32 v{y}, 16, v{y}
v_mul_f32 v{y}, s56, v{y}
v_cvt_pk_bf16_f32 v{y}, v{y}, v{y}
v_lshlrev_b32 v{y}, 16, v{y}
""")
    def xlane(op, r, t):
        a(f"""
{op}_dpp v{r}, v{r}, v{r} row_ror:4 row_mask:0xf bank_mask:0xf
""") if op != "v_add_f32" else a(f"""
v_add_f32_dpp v{r}, v{r}, v{r} row_ror:4 row_mask:0xf bank_mask:0xf
""")
        a(f"""
{op}_dpp v{r}, v{r}, v{r} row_ror:8 row_mask:0xf bank_mask:0xf
v_mov_b32 v{t}, v{r}
v_permlane16_swap_b32 v{r}, v{t}
{op} v{r}, v{r}, v{t}
v_mov_b32 v{t}, v{r}
v_permlane32_swap_b32 v{r}, v{t}
{op} v{r}, v{r}, v{t}
""")
    def softmax():
        m = M; l = M + 1; t = M + 2
        a(f"v_max3_f32 v{m}, v{Y}, v{Y+1}, v{Y+2}")
        for i in range(3, 15, 2): a(f"v_max3_f32 v{m}, v{m}, v{Y+i}, v{Y+i+1}")
        a(f"v_max_f32 v{m}, v{m}, v{Y+15}")
        xlane("v_max_f32", m, t)
        a(f"v_mul_f32 v{m}, s57, v{m}")
        for i in range(16): a(f"v_fma_f32 v{Y+i}, v{Y+i}, s57, -v{m}")
        for i in range(16): a(f"v_exp_f32 v{Y+i}, v{Y+i}")
        a(f"v_add_f32 v{l}, v{Y}, v{Y+1}")
        a(f"v_add_f32 v{t}, v{Y+2}, v{Y+3}")
        for i in range(4, 16, 2):
            a(f"v_add_f32 v{l}, v{l}, v{Y+i}")
            a(f"v_add_f32 v{t}, v{t}, v{Y+i+1}")
        a(f"v_add_f32 v{l}, v{l}, v{t}")
        for v in range(8): a(f"v_cvt_pk_bf16_f32 v{Y+v}, v{Y+2*v}, v{Y+2*v+1}")
        if t2:
            for i in range(16): a(f"v_mov_b32 v{PA4+i}, 0")
        xlane("v_add_f32", l, t)
        a(f"""
s_lshl_b32 s59, s3, 5
v_lshl_add_u32 v{t}, v1, 3, s59
s_mov_b64 exec, 15
ds_write_b64 v{t}, v[{m}:{m+1}] offset:{ST}
s_mov_b64 exec, 1
v_mov_b32 v{t}, 1
ds_add_u32 v84, v{t} offset:{FLG+16}
s_mov_b64 exec, -1
""")
    PA4 = 36
    def mkpa(v):
        if t2:
            for c in range(4):
                for p in range(4):
                    n = 4 * ((c - p) % 4)
                    a(f"v_mov_b32_dpp v{PA4+4*c+p}, v{Y+v} {f'row_ror:{n}' if n else 'quad_perm:[0,1,2,3]'} row_mask:0xf bank_mask:{hex(1<<c)}")
            return
        a(f"v_mov_b32 v{PA}, v{Y+v}")
        for p in (1, 2, 3):
            a(f"v_mov_b32_dpp v{PA+p}, v{Y+v} row_ror:{4*((0-p)%4)} row_mask:0xf bank_mask:0xf")
    def vchunk(v):
        mkpa(v)
        for half in range(2):
            for jj in range(4 * half, 4 * half + 4):
                o = PT + 4 * (jj & 3)
                for p in range(4):
                    lo = rreg(64 + 8 * v + p) + (jj >> 1); hi = rreg(64 + 8 * v + 4 + p) + (jj >> 1)
                    a(f"v_perm_b32 v{o+p}, v{hi}, v{lo}, {'s55' if jj & 1 else 's54'}")
            for jj in range(4 * half, 4 * half + 4):
                o = PT + 4 * (jj & 3); d = ACC + 4 * jj
                pa = PA
                if t2: d = ACC + 4 * half; pa = PA4 + 4 * (jj & 3)
                c = "0" if (v == 0 and (not t2 or jj & 3 == 0)) else f"v[{d}:{d+3}]"
                a(f"v_mfma_f32_16x16x32_bf16 v[{d}:{d+3}], v[{pa}:{pa+3}], v[{o}:{o+3}], {c}")
    def s_wait(lbl, off, cnt):
        a(f"""
s_mov_b32 s58, {spin*8}
{lbl}:
ds_read_b32 v85, v84 offset:{off}
s_waitcnt lgkmcnt(0)
v_readfirstlane_b32 s59, v85
s_sub_u32 s58, s58, 1
s_cbranch_scc1 {lbl}_done
s_cmp_lt_u32 s59, {cnt}
s_cbranch_scc1 {lbl}
{lbl}_done:
""")
    def s_sig(off): a(f"s_mov_b64 exec, 1\nv_mov_b32 v82, 1\nds_add_u32 v84, v82 offset:{off}\ns_mov_b64 exec, -1")
    AQ = [20, 24, 12, PA]
    def fitem(v0):
        T_ = PT
        s_wait("L_d1", FLG + 16, 4)
        a(f"""
v_and_b32 v4, 3, v1
v_lshlrev_b32 v4, 3, v4
ds_read_b32 v{T_}, v4 offset:{ST}
ds_read_b32 v{T_+1}, v4 offset:{ST+32}
ds_read_b32 v{T_+2}, v4 offset:{ST+64}
ds_read_b32 v{T_+3}, v4 offset:{ST+96}
v_lshlrev_b32 v4, 1, v4
v_lshrrev_b32 v10, 4, v1
v_lshl_add_u32 v4, v10, 6, v4
v_bfe_u32 v11, v1, 2, 2
v_lshl_add_u32 v4, v11, 2, v4
s_lshl_b32 s59, s3, 8
v_add_u32 v4, s59, v4
s_waitcnt lgkmcnt(0)
v_max3_f32 v{T_}, v{T_}, v{T_+1}, v{T_+2}
v_max_f32 v{T_}, v{T_}, v{T_+3}
v_sub_f32 v{T_}, v{M}, v{T_}
v_exp_f32 v{T_}, v{T_}
""")
        for v in range(v0, 8): a(f"v_lshlrev_b32 v{T_+8+2*(v-v0)}, 16, v{Y+v}\nv_and_b32 v{T_+9+2*(v-v0)}, 0xffff0000, v{Y+v}")
        for i in range(4): a(f"v_mov_b32_dpp v{T_+4+i}, v{T_} quad_perm:[{i},{i},{i},{i}] row_mask:0xf bank_mask:0xf")
        for v in range(v0, 8): a(f"v_pk_mul_f32 v[{T_+8+2*(v-v0)}:{T_+9+2*(v-v0)}], v[{T_+8+2*(v-v0)}:{T_+9+2*(v-v0)}], v[{T_}:{T_+1}] op_sel_hi:[1,0]")
        for v in range(v0, 8): a(f"v_cvt_pk_bf16_f32 v{Y+v}, v{T_+8+2*(v-v0)}, v{T_+9+2*(v-v0)}")
        a(f"ds_write_b32 v4, v{Y+7} offset:{QL}")
        s_sig(FLG + 44)
        for jj in range(8):
            d_ = ACC + 4 * jj
            a(f"v_pk_mul_f32 v[{d_}:{d_+1}], v[{d_}:{d_+1}], v[{T_+4}:{T_+5}]\nv_pk_mul_f32 v[{d_+2}:{d_+3}], v[{d_+2}:{d_+3}], v[{T_+6}:{T_+7}]")
        a(f"""
v_lshlrev_b32 v9, 6, v10
v_lshl_add_u32 v9, v11, 4, v9
s_lshl_b32 s59, s3, 2
v_add_u32 v4, s59, v11
v_mul_u32_u24 v4, 144, v4
v_lshl_add_u32 v4, v10, 2, v4
v_and_b32 v8, 3, v1
v_lshl_add_u32 v4, v8, 5, v4
v_mul_u32_u24 v10, {4*H1S}, v10
v_lshl_add_u32 v10, v11, 8, v10
v_bfe_u32 v8, v1, 1, 1
v_lshl_add_u32 v10, v8, 10, v10
v_and_b32 v8, 1, v1
v_lshl_add_u32 v10, v8, 3, v10
v_mov_b32 v11, v9
s_and_b32 s43, s2, 7
s_lshl_b32 s43, s43, 4
s_lshr_b32 s59, s2, 6
s_add_u32 s43, s43, s59
s_mul_i32 s43, s43, {H1S}
s_bfe_u32 s59, s2, 0x30003
s_lshl_b32 s59, s59, 4
s_add_u32 s43, s43, s59
s_lshr_b32 s59, s3, 1
s_lshl_b32 s59, s59, 7
s_add_u32 s43, s43, s59
s_and_b32 s59, s3, 1
s_lshl_b32 s59, s59, 11
s_add_u32 s43, s43, s59
s_add_u32 s43, s43, {H1OFF + 128}
s_mul_i32 s72, s73, 0x01010101
v_mov_b32 v9, s72
s_mul_i32 s59, s3, 2304
v_mul_u32_u24 v8, 144, v1
v_add_u32 v8, s59, v8
""")
    work = [("K", t, 4 * t + 3) for t in list(range(NLT, 16)) + list(range(NLT))] + [("S", 0, 63)] + [("V", v, 64 + 8 * v + 7) for v in range(8)]
    if dp: work.insert(17 + dpf, ("F", dpf, 0))
    consumed = NLL - 1
    wi = 0
    def do_work():
        nonlocal wi, consumed
        k, i, last = work[wi]
        if k == "K":
            if wi == 0: wait_q()
            if "nok" not in dbg: ktile(i)
            consumed = max(consumed, last)
        elif k == "S":
            if "nosm" in dbg: a(f"s_mov_b64 exec, 1\nv_mov_b32 v82, 1\nds_add_u32 v84, v82 offset:{FLG+16}\ns_mov_b64 exec, -1")
            else: softmax()
            stamp(3)
        elif k == "F": fitem(i)
        else:
            if "nov" not in dbg: vchunk(i)
            consumed = last
        wi += 1
    def ztouch():
        a("; prefetch this workgroup's hop-2 inbox lines into the memory-side cache (loaded values are not used)")
        a(f"s_lshl_b32 s4, s2, 2\ns_add_u32 s4, s4, s3\ns_lshl_b32 s4, s4, 9\ns_add_u32 s4, s4, {H2OFF}")
        for i in range(512 // h2pre[1]): a(f"s_load_dword s{16 + i}, s[40:41], s4 offset:{i * h2pre[1]}")
    issued = 0
    ops = []
    def iss(n):
        if dp == 1 and n >= 120:
            i = n - 120; u = i >> 1
            if n == 120: a(f"s_andn2_b32 s70, s52, 0x3000\nv_lshrrev_b32 v2, 4, v1\nv_lshlrev_b32 v2, 8, v2\nv_and_b32 v85, 15, v1\nv_lshl_add_u32 v2, v85, 2, v2\ns_lshl_b32 s59, s3, 6\nv_add_u32 v2, s59, v2")
            if i & 1 == 0: a(f"s_xor_b32 s53, s70, {(14 << tmap[1]) | (u << 12)}\ns_xor_b32 s61, s70, {(15 << tmap[1]) | (u << 12)}")
            for p in (2 * (i & 1), 2 * (i & 1) + 1):
                for hi in range(2):
                    a(f"buffer_load_dword v{rreg(120) + 8*u + 2*p + hi}, v2, s[48:51], s{61 if hi else 53} offen offset:{p*1024} {dpfl}")
                    ops.append(("L", n) if (p & 1 and hi) else ("s", n))
            return
        issue(n); ops.append(("L", n))
    def vm_for(X):
        li = [i for i, o in enumerate(ops) if o[0] == "L"]
        if len(li) <= X: return None
        p = li[len(li) - X - 1]
        return len(ops) - 1 - p, p
    if pat is None: pat = [(WIN, G)]
    if fc: pat = [(fc.get("w0", fc["W"][1]), fc["G"])]
    if est == [-1, -1]: stamp(5); st["ks"] = 1
    for n in range(pat[0][0]): iss(n)
    if est == [-1, -1]: stamp(6); est = [None, None]
    issued = pat[0][0]
    late_setup()
    a("s_barrier")
    setup_consts()
    arrived = -1
    step = 0
    done_op = -1; nw = 0; ph = 0; nctl = 0; evalq = []; PAIRS = [88, 92, 94]; tagdone = False
    while issued < NL:
        pp = pat2 if (pat2 is not None and issued >= n0) else pat
        WIN, G = pp[step % len(pp)]; step += 1
        if not fc:
            if issued - (WIN - G) - 1 > arrived: a(f"s_waitcnt vmcnt({WIN-G})")
            arrived = max(arrived, issued - (WIN - G) - 1)
        else:
            Wl, Wm, Wh = fc["W"]
            opened = False
            for n_, W_ in fc.get("open", []):
                if issued >= n_: Wl, Wm, Wh = W_; opened = Wl == Wh
            while issued + G - 1 - RING > consumed and work[wi][2] > max(arrived, issued - (Wh - G) - 1): Wh -= 1; Wm = min(Wm, Wh); Wl = min(Wl, Wh)
            r = vm_for(Wh - G)
            if r and issued - (Wh - G) - 1 > arrived: a(f"s_waitcnt vmcnt({r[0]})"); done_op = max(done_op, r[1]); arrived = max(arrived, issued - (Wh - G) - 1)
            tt = fc.get("tt")
            if tt:
                if not st.get("ev"):
                    r_ = vm_for(min(tt.get("wp", Wm), Wh) - G)
                    if r_: a(f"s_waitcnt vmcnt({r_[0]}) ;nc")
                else:
                    if not st.get("sl"):
                        a(f"s_waitcnt lgkmcnt(0)\ns_add_u32 s68, s70, {round(tt['U'] * (step - 1))}\ns_sub_u32 s68, s68, s{st['cur']}"); st["ok"] |= st["pend"]; st["pend"] = set()
                    lv = tt["lv"]
                    for n_, l_ in tt.get("lv2", []):
                        if issued >= n_: lv = l_
                    pw = Wh
                    for i_ in range(len(lv) - 1):
                        w_ = min(lv[i_ + 1][0], Wh)
                        if w_ >= pw: continue
                        pw = w_
                        a(f"s_cmpk_lt_i32 s68, {lv[i_][1] & 0xffff} ;nc\ns_cbranch_scc1 L_fs{step} ;nc\ns_waitcnt vmcnt({vm_for(w_ - G)[0]}) ;nc")
                    a(f"L_fs{step}:")
                    if prof and tt.get("tr") and step in tt["tr"]: a("s_lshl_b64 s[82:83], s[82:83], 16\ns_and_b32 s69, s68, 0xffff\ns_or_b32 s82, s82, s69")
            elif not opened: a(f"""
s_cmp_eq_u32 s62, 2 ;nc
s_cbranch_scc1 L_fs{step} ;nc
s_waitcnt vmcnt({vm_for(Wm - G)[0]}) ;nc
s_cmp_eq_u32 s62, 0 ;nc
s_cbranch_scc1 L_fs{step} ;nc
s_waitcnt vmcnt({vm_for(Wl - G)[0]}) ;nc
L_fs{step}:
""")
        if est:
            for i_, e_ in enumerate(est):
                if e_ is not None and arrived >= e_: stamp(5 + i_); est[i_] = None
        g = min(G, NL - issued)
        while issued + g - 1 - RING > consumed:
            if work[wi][2] > arrived:
                assert not fc
                a(f"s_waitcnt vmcnt({issued - 1 - work[wi][2]})"); arrived = work[wi][2]
            do_work()
        for n in range(issued, issued + g): iss(n)
        if wotrig is not None and wotrig >= 0 and issued <= wotrig < issued + g:
            a(f"s_mov_b64 exec, 1\nv_mov_b32 v82, 1\nds_add_u32 v84, v82 offset:{FLG+28}\ns_mov_b64 exec, -1")
        if fc:
            d = fc["d"]; k0 = fc.get("k0", 2); last = (NL - fc.get("stop", 8) - fc["W"][1]) // G
            if step == k0:
                a("s_waitcnt lgkmcnt(0)\ns_add_u32 s73, s73, 1" + ("" if fc.get("tt", {}).get("notab") else "\nv_mov_b32 v90, s73"))
            if step == fc.get("vw"):
                a("s_mov_b64 exec, vcc\nbuffer_load_dword v91, v84, s[48:51], s52 offen nt\ns_mov_b64 exec, -1"); ops.append(("C", 0))
            if fc.get("wg"):
                tt = fc.get("tt")
                tab = step >= fc.get("kw", 4) and step % fc["CW"] == 0 and step <= last and not opened
                if tt and tt.get("notab"): tab = False
                if tt:
                    st.setdefault("ok", set()); st.setdefault("pend", set())
                    if step >= fc.get("kw", 4):
                        st["cur"] = [6, 8, 10, 34, 42][nw % 5] if tab else 4; assert len(evalq) < 5
                        if tab or not st.get("sl"):
                            a(f"s_memrealtime s[{st['cur']}:{st['cur']+1}]"); st["pend"].add(st["cur"]); st["ok"].discard(st["cur"])
                    if prof and step in tt.get("trt", []): stamp([5, 6, 7][tt["trt"].index(step)])
                for e in [e for e in evalq if e[0] <= done_op]:
                    evalq.remove(e)
                    if tt:
                        if e[2] > tt.get("kstop", 99): continue
                        if e[3] not in st["ok"]:
                            assert not st.get("sl"); a("s_waitcnt lgkmcnt(0)"); st["ok"] |= st["pend"]; st["pend"] = set()
                        a(f"v_sad_u8 v85, v{e[1]}, 0, 0\ns_mov_b32 s62, s{e[3]}\ns_call_b64 s[80:81], {'L_cw' if st.get('ev1') else 'L_cw0'}"); st["ev"] = 1; st["ev1"] = 1
                        if tt.get("gl") and not st.get("gx"): a("s_mov_b32 s70, s75")
                    else: a(f"v_sad_u8 v85, v{e[1]}, 0, 0\ns_movk_i32 s68, {32 * e[2]}\ns_call_b64 s[80:81], L_cw")
                if tab and tt and step > tt.get("kstop", 99):
                    a(f"v_mov_b32 v89, {step}\ns_mov_b64 exec, vcc\nbuffer_store_byte v89, v88, s[12:15], 0 offen\ns_mov_b64 exec, -1"); ops.append(("S", 0))
                elif tab:
                    r_ = [91, 92, 93, 94, 95, 86 if NLT == 0 else 5][nw % 6]; nw += 1; assert len(evalq) < 6
                    a(f"""
v_mov_b32 v89, {step}
s_mov_b64 exec, vcc
buffer_store_byte v89, v88, s[12:15], 0 offen
s_mov_b64 exec, -1
buffer_load_dword v{r_}, v87, s[12:15], 0 offen nt
""")
                    ops.append(("S", 0)); ops.append(("C", 0)); evalq.append((len(ops) - 1, r_, step, st.get("cur")))
            if fc.get("ts"):
                for i_, k_ in enumerate(fc["ts"]):
                    if step == k_ - 1 and not fc.get("tt"): a("s_memrealtime s[34:35]")
                    if step == k_:
                        if not fc.get("tt"): a("s_waitcnt lgkmcnt(0)\ns_add_u32 s34, s34, s75\nv_mov_b32 v{TSR}, s34".replace("{TSR}", str(TSR)))
                        elif st.get("ev1"): a(f"s_add_u32 s65, s75, {round(fc['tt']['U'] * step)}\nv_mov_b32 v{TSR}, s65")
                        else:
                            a(f"s_waitcnt lgkmcnt(0)\nv_mov_b32 v{TSR}, s{st['cur']}"); st["ok"] |= st["pend"]; st["pend"] = set()
                            if fc["tt"].get("gl") == 2 and i_ == 0: a(f"s_sub_u32 s70, s{st['cur']}, {round(fc['tt']['U'] * step)}")
                        a(f"""
v_mov_b32 v97, s73
s_movk_i32 s65, {PGOFF + i_ * 256}
s_cmp_eq_u32 s64, {(5 * i_ + 3) % 32}
s_cselect_b64 exec, 1, 0
buffer_store_dwordx2 v[96:97], v83, s[76:79], s65 offen sc1
s_mov_b64 exec, -1
""".replace("v96", f"v{TSR}").replace("v97", f"v{TSR+1}").replace("v[96:97]", f"v[{TSR}:{TSR+1}]"))
                        ops.append(("S", 0))
                    if step == k_ + d:
                        a(f"s_load_dwordx16 s[16:31], s[40:41], {PGOFF + i_ * 256}\ns_load_dwordx2 s[32:33], s[40:41], s63 offset:{PGOFF + i_ * 256}\ns_memrealtime s[36:37]" if fc.get("tt", {}).get("gl") != 2 else f"s_load_dwordx16 s[16:31], s[40:41], {PGOFF + i_ * 256}"); st["sl"] = 1
                    if step == k_ + d + fc.get("dl", 3):
                        if fc.get("tt", {}).get("gl"):
                            a(f"s_movk_i32 s62, {round(fc['tt']['U'] * k_)}\ns_call_b64 s[80:81], {'L_cx' if st.get('gx') or not fc['tt'].get('gsm') else 'L_cx0'}"); st["gx"] = 1; st["ev"] = 1
                        else: a("s_call_b64 s[80:81], L_cx")
                        st["sl"] = 0
                        if wodl is not None and i_ == len(fc["ts"]) - 1:
                            a(f"s_add_u32 s69, s70, {round(fc['tt']['U'] * ((NL - pat[0][0]) // G)) + wodl}\ns_mov_b64 exec, 1\nv_mov_b32 v82, s69\nds_write_b32 v84, v82 offset:{FLG+48}\ns_mov_b64 exec, -1")
                        if fc.get("tt"):
                            st["ok"] |= st["pend"]; st["pend"] = set()
                            if st["cur"] == 4: a("s_memrealtime s[4:5]"); st["pend"].add(4)
            if k0 <= step <= last - d and fc.get("x", 1):
                a(f"""
s_movk_i32 s65, {PGOFF + step * 256}
s_cmp_eq_u32 s64, {step % 32}
s_cselect_b64 exec, 1, 0
buffer_store_dword v90, v83, s[76:79], s65 offen sc1
s_mov_b64 exec, -1
""")
                ops.append(("S", 0))
            if step >= k0 + d and (step - k0 - d) % fc["C"] == 0:
                if nctl > 0: a("s_call_b64 s[80:81], L_cb"); nctl = 0
                if step <= last and fc.get("x", 1):
                    a(f"s_load_dwordx8 s[4:11], s[40:41], {PGOFF + (step - d) * 256}"); nctl = 1
        issued += g
        for _ in range(WPS):
            if wi < len(work) and work[wi][2] <= arrived and (wi > 0 or issued + G - 1 - RING > consumed):
                do_work()
    if "dpst" in dbg: stamp(5); print("drain work:", work[wi:])
    while wi < len(work):
        need_ = work[wi][2]
        if dp == 1 and wi == len(work) - 1:
            if "dpst" in dbg: stamp(6)
            if dpt == "a": s_sig(FLG + 28)
            a("s_mov_b64 exec, 0xffff")
            for jj in range(8): a(f"ds_write_b128 v8, v[{ACC+4*jj}:{ACC+4*jj+3}] offset:{OP+16*jj}")
            s_sig(FLG + 36)
            s_wait("L_d3", FLG + 44, 4)
            for u in range(4): a(f"ds_read_b128 v[{AQ[u]}:{AQ[u]+3}], v11 offset:{QL+256*u}")
            if dpt == "b": s_sig(FLG + 28)
            R0 = rreg(120)
            def dperm(u, p):
                a(f"v_perm_b32 v{PT+8*(u&1)+p}, v{R0+8*u+2*p+1}, v{R0+8*u+2*p}, s54\nv_perm_b32 v{PT+8*(u&1)+4+p}, v{R0+8*u+2*p+1}, v{R0+8*u+2*p}, s55")
            for i in range(8):
                u = i >> 1
                if i == dpc:
                    s_wait("L_d2", FLG + 36, 4)
                    for u_ in range(4): a(f"ds_read_b32 v{36+2*u_}, v4 offset:{OP+2304*u_}\nds_read_b32 v{37+2*u_}, v4 offset:{OP+2304*u_+16}")
                    if "dpst" in dbg: stamp(7)
                if i == 7: a("s_waitcnt lgkmcnt(0)\nv_pk_add_f32 v[36:37], v[36:37], v[38:39]\nv_pk_add_f32 v[40:41], v[40:41], v[42:43]\nv_pk_add_f32 v[36:37], v[36:37], v[40:41]")
                if i < 7:
                    a(f"s_waitcnt vmcnt({vm_for(7 - i)[0]})")
                    if dpt == f"c{7 - i}": s_sig(FLG + 28)
                    dperm(u, 2 * (i & 1)); dperm(u, 2 * (i & 1) + 1)
                else:
                    a("s_waitcnt vmcnt(2)"); dperm(u, 2); a("s_cmp_lg_u32 s42, 0\ns_waitcnt vmcnt(0)"); dperm(u, 3)
                if i == 1: a("s_waitcnt lgkmcnt(0)")
                if i & 1:
                    for e in range(2): a(f"v_mfma_f32_16x16x32_bf16 v[{28+4*e}:{31+4*e}], v[{AQ[u]}:{AQ[u]+3}], v[{PT+8*(u&1)+4*e}:{PT+8*(u&1)+4*e+3}], {f'v[{28+4*e}:{31+4*e}]' if u else '0'}")
            a("v_add_f32 v28, v28, v36\nv_add_f32 v32, v32, v37")
            assert ops[-1] == ("L", 127)
            a(f"""
v_cvt_pk_bf16_f32 v8, v28, v32
s_cbranch_scc1 L_dp_far
buffer_store_dwordx2 v[8:9], v10, s[76:79], s43 offen
L_dp_done:
""")
            stamp(4)
            if dpw: s_sig(FLG + 40)
            break
        if wi == len(work) - 1 and wotrig is not None and wotrig >= 200:
            a(f"s_waitcnt vmcnt({vm_for(wotrig - 200)[0]})")
            if defer:
                a(f"s_cmp_gt_i32 s75, {defer[0]}\ns_cselect_b32 s59, 0x101, 1\ns_mov_b64 exec, 1\nv_mov_b32 v82, s59\nds_add_u32 v84, v82 offset:{FLG+28}")
                if defer[2] > 60:
                    a("v_mov_b32 v89, 62\ns_mov_b64 exec, vcc\nbuffer_store_byte v89, v88, s[12:15], 0 offen"); ops.append(("S", 0))
                a("s_mov_b64 exec, -1")
            else: a(f"s_mov_b64 exec, 1\nv_mov_b32 v82, 1\nds_add_u32 v84, v82 offset:{FLG+28}\ns_mov_b64 exec, -1")
        if wi == len(work) - 1 and lastopt and "nov" not in dbg:
            v = 7; OB = rreg(112)
            def lp(p, jj): a(f"v_perm_b32 v{OB+4*jj+p}, v{rreg(124+p)+(jj>>1)}, v{rreg(120+p)+(jj>>1)}, {'s55' if jj & 1 else 's54'}")
            def lm(jj): a(f"v_mfma_f32_16x16x32_bf16 v[{ACC+4*jj}:{ACC+4*jj+3}], v[{PA}:{PA+3}], v[{OB+4*jj}:{OB+4*jj+3}], v[{ACC+4*jj}:{ACC+4*jj+3}]")
            def lw(jj): a(f"ds_write_b128 v{8 if dp else 4}, v[{ACC+4*jj}:{ACC+4*jj+3}] offset:{OP+16*jj}")
            if t2:
                def lm(jj): a(f"v_mfma_f32_16x16x32_bf16 v[{ACC+4*(jj>>2)}:{ACC+4*(jj>>2)+3}], v[{PA4+4*(jj&3)}:{PA4+4*(jj&3)+3}], v[{OB+4*jj}:{OB+4*jj+3}], v[{ACC+4*(jj>>2)}:{ACC+4*(jj>>2)+3}]")
                a(f"s_lshl_b32 s59, s3, 11\nv_add_u32 v4, s59, v3")
            elif not dp: a(f"s_mul_i32 s59, s3, 2304\nv_mul_u32_u24 v4, 144, v1\nv_add_u32 v4, s59, v4")
            a("v_mov_b32 v82, 1"); mkpa(v)
            if h2pre and h2pre is not True and h2pre[0] == "y": ztouch()
            for p in range(3):
                a(f"s_waitcnt vmcnt({vm_for(3 - p)[0]})")
                for jj in range(8): lp(p, jj)
            a("s_waitcnt vmcnt(0)")
            if dpp: a(f"s_setprio {dpp}")
            lp(3, 0); lp(3, 1)
            for jj in range(6): lp(3, jj + 2); lm(jj)
            stamp(4)
            if t2:
                lm(6); lm(7)
                a(f"ds_write_b128 v4, v[{ACC}:{ACC+3}] offset:{OP}\nds_write_b128 v4, v[{ACC+4}:{ACC+7}] offset:{OP+1024}")
            else:
                a("s_mov_b64 exec, 0xffff"); lw(0); lm(6); lw(1); lm(7)
                for jj in range(2, 8): lw(jj)
            if dp:
                a(f"""
s_mov_b64 exec, 1
ds_add_u32 v84, v82 offset:{FLG+36}
s_mov_b64 exec, -1
s_mov_b32 s58, {spin*8}
L_d2:
ds_read_b32 v85, v84 offset:{FLG+36}
""")
                for u_ in range(4): a(f"ds_read_b32 v{PT+2*u_}, v4 offset:{OP+2304*u_}\nds_read_b32 v{PT+1+2*u_}, v4 offset:{OP+2304*u_+16}")
                a(f"""
s_waitcnt lgkmcnt(8)
v_readfirstlane_b32 s59, v85
s_sub_u32 s58, s58, 1
s_cbranch_scc1 L_d2_done
s_cmp_lt_u32 s59, 4
s_cbranch_scc1 L_d2
L_d2_done:
s_cmp_lg_u32 s42, 0
s_waitcnt lgkmcnt(4)
v_pk_add_f32 v[{PT}:{PT+1}], v[{PT}:{PT+1}], v[{PT+2}:{PT+3}]
s_waitcnt lgkmcnt(0)
v_pk_add_f32 v[{PT+4}:{PT+5}], v[{PT+4}:{PT+5}], v[{PT+6}:{PT+7}]
v_pk_add_f32 v[{PT}:{PT+1}], v[{PT}:{PT+1}], v[{PT+4}:{PT+5}]
v_cvt_pk_bf16_f32 v8, v{PT}, v{PT+1}
s_cbranch_scc1 L_dp_far
buffer_store_dwordx2 v[8:9], v10, s[76:79], s43 offen
L_dp_done:
""")
                if est: stamp(7)
                if dpw: s_sig(FLG + 40)
            break
        if need_ > arrived:
            r = vm_for(NL - 1 - need_) if fc else (NL - 1 - need_,)
            a(f"s_waitcnt vmcnt({r[0]})"); arrived = need_
        do_work()
    else:
        stamp(4)
        a(f"""
s_mul_i32 s59, s3, 2304
v_mul_u32_u24 v4, 144, v1
v_add_u32 v4, s59, v4
s_mov_b64 exec, 0xffff
""")
        for jj in range(8):
            a(f"ds_write_b128 v4, v[{ACC+4*jj}:{ACC+4*jj+3}] offset:{OP+16*jj}")
    if not dp: a("""
s_mov_b64 exec, -1
s_waitcnt lgkmcnt(0)
s_barrier
""")
    if h2pre and h2pre is not True and h2pre[0] == "z": ztouch()
    if t3: a("s_barrier")
    if wbar: a("s_barrier")
    if lbar: a("s_barrier")
    if dirty:
        a(f"""
s_mov_b32 s44, s40
s_mov_b32 s45, s41
s_mov_b32 s46, 0x10000000
s_mov_b32 s47, 0x20000
s_lshl_b32 s59, s2, 2
s_add_u32 s59, s59, s3
s_mul_i32 s59, s59, {dirty*1024}
s_add_u32 s59, s59, {64 << 20}
s_sleep 64
""")
        for i in range(dirty): a(f"buffer_store_dwordx4 v[28:31], v3, s[44:47], s59 offen\ns_add_u32 s59, s59, 1024")
    if prof:
        a(f"""
s_mov_b32 s44, s40
s_mov_b32 s45, s41
s_mov_b32 s46, 0x10000000
s_mov_b32 s47, 0x20000
s_sleep 127
s_sleep 127
s_sleep 127
s_waitcnt lgkmcnt(0)
s_lshl_b32 s59, s2, 3
s_add_u32 s59, s59, s3
s_lshl_b32 s59, s59, 6
s_add_u32 s59, s59, {STAMP}
v_mov_b32 v4, 0
s_mov_b64 exec, 1
""")
        for i in range(8):
            trt = fc and fc.get("tt", {}).get("trt")
            sr = 82 if (i == 5 and fc and not est and not trt) else 84 + 2 * (i if est or trt else min(i, 4))
            a(f"v_mov_b32 v8, s{sr}\nv_mov_b32 v9, s{sr+1}\nbuffer_store_dwordx2 v[8:9], v4, s[44:47], s59 offen offset:{8*i}\ns_waitcnt vmcnt(0)")
    a("s_endpgm")
    if dp: a("L_dp_far:\nbuffer_store_dwordx2 v[8:9], v10, s[76:79], s43 offen sc1\ns_branch L_dp_done")
    X = 32
    S1 = 12; S2 = 13; T0 = 14; T1 = 15; NM = 16; RS = 18
    W1 = 40; B1 = 47; W2 = 54; HX = 62; U = 66; AA = 73; EE = 80; ACC2 = 87; C1 = 88; YA = 89
    WB = 192
    def srd(base, lo, size): a(f"s_mov_b32 s{base}, s{lo}\ns_mov_b32 s{base+1}, s{lo+1}\ns_mov_b32 s{base+2}, {size}\ns_mov_b32 s{base+3}, 0x20000")
    def bfround(r): a(f"v_cvt_pk_bf16_f32 v{r}, v{r}, v{r}\nv_lshlrev_b32 v{r}, 16, v{r}")
    def stats_finish():
        a(f"""
v_mul_f32 v{S1}, {f32(1/512)}, v{S1}
v_mul_f32 v{S2}, {f32(1/512)}, v{S2}
v_fma_f32 v{S2}, -v{S1}, v{S1}, v{S2}
v_max_f32 v{S2}, 0, v{S2}
""")
        bfround(S1); bfround(S2)
        a(f"v_add_f32 v{S2}, {f32(1e-5)}, v{S2}")
        bfround(S2)
        a(f"v_sqrt_f32 v{S2}, v{S2}")
        bfround(S2)
        a(f"""
v_rcp_f32 v{RS}, v{S2}
v_sub_f32 v{NM}, 0, v{S1}
v_sub_f32 v{NM+1}, 0, v{S1}
v_mov_b32 v{RS+1}, v{RS}
""")
    def swaps_add(r, t):
        a(f"""
v_mov_b32 v{t}, v{r}
v_permlane16_swap_b32 v{r}, v{t}
v_add_f32 v{r}, v{r}, v{t}
v_mov_b32 v{t}, v{r}
v_permlane32_swap_b32 v{r}, v{t}
v_add_f32 v{r}, v{r}, v{t}
""")
    def normalize(src, dst, n, tmp):
        for i0 in range(0, n, 4):
            idx = list(range(i0, min(n, i0 + 4)))
            for i in idx:
                t = tmp + 2 * (i - i0)
                a(f"v_lshlrev_b32 v{t}, 16, v{src+i}\nv_and_b32 v{t+1}, 0xffff0000, v{src+i}")
            for i in idx:
                t = tmp + 2 * (i - i0)
                a(f"v_pk_add_f32 v[{t}:{t+1}], v[{t}:{t+1}], v[{NM}:{NM+1}]")
            for i in idx:
                t = tmp + 2 * (i - i0)
                a(f"v_cvt_pk_bf16_f32 v{t}, v{t}, v{t+1}")
            for i in idx:
                t = tmp + 2 * (i - i0)
                a(f"v_and_b32 v{t+1}, 0xffff0000, v{t}\nv_lshlrev_b32 v{t}, 16, v{t}")
            for i in idx:
                t = tmp + 2 * (i - i0)
                a(f"v_pk_mul_f32 v[{t}:{t+1}], v[{t}:{t+1}], v[{RS}:{RS+1}]")
            for i in idx:
                t = tmp + 2 * (i - i0)
                a(f"v_cvt_pk_bf16_f32 v{dst+i}, v{t}, v{t+1}")
    def lds_wait(lbl, off, cnt, sl=0, msk=False):
        a(f"""
s_mov_b32 s58, {spin*8}
{lbl}:
ds_read_b32 v4, v9 offset:{off}
s_waitcnt lgkmcnt(0)
v_readfirstlane_b32 s59, v4
s_sub_u32 s58, s58, 1
s_cbranch_scc1 {lbl}_done
{"s_and_b32 s27, s59, 255" if msk else ""}
s_cmp_lt_u32 {"s27" if msk else "s59"}, {cnt}
{f"s_sleep {sl}" if sl else ""}
s_cbranch_scc1 {lbl}
{lbl}_done:
""")
    def lds_signal(off):
        a(f"""
s_mov_b64 exec, 1
ds_add_u32 v9, v11 offset:{off}
s_mov_b64 exec, -1
""")
    def orred(ts):
        ts = list(ts)
        while len(ts) > 1:
            if len(ts) >= 3:
                a(f"v_or3_b32 v{ts[0]}, v{ts[0]}, v{ts[1]}, v{ts[2]}"); ts = ts[3:] + [ts[0]]
            else:
                a(f"v_or_b32 v{ts[0]}, v{ts[0]}, v{ts[1]}"); ts = [ts[0]]
        return ts[0]
    def chk8(tags, tmp):
        if b3 and len(tags) % 2 == 0:
            for i in range(len(tags) // 2): a(f"v_bitop3_b32 v{tmp+i}, v{tags[2*i]}, v{tags[2*i+1]}, s12 bitop3:0x7e")
            return orred([tmp + i for i in range(len(tags) // 2)])
        for i, t in enumerate(tags): a(f"v_xor_b32 v{tmp+i}, s12, v{t}")
        return orred([tmp + i for i in range(len(tags))])
    def chk16(bases, tmp, tagreg):
        out = []
        for i, b in enumerate(bases):
            a(f"v_perm_b32 v{tmp+2*i}, v{b+1}, v{b}, s20\nv_perm_b32 v{tmp+2*i+1}, v{b+3}, v{b+2}, s21")
        for i, b in enumerate(bases):
            a(f"v_or_b32 v{tmp+2*i}, v{tmp+2*i}, v{tmp+2*i+1}")
        for i, b in enumerate(bases):
            a(f"v_xor_b32 v{tmp+2*i}, s{tagreg}, v{tmp+2*i}"); out.append(tmp + 2 * i)
        return orred(out)
    def pack16(dst, srcs, tagv):
        for i, r in enumerate(srcs): a(f"v_perm_b32 v{dst+i}, v{r}, v{tagv}, s{16+i}")
    def poll(lbl, loads, chk, fbr=None, post=None, st=None, pipe=1, stag=0, sl=None, mid=None, pre=False):
        if sl is None: sl = slp
        if fbr is not None: a(f"s_mov_b32 s82, s{fbr}\ns_add_u32 s83, s{fbr}, {BD}")
        a(f"s_mov_b32 s58, {spin}")
        for _ in range(pipe - 1):
            for l in loads: a(l)
            if stag: a(f"s_sleep {stag}")
        if mid:
            if not pre:
                for l in loads: a(l)
            mid()
            if "h1vm" in dbg: stamp(4)
            a(f"s_branch {lbl}_chk")
        a(f"{lbl}:")
        if st is not None and (tailprof or (st == 4 and "h1it" in dbg) or (st == 3 and "h2it" in dbg)): stamp(4 if "h2it" in dbg else st)
        for l in loads: a(l)
        if mid: a(f"{lbl}_chk:")
        a(f"s_waitcnt vmcnt({len(loads) * (pipe - 1)})")
        r = chk()
        if post: r = post(r)
        a(f"""
v_cmp_ne_u32 vcc, 0, v{r}
s_sub_u32 s58, s58, 1
s_cbranch_scc1 {lbl}_done
s_and_b64 exec, exec, vcc
s_cbranch_execz {lbl}_done
""")
        if fbr is not None: a(f"s_and_b32 s59, s58, {fb}\ns_cselect_b32 s{fbr}, s82, s83")
        if sl: a(f"s_sleep {sl}")
        a(f"""
s_branch {lbl}
{lbl}_done:
s_mov_b64 exec, -1
""")
    a("""; ---------------- helper waves
L_helper:
s_load_dwordx16 s[16:31], s[0:1], 0
s_load_dwordx8 s[32:39], s[0:1], 64
s_load_dwordx2 s[40:41], s[0:1], 96
v_and_b32 v3, 15, v0
v_lshlrev_b32 v3, 2, v3
v_mov_b32 v4, 0
ds_write_b32 v3, v4
s_setprio 3
s_sub_u32 s3, s3, 4
s_waitcnt lgkmcnt(0)
""")
    if "probe" in dbg:
        srd(52, 40, 0x10000000)
        pl = "probel" in dbg
        a(f"""
s_cmp_lt_u32 s3, 2
s_cbranch_scc1 L_noprobe
s_and_b32 s4, s3, 1
s_lshl_b32 s4, s4, 13
s_lshl_b32 s5, s2, 14
s_add_u32 s4, s4, s5
s_add_u32 s4, s4, {8 << 20}
s_mov_b64 exec, 1
s_memtime s[76:77]
s_waitcnt lgkmcnt(0)
{"s_load_dword s5, s[40:41], s4 offset:128" if "probew" in dbg else ""}
s_waitcnt lgkmcnt(0)
{"s_memtime s[76:77]" if "probew" in dbg else ""}
s_waitcnt lgkmcnt(0)
{"s_load_dword s5, s[40:41], s4" if "probes" in dbg else "buffer_load_dword v5, v4, s[52:55], s4 offen sc1" if pl else "buffer_store_dword v4, v4, s[52:55], s4 offen sc1"}
s_waitcnt vmcnt(0) lgkmcnt(0)
s_memtime s[78:79]
s_waitcnt lgkmcnt(0)
s_sub_u32 s98, s78, s76
s_mov_b32 s99, 0
s_mov_b64 exec, -1
L_noprobe:
""")
    if near: a(f"s_cmp_lt_u32 s2, {8 * near['nw']}\ns_cbranch_scc1 L_meas\nL_meas_done:")
    if "s" in warm:
        a("""
s_and_b32 s4, s2, 7
s_lshl_b32 s4, s4, 20
s_lshr_b32 s5, s2, 5
s_lshl_b32 s5, s5, 23
s_or_b32 s4, s4, s5
s_load_dword s76, s[20:21], s4
s_and_b32 s4, s2, 4
s_lshl_b32 s4, s4, 19
s_load_dword s77, s[24:25], s4
s_load_dword s78, s[36:37], 0
s_load_dword s79, s[38:39], 0
""")
    if "m" in warm:
        a("""
s_load_dword s76, s[16:17], 0
s_load_dword s77, s[22:23], 0
s_load_dword s78, s[22:23], 0x200000
s_load_dword s79, s[28:29], 0
s_load_dword s76, s[30:31], 0
s_load_dword s77, s[32:33], 0
s_load_dword s78, s[34:35], 0
""".replace("0x200000", "0xffffc"))
    srd(44, 16, 8192); srd(48, 22, 0x400000); srd(52, 40, 0x10000000); srd(56, 24, 0x400000)
    srd(60, 28, 3584); srd(64, 30, 3584); srd(68, 32, 3584)
    a(f"""
v_lshrrev_b32 v5, 4, v1
v_and_b32 v6, 7, v1
v_and_b32 v8, 15, v1
v_lshrrev_b32 v7, 5, v1
v_and_b32 v4, 31, v1
v_lshlrev_b32 v4, 4, v4
v_lshl_add_u32 v2, v7, 10, v4
s_lshl_b32 s6, s3, 11
v_mov_b32 v9, 0
v_mov_b32 v11, 1
v_lshrrev_b32 v20, 3, v1
v_lshlrev_b32 v21, 13, v20
v_lshl_add_u32 v21, v6, 4, v21
v_lshlrev_b32 v22, {12 if t2 else 10}, v20
v_lshl_add_u32 v22, v6, 4, v22
s_and_b32 s15, s2, 7
s_lshr_b32 s14, s2, 3
s_add_u32 s4, s14, {rq}
s_and_b32 s4, s4, 7
s_add_u32 s14, s14, {ro}
s_and_b32 s14, s14, 7
s_lshl_b32 s8, s15, 3
s_add_u32 s8, s8, s4
s_lshr_b32 s9, s2, 6
s_lshl_b32 s4, s9, 2
s_add_u32 s4, s4, s3
s_lshl_b32 s4, s4, 18
s_lshl_b32 s5, s8, 7
s_add_u32 s72, s4, s5
s_lshl_b32 s13, s15, 2
s_add_u32 s13, s13, s9
s_lshl_b32 s4, s13, {7 if t3 else 2}
s_add_u32 s4, s4, s3
s_lshl_b32 s4, s4, {10 if t3 else 15}
s_lshl_b32 s5, s14, 7
s_add_u32 s73, s4, s5
s_lshl_b32 s4, s3, 12
s_add_u32 s74, s4, {WQL}
s_mul_i32 s75, s3, 896
v_lshlrev_b32 v23, 1, v1
s_barrier
""")
    if "nohelp" in dbg: a("s_branch L_pre2")
    if hdel: a(f"s_sleep {hdel}")
    a(f"""
buffer_load_dwordx4 v[{X}:{X+3}], v2, s[44:47], s6 offen
buffer_load_dwordx4 v[{X+4}:{X+7}], v2, s[44:47], s6 offen offset:512
{"s_load_dword s42, s[40:41], 0" if sE else "buffer_load_dword v10, v9, s[52:55], 0 offen sc1"}
""")
    def h2touch():
        stp = h2pre[1]
        if stp == "v":
            a(f"s_lshl_b32 s4, s2, 2\ns_add_u32 s4, s4, s3\ns_lshl_b32 s4, s4, 9\ns_add_u32 s4, s4, {H2OFF}\nv_lshlrev_b32 v94, 3, v1\nbuffer_load_dwordx2 v[94:95], v94, s[52:55], s4 offen {h2pre[2]}")
            return
        a(f"s_lshl_b32 s4, s2, 2\ns_add_u32 s4, s4, s3\ns_lshl_b32 s4, s4, 9\ns_add_u32 s4, s4, {H2OFF}")
        for i in range(512 // stp): a(f"s_load_dword s{96 + (i & 3) if not prof else 27}, s[40:41], s4 offset:{i * stp}")
    if h2pre and h2pre is not True and h2pre[0] == "e": h2touch()
    if "nowq" in dbg: a("s_mov_b32 s50, 0\ns_mov_b32 s58, 0")
    if wqdel: a(f"s_sleep {wqdel}")
    for t in range(4):
        a(f"s_add_u32 m0, s74, {t*1024}\ns_nop 0\nbuffer_load_dwordx4 v21, s[48:51], s72 offen nt lds")
        if t < 3: a(f"s_add_u32 s72, s72, {8*8192}")
    def wodma(t, vr, so, sl):
        if wosw and t & 1: vr = 152
        a(f"s_add_u32 m0, s{sl}, {16384+t*1024}\ns_nop 0\nbuffer_load_dwordx4 v{vr}, {'s[56:59]' if wolate is None else 's[68:71]'}, s{so} offen nt lds")
        if t < 3: a(f"s_add_u32 s{so}, s{so}, {32768 if t3 else 1024 if t2 else 8*1024}")
    if wolate is None:
        for t in range(4): wodma(t, 22, 73, 74)
    else:
        if wosw: a("v_and_b32 v90, 1, v5\nv_lshlrev_b32 v90, 5, v90\nv_xor_b32 v90, v90, v22\nv_xor_b32 v152, 64, v90\ns_mov_b32 s22, s73\ns_mov_b32 s23, s74")
        else: a("v_mov_b32 v90, v22\ns_mov_b32 s22, s73\ns_mov_b32 s23, s74")
    NW = 0 if wolate is None else 4
    for t in range(7):
        a(f"buffer_load_ushort v{W1+t}, v23, s[60:63], s75 offen offset:{128*t}")
        a(f"buffer_load_ushort v{B1+t}, v23, s[64:67], s75 offen offset:{128*t}")
        a(f"buffer_load_ushort v{W2+t}, v23, s[68:71], s75 offen offset:{128*t}")
    srd(60, 34, 2); srd(64, 36, 8192); srd(68, 24, 0 if ('nowq' in dbg or 'nowo2' in dbg) else 0x400000)
    a(f"""
v_and_b32 v30, 3, v1
v_lshlrev_b32 v30, {3 if t3 else 1}, v30
v_lshl_add_u32 v30, v5, {1 if t3 else 5}, v30
""" + ("s_lshl_b32 s10, s2, 5" if t3 else """s_lshr_b32 s10, s2, 2
s_lshl_b32 s10, s10, 7
s_and_b32 s4, s2, 3
s_lshl_b32 s4, s4, 3
s_add_u32 s10, s10, s4""") + f"""
buffer_load_ushort v31, v9, s[60:63], 0 offen
buffer_load_ushort v29, v30, s[44:47], s10 offen
s_mov_b32 s16, 0x07060500
s_mov_b32 s17, 0x07060501
s_mov_b32 s18, 0x07060502
s_mov_b32 s19, 0x07060503
s_mov_b32 s20, 0x0c0c0400
s_mov_b32 s21, 0x04000c0c
s_getreg_b32 s43, hwreg(HW_REG_XCC_ID, 0, 4)
s_lshl_b32 s43, s43, 3
s_add_u32 s43, s43, s15
s_lshl_b32 s43, s43, 7
s_add_u32 s43, s43, {LOCOFF}
s_lshr_b32 s59, s2, 3
s_lshl_b32 s59, s59, 2
s_add_u32 s59, s59, s43
s_mov_b32 s11, 0x3f803f80
v_mov_b32 v{S1}, 0
v_mov_b32 v{S2}, 0
s_waitcnt lgkmcnt(0)
s_add_u32 s42, s42, 1
s_mul_i32 s12, s42, 0x01010101
v_mov_b32 v10, s12
s_cmp_eq_u32 s3, 0
s_cselect_b64 exec, 1, 0
buffer_store_dword v10, v9, s[52:55], s59 offen
s_mov_b64 exec, -1
s_waitcnt vmcnt({32 - NW + (1 if h2pre and h2pre is not True and h2pre[:2] == ('e', 'v') else 0)})
""")
    for i in range(8):
        a(f"v_dot2_f32_bf16 v{S1}, v{X+i}, s11, v{S1}")
        a(f"v_dot2_f32_bf16 v{S2}, v{X+i}, v{X+i}, v{S2}")
    for n in (8, 4, 2, 1):
        a(f"v_add_f32_dpp v{S1}, v{S1}, v{S1} row_ror:{n} row_mask:0xf bank_mask:0xf")
        a(f"v_add_f32_dpp v{S2}, v{S2}, v{S2} row_ror:{n} row_mask:0xf bank_mask:0xf")
    a(f"""
v_mov_b32 v{T0}, v{S1}
v_mov_b32 v{T1}, v{S2}
v_permlane16_swap_b32 v{S1}, v{T0}
v_permlane16_swap_b32 v{S2}, v{T1}
v_add_f32 v{S1}, v{S1}, v{T0}
v_add_f32 v{S2}, v{S2}, v{T1}
""")
    stats_finish()
    normalize(X, X, 8, 20)
    a(f"""
s_mul_i32 s4, s3, {2*XRS}
v_mul_u32_u24 v2, {XRS}, v7
v_add3_u32 v2, v2, v4, s4
ds_write_b128 v2, v[{X}:{X+3}] offset:{XN}
ds_write_b128 v2, v[{X+4}:{X+7}] offset:{XN+512}
v_mul_u32_u24 v2, {XRS}, v6
v_lshl_add_u32 v2, v5, 4, v2
s_lshl_b32 s4, s9, 8
v_add_u32 v2, s4, v2
v_bfe_u32 v3, v1, 2, 2
v_lshl_add_u32 v3, v5, 3, v3
v_lshlrev_b32 v3, 7, v3
v_and_b32 v20, 3, v1
v_lshl_add_u32 v3, v20, 3, v3
s_lshl_b32 s4, s3, 5
v_add_u32 v24, s4, v3
s_waitcnt vmcnt(24) lgkmcnt(0)
""")
    lds_signal(FLG + 8)
    a(f"""
v_and_b32 v27, 31, v1
v_lshlrev_b32 v27, 2, v27
buffer_load_dword v150, v27, s[52:55], s43 offen nt
v_lshlrev_b32 v25, 4, v5
v_lshl_add_u32 v25, v6, 11, v25
s_lshr_b32 s4, s8, 1
s_lshl_b32 s4, s4, 5
s_add_u32 s4, s4, s9
s_lshl_b32 s4, s4, 1
s_and_b32 s5, s8, 1
s_add_u32 s4, s4, s5
s_lshl_b32 s4, s4, 2
s_add_u32 s4, s4, s3
s_lshl_b32 s4, s4, 6
s_add_u32 s72, s4, {QOFF}
s_mov_b32 s26, 0
""")
    if qprew: a("v_not_b32 v132, v10\nv_not_b32 v133, v10\nv_not_b32 v134, v10\nv_not_b32 v135, v10\ns_mov_b32 exec_lo, 0x00ff00ff\ns_mov_b32 exec_hi, 0x00ff00ff\nbuffer_store_dwordx4 v[132:135], v25, s[52:55], s72 offen\ns_mov_b64 exec, -1")
    lds_wait("L_xw", FLG + 8, 4)
    for t in range(4):
        a(f"ds_read_b128 v[{96+4*t}:{99+4*t}], v2 offset:{XN+64*t}")
        for u in range(2): a(f"ds_read_b64_tr_b16 v[{112+4*t+2*u}:{113+4*t+2*u}], v24 offset:{WQL+t*4096+u*512}")
    a("s_waitcnt lgkmcnt(0)")
    stamp(1)
    for t in range(4):
        a(f"v_mfma_f32_16x16x32_bf16 v[128:131], v[{112+4*t}:{115+4*t}], v[{96+4*t}:{99+4*t}], {'0' if t == 0 else 'v[128:131]'}")
    pack16(132, [128, 129, 130, 131], 10)
    if "cutq" in dbg: a("s_branch L_pre2")
    a(f"""
s_movk_i32 s58, {nloc}
L_lc:
s_waitcnt vmcnt(0)
v_cmp_ne_u32 vcc, s12, v150
s_cbranch_vccz L_lc_done
buffer_load_dword v150, v27, s[52:55], s43 offen nt
s_sub_u32 s58, s58, 1
s_cbranch_scc0 L_lc
s_mov_b32 s26, 1
L_lc_done:
{"s_mov_b32 s26, 1" if clean else ""}
{"s_and_b32 s26, s3, 1" if "mixw" in dbg else ""}
{"s_bfe_u32 s26, s2, 0x10003" if "mixj" in dbg else ""}
s_mov_b32 exec_lo, 0x00ff00ff
s_mov_b32 exec_hi, 0x00ff00ff
s_cmp_lg_u32 s26, 0
s_cbranch_scc1 L_qs_far
buffer_store_dwordx4 v[132:135], v25, s[52:55], s72 offen
L_qs_done:
s_mov_b64 exec, -1
""")
    if near: a(f"s_lshl_b32 s4, s3, 8\ns_add_u32 s4, s4, s2\ns_sub_u32 s4, s4, 512\ns_cmp_lt_u32 s4, {8 * near['nw']}\ns_cbranch_scc1 L_mpub\nL_mpub_done:")
    if "cutp" in dbg: a("s_branch L_pre2")
    stamp(2)
    a(f"s_setprio {bgprio}")
    def woread(vr, kks=None):
        if own1:
            for kk in (kks or [1, 2, 3]):
                for nt_ in range(4):
                    for u in range(2): a(f"ds_read_b64_tr_b16 v[{WB+16*nt_+4*kk+2*u}:{WB+16*nt_+4*kk+2*u+1}], v{176+4*kk+nt_} offset:{WQL+16384+u*512}")
            return
        if t3:
            for nt_ in range(4):
                for u in range(2): a(f"ds_read_b64_tr_b16 v[{WB+4*nt_+2*u}:{WB+4*nt_+2*u+1}], v{153+nt_} offset:{WQL+16384+u*512}")
            return
        for nt_ in range(4):
            for kk in range(4):
                for u in range(2):
                    r = WB + 16 * nt_ + 4 * kk + 2 * u
                    if wosw: a(f"ds_read_b64_tr_b16 v[{r}:{r+1}], v{153+nt_} offset:{WQL+16384+kk*4096+u*512}")
                    else: a(f"ds_read_b64_tr_b16 v[{r}:{r+1}], v{vr} offset:{WQL+16384+kk*4096+u*512+nt_*32}")
    if wolate is None: woread(3)
    elif wosw: a("v_bfe_u32 v153, v1, 3, 2\nv_lshl_add_u32 v153, v153, 5, v3\n" + ("s_lshl_b32 s4, s3, 12\nv_add_u32 v153, s4, v153\n" if t3 else "") + "v_xor_b32 v154, 32, v153\nv_xor_b32 v155, 64, v153\nv_xor_b32 v156, 0x60, v153")
    else: a("v_mov_b32 v91, v3")
    a(f"""
s_lshr_b32 s4, s2, 5
s_mul_i32 s4, s4, {XRS}
v_lshl_add_u32 v2, v1, 4, s4
ds_read_b128 v[{HX}:{HX+3}], v2 offset:{XN}
v_mov_b32 v{S1}, 0
v_mov_b32 v{S2}, 0
s_waitcnt lgkmcnt(0)
""")
    for i in range(4):
        a(f"v_dot2_f32_bf16 v{S1}, v{HX+i}, s11, v{S1}")
        a(f"v_dot2_f32_bf16 v{S2}, v{HX+i}, v{HX+i}, v{S2}")
    for n in (8, 4, 2, 1):
        a(f"v_add_f32_dpp v{S1}, v{S1}, v{S1} row_ror:{n} row_mask:0xf bank_mask:0xf")
        a(f"v_add_f32_dpp v{S2}, v{S2}, v{S2} row_ror:{n} row_mask:0xf bank_mask:0xf")
    swaps_add(S1, T0); swaps_add(S2, T1)
    stats_finish()
    normalize(HX, HX, 4, 20)
    if t3:
        a("s_and_b32 s4, s2, 31\ns_lshl_b32 s4, s4, 1")
        for i in range(4): a(f"v_readlane_b32 s{72+i}, v{HX+i}, s4")
        a("s_add_u32 s4, s4, 1")
        for i in range(4): a(f"v_readlane_b32 s{76+i}, v{HX+i}, s4")
    else: a(f"""
s_bitcmp1_b32 s2, 0
s_cselect_b64 vcc, -1, 0
s_bfe_u32 s4, s2, 0x30002
s_lshl_b32 s4, s4, 3
s_bfe_u32 s5, s2, 0x10001
s_add_u32 s4, s4, s5
v_cndmask_b32 v{HX}, v{HX}, v{HX+2}, vcc
v_cndmask_b32 v{HX+1}, v{HX+1}, v{HX+3}, vcc
""")
    for i in range(0 if t3 else 4):
        a(f"v_readlane_b32 s{72+2*i}, v{HX}, s4\nv_readlane_b32 s{73+2*i}, v{HX+1}, s4")
        if i < 3: a("s_add_u32 s4, s4, 2")
    a("s_waitcnt vmcnt(2)")
    for i in range(21): a(f"v_lshlrev_b32 v{W1+i}, 16, v{W1+i}")
    c0 = -2 * LOG2E * math.sqrt(2 / math.pi); c1 = c0 * 0.044715
    a(f"""
v_mov_b32 v{C1}, {f32(c1)}
s_lshl_b32 s4, s3, 6
v_mov_b32 v{YA}, s4
""")
    def mlp_steps(lo, hi):
        for d in range(lo, hi):
            if d & 1: a(f"s_and_b32 s4, s{72+(d>>1)}, 0xffff0000")
            else: a(f"s_lshl_b32 s4, s{72+(d>>1)}, 16")
            if "nomlp" not in dbg: a("s_call_b64 s[80:81], L_mlp")
            if wolate is not None and wotrig is None and d in wolate: wodma(wolate.index(d), 90, 22, 23)
    mlp_steps(0, mlp1)
    a("; gather the four K-split partials of q (head = helper index) and hand q to the stream waves through LDS")
    a(f"""
s_setprio 3
s_lshr_b32 s4, s2, 5
s_lshl_b32 s4, s4, 11
s_lshl_b32 s5, s15, 2
s_add_u32 s5, s5, s3
s_lshl_b32 s5, s5, 14
s_add_u32 s4, s4, s5
s_add_u32 s6, s4, {QOFF}
v_lshlrev_b32 v2, 4, v1
s_cmp_lg_u32 s26, 0
s_cbranch_scc1 L_gq_far
""")
    def qpoll(sfx, fl):
        poll("L_gq" + sfx, [f"buffer_load_dwordx4 v[{96+4*k}:{99+4*k}], v2, s[52:55], s6 offen offset:{1024*k} {fl}" for k in range(2)],
             lambda: chk16([96, 100], 104, 12), sl=qslp)
    qpoll("", "nt")
    a("L_gq_got:")
    for i in range(8): a(f"v_and_b32 v{96+i}, 0xffffff00, v{96+i}")
    for i in range(4): a(f"v_add_f32 v{96+i}, v{96+i}, v{100+i}")
    a(f"""
s_lshl_b32 s4, s3, 8
v_and_b32 v2, 31, v1
v_lshl_add_u32 v2, v2, 3, s4
v_lshl_add_u32 v2, v7, 2, v2
v_permlane32_swap_b32 v96, v98
v_permlane32_swap_b32 v97, v99
v_add_f32 v96, v96, v98
v_add_f32 v97, v97, v99
v_cvt_pk_bf16_f32 v96, v96, v97
ds_write_b32 v2, v96 offset:{QL}
s_waitcnt lgkmcnt(0)
""")
    lds_signal(FLG + 4)
    stamp(3)
    if "cutg" in dbg: a("s_branch L_pre2")
    a(f"s_setprio {bgprio}")
    if h2pre and h2pre is not True and h2pre[0] == "q": h2touch()
    mlp_steps(mlp1, 16)
    a("s_waitcnt vmcnt(0) lgkmcnt(0)")
    lds_signal(FLG + 12)
    a(f"""
v_lshrrev_b32 v2, 2, v1
v_mul_u32_u24 v20, 144, v2
v_and_b32 v3, 3, v1
v_lshl_add_u32 v20, v3, 5, v20
s_lshl_b32 s4, s3, 2
s_add_u32 s4, s4, {OP}
v_add_u32 v20, s4, v20
v_add_u32 v21, 2304, v20
v_add_u32 v22, 4608, v20
v_add_u32 v23, 6912, v20
s_lshl_b32 s4, s3, 3
v_mov_b32 v24, s4
v_lshrrev_b32 v25, 5, v1
v_lshlrev_b32 v25, 7, v25
v_bfe_u32 v2, v1, 4, 1
v_lshl_add_u32 v25, v2, 11, v25
v_bfe_u32 v2, v1, 1, 1
v_lshl_add_u32 v25, v2, 10, v25
v_bfe_u32 v2, v1, 2, 2
v_lshl_add_u32 v25, v2, 8, v25
v_and_b32 v2, 1, v1
v_lshl_add_u32 v25, v2, 3, v25
v_lshlrev_b32 v26, 4, v1
v_and_b32 v2, 1, v5
v_lshl_add_u32 v27, v2, 2, v3
v_lshlrev_b32 v27, 4, v27
v_lshlrev_b32 v28, {6 if h2full else 16}, v2
v_bfe_u32 v2, v1, 2, 2
v_lshl_add_u32 v28, v2, {12 if h2full else 11}, v28
v_lshl_add_u32 v28, v3, 4, v28
v_lshrrev_b32 v19, 2, v1
v_lshlrev_b32 v19, {7 if h2full else 6}, v19
v_lshl_add_u32 v19, v3, 4, v19
s_lshl_b32 s4, s15, 2
s_add_u32 s4, s4, s3
s_lshl_b32 s4, s4, 2
s_add_u32 s4, s4, s9
s_mul_i32 s4, s4, {H1S}
s_bfe_u32 s5, s2, 0x30003
s_lshl_b32 s5, s5, 4
s_add_u32 s4, s4, s5
s_add_u32 s6, s4, {H1OFF}
s_lshl_b32 s4, s13, 2
s_add_u32 s4, s4, s3
s_mul_i32 s4, s4, {H1S}
s_add_u32 s7, s4, {H1OFF}
s_lshl_b32 s4, s3, {5 if h2full else 6}
s_lshl_b32 s5, s14, 2
s_add_u32 s4, s4, s5
s_lshl_b32 s4, s4, {12 if h2full else 11}
s_lshl_b32 s5, s13, {7 if h2full else 6}
s_add_u32 s4, s4, s5
s_add_u32 s8, s4, {H2OFF}
""")
    if t2: a(f"""
v_lshlrev_b32 v20, 4, v8
v_lshl_add_u32 v20, v5, 2, v20
s_lshl_b32 s4, s3, 8
s_add_u32 s4, s4, {OP}
v_add_u32 v20, s4, v20
v_lshlrev_b32 v24, 3, v5
v_mul_u32_u24 v25, {4*H1S}, v5
v_lshl_add_u32 v25, v8, 3, v25
s_lshl_b32 s4, s15, 4
s_add_u32 s4, s4, s9
s_mul_i32 s4, s4, {H1S}
s_bfe_u32 s5, s2, 0x30003
s_lshl_b32 s5, s5, 9
s_add_u32 s4, s4, s5
s_lshl_b32 s5, s3, 7
s_add_u32 s4, s4, s5
s_add_u32 s28, s4, {H1OFF}
v_bfe_u32 v2, v1, 3, 1
v_lshlrev_b32 v26, 11, v2
v_lshl_add_u32 v26, v5, 7, v26
v_lshl_add_u32 v26, v6, 4, v26
v_lshl_add_u32 v27, v2, 2, v3
v_lshlrev_b32 v27, 4, v27
v_lshlrev_b32 v28, 16, v7
v_bfe_u32 v2, v1, 2, 2
v_lshl_add_u32 v28, v2, 11, v28
v_lshl_add_u32 v28, v3, 4, v28
s_lshl_b32 s29, s3, 4
""")
    if own1:
        a("s_lshl_b32 s4, s3, 1\nv_add_u32 v2, s4, v6\nv_and_b32 v2, 7, v2\nv_and_b32 v26, 0xffffff8f, v26\nv_lshl_add_u32 v26, v2, 4, v26")
        for kk in range(4):
            a(f"s_add_u32 s4, s3, {kk}\ns_and_b32 s4, s4, 3\ns_lshl_b32 s4, s4, 12")
            for nt_ in range(4): a(f"v_add_u32 v{176+4*kk+nt_}, s4, v{153+nt_}")
    RBB = WQL
    if t3:
        a(f"""
v_mul_u32_u24 v25, {4*H1S}, v5
v_lshrrev_b32 v2, 1, v8
v_lshl_add_u32 v25, v2, 7, v25
v_and_b32 v2, 1, v1
v_lshl_add_u32 v25, v2, 3, v25
s_lshl_b32 s4, s15, 4
s_add_u32 s4, s4, s3
s_mul_i32 s4, s4, {H1S}
s_bfe_u32 s5, s2, 0x20003
s_lshl_b32 s5, s5, 10
s_add_u32 s4, s4, s5
s_lshr_b32 s5, s2, 5
s_lshl_b32 s5, s5, 4
s_add_u32 s4, s4, s5
s_add_u32 s28, s4, {H1OFF}
v_lshlrev_b32 v26, 4, v1
v_bfe_u32 v2, v1, 3, 2
v_mul_u32_u24 v27, {H1S}, v2
v_lshl_add_u32 v27, v6, 4, v27
s_mul_i32 s30, s13, {4*H1S}
s_add_u32 s30, s30, {H1OFF}
v_lshrrev_b32 v2, 2, v1
v_lshlrev_b32 v28, 16, v2
v_lshl_add_u32 v28, v3, 4, v28
s_lshl_b32 s4, s14, 2
s_add_u32 s4, s4, s3
s_lshl_b32 s4, s4, 11
s_lshl_b32 s5, s13, 6
s_add_u32 s4, s4, s5
s_add_u32 s8, s4, {H2OFF}
v_mul_u32_u24 v21, 320, v5
v_lshl_add_u32 v21, v8, 4, v21
s_mul_i32 s4, s3, 2560
v_add_u32 v21, s4, v21
v_mul_u32_u24 v22, 320, v3
v_and_b32 v2, 7, v2
v_lshl_add_u32 v22, v2, 4, v22
s_lshr_b32 s4, s3, 1
s_mul_i32 s4, s4, 1280
s_and_b32 s5, s3, 1
s_lshl_b32 s5, s5, 7
s_add_u32 s4, s4, s5
v_add_u32 v22, s4, v22
v_lshlrev_b32 v23, 4, v6
""")
        if t3 == 2: a(f"""
v_mul_u32_u24 v25, {4*H1S}, v5
v_lshl_add_u32 v25, v8, 3, v25
s_lshr_b32 s5, s2, 5
s_mul_i32 s5, s5, 112
s_add_u32 s28, s28, s5
v_lshrrev_b32 v23, 3, v1
v_lshlrev_b32 v23, 4, v23
v_lshlrev_b32 v184, 5, v6
v_lshl_add_u32 v184, v5, 3, v184
v_add_u32 v185, 4, v184
s_mov_b32 s32, 0x00ff00ff
s_mov_b32 s33, 0x00ff00ff
""")
        for i in range(8 if t3 == 1 else 0): a(f"v_mov_b32 v{176+i}, 0")
    if not h2full: a("s_lshl_b32 s9, s2, 11")
    else: a("""
s_lshr_b32 s9, s2, 6
s_lshl_b32 s9, s9, 5
s_and_b32 s4, s2, 31
s_add_u32 s9, s9, s4
s_lshl_b32 s9, s9, 12
s_bfe_u32 s4, s2, 0x10005
s_lshl_b32 s4, s4, 6
s_add_u32 s9, s9, s4
""")
    h2l = [f"buffer_load_dwordx4 v[{136+4*k}:{139+4*k}], v19, s[52:55], s9 offen offset:{(2048 if h2full else 1024)*k} {h2fl}" for k in range(2)]
    a(f"""
s_add_u32 s9, s9, {H2OFF}
""")
    if near:
        a(f"s_mov_b32 s5, {CWOFF}\nv_and_b32 v2, {8 * near['nw'] - 1}, v1\nv_lshlrev_b32 v2, 3, v2")
        poll("L_cwp", ["buffer_load_dwordx2 v[94:95], v2, s[52:55], s5 offen sc1"], lambda: chk8([95], 80), sl=4)
        a(f"""
v_sub_u32 v95, 0, v94
v_cmp_gt_u32 vcc, 4, v6
v_cndmask_b32 v94, v95, v94, vcc
v_add_u32_dpp v94, v94, v94 row_ror:8 row_mask:0xf bank_mask:0xf
v_add_u32_dpp v94, v94, v94 row_ror:4 row_mask:0xf bank_mask:0xf
v_add_u32_dpp v94, v94, v94 row_ror:2 row_mask:0xf bank_mask:0xf
v_add_u32_dpp v94, v94, v94 row_ror:1 row_mask:0xf bank_mask:0xf
v_readfirstlane_b32 s4, v94
s_cmp_gt_i32 s4, 0
s_cselect_b32 s4, {0x2000 if not near.get("inv") else 0}, {0x2000 if near.get("inv") else 0}
s_xor_b32 s8, s8, s4
s_xor_b32 s9, s9, s4
""")
    if h2pre and h2pre is not True and h2pre[0] == "m": h2touch()
    if wolate is not None and wotrig is None:
        lds_wait("L_yw", FLG + 12, 4); woread(91)
    if not fin: a("""
s_cmp_lg_u32 s3, 0
s_cbranch_scc1 L_ready
""")
    if wolate is None or wotrig is not None: lds_wait("L_yw", FLG + 12, 4)
    if h2pre is True:
        for l in h2l: a(l)
    if "o" in warm: a("buffer_load_ushort v94, v30, s[64:67], s10 offen")
    if tlbw: a(f"s_mov_b32 s4, {H2OFF + (1 << 20) - 4096}\nbuffer_load_dword v94, v9, s[52:55], s4 offen")
    a(f"""
{"v_lshl_add_u32 v2, v3, 2, v5" if t3 else "v_lshl_add_u32 v2, v5, 2, v3"}
v_lshlrev_b32 v2, 2, v2
ds_read_b32 v32, v2 offset:{YP}
ds_read_b32 v33, v2 offset:{YP+64}
ds_read_b32 v34, v2 offset:{YP+128}
ds_read_b32 v35, v2 offset:{YP+192}
v_lshlrev_b32 v31, 16, v31
s_waitcnt lgkmcnt(0)
v_add_f32 v32, v32, v33
v_add_f32 v34, v34, v35
v_add_f32 v32, v32, v34
v_cvt_pk_bf16_f32 v32, v32, v32
v_lshlrev_b32 v32, 16, v32
v_add_f32 v32, v32, v31
v_cvt_pk_bf16_f32 v32, v32, v32
v_lshlrev_b32 v32, 16, v32
v_mul_f32 v34, {f32(-LOG2E)}, v32
v_exp_f32 v34, v34
v_add_f32 v34, 1.0, v34
v_rcp_f32 v34, v34
v_mul_f32 v32, v32, v34
v_cvt_pk_bf16_f32 v32, v32, v32
v_lshlrev_b32 v16, 16, v32
v_lshlrev_b32 v14, 16, v29
L_ready:
""")
    if "cuts" in dbg: a("s_branch L_pre2")
    a("; softmax statistics: merge the four waves, publish {max, sum}, fetch the group's statistics, form the split weights")
    lds_wait("L_sw", FLG + 16, 4, sl=8)
    a(f"""
ds_read_b64 v[32:33], v24 offset:{ST}
ds_read_b64 v[34:35], v24 offset:{ST+32}
ds_read_b64 v[36:37], v24 offset:{ST+64}
ds_read_b64 v[38:39], v24 offset:{ST+96}
s_waitcnt lgkmcnt(0)
v_max3_f32 v48, v32, v34, v36
v_max_f32 v48, v48, v38
v_sub_f32 v32, v32, v48
v_sub_f32 v34, v34, v48
v_sub_f32 v36, v36, v48
v_sub_f32 v38, v38, v48
v_exp_f32 v32, v32
v_exp_f32 v34, v34
v_exp_f32 v36, v36
v_exp_f32 v38, v38
v_mov_b32 v49, v10
v_mov_b32 v51, v10
v_mul_f32 v50, v32, v33
v_fmac_f32 v50, v34, v35
v_fmac_f32 v50, v36, v37
v_fmac_f32 v50, v38, v39
v_mov_b32 v53, v10
{"s_lshl_b64 exec, 1, s29" if t2 else "s_mov_b64 exec, 1"}
s_cmp_lg_u32 s26, 0
s_cbranch_scc1 L_st_far
buffer_store_dwordx4 v[48:51], v9, s[52:55], s6 offen
s_mov_b64 exec, -1
""")
    if t2 and prew: a("v_not_b32 v60, v10\nv_not_b32 v61, v10\nbuffer_store_dwordx2 v[60:61], v25, s[52:55], s28 offen offset:128")
    poll("L_sp", [f"buffer_load_dwordx4 v[40:43], v27, s[52:55], s{30 if t3 else 7} offen {h1fl}"], lambda: chk8([41, 43], 80), sl=8)
    a(f"""
s_branch L_st_done
L_st_far:
buffer_store_dwordx4 v[48:51], v9, s[52:55], s6 offen sc1
s_mov_b64 exec, -1
""")
    poll("L_spx", [f"buffer_load_dwordx4 v[40:43], v27, s[52:55], s{30 if t3 else 7} offen sc1"], lambda: chk8([41, 43], 80), sl=8)
    a("L_st_done:")
    def ptouch(mode, fl):
        if mode == 8: a(f"s_lshl_b32 s4, s14, 9\ns_add_u32 s4, s4, s7\ns_mov_b64 exec, 0xffffffff\nbuffer_load_dwordx4 v[64:67], v26, s[52:55], s4 offen offset:128 {fl}\ns_mov_b64 exec, -1")
        else:
            for k in range(4): a(f"buffer_load_dwordx4 v[{64+4*k}:{67+4*k}], v26, s[52:55], s7 offen offset:{128+k*1024} {fl}")
    if pretouch and pretouch[0] == "s": ptouch(pretouch[1], pretouch[2])
    a("""
v_max_f32_dpp v44, v40, v40 quad_perm:[1,0,3,2] row_mask:0xf bank_mask:0xf
v_max_f32_dpp v45, v44, v44 quad_perm:[2,3,0,1] row_mask:0xf bank_mask:0xf
v_sub_f32 v40, v40, v45
v_exp_f32 v40, v40
v_mul_f32 v42, v40, v42
v_add_f32_dpp v44, v42, v42 quad_perm:[1,0,3,2] row_mask:0xf bank_mask:0xf
v_add_f32_dpp v45, v44, v44 quad_perm:[2,3,0,1] row_mask:0xf bank_mask:0xf
v_rcp_f32 v45, v45
v_mul_f32 v40, v40, v45
v_mov_b32_dpp v56, v40 quad_perm:[0,0,0,0] row_mask:0xf bank_mask:0xf
v_mov_b32_dpp v57, v40 quad_perm:[1,1,1,1] row_mask:0xf bank_mask:0xf
v_mov_b32_dpp v58, v40 quad_perm:[2,2,2,2] row_mask:0xf bank_mask:0xf
v_mov_b32_dpp v59, v40 quad_perm:[3,3,3,3] row_mask:0xf bank_mask:0xf
""" + ("\n".join(f"ds_bpermute_b32 v{56+i}, v23, v{56+i}" for i in range(4)) if t3 else "") + """
L_pre2:
s_setprio """ + str(hp) + """
s_waitcnt vmcnt(0) lgkmcnt(0)
""")
    if wotrig is not None and wotrig >= 0:
        if defer:
            srd(48, 38, 256)
            a(f"""
s_getreg_b32 s4, hwreg(HW_REG_XCC_ID, 0, 3)
s_lshl_b32 s4, s4, 5
v_lshl_add_u32 v92, v6, 2, s4
s_mov_b32 s28, {(0x80 - defer[2]) * 0x01010101}
s_mov_b32 s29, 0x80808080
""")
        if wodl is not None: a(f"""
s_mov_b32 s58, {spin*8}
L_wt:
ds_read2_b32 v[60:61], v9 offset0:{(FLG+28)//4} offset1:{(FLG+48)//4}
s_memrealtime s[76:77]
{f"s_sleep {wosl}" if wosl else ""}
s_waitcnt lgkmcnt(0)
v_readfirstlane_b32 s59, v60
v_readfirstlane_b32 s27, v61
s_sub_u32 s58, s58, 1
s_cbranch_scc1 L_wt_done
s_cmp_ge_u32 s59, {wothr}
s_cbranch_scc1 L_wt_done
s_cmp_eq_u32 s27, 0
s_cbranch_scc1 L_wt
s_sub_u32 s27, s76, s27
s_cmp_lt_i32 s27, 0
s_cbranch_scc1 L_wt
L_wt_done:
""")
        else:
            a("; Wo tile is fetched when this workgroup's V stream is nearly drained, so it overlaps the hop-1 hand-off")
            lds_wait("L_wt", FLG + 28, wothr, sl=wosl, msk=bool(defer))
        if defer: a(f"s_lshr_b32 s27, s59, 8\ns_cmp_ge_u32 s27, {defer[1]}\ns_cselect_b32 s27, 1, 0\ns_andn2_b32 s27, s27, s26\ns_cbranch_scc1 L_wt_skip")
        if pretouch and pretouch[0] == "b": ptouch(pretouch[1], pretouch[2])
        for t in range(4): wodma(t, 90, 22, 23)
        if pretouch and pretouch[0] == "a": ptouch(pretouch[1], pretouch[2])
        if defer: a("L_wt_skip:")
    stamp(4)
    if not dp: a("s_barrier")
    if wotrig is not None and wotrig < 0:
        for t in range(4): wodma(t, 90, 22, 23)
    if isinstance(dbgt, str): a("s_memrealtime s[92:93]")
    if prof: a("s_waitcnt lgkmcnt(0)")
    if "notail" in dbg:
        stamp(5); stamp(6); a("s_branch L_hend")
    if tailprof: stamp(1); a("s_waitcnt lgkmcnt(0)")
    PKC = """s_waitcnt lgkmcnt(2)
v_mul_f32 v40, v32, v40
v_mul_f32 v41, v32, v41
v_fmac_f32 v40, v34, v42
v_fmac_f32 v41, v34, v43
s_waitcnt lgkmcnt(0)
v_mul_f32 v44, v36, v44
v_mul_f32 v45, v36, v45
v_fmac_f32 v40, v38, v46
v_fmac_f32 v41, v38, v47
v_add_f32 v40, v40, v44
v_add_f32 v41, v41, v45""" if not pkc else """s_waitcnt lgkmcnt(3)
v_pk_mul_f32 v[40:41], v[40:41], v[32:33] op_sel_hi:[1,0]
s_waitcnt lgkmcnt(2)
v_pk_fma_f32 v[40:41], v[42:43], v[34:35], v[40:41] op_sel_hi:[1,0,1]
s_waitcnt lgkmcnt(1)
v_pk_fma_f32 v[40:41], v[44:45], v[36:37], v[40:41] op_sel_hi:[1,0,1]
s_waitcnt lgkmcnt(0)
v_pk_fma_f32 v[40:41], v[46:47], v[38:39], v[40:41] op_sel_hi:[1,0,1]"""
    if t2:
        for w_ in range(4): a(f"ds_read2st64_b32 v[{40+2*w_}:{41+2*w_}], v20 offset0:{8*w_} offset1:{8*w_+4}")
    elif not dp: a("""
ds_read2_b32 v[40:41], v20 offset0:0 offset1:4
ds_read2_b32 v[42:43], v21 offset0:0 offset1:4
ds_read2_b32 v[44:45], v22 offset0:0 offset1:4
ds_read2_b32 v[46:47], v23 offset0:0 offset1:4
""")
    if not dp: a(f"""
{PKC}
s_cmp_lg_u32 s26, 0
v_cvt_pk_bf16_f32 v52, v40, v41
s_cbranch_scc1 L_h1_far
buffer_store_dwordx2 v[52:53], v25, s[52:55], s{28 if t2 else 6} offen offset:128
L_h1_st:
""")
    stamp(5)
    if wotrig is not None:
        if defer: a("s_cmp_lg_u32 s27, 0\ns_cbranch_scc1 L_dfr")
        if h1e:
            a("s_cmp_lg_u32 s26, 0\ns_cbranch_scc1 L_h1e_far")
            for e_ in range(h1e[0]):
                if len(h1e) > 2: a(f"s_waitcnt vmcnt({h1e[2][e_] + 4 * e_})")
                elif e_: a(f"s_sleep {h1e[1]}")
                for k in range(4): a(f"buffer_load_dwordx4 v[{64+4*k}:{67+4*k}], v26, s[52:55], s7 offen offset:{128+k*(512 if t2 and not t3 else 1024)} {h1fl}")
            a(f"s_waitcnt vmcnt({1 + 4 * h1e[0]})\nL_h1e_done:")
        else: a(f"s_waitcnt vmcnt({0 if dp else 1})")
        if defer: a("L_dfr_done:")
        if dp: stamp(5)
        if "wol" in dbg and "h1it" not in dbg and "h1vm" not in dbg: stamp(3)
        if own1: woread(91, [0])
        if wbar: a("s_barrier")
        elif not t3:
            lds_signal(FLG + 20)
            lds_wait("L_wl", FLG + 20, 4)
        if "wol" in dbg: stamp(1)
        if not womid: woread(91)
        if dp and dpw: lds_wait("L_pw", FLG + 40, dpw)
    a("s_cmp_lg_u32 s26, 0\ns_cbranch_scc1 L_h1_farp")
    def h1poll(sfx, fl, pipe):
        full = [f"buffer_load_dwordx4 v[{64+4*k}:{67+4*k}], v26, s[52:55], s7 offen offset:{128+k*(512 if t2 and not t3 else 1024)} {fl}" for k in range(4)]
        if h1m and sfx == "":
            assert h1e
            a(f"s_mov_b32 s58, {spin}"); woread(91)
            a("L_h1_chk:\ns_waitcnt vmcnt(0)" if h1m == 1 else "s_waitcnt vmcnt(0)\nL_h1_chk:")
            for k in range(4): a(f"v_bitop3_b32 v{80+k}, v{65+4*k}, v{67+4*k}, s12 bitop3:0x7e")
            for k in range(4): a(f"v_cmp_ne_u32 s[{72+2*k}:{73+2*k}], 0, v{80+k}")
            a("s_or_b64 vcc, s[72:73], s[74:75]\ns_or_b64 s[82:83], s[76:77], s[78:79]\ns_or_b64 vcc, vcc, s[82:83]\ns_cbranch_scc0 L_h1_got\ns_sub_u32 s58, s58, 1\ns_cbranch_scc1 L_h1_got")
            if "h1it" in dbg: stamp(4)
            for k in range(4): a(f"s_mov_b64 exec, s[{72+2*k}:{73+2*k}]\n" + full[k])
            a("s_mov_b64 exec, -1")
            if slp: a(f"s_sleep {slp}")
            if h1m > 1: a(f"s_waitcnt vmcnt({4 * (h1m - 1)})")
            a("s_branch L_h1_chk")
            return
        poll("L_h1" + sfx, full, lambda: chk8([65, 67, 69, 71, 73, 75, 77, 79], 80), st=4, pipe=pipe, stag=stag1, mid=(lambda: woread(91)) if (womid and wotrig is not None) else None, pre=bool(h1e) and sfx == "")
    h1poll("", h1fl, pipe1)
    a("L_h1_got:")
    if "h1it" in dbg: a(f"s_sub_u32 s90, {spin}, s58\ns_mov_b32 s91, 0")
    if "h1vm" in dbg: stamp(3); a(f"s_sub_u32 s98, {spin}, s58\ns_mov_b32 s99, 0")
    if hp2 is not None: a(f"s_setprio {hp2}")
    if wotrig is not None: a("s_waitcnt lgkmcnt(0)")
    stamp(6)
    AO = 96; DD = 112
    if h2e:
        a("s_cmp_lg_u32 s3, 0\ns_cbranch_scc1 L_h2e")
        for l in h2l: a(l)
        a("L_h2e:")
    if h2late and fin != 2: a(f"s_mov_b64 exec, 1\nds_add_rtn_u32 v54, v9, v11 offset:{FLG+24}\ns_mov_b64 exec, -1")
    if fin == 2: a(f"ds_read_b32 v54, v9 offset:{FLG+24}")
    if t2:
        for k in range(4):
            for g_ in range(2):
                a(f"v_lshlrev_b32 v{160+4*k+2*g_}, 16, v{64+4*k+2*g_}\nv_and_b32 v{161+4*k+2*g_}, 0xffff0000, v{64+4*k+2*g_}")
            for g_ in range(2):
                r_ = 160 + 4 * k + 2 * g_; w_ = 56 + (k & 2); sel = k & 1
                if k == 0: a(f"v_pk_mul_f32 v[{84+2*g_}:{85+2*g_}], v[{r_}:{r_+1}], v[{w_}:{w_+1}] op_sel:[0,{sel}] op_sel_hi:[1,{sel}]")
                else: a(f"v_pk_fma_f32 v[{84+2*g_}:{85+2*g_}], v[{r_}:{r_+1}], v[{w_}:{w_+1}], v[{84+2*g_}:{85+2*g_}] op_sel:[0,{sel},0] op_sel_hi:[1,{sel},1]")
        a("v_cvt_pk_bf16_f32 v88, v84, v85\nv_cvt_pk_bf16_f32 v89, v86, v87")
    if fin == 2:
        a("s_waitcnt lgkmcnt(0)\nv_readfirstlane_b32 s27, v54\ns_cmp_lg_u32 s27, 3\ns_cbranch_scc1 L_h2e")
        for l in h2l: a(l)
        a(f"L_h2e:\ns_mov_b64 exec, 1\nds_add_rtn_u32 v54, v9, v11 offset:{FLG+24}\ns_mov_b64 exec, -1")
    if fin == 3:
        a("s_waitcnt lgkmcnt(0)\nv_readfirstlane_b32 s27, v54\ns_cmp_lg_u32 s27, 3\ns_cbranch_scc1 L_h2e")
        for l in h2l: a(l)
        a(f"s_mov_b64 exec, 1\nds_add_u32 v9, v11 offset:{FLG+24}\ns_mov_b64 exec, -1\nL_h2e:")
    def mv(kk, p):
        if t2:
            j_ = 2 * kk + (p >> 1)
            if j_: a(f"v_mov_b32_dpp v{AO+4*kk+p}, v{88+(p&1)} row_ror:{16-j_} row_mask:0xf bank_mask:0xf")
            else: a(f"v_mov_b32 v{AO+4*kk+p}, v{88+(p&1)}")
            return
        src = 64 + 8 * (kk & 1) + 2 * p
        if kk >= 2: a(f"v_mov_b32_dpp v{AO+4*kk+p}, v{src} row_ror:8 row_mask:0xf bank_mask:0xf")
        else: a(f"v_mov_b32 v{AO+4*kk+p}, v{src}")
    if t3 == 2:
        for p in range(4): a(f"ds_bpermute_b32 v{176+p}, v{184+(p>>1)}, v{88+(p&1)}")
        a("s_waitcnt lgkmcnt(0)")
        for nt_ in (0, 2, 1, 3): a(f"v_mfma_f32_16x16x32_bf16 v[{DD+4*nt_}:{DD+4*nt_+3}], v[{WB+4*nt_}:{WB+4*nt_+3}], v[176:179], 0")
        a(f"""
s_mov_b64 exec, s[32:33]
ds_write_b128 v21, v[{DD}:{DD+3}] offset:{RBB}
ds_write_b128 v21, v[{DD+8}:{DD+11}] offset:{RBB+1280}
s_not_b64 exec, s[32:33]
ds_write_b128 v21, v[{DD+4}:{DD+7}] offset:{RBB}
ds_write_b128 v21, v[{DD+12}:{DD+15}] offset:{RBB+1280}
""")
    if t3 == 1:
        ID = "quad_perm:[0,1,2,3]"
        for p in range(4): a(f"v_mov_b32_dpp v{176+p}, v{88+(p&1)} {'row_ror:8' if p >> 1 else ID} row_mask:0xf bank_mask:0x3")
        for p in range(4): a(f"v_mov_b32_dpp v{180+p}, v{88+(p&1)} {ID if p >> 1 else 'row_ror:8'} row_mask:0xf bank_mask:0xc")
        for h_ in range(2):
            for a_ in range(2):
                d = DD + 4 * a_; w_ = WB + 4 * (2 * a_ + h_)
                a(f"v_mfma_f32_16x16x32_bf16 v[{d}:{d+3}], v[{w_}:{w_+3}], v[{176+4*h_}:{179+4*h_}], {'0' if h_ == 0 else f'v[{d}:{d+3}]'}")
        a(f"""
ds_write_b128 v21, v[{DD}:{DD+3}] offset:{RBB}
ds_write_b128 v21, v[{DD+4}:{DD+7}] offset:{RBB+1280}
""")
    if t3:
        a(f"""
s_mov_b64 exec, 0xffffffff
s_waitcnt lgkmcnt(0)
s_barrier
""")
        for w_ in range(4): a(f"ds_read_b128 v[{96+4*w_}:{99+4*w_}], v22 offset:{RBB+2560*w_}")
        a("""
s_waitcnt lgkmcnt(2)
v_pk_add_f32 v[96:97], v[96:97], v[100:101]
v_pk_add_f32 v[98:99], v[98:99], v[102:103]
s_waitcnt lgkmcnt(0)
v_pk_add_f32 v[104:105], v[104:105], v[108:109]
v_pk_add_f32 v[106:107], v[106:107], v[110:111]
v_pk_add_f32 v[96:97], v[96:97], v[104:105]
v_pk_add_f32 v[98:99], v[98:99], v[106:107]
""")
    for p in range(0 if t3 else 4): mv(0, p)
    for kk in range(0 if t3 else 4):
        for nt_ in range(4):
            d = DD + 4 * nt_; b = WB + 16 * nt_ + 4 * kk
            if kk < 3 and nt_ < 2: mv(kk + 1, 2 * nt_); mv(kk + 1, 2 * nt_ + 1)
            a(f"v_mfma_f32_16x16x32_bf16 v[{d}:{d+3}], v[{AO+4*kk}:{AO+4*kk+3}], v[{b}:{b+3}], {'0' if kk == 0 else f'v[{d}:{d+3}]'}")
    GO = 128
    if fin == 3: a("s_mov_b32 s59, s27")
    elif h2late: a("s_waitcnt lgkmcnt(0)\nv_readfirstlane_b32 s59, v54")
    if t3: pack16(GO, [96, 97, 98, 99], 10)
    elif t2: pack16(GO, [DD, DD + 4, DD + 8, DD + 12], 10)
    else:
        for t in range(4):
            a(f"v_mul_f32 v{GO+t}, v56, v{DD+4*t}")
            a(f"v_mul_f32 v{GO+4+t}, v58, v{DD+4*t+2}")
        for t in range(4):
            a(f"v_fmac_f32 v{GO+t}, v57, v{DD+4*t+1}")
            a(f"v_fmac_f32 v{GO+4+t}, v59, v{DD+4*t+3}")
        for t in range(4): a(f"v_add_f32 v{GO+t}, v{GO+t}, v{GO+4+t}")
        pack16(GO, [GO, GO + 1, GO + 2, GO + 3], 10)
    if lbar: a("s_barrier")
    if h2late:
        a(("s_mov_b32 s31, s59\n" if fin else "") + "s_cmp_eq_u32 s59, 3\ns_cbranch_scc1 L_hl_done")
        lds_wait("L_hl", FLG + 24, 5 if fin == 3 else 4)
    a(("" if t3 else "s_mov_b32 exec_lo, 0xffff\ns_mov_b32 exec_hi, 0xffff" if t2 else "s_mov_b64 exec, 0xffffffff") + f"\nbuffer_store_dwordx4 v[{GO}:{GO+3}], v28, s[52:55], s8 offen {h2sf}")
    if tailprof or "wol" in dbg: stamp(2)
    if h2sync and not h2late: lds_signal(FLG + 24)
    a(f"""
s_mov_b64 exec, -1
s_cmp_lg_u32 {"s31, 3" if fin else "s3, 0"}
s_cbranch_scc1 L_hend
""")
    if fin >= 2:
        a("s_cmp_lg_u32 s27, 3\ns_cbranch_scc1 L_h2n\ns_waitcnt vmcnt(1)" if fin == 2 else "s_waitcnt vmcnt(1)")
        r_ = chk16([136, 140], 56, 12)
        a(f"v_cmp_ne_u32 vcc, 0, v{r_}\ns_mov_b32 s58, {spin}\ns_and_b64 exec, exec, vcc\ns_cbranch_execz L_h2_done\nL_h2n:")
    if h2sync and not h2late: lds_wait("L_hw", FLG + 24, 4)
    if h2e:
        a("s_waitcnt vmcnt(1)")
        r_ = chk16([136, 140], 56, 12)
        a(f"v_cmp_ne_u32 vcc, 0, v{r_}\ns_mov_b32 s58, {spin}\ns_and_b64 exec, exec, vcc\ns_cbranch_execz L_h2_done")
    if h2ack: a("s_waitcnt vmcnt(0)")
    if "h2it" in dbg: stamp(1)
    poll("L_h2", h2l, lambda: chk16([136, 140], 56, 12), st=3, pipe=pipe2, stag=stag2, sl=slp2)
    if "h2it" in dbg: stamp(5); a(f"s_sub_u32 s90, {spin}, s58\ns_mov_b32 s91, 0")
    for i in range(8): a(f"v_and_b32 v{48+i}, 0xffffff00, v{136+i}")
    for i in range(4): a(f"v_add_f32 v{48+i}, v{48+i}, v{52+i}")
    a(f"""
v_permlane32_swap_b32 v48, v50
v_permlane32_swap_b32 v49, v51
v_add_f32 v48, v48, v50
v_add_f32 v49, v49, v51
v_permlane16_swap_b32 v48, v49
v_add_f32 v48, v48, v49
v_add_f32_dpp v48, v48, v48 row_ror:4 row_mask:0xf bank_mask:0xf
v_add_f32_dpp v48, v48, v48 row_ror:8 row_mask:0xf bank_mask:0xf
s_mov_b32 exec_lo, 0x000f000f
s_mov_b32 exec_hi, 0x000f000f
v_cvt_pk_bf16_f32 v48, v48, v48
v_lshlrev_b32 v48, 16, v48
v_mul_f32 v48, v48, v16
v_cvt_pk_bf16_f32 v48, v48, v48
v_lshlrev_b32 v48, 16, v48
v_add_f32 v48, v48, v14
v_cvt_pk_bf16_f32 v48, v48, v48
buffer_store_short v48, v30, s[64:67], s10 offen {"sc1" if clean else ""}
s_mov_b64 exec, 1
s_cmp_lg_u32 s2, 0
s_cbranch_scc1 L_hend
v_mov_b32 v10, s42
buffer_store_dword v10, v9, s[52:55], 0 offen sc1
L_hend:
""")
    if "probe" in dbg: a("s_cmp_ge_u32 s3, 2\ns_cbranch_scc1 L_np7")
    if "h1vm" not in dbg: stamp(7)
    if "probe" in dbg: a("L_np7:")
    if endwait or prof or dbgt: a("s_waitcnt vmcnt(0)")
    if "endst" in dbg: stamp(1)
    if isinstance(dbgt, str):
        AMP = 96 << 20
        def red(op, r, steps, t=70):
            for n in steps:
                if n < 16: a(f"{op}_dpp v{r}, v{r}, v{r} row_ror:{n} row_mask:0xf bank_mask:0xf")
                else: a(f"v_mov_b32 v{t}, v{r}\nv_permlane{n}_swap_b32 v{r}, v{t}\n{op} v{r}, v{r}, v{t}")
        a(f"""
s_cmp_lg_u32 s3, 0
s_cbranch_scc1 L_dbgt
s_memrealtime s[88:89]
s_mov_b64 exec, 1
s_waitcnt lgkmcnt(0)
v_mov_b32 v12, s84
v_mov_b32 v13, s92
v_mov_b32 v14, s88
v_mov_b32 v15, s12
s_lshl_b32 s59, s2, 4
s_add_u32 s59, s59, {AMP}
buffer_store_dwordx4 v[12:15], v9, s[52:55], s59 offen sc1
s_waitcnt vmcnt(0)
s_mov_b64 exec, -1
s_cmp_lg_u32 s2, 0
s_cbranch_scc1 L_dbgt
v_lshlrev_b32 v2, 4, v1
s_mov_b32 s6, {AMP}
""")
        poll("L_amp", [f"buffer_load_dwordx4 v[{40+4*k}:{43+4*k}], v2, s[52:55], s6 offen offset:{1024*k} sc1" for k in range(4)], lambda: chk8([43, 47, 51, 55], 80), sl=8)
        for k in range(4):
            for c in range(3): a(f"v_subrev_u32 v{40+4*k+c}, s84, v{40+4*k+c}")
        ALL = [8, 4, 2, 1, 16, 32]
        def stat(op, c, dst, steps=ALL):
            a(f"{op} v{dst}, v{40+c}, v{44+c}\n{op} v71, v{48+c}, v{52+c}\n{op} v{dst}, v{dst}, v71")
            red(op, dst, steps)
        stat("v_min_i32", 0, 60)
        if dbgt == "startmax": stat("v_max_i32", 0, 61)
        if dbgt == "bmin": stat("v_min_i32", 1, 61)
        if dbgt == "bmax": stat("v_max_i32", 1, 61)
        if dbgt == "emax": stat("v_max_i32", 2, 61)
        if dbgt == "bmean": stat("v_add_u32", 1, 61); a("v_ashrrev_i32 v61, 8, v61")
        if dbgt == "xs":
            stat("v_add_u32", 1, 61, [8, 16, 32]); a("v_ashrrev_i32 v61, 5, v61\nv_mov_b32 v60, v61")
            red("v_max_i32", 61, [4, 2, 1]); red("v_min_i32", 60, [4, 2, 1])
        a(f"""
v_sub_u32 v61, v61, v60
s_nop 1
v_readfirstlane_b32 s59, v61
s_mul_i32 s59, s59, 10
s_add_u32 s59, s59, 5000
s_min_u32 s59, s59, 100000
L_dbgs:
s_memrealtime s[90:91]
s_waitcnt lgkmcnt(0)
s_sub_u32 s58, s90, s84
s_cmp_lt_u32 s58, s59
s_cbranch_scc1 L_dbgs
L_dbgt:
""")
    elif dbgt == 2:
        a(f"""
s_or_b32 s59, s2, s3
s_cmp_lg_u32 s59, 0
s_cbranch_scc1 L_dbgt
s_memrealtime s[88:89]
s_waitcnt lgkmcnt(0)
s_sub_u32 s59, s88, s84
s_mul_i32 s59, s59, 10
s_min_u32 s59, s59, 100000
L_dbgs:
s_memrealtime s[90:91]
s_waitcnt lgkmcnt(0)
s_sub_u32 s58, s90, s88
s_cmp_lt_u32 s58, s59
s_cbranch_scc1 L_dbgs
L_dbgt:
""")
    elif dbgt:
        a(f"""
s_memrealtime s[88:89]
s_memtime s[90:91]
s_mov_b32 s44, s38
s_mov_b32 s45, s39
s_mov_b32 s46, 256
s_mov_b32 s47, 0x20000
s_mov_b64 exec, 1
s_waitcnt lgkmcnt(0)
s_not_b32 s59, s84
v_mov_b32 v12, s88
v_mov_b32 v13, s59
buffer_atomic_umax v12, v9, s[44:47], 0 offen sc1
buffer_atomic_umax v13, v9, s[44:47], 0 offen offset:4 sc1
s_cmp_lg_u32 s3, 0
s_cbranch_scc1 L_dbgt
s_and_b32 s59, s2, 0x7f
s_cmp_lg_u32 s59, 0
s_cbranch_scc1 L_dbgt
s_lshr_b32 s59, s2, 3
v_mov_b32 v12, s84
v_mov_b32 v13, s88
v_mov_b32 v14, s86
v_mov_b32 v15, s90
buffer_store_dwordx4 v[12:15], v9, s[44:47], s59 offen offset:16 sc1
L_dbgt:
s_waitcnt vmcnt(0)
""")
    if prof:
        a(f"""
s_mov_b64 exec, 1
s_sleep 127
s_waitcnt lgkmcnt(0)
s_lshl_b32 s59, s2, 3
s_add_u32 s59, s59, s3
s_add_u32 s59, s59, 4
s_lshl_b32 s59, s59, 6
s_add_u32 s59, s59, {STAMP}
""")
        for i in range(0, 8):
            a(f"v_mov_b32 v12, s{84+2*i}\nv_mov_b32 v13, s{85+2*i}\nbuffer_store_dwordx2 v[12:13], v9, s[52:55], s59 offen offset:{8*i}\ns_waitcnt vmcnt(0)")
    a("L_end:\ns_endpgm")
    if not dp: a("""L_h1_far:
buffer_store_dwordx2 v[52:53], v25, s[52:55], s""" + ("28" if t2 else "6") + """ offen offset:128 sc1
s_branch L_h1_st
""")
    if h1e: a("L_h1e_far:\ns_waitcnt vmcnt(1)\ns_branch L_h1e_done")
    a("L_h1_farp:")
    h1poll("x", "sc1", 1)
    a("s_branch L_h1_got")
    if defer:
        a(f"""
L_dfr:
s_movk_i32 s58, 2000
L_dfr_l:
buffer_load_dword v93, v92, s[48:51], 0 offen nt
s_waitcnt vmcnt(0)
v_add_u32 v93, s28, v93
v_and_b32 v93, s29, v93
v_cmp_ne_u32 vcc, s29, v93
s_cbranch_vccz L_dfr_go
s_sub_u32 s58, s58, 1
s_cbranch_scc0 L_dfr_l
L_dfr_go:
""")
        for t in range(4): wodma(t, 90, 22, 23)
        a("s_waitcnt vmcnt(0)\ns_branch L_dfr_done")
    if near:
        assert near["nw"] in (1, 2)
        a(f"""L_meas:
s_cmp_lt_u32 s3, 2
s_cbranch_scc1 L_meas_done
s_and_b32 s4, s3, 1
s_lshl_b32 s4, s4, 13
s_lshl_b32 s5, s2, 7
s_add_u32 s4, s4, s5
s_memtime s[76:77]
s_waitcnt lgkmcnt(0)
s_load_dword s5, s[40:41], s4 offset:{MEAS}
s_waitcnt lgkmcnt(0)
s_memtime s[78:79]
s_lshl_b32 s4, s3, 2
v_mov_b32 v5, s4
s_waitcnt lgkmcnt(0)
s_sub_u32 s78, s78, s76
v_mov_b32 v6, s78
ds_write_b32 v5, v6 offset:{OP - 8}
s_waitcnt lgkmcnt(0)
s_branch L_meas_done
L_mpub:
ds_read_b64 v[94:95], v9 offset:{OP}
s_lshl_b32 s4, s2, 3
s_add_u32 s4, s4, {CWOFF}
s_movk_i32 s5, {near.get("cap", 600)}
s_mov_b64 exec, 1
s_waitcnt lgkmcnt(0)
v_sub_u32 v94, v94, v95
v_min_i32 v94, s5, v94
v_sub_u32 v95, 0, v94
v_min_i32 v95, s5, v95
v_sub_u32 v94, 0, v95
v_mov_b32 v95, s12
buffer_store_dwordx2 v[94:95], v9, s[52:55], s4 offen sc1
s_mov_b64 exec, -1
s_branch L_mpub_done
""")
    a("L_qs_far:\n" + (f"ds_write_b32 v9, v11 offset:{FLG+32}\n" if dp else "") + "buffer_store_dwordx4 v[132:135], v25, s[52:55], s72 offen sc1\ns_branch L_qs_done\nL_gq_far:")
    qpoll("x", "sc1")
    a("s_branch L_gq_got")
    if fc:
        lean = fc.get("tt", {}).get("notab") and fc["tt"].get("gl") == 2
        if not lean:
            a("L_cb:\ns_waitcnt lgkmcnt(0)\ns_mov_b32 s71, 0")
            for i in range(8): a(f"s_cmp_lg_u32 s{4+i}, s73\ns_addc_u32 s71, s71, 0")
        if not fc.get("wg"):
            a(f"""
s_cmp_lt_u32 s71, {fc['th1']}
s_cselect_b32 s62, 2, 0
s_cmp_ge_u32 s71, {fc['th2']}
s_cselect_b32 s62, 1, s62
""")
            if prof: a("s_lshl_b64 s[82:83], s[82:83], 2\ns_or_b32 s82, s82, s62")
            a("s_setpc_b64 s[80:81]")
        else:
            bias = 16 * fc["CW"]
            TSX = ""; DEC = ""
            if fc.get("dec"):
                DEC = f"s_cmp_eq_u32 s62, 1\ns_cselect_b32 s71, {-fc['dec'][0]}, 0\ns_cmp_eq_u32 s62, 2\ns_cselect_b32 s71, {fc['dec'][1]}, s71\ns_add_u32 s74, s74, s71"
            if fc.get("ts"):
                TSX = "L_cx:\ns_waitcnt lgkmcnt(0)\ns_mov_b32 s71, 0\n"
                for i in range(8): TSX += f"s_sub_u32 s{16+2*i}, s36, s{16+2*i}\ns_cmp_eq_u32 s{17+2*i}, s73\ns_cselect_b32 s{16+2*i}, s{16+2*i}, 0\ns_add_u32 s71, s71, s{16+2*i}\n"
                TSX += f"""s_sub_u32 s32, s36, s32
s_cmp_eq_u32 s33, s73
s_cselect_b32 s32, s32, 0
s_lshl_b32 s32, s32, 3
s_sub_u32 s32, s32, s71
s_mul_i32 s32, s32, {fc['tg']}
s_ashr_i32 s74, s32, 5
s_branch L_cc
"""
            if fc.get("tt"):
                tt = fc["tt"]
                RED = "\n".join(f"v_add_u32_dpp v85, v85, v85 row_ror:{n} row_mask:0xf bank_mask:0xf" for n in (4, 2, 1))
                CW_ = f"""{RED}
v_readfirstlane_b32 s69, v85
s_mul_i32 s69, s69, {round(tt['U'])}
s_lshr_b32 s69, s69, 5
s_sub_u32 s62, s62, s69
"""
                if tt.get("gl"):
                    SUMX = "s_waitcnt lgkmcnt(0)\ns_mov_b32 s71, 0\n"
                    for i in range(8): SUMX += f"s_sub_u32 s{16+2*i}, s36, s{16+2*i}\ns_cmp_eq_u32 s{17+2*i}, s73\ns_cselect_b32 s{16+2*i}, s{16+2*i}, {tt.get('inv', 0)}\ns_add_u32 s71, s71, s{16+2*i}\n"
                    SUMX += "s_ashr_i32 s71, s71, 3\ns_sub_u32 s71, s36, s71\n"
                    TSX = "L_cx:\n" + SUMX
                    if tt["gl"] == 2:
                        TSX = "L_cx:\ns_waitcnt lgkmcnt(0)\ns_add_u32 s62, s62, s70\ns_mov_b32 s71, 0\n"
                        if prof and tt.get("tv"): TSX += "s_lshl_b64 s[82:83], s[82:83], 4\n"
                        for i in range(8):
                            TSX += f"s_sub_u32 s{16+2*i}, s{16+2*i}, s62\ns_cmp_eq_u32 s{17+2*i}, s73\ns_cselect_b32 s{16+2*i}, s{16+2*i}, 0\n"
                            if prof and tt.get("tv"): TSX += "s_addc_u32 s82, s82, 0\n"
                            TSX += f"s_add_u32 s71, s71, s{16+2*i}\n"
                        TSX += f"s_ashr_i32 s71, s71, {3 + tt.get('gsm2', 0)}\ns_add_u32 s70, s70, s71\ns_setpc_b64 s[80:81]\n"
                        SUMX = None
                    if tt.get("gsm"): TSX += f"s_sub_u32 s71, s71, s62\ns_sub_u32 s71, s71, s70\ns_ashr_i32 s71, s71, {tt['gsm']}\ns_add_u32 s70, s70, s71\ns_setpc_b64 s[80:81]\nL_cx0:\n" + SUMX
                    if SUMX: TSX += "s_sub_u32 s70, s71, s62\ns_setpc_b64 s[80:81]\n"
                if lean: a("; re-centre the schedule on the mean of the published clocks (entries without this launch's tag are skipped)\n" + TSX)
                else: a(f"""
s_setpc_b64 s[80:81]
{TSX}
L_cw0:
{CW_}
s_sub_u32 s75, s62, {round(tt['U'] * fc['CW'] / 2)}
s_branch L_cc
L_cw:
{CW_}
s_sub_u32 s62, s62, {round(tt['U'] * fc['CW'] / 2)}
""" + (f"s_sub_u32 s62, s62, s75\ns_ashr_i32 s62, s62, {tt['sm']}\ns_add_u32 s75, s75, s62" if tt.get("sm") else "s_mov_b32 s75, s62") + """
L_cc:
""" + ("" if tt.get("gl") else "s_add_u32 s70, s75, s74") + """
s_setpc_b64 s[80:81]
""")
            else: a(f"""
s_mul_i32 s74, s71, {fc.get('kx', 0)}
{"s_lshl_b64 s[82:83], s[82:83], 4" if prof and fc.get("tm") else ""}
{"s_or_b32 s82, s82, s71" if prof and fc.get("tm") else ""}
s_branch L_cc
{TSX}
L_cw:
v_add_u32_dpp v85, v85, v85 row_ror:4 row_mask:0xf bank_mask:0xf
v_add_u32_dpp v85, v85, v85 row_ror:2 row_mask:0xf bank_mask:0xf
v_add_u32_dpp v85, v85, v85 row_ror:1 row_mask:0xf bank_mask:0xf
v_readfirstlane_b32 s69, v85
s_sub_u32 s75, s68, s69
s_sub_u32 s75, s75, {bias}
{DEC}
L_cc:
s_add_u32 s68, s75, s74
s_cmp_lt_i32 s68, {-fc['b']}
s_cselect_b32 s62, 2, 0
s_cmp_gt_i32 s68, {fc['a']}
s_cselect_b32 s62, 1, s62
""")
            if prof and not fc.get("tm") and not fc.get("tt"): a("s_lshl_b64 s[82:83], s[82:83], 2\ns_or_b32 s82, s82, s62")
            if not fc.get("tt"): a("s_setpc_b64 s[80:81]")
    a("; one output column of the token MLP: sum_f gelu_tanh(h*w1+b1)*w2 over this wave's quarter of F\nL_mlp:")
    for t in range(7): a(f"v_fma_f32 v{U+t}, s4, v{W1+t}, v{B1+t}")
    for t in range(7): a(f"v_mul_f32 v{AA+t}, v{U+t}, v{U+t}")
    for t in range(7): a(f"v_fmaak_f32 v{AA+t}, v{AA+t}, v{C1}, {f32(c0)}")
    for t in range(7): a(f"v_mul_f32 v{AA+t}, v{AA+t}, v{U+t}")
    for t in range(7): a(f"v_exp_f32 v{EE+t}, v{AA+t}")
    for t in range(7): a(f"v_mul_f32 v{U+t}, v{U+t}, v{W2+t}")
    for t in range(7): a(f"v_add_f32 v{EE+t}, 1.0, v{EE+t}")
    for t in range(7): a(f"v_rcp_f32 v{EE+t}, v{EE+t}")
    a(f"v_mul_f32 v{ACC2}, v{U}, v{EE}")
    a(f"v_mul_f32 v{AA}, v{U+1}, v{EE+1}")
    for t in range(2, 7): a(f"v_fmac_f32 v{ACC2 if t % 2 == 0 else AA}, v{U+t}, v{EE+t}")
    a(f"v_add_f32 v{ACC2}, v{ACC2}, v{AA}")
    for n in (8, 4, 2, 1): a(f"v_add_f32_dpp v{ACC2}, v{ACC2}, v{ACC2} row_ror:{n} row_mask:0xf bank_mask:0xf")
    swaps_add(ACC2, AA)
    a(f"""
s_mov_b64 exec, 1
ds_write_b32 v{YA}, v{ACC2} offset:{YP}
s_mov_b64 exec, -1
v_add_u32 v{YA}, 4, v{YA}
s_setpc_b64 s[80:81]
""")
    body = a.render()
    if "allsc1st" in dbg:
        import re
        body = re.sub(r"(buffer_store_dwordx[24] v\[\d+:\d+\], v\d+, s\[52:55\], s(6|72) offen( offset:128)?)\n", r"\1 sc1\n", body)
    if "allsc1ld" in dbg:
        import re
        body = re.sub(r"(buffer_load_dwordx4 v\[\d+:\d+\], v\d+, s\[52:55\], s[67] offen( offset:\d+)?) nt\n", r"\1 sc1\n", body)
    txt = HDR + f"""; @launch grid=(256,1,1) block=(512,1,1) lds={LDSZ}
.amdgcn_target "amdgcn-amd-amdhsa--gfx950"
; ---------------------------------------------------------------------------------------------------------
; out = x + (softmax(q K^T / sqrt(128)) V) Wo * silu(token_mlp(LN(LN(x)))),  q = LN(x) Wq.   One launch, 256 workgroups.
; Workgroup id = b*32 + split*8 + x : batch b, kv head x, quarter `split` of the 4096 cached tokens.
;  waves 0-3 (stream): read the K and V rows of this workgroup once (nt), scores by MFMA, true max + exp, P.V by MFMA.
;  waves 4-7 (helper): LN, a 128x64 tile of Wq (partials exchanged through d_ws), the token MLP gate for 16 output
;                      columns, softmax statistics exchange, partial-O hand-off (hop 1), a 128x64 tile of Wo,
;                      hand-off of the projected partial sums (hop 2), final sum / gate / residual / store.
; Hand-offs: every granule in d_ws carries this launch's tag (ws[0]+1; workgroup 0 stores the tag back at the end), so
;  words left by earlier launches or by the harness are never taken for data.  All polls are bounded.
; Placement: hop 2 and the clock/vote words always use sc1 (memory-side) accesses.  The exchanges inside a group of 32
;  workgroups use plain stores only after the group has PROVEN (tagged table indexed by the hardware XCC id) that all
;  32 share one L2; otherwise they use sc1 stores/loads, so any placement gives the same result.
; Bandwidth sharing: HBM is saturated for the whole stream, and the launch ends with the slowest workgroup.  Each stream
;  wave compares its progress with the mean progress of all dies (clock values exchanged in d_ws, this launch only) and
;  keeps 4..12 loads in flight accordingly (behind: more, ahead: fewer).  This only selects s_waitcnt vmcnt depths;
;  nothing waits on the clock.  The s_memtime probe at the start picks which half of the hop-2 area is closer to its
;  readers (all workgroups read the same 16 votes, so they agree); either choice is correct.
; ---------------------------------------------------------------------------------------------------------
.text
.globl {KN}_kernel
.p2align 8
.type {KN}_kernel,@function
{KN}_kernel:
""" + body + f""".section .rodata,"a"
.p2align 6
.amdhsa_kernel {KN}_kernel
  .amdhsa_next_free_vgpr 256
  .amdhsa_next_free_sgpr 102
  .amdhsa_accum_offset 256
  .amdhsa_group_segment_fixed_size 0
  .amdhsa_kernarg_size 104
  .amdhsa_user_sgpr_count 2
  .amdhsa_user_sgpr_kernarg_segment_ptr 1
  .amdhsa_system_sgpr_workgroup_id_x 1
.end_amdhsa_kernel
"""
    open(fname, "w").write(txt)
if __name__ == "__main__":
    import glob, os
    for f in glob.glob("kp_*.s"): os.remove(f)
    gen("k1.s", mlp1=4, slp=0)
    kw = dict(prof=True, tailprof=True, mlp1=4, slp=0, rq=1, wolate=[5, 7, 9, 11])
    gen("kp_00.s", **kw)
    F = dict(wg=1, x=1, G=2, kx=24, a=64, b=-16, W=(4,6,12), d=6, C=3, CW=2)
    gen("kp_01.s", fc=F, **kw)
    gen("kp_02_nowork.s", fc=F, dbg="nok nosm nov", **kw)
    gen("kp_03_nosm.s", fc=F, dbg="nosm", **kw)
    gen("kp_04_nowq.s", fc=F, dbg="nowq", **kw)
    gen("kp_05_nowork_nowq.s", fc=F, dbg="nok nosm nov nowq", **kw)
    gen("kp_06_nowork_nowq_nomlp.s", fc=F, dbg="nok nosm nov nowq nomlp", **kw)
    gen("kp_07_nofc_nowork.s", dbg="nok nosm nov", **kw)
    gen("kp_08_nofc_nowork_nowq.s", dbg="nok nosm nov nowq", **kw)
```

```python
import gen
kw = dict(mlp1=2, slp=0, rq=1, wolate=[5, 7, 9, 11], palign=7, near=dict(nw=2), wotrig=203, wosw=1, t2=1, b3=1, wosl=1, h1e=(1,0,[4]), h1m=1, h2pre=("z", 64), wbar=1, own1=True)
F = dict(wg=1, x=0, G=2, kx=24, a=64, b=40, W=(4,6,12), d=5, C=3, CW=2, stop=0, tg=4, dl=3)
T6 = [4, 13, 22, 31, 40, 49]
P2 = [(12,-40),(8,-15),(6,15),(5,40),(4,0)]
def g(n, U=28, lv=P2, **kw2): gen.gen(n, fc={**F, "tt": dict(gl=2, notab=1, U=U, lv=lv), "ts": T6}, **{**kw, **kw2})
g("k13a.s"); g("k13_mixw.s", dbg="mixw"); g("k13_mixj.s", dbg="mixj"); g("k13_clean.s", clean=True)

g("k14a.s", mr=1); g("k14_mixw.s", dbg="mixw", mr=1); g("k14_mixj.s", dbg="mixj", mr=1); g("k14_clean.s", clean=True, mr=1)

g("k15a.s", mr=1, qf=1); g("k15_mixw.s", dbg="mixw", mr=1, qf=1); g("k15_mixj.s", dbg="mixj", mr=1, qf=1); g("k15_clean.s", clean=True, mr=1, qf=1)

K16 = dict(mr=1, qf=1, dry2=1)
g("k16a.s", **K16); g("k16_mixw.s", dbg="mixw", **K16); g("k16_mixj.s", dbg="mixj", **K16); g("k16_clean.s", clean=True, **K16)
```

```python
import sys, struct, math
from asmlib import Asm
KN = "recurrent_scan__gqa_block_cached__mixer_token_mlp__decode"
def f32(x): return "0x%08x" % struct.unpack("<I", struct.pack("<f", x))[0]
LOG2E = 1.4426950408889634
FLG = 0; QL = 64; ST = QL + 1024; YP = ST + 128; OP = YP + 256; XN = OP + 4 * 2304; XRS = 1040; WQL = XN + 8 * XRS; KL = WQL + 32768
QOFF = 64 << 10; H1OFF = QOFF + (1 << 20); H1S = 4224; H2OFF = H1OFF + (640 << 10); BD = 4 << 20; PGOFF = 8 << 10; LOCOFF = 32 << 10; STAMP = 128 << 20
HDR = open("cdna_kernels/" + KN + ".s.ref").read().split("; Override launch")[0]

def gen(fname, WIN=6, G=2, RING=40, prof=False, wo_thr=4, ntw="", woflags="", spin=400000, dbg="", WPS=1, dry=False, tailprof=False, NLT=6, slp=2, wqdma=True, sprio=2, bgprio=0, mlp1=8, local=True, fb=31, deferB=True, pretouch=False, pat=None, pat2=None, rot=None, cmap=0, light=False, lslp=0, h1fl='nt', h2sync=True, fc=None, est=None, rq=0, ro=0, sE=True, wolate=None, n0=64, pipe1=1, pipe2=1, stag1=3, stag2=3, h2late=True, h2ack=True, h2pre=False, h2full=False, slp2=0, dbgt=False, dirty=0, clean=False, qslp=None, nloc=200, tmap=(14, 16, None), wotrig=None, wothr=2, wosl=2, womid=True, palign=0, defer=None, h2off=None, tlbw=False, near=None, endwait=False, lastopt=True, pkc=True, warm='', hdel=0, wqdel=0, dp=False, dpt='c3', dpf=4, dpw=0, dpc=6, dpfl="nt", dpp=0, hp=3, hp2=None, h1e=None, wosw=False, t2=False, prew=True, b3=False, wodl=None, t3=False, h1m=0, h2fl='sc1', h2e=False, h2sf='sc1', qprew=False, trot=None, trotw=0, wbar=0, own1=False, lbar=False, fin=0, mr=0):
    if fin: assert h2late and not h2e
    if lbar: h2late = False; h2sync = False
    if t3: t2 = True; h2late = False; h2sync = False; assert womid and wotrig is not None
    if t2: assert not dp and lastopt and wosw and not h2full and pkc and not defer
    if dp: assert fc and tmap[2] is None and wotrig is not None and wotrig >= 200
    H2OFF = (576 << 10) if h2off is None else h2off
    MEAS = 48 << 10; CWOFF = 16 << 10
    a = Asm()
    LDSZ = KL + 4 * NLT * 4096
    NLL = 4 * NLT
    NST = 8
    def stamp(i):
        if prof: a(f"s_memrealtime s[{84+2*i}:{85+2*i}]")
    stamp(0)
    if dbgt: a("s_memrealtime s[84:85]\ns_memtime s[86:87]")
    a(f"""
s_load_dwordx2 s[44:45], s[0:1], 8
s_load_dwordx2 s[48:49], s[0:1], 16
v_lshrrev_b32 v2, 6, v0
s_cmp_ge_u32 s2, 256
v_and_b32 v1, 63, v0
v_readfirstlane_b32 s3, v2
s_cbranch_scc1 L_end
s_cmp_ge_u32 s3, 4
s_cbranch_scc1 L_helper
""")
    a(f"""
s_setprio {sprio}
s_mov_b32 s46, 0x4000000
s_mov_b32 s47, 0x20000
s_and_b32 s52, s2, 7
s_lshl_b32 s52, s52, 20
s_lshr_b32 s53, s2, 5
s_lshl_b32 s53, s53, 23
s_or_b32 s52, s52, s53
s_bfe_u32 s53, s2, 0x20003
s_lshl_b32 s53, s53, {tmap[0]}
s_or_b32 s52, s52, s53
s_lshl_b32 s53, s3, 12
s_or_b32 s52, s52, s53
s_mul_i32 s60, s3, {NLT*4096}
s_add_u32 s60, s60, {KL}
v_lshrrev_b32 v5, 4, v1
v_bfe_u32 v6, v1, 2, 2
v_and_b32 v7, 3, v1
v_lshlrev_b32 v2, 8, v6
v_lshl_add_u32 v2, v5, 6, v2
v_lshl_add_u32 v2, v7, 4, v2
""")
    if trot: a(f"s_bfe_u32 s53, s2, {hex((trot[1] << 16) | trot[0])}\ns_lshl_b32 s53, s53, {trot[2]}\ns_xor_b32 s52, s52, s53")
    if trotw: a(f"s_lshl_b32 s53, s3, {trotw}\ns_xor_b32 s52, s52, s53")
    if tmap[2]: a(f"s_and_b32 s53, s2, 7\ns_lshl_b32 s53, s53, {tmap[2]}\ns_xor_b32 s52, s52, s53")
    def late_setup():
        a(f"""
{"" if fc and fc.get("tt", {}).get("notab") else "s_load_dwordx2 s[38:39], s[0:1], 88"}
s_load_dwordx2 s[40:41], s[0:1], 96
s_mov_b32 s50, 0x4000000
s_mov_b32 s51, 0x20000
v_lshlrev_b32 v3, 4, v1
""")
        if fc and fc.get("tt", {}).get("notab"): a(f"""
; schedule exchange: wave 0 of one workgroup per group publishes its clock at a few steps (slot = id&7)
s_lshr_b32 s64, s2, 3
s_cmp_eq_u32 s3, 0
s_cselect_b32 s64, s64, 64
s_and_b32 s65, s2, 7
s_lshl_b32 s65, s65, 3
v_mov_b32 v83, s65
{"s_mov_b64 s[82:83], 0" if prof else ""}
{"s_cselect_b64 vcc, 1, 0" if fc.get("vw") else ""}
s_waitcnt lgkmcnt(0)
s_load_dword s73, s[40:41], 0
s_mov_b32 s76, s40
s_mov_b32 s77, s41
s_mov_b32 s78, 0x10000000
s_mov_b32 s79, 0x20000
""")
        elif fc: a(f"""
s_lshr_b32 s64, s2, 3
s_cmp_eq_u32 s3, 0
s_cselect_b32 s64, s64, 64
s_and_b32 s65, s2, 7
s_lshl_b32 s63, s65, 3
s_lshl_b32 s65, s65, {3 if fc.get("ts") else 2}
v_mov_b32 v83, s65
s_mov_b32 s62, {fc.get('l0', 0)}
s_mov_b64 s[82:83], 0
s_getreg_b32 s66, hwreg(HW_REG_XCC_ID, 0, 3)
s_lshl_b32 s66, s66, 5
s_lshr_b32 s67, s2, 3
s_add_u32 s67, s67, s66
v_mov_b32 v88, s67
v_and_b32 v87, 7, v1
v_lshl_add_u32 v87, v87, 2, s66
s_mov_b32 s74, 0
s_mov_b32 s75, 0
s_cmp_eq_u32 s3, 0
s_cselect_b64 vcc, 1, 0
s_waitcnt lgkmcnt(0)
s_load_dword s73, s[40:41], 0
s_mov_b32 s76, s40
s_mov_b32 s77, s41
s_mov_b32 s78, 0x10000000
s_mov_b32 s79, 0x20000
s_mov_b32 s12, s38
s_mov_b32 s13, s39
s_mov_b32 s14, 256
s_mov_b32 s15, 0x20000
""")
    RB = 256 - RING * 4
    def rreg(n): return RB + ((n - NLL) % RING) * 4
    NL = 128
    st = {"tile": None}
    def issue(n):
        isv = n >= 64; t = (n & 63) >> 2; q = n & 3
        if st["tile"] != (isv, t):
            st["tile"] = (isv, t)
            if tmap: a(f"s_xor_b32 s53, s52, {t << tmap[1]}")
            elif rot is None: a(f"s_add_u32 s53, s52, {t*16384}")
            else: a(f"s_add_u32 s53, s61, {t*16384}\ns_and_b32 s53, s53, 0x3ffff\ns_add_u32 s53, s53, s52")
            if n < NLL: a(f"s_add_u32 m0, s60, {t*4096}\ns_nop 0")
            if n == 0:
                if palign: a(f".p2align {palign}")
                a("s_waitcnt lgkmcnt(0)")
                if st.get("ks"): stamp(7)
        if n < NLL:
            a(f"buffer_load_dwordx4 v2, s[44:47], s53 offen offset:{q*1024} nt lds"); return
        r = rreg(n)
        a(f"buffer_load_dwordx4 v[{r}:{r+3}], {'v3' if isv else 'v2'}, {'s[48:51]' if isv else 's[44:47]'}, s53 offen offset:{q*1024} nt")
    TSR = 6
    QB = 8; Y = 12; ACC = 28; DT = 28; TT = 44; PT = 60; PA = 76; M = 80
    def setup_consts():
        a(f"""
s_mov_b32 s54, 0x05040100
s_mov_b32 s55, 0x07060302
s_mov_b32 s56, {f32(128**-0.5)}
s_mov_b32 s57, {f32(LOG2E)}
v_lshlrev_b32 v4, 8, v7
v_lshl_add_u32 v4, v5, 6, v4
v_lshl_add_u32 v4, v6, 4, v4
v_mov_b32 v84, 0
v_add_u32 v86, s60, v3
""")
    def wait_q():
        stamp(1)
        if "noq" in dbg:
            a(f"ds_read_b128 v[{QB}:{QB+3}], v4 offset:{QL}\ns_waitcnt lgkmcnt(0)"); stamp(2); return
        a(f"""
s_mov_b32 s58, {spin*8}
L_sq:
ds_read_b32 v85, v84 offset:{FLG+4}
s_waitcnt lgkmcnt(0)
v_readfirstlane_b32 s59, v85
s_sub_u32 s58, s58, 1
s_cbranch_scc1 L_sq_done
s_cmp_ge_u32 s59, 4
s_cbranch_scc1 L_sq_done
s_sleep 1
s_branch L_sq
L_sq_done:
ds_read_b128 v[{QB}:{QB+3}], v4 offset:{QL}
{f"ds_read_b32 v85, v84 offset:{FLG+32}" if dp else ""}
s_waitcnt lgkmcnt(0)
{"v_readfirstlane_b32 s42, v85" if dp else ""}
""")
        stamp(2)
        if prof: a("s_waitcnt lgkmcnt(0)")
    def ktile(t):
        if t < NLT:
            for q in range(4): a(f"ds_read_b128 v[{PT+4*q}:{PT+4*q+3}], v86 offset:{t*4096+q*1024}")
        for q in range(4):
            r = rreg(4 * t + q) if t >= NLT else PT + 4 * q
            if t < NLT: a(f"s_waitcnt lgkmcnt({3-q})")
            a(f"v_mfma_f32_16x16x32_bf16 v[{DT+4*q}:{DT+4*q+3}], v[{r}:{r+3}], v[{QB}:{QB+3}], 0")
        for c in range(4):
            for r in range(4):
                n = 4 * ((c - r) % 4)
                ctl = f"row_ror:{n}" if n else "quad_perm:[0,1,2,3]"
                a(f"v_mov_b32_dpp v{TT+r}, v{DT+4*c+r} {ctl} row_mask:0xf bank_mask:{hex(1<<c)}")
        y = Y + t
        a(f"""
v_add_f32 v{TT}, v{TT}, v{TT+1}
v_add_f32 v{TT+2}, v{TT+2}, v{TT+3}
v_add_f32 v{y}, v{TT}, v{TT+2}
v_cvt_pk_bf16_f32 v{y}, v{y}, v{y}
v_lshlrev_b32 v{y}, 16, v{y}
v_mul_f32 v{y}, s56, v{y}
v_cvt_pk_bf16_f32 v{y}, v{y}, v{y}
v_lshlrev_b32 v{y}, 16, v{y}
""")
    def xlane(op, r, t):
        a(f"""
{op}_dpp v{r}, v{r}, v{r} row_ror:4 row_mask:0xf bank_mask:0xf
""") if op != "v_add_f32" else a(f"""
v_add_f32_dpp v{r}, v{r}, v{r} row_ror:4 row_mask:0xf bank_mask:0xf
""")
        a(f"""
{op}_dpp v{r}, v{r}, v{r} row_ror:8 row_mask:0xf bank_mask:0xf
v_mov_b32 v{t}, v{r}
v_permlane16_swap_b32 v{r}, v{t}
{op} v{r}, v{r}, v{t}
v_mov_b32 v{t}, v{r}
v_permlane32_swap_b32 v{r}, v{t}
{op} v{r}, v{r}, v{t}
""")
    def softmax():
        m = M; l = M + 1; t = M + 2
        a(f"v_max3_f32 v{m}, v{Y}, v{Y+1}, v{Y+2}")
        for i in range(3, 15, 2): a(f"v_max3_f32 v{m}, v{m}, v{Y+i}, v{Y+i+1}")
        a(f"v_max_f32 v{m}, v{m}, v{Y+15}")
        xlane("v_max_f32", m, t)
        a(f"v_mul_f32 v{m}, s57, v{m}")
        for i in range(16): a(f"v_fma_f32 v{Y+i}, v{Y+i}, s57, -v{m}")
        for i in range(16): a(f"v_exp_f32 v{Y+i}, v{Y+i}")
        a(f"v_add_f32 v{l}, v{Y}, v{Y+1}")
        a(f"v_add_f32 v{t}, v{Y+2}, v{Y+3}")
        for i in range(4, 16, 2):
            a(f"v_add_f32 v{l}, v{l}, v{Y+i}")
            a(f"v_add_f32 v{t}, v{t}, v{Y+i+1}")
        a(f"v_add_f32 v{l}, v{l}, v{t}")
        for v in range(8): a(f"v_cvt_pk_bf16_f32 v{Y+v}, v{Y+2*v}, v{Y+2*v+1}")
        if t2:
            for i in range(16): a(f"v_mov_b32 v{PA4+i}, 0")
        xlane("v_add_f32", l, t)
        a(f"""
s_lshl_b32 s59, s3, 5
v_lshl_add_u32 v{t}, v1, 3, s59
s_mov_b64 exec, 15
ds_write_b64 v{t}, v[{m}:{m+1}] offset:{ST}
s_mov_b64 exec, 1
v_mov_b32 v{t}, 1
ds_add_u32 v84, v{t} offset:{FLG+16}
s_mov_b64 exec, -1
""")
    PA4 = 36
    def mkpa(v):
        if t2:
            for c in range(4):
                for p in range(4):
                    n = 4 * ((c - p) % 4)
                    a(f"v_mov_b32_dpp v{PA4+4*c+p}, v{Y+v} {f'row_ror:{n}' if n else 'quad_perm:[0,1,2,3]'} row_mask:0xf bank_mask:{hex(1<<c)}")
            return
        a(f"v_mov_b32 v{PA}, v{Y+v}")
        for p in (1, 2, 3):
            a(f"v_mov_b32_dpp v{PA+p}, v{Y+v} row_ror:{4*((0-p)%4)} row_mask:0xf bank_mask:0xf")
    def vchunk(v):
        mkpa(v)
        for half in range(2):
            for jj in range(4 * half, 4 * half + 4):
                o = PT + 4 * (jj & 3)
                for p in range(4):
                    lo = rreg(64 + 8 * v + p) + (jj >> 1); hi = rreg(64 + 8 * v + 4 + p) + (jj >> 1)
                    a(f"v_perm_b32 v{o+p}, v{hi}, v{lo}, {'s55' if jj & 1 else 's54'}")
            for jj in range(4 * half, 4 * half + 4):
                o = PT + 4 * (jj & 3); d = ACC + 4 * jj
                pa = PA
                if t2: d = ACC + 4 * half; pa = PA4 + 4 * (jj & 3)
                c = "0" if (v == 0 and (not t2 or jj & 3 == 0)) else f"v[{d}:{d+3}]"
                a(f"v_mfma_f32_16x16x32_bf16 v[{d}:{d+3}], v[{pa}:{pa+3}], v[{o}:{o+3}], {c}")
    def s_wait(lbl, off, cnt):
        a(f"""
s_mov_b32 s58, {spin*8}
{lbl}:
ds_read_b32 v85, v84 offset:{off}
s_waitcnt lgkmcnt(0)
v_readfirstlane_b32 s59, v85
s_sub_u32 s58, s58, 1
s_cbranch_scc1 {lbl}_done
s_cmp_lt_u32 s59, {cnt}
s_cbranch_scc1 {lbl}
{lbl}_done:
""")
    def s_sig(off): a(f"s_mov_b64 exec, 1\nv_mov_b32 v82, 1\nds_add_u32 v84, v82 offset:{off}\ns_mov_b64 exec, -1")
    AQ = [20, 24, 12, PA]
    def fitem(v0):
        T_ = PT
        s_wait("L_d1", FLG + 16, 4)
        a(f"""
v_and_b32 v4, 3, v1
v_lshlrev_b32 v4, 3, v4
ds_read_b32 v{T_}, v4 offset:{ST}
ds_read_b32 v{T_+1}, v4 offset:{ST+32}
ds_read_b32 v{T_+2}, v4 offset:{ST+64}
ds_read_b32 v{T_+3}, v4 offset:{ST+96}
v_lshlrev_b32 v4, 1, v4
v_lshrrev_b32 v10, 4, v1
v_lshl_add_u32 v4, v10, 6, v4
v_bfe_u32 v11, v1, 2, 2
v_lshl_add_u32 v4, v11, 2, v4
s_lshl_b32 s59, s3, 8
v_add_u32 v4, s59, v4
s_waitcnt lgkmcnt(0)
v_max3_f32 v{T_}, v{T_}, v{T_+1}, v{T_+2}
v_max_f32 v{T_}, v{T_}, v{T_+3}
v_sub_f32 v{T_}, v{M}, v{T_}
v_exp_f32 v{T_}, v{T_}
""")
        for v in range(v0, 8): a(f"v_lshlrev_b32 v{T_+8+2*(v-v0)}, 16, v{Y+v}\nv_and_b32 v{T_+9+2*(v-v0)}, 0xffff0000, v{Y+v}")
        for i in range(4): a(f"v_mov_b32_dpp v{T_+4+i}, v{T_} quad_perm:[{i},{i},{i},{i}] row_mask:0xf bank_mask:0xf")
        for v in range(v0, 8): a(f"v_pk_mul_f32 v[{T_+8+2*(v-v0)}:{T_+9+2*(v-v0)}], v[{T_+8+2*(v-v0)}:{T_+9+2*(v-v0)}], v[{T_}:{T_+1}] op_sel_hi:[1,0]")
        for v in range(v0, 8): a(f"v_cvt_pk_bf16_f32 v{Y+v}, v{T_+8+2*(v-v0)}, v{T_+9+2*(v-v0)}")
        a(f"ds_write_b32 v4, v{Y+7} offset:{QL}")
        s_sig(FLG + 44)
        for jj in range(8):
            d_ = ACC + 4 * jj
            a(f"v_pk_mul_f32 v[{d_}:{d_+1}], v[{d_}:{d_+1}], v[{T_+4}:{T_+5}]\nv_pk_mul_f32 v[{d_+2}:{d_+3}], v[{d_+2}:{d_+3}], v[{T_+6}:{T_+7}]")
        a(f"""
v_lshlrev_b32 v9, 6, v10
v_lshl_add_u32 v9, v11, 4, v9
s_lshl_b32 s59, s3, 2
v_add_u32 v4, s59, v11
v_mul_u32_u24 v4, 144, v4
v_lshl_add_u32 v4, v10, 2, v4
v_and_b32 v8, 3, v1
v_lshl_add_u32 v4, v8, 5, v4
v_mul_u32_u24 v10, {4*H1S}, v10
v_lshl_add_u32 v10, v11, 8, v10
v_bfe_u32 v8, v1, 1, 1
v_lshl_add_u32 v10, v8, 10, v10
v_and_b32 v8, 1, v1
v_lshl_add_u32 v10, v8, 3, v10
v_mov_b32 v11, v9
s_and_b32 s43, s2, 7
s_lshl_b32 s43, s43, 4
s_lshr_b32 s59, s2, 6
s_add_u32 s43, s43, s59
s_mul_i32 s43, s43, {H1S}
s_bfe_u32 s59, s2, 0x30003
s_lshl_b32 s59, s59, 4
s_add_u32 s43, s43, s59
s_lshr_b32 s59, s3, 1
s_lshl_b32 s59, s59, 7
s_add_u32 s43, s43, s59
s_and_b32 s59, s3, 1
s_lshl_b32 s59, s59, 11
s_add_u32 s43, s43, s59
s_add_u32 s43, s43, {H1OFF + 128}
s_mul_i32 s72, s73, 0x01010101
v_mov_b32 v9, s72
s_mul_i32 s59, s3, 2304
v_mul_u32_u24 v8, 144, v1
v_add_u32 v8, s59, v8
""")
    work = [("K", t, 4 * t + 3) for t in list(range(NLT, 16)) + list(range(NLT))] + [("S", 0, 63)] + [("V", v, 64 + 8 * v + 7) for v in range(8)]
    if dp: work.insert(17 + dpf, ("F", dpf, 0))
    consumed = NLL - 1
    wi = 0
    def do_work():
        nonlocal wi, consumed
        k, i, last = work[wi]
        if k == "K":
            if wi == 0: wait_q()
            if "nok" not in dbg: ktile(i)
            consumed = max(consumed, last)
        elif k == "S":
            if "nosm" in dbg: a(f"s_mov_b64 exec, 1\nv_mov_b32 v82, 1\nds_add_u32 v84, v82 offset:{FLG+16}\ns_mov_b64 exec, -1")
            else: softmax()
            stamp(3)
        elif k == "F": fitem(i)
        else:
            if "nov" not in dbg: vchunk(i)
            consumed = last
        wi += 1
    def ztouch():
        a("; prefetch this workgroup's hop-2 inbox lines into the memory-side cache (loaded values are not used)")
        a(f"s_lshl_b32 s4, s2, 2\ns_add_u32 s4, s4, s3\ns_lshl_b32 s4, s4, 9\ns_add_u32 s4, s4, {H2OFF}")
        for i in range(512 // h2pre[1]): a(f"s_load_dword s{16 + i}, s[40:41], s4 offset:{i * h2pre[1]}")
    issued = 0
    ops = []
    def iss(n):
        if dp == 1 and n >= 120:
            i = n - 120; u = i >> 1
            if n == 120: a(f"s_andn2_b32 s70, s52, 0x3000\nv_lshrrev_b32 v2, 4, v1\nv_lshlrev_b32 v2, 8, v2\nv_and_b32 v85, 15, v1\nv_lshl_add_u32 v2, v85, 2, v2\ns_lshl_b32 s59, s3, 6\nv_add_u32 v2, s59, v2")
            if i & 1 == 0: a(f"s_xor_b32 s53, s70, {(14 << tmap[1]) | (u << 12)}\ns_xor_b32 s61, s70, {(15 << tmap[1]) | (u << 12)}")
            for p in (2 * (i & 1), 2 * (i & 1) + 1):
                for hi in range(2):
                    a(f"buffer_load_dword v{rreg(120) + 8*u + 2*p + hi}, v2, s[48:51], s{61 if hi else 53} offen offset:{p*1024} {dpfl}")
                    ops.append(("L", n) if (p & 1 and hi) else ("s", n))
            return
        issue(n); ops.append(("L", n))
    def vm_for(X):
        li = [i for i, o in enumerate(ops) if o[0] == "L"]
        if len(li) <= X: return None
        p = li[len(li) - X - 1]
        return len(ops) - 1 - p, p
    if pat is None: pat = [(WIN, G)]
    if fc: pat = [(fc.get("w0", fc["W"][1]), fc["G"])]
    if est == [-1, -1]: stamp(5); st["ks"] = 1
    for n in range(pat[0][0]): iss(n)
    if est == [-1, -1]: stamp(6); est = [None, None]
    issued = pat[0][0]
    late_setup()
    a("s_barrier")
    setup_consts()
    arrived = -1
    step = 0
    done_op = -1; nw = 0; ph = 0; nctl = 0; evalq = []; PAIRS = [88, 92, 94]; tagdone = False
    while issued < NL:
        pp = pat2 if (pat2 is not None and issued >= n0) else pat
        WIN, G = pp[step % len(pp)]; step += 1
        if not fc:
            if issued - (WIN - G) - 1 > arrived: a(f"s_waitcnt vmcnt({WIN-G})")
            arrived = max(arrived, issued - (WIN - G) - 1)
        else:
            Wl, Wm, Wh = fc["W"]
            opened = False
            for n_, W_ in fc.get("open", []):
                if issued >= n_: Wl, Wm, Wh = W_; opened = Wl == Wh
            while issued + G - 1 - RING > consumed and work[wi][2] > max(arrived, issued - (Wh - G) - 1): Wh -= 1; Wm = min(Wm, Wh); Wl = min(Wl, Wh)
            r = vm_for(Wh - G)
            if r and issued - (Wh - G) - 1 > arrived: a(f"s_waitcnt vmcnt({r[0]})"); done_op = max(done_op, r[1]); arrived = max(arrived, issued - (Wh - G) - 1)
            tt = fc.get("tt")
            if tt:
                if not st.get("ev"):
                    r_ = vm_for(min(tt.get("wp", Wm), Wh) - G)
                    if r_: a(f"s_waitcnt vmcnt({r_[0]}) ;nc")
                else:
                    if not st.get("sl"):
                        a(f"s_waitcnt lgkmcnt(0)\ns_add_u32 s68, s70, {round(tt['U'] * (step - 1))}\ns_sub_u32 s68, s68, s{st['cur']}"); st["ok"] |= st["pend"]; st["pend"] = set()
                    lv = tt["lv"]
                    for n_, l_ in tt.get("lv2", []):
                        if issued >= n_: lv = l_
                    pw = Wh
                    for i_ in range(len(lv) - 1):
                        w_ = min(lv[i_ + 1][0], Wh)
                        if w_ >= pw: continue
                        pw = w_
                        a(f"s_cmpk_lt_i32 s68, {lv[i_][1] & 0xffff} ;nc\ns_cbranch_scc1 L_fs{step} ;nc\ns_waitcnt vmcnt({vm_for(w_ - G)[0]}) ;nc")
                    a(f"L_fs{step}:")
                    if prof and tt.get("tr") and step in tt["tr"]: a("s_lshl_b64 s[82:83], s[82:83], 16\ns_and_b32 s69, s68, 0xffff\ns_or_b32 s82, s82, s69")
            elif not opened: a(f"""
s_cmp_eq_u32 s62, 2 ;nc
s_cbranch_scc1 L_fs{step} ;nc
s_waitcnt vmcnt({vm_for(Wm - G)[0]}) ;nc
s_cmp_eq_u32 s62, 0 ;nc
s_cbranch_scc1 L_fs{step} ;nc
s_waitcnt vmcnt({vm_for(Wl - G)[0]}) ;nc
L_fs{step}:
""")
        if est:
            for i_, e_ in enumerate(est):
                if e_ is not None and arrived >= e_: stamp(5 + i_); est[i_] = None
        g = min(G, NL - issued)
        while issued + g - 1 - RING > consumed:
            if work[wi][2] > arrived:
                assert not fc
                a(f"s_waitcnt vmcnt({issued - 1 - work[wi][2]})"); arrived = work[wi][2]
            do_work()
        for n in range(issued, issued + g): iss(n)
        if wotrig is not None and wotrig >= 0 and issued <= wotrig < issued + g:
            a(f"s_mov_b64 exec, 1\nv_mov_b32 v82, 1\nds_add_u32 v84, v82 offset:{FLG+28}\ns_mov_b64 exec, -1")
        if fc:
            d = fc["d"]; k0 = fc.get("k0", 2); last = (NL - fc.get("stop", 8) - fc["W"][1]) // G
            if step == k0:
                a("s_waitcnt lgkmcnt(0)\ns_add_u32 s73, s73, 1" + ("" if fc.get("tt", {}).get("notab") else "\nv_mov_b32 v90, s73"))
            if step == fc.get("vw"):
                a("s_mov_b64 exec, vcc\nbuffer_load_dword v91, v84, s[48:51], s52 offen nt\ns_mov_b64 exec, -1"); ops.append(("C", 0))
            if fc.get("wg"):
                tt = fc.get("tt")
                tab = step >= fc.get("kw", 4) and step % fc["CW"] == 0 and step <= last and not opened
                if tt and tt.get("notab"): tab = False
                if tt:
                    st.setdefault("ok", set()); st.setdefault("pend", set())
                    if step >= fc.get("kw", 4):
                        st["cur"] = [6, 8, 10, 34, 42][nw % 5] if tab else 4; assert len(evalq) < 5
                        if tab or not st.get("sl"):
                            a(f"s_memrealtime s[{st['cur']}:{st['cur']+1}]"); st["pend"].add(st["cur"]); st["ok"].discard(st["cur"])
                    if prof and step in tt.get("trt", []): stamp([5, 6, 7][tt["trt"].index(step)])
                for e in [e for e in evalq if e[0] <= done_op]:
                    evalq.remove(e)
                    if tt:
                        if e[2] > tt.get("kstop", 99): continue
                        if e[3] not in st["ok"]:
                            assert not st.get("sl"); a("s_waitcnt lgkmcnt(0)"); st["ok"] |= st["pend"]; st["pend"] = set()
                        a(f"v_sad_u8 v85, v{e[1]}, 0, 0\ns_mov_b32 s62, s{e[3]}\ns_call_b64 s[80:81], {'L_cw' if st.get('ev1') else 'L_cw0'}"); st["ev"] = 1; st["ev1"] = 1
                        if tt.get("gl") and not st.get("gx"): a("s_mov_b32 s70, s75")
                    else: a(f"v_sad_u8 v85, v{e[1]}, 0, 0\ns_movk_i32 s68, {32 * e[2]}\ns_call_b64 s[80:81], L_cw")
                if tab and tt and step > tt.get("kstop", 99):
                    a(f"v_mov_b32 v89, {step}\ns_mov_b64 exec, vcc\nbuffer_store_byte v89, v88, s[12:15], 0 offen\ns_mov_b64 exec, -1"); ops.append(("S", 0))
                elif tab:
                    r_ = [91, 92, 93, 94, 95, 86 if NLT == 0 else 5][nw % 6]; nw += 1; assert len(evalq) < 6
                    a(f"""
v_mov_b32 v89, {step}
s_mov_b64 exec, vcc
buffer_store_byte v89, v88, s[12:15], 0 offen
s_mov_b64 exec, -1
buffer_load_dword v{r_}, v87, s[12:15], 0 offen nt
""")
                    ops.append(("S", 0)); ops.append(("C", 0)); evalq.append((len(ops) - 1, r_, step, st.get("cur")))
            if fc.get("ts"):
                for i_, k_ in enumerate(fc["ts"]):
                    if step == k_ - 1 and not fc.get("tt"): a("s_memrealtime s[34:35]")
                    if step == k_:
                        if not fc.get("tt"): a("s_waitcnt lgkmcnt(0)\ns_add_u32 s34, s34, s75\nv_mov_b32 v{TSR}, s34".replace("{TSR}", str(TSR)))
                        elif st.get("ev1"): a(f"s_add_u32 s65, s75, {round(fc['tt']['U'] * step)}\nv_mov_b32 v{TSR}, s65")
                        else:
                            a(f"s_waitcnt lgkmcnt(0)\nv_mov_b32 v{TSR}, s{st['cur']}"); st["ok"] |= st["pend"]; st["pend"] = set()
                            if fc["tt"].get("gl") == 2 and i_ == 0: a(f"s_sub_u32 s70, s{st['cur']}, {round(fc['tt']['U'] * step)}")
                        a(f"""
v_mov_b32 v97, s73
s_movk_i32 s65, {PGOFF + i_ * 256}
s_cmp_eq_u32 s64, {(5 * i_ + 3) % 32}
s_cselect_b64 exec, 1, 0
buffer_store_dwordx2 v[96:97], v83, s[76:79], s65 offen sc1
s_mov_b64 exec, -1
""".replace("v96", f"v{TSR}").replace("v97", f"v{TSR+1}").replace("v[96:97]", f"v[{TSR}:{TSR+1}]"))
                        ops.append(("S", 0))
                    if step == k_ + d:
                        a(f"s_load_dwordx16 s[16:31], s[40:41], {PGOFF + i_ * 256}\ns_load_dwordx2 s[32:33], s[40:41], s63 offset:{PGOFF + i_ * 256}\ns_memrealtime s[36:37]" if fc.get("tt", {}).get("gl") != 2 else f"s_load_dwordx16 s[16:31], s[40:41], {PGOFF + i_ * 256}"); st["sl"] = 1
                    if step == k_ + d + fc.get("dl", 3):
                        if fc.get("tt", {}).get("gl"):
                            a(f"s_movk_i32 s62, {round(fc['tt']['U'] * k_)}\ns_call_b64 s[80:81], {'L_cx' if st.get('gx') or not fc['tt'].get('gsm') else 'L_cx0'}"); st["gx"] = 1; st["ev"] = 1
                        else: a("s_call_b64 s[80:81], L_cx")
                        st["sl"] = 0
                        if wodl is not None and i_ == len(fc["ts"]) - 1:
                            a(f"s_add_u32 s69, s70, {round(fc['tt']['U'] * ((NL - pat[0][0]) // G)) + wodl}\ns_mov_b64 exec, 1\nv_mov_b32 v82, s69\nds_write_b32 v84, v82 offset:{FLG+48}\ns_mov_b64 exec, -1")
                        if fc.get("tt"):
                            st["ok"] |= st["pend"]; st["pend"] = set()
                            if st["cur"] == 4: a("s_memrealtime s[4:5]"); st["pend"].add(4)
            if k0 <= step <= last - d and fc.get("x", 1):
                a(f"""
s_movk_i32 s65, {PGOFF + step * 256}
s_cmp_eq_u32 s64, {step % 32}
s_cselect_b64 exec, 1, 0
buffer_store_dword v90, v83, s[76:79], s65 offen sc1
s_mov_b64 exec, -1
""")
                ops.append(("S", 0))
            if step >= k0 + d and (step - k0 - d) % fc["C"] == 0:
                if nctl > 0: a("s_call_b64 s[80:81], L_cb"); nctl = 0
                if step <= last and fc.get("x", 1):
                    a(f"s_load_dwordx8 s[4:11], s[40:41], {PGOFF + (step - d) * 256}"); nctl = 1
        issued += g
        for _ in range(WPS):
            if wi < len(work) and work[wi][2] <= arrived and (wi > 0 or issued + G - 1 - RING > consumed):
                do_work()
    if "dpst" in dbg: stamp(5); print("drain work:", work[wi:])
    while wi < len(work):
        need_ = work[wi][2]
        if dp == 1 and wi == len(work) - 1:
            if "dpst" in dbg: stamp(6)
            if dpt == "a": s_sig(FLG + 28)
            a("s_mov_b64 exec, 0xffff")
            for jj in range(8): a(f"ds_write_b128 v8, v[{ACC+4*jj}:{ACC+4*jj+3}] offset:{OP+16*jj}")
            s_sig(FLG + 36)
            s_wait("L_d3", FLG + 44, 4)
            for u in range(4): a(f"ds_read_b128 v[{AQ[u]}:{AQ[u]+3}], v11 offset:{QL+256*u}")
            if dpt == "b": s_sig(FLG + 28)
            R0 = rreg(120)
            def dperm(u, p):
                a(f"v_perm_b32 v{PT+8*(u&1)+p}, v{R0+8*u+2*p+1}, v{R0+8*u+2*p}, s54\nv_perm_b32 v{PT+8*(u&1)+4+p}, v{R0+8*u+2*p+1}, v{R0+8*u+2*p}, s55")
            for i in range(8):
                u = i >> 1
                if i == dpc:
                    s_wait("L_d2", FLG + 36, 4)
                    for u_ in range(4): a(f"ds_read_b32 v{36+2*u_}, v4 offset:{OP+2304*u_}\nds_read_b32 v{37+2*u_}, v4 offset:{OP+2304*u_+16}")
                    if "dpst" in dbg: stamp(7)
                if i == 7: a("s_waitcnt lgkmcnt(0)\nv_pk_add_f32 v[36:37], v[36:37], v[38:39]\nv_pk_add_f32 v[40:41], v[40:41], v[42:43]\nv_pk_add_f32 v[36:37], v[36:37], v[40:41]")
                if i < 7:
                    a(f"s_waitcnt vmcnt({vm_for(7 - i)[0]})")
                    if dpt == f"c{7 - i}": s_sig(FLG + 28)
                    dperm(u, 2 * (i & 1)); dperm(u, 2 * (i & 1) + 1)
                else:
                    a("s_waitcnt vmcnt(2)"); dperm(u, 2); a("s_cmp_lg_u32 s42, 0\ns_waitcnt vmcnt(0)"); dperm(u, 3)
                if i == 1: a("s_waitcnt lgkmcnt(0)")
                if i & 1:
                    for e in range(2): a(f"v_mfma_f32_16x16x32_bf16 v[{28+4*e}:{31+4*e}], v[{AQ[u]}:{AQ[u]+3}], v[{PT+8*(u&1)+4*e}:{PT+8*(u&1)+4*e+3}], {f'v[{28+4*e}:{31+4*e}]' if u else '0'}")
            a("v_add_f32 v28, v28, v36\nv_add_f32 v32, v32, v37")
            assert ops[-1] == ("L", 127)
            a(f"""
v_cvt_pk_bf16_f32 v8, v28, v32
s_cbranch_scc1 L_dp_far
buffer_store_dwordx2 v[8:9], v10, s[76:79], s43 offen
L_dp_done:
""")
            stamp(4)
            if dpw: s_sig(FLG + 40)
            break
        if wi == len(work) - 1 and wotrig is not None and wotrig >= 200:
            a(f"s_waitcnt vmcnt({vm_for(wotrig - 200)[0]})")
            if defer:
                a(f"s_cmp_gt_i32 s75, {defer[0]}\ns_cselect_b32 s59, 0x101, 1\ns_mov_b64 exec, 1\nv_mov_b32 v82, s59\nds_add_u32 v84, v82 offset:{FLG+28}")
                if defer[2] > 60:
                    a("v_mov_b32 v89, 62\ns_mov_b64 exec, vcc\nbuffer_store_byte v89, v88, s[12:15], 0 offen"); ops.append(("S", 0))
                a("s_mov_b64 exec, -1")
            else: a(f"s_mov_b64 exec, 1\nv_mov_b32 v82, 1\nds_add_u32 v84, v82 offset:{FLG+28}\ns_mov_b64 exec, -1")
        if wi == len(work) - 1 and lastopt and "nov" not in dbg:
            v = 7; OB = rreg(112)
            def lp(p, jj): a(f"v_perm_b32 v{OB+4*jj+p}, v{rreg(124+p)+(jj>>1)}, v{rreg(120+p)+(jj>>1)}, {'s55' if jj & 1 else 's54'}")
            def lm(jj): a(f"v_mfma_f32_16x16x32_bf16 v[{ACC+4*jj}:{ACC+4*jj+3}], v[{PA}:{PA+3}], v[{OB+4*jj}:{OB+4*jj+3}], v[{ACC+4*jj}:{ACC+4*jj+3}]")
            def lw(jj): a(f"ds_write_b128 v{8 if dp else 4}, v[{ACC+4*jj}:{ACC+4*jj+3}] offset:{OP+16*jj}")
            if t2:
                def lm(jj): a(f"v_mfma_f32_16x16x32_bf16 v[{ACC+4*(jj>>2)}:{ACC+4*(jj>>2)+3}], v[{PA4+4*(jj&3)}:{PA4+4*(jj&3)+3}], v[{OB+4*jj}:{OB+4*jj+3}], v[{ACC+4*(jj>>2)}:{ACC+4*(jj>>2)+3}]")
                a(f"s_lshl_b32 s59, s3, 11\nv_add_u32 v4, s59, v3")
            elif not dp: a(f"s_mul_i32 s59, s3, 2304\nv_mul_u32_u24 v4, 144, v1\nv_add_u32 v4, s59, v4")
            a("v_mov_b32 v82, 1"); mkpa(v)
            if h2pre and h2pre is not True and h2pre[0] == "y": ztouch()
            for p in range(3):
                a(f"s_waitcnt vmcnt({vm_for(3 - p)[0]})")
                for jj in range(8): lp(p, jj)
            a("s_waitcnt vmcnt(0)")
            if dpp: a(f"s_setprio {dpp}")
            lp(3, 0); lp(3, 1)
            for jj in range(6): lp(3, jj + 2); lm(jj)
            stamp(4)
            if t2:
                lm(6); lm(7)
                a(f"ds_write_b128 v4, v[{ACC}:{ACC+3}] offset:{OP}\nds_write_b128 v4, v[{ACC+4}:{ACC+7}] offset:{OP+1024}")
            else:
                a("s_mov_b64 exec, 0xffff"); lw(0); lm(6); lw(1); lm(7)
                for jj in range(2, 8): lw(jj)
            if dp:
                a(f"""
s_mov_b64 exec, 1
ds_add_u32 v84, v82 offset:{FLG+36}
s_mov_b64 exec, -1
s_mov_b32 s58, {spin*8}
L_d2:
ds_read_b32 v85, v84 offset:{FLG+36}
""")
                for u_ in range(4): a(f"ds_read_b32 v{PT+2*u_}, v4 offset:{OP+2304*u_}\nds_read_b32 v{PT+1+2*u_}, v4 offset:{OP+2304*u_+16}")
                a(f"""
s_waitcnt lgkmcnt(8)
v_readfirstlane_b32 s59, v85
s_sub_u32 s58, s58, 1
s_cbranch_scc1 L_d2_done
s_cmp_lt_u32 s59, 4
s_cbranch_scc1 L_d2
L_d2_done:
s_cmp_lg_u32 s42, 0
s_waitcnt lgkmcnt(4)
v_pk_add_f32 v[{PT}:{PT+1}], v[{PT}:{PT+1}], v[{PT+2}:{PT+3}]
s_waitcnt lgkmcnt(0)
v_pk_add_f32 v[{PT+4}:{PT+5}], v[{PT+4}:{PT+5}], v[{PT+6}:{PT+7}]
v_pk_add_f32 v[{PT}:{PT+1}], v[{PT}:{PT+1}], v[{PT+4}:{PT+5}]
v_cvt_pk_bf16_f32 v8, v{PT}, v{PT+1}
s_cbranch_scc1 L_dp_far
buffer_store_dwordx2 v[8:9], v10, s[76:79], s43 offen
L_dp_done:
""")
                if est: stamp(7)
                if dpw: s_sig(FLG + 40)
            break
        if need_ > arrived:
            r = vm_for(NL - 1 - need_) if fc else (NL - 1 - need_,)
            a(f"s_waitcnt vmcnt({r[0]})"); arrived = need_
        do_work()
    else:
        stamp(4)
        a(f"""
s_mul_i32 s59, s3, 2304
v_mul_u32_u24 v4, 144, v1
v_add_u32 v4, s59, v4
s_mov_b64 exec, 0xffff
""")
        for jj in range(8):
            a(f"ds_write_b128 v4, v[{ACC+4*jj}:{ACC+4*jj+3}] offset:{OP+16*jj}")
    if not dp: a("""
s_mov_b64 exec, -1
s_waitcnt lgkmcnt(0)
s_barrier
""")
    if h2pre and h2pre is not True and h2pre[0] == "z": ztouch()
    if t3: a("s_barrier")
    if wbar: a("s_barrier")
    if lbar: a("s_barrier")
    if dirty:
        a(f"""
s_mov_b32 s44, s40
s_mov_b32 s45, s41
s_mov_b32 s46, 0x10000000
s_mov_b32 s47, 0x20000
s_lshl_b32 s59, s2, 2
s_add_u32 s59, s59, s3
s_mul_i32 s59, s59, {dirty*1024}
s_add_u32 s59, s59, {64 << 20}
s_sleep 64
""")
        for i in range(dirty): a(f"buffer_store_dwordx4 v[28:31], v3, s[44:47], s59 offen\ns_add_u32 s59, s59, 1024")
    if prof:
        a(f"""
s_mov_b32 s44, s40
s_mov_b32 s45, s41
s_mov_b32 s46, 0x10000000
s_mov_b32 s47, 0x20000
s_sleep 127
s_sleep 127
s_sleep 127
s_waitcnt lgkmcnt(0)
s_lshl_b32 s59, s2, 3
s_add_u32 s59, s59, s3
s_lshl_b32 s59, s59, 6
s_add_u32 s59, s59, {STAMP}
v_mov_b32 v4, 0
s_mov_b64 exec, 1
""")
        for i in range(8):
            trt = fc and fc.get("tt", {}).get("trt")
            sr = 82 if (i == 5 and fc and not est and not trt) else 84 + 2 * (i if est or trt else min(i, 4))
            a(f"v_mov_b32 v8, s{sr}\nv_mov_b32 v9, s{sr+1}\nbuffer_store_dwordx2 v[8:9], v4, s[44:47], s59 offen offset:{8*i}\ns_waitcnt vmcnt(0)")
    a("s_endpgm")
    if dp: a("L_dp_far:\nbuffer_store_dwordx2 v[8:9], v10, s[76:79], s43 offen sc1\ns_branch L_dp_done")
    X = 32
    S1 = 12; S2 = 13; T0 = 14; T1 = 15; NM = 16; RS = 18
    W1 = 40; B1 = 47; W2 = 54; HX = 62; U = 66; AA = 73; EE = 80; ACC2 = 87; C1 = 88; YA = 89
    WB = 192
    def srd(base, lo, size): a(f"s_mov_b32 s{base}, s{lo}\ns_mov_b32 s{base+1}, s{lo+1}\ns_mov_b32 s{base+2}, {size}\ns_mov_b32 s{base+3}, 0x20000")
    def bfround(r): a(f"v_cvt_pk_bf16_f32 v{r}, v{r}, v{r}\nv_lshlrev_b32 v{r}, 16, v{r}")
    def stats_finish():
        a(f"""
v_mul_f32 v{S1}, {f32(1/512)}, v{S1}
v_mul_f32 v{S2}, {f32(1/512)}, v{S2}
v_fma_f32 v{S2}, -v{S1}, v{S1}, v{S2}
v_max_f32 v{S2}, 0, v{S2}
""")
        bfround(S1); bfround(S2)
        a(f"v_add_f32 v{S2}, {f32(1e-5)}, v{S2}")
        bfround(S2)
        a(f"v_sqrt_f32 v{S2}, v{S2}")
        bfround(S2)
        a(f"""
v_rcp_f32 v{RS}, v{S2}
v_sub_f32 v{NM}, 0, v{S1}
v_sub_f32 v{NM+1}, 0, v{S1}
v_mov_b32 v{RS+1}, v{RS}
""")
    def swaps_add(r, t):
        a(f"""
v_mov_b32 v{t}, v{r}
v_permlane16_swap_b32 v{r}, v{t}
v_add_f32 v{r}, v{r}, v{t}
v_mov_b32 v{t}, v{r}
v_permlane32_swap_b32 v{r}, v{t}
v_add_f32 v{r}, v{r}, v{t}
""")
    def normalize(src, dst, n, tmp):
        for i0 in range(0, n, 4):
            idx = list(range(i0, min(n, i0 + 4)))
            for i in idx:
                t = tmp + 2 * (i - i0)
                a(f"v_lshlrev_b32 v{t}, 16, v{src+i}\nv_and_b32 v{t+1}, 0xffff0000, v{src+i}")
            for i in idx:
                t = tmp + 2 * (i - i0)
                a(f"v_pk_add_f32 v[{t}:{t+1}], v[{t}:{t+1}], v[{NM}:{NM+1}]")
            for i in idx:
                t = tmp + 2 * (i - i0)
                a(f"v_cvt_pk_bf16_f32 v{t}, v{t}, v{t+1}")
            for i in idx:
                t = tmp + 2 * (i - i0)
                a(f"v_and_b32 v{t+1}, 0xffff0000, v{t}\nv_lshlrev_b32 v{t}, 16, v{t}")
            for i in idx:
                t = tmp + 2 * (i - i0)
                a(f"v_pk_mul_f32 v[{t}:{t+1}], v[{t}:{t+1}], v[{RS}:{RS+1}]")
            for i in idx:
                t = tmp + 2 * (i - i0)
                a(f"v_cvt_pk_bf16_f32 v{dst+i}, v{t}, v{t+1}")
    def lds_wait(lbl, off, cnt, sl=0, msk=False):
        a(f"""
s_mov_b32 s58, {spin*8}
{lbl}:
ds_read_b32 v4, v9 offset:{off}
s_waitcnt lgkmcnt(0)
v_readfirstlane_b32 s59, v4
s_sub_u32 s58, s58, 1
s_cbranch_scc1 {lbl}_done
{"s_and_b32 s27, s59, 255" if msk else ""}
s_cmp_lt_u32 {"s27" if msk else "s59"}, {cnt}
{f"s_sleep {sl}" if sl else ""}
s_cbranch_scc1 {lbl}
{lbl}_done:
""")
    def lds_signal(off):
        a(f"""
s_mov_b64 exec, 1
ds_add_u32 v9, v11 offset:{off}
s_mov_b64 exec, -1
""")
    def orred(ts):
        ts = list(ts)
        while len(ts) > 1:
            if len(ts) >= 3:
                a(f"v_or3_b32 v{ts[0]}, v{ts[0]}, v{ts[1]}, v{ts[2]}"); ts = ts[3:] + [ts[0]]
            else:
                a(f"v_or_b32 v{ts[0]}, v{ts[0]}, v{ts[1]}"); ts = [ts[0]]
        return ts[0]
    def chk8(tags, tmp):
        if b3 and len(tags) % 2 == 0:
            for i in range(len(tags) // 2): a(f"v_bitop3_b32 v{tmp+i}, v{tags[2*i]}, v{tags[2*i+1]}, s12 bitop3:0x7e")
            return orred([tmp + i for i in range(len(tags) // 2)])
        for i, t in enumerate(tags): a(f"v_xor_b32 v{tmp+i}, s12, v{t}")
        return orred([tmp + i for i in range(len(tags))])
    def chk16(bases, tmp, tagreg):
        out = []
        for i, b in enumerate(bases):
            a(f"v_perm_b32 v{tmp+2*i}, v{b+1}, v{b}, s20\nv_perm_b32 v{tmp+2*i+1}, v{b+3}, v{b+2}, s21")
        for i, b in enumerate(bases):
            a(f"v_or_b32 v{tmp+2*i}, v{tmp+2*i}, v{tmp+2*i+1}")
        for i, b in enumerate(bases):
            a(f"v_xor_b32 v{tmp+2*i}, s{tagreg}, v{tmp+2*i}"); out.append(tmp + 2 * i)
        return orred(out)
    def pack16(dst, srcs, tagv):
        for i, r in enumerate(srcs): a(f"v_perm_b32 v{dst+i}, v{r}, v{tagv}, s{16+i}")
    def poll(lbl, loads, chk, fbr=None, post=None, st=None, pipe=1, stag=0, sl=None, mid=None, pre=False):
        if sl is None: sl = slp
        if fbr is not None: a(f"s_mov_b32 s82, s{fbr}\ns_add_u32 s83, s{fbr}, {BD}")
        a(f"s_mov_b32 s58, {spin}")
        for _ in range(pipe - 1):
            for l in loads: a(l)
            if stag: a(f"s_sleep {stag}")
        if mid:
            if not pre:
                for l in loads: a(l)
            mid()
            if "h1vm" in dbg: stamp(4)
            a(f"s_branch {lbl}_chk")
        a(f"{lbl}:")
        if st is not None and (tailprof or (st == 4 and "h1it" in dbg) or (st == 3 and "h2it" in dbg)): stamp(4 if "h2it" in dbg else st)
        for l in loads: a(l)
        if mid: a(f"{lbl}_chk:")
        a(f"s_waitcnt vmcnt({len(loads) * (pipe - 1)})")
        r = chk()
        if post: r = post(r)
        a(f"""
v_cmp_ne_u32 vcc, 0, v{r}
s_sub_u32 s58, s58, 1
s_cbranch_scc1 {lbl}_done
s_and_b64 exec, exec, vcc
s_cbranch_execz {lbl}_done
""")
        if fbr is not None: a(f"s_and_b32 s59, s58, {fb}\ns_cselect_b32 s{fbr}, s82, s83")
        if sl: a(f"s_sleep {sl}")
        a(f"""
s_branch {lbl}
{lbl}_done:
s_mov_b64 exec, -1
""")
    a("""; ---------------- helper waves
L_helper:
s_load_dwordx16 s[16:31], s[0:1], 0
s_load_dwordx8 s[32:39], s[0:1], 64
s_load_dwordx2 s[40:41], s[0:1], 96
v_and_b32 v3, 15, v0
v_lshlrev_b32 v3, 2, v3
v_mov_b32 v4, 0
ds_write_b32 v3, v4
s_setprio 3
s_sub_u32 s3, s3, 4
s_waitcnt lgkmcnt(0)
""")
    if "probe" in dbg:
        srd(52, 40, 0x10000000)
        pl = "probel" in dbg
        a(f"""
s_cmp_lt_u32 s3, 2
s_cbranch_scc1 L_noprobe
s_and_b32 s4, s3, 1
s_lshl_b32 s4, s4, 13
s_lshl_b32 s5, s2, 14
s_add_u32 s4, s4, s5
s_add_u32 s4, s4, {8 << 20}
s_mov_b64 exec, 1
s_memtime s[76:77]
s_waitcnt lgkmcnt(0)
{"s_load_dword s5, s[40:41], s4 offset:128" if "probew" in dbg else ""}
s_waitcnt lgkmcnt(0)
{"s_memtime s[76:77]" if "probew" in dbg else ""}
s_waitcnt lgkmcnt(0)
{"s_load_dword s5, s[40:41], s4" if "probes" in dbg else "buffer_load_dword v5, v4, s[52:55], s4 offen sc1" if pl else "buffer_store_dword v4, v4, s[52:55], s4 offen sc1"}
s_waitcnt vmcnt(0) lgkmcnt(0)
s_memtime s[78:79]
s_waitcnt lgkmcnt(0)
s_sub_u32 s98, s78, s76
s_mov_b32 s99, 0
s_mov_b64 exec, -1
L_noprobe:
""")
    if near: a(f"s_cmp_lt_u32 s2, {8 * near['nw']}\ns_cbranch_scc1 L_meas\nL_meas_done:")
    if "s" in warm:
        a("""
s_and_b32 s4, s2, 7
s_lshl_b32 s4, s4, 20
s_lshr_b32 s5, s2, 5
s_lshl_b32 s5, s5, 23
s_or_b32 s4, s4, s5
s_load_dword s76, s[20:21], s4
s_and_b32 s4, s2, 4
s_lshl_b32 s4, s4, 19
s_load_dword s77, s[24:25], s4
s_load_dword s78, s[36:37], 0
s_load_dword s79, s[38:39], 0
""")
    if "m" in warm:
        a("""
s_load_dword s76, s[16:17], 0
s_load_dword s77, s[22:23], 0
s_load_dword s78, s[22:23], 0x200000
s_load_dword s79, s[28:29], 0
s_load_dword s76, s[30:31], 0
s_load_dword s77, s[32:33], 0
s_load_dword s78, s[34:35], 0
""".replace("0x200000", "0xffffc"))
    srd(44, 16, 8192); srd(48, 22, 0x400000); srd(52, 40, 0x10000000); srd(56, 24, 0x400000)
    srd(60, 28, 3584); srd(64, 30, 3584); srd(68, 32, 3584)
    a(f"""
v_lshrrev_b32 v5, 4, v1
v_and_b32 v6, 7, v1
v_and_b32 v8, 15, v1
v_lshrrev_b32 v7, 5, v1
v_and_b32 v4, 31, v1
v_lshlrev_b32 v4, 4, v4
v_lshl_add_u32 v2, v7, 10, v4
s_lshl_b32 s6, s3, 11
v_mov_b32 v9, 0
v_mov_b32 v11, 1
v_lshrrev_b32 v20, 3, v1
v_lshlrev_b32 v21, 13, v20
v_lshl_add_u32 v21, v6, 4, v21
v_lshlrev_b32 v22, {12 if t2 else 10}, v20
v_lshl_add_u32 v22, v6, 4, v22
s_and_b32 s15, s2, 7
s_lshr_b32 s14, s2, 3
s_add_u32 s4, s14, {rq}
s_and_b32 s4, s4, 7
s_add_u32 s14, s14, {ro}
s_and_b32 s14, s14, 7
s_lshl_b32 s8, s15, 3
s_add_u32 s8, s8, s4
s_lshr_b32 s9, s2, 6
s_lshl_b32 s4, s9, 2
s_add_u32 s4, s4, s3
s_lshl_b32 s4, s4, 18
s_lshl_b32 s5, s8, 7
s_add_u32 s72, s4, s5
s_lshl_b32 s13, s15, 2
s_add_u32 s13, s13, s9
s_lshl_b32 s4, s13, {7 if t3 else 2}
s_add_u32 s4, s4, s3
s_lshl_b32 s4, s4, {10 if t3 else 15}
s_lshl_b32 s5, s14, 7
s_add_u32 s73, s4, s5
s_lshl_b32 s4, s3, 12
s_add_u32 s74, s4, {WQL}
s_mul_i32 s75, s3, 896
v_lshlrev_b32 v23, 1, v1
s_barrier
""")
    if "nohelp" in dbg: a("s_branch L_pre2")
    if hdel: a(f"s_sleep {hdel}")
    a(f"""
buffer_load_dwordx4 v[{X}:{X+3}], v2, s[44:47], s6 offen
buffer_load_dwordx4 v[{X+4}:{X+7}], v2, s[44:47], s6 offen offset:512
{"s_load_dword s42, s[40:41], 0" if sE else "buffer_load_dword v10, v9, s[52:55], 0 offen sc1"}
""")
    def h2touch():
        stp = h2pre[1]
        if stp == "v":
            a(f"s_lshl_b32 s4, s2, 2\ns_add_u32 s4, s4, s3\ns_lshl_b32 s4, s4, 9\ns_add_u32 s4, s4, {H2OFF}\nv_lshlrev_b32 v94, 3, v1\nbuffer_load_dwordx2 v[94:95], v94, s[52:55], s4 offen {h2pre[2]}")
            return
        a(f"s_lshl_b32 s4, s2, 2\ns_add_u32 s4, s4, s3\ns_lshl_b32 s4, s4, 9\ns_add_u32 s4, s4, {H2OFF}")
        for i in range(512 // stp): a(f"s_load_dword s{96 + (i & 3) if not prof else 27}, s[40:41], s4 offset:{i * stp}")
    if h2pre and h2pre is not True and h2pre[0] == "e": h2touch()
    if "nowq" in dbg: a("s_mov_b32 s50, 0\ns_mov_b32 s58, 0")
    if wqdel: a(f"s_sleep {wqdel}")
    for t in range(4):
        a(f"s_add_u32 m0, s74, {t*1024}\ns_nop 0\nbuffer_load_dwordx4 v21, s[48:51], s72 offen nt lds")
        if t < 3: a(f"s_add_u32 s72, s72, {8*8192}")
    def wodma(t, vr, so, sl):
        if wosw and t & 1: vr = 152
        a(f"s_add_u32 m0, s{sl}, {16384+t*1024}\ns_nop 0\nbuffer_load_dwordx4 v{vr}, {'s[56:59]' if wolate is None else 's[68:71]'}, s{so} offen nt lds")
        if t < 3: a(f"s_add_u32 s{so}, s{so}, {32768 if t3 else 1024 if t2 else 8*1024}")
    if wolate is None:
        for t in range(4): wodma(t, 22, 73, 74)
    else:
        if wosw: a("v_and_b32 v90, 1, v5\nv_lshlrev_b32 v90, 5, v90\nv_xor_b32 v90, v90, v22\nv_xor_b32 v152, 64, v90\ns_mov_b32 s22, s73\ns_mov_b32 s23, s74")
        else: a("v_mov_b32 v90, v22\ns_mov_b32 s22, s73\ns_mov_b32 s23, s74")
    NW = 0 if wolate is None else 4
    for t in range(7):
        a(f"buffer_load_ushort v{W1+t}, v23, s[60:63], s75 offen offset:{128*t}")
        a(f"buffer_load_ushort v{B1+t}, v23, s[64:67], s75 offen offset:{128*t}")
        a(f"buffer_load_ushort v{W2+t}, v23, s[68:71], s75 offen offset:{128*t}")
    srd(60, 34, 2); srd(64, 36, 8192); srd(68, 24, 0 if ('nowq' in dbg or 'nowo2' in dbg) else 0x400000)
    a(f"""
v_and_b32 v30, 3, v1
v_lshlrev_b32 v30, {3 if t3 else 1}, v30
v_lshl_add_u32 v30, v5, {1 if t3 else 5}, v30
""" + ("s_lshl_b32 s10, s2, 5" if t3 else """s_lshr_b32 s10, s2, 2
s_lshl_b32 s10, s10, 7
s_and_b32 s4, s2, 3
s_lshl_b32 s4, s4, 3
s_add_u32 s10, s10, s4""") + f"""
buffer_load_ushort v31, v9, s[60:63], 0 offen
buffer_load_ushort v29, v30, s[44:47], s10 offen
s_mov_b32 s16, 0x07060500
s_mov_b32 s17, 0x07060501
s_mov_b32 s18, 0x07060502
s_mov_b32 s19, 0x07060503
s_mov_b32 s20, 0x0c0c0400
s_mov_b32 s21, 0x04000c0c
s_getreg_b32 s43, hwreg(HW_REG_XCC_ID, 0, 4)
s_lshl_b32 s43, s43, 3
s_add_u32 s43, s43, s15
s_lshl_b32 s43, s43, 7
s_add_u32 s43, s43, {LOCOFF}
s_lshr_b32 s59, s2, 3
s_lshl_b32 s59, s59, 2
s_add_u32 s59, s59, s43
s_mov_b32 s11, 0x3f803f80
v_mov_b32 v{S1}, 0
v_mov_b32 v{S2}, 0
s_waitcnt lgkmcnt(0)
s_add_u32 s42, s42, 1
s_mul_i32 s12, s42, 0x01010101
v_mov_b32 v10, s12
s_cmp_eq_u32 s3, 0
s_cselect_b64 exec, 1, 0
buffer_store_dword v10, v9, s[52:55], s59 offen
s_mov_b64 exec, -1
s_waitcnt vmcnt({32 - NW + (1 if h2pre and h2pre is not True and h2pre[:2] == ('e', 'v') else 0)})
""")
    for i in range(8):
        a(f"v_dot2_f32_bf16 v{S1}, v{X+i}, s11, v{S1}")
        a(f"v_dot2_f32_bf16 v{S2}, v{X+i}, v{X+i}, v{S2}")
    for n in (8, 4, 2, 1):
        a(f"v_add_f32_dpp v{S1}, v{S1}, v{S1} row_ror:{n} row_mask:0xf bank_mask:0xf")
        a(f"v_add_f32_dpp v{S2}, v{S2}, v{S2} row_ror:{n} row_mask:0xf bank_mask:0xf")
    a(f"""
v_mov_b32 v{T0}, v{S1}
v_mov_b32 v{T1}, v{S2}
v_permlane16_swap_b32 v{S1}, v{T0}
v_permlane16_swap_b32 v{S2}, v{T1}
v_add_f32 v{S1}, v{S1}, v{T0}
v_add_f32 v{S2}, v{S2}, v{T1}
""")
    stats_finish()
    normalize(X, X, 8, 20)
    a(f"""
s_mul_i32 s4, s3, {2*XRS}
v_mul_u32_u24 v2, {XRS}, v7
v_add3_u32 v2, v2, v4, s4
ds_write_b128 v2, v[{X}:{X+3}] offset:{XN}
ds_write_b128 v2, v[{X+4}:{X+7}] offset:{XN+512}
v_mul_u32_u24 v2, {XRS}, v6
v_lshl_add_u32 v2, v5, 4, v2
s_lshl_b32 s4, s9, 8
v_add_u32 v2, s4, v2
v_bfe_u32 v3, v1, 2, 2
v_lshl_add_u32 v3, v5, 3, v3
v_lshlrev_b32 v3, 7, v3
v_and_b32 v20, 3, v1
v_lshl_add_u32 v3, v20, 3, v3
s_lshl_b32 s4, s3, 5
v_add_u32 v24, s4, v3
s_waitcnt vmcnt(24) lgkmcnt(0)
""")
    lds_signal(FLG + 8)
    a(f"""
v_and_b32 v27, 31, v1
v_lshlrev_b32 v27, 2, v27
buffer_load_dword v150, v27, s[52:55], s43 offen nt
v_lshlrev_b32 v25, 4, v5
v_lshl_add_u32 v25, v6, 11, v25
s_lshr_b32 s4, s8, 1
s_lshl_b32 s4, s4, 5
s_add_u32 s4, s4, s9
s_lshl_b32 s4, s4, 1
s_and_b32 s5, s8, 1
s_add_u32 s4, s4, s5
s_lshl_b32 s4, s4, 2
s_add_u32 s4, s4, s3
s_lshl_b32 s4, s4, 6
s_add_u32 s72, s4, {QOFF}
s_mov_b32 s26, 0
""")
    if qprew: a("v_not_b32 v132, v10\nv_not_b32 v133, v10\nv_not_b32 v134, v10\nv_not_b32 v135, v10\ns_mov_b32 exec_lo, 0x00ff00ff\ns_mov_b32 exec_hi, 0x00ff00ff\nbuffer_store_dwordx4 v[132:135], v25, s[52:55], s72 offen\ns_mov_b64 exec, -1")
    lds_wait("L_xw", FLG + 8, 4)
    for t in range(4):
        a(f"ds_read_b128 v[{96+4*t}:{99+4*t}], v2 offset:{XN+64*t}")
        for u in range(2): a(f"ds_read_b64_tr_b16 v[{112+4*t+2*u}:{113+4*t+2*u}], v24 offset:{WQL+t*4096+u*512}")
    a("s_waitcnt lgkmcnt(0)")
    stamp(1)
    for t in range(4):
        a(f"v_mfma_f32_16x16x32_bf16 v[128:131], v[{112+4*t}:{115+4*t}], v[{96+4*t}:{99+4*t}], {'0' if t == 0 else 'v[128:131]'}")
    pack16(132, [128, 129, 130, 131], 10)
    if "cutq" in dbg: a("s_branch L_pre2")
    a(f"""
s_movk_i32 s58, {nloc}
L_lc:
s_waitcnt vmcnt(0)
v_cmp_ne_u32 vcc, s12, v150
s_cbranch_vccz L_lc_done
buffer_load_dword v150, v27, s[52:55], s43 offen nt
s_sub_u32 s58, s58, 1
s_cbranch_scc0 L_lc
s_mov_b32 s26, 1
L_lc_done:
{"s_mov_b32 s26, 1" if clean else ""}
{"s_and_b32 s26, s3, 1" if "mixw" in dbg else ""}
{"s_bfe_u32 s26, s2, 0x10003" if "mixj" in dbg else ""}
s_mov_b32 exec_lo, 0x00ff00ff
s_mov_b32 exec_hi, 0x00ff00ff
s_cmp_lg_u32 s26, 0
s_cbranch_scc1 L_qs_far
buffer_store_dwordx4 v[132:135], v25, s[52:55], s72 offen
L_qs_done:
s_mov_b64 exec, -1
""")
    if near: a(f"s_lshl_b32 s4, s3, 8\ns_add_u32 s4, s4, s2\ns_sub_u32 s4, s4, 512\ns_cmp_lt_u32 s4, {8 * near['nw']}\ns_cbranch_scc1 L_mpub\nL_mpub_done:")
    if "cutp" in dbg: a("s_branch L_pre2")
    stamp(2)
    a(f"s_setprio {bgprio}")
    def woread(vr, kks=None):
        if own1:
            for kk in (kks or [1, 2, 3]):
                for nt_ in range(4):
                    for u in range(2): a(f"ds_read_b64_tr_b16 v[{WB+16*nt_+4*kk+2*u}:{WB+16*nt_+4*kk+2*u+1}], v{176+4*kk+nt_} offset:{WQL+16384+u*512}")
            return
        if t3:
            for nt_ in range(4):
                for u in range(2): a(f"ds_read_b64_tr_b16 v[{WB+4*nt_+2*u}:{WB+4*nt_+2*u+1}], v{153+nt_} offset:{WQL+16384+u*512}")
            return
        for nt_ in range(4):
            for kk in range(4):
                for u in range(2):
                    r = WB + 16 * nt_ + 4 * kk + 2 * u
                    if wosw: a(f"ds_read_b64_tr_b16 v[{r}:{r+1}], v{153+nt_} offset:{WQL+16384+kk*4096+u*512}")
                    else: a(f"ds_read_b64_tr_b16 v[{r}:{r+1}], v{vr} offset:{WQL+16384+kk*4096+u*512+nt_*32}")
    if wolate is None: woread(3)
    elif wosw: a("v_bfe_u32 v153, v1, 3, 2\nv_lshl_add_u32 v153, v153, 5, v3\n" + ("s_lshl_b32 s4, s3, 12\nv_add_u32 v153, s4, v153\n" if t3 else "") + "v_xor_b32 v154, 32, v153\nv_xor_b32 v155, 64, v153\nv_xor_b32 v156, 0x60, v153")
    else: a("v_mov_b32 v91, v3")
    a(f"""
s_lshr_b32 s4, s2, 5
s_mul_i32 s4, s4, {XRS}
v_lshl_add_u32 v2, v1, 4, s4
ds_read_b128 v[{HX}:{HX+3}], v2 offset:{XN}
v_mov_b32 v{S1}, 0
v_mov_b32 v{S2}, 0
s_waitcnt lgkmcnt(0)
""")
    for i in range(4):
        a(f"v_dot2_f32_bf16 v{S1}, v{HX+i}, s11, v{S1}")
        a(f"v_dot2_f32_bf16 v{S2}, v{HX+i}, v{HX+i}, v{S2}")
    for n in (8, 4, 2, 1):
        a(f"v_add_f32_dpp v{S1}, v{S1}, v{S1} row_ror:{n} row_mask:0xf bank_mask:0xf")
        a(f"v_add_f32_dpp v{S2}, v{S2}, v{S2} row_ror:{n} row_mask:0xf bank_mask:0xf")
    swaps_add(S1, T0); swaps_add(S2, T1)
    stats_finish()
    normalize(HX, HX, 4, 20)
    if t3:
        a("s_and_b32 s4, s2, 31\ns_lshl_b32 s4, s4, 1")
        for i in range(4): a(f"v_readlane_b32 s{72+i}, v{HX+i}, s4")
        a("s_add_u32 s4, s4, 1")
        for i in range(4): a(f"v_readlane_b32 s{76+i}, v{HX+i}, s4")
    else: a(f"""
s_bitcmp1_b32 s2, 0
s_cselect_b64 vcc, -1, 0
s_bfe_u32 s4, s2, 0x30002
s_lshl_b32 s4, s4, 3
s_bfe_u32 s5, s2, 0x10001
s_add_u32 s4, s4, s5
v_cndmask_b32 v{HX}, v{HX}, v{HX+2}, vcc
v_cndmask_b32 v{HX+1}, v{HX+1}, v{HX+3}, vcc
""")
    for i in range(0 if t3 else 4):
        a(f"v_readlane_b32 s{72+2*i}, v{HX}, s4\nv_readlane_b32 s{73+2*i}, v{HX+1}, s4")
        if i < 3: a("s_add_u32 s4, s4, 2")
    a("s_waitcnt vmcnt(2)")
    for i in range(21): a(f"v_lshlrev_b32 v{W1+i}, 16, v{W1+i}")
    c0 = -2 * LOG2E * math.sqrt(2 / math.pi); c1 = c0 * 0.044715
    a(f"""
v_mov_b32 v{C1}, {f32(c1)}
s_lshl_b32 s4, s3, 6
v_mov_b32 v{YA}, s4
""")
    def mlp_steps(lo, hi):
        for d in range(lo, hi):
            if d & 1: a(f"s_and_b32 s4, s{72+(d>>1)}, 0xffff0000")
            else: a(f"s_lshl_b32 s4, s{72+(d>>1)}, 16")
            if "nomlp" not in dbg: a("s_call_b64 s[80:81], L_mlp")
            if wolate is not None and wotrig is None and d in wolate: wodma(wolate.index(d), 90, 22, 23)
    mlp_steps(0, mlp1)
    a("; gather the four K-split partials of q (head = helper index) and hand q to the stream waves through LDS")
    a(f"""
s_setprio 3
s_lshr_b32 s4, s2, 5
s_lshl_b32 s4, s4, 11
s_lshl_b32 s5, s15, 2
s_add_u32 s5, s5, s3
s_lshl_b32 s5, s5, 14
s_add_u32 s4, s4, s5
s_add_u32 s6, s4, {QOFF}
v_lshlrev_b32 v2, 4, v1
s_cmp_lg_u32 s26, 0
s_cbranch_scc1 L_gq_far
""")
    def qpoll(sfx, fl):
        poll("L_gq" + sfx, [f"buffer_load_dwordx4 v[{96+4*k}:{99+4*k}], v2, s[52:55], s6 offen offset:{1024*k} {fl}" for k in range(2)],
             lambda: chk16([96, 100], 104, 12), sl=qslp)
    qpoll("", "nt")
    a("L_gq_got:")
    for i in range(8): a(f"v_and_b32 v{96+i}, 0xffffff00, v{96+i}")
    for i in range(4): a(f"v_add_f32 v{96+i}, v{96+i}, v{100+i}")
    a(f"""
s_lshl_b32 s4, s3, 8
v_and_b32 v2, 31, v1
v_lshl_add_u32 v2, v2, 3, s4
v_lshl_add_u32 v2, v7, 2, v2
v_permlane32_swap_b32 v96, v98
v_permlane32_swap_b32 v97, v99
v_add_f32 v96, v96, v98
v_add_f32 v97, v97, v99
v_cvt_pk_bf16_f32 v96, v96, v97
ds_write_b32 v2, v96 offset:{QL}
s_waitcnt lgkmcnt(0)
""")
    lds_signal(FLG + 4)
    stamp(3)
    if "cutg" in dbg: a("s_branch L_pre2")
    a(f"s_setprio {bgprio}")
    if h2pre and h2pre is not True and h2pre[0] == "q": h2touch()
    mlp_steps(mlp1, 16)
    a("s_waitcnt vmcnt(0) lgkmcnt(0)")
    lds_signal(FLG + 12)
    a(f"""
v_lshrrev_b32 v2, 2, v1
v_mul_u32_u24 v20, 144, v2
v_and_b32 v3, 3, v1
v_lshl_add_u32 v20, v3, 5, v20
s_lshl_b32 s4, s3, 2
s_add_u32 s4, s4, {OP}
v_add_u32 v20, s4, v20
v_add_u32 v21, 2304, v20
v_add_u32 v22, 4608, v20
v_add_u32 v23, 6912, v20
s_lshl_b32 s4, s3, 3
v_mov_b32 v24, s4
v_lshrrev_b32 v25, 5, v1
v_lshlrev_b32 v25, 7, v25
v_bfe_u32 v2, v1, 4, 1
v_lshl_add_u32 v25, v2, 11, v25
v_bfe_u32 v2, v1, 1, 1
v_lshl_add_u32 v25, v2, 10, v25
v_bfe_u32 v2, v1, 2, 2
v_lshl_add_u32 v25, v2, 8, v25
v_and_b32 v2, 1, v1
v_lshl_add_u32 v25, v2, 3, v25
v_lshlrev_b32 v26, 4, v1
v_and_b32 v2, 1, v5
v_lshl_add_u32 v27, v2, 2, v3
v_lshlrev_b32 v27, 4, v27
v_lshlrev_b32 v28, {6 if h2full else 16}, v2
v_bfe_u32 v2, v1, 2, 2
v_lshl_add_u32 v28, v2, {12 if h2full else 11}, v28
v_lshl_add_u32 v28, v3, 4, v28
v_lshrrev_b32 v19, 2, v1
v_lshlrev_b32 v19, {7 if h2full else 6}, v19
v_lshl_add_u32 v19, v3, 4, v19
s_lshl_b32 s4, s15, 2
s_add_u32 s4, s4, s3
s_lshl_b32 s4, s4, 2
s_add_u32 s4, s4, s9
s_mul_i32 s4, s4, {H1S}
s_bfe_u32 s5, s2, 0x30003
s_lshl_b32 s5, s5, 4
s_add_u32 s4, s4, s5
s_add_u32 s6, s4, {H1OFF}
s_lshl_b32 s4, s13, 2
s_add_u32 s4, s4, s3
s_mul_i32 s4, s4, {H1S}
s_add_u32 s7, s4, {H1OFF}
s_lshl_b32 s4, s3, {5 if h2full else 6}
s_lshl_b32 s5, s14, 2
s_add_u32 s4, s4, s5
s_lshl_b32 s4, s4, {12 if h2full else 11}
s_lshl_b32 s5, s13, {7 if h2full else 6}
s_add_u32 s4, s4, s5
s_add_u32 s8, s4, {H2OFF}
""")
    if t2: a(f"""
v_lshlrev_b32 v20, 4, v8
v_lshl_add_u32 v20, v5, 2, v20
s_lshl_b32 s4, s3, 8
s_add_u32 s4, s4, {OP}
v_add_u32 v20, s4, v20
v_lshlrev_b32 v24, 3, v5
v_mul_u32_u24 v25, {4*H1S}, v5
v_lshl_add_u32 v25, v8, 3, v25
s_lshl_b32 s4, s15, 4
s_add_u32 s4, s4, s9
s_mul_i32 s4, s4, {H1S}
s_bfe_u32 s5, s2, 0x30003
s_lshl_b32 s5, s5, 9
s_add_u32 s4, s4, s5
s_lshl_b32 s5, s3, 7
s_add_u32 s4, s4, s5
s_add_u32 s28, s4, {H1OFF}
v_bfe_u32 v2, v1, 3, 1
v_lshlrev_b32 v26, 11, v2
v_lshl_add_u32 v26, v5, 7, v26
v_lshl_add_u32 v26, v6, 4, v26
v_lshl_add_u32 v27, v2, 2, v3
v_lshlrev_b32 v27, 4, v27
v_lshlrev_b32 v28, 16, v7
v_bfe_u32 v2, v1, 2, 2
v_lshl_add_u32 v28, v2, 11, v28
v_lshl_add_u32 v28, v3, 4, v28
s_lshl_b32 s29, s3, 4
""")
    if own1:
        a("s_lshl_b32 s4, s3, 1\nv_add_u32 v2, s4, v6\nv_and_b32 v2, 7, v2\nv_and_b32 v26, 0xffffff8f, v26\nv_lshl_add_u32 v26, v2, 4, v26")
        for kk in range(4):
            a(f"s_add_u32 s4, s3, {kk}\ns_and_b32 s4, s4, 3\ns_lshl_b32 s4, s4, 12")
            for nt_ in range(4): a(f"v_add_u32 v{176+4*kk+nt_}, s4, v{153+nt_}")
    RBB = WQL
    if t3:
        a(f"""
v_mul_u32_u24 v25, {4*H1S}, v5
v_lshrrev_b32 v2, 1, v8
v_lshl_add_u32 v25, v2, 7, v25
v_and_b32 v2, 1, v1
v_lshl_add_u32 v25, v2, 3, v25
s_lshl_b32 s4, s15, 4
s_add_u32 s4, s4, s3
s_mul_i32 s4, s4, {H1S}
s_bfe_u32 s5, s2, 0x20003
s_lshl_b32 s5, s5, 10
s_add_u32 s4, s4, s5
s_lshr_b32 s5, s2, 5
s_lshl_b32 s5, s5, 4
s_add_u32 s4, s4, s5
s_add_u32 s28, s4, {H1OFF}
v_lshlrev_b32 v26, 4, v1
v_bfe_u32 v2, v1, 3, 2
v_mul_u32_u24 v27, {H1S}, v2
v_lshl_add_u32 v27, v6, 4, v27
s_mul_i32 s30, s13, {4*H1S}
s_add_u32 s30, s30, {H1OFF}
v_lshrrev_b32 v2, 2, v1
v_lshlrev_b32 v28, 16, v2
v_lshl_add_u32 v28, v3, 4, v28
s_lshl_b32 s4, s14, 2
s_add_u32 s4, s4, s3
s_lshl_b32 s4, s4, 11
s_lshl_b32 s5, s13, 6
s_add_u32 s4, s4, s5
s_add_u32 s8, s4, {H2OFF}
v_mul_u32_u24 v21, 320, v5
v_lshl_add_u32 v21, v8, 4, v21
s_mul_i32 s4, s3, 2560
v_add_u32 v21, s4, v21
v_mul_u32_u24 v22, 320, v3
v_and_b32 v2, 7, v2
v_lshl_add_u32 v22, v2, 4, v22
s_lshr_b32 s4, s3, 1
s_mul_i32 s4, s4, 1280
s_and_b32 s5, s3, 1
s_lshl_b32 s5, s5, 7
s_add_u32 s4, s4, s5
v_add_u32 v22, s4, v22
v_lshlrev_b32 v23, 4, v6
""")
        if t3 == 2: a(f"""
v_mul_u32_u24 v25, {4*H1S}, v5
v_lshl_add_u32 v25, v8, 3, v25
s_lshr_b32 s5, s2, 5
s_mul_i32 s5, s5, 112
s_add_u32 s28, s28, s5
v_lshrrev_b32 v23, 3, v1
v_lshlrev_b32 v23, 4, v23
v_lshlrev_b32 v184, 5, v6
v_lshl_add_u32 v184, v5, 3, v184
v_add_u32 v185, 4, v184
s_mov_b32 s32, 0x00ff00ff
s_mov_b32 s33, 0x00ff00ff
""")
        for i in range(8 if t3 == 1 else 0): a(f"v_mov_b32 v{176+i}, 0")
    if not h2full: a("s_lshl_b32 s9, s2, 11")
    else: a("""
s_lshr_b32 s9, s2, 6
s_lshl_b32 s9, s9, 5
s_and_b32 s4, s2, 31
s_add_u32 s9, s9, s4
s_lshl_b32 s9, s9, 12
s_bfe_u32 s4, s2, 0x10005
s_lshl_b32 s4, s4, 6
s_add_u32 s9, s9, s4
""")
    h2l = [f"buffer_load_dwordx4 v[{136+4*k}:{139+4*k}], v19, s[52:55], s9 offen offset:{(2048 if h2full else 1024)*k} {h2fl}" for k in range(2)]
    a(f"""
s_add_u32 s9, s9, {H2OFF}
""")
    if near:
        a(f"s_mov_b32 s5, {CWOFF}\nv_and_b32 v2, {8 * near['nw'] - 1}, v1\nv_lshlrev_b32 v2, 3, v2")
        poll("L_cwp", ["buffer_load_dwordx2 v[94:95], v2, s[52:55], s5 offen sc1"], lambda: chk8([95], 80), sl=4)
        a(f"""
v_sub_u32 v95, 0, v94
v_cmp_gt_u32 vcc, 4, v6
v_cndmask_b32 v94, v95, v94, vcc
v_add_u32_dpp v94, v94, v94 row_ror:8 row_mask:0xf bank_mask:0xf
v_add_u32_dpp v94, v94, v94 row_ror:4 row_mask:0xf bank_mask:0xf
v_add_u32_dpp v94, v94, v94 row_ror:2 row_mask:0xf bank_mask:0xf
v_add_u32_dpp v94, v94, v94 row_ror:1 row_mask:0xf bank_mask:0xf
v_readfirstlane_b32 s4, v94
s_cmp_gt_i32 s4, 0
s_cselect_b32 s4, {0x2000 if not near.get("inv") else 0}, {0x2000 if near.get("inv") else 0}
s_xor_b32 s8, s8, s4
s_xor_b32 s9, s9, s4
""")
    if h2pre and h2pre is not True and h2pre[0] == "m": h2touch()
    if wolate is not None and wotrig is None:
        lds_wait("L_yw", FLG + 12, 4); woread(91)
    if not fin: a("""
s_cmp_lg_u32 s3, 0
s_cbranch_scc1 L_ready
""")
    if wolate is None or wotrig is not None: lds_wait("L_yw", FLG + 12, 4)
    if h2pre is True:
        for l in h2l: a(l)
    if "o" in warm: a("buffer_load_ushort v94, v30, s[64:67], s10 offen")
    if tlbw: a(f"s_mov_b32 s4, {H2OFF + (1 << 20) - 4096}\nbuffer_load_dword v94, v9, s[52:55], s4 offen")
    a(f"""
{"v_lshl_add_u32 v2, v3, 2, v5" if t3 else "v_lshl_add_u32 v2, v5, 2, v3"}
v_lshlrev_b32 v2, 2, v2
ds_read_b32 v32, v2 offset:{YP}
ds_read_b32 v33, v2 offset:{YP+64}
ds_read_b32 v34, v2 offset:{YP+128}
ds_read_b32 v35, v2 offset:{YP+192}
v_lshlrev_b32 v31, 16, v31
s_waitcnt lgkmcnt(0)
v_add_f32 v32, v32, v33
v_add_f32 v34, v34, v35
v_add_f32 v32, v32, v34
v_cvt_pk_bf16_f32 v32, v32, v32
v_lshlrev_b32 v32, 16, v32
v_add_f32 v32, v32, v31
v_cvt_pk_bf16_f32 v32, v32, v32
v_lshlrev_b32 v32, 16, v32
v_mul_f32 v34, {f32(-LOG2E)}, v32
v_exp_f32 v34, v34
v_add_f32 v34, 1.0, v34
v_rcp_f32 v34, v34
v_mul_f32 v32, v32, v34
v_cvt_pk_bf16_f32 v32, v32, v32
v_lshlrev_b32 v16, 16, v32
v_lshlrev_b32 v14, 16, v29
L_ready:
""")
    if "cuts" in dbg: a("s_branch L_pre2")
    a("; softmax statistics: merge the four waves, publish {max, sum}, fetch the group's statistics, form the split weights")
    lds_wait("L_sw", FLG + 16, 4, sl=8)
    a(f"""
ds_read_b64 v[32:33], v24 offset:{ST}
ds_read_b64 v[34:35], v24 offset:{ST+32}
ds_read_b64 v[36:37], v24 offset:{ST+64}
ds_read_b64 v[38:39], v24 offset:{ST+96}
s_waitcnt lgkmcnt(0)
v_max3_f32 v48, v32, v34, v36
v_max_f32 v48, v48, v38
v_sub_f32 v32, v32, v48
v_sub_f32 v34, v34, v48
v_sub_f32 v36, v36, v48
v_sub_f32 v38, v38, v48
v_exp_f32 v32, v32
v_exp_f32 v34, v34
v_exp_f32 v36, v36
v_exp_f32 v38, v38
v_mov_b32 v49, v10
v_mov_b32 v51, v10
v_mul_f32 v50, v32, v33
v_fmac_f32 v50, v34, v35
v_fmac_f32 v50, v36, v37
v_fmac_f32 v50, v38, v39
v_mov_b32 v53, v10
{"s_lshl_b64 exec, 1, s29" if t2 else "s_mov_b64 exec, 1"}
s_cmp_lg_u32 s26, 0
s_cbranch_scc1 L_st_far
buffer_store_dwordx4 v[48:51], v9, s[52:55], s6 offen
s_mov_b64 exec, -1
""")
    if t2 and prew: a("v_not_b32 v60, v10\nv_not_b32 v61, v10\nbuffer_store_dwordx2 v[60:61], v25, s[52:55], s28 offen offset:128")
    poll("L_sp", [f"buffer_load_dwordx4 v[40:43], v27, s[52:55], s{30 if t3 else 7} offen {h1fl}"], lambda: chk8([41, 43], 80), sl=8)
    a(f"""
s_branch L_st_done
L_st_far:
buffer_store_dwordx4 v[48:51], v9, s[52:55], s6 offen sc1
s_mov_b64 exec, -1
""")
    poll("L_spx", [f"buffer_load_dwordx4 v[40:43], v27, s[52:55], s{30 if t3 else 7} offen sc1"], lambda: chk8([41, 43], 80), sl=8)
    a("L_st_done:")
    def ptouch(mode, fl):
        if mode == 8: a(f"s_lshl_b32 s4, s14, 9\ns_add_u32 s4, s4, s7\ns_mov_b64 exec, 0xffffffff\nbuffer_load_dwordx4 v[64:67], v26, s[52:55], s4 offen offset:128 {fl}\ns_mov_b64 exec, -1")
        else:
            for k in range(4): a(f"buffer_load_dwordx4 v[{64+4*k}:{67+4*k}], v26, s[52:55], s7 offen offset:{128+k*1024} {fl}")
    if pretouch and pretouch[0] == "s": ptouch(pretouch[1], pretouch[2])
    a("""
v_max_f32_dpp v44, v40, v40 quad_perm:[1,0,3,2] row_mask:0xf bank_mask:0xf
v_max_f32_dpp v45, v44, v44 quad_perm:[2,3,0,1] row_mask:0xf bank_mask:0xf
v_sub_f32 v40, v40, v45
v_exp_f32 v40, v40
v_mul_f32 v42, v40, v42
v_add_f32_dpp v44, v42, v42 quad_perm:[1,0,3,2] row_mask:0xf bank_mask:0xf
v_add_f32_dpp v45, v44, v44 quad_perm:[2,3,0,1] row_mask:0xf bank_mask:0xf
v_rcp_f32 v45, v45
v_mul_f32 v40, v40, v45
v_mov_b32_dpp v56, v40 quad_perm:[0,0,0,0] row_mask:0xf bank_mask:0xf
v_mov_b32_dpp v57, v40 quad_perm:[1,1,1,1] row_mask:0xf bank_mask:0xf
v_mov_b32_dpp v58, v40 quad_perm:[2,2,2,2] row_mask:0xf bank_mask:0xf
v_mov_b32_dpp v59, v40 quad_perm:[3,3,3,3] row_mask:0xf bank_mask:0xf
""" + ("\n".join(f"ds_bpermute_b32 v{56+i}, v23, v{56+i}" for i in range(4)) if t3 else "") + """
L_pre2:
s_setprio """ + str(hp) + """
s_waitcnt vmcnt(0) lgkmcnt(0)
""")
    if wotrig is not None and wotrig >= 0:
        if defer:
            srd(48, 38, 256)
            a(f"""
s_getreg_b32 s4, hwreg(HW_REG_XCC_ID, 0, 3)
s_lshl_b32 s4, s4, 5
v_lshl_add_u32 v92, v6, 2, s4
s_mov_b32 s28, {(0x80 - defer[2]) * 0x01010101}
s_mov_b32 s29, 0x80808080
""")
        if wodl is not None: a(f"""
s_mov_b32 s58, {spin*8}
L_wt:
ds_read2_b32 v[60:61], v9 offset0:{(FLG+28)//4} offset1:{(FLG+48)//4}
s_memrealtime s[76:77]
{f"s_sleep {wosl}" if wosl else ""}
s_waitcnt lgkmcnt(0)
v_readfirstlane_b32 s59, v60
v_readfirstlane_b32 s27, v61
s_sub_u32 s58, s58, 1
s_cbranch_scc1 L_wt_done
s_cmp_ge_u32 s59, {wothr}
s_cbranch_scc1 L_wt_done
s_cmp_eq_u32 s27, 0
s_cbranch_scc1 L_wt
s_sub_u32 s27, s76, s27
s_cmp_lt_i32 s27, 0
s_cbranch_scc1 L_wt
L_wt_done:
""")
        else:
            a("; Wo tile is fetched when this workgroup's V stream is nearly drained, so it overlaps the hop-1 hand-off")
            lds_wait("L_wt", FLG + 28, wothr, sl=wosl, msk=bool(defer))
        if defer: a(f"s_lshr_b32 s27, s59, 8\ns_cmp_ge_u32 s27, {defer[1]}\ns_cselect_b32 s27, 1, 0\ns_andn2_b32 s27, s27, s26\ns_cbranch_scc1 L_wt_skip")
        if pretouch and pretouch[0] == "b": ptouch(pretouch[1], pretouch[2])
        for t in range(4): wodma(t, 90, 22, 23)
        if pretouch and pretouch[0] == "a": ptouch(pretouch[1], pretouch[2])
        if defer: a("L_wt_skip:")
    stamp(4)
    if not dp: a("s_barrier")
    if wotrig is not None and wotrig < 0:
        for t in range(4): wodma(t, 90, 22, 23)
    if isinstance(dbgt, str): a("s_memrealtime s[92:93]")
    if prof: a("s_waitcnt lgkmcnt(0)")
    if "notail" in dbg:
        stamp(5); stamp(6); a("s_branch L_hend")
    if tailprof: stamp(1); a("s_waitcnt lgkmcnt(0)")
    PKC = """s_waitcnt lgkmcnt(2)
v_mul_f32 v40, v32, v40
v_mul_f32 v41, v32, v41
v_fmac_f32 v40, v34, v42
v_fmac_f32 v41, v34, v43
s_waitcnt lgkmcnt(0)
v_mul_f32 v44, v36, v44
v_mul_f32 v45, v36, v45
v_fmac_f32 v40, v38, v46
v_fmac_f32 v41, v38, v47
v_add_f32 v40, v40, v44
v_add_f32 v41, v41, v45""" if not pkc else """s_waitcnt lgkmcnt(3)
v_pk_mul_f32 v[40:41], v[40:41], v[32:33] op_sel_hi:[1,0]
s_waitcnt lgkmcnt(2)
v_pk_fma_f32 v[40:41], v[42:43], v[34:35], v[40:41] op_sel_hi:[1,0,1]
s_waitcnt lgkmcnt(1)
v_pk_fma_f32 v[40:41], v[44:45], v[36:37], v[40:41] op_sel_hi:[1,0,1]
s_waitcnt lgkmcnt(0)
v_pk_fma_f32 v[40:41], v[46:47], v[38:39], v[40:41] op_sel_hi:[1,0,1]"""
    if t2:
        for w_ in range(4): a(f"ds_read2st64_b32 v[{40+2*w_}:{41+2*w_}], v20 offset0:{8*w_} offset1:{8*w_+4}")
    elif not dp: a("""
ds_read2_b32 v[40:41], v20 offset0:0 offset1:4
ds_read2_b32 v[42:43], v21 offset0:0 offset1:4
ds_read2_b32 v[44:45], v22 offset0:0 offset1:4
ds_read2_b32 v[46:47], v23 offset0:0 offset1:4
""")
    if not dp: a(f"""
{PKC}
s_cmp_lg_u32 s26, 0
v_cvt_pk_bf16_f32 v52, v40, v41
s_cbranch_scc1 L_h1_far
buffer_store_dwordx2 v[52:53], v25, s[52:55], s{28 if t2 else 6} offen offset:128
L_h1_st:
""")
    stamp(5)
    if wotrig is not None:
        if defer: a("s_cmp_lg_u32 s27, 0\ns_cbranch_scc1 L_dfr")
        if h1e:
            a("s_cmp_lg_u32 s26, 0\ns_cbranch_scc1 L_h1e_far")
            for e_ in range(h1e[0]):
                if len(h1e) > 2: a(f"s_waitcnt vmcnt({h1e[2][e_] + 4 * e_})")
                elif e_: a(f"s_sleep {h1e[1]}")
                for k in range(4): a(f"buffer_load_dwordx4 v[{64+4*k}:{67+4*k}], v26, s[52:55], s7 offen offset:{128+k*(512 if t2 and not t3 else 1024)} {h1fl}")
            a(f"s_waitcnt vmcnt({1 + 4 * h1e[0]})\nL_h1e_done:")
        else: a(f"s_waitcnt vmcnt({0 if dp else 1})")
        if defer: a("L_dfr_done:")
        if dp: stamp(5)
        if "wol" in dbg and "h1it" not in dbg and "h1vm" not in dbg: stamp(3)
        if own1: woread(91, [0])
        if wbar: a("s_barrier")
        elif not t3:
            lds_signal(FLG + 20)
            lds_wait("L_wl", FLG + 20, 4)
        if "wol" in dbg: stamp(1)
        if not womid: woread(91)
        if dp and dpw: lds_wait("L_pw", FLG + 40, dpw)
    a("s_cmp_lg_u32 s26, 0\ns_cbranch_scc1 L_h1_farp")
    def h1poll(sfx, fl, pipe):
        full = [f"buffer_load_dwordx4 v[{64+4*k}:{67+4*k}], v26, s[52:55], s7 offen offset:{128+k*(512 if t2 and not t3 else 1024)} {fl}" for k in range(4)]
        if h1m and sfx == "":
            assert h1e
            a(f"s_mov_b32 s58, {spin}"); woread(91)
            a("L_h1_chk:\ns_waitcnt vmcnt(0)" if h1m == 1 else "s_waitcnt vmcnt(0)\nL_h1_chk:")
            for k in range(4): a(f"v_bitop3_b32 v{80+k}, v{65+4*k}, v{67+4*k}, s12 bitop3:0x7e")
            for k in range(4): a(f"v_cmp_ne_u32 s[{72+2*k}:{73+2*k}], 0, v{80+k}")
            a("s_or_b64 vcc, s[72:73], s[74:75]\ns_or_b64 s[82:83], s[76:77], s[78:79]\ns_or_b64 vcc, vcc, s[82:83]\ns_cbranch_scc0 L_h1_got\ns_sub_u32 s58, s58, 1\ns_cbranch_scc1 L_h1_got")
            if "h1it" in dbg: stamp(4)
            for k in range(4): a(f"s_mov_b64 exec, s[{72+2*k}:{73+2*k}]\n" + full[k])
            a("s_mov_b64 exec, -1")
            if slp: a(f"s_sleep {slp}")
            if h1m > 1: a(f"s_waitcnt vmcnt({4 * (h1m - 1)})")
            a("s_branch L_h1_chk")
            return
        poll("L_h1" + sfx, full, lambda: chk8([65, 67, 69, 71, 73, 75, 77, 79], 80), st=4, pipe=pipe, stag=stag1, mid=(lambda: woread(91)) if (womid and wotrig is not None) else None, pre=bool(h1e) and sfx == "")
    h1poll("", h1fl, pipe1)
    a("L_h1_got:")
    if "h1it" in dbg: a(f"s_sub_u32 s90, {spin}, s58\ns_mov_b32 s91, 0")
    if "h1vm" in dbg: stamp(3); a(f"s_sub_u32 s98, {spin}, s58\ns_mov_b32 s99, 0")
    if hp2 is not None: a(f"s_setprio {hp2}")
    if wotrig is not None: a("s_waitcnt lgkmcnt(0)")
    stamp(6)
    AO = 96; DD = 112
    if h2e:
        a("s_cmp_lg_u32 s3, 0\ns_cbranch_scc1 L_h2e")
        for l in h2l: a(l)
        a("L_h2e:")
    if h2late and fin != 2: a(f"s_mov_b64 exec, 1\nds_add_rtn_u32 v54, v9, v11 offset:{FLG+24}\ns_mov_b64 exec, -1")
    if fin == 2: a(f"ds_read_b32 v54, v9 offset:{FLG+24}")
    if t2:
        for k in range(4):
            for g_ in range(2):
                a(f"v_lshlrev_b32 v{160+4*k+2*g_}, 16, v{64+4*k+2*g_}\nv_and_b32 v{161+4*k+2*g_}, 0xffff0000, v{64+4*k+2*g_}")
            for g_ in range(2):
                r_ = 160 + 4 * k + 2 * g_; w_ = 56 + (k & 2); sel = k & 1
                if k == 0: a(f"v_pk_mul_f32 v[{84+2*g_}:{85+2*g_}], v[{r_}:{r_+1}], v[{w_}:{w_+1}] op_sel:[0,{sel}] op_sel_hi:[1,{sel}]")
                else: a(f"v_pk_fma_f32 v[{84+2*g_}:{85+2*g_}], v[{r_}:{r_+1}], v[{w_}:{w_+1}], v[{84+2*g_}:{85+2*g_}] op_sel:[0,{sel},0] op_sel_hi:[1,{sel},1]")
        a("v_cvt_pk_bf16_f32 v88, v84, v85\nv_cvt_pk_bf16_f32 v89, v86, v87")
    if fin == 2:
        a("s_waitcnt lgkmcnt(0)\nv_readfirstlane_b32 s27, v54\ns_cmp_lg_u32 s27, 3\ns_cbranch_scc1 L_h2e")
        for l in h2l: a(l)
        a(f"L_h2e:\ns_mov_b64 exec, 1\nds_add_rtn_u32 v54, v9, v11 offset:{FLG+24}\ns_mov_b64 exec, -1")
    if fin == 3:
        a("s_waitcnt lgkmcnt(0)\nv_readfirstlane_b32 s27, v54\ns_cmp_lg_u32 s27, 3\ns_cbranch_scc1 L_h2e")
        for l in h2l: a(l)
        a(f"s_mov_b64 exec, 1\nds_add_u32 v9, v11 offset:{FLG+24}\ns_mov_b64 exec, -1\nL_h2e:")
    def mv(kk, p):
        if t2:
            j_ = 2 * kk + (p >> 1)
            if j_: a(f"v_mov_b32_dpp v{AO+4*kk+p}, v{88+(p&1)} row_ror:{16-j_} row_mask:0xf bank_mask:0xf")
            else: a(f"v_mov_b32 v{AO+4*kk+p}, v{88+(p&1)}")
            return
        src = 64 + 8 * (kk & 1) + 2 * p
        if kk >= 2: a(f"v_mov_b32_dpp v{AO+4*kk+p}, v{src} row_ror:8 row_mask:0xf bank_mask:0xf")
        else: a(f"v_mov_b32 v{AO+4*kk+p}, v{src}")
    if t3 == 2:
        for p in range(4): a(f"ds_bpermute_b32 v{176+p}, v{184+(p>>1)}, v{88+(p&1)}")
        a("s_waitcnt lgkmcnt(0)")
        for nt_ in (0, 2, 1, 3): a(f"v_mfma_f32_16x16x32_bf16 v[{DD+4*nt_}:{DD+4*nt_+3}], v[{WB+4*nt_}:{WB+4*nt_+3}], v[176:179], 0")
        a(f"""
s_mov_b64 exec, s[32:33]
ds_write_b128 v21, v[{DD}:{DD+3}] offset:{RBB}
ds_write_b128 v21, v[{DD+8}:{DD+11}] offset:{RBB+1280}
s_not_b64 exec, s[32:33]
ds_write_b128 v21, v[{DD+4}:{DD+7}] offset:{RBB}
ds_write_b128 v21, v[{DD+12}:{DD+15}] offset:{RBB+1280}
""")
    if t3 == 1:
        ID = "quad_perm:[0,1,2,3]"
        for p in range(4): a(f"v_mov_b32_dpp v{176+p}, v{88+(p&1)} {'row_ror:8' if p >> 1 else ID} row_mask:0xf bank_mask:0x3")
        for p in range(4): a(f"v_mov_b32_dpp v{180+p}, v{88+(p&1)} {ID if p >> 1 else 'row_ror:8'} row_mask:0xf bank_mask:0xc")
        for h_ in range(2):
            for a_ in range(2):
                d = DD + 4 * a_; w_ = WB + 4 * (2 * a_ + h_)
                a(f"v_mfma_f32_16x16x32_bf16 v[{d}:{d+3}], v[{w_}:{w_+3}], v[{176+4*h_}:{179+4*h_}], {'0' if h_ == 0 else f'v[{d}:{d+3}]'}")
        a(f"""
ds_write_b128 v21, v[{DD}:{DD+3}] offset:{RBB}
ds_write_b128 v21, v[{DD+4}:{DD+7}] offset:{RBB+1280}
""")
    if t3:
        a(f"""
s_mov_b64 exec, 0xffffffff
s_waitcnt lgkmcnt(0)
s_barrier
""")
        for w_ in range(4): a(f"ds_read_b128 v[{96+4*w_}:{99+4*w_}], v22 offset:{RBB+2560*w_}")
        a("""
s_waitcnt lgkmcnt(2)
v_pk_add_f32 v[96:97], v[96:97], v[100:101]
v_pk_add_f32 v[98:99], v[98:99], v[102:103]
s_waitcnt lgkmcnt(0)
v_pk_add_f32 v[104:105], v[104:105], v[108:109]
v_pk_add_f32 v[106:107], v[106:107], v[110:111]
v_pk_add_f32 v[96:97], v[96:97], v[104:105]
v_pk_add_f32 v[98:99], v[98:99], v[106:107]
""")
    for p in range(0 if t3 else 4): mv(0, p)
    for kk in range(0 if t3 else 4):
        for nt_ in range(4):
            d = DD + 4 * nt_; b = WB + 16 * nt_ + 4 * kk
            if kk < 3 and nt_ < 2: mv(kk + 1, 2 * nt_); mv(kk + 1, 2 * nt_ + 1)
            a(f"v_mfma_f32_16x16x32_bf16 v[{d}:{d+3}], v[{AO+4*kk}:{AO+4*kk+3}], v[{b}:{b+3}], {'0' if kk == 0 else f'v[{d}:{d+3}]'}")
    GO = 128
    if fin == 3: a("s_mov_b32 s59, s27")
    elif h2late: a("s_waitcnt lgkmcnt(0)\nv_readfirstlane_b32 s59, v54")
    if t3: pack16(GO, [96, 97, 98, 99], 10)
    elif t2: pack16(GO, [DD, DD + 4, DD + 8, DD + 12], 10)
    else:
        for t in range(4):
            a(f"v_mul_f32 v{GO+t}, v56, v{DD+4*t}")
            a(f"v_mul_f32 v{GO+4+t}, v58, v{DD+4*t+2}")
        for t in range(4):
            a(f"v_fmac_f32 v{GO+t}, v57, v{DD+4*t+1}")
            a(f"v_fmac_f32 v{GO+4+t}, v59, v{DD+4*t+3}")
        for t in range(4): a(f"v_add_f32 v{GO+t}, v{GO+t}, v{GO+4+t}")
        pack16(GO, [GO, GO + 1, GO + 2, GO + 3], 10)
    if lbar: a("s_barrier")
    if h2late:
        a(("s_mov_b32 s31, s59\n" if fin else "") + "s_cmp_eq_u32 s59, 3\ns_cbranch_scc1 L_hl_done")
        lds_wait("L_hl", FLG + 24, 5 if fin == 3 else 4)
    a(("" if t3 else "s_mov_b32 exec_lo, 0xffff\ns_mov_b32 exec_hi, 0xffff" if t2 else "s_mov_b64 exec, 0xffffffff") + f"\nbuffer_store_dwordx4 v[{GO}:{GO+3}], v28, s[52:55], s8 offen {h2sf}")
    if tailprof or "wol" in dbg: stamp(2)
    if h2sync and not h2late: lds_signal(FLG + 24)
    a(f"""
s_mov_b64 exec, -1
s_cmp_lg_u32 {"s31, 3" if fin else "s3, 0"}
s_cbranch_scc1 L_hend
""")
    if fin >= 2:
        a("s_cmp_lg_u32 s27, 3\ns_cbranch_scc1 L_h2n\ns_waitcnt vmcnt(1)" if fin == 2 else "s_waitcnt vmcnt(1)")
        r_ = chk16([136, 140], 56, 12)
        a(f"v_cmp_ne_u32 vcc, 0, v{r_}\ns_mov_b32 s58, {spin}\ns_and_b64 exec, exec, vcc\ns_cbranch_execz L_h2_done\nL_h2n:")
    if h2sync and not h2late: lds_wait("L_hw", FLG + 24, 4)
    if h2e:
        a("s_waitcnt vmcnt(1)")
        r_ = chk16([136, 140], 56, 12)
        a(f"v_cmp_ne_u32 vcc, 0, v{r_}\ns_mov_b32 s58, {spin}\ns_and_b64 exec, exec, vcc\ns_cbranch_execz L_h2_done")
    if h2ack: a("s_waitcnt vmcnt(0)")
    if "h2it" in dbg: stamp(1)
    poll("L_h2", h2l, lambda: chk16([136, 140], 56, 12), st=3, pipe=pipe2, stag=stag2, sl=slp2)
    if "h2it" in dbg: stamp(5); a(f"s_sub_u32 s90, {spin}, s58\ns_mov_b32 s91, 0")
    for i in range(8): a(f"v_and_b32 v{48+i}, 0xffffff00, v{136+i}")
    for i in range(4): a(f"v_add_f32 v{48+i}, v{48+i}, v{52+i}")
    a(f"""
v_permlane32_swap_b32 v48, v50
v_permlane32_swap_b32 v49, v51
v_add_f32 v48, v48, v50
v_add_f32 v49, v49, v51
v_permlane16_swap_b32 v48, v49
v_add_f32 v48, v48, v49
v_add_f32_dpp v48, v48, v48 row_ror:4 row_mask:0xf bank_mask:0xf
v_add_f32_dpp v48, v48, v48 row_ror:8 row_mask:0xf bank_mask:0xf
s_mov_b32 exec_lo, 0x000f000f
s_mov_b32 exec_hi, 0x000f000f
v_cvt_pk_bf16_f32 v48, v48, v48
v_lshlrev_b32 v48, 16, v48
v_mul_f32 v48, v48, v16
v_cvt_pk_bf16_f32 v48, v48, v48
v_lshlrev_b32 v48, 16, v48
v_add_f32 v48, v48, v14
v_cvt_pk_bf16_f32 v48, v48, v48
buffer_store_short v48, v30, s[64:67], s10 offen {"sc1" if clean else ""}
s_mov_b64 exec, 1
s_cmp_lg_u32 s2, 0
s_cbranch_scc1 L_hend
v_mov_b32 v10, s42
buffer_store_dword v10, v9, s[52:55], 0 offen sc1
L_hend:
""")
    if "probe" in dbg: a("s_cmp_ge_u32 s3, 2\ns_cbranch_scc1 L_np7")
    if "h1vm" not in dbg: stamp(7)
    if "probe" in dbg: a("L_np7:")
    if endwait or prof or dbgt: a("s_waitcnt vmcnt(0)")
    if "endst" in dbg: stamp(1)
    if isinstance(dbgt, str):
        AMP = 96 << 20
        def red(op, r, steps, t=70):
            for n in steps:
                if n < 16: a(f"{op}_dpp v{r}, v{r}, v{r} row_ror:{n} row_mask:0xf bank_mask:0xf")
                else: a(f"v_mov_b32 v{t}, v{r}\nv_permlane{n}_swap_b32 v{r}, v{t}\n{op} v{r}, v{r}, v{t}")
        a(f"""
s_cmp_lg_u32 s3, 0
s_cbranch_scc1 L_dbgt
s_memrealtime s[88:89]
s_mov_b64 exec, 1
s_waitcnt lgkmcnt(0)
v_mov_b32 v12, s84
v_mov_b32 v13, s92
v_mov_b32 v14, s88
v_mov_b32 v15, s12
s_lshl_b32 s59, s2, 4
s_add_u32 s59, s59, {AMP}
buffer_store_dwordx4 v[12:15], v9, s[52:55], s59 offen sc1
s_waitcnt vmcnt(0)
s_mov_b64 exec, -1
s_cmp_lg_u32 s2, 0
s_cbranch_scc1 L_dbgt
v_lshlrev_b32 v2, 4, v1
s_mov_b32 s6, {AMP}
""")
        poll("L_amp", [f"buffer_load_dwordx4 v[{40+4*k}:{43+4*k}], v2, s[52:55], s6 offen offset:{1024*k} sc1" for k in range(4)], lambda: chk8([43, 47, 51, 55], 80), sl=8)
        for k in range(4):
            for c in range(3): a(f"v_subrev_u32 v{40+4*k+c}, s84, v{40+4*k+c}")
        ALL = [8, 4, 2, 1, 16, 32]
        def stat(op, c, dst, steps=ALL):
            a(f"{op} v{dst}, v{40+c}, v{44+c}\n{op} v71, v{48+c}, v{52+c}\n{op} v{dst}, v{dst}, v71")
            red(op, dst, steps)
        stat("v_min_i32", 0, 60)
        if dbgt == "startmax": stat("v_max_i32", 0, 61)
        if dbgt == "bmin": stat("v_min_i32", 1, 61)
        if dbgt == "bmax": stat("v_max_i32", 1, 61)
        if dbgt == "emax": stat("v_max_i32", 2, 61)
        if dbgt == "bmean": stat("v_add_u32", 1, 61); a("v_ashrrev_i32 v61, 8, v61")
        if dbgt == "xs":
            stat("v_add_u32", 1, 61, [8, 16, 32]); a("v_ashrrev_i32 v61, 5, v61\nv_mov_b32 v60, v61")
            red("v_max_i32", 61, [4, 2, 1]); red("v_min_i32", 60, [4, 2, 1])
        a(f"""
v_sub_u32 v61, v61, v60
s_nop 1
v_readfirstlane_b32 s59, v61
s_mul_i32 s59, s59, 10
s_add_u32 s59, s59, 5000
s_min_u32 s59, s59, 100000
L_dbgs:
s_memrealtime s[90:91]
s_waitcnt lgkmcnt(0)
s_sub_u32 s58, s90, s84
s_cmp_lt_u32 s58, s59
s_cbranch_scc1 L_dbgs
L_dbgt:
""")
    elif dbgt == 2:
        a(f"""
s_or_b32 s59, s2, s3
s_cmp_lg_u32 s59, 0
s_cbranch_scc1 L_dbgt
s_memrealtime s[88:89]
s_waitcnt lgkmcnt(0)
s_sub_u32 s59, s88, s84
s_mul_i32 s59, s59, 10
s_min_u32 s59, s59, 100000
L_dbgs:
s_memrealtime s[90:91]
s_waitcnt lgkmcnt(0)
s_sub_u32 s58, s90, s88
s_cmp_lt_u32 s58, s59
s_cbranch_scc1 L_dbgs
L_dbgt:
""")
    elif dbgt:
        a(f"""
s_memrealtime s[88:89]
s_memtime s[90:91]
s_mov_b32 s44, s38
s_mov_b32 s45, s39
s_mov_b32 s46, 256
s_mov_b32 s47, 0x20000
s_mov_b64 exec, 1
s_waitcnt lgkmcnt(0)
s_not_b32 s59, s84
v_mov_b32 v12, s88
v_mov_b32 v13, s59
buffer_atomic_umax v12, v9, s[44:47], 0 offen sc1
buffer_atomic_umax v13, v9, s[44:47], 0 offen offset:4 sc1
s_cmp_lg_u32 s3, 0
s_cbranch_scc1 L_dbgt
s_and_b32 s59, s2, 0x7f
s_cmp_lg_u32 s59, 0
s_cbranch_scc1 L_dbgt
s_lshr_b32 s59, s2, 3
v_mov_b32 v12, s84
v_mov_b32 v13, s88
v_mov_b32 v14, s86
v_mov_b32 v15, s90
buffer_store_dwordx4 v[12:15], v9, s[44:47], s59 offen offset:16 sc1
L_dbgt:
s_waitcnt vmcnt(0)
""")
    if prof:
        a(f"""
s_mov_b64 exec, 1
s_sleep 127
s_waitcnt lgkmcnt(0)
s_lshl_b32 s59, s2, 3
s_add_u32 s59, s59, s3
s_add_u32 s59, s59, 4
s_lshl_b32 s59, s59, 6
s_add_u32 s59, s59, {STAMP}
""")
        for i in range(0, 8):
            a(f"v_mov_b32 v12, s{84+2*i}\nv_mov_b32 v13, s{85+2*i}\nbuffer_store_dwordx2 v[12:13], v9, s[52:55], s59 offen offset:{8*i}\ns_waitcnt vmcnt(0)")
    a("L_end:\ns_endpgm")
    if not dp: a("""L_h1_far:
buffer_store_dwordx2 v[52:53], v25, s[52:55], s""" + ("28" if t2 else "6") + """ offen offset:128 sc1
s_branch L_h1_st
""")
    if h1e: a("L_h1e_far:\ns_waitcnt vmcnt(1)\ns_branch L_h1e_done")
    a("L_h1_farp:")
    h1poll("x", "sc1", 1)
    a("s_branch L_h1_got")
    if defer:
        a(f"""
L_dfr:
s_movk_i32 s58, 2000
L_dfr_l:
buffer_load_dword v93, v92, s[48:51], 0 offen nt
s_waitcnt vmcnt(0)
v_add_u32 v93, s28, v93
v_and_b32 v93, s29, v93
v_cmp_ne_u32 vcc, s29, v93
s_cbranch_vccz L_dfr_go
s_sub_u32 s58, s58, 1
s_cbranch_scc0 L_dfr_l
L_dfr_go:
""")
        for t in range(4): wodma(t, 90, 22, 23)
        a("s_waitcnt vmcnt(0)\ns_branch L_dfr_done")
    if near:
        assert near["nw"] in (1, 2)
        a(f"""L_meas:
s_cmp_lt_u32 s3, 2
s_cbranch_scc1 L_meas_done
s_and_b32 s4, s3, 1
s_lshl_b32 s4, s4, 13
s_lshl_b32 s5, s2, 7
s_add_u32 s4, s4, s5
s_memtime s[76:77]
s_waitcnt lgkmcnt(0)
s_load_dword s5, s[40:41], s4 offset:{MEAS}
s_waitcnt lgkmcnt(0)
s_memtime s[78:79]
s_lshl_b32 s4, s3, 2
v_mov_b32 v5, s4
s_waitcnt lgkmcnt(0)
s_sub_u32 s78, s78, s76
v_mov_b32 v6, s78
ds_write_b32 v5, v6 offset:{OP - 8}
s_waitcnt lgkmcnt(0)
s_branch L_meas_done
L_mpub:
ds_read_b64 v[94:95], v9 offset:{OP}
s_lshl_b32 s4, s2, 3
s_add_u32 s4, s4, {CWOFF}
s_movk_i32 s5, {near.get("cap", 600)}
s_mov_b64 exec, 1
s_waitcnt lgkmcnt(0)
v_sub_u32 v94, v94, v95
v_min_i32 v94, s5, v94
v_sub_u32 v95, 0, v94
v_min_i32 v95, s5, v95
v_sub_u32 v94, 0, v95
v_mov_b32 v95, s12
buffer_store_dwordx2 v[94:95], v9, s[52:55], s4 offen sc1
s_mov_b64 exec, -1
s_branch L_mpub_done
""")
    a("L_qs_far:\n" + (f"ds_write_b32 v9, v11 offset:{FLG+32}\n" if dp else "") + "buffer_store_dwordx4 v[132:135], v25, s[52:55], s72 offen sc1\ns_branch L_qs_done\nL_gq_far:")
    qpoll("x", "sc1")
    a("s_branch L_gq_got")
    if fc:
        lean = fc.get("tt", {}).get("notab") and fc["tt"].get("gl") == 2
        if not lean:
            a("L_cb:\ns_waitcnt lgkmcnt(0)\ns_mov_b32 s71, 0")
            for i in range(8): a(f"s_cmp_lg_u32 s{4+i}, s73\ns_addc_u32 s71, s71, 0")
        if not fc.get("wg"):
            a(f"""
s_cmp_lt_u32 s71, {fc['th1']}
s_cselect_b32 s62, 2, 0
s_cmp_ge_u32 s71, {fc['th2']}
s_cselect_b32 s62, 1, s62
""")
            if prof: a("s_lshl_b64 s[82:83], s[82:83], 2\ns_or_b32 s82, s82, s62")
            a("s_setpc_b64 s[80:81]")
        else:
            bias = 16 * fc["CW"]
            TSX = ""; DEC = ""
            if fc.get("dec"):
                DEC = f"s_cmp_eq_u32 s62, 1\ns_cselect_b32 s71, {-fc['dec'][0]}, 0\ns_cmp_eq_u32 s62, 2\ns_cselect_b32 s71, {fc['dec'][1]}, s71\ns_add_u32 s74, s74, s71"
            if fc.get("ts"):
                TSX = "L_cx:\ns_waitcnt lgkmcnt(0)\ns_mov_b32 s71, 0\n"
                for i in range(8): TSX += f"s_sub_u32 s{16+2*i}, s36, s{16+2*i}\ns_cmp_eq_u32 s{17+2*i}, s73\ns_cselect_b32 s{16+2*i}, s{16+2*i}, 0\ns_add_u32 s71, s71, s{16+2*i}\n"
                TSX += f"""s_sub_u32 s32, s36, s32
s_cmp_eq_u32 s33, s73
s_cselect_b32 s32, s32, 0
s_lshl_b32 s32, s32, 3
s_sub_u32 s32, s32, s71
s_mul_i32 s32, s32, {fc['tg']}
s_ashr_i32 s74, s32, 5
s_branch L_cc
"""
            if fc.get("tt"):
                tt = fc["tt"]
                RED = "\n".join(f"v_add_u32_dpp v85, v85, v85 row_ror:{n} row_mask:0xf bank_mask:0xf" for n in (4, 2, 1))
                CW_ = f"""{RED}
v_readfirstlane_b32 s69, v85
s_mul_i32 s69, s69, {round(tt['U'])}
s_lshr_b32 s69, s69, 5
s_sub_u32 s62, s62, s69
"""
                if tt.get("gl"):
                    SUMX = "s_waitcnt lgkmcnt(0)\ns_mov_b32 s71, 0\n"
                    for i in range(8): SUMX += f"s_sub_u32 s{16+2*i}, s36, s{16+2*i}\ns_cmp_eq_u32 s{17+2*i}, s73\ns_cselect_b32 s{16+2*i}, s{16+2*i}, {tt.get('inv', 0)}\ns_add_u32 s71, s71, s{16+2*i}\n"
                    SUMX += "s_ashr_i32 s71, s71, 3\ns_sub_u32 s71, s36, s71\n"
                    TSX = "L_cx:\n" + SUMX
                    if tt["gl"] == 2:
                        TSX = "L_cx:\ns_waitcnt lgkmcnt(0)\ns_add_u32 s62, s62, s70\ns_mov_b32 s71, 0\n"
                        if prof and tt.get("tv"): TSX += "s_lshl_b64 s[82:83], s[82:83], 4\n"
                        for i in range(8):
                            TSX += f"s_sub_u32 s{16+2*i}, s{16+2*i}, s62\ns_cmp_eq_u32 s{17+2*i}, s73\ns_cselect_b32 s{16+2*i}, s{16+2*i}, 0\n"
                            if prof and tt.get("tv"): TSX += "s_addc_u32 s82, s82, 0\n"
                            TSX += f"s_add_u32 s71, s71, s{16+2*i}\n"
                        TSX += f"s_ashr_i32 s71, s71, {3 + tt.get('gsm2', 0)}\ns_add_u32 s70, s70, s71\ns_setpc_b64 s[80:81]\n"
                        SUMX = None
                    if tt.get("gsm"): TSX += f"s_sub_u32 s71, s71, s62\ns_sub_u32 s71, s71, s70\ns_ashr_i32 s71, s71, {tt['gsm']}\ns_add_u32 s70, s70, s71\ns_setpc_b64 s[80:81]\nL_cx0:\n" + SUMX
                    if SUMX: TSX += "s_sub_u32 s70, s71, s62\ns_setpc_b64 s[80:81]\n"
                if lean: a("; re-centre the schedule on the mean of the published clocks (entries without this launch's tag are skipped)\n" + TSX)
                else: a(f"""
s_setpc_b64 s[80:81]
{TSX}
L_cw0:
{CW_}
s_sub_u32 s75, s62, {round(tt['U'] * fc['CW'] / 2)}
s_branch L_cc
L_cw:
{CW_}
s_sub_u32 s62, s62, {round(tt['U'] * fc['CW'] / 2)}
""" + (f"s_sub_u32 s62, s62, s75\ns_ashr_i32 s62, s62, {tt['sm']}\ns_add_u32 s75, s75, s62" if tt.get("sm") else "s_mov_b32 s75, s62") + """
L_cc:
""" + ("" if tt.get("gl") else "s_add_u32 s70, s75, s74") + """
s_setpc_b64 s[80:81]
""")
            else: a(f"""
s_mul_i32 s74, s71, {fc.get('kx', 0)}
{"s_lshl_b64 s[82:83], s[82:83], 4" if prof and fc.get("tm") else ""}
{"s_or_b32 s82, s82, s71" if prof and fc.get("tm") else ""}
s_branch L_cc
{TSX}
L_cw:
v_add_u32_dpp v85, v85, v85 row_ror:4 row_mask:0xf bank_mask:0xf
v_add_u32_dpp v85, v85, v85 row_ror:2 row_mask:0xf bank_mask:0xf
v_add_u32_dpp v85, v85, v85 row_ror:1 row_mask:0xf bank_mask:0xf
v_readfirstlane_b32 s69, v85
s_sub_u32 s75, s68, s69
s_sub_u32 s75, s75, {bias}
{DEC}
L_cc:
s_add_u32 s68, s75, s74
s_cmp_lt_i32 s68, {-fc['b']}
s_cselect_b32 s62, 2, 0
s_cmp_gt_i32 s68, {fc['a']}
s_cselect_b32 s62, 1, s62
""")
            if prof and not fc.get("tm") and not fc.get("tt"): a("s_lshl_b64 s[82:83], s[82:83], 2\ns_or_b32 s82, s82, s62")
            if not fc.get("tt"): a("s_setpc_b64 s[80:81]")
    a("; one output column of the token MLP: sum_f gelu_tanh(h*w1+b1)*w2 over this wave's quarter of F\nL_mlp:")
    if mr:
        a("; (the product, the biased sum and the activation are rounded to bf16 where the reference's bf16 tensors round them)")
        for t in range(7): a(f"v_mul_f32 v{U+t}, s4, v{W1+t}")
        for t in range(7): a(f"v_cvt_pk_bf16_f32 v{U+t}, 0, v{U+t}")
        for t in range(7): a(f"v_add_f32 v{U+t}, v{U+t}, v{B1+t}")
        for t in range(7): a(f"v_cvt_pk_bf16_f32 v{U+t}, 0, v{U+t}")
    else:
        for t in range(7): a(f"v_fma_f32 v{U+t}, s4, v{W1+t}, v{B1+t}")
    for t in range(7): a(f"v_mul_f32 v{AA+t}, v{U+t}, v{U+t}")
    for t in range(7): a(f"v_fmaak_f32 v{AA+t}, v{AA+t}, v{C1}, {f32(c0)}")
    for t in range(7): a(f"v_mul_f32 v{AA+t}, v{AA+t}, v{U+t}")
    for t in range(7): a(f"v_exp_f32 v{EE+t}, v{AA+t}")
    if not mr:
        for t in range(7): a(f"v_mul_f32 v{U+t}, v{U+t}, v{W2+t}")
    for t in range(7): a(f"v_add_f32 v{EE+t}, 1.0, v{EE+t}")
    for t in range(7): a(f"v_rcp_f32 v{EE+t}, v{EE+t}")
    if mr:
        for t in range(7): a(f"v_mul_f32 v{EE+t}, v{U+t}, v{EE+t}")
        for t in range(7): a(f"v_cvt_pk_bf16_f32 v{EE+t}, 0, v{EE+t}")
    M2 = W2 if mr else U
    a(f"v_mul_f32 v{ACC2}, v{M2}, v{EE}")
    a(f"v_mul_f32 v{AA}, v{M2+1}, v{EE+1}")
    for t in range(2, 7): a(f"v_fmac_f32 v{ACC2 if t % 2 == 0 else AA}, v{M2+t}, v{EE+t}")
    a(f"v_add_f32 v{ACC2}, v{ACC2}, v{AA}")
    for n in (8, 4, 2, 1): a(f"v_add_f32_dpp v{ACC2}, v{ACC2}, v{ACC2} row_ror:{n} row_mask:0xf bank_mask:0xf")
    swaps_add(ACC2, AA)
    a(f"""
s_mov_b64 exec, 1
ds_write_b32 v{YA}, v{ACC2} offset:{YP}
s_mov_b64 exec, -1
v_add_u32 v{YA}, 4, v{YA}
s_setpc_b64 s[80:81]
""")
    body = a.render()
    if "allsc1st" in dbg:
        import re
        body = re.sub(r"(buffer_store_dwordx[24] v\[\d+:\d+\], v\d+, s\[52:55\], s(6|72) offen( offset:128)?)\n", r"\1 sc1\n", body)
    if "allsc1ld" in dbg:
        import re
        body = re.sub(r"(buffer_load_dwordx4 v\[\d+:\d+\], v\d+, s\[52:55\], s[67] offen( offset:\d+)?) nt\n", r"\1 sc1\n", body)
    txt = HDR + f"""; @launch grid=(256,1,1) block=(512,1,1) lds={LDSZ}
.amdgcn_target "amdgcn-amd-amdhsa--gfx950"
; ---------------------------------------------------------------------------------------------------------
; out = x + (softmax(q K^T / sqrt(128)) V) Wo * silu(token_mlp(LN(LN(x)))),  q = LN(x) Wq.   One launch, 256 workgroups.
; Workgroup id = b*32 + split*8 + x : batch b, kv head x, quarter `split` of the 4096 cached tokens.
;  waves 0-3 (stream): read the K and V rows of this workgroup once (nt), scores by MFMA, true max + exp, P.V by MFMA.
;  waves 4-7 (helper): LN, a 128x64 tile of Wq (partials exchanged through d_ws), the token MLP gate for 16 output
;                      columns, softmax statistics exchange, partial-O hand-off (hop 1), a 128x64 tile of Wo,
;                      hand-off of the projected partial sums (hop 2), final sum / gate / residual / store.
; Hand-offs: every granule in d_ws carries this launch's tag (ws[0]+1; workgroup 0 stores the tag back at the end), so
;  words left by earlier launches or by the harness are never taken for data.  All polls are bounded.
; Placement: hop 2 and the clock/vote words always use sc1 (memory-side) accesses.  The exchanges inside a group of 32
;  workgroups use plain stores only after the group has PROVEN (tagged table indexed by the hardware XCC id) that all
;  32 share one L2; otherwise they use sc1 stores/loads, so any placement gives the same result.
; Bandwidth sharing: HBM is saturated for the whole stream, and the launch ends with the slowest workgroup.  Each stream
;  wave compares its progress with the mean progress of all dies (clock values exchanged in d_ws, this launch only) and
;  keeps 4..12 loads in flight accordingly (behind: more, ahead: fewer).  This only selects s_waitcnt vmcnt depths;
;  nothing waits on the clock.  The s_memtime probe at the start picks which half of the hop-2 area is closer to its
;  readers (all workgroups read the same 16 votes, so they agree); either choice is correct.
; ---------------------------------------------------------------------------------------------------------
.text
.globl {KN}_kernel
.p2align 8
.type {KN}_kernel,@function
{KN}_kernel:
""" + body + f""".section .rodata,"a"
.p2align 6
.amdhsa_kernel {KN}_kernel
  .amdhsa_next_free_vgpr 256
  .amdhsa_next_free_sgpr 102
  .amdhsa_accum_offset 256
  .amdhsa_group_segment_fixed_size 0
  .amdhsa_kernarg_size 104
  .amdhsa_user_sgpr_count 2
  .amdhsa_user_sgpr_kernarg_segment_ptr 1
  .amdhsa_system_sgpr_workgroup_id_x 1
.end_amdhsa_kernel
"""
    open(fname, "w").write(txt)
if __name__ == "__main__":
    import glob, os
    for f in glob.glob("kp_*.s"): os.remove(f)
    gen("k1.s", mlp1=4, slp=0)
    kw = dict(prof=True, tailprof=True, mlp1=4, slp=0, rq=1, wolate=[5, 7, 9, 11])
    gen("kp_00.s", **kw)
    F = dict(wg=1, x=1, G=2, kx=24, a=64, b=-16, W=(4,6,12), d=6, C=3, CW=2)
    gen("kp_01.s", fc=F, **kw)
    gen("kp_02_nowork.s", fc=F, dbg="nok nosm nov", **kw)
    gen("kp_03_nosm.s", fc=F, dbg="nosm", **kw)
    gen("kp_04_nowq.s", fc=F, dbg="nowq", **kw)
    gen("kp_05_nowork_nowq.s", fc=F, dbg="nok nosm nov nowq", **kw)
    gen("kp_06_nowork_nowq_nomlp.s", fc=F, dbg="nok nosm nov nowq nomlp", **kw)
    gen("kp_07_nofc_nowork.s", dbg="nok nosm nov", **kw)
    gen("kp_08_nofc_nowork_nowq.s", dbg="nok nosm nov nowq", **kw)
```

```python
import sys, struct, math
from asmlib import Asm
KN = "recurrent_scan__gqa_block_cached__mixer_token_mlp__decode"
def f32(x): return "0x%08x" % struct.unpack("<I", struct.pack("<f", x))[0]
LOG2E = 1.4426950408889634
FLG = 0; QL = 64; ST = QL + 1024; YP = ST + 128; OP = YP + 256; XN = OP + 4 * 2304; XRS = 1040; WQL = XN + 8 * XRS; KL = WQL + 32768
QOFF = 64 << 10; H1OFF = QOFF + (1 << 20); H1S = 4224; H2OFF = H1OFF + (640 << 10); BD = 4 << 20; PGOFF = 8 << 10; LOCOFF = 32 << 10; STAMP = 128 << 20
HDR = open("cdna_kernels/" + KN + ".s.ref").read().split("; Override launch")[0]

def gen(fname, WIN=6, G=2, RING=40, prof=False, wo_thr=4, ntw="", woflags="", spin=400000, dbg="", WPS=1, dry=False, tailprof=False, NLT=6, slp=2, wqdma=True, sprio=2, bgprio=0, mlp1=8, local=True, fb=31, deferB=True, pretouch=False, pat=None, pat2=None, rot=None, cmap=0, light=False, lslp=0, h1fl='nt', h2sync=True, fc=None, est=None, rq=0, ro=0, sE=True, wolate=None, n0=64, pipe1=1, pipe2=1, stag1=3, stag2=3, h2late=True, h2ack=True, h2pre=False, h2full=False, slp2=0, dbgt=False, dirty=0, clean=False, qslp=None, nloc=200, tmap=(14, 16, None), wotrig=None, wothr=2, wosl=2, womid=True, palign=0, defer=None, h2off=None, tlbw=False, near=None, endwait=False, lastopt=True, pkc=True, warm='', hdel=0, wqdel=0, dp=False, dpt='c3', dpf=4, dpw=0, dpc=6, dpfl="nt", dpp=0, hp=3, hp2=None, h1e=None, wosw=False, t2=False, prew=True, b3=False, wodl=None, t3=False, h1m=0, h2fl='sc1', h2e=False, h2sf='sc1', qprew=False, trot=None, trotw=0, wbar=0, own1=False, lbar=False, fin=0, mr=0, qf=0):
    if fin: assert h2late and not h2e
    if lbar: h2late = False; h2sync = False
    if t3: t2 = True; h2late = False; h2sync = False; assert womid and wotrig is not None
    if t2: assert not dp and lastopt and wosw and not h2full and pkc and not defer
    if dp: assert fc and tmap[2] is None and wotrig is not None and wotrig >= 200
    H2OFF = (576 << 10) if h2off is None else h2off
    MEAS = 48 << 10; CWOFF = 16 << 10
    a = Asm()
    LDSZ = KL + 4 * NLT * 4096
    NLL = 4 * NLT
    NST = 8
    def stamp(i):
        if prof: a(f"s_memrealtime s[{84+2*i}:{85+2*i}]")
    stamp(0)
    if dbgt: a("s_memrealtime s[84:85]\ns_memtime s[86:87]")
    a(f"""
s_load_dwordx2 s[44:45], s[0:1], 8
s_load_dwordx2 s[48:49], s[0:1], 16
v_lshrrev_b32 v2, 6, v0
s_cmp_ge_u32 s2, 256
v_and_b32 v1, 63, v0
v_readfirstlane_b32 s3, v2
s_cbranch_scc1 L_end
s_cmp_ge_u32 s3, 4
s_cbranch_scc1 L_helper
""")
    a(f"""
s_setprio {sprio}
s_mov_b32 s46, 0x4000000
s_mov_b32 s47, 0x20000
s_and_b32 s52, s2, 7
s_lshl_b32 s52, s52, 20
s_lshr_b32 s53, s2, 5
s_lshl_b32 s53, s53, 23
s_or_b32 s52, s52, s53
s_bfe_u32 s53, s2, 0x20003
s_lshl_b32 s53, s53, {tmap[0]}
s_or_b32 s52, s52, s53
s_lshl_b32 s53, s3, 12
s_or_b32 s52, s52, s53
s_mul_i32 s60, s3, {NLT*4096}
s_add_u32 s60, s60, {KL}
v_lshrrev_b32 v5, 4, v1
v_bfe_u32 v6, v1, 2, 2
v_and_b32 v7, 3, v1
v_lshlrev_b32 v2, 8, v6
v_lshl_add_u32 v2, v5, 6, v2
v_lshl_add_u32 v2, v7, 4, v2
""")
    if trot: a(f"s_bfe_u32 s53, s2, {hex((trot[1] << 16) | trot[0])}\ns_lshl_b32 s53, s53, {trot[2]}\ns_xor_b32 s52, s52, s53")
    if trotw: a(f"s_lshl_b32 s53, s3, {trotw}\ns_xor_b32 s52, s52, s53")
    if tmap[2]: a(f"s_and_b32 s53, s2, 7\ns_lshl_b32 s53, s53, {tmap[2]}\ns_xor_b32 s52, s52, s53")
    def late_setup():
        a(f"""
{"" if fc and fc.get("tt", {}).get("notab") else "s_load_dwordx2 s[38:39], s[0:1], 88"}
s_load_dwordx2 s[40:41], s[0:1], 96
s_mov_b32 s50, 0x4000000
s_mov_b32 s51, 0x20000
v_lshlrev_b32 v3, 4, v1
""")
        if fc and fc.get("tt", {}).get("notab"): a(f"""
; schedule exchange: wave 0 of one workgroup per group publishes its clock at a few steps (slot = id&7)
s_lshr_b32 s64, s2, 3
s_cmp_eq_u32 s3, 0
s_cselect_b32 s64, s64, 64
s_and_b32 s65, s2, 7
s_lshl_b32 s65, s65, 3
v_mov_b32 v83, s65
{"s_mov_b64 s[82:83], 0" if prof else ""}
{"s_cselect_b64 vcc, 1, 0" if fc.get("vw") else ""}
s_waitcnt lgkmcnt(0)
s_load_dword s73, s[40:41], 0
s_mov_b32 s76, s40
s_mov_b32 s77, s41
s_mov_b32 s78, 0x10000000
s_mov_b32 s79, 0x20000
""")
        elif fc: a(f"""
s_lshr_b32 s64, s2, 3
s_cmp_eq_u32 s3, 0
s_cselect_b32 s64, s64, 64
s_and_b32 s65, s2, 7
s_lshl_b32 s63, s65, 3
s_lshl_b32 s65, s65, {3 if fc.get("ts") else 2}
v_mov_b32 v83, s65
s_mov_b32 s62, {fc.get('l0', 0)}
s_mov_b64 s[82:83], 0
s_getreg_b32 s66, hwreg(HW_REG_XCC_ID, 0, 3)
s_lshl_b32 s66, s66, 5
s_lshr_b32 s67, s2, 3
s_add_u32 s67, s67, s66
v_mov_b32 v88, s67
v_and_b32 v87, 7, v1
v_lshl_add_u32 v87, v87, 2, s66
s_mov_b32 s74, 0
s_mov_b32 s75, 0
s_cmp_eq_u32 s3, 0
s_cselect_b64 vcc, 1, 0
s_waitcnt lgkmcnt(0)
s_load_dword s73, s[40:41], 0
s_mov_b32 s76, s40
s_mov_b32 s77, s41
s_mov_b32 s78, 0x10000000
s_mov_b32 s79, 0x20000
s_mov_b32 s12, s38
s_mov_b32 s13, s39
s_mov_b32 s14, 256
s_mov_b32 s15, 0x20000
""")
    RB = 256 - RING * 4
    def rreg(n): return RB + ((n - NLL) % RING) * 4
    NL = 128
    st = {"tile": None}
    def issue(n):
        isv = n >= 64; t = (n & 63) >> 2; q = n & 3
        if st["tile"] != (isv, t):
            st["tile"] = (isv, t)
            if tmap: a(f"s_xor_b32 s53, s52, {t << tmap[1]}")
            elif rot is None: a(f"s_add_u32 s53, s52, {t*16384}")
            else: a(f"s_add_u32 s53, s61, {t*16384}\ns_and_b32 s53, s53, 0x3ffff\ns_add_u32 s53, s53, s52")
            if n < NLL: a(f"s_add_u32 m0, s60, {t*4096}\ns_nop 0")
            if n == 0:
                if palign: a(f".p2align {palign}")
                a("s_waitcnt lgkmcnt(0)")
                if st.get("ks"): stamp(7)
        if n < NLL:
            a(f"buffer_load_dwordx4 v2, s[44:47], s53 offen offset:{q*1024} nt lds"); return
        r = rreg(n)
        a(f"buffer_load_dwordx4 v[{r}:{r+3}], {'v3' if isv else 'v2'}, {'s[48:51]' if isv else 's[44:47]'}, s53 offen offset:{q*1024} nt")
    TSR = 6
    QB = 8; Y = 12; ACC = 28; DT = 28; TT = 44; PT = 60; PA = 76; M = 80
    def setup_consts():
        a(f"""
s_mov_b32 s54, 0x05040100
s_mov_b32 s55, 0x07060302
s_mov_b32 s56, {f32(128**-0.5)}
s_mov_b32 s57, {f32(LOG2E)}
v_lshlrev_b32 v4, 8, v7
v_lshl_add_u32 v4, v5, 6, v4
v_lshl_add_u32 v4, v6, 4, v4
v_mov_b32 v84, 0
v_add_u32 v86, s60, v3
""")
    def wait_q():
        stamp(1)
        if "noq" in dbg:
            a(f"ds_read_b128 v[{QB}:{QB+3}], v4 offset:{QL}\ns_waitcnt lgkmcnt(0)"); stamp(2); return
        a(f"""
s_mov_b32 s58, {spin*8}
L_sq:
ds_read_b32 v85, v84 offset:{FLG+4}
s_waitcnt lgkmcnt(0)
v_readfirstlane_b32 s59, v85
s_sub_u32 s58, s58, 1
s_cbranch_scc1 L_sq_done
s_cmp_ge_u32 s59, 4
s_cbranch_scc1 L_sq_done
s_sleep 1
s_branch L_sq
L_sq_done:
ds_read_b128 v[{QB}:{QB+3}], v4 offset:{QL}
{f"ds_read_b32 v85, v84 offset:{FLG+32}" if dp else ""}
s_waitcnt lgkmcnt(0)
{"v_readfirstlane_b32 s42, v85" if dp else ""}
""")
        stamp(2)
        if prof: a("s_waitcnt lgkmcnt(0)")
    def ktile(t):
        if t < NLT:
            for q in range(4): a(f"ds_read_b128 v[{PT+4*q}:{PT+4*q+3}], v86 offset:{t*4096+q*1024}")
        for q in range(4):
            r = rreg(4 * t + q) if t >= NLT else PT + 4 * q
            if t < NLT: a(f"s_waitcnt lgkmcnt({3-q})")
            a(f"v_mfma_f32_16x16x32_bf16 v[{DT+4*q}:{DT+4*q+3}], v[{r}:{r+3}], v[{QB}:{QB+3}], 0")
        for c in range(4):
            for r in range(4):
                n = 4 * ((c - r) % 4)
                ctl = f"row_ror:{n}" if n else "quad_perm:[0,1,2,3]"
                a(f"v_mov_b32_dpp v{TT+r}, v{DT+4*c+r} {ctl} row_mask:0xf bank_mask:{hex(1<<c)}")
        y = Y + t
        a(f"""
v_add_f32 v{TT}, v{TT}, v{TT+1}
v_add_f32 v{TT+2}, v{TT+2}, v{TT+3}
v_add_f32 v{y}, v{TT}, v{TT+2}
v_cvt_pk_bf16_f32 v{y}, v{y}, v{y}
v_lshlrev_b32 v{y}, 16, v{y}
v_mul_f32 v{y}, s56, v{y}
v_cvt_pk_bf16_f32 v{y}, v{y}, v{y}
v_lshlrev_b32 v{y}, 16, v{y}
""")
    def xlane(op, r, t):
        a(f"""
{op}_dpp v{r}, v{r}, v{r} row_ror:4 row_mask:0xf bank_mask:0xf
""") if op != "v_add_f32" else a(f"""
v_add_f32_dpp v{r}, v{r}, v{r} row_ror:4 row_mask:0xf bank_mask:0xf
""")
        a(f"""
{op}_dpp v{r}, v{r}, v{r} row_ror:8 row_mask:0xf bank_mask:0xf
v_mov_b32 v{t}, v{r}
v_permlane16_swap_b32 v{r}, v{t}
{op} v{r}, v{r}, v{t}
v_mov_b32 v{t}, v{r}
v_permlane32_swap_b32 v{r}, v{t}
{op} v{r}, v{r}, v{t}
""")
    def softmax():
        m = M; l = M + 1; t = M + 2
        a(f"v_max3_f32 v{m}, v{Y}, v{Y+1}, v{Y+2}")
        for i in range(3, 15, 2): a(f"v_max3_f32 v{m}, v{m}, v{Y+i}, v{Y+i+1}")
        a(f"v_max_f32 v{m}, v{m}, v{Y+15}")
        xlane("v_max_f32", m, t)
        a(f"v_mul_f32 v{m}, s57, v{m}")
        for i in range(16): a(f"v_fma_f32 v{Y+i}, v{Y+i}, s57, -v{m}")
        for i in range(16): a(f"v_exp_f32 v{Y+i}, v{Y+i}")
        a(f"v_add_f32 v{l}, v{Y}, v{Y+1}")
        a(f"v_add_f32 v{t}, v{Y+2}, v{Y+3}")
        for i in range(4, 16, 2):
            a(f"v_add_f32 v{l}, v{l}, v{Y+i}")
            a(f"v_add_f32 v{t}, v{t}, v{Y+i+1}")
        a(f"v_add_f32 v{l}, v{l}, v{t}")
        for v in range(8): a(f"v_cvt_pk_bf16_f32 v{Y+v}, v{Y+2*v}, v{Y+2*v+1}")
        if t2:
            for i in range(16): a(f"v_mov_b32 v{PA4+i}, 0")
        xlane("v_add_f32", l, t)
        a(f"""
s_lshl_b32 s59, s3, 5
v_lshl_add_u32 v{t}, v1, 3, s59
s_mov_b64 exec, 15
ds_write_b64 v{t}, v[{m}:{m+1}] offset:{ST}
s_mov_b64 exec, 1
v_mov_b32 v{t}, 1
ds_add_u32 v84, v{t} offset:{FLG+16}
s_mov_b64 exec, -1
""")
    PA4 = 36
    def mkpa(v):
        if t2:
            for c in range(4):
                for p in range(4):
                    n = 4 * ((c - p) % 4)
                    a(f"v_mov_b32_dpp v{PA4+4*c+p}, v{Y+v} {f'row_ror:{n}' if n else 'quad_perm:[0,1,2,3]'} row_mask:0xf bank_mask:{hex(1<<c)}")
            return
        a(f"v_mov_b32 v{PA}, v{Y+v}")
        for p in (1, 2, 3):
            a(f"v_mov_b32_dpp v{PA+p}, v{Y+v} row_ror:{4*((0-p)%4)} row_mask:0xf bank_mask:0xf")
    def vchunk(v):
        mkpa(v)
        for half in range(2):
            for jj in range(4 * half, 4 * half + 4):
                o = PT + 4 * (jj & 3)
                for p in range(4):
                    lo = rreg(64 + 8 * v + p) + (jj >> 1); hi = rreg(64 + 8 * v + 4 + p) + (jj >> 1)
                    a(f"v_perm_b32 v{o+p}, v{hi}, v{lo}, {'s55' if jj & 1 else 's54'}")
            for jj in range(4 * half, 4 * half + 4):
                o = PT + 4 * (jj & 3); d = ACC + 4 * jj
                pa = PA
                if t2: d = ACC + 4 * half; pa = PA4 + 4 * (jj & 3)
                c = "0" if (v == 0 and (not t2 or jj & 3 == 0)) else f"v[{d}:{d+3}]"
                a(f"v_mfma_f32_16x16x32_bf16 v[{d}:{d+3}], v[{pa}:{pa+3}], v[{o}:{o+3}], {c}")
    def s_wait(lbl, off, cnt):
        a(f"""
s_mov_b32 s58, {spin*8}
{lbl}:
ds_read_b32 v85, v84 offset:{off}
s_waitcnt lgkmcnt(0)
v_readfirstlane_b32 s59, v85
s_sub_u32 s58, s58, 1
s_cbranch_scc1 {lbl}_done
s_cmp_lt_u32 s59, {cnt}
s_cbranch_scc1 {lbl}
{lbl}_done:
""")
    def s_sig(off): a(f"s_mov_b64 exec, 1\nv_mov_b32 v82, 1\nds_add_u32 v84, v82 offset:{off}\ns_mov_b64 exec, -1")
    AQ = [20, 24, 12, PA]
    def fitem(v0):
        T_ = PT
        s_wait("L_d1", FLG + 16, 4)
        a(f"""
v_and_b32 v4, 3, v1
v_lshlrev_b32 v4, 3, v4
ds_read_b32 v{T_}, v4 offset:{ST}
ds_read_b32 v{T_+1}, v4 offset:{ST+32}
ds_read_b32 v{T_+2}, v4 offset:{ST+64}
ds_read_b32 v{T_+3}, v4 offset:{ST+96}
v_lshlrev_b32 v4, 1, v4
v_lshrrev_b32 v10, 4, v1
v_lshl_add_u32 v4, v10, 6, v4
v_bfe_u32 v11, v1, 2, 2
v_lshl_add_u32 v4, v11, 2, v4
s_lshl_b32 s59, s3, 8
v_add_u32 v4, s59, v4
s_waitcnt lgkmcnt(0)
v_max3_f32 v{T_}, v{T_}, v{T_+1}, v{T_+2}
v_max_f32 v{T_}, v{T_}, v{T_+3}
v_sub_f32 v{T_}, v{M}, v{T_}
v_exp_f32 v{T_}, v{T_}
""")
        for v in range(v0, 8): a(f"v_lshlrev_b32 v{T_+8+2*(v-v0)}, 16, v{Y+v}\nv_and_b32 v{T_+9+2*(v-v0)}, 0xffff0000, v{Y+v}")
        for i in range(4): a(f"v_mov_b32_dpp v{T_+4+i}, v{T_} quad_perm:[{i},{i},{i},{i}] row_mask:0xf bank_mask:0xf")
        for v in range(v0, 8): a(f"v_pk_mul_f32 v[{T_+8+2*(v-v0)}:{T_+9+2*(v-v0)}], v[{T_+8+2*(v-v0)}:{T_+9+2*(v-v0)}], v[{T_}:{T_+1}] op_sel_hi:[1,0]")
        for v in range(v0, 8): a(f"v_cvt_pk_bf16_f32 v{Y+v}, v{T_+8+2*(v-v0)}, v{T_+9+2*(v-v0)}")
        a(f"ds_write_b32 v4, v{Y+7} offset:{QL}")
        s_sig(FLG + 44)
        for jj in range(8):
            d_ = ACC + 4 * jj
            a(f"v_pk_mul_f32 v[{d_}:{d_+1}], v[{d_}:{d_+1}], v[{T_+4}:{T_+5}]\nv_pk_mul_f32 v[{d_+2}:{d_+3}], v[{d_+2}:{d_+3}], v[{T_+6}:{T_+7}]")
        a(f"""
v_lshlrev_b32 v9, 6, v10
v_lshl_add_u32 v9, v11, 4, v9
s_lshl_b32 s59, s3, 2
v_add_u32 v4, s59, v11
v_mul_u32_u24 v4, 144, v4
v_lshl_add_u32 v4, v10, 2, v4
v_and_b32 v8, 3, v1
v_lshl_add_u32 v4, v8, 5, v4
v_mul_u32_u24 v10, {4*H1S}, v10
v_lshl_add_u32 v10, v11, 8, v10
v_bfe_u32 v8, v1, 1, 1
v_lshl_add_u32 v10, v8, 10, v10
v_and_b32 v8, 1, v1
v_lshl_add_u32 v10, v8, 3, v10
v_mov_b32 v11, v9
s_and_b32 s43, s2, 7
s_lshl_b32 s43, s43, 4
s_lshr_b32 s59, s2, 6
s_add_u32 s43, s43, s59
s_mul_i32 s43, s43, {H1S}
s_bfe_u32 s59, s2, 0x30003
s_lshl_b32 s59, s59, 4
s_add_u32 s43, s43, s59
s_lshr_b32 s59, s3, 1
s_lshl_b32 s59, s59, 7
s_add_u32 s43, s43, s59
s_and_b32 s59, s3, 1
s_lshl_b32 s59, s59, 11
s_add_u32 s43, s43, s59
s_add_u32 s43, s43, {H1OFF + 128}
s_mul_i32 s72, s73, 0x01010101
v_mov_b32 v9, s72
s_mul_i32 s59, s3, 2304
v_mul_u32_u24 v8, 144, v1
v_add_u32 v8, s59, v8
""")
    work = [("K", t, 4 * t + 3) for t in list(range(NLT, 16)) + list(range(NLT))] + [("S", 0, 63)] + [("V", v, 64 + 8 * v + 7) for v in range(8)]
    if dp: work.insert(17 + dpf, ("F", dpf, 0))
    consumed = NLL - 1
    wi = 0
    def do_work():
        nonlocal wi, consumed
        k, i, last = work[wi]
        if k == "K":
            if wi == 0: wait_q()
            if "nok" not in dbg: ktile(i)
            consumed = max(consumed, last)
        elif k == "S":
            if "nosm" in dbg: a(f"s_mov_b64 exec, 1\nv_mov_b32 v82, 1\nds_add_u32 v84, v82 offset:{FLG+16}\ns_mov_b64 exec, -1")
            else: softmax()
            stamp(3)
        elif k == "F": fitem(i)
        else:
            if "nov" not in dbg: vchunk(i)
            consumed = last
        wi += 1
    def ztouch():
        a("; prefetch this workgroup's hop-2 inbox lines into the memory-side cache (loaded values are not used)")
        a(f"s_lshl_b32 s4, s2, 2\ns_add_u32 s4, s4, s3\ns_lshl_b32 s4, s4, 9\ns_add_u32 s4, s4, {H2OFF}")
        for i in range(512 // h2pre[1]): a(f"s_load_dword s{16 + i}, s[40:41], s4 offset:{i * h2pre[1]}")
    issued = 0
    ops = []
    def iss(n):
        if dp == 1 and n >= 120:
            i = n - 120; u = i >> 1
            if n == 120: a(f"s_andn2_b32 s70, s52, 0x3000\nv_lshrrev_b32 v2, 4, v1\nv_lshlrev_b32 v2, 8, v2\nv_and_b32 v85, 15, v1\nv_lshl_add_u32 v2, v85, 2, v2\ns_lshl_b32 s59, s3, 6\nv_add_u32 v2, s59, v2")
            if i & 1 == 0: a(f"s_xor_b32 s53, s70, {(14 << tmap[1]) | (u << 12)}\ns_xor_b32 s61, s70, {(15 << tmap[1]) | (u << 12)}")
            for p in (2 * (i & 1), 2 * (i & 1) + 1):
                for hi in range(2):
                    a(f"buffer_load_dword v{rreg(120) + 8*u + 2*p + hi}, v2, s[48:51], s{61 if hi else 53} offen offset:{p*1024} {dpfl}")
                    ops.append(("L", n) if (p & 1 and hi) else ("s", n))
            return
        issue(n); ops.append(("L", n))
    def vm_for(X):
        li = [i for i, o in enumerate(ops) if o[0] == "L"]
        if len(li) <= X: return None
        p = li[len(li) - X - 1]
        return len(ops) - 1 - p, p
    if pat is None: pat = [(WIN, G)]
    if fc: pat = [(fc.get("w0", fc["W"][1]), fc["G"])]
    if est == [-1, -1]: stamp(5); st["ks"] = 1
    for n in range(pat[0][0]): iss(n)
    if est == [-1, -1]: stamp(6); est = [None, None]
    issued = pat[0][0]
    late_setup()
    a("s_barrier")
    setup_consts()
    arrived = -1
    step = 0
    done_op = -1; nw = 0; ph = 0; nctl = 0; evalq = []; PAIRS = [88, 92, 94]; tagdone = False
    while issued < NL:
        pp = pat2 if (pat2 is not None and issued >= n0) else pat
        WIN, G = pp[step % len(pp)]; step += 1
        if not fc:
            if issued - (WIN - G) - 1 > arrived: a(f"s_waitcnt vmcnt({WIN-G})")
            arrived = max(arrived, issued - (WIN - G) - 1)
        else:
            Wl, Wm, Wh = fc["W"]
            opened = False
            for n_, W_ in fc.get("open", []):
                if issued >= n_: Wl, Wm, Wh = W_; opened = Wl == Wh
            while issued + G - 1 - RING > consumed and work[wi][2] > max(arrived, issued - (Wh - G) - 1): Wh -= 1; Wm = min(Wm, Wh); Wl = min(Wl, Wh)
            r = vm_for(Wh - G)
            if r and issued - (Wh - G) - 1 > arrived: a(f"s_waitcnt vmcnt({r[0]})"); done_op = max(done_op, r[1]); arrived = max(arrived, issued - (Wh - G) - 1)
            tt = fc.get("tt")
            if tt:
                if not st.get("ev"):
                    r_ = vm_for(min(tt.get("wp", Wm), Wh) - G)
                    if r_: a(f"s_waitcnt vmcnt({r_[0]}) ;nc")
                else:
                    if not st.get("sl"):
                        a(f"s_waitcnt lgkmcnt(0)\ns_add_u32 s68, s70, {round(tt['U'] * (step - 1))}\ns_sub_u32 s68, s68, s{st['cur']}"); st["ok"] |= st["pend"]; st["pend"] = set()
                    lv = tt["lv"]
                    for n_, l_ in tt.get("lv2", []):
                        if issued >= n_: lv = l_
                    pw = Wh
                    for i_ in range(len(lv) - 1):
                        w_ = min(lv[i_ + 1][0], Wh)
                        if w_ >= pw: continue
                        pw = w_
                        a(f"s_cmpk_lt_i32 s68, {lv[i_][1] & 0xffff} ;nc\ns_cbranch_scc1 L_fs{step} ;nc\ns_waitcnt vmcnt({vm_for(w_ - G)[0]}) ;nc")
                    a(f"L_fs{step}:")
                    if prof and tt.get("tr") and step in tt["tr"]: a("s_lshl_b64 s[82:83], s[82:83], 16\ns_and_b32 s69, s68, 0xffff\ns_or_b32 s82, s82, s69")
            elif not opened: a(f"""
s_cmp_eq_u32 s62, 2 ;nc
s_cbranch_scc1 L_fs{step} ;nc
s_waitcnt vmcnt({vm_for(Wm - G)[0]}) ;nc
s_cmp_eq_u32 s62, 0 ;nc
s_cbranch_scc1 L_fs{step} ;nc
s_waitcnt vmcnt({vm_for(Wl - G)[0]}) ;nc
L_fs{step}:
""")
        if est:
            for i_, e_ in enumerate(est):
                if e_ is not None and arrived >= e_: stamp(5 + i_); est[i_] = None
        g = min(G, NL - issued)
        while issued + g - 1 - RING > consumed:
            if work[wi][2] > arrived:
                assert not fc
                a(f"s_waitcnt vmcnt({issued - 1 - work[wi][2]})"); arrived = work[wi][2]
            do_work()
        for n in range(issued, issued + g): iss(n)
        if wotrig is not None and wotrig >= 0 and issued <= wotrig < issued + g:
            a(f"s_mov_b64 exec, 1\nv_mov_b32 v82, 1\nds_add_u32 v84, v82 offset:{FLG+28}\ns_mov_b64 exec, -1")
        if fc:
            d = fc["d"]; k0 = fc.get("k0", 2); last = (NL - fc.get("stop", 8) - fc["W"][1]) // G
            if step == k0:
                a("s_waitcnt lgkmcnt(0)\ns_add_u32 s73, s73, 1" + ("" if fc.get("tt", {}).get("notab") else "\nv_mov_b32 v90, s73"))
            if step == fc.get("vw"):
                a("s_mov_b64 exec, vcc\nbuffer_load_dword v91, v84, s[48:51], s52 offen nt\ns_mov_b64 exec, -1"); ops.append(("C", 0))
            if fc.get("wg"):
                tt = fc.get("tt")
                tab = step >= fc.get("kw", 4) and step % fc["CW"] == 0 and step <= last and not opened
                if tt and tt.get("notab"): tab = False
                if tt:
                    st.setdefault("ok", set()); st.setdefault("pend", set())
                    if step >= fc.get("kw", 4):
                        st["cur"] = [6, 8, 10, 34, 42][nw % 5] if tab else 4; assert len(evalq) < 5
                        if tab or not st.get("sl"):
                            a(f"s_memrealtime s[{st['cur']}:{st['cur']+1}]"); st["pend"].add(st["cur"]); st["ok"].discard(st["cur"])
                    if prof and step in tt.get("trt", []): stamp([5, 6, 7][tt["trt"].index(step)])
                for e in [e for e in evalq if e[0] <= done_op]:
                    evalq.remove(e)
                    if tt:
                        if e[2] > tt.get("kstop", 99): continue
                        if e[3] not in st["ok"]:
                            assert not st.get("sl"); a("s_waitcnt lgkmcnt(0)"); st["ok"] |= st["pend"]; st["pend"] = set()
                        a(f"v_sad_u8 v85, v{e[1]}, 0, 0\ns_mov_b32 s62, s{e[3]}\ns_call_b64 s[80:81], {'L_cw' if st.get('ev1') else 'L_cw0'}"); st["ev"] = 1; st["ev1"] = 1
                        if tt.get("gl") and not st.get("gx"): a("s_mov_b32 s70, s75")
                    else: a(f"v_sad_u8 v85, v{e[1]}, 0, 0\ns_movk_i32 s68, {32 * e[2]}\ns_call_b64 s[80:81], L_cw")
                if tab and tt and step > tt.get("kstop", 99):
                    a(f"v_mov_b32 v89, {step}\ns_mov_b64 exec, vcc\nbuffer_store_byte v89, v88, s[12:15], 0 offen\ns_mov_b64 exec, -1"); ops.append(("S", 0))
                elif tab:
                    r_ = [91, 92, 93, 94, 95, 86 if NLT == 0 else 5][nw % 6]; nw += 1; assert len(evalq) < 6
                    a(f"""
v_mov_b32 v89, {step}
s_mov_b64 exec, vcc
buffer_store_byte v89, v88, s[12:15], 0 offen
s_mov_b64 exec, -1
buffer_load_dword v{r_}, v87, s[12:15], 0 offen nt
""")
                    ops.append(("S", 0)); ops.append(("C", 0)); evalq.append((len(ops) - 1, r_, step, st.get("cur")))
            if fc.get("ts"):
                for i_, k_ in enumerate(fc["ts"]):
                    if step == k_ - 1 and not fc.get("tt"): a("s_memrealtime s[34:35]")
                    if step == k_:
                        if not fc.get("tt"): a("s_waitcnt lgkmcnt(0)\ns_add_u32 s34, s34, s75\nv_mov_b32 v{TSR}, s34".replace("{TSR}", str(TSR)))
                        elif st.get("ev1"): a(f"s_add_u32 s65, s75, {round(fc['tt']['U'] * step)}\nv_mov_b32 v{TSR}, s65")
                        else:
                            a(f"s_waitcnt lgkmcnt(0)\nv_mov_b32 v{TSR}, s{st['cur']}"); st["ok"] |= st["pend"]; st["pend"] = set()
                            if fc["tt"].get("gl") == 2 and i_ == 0: a(f"s_sub_u32 s70, s{st['cur']}, {round(fc['tt']['U'] * step)}")
                        a(f"""
v_mov_b32 v97, s73
s_movk_i32 s65, {PGOFF + i_ * 256}
s_cmp_eq_u32 s64, {(5 * i_ + 3) % 32}
s_cselect_b64 exec, 1, 0
buffer_store_dwordx2 v[96:97], v83, s[76:79], s65 offen sc1
s_mov_b64 exec, -1
""".replace("v96", f"v{TSR}").replace("v97", f"v{TSR+1}").replace("v[96:97]", f"v[{TSR}:{TSR+1}]"))
                        ops.append(("S", 0))
                    if step == k_ + d:
                        a(f"s_load_dwordx16 s[16:31], s[40:41], {PGOFF + i_ * 256}\ns_load_dwordx2 s[32:33], s[40:41], s63 offset:{PGOFF + i_ * 256}\ns_memrealtime s[36:37]" if fc.get("tt", {}).get("gl") != 2 else f"s_load_dwordx16 s[16:31], s[40:41], {PGOFF + i_ * 256}"); st["sl"] = 1
                    if step == k_ + d + fc.get("dl", 3):
                        if fc.get("tt", {}).get("gl"):
                            a(f"s_movk_i32 s62, {round(fc['tt']['U'] * k_)}\ns_call_b64 s[80:81], {'L_cx' if st.get('gx') or not fc['tt'].get('gsm') else 'L_cx0'}"); st["gx"] = 1; st["ev"] = 1
                        else: a("s_call_b64 s[80:81], L_cx")
                        st["sl"] = 0
                        if wodl is not None and i_ == len(fc["ts"]) - 1:
                            a(f"s_add_u32 s69, s70, {round(fc['tt']['U'] * ((NL - pat[0][0]) // G)) + wodl}\ns_mov_b64 exec, 1\nv_mov_b32 v82, s69\nds_write_b32 v84, v82 offset:{FLG+48}\ns_mov_b64 exec, -1")
                        if fc.get("tt"):
                            st["ok"] |= st["pend"]; st["pend"] = set()
                            if st["cur"] == 4: a("s_memrealtime s[4:5]"); st["pend"].add(4)
            if k0 <= step <= last - d and fc.get("x", 1):
                a(f"""
s_movk_i32 s65, {PGOFF + step * 256}
s_cmp_eq_u32 s64, {step % 32}
s_cselect_b64 exec, 1, 0
buffer_store_dword v90, v83, s[76:79], s65 offen sc1
s_mov_b64 exec, -1
""")
                ops.append(("S", 0))
            if step >= k0 + d and (step - k0 - d) % fc["C"] == 0:
                if nctl > 0: a("s_call_b64 s[80:81], L_cb"); nctl = 0
                if step <= last and fc.get("x", 1):
                    a(f"s_load_dwordx8 s[4:11], s[40:41], {PGOFF + (step - d) * 256}"); nctl = 1
        issued += g
        for _ in range(WPS):
            if wi < len(work) and work[wi][2] <= arrived and (wi > 0 or issued + G - 1 - RING > consumed):
                do_work()
    if "dpst" in dbg: stamp(5); print("drain work:", work[wi:])
    while wi < len(work):
        need_ = work[wi][2]
        if dp == 1 and wi == len(work) - 1:
            if "dpst" in dbg: stamp(6)
            if dpt == "a": s_sig(FLG + 28)
            a("s_mov_b64 exec, 0xffff")
            for jj in range(8): a(f"ds_write_b128 v8, v[{ACC+4*jj}:{ACC+4*jj+3}] offset:{OP+16*jj}")
            s_sig(FLG + 36)
            s_wait("L_d3", FLG + 44, 4)
            for u in range(4): a(f"ds_read_b128 v[{AQ[u]}:{AQ[u]+3}], v11 offset:{QL+256*u}")
            if dpt == "b": s_sig(FLG + 28)
            R0 = rreg(120)
            def dperm(u, p):
                a(f"v_perm_b32 v{PT+8*(u&1)+p}, v{R0+8*u+2*p+1}, v{R0+8*u+2*p}, s54\nv_perm_b32 v{PT+8*(u&1)+4+p}, v{R0+8*u+2*p+1}, v{R0+8*u+2*p}, s55")
            for i in range(8):
                u = i >> 1
                if i == dpc:
                    s_wait("L_d2", FLG + 36, 4)
                    for u_ in range(4): a(f"ds_read_b32 v{36+2*u_}, v4 offset:{OP+2304*u_}\nds_read_b32 v{37+2*u_}, v4 offset:{OP+2304*u_+16}")
                    if "dpst" in dbg: stamp(7)
                if i == 7: a("s_waitcnt lgkmcnt(0)\nv_pk_add_f32 v[36:37], v[36:37], v[38:39]\nv_pk_add_f32 v[40:41], v[40:41], v[42:43]\nv_pk_add_f32 v[36:37], v[36:37], v[40:41]")
                if i < 7:
                    a(f"s_waitcnt vmcnt({vm_for(7 - i)[0]})")
                    if dpt == f"c{7 - i}": s_sig(FLG + 28)
                    dperm(u, 2 * (i & 1)); dperm(u, 2 * (i & 1) + 1)
                else:
                    a("s_waitcnt vmcnt(2)"); dperm(u, 2); a("s_cmp_lg_u32 s42, 0\ns_waitcnt vmcnt(0)"); dperm(u, 3)
                if i == 1: a("s_waitcnt lgkmcnt(0)")
                if i & 1:
                    for e in range(2): a(f"v_mfma_f32_16x16x32_bf16 v[{28+4*e}:{31+4*e}], v[{AQ[u]}:{AQ[u]+3}], v[{PT+8*(u&1)+4*e}:{PT+8*(u&1)+4*e+3}], {f'v[{28+4*e}:{31+4*e}]' if u else '0'}")
            a("v_add_f32 v28, v28, v36\nv_add_f32 v32, v32, v37")
            assert ops[-1] == ("L", 127)
            a(f"""
v_cvt_pk_bf16_f32 v8, v28, v32
s_cbranch_scc1 L_dp_far
buffer_store_dwordx2 v[8:9], v10, s[76:79], s43 offen
L_dp_done:
""")
            stamp(4)
            if dpw: s_sig(FLG + 40)
            break
        if wi == len(work) - 1 and wotrig is not None and wotrig >= 200:
            a(f"s_waitcnt vmcnt({vm_for(wotrig - 200)[0]})")
            if defer:
                a(f"s_cmp_gt_i32 s75, {defer[0]}\ns_cselect_b32 s59, 0x101, 1\ns_mov_b64 exec, 1\nv_mov_b32 v82, s59\nds_add_u32 v84, v82 offset:{FLG+28}")
                if defer[2] > 60:
                    a("v_mov_b32 v89, 62\ns_mov_b64 exec, vcc\nbuffer_store_byte v89, v88, s[12:15], 0 offen"); ops.append(("S", 0))
                a("s_mov_b64 exec, -1")
            else: a(f"s_mov_b64 exec, 1\nv_mov_b32 v82, 1\nds_add_u32 v84, v82 offset:{FLG+28}\ns_mov_b64 exec, -1")
        if wi == len(work) - 1 and lastopt and "nov" not in dbg:
            v = 7; OB = rreg(112)
            def lp(p, jj): a(f"v_perm_b32 v{OB+4*jj+p}, v{rreg(124+p)+(jj>>1)}, v{rreg(120+p)+(jj>>1)}, {'s55' if jj & 1 else 's54'}")
            def lm(jj): a(f"v_mfma_f32_16x16x32_bf16 v[{ACC+4*jj}:{ACC+4*jj+3}], v[{PA}:{PA+3}], v[{OB+4*jj}:{OB+4*jj+3}], v[{ACC+4*jj}:{ACC+4*jj+3}]")
            def lw(jj): a(f"ds_write_b128 v{8 if dp else 4}, v[{ACC+4*jj}:{ACC+4*jj+3}] offset:{OP+16*jj}")
            if t2:
                def lm(jj): a(f"v_mfma_f32_16x16x32_bf16 v[{ACC+4*(jj>>2)}:{ACC+4*(jj>>2)+3}], v[{PA4+4*(jj&3)}:{PA4+4*(jj&3)+3}], v[{OB+4*jj}:{OB+4*jj+3}], v[{ACC+4*(jj>>2)}:{ACC+4*(jj>>2)+3}]")
                a(f"s_lshl_b32 s59, s3, 11\nv_add_u32 v4, s59, v3")
            elif not dp: a(f"s_mul_i32 s59, s3, 2304\nv_mul_u32_u24 v4, 144, v1\nv_add_u32 v4, s59, v4")
            a("v_mov_b32 v82, 1"); mkpa(v)
            if h2pre and h2pre is not True and h2pre[0] == "y": ztouch()
            for p in range(3):
                a(f"s_waitcnt vmcnt({vm_for(3 - p)[0]})")
                for jj in range(8): lp(p, jj)
            a("s_waitcnt vmcnt(0)")
            if dpp: a(f"s_setprio {dpp}")
            lp(3, 0); lp(3, 1)
            for jj in range(6): lp(3, jj + 2); lm(jj)
            stamp(4)
            if t2:
                lm(6); lm(7)
                a(f"ds_write_b128 v4, v[{ACC}:{ACC+3}] offset:{OP}\nds_write_b128 v4, v[{ACC+4}:{ACC+7}] offset:{OP+1024}")
            else:
                a("s_mov_b64 exec, 0xffff"); lw(0); lm(6); lw(1); lm(7)
                for jj in range(2, 8): lw(jj)
            if dp:
                a(f"""
s_mov_b64 exec, 1
ds_add_u32 v84, v82 offset:{FLG+36}
s_mov_b64 exec, -1
s_mov_b32 s58, {spin*8}
L_d2:
ds_read_b32 v85, v84 offset:{FLG+36}
""")
                for u_ in range(4): a(f"ds_read_b32 v{PT+2*u_}, v4 offset:{OP+2304*u_}\nds_read_b32 v{PT+1+2*u_}, v4 offset:{OP+2304*u_+16}")
                a(f"""
s_waitcnt lgkmcnt(8)
v_readfirstlane_b32 s59, v85
s_sub_u32 s58, s58, 1
s_cbranch_scc1 L_d2_done
s_cmp_lt_u32 s59, 4
s_cbranch_scc1 L_d2
L_d2_done:
s_cmp_lg_u32 s42, 0
s_waitcnt lgkmcnt(4)
v_pk_add_f32 v[{PT}:{PT+1}], v[{PT}:{PT+1}], v[{PT+2}:{PT+3}]
s_waitcnt lgkmcnt(0)
v_pk_add_f32 v[{PT+4}:{PT+5}], v[{PT+4}:{PT+5}], v[{PT+6}:{PT+7}]
v_pk_add_f32 v[{PT}:{PT+1}], v[{PT}:{PT+1}], v[{PT+4}:{PT+5}]
v_cvt_pk_bf16_f32 v8, v{PT}, v{PT+1}
s_cbranch_scc1 L_dp_far
buffer_store_dwordx2 v[8:9], v10, s[76:79], s43 offen
L_dp_done:
""")
                if est: stamp(7)
                if dpw: s_sig(FLG + 40)
            break
        if need_ > arrived:
            r = vm_for(NL - 1 - need_) if fc else (NL - 1 - need_,)
            a(f"s_waitcnt vmcnt({r[0]})"); arrived = need_
        do_work()
    else:
        stamp(4)
        a(f"""
s_mul_i32 s59, s3, 2304
v_mul_u32_u24 v4, 144, v1
v_add_u32 v4, s59, v4
s_mov_b64 exec, 0xffff
""")
        for jj in range(8):
            a(f"ds_write_b128 v4, v[{ACC+4*jj}:{ACC+4*jj+3}] offset:{OP+16*jj}")
    if not dp: a("""
s_mov_b64 exec, -1
s_waitcnt lgkmcnt(0)
s_barrier
""")
    if h2pre and h2pre is not True and h2pre[0] == "z": ztouch()
    if t3: a("s_barrier")
    if wbar: a("s_barrier")
    if lbar: a("s_barrier")
    if dirty:
        a(f"""
s_mov_b32 s44, s40
s_mov_b32 s45, s41
s_mov_b32 s46, 0x10000000
s_mov_b32 s47, 0x20000
s_lshl_b32 s59, s2, 2
s_add_u32 s59, s59, s3
s_mul_i32 s59, s59, {dirty*1024}
s_add_u32 s59, s59, {64 << 20}
s_sleep 64
""")
        for i in range(dirty): a(f"buffer_store_dwordx4 v[28:31], v3, s[44:47], s59 offen\ns_add_u32 s59, s59, 1024")
    if prof:
        a(f"""
s_mov_b32 s44, s40
s_mov_b32 s45, s41
s_mov_b32 s46, 0x10000000
s_mov_b32 s47, 0x20000
s_sleep 127
s_sleep 127
s_sleep 127
s_waitcnt lgkmcnt(0)
s_lshl_b32 s59, s2, 3
s_add_u32 s59, s59, s3
s_lshl_b32 s59, s59, 6
s_add_u32 s59, s59, {STAMP}
v_mov_b32 v4, 0
s_mov_b64 exec, 1
""")
        for i in range(8):
            trt = fc and fc.get("tt", {}).get("trt")
            sr = 82 if (i == 5 and fc and not est and not trt) else 84 + 2 * (i if est or trt else min(i, 4))
            a(f"v_mov_b32 v8, s{sr}\nv_mov_b32 v9, s{sr+1}\nbuffer_store_dwordx2 v[8:9], v4, s[44:47], s59 offen offset:{8*i}\ns_waitcnt vmcnt(0)")
    a("s_endpgm")
    if dp: a("L_dp_far:\nbuffer_store_dwordx2 v[8:9], v10, s[76:79], s43 offen sc1\ns_branch L_dp_done")
    X = 32
    S1 = 12; S2 = 13; T0 = 14; T1 = 15; NM = 16; RS = 18
    W1 = 40; B1 = 47; W2 = 54; HX = 62; U = 66; AA = 73; EE = 80; ACC2 = 87; C1 = 88; YA = 89
    WB = 192
    def srd(base, lo, size): a(f"s_mov_b32 s{base}, s{lo}\ns_mov_b32 s{base+1}, s{lo+1}\ns_mov_b32 s{base+2}, {size}\ns_mov_b32 s{base+3}, 0x20000")
    def bfround(r): a(f"v_cvt_pk_bf16_f32 v{r}, v{r}, v{r}\nv_lshlrev_b32 v{r}, 16, v{r}")
    def stats_finish():
        a(f"""
v_mul_f32 v{S1}, {f32(1/512)}, v{S1}
v_mul_f32 v{S2}, {f32(1/512)}, v{S2}
v_fma_f32 v{S2}, -v{S1}, v{S1}, v{S2}
v_max_f32 v{S2}, 0, v{S2}
""")
        bfround(S1); bfround(S2)
        a(f"v_add_f32 v{S2}, {f32(1e-5)}, v{S2}")
        bfround(S2)
        a(f"v_sqrt_f32 v{S2}, v{S2}")
        bfround(S2)
        a(f"""
v_rcp_f32 v{RS}, v{S2}
v_sub_f32 v{NM}, 0, v{S1}
v_sub_f32 v{NM+1}, 0, v{S1}
v_mov_b32 v{RS+1}, v{RS}
""")
    def swaps_add(r, t):
        a(f"""
v_mov_b32 v{t}, v{r}
v_permlane16_swap_b32 v{r}, v{t}
v_add_f32 v{r}, v{r}, v{t}
v_mov_b32 v{t}, v{r}
v_permlane32_swap_b32 v{r}, v{t}
v_add_f32 v{r}, v{r}, v{t}
""")
    def normalize(src, dst, n, tmp):
        for i0 in range(0, n, 4):
            idx = list(range(i0, min(n, i0 + 4)))
            for i in idx:
                t = tmp + 2 * (i - i0)
                a(f"v_lshlrev_b32 v{t}, 16, v{src+i}\nv_and_b32 v{t+1}, 0xffff0000, v{src+i}")
            for i in idx:
                t = tmp + 2 * (i - i0)
                a(f"v_pk_add_f32 v[{t}:{t+1}], v[{t}:{t+1}], v[{NM}:{NM+1}]")
            for i in idx:
                t = tmp + 2 * (i - i0)
                a(f"v_cvt_pk_bf16_f32 v{t}, v{t}, v{t+1}")
            for i in idx:
                t = tmp + 2 * (i - i0)
                a(f"v_and_b32 v{t+1}, 0xffff0000, v{t}\nv_lshlrev_b32 v{t}, 16, v{t}")
            for i in idx:
                t = tmp + 2 * (i - i0)
                a(f"v_pk_mul_f32 v[{t}:{t+1}], v[{t}:{t+1}], v[{RS}:{RS+1}]")
            for i in idx:
                t = tmp + 2 * (i - i0)
                a(f"v_cvt_pk_bf16_f32 v{dst+i}, v{t}, v{t+1}")
    def lds_wait(lbl, off, cnt, sl=0, msk=False):
        a(f"""
s_mov_b32 s58, {spin*8}
{lbl}:
ds_read_b32 v4, v9 offset:{off}
s_waitcnt lgkmcnt(0)
v_readfirstlane_b32 s59, v4
s_sub_u32 s58, s58, 1
s_cbranch_scc1 {lbl}_done
{"s_and_b32 s27, s59, 255" if msk else ""}
s_cmp_lt_u32 {"s27" if msk else "s59"}, {cnt}
{f"s_sleep {sl}" if sl else ""}
s_cbranch_scc1 {lbl}
{lbl}_done:
""")
    def lds_signal(off):
        a(f"""
s_mov_b64 exec, 1
ds_add_u32 v9, v11 offset:{off}
s_mov_b64 exec, -1
""")
    def orred(ts):
        ts = list(ts)
        while len(ts) > 1:
            if len(ts) >= 3:
                a(f"v_or3_b32 v{ts[0]}, v{ts[0]}, v{ts[1]}, v{ts[2]}"); ts = ts[3:] + [ts[0]]
            else:
                a(f"v_or_b32 v{ts[0]}, v{ts[0]}, v{ts[1]}"); ts = [ts[0]]
        return ts[0]
    def chk8(tags, tmp):
        if b3 and len(tags) % 2 == 0:
            for i in range(len(tags) // 2): a(f"v_bitop3_b32 v{tmp+i}, v{tags[2*i]}, v{tags[2*i+1]}, s12 bitop3:0x7e")
            return orred([tmp + i for i in range(len(tags) // 2)])
        for i, t in enumerate(tags): a(f"v_xor_b32 v{tmp+i}, s12, v{t}")
        return orred([tmp + i for i in range(len(tags))])
    def chk16(bases, tmp, tagreg):
        out = []
        for i, b in enumerate(bases):
            a(f"v_perm_b32 v{tmp+2*i}, v{b+1}, v{b}, s20\nv_perm_b32 v{tmp+2*i+1}, v{b+3}, v{b+2}, s21")
        for i, b in enumerate(bases):
            a(f"v_or_b32 v{tmp+2*i}, v{tmp+2*i}, v{tmp+2*i+1}")
        for i, b in enumerate(bases):
            a(f"v_xor_b32 v{tmp+2*i}, s{tagreg}, v{tmp+2*i}"); out.append(tmp + 2 * i)
        return orred(out)
    def pack16(dst, srcs, tagv):
        for i, r in enumerate(srcs): a(f"v_perm_b32 v{dst+i}, v{r}, v{tagv}, s{16+i}")
    def poll(lbl, loads, chk, fbr=None, post=None, st=None, pipe=1, stag=0, sl=None, mid=None, pre=False):
        if sl is None: sl = slp
        if fbr is not None: a(f"s_mov_b32 s82, s{fbr}\ns_add_u32 s83, s{fbr}, {BD}")
        a(f"s_mov_b32 s58, {spin}")
        for _ in range(pipe - 1):
            for l in loads: a(l)
            if stag: a(f"s_sleep {stag}")
        if mid:
            if not pre:
                for l in loads: a(l)
            mid()
            if "h1vm" in dbg: stamp(4)
            a(f"s_branch {lbl}_chk")
        a(f"{lbl}:")
        if st is not None and (tailprof or (st == 4 and "h1it" in dbg) or (st == 3 and "h2it" in dbg)): stamp(4 if "h2it" in dbg else st)
        for l in loads: a(l)
        if mid: a(f"{lbl}_chk:")
        a(f"s_waitcnt vmcnt({len(loads) * (pipe - 1)})")
        r = chk()
        if post: r = post(r)
        a(f"""
v_cmp_ne_u32 vcc, 0, v{r}
s_sub_u32 s58, s58, 1
s_cbranch_scc1 {lbl}_done
s_and_b64 exec, exec, vcc
s_cbranch_execz {lbl}_done
""")
        if fbr is not None: a(f"s_and_b32 s59, s58, {fb}\ns_cselect_b32 s{fbr}, s82, s83")
        if sl: a(f"s_sleep {sl}")
        a(f"""
s_branch {lbl}
{lbl}_done:
s_mov_b64 exec, -1
""")
    a("""; ---------------- helper waves
L_helper:
s_load_dwordx16 s[16:31], s[0:1], 0
s_load_dwordx8 s[32:39], s[0:1], 64
s_load_dwordx2 s[40:41], s[0:1], 96
v_and_b32 v3, 15, v0
v_lshlrev_b32 v3, 2, v3
v_mov_b32 v4, 0
ds_write_b32 v3, v4
s_setprio 3
s_sub_u32 s3, s3, 4
s_waitcnt lgkmcnt(0)
""")
    if "probe" in dbg:
        srd(52, 40, 0x10000000)
        pl = "probel" in dbg
        a(f"""
s_cmp_lt_u32 s3, 2
s_cbranch_scc1 L_noprobe
s_and_b32 s4, s3, 1
s_lshl_b32 s4, s4, 13
s_lshl_b32 s5, s2, 14
s_add_u32 s4, s4, s5
s_add_u32 s4, s4, {8 << 20}
s_mov_b64 exec, 1
s_memtime s[76:77]
s_waitcnt lgkmcnt(0)
{"s_load_dword s5, s[40:41], s4 offset:128" if "probew" in dbg else ""}
s_waitcnt lgkmcnt(0)
{"s_memtime s[76:77]" if "probew" in dbg else ""}
s_waitcnt lgkmcnt(0)
{"s_load_dword s5, s[40:41], s4" if "probes" in dbg else "buffer_load_dword v5, v4, s[52:55], s4 offen sc1" if pl else "buffer_store_dword v4, v4, s[52:55], s4 offen sc1"}
s_waitcnt vmcnt(0) lgkmcnt(0)
s_memtime s[78:79]
s_waitcnt lgkmcnt(0)
s_sub_u32 s98, s78, s76
s_mov_b32 s99, 0
s_mov_b64 exec, -1
L_noprobe:
""")
    if near: a(f"s_cmp_lt_u32 s2, {8 * near['nw']}\ns_cbranch_scc1 L_meas\nL_meas_done:")
    if "s" in warm:
        a("""
s_and_b32 s4, s2, 7
s_lshl_b32 s4, s4, 20
s_lshr_b32 s5, s2, 5
s_lshl_b32 s5, s5, 23
s_or_b32 s4, s4, s5
s_load_dword s76, s[20:21], s4
s_and_b32 s4, s2, 4
s_lshl_b32 s4, s4, 19
s_load_dword s77, s[24:25], s4
s_load_dword s78, s[36:37], 0
s_load_dword s79, s[38:39], 0
""")
    if "m" in warm:
        a("""
s_load_dword s76, s[16:17], 0
s_load_dword s77, s[22:23], 0
s_load_dword s78, s[22:23], 0x200000
s_load_dword s79, s[28:29], 0
s_load_dword s76, s[30:31], 0
s_load_dword s77, s[32:33], 0
s_load_dword s78, s[34:35], 0
""".replace("0x200000", "0xffffc"))
    srd(44, 16, 8192); srd(48, 22, 0x400000); srd(52, 40, 0x10000000); srd(56, 24, 0x400000)
    srd(60, 28, 3584); srd(64, 30, 3584); srd(68, 32, 3584)
    a(f"""
v_lshrrev_b32 v5, 4, v1
v_and_b32 v6, 7, v1
v_and_b32 v8, 15, v1
v_lshrrev_b32 v7, 5, v1
v_and_b32 v4, 31, v1
v_lshlrev_b32 v4, 4, v4
v_lshl_add_u32 v2, v7, 10, v4
s_lshl_b32 s6, s3, 11
v_mov_b32 v9, 0
v_mov_b32 v11, 1
v_lshrrev_b32 v20, 3, v1
v_lshlrev_b32 v21, 13, v20
v_lshl_add_u32 v21, v6, 4, v21
v_lshlrev_b32 v22, {12 if t2 else 10}, v20
v_lshl_add_u32 v22, v6, 4, v22
s_and_b32 s15, s2, 7
s_lshr_b32 s14, s2, 3
s_add_u32 s4, s14, {rq}
s_and_b32 s4, s4, 7
s_add_u32 s14, s14, {ro}
s_and_b32 s14, s14, 7
s_lshl_b32 s8, s15, 3
s_add_u32 s8, s8, s4
s_lshr_b32 s9, s2, 6
s_lshl_b32 s4, s9, 2
s_add_u32 s4, s4, s3
s_lshl_b32 s4, s4, 18
s_lshl_b32 s5, s8, 7
s_add_u32 s72, s4, s5
s_lshl_b32 s13, s15, 2
s_add_u32 s13, s13, s9
s_lshl_b32 s4, s13, {7 if t3 else 2}
s_add_u32 s4, s4, s3
s_lshl_b32 s4, s4, {10 if t3 else 15}
s_lshl_b32 s5, s14, 7
s_add_u32 s73, s4, s5
s_lshl_b32 s4, s3, 12
s_add_u32 s74, s4, {WQL}
s_mul_i32 s75, s3, 896
v_lshlrev_b32 v23, 1, v1
s_barrier
""")
    if "nohelp" in dbg: a("s_branch L_pre2")
    if hdel: a(f"s_sleep {hdel}")
    a(f"""
buffer_load_dwordx4 v[{X}:{X+3}], v2, s[44:47], s6 offen
buffer_load_dwordx4 v[{X+4}:{X+7}], v2, s[44:47], s6 offen offset:512
{"s_load_dword s42, s[40:41], 0" if sE else "buffer_load_dword v10, v9, s[52:55], 0 offen sc1"}
""")
    def h2touch():
        stp = h2pre[1]
        if stp == "v":
            a(f"s_lshl_b32 s4, s2, 2\ns_add_u32 s4, s4, s3\ns_lshl_b32 s4, s4, 9\ns_add_u32 s4, s4, {H2OFF}\nv_lshlrev_b32 v94, 3, v1\nbuffer_load_dwordx2 v[94:95], v94, s[52:55], s4 offen {h2pre[2]}")
            return
        a(f"s_lshl_b32 s4, s2, 2\ns_add_u32 s4, s4, s3\ns_lshl_b32 s4, s4, 9\ns_add_u32 s4, s4, {H2OFF}")
        for i in range(512 // stp): a(f"s_load_dword s{96 + (i & 3) if not prof else 27}, s[40:41], s4 offset:{i * stp}")
    if h2pre and h2pre is not True and h2pre[0] == "e": h2touch()
    if "nowq" in dbg: a("s_mov_b32 s50, 0\ns_mov_b32 s58, 0")
    if wqdel: a(f"s_sleep {wqdel}")
    for t in range(4):
        a(f"s_add_u32 m0, s74, {t*1024}\ns_nop 0\nbuffer_load_dwordx4 v21, s[48:51], s72 offen nt lds")
        if t < 3: a(f"s_add_u32 s72, s72, {8*8192}")
    def wodma(t, vr, so, sl):
        if wosw and t & 1: vr = 152
        a(f"s_add_u32 m0, s{sl}, {16384+t*1024}\ns_nop 0\nbuffer_load_dwordx4 v{vr}, {'s[56:59]' if wolate is None else 's[68:71]'}, s{so} offen nt lds")
        if t < 3: a(f"s_add_u32 s{so}, s{so}, {32768 if t3 else 1024 if t2 else 8*1024}")
    if wolate is None:
        for t in range(4): wodma(t, 22, 73, 74)
    else:
        if wosw: a("v_and_b32 v90, 1, v5\nv_lshlrev_b32 v90, 5, v90\nv_xor_b32 v90, v90, v22\nv_xor_b32 v152, 64, v90\ns_mov_b32 s22, s73\ns_mov_b32 s23, s74")
        else: a("v_mov_b32 v90, v22\ns_mov_b32 s22, s73\ns_mov_b32 s23, s74")
    NW = 0 if wolate is None else 4
    for t in range(7):
        a(f"buffer_load_ushort v{W1+t}, v23, s[60:63], s75 offen offset:{128*t}")
        a(f"buffer_load_ushort v{B1+t}, v23, s[64:67], s75 offen offset:{128*t}")
        a(f"buffer_load_ushort v{W2+t}, v23, s[68:71], s75 offen offset:{128*t}")
    srd(60, 34, 2); srd(64, 36, 8192); srd(68, 24, 0 if ('nowq' in dbg or 'nowo2' in dbg) else 0x400000)
    a(f"""
v_and_b32 v30, 3, v1
v_lshlrev_b32 v30, {3 if t3 else 1}, v30
v_lshl_add_u32 v30, v5, {1 if t3 else 5}, v30
""" + ("s_lshl_b32 s10, s2, 5" if t3 else """s_lshr_b32 s10, s2, 2
s_lshl_b32 s10, s10, 7
s_and_b32 s4, s2, 3
s_lshl_b32 s4, s4, 3
s_add_u32 s10, s10, s4""") + f"""
buffer_load_ushort v31, v9, s[60:63], 0 offen
buffer_load_ushort v29, v30, s[44:47], s10 offen
s_mov_b32 s16, 0x07060500
s_mov_b32 s17, 0x07060501
s_mov_b32 s18, 0x07060502
s_mov_b32 s19, 0x07060503
s_mov_b32 s20, 0x0c0c0400
s_mov_b32 s21, 0x04000c0c
s_getreg_b32 s43, hwreg(HW_REG_XCC_ID, 0, 4)
s_lshl_b32 s43, s43, 3
s_add_u32 s43, s43, s15
s_lshl_b32 s43, s43, 7
s_add_u32 s43, s43, {LOCOFF}
s_lshr_b32 s59, s2, 3
s_lshl_b32 s59, s59, 2
s_add_u32 s59, s59, s43
s_mov_b32 s11, 0x3f803f80
v_mov_b32 v{S1}, 0
v_mov_b32 v{S2}, 0
s_waitcnt lgkmcnt(0)
s_add_u32 s42, s42, 1
s_mul_i32 s12, s42, 0x01010101
v_mov_b32 v10, s12
s_cmp_eq_u32 s3, 0
s_cselect_b64 exec, 1, 0
buffer_store_dword v10, v9, s[52:55], s59 offen
s_mov_b64 exec, -1
s_waitcnt vmcnt({32 - NW + (1 if h2pre and h2pre is not True and h2pre[:2] == ('e', 'v') else 0)})
""")
    for i in range(8):
        a(f"v_dot2_f32_bf16 v{S1}, v{X+i}, s11, v{S1}")
        a(f"v_dot2_f32_bf16 v{S2}, v{X+i}, v{X+i}, v{S2}")
    for n in (8, 4, 2, 1):
        a(f"v_add_f32_dpp v{S1}, v{S1}, v{S1} row_ror:{n} row_mask:0xf bank_mask:0xf")
        a(f"v_add_f32_dpp v{S2}, v{S2}, v{S2} row_ror:{n} row_mask:0xf bank_mask:0xf")
    a(f"""
v_mov_b32 v{T0}, v{S1}
v_mov_b32 v{T1}, v{S2}
v_permlane16_swap_b32 v{S1}, v{T0}
v_permlane16_swap_b32 v{S2}, v{T1}
v_add_f32 v{S1}, v{S1}, v{T0}
v_add_f32 v{S2}, v{S2}, v{T1}
""")
    stats_finish()
    normalize(X, X, 8, 20)
    a(f"""
s_mul_i32 s4, s3, {2*XRS}
v_mul_u32_u24 v2, {XRS}, v7
v_add3_u32 v2, v2, v4, s4
ds_write_b128 v2, v[{X}:{X+3}] offset:{XN}
ds_write_b128 v2, v[{X+4}:{X+7}] offset:{XN+512}
v_mul_u32_u24 v2, {XRS}, v6
v_lshl_add_u32 v2, v5, 4, v2
s_lshl_b32 s4, s9, 8
v_add_u32 v2, s4, v2
v_bfe_u32 v3, v1, 2, 2
v_lshl_add_u32 v3, v5, 3, v3
v_lshlrev_b32 v3, 7, v3
v_and_b32 v20, 3, v1
v_lshl_add_u32 v3, v20, 3, v3
s_lshl_b32 s4, s3, 5
v_add_u32 v24, s4, v3
s_waitcnt vmcnt(24) lgkmcnt(0)
""")
    lds_signal(FLG + 8)
    a(f"""
v_and_b32 v27, 31, v1
v_lshlrev_b32 v27, 2, v27
buffer_load_dword v150, v27, s[52:55], s43 offen nt
v_lshlrev_b32 v25, 4, v5
v_lshl_add_u32 v25, v6, 11, v25
s_lshr_b32 s4, s8, 1
s_lshl_b32 s4, s4, 5
s_add_u32 s4, s4, s9
s_lshl_b32 s4, s4, 1
s_and_b32 s5, s8, 1
s_add_u32 s4, s4, s5
s_lshl_b32 s4, s4, 2
s_add_u32 s4, s4, s3
s_lshl_b32 s4, s4, 6
s_add_u32 s72, s4, {QOFF}
s_mov_b32 s26, 0
""")
    if qprew: a("v_not_b32 v132, v10\nv_not_b32 v133, v10\nv_not_b32 v134, v10\nv_not_b32 v135, v10\ns_mov_b32 exec_lo, 0x00ff00ff\ns_mov_b32 exec_hi, 0x00ff00ff\nbuffer_store_dwordx4 v[132:135], v25, s[52:55], s72 offen\ns_mov_b64 exec, -1")
    lds_wait("L_xw", FLG + 8, 4)
    for t in range(4):
        a(f"ds_read_b128 v[{96+4*t}:{99+4*t}], v2 offset:{XN+64*t}")
        for u in range(2): a(f"ds_read_b64_tr_b16 v[{112+4*t+2*u}:{113+4*t+2*u}], v24 offset:{WQL+t*4096+u*512}")
    a("s_waitcnt lgkmcnt(0)")
    stamp(1)
    for t in range(4):
        a(f"v_mfma_f32_16x16x32_bf16 v[128:131], v[{112+4*t}:{115+4*t}], v[{96+4*t}:{99+4*t}], {'0' if t == 0 else 'v[128:131]'}")
    pack16(132, [128, 129, 130, 131], 10)
    Q2OFF = H1OFF + 128 * H1S
    if qf: a(f"""
v_perm_b32 v136, v129, v128, s20
v_perm_b32 v137, v131, v130, s21
v_lshrrev_b32 v138, 1, v25
v_or_b32 v136, v136, v137
v_mov_b32 v137, v10
s_lshr_b32 s73, s72, 1
s_add_u32 s73, s73, {Q2OFF - QOFF // 2}
""")
    if "cutq" in dbg: a("s_branch L_pre2")
    a(f"""
s_movk_i32 s58, {nloc}
L_lc:
s_waitcnt vmcnt(0)
v_cmp_ne_u32 vcc, s12, v150
s_cbranch_vccz L_lc_done
buffer_load_dword v150, v27, s[52:55], s43 offen nt
s_sub_u32 s58, s58, 1
s_cbranch_scc0 L_lc
s_mov_b32 s26, 1
L_lc_done:
{"s_mov_b32 s26, 1" if clean else ""}
{"s_and_b32 s26, s3, 1" if "mixw" in dbg else ""}
{"s_bfe_u32 s26, s2, 0x10003" if "mixj" in dbg else ""}
s_mov_b32 exec_lo, 0x00ff00ff
s_mov_b32 exec_hi, 0x00ff00ff
s_cmp_lg_u32 s26, 0
s_cbranch_scc1 L_qs_far
buffer_store_dwordx4 v[132:135], v25, s[52:55], s72 offen
{"buffer_store_dwordx2 v[136:137], v138, s[52:55], s73 offen" if qf else ""}
L_qs_done:
s_mov_b64 exec, -1
""")
    if near: a(f"s_lshl_b32 s4, s3, 8\ns_add_u32 s4, s4, s2\ns_sub_u32 s4, s4, 512\ns_cmp_lt_u32 s4, {8 * near['nw']}\ns_cbranch_scc1 L_mpub\nL_mpub_done:")
    if "cutp" in dbg: a("s_branch L_pre2")
    stamp(2)
    a(f"s_setprio {bgprio}")
    def woread(vr, kks=None):
        if own1:
            for kk in (kks or [1, 2, 3]):
                for nt_ in range(4):
                    for u in range(2): a(f"ds_read_b64_tr_b16 v[{WB+16*nt_+4*kk+2*u}:{WB+16*nt_+4*kk+2*u+1}], v{176+4*kk+nt_} offset:{WQL+16384+u*512}")
            return
        if t3:
            for nt_ in range(4):
                for u in range(2): a(f"ds_read_b64_tr_b16 v[{WB+4*nt_+2*u}:{WB+4*nt_+2*u+1}], v{153+nt_} offset:{WQL+16384+u*512}")
            return
        for nt_ in range(4):
            for kk in range(4):
                for u in range(2):
                    r = WB + 16 * nt_ + 4 * kk + 2 * u
                    if wosw: a(f"ds_read_b64_tr_b16 v[{r}:{r+1}], v{153+nt_} offset:{WQL+16384+kk*4096+u*512}")
                    else: a(f"ds_read_b64_tr_b16 v[{r}:{r+1}], v{vr} offset:{WQL+16384+kk*4096+u*512+nt_*32}")
    if wolate is None: woread(3)
    elif wosw: a("v_bfe_u32 v153, v1, 3, 2\nv_lshl_add_u32 v153, v153, 5, v3\n" + ("s_lshl_b32 s4, s3, 12\nv_add_u32 v153, s4, v153\n" if t3 else "") + "v_xor_b32 v154, 32, v153\nv_xor_b32 v155, 64, v153\nv_xor_b32 v156, 0x60, v153")
    else: a("v_mov_b32 v91, v3")
    a(f"""
s_lshr_b32 s4, s2, 5
s_mul_i32 s4, s4, {XRS}
v_lshl_add_u32 v2, v1, 4, s4
ds_read_b128 v[{HX}:{HX+3}], v2 offset:{XN}
v_mov_b32 v{S1}, 0
v_mov_b32 v{S2}, 0
s_waitcnt lgkmcnt(0)
""")
    for i in range(4):
        a(f"v_dot2_f32_bf16 v{S1}, v{HX+i}, s11, v{S1}")
        a(f"v_dot2_f32_bf16 v{S2}, v{HX+i}, v{HX+i}, v{S2}")
    for n in (8, 4, 2, 1):
        a(f"v_add_f32_dpp v{S1}, v{S1}, v{S1} row_ror:{n} row_mask:0xf bank_mask:0xf")
        a(f"v_add_f32_dpp v{S2}, v{S2}, v{S2} row_ror:{n} row_mask:0xf bank_mask:0xf")
    swaps_add(S1, T0); swaps_add(S2, T1)
    stats_finish()
    normalize(HX, HX, 4, 20)
    if t3:
        a("s_and_b32 s4, s2, 31\ns_lshl_b32 s4, s4, 1")
        for i in range(4): a(f"v_readlane_b32 s{72+i}, v{HX+i}, s4")
        a("s_add_u32 s4, s4, 1")
        for i in range(4): a(f"v_readlane_b32 s{76+i}, v{HX+i}, s4")
    else: a(f"""
s_bitcmp1_b32 s2, 0
s_cselect_b64 vcc, -1, 0
s_bfe_u32 s4, s2, 0x30002
s_lshl_b32 s4, s4, 3
s_bfe_u32 s5, s2, 0x10001
s_add_u32 s4, s4, s5
v_cndmask_b32 v{HX}, v{HX}, v{HX+2}, vcc
v_cndmask_b32 v{HX+1}, v{HX+1}, v{HX+3}, vcc
""")
    for i in range(0 if t3 else 4):
        a(f"v_readlane_b32 s{72+2*i}, v{HX}, s4\nv_readlane_b32 s{73+2*i}, v{HX+1}, s4")
        if i < 3: a("s_add_u32 s4, s4, 2")
    a("s_waitcnt vmcnt(2)")
    for i in range(21): a(f"v_lshlrev_b32 v{W1+i}, 16, v{W1+i}")
    c0 = -2 * LOG2E * math.sqrt(2 / math.pi); c1 = c0 * 0.044715
    a(f"""
v_mov_b32 v{C1}, {f32(c1)}
s_lshl_b32 s4, s3, 6
v_mov_b32 v{YA}, s4
""")
    def mlp_steps(lo, hi):
        for d in range(lo, hi):
            if d & 1: a(f"s_and_b32 s4, s{72+(d>>1)}, 0xffff0000")
            else: a(f"s_lshl_b32 s4, s{72+(d>>1)}, 16")
            if "nomlp" not in dbg: a("s_call_b64 s[80:81], L_mlp")
            if wolate is not None and wotrig is None and d in wolate: wodma(wolate.index(d), 90, 22, 23)
    mlp_steps(0, mlp1)
    a("; gather the four K-split partials of q (head = helper index) and hand q to the stream waves through LDS")
    a(f"""
s_setprio 3
s_lshr_b32 s4, s2, 5
s_lshl_b32 s4, s4, 11
s_lshl_b32 s5, s15, 2
s_add_u32 s5, s5, s3
s_lshl_b32 s5, s5, 14
s_add_u32 s4, s4, s5
s_add_u32 s6, s4, {QOFF}
v_lshlrev_b32 v2, 4, v1
{f"v_lshlrev_b32 v138, 3, v1" if qf else ""}
{f"s_lshr_b32 s7, s4, 1" if qf else ""}
{f"s_add_u32 s7, s7, {Q2OFF}" if qf else ""}
s_cmp_lg_u32 s26, 0
s_cbranch_scc1 L_gq_far
""")
    def qchk():
        r = chk16([96, 100], 104, 12)
        if qf: a(f"v_bitop3_b32 v108, v113, v115, s12 bitop3:0x7e\nv_or_b32 v{r}, v{r}, v108")
        return r
    def qpoll(sfx, fl):
        poll("L_gq" + sfx, [f"buffer_load_dwordx4 v[{96+4*k}:{99+4*k}], v2, s[52:55], s6 offen offset:{1024*k} {fl}" for k in range(2)]
             + ([f"buffer_load_dwordx2 v[{112+2*k}:{113+2*k}], v138, s[52:55], s7 offen offset:{512*k} {fl}" for k in range(2)] if qf else []),
             qchk, sl=qslp)
    qpoll("", "nt")
    a("L_gq_got:")
    if qf:
        a("; put the low mantissa bytes (sent in their own tagged granule) back: the partials are summed in full f32")
        for i in range(8): a(f"v_perm_b32 v{96+i}, v{96+i}, v{112+2*(i>>2)}, s{16+(i&3)}")
    else:
        for i in range(8): a(f"v_and_b32 v{96+i}, 0xffffff00, v{96+i}")
    for i in range(4): a(f"v_add_f32 v{96+i}, v{96+i}, v{100+i}")
    a(f"""
s_lshl_b32 s4, s3, 8
v_and_b32 v2, 31, v1
v_lshl_add_u32 v2, v2, 3, s4
v_lshl_add_u32 v2, v7, 2, v2
v_permlane32_swap_b32 v96, v98
v_permlane32_swap_b32 v97, v99
v_add_f32 v96, v96, v98
v_add_f32 v97, v97, v99
v_cvt_pk_bf16_f32 v96, v96, v97
ds_write_b32 v2, v96 offset:{QL}
s_waitcnt lgkmcnt(0)
""")
    lds_signal(FLG + 4)
    stamp(3)
    if "cutg" in dbg: a("s_branch L_pre2")
    a(f"s_setprio {bgprio}")
    if h2pre and h2pre is not True and h2pre[0] == "q": h2touch()
    mlp_steps(mlp1, 16)
    a("s_waitcnt vmcnt(0) lgkmcnt(0)")
    lds_signal(FLG + 12)
    a(f"""
v_lshrrev_b32 v2, 2, v1
v_mul_u32_u24 v20, 144, v2
v_and_b32 v3, 3, v1
v_lshl_add_u32 v20, v3, 5, v20
s_lshl_b32 s4, s3, 2
s_add_u32 s4, s4, {OP}
v_add_u32 v20, s4, v20
v_add_u32 v21, 2304, v20
v_add_u32 v22, 4608, v20
v_add_u32 v23, 6912, v20
s_lshl_b32 s4, s3, 3
v_mov_b32 v24, s4
v_lshrrev_b32 v25, 5, v1
v_lshlrev_b32 v25, 7, v25
v_bfe_u32 v2, v1, 4, 1
v_lshl_add_u32 v25, v2, 11, v25
v_bfe_u32 v2, v1, 1, 1
v_lshl_add_u32 v25, v2, 10, v25
v_bfe_u32 v2, v1, 2, 2
v_lshl_add_u32 v25, v2, 8, v25
v_and_b32 v2, 1, v1
v_lshl_add_u32 v25, v2, 3, v25
v_lshlrev_b32 v26, 4, v1
v_and_b32 v2, 1, v5
v_lshl_add_u32 v27, v2, 2, v3
v_lshlrev_b32 v27, 4, v27
v_lshlrev_b32 v28, {6 if h2full else 16}, v2
v_bfe_u32 v2, v1, 2, 2
v_lshl_add_u32 v28, v2, {12 if h2full else 11}, v28
v_lshl_add_u32 v28, v3, 4, v28
v_lshrrev_b32 v19, 2, v1
v_lshlrev_b32 v19, {7 if h2full else 6}, v19
v_lshl_add_u32 v19, v3, 4, v19
s_lshl_b32 s4, s15, 2
s_add_u32 s4, s4, s3
s_lshl_b32 s4, s4, 2
s_add_u32 s4, s4, s9
s_mul_i32 s4, s4, {H1S}
s_bfe_u32 s5, s2, 0x30003
s_lshl_b32 s5, s5, 4
s_add_u32 s4, s4, s5
s_add_u32 s6, s4, {H1OFF}
s_lshl_b32 s4, s13, 2
s_add_u32 s4, s4, s3
s_mul_i32 s4, s4, {H1S}
s_add_u32 s7, s4, {H1OFF}
s_lshl_b32 s4, s3, {5 if h2full else 6}
s_lshl_b32 s5, s14, 2
s_add_u32 s4, s4, s5
s_lshl_b32 s4, s4, {12 if h2full else 11}
s_lshl_b32 s5, s13, {7 if h2full else 6}
s_add_u32 s4, s4, s5
s_add_u32 s8, s4, {H2OFF}
""")
    if t2: a(f"""
v_lshlrev_b32 v20, 4, v8
v_lshl_add_u32 v20, v5, 2, v20
s_lshl_b32 s4, s3, 8
s_add_u32 s4, s4, {OP}
v_add_u32 v20, s4, v20
v_lshlrev_b32 v24, 3, v5
v_mul_u32_u24 v25, {4*H1S}, v5
v_lshl_add_u32 v25, v8, 3, v25
s_lshl_b32 s4, s15, 4
s_add_u32 s4, s4, s9
s_mul_i32 s4, s4, {H1S}
s_bfe_u32 s5, s2, 0x30003
s_lshl_b32 s5, s5, 9
s_add_u32 s4, s4, s5
s_lshl_b32 s5, s3, 7
s_add_u32 s4, s4, s5
s_add_u32 s28, s4, {H1OFF}
v_bfe_u32 v2, v1, 3, 1
v_lshlrev_b32 v26, 11, v2
v_lshl_add_u32 v26, v5, 7, v26
v_lshl_add_u32 v26, v6, 4, v26
v_lshl_add_u32 v27, v2, 2, v3
v_lshlrev_b32 v27, 4, v27
v_lshlrev_b32 v28, 16, v7
v_bfe_u32 v2, v1, 2, 2
v_lshl_add_u32 v28, v2, 11, v28
v_lshl_add_u32 v28, v3, 4, v28
s_lshl_b32 s29, s3, 4
""")
    if own1:
        a("s_lshl_b32 s4, s3, 1\nv_add_u32 v2, s4, v6\nv_and_b32 v2, 7, v2\nv_and_b32 v26, 0xffffff8f, v26\nv_lshl_add_u32 v26, v2, 4, v26")
        for kk in range(4):
            a(f"s_add_u32 s4, s3, {kk}\ns_and_b32 s4, s4, 3\ns_lshl_b32 s4, s4, 12")
            for nt_ in range(4): a(f"v_add_u32 v{176+4*kk+nt_}, s4, v{153+nt_}")
    RBB = WQL
    if t3:
        a(f"""
v_mul_u32_u24 v25, {4*H1S}, v5
v_lshrrev_b32 v2, 1, v8
v_lshl_add_u32 v25, v2, 7, v25
v_and_b32 v2, 1, v1
v_lshl_add_u32 v25, v2, 3, v25
s_lshl_b32 s4, s15, 4
s_add_u32 s4, s4, s3
s_mul_i32 s4, s4, {H1S}
s_bfe_u32 s5, s2, 0x20003
s_lshl_b32 s5, s5, 10
s_add_u32 s4, s4, s5
s_lshr_b32 s5, s2, 5
s_lshl_b32 s5, s5, 4
s_add_u32 s4, s4, s5
s_add_u32 s28, s4, {H1OFF}
v_lshlrev_b32 v26, 4, v1
v_bfe_u32 v2, v1, 3, 2
v_mul_u32_u24 v27, {H1S}, v2
v_lshl_add_u32 v27, v6, 4, v27
s_mul_i32 s30, s13, {4*H1S}
s_add_u32 s30, s30, {H1OFF}
v_lshrrev_b32 v2, 2, v1
v_lshlrev_b32 v28, 16, v2
v_lshl_add_u32 v28, v3, 4, v28
s_lshl_b32 s4, s14, 2
s_add_u32 s4, s4, s3
s_lshl_b32 s4, s4, 11
s_lshl_b32 s5, s13, 6
s_add_u32 s4, s4, s5
s_add_u32 s8, s4, {H2OFF}
v_mul_u32_u24 v21, 320, v5
v_lshl_add_u32 v21, v8, 4, v21
s_mul_i32 s4, s3, 2560
v_add_u32 v21, s4, v21
v_mul_u32_u24 v22, 320, v3
v_and_b32 v2, 7, v2
v_lshl_add_u32 v22, v2, 4, v22
s_lshr_b32 s4, s3, 1
s_mul_i32 s4, s4, 1280
s_and_b32 s5, s3, 1
s_lshl_b32 s5, s5, 7
s_add_u32 s4, s4, s5
v_add_u32 v22, s4, v22
v_lshlrev_b32 v23, 4, v6
""")
        if t3 == 2: a(f"""
v_mul_u32_u24 v25, {4*H1S}, v5
v_lshl_add_u32 v25, v8, 3, v25
s_lshr_b32 s5, s2, 5
s_mul_i32 s5, s5, 112
s_add_u32 s28, s28, s5
v_lshrrev_b32 v23, 3, v1
v_lshlrev_b32 v23, 4, v23
v_lshlrev_b32 v184, 5, v6
v_lshl_add_u32 v184, v5, 3, v184
v_add_u32 v185, 4, v184
s_mov_b32 s32, 0x00ff00ff
s_mov_b32 s33, 0x00ff00ff
""")
        for i in range(8 if t3 == 1 else 0): a(f"v_mov_b32 v{176+i}, 0")
    if not h2full: a("s_lshl_b32 s9, s2, 11")
    else: a("""
s_lshr_b32 s9, s2, 6
s_lshl_b32 s9, s9, 5
s_and_b32 s4, s2, 31
s_add_u32 s9, s9, s4
s_lshl_b32 s9, s9, 12
s_bfe_u32 s4, s2, 0x10005
s_lshl_b32 s4, s4, 6
s_add_u32 s9, s9, s4
""")
    h2l = [f"buffer_load_dwordx4 v[{136+4*k}:{139+4*k}], v19, s[52:55], s9 offen offset:{(2048 if h2full else 1024)*k} {h2fl}" for k in range(2)]
    a(f"""
s_add_u32 s9, s9, {H2OFF}
""")
    if near:
        a(f"s_mov_b32 s5, {CWOFF}\nv_and_b32 v2, {8 * near['nw'] - 1}, v1\nv_lshlrev_b32 v2, 3, v2")
        poll("L_cwp", ["buffer_load_dwordx2 v[94:95], v2, s[52:55], s5 offen sc1"], lambda: chk8([95], 80), sl=4)
        a(f"""
v_sub_u32 v95, 0, v94
v_cmp_gt_u32 vcc, 4, v6
v_cndmask_b32 v94, v95, v94, vcc
v_add_u32_dpp v94, v94, v94 row_ror:8 row_mask:0xf bank_mask:0xf
v_add_u32_dpp v94, v94, v94 row_ror:4 row_mask:0xf bank_mask:0xf
v_add_u32_dpp v94, v94, v94 row_ror:2 row_mask:0xf bank_mask:0xf
v_add_u32_dpp v94, v94, v94 row_ror:1 row_mask:0xf bank_mask:0xf
v_readfirstlane_b32 s4, v94
s_cmp_gt_i32 s4, 0
s_cselect_b32 s4, {0x2000 if not near.get("inv") else 0}, {0x2000 if near.get("inv") else 0}
s_xor_b32 s8, s8, s4
s_xor_b32 s9, s9, s4
""")
    if h2pre and h2pre is not True and h2pre[0] == "m": h2touch()
    if wolate is not None and wotrig is None:
        lds_wait("L_yw", FLG + 12, 4); woread(91)
    if not fin: a("""
s_cmp_lg_u32 s3, 0
s_cbranch_scc1 L_ready
""")
    if wolate is None or wotrig is not None: lds_wait("L_yw", FLG + 12, 4)
    if h2pre is True:
        for l in h2l: a(l)
    if "o" in warm: a("buffer_load_ushort v94, v30, s[64:67], s10 offen")
    if tlbw: a(f"s_mov_b32 s4, {H2OFF + (1 << 20) - 4096}\nbuffer_load_dword v94, v9, s[52:55], s4 offen")
    a(f"""
{"v_lshl_add_u32 v2, v3, 2, v5" if t3 else "v_lshl_add_u32 v2, v5, 2, v3"}
v_lshlrev_b32 v2, 2, v2
ds_read_b32 v32, v2 offset:{YP}
ds_read_b32 v33, v2 offset:{YP+64}
ds_read_b32 v34, v2 offset:{YP+128}
ds_read_b32 v35, v2 offset:{YP+192}
v_lshlrev_b32 v31, 16, v31
s_waitcnt lgkmcnt(0)
v_add_f32 v32, v32, v33
v_add_f32 v34, v34, v35
v_add_f32 v32, v32, v34
v_cvt_pk_bf16_f32 v32, v32, v32
v_lshlrev_b32 v32, 16, v32
v_add_f32 v32, v32, v31
v_cvt_pk_bf16_f32 v32, v32, v32
v_lshlrev_b32 v32, 16, v32
v_mul_f32 v34, {f32(-LOG2E)}, v32
v_exp_f32 v34, v34
v_add_f32 v34, 1.0, v34
v_rcp_f32 v34, v34
v_mul_f32 v32, v32, v34
v_cvt_pk_bf16_f32 v32, v32, v32
v_lshlrev_b32 v16, 16, v32
v_lshlrev_b32 v14, 16, v29
L_ready:
""")
    if "cuts" in dbg: a("s_branch L_pre2")
    a("; softmax statistics: merge the four waves, publish {max, sum}, fetch the group's statistics, form the split weights")
    lds_wait("L_sw", FLG + 16, 4, sl=8)
    a(f"""
ds_read_b64 v[32:33], v24 offset:{ST}
ds_read_b64 v[34:35], v24 offset:{ST+32}
ds_read_b64 v[36:37], v24 offset:{ST+64}
ds_read_b64 v[38:39], v24 offset:{ST+96}
s_waitcnt lgkmcnt(0)
v_max3_f32 v48, v32, v34, v36
v_max_f32 v48, v48, v38
v_sub_f32 v32, v32, v48
v_sub_f32 v34, v34, v48
v_sub_f32 v36, v36, v48
v_sub_f32 v38, v38, v48
v_exp_f32 v32, v32
v_exp_f32 v34, v34
v_exp_f32 v36, v36
v_exp_f32 v38, v38
v_mov_b32 v49, v10
v_mov_b32 v51, v10
v_mul_f32 v50, v32, v33
v_fmac_f32 v50, v34, v35
v_fmac_f32 v50, v36, v37
v_fmac_f32 v50, v38, v39
v_mov_b32 v53, v10
{"s_lshl_b64 exec, 1, s29" if t2 else "s_mov_b64 exec, 1"}
s_cmp_lg_u32 s26, 0
s_cbranch_scc1 L_st_far
buffer_store_dwordx4 v[48:51], v9, s[52:55], s6 offen
s_mov_b64 exec, -1
""")
    if t2 and prew: a("v_not_b32 v60, v10\nv_not_b32 v61, v10\nbuffer_store_dwordx2 v[60:61], v25, s[52:55], s28 offen offset:128")
    poll("L_sp", [f"buffer_load_dwordx4 v[40:43], v27, s[52:55], s{30 if t3 else 7} offen {h1fl}"], lambda: chk8([41, 43], 80), sl=8)
    a(f"""
s_branch L_st_done
L_st_far:
buffer_store_dwordx4 v[48:51], v9, s[52:55], s6 offen sc1
s_mov_b64 exec, -1
""")
    poll("L_spx", [f"buffer_load_dwordx4 v[40:43], v27, s[52:55], s{30 if t3 else 7} offen sc1"], lambda: chk8([41, 43], 80), sl=8)
    a("L_st_done:")
    def ptouch(mode, fl):
        if mode == 8: a(f"s_lshl_b32 s4, s14, 9\ns_add_u32 s4, s4, s7\ns_mov_b64 exec, 0xffffffff\nbuffer_load_dwordx4 v[64:67], v26, s[52:55], s4 offen offset:128 {fl}\ns_mov_b64 exec, -1")
        else:
            for k in range(4): a(f"buffer_load_dwordx4 v[{64+4*k}:{67+4*k}], v26, s[52:55], s7 offen offset:{128+k*1024} {fl}")
    if pretouch and pretouch[0] == "s": ptouch(pretouch[1], pretouch[2])
    a("""
v_max_f32_dpp v44, v40, v40 quad_perm:[1,0,3,2] row_mask:0xf bank_mask:0xf
v_max_f32_dpp v45, v44, v44 quad_perm:[2,3,0,1] row_mask:0xf bank_mask:0xf
v_sub_f32 v40, v40, v45
v_exp_f32 v40, v40
v_mul_f32 v42, v40, v42
v_add_f32_dpp v44, v42, v42 quad_perm:[1,0,3,2] row_mask:0xf bank_mask:0xf
v_add_f32_dpp v45, v44, v44 quad_perm:[2,3,0,1] row_mask:0xf bank_mask:0xf
v_rcp_f32 v45, v45
v_mul_f32 v40, v40, v45
v_mov_b32_dpp v56, v40 quad_perm:[0,0,0,0] row_mask:0xf bank_mask:0xf
v_mov_b32_dpp v57, v40 quad_perm:[1,1,1,1] row_mask:0xf bank_mask:0xf
v_mov_b32_dpp v58, v40 quad_perm:[2,2,2,2] row_mask:0xf bank_mask:0xf
v_mov_b32_dpp v59, v40 quad_perm:[3,3,3,3] row_mask:0xf bank_mask:0xf
""" + ("\n".join(f"ds_bpermute_b32 v{56+i}, v23, v{56+i}" for i in range(4)) if t3 else "") + """
L_pre2:
s_setprio """ + str(hp) + """
s_waitcnt vmcnt(0) lgkmcnt(0)
""")
    if wotrig is not None and wotrig >= 0:
        if defer:
            srd(48, 38, 256)
            a(f"""
s_getreg_b32 s4, hwreg(HW_REG_XCC_ID, 0, 3)
s_lshl_b32 s4, s4, 5
v_lshl_add_u32 v92, v6, 2, s4
s_mov_b32 s28, {(0x80 - defer[2]) * 0x01010101}
s_mov_b32 s29, 0x80808080
""")
        if wodl is not None: a(f"""
s_mov_b32 s58, {spin*8}
L_wt:
ds_read2_b32 v[60:61], v9 offset0:{(FLG+28)//4} offset1:{(FLG+48)//4}
s_memrealtime s[76:77]
{f"s_sleep {wosl}" if wosl else ""}
s_waitcnt lgkmcnt(0)
v_readfirstlane_b32 s59, v60
v_readfirstlane_b32 s27, v61
s_sub_u32 s58, s58, 1
s_cbranch_scc1 L_wt_done
s_cmp_ge_u32 s59, {wothr}
s_cbranch_scc1 L_wt_done
s_cmp_eq_u32 s27, 0
s_cbranch_scc1 L_wt
s_sub_u32 s27, s76, s27
s_cmp_lt_i32 s27, 0
s_cbranch_scc1 L_wt
L_wt_done:
""")
        else:
            a("; Wo tile is fetched when this workgroup's V stream is nearly drained, so it overlaps the hop-1 hand-off")
            lds_wait("L_wt", FLG + 28, wothr, sl=wosl, msk=bool(defer))
        if defer: a(f"s_lshr_b32 s27, s59, 8\ns_cmp_ge_u32 s27, {defer[1]}\ns_cselect_b32 s27, 1, 0\ns_andn2_b32 s27, s27, s26\ns_cbranch_scc1 L_wt_skip")
        if pretouch and pretouch[0] == "b": ptouch(pretouch[1], pretouch[2])
        for t in range(4): wodma(t, 90, 22, 23)
        if pretouch and pretouch[0] == "a": ptouch(pretouch[1], pretouch[2])
        if defer: a("L_wt_skip:")
    stamp(4)
    if not dp: a("s_barrier")
    if wotrig is not None and wotrig < 0:
        for t in range(4): wodma(t, 90, 22, 23)
    if isinstance(dbgt, str): a("s_memrealtime s[92:93]")
    if prof: a("s_waitcnt lgkmcnt(0)")
    if "notail" in dbg:
        stamp(5); stamp(6); a("s_branch L_hend")
    if tailprof: stamp(1); a("s_waitcnt lgkmcnt(0)")
    PKC = """s_waitcnt lgkmcnt(2)
v_mul_f32 v40, v32, v40
v_mul_f32 v41, v32, v41
v_fmac_f32 v40, v34, v42
v_fmac_f32 v41, v34, v43
s_waitcnt lgkmcnt(0)
v_mul_f32 v44, v36, v44
v_mul_f32 v45, v36, v45
v_fmac_f32 v40, v38, v46
v_fmac_f32 v41, v38, v47
v_add_f32 v40, v40, v44
v_add_f32 v41, v41, v45""" if not pkc else """s_waitcnt lgkmcnt(3)
v_pk_mul_f32 v[40:41], v[40:41], v[32:33] op_sel_hi:[1,0]
s_waitcnt lgkmcnt(2)
v_pk_fma_f32 v[40:41], v[42:43], v[34:35], v[40:41] op_sel_hi:[1,0,1]
s_waitcnt lgkmcnt(1)
v_pk_fma_f32 v[40:41], v[44:45], v[36:37], v[40:41] op_sel_hi:[1,0,1]
s_waitcnt lgkmcnt(0)
v_pk_fma_f32 v[40:41], v[46:47], v[38:39], v[40:41] op_sel_hi:[1,0,1]"""
    if t2:
        for w_ in range(4): a(f"ds_read2st64_b32 v[{40+2*w_}:{41+2*w_}], v20 offset0:{8*w_} offset1:{8*w_+4}")
    elif not dp: a("""
ds_read2_b32 v[40:41], v20 offset0:0 offset1:4
ds_read2_b32 v[42:43], v21 offset0:0 offset1:4
ds_read2_b32 v[44:45], v22 offset0:0 offset1:4
ds_read2_b32 v[46:47], v23 offset0:0 offset1:4
""")
    if not dp: a(f"""
{PKC}
s_cmp_lg_u32 s26, 0
v_cvt_pk_bf16_f32 v52, v40, v41
s_cbranch_scc1 L_h1_far
buffer_store_dwordx2 v[52:53], v25, s[52:55], s{28 if t2 else 6} offen offset:128
L_h1_st:
""")
    stamp(5)
    if wotrig is not None:
        if defer: a("s_cmp_lg_u32 s27, 0\ns_cbranch_scc1 L_dfr")
        if h1e:
            a("s_cmp_lg_u32 s26, 0\ns_cbranch_scc1 L_h1e_far")
            for e_ in range(h1e[0]):
                if len(h1e) > 2: a(f"s_waitcnt vmcnt({h1e[2][e_] + 4 * e_})")
                elif e_: a(f"s_sleep {h1e[1]}")
                for k in range(4): a(f"buffer_load_dwordx4 v[{64+4*k}:{67+4*k}], v26, s[52:55], s7 offen offset:{128+k*(512 if t2 and not t3 else 1024)} {h1fl}")
            a(f"s_waitcnt vmcnt({1 + 4 * h1e[0]})\nL_h1e_done:")
        else: a(f"s_waitcnt vmcnt({0 if dp else 1})")
        if defer: a("L_dfr_done:")
        if dp: stamp(5)
        if "wol" in dbg and "h1it" not in dbg and "h1vm" not in dbg: stamp(3)
        if own1: woread(91, [0])
        if wbar: a("s_barrier")
        elif not t3:
            lds_signal(FLG + 20)
            lds_wait("L_wl", FLG + 20, 4)
        if "wol" in dbg: stamp(1)
        if not womid: woread(91)
        if dp and dpw: lds_wait("L_pw", FLG + 40, dpw)
    a("s_cmp_lg_u32 s26, 0\ns_cbranch_scc1 L_h1_farp")
    def h1poll(sfx, fl, pipe):
        full = [f"buffer_load_dwordx4 v[{64+4*k}:{67+4*k}], v26, s[52:55], s7 offen offset:{128+k*(512 if t2 and not t3 else 1024)} {fl}" for k in range(4)]
        if h1m and sfx == "":
            assert h1e
            a(f"s_mov_b32 s58, {spin}"); woread(91)
            a("L_h1_chk:\ns_waitcnt vmcnt(0)" if h1m == 1 else "s_waitcnt vmcnt(0)\nL_h1_chk:")
            for k in range(4): a(f"v_bitop3_b32 v{80+k}, v{65+4*k}, v{67+4*k}, s12 bitop3:0x7e")
            for k in range(4): a(f"v_cmp_ne_u32 s[{72+2*k}:{73+2*k}], 0, v{80+k}")
            a("s_or_b64 vcc, s[72:73], s[74:75]\ns_or_b64 s[82:83], s[76:77], s[78:79]\ns_or_b64 vcc, vcc, s[82:83]\ns_cbranch_scc0 L_h1_got\ns_sub_u32 s58, s58, 1\ns_cbranch_scc1 L_h1_got")
            if "h1it" in dbg: stamp(4)
            for k in range(4): a(f"s_mov_b64 exec, s[{72+2*k}:{73+2*k}]\n" + full[k])
            a("s_mov_b64 exec, -1")
            if slp: a(f"s_sleep {slp}")
            if h1m > 1: a(f"s_waitcnt vmcnt({4 * (h1m - 1)})")
            a("s_branch L_h1_chk")
            return
        poll("L_h1" + sfx, full, lambda: chk8([65, 67, 69, 71, 73, 75, 77, 79], 80), st=4, pipe=pipe, stag=stag1, mid=(lambda: woread(91)) if (womid and wotrig is not None) else None, pre=bool(h1e) and sfx == "")
    h1poll("", h1fl, pipe1)
    a("L_h1_got:")
    if "h1it" in dbg: a(f"s_sub_u32 s90, {spin}, s58\ns_mov_b32 s91, 0")
    if "h1vm" in dbg: stamp(3); a(f"s_sub_u32 s98, {spin}, s58\ns_mov_b32 s99, 0")
    if hp2 is not None: a(f"s_setprio {hp2}")
    if wotrig is not None: a("s_waitcnt lgkmcnt(0)")
    stamp(6)
    AO = 96; DD = 112
    if h2e:
        a("s_cmp_lg_u32 s3, 0\ns_cbranch_scc1 L_h2e")
        for l in h2l: a(l)
        a("L_h2e:")
    if h2late and fin != 2: a(f"s_mov_b64 exec, 1\nds_add_rtn_u32 v54, v9, v11 offset:{FLG+24}\ns_mov_b64 exec, -1")
    if fin == 2: a(f"ds_read_b32 v54, v9 offset:{FLG+24}")
    if t2:
        for k in range(4):
            for g_ in range(2):
                a(f"v_lshlrev_b32 v{160+4*k+2*g_}, 16, v{64+4*k+2*g_}\nv_and_b32 v{161+4*k+2*g_}, 0xffff0000, v{64+4*k+2*g_}")
            for g_ in range(2):
                r_ = 160 + 4 * k + 2 * g_; w_ = 56 + (k & 2); sel = k & 1
                if k == 0: a(f"v_pk_mul_f32 v[{84+2*g_}:{85+2*g_}], v[{r_}:{r_+1}], v[{w_}:{w_+1}] op_sel:[0,{sel}] op_sel_hi:[1,{sel}]")
                else: a(f"v_pk_fma_f32 v[{84+2*g_}:{85+2*g_}], v[{r_}:{r_+1}], v[{w_}:{w_+1}], v[{84+2*g_}:{85+2*g_}] op_sel:[0,{sel},0] op_sel_hi:[1,{sel},1]")
        a("v_cvt_pk_bf16_f32 v88, v84, v85\nv_cvt_pk_bf16_f32 v89, v86, v87")
    if fin == 2:
        a("s_waitcnt lgkmcnt(0)\nv_readfirstlane_b32 s27, v54\ns_cmp_lg_u32 s27, 3\ns_cbranch_scc1 L_h2e")
        for l in h2l: a(l)
        a(f"L_h2e:\ns_mov_b64 exec, 1\nds_add_rtn_u32 v54, v9, v11 offset:{FLG+24}\ns_mov_b64 exec, -1")
    if fin == 3:
        a("s_waitcnt lgkmcnt(0)\nv_readfirstlane_b32 s27, v54\ns_cmp_lg_u32 s27, 3\ns_cbranch_scc1 L_h2e")
        for l in h2l: a(l)
        a(f"s_mov_b64 exec, 1\nds_add_u32 v9, v11 offset:{FLG+24}\ns_mov_b64 exec, -1\nL_h2e:")
    def mv(kk, p):
        if t2:
            j_ = 2 * kk + (p >> 1)
            if j_: a(f"v_mov_b32_dpp v{AO+4*kk+p}, v{88+(p&1)} row_ror:{16-j_} row_mask:0xf bank_mask:0xf")
            else: a(f"v_mov_b32 v{AO+4*kk+p}, v{88+(p&1)}")
            return
        src = 64 + 8 * (kk & 1) + 2 * p
        if kk >= 2: a(f"v_mov_b32_dpp v{AO+4*kk+p}, v{src} row_ror:8 row_mask:0xf bank_mask:0xf")
        else: a(f"v_mov_b32 v{AO+4*kk+p}, v{src}")
    if t3 == 2:
        for p in range(4): a(f"ds_bpermute_b32 v{176+p}, v{184+(p>>1)}, v{88+(p&1)}")
        a("s_waitcnt lgkmcnt(0)")
        for nt_ in (0, 2, 1, 3): a(f"v_mfma_f32_16x16x32_bf16 v[{DD+4*nt_}:{DD+4*nt_+3}], v[{WB+4*nt_}:{WB+4*nt_+3}], v[176:179], 0")
        a(f"""
s_mov_b64 exec, s[32:33]
ds_write_b128 v21, v[{DD}:{DD+3}] offset:{RBB}
ds_write_b128 v21, v[{DD+8}:{DD+11}] offset:{RBB+1280}
s_not_b64 exec, s[32:33]
ds_write_b128 v21, v[{DD+4}:{DD+7}] offset:{RBB}
ds_write_b128 v21, v[{DD+12}:{DD+15}] offset:{RBB+1280}
""")
    if t3 == 1:
        ID = "quad_perm:[0,1,2,3]"
        for p in range(4): a(f"v_mov_b32_dpp v{176+p}, v{88+(p&1)} {'row_ror:8' if p >> 1 else ID} row_mask:0xf bank_mask:0x3")
        for p in range(4): a(f"v_mov_b32_dpp v{180+p}, v{88+(p&1)} {ID if p >> 1 else 'row_ror:8'} row_mask:0xf bank_mask:0xc")
        for h_ in range(2):
            for a_ in range(2):
                d = DD + 4 * a_; w_ = WB + 4 * (2 * a_ + h_)
                a(f"v_mfma_f32_16x16x32_bf16 v[{d}:{d+3}], v[{w_}:{w_+3}], v[{176+4*h_}:{179+4*h_}], {'0' if h_ == 0 else f'v[{d}:{d+3}]'}")
        a(f"""
ds_write_b128 v21, v[{DD}:{DD+3}] offset:{RBB}
ds_write_b128 v21, v[{DD+4}:{DD+7}] offset:{RBB+1280}
""")
    if t3:
        a(f"""
s_mov_b64 exec, 0xffffffff
s_waitcnt lgkmcnt(0)
s_barrier
""")
        for w_ in range(4): a(f"ds_read_b128 v[{96+4*w_}:{99+4*w_}], v22 offset:{RBB+2560*w_}")
        a("""
s_waitcnt lgkmcnt(2)
v_pk_add_f32 v[96:97], v[96:97], v[100:101]
v_pk_add_f32 v[98:99], v[98:99], v[102:103]
s_waitcnt lgkmcnt(0)
v_pk_add_f32 v[104:105], v[104:105], v[108:109]
v_pk_add_f32 v[106:107], v[106:107], v[110:111]
v_pk_add_f32 v[96:97], v[96:97], v[104:105]
v_pk_add_f32 v[98:99], v[98:99], v[106:107]
""")
    for p in range(0 if t3 else 4): mv(0, p)
    for kk in range(0 if t3 else 4):
        for nt_ in range(4):
            d = DD + 4 * nt_; b = WB + 16 * nt_ + 4 * kk
            if kk < 3 and nt_ < 2: mv(kk + 1, 2 * nt_); mv(kk + 1, 2 * nt_ + 1)
            a(f"v_mfma_f32_16x16x32_bf16 v[{d}:{d+3}], v[{AO+4*kk}:{AO+4*kk+3}], v[{b}:{b+3}], {'0' if kk == 0 else f'v[{d}:{d+3}]'}")
    GO = 128
    if fin == 3: a("s_mov_b32 s59, s27")
    elif h2late: a("s_waitcnt lgkmcnt(0)\nv_readfirstlane_b32 s59, v54")
    if t3: pack16(GO, [96, 97, 98, 99], 10)
    elif t2: pack16(GO, [DD, DD + 4, DD + 8, DD + 12], 10)
    else:
        for t in range(4):
            a(f"v_mul_f32 v{GO+t}, v56, v{DD+4*t}")
            a(f"v_mul_f32 v{GO+4+t}, v58, v{DD+4*t+2}")
        for t in range(4):
            a(f"v_fmac_f32 v{GO+t}, v57, v{DD+4*t+1}")
            a(f"v_fmac_f32 v{GO+4+t}, v59, v{DD+4*t+3}")
        for t in range(4): a(f"v_add_f32 v{GO+t}, v{GO+t}, v{GO+4+t}")
        pack16(GO, [GO, GO + 1, GO + 2, GO + 3], 10)
    if lbar: a("s_barrier")
    if h2late:
        a(("s_mov_b32 s31, s59\n" if fin else "") + "s_cmp_eq_u32 s59, 3\ns_cbranch_scc1 L_hl_done")
        lds_wait("L_hl", FLG + 24, 5 if fin == 3 else 4)
    a(("" if t3 else "s_mov_b32 exec_lo, 0xffff\ns_mov_b32 exec_hi, 0xffff" if t2 else "s_mov_b64 exec, 0xffffffff") + f"\nbuffer_store_dwordx4 v[{GO}:{GO+3}], v28, s[52:55], s8 offen {h2sf}")
    if tailprof or "wol" in dbg: stamp(2)
    if h2sync and not h2late: lds_signal(FLG + 24)
    a(f"""
s_mov_b64 exec, -1
s_cmp_lg_u32 {"s31, 3" if fin else "s3, 0"}
s_cbranch_scc1 L_hend
""")
    if fin >= 2:
        a("s_cmp_lg_u32 s27, 3\ns_cbranch_scc1 L_h2n\ns_waitcnt vmcnt(1)" if fin == 2 else "s_waitcnt vmcnt(1)")
        r_ = chk16([136, 140], 56, 12)
        a(f"v_cmp_ne_u32 vcc, 0, v{r_}\ns_mov_b32 s58, {spin}\ns_and_b64 exec, exec, vcc\ns_cbranch_execz L_h2_done\nL_h2n:")
    if h2sync and not h2late: lds_wait("L_hw", FLG + 24, 4)
    if h2e:
        a("s_waitcnt vmcnt(1)")
        r_ = chk16([136, 140], 56, 12)
        a(f"v_cmp_ne_u32 vcc, 0, v{r_}\ns_mov_b32 s58, {spin}\ns_and_b64 exec, exec, vcc\ns_cbranch_execz L_h2_done")
    if h2ack: a("s_waitcnt vmcnt(0)")
    if "h2it" in dbg: stamp(1)
    poll("L_h2", h2l, lambda: chk16([136, 140], 56, 12), st=3, pipe=pipe2, stag=stag2, sl=slp2)
    if "h2it" in dbg: stamp(5); a(f"s_sub_u32 s90, {spin}, s58\ns_mov_b32 s91, 0")
    for i in range(8): a(f"v_and_b32 v{48+i}, 0xffffff00, v{136+i}")
    for i in range(4): a(f"v_add_f32 v{48+i}, v{48+i}, v{52+i}")
    a(f"""
v_permlane32_swap_b32 v48, v50
v_permlane32_swap_b32 v49, v51
v_add_f32 v48, v48, v50
v_add_f32 v49, v49, v51
v_permlane16_swap_b32 v48, v49
v_add_f32 v48, v48, v49
v_add_f32_dpp v48, v48, v48 row_ror:4 row_mask:0xf bank_mask:0xf
v_add_f32_dpp v48, v48, v48 row_ror:8 row_mask:0xf bank_mask:0xf
s_mov_b32 exec_lo, 0x000f000f
s_mov_b32 exec_hi, 0x000f000f
v_cvt_pk_bf16_f32 v48, v48, v48
v_lshlrev_b32 v48, 16, v48
v_mul_f32 v48, v48, v16
v_cvt_pk_bf16_f32 v48, v48, v48
v_lshlrev_b32 v48, 16, v48
v_add_f32 v48, v48, v14
v_cvt_pk_bf16_f32 v48, v48, v48
buffer_store_short v48, v30, s[64:67], s10 offen {"sc1" if clean else ""}
s_mov_b64 exec, 1
s_cmp_lg_u32 s2, 0
s_cbranch_scc1 L_hend
v_mov_b32 v10, s42
buffer_store_dword v10, v9, s[52:55], 0 offen sc1
L_hend:
""")
    if "probe" in dbg: a("s_cmp_ge_u32 s3, 2\ns_cbranch_scc1 L_np7")
    if "h1vm" not in dbg: stamp(7)
    if "probe" in dbg: a("L_np7:")
    if endwait or prof or dbgt: a("s_waitcnt vmcnt(0)")
    if "endst" in dbg: stamp(1)
    if isinstance(dbgt, str):
        AMP = 96 << 20
        def red(op, r, steps, t=70):
            for n in steps:
                if n < 16: a(f"{op}_dpp v{r}, v{r}, v{r} row_ror:{n} row_mask:0xf bank_mask:0xf")
                else: a(f"v_mov_b32 v{t}, v{r}\nv_permlane{n}_swap_b32 v{r}, v{t}\n{op} v{r}, v{r}, v{t}")
        a(f"""
s_cmp_lg_u32 s3, 0
s_cbranch_scc1 L_dbgt
s_memrealtime s[88:89]
s_mov_b64 exec, 1
s_waitcnt lgkmcnt(0)
v_mov_b32 v12, s84
v_mov_b32 v13, s92
v_mov_b32 v14, s88
v_mov_b32 v15, s12
s_lshl_b32 s59, s2, 4
s_add_u32 s59, s59, {AMP}
buffer_store_dwordx4 v[12:15], v9, s[52:55], s59 offen sc1
s_waitcnt vmcnt(0)
s_mov_b64 exec, -1
s_cmp_lg_u32 s2, 0
s_cbranch_scc1 L_dbgt
v_lshlrev_b32 v2, 4, v1
s_mov_b32 s6, {AMP}
""")
        poll("L_amp", [f"buffer_load_dwordx4 v[{40+4*k}:{43+4*k}], v2, s[52:55], s6 offen offset:{1024*k} sc1" for k in range(4)], lambda: chk8([43, 47, 51, 55], 80), sl=8)
        for k in range(4):
            for c in range(3): a(f"v_subrev_u32 v{40+4*k+c}, s84, v{40+4*k+c}")
        ALL = [8, 4, 2, 1, 16, 32]
        def stat(op, c, dst, steps=ALL):
            a(f"{op} v{dst}, v{40+c}, v{44+c}\n{op} v71, v{48+c}, v{52+c}\n{op} v{dst}, v{dst}, v71")
            red(op, dst, steps)
        stat("v_min_i32", 0, 60)
        if dbgt == "startmax": stat("v_max_i32", 0, 61)
        if dbgt == "bmin": stat("v_min_i32", 1, 61)
        if dbgt == "bmax": stat("v_max_i32", 1, 61)
        if dbgt == "emax": stat("v_max_i32", 2, 61)
        if dbgt == "bmean": stat("v_add_u32", 1, 61); a("v_ashrrev_i32 v61, 8, v61")
        if dbgt == "xs":
            stat("v_add_u32", 1, 61, [8, 16, 32]); a("v_ashrrev_i32 v61, 5, v61\nv_mov_b32 v60, v61")
            red("v_max_i32", 61, [4, 2, 1]); red("v_min_i32", 60, [4, 2, 1])
        a(f"""
v_sub_u32 v61, v61, v60
s_nop 1
v_readfirstlane_b32 s59, v61
s_mul_i32 s59, s59, 10
s_add_u32 s59, s59, 5000
s_min_u32 s59, s59, 100000
L_dbgs:
s_memrealtime s[90:91]
s_waitcnt lgkmcnt(0)
s_sub_u32 s58, s90, s84
s_cmp_lt_u32 s58, s59
s_cbranch_scc1 L_dbgs
L_dbgt:
""")
    elif dbgt == 2:
        a(f"""
s_or_b32 s59, s2, s3
s_cmp_lg_u32 s59, 0
s_cbranch_scc1 L_dbgt
s_memrealtime s[88:89]
s_waitcnt lgkmcnt(0)
s_sub_u32 s59, s88, s84
s_mul_i32 s59, s59, 10
s_min_u32 s59, s59, 100000
L_dbgs:
s_memrealtime s[90:91]
s_waitcnt lgkmcnt(0)
s_sub_u32 s58, s90, s88
s_cmp_lt_u32 s58, s59
s_cbranch_scc1 L_dbgs
L_dbgt:
""")
    elif dbgt:
        a(f"""
s_memrealtime s[88:89]
s_memtime s[90:91]
s_mov_b32 s44, s38
s_mov_b32 s45, s39
s_mov_b32 s46, 256
s_mov_b32 s47, 0x20000
s_mov_b64 exec, 1
s_waitcnt lgkmcnt(0)
s_not_b32 s59, s84
v_mov_b32 v12, s88
v_mov_b32 v13, s59
buffer_atomic_umax v12, v9, s[44:47], 0 offen sc1
buffer_atomic_umax v13, v9, s[44:47], 0 offen offset:4 sc1
s_cmp_lg_u32 s3, 0
s_cbranch_scc1 L_dbgt
s_and_b32 s59, s2, 0x7f
s_cmp_lg_u32 s59, 0
s_cbranch_scc1 L_dbgt
s_lshr_b32 s59, s2, 3
v_mov_b32 v12, s84
v_mov_b32 v13, s88
v_mov_b32 v14, s86
v_mov_b32 v15, s90
buffer_store_dwordx4 v[12:15], v9, s[44:47], s59 offen offset:16 sc1
L_dbgt:
s_waitcnt vmcnt(0)
""")
    if prof:
        a(f"""
s_mov_b64 exec, 1
s_sleep 127
s_waitcnt lgkmcnt(0)
s_lshl_b32 s59, s2, 3
s_add_u32 s59, s59, s3
s_add_u32 s59, s59, 4
s_lshl_b32 s59, s59, 6
s_add_u32 s59, s59, {STAMP}
""")
        for i in range(0, 8):
            a(f"v_mov_b32 v12, s{84+2*i}\nv_mov_b32 v13, s{85+2*i}\nbuffer_store_dwordx2 v[12:13], v9, s[52:55], s59 offen offset:{8*i}\ns_waitcnt vmcnt(0)")
    a("L_end:\ns_endpgm")
    if not dp: a("""L_h1_far:
buffer_store_dwordx2 v[52:53], v25, s[52:55], s""" + ("28" if t2 else "6") + """ offen offset:128 sc1
s_branch L_h1_st
""")
    if h1e: a("L_h1e_far:\ns_waitcnt vmcnt(1)\ns_branch L_h1e_done")
    a("L_h1_farp:")
    h1poll("x", "sc1", 1)
    a("s_branch L_h1_got")
    if defer:
        a(f"""
L_dfr:
s_movk_i32 s58, 2000
L_dfr_l:
buffer_load_dword v93, v92, s[48:51], 0 offen nt
s_waitcnt vmcnt(0)
v_add_u32 v93, s28, v93
v_and_b32 v93, s29, v93
v_cmp_ne_u32 vcc, s29, v93
s_cbranch_vccz L_dfr_go
s_sub_u32 s58, s58, 1
s_cbranch_scc0 L_dfr_l
L_dfr_go:
""")
        for t in range(4): wodma(t, 90, 22, 23)
        a("s_waitcnt vmcnt(0)\ns_branch L_dfr_done")
    if near:
        assert near["nw"] in (1, 2)
        a(f"""L_meas:
s_cmp_lt_u32 s3, 2
s_cbranch_scc1 L_meas_done
s_and_b32 s4, s3, 1
s_lshl_b32 s4, s4, 13
s_lshl_b32 s5, s2, 7
s_add_u32 s4, s4, s5
s_memtime s[76:77]
s_waitcnt lgkmcnt(0)
s_load_dword s5, s[40:41], s4 offset:{MEAS}
s_waitcnt lgkmcnt(0)
s_memtime s[78:79]
s_lshl_b32 s4, s3, 2
v_mov_b32 v5, s4
s_waitcnt lgkmcnt(0)
s_sub_u32 s78, s78, s76
v_mov_b32 v6, s78
ds_write_b32 v5, v6 offset:{OP - 8}
s_waitcnt lgkmcnt(0)
s_branch L_meas_done
L_mpub:
ds_read_b64 v[94:95], v9 offset:{OP}
s_lshl_b32 s4, s2, 3
s_add_u32 s4, s4, {CWOFF}
s_movk_i32 s5, {near.get("cap", 600)}
s_mov_b64 exec, 1
s_waitcnt lgkmcnt(0)
v_sub_u32 v94, v94, v95
v_min_i32 v94, s5, v94
v_sub_u32 v95, 0, v94
v_min_i32 v95, s5, v95
v_sub_u32 v94, 0, v95
v_mov_b32 v95, s12
buffer_store_dwordx2 v[94:95], v9, s[52:55], s4 offen sc1
s_mov_b64 exec, -1
s_branch L_mpub_done
""")
    a("L_qs_far:\n" + (f"ds_write_b32 v9, v11 offset:{FLG+32}\n" if dp else "") + "buffer_store_dwordx4 v[132:135], v25, s[52:55], s72 offen sc1\n" + ("buffer_store_dwordx2 v[136:137], v138, s[52:55], s73 offen sc1\n" if qf else "") + "s_branch L_qs_done\nL_gq_far:")
    qpoll("x", "sc1")
    a("s_branch L_gq_got")
    if fc:
        lean = fc.get("tt", {}).get("notab") and fc["tt"].get("gl") == 2
        if not lean:
            a("L_cb:\ns_waitcnt lgkmcnt(0)\ns_mov_b32 s71, 0")
            for i in range(8): a(f"s_cmp_lg_u32 s{4+i}, s73\ns_addc_u32 s71, s71, 0")
        if not fc.get("wg"):
            a(f"""
s_cmp_lt_u32 s71, {fc['th1']}
s_cselect_b32 s62, 2, 0
s_cmp_ge_u32 s71, {fc['th2']}
s_cselect_b32 s62, 1, s62
""")
            if prof: a("s_lshl_b64 s[82:83], s[82:83], 2\ns_or_b32 s82, s82, s62")
            a("s_setpc_b64 s[80:81]")
        else:
            bias = 16 * fc["CW"]
            TSX = ""; DEC = ""
            if fc.get("dec"):
                DEC = f"s_cmp_eq_u32 s62, 1\ns_cselect_b32 s71, {-fc['dec'][0]}, 0\ns_cmp_eq_u32 s62, 2\ns_cselect_b32 s71, {fc['dec'][1]}, s71\ns_add_u32 s74, s74, s71"
            if fc.get("ts"):
                TSX = "L_cx:\ns_waitcnt lgkmcnt(0)\ns_mov_b32 s71, 0\n"
                for i in range(8): TSX += f"s_sub_u32 s{16+2*i}, s36, s{16+2*i}\ns_cmp_eq_u32 s{17+2*i}, s73\ns_cselect_b32 s{16+2*i}, s{16+2*i}, 0\ns_add_u32 s71, s71, s{16+2*i}\n"
                TSX += f"""s_sub_u32 s32, s36, s32
s_cmp_eq_u32 s33, s73
s_cselect_b32 s32, s32, 0
s_lshl_b32 s32, s32, 3
s_sub_u32 s32, s32, s71
s_mul_i32 s32, s32, {fc['tg']}
s_ashr_i32 s74, s32, 5
s_branch L_cc
"""
            if fc.get("tt"):
                tt = fc["tt"]
                RED = "\n".join(f"v_add_u32_dpp v85, v85, v85 row_ror:{n} row_mask:0xf bank_mask:0xf" for n in (4, 2, 1))
                CW_ = f"""{RED}
v_readfirstlane_b32 s69, v85
s_mul_i32 s69, s69, {round(tt['U'])}
s_lshr_b32 s69, s69, 5
s_sub_u32 s62, s62, s69
"""
                if tt.get("gl"):
                    SUMX = "s_waitcnt lgkmcnt(0)\ns_mov_b32 s71, 0\n"
                    for i in range(8): SUMX += f"s_sub_u32 s{16+2*i}, s36, s{16+2*i}\ns_cmp_eq_u32 s{17+2*i}, s73\ns_cselect_b32 s{16+2*i}, s{16+2*i}, {tt.get('inv', 0)}\ns_add_u32 s71, s71, s{16+2*i}\n"
                    SUMX += "s_ashr_i32 s71, s71, 3\ns_sub_u32 s71, s36, s71\n"
                    TSX = "L_cx:\n" + SUMX
                    if tt["gl"] == 2:
                        TSX = "L_cx:\ns_waitcnt lgkmcnt(0)\ns_add_u32 s62, s62, s70\ns_mov_b32 s71, 0\n"
                        if prof and tt.get("tv"): TSX += "s_lshl_b64 s[82:83], s[82:83], 4\n"
                        for i in range(8):
                            TSX += f"s_sub_u32 s{16+2*i}, s{16+2*i}, s62\ns_cmp_eq_u32 s{17+2*i}, s73\ns_cselect_b32 s{16+2*i}, s{16+2*i}, 0\n"
                            if prof and tt.get("tv"): TSX += "s_addc_u32 s82, s82, 0\n"
                            TSX += f"s_add_u32 s71, s71, s{16+2*i}\n"
                        TSX += f"s_ashr_i32 s71, s71, {3 + tt.get('gsm2', 0)}\ns_add_u32 s70, s70, s71\ns_setpc_b64 s[80:81]\n"
                        SUMX = None
                    if tt.get("gsm"): TSX += f"s_sub_u32 s71, s71, s62\ns_sub_u32 s71, s71, s70\ns_ashr_i32 s71, s71, {tt['gsm']}\ns_add_u32 s70, s70, s71\ns_setpc_b64 s[80:81]\nL_cx0:\n" + SUMX
                    if SUMX: TSX += "s_sub_u32 s70, s71, s62\ns_setpc_b64 s[80:81]\n"
                if lean: a("; re-centre the schedule on the mean of the published clocks (entries without this launch's tag are skipped)\n" + TSX)
                else: a(f"""
s_setpc_b64 s[80:81]
{TSX}
L_cw0:
{CW_}
s_sub_u32 s75, s62, {round(tt['U'] * fc['CW'] / 2)}
s_branch L_cc
L_cw:
{CW_}
s_sub_u32 s62, s62, {round(tt['U'] * fc['CW'] / 2)}
""" + (f"s_sub_u32 s62, s62, s75\ns_ashr_i32 s62, s62, {tt['sm']}\ns_add_u32 s75, s75, s62" if tt.get("sm") else "s_mov_b32 s75, s62") + """
L_cc:
""" + ("" if tt.get("gl") else "s_add_u32 s70, s75, s74") + """
s_setpc_b64 s[80:81]
""")
            else: a(f"""
s_mul_i32 s74, s71, {fc.get('kx', 0)}
{"s_lshl_b64 s[82:83], s[82:83], 4" if prof and fc.get("tm") else ""}
{"s_or_b32 s82, s82, s71" if prof and fc.get("tm") else ""}
s_branch L_cc
{TSX}
L_cw:
v_add_u32_dpp v85, v85, v85 row_ror:4 row_mask:0xf bank_mask:0xf
v_add_u32_dpp v85, v85, v85 row_ror:2 row_mask:0xf bank_mask:0xf
v_add_u32_dpp v85, v85, v85 row_ror:1 row_mask:0xf bank_mask:0xf
v_readfirstlane_b32 s69, v85
s_sub_u32 s75, s68, s69
s_sub_u32 s75, s75, {bias}
{DEC}
L_cc:
s_add_u32 s68, s75, s74
s_cmp_lt_i32 s68, {-fc['b']}
s_cselect_b32 s62, 2, 0
s_cmp_gt_i32 s68, {fc['a']}
s_cselect_b32 s62, 1, s62
""")
            if prof and not fc.get("tm") and not fc.get("tt"): a("s_lshl_b64 s[82:83], s[82:83], 2\ns_or_b32 s82, s82, s62")
            if not fc.get("tt"): a("s_setpc_b64 s[80:81]")
    a("; one output column of the token MLP: sum_f gelu_tanh(h*w1+b1)*w2 over this wave's quarter of F\nL_mlp:")
    if mr:
        a("; (the product, the biased sum and the activation are rounded to bf16 where the reference's bf16 tensors round them)")
        for t in range(7): a(f"v_mul_f32 v{U+t}, s4, v{W1+t}")
        for t in range(7): a(f"v_cvt_pk_bf16_f32 v{U+t}, 0, v{U+t}")
        for t in range(7): a(f"v_add_f32 v{U+t}, v{U+t}, v{B1+t}")
        for t in range(7): a(f"v_cvt_pk_bf16_f32 v{U+t}, 0, v{U+t}")
    else:
        for t in range(7): a(f"v_fma_f32 v{U+t}, s4, v{W1+t}, v{B1+t}")
    for t in range(7): a(f"v_mul_f32 v{AA+t}, v{U+t}, v{U+t}")
    for t in range(7): a(f"v_fmaak_f32 v{AA+t}, v{AA+t}, v{C1}, {f32(c0)}")
    for t in range(7): a(f"v_mul_f32 v{AA+t}, v{AA+t}, v{U+t}")
    for t in range(7): a(f"v_exp_f32 v{EE+t}, v{AA+t}")
    if not mr:
        for t in range(7): a(f"v_mul_f32 v{U+t}, v{U+t}, v{W2+t}")
    for t in range(7): a(f"v_add_f32 v{EE+t}, 1.0, v{EE+t}")
    for t in range(7): a(f"v_rcp_f32 v{EE+t}, v{EE+t}")
    if mr:
        for t in range(7): a(f"v_mul_f32 v{EE+t}, v{U+t}, v{EE+t}")
        for t in range(7): a(f"v_cvt_pk_bf16_f32 v{EE+t}, 0, v{EE+t}")
    M2 = W2 if mr else U
    a(f"v_mul_f32 v{ACC2}, v{M2}, v{EE}")
    a(f"v_mul_f32 v{AA}, v{M2+1}, v{EE+1}")
    for t in range(2, 7): a(f"v_fmac_f32 v{ACC2 if t % 2 == 0 else AA}, v{M2+t}, v{EE+t}")
    a(f"v_add_f32 v{ACC2}, v{ACC2}, v{AA}")
    for n in (8, 4, 2, 1): a(f"v_add_f32_dpp v{ACC2}, v{ACC2}, v{ACC2} row_ror:{n} row_mask:0xf bank_mask:0xf")
    swaps_add(ACC2, AA)
    a(f"""
s_mov_b64 exec, 1
ds_write_b32 v{YA}, v{ACC2} offset:{YP}
s_mov_b64 exec, -1
v_add_u32 v{YA}, 4, v{YA}
s_setpc_b64 s[80:81]
""")
    body = a.render()
    if "allsc1st" in dbg:
        import re
        body = re.sub(r"(buffer_store_dwordx[24] v\[\d+:\d+\], v\d+, s\[52:55\], s(6|72) offen( offset:128)?)\n", r"\1 sc1\n", body)
    if "allsc1ld" in dbg:
        import re
        body = re.sub(r"(buffer_load_dwordx4 v\[\d+:\d+\], v\d+, s\[52:55\], s[67] offen( offset:\d+)?) nt\n", r"\1 sc1\n", body)
    txt = HDR + f"""; @launch grid=(256,1,1) block=(512,1,1) lds={LDSZ}
.amdgcn_target "amdgcn-amd-amdhsa--gfx950"
; ---------------------------------------------------------------------------------------------------------
; out = x + (softmax(q K^T / sqrt(128)) V) Wo * silu(token_mlp(LN(LN(x)))),  q = LN(x) Wq.   One launch, 256 workgroups.
; Workgroup id = b*32 + split*8 + x : batch b, kv head x, quarter `split` of the 4096 cached tokens.
;  waves 0-3 (stream): read the K and V rows of this workgroup once (nt), scores by MFMA, true max + exp, P.V by MFMA.
;  waves 4-7 (helper): LN, a 128x64 tile of Wq (partials exchanged through d_ws), the token MLP gate for 16 output
;                      columns, softmax statistics exchange, partial-O hand-off (hop 1), a 128x64 tile of Wo,
;                      hand-off of the projected partial sums (hop 2), final sum / gate / residual / store.
; Hand-offs: every granule in d_ws carries this launch's tag (ws[0]+1; workgroup 0 stores the tag back at the end), so
;  words left by earlier launches or by the harness are never taken for data.  All polls are bounded.
; Placement: hop 2 and the clock/vote words always use sc1 (memory-side) accesses.  The exchanges inside a group of 32
;  workgroups use plain stores only after the group has PROVEN (tagged table indexed by the hardware XCC id) that all
;  32 share one L2; otherwise they use sc1 stores/loads, so any placement gives the same result.
; Bandwidth sharing: HBM is saturated for the whole stream, and the launch ends with the slowest workgroup.  Each stream
;  wave compares its progress with the mean progress of all dies (clock values exchanged in d_ws, this launch only) and
;  keeps 4..12 loads in flight accordingly (behind: more, ahead: fewer).  This only selects s_waitcnt vmcnt depths;
;  nothing waits on the clock.  The s_memtime probe at the start picks which half of the hop-2 area is closer to its
;  readers (all workgroups read the same 16 votes, so they agree); either choice is correct.
; ---------------------------------------------------------------------------------------------------------
.text
.globl {KN}_kernel
.p2align 8
.type {KN}_kernel,@function
{KN}_kernel:
""" + body + f""".section .rodata,"a"
.p2align 6
.amdhsa_kernel {KN}_kernel
  .amdhsa_next_free_vgpr 256
  .amdhsa_next_free_sgpr 102
  .amdhsa_accum_offset 256
  .amdhsa_group_segment_fixed_size 0
  .amdhsa_kernarg_size 104
  .amdhsa_user_sgpr_count 2
  .amdhsa_user_sgpr_kernarg_segment_ptr 1
  .amdhsa_system_sgpr_workgroup_id_x 1
.end_amdhsa_kernel
"""
    open(fname, "w").write(txt)
if __name__ == "__main__":
    import glob, os
    for f in glob.glob("kp_*.s"): os.remove(f)
    gen("k1.s", mlp1=4, slp=0)
    kw = dict(prof=True, tailprof=True, mlp1=4, slp=0, rq=1, wolate=[5, 7, 9, 11])
    gen("kp_00.s", **kw)
    F = dict(wg=1, x=1, G=2, kx=24, a=64, b=-16, W=(4,6,12), d=6, C=3, CW=2)
    gen("kp_01.s", fc=F, **kw)
    gen("kp_02_nowork.s", fc=F, dbg="nok nosm nov", **kw)
    gen("kp_03_nosm.s", fc=F, dbg="nosm", **kw)
    gen("kp_04_nowq.s", fc=F, dbg="nowq", **kw)
    gen("kp_05_nowork_nowq.s", fc=F, dbg="nok nosm nov nowq", **kw)
    gen("kp_06_nowork_nowq_nomlp.s", fc=F, dbg="nok nosm nov nowq nomlp", **kw)
    gen("kp_07_nofc_nowork.s", dbg="nok nosm nov", **kw)
    gen("kp_08_nofc_nowork_nowq.s", dbg="nok nosm nov nowq", **kw)
```

```python
import sys, struct, math
from asmlib import Asm
KN = "recurrent_scan__gqa_block_cached__mixer_token_mlp__decode"
def f32(x): return "0x%08x" % struct.unpack("<I", struct.pack("<f", x))[0]
LOG2E = 1.4426950408889634
FLG = 0; QL = 64; ST = QL + 1024; YP = ST + 128; OP = YP + 256; XN = OP + 4 * 2304; XRS = 1040; WQL = XN + 8 * XRS; KL = WQL + 32768
QOFF = 64 << 10; H1OFF = QOFF + (1 << 20); H1S = 4224; H2OFF = H1OFF + (640 << 10); BD = 4 << 20; PGOFF = 8 << 10; LOCOFF = 32 << 10; STAMP = 128 << 20
HDR = open("cdna_kernels/" + KN + ".s.ref").read().split("; Override launch")[0]

def gen(fname, WIN=6, G=2, RING=40, prof=False, wo_thr=4, ntw="", woflags="", spin=400000, dbg="", WPS=1, dry=False, tailprof=False, NLT=6, slp=2, wqdma=True, sprio=2, bgprio=0, mlp1=8, local=True, fb=31, deferB=True, pretouch=False, pat=None, pat2=None, rot=None, cmap=0, light=False, lslp=0, h1fl='nt', h2sync=True, fc=None, est=None, rq=0, ro=0, sE=True, wolate=None, n0=64, pipe1=1, pipe2=1, stag1=3, stag2=3, h2late=True, h2ack=True, h2pre=False, h2full=False, slp2=0, dbgt=False, dirty=0, clean=False, qslp=None, nloc=200, tmap=(14, 16, None), wotrig=None, wothr=2, wosl=2, womid=True, palign=0, defer=None, h2off=None, tlbw=False, near=None, endwait=False, lastopt=True, pkc=True, warm='', hdel=0, wqdel=0, dp=False, dpt='c3', dpf=4, dpw=0, dpc=6, dpfl="nt", dpp=0, hp=3, hp2=None, h1e=None, wosw=False, t2=False, prew=True, b3=False, wodl=None, t3=False, h1m=0, h2fl='sc1', h2e=False, h2sf='sc1', qprew=False, trot=None, trotw=0, wbar=0, own1=False, lbar=False, fin=0, mr=0, qf=0, dry2=0):
    if fin: assert h2late and not h2e
    if lbar: h2late = False; h2sync = False
    if t3: t2 = True; h2late = False; h2sync = False; assert womid and wotrig is not None
    if t2: assert not dp and lastopt and wosw and not h2full and pkc and not defer
    if dp: assert fc and tmap[2] is None and wotrig is not None and wotrig >= 200
    H2OFF = (576 << 10) if h2off is None else h2off
    MEAS = 48 << 10; CWOFF = 16 << 10
    a = Asm()
    LDSZ = KL + 4 * NLT * 4096
    NLL = 4 * NLT
    NST = 8
    def stamp(i):
        if prof: a(f"s_memrealtime s[{84+2*i}:{85+2*i}]")
    stamp(0)
    if dbgt: a("s_memrealtime s[84:85]\ns_memtime s[86:87]")
    a(f"""
s_load_dwordx2 s[44:45], s[0:1], 8
s_load_dwordx2 s[48:49], s[0:1], 16
v_lshrrev_b32 v2, 6, v0
s_cmp_ge_u32 s2, 256
v_and_b32 v1, 63, v0
v_readfirstlane_b32 s3, v2
s_cbranch_scc1 L_end
s_cmp_ge_u32 s3, 4
s_cbranch_scc1 L_helper
""")
    a(f"""
s_setprio {sprio}
s_mov_b32 s46, 0x4000000
s_mov_b32 s47, 0x20000
s_and_b32 s52, s2, 7
s_lshl_b32 s52, s52, 20
s_lshr_b32 s53, s2, 5
s_lshl_b32 s53, s53, 23
s_or_b32 s52, s52, s53
s_bfe_u32 s53, s2, 0x20003
s_lshl_b32 s53, s53, {tmap[0]}
s_or_b32 s52, s52, s53
s_lshl_b32 s53, s3, 12
s_or_b32 s52, s52, s53
s_mul_i32 s60, s3, {NLT*4096}
s_add_u32 s60, s60, {KL}
v_lshrrev_b32 v5, 4, v1
v_bfe_u32 v6, v1, 2, 2
v_and_b32 v7, 3, v1
v_lshlrev_b32 v2, 8, v6
v_lshl_add_u32 v2, v5, 6, v2
v_lshl_add_u32 v2, v7, 4, v2
""")
    if trot: a(f"s_bfe_u32 s53, s2, {hex((trot[1] << 16) | trot[0])}\ns_lshl_b32 s53, s53, {trot[2]}\ns_xor_b32 s52, s52, s53")
    if trotw: a(f"s_lshl_b32 s53, s3, {trotw}\ns_xor_b32 s52, s52, s53")
    if tmap[2]: a(f"s_and_b32 s53, s2, 7\ns_lshl_b32 s53, s53, {tmap[2]}\ns_xor_b32 s52, s52, s53")
    def late_setup():
        a(f"""
{"" if fc and fc.get("tt", {}).get("notab") else "s_load_dwordx2 s[38:39], s[0:1], 88"}
s_load_dwordx2 s[40:41], s[0:1], 96
s_mov_b32 s50, 0x4000000
s_mov_b32 s51, 0x20000
v_lshlrev_b32 v3, 4, v1
""")
        if fc and fc.get("tt", {}).get("notab"): a(f"""
; schedule exchange: wave 0 of one workgroup per group publishes its clock at a few steps (slot = id&7)
s_lshr_b32 s64, s2, 3
s_cmp_eq_u32 s3, 0
s_cselect_b32 s64, s64, 64
s_and_b32 s65, s2, 7
s_lshl_b32 s65, s65, 3
v_mov_b32 v83, s65
{"s_mov_b64 s[82:83], 0" if prof else ""}
{"s_cselect_b64 vcc, 1, 0" if fc.get("vw") else ""}
s_waitcnt lgkmcnt(0)
s_load_dword s73, s[40:41], 0
s_mov_b32 s76, s40
s_mov_b32 s77, s41
s_mov_b32 s78, 0x10000000
s_mov_b32 s79, 0x20000
""")
        elif fc: a(f"""
s_lshr_b32 s64, s2, 3
s_cmp_eq_u32 s3, 0
s_cselect_b32 s64, s64, 64
s_and_b32 s65, s2, 7
s_lshl_b32 s63, s65, 3
s_lshl_b32 s65, s65, {3 if fc.get("ts") else 2}
v_mov_b32 v83, s65
s_mov_b32 s62, {fc.get('l0', 0)}
s_mov_b64 s[82:83], 0
s_getreg_b32 s66, hwreg(HW_REG_XCC_ID, 0, 3)
s_lshl_b32 s66, s66, 5
s_lshr_b32 s67, s2, 3
s_add_u32 s67, s67, s66
v_mov_b32 v88, s67
v_and_b32 v87, 7, v1
v_lshl_add_u32 v87, v87, 2, s66
s_mov_b32 s74, 0
s_mov_b32 s75, 0
s_cmp_eq_u32 s3, 0
s_cselect_b64 vcc, 1, 0
s_waitcnt lgkmcnt(0)
s_load_dword s73, s[40:41], 0
s_mov_b32 s76, s40
s_mov_b32 s77, s41
s_mov_b32 s78, 0x10000000
s_mov_b32 s79, 0x20000
s_mov_b32 s12, s38
s_mov_b32 s13, s39
s_mov_b32 s14, 256
s_mov_b32 s15, 0x20000
""")
    RB = 256 - RING * 4
    def rreg(n): return RB + ((n - NLL) % RING) * 4
    NL = 128
    st = {"tile": None}
    def issue(n):
        isv = n >= 64; t = (n & 63) >> 2; q = n & 3
        if st["tile"] != (isv, t):
            st["tile"] = (isv, t)
            if tmap: a(f"s_xor_b32 s53, s52, {t << tmap[1]}")
            elif rot is None: a(f"s_add_u32 s53, s52, {t*16384}")
            else: a(f"s_add_u32 s53, s61, {t*16384}\ns_and_b32 s53, s53, 0x3ffff\ns_add_u32 s53, s53, s52")
            if n < NLL: a(f"s_add_u32 m0, s60, {t*4096}\ns_nop 0")
            if n == 0:
                if palign: a(f".p2align {palign}")
                a("s_waitcnt lgkmcnt(0)")
                if st.get("ks"): stamp(7)
        if n < NLL:
            a(f"buffer_load_dwordx4 v2, s[44:47], s53 offen offset:{q*1024} nt lds"); return
        r = rreg(n)
        a(f"buffer_load_dwordx4 v[{r}:{r+3}], {'v3' if isv else 'v2'}, {'s[48:51]' if isv else 's[44:47]'}, s53 offen offset:{q*1024} nt")
    TSR = 6
    QB = 8; Y = 12; ACC = 28; DT = 28; TT = 44; PT = 60; PA = 76; M = 80
    def setup_consts():
        a(f"""
s_mov_b32 s54, 0x05040100
s_mov_b32 s55, 0x07060302
s_mov_b32 s56, {f32(128**-0.5)}
s_mov_b32 s57, {f32(LOG2E)}
v_lshlrev_b32 v4, 8, v7
v_lshl_add_u32 v4, v5, 6, v4
v_lshl_add_u32 v4, v6, 4, v4
v_mov_b32 v84, 0
v_add_u32 v86, s60, v3
""")
    def wait_q():
        stamp(1)
        if "noq" in dbg:
            a(f"ds_read_b128 v[{QB}:{QB+3}], v4 offset:{QL}\ns_waitcnt lgkmcnt(0)"); stamp(2); return
        a(f"""
s_mov_b32 s58, {spin*8}
L_sq:
ds_read_b32 v85, v84 offset:{FLG+4}
s_waitcnt lgkmcnt(0)
v_readfirstlane_b32 s59, v85
s_sub_u32 s58, s58, 1
s_cbranch_scc1 L_sq_done
s_cmp_ge_u32 s59, 4
s_cbranch_scc1 L_sq_done
s_sleep 1
s_branch L_sq
L_sq_done:
ds_read_b128 v[{QB}:{QB+3}], v4 offset:{QL}
{f"ds_read_b32 v85, v84 offset:{FLG+32}" if dp else ""}
s_waitcnt lgkmcnt(0)
{"v_readfirstlane_b32 s42, v85" if dp else ""}
""")
        stamp(2)
        if prof: a("s_waitcnt lgkmcnt(0)")
    def ktile(t):
        if t < NLT:
            for q in range(4): a(f"ds_read_b128 v[{PT+4*q}:{PT+4*q+3}], v86 offset:{t*4096+q*1024}")
        for q in range(4):
            r = rreg(4 * t + q) if t >= NLT else PT + 4 * q
            if t < NLT: a(f"s_waitcnt lgkmcnt({3-q})")
            a(f"v_mfma_f32_16x16x32_bf16 v[{DT+4*q}:{DT+4*q+3}], v[{r}:{r+3}], v[{QB}:{QB+3}], 0")
        for c in range(4):
            for r in range(4):
                n = 4 * ((c - r) % 4)
                ctl = f"row_ror:{n}" if n else "quad_perm:[0,1,2,3]"
                a(f"v_mov_b32_dpp v{TT+r}, v{DT+4*c+r} {ctl} row_mask:0xf bank_mask:{hex(1<<c)}")
        y = Y + t
        a(f"""
v_add_f32 v{TT}, v{TT}, v{TT+1}
v_add_f32 v{TT+2}, v{TT+2}, v{TT+3}
v_add_f32 v{y}, v{TT}, v{TT+2}
v_cvt_pk_bf16_f32 v{y}, v{y}, v{y}
v_lshlrev_b32 v{y}, 16, v{y}
v_mul_f32 v{y}, s56, v{y}
v_cvt_pk_bf16_f32 v{y}, v{y}, v{y}
v_lshlrev_b32 v{y}, 16, v{y}
""")
    def xlane(op, r, t):
        a(f"""
{op}_dpp v{r}, v{r}, v{r} row_ror:4 row_mask:0xf bank_mask:0xf
""") if op != "v_add_f32" else a(f"""
v_add_f32_dpp v{r}, v{r}, v{r} row_ror:4 row_mask:0xf bank_mask:0xf
""")
        a(f"""
{op}_dpp v{r}, v{r}, v{r} row_ror:8 row_mask:0xf bank_mask:0xf
v_mov_b32 v{t}, v{r}
v_permlane16_swap_b32 v{r}, v{t}
{op} v{r}, v{r}, v{t}
v_mov_b32 v{t}, v{r}
v_permlane32_swap_b32 v{r}, v{t}
{op} v{r}, v{r}, v{t}
""")
    def softmax():
        m = M; l = M + 1; t = M + 2
        a(f"v_max3_f32 v{m}, v{Y}, v{Y+1}, v{Y+2}")
        for i in range(3, 15, 2): a(f"v_max3_f32 v{m}, v{m}, v{Y+i}, v{Y+i+1}")
        a(f"v_max_f32 v{m}, v{m}, v{Y+15}")
        xlane("v_max_f32", m, t)
        a(f"v_mul_f32 v{m}, s57, v{m}")
        for i in range(16): a(f"v_fma_f32 v{Y+i}, v{Y+i}, s57, -v{m}")
        for i in range(16): a(f"v_exp_f32 v{Y+i}, v{Y+i}")
        a(f"v_add_f32 v{l}, v{Y}, v{Y+1}")
        a(f"v_add_f32 v{t}, v{Y+2}, v{Y+3}")
        for i in range(4, 16, 2):
            a(f"v_add_f32 v{l}, v{l}, v{Y+i}")
            a(f"v_add_f32 v{t}, v{t}, v{Y+i+1}")
        a(f"v_add_f32 v{l}, v{l}, v{t}")
        for v in range(8): a(f"v_cvt_pk_bf16_f32 v{Y+v}, v{Y+2*v}, v{Y+2*v+1}")
        if t2:
            for i in range(16): a(f"v_mov_b32 v{PA4+i}, 0")
        xlane("v_add_f32", l, t)
        a(f"""
s_lshl_b32 s59, s3, 5
v_lshl_add_u32 v{t}, v1, 3, s59
s_mov_b64 exec, 15
ds_write_b64 v{t}, v[{m}:{m+1}] offset:{ST}
s_mov_b64 exec, 1
v_mov_b32 v{t}, 1
ds_add_u32 v84, v{t} offset:{FLG+16}
s_mov_b64 exec, -1
""")
    PA4 = 36
    def mkpa(v):
        if t2:
            for c in range(4):
                for p in range(4):
                    n = 4 * ((c - p) % 4)
                    a(f"v_mov_b32_dpp v{PA4+4*c+p}, v{Y+v} {f'row_ror:{n}' if n else 'quad_perm:[0,1,2,3]'} row_mask:0xf bank_mask:{hex(1<<c)}")
            return
        a(f"v_mov_b32 v{PA}, v{Y+v}")
        for p in (1, 2, 3):
            a(f"v_mov_b32_dpp v{PA+p}, v{Y+v} row_ror:{4*((0-p)%4)} row_mask:0xf bank_mask:0xf")
    def vchunk(v):
        mkpa(v)
        for half in range(2):
            for jj in range(4 * half, 4 * half + 4):
                o = PT + 4 * (jj & 3)
                for p in range(4):
                    lo = rreg(64 + 8 * v + p) + (jj >> 1); hi = rreg(64 + 8 * v + 4 + p) + (jj >> 1)
                    a(f"v_perm_b32 v{o+p}, v{hi}, v{lo}, {'s55' if jj & 1 else 's54'}")
            for jj in range(4 * half, 4 * half + 4):
                o = PT + 4 * (jj & 3); d = ACC + 4 * jj
                pa = PA
                if t2: d = ACC + 4 * half; pa = PA4 + 4 * (jj & 3)
                c = "0" if (v == 0 and (not t2 or jj & 3 == 0)) else f"v[{d}:{d+3}]"
                a(f"v_mfma_f32_16x16x32_bf16 v[{d}:{d+3}], v[{pa}:{pa+3}], v[{o}:{o+3}], {c}")
    def s_wait(lbl, off, cnt):
        a(f"""
s_mov_b32 s58, {spin*8}
{lbl}:
ds_read_b32 v85, v84 offset:{off}
s_waitcnt lgkmcnt(0)
v_readfirstlane_b32 s59, v85
s_sub_u32 s58, s58, 1
s_cbranch_scc1 {lbl}_done
s_cmp_lt_u32 s59, {cnt}
s_cbranch_scc1 {lbl}
{lbl}_done:
""")
    def s_sig(off): a(f"s_mov_b64 exec, 1\nv_mov_b32 v82, 1\nds_add_u32 v84, v82 offset:{off}\ns_mov_b64 exec, -1")
    AQ = [20, 24, 12, PA]
    def fitem(v0):
        T_ = PT
        s_wait("L_d1", FLG + 16, 4)
        a(f"""
v_and_b32 v4, 3, v1
v_lshlrev_b32 v4, 3, v4
ds_read_b32 v{T_}, v4 offset:{ST}
ds_read_b32 v{T_+1}, v4 offset:{ST+32}
ds_read_b32 v{T_+2}, v4 offset:{ST+64}
ds_read_b32 v{T_+3}, v4 offset:{ST+96}
v_lshlrev_b32 v4, 1, v4
v_lshrrev_b32 v10, 4, v1
v_lshl_add_u32 v4, v10, 6, v4
v_bfe_u32 v11, v1, 2, 2
v_lshl_add_u32 v4, v11, 2, v4
s_lshl_b32 s59, s3, 8
v_add_u32 v4, s59, v4
s_waitcnt lgkmcnt(0)
v_max3_f32 v{T_}, v{T_}, v{T_+1}, v{T_+2}
v_max_f32 v{T_}, v{T_}, v{T_+3}
v_sub_f32 v{T_}, v{M}, v{T_}
v_exp_f32 v{T_}, v{T_}
""")
        for v in range(v0, 8): a(f"v_lshlrev_b32 v{T_+8+2*(v-v0)}, 16, v{Y+v}\nv_and_b32 v{T_+9+2*(v-v0)}, 0xffff0000, v{Y+v}")
        for i in range(4): a(f"v_mov_b32_dpp v{T_+4+i}, v{T_} quad_perm:[{i},{i},{i},{i}] row_mask:0xf bank_mask:0xf")
        for v in range(v0, 8): a(f"v_pk_mul_f32 v[{T_+8+2*(v-v0)}:{T_+9+2*(v-v0)}], v[{T_+8+2*(v-v0)}:{T_+9+2*(v-v0)}], v[{T_}:{T_+1}] op_sel_hi:[1,0]")
        for v in range(v0, 8): a(f"v_cvt_pk_bf16_f32 v{Y+v}, v{T_+8+2*(v-v0)}, v{T_+9+2*(v-v0)}")
        a(f"ds_write_b32 v4, v{Y+7} offset:{QL}")
        s_sig(FLG + 44)
        for jj in range(8):
            d_ = ACC + 4 * jj
            a(f"v_pk_mul_f32 v[{d_}:{d_+1}], v[{d_}:{d_+1}], v[{T_+4}:{T_+5}]\nv_pk_mul_f32 v[{d_+2}:{d_+3}], v[{d_+2}:{d_+3}], v[{T_+6}:{T_+7}]")
        a(f"""
v_lshlrev_b32 v9, 6, v10
v_lshl_add_u32 v9, v11, 4, v9
s_lshl_b32 s59, s3, 2
v_add_u32 v4, s59, v11
v_mul_u32_u24 v4, 144, v4
v_lshl_add_u32 v4, v10, 2, v4
v_and_b32 v8, 3, v1
v_lshl_add_u32 v4, v8, 5, v4
v_mul_u32_u24 v10, {4*H1S}, v10
v_lshl_add_u32 v10, v11, 8, v10
v_bfe_u32 v8, v1, 1, 1
v_lshl_add_u32 v10, v8, 10, v10
v_and_b32 v8, 1, v1
v_lshl_add_u32 v10, v8, 3, v10
v_mov_b32 v11, v9
s_and_b32 s43, s2, 7
s_lshl_b32 s43, s43, 4
s_lshr_b32 s59, s2, 6
s_add_u32 s43, s43, s59
s_mul_i32 s43, s43, {H1S}
s_bfe_u32 s59, s2, 0x30003
s_lshl_b32 s59, s59, 4
s_add_u32 s43, s43, s59
s_lshr_b32 s59, s3, 1
s_lshl_b32 s59, s59, 7
s_add_u32 s43, s43, s59
s_and_b32 s59, s3, 1
s_lshl_b32 s59, s59, 11
s_add_u32 s43, s43, s59
s_add_u32 s43, s43, {H1OFF + 128}
s_mul_i32 s72, s73, 0x01010101
v_mov_b32 v9, s72
s_mul_i32 s59, s3, 2304
v_mul_u32_u24 v8, 144, v1
v_add_u32 v8, s59, v8
""")
    work = [("K", t, 4 * t + 3) for t in list(range(NLT, 16)) + list(range(NLT))] + [("S", 0, 63)] + [("V", v, 64 + 8 * v + 7) for v in range(8)]
    if dp: work.insert(17 + dpf, ("F", dpf, 0))
    consumed = NLL - 1
    wi = 0
    def do_work():
        nonlocal wi, consumed
        k, i, last = work[wi]
        if k == "K":
            if wi == 0: wait_q()
            if "nok" not in dbg: ktile(i)
            consumed = max(consumed, last)
        elif k == "S":
            if "nosm" in dbg: a(f"s_mov_b64 exec, 1\nv_mov_b32 v82, 1\nds_add_u32 v84, v82 offset:{FLG+16}\ns_mov_b64 exec, -1")
            else: softmax()
            stamp(3)
        elif k == "F": fitem(i)
        else:
            if "nov" not in dbg: vchunk(i)
            consumed = last
        wi += 1
    def ztouch():
        a("; prefetch this workgroup's hop-2 inbox lines into the memory-side cache (loaded values are not used)")
        a(f"s_lshl_b32 s4, s2, 2\ns_add_u32 s4, s4, s3\ns_lshl_b32 s4, s4, 9\ns_add_u32 s4, s4, {H2OFF}")
        for i in range(512 // h2pre[1]): a(f"s_load_dword s{16 + i}, s[40:41], s4 offset:{i * h2pre[1]}")
    issued = 0
    ops = []
    def iss(n):
        if dp == 1 and n >= 120:
            i = n - 120; u = i >> 1
            if n == 120: a(f"s_andn2_b32 s70, s52, 0x3000\nv_lshrrev_b32 v2, 4, v1\nv_lshlrev_b32 v2, 8, v2\nv_and_b32 v85, 15, v1\nv_lshl_add_u32 v2, v85, 2, v2\ns_lshl_b32 s59, s3, 6\nv_add_u32 v2, s59, v2")
            if i & 1 == 0: a(f"s_xor_b32 s53, s70, {(14 << tmap[1]) | (u << 12)}\ns_xor_b32 s61, s70, {(15 << tmap[1]) | (u << 12)}")
            for p in (2 * (i & 1), 2 * (i & 1) + 1):
                for hi in range(2):
                    a(f"buffer_load_dword v{rreg(120) + 8*u + 2*p + hi}, v2, s[48:51], s{61 if hi else 53} offen offset:{p*1024} {dpfl}")
                    ops.append(("L", n) if (p & 1 and hi) else ("s", n))
            return
        issue(n); ops.append(("L", n))
    def vm_for(X):
        li = [i for i, o in enumerate(ops) if o[0] == "L"]
        if len(li) <= X: return None
        p = li[len(li) - X - 1]
        return len(ops) - 1 - p, p
    if pat is None: pat = [(WIN, G)]
    if fc: pat = [(fc.get("w0", fc["W"][1]), fc["G"])]
    if est == [-1, -1]: stamp(5); st["ks"] = 1
    for n in range(pat[0][0]): iss(n)
    if est == [-1, -1]: stamp(6); est = [None, None]
    issued = pat[0][0]
    late_setup()
    a("s_barrier")
    setup_consts()
    arrived = -1
    step = 0
    done_op = -1; nw = 0; ph = 0; nctl = 0; evalq = []; PAIRS = [88, 92, 94]; tagdone = False
    while issued < NL:
        pp = pat2 if (pat2 is not None and issued >= n0) else pat
        WIN, G = pp[step % len(pp)]; step += 1
        if not fc:
            if issued - (WIN - G) - 1 > arrived: a(f"s_waitcnt vmcnt({WIN-G})")
            arrived = max(arrived, issued - (WIN - G) - 1)
        else:
            Wl, Wm, Wh = fc["W"]
            opened = False
            for n_, W_ in fc.get("open", []):
                if issued >= n_: Wl, Wm, Wh = W_; opened = Wl == Wh
            while issued + G - 1 - RING > consumed and work[wi][2] > max(arrived, issued - (Wh - G) - 1): Wh -= 1; Wm = min(Wm, Wh); Wl = min(Wl, Wh)
            r = vm_for(Wh - G)
            if r and issued - (Wh - G) - 1 > arrived: a(f"s_waitcnt vmcnt({r[0]})"); done_op = max(done_op, r[1]); arrived = max(arrived, issued - (Wh - G) - 1)
            tt = fc.get("tt")
            if tt:
                if not st.get("ev"):
                    r_ = vm_for(min(tt.get("wp", Wm), Wh) - G)
                    if r_: a(f"s_waitcnt vmcnt({r_[0]}) ;nc")
                else:
                    if not st.get("sl"):
                        a(f"s_waitcnt lgkmcnt(0)\ns_add_u32 s68, s70, {round(tt['U'] * (step - 1))}\ns_sub_u32 s68, s68, s{st['cur']}"); st["ok"] |= st["pend"]; st["pend"] = set()
                    lv = tt["lv"]
                    for n_, l_ in tt.get("lv2", []):
                        if issued >= n_: lv = l_
                    pw = Wh
                    for i_ in range(len(lv) - 1):
                        w_ = min(lv[i_ + 1][0], Wh)
                        if w_ >= pw: continue
                        pw = w_
                        a(f"s_cmpk_lt_i32 s68, {lv[i_][1] & 0xffff} ;nc\ns_cbranch_scc1 L_fs{step} ;nc\ns_waitcnt vmcnt({vm_for(w_ - G)[0]}) ;nc")
                    a(f"L_fs{step}:")
                    if prof and tt.get("tr") and step in tt["tr"]: a("s_lshl_b64 s[82:83], s[82:83], 16\ns_and_b32 s69, s68, 0xffff\ns_or_b32 s82, s82, s69")
            elif not opened: a(f"""
s_cmp_eq_u32 s62, 2 ;nc
s_cbranch_scc1 L_fs{step} ;nc
s_waitcnt vmcnt({vm_for(Wm - G)[0]}) ;nc
s_cmp_eq_u32 s62, 0 ;nc
s_cbranch_scc1 L_fs{step} ;nc
s_waitcnt vmcnt({vm_for(Wl - G)[0]}) ;nc
L_fs{step}:
""")
        if est:
            for i_, e_ in enumerate(est):
                if e_ is not None and arrived >= e_: stamp(5 + i_); est[i_] = None
        g = min(G, NL - issued)
        while issued + g - 1 - RING > consumed:
            if work[wi][2] > arrived:
                assert not fc
                a(f"s_waitcnt vmcnt({issued - 1 - work[wi][2]})"); arrived = work[wi][2]
            do_work()
        for n in range(issued, issued + g): iss(n)
        if wotrig is not None and wotrig >= 0 and issued <= wotrig < issued + g:
            a(f"s_mov_b64 exec, 1\nv_mov_b32 v82, 1\nds_add_u32 v84, v82 offset:{FLG+28}\ns_mov_b64 exec, -1")
        if fc:
            d = fc["d"]; k0 = fc.get("k0", 2); last = (NL - fc.get("stop", 8) - fc["W"][1]) // G
            if step == k0:
                a("s_waitcnt lgkmcnt(0)\ns_add_u32 s73, s73, 1" + ("" if fc.get("tt", {}).get("notab") else "\nv_mov_b32 v90, s73"))
            if step == fc.get("vw"):
                a("s_mov_b64 exec, vcc\nbuffer_load_dword v91, v84, s[48:51], s52 offen nt\ns_mov_b64 exec, -1"); ops.append(("C", 0))
            if fc.get("wg"):
                tt = fc.get("tt")
                tab = step >= fc.get("kw", 4) and step % fc["CW"] == 0 and step <= last and not opened
                if tt and tt.get("notab"): tab = False
                if tt:
                    st.setdefault("ok", set()); st.setdefault("pend", set())
                    if step >= fc.get("kw", 4):
                        st["cur"] = [6, 8, 10, 34, 42][nw % 5] if tab else 4; assert len(evalq) < 5
                        if tab or not st.get("sl"):
                            a(f"s_memrealtime s[{st['cur']}:{st['cur']+1}]"); st["pend"].add(st["cur"]); st["ok"].discard(st["cur"])
                    if prof and step in tt.get("trt", []): stamp([5, 6, 7][tt["trt"].index(step)])
                for e in [e for e in evalq if e[0] <= done_op]:
                    evalq.remove(e)
                    if tt:
                        if e[2] > tt.get("kstop", 99): continue
                        if e[3] not in st["ok"]:
                            assert not st.get("sl"); a("s_waitcnt lgkmcnt(0)"); st["ok"] |= st["pend"]; st["pend"] = set()
                        a(f"v_sad_u8 v85, v{e[1]}, 0, 0\ns_mov_b32 s62, s{e[3]}\ns_call_b64 s[80:81], {'L_cw' if st.get('ev1') else 'L_cw0'}"); st["ev"] = 1; st["ev1"] = 1
                        if tt.get("gl") and not st.get("gx"): a("s_mov_b32 s70, s75")
                    else: a(f"v_sad_u8 v85, v{e[1]}, 0, 0\ns_movk_i32 s68, {32 * e[2]}\ns_call_b64 s[80:81], L_cw")
                if tab and tt and step > tt.get("kstop", 99):
                    a(f"v_mov_b32 v89, {step}\ns_mov_b64 exec, vcc\nbuffer_store_byte v89, v88, s[12:15], 0 offen\ns_mov_b64 exec, -1"); ops.append(("S", 0))
                elif tab:
                    r_ = [91, 92, 93, 94, 95, 86 if NLT == 0 else 5][nw % 6]; nw += 1; assert len(evalq) < 6
                    a(f"""
v_mov_b32 v89, {step}
s_mov_b64 exec, vcc
buffer_store_byte v89, v88, s[12:15], 0 offen
s_mov_b64 exec, -1
buffer_load_dword v{r_}, v87, s[12:15], 0 offen nt
""")
                    ops.append(("S", 0)); ops.append(("C", 0)); evalq.append((len(ops) - 1, r_, step, st.get("cur")))
            if fc.get("ts"):
                for i_, k_ in enumerate(fc["ts"]):
                    if step == k_ - 1 and not fc.get("tt"): a("s_memrealtime s[34:35]")
                    if step == k_:
                        if not fc.get("tt"): a("s_waitcnt lgkmcnt(0)\ns_add_u32 s34, s34, s75\nv_mov_b32 v{TSR}, s34".replace("{TSR}", str(TSR)))
                        elif st.get("ev1"): a(f"s_add_u32 s65, s75, {round(fc['tt']['U'] * step)}\nv_mov_b32 v{TSR}, s65")
                        else:
                            a(f"s_waitcnt lgkmcnt(0)\nv_mov_b32 v{TSR}, s{st['cur']}"); st["ok"] |= st["pend"]; st["pend"] = set()
                            if fc["tt"].get("gl") == 2 and i_ == 0: a(f"s_sub_u32 s70, s{st['cur']}, {round(fc['tt']['U'] * step)}")
                        a(f"""
v_mov_b32 v97, s73
s_movk_i32 s65, {PGOFF + i_ * 256}
s_cmp_eq_u32 s64, {(5 * i_ + 3) % 32}
s_cselect_b64 exec, 1, 0
buffer_store_dwordx2 v[96:97], v83, s[76:79], s65 offen sc1
s_mov_b64 exec, -1
""".replace("v96", f"v{TSR}").replace("v97", f"v{TSR+1}").replace("v[96:97]", f"v[{TSR}:{TSR+1}]"))
                        ops.append(("S", 0))
                    if step == k_ + d:
                        a(f"s_load_dwordx16 s[16:31], s[40:41], {PGOFF + i_ * 256}\ns_load_dwordx2 s[32:33], s[40:41], s63 offset:{PGOFF + i_ * 256}\ns_memrealtime s[36:37]" if fc.get("tt", {}).get("gl") != 2 else f"s_load_dwordx16 s[16:31], s[40:41], {PGOFF + i_ * 256}"); st["sl"] = 1
                    if step == k_ + d + fc.get("dl", 3):
                        if fc.get("tt", {}).get("gl"):
                            a(f"s_movk_i32 s62, {round(fc['tt']['U'] * k_)}\ns_call_b64 s[80:81], {'L_cx' if st.get('gx') or not fc['tt'].get('gsm') else 'L_cx0'}"); st["gx"] = 1; st["ev"] = 1
                        else: a("s_call_b64 s[80:81], L_cx")
                        st["sl"] = 0
                        if wodl is not None and i_ == len(fc["ts"]) - 1:
                            a(f"s_add_u32 s69, s70, {round(fc['tt']['U'] * ((NL - pat[0][0]) // G)) + wodl}\ns_mov_b64 exec, 1\nv_mov_b32 v82, s69\nds_write_b32 v84, v82 offset:{FLG+48}\ns_mov_b64 exec, -1")
                        if fc.get("tt"):
                            st["ok"] |= st["pend"]; st["pend"] = set()
                            if st["cur"] == 4: a("s_memrealtime s[4:5]"); st["pend"].add(4)
            if k0 <= step <= last - d and fc.get("x", 1):
                a(f"""
s_movk_i32 s65, {PGOFF + step * 256}
s_cmp_eq_u32 s64, {step % 32}
s_cselect_b64 exec, 1, 0
buffer_store_dword v90, v83, s[76:79], s65 offen sc1
s_mov_b64 exec, -1
""")
                ops.append(("S", 0))
            if step >= k0 + d and (step - k0 - d) % fc["C"] == 0:
                if nctl > 0: a("s_call_b64 s[80:81], L_cb"); nctl = 0
                if step <= last and fc.get("x", 1):
                    a(f"s_load_dwordx8 s[4:11], s[40:41], {PGOFF + (step - d) * 256}"); nctl = 1
        issued += g
        for _ in range(WPS):
            if wi < len(work) and work[wi][2] <= arrived and (wi > 0 or issued + G - 1 - RING > consumed):
                do_work()
    if "dpst" in dbg: stamp(5); print("drain work:", work[wi:])
    while wi < len(work):
        need_ = work[wi][2]
        if dp == 1 and wi == len(work) - 1:
            if "dpst" in dbg: stamp(6)
            if dpt == "a": s_sig(FLG + 28)
            a("s_mov_b64 exec, 0xffff")
            for jj in range(8): a(f"ds_write_b128 v8, v[{ACC+4*jj}:{ACC+4*jj+3}] offset:{OP+16*jj}")
            s_sig(FLG + 36)
            s_wait("L_d3", FLG + 44, 4)
            for u in range(4): a(f"ds_read_b128 v[{AQ[u]}:{AQ[u]+3}], v11 offset:{QL+256*u}")
            if dpt == "b": s_sig(FLG + 28)
            R0 = rreg(120)
            def dperm(u, p):
                a(f"v_perm_b32 v{PT+8*(u&1)+p}, v{R0+8*u+2*p+1}, v{R0+8*u+2*p}, s54\nv_perm_b32 v{PT+8*(u&1)+4+p}, v{R0+8*u+2*p+1}, v{R0+8*u+2*p}, s55")
            for i in range(8):
                u = i >> 1
                if i == dpc:
                    s_wait("L_d2", FLG + 36, 4)
                    for u_ in range(4): a(f"ds_read_b32 v{36+2*u_}, v4 offset:{OP+2304*u_}\nds_read_b32 v{37+2*u_}, v4 offset:{OP+2304*u_+16}")
                    if "dpst" in dbg: stamp(7)
                if i == 7: a("s_waitcnt lgkmcnt(0)\nv_pk_add_f32 v[36:37], v[36:37], v[38:39]\nv_pk_add_f32 v[40:41], v[40:41], v[42:43]\nv_pk_add_f32 v[36:37], v[36:37], v[40:41]")
                if i < 7:
                    a(f"s_waitcnt vmcnt({vm_for(7 - i)[0]})")
                    if dpt == f"c{7 - i}": s_sig(FLG + 28)
                    dperm(u, 2 * (i & 1)); dperm(u, 2 * (i & 1) + 1)
                else:
                    a("s_waitcnt vmcnt(2)"); dperm(u, 2); a("s_cmp_lg_u32 s42, 0\ns_waitcnt vmcnt(0)"); dperm(u, 3)
                if i == 1: a("s_waitcnt lgkmcnt(0)")
                if i & 1:
                    for e in range(2): a(f"v_mfma_f32_16x16x32_bf16 v[{28+4*e}:{31+4*e}], v[{AQ[u]}:{AQ[u]+3}], v[{PT+8*(u&1)+4*e}:{PT+8*(u&1)+4*e+3}], {f'v[{28+4*e}:{31+4*e}]' if u else '0'}")
            a("v_add_f32 v28, v28, v36\nv_add_f32 v32, v32, v37")
            assert ops[-1] == ("L", 127)
            a(f"""
v_cvt_pk_bf16_f32 v8, v28, v32
s_cbranch_scc1 L_dp_far
buffer_store_dwordx2 v[8:9], v10, s[76:79], s43 offen
L_dp_done:
""")
            stamp(4)
            if dpw: s_sig(FLG + 40)
            break
        if wi == len(work) - 1 and wotrig is not None and wotrig >= 200:
            a(f"s_waitcnt vmcnt({vm_for(wotrig - 200)[0]})")
            if defer:
                a(f"s_cmp_gt_i32 s75, {defer[0]}\ns_cselect_b32 s59, 0x101, 1\ns_mov_b64 exec, 1\nv_mov_b32 v82, s59\nds_add_u32 v84, v82 offset:{FLG+28}")
                if defer[2] > 60:
                    a("v_mov_b32 v89, 62\ns_mov_b64 exec, vcc\nbuffer_store_byte v89, v88, s[12:15], 0 offen"); ops.append(("S", 0))
                a("s_mov_b64 exec, -1")
            else: a(f"s_mov_b64 exec, 1\nv_mov_b32 v82, 1\nds_add_u32 v84, v82 offset:{FLG+28}\ns_mov_b64 exec, -1")
        if wi == len(work) - 1 and lastopt and "nov" not in dbg:
            v = 7; OB = rreg(112)
            def lp(p, jj): a(f"v_perm_b32 v{OB+4*jj+p}, v{rreg(124+p)+(jj>>1)}, v{rreg(120+p)+(jj>>1)}, {'s55' if jj & 1 else 's54'}")
            def lm(jj): a(f"v_mfma_f32_16x16x32_bf16 v[{ACC+4*jj}:{ACC+4*jj+3}], v[{PA}:{PA+3}], v[{OB+4*jj}:{OB+4*jj+3}], v[{ACC+4*jj}:{ACC+4*jj+3}]")
            def lw(jj): a(f"ds_write_b128 v{8 if dp else 4}, v[{ACC+4*jj}:{ACC+4*jj+3}] offset:{OP+16*jj}")
            if t2:
                def lm(jj): a(f"v_mfma_f32_16x16x32_bf16 v[{ACC+4*(jj>>2)}:{ACC+4*(jj>>2)+3}], v[{PA4+4*(jj&3)}:{PA4+4*(jj&3)+3}], v[{OB+4*jj}:{OB+4*jj+3}], v[{ACC+4*(jj>>2)}:{ACC+4*(jj>>2)+3}]")
                a(f"s_lshl_b32 s59, s3, 11\nv_add_u32 v4, s59, v3")
            elif not dp: a(f"s_mul_i32 s59, s3, 2304\nv_mul_u32_u24 v4, 144, v1\nv_add_u32 v4, s59, v4")
            a("v_mov_b32 v82, 1"); mkpa(v)
            if h2pre and h2pre is not True and h2pre[0] == "y": ztouch()
            for p in range(3):
                a(f"s_waitcnt vmcnt({vm_for(3 - p)[0]})")
                for jj in range(8): lp(p, jj)
            a("s_waitcnt vmcnt(0)")
            if dpp: a(f"s_setprio {dpp}")
            lp(3, 0); lp(3, 1)
            for jj in range(6): lp(3, jj + 2); lm(jj)
            stamp(4)
            if t2:
                lm(6); lm(7)
                a(f"ds_write_b128 v4, v[{ACC}:{ACC+3}] offset:{OP}\nds_write_b128 v4, v[{ACC+4}:{ACC+7}] offset:{OP+1024}")
            else:
                a("s_mov_b64 exec, 0xffff"); lw(0); lm(6); lw(1); lm(7)
                for jj in range(2, 8): lw(jj)
            if dp:
                a(f"""
s_mov_b64 exec, 1
ds_add_u32 v84, v82 offset:{FLG+36}
s_mov_b64 exec, -1
s_mov_b32 s58, {spin*8}
L_d2:
ds_read_b32 v85, v84 offset:{FLG+36}
""")
                for u_ in range(4): a(f"ds_read_b32 v{PT+2*u_}, v4 offset:{OP+2304*u_}\nds_read_b32 v{PT+1+2*u_}, v4 offset:{OP+2304*u_+16}")
                a(f"""
s_waitcnt lgkmcnt(8)
v_readfirstlane_b32 s59, v85
s_sub_u32 s58, s58, 1
s_cbranch_scc1 L_d2_done
s_cmp_lt_u32 s59, 4
s_cbranch_scc1 L_d2
L_d2_done:
s_cmp_lg_u32 s42, 0
s_waitcnt lgkmcnt(4)
v_pk_add_f32 v[{PT}:{PT+1}], v[{PT}:{PT+1}], v[{PT+2}:{PT+3}]
s_waitcnt lgkmcnt(0)
v_pk_add_f32 v[{PT+4}:{PT+5}], v[{PT+4}:{PT+5}], v[{PT+6}:{PT+7}]
v_pk_add_f32 v[{PT}:{PT+1}], v[{PT}:{PT+1}], v[{PT+4}:{PT+5}]
v_cvt_pk_bf16_f32 v8, v{PT}, v{PT+1}
s_cbranch_scc1 L_dp_far
buffer_store_dwordx2 v[8:9], v10, s[76:79], s43 offen
L_dp_done:
""")
                if est: stamp(7)
                if dpw: s_sig(FLG + 40)
            break
        if need_ > arrived:
            r = vm_for(NL - 1 - need_) if fc else (NL - 1 - need_,)
            a(f"s_waitcnt vmcnt({r[0]})"); arrived = need_
        do_work()
    else:
        stamp(4)
        a(f"""
s_mul_i32 s59, s3, 2304
v_mul_u32_u24 v4, 144, v1
v_add_u32 v4, s59, v4
s_mov_b64 exec, 0xffff
""")
        for jj in range(8):
            a(f"ds_write_b128 v4, v[{ACC+4*jj}:{ACC+4*jj+3}] offset:{OP+16*jj}")
    if not dp: a("""
s_mov_b64 exec, -1
s_waitcnt lgkmcnt(0)
s_barrier
""")
    if h2pre and h2pre is not True and h2pre[0] == "z": ztouch()
    if t3: a("s_barrier")
    if wbar: a("s_barrier")
    if lbar: a("s_barrier")
    if dirty:
        a(f"""
s_mov_b32 s44, s40
s_mov_b32 s45, s41
s_mov_b32 s46, 0x10000000
s_mov_b32 s47, 0x20000
s_lshl_b32 s59, s2, 2
s_add_u32 s59, s59, s3
s_mul_i32 s59, s59, {dirty*1024}
s_add_u32 s59, s59, {64 << 20}
s_sleep 64
""")
        for i in range(dirty): a(f"buffer_store_dwordx4 v[28:31], v3, s[44:47], s59 offen\ns_add_u32 s59, s59, 1024")
    if prof:
        a(f"""
s_mov_b32 s44, s40
s_mov_b32 s45, s41
s_mov_b32 s46, 0x10000000
s_mov_b32 s47, 0x20000
s_sleep 127
s_sleep 127
s_sleep 127
s_waitcnt lgkmcnt(0)
s_lshl_b32 s59, s2, 3
s_add_u32 s59, s59, s3
s_lshl_b32 s59, s59, 6
s_add_u32 s59, s59, {STAMP}
v_mov_b32 v4, 0
s_mov_b64 exec, 1
""")
        for i in range(8):
            trt = fc and fc.get("tt", {}).get("trt")
            sr = 82 if (i == 5 and fc and not est and not trt) else 84 + 2 * (i if est or trt else min(i, 4))
            a(f"v_mov_b32 v8, s{sr}\nv_mov_b32 v9, s{sr+1}\nbuffer_store_dwordx2 v[8:9], v4, s[44:47], s59 offen offset:{8*i}\ns_waitcnt vmcnt(0)")
    a("s_endpgm")
    if dp: a("L_dp_far:\nbuffer_store_dwordx2 v[8:9], v10, s[76:79], s43 offen sc1\ns_branch L_dp_done")
    X = 32
    S1 = 12; S2 = 13; T0 = 14; T1 = 15; NM = 16; RS = 18
    W1 = 40; B1 = 47; W2 = 54; HX = 62; U = 66; AA = 73; EE = 80; ACC2 = 87; C1 = 88; YA = 89
    WB = 192
    def srd(base, lo, size): a(f"s_mov_b32 s{base}, s{lo}\ns_mov_b32 s{base+1}, s{lo+1}\ns_mov_b32 s{base+2}, {size}\ns_mov_b32 s{base+3}, 0x20000")
    def bfround(r): a(f"v_cvt_pk_bf16_f32 v{r}, v{r}, v{r}\nv_lshlrev_b32 v{r}, 16, v{r}")
    def stats_finish():
        a(f"""
v_mul_f32 v{S1}, {f32(1/512)}, v{S1}
v_mul_f32 v{S2}, {f32(1/512)}, v{S2}
v_fma_f32 v{S2}, -v{S1}, v{S1}, v{S2}
v_max_f32 v{S2}, 0, v{S2}
""")
        bfround(S1); bfround(S2)
        a(f"v_add_f32 v{S2}, {f32(1e-5)}, v{S2}")
        bfround(S2)
        a(f"v_sqrt_f32 v{S2}, v{S2}")
        bfround(S2)
        a(f"""
v_rcp_f32 v{RS}, v{S2}
v_sub_f32 v{NM}, 0, v{S1}
v_sub_f32 v{NM+1}, 0, v{S1}
v_mov_b32 v{RS+1}, v{RS}
""")
    def swaps_add(r, t):
        a(f"""
v_mov_b32 v{t}, v{r}
v_permlane16_swap_b32 v{r}, v{t}
v_add_f32 v{r}, v{r}, v{t}
v_mov_b32 v{t}, v{r}
v_permlane32_swap_b32 v{r}, v{t}
v_add_f32 v{r}, v{r}, v{t}
""")
    def normalize(src, dst, n, tmp):
        for i0 in range(0, n, 4):
            idx = list(range(i0, min(n, i0 + 4)))
            for i in idx:
                t = tmp + 2 * (i - i0)
                a(f"v_lshlrev_b32 v{t}, 16, v{src+i}\nv_and_b32 v{t+1}, 0xffff0000, v{src+i}")
            for i in idx:
                t = tmp + 2 * (i - i0)
                a(f"v_pk_add_f32 v[{t}:{t+1}], v[{t}:{t+1}], v[{NM}:{NM+1}]")
            for i in idx:
                t = tmp + 2 * (i - i0)
                a(f"v_cvt_pk_bf16_f32 v{t}, v{t}, v{t+1}")
            for i in idx:
                t = tmp + 2 * (i - i0)
                a(f"v_and_b32 v{t+1}, 0xffff0000, v{t}\nv_lshlrev_b32 v{t}, 16, v{t}")
            for i in idx:
                t = tmp + 2 * (i - i0)
                a(f"v_pk_mul_f32 v[{t}:{t+1}], v[{t}:{t+1}], v[{RS}:{RS+1}]")
            for i in idx:
                t = tmp + 2 * (i - i0)
                a(f"v_cvt_pk_bf16_f32 v{dst+i}, v{t}, v{t+1}")
    def lds_wait(lbl, off, cnt, sl=0, msk=False, bnd=None):
        a(f"""
s_mov_b32 s58, {bnd or spin*8}
{lbl}:
ds_read_b32 v4, v9 offset:{off}
s_waitcnt lgkmcnt(0)
v_readfirstlane_b32 s59, v4
s_sub_u32 s58, s58, 1
s_cbranch_scc1 {lbl}_done
{"s_and_b32 s27, s59, 255" if msk else ""}
s_cmp_lt_u32 {"s27" if msk else "s59"}, {cnt}
{f"s_sleep {sl}" if sl else ""}
s_cbranch_scc1 {lbl}
{lbl}_done:
""")
    def lds_signal(off):
        a(f"""
s_mov_b64 exec, 1
ds_add_u32 v9, v11 offset:{off}
s_mov_b64 exec, -1
""")
    def orred(ts):
        ts = list(ts)
        while len(ts) > 1:
            if len(ts) >= 3:
                a(f"v_or3_b32 v{ts[0]}, v{ts[0]}, v{ts[1]}, v{ts[2]}"); ts = ts[3:] + [ts[0]]
            else:
                a(f"v_or_b32 v{ts[0]}, v{ts[0]}, v{ts[1]}"); ts = [ts[0]]
        return ts[0]
    def chk8(tags, tmp):
        if b3 and len(tags) % 2 == 0:
            for i in range(len(tags) // 2): a(f"v_bitop3_b32 v{tmp+i}, v{tags[2*i]}, v{tags[2*i+1]}, s12 bitop3:0x7e")
            return orred([tmp + i for i in range(len(tags) // 2)])
        for i, t in enumerate(tags): a(f"v_xor_b32 v{tmp+i}, s12, v{t}")
        return orred([tmp + i for i in range(len(tags))])
    def chk16(bases, tmp, tagreg):
        out = []
        for i, b in enumerate(bases):
            a(f"v_perm_b32 v{tmp+2*i}, v{b+1}, v{b}, s20\nv_perm_b32 v{tmp+2*i+1}, v{b+3}, v{b+2}, s21")
        for i, b in enumerate(bases):
            a(f"v_or_b32 v{tmp+2*i}, v{tmp+2*i}, v{tmp+2*i+1}")
        for i, b in enumerate(bases):
            a(f"v_xor_b32 v{tmp+2*i}, s{tagreg}, v{tmp+2*i}"); out.append(tmp + 2 * i)
        return orred(out)
    def pack16(dst, srcs, tagv):
        for i, r in enumerate(srcs): a(f"v_perm_b32 v{dst+i}, v{r}, v{tagv}, s{16+i}")
    def poll(lbl, loads, chk, fbr=None, post=None, st=None, pipe=1, stag=0, sl=None, mid=None, pre=False, bnd=None):
        if sl is None: sl = slp
        if fbr is not None: a(f"s_mov_b32 s82, s{fbr}\ns_add_u32 s83, s{fbr}, {BD}")
        a(f"s_mov_b32 s58, {bnd or spin}")
        for _ in range(pipe - 1):
            for l in loads: a(l)
            if stag: a(f"s_sleep {stag}")
        if mid:
            if not pre:
                for l in loads: a(l)
            mid()
            if "h1vm" in dbg: stamp(4)
            a(f"s_branch {lbl}_chk")
        a(f"{lbl}:")
        if st is not None and (tailprof or (st == 4 and "h1it" in dbg) or (st == 3 and "h2it" in dbg)): stamp(4 if "h2it" in dbg else st)
        for l in loads: a(l)
        if mid: a(f"{lbl}_chk:")
        a(f"s_waitcnt vmcnt({len(loads) * (pipe - 1)})")
        r = chk()
        if post: r = post(r)
        a(f"""
v_cmp_ne_u32 vcc, 0, v{r}
s_sub_u32 s58, s58, 1
s_cbranch_scc1 {lbl}_done
s_and_b64 exec, exec, vcc
s_cbranch_execz {lbl}_done
""")
        if fbr is not None: a(f"s_and_b32 s59, s58, {fb}\ns_cselect_b32 s{fbr}, s82, s83")
        if sl: a(f"s_sleep {sl}")
        a(f"""
s_branch {lbl}
{lbl}_done:
s_mov_b64 exec, -1
""")
    a("""; ---------------- helper waves
L_helper:
s_load_dwordx16 s[16:31], s[0:1], 0
s_load_dwordx8 s[32:39], s[0:1], 64
s_load_dwordx2 s[40:41], s[0:1], 96
v_and_b32 v3, 15, v0
v_lshlrev_b32 v3, 2, v3
v_mov_b32 v4, 0
ds_write_b32 v3, v4
s_setprio 3
s_sub_u32 s3, s3, 4
s_waitcnt lgkmcnt(0)
""")
    if "probe" in dbg:
        srd(52, 40, 0x10000000)
        pl = "probel" in dbg
        a(f"""
s_cmp_lt_u32 s3, 2
s_cbranch_scc1 L_noprobe
s_and_b32 s4, s3, 1
s_lshl_b32 s4, s4, 13
s_lshl_b32 s5, s2, 14
s_add_u32 s4, s4, s5
s_add_u32 s4, s4, {8 << 20}
s_mov_b64 exec, 1
s_memtime s[76:77]
s_waitcnt lgkmcnt(0)
{"s_load_dword s5, s[40:41], s4 offset:128" if "probew" in dbg else ""}
s_waitcnt lgkmcnt(0)
{"s_memtime s[76:77]" if "probew" in dbg else ""}
s_waitcnt lgkmcnt(0)
{"s_load_dword s5, s[40:41], s4" if "probes" in dbg else "buffer_load_dword v5, v4, s[52:55], s4 offen sc1" if pl else "buffer_store_dword v4, v4, s[52:55], s4 offen sc1"}
s_waitcnt vmcnt(0) lgkmcnt(0)
s_memtime s[78:79]
s_waitcnt lgkmcnt(0)
s_sub_u32 s98, s78, s76
s_mov_b32 s99, 0
s_mov_b64 exec, -1
L_noprobe:
""")
    if near: a(f"s_cmp_lt_u32 s2, {8 * near['nw']}\ns_cbranch_scc1 L_meas\nL_meas_done:")
    if "s" in warm:
        a("""
s_and_b32 s4, s2, 7
s_lshl_b32 s4, s4, 20
s_lshr_b32 s5, s2, 5
s_lshl_b32 s5, s5, 23
s_or_b32 s4, s4, s5
s_load_dword s76, s[20:21], s4
s_and_b32 s4, s2, 4
s_lshl_b32 s4, s4, 19
s_load_dword s77, s[24:25], s4
s_load_dword s78, s[36:37], 0
s_load_dword s79, s[38:39], 0
""")
    if "m" in warm:
        a("""
s_load_dword s76, s[16:17], 0
s_load_dword s77, s[22:23], 0
s_load_dword s78, s[22:23], 0x200000
s_load_dword s79, s[28:29], 0
s_load_dword s76, s[30:31], 0
s_load_dword s77, s[32:33], 0
s_load_dword s78, s[34:35], 0
""".replace("0x200000", "0xffffc"))
    srd(44, 16, 8192); srd(48, 22, 0x400000); srd(52, 40, 0x10000000); srd(56, 24, 0x400000)
    srd(60, 28, 3584); srd(64, 30, 3584); srd(68, 32, 3584)
    a(f"""
v_lshrrev_b32 v5, 4, v1
v_and_b32 v6, 7, v1
v_and_b32 v8, 15, v1
v_lshrrev_b32 v7, 5, v1
v_and_b32 v4, 31, v1
v_lshlrev_b32 v4, 4, v4
v_lshl_add_u32 v2, v7, 10, v4
s_lshl_b32 s6, s3, 11
v_mov_b32 v9, 0
v_mov_b32 v11, 1
v_lshrrev_b32 v20, 3, v1
v_lshlrev_b32 v21, 13, v20
v_lshl_add_u32 v21, v6, 4, v21
v_lshlrev_b32 v22, {12 if t2 else 10}, v20
v_lshl_add_u32 v22, v6, 4, v22
s_and_b32 s15, s2, 7
s_lshr_b32 s14, s2, 3
s_add_u32 s4, s14, {rq}
s_and_b32 s4, s4, 7
s_add_u32 s14, s14, {ro}
s_and_b32 s14, s14, 7
s_lshl_b32 s8, s15, 3
s_add_u32 s8, s8, s4
s_lshr_b32 s9, s2, 6
s_lshl_b32 s4, s9, 2
s_add_u32 s4, s4, s3
s_lshl_b32 s4, s4, 18
s_lshl_b32 s5, s8, 7
s_add_u32 s72, s4, s5
s_lshl_b32 s13, s15, 2
s_add_u32 s13, s13, s9
s_lshl_b32 s4, s13, {7 if t3 else 2}
s_add_u32 s4, s4, s3
s_lshl_b32 s4, s4, {10 if t3 else 15}
s_lshl_b32 s5, s14, 7
s_add_u32 s73, s4, s5
s_lshl_b32 s4, s3, 12
s_add_u32 s74, s4, {WQL}
s_mul_i32 s75, s3, 896
v_lshlrev_b32 v23, 1, v1
s_barrier
""")
    if "nohelp" in dbg: a("s_branch L_pre2")
    if hdel: a(f"s_sleep {hdel}")
    a(f"""
buffer_load_dwordx4 v[{X}:{X+3}], v2, s[44:47], s6 offen
buffer_load_dwordx4 v[{X+4}:{X+7}], v2, s[44:47], s6 offen offset:512
{"s_load_dword s42, s[40:41], 0" if sE else "buffer_load_dword v10, v9, s[52:55], 0 offen sc1"}
""")
    def h2touch():
        stp = h2pre[1]
        if stp == "v":
            a(f"s_lshl_b32 s4, s2, 2\ns_add_u32 s4, s4, s3\ns_lshl_b32 s4, s4, 9\ns_add_u32 s4, s4, {H2OFF}\nv_lshlrev_b32 v94, 3, v1\nbuffer_load_dwordx2 v[94:95], v94, s[52:55], s4 offen {h2pre[2]}")
            return
        a(f"s_lshl_b32 s4, s2, 2\ns_add_u32 s4, s4, s3\ns_lshl_b32 s4, s4, 9\ns_add_u32 s4, s4, {H2OFF}")
        for i in range(512 // stp): a(f"s_load_dword s{96 + (i & 3) if not prof else 27}, s[40:41], s4 offset:{i * stp}")
    if h2pre and h2pre is not True and h2pre[0] == "e": h2touch()
    if "nowq" in dbg: a("s_mov_b32 s50, 0\ns_mov_b32 s58, 0")
    if wqdel: a(f"s_sleep {wqdel}")
    for t in range(4):
        a(f"s_add_u32 m0, s74, {t*1024}\ns_nop 0\nbuffer_load_dwordx4 v21, s[48:51], s72 offen nt lds")
        if t < 3: a(f"s_add_u32 s72, s72, {8*8192}")
    def wodma(t, vr, so, sl):
        if wosw and t & 1: vr = 152
        a(f"s_add_u32 m0, s{sl}, {16384+t*1024}\ns_nop 0\nbuffer_load_dwordx4 v{vr}, {'s[56:59]' if wolate is None else 's[68:71]'}, s{so} offen nt lds")
        if t < 3: a(f"s_add_u32 s{so}, s{so}, {32768 if t3 else 1024 if t2 else 8*1024}")
    if wolate is None:
        for t in range(4): wodma(t, 22, 73, 74)
    else:
        if wosw: a("v_and_b32 v90, 1, v5\nv_lshlrev_b32 v90, 5, v90\nv_xor_b32 v90, v90, v22\nv_xor_b32 v152, 64, v90\ns_mov_b32 s22, s73\ns_mov_b32 s23, s74")
        else: a("v_mov_b32 v90, v22\ns_mov_b32 s22, s73\ns_mov_b32 s23, s74")
    NW = 0 if wolate is None else 4
    for t in range(7):
        a(f"buffer_load_ushort v{W1+t}, v23, s[60:63], s75 offen offset:{128*t}")
        a(f"buffer_load_ushort v{B1+t}, v23, s[64:67], s75 offen offset:{128*t}")
        a(f"buffer_load_ushort v{W2+t}, v23, s[68:71], s75 offen offset:{128*t}")
    srd(60, 34, 2); srd(64, 36, 8192); srd(68, 24, 0 if ('nowq' in dbg or 'nowo2' in dbg) else 0x400000)
    a(f"""
v_and_b32 v30, 3, v1
v_lshlrev_b32 v30, {3 if t3 else 1}, v30
v_lshl_add_u32 v30, v5, {1 if t3 else 5}, v30
""" + ("s_lshl_b32 s10, s2, 5" if t3 else """s_lshr_b32 s10, s2, 2
s_lshl_b32 s10, s10, 7
s_and_b32 s4, s2, 3
s_lshl_b32 s4, s4, 3
s_add_u32 s10, s10, s4""") + f"""
buffer_load_ushort v31, v9, s[60:63], 0 offen
buffer_load_ushort v29, v30, s[44:47], s10 offen
s_mov_b32 s16, 0x07060500
s_mov_b32 s17, 0x07060501
s_mov_b32 s18, 0x07060502
s_mov_b32 s19, 0x07060503
s_mov_b32 s20, 0x0c0c0400
s_mov_b32 s21, 0x04000c0c
s_getreg_b32 s43, hwreg(HW_REG_XCC_ID, 0, 4)
s_lshl_b32 s43, s43, 3
s_add_u32 s43, s43, s15
s_lshl_b32 s43, s43, 7
s_add_u32 s43, s43, {LOCOFF}
s_lshr_b32 s59, s2, 3
s_lshl_b32 s59, s59, 2
s_add_u32 s59, s59, s43
s_mov_b32 s11, 0x3f803f80
v_mov_b32 v{S1}, 0
v_mov_b32 v{S2}, 0
s_waitcnt lgkmcnt(0)
s_add_u32 s42, s42, 1
s_mul_i32 s12, s42, 0x01010101
v_mov_b32 v10, s12
s_cmp_eq_u32 s3, 0
s_cselect_b64 exec, 1, 0
buffer_store_dword v10, v9, s[52:55], s59 offen
s_mov_b64 exec, -1
s_waitcnt vmcnt({32 - NW + (1 if h2pre and h2pre is not True and h2pre[:2] == ('e', 'v') else 0)})
""")
    for i in range(8):
        a(f"v_dot2_f32_bf16 v{S1}, v{X+i}, s11, v{S1}")
        a(f"v_dot2_f32_bf16 v{S2}, v{X+i}, v{X+i}, v{S2}")
    for n in (8, 4, 2, 1):
        a(f"v_add_f32_dpp v{S1}, v{S1}, v{S1} row_ror:{n} row_mask:0xf bank_mask:0xf")
        a(f"v_add_f32_dpp v{S2}, v{S2}, v{S2} row_ror:{n} row_mask:0xf bank_mask:0xf")
    a(f"""
v_mov_b32 v{T0}, v{S1}
v_mov_b32 v{T1}, v{S2}
v_permlane16_swap_b32 v{S1}, v{T0}
v_permlane16_swap_b32 v{S2}, v{T1}
v_add_f32 v{S1}, v{S1}, v{T0}
v_add_f32 v{S2}, v{S2}, v{T1}
""")
    stats_finish()
    normalize(X, X, 8, 20)
    a(f"""
s_mul_i32 s4, s3, {2*XRS}
v_mul_u32_u24 v2, {XRS}, v7
v_add3_u32 v2, v2, v4, s4
ds_write_b128 v2, v[{X}:{X+3}] offset:{XN}
ds_write_b128 v2, v[{X+4}:{X+7}] offset:{XN+512}
v_mul_u32_u24 v2, {XRS}, v6
v_lshl_add_u32 v2, v5, 4, v2
s_lshl_b32 s4, s9, 8
v_add_u32 v2, s4, v2
v_bfe_u32 v3, v1, 2, 2
v_lshl_add_u32 v3, v5, 3, v3
v_lshlrev_b32 v3, 7, v3
v_and_b32 v20, 3, v1
v_lshl_add_u32 v3, v20, 3, v3
s_lshl_b32 s4, s3, 5
v_add_u32 v24, s4, v3
s_waitcnt vmcnt(24) lgkmcnt(0)
""")
    lds_signal(FLG + 8)
    a(f"""
v_and_b32 v27, 31, v1
v_lshlrev_b32 v27, 2, v27
buffer_load_dword v150, v27, s[52:55], s43 offen nt
v_lshlrev_b32 v25, 4, v5
v_lshl_add_u32 v25, v6, 11, v25
s_lshr_b32 s4, s8, 1
s_lshl_b32 s4, s4, 5
s_add_u32 s4, s4, s9
s_lshl_b32 s4, s4, 1
s_and_b32 s5, s8, 1
s_add_u32 s4, s4, s5
s_lshl_b32 s4, s4, 2
s_add_u32 s4, s4, s3
s_lshl_b32 s4, s4, 6
s_add_u32 s72, s4, {QOFF}
s_mov_b32 s26, 0
""")
    if qprew: a("v_not_b32 v132, v10\nv_not_b32 v133, v10\nv_not_b32 v134, v10\nv_not_b32 v135, v10\ns_mov_b32 exec_lo, 0x00ff00ff\ns_mov_b32 exec_hi, 0x00ff00ff\nbuffer_store_dwordx4 v[132:135], v25, s[52:55], s72 offen\ns_mov_b64 exec, -1")
    lds_wait("L_xw", FLG + 8, 4)
    for t in range(4):
        a(f"ds_read_b128 v[{96+4*t}:{99+4*t}], v2 offset:{XN+64*t}")
        for u in range(2): a(f"ds_read_b64_tr_b16 v[{112+4*t+2*u}:{113+4*t+2*u}], v24 offset:{WQL+t*4096+u*512}")
    a("s_waitcnt lgkmcnt(0)")
    stamp(1)
    for t in range(4):
        a(f"v_mfma_f32_16x16x32_bf16 v[128:131], v[{112+4*t}:{115+4*t}], v[{96+4*t}:{99+4*t}], {'0' if t == 0 else 'v[128:131]'}")
    pack16(132, [128, 129, 130, 131], 10)
    Q2OFF = H1OFF + 128 * H1S
    if qf: a(f"""
v_perm_b32 v136, v129, v128, s20
v_perm_b32 v137, v131, v130, s21
v_lshrrev_b32 v138, 1, v25
v_or_b32 v136, v136, v137
v_mov_b32 v137, v10
s_lshr_b32 s73, s72, 1
s_add_u32 s73, s73, {Q2OFF - QOFF // 2}
""")
    if "cutq" in dbg: a("s_branch L_pre2")
    a(f"""
s_movk_i32 s58, {nloc}
L_lc:
s_waitcnt vmcnt(0)
v_cmp_ne_u32 vcc, s12, v150
s_cbranch_vccz L_lc_done
buffer_load_dword v150, v27, s[52:55], s43 offen nt
s_sub_u32 s58, s58, 1
s_cbranch_scc0 L_lc
s_mov_b32 s26, 1
L_lc_done:
{"s_mov_b32 s26, 1" if clean else ""}
{"s_and_b32 s26, s3, 1" if "mixw" in dbg else ""}
{"s_bfe_u32 s26, s2, 0x10003" if "mixj" in dbg else ""}
s_mov_b32 exec_lo, 0x00ff00ff
s_mov_b32 exec_hi, 0x00ff00ff
s_cmp_lg_u32 s26, 0
s_cbranch_scc1 L_qs_far
buffer_store_dwordx4 v[132:135], v25, s[52:55], s72 offen
{"buffer_store_dwordx2 v[136:137], v138, s[52:55], s73 offen" if qf else ""}
L_qs_done:
s_mov_b64 exec, -1
""")
    if near: a(f"s_lshl_b32 s4, s3, 8\ns_add_u32 s4, s4, s2\ns_sub_u32 s4, s4, 512\ns_cmp_lt_u32 s4, {8 * near['nw']}\ns_cbranch_scc1 L_mpub\nL_mpub_done:")
    if "cutp" in dbg: a("s_branch L_pre2")
    stamp(2)
    a(f"s_setprio {bgprio}")
    def woread(vr, kks=None):
        if own1:
            for kk in (kks or [1, 2, 3]):
                for nt_ in range(4):
                    for u in range(2): a(f"ds_read_b64_tr_b16 v[{WB+16*nt_+4*kk+2*u}:{WB+16*nt_+4*kk+2*u+1}], v{176+4*kk+nt_} offset:{WQL+16384+u*512}")
            return
        if t3:
            for nt_ in range(4):
                for u in range(2): a(f"ds_read_b64_tr_b16 v[{WB+4*nt_+2*u}:{WB+4*nt_+2*u+1}], v{153+nt_} offset:{WQL+16384+u*512}")
            return
        for nt_ in range(4):
            for kk in range(4):
                for u in range(2):
                    r = WB + 16 * nt_ + 4 * kk + 2 * u
                    if wosw: a(f"ds_read_b64_tr_b16 v[{r}:{r+1}], v{153+nt_} offset:{WQL+16384+kk*4096+u*512}")
                    else: a(f"ds_read_b64_tr_b16 v[{r}:{r+1}], v{vr} offset:{WQL+16384+kk*4096+u*512+nt_*32}")
    if wolate is None: woread(3)
    elif wosw: a("v_bfe_u32 v153, v1, 3, 2\nv_lshl_add_u32 v153, v153, 5, v3\n" + ("s_lshl_b32 s4, s3, 12\nv_add_u32 v153, s4, v153\n" if t3 else "") + "v_xor_b32 v154, 32, v153\nv_xor_b32 v155, 64, v153\nv_xor_b32 v156, 0x60, v153")
    else: a("v_mov_b32 v91, v3")
    a(f"""
s_lshr_b32 s4, s2, 5
s_mul_i32 s4, s4, {XRS}
v_lshl_add_u32 v2, v1, 4, s4
ds_read_b128 v[{HX}:{HX+3}], v2 offset:{XN}
v_mov_b32 v{S1}, 0
v_mov_b32 v{S2}, 0
s_waitcnt lgkmcnt(0)
""")
    for i in range(4):
        a(f"v_dot2_f32_bf16 v{S1}, v{HX+i}, s11, v{S1}")
        a(f"v_dot2_f32_bf16 v{S2}, v{HX+i}, v{HX+i}, v{S2}")
    for n in (8, 4, 2, 1):
        a(f"v_add_f32_dpp v{S1}, v{S1}, v{S1} row_ror:{n} row_mask:0xf bank_mask:0xf")
        a(f"v_add_f32_dpp v{S2}, v{S2}, v{S2} row_ror:{n} row_mask:0xf bank_mask:0xf")
    swaps_add(S1, T0); swaps_add(S2, T1)
    stats_finish()
    normalize(HX, HX, 4, 20)
    if t3:
        a("s_and_b32 s4, s2, 31\ns_lshl_b32 s4, s4, 1")
        for i in range(4): a(f"v_readlane_b32 s{72+i}, v{HX+i}, s4")
        a("s_add_u32 s4, s4, 1")
        for i in range(4): a(f"v_readlane_b32 s{76+i}, v{HX+i}, s4")
    else: a(f"""
s_bitcmp1_b32 s2, 0
s_cselect_b64 vcc, -1, 0
s_bfe_u32 s4, s2, 0x30002
s_lshl_b32 s4, s4, 3
s_bfe_u32 s5, s2, 0x10001
s_add_u32 s4, s4, s5
v_cndmask_b32 v{HX}, v{HX}, v{HX+2}, vcc
v_cndmask_b32 v{HX+1}, v{HX+1}, v{HX+3}, vcc
""")
    for i in range(0 if t3 else 4):
        a(f"v_readlane_b32 s{72+2*i}, v{HX}, s4\nv_readlane_b32 s{73+2*i}, v{HX+1}, s4")
        if i < 3: a("s_add_u32 s4, s4, 2")
    a("s_waitcnt vmcnt(2)")
    for i in range(21): a(f"v_lshlrev_b32 v{W1+i}, 16, v{W1+i}")
    c0 = -2 * LOG2E * math.sqrt(2 / math.pi); c1 = c0 * 0.044715
    a(f"""
v_mov_b32 v{C1}, {f32(c1)}
s_lshl_b32 s4, s3, 6
v_mov_b32 v{YA}, s4
""")
    def mlp_steps(lo, hi):
        for d in range(lo, hi):
            if d & 1: a(f"s_and_b32 s4, s{72+(d>>1)}, 0xffff0000")
            else: a(f"s_lshl_b32 s4, s{72+(d>>1)}, 16")
            if "nomlp" not in dbg: a("s_call_b64 s[80:81], L_mlp")
            if wolate is not None and wotrig is None and d in wolate: wodma(wolate.index(d), 90, 22, 23)
    mlp_steps(0, mlp1)
    a("; gather the four K-split partials of q (head = helper index) and hand q to the stream waves through LDS")
    a(f"""
s_setprio 3
s_lshr_b32 s4, s2, 5
s_lshl_b32 s4, s4, 11
s_lshl_b32 s5, s15, 2
s_add_u32 s5, s5, s3
s_lshl_b32 s5, s5, 14
s_add_u32 s4, s4, s5
s_add_u32 s6, s4, {QOFF}
v_lshlrev_b32 v2, 4, v1
{f"v_lshlrev_b32 v138, 3, v1" if qf else ""}
{f"s_lshr_b32 s7, s4, 1" if qf else ""}
{f"s_add_u32 s7, s7, {Q2OFF}" if qf else ""}
s_cmp_lg_u32 s26, 0
s_cbranch_scc1 L_gq_far
""")
    def qchk():
        r = chk16([96, 100], 104, 12)
        if qf: a(f"v_bitop3_b32 v108, v113, v115, s12 bitop3:0x7e\nv_or_b32 v{r}, v{r}, v108")
        return r
    def qpoll(sfx, fl):
        poll("L_gq" + sfx, [f"buffer_load_dwordx4 v[{96+4*k}:{99+4*k}], v2, s[52:55], s6 offen offset:{1024*k} {fl}" for k in range(2)]
             + ([f"buffer_load_dwordx2 v[{112+2*k}:{113+2*k}], v138, s[52:55], s7 offen offset:{512*k} {fl}" for k in range(2)] if qf else []),
             qchk, sl=qslp)
    qpoll("", "nt")
    a("L_gq_got:")
    if qf:
        a("; put the low mantissa bytes (sent in their own tagged granule) back: the partials are summed in full f32")
        for i in range(8): a(f"v_perm_b32 v{96+i}, v{96+i}, v{112+2*(i>>2)}, s{16+(i&3)}")
    else:
        for i in range(8): a(f"v_and_b32 v{96+i}, 0xffffff00, v{96+i}")
    for i in range(4): a(f"v_add_f32 v{96+i}, v{96+i}, v{100+i}")
    a(f"""
s_lshl_b32 s4, s3, 8
v_and_b32 v2, 31, v1
v_lshl_add_u32 v2, v2, 3, s4
v_lshl_add_u32 v2, v7, 2, v2
v_permlane32_swap_b32 v96, v98
v_permlane32_swap_b32 v97, v99
v_add_f32 v96, v96, v98
v_add_f32 v97, v97, v99
v_cvt_pk_bf16_f32 v96, v96, v97
ds_write_b32 v2, v96 offset:{QL}
s_waitcnt lgkmcnt(0)
""")
    lds_signal(FLG + 4)
    stamp(3)
    if "cutg" in dbg: a("s_branch L_pre2")
    a(f"s_setprio {bgprio}")
    if h2pre and h2pre is not True and h2pre[0] == "q": h2touch()
    mlp_steps(mlp1, 16)
    a("s_waitcnt vmcnt(0) lgkmcnt(0)")
    lds_signal(FLG + 12)
    a(f"""
v_lshrrev_b32 v2, 2, v1
v_mul_u32_u24 v20, 144, v2
v_and_b32 v3, 3, v1
v_lshl_add_u32 v20, v3, 5, v20
s_lshl_b32 s4, s3, 2
s_add_u32 s4, s4, {OP}
v_add_u32 v20, s4, v20
v_add_u32 v21, 2304, v20
v_add_u32 v22, 4608, v20
v_add_u32 v23, 6912, v20
s_lshl_b32 s4, s3, 3
v_mov_b32 v24, s4
v_lshrrev_b32 v25, 5, v1
v_lshlrev_b32 v25, 7, v25
v_bfe_u32 v2, v1, 4, 1
v_lshl_add_u32 v25, v2, 11, v25
v_bfe_u32 v2, v1, 1, 1
v_lshl_add_u32 v25, v2, 10, v25
v_bfe_u32 v2, v1, 2, 2
v_lshl_add_u32 v25, v2, 8, v25
v_and_b32 v2, 1, v1
v_lshl_add_u32 v25, v2, 3, v25
v_lshlrev_b32 v26, 4, v1
v_and_b32 v2, 1, v5
v_lshl_add_u32 v27, v2, 2, v3
v_lshlrev_b32 v27, 4, v27
v_lshlrev_b32 v28, {6 if h2full else 16}, v2
v_bfe_u32 v2, v1, 2, 2
v_lshl_add_u32 v28, v2, {12 if h2full else 11}, v28
v_lshl_add_u32 v28, v3, 4, v28
v_lshrrev_b32 v19, 2, v1
v_lshlrev_b32 v19, {7 if h2full else 6}, v19
v_lshl_add_u32 v19, v3, 4, v19
s_lshl_b32 s4, s15, 2
s_add_u32 s4, s4, s3
s_lshl_b32 s4, s4, 2
s_add_u32 s4, s4, s9
s_mul_i32 s4, s4, {H1S}
s_bfe_u32 s5, s2, 0x30003
s_lshl_b32 s5, s5, 4
s_add_u32 s4, s4, s5
s_add_u32 s6, s4, {H1OFF}
s_lshl_b32 s4, s13, 2
s_add_u32 s4, s4, s3
s_mul_i32 s4, s4, {H1S}
s_add_u32 s7, s4, {H1OFF}
s_lshl_b32 s4, s3, {5 if h2full else 6}
s_lshl_b32 s5, s14, 2
s_add_u32 s4, s4, s5
s_lshl_b32 s4, s4, {12 if h2full else 11}
s_lshl_b32 s5, s13, {7 if h2full else 6}
s_add_u32 s4, s4, s5
s_add_u32 s8, s4, {H2OFF}
""")
    if t2: a(f"""
v_lshlrev_b32 v20, 4, v8
v_lshl_add_u32 v20, v5, 2, v20
s_lshl_b32 s4, s3, 8
s_add_u32 s4, s4, {OP}
v_add_u32 v20, s4, v20
v_lshlrev_b32 v24, 3, v5
v_mul_u32_u24 v25, {4*H1S}, v5
v_lshl_add_u32 v25, v8, 3, v25
s_lshl_b32 s4, s15, 4
s_add_u32 s4, s4, s9
s_mul_i32 s4, s4, {H1S}
s_bfe_u32 s5, s2, 0x30003
s_lshl_b32 s5, s5, 9
s_add_u32 s4, s4, s5
s_lshl_b32 s5, s3, 7
s_add_u32 s4, s4, s5
s_add_u32 s28, s4, {H1OFF}
v_bfe_u32 v2, v1, 3, 1
v_lshlrev_b32 v26, 11, v2
v_lshl_add_u32 v26, v5, 7, v26
v_lshl_add_u32 v26, v6, 4, v26
v_lshl_add_u32 v27, v2, 2, v3
v_lshlrev_b32 v27, 4, v27
v_lshlrev_b32 v28, 16, v7
v_bfe_u32 v2, v1, 2, 2
v_lshl_add_u32 v28, v2, 11, v28
v_lshl_add_u32 v28, v3, 4, v28
s_lshl_b32 s29, s3, 4
""")
    if own1:
        a("s_lshl_b32 s4, s3, 1\nv_add_u32 v2, s4, v6\nv_and_b32 v2, 7, v2\nv_and_b32 v26, 0xffffff8f, v26\nv_lshl_add_u32 v26, v2, 4, v26")
        for kk in range(4):
            a(f"s_add_u32 s4, s3, {kk}\ns_and_b32 s4, s4, 3\ns_lshl_b32 s4, s4, 12")
            for nt_ in range(4): a(f"v_add_u32 v{176+4*kk+nt_}, s4, v{153+nt_}")
    RBB = WQL
    if t3:
        a(f"""
v_mul_u32_u24 v25, {4*H1S}, v5
v_lshrrev_b32 v2, 1, v8
v_lshl_add_u32 v25, v2, 7, v25
v_and_b32 v2, 1, v1
v_lshl_add_u32 v25, v2, 3, v25
s_lshl_b32 s4, s15, 4
s_add_u32 s4, s4, s3
s_mul_i32 s4, s4, {H1S}
s_bfe_u32 s5, s2, 0x20003
s_lshl_b32 s5, s5, 10
s_add_u32 s4, s4, s5
s_lshr_b32 s5, s2, 5
s_lshl_b32 s5, s5, 4
s_add_u32 s4, s4, s5
s_add_u32 s28, s4, {H1OFF}
v_lshlrev_b32 v26, 4, v1
v_bfe_u32 v2, v1, 3, 2
v_mul_u32_u24 v27, {H1S}, v2
v_lshl_add_u32 v27, v6, 4, v27
s_mul_i32 s30, s13, {4*H1S}
s_add_u32 s30, s30, {H1OFF}
v_lshrrev_b32 v2, 2, v1
v_lshlrev_b32 v28, 16, v2
v_lshl_add_u32 v28, v3, 4, v28
s_lshl_b32 s4, s14, 2
s_add_u32 s4, s4, s3
s_lshl_b32 s4, s4, 11
s_lshl_b32 s5, s13, 6
s_add_u32 s4, s4, s5
s_add_u32 s8, s4, {H2OFF}
v_mul_u32_u24 v21, 320, v5
v_lshl_add_u32 v21, v8, 4, v21
s_mul_i32 s4, s3, 2560
v_add_u32 v21, s4, v21
v_mul_u32_u24 v22, 320, v3
v_and_b32 v2, 7, v2
v_lshl_add_u32 v22, v2, 4, v22
s_lshr_b32 s4, s3, 1
s_mul_i32 s4, s4, 1280
s_and_b32 s5, s3, 1
s_lshl_b32 s5, s5, 7
s_add_u32 s4, s4, s5
v_add_u32 v22, s4, v22
v_lshlrev_b32 v23, 4, v6
""")
        if t3 == 2: a(f"""
v_mul_u32_u24 v25, {4*H1S}, v5
v_lshl_add_u32 v25, v8, 3, v25
s_lshr_b32 s5, s2, 5
s_mul_i32 s5, s5, 112
s_add_u32 s28, s28, s5
v_lshrrev_b32 v23, 3, v1
v_lshlrev_b32 v23, 4, v23
v_lshlrev_b32 v184, 5, v6
v_lshl_add_u32 v184, v5, 3, v184
v_add_u32 v185, 4, v184
s_mov_b32 s32, 0x00ff00ff
s_mov_b32 s33, 0x00ff00ff
""")
        for i in range(8 if t3 == 1 else 0): a(f"v_mov_b32 v{176+i}, 0")
    if not h2full: a("s_lshl_b32 s9, s2, 11")
    else: a("""
s_lshr_b32 s9, s2, 6
s_lshl_b32 s9, s9, 5
s_and_b32 s4, s2, 31
s_add_u32 s9, s9, s4
s_lshl_b32 s9, s9, 12
s_bfe_u32 s4, s2, 0x10005
s_lshl_b32 s4, s4, 6
s_add_u32 s9, s9, s4
""")
    h2l = [f"buffer_load_dwordx4 v[{136+4*k}:{139+4*k}], v19, s[52:55], s9 offen offset:{(2048 if h2full else 1024)*k} {h2fl}" for k in range(2)]
    a(f"""
s_add_u32 s9, s9, {H2OFF}
""")
    if near:
        a(f"s_mov_b32 s5, {CWOFF}\nv_and_b32 v2, {8 * near['nw'] - 1}, v1\nv_lshlrev_b32 v2, 3, v2")
        poll("L_cwp", ["buffer_load_dwordx2 v[94:95], v2, s[52:55], s5 offen sc1"], lambda: chk8([95], 80), sl=4)
        a(f"""
v_sub_u32 v95, 0, v94
v_cmp_gt_u32 vcc, 4, v6
v_cndmask_b32 v94, v95, v94, vcc
v_add_u32_dpp v94, v94, v94 row_ror:8 row_mask:0xf bank_mask:0xf
v_add_u32_dpp v94, v94, v94 row_ror:4 row_mask:0xf bank_mask:0xf
v_add_u32_dpp v94, v94, v94 row_ror:2 row_mask:0xf bank_mask:0xf
v_add_u32_dpp v94, v94, v94 row_ror:1 row_mask:0xf bank_mask:0xf
v_readfirstlane_b32 s4, v94
s_cmp_gt_i32 s4, 0
s_cselect_b32 s4, {0x2000 if not near.get("inv") else 0}, {0x2000 if near.get("inv") else 0}
s_xor_b32 s8, s8, s4
s_xor_b32 s9, s9, s4
""")
    if h2pre and h2pre is not True and h2pre[0] == "m": h2touch()
    if wolate is not None and wotrig is None:
        lds_wait("L_yw", FLG + 12, 4); woread(91)
    if not fin: a("""
s_cmp_lg_u32 s3, 0
s_cbranch_scc1 L_ready
""")
    if wolate is None or wotrig is not None: lds_wait("L_yw", FLG + 12, 4)
    if h2pre is True:
        for l in h2l: a(l)
    if "o" in warm: a("buffer_load_ushort v94, v30, s[64:67], s10 offen")
    if tlbw: a(f"s_mov_b32 s4, {H2OFF + (1 << 20) - 4096}\nbuffer_load_dword v94, v9, s[52:55], s4 offen")
    DRYIN = DRYSET = ""
    if dry2:
        assert t2 and not t3 and not fin and wbar and h1m == 1 and h2late
        DRYIN = f"""; first pass through the hand-off code with empty buffer ranges (loads give 0, stores are dropped): fills the instruction cache
s_mov_b32 s30, 0
s_mov_b32 s31, 1
s_mov_b32 s27, s26
s_mov_b32 s26, 0
s_mov_b32 s54, 0
s_mov_b32 s66, 0
v_mov_b32 v11, 0
s_waitcnt vmcnt(0) lgkmcnt(0)
s_branch L_dry_in
L_dry_ret:
s_mov_b64 exec, -1
s_waitcnt vmcnt(0) lgkmcnt(0)
s_mov_b32 s26, s27
s_mov_b32 s54, 0x10000000
s_mov_b32 s66, 8192
v_mov_b32 v11, 1"""
        DRYSET = f"s_mov_b32 s30, {spin}\ns_mov_b32 s31, 0"
    a(f"""
{"v_lshl_add_u32 v2, v3, 2, v5" if t3 else "v_lshl_add_u32 v2, v5, 2, v3"}
v_lshlrev_b32 v2, 2, v2
ds_read_b32 v32, v2 offset:{YP}
ds_read_b32 v33, v2 offset:{YP+64}
ds_read_b32 v34, v2 offset:{YP+128}
ds_read_b32 v35, v2 offset:{YP+192}
v_lshlrev_b32 v31, 16, v31
s_waitcnt lgkmcnt(0)
v_add_f32 v32, v32, v33
v_add_f32 v34, v34, v35
v_add_f32 v32, v32, v34
v_cvt_pk_bf16_f32 v32, v32, v32
v_lshlrev_b32 v32, 16, v32
v_add_f32 v32, v32, v31
v_cvt_pk_bf16_f32 v32, v32, v32
v_lshlrev_b32 v32, 16, v32
v_mul_f32 v34, {f32(-LOG2E)}, v32
v_exp_f32 v34, v34
v_add_f32 v34, 1.0, v34
v_rcp_f32 v34, v34
v_mul_f32 v32, v32, v34
v_cvt_pk_bf16_f32 v32, v32, v32
v_lshlrev_b32 v16, 16, v32
v_lshlrev_b32 v14, 16, v29
{DRYIN}
L_ready:
{DRYSET}
""")
    if "cuts" in dbg: a("s_branch L_pre2")
    a("; softmax statistics: merge the four waves, publish {max, sum}, fetch the group's statistics, form the split weights")
    lds_wait("L_sw", FLG + 16, 4, sl=8)
    a(f"""
ds_read_b64 v[32:33], v24 offset:{ST}
ds_read_b64 v[34:35], v24 offset:{ST+32}
ds_read_b64 v[36:37], v24 offset:{ST+64}
ds_read_b64 v[38:39], v24 offset:{ST+96}
s_waitcnt lgkmcnt(0)
v_max3_f32 v48, v32, v34, v36
v_max_f32 v48, v48, v38
v_sub_f32 v32, v32, v48
v_sub_f32 v34, v34, v48
v_sub_f32 v36, v36, v48
v_sub_f32 v38, v38, v48
v_exp_f32 v32, v32
v_exp_f32 v34, v34
v_exp_f32 v36, v36
v_exp_f32 v38, v38
v_mov_b32 v49, v10
v_mov_b32 v51, v10
v_mul_f32 v50, v32, v33
v_fmac_f32 v50, v34, v35
v_fmac_f32 v50, v36, v37
v_fmac_f32 v50, v38, v39
v_mov_b32 v53, v10
{"s_lshl_b64 exec, 1, s29" if t2 else "s_mov_b64 exec, 1"}
s_cmp_lg_u32 s26, 0
s_cbranch_scc1 L_st_far
buffer_store_dwordx4 v[48:51], v9, s[52:55], s6 offen
s_mov_b64 exec, -1
""")
    if t2 and prew: a("v_not_b32 v60, v10\nv_not_b32 v61, v10\nbuffer_store_dwordx2 v[60:61], v25, s[52:55], s28 offen offset:128")
    poll("L_sp", [f"buffer_load_dwordx4 v[40:43], v27, s[52:55], s{30 if t3 else 7} offen {h1fl}"], lambda: chk8([41, 43], 80), sl=8)
    a(f"""
s_branch L_st_done
L_st_far:
buffer_store_dwordx4 v[48:51], v9, s[52:55], s6 offen sc1
s_mov_b64 exec, -1
""")
    poll("L_spx", [f"buffer_load_dwordx4 v[40:43], v27, s[52:55], s{30 if t3 else 7} offen sc1"], lambda: chk8([41, 43], 80), sl=8)
    a("L_st_done:")
    def ptouch(mode, fl):
        if mode == 8: a(f"s_lshl_b32 s4, s14, 9\ns_add_u32 s4, s4, s7\ns_mov_b64 exec, 0xffffffff\nbuffer_load_dwordx4 v[64:67], v26, s[52:55], s4 offen offset:128 {fl}\ns_mov_b64 exec, -1")
        else:
            for k in range(4): a(f"buffer_load_dwordx4 v[{64+4*k}:{67+4*k}], v26, s[52:55], s7 offen offset:{128+k*1024} {fl}")
    if pretouch and pretouch[0] == "s": ptouch(pretouch[1], pretouch[2])
    a("""
v_max_f32_dpp v44, v40, v40 quad_perm:[1,0,3,2] row_mask:0xf bank_mask:0xf
v_max_f32_dpp v45, v44, v44 quad_perm:[2,3,0,1] row_mask:0xf bank_mask:0xf
v_sub_f32 v40, v40, v45
v_exp_f32 v40, v40
v_mul_f32 v42, v40, v42
v_add_f32_dpp v44, v42, v42 quad_perm:[1,0,3,2] row_mask:0xf bank_mask:0xf
v_add_f32_dpp v45, v44, v44 quad_perm:[2,3,0,1] row_mask:0xf bank_mask:0xf
v_rcp_f32 v45, v45
v_mul_f32 v40, v40, v45
v_mov_b32_dpp v56, v40 quad_perm:[0,0,0,0] row_mask:0xf bank_mask:0xf
v_mov_b32_dpp v57, v40 quad_perm:[1,1,1,1] row_mask:0xf bank_mask:0xf
v_mov_b32_dpp v58, v40 quad_perm:[2,2,2,2] row_mask:0xf bank_mask:0xf
v_mov_b32_dpp v59, v40 quad_perm:[3,3,3,3] row_mask:0xf bank_mask:0xf
""" + ("\n".join(f"ds_bpermute_b32 v{56+i}, v23, v{56+i}" for i in range(4)) if t3 else "") + """
L_pre2:
s_setprio """ + str(hp) + """
s_waitcnt vmcnt(0) lgkmcnt(0)
""")
    if wotrig is not None and wotrig >= 0:
        if defer:
            srd(48, 38, 256)
            a(f"""
s_getreg_b32 s4, hwreg(HW_REG_XCC_ID, 0, 3)
s_lshl_b32 s4, s4, 5
v_lshl_add_u32 v92, v6, 2, s4
s_mov_b32 s28, {(0x80 - defer[2]) * 0x01010101}
s_mov_b32 s29, 0x80808080
""")
        if wodl is not None: a(f"""
s_mov_b32 s58, {spin*8}
L_wt:
ds_read2_b32 v[60:61], v9 offset0:{(FLG+28)//4} offset1:{(FLG+48)//4}
s_memrealtime s[76:77]
{f"s_sleep {wosl}" if wosl else ""}
s_waitcnt lgkmcnt(0)
v_readfirstlane_b32 s59, v60
v_readfirstlane_b32 s27, v61
s_sub_u32 s58, s58, 1
s_cbranch_scc1 L_wt_done
s_cmp_ge_u32 s59, {wothr}
s_cbranch_scc1 L_wt_done
s_cmp_eq_u32 s27, 0
s_cbranch_scc1 L_wt
s_sub_u32 s27, s76, s27
s_cmp_lt_i32 s27, 0
s_cbranch_scc1 L_wt
L_wt_done:
""")
        else:
            a("; Wo tile is fetched when this workgroup's V stream is nearly drained, so it overlaps the hop-1 hand-off")
            lds_wait("L_wt", FLG + 28, wothr, sl=wosl, msk=bool(defer))
        if defer: a(f"s_lshr_b32 s27, s59, 8\ns_cmp_ge_u32 s27, {defer[1]}\ns_cselect_b32 s27, 1, 0\ns_andn2_b32 s27, s27, s26\ns_cbranch_scc1 L_wt_skip")
        if pretouch and pretouch[0] == "b": ptouch(pretouch[1], pretouch[2])
        for t in range(4): wodma(t, 90, 22, 23)
        if pretouch and pretouch[0] == "a": ptouch(pretouch[1], pretouch[2])
        if defer: a("L_wt_skip:")
    stamp(4)
    if not dp: a("s_barrier")
    if dry2: a("L_dry_in:")
    if wotrig is not None and wotrig < 0:
        for t in range(4): wodma(t, 90, 22, 23)
    if isinstance(dbgt, str): a("s_memrealtime s[92:93]")
    if prof: a("s_waitcnt lgkmcnt(0)")
    if "notail" in dbg:
        stamp(5); stamp(6); a("s_branch L_hend")
    if tailprof: stamp(1); a("s_waitcnt lgkmcnt(0)")
    PKC = """s_waitcnt lgkmcnt(2)
v_mul_f32 v40, v32, v40
v_mul_f32 v41, v32, v41
v_fmac_f32 v40, v34, v42
v_fmac_f32 v41, v34, v43
s_waitcnt lgkmcnt(0)
v_mul_f32 v44, v36, v44
v_mul_f32 v45, v36, v45
v_fmac_f32 v40, v38, v46
v_fmac_f32 v41, v38, v47
v_add_f32 v40, v40, v44
v_add_f32 v41, v41, v45""" if not pkc else """s_waitcnt lgkmcnt(3)
v_pk_mul_f32 v[40:41], v[40:41], v[32:33] op_sel_hi:[1,0]
s_waitcnt lgkmcnt(2)
v_pk_fma_f32 v[40:41], v[42:43], v[34:35], v[40:41] op_sel_hi:[1,0,1]
s_waitcnt lgkmcnt(1)
v_pk_fma_f32 v[40:41], v[44:45], v[36:37], v[40:41] op_sel_hi:[1,0,1]
s_waitcnt lgkmcnt(0)
v_pk_fma_f32 v[40:41], v[46:47], v[38:39], v[40:41] op_sel_hi:[1,0,1]"""
    if t2:
        for w_ in range(4): a(f"ds_read2st64_b32 v[{40+2*w_}:{41+2*w_}], v20 offset0:{8*w_} offset1:{8*w_+4}")
    elif not dp: a("""
ds_read2_b32 v[40:41], v20 offset0:0 offset1:4
ds_read2_b32 v[42:43], v21 offset0:0 offset1:4
ds_read2_b32 v[44:45], v22 offset0:0 offset1:4
ds_read2_b32 v[46:47], v23 offset0:0 offset1:4
""")
    if not dp: a(f"""
{PKC}
s_cmp_lg_u32 s26, 0
v_cvt_pk_bf16_f32 v52, v40, v41
s_cbranch_scc1 L_h1_far
buffer_store_dwordx2 v[52:53], v25, s[52:55], s{28 if t2 else 6} offen offset:128
L_h1_st:
""")
    stamp(5)
    if wotrig is not None:
        if defer: a("s_cmp_lg_u32 s27, 0\ns_cbranch_scc1 L_dfr")
        if h1e:
            a("s_cmp_lg_u32 s26, 0\ns_cbranch_scc1 L_h1e_far")
            if dry2: a("s_cmp_lg_u32 s31, 0")
            for e_ in range(h1e[0]):
                if len(h1e) > 2: a(f"s_waitcnt vmcnt({h1e[2][e_] + 4 * e_})")
                elif e_: a(f"s_sleep {h1e[1]}")
                for k in range(4): a(f"buffer_load_dwordx4 v[{64+4*k}:{67+4*k}], v26, s[52:55], s7 offen offset:{128+k*(512 if t2 and not t3 else 1024)} {h1fl}")
            a(f"s_waitcnt vmcnt({1 + 4 * h1e[0]})\nL_h1e_done:")
        else: a(f"s_waitcnt vmcnt({0 if dp else 1})")
        if defer: a("L_dfr_done:")
        if dp: stamp(5)
        if "wol" in dbg and "h1it" not in dbg and "h1vm" not in dbg: stamp(3)
        if own1: woread(91, [0])
        if wbar: a(("s_cbranch_scc1 L_nobar\n" if dry2 else "") + "s_barrier" + ("\nL_nobar:" if dry2 else ""))
        elif not t3:
            lds_signal(FLG + 20)
            lds_wait("L_wl", FLG + 20, 4)
        if "wol" in dbg: stamp(1)
        if not womid: woread(91)
        if dp and dpw: lds_wait("L_pw", FLG + 40, dpw)
    a("s_cmp_lg_u32 s26, 0\ns_cbranch_scc1 L_h1_farp")
    def h1poll(sfx, fl, pipe):
        full = [f"buffer_load_dwordx4 v[{64+4*k}:{67+4*k}], v26, s[52:55], s7 offen offset:{128+k*(512 if t2 and not t3 else 1024)} {fl}" for k in range(4)]
        if h1m and sfx == "":
            assert h1e
            a(f"s_mov_b32 s58, {'s30' if dry2 else spin}"); woread(91)
            a("L_h1_chk:\ns_waitcnt vmcnt(0)" if h1m == 1 else "s_waitcnt vmcnt(0)\nL_h1_chk:")
            for k in range(4): a(f"v_bitop3_b32 v{80+k}, v{65+4*k}, v{67+4*k}, s12 bitop3:0x7e")
            for k in range(4): a(f"v_cmp_ne_u32 s[{72+2*k}:{73+2*k}], 0, v{80+k}")
            a("s_or_b64 vcc, s[72:73], s[74:75]\ns_or_b64 s[82:83], s[76:77], s[78:79]\ns_or_b64 vcc, vcc, s[82:83]\ns_cbranch_scc0 L_h1_got\ns_sub_u32 s58, s58, 1\ns_cbranch_scc1 L_h1_got")
            if "h1it" in dbg: stamp(4)
            for k in range(4): a(f"s_mov_b64 exec, s[{72+2*k}:{73+2*k}]\n" + full[k])
            a("s_mov_b64 exec, -1")
            if slp: a(f"s_sleep {slp}")
            if h1m > 1: a(f"s_waitcnt vmcnt({4 * (h1m - 1)})")
            a("s_branch L_h1_chk")
            return
        poll("L_h1" + sfx, full, lambda: chk8([65, 67, 69, 71, 73, 75, 77, 79], 80), st=4, pipe=pipe, stag=stag1, mid=(lambda: woread(91)) if (womid and wotrig is not None) else None, pre=bool(h1e) and sfx == "")
    h1poll("", h1fl, pipe1)
    a("L_h1_got:")
    if "h1it" in dbg: a(f"s_sub_u32 s90, {spin}, s58\ns_mov_b32 s91, 0")
    if "h1vm" in dbg: stamp(3); a(f"s_sub_u32 s98, {spin}, s58\ns_mov_b32 s99, 0")
    if hp2 is not None: a(f"s_setprio {hp2}")
    if wotrig is not None: a("s_waitcnt lgkmcnt(0)")
    stamp(6)
    AO = 96; DD = 112
    if h2e:
        a("s_cmp_lg_u32 s3, 0\ns_cbranch_scc1 L_h2e")
        for l in h2l: a(l)
        a("L_h2e:")
    if h2late and fin != 2: a(f"s_mov_b64 exec, 1\nds_add_rtn_u32 v54, v9, v11 offset:{FLG+24}\ns_mov_b64 exec, -1")
    if fin == 2: a(f"ds_read_b32 v54, v9 offset:{FLG+24}")
    if t2:
        for k in range(4):
            for g_ in range(2):
                a(f"v_lshlrev_b32 v{160+4*k+2*g_}, 16, v{64+4*k+2*g_}\nv_and_b32 v{161+4*k+2*g_}, 0xffff0000, v{64+4*k+2*g_}")
            for g_ in range(2):
                r_ = 160 + 4 * k + 2 * g_; w_ = 56 + (k & 2); sel = k & 1
                if k == 0: a(f"v_pk_mul_f32 v[{84+2*g_}:{85+2*g_}], v[{r_}:{r_+1}], v[{w_}:{w_+1}] op_sel:[0,{sel}] op_sel_hi:[1,{sel}]")
                else: a(f"v_pk_fma_f32 v[{84+2*g_}:{85+2*g_}], v[{r_}:{r_+1}], v[{w_}:{w_+1}], v[{84+2*g_}:{85+2*g_}] op_sel:[0,{sel},0] op_sel_hi:[1,{sel},1]")
        a("v_cvt_pk_bf16_f32 v88, v84, v85\nv_cvt_pk_bf16_f32 v89, v86, v87")
    if fin == 2:
        a("s_waitcnt lgkmcnt(0)\nv_readfirstlane_b32 s27, v54\ns_cmp_lg_u32 s27, 3\ns_cbranch_scc1 L_h2e")
        for l in h2l: a(l)
        a(f"L_h2e:\ns_mov_b64 exec, 1\nds_add_rtn_u32 v54, v9, v11 offset:{FLG+24}\ns_mov_b64 exec, -1")
    if fin == 3:
        a("s_waitcnt lgkmcnt(0)\nv_readfirstlane_b32 s27, v54\ns_cmp_lg_u32 s27, 3\ns_cbranch_scc1 L_h2e")
        for l in h2l: a(l)
        a(f"s_mov_b64 exec, 1\nds_add_u32 v9, v11 offset:{FLG+24}\ns_mov_b64 exec, -1\nL_h2e:")
    def mv(kk, p):
        if t2:
            j_ = 2 * kk + (p >> 1)
            if j_: a(f"v_mov_b32_dpp v{AO+4*kk+p}, v{88+(p&1)} row_ror:{16-j_} row_mask:0xf bank_mask:0xf")
            else: a(f"v_mov_b32 v{AO+4*kk+p}, v{88+(p&1)}")
            return
        src = 64 + 8 * (kk & 1) + 2 * p
        if kk >= 2: a(f"v_mov_b32_dpp v{AO+4*kk+p}, v{src} row_ror:8 row_mask:0xf bank_mask:0xf")
        else: a(f"v_mov_b32 v{AO+4*kk+p}, v{src}")
    if t3 == 2:
        for p in range(4): a(f"ds_bpermute_b32 v{176+p}, v{184+(p>>1)}, v{88+(p&1)}")
        a("s_waitcnt lgkmcnt(0)")
        for nt_ in (0, 2, 1, 3): a(f"v_mfma_f32_16x16x32_bf16 v[{DD+4*nt_}:{DD+4*nt_+3}], v[{WB+4*nt_}:{WB+4*nt_+3}], v[176:179], 0")
        a(f"""
s_mov_b64 exec, s[32:33]
ds_write_b128 v21, v[{DD}:{DD+3}] offset:{RBB}
ds_write_b128 v21, v[{DD+8}:{DD+11}] offset:{RBB+1280}
s_not_b64 exec, s[32:33]
ds_write_b128 v21, v[{DD+4}:{DD+7}] offset:{RBB}
ds_write_b128 v21, v[{DD+12}:{DD+15}] offset:{RBB+1280}
""")
    if t3 == 1:
        ID = "quad_perm:[0,1,2,3]"
        for p in range(4): a(f"v_mov_b32_dpp v{176+p}, v{88+(p&1)} {'row_ror:8' if p >> 1 else ID} row_mask:0xf bank_mask:0x3")
        for p in range(4): a(f"v_mov_b32_dpp v{180+p}, v{88+(p&1)} {ID if p >> 1 else 'row_ror:8'} row_mask:0xf bank_mask:0xc")
        for h_ in range(2):
            for a_ in range(2):
                d = DD + 4 * a_; w_ = WB + 4 * (2 * a_ + h_)
                a(f"v_mfma_f32_16x16x32_bf16 v[{d}:{d+3}], v[{w_}:{w_+3}], v[{176+4*h_}:{179+4*h_}], {'0' if h_ == 0 else f'v[{d}:{d+3}]'}")
        a(f"""
ds_write_b128 v21, v[{DD}:{DD+3}] offset:{RBB}
ds_write_b128 v21, v[{DD+4}:{DD+7}] offset:{RBB+1280}
""")
    if t3:
        a(f"""
s_mov_b64 exec, 0xffffffff
s_waitcnt lgkmcnt(0)
s_barrier
""")
        for w_ in range(4): a(f"ds_read_b128 v[{96+4*w_}:{99+4*w_}], v22 offset:{RBB+2560*w_}")
        a("""
s_waitcnt lgkmcnt(2)
v_pk_add_f32 v[96:97], v[96:97], v[100:101]
v_pk_add_f32 v[98:99], v[98:99], v[102:103]
s_waitcnt lgkmcnt(0)
v_pk_add_f32 v[104:105], v[104:105], v[108:109]
v_pk_add_f32 v[106:107], v[106:107], v[110:111]
v_pk_add_f32 v[96:97], v[96:97], v[104:105]
v_pk_add_f32 v[98:99], v[98:99], v[106:107]
""")
    for p in range(0 if t3 else 4): mv(0, p)
    for kk in range(0 if t3 else 4):
        for nt_ in range(4):
            d = DD + 4 * nt_; b = WB + 16 * nt_ + 4 * kk
            if kk < 3 and nt_ < 2: mv(kk + 1, 2 * nt_); mv(kk + 1, 2 * nt_ + 1)
            a(f"v_mfma_f32_16x16x32_bf16 v[{d}:{d+3}], v[{AO+4*kk}:{AO+4*kk+3}], v[{b}:{b+3}], {'0' if kk == 0 else f'v[{d}:{d+3}]'}")
    GO = 128
    if fin == 3: a("s_mov_b32 s59, s27")
    elif h2late: a("s_waitcnt lgkmcnt(0)\nv_readfirstlane_b32 s59, v54")
    if t3: pack16(GO, [96, 97, 98, 99], 10)
    elif t2: pack16(GO, [DD, DD + 4, DD + 8, DD + 12], 10)
    else:
        for t in range(4):
            a(f"v_mul_f32 v{GO+t}, v56, v{DD+4*t}")
            a(f"v_mul_f32 v{GO+4+t}, v58, v{DD+4*t+2}")
        for t in range(4):
            a(f"v_fmac_f32 v{GO+t}, v57, v{DD+4*t+1}")
            a(f"v_fmac_f32 v{GO+4+t}, v59, v{DD+4*t+3}")
        for t in range(4): a(f"v_add_f32 v{GO+t}, v{GO+t}, v{GO+4+t}")
        pack16(GO, [GO, GO + 1, GO + 2, GO + 3], 10)
    if lbar: a("s_barrier")
    if h2late:
        a(("s_mov_b32 s31, s59\n" if fin else "") + "s_cmp_eq_u32 s59, 3\ns_cbranch_scc1 L_hl_done")
        lds_wait("L_hl", FLG + 24, 5 if fin == 3 else 4, bnd="s30" if dry2 else None)
    a(("" if t3 else "s_mov_b32 exec_lo, 0xffff\ns_mov_b32 exec_hi, 0xffff" if t2 else "s_mov_b64 exec, 0xffffffff") + f"\nbuffer_store_dwordx4 v[{GO}:{GO+3}], v28, s[52:55], s8 offen {h2sf}")
    if tailprof or "wol" in dbg: stamp(2)
    if h2sync and not h2late: lds_signal(FLG + 24)
    a(f"""
s_mov_b64 exec, -1
s_cmp_lg_u32 {"s31, 3" if fin else "s3, 0"}
s_cbranch_scc1 L_hend
""")
    if fin >= 2:
        a("s_cmp_lg_u32 s27, 3\ns_cbranch_scc1 L_h2n\ns_waitcnt vmcnt(1)" if fin == 2 else "s_waitcnt vmcnt(1)")
        r_ = chk16([136, 140], 56, 12)
        a(f"v_cmp_ne_u32 vcc, 0, v{r_}\ns_mov_b32 s58, {spin}\ns_and_b64 exec, exec, vcc\ns_cbranch_execz L_h2_done\nL_h2n:")
    if h2sync and not h2late: lds_wait("L_hw", FLG + 24, 4)
    if h2e:
        a("s_waitcnt vmcnt(1)")
        r_ = chk16([136, 140], 56, 12)
        a(f"v_cmp_ne_u32 vcc, 0, v{r_}\ns_mov_b32 s58, {spin}\ns_and_b64 exec, exec, vcc\ns_cbranch_execz L_h2_done")
    if h2ack: a("s_waitcnt vmcnt(0)")
    if "h2it" in dbg: stamp(1)
    poll("L_h2", h2l, lambda: chk16([136, 140], 56, 12), st=3, pipe=pipe2, stag=stag2, sl=slp2, bnd="s30" if dry2 else None)
    if "h2it" in dbg: stamp(5); a(f"s_sub_u32 s90, {spin}, s58\ns_mov_b32 s91, 0")
    for i in range(8): a(f"v_and_b32 v{48+i}, 0xffffff00, v{136+i}")
    for i in range(4): a(f"v_add_f32 v{48+i}, v{48+i}, v{52+i}")
    a(f"""
v_permlane32_swap_b32 v48, v50
v_permlane32_swap_b32 v49, v51
v_add_f32 v48, v48, v50
v_add_f32 v49, v49, v51
v_permlane16_swap_b32 v48, v49
v_add_f32 v48, v48, v49
v_add_f32_dpp v48, v48, v48 row_ror:4 row_mask:0xf bank_mask:0xf
v_add_f32_dpp v48, v48, v48 row_ror:8 row_mask:0xf bank_mask:0xf
s_mov_b32 exec_lo, 0x000f000f
s_mov_b32 exec_hi, 0x000f000f
v_cvt_pk_bf16_f32 v48, v48, v48
v_lshlrev_b32 v48, 16, v48
v_mul_f32 v48, v48, v16
v_cvt_pk_bf16_f32 v48, v48, v48
v_lshlrev_b32 v48, 16, v48
v_add_f32 v48, v48, v14
v_cvt_pk_bf16_f32 v48, v48, v48
buffer_store_short v48, v30, s[64:67], s10 offen {"sc1" if clean else ""}
s_mov_b64 exec, 1
s_cmp_lg_u32 s2, 0
s_cbranch_scc1 L_hend
v_mov_b32 v60, s42
buffer_store_dword v60, v9, s[52:55], 0 offen sc1
L_hend:
{"s_cmp_lg_u32 s31, 0" if dry2 else ""}
{"s_cbranch_scc1 L_dry_ret" if dry2 else ""}
""")
    if "probe" in dbg: a("s_cmp_ge_u32 s3, 2\ns_cbranch_scc1 L_np7")
    if "h1vm" not in dbg: stamp(7)
    if "probe" in dbg: a("L_np7:")
    if endwait or prof or dbgt: a("s_waitcnt vmcnt(0)")
    if "endst" in dbg: stamp(1)
    if isinstance(dbgt, str):
        AMP = 96 << 20
        def red(op, r, steps, t=70):
            for n in steps:
                if n < 16: a(f"{op}_dpp v{r}, v{r}, v{r} row_ror:{n} row_mask:0xf bank_mask:0xf")
                else: a(f"v_mov_b32 v{t}, v{r}\nv_permlane{n}_swap_b32 v{r}, v{t}\n{op} v{r}, v{r}, v{t}")
        a(f"""
s_cmp_lg_u32 s3, 0
s_cbranch_scc1 L_dbgt
s_memrealtime s[88:89]
s_mov_b64 exec, 1
s_waitcnt lgkmcnt(0)
v_mov_b32 v12, s84
v_mov_b32 v13, s92
v_mov_b32 v14, s88
v_mov_b32 v15, s12
s_lshl_b32 s59, s2, 4
s_add_u32 s59, s59, {AMP}
buffer_store_dwordx4 v[12:15], v9, s[52:55], s59 offen sc1
s_waitcnt vmcnt(0)
s_mov_b64 exec, -1
s_cmp_lg_u32 s2, 0
s_cbranch_scc1 L_dbgt
v_lshlrev_b32 v2, 4, v1
s_mov_b32 s6, {AMP}
""")
        poll("L_amp", [f"buffer_load_dwordx4 v[{40+4*k}:{43+4*k}], v2, s[52:55], s6 offen offset:{1024*k} sc1" for k in range(4)], lambda: chk8([43, 47, 51, 55], 80), sl=8)
        for k in range(4):
            for c in range(3): a(f"v_subrev_u32 v{40+4*k+c}, s84, v{40+4*k+c}")
        ALL = [8, 4, 2, 1, 16, 32]
        def stat(op, c, dst, steps=ALL):
            a(f"{op} v{dst}, v{40+c}, v{44+c}\n{op} v71, v{48+c}, v{52+c}\n{op} v{dst}, v{dst}, v71")
            red(op, dst, steps)
        stat("v_min_i32", 0, 60)
        if dbgt == "startmax": stat("v_max_i32", 0, 61)
        if dbgt == "bmin": stat("v_min_i32", 1, 61)
        if dbgt == "bmax": stat("v_max_i32", 1, 61)
        if dbgt == "emax": stat("v_max_i32", 2, 61)
        if dbgt == "bmean": stat("v_add_u32", 1, 61); a("v_ashrrev_i32 v61, 8, v61")
        if dbgt == "xs":
            stat("v_add_u32", 1, 61, [8, 16, 32]); a("v_ashrrev_i32 v61, 5, v61\nv_mov_b32 v60, v61")
            red("v_max_i32", 61, [4, 2, 1]); red("v_min_i32", 60, [4, 2, 1])
        a(f"""
v_sub_u32 v61, v61, v60
s_nop 1
v_readfirstlane_b32 s59, v61
s_mul_i32 s59, s59, 10
s_add_u32 s59, s59, 5000
s_min_u32 s59, s59, 100000
L_dbgs:
s_memrealtime s[90:91]
s_waitcnt lgkmcnt(0)
s_sub_u32 s58, s90, s84
s_cmp_lt_u32 s58, s59
s_cbranch_scc1 L_dbgs
L_dbgt:
""")
    elif dbgt == 2:
        a(f"""
s_or_b32 s59, s2, s3
s_cmp_lg_u32 s59, 0
s_cbranch_scc1 L_dbgt
s_memrealtime s[88:89]
s_waitcnt lgkmcnt(0)
s_sub_u32 s59, s88, s84
s_mul_i32 s59, s59, 10
s_min_u32 s59, s59, 100000
L_dbgs:
s_memrealtime s[90:91]
s_waitcnt lgkmcnt(0)
s_sub_u32 s58, s90, s88
s_cmp_lt_u32 s58, s59
s_cbranch_scc1 L_dbgs
L_dbgt:
""")
    elif dbgt:
        a(f"""
s_memrealtime s[88:89]
s_memtime s[90:91]
s_mov_b32 s44, s38
s_mov_b32 s45, s39
s_mov_b32 s46, 256
s_mov_b32 s47, 0x20000
s_mov_b64 exec, 1
s_waitcnt lgkmcnt(0)
s_not_b32 s59, s84
v_mov_b32 v12, s88
v_mov_b32 v13, s59
buffer_atomic_umax v12, v9, s[44:47], 0 offen sc1
buffer_atomic_umax v13, v9, s[44:47], 0 offen offset:4 sc1
s_cmp_lg_u32 s3, 0
s_cbranch_scc1 L_dbgt
s_and_b32 s59, s2, 0x7f
s_cmp_lg_u32 s59, 0
s_cbranch_scc1 L_dbgt
s_lshr_b32 s59, s2, 3
v_mov_b32 v12, s84
v_mov_b32 v13, s88
v_mov_b32 v14, s86
v_mov_b32 v15, s90
buffer_store_dwordx4 v[12:15], v9, s[44:47], s59 offen offset:16 sc1
L_dbgt:
s_waitcnt vmcnt(0)
""")
    if prof:
        a(f"""
s_mov_b64 exec, 1
s_sleep 127
s_waitcnt lgkmcnt(0)
s_lshl_b32 s59, s2, 3
s_add_u32 s59, s59, s3
s_add_u32 s59, s59, 4
s_lshl_b32 s59, s59, 6
s_add_u32 s59, s59, {STAMP}
""")
        for i in range(0, 8):
            a(f"v_mov_b32 v12, s{84+2*i}\nv_mov_b32 v13, s{85+2*i}\nbuffer_store_dwordx2 v[12:13], v9, s[52:55], s59 offen offset:{8*i}\ns_waitcnt vmcnt(0)")
    a("L_end:\ns_endpgm")
    if not dp: a("""L_h1_far:
buffer_store_dwordx2 v[52:53], v25, s[52:55], s""" + ("28" if t2 else "6") + """ offen offset:128 sc1
s_branch L_h1_st
""")
    if h1e: a("L_h1e_far:\n" + ("s_cmp_lg_u32 s31, 0\n" if dry2 else "") + "s_waitcnt vmcnt(1)\ns_branch L_h1e_done")
    a("L_h1_farp:")
    h1poll("x", "sc1", 1)
    a("s_branch L_h1_got")
    if defer:
        a(f"""
L_dfr:
s_movk_i32 s58, 2000
L_dfr_l:
buffer_load_dword v93, v92, s[48:51], 0 offen nt
s_waitcnt vmcnt(0)
v_add_u32 v93, s28, v93
v_and_b32 v93, s29, v93
v_cmp_ne_u32 vcc, s29, v93
s_cbranch_vccz L_dfr_go
s_sub_u32 s58, s58, 1
s_cbranch_scc0 L_dfr_l
L_dfr_go:
""")
        for t in range(4): wodma(t, 90, 22, 23)
        a("s_waitcnt vmcnt(0)\ns_branch L_dfr_done")
    if near:
        assert near["nw"] in (1, 2)
        a(f"""L_meas:
s_cmp_lt_u32 s3, 2
s_cbranch_scc1 L_meas_done
s_and_b32 s4, s3, 1
s_lshl_b32 s4, s4, 13
s_lshl_b32 s5, s2, 7
s_add_u32 s4, s4, s5
s_memtime s[76:77]
s_waitcnt lgkmcnt(0)
s_load_dword s5, s[40:41], s4 offset:{MEAS}
s_waitcnt lgkmcnt(0)
s_memtime s[78:79]
s_lshl_b32 s4, s3, 2
v_mov_b32 v5, s4
s_waitcnt lgkmcnt(0)
s_sub_u32 s78, s78, s76
v_mov_b32 v6, s78
ds_write_b32 v5, v6 offset:{OP - 8}
s_waitcnt lgkmcnt(0)
s_branch L_meas_done
L_mpub:
ds_read_b64 v[94:95], v9 offset:{OP}
s_lshl_b32 s4, s2, 3
s_add_u32 s4, s4, {CWOFF}
s_movk_i32 s5, {near.get("cap", 600)}
s_mov_b64 exec, 1
s_waitcnt lgkmcnt(0)
v_sub_u32 v94, v94, v95
v_min_i32 v94, s5, v94
v_sub_u32 v95, 0, v94
v_min_i32 v95, s5, v95
v_sub_u32 v94, 0, v95
v_mov_b32 v95, s12
buffer_store_dwordx2 v[94:95], v9, s[52:55], s4 offen sc1
s_mov_b64 exec, -1
s_branch L_mpub_done
""")
    a("L_qs_far:\n" + (f"ds_write_b32 v9, v11 offset:{FLG+32}\n" if dp else "") + "buffer_store_dwordx4 v[132:135], v25, s[52:55], s72 offen sc1\n" + ("buffer_store_dwordx2 v[136:137], v138, s[52:55], s73 offen sc1\n" if qf else "") + "s_branch L_qs_done\nL_gq_far:")
    qpoll("x", "sc1")
    a("s_branch L_gq_got")
    if fc:
        lean = fc.get("tt", {}).get("notab") and fc["tt"].get("gl") == 2
        if not lean:
            a("L_cb:\ns_waitcnt lgkmcnt(0)\ns_mov_b32 s71, 0")
            for i in range(8): a(f"s_cmp_lg_u32 s{4+i}, s73\ns_addc_u32 s71, s71, 0")
        if not fc.get("wg"):
            a(f"""
s_cmp_lt_u32 s71, {fc['th1']}
s_cselect_b32 s62, 2, 0
s_cmp_ge_u32 s71, {fc['th2']}
s_cselect_b32 s62, 1, s62
""")
            if prof: a("s_lshl_b64 s[82:83], s[82:83], 2\ns_or_b32 s82, s82, s62")
            a("s_setpc_b64 s[80:81]")
        else:
            bias = 16 * fc["CW"]
            TSX = ""; DEC = ""
            if fc.get("dec"):
                DEC = f"s_cmp_eq_u32 s62, 1\ns_cselect_b32 s71, {-fc['dec'][0]}, 0\ns_cmp_eq_u32 s62, 2\ns_cselect_b32 s71, {fc['dec'][1]}, s71\ns_add_u32 s74, s74, s71"
            if fc.get("ts"):
                TSX = "L_cx:\ns_waitcnt lgkmcnt(0)\ns_mov_b32 s71, 0\n"
                for i in range(8): TSX += f"s_sub_u32 s{16+2*i}, s36, s{16+2*i}\ns_cmp_eq_u32 s{17+2*i}, s73\ns_cselect_b32 s{16+2*i}, s{16+2*i}, 0\ns_add_u32 s71, s71, s{16+2*i}\n"
                TSX += f"""s_sub_u32 s32, s36, s32
s_cmp_eq_u32 s33, s73
s_cselect_b32 s32, s32, 0
s_lshl_b32 s32, s32, 3
s_sub_u32 s32, s32, s71
s_mul_i32 s32, s32, {fc['tg']}
s_ashr_i32 s74, s32, 5
s_branch L_cc
"""
            if fc.get("tt"):
                tt = fc["tt"]
                RED = "\n".join(f"v_add_u32_dpp v85, v85, v85 row_ror:{n} row_mask:0xf bank_mask:0xf" for n in (4, 2, 1))
                CW_ = f"""{RED}
v_readfirstlane_b32 s69, v85
s_mul_i32 s69, s69, {round(tt['U'])}
s_lshr_b32 s69, s69, 5
s_sub_u32 s62, s62, s69
"""
                if tt.get("gl"):
                    SUMX = "s_waitcnt lgkmcnt(0)\ns_mov_b32 s71, 0\n"
                    for i in range(8): SUMX += f"s_sub_u32 s{16+2*i}, s36, s{16+2*i}\ns_cmp_eq_u32 s{17+2*i}, s73\ns_cselect_b32 s{16+2*i}, s{16+2*i}, {tt.get('inv', 0)}\ns_add_u32 s71, s71, s{16+2*i}\n"
                    SUMX += "s_ashr_i32 s71, s71, 3\ns_sub_u32 s71, s36, s71\n"
                    TSX = "L_cx:\n" + SUMX
                    if tt["gl"] == 2:
                        TSX = "L_cx:\ns_waitcnt lgkmcnt(0)\ns_add_u32 s62, s62, s70\ns_mov_b32 s71, 0\n"
                        if prof and tt.get("tv"): TSX += "s_lshl_b64 s[82:83], s[82:83], 4\n"
                        for i in range(8):
                            TSX += f"s_sub_u32 s{16+2*i}, s{16+2*i}, s62\ns_cmp_eq_u32 s{17+2*i}, s73\ns_cselect_b32 s{16+2*i}, s{16+2*i}, 0\n"
                            if prof and tt.get("tv"): TSX += "s_addc_u32 s82, s82, 0\n"
                            TSX += f"s_add_u32 s71, s71, s{16+2*i}\n"
                        TSX += f"s_ashr_i32 s71, s71, {3 + tt.get('gsm2', 0)}\ns_add_u32 s70, s70, s71\ns_setpc_b64 s[80:81]\n"
                        SUMX = None
                    if tt.get("gsm"): TSX += f"s_sub_u32 s71, s71, s62\ns_sub_u32 s71, s71, s70\ns_ashr_i32 s71, s71, {tt['gsm']}\ns_add_u32 s70, s70, s71\ns_setpc_b64 s[80:81]\nL_cx0:\n" + SUMX
                    if SUMX: TSX += "s_sub_u32 s70, s71, s62\ns_setpc_b64 s[80:81]\n"
                if lean: a("; re-centre the schedule on the mean of the published clocks (entries without this launch's tag are skipped)\n" + TSX)
                else: a(f"""
s_setpc_b64 s[80:81]
{TSX}
L_cw0:
{CW_}
s_sub_u32 s75, s62, {round(tt['U'] * fc['CW'] / 2)}
s_branch L_cc
L_cw:
{CW_}
s_sub_u32 s62, s62, {round(tt['U'] * fc['CW'] / 2)}
""" + (f"s_sub_u32 s62, s62, s75\ns_ashr_i32 s62, s62, {tt['sm']}\ns_add_u32 s75, s75, s62" if tt.get("sm") else "s_mov_b32 s75, s62") + """
L_cc:
""" + ("" if tt.get("gl") else "s_add_u32 s70, s75, s74") + """
s_setpc_b64 s[80:81]
""")
            else: a(f"""
s_mul_i32 s74, s71, {fc.get('kx', 0)}
{"s_lshl_b64 s[82:83], s[82:83], 4" if prof and fc.get("tm") else ""}
{"s_or_b32 s82, s82, s71" if prof and fc.get("tm") else ""}
s_branch L_cc
{TSX}
L_cw:
v_add_u32_dpp v85, v85, v85 row_ror:4 row_mask:0xf bank_mask:0xf
v_add_u32_dpp v85, v85, v85 row_ror:2 row_mask:0xf bank_mask:0xf
v_add_u32_dpp v85, v85, v85 row_ror:1 row_mask:0xf bank_mask:0xf
v_readfirstlane_b32 s69, v85
s_sub_u32 s75, s68, s69
s_sub_u32 s75, s75, {bias}
{DEC}
L_cc:
s_add_u32 s68, s75, s74
s_cmp_lt_i32 s68, {-fc['b']}
s_cselect_b32 s62, 2, 0
s_cmp_gt_i32 s68, {fc['a']}
s_cselect_b32 s62, 1, s62
""")
            if prof and not fc.get("tm") and not fc.get("tt"): a("s_lshl_b64 s[82:83], s[82:83], 2\ns_or_b32 s82, s82, s62")
            if not fc.get("tt"): a("s_setpc_b64 s[80:81]")
    a("; one output column of the token MLP: sum_f gelu_tanh(h*w1+b1)*w2 over this wave's quarter of F\nL_mlp:")
    if mr:
        a("; (the product, the biased sum and the activation are rounded to bf16 where the reference's bf16 tensors round them)")
        for t in range(7): a(f"v_mul_f32 v{U+t}, s4, v{W1+t}")
        for t in range(7): a(f"v_cvt_pk_bf16_f32 v{U+t}, 0, v{U+t}")
        for t in range(7): a(f"v_add_f32 v{U+t}, v{U+t}, v{B1+t}")
        for t in range(7): a(f"v_cvt_pk_bf16_f32 v{U+t}, 0, v{U+t}")
    else:
        for t in range(7): a(f"v_fma_f32 v{U+t}, s4, v{W1+t}, v{B1+t}")
    for t in range(7): a(f"v_mul_f32 v{AA+t}, v{U+t}, v{U+t}")
    for t in range(7): a(f"v_fmaak_f32 v{AA+t}, v{AA+t}, v{C1}, {f32(c0)}")
    for t in range(7): a(f"v_mul_f32 v{AA+t}, v{AA+t}, v{U+t}")
    for t in range(7): a(f"v_exp_f32 v{EE+t}, v{AA+t}")
    if not mr:
        for t in range(7): a(f"v_mul_f32 v{U+t}, v{U+t}, v{W2+t}")
    for t in range(7): a(f"v_add_f32 v{EE+t}, 1.0, v{EE+t}")
    for t in range(7): a(f"v_rcp_f32 v{EE+t}, v{EE+t}")
    if mr:
        for t in range(7): a(f"v_mul_f32 v{EE+t}, v{U+t}, v{EE+t}")
        for t in range(7): a(f"v_cvt_pk_bf16_f32 v{EE+t}, 0, v{EE+t}")
    M2 = W2 if mr else U
    a(f"v_mul_f32 v{ACC2}, v{M2}, v{EE}")
    a(f"v_mul_f32 v{AA}, v{M2+1}, v{EE+1}")
    for t in range(2, 7): a(f"v_fmac_f32 v{ACC2 if t % 2 == 0 else AA}, v{M2+t}, v{EE+t}")
    a(f"v_add_f32 v{ACC2}, v{ACC2}, v{AA}")
    for n in (8, 4, 2, 1): a(f"v_add_f32_dpp v{ACC2}, v{ACC2}, v{ACC2} row_ror:{n} row_mask:0xf bank_mask:0xf")
    swaps_add(ACC2, AA)
    a(f"""
s_mov_b64 exec, 1
ds_write_b32 v{YA}, v{ACC2} offset:{YP}
s_mov_b64 exec, -1
v_add_u32 v{YA}, 4, v{YA}
s_setpc_b64 s[80:81]
""")
    body = a.render()
    if "allsc1st" in dbg:
        import re
        body = re.sub(r"(buffer_store_dwordx[24] v\[\d+:\d+\], v\d+, s\[52:55\], s(6|72) offen( offset:128)?)\n", r"\1 sc1\n", body)
    if "allsc1ld" in dbg:
        import re
        body = re.sub(r"(buffer_load_dwordx4 v\[\d+:\d+\], v\d+, s\[52:55\], s[67] offen( offset:\d+)?) nt\n", r"\1 sc1\n", body)
    txt = HDR + f"""; @launch grid=(256,1,1) block=(512,1,1) lds={LDSZ}
.amdgcn_target "amdgcn-amd-amdhsa--gfx950"
; ---------------------------------------------------------------------------------------------------------
; out = x + (softmax(q K^T / sqrt(128)) V) Wo * silu(token_mlp(LN(LN(x)))),  q = LN(x) Wq.   One launch, 256 workgroups.
; Workgroup id = b*32 + split*8 + x : batch b, kv head x, quarter `split` of the 4096 cached tokens.
;  waves 0-3 (stream): read the K and V rows of this workgroup once (nt), scores by MFMA, true max + exp, P.V by MFMA.
;  waves 4-7 (helper): LN, a 128x64 tile of Wq (partials exchanged through d_ws), the token MLP gate for 16 output
;                      columns, softmax statistics exchange, partial-O hand-off (hop 1), a 128x64 tile of Wo,
;                      hand-off of the projected partial sums (hop 2), final sum / gate / residual / store.
; Hand-offs: every granule in d_ws carries this launch's tag (ws[0]+1; workgroup 0 stores the tag back at the end), so
;  words left by earlier launches or by the harness are never taken for data.  All polls are bounded.
; Placement: hop 2 and the clock/vote words always use sc1 (memory-side) accesses.  The exchanges inside a group of 32
;  workgroups use plain stores only after the group has PROVEN (tagged table indexed by the hardware XCC id) that all
;  32 share one L2; otherwise they use sc1 stores/loads, so any placement gives the same result.
; Bandwidth sharing: HBM is saturated for the whole stream, and the launch ends with the slowest workgroup.  Each stream
;  wave compares its progress with the mean progress of all dies (clock values exchanged in d_ws, this launch only) and
;  keeps 4..12 loads in flight accordingly (behind: more, ahead: fewer).  This only selects s_waitcnt vmcnt depths;
;  nothing waits on the clock.  The s_memtime probe at the start picks which half of the hop-2 area is closer to its
;  readers (all workgroups read the same 16 votes, so they agree); either choice is correct.
; ---------------------------------------------------------------------------------------------------------
.text
.globl {KN}_kernel
.p2align 8
.type {KN}_kernel,@function
{KN}_kernel:
""" + body + f""".section .rodata,"a"
.p2align 6
.amdhsa_kernel {KN}_kernel
  .amdhsa_next_free_vgpr 256
  .amdhsa_next_free_sgpr 102
  .amdhsa_accum_offset 256
  .amdhsa_group_segment_fixed_size 0
  .amdhsa_kernarg_size 104
  .amdhsa_user_sgpr_count 2
  .amdhsa_user_sgpr_kernarg_segment_ptr 1
  .amdhsa_system_sgpr_workgroup_id_x 1
.end_amdhsa_kernel
"""
    open(fname, "w").write(txt)
if __name__ == "__main__":
    import glob, os
    for f in glob.glob("kp_*.s"): os.remove(f)
    gen("k1.s", mlp1=4, slp=0)
    kw = dict(prof=True, tailprof=True, mlp1=4, slp=0, rq=1, wolate=[5, 7, 9, 11])
    gen("kp_00.s", **kw)
    F = dict(wg=1, x=1, G=2, kx=24, a=64, b=-16, W=(4,6,12), d=6, C=3, CW=2)
    gen("kp_01.s", fc=F, **kw)
    gen("kp_02_nowork.s", fc=F, dbg="nok nosm nov", **kw)
    gen("kp_03_nosm.s", fc=F, dbg="nosm", **kw)
    gen("kp_04_nowq.s", fc=F, dbg="nowq", **kw)
    gen("kp_05_nowork_nowq.s", fc=F, dbg="nok nosm nov nowq", **kw)
    gen("kp_06_nowork_nowq_nomlp.s", fc=F, dbg="nok nosm nov nowq nomlp", **kw)
    gen("kp_07_nofc_nowork.s", dbg="nok nosm nov", **kw)
    gen("kp_08_nofc_nowork_nowq.s", dbg="nok nosm nov nowq", **kw)
```

```python
import sys, struct, math
from asmlib import Asm
KN = "recurrent_scan__gqa_block_cached__mixer_token_mlp__decode"
def f32(x): return "0x%08x" % struct.unpack("<I", struct.pack("<f", x))[0]
LOG2E = 1.4426950408889634
FLG = 0; QL = 64; ST = QL + 1024; YP = ST + 128; OP = YP + 256; XN = OP + 4 * 2304; XRS = 1040; WQL = XN + 8 * XRS; KL = WQL + 32768
QOFF = 64 << 10; H1OFF = QOFF + (1 << 20); H1S = 4224; H2OFF = H1OFF + (640 << 10); BD = 4 << 20; PGOFF = 8 << 10; LOCOFF = 32 << 10; STAMP = 128 << 20
HDR = open("cdna_kernels/" + KN + ".s.ref").read().split("; Override launch")[0]

def gen(fname, WIN=6, G=2, RING=40, prof=False, wo_thr=4, ntw="", woflags="", spin=400000, dbg="", WPS=1, dry=False, tailprof=False, NLT=6, slp=2, wqdma=True, sprio=2, bgprio=0, mlp1=8, local=True, fb=31, deferB=True, pretouch=False, pat=None, pat2=None, rot=None, cmap=0, light=False, lslp=0, h1fl='nt', h2sync=True, fc=None, est=None, rq=0, ro=0, sE=True, wolate=None, n0=64, pipe1=1, pipe2=1, stag1=3, stag2=3, h2late=True, h2ack=True, h2pre=False, h2full=False, slp2=0, dbgt=False, dirty=0, clean=False, qslp=None, nloc=200, tmap=(14, 16, None), wotrig=None, wothr=2, wosl=2, womid=True, palign=0, defer=None, h2off=None, tlbw=False, near=None, endwait=False, lastopt=True, pkc=True, warm='', hdel=0, wqdel=0, dp=False, dpt='c3', dpf=4, dpw=0, dpc=6, dpfl="nt", dpp=0, hp=3, hp2=None, h1e=None, wosw=False, t2=False, prew=True, b3=False, wodl=None, t3=False, h1m=0, h2fl='sc1', h2e=False, h2sf='sc1', qprew=False, trot=None, trotw=0, wbar=0, own1=False, lbar=False, fin=0, mr=0, qf=0, dry2=0, cpf=0):
    if fin: assert h2late and not h2e
    if lbar: h2late = False; h2sync = False
    if t3: t2 = True; h2late = False; h2sync = False; assert womid and wotrig is not None
    if t2: assert not dp and lastopt and wosw and not h2full and pkc and not defer
    if dp: assert fc and tmap[2] is None and wotrig is not None and wotrig >= 200
    H2OFF = (576 << 10) if h2off is None else h2off
    MEAS = 48 << 10; CWOFF = 16 << 10
    a = Asm()
    LDSZ = KL + 4 * NLT * 4096
    NLL = 4 * NLT
    NST = 8
    def stamp(i):
        if prof: a(f"s_memrealtime s[{84+2*i}:{85+2*i}]")
    stamp(0)
    if dbgt: a("s_memrealtime s[84:85]\ns_memtime s[86:87]")
    a(f"""
s_load_dwordx2 s[44:45], s[0:1], 8
s_load_dwordx2 s[48:49], s[0:1], 16
v_lshrrev_b32 v2, 6, v0
s_cmp_ge_u32 s2, 256
v_and_b32 v1, 63, v0
v_readfirstlane_b32 s3, v2
s_cbranch_scc1 L_end
s_cmp_ge_u32 s3, 4
s_cbranch_scc1 {"L_hstub" if cpf else "L_helper"}
""")
    a(f"""
s_setprio {sprio}
s_mov_b32 s46, 0x4000000
s_mov_b32 s47, 0x20000
s_and_b32 s52, s2, 7
s_lshl_b32 s52, s52, 20
s_lshr_b32 s53, s2, 5
s_lshl_b32 s53, s53, 23
s_or_b32 s52, s52, s53
s_bfe_u32 s53, s2, 0x20003
s_lshl_b32 s53, s53, {tmap[0]}
s_or_b32 s52, s52, s53
s_lshl_b32 s53, s3, 12
s_or_b32 s52, s52, s53
s_mul_i32 s60, s3, {NLT*4096}
s_add_u32 s60, s60, {KL}
v_lshrrev_b32 v5, 4, v1
v_bfe_u32 v6, v1, 2, 2
v_and_b32 v7, 3, v1
v_lshlrev_b32 v2, 8, v6
v_lshl_add_u32 v2, v5, 6, v2
v_lshl_add_u32 v2, v7, 4, v2
""")
    if trot: a(f"s_bfe_u32 s53, s2, {hex((trot[1] << 16) | trot[0])}\ns_lshl_b32 s53, s53, {trot[2]}\ns_xor_b32 s52, s52, s53")
    if trotw: a(f"s_lshl_b32 s53, s3, {trotw}\ns_xor_b32 s52, s52, s53")
    if tmap[2]: a(f"s_and_b32 s53, s2, 7\ns_lshl_b32 s53, s53, {tmap[2]}\ns_xor_b32 s52, s52, s53")
    def late_setup():
        a(f"""
{"" if fc and fc.get("tt", {}).get("notab") else "s_load_dwordx2 s[38:39], s[0:1], 88"}
s_load_dwordx2 s[40:41], s[0:1], 96
s_mov_b32 s50, 0x4000000
s_mov_b32 s51, 0x20000
v_lshlrev_b32 v3, 4, v1
""")
        if fc and fc.get("tt", {}).get("notab"): a(f"""
; schedule exchange: wave 0 of one workgroup per group publishes its clock at a few steps (slot = id&7)
s_lshr_b32 s64, s2, 3
s_cmp_eq_u32 s3, 0
s_cselect_b32 s64, s64, 64
s_and_b32 s65, s2, 7
s_lshl_b32 s65, s65, 3
v_mov_b32 v83, s65
{"s_mov_b64 s[82:83], 0" if prof else ""}
{"s_cselect_b64 vcc, 1, 0" if fc.get("vw") else ""}
s_waitcnt lgkmcnt(0)
s_load_dword s73, s[40:41], 0
s_mov_b32 s76, s40
s_mov_b32 s77, s41
s_mov_b32 s78, 0x10000000
s_mov_b32 s79, 0x20000
""")
        elif fc: a(f"""
s_lshr_b32 s64, s2, 3
s_cmp_eq_u32 s3, 0
s_cselect_b32 s64, s64, 64
s_and_b32 s65, s2, 7
s_lshl_b32 s63, s65, 3
s_lshl_b32 s65, s65, {3 if fc.get("ts") else 2}
v_mov_b32 v83, s65
s_mov_b32 s62, {fc.get('l0', 0)}
s_mov_b64 s[82:83], 0
s_getreg_b32 s66, hwreg(HW_REG_XCC_ID, 0, 3)
s_lshl_b32 s66, s66, 5
s_lshr_b32 s67, s2, 3
s_add_u32 s67, s67, s66
v_mov_b32 v88, s67
v_and_b32 v87, 7, v1
v_lshl_add_u32 v87, v87, 2, s66
s_mov_b32 s74, 0
s_mov_b32 s75, 0
s_cmp_eq_u32 s3, 0
s_cselect_b64 vcc, 1, 0
s_waitcnt lgkmcnt(0)
s_load_dword s73, s[40:41], 0
s_mov_b32 s76, s40
s_mov_b32 s77, s41
s_mov_b32 s78, 0x10000000
s_mov_b32 s79, 0x20000
s_mov_b32 s12, s38
s_mov_b32 s13, s39
s_mov_b32 s14, 256
s_mov_b32 s15, 0x20000
""")
    RB = 256 - RING * 4
    def rreg(n): return RB + ((n - NLL) % RING) * 4
    NL = 128
    st = {"tile": None}
    def stub(): a(f"""
s_branch L_go
L_hstub:
; one helper wave per workgroup reads a quarter of this kernel's code as data, so later instruction fetches find it in L2
{"s_bfe_u32 s4, s2, 0x20003" if cpf != 2 else ""}
{"s_add_u32 s4, s4, 4" if cpf != 2 else ""}
{"s_cmp_lg_u32 s4, s3" if cpf != 2 else ""}
{"s_cbranch_scc1 L_helper" if cpf != 2 else ""}
s_getpc_b64 s[4:5]
L_pc:
v_lshlrev_b32 v2, 7, v0
s_sub_u32 s4, s4, 32768+L_pc-{KN}_kernel
s_subb_u32 s5, s5, 0
v_min_u32 v2, 32768+L_last-{KN}_kernel, v2
global_load_dword v255, v2, s[4:5]
s_branch L_helper
""")
    def issue(n):
        isv = n >= 64; t = (n & 63) >> 2; q = n & 3
        if st["tile"] != (isv, t):
            st["tile"] = (isv, t)
            if tmap: a(f"s_xor_b32 s53, s52, {t << tmap[1]}")
            elif rot is None: a(f"s_add_u32 s53, s52, {t*16384}")
            else: a(f"s_add_u32 s53, s61, {t*16384}\ns_and_b32 s53, s53, 0x3ffff\ns_add_u32 s53, s53, s52")
            if n < NLL: a(f"s_add_u32 m0, s60, {t*4096}\ns_nop 0")
            if n == 0:
                if cpf in (1, 2): stub()
                if palign: a(f".p2align {palign}")
                if cpf in (1, 2): a("L_go:")
                a("s_waitcnt lgkmcnt(0)")
                if st.get("ks"): stamp(7)
        if n < NLL:
            a(f"buffer_load_dwordx4 v2, s[44:47], s53 offen offset:{q*1024} nt lds"); return
        r = rreg(n)
        a(f"buffer_load_dwordx4 v[{r}:{r+3}], {'v3' if isv else 'v2'}, {'s[48:51]' if isv else 's[44:47]'}, s53 offen offset:{q*1024} nt")
    TSR = 6
    QB = 8; Y = 12; ACC = 28; DT = 28; TT = 44; PT = 60; PA = 76; M = 80
    def setup_consts():
        a(f"""
s_mov_b32 s54, 0x05040100
s_mov_b32 s55, 0x07060302
s_mov_b32 s56, {f32(128**-0.5)}
s_mov_b32 s57, {f32(LOG2E)}
v_lshlrev_b32 v4, 8, v7
v_lshl_add_u32 v4, v5, 6, v4
v_lshl_add_u32 v4, v6, 4, v4
v_mov_b32 v84, 0
v_add_u32 v86, s60, v3
""")
    def wait_q():
        stamp(1)
        if "noq" in dbg:
            a(f"ds_read_b128 v[{QB}:{QB+3}], v4 offset:{QL}\ns_waitcnt lgkmcnt(0)"); stamp(2); return
        a(f"""
s_mov_b32 s58, {spin*8}
L_sq:
ds_read_b32 v85, v84 offset:{FLG+4}
s_waitcnt lgkmcnt(0)
v_readfirstlane_b32 s59, v85
s_sub_u32 s58, s58, 1
s_cbranch_scc1 L_sq_done
s_cmp_ge_u32 s59, 4
s_cbranch_scc1 L_sq_done
s_sleep 1
s_branch L_sq
L_sq_done:
ds_read_b128 v[{QB}:{QB+3}], v4 offset:{QL}
{f"ds_read_b32 v85, v84 offset:{FLG+32}" if dp else ""}
s_waitcnt lgkmcnt(0)
{"v_readfirstlane_b32 s42, v85" if dp else ""}
""")
        stamp(2)
        if prof: a("s_waitcnt lgkmcnt(0)")
    def ktile(t):
        if t < NLT:
            for q in range(4): a(f"ds_read_b128 v[{PT+4*q}:{PT+4*q+3}], v86 offset:{t*4096+q*1024}")
        for q in range(4):
            r = rreg(4 * t + q) if t >= NLT else PT + 4 * q
            if t < NLT: a(f"s_waitcnt lgkmcnt({3-q})")
            a(f"v_mfma_f32_16x16x32_bf16 v[{DT+4*q}:{DT+4*q+3}], v[{r}:{r+3}], v[{QB}:{QB+3}], 0")
        for c in range(4):
            for r in range(4):
                n = 4 * ((c - r) % 4)
                ctl = f"row_ror:{n}" if n else "quad_perm:[0,1,2,3]"
                a(f"v_mov_b32_dpp v{TT+r}, v{DT+4*c+r} {ctl} row_mask:0xf bank_mask:{hex(1<<c)}")
        y = Y + t
        a(f"""
v_add_f32 v{TT}, v{TT}, v{TT+1}
v_add_f32 v{TT+2}, v{TT+2}, v{TT+3}
v_add_f32 v{y}, v{TT}, v{TT+2}
v_cvt_pk_bf16_f32 v{y}, v{y}, v{y}
v_lshlrev_b32 v{y}, 16, v{y}
v_mul_f32 v{y}, s56, v{y}
v_cvt_pk_bf16_f32 v{y}, v{y}, v{y}
v_lshlrev_b32 v{y}, 16, v{y}
""")
    def xlane(op, r, t):
        a(f"""
{op}_dpp v{r}, v{r}, v{r} row_ror:4 row_mask:0xf bank_mask:0xf
""") if op != "v_add_f32" else a(f"""
v_add_f32_dpp v{r}, v{r}, v{r} row_ror:4 row_mask:0xf bank_mask:0xf
""")
        a(f"""
{op}_dpp v{r}, v{r}, v{r} row_ror:8 row_mask:0xf bank_mask:0xf
v_mov_b32 v{t}, v{r}
v_permlane16_swap_b32 v{r}, v{t}
{op} v{r}, v{r}, v{t}
v_mov_b32 v{t}, v{r}
v_permlane32_swap_b32 v{r}, v{t}
{op} v{r}, v{r}, v{t}
""")
    def softmax():
        m = M; l = M + 1; t = M + 2
        a(f"v_max3_f32 v{m}, v{Y}, v{Y+1}, v{Y+2}")
        for i in range(3, 15, 2): a(f"v_max3_f32 v{m}, v{m}, v{Y+i}, v{Y+i+1}")
        a(f"v_max_f32 v{m}, v{m}, v{Y+15}")
        xlane("v_max_f32", m, t)
        a(f"v_mul_f32 v{m}, s57, v{m}")
        for i in range(16): a(f"v_fma_f32 v{Y+i}, v{Y+i}, s57, -v{m}")
        for i in range(16): a(f"v_exp_f32 v{Y+i}, v{Y+i}")
        a(f"v_add_f32 v{l}, v{Y}, v{Y+1}")
        a(f"v_add_f32 v{t}, v{Y+2}, v{Y+3}")
        for i in range(4, 16, 2):
            a(f"v_add_f32 v{l}, v{l}, v{Y+i}")
            a(f"v_add_f32 v{t}, v{t}, v{Y+i+1}")
        a(f"v_add_f32 v{l}, v{l}, v{t}")
        for v in range(8): a(f"v_cvt_pk_bf16_f32 v{Y+v}, v{Y+2*v}, v{Y+2*v+1}")
        if t2:
            for i in range(16): a(f"v_mov_b32 v{PA4+i}, 0")
        xlane("v_add_f32", l, t)
        a(f"""
s_lshl_b32 s59, s3, 5
v_lshl_add_u32 v{t}, v1, 3, s59
s_mov_b64 exec, 15
ds_write_b64 v{t}, v[{m}:{m+1}] offset:{ST}
s_mov_b64 exec, 1
v_mov_b32 v{t}, 1
ds_add_u32 v84, v{t} offset:{FLG+16}
s_mov_b64 exec, -1
""")
    PA4 = 36
    def mkpa(v):
        if t2:
            for c in range(4):
                for p in range(4):
                    n = 4 * ((c - p) % 4)
                    a(f"v_mov_b32_dpp v{PA4+4*c+p}, v{Y+v} {f'row_ror:{n}' if n else 'quad_perm:[0,1,2,3]'} row_mask:0xf bank_mask:{hex(1<<c)}")
            return
        a(f"v_mov_b32 v{PA}, v{Y+v}")
        for p in (1, 2, 3):
            a(f"v_mov_b32_dpp v{PA+p}, v{Y+v} row_ror:{4*((0-p)%4)} row_mask:0xf bank_mask:0xf")
    def vchunk(v):
        mkpa(v)
        for half in range(2):
            for jj in range(4 * half, 4 * half + 4):
                o = PT + 4 * (jj & 3)
                for p in range(4):
                    lo = rreg(64 + 8 * v + p) + (jj >> 1); hi = rreg(64 + 8 * v + 4 + p) + (jj >> 1)
                    a(f"v_perm_b32 v{o+p}, v{hi}, v{lo}, {'s55' if jj & 1 else 's54'}")
            for jj in range(4 * half, 4 * half + 4):
                o = PT + 4 * (jj & 3); d = ACC + 4 * jj
                pa = PA
                if t2: d = ACC + 4 * half; pa = PA4 + 4 * (jj & 3)
                c = "0" if (v == 0 and (not t2 or jj & 3 == 0)) else f"v[{d}:{d+3}]"
                a(f"v_mfma_f32_16x16x32_bf16 v[{d}:{d+3}], v[{pa}:{pa+3}], v[{o}:{o+3}], {c}")
    def s_wait(lbl, off, cnt):
        a(f"""
s_mov_b32 s58, {spin*8}
{lbl}:
ds_read_b32 v85, v84 offset:{off}
s_waitcnt lgkmcnt(0)
v_readfirstlane_b32 s59, v85
s_sub_u32 s58, s58, 1
s_cbranch_scc1 {lbl}_done
s_cmp_lt_u32 s59, {cnt}
s_cbranch_scc1 {lbl}
{lbl}_done:
""")
    def s_sig(off): a(f"s_mov_b64 exec, 1\nv_mov_b32 v82, 1\nds_add_u32 v84, v82 offset:{off}\ns_mov_b64 exec, -1")
    AQ = [20, 24, 12, PA]
    def fitem(v0):
        T_ = PT
        s_wait("L_d1", FLG + 16, 4)
        a(f"""
v_and_b32 v4, 3, v1
v_lshlrev_b32 v4, 3, v4
ds_read_b32 v{T_}, v4 offset:{ST}
ds_read_b32 v{T_+1}, v4 offset:{ST+32}
ds_read_b32 v{T_+2}, v4 offset:{ST+64}
ds_read_b32 v{T_+3}, v4 offset:{ST+96}
v_lshlrev_b32 v4, 1, v4
v_lshrrev_b32 v10, 4, v1
v_lshl_add_u32 v4, v10, 6, v4
v_bfe_u32 v11, v1, 2, 2
v_lshl_add_u32 v4, v11, 2, v4
s_lshl_b32 s59, s3, 8
v_add_u32 v4, s59, v4
s_waitcnt lgkmcnt(0)
v_max3_f32 v{T_}, v{T_}, v{T_+1}, v{T_+2}
v_max_f32 v{T_}, v{T_}, v{T_+3}
v_sub_f32 v{T_}, v{M}, v{T_}
v_exp_f32 v{T_}, v{T_}
""")
        for v in range(v0, 8): a(f"v_lshlrev_b32 v{T_+8+2*(v-v0)}, 16, v{Y+v}\nv_and_b32 v{T_+9+2*(v-v0)}, 0xffff0000, v{Y+v}")
        for i in range(4): a(f"v_mov_b32_dpp v{T_+4+i}, v{T_} quad_perm:[{i},{i},{i},{i}] row_mask:0xf bank_mask:0xf")
        for v in range(v0, 8): a(f"v_pk_mul_f32 v[{T_+8+2*(v-v0)}:{T_+9+2*(v-v0)}], v[{T_+8+2*(v-v0)}:{T_+9+2*(v-v0)}], v[{T_}:{T_+1}] op_sel_hi:[1,0]")
        for v in range(v0, 8): a(f"v_cvt_pk_bf16_f32 v{Y+v}, v{T_+8+2*(v-v0)}, v{T_+9+2*(v-v0)}")
        a(f"ds_write_b32 v4, v{Y+7} offset:{QL}")
        s_sig(FLG + 44)
        for jj in range(8):
            d_ = ACC + 4 * jj
            a(f"v_pk_mul_f32 v[{d_}:{d_+1}], v[{d_}:{d_+1}], v[{T_+4}:{T_+5}]\nv_pk_mul_f32 v[{d_+2}:{d_+3}], v[{d_+2}:{d_+3}], v[{T_+6}:{T_+7}]")
        a(f"""
v_lshlrev_b32 v9, 6, v10
v_lshl_add_u32 v9, v11, 4, v9
s_lshl_b32 s59, s3, 2
v_add_u32 v4, s59, v11
v_mul_u32_u24 v4, 144, v4
v_lshl_add_u32 v4, v10, 2, v4
v_and_b32 v8, 3, v1
v_lshl_add_u32 v4, v8, 5, v4
v_mul_u32_u24 v10, {4*H1S}, v10
v_lshl_add_u32 v10, v11, 8, v10
v_bfe_u32 v8, v1, 1, 1
v_lshl_add_u32 v10, v8, 10, v10
v_and_b32 v8, 1, v1
v_lshl_add_u32 v10, v8, 3, v10
v_mov_b32 v11, v9
s_and_b32 s43, s2, 7
s_lshl_b32 s43, s43, 4
s_lshr_b32 s59, s2, 6
s_add_u32 s43, s43, s59
s_mul_i32 s43, s43, {H1S}
s_bfe_u32 s59, s2, 0x30003
s_lshl_b32 s59, s59, 4
s_add_u32 s43, s43, s59
s_lshr_b32 s59, s3, 1
s_lshl_b32 s59, s59, 7
s_add_u32 s43, s43, s59
s_and_b32 s59, s3, 1
s_lshl_b32 s59, s59, 11
s_add_u32 s43, s43, s59
s_add_u32 s43, s43, {H1OFF + 128}
s_mul_i32 s72, s73, 0x01010101
v_mov_b32 v9, s72
s_mul_i32 s59, s3, 2304
v_mul_u32_u24 v8, 144, v1
v_add_u32 v8, s59, v8
""")
    work = [("K", t, 4 * t + 3) for t in list(range(NLT, 16)) + list(range(NLT))] + [("S", 0, 63)] + [("V", v, 64 + 8 * v + 7) for v in range(8)]
    if dp: work.insert(17 + dpf, ("F", dpf, 0))
    consumed = NLL - 1
    wi = 0
    def do_work():
        nonlocal wi, consumed
        k, i, last = work[wi]
        if k == "K":
            if wi == 0: wait_q()
            if "nok" not in dbg: ktile(i)
            consumed = max(consumed, last)
        elif k == "S":
            if "nosm" in dbg: a(f"s_mov_b64 exec, 1\nv_mov_b32 v82, 1\nds_add_u32 v84, v82 offset:{FLG+16}\ns_mov_b64 exec, -1")
            else: softmax()
            stamp(3)
        elif k == "F": fitem(i)
        else:
            if "nov" not in dbg: vchunk(i)
            consumed = last
        wi += 1
    def ztouch():
        a("; prefetch this workgroup's hop-2 inbox lines into the memory-side cache (loaded values are not used)")
        a(f"s_lshl_b32 s4, s2, 2\ns_add_u32 s4, s4, s3\ns_lshl_b32 s4, s4, 9\ns_add_u32 s4, s4, {H2OFF}")
        for i in range(512 // h2pre[1]): a(f"s_load_dword s{16 + i}, s[40:41], s4 offset:{i * h2pre[1]}")
    issued = 0
    ops = []
    def iss(n):
        if dp == 1 and n >= 120:
            i = n - 120; u = i >> 1
            if n == 120: a(f"s_andn2_b32 s70, s52, 0x3000\nv_lshrrev_b32 v2, 4, v1\nv_lshlrev_b32 v2, 8, v2\nv_and_b32 v85, 15, v1\nv_lshl_add_u32 v2, v85, 2, v2\ns_lshl_b32 s59, s3, 6\nv_add_u32 v2, s59, v2")
            if i & 1 == 0: a(f"s_xor_b32 s53, s70, {(14 << tmap[1]) | (u << 12)}\ns_xor_b32 s61, s70, {(15 << tmap[1]) | (u << 12)}")
            for p in (2 * (i & 1), 2 * (i & 1) + 1):
                for hi in range(2):
                    a(f"buffer_load_dword v{rreg(120) + 8*u + 2*p + hi}, v2, s[48:51], s{61 if hi else 53} offen offset:{p*1024} {dpfl}")
                    ops.append(("L", n) if (p & 1 and hi) else ("s", n))
            return
        issue(n); ops.append(("L", n))
    def vm_for(X):
        li = [i for i, o in enumerate(ops) if o[0] == "L"]
        if len(li) <= X: return None
        p = li[len(li) - X - 1]
        return len(ops) - 1 - p, p
    if pat is None: pat = [(WIN, G)]
    if fc: pat = [(fc.get("w0", fc["W"][1]), fc["G"])]
    if est == [-1, -1]: stamp(5); st["ks"] = 1
    for n in range(pat[0][0]): iss(n)
    if est == [-1, -1]: stamp(6); est = [None, None]
    issued = pat[0][0]
    if cpf == 3: stub(); a("L_go:")
    late_setup()
    a("s_barrier")
    setup_consts()
    arrived = -1
    step = 0
    done_op = -1; nw = 0; ph = 0; nctl = 0; evalq = []; PAIRS = [88, 92, 94]; tagdone = False
    while issued < NL:
        pp = pat2 if (pat2 is not None and issued >= n0) else pat
        WIN, G = pp[step % len(pp)]; step += 1
        if not fc:
            if issued - (WIN - G) - 1 > arrived: a(f"s_waitcnt vmcnt({WIN-G})")
            arrived = max(arrived, issued - (WIN - G) - 1)
        else:
            Wl, Wm, Wh = fc["W"]
            opened = False
            for n_, W_ in fc.get("open", []):
                if issued >= n_: Wl, Wm, Wh = W_; opened = Wl == Wh
            while issued + G - 1 - RING > consumed and work[wi][2] > max(arrived, issued - (Wh - G) - 1): Wh -= 1; Wm = min(Wm, Wh); Wl = min(Wl, Wh)
            r = vm_for(Wh - G)
            if r and issued - (Wh - G) - 1 > arrived: a(f"s_waitcnt vmcnt({r[0]})"); done_op = max(done_op, r[1]); arrived = max(arrived, issued - (Wh - G) - 1)
            tt = fc.get("tt")
            if tt:
                if not st.get("ev"):
                    r_ = vm_for(min(tt.get("wp", Wm), Wh) - G)
                    if r_: a(f"s_waitcnt vmcnt({r_[0]}) ;nc")
                else:
                    if not st.get("sl"):
                        a(f"s_waitcnt lgkmcnt(0)\ns_add_u32 s68, s70, {round(tt['U'] * (step - 1))}\ns_sub_u32 s68, s68, s{st['cur']}"); st["ok"] |= st["pend"]; st["pend"] = set()
                    lv = tt["lv"]
                    for n_, l_ in tt.get("lv2", []):
                        if issued >= n_: lv = l_
                    pw = Wh
                    for i_ in range(len(lv) - 1):
                        w_ = min(lv[i_ + 1][0], Wh)
                        if w_ >= pw: continue
                        pw = w_
                        a(f"s_cmpk_lt_i32 s68, {lv[i_][1] & 0xffff} ;nc\ns_cbranch_scc1 L_fs{step} ;nc\ns_waitcnt vmcnt({vm_for(w_ - G)[0]}) ;nc")
                    a(f"L_fs{step}:")
                    if prof and tt.get("tr") and step in tt["tr"]: a("s_lshl_b64 s[82:83], s[82:83], 16\ns_and_b32 s69, s68, 0xffff\ns_or_b32 s82, s82, s69")
            elif not opened: a(f"""
s_cmp_eq_u32 s62, 2 ;nc
s_cbranch_scc1 L_fs{step} ;nc
s_waitcnt vmcnt({vm_for(Wm - G)[0]}) ;nc
s_cmp_eq_u32 s62, 0 ;nc
s_cbranch_scc1 L_fs{step} ;nc
s_waitcnt vmcnt({vm_for(Wl - G)[0]}) ;nc
L_fs{step}:
""")
        if est:
            for i_, e_ in enumerate(est):
                if e_ is not None and arrived >= e_: stamp(5 + i_); est[i_] = None
        g = min(G, NL - issued)
        while issued + g - 1 - RING > consumed:
            if work[wi][2] > arrived:
                assert not fc
                a(f"s_waitcnt vmcnt({issued - 1 - work[wi][2]})"); arrived = work[wi][2]
            do_work()
        for n in range(issued, issued + g): iss(n)
        if wotrig is not None and wotrig >= 0 and issued <= wotrig < issued + g:
            a(f"s_mov_b64 exec, 1\nv_mov_b32 v82, 1\nds_add_u32 v84, v82 offset:{FLG+28}\ns_mov_b64 exec, -1")
        if fc:
            d = fc["d"]; k0 = fc.get("k0", 2); last = (NL - fc.get("stop", 8) - fc["W"][1]) // G
            if step == k0:
                a("s_waitcnt lgkmcnt(0)\ns_add_u32 s73, s73, 1" + ("" if fc.get("tt", {}).get("notab") else "\nv_mov_b32 v90, s73"))
            if step == fc.get("vw"):
                a("s_mov_b64 exec, vcc\nbuffer_load_dword v91, v84, s[48:51], s52 offen nt\ns_mov_b64 exec, -1"); ops.append(("C", 0))
            if fc.get("wg"):
                tt = fc.get("tt")
                tab = step >= fc.get("kw", 4) and step % fc["CW"] == 0 and step <= last and not opened
                if tt and tt.get("notab"): tab = False
                if tt:
                    st.setdefault("ok", set()); st.setdefault("pend", set())
                    if step >= fc.get("kw", 4):
                        st["cur"] = [6, 8, 10, 34, 42][nw % 5] if tab else 4; assert len(evalq) < 5
                        if tab or not st.get("sl"):
                            a(f"s_memrealtime s[{st['cur']}:{st['cur']+1}]"); st["pend"].add(st["cur"]); st["ok"].discard(st["cur"])
                    if prof and step in tt.get("trt", []): stamp([5, 6, 7][tt["trt"].index(step)])
                for e in [e for e in evalq if e[0] <= done_op]:
                    evalq.remove(e)
                    if tt:
                        if e[2] > tt.get("kstop", 99): continue
                        if e[3] not in st["ok"]:
                            assert not st.get("sl"); a("s_waitcnt lgkmcnt(0)"); st["ok"] |= st["pend"]; st["pend"] = set()
                        a(f"v_sad_u8 v85, v{e[1]}, 0, 0\ns_mov_b32 s62, s{e[3]}\ns_call_b64 s[80:81], {'L_cw' if st.get('ev1') else 'L_cw0'}"); st["ev"] = 1; st["ev1"] = 1
                        if tt.get("gl") and not st.get("gx"): a("s_mov_b32 s70, s75")
                    else: a(f"v_sad_u8 v85, v{e[1]}, 0, 0\ns_movk_i32 s68, {32 * e[2]}\ns_call_b64 s[80:81], L_cw")
                if tab and tt and step > tt.get("kstop", 99):
                    a(f"v_mov_b32 v89, {step}\ns_mov_b64 exec, vcc\nbuffer_store_byte v89, v88, s[12:15], 0 offen\ns_mov_b64 exec, -1"); ops.append(("S", 0))
                elif tab:
                    r_ = [91, 92, 93, 94, 95, 86 if NLT == 0 else 5][nw % 6]; nw += 1; assert len(evalq) < 6
                    a(f"""
v_mov_b32 v89, {step}
s_mov_b64 exec, vcc
buffer_store_byte v89, v88, s[12:15], 0 offen
s_mov_b64 exec, -1
buffer_load_dword v{r_}, v87, s[12:15], 0 offen nt
""")
                    ops.append(("S", 0)); ops.append(("C", 0)); evalq.append((len(ops) - 1, r_, step, st.get("cur")))
            if fc.get("ts"):
                for i_, k_ in enumerate(fc["ts"]):
                    if step == k_ - 1 and not fc.get("tt"): a("s_memrealtime s[34:35]")
                    if step == k_:
                        if not fc.get("tt"): a("s_waitcnt lgkmcnt(0)\ns_add_u32 s34, s34, s75\nv_mov_b32 v{TSR}, s34".replace("{TSR}", str(TSR)))
                        elif st.get("ev1"): a(f"s_add_u32 s65, s75, {round(fc['tt']['U'] * step)}\nv_mov_b32 v{TSR}, s65")
                        else:
                            a(f"s_waitcnt lgkmcnt(0)\nv_mov_b32 v{TSR}, s{st['cur']}"); st["ok"] |= st["pend"]; st["pend"] = set()
                            if fc["tt"].get("gl") == 2 and i_ == 0: a(f"s_sub_u32 s70, s{st['cur']}, {round(fc['tt']['U'] * step)}")
                        a(f"""
v_mov_b32 v97, s73
s_movk_i32 s65, {PGOFF + i_ * 256}
s_cmp_eq_u32 s64, {(5 * i_ + 3) % 32}
s_cselect_b64 exec, 1, 0
buffer_store_dwordx2 v[96:97], v83, s[76:79], s65 offen sc1
s_mov_b64 exec, -1
""".replace("v96", f"v{TSR}").replace("v97", f"v{TSR+1}").replace("v[96:97]", f"v[{TSR}:{TSR+1}]"))
                        ops.append(("S", 0))
                    if step == k_ + d:
                        a(f"s_load_dwordx16 s[16:31], s[40:41], {PGOFF + i_ * 256}\ns_load_dwordx2 s[32:33], s[40:41], s63 offset:{PGOFF + i_ * 256}\ns_memrealtime s[36:37]" if fc.get("tt", {}).get("gl") != 2 else f"s_load_dwordx16 s[16:31], s[40:41], {PGOFF + i_ * 256}"); st["sl"] = 1
                    if step == k_ + d + fc.get("dl", 3):
                        if fc.get("tt", {}).get("gl"):
                            a(f"s_movk_i32 s62, {round(fc['tt']['U'] * k_)}\ns_call_b64 s[80:81], {'L_cx' if st.get('gx') or not fc['tt'].get('gsm') else 'L_cx0'}"); st["gx"] = 1; st["ev"] = 1
                        else: a("s_call_b64 s[80:81], L_cx")
                        st["sl"] = 0
                        if wodl is not None and i_ == len(fc["ts"]) - 1:
                            a(f"s_add_u32 s69, s70, {round(fc['tt']['U'] * ((NL - pat[0][0]) // G)) + wodl}\ns_mov_b64 exec, 1\nv_mov_b32 v82, s69\nds_write_b32 v84, v82 offset:{FLG+48}\ns_mov_b64 exec, -1")
                        if fc.get("tt"):
                            st["ok"] |= st["pend"]; st["pend"] = set()
                            if st["cur"] == 4: a("s_memrealtime s[4:5]"); st["pend"].add(4)
            if k0 <= step <= last - d and fc.get("x", 1):
                a(f"""
s_movk_i32 s65, {PGOFF + step * 256}
s_cmp_eq_u32 s64, {step % 32}
s_cselect_b64 exec, 1, 0
buffer_store_dword v90, v83, s[76:79], s65 offen sc1
s_mov_b64 exec, -1
""")
                ops.append(("S", 0))
            if step >= k0 + d and (step - k0 - d) % fc["C"] == 0:
                if nctl > 0: a("s_call_b64 s[80:81], L_cb"); nctl = 0
                if step <= last and fc.get("x", 1):
                    a(f"s_load_dwordx8 s[4:11], s[40:41], {PGOFF + (step - d) * 256}"); nctl = 1
        issued += g
        for _ in range(WPS):
            if wi < len(work) and work[wi][2] <= arrived and (wi > 0 or issued + G - 1 - RING > consumed):
                do_work()
    if "dpst" in dbg: stamp(5); print("drain work:", work[wi:])
    while wi < len(work):
        need_ = work[wi][2]
        if dp == 1 and wi == len(work) - 1:
            if "dpst" in dbg: stamp(6)
            if dpt == "a": s_sig(FLG + 28)
            a("s_mov_b64 exec, 0xffff")
            for jj in range(8): a(f"ds_write_b128 v8, v[{ACC+4*jj}:{ACC+4*jj+3}] offset:{OP+16*jj}")
            s_sig(FLG + 36)
            s_wait("L_d3", FLG + 44, 4)
            for u in range(4): a(f"ds_read_b128 v[{AQ[u]}:{AQ[u]+3}], v11 offset:{QL+256*u}")
            if dpt == "b": s_sig(FLG + 28)
            R0 = rreg(120)
            def dperm(u, p):
                a(f"v_perm_b32 v{PT+8*(u&1)+p}, v{R0+8*u+2*p+1}, v{R0+8*u+2*p}, s54\nv_perm_b32 v{PT+8*(u&1)+4+p}, v{R0+8*u+2*p+1}, v{R0+8*u+2*p}, s55")
            for i in range(8):
                u = i >> 1
                if i == dpc:
                    s_wait("L_d2", FLG + 36, 4)
                    for u_ in range(4): a(f"ds_read_b32 v{36+2*u_}, v4 offset:{OP+2304*u_}\nds_read_b32 v{37+2*u_}, v4 offset:{OP+2304*u_+16}")
                    if "dpst" in dbg: stamp(7)
                if i == 7: a("s_waitcnt lgkmcnt(0)\nv_pk_add_f32 v[36:37], v[36:37], v[38:39]\nv_pk_add_f32 v[40:41], v[40:41], v[42:43]\nv_pk_add_f32 v[36:37], v[36:37], v[40:41]")
                if i < 7:
                    a(f"s_waitcnt vmcnt({vm_for(7 - i)[0]})")
                    if dpt == f"c{7 - i}": s_sig(FLG + 28)
                    dperm(u, 2 * (i & 1)); dperm(u, 2 * (i & 1) + 1)
                else:
                    a("s_waitcnt vmcnt(2)"); dperm(u, 2); a("s_cmp_lg_u32 s42, 0\ns_waitcnt vmcnt(0)"); dperm(u, 3)
                if i == 1: a("s_waitcnt lgkmcnt(0)")
                if i & 1:
                    for e in range(2): a(f"v_mfma_f32_16x16x32_bf16 v[{28+4*e}:{31+4*e}], v[{AQ[u]}:{AQ[u]+3}], v[{PT+8*(u&1)+4*e}:{PT+8*(u&1)+4*e+3}], {f'v[{28+4*e}:{31+4*e}]' if u else '0'}")
            a("v_add_f32 v28, v28, v36\nv_add_f32 v32, v32, v37")
            assert ops[-1] == ("L", 127)
            a(f"""
v_cvt_pk_bf16_f32 v8, v28, v32
s_cbranch_scc1 L_dp_far
buffer_store_dwordx2 v[8:9], v10, s[76:79], s43 offen
L_dp_done:
""")
            stamp(4)
            if dpw: s_sig(FLG + 40)
            break
        if wi == len(work) - 1 and wotrig is not None and wotrig >= 200:
            a(f"s_waitcnt vmcnt({vm_for(wotrig - 200)[0]})")
            if defer:
                a(f"s_cmp_gt_i32 s75, {defer[0]}\ns_cselect_b32 s59, 0x101, 1\ns_mov_b64 exec, 1\nv_mov_b32 v82, s59\nds_add_u32 v84, v82 offset:{FLG+28}")
                if defer[2] > 60:
                    a("v_mov_b32 v89, 62\ns_mov_b64 exec, vcc\nbuffer_store_byte v89, v88, s[12:15], 0 offen"); ops.append(("S", 0))
                a("s_mov_b64 exec, -1")
            else: a(f"s_mov_b64 exec, 1\nv_mov_b32 v82, 1\nds_add_u32 v84, v82 offset:{FLG+28}\ns_mov_b64 exec, -1")
        if wi == len(work) - 1 and lastopt and "nov" not in dbg:
            v = 7; OB = rreg(112)
            def lp(p, jj): a(f"v_perm_b32 v{OB+4*jj+p}, v{rreg(124+p)+(jj>>1)}, v{rreg(120+p)+(jj>>1)}, {'s55' if jj & 1 else 's54'}")
            def lm(jj): a(f"v_mfma_f32_16x16x32_bf16 v[{ACC+4*jj}:{ACC+4*jj+3}], v[{PA}:{PA+3}], v[{OB+4*jj}:{OB+4*jj+3}], v[{ACC+4*jj}:{ACC+4*jj+3}]")
            def lw(jj): a(f"ds_write_b128 v{8 if dp else 4}, v[{ACC+4*jj}:{ACC+4*jj+3}] offset:{OP+16*jj}")
            if t2:
                def lm(jj): a(f"v_mfma_f32_16x16x32_bf16 v[{ACC+4*(jj>>2)}:{ACC+4*(jj>>2)+3}], v[{PA4+4*(jj&3)}:{PA4+4*(jj&3)+3}], v[{OB+4*jj}:{OB+4*jj+3}], v[{ACC+4*(jj>>2)}:{ACC+4*(jj>>2)+3}]")
                a(f"s_lshl_b32 s59, s3, 11\nv_add_u32 v4, s59, v3")
            elif not dp: a(f"s_mul_i32 s59, s3, 2304\nv_mul_u32_u24 v4, 144, v1\nv_add_u32 v4, s59, v4")
            a("v_mov_b32 v82, 1"); mkpa(v)
            if h2pre and h2pre is not True and h2pre[0] == "y": ztouch()
            for p in range(3):
                a(f"s_waitcnt vmcnt({vm_for(3 - p)[0]})")
                for jj in range(8): lp(p, jj)
            a("s_waitcnt vmcnt(0)")
            if dpp: a(f"s_setprio {dpp}")
            lp(3, 0); lp(3, 1)
            for jj in range(6): lp(3, jj + 2); lm(jj)
            stamp(4)
            if t2:
                lm(6); lm(7)
                a(f"ds_write_b128 v4, v[{ACC}:{ACC+3}] offset:{OP}\nds_write_b128 v4, v[{ACC+4}:{ACC+7}] offset:{OP+1024}")
            else:
                a("s_mov_b64 exec, 0xffff"); lw(0); lm(6); lw(1); lm(7)
                for jj in range(2, 8): lw(jj)
            if dp:
                a(f"""
s_mov_b64 exec, 1
ds_add_u32 v84, v82 offset:{FLG+36}
s_mov_b64 exec, -1
s_mov_b32 s58, {spin*8}
L_d2:
ds_read_b32 v85, v84 offset:{FLG+36}
""")
                for u_ in range(4): a(f"ds_read_b32 v{PT+2*u_}, v4 offset:{OP+2304*u_}\nds_read_b32 v{PT+1+2*u_}, v4 offset:{OP+2304*u_+16}")
                a(f"""
s_waitcnt lgkmcnt(8)
v_readfirstlane_b32 s59, v85
s_sub_u32 s58, s58, 1
s_cbranch_scc1 L_d2_done
s_cmp_lt_u32 s59, 4
s_cbranch_scc1 L_d2
L_d2_done:
s_cmp_lg_u32 s42, 0
s_waitcnt lgkmcnt(4)
v_pk_add_f32 v[{PT}:{PT+1}], v[{PT}:{PT+1}], v[{PT+2}:{PT+3}]
s_waitcnt lgkmcnt(0)
v_pk_add_f32 v[{PT+4}:{PT+5}], v[{PT+4}:{PT+5}], v[{PT+6}:{PT+7}]
v_pk_add_f32 v[{PT}:{PT+1}], v[{PT}:{PT+1}], v[{PT+4}:{PT+5}]
v_cvt_pk_bf16_f32 v8, v{PT}, v{PT+1}
s_cbranch_scc1 L_dp_far
buffer_store_dwordx2 v[8:9], v10, s[76:79], s43 offen
L_dp_done:
""")
                if est: stamp(7)
                if dpw: s_sig(FLG + 40)
            break
        if need_ > arrived:
            r = vm_for(NL - 1 - need_) if fc else (NL - 1 - need_,)
            a(f"s_waitcnt vmcnt({r[0]})"); arrived = need_
        do_work()
    else:
        stamp(4)
        a(f"""
s_mul_i32 s59, s3, 2304
v_mul_u32_u24 v4, 144, v1
v_add_u32 v4, s59, v4
s_mov_b64 exec, 0xffff
""")
        for jj in range(8):
            a(f"ds_write_b128 v4, v[{ACC+4*jj}:{ACC+4*jj+3}] offset:{OP+16*jj}")
    if not dp: a("""
s_mov_b64 exec, -1
s_waitcnt lgkmcnt(0)
s_barrier
""")
    if h2pre and h2pre is not True and h2pre[0] == "z": ztouch()
    if t3: a("s_barrier")
    if wbar: a("s_barrier")
    if lbar: a("s_barrier")
    if dirty:
        a(f"""
s_mov_b32 s44, s40
s_mov_b32 s45, s41
s_mov_b32 s46, 0x10000000
s_mov_b32 s47, 0x20000
s_lshl_b32 s59, s2, 2
s_add_u32 s59, s59, s3
s_mul_i32 s59, s59, {dirty*1024}
s_add_u32 s59, s59, {64 << 20}
s_sleep 64
""")
        for i in range(dirty): a(f"buffer_store_dwordx4 v[28:31], v3, s[44:47], s59 offen\ns_add_u32 s59, s59, 1024")
    if prof:
        a(f"""
s_mov_b32 s44, s40
s_mov_b32 s45, s41
s_mov_b32 s46, 0x10000000
s_mov_b32 s47, 0x20000
s_sleep 127
s_sleep 127
s_sleep 127
s_waitcnt lgkmcnt(0)
s_lshl_b32 s59, s2, 3
s_add_u32 s59, s59, s3
s_lshl_b32 s59, s59, 6
s_add_u32 s59, s59, {STAMP}
v_mov_b32 v4, 0
s_mov_b64 exec, 1
""")
        for i in range(8):
            trt = fc and fc.get("tt", {}).get("trt")
            sr = 82 if (i == 5 and fc and not est and not trt) else 84 + 2 * (i if est or trt else min(i, 4))
            a(f"v_mov_b32 v8, s{sr}\nv_mov_b32 v9, s{sr+1}\nbuffer_store_dwordx2 v[8:9], v4, s[44:47], s59 offen offset:{8*i}\ns_waitcnt vmcnt(0)")
    a("s_endpgm")
    if dp: a("L_dp_far:\nbuffer_store_dwordx2 v[8:9], v10, s[76:79], s43 offen sc1\ns_branch L_dp_done")
    X = 32
    S1 = 12; S2 = 13; T0 = 14; T1 = 15; NM = 16; RS = 18
    W1 = 40; B1 = 47; W2 = 54; HX = 62; U = 66; AA = 73; EE = 80; ACC2 = 87; C1 = 88; YA = 89
    WB = 192
    def srd(base, lo, size): a(f"s_mov_b32 s{base}, s{lo}\ns_mov_b32 s{base+1}, s{lo+1}\ns_mov_b32 s{base+2}, {size}\ns_mov_b32 s{base+3}, 0x20000")
    def bfround(r): a(f"v_cvt_pk_bf16_f32 v{r}, v{r}, v{r}\nv_lshlrev_b32 v{r}, 16, v{r}")
    def stats_finish():
        a(f"""
v_mul_f32 v{S1}, {f32(1/512)}, v{S1}
v_mul_f32 v{S2}, {f32(1/512)}, v{S2}
v_fma_f32 v{S2}, -v{S1}, v{S1}, v{S2}
v_max_f32 v{S2}, 0, v{S2}
""")
        bfround(S1); bfround(S2)
        a(f"v_add_f32 v{S2}, {f32(1e-5)}, v{S2}")
        bfround(S2)
        a(f"v_sqrt_f32 v{S2}, v{S2}")
        bfround(S2)
        a(f"""
v_rcp_f32 v{RS}, v{S2}
v_sub_f32 v{NM}, 0, v{S1}
v_sub_f32 v{NM+1}, 0, v{S1}
v_mov_b32 v{RS+1}, v{RS}
""")
    def swaps_add(r, t):
        a(f"""
v_mov_b32 v{t}, v{r}
v_permlane16_swap_b32 v{r}, v{t}
v_add_f32 v{r}, v{r}, v{t}
v_mov_b32 v{t}, v{r}
v_permlane32_swap_b32 v{r}, v{t}
v_add_f32 v{r}, v{r}, v{t}
""")
    def normalize(src, dst, n, tmp):
        for i0 in range(0, n, 4):
            idx = list(range(i0, min(n, i0 + 4)))
            for i in idx:
                t = tmp + 2 * (i - i0)
                a(f"v_lshlrev_b32 v{t}, 16, v{src+i}\nv_and_b32 v{t+1}, 0xffff0000, v{src+i}")
            for i in idx:
                t = tmp + 2 * (i - i0)
                a(f"v_pk_add_f32 v[{t}:{t+1}], v[{t}:{t+1}], v[{NM}:{NM+1}]")
            for i in idx:
                t = tmp + 2 * (i - i0)
                a(f"v_cvt_pk_bf16_f32 v{t}, v{t}, v{t+1}")
            for i in idx:
                t = tmp + 2 * (i - i0)
                a(f"v_and_b32 v{t+1}, 0xffff0000, v{t}\nv_lshlrev_b32 v{t}, 16, v{t}")
            for i in idx:
                t = tmp + 2 * (i - i0)
                a(f"v_pk_mul_f32 v[{t}:{t+1}], v[{t}:{t+1}], v[{RS}:{RS+1}]")
            for i in idx:
                t = tmp + 2 * (i - i0)
                a(f"v_cvt_pk_bf16_f32 v{dst+i}, v{t}, v{t+1}")
    def lds_wait(lbl, off, cnt, sl=0, msk=False, bnd=None):
        a(f"""
s_mov_b32 s58, {bnd or spin*8}
{lbl}:
ds_read_b32 v4, v9 offset:{off}
s_waitcnt lgkmcnt(0)
v_readfirstlane_b32 s59, v4
s_sub_u32 s58, s58, 1
s_cbranch_scc1 {lbl}_done
{"s_and_b32 s27, s59, 255" if msk else ""}
s_cmp_lt_u32 {"s27" if msk else "s59"}, {cnt}
{f"s_sleep {sl}" if sl else ""}
s_cbranch_scc1 {lbl}
{lbl}_done:
""")
    def lds_signal(off):
        a(f"""
s_mov_b64 exec, 1
ds_add_u32 v9, v11 offset:{off}
s_mov_b64 exec, -1
""")
    def orred(ts):
        ts = list(ts)
        while len(ts) > 1:
            if len(ts) >= 3:
                a(f"v_or3_b32 v{ts[0]}, v{ts[0]}, v{ts[1]}, v{ts[2]}"); ts = ts[3:] + [ts[0]]
            else:
                a(f"v_or_b32 v{ts[0]}, v{ts[0]}, v{ts[1]}"); ts = [ts[0]]
        return ts[0]
    def chk8(tags, tmp):
        if b3 and len(tags) % 2 == 0:
            for i in range(len(tags) // 2): a(f"v_bitop3_b32 v{tmp+i}, v{tags[2*i]}, v{tags[2*i+1]}, s12 bitop3:0x7e")
            return orred([tmp + i for i in range(len(tags) // 2)])
        for i, t in enumerate(tags): a(f"v_xor_b32 v{tmp+i}, s12, v{t}")
        return orred([tmp + i for i in range(len(tags))])
    def chk16(bases, tmp, tagreg):
        out = []
        for i, b in enumerate(bases):
            a(f"v_perm_b32 v{tmp+2*i}, v{b+1}, v{b}, s20\nv_perm_b32 v{tmp+2*i+1}, v{b+3}, v{b+2}, s21")
        for i, b in enumerate(bases):
            a(f"v_or_b32 v{tmp+2*i}, v{tmp+2*i}, v{tmp+2*i+1}")
        for i, b in enumerate(bases):
            a(f"v_xor_b32 v{tmp+2*i}, s{tagreg}, v{tmp+2*i}"); out.append(tmp + 2 * i)
        return orred(out)
    def pack16(dst, srcs, tagv):
        for i, r in enumerate(srcs): a(f"v_perm_b32 v{dst+i}, v{r}, v{tagv}, s{16+i}")
    def poll(lbl, loads, chk, fbr=None, post=None, st=None, pipe=1, stag=0, sl=None, mid=None, pre=False, bnd=None):
        if sl is None: sl = slp
        if fbr is not None: a(f"s_mov_b32 s82, s{fbr}\ns_add_u32 s83, s{fbr}, {BD}")
        a(f"s_mov_b32 s58, {bnd or spin}")
        for _ in range(pipe - 1):
            for l in loads: a(l)
            if stag: a(f"s_sleep {stag}")
        if mid:
            if not pre:
                for l in loads: a(l)
            mid()
            if "h1vm" in dbg: stamp(4)
            a(f"s_branch {lbl}_chk")
        a(f"{lbl}:")
        if st is not None and (tailprof or (st == 4 and "h1it" in dbg) or (st == 3 and "h2it" in dbg)): stamp(4 if "h2it" in dbg else st)
        for l in loads: a(l)
        if mid: a(f"{lbl}_chk:")
        a(f"s_waitcnt vmcnt({len(loads) * (pipe - 1)})")
        r = chk()
        if post: r = post(r)
        a(f"""
v_cmp_ne_u32 vcc, 0, v{r}
s_sub_u32 s58, s58, 1
s_cbranch_scc1 {lbl}_done
s_and_b64 exec, exec, vcc
s_cbranch_execz {lbl}_done
""")
        if fbr is not None: a(f"s_and_b32 s59, s58, {fb}\ns_cselect_b32 s{fbr}, s82, s83")
        if sl: a(f"s_sleep {sl}")
        a(f"""
s_branch {lbl}
{lbl}_done:
s_mov_b64 exec, -1
""")
    a("""; ---------------- helper waves
L_helper:
s_load_dwordx16 s[16:31], s[0:1], 0
s_load_dwordx8 s[32:39], s[0:1], 64
s_load_dwordx2 s[40:41], s[0:1], 96
v_and_b32 v3, 15, v0
v_lshlrev_b32 v3, 2, v3
v_mov_b32 v4, 0
ds_write_b32 v3, v4
s_setprio 3
s_sub_u32 s3, s3, 4
s_waitcnt lgkmcnt(0)
""")
    if "probe" in dbg:
        srd(52, 40, 0x10000000)
        pl = "probel" in dbg
        a(f"""
s_cmp_lt_u32 s3, 2
s_cbranch_scc1 L_noprobe
s_and_b32 s4, s3, 1
s_lshl_b32 s4, s4, 13
s_lshl_b32 s5, s2, 14
s_add_u32 s4, s4, s5
s_add_u32 s4, s4, {8 << 20}
s_mov_b64 exec, 1
s_memtime s[76:77]
s_waitcnt lgkmcnt(0)
{"s_load_dword s5, s[40:41], s4 offset:128" if "probew" in dbg else ""}
s_waitcnt lgkmcnt(0)
{"s_memtime s[76:77]" if "probew" in dbg else ""}
s_waitcnt lgkmcnt(0)
{"s_load_dword s5, s[40:41], s4" if "probes" in dbg else "buffer_load_dword v5, v4, s[52:55], s4 offen sc1" if pl else "buffer_store_dword v4, v4, s[52:55], s4 offen sc1"}
s_waitcnt vmcnt(0) lgkmcnt(0)
s_memtime s[78:79]
s_waitcnt lgkmcnt(0)
s_sub_u32 s98, s78, s76
s_mov_b32 s99, 0
s_mov_b64 exec, -1
L_noprobe:
""")
    if near: a(f"s_cmp_lt_u32 s2, {8 * near['nw']}\ns_cbranch_scc1 L_meas\nL_meas_done:")
    if "s" in warm:
        a("""
s_and_b32 s4, s2, 7
s_lshl_b32 s4, s4, 20
s_lshr_b32 s5, s2, 5
s_lshl_b32 s5, s5, 23
s_or_b32 s4, s4, s5
s_load_dword s76, s[20:21], s4
s_and_b32 s4, s2, 4
s_lshl_b32 s4, s4, 19
s_load_dword s77, s[24:25], s4
s_load_dword s78, s[36:37], 0
s_load_dword s79, s[38:39], 0
""")
    if "m" in warm:
        a("""
s_load_dword s76, s[16:17], 0
s_load_dword s77, s[22:23], 0
s_load_dword s78, s[22:23], 0x200000
s_load_dword s79, s[28:29], 0
s_load_dword s76, s[30:31], 0
s_load_dword s77, s[32:33], 0
s_load_dword s78, s[34:35], 0
""".replace("0x200000", "0xffffc"))
    srd(44, 16, 8192); srd(48, 22, 0x400000); srd(52, 40, 0x10000000); srd(56, 24, 0x400000)
    srd(60, 28, 3584); srd(64, 30, 3584); srd(68, 32, 3584)
    a(f"""
v_lshrrev_b32 v5, 4, v1
v_and_b32 v6, 7, v1
v_and_b32 v8, 15, v1
v_lshrrev_b32 v7, 5, v1
v_and_b32 v4, 31, v1
v_lshlrev_b32 v4, 4, v4
v_lshl_add_u32 v2, v7, 10, v4
s_lshl_b32 s6, s3, 11
v_mov_b32 v9, 0
v_mov_b32 v11, 1
v_lshrrev_b32 v20, 3, v1
v_lshlrev_b32 v21, 13, v20
v_lshl_add_u32 v21, v6, 4, v21
v_lshlrev_b32 v22, {12 if t2 else 10}, v20
v_lshl_add_u32 v22, v6, 4, v22
s_and_b32 s15, s2, 7
s_lshr_b32 s14, s2, 3
s_add_u32 s4, s14, {rq}
s_and_b32 s4, s4, 7
s_add_u32 s14, s14, {ro}
s_and_b32 s14, s14, 7
s_lshl_b32 s8, s15, 3
s_add_u32 s8, s8, s4
s_lshr_b32 s9, s2, 6
s_lshl_b32 s4, s9, 2
s_add_u32 s4, s4, s3
s_lshl_b32 s4, s4, 18
s_lshl_b32 s5, s8, 7
s_add_u32 s72, s4, s5
s_lshl_b32 s13, s15, 2
s_add_u32 s13, s13, s9
s_lshl_b32 s4, s13, {7 if t3 else 2}
s_add_u32 s4, s4, s3
s_lshl_b32 s4, s4, {10 if t3 else 15}
s_lshl_b32 s5, s14, 7
s_add_u32 s73, s4, s5
s_lshl_b32 s4, s3, 12
s_add_u32 s74, s4, {WQL}
s_mul_i32 s75, s3, 896
v_lshlrev_b32 v23, 1, v1
s_barrier
""")
    if "nohelp" in dbg: a("s_branch L_pre2")
    if hdel: a(f"s_sleep {hdel}")
    a(f"""
buffer_load_dwordx4 v[{X}:{X+3}], v2, s[44:47], s6 offen
buffer_load_dwordx4 v[{X+4}:{X+7}], v2, s[44:47], s6 offen offset:512
{"s_load_dword s42, s[40:41], 0" if sE else "buffer_load_dword v10, v9, s[52:55], 0 offen sc1"}
""")
    def h2touch():
        stp = h2pre[1]
        if stp == "v":
            a(f"s_lshl_b32 s4, s2, 2\ns_add_u32 s4, s4, s3\ns_lshl_b32 s4, s4, 9\ns_add_u32 s4, s4, {H2OFF}\nv_lshlrev_b32 v94, 3, v1\nbuffer_load_dwordx2 v[94:95], v94, s[52:55], s4 offen {h2pre[2]}")
            return
        a(f"s_lshl_b32 s4, s2, 2\ns_add_u32 s4, s4, s3\ns_lshl_b32 s4, s4, 9\ns_add_u32 s4, s4, {H2OFF}")
        for i in range(512 // stp): a(f"s_load_dword s{96 + (i & 3) if not prof else 27}, s[40:41], s4 offset:{i * stp}")
    if h2pre and h2pre is not True and h2pre[0] == "e": h2touch()
    if "nowq" in dbg: a("s_mov_b32 s50, 0\ns_mov_b32 s58, 0")
    if wqdel: a(f"s_sleep {wqdel}")
    for t in range(4):
        a(f"s_add_u32 m0, s74, {t*1024}\ns_nop 0\nbuffer_load_dwordx4 v21, s[48:51], s72 offen nt lds")
        if t < 3: a(f"s_add_u32 s72, s72, {8*8192}")
    def wodma(t, vr, so, sl):
        if wosw and t & 1: vr = 152
        a(f"s_add_u32 m0, s{sl}, {16384+t*1024}\ns_nop 0\nbuffer_load_dwordx4 v{vr}, {'s[56:59]' if wolate is None else 's[68:71]'}, s{so} offen nt lds")
        if t < 3: a(f"s_add_u32 s{so}, s{so}, {32768 if t3 else 1024 if t2 else 8*1024}")
    if wolate is None:
        for t in range(4): wodma(t, 22, 73, 74)
    else:
        if wosw: a("v_and_b32 v90, 1, v5\nv_lshlrev_b32 v90, 5, v90\nv_xor_b32 v90, v90, v22\nv_xor_b32 v152, 64, v90\ns_mov_b32 s22, s73\ns_mov_b32 s23, s74")
        else: a("v_mov_b32 v90, v22\ns_mov_b32 s22, s73\ns_mov_b32 s23, s74")
    NW = 0 if wolate is None else 4
    for t in range(7):
        a(f"buffer_load_ushort v{W1+t}, v23, s[60:63], s75 offen offset:{128*t}")
        a(f"buffer_load_ushort v{B1+t}, v23, s[64:67], s75 offen offset:{128*t}")
        a(f"buffer_load_ushort v{W2+t}, v23, s[68:71], s75 offen offset:{128*t}")
    srd(60, 34, 2); srd(64, 36, 8192); srd(68, 24, 0 if ('nowq' in dbg or 'nowo2' in dbg) else 0x400000)
    a(f"""
v_and_b32 v30, 3, v1
v_lshlrev_b32 v30, {3 if t3 else 1}, v30
v_lshl_add_u32 v30, v5, {1 if t3 else 5}, v30
""" + ("s_lshl_b32 s10, s2, 5" if t3 else """s_lshr_b32 s10, s2, 2
s_lshl_b32 s10, s10, 7
s_and_b32 s4, s2, 3
s_lshl_b32 s4, s4, 3
s_add_u32 s10, s10, s4""") + f"""
buffer_load_ushort v31, v9, s[60:63], 0 offen
buffer_load_ushort v29, v30, s[44:47], s10 offen
s_mov_b32 s16, 0x07060500
s_mov_b32 s17, 0x07060501
s_mov_b32 s18, 0x07060502
s_mov_b32 s19, 0x07060503
s_mov_b32 s20, 0x0c0c0400
s_mov_b32 s21, 0x04000c0c
s_getreg_b32 s43, hwreg(HW_REG_XCC_ID, 0, 4)
s_lshl_b32 s43, s43, 3
s_add_u32 s43, s43, s15
s_lshl_b32 s43, s43, 7
s_add_u32 s43, s43, {LOCOFF}
s_lshr_b32 s59, s2, 3
s_lshl_b32 s59, s59, 2
s_add_u32 s59, s59, s43
s_mov_b32 s11, 0x3f803f80
v_mov_b32 v{S1}, 0
v_mov_b32 v{S2}, 0
s_waitcnt lgkmcnt(0)
s_add_u32 s42, s42, 1
s_mul_i32 s12, s42, 0x01010101
v_mov_b32 v10, s12
s_cmp_eq_u32 s3, 0
s_cselect_b64 exec, 1, 0
buffer_store_dword v10, v9, s[52:55], s59 offen
s_mov_b64 exec, -1
s_waitcnt vmcnt({32 - NW + (1 if h2pre and h2pre is not True and h2pre[:2] == ('e', 'v') else 0)})
""")
    for i in range(8):
        a(f"v_dot2_f32_bf16 v{S1}, v{X+i}, s11, v{S1}")
        a(f"v_dot2_f32_bf16 v{S2}, v{X+i}, v{X+i}, v{S2}")
    for n in (8, 4, 2, 1):
        a(f"v_add_f32_dpp v{S1}, v{S1}, v{S1} row_ror:{n} row_mask:0xf bank_mask:0xf")
        a(f"v_add_f32_dpp v{S2}, v{S2}, v{S2} row_ror:{n} row_mask:0xf bank_mask:0xf")
    a(f"""
v_mov_b32 v{T0}, v{S1}
v_mov_b32 v{T1}, v{S2}
v_permlane16_swap_b32 v{S1}, v{T0}
v_permlane16_swap_b32 v{S2}, v{T1}
v_add_f32 v{S1}, v{S1}, v{T0}
v_add_f32 v{S2}, v{S2}, v{T1}
""")
    stats_finish()
    normalize(X, X, 8, 20)
    a(f"""
s_mul_i32 s4, s3, {2*XRS}
v_mul_u32_u24 v2, {XRS}, v7
v_add3_u32 v2, v2, v4, s4
ds_write_b128 v2, v[{X}:{X+3}] offset:{XN}
ds_write_b128 v2, v[{X+4}:{X+7}] offset:{XN+512}
v_mul_u32_u24 v2, {XRS}, v6
v_lshl_add_u32 v2, v5, 4, v2
s_lshl_b32 s4, s9, 8
v_add_u32 v2, s4, v2
v_bfe_u32 v3, v1, 2, 2
v_lshl_add_u32 v3, v5, 3, v3
v_lshlrev_b32 v3, 7, v3
v_and_b32 v20, 3, v1
v_lshl_add_u32 v3, v20, 3, v3
s_lshl_b32 s4, s3, 5
v_add_u32 v24, s4, v3
s_waitcnt vmcnt(24) lgkmcnt(0)
""")
    lds_signal(FLG + 8)
    a(f"""
v_and_b32 v27, 31, v1
v_lshlrev_b32 v27, 2, v27
buffer_load_dword v150, v27, s[52:55], s43 offen nt
v_lshlrev_b32 v25, 4, v5
v_lshl_add_u32 v25, v6, 11, v25
s_lshr_b32 s4, s8, 1
s_lshl_b32 s4, s4, 5
s_add_u32 s4, s4, s9
s_lshl_b32 s4, s4, 1
s_and_b32 s5, s8, 1
s_add_u32 s4, s4, s5
s_lshl_b32 s4, s4, 2
s_add_u32 s4, s4, s3
s_lshl_b32 s4, s4, 6
s_add_u32 s72, s4, {QOFF}
s_mov_b32 s26, 0
""")
    if qprew: a("v_not_b32 v132, v10\nv_not_b32 v133, v10\nv_not_b32 v134, v10\nv_not_b32 v135, v10\ns_mov_b32 exec_lo, 0x00ff00ff\ns_mov_b32 exec_hi, 0x00ff00ff\nbuffer_store_dwordx4 v[132:135], v25, s[52:55], s72 offen\ns_mov_b64 exec, -1")
    lds_wait("L_xw", FLG + 8, 4)
    for t in range(4):
        a(f"ds_read_b128 v[{96+4*t}:{99+4*t}], v2 offset:{XN+64*t}")
        for u in range(2): a(f"ds_read_b64_tr_b16 v[{112+4*t+2*u}:{113+4*t+2*u}], v24 offset:{WQL+t*4096+u*512}")
    a("s_waitcnt lgkmcnt(0)")
    stamp(1)
    for t in range(4):
        a(f"v_mfma_f32_16x16x32_bf16 v[128:131], v[{112+4*t}:{115+4*t}], v[{96+4*t}:{99+4*t}], {'0' if t == 0 else 'v[128:131]'}")
    pack16(132, [128, 129, 130, 131], 10)
    Q2OFF = H1OFF + 128 * H1S
    if qf: a(f"""
v_perm_b32 v136, v129, v128, s20
v_perm_b32 v137, v131, v130, s21
v_lshrrev_b32 v138, 1, v25
v_or_b32 v136, v136, v137
v_mov_b32 v137, v10
s_lshr_b32 s73, s72, 1
s_add_u32 s73, s73, {Q2OFF - QOFF // 2}
""")
    if "cutq" in dbg: a("s_branch L_pre2")
    a(f"""
s_movk_i32 s58, {nloc}
L_lc:
s_waitcnt vmcnt(0)
v_cmp_ne_u32 vcc, s12, v150
s_cbranch_vccz L_lc_done
buffer_load_dword v150, v27, s[52:55], s43 offen nt
s_sub_u32 s58, s58, 1
s_cbranch_scc0 L_lc
s_mov_b32 s26, 1
L_lc_done:
{"s_mov_b32 s26, 1" if clean else ""}
{"s_and_b32 s26, s3, 1" if "mixw" in dbg else ""}
{"s_bfe_u32 s26, s2, 0x10003" if "mixj" in dbg else ""}
s_mov_b32 exec_lo, 0x00ff00ff
s_mov_b32 exec_hi, 0x00ff00ff
s_cmp_lg_u32 s26, 0
s_cbranch_scc1 L_qs_far
buffer_store_dwordx4 v[132:135], v25, s[52:55], s72 offen
{"buffer_store_dwordx2 v[136:137], v138, s[52:55], s73 offen" if qf else ""}
L_qs_done:
s_mov_b64 exec, -1
""")
    if near: a(f"s_lshl_b32 s4, s3, 8\ns_add_u32 s4, s4, s2\ns_sub_u32 s4, s4, 512\ns_cmp_lt_u32 s4, {8 * near['nw']}\ns_cbranch_scc1 L_mpub\nL_mpub_done:")
    if "cutp" in dbg: a("s_branch L_pre2")
    stamp(2)
    a(f"s_setprio {bgprio}")
    def woread(vr, kks=None):
        if own1:
            for kk in (kks or [1, 2, 3]):
                for nt_ in range(4):
                    for u in range(2): a(f"ds_read_b64_tr_b16 v[{WB+16*nt_+4*kk+2*u}:{WB+16*nt_+4*kk+2*u+1}], v{176+4*kk+nt_} offset:{WQL+16384+u*512}")
            return
        if t3:
            for nt_ in range(4):
                for u in range(2): a(f"ds_read_b64_tr_b16 v[{WB+4*nt_+2*u}:{WB+4*nt_+2*u+1}], v{153+nt_} offset:{WQL+16384+u*512}")
            return
        for nt_ in range(4):
            for kk in range(4):
                for u in range(2):
                    r = WB + 16 * nt_ + 4 * kk + 2 * u
                    if wosw: a(f"ds_read_b64_tr_b16 v[{r}:{r+1}], v{153+nt_} offset:{WQL+16384+kk*4096+u*512}")
                    else: a(f"ds_read_b64_tr_b16 v[{r}:{r+1}], v{vr} offset:{WQL+16384+kk*4096+u*512+nt_*32}")
    if wolate is None: woread(3)
    elif wosw: a("v_bfe_u32 v153, v1, 3, 2\nv_lshl_add_u32 v153, v153, 5, v3\n" + ("s_lshl_b32 s4, s3, 12\nv_add_u32 v153, s4, v153\n" if t3 else "") + "v_xor_b32 v154, 32, v153\nv_xor_b32 v155, 64, v153\nv_xor_b32 v156, 0x60, v153")
    else: a("v_mov_b32 v91, v3")
    a(f"""
s_lshr_b32 s4, s2, 5
s_mul_i32 s4, s4, {XRS}
v_lshl_add_u32 v2, v1, 4, s4
ds_read_b128 v[{HX}:{HX+3}], v2 offset:{XN}
v_mov_b32 v{S1}, 0
v_mov_b32 v{S2}, 0
s_waitcnt lgkmcnt(0)
""")
    for i in range(4):
        a(f"v_dot2_f32_bf16 v{S1}, v{HX+i}, s11, v{S1}")
        a(f"v_dot2_f32_bf16 v{S2}, v{HX+i}, v{HX+i}, v{S2}")
    for n in (8, 4, 2, 1):
        a(f"v_add_f32_dpp v{S1}, v{S1}, v{S1} row_ror:{n} row_mask:0xf bank_mask:0xf")
        a(f"v_add_f32_dpp v{S2}, v{S2}, v{S2} row_ror:{n} row_mask:0xf bank_mask:0xf")
    swaps_add(S1, T0); swaps_add(S2, T1)
    stats_finish()
    normalize(HX, HX, 4, 20)
    if t3:
        a("s_and_b32 s4, s2, 31\ns_lshl_b32 s4, s4, 1")
        for i in range(4): a(f"v_readlane_b32 s{72+i}, v{HX+i}, s4")
        a("s_add_u32 s4, s4, 1")
        for i in range(4): a(f"v_readlane_b32 s{76+i}, v{HX+i}, s4")
    else: a(f"""
s_bitcmp1_b32 s2, 0
s_cselect_b64 vcc, -1, 0
s_bfe_u32 s4, s2, 0x30002
s_lshl_b32 s4, s4, 3
s_bfe_u32 s5, s2, 0x10001
s_add_u32 s4, s4, s5
v_cndmask_b32 v{HX}, v{HX}, v{HX+2}, vcc
v_cndmask_b32 v{HX+1}, v{HX+1}, v{HX+3}, vcc
""")
    for i in range(0 if t3 else 4):
        a(f"v_readlane_b32 s{72+2*i}, v{HX}, s4\nv_readlane_b32 s{73+2*i}, v{HX+1}, s4")
        if i < 3: a("s_add_u32 s4, s4, 2")
    a("s_waitcnt vmcnt(2)")
    for i in range(21): a(f"v_lshlrev_b32 v{W1+i}, 16, v{W1+i}")
    c0 = -2 * LOG2E * math.sqrt(2 / math.pi); c1 = c0 * 0.044715
    a(f"""
v_mov_b32 v{C1}, {f32(c1)}
s_lshl_b32 s4, s3, 6
v_mov_b32 v{YA}, s4
""")
    def mlp_steps(lo, hi):
        for d in range(lo, hi):
            if d & 1: a(f"s_and_b32 s4, s{72+(d>>1)}, 0xffff0000")
            else: a(f"s_lshl_b32 s4, s{72+(d>>1)}, 16")
            if "nomlp" not in dbg: a("s_call_b64 s[80:81], L_mlp")
            if wolate is not None and wotrig is None and d in wolate: wodma(wolate.index(d), 90, 22, 23)
    mlp_steps(0, mlp1)
    a("; gather the four K-split partials of q (head = helper index) and hand q to the stream waves through LDS")
    a(f"""
s_setprio 3
s_lshr_b32 s4, s2, 5
s_lshl_b32 s4, s4, 11
s_lshl_b32 s5, s15, 2
s_add_u32 s5, s5, s3
s_lshl_b32 s5, s5, 14
s_add_u32 s4, s4, s5
s_add_u32 s6, s4, {QOFF}
v_lshlrev_b32 v2, 4, v1
{f"v_lshlrev_b32 v138, 3, v1" if qf else ""}
{f"s_lshr_b32 s7, s4, 1" if qf else ""}
{f"s_add_u32 s7, s7, {Q2OFF}" if qf else ""}
s_cmp_lg_u32 s26, 0
s_cbranch_scc1 L_gq_far
""")
    def qchk():
        r = chk16([96, 100], 104, 12)
        if qf: a(f"v_bitop3_b32 v108, v113, v115, s12 bitop3:0x7e\nv_or_b32 v{r}, v{r}, v108")
        return r
    def qpoll(sfx, fl):
        poll("L_gq" + sfx, [f"buffer_load_dwordx4 v[{96+4*k}:{99+4*k}], v2, s[52:55], s6 offen offset:{1024*k} {fl}" for k in range(2)]
             + ([f"buffer_load_dwordx2 v[{112+2*k}:{113+2*k}], v138, s[52:55], s7 offen offset:{512*k} {fl}" for k in range(2)] if qf else []),
             qchk, sl=qslp)
    qpoll("", "nt")
    a("L_gq_got:")
    if qf:
        a("; put the low mantissa bytes (sent in their own tagged granule) back: the partials are summed in full f32")
        for i in range(8): a(f"v_perm_b32 v{96+i}, v{96+i}, v{112+2*(i>>2)}, s{16+(i&3)}")
    else:
        for i in range(8): a(f"v_and_b32 v{96+i}, 0xffffff00, v{96+i}")
    for i in range(4): a(f"v_add_f32 v{96+i}, v{96+i}, v{100+i}")
    a(f"""
s_lshl_b32 s4, s3, 8
v_and_b32 v2, 31, v1
v_lshl_add_u32 v2, v2, 3, s4
v_lshl_add_u32 v2, v7, 2, v2
v_permlane32_swap_b32 v96, v98
v_permlane32_swap_b32 v97, v99
v_add_f32 v96, v96, v98
v_add_f32 v97, v97, v99
v_cvt_pk_bf16_f32 v96, v96, v97
ds_write_b32 v2, v96 offset:{QL}
s_waitcnt lgkmcnt(0)
""")
    lds_signal(FLG + 4)
    stamp(3)
    if "cutg" in dbg: a("s_branch L_pre2")
    a(f"s_setprio {bgprio}")
    if h2pre and h2pre is not True and h2pre[0] == "q": h2touch()
    mlp_steps(mlp1, 16)
    a("s_waitcnt vmcnt(0) lgkmcnt(0)")
    lds_signal(FLG + 12)
    a(f"""
v_lshrrev_b32 v2, 2, v1
v_mul_u32_u24 v20, 144, v2
v_and_b32 v3, 3, v1
v_lshl_add_u32 v20, v3, 5, v20
s_lshl_b32 s4, s3, 2
s_add_u32 s4, s4, {OP}
v_add_u32 v20, s4, v20
v_add_u32 v21, 2304, v20
v_add_u32 v22, 4608, v20
v_add_u32 v23, 6912, v20
s_lshl_b32 s4, s3, 3
v_mov_b32 v24, s4
v_lshrrev_b32 v25, 5, v1
v_lshlrev_b32 v25, 7, v25
v_bfe_u32 v2, v1, 4, 1
v_lshl_add_u32 v25, v2, 11, v25
v_bfe_u32 v2, v1, 1, 1
v_lshl_add_u32 v25, v2, 10, v25
v_bfe_u32 v2, v1, 2, 2
v_lshl_add_u32 v25, v2, 8, v25
v_and_b32 v2, 1, v1
v_lshl_add_u32 v25, v2, 3, v25
v_lshlrev_b32 v26, 4, v1
v_and_b32 v2, 1, v5
v_lshl_add_u32 v27, v2, 2, v3
v_lshlrev_b32 v27, 4, v27
v_lshlrev_b32 v28, {6 if h2full else 16}, v2
v_bfe_u32 v2, v1, 2, 2
v_lshl_add_u32 v28, v2, {12 if h2full else 11}, v28
v_lshl_add_u32 v28, v3, 4, v28
v_lshrrev_b32 v19, 2, v1
v_lshlrev_b32 v19, {7 if h2full else 6}, v19
v_lshl_add_u32 v19, v3, 4, v19
s_lshl_b32 s4, s15, 2
s_add_u32 s4, s4, s3
s_lshl_b32 s4, s4, 2
s_add_u32 s4, s4, s9
s_mul_i32 s4, s4, {H1S}
s_bfe_u32 s5, s2, 0x30003
s_lshl_b32 s5, s5, 4
s_add_u32 s4, s4, s5
s_add_u32 s6, s4, {H1OFF}
s_lshl_b32 s4, s13, 2
s_add_u32 s4, s4, s3
s_mul_i32 s4, s4, {H1S}
s_add_u32 s7, s4, {H1OFF}
s_lshl_b32 s4, s3, {5 if h2full else 6}
s_lshl_b32 s5, s14, 2
s_add_u32 s4, s4, s5
s_lshl_b32 s4, s4, {12 if h2full else 11}
s_lshl_b32 s5, s13, {7 if h2full else 6}
s_add_u32 s4, s4, s5
s_add_u32 s8, s4, {H2OFF}
""")
    if t2: a(f"""
v_lshlrev_b32 v20, 4, v8
v_lshl_add_u32 v20, v5, 2, v20
s_lshl_b32 s4, s3, 8
s_add_u32 s4, s4, {OP}
v_add_u32 v20, s4, v20
v_lshlrev_b32 v24, 3, v5
v_mul_u32_u24 v25, {4*H1S}, v5
v_lshl_add_u32 v25, v8, 3, v25
s_lshl_b32 s4, s15, 4
s_add_u32 s4, s4, s9
s_mul_i32 s4, s4, {H1S}
s_bfe_u32 s5, s2, 0x30003
s_lshl_b32 s5, s5, 9
s_add_u32 s4, s4, s5
s_lshl_b32 s5, s3, 7
s_add_u32 s4, s4, s5
s_add_u32 s28, s4, {H1OFF}
v_bfe_u32 v2, v1, 3, 1
v_lshlrev_b32 v26, 11, v2
v_lshl_add_u32 v26, v5, 7, v26
v_lshl_add_u32 v26, v6, 4, v26
v_lshl_add_u32 v27, v2, 2, v3
v_lshlrev_b32 v27, 4, v27
v_lshlrev_b32 v28, 16, v7
v_bfe_u32 v2, v1, 2, 2
v_lshl_add_u32 v28, v2, 11, v28
v_lshl_add_u32 v28, v3, 4, v28
s_lshl_b32 s29, s3, 4
""")
    if own1:
        a("s_lshl_b32 s4, s3, 1\nv_add_u32 v2, s4, v6\nv_and_b32 v2, 7, v2\nv_and_b32 v26, 0xffffff8f, v26\nv_lshl_add_u32 v26, v2, 4, v26")
        for kk in range(4):
            a(f"s_add_u32 s4, s3, {kk}\ns_and_b32 s4, s4, 3\ns_lshl_b32 s4, s4, 12")
            for nt_ in range(4): a(f"v_add_u32 v{176+4*kk+nt_}, s4, v{153+nt_}")
    RBB = WQL
    if t3:
        a(f"""
v_mul_u32_u24 v25, {4*H1S}, v5
v_lshrrev_b32 v2, 1, v8
v_lshl_add_u32 v25, v2, 7, v25
v_and_b32 v2, 1, v1
v_lshl_add_u32 v25, v2, 3, v25
s_lshl_b32 s4, s15, 4
s_add_u32 s4, s4, s3
s_mul_i32 s4, s4, {H1S}
s_bfe_u32 s5, s2, 0x20003
s_lshl_b32 s5, s5, 10
s_add_u32 s4, s4, s5
s_lshr_b32 s5, s2, 5
s_lshl_b32 s5, s5, 4
s_add_u32 s4, s4, s5
s_add_u32 s28, s4, {H1OFF}
v_lshlrev_b32 v26, 4, v1
v_bfe_u32 v2, v1, 3, 2
v_mul_u32_u24 v27, {H1S}, v2
v_lshl_add_u32 v27, v6, 4, v27
s_mul_i32 s30, s13, {4*H1S}
s_add_u32 s30, s30, {H1OFF}
v_lshrrev_b32 v2, 2, v1
v_lshlrev_b32 v28, 16, v2
v_lshl_add_u32 v28, v3, 4, v28
s_lshl_b32 s4, s14, 2
s_add_u32 s4, s4, s3
s_lshl_b32 s4, s4, 11
s_lshl_b32 s5, s13, 6
s_add_u32 s4, s4, s5
s_add_u32 s8, s4, {H2OFF}
v_mul_u32_u24 v21, 320, v5
v_lshl_add_u32 v21, v8, 4, v21
s_mul_i32 s4, s3, 2560
v_add_u32 v21, s4, v21
v_mul_u32_u24 v22, 320, v3
v_and_b32 v2, 7, v2
v_lshl_add_u32 v22, v2, 4, v22
s_lshr_b32 s4, s3, 1
s_mul_i32 s4, s4, 1280
s_and_b32 s5, s3, 1
s_lshl_b32 s5, s5, 7
s_add_u32 s4, s4, s5
v_add_u32 v22, s4, v22
v_lshlrev_b32 v23, 4, v6
""")
        if t3 == 2: a(f"""
v_mul_u32_u24 v25, {4*H1S}, v5
v_lshl_add_u32 v25, v8, 3, v25
s_lshr_b32 s5, s2, 5
s_mul_i32 s5, s5, 112
s_add_u32 s28, s28, s5
v_lshrrev_b32 v23, 3, v1
v_lshlrev_b32 v23, 4, v23
v_lshlrev_b32 v184, 5, v6
v_lshl_add_u32 v184, v5, 3, v184
v_add_u32 v185, 4, v184
s_mov_b32 s32, 0x00ff00ff
s_mov_b32 s33, 0x00ff00ff
""")
        for i in range(8 if t3 == 1 else 0): a(f"v_mov_b32 v{176+i}, 0")
    if not h2full: a("s_lshl_b32 s9, s2, 11")
    else: a("""
s_lshr_b32 s9, s2, 6
s_lshl_b32 s9, s9, 5
s_and_b32 s4, s2, 31
s_add_u32 s9, s9, s4
s_lshl_b32 s9, s9, 12
s_bfe_u32 s4, s2, 0x10005
s_lshl_b32 s4, s4, 6
s_add_u32 s9, s9, s4
""")
    h2l = [f"buffer_load_dwordx4 v[{136+4*k}:{139+4*k}], v19, s[52:55], s9 offen offset:{(2048 if h2full else 1024)*k} {h2fl}" for k in range(2)]
    a(f"""
s_add_u32 s9, s9, {H2OFF}
""")
    if near:
        a(f"s_mov_b32 s5, {CWOFF}\nv_and_b32 v2, {8 * near['nw'] - 1}, v1\nv_lshlrev_b32 v2, 3, v2")
        poll("L_cwp", ["buffer_load_dwordx2 v[94:95], v2, s[52:55], s5 offen sc1"], lambda: chk8([95], 80), sl=4)
        a(f"""
v_sub_u32 v95, 0, v94
v_cmp_gt_u32 vcc, 4, v6
v_cndmask_b32 v94, v95, v94, vcc
v_add_u32_dpp v94, v94, v94 row_ror:8 row_mask:0xf bank_mask:0xf
v_add_u32_dpp v94, v94, v94 row_ror:4 row_mask:0xf bank_mask:0xf
v_add_u32_dpp v94, v94, v94 row_ror:2 row_mask:0xf bank_mask:0xf
v_add_u32_dpp v94, v94, v94 row_ror:1 row_mask:0xf bank_mask:0xf
v_readfirstlane_b32 s4, v94
s_cmp_gt_i32 s4, 0
s_cselect_b32 s4, {0x2000 if not near.get("inv") else 0}, {0x2000 if near.get("inv") else 0}
s_xor_b32 s8, s8, s4
s_xor_b32 s9, s9, s4
""")
    if h2pre and h2pre is not True and h2pre[0] == "m": h2touch()
    if wolate is not None and wotrig is None:
        lds_wait("L_yw", FLG + 12, 4); woread(91)
    if not fin: a("""
s_cmp_lg_u32 s3, 0
s_cbranch_scc1 L_ready
""")
    if wolate is None or wotrig is not None: lds_wait("L_yw", FLG + 12, 4)
    if h2pre is True:
        for l in h2l: a(l)
    if "o" in warm: a("buffer_load_ushort v94, v30, s[64:67], s10 offen")
    if tlbw: a(f"s_mov_b32 s4, {H2OFF + (1 << 20) - 4096}\nbuffer_load_dword v94, v9, s[52:55], s4 offen")
    DRYIN = DRYSET = ""
    if dry2:
        assert t2 and not t3 and not fin and wbar and h1m == 1 and h2late
        DRYIN = f"""; first pass through the hand-off code with empty buffer ranges (loads give 0, stores are dropped): fills the instruction cache
s_mov_b32 s30, 0
s_mov_b32 s31, 1
s_mov_b32 s27, s26
s_mov_b32 s26, 0
s_mov_b32 s54, 0
s_mov_b32 s66, 0
v_mov_b32 v11, 0
s_waitcnt vmcnt(0) lgkmcnt(0)
{"s_memrealtime s[86:87]" if "drst" in dbg else ""}
s_branch L_dry_in
L_dry_ret:
s_mov_b64 exec, -1
s_waitcnt vmcnt(0) lgkmcnt(0)
{"s_memrealtime s[90:91]" if "drst" in dbg else ""}
s_mov_b32 s26, s27
s_mov_b32 s54, 0x10000000
s_mov_b32 s66, 8192
v_mov_b32 v11, 1"""
        DRYSET = f"s_mov_b32 s30, {spin}\ns_mov_b32 s31, 0"
    a(f"""
{"v_lshl_add_u32 v2, v3, 2, v5" if t3 else "v_lshl_add_u32 v2, v5, 2, v3"}
v_lshlrev_b32 v2, 2, v2
ds_read_b32 v32, v2 offset:{YP}
ds_read_b32 v33, v2 offset:{YP+64}
ds_read_b32 v34, v2 offset:{YP+128}
ds_read_b32 v35, v2 offset:{YP+192}
v_lshlrev_b32 v31, 16, v31
s_waitcnt lgkmcnt(0)
v_add_f32 v32, v32, v33
v_add_f32 v34, v34, v35
v_add_f32 v32, v32, v34
v_cvt_pk_bf16_f32 v32, v32, v32
v_lshlrev_b32 v32, 16, v32
v_add_f32 v32, v32, v31
v_cvt_pk_bf16_f32 v32, v32, v32
v_lshlrev_b32 v32, 16, v32
v_mul_f32 v34, {f32(-LOG2E)}, v32
v_exp_f32 v34, v34
v_add_f32 v34, 1.0, v34
v_rcp_f32 v34, v34
v_mul_f32 v32, v32, v34
v_cvt_pk_bf16_f32 v32, v32, v32
v_lshlrev_b32 v16, 16, v32
v_lshlrev_b32 v14, 16, v29
{DRYIN}
L_ready:
{DRYSET}
""")
    if "cuts" in dbg: a("s_branch L_pre2")
    a("; softmax statistics: merge the four waves, publish {max, sum}, fetch the group's statistics, form the split weights")
    lds_wait("L_sw", FLG + 16, 4, sl=8)
    a(f"""
ds_read_b64 v[32:33], v24 offset:{ST}
ds_read_b64 v[34:35], v24 offset:{ST+32}
ds_read_b64 v[36:37], v24 offset:{ST+64}
ds_read_b64 v[38:39], v24 offset:{ST+96}
s_waitcnt lgkmcnt(0)
v_max3_f32 v48, v32, v34, v36
v_max_f32 v48, v48, v38
v_sub_f32 v32, v32, v48
v_sub_f32 v34, v34, v48
v_sub_f32 v36, v36, v48
v_sub_f32 v38, v38, v48
v_exp_f32 v32, v32
v_exp_f32 v34, v34
v_exp_f32 v36, v36
v_exp_f32 v38, v38
v_mov_b32 v49, v10
v_mov_b32 v51, v10
v_mul_f32 v50, v32, v33
v_fmac_f32 v50, v34, v35
v_fmac_f32 v50, v36, v37
v_fmac_f32 v50, v38, v39
v_mov_b32 v53, v10
{"s_lshl_b64 exec, 1, s29" if t2 else "s_mov_b64 exec, 1"}
s_cmp_lg_u32 s26, 0
s_cbranch_scc1 L_st_far
buffer_store_dwordx4 v[48:51], v9, s[52:55], s6 offen
s_mov_b64 exec, -1
""")
    if t2 and prew: a("v_not_b32 v60, v10\nv_not_b32 v61, v10\nbuffer_store_dwordx2 v[60:61], v25, s[52:55], s28 offen offset:128")
    poll("L_sp", [f"buffer_load_dwordx4 v[40:43], v27, s[52:55], s{30 if t3 else 7} offen {h1fl}"], lambda: chk8([41, 43], 80), sl=8)
    a(f"""
s_branch L_st_done
L_st_far:
buffer_store_dwordx4 v[48:51], v9, s[52:55], s6 offen sc1
s_mov_b64 exec, -1
""")
    poll("L_spx", [f"buffer_load_dwordx4 v[40:43], v27, s[52:55], s{30 if t3 else 7} offen sc1"], lambda: chk8([41, 43], 80), sl=8)
    a("L_st_done:")
    def ptouch(mode, fl):
        if mode == 8: a(f"s_lshl_b32 s4, s14, 9\ns_add_u32 s4, s4, s7\ns_mov_b64 exec, 0xffffffff\nbuffer_load_dwordx4 v[64:67], v26, s[52:55], s4 offen offset:128 {fl}\ns_mov_b64 exec, -1")
        else:
            for k in range(4): a(f"buffer_load_dwordx4 v[{64+4*k}:{67+4*k}], v26, s[52:55], s7 offen offset:{128+k*1024} {fl}")
    if pretouch and pretouch[0] == "s": ptouch(pretouch[1], pretouch[2])
    a("""
v_max_f32_dpp v44, v40, v40 quad_perm:[1,0,3,2] row_mask:0xf bank_mask:0xf
v_max_f32_dpp v45, v44, v44 quad_perm:[2,3,0,1] row_mask:0xf bank_mask:0xf
v_sub_f32 v40, v40, v45
v_exp_f32 v40, v40
v_mul_f32 v42, v40, v42
v_add_f32_dpp v44, v42, v42 quad_perm:[1,0,3,2] row_mask:0xf bank_mask:0xf
v_add_f32_dpp v45, v44, v44 quad_perm:[2,3,0,1] row_mask:0xf bank_mask:0xf
v_rcp_f32 v45, v45
v_mul_f32 v40, v40, v45
v_mov_b32_dpp v56, v40 quad_perm:[0,0,0,0] row_mask:0xf bank_mask:0xf
v_mov_b32_dpp v57, v40 quad_perm:[1,1,1,1] row_mask:0xf bank_mask:0xf
v_mov_b32_dpp v58, v40 quad_perm:[2,2,2,2] row_mask:0xf bank_mask:0xf
v_mov_b32_dpp v59, v40 quad_perm:[3,3,3,3] row_mask:0xf bank_mask:0xf
""" + ("\n".join(f"ds_bpermute_b32 v{56+i}, v23, v{56+i}" for i in range(4)) if t3 else "") + """
L_pre2:
s_setprio """ + str(hp) + """
s_waitcnt vmcnt(0) lgkmcnt(0)
""")
    if wotrig is not None and wotrig >= 0:
        if defer:
            srd(48, 38, 256)
            a(f"""
s_getreg_b32 s4, hwreg(HW_REG_XCC_ID, 0, 3)
s_lshl_b32 s4, s4, 5
v_lshl_add_u32 v92, v6, 2, s4
s_mov_b32 s28, {(0x80 - defer[2]) * 0x01010101}
s_mov_b32 s29, 0x80808080
""")
        if wodl is not None: a(f"""
s_mov_b32 s58, {spin*8}
L_wt:
ds_read2_b32 v[60:61], v9 offset0:{(FLG+28)//4} offset1:{(FLG+48)//4}
s_memrealtime s[76:77]
{f"s_sleep {wosl}" if wosl else ""}
s_waitcnt lgkmcnt(0)
v_readfirstlane_b32 s59, v60
v_readfirstlane_b32 s27, v61
s_sub_u32 s58, s58, 1
s_cbranch_scc1 L_wt_done
s_cmp_ge_u32 s59, {wothr}
s_cbranch_scc1 L_wt_done
s_cmp_eq_u32 s27, 0
s_cbranch_scc1 L_wt
s_sub_u32 s27, s76, s27
s_cmp_lt_i32 s27, 0
s_cbranch_scc1 L_wt
L_wt_done:
""")
        else:
            a("; Wo tile is fetched when this workgroup's V stream is nearly drained, so it overlaps the hop-1 hand-off")
            lds_wait("L_wt", FLG + 28, wothr, sl=wosl, msk=bool(defer))
        if defer: a(f"s_lshr_b32 s27, s59, 8\ns_cmp_ge_u32 s27, {defer[1]}\ns_cselect_b32 s27, 1, 0\ns_andn2_b32 s27, s27, s26\ns_cbranch_scc1 L_wt_skip")
        if pretouch and pretouch[0] == "b": ptouch(pretouch[1], pretouch[2])
        for t in range(4): wodma(t, 90, 22, 23)
        if pretouch and pretouch[0] == "a": ptouch(pretouch[1], pretouch[2])
        if defer: a("L_wt_skip:")
    stamp(4)
    if not dp: a("s_barrier")
    if dry2: a("L_dry_in:")
    if wotrig is not None and wotrig < 0:
        for t in range(4): wodma(t, 90, 22, 23)
    if isinstance(dbgt, str): a("s_memrealtime s[92:93]")
    if prof: a("s_waitcnt lgkmcnt(0)")
    if "notail" in dbg:
        stamp(5); stamp(6); a("s_branch L_hend")
    if tailprof: stamp(1); a("s_waitcnt lgkmcnt(0)")
    PKC = """s_waitcnt lgkmcnt(2)
v_mul_f32 v40, v32, v40
v_mul_f32 v41, v32, v41
v_fmac_f32 v40, v34, v42
v_fmac_f32 v41, v34, v43
s_waitcnt lgkmcnt(0)
v_mul_f32 v44, v36, v44
v_mul_f32 v45, v36, v45
v_fmac_f32 v40, v38, v46
v_fmac_f32 v41, v38, v47
v_add_f32 v40, v40, v44
v_add_f32 v41, v41, v45""" if not pkc else """s_waitcnt lgkmcnt(3)
v_pk_mul_f32 v[40:41], v[40:41], v[32:33] op_sel_hi:[1,0]
s_waitcnt lgkmcnt(2)
v_pk_fma_f32 v[40:41], v[42:43], v[34:35], v[40:41] op_sel_hi:[1,0,1]
s_waitcnt lgkmcnt(1)
v_pk_fma_f32 v[40:41], v[44:45], v[36:37], v[40:41] op_sel_hi:[1,0,1]
s_waitcnt lgkmcnt(0)
v_pk_fma_f32 v[40:41], v[46:47], v[38:39], v[40:41] op_sel_hi:[1,0,1]"""
    if t2:
        for w_ in range(4): a(f"ds_read2st64_b32 v[{40+2*w_}:{41+2*w_}], v20 offset0:{8*w_} offset1:{8*w_+4}")
    elif not dp: a("""
ds_read2_b32 v[40:41], v20 offset0:0 offset1:4
ds_read2_b32 v[42:43], v21 offset0:0 offset1:4
ds_read2_b32 v[44:45], v22 offset0:0 offset1:4
ds_read2_b32 v[46:47], v23 offset0:0 offset1:4
""")
    if not dp: a(f"""
{PKC}
s_cmp_lg_u32 s26, 0
v_cvt_pk_bf16_f32 v52, v40, v41
s_cbranch_scc1 L_h1_far
buffer_store_dwordx2 v[52:53], v25, s[52:55], s{28 if t2 else 6} offen offset:128
L_h1_st:
""")
    stamp(5)
    if wotrig is not None:
        if defer: a("s_cmp_lg_u32 s27, 0\ns_cbranch_scc1 L_dfr")
        if h1e:
            a("s_cmp_lg_u32 s26, 0\ns_cbranch_scc1 L_h1e_far")
            if dry2: a("s_cmp_lg_u32 s31, 0")
            for e_ in range(h1e[0]):
                if len(h1e) > 2: a(f"s_waitcnt vmcnt({h1e[2][e_] + 4 * e_})")
                elif e_: a(f"s_sleep {h1e[1]}")
                for k in range(4): a(f"buffer_load_dwordx4 v[{64+4*k}:{67+4*k}], v26, s[52:55], s7 offen offset:{128+k*(512 if t2 and not t3 else 1024)} {h1fl}")
            a(f"s_waitcnt vmcnt({1 + 4 * h1e[0]})\nL_h1e_done:")
        else: a(f"s_waitcnt vmcnt({0 if dp else 1})")
        if defer: a("L_dfr_done:")
        if dp: stamp(5)
        if "wol" in dbg and "h1it" not in dbg and "h1vm" not in dbg: stamp(3)
        if own1: woread(91, [0])
        if wbar: a(("s_cbranch_scc1 L_nobar\n" if dry2 else "") + "s_barrier" + ("\nL_nobar:" if dry2 else ""))
        elif not t3:
            lds_signal(FLG + 20)
            lds_wait("L_wl", FLG + 20, 4)
        if "wol" in dbg: stamp(1)
        if not womid: woread(91)
        if dp and dpw: lds_wait("L_pw", FLG + 40, dpw)
    a("s_cmp_lg_u32 s26, 0\ns_cbranch_scc1 L_h1_farp")
    def h1poll(sfx, fl, pipe):
        full = [f"buffer_load_dwordx4 v[{64+4*k}:{67+4*k}], v26, s[52:55], s7 offen offset:{128+k*(512 if t2 and not t3 else 1024)} {fl}" for k in range(4)]
        if h1m and sfx == "":
            assert h1e
            a(f"s_mov_b32 s58, {'s30' if dry2 else spin}"); woread(91)
            a("L_h1_chk:\ns_waitcnt vmcnt(0)" if h1m == 1 else "s_waitcnt vmcnt(0)\nL_h1_chk:")
            for k in range(4): a(f"v_bitop3_b32 v{80+k}, v{65+4*k}, v{67+4*k}, s12 bitop3:0x7e")
            for k in range(4): a(f"v_cmp_ne_u32 s[{72+2*k}:{73+2*k}], 0, v{80+k}")
            a("s_or_b64 vcc, s[72:73], s[74:75]\ns_or_b64 s[82:83], s[76:77], s[78:79]\ns_or_b64 vcc, vcc, s[82:83]\ns_cbranch_scc0 L_h1_got\ns_sub_u32 s58, s58, 1\ns_cbranch_scc1 L_h1_got")
            if "h1it" in dbg: stamp(4)
            for k in range(4): a(f"s_mov_b64 exec, s[{72+2*k}:{73+2*k}]\n" + full[k])
            a("s_mov_b64 exec, -1")
            if slp: a(f"s_sleep {slp}")
            if h1m > 1: a(f"s_waitcnt vmcnt({4 * (h1m - 1)})")
            a("s_branch L_h1_chk")
            return
        poll("L_h1" + sfx, full, lambda: chk8([65, 67, 69, 71, 73, 75, 77, 79], 80), st=4, pipe=pipe, stag=stag1, mid=(lambda: woread(91)) if (womid and wotrig is not None) else None, pre=bool(h1e) and sfx == "")
    h1poll("", h1fl, pipe1)
    a("L_h1_got:")
    if "h1it" in dbg: a(f"s_sub_u32 s90, {spin}, s58\ns_mov_b32 s91, 0")
    if "h1vm" in dbg: stamp(3); a(f"s_sub_u32 s98, {spin}, s58\ns_mov_b32 s99, 0")
    if hp2 is not None: a(f"s_setprio {hp2}")
    if wotrig is not None: a("s_waitcnt lgkmcnt(0)")
    stamp(6)
    AO = 96; DD = 112
    if h2e:
        a("s_cmp_lg_u32 s3, 0\ns_cbranch_scc1 L_h2e")
        for l in h2l: a(l)
        a("L_h2e:")
    if h2late and fin != 2: a(f"s_mov_b64 exec, 1\nds_add_rtn_u32 v54, v9, v11 offset:{FLG+24}\ns_mov_b64 exec, -1")
    if fin == 2: a(f"ds_read_b32 v54, v9 offset:{FLG+24}")
    if t2:
        for k in range(4):
            for g_ in range(2):
                a(f"v_lshlrev_b32 v{160+4*k+2*g_}, 16, v{64+4*k+2*g_}\nv_and_b32 v{161+4*k+2*g_}, 0xffff0000, v{64+4*k+2*g_}")
            for g_ in range(2):
                r_ = 160 + 4 * k + 2 * g_; w_ = 56 + (k & 2); sel = k & 1
                if k == 0: a(f"v_pk_mul_f32 v[{84+2*g_}:{85+2*g_}], v[{r_}:{r_+1}], v[{w_}:{w_+1}] op_sel:[0,{sel}] op_sel_hi:[1,{sel}]")
                else: a(f"v_pk_fma_f32 v[{84+2*g_}:{85+2*g_}], v[{r_}:{r_+1}], v[{w_}:{w_+1}], v[{84+2*g_}:{85+2*g_}] op_sel:[0,{sel},0] op_sel_hi:[1,{sel},1]")
        a("v_cvt_pk_bf16_f32 v88, v84, v85\nv_cvt_pk_bf16_f32 v89, v86, v87")
    if fin == 2:
        a("s_waitcnt lgkmcnt(0)\nv_readfirstlane_b32 s27, v54\ns_cmp_lg_u32 s27, 3\ns_cbranch_scc1 L_h2e")
        for l in h2l: a(l)
        a(f"L_h2e:\ns_mov_b64 exec, 1\nds_add_rtn_u32 v54, v9, v11 offset:{FLG+24}\ns_mov_b64 exec, -1")
    if fin == 3:
        a("s_waitcnt lgkmcnt(0)\nv_readfirstlane_b32 s27, v54\ns_cmp_lg_u32 s27, 3\ns_cbranch_scc1 L_h2e")
        for l in h2l: a(l)
        a(f"s_mov_b64 exec, 1\nds_add_u32 v9, v11 offset:{FLG+24}\ns_mov_b64 exec, -1\nL_h2e:")
    def mv(kk, p):
        if t2:
            j_ = 2 * kk + (p >> 1)
            if j_: a(f"v_mov_b32_dpp v{AO+4*kk+p}, v{88+(p&1)} row_ror:{16-j_} row_mask:0xf bank_mask:0xf")
            else: a(f"v_mov_b32 v{AO+4*kk+p}, v{88+(p&1)}")
            return
        src = 64 + 8 * (kk & 1) + 2 * p
        if kk >= 2: a(f"v_mov_b32_dpp v{AO+4*kk+p}, v{src} row_ror:8 row_mask:0xf bank_mask:0xf")
        else: a(f"v_mov_b32 v{AO+4*kk+p}, v{src}")
    if t3 == 2:
        for p in range(4): a(f"ds_bpermute_b32 v{176+p}, v{184+(p>>1)}, v{88+(p&1)}")
        a("s_waitcnt lgkmcnt(0)")
        for nt_ in (0, 2, 1, 3): a(f"v_mfma_f32_16x16x32_bf16 v[{DD+4*nt_}:{DD+4*nt_+3}], v[{WB+4*nt_}:{WB+4*nt_+3}], v[176:179], 0")
        a(f"""
s_mov_b64 exec, s[32:33]
ds_write_b128 v21, v[{DD}:{DD+3}] offset:{RBB}
ds_write_b128 v21, v[{DD+8}:{DD+11}] offset:{RBB+1280}
s_not_b64 exec, s[32:33]
ds_write_b128 v21, v[{DD+4}:{DD+7}] offset:{RBB}
ds_write_b128 v21, v[{DD+12}:{DD+15}] offset:{RBB+1280}
""")
    if t3 == 1:
        ID = "quad_perm:[0,1,2,3]"
        for p in range(4): a(f"v_mov_b32_dpp v{176+p}, v{88+(p&1)} {'row_ror:8' if p >> 1 else ID} row_mask:0xf bank_mask:0x3")
        for p in range(4): a(f"v_mov_b32_dpp v{180+p}, v{88+(p&1)} {ID if p >> 1 else 'row_ror:8'} row_mask:0xf bank_mask:0xc")
        for h_ in range(2):
            for a_ in range(2):
                d = DD + 4 * a_; w_ = WB + 4 * (2 * a_ + h_)
                a(f"v_mfma_f32_16x16x32_bf16 v[{d}:{d+3}], v[{w_}:{w_+3}], v[{176+4*h_}:{179+4*h_}], {'0' if h_ == 0 else f'v[{d}:{d+3}]'}")
        a(f"""
ds_write_b128 v21, v[{DD}:{DD+3}] offset:{RBB}
ds_write_b128 v21, v[{DD+4}:{DD+7}] offset:{RBB+1280}
""")
    if t3:
        a(f"""
s_mov_b64 exec, 0xffffffff
s_waitcnt lgkmcnt(0)
s_barrier
""")
        for w_ in range(4): a(f"ds_read_b128 v[{96+4*w_}:{99+4*w_}], v22 offset:{RBB+2560*w_}")
        a("""
s_waitcnt lgkmcnt(2)
v_pk_add_f32 v[96:97], v[96:97], v[100:101]
v_pk_add_f32 v[98:99], v[98:99], v[102:103]
s_waitcnt lgkmcnt(0)
v_pk_add_f32 v[104:105], v[104:105], v[108:109]
v_pk_add_f32 v[106:107], v[106:107], v[110:111]
v_pk_add_f32 v[96:97], v[96:97], v[104:105]
v_pk_add_f32 v[98:99], v[98:99], v[106:107]
""")
    for p in range(0 if t3 else 4): mv(0, p)
    for kk in range(0 if t3 else 4):
        for nt_ in range(4):
            d = DD + 4 * nt_; b = WB + 16 * nt_ + 4 * kk
            if kk < 3 and nt_ < 2: mv(kk + 1, 2 * nt_); mv(kk + 1, 2 * nt_ + 1)
            a(f"v_mfma_f32_16x16x32_bf16 v[{d}:{d+3}], v[{AO+4*kk}:{AO+4*kk+3}], v[{b}:{b+3}], {'0' if kk == 0 else f'v[{d}:{d+3}]'}")
    GO = 128
    if fin == 3: a("s_mov_b32 s59, s27")
    elif h2late: a("s_waitcnt lgkmcnt(0)\nv_readfirstlane_b32 s59, v54")
    if t3: pack16(GO, [96, 97, 98, 99], 10)
    elif t2: pack16(GO, [DD, DD + 4, DD + 8, DD + 12], 10)
    else:
        for t in range(4):
            a(f"v_mul_f32 v{GO+t}, v56, v{DD+4*t}")
            a(f"v_mul_f32 v{GO+4+t}, v58, v{DD+4*t+2}")
        for t in range(4):
            a(f"v_fmac_f32 v{GO+t}, v57, v{DD+4*t+1}")
            a(f"v_fmac_f32 v{GO+4+t}, v59, v{DD+4*t+3}")
        for t in range(4): a(f"v_add_f32 v{GO+t}, v{GO+t}, v{GO+4+t}")
        pack16(GO, [GO, GO + 1, GO + 2, GO + 3], 10)
    if lbar: a("s_barrier")
    if h2late:
        a(("s_mov_b32 s31, s59\n" if fin else "") + "s_cmp_eq_u32 s59, 3\ns_cbranch_scc1 L_hl_done")
        lds_wait("L_hl", FLG + 24, 5 if fin == 3 else 4, bnd="s30" if dry2 else None)
    a(("" if t3 else "s_mov_b32 exec_lo, 0xffff\ns_mov_b32 exec_hi, 0xffff" if t2 else "s_mov_b64 exec, 0xffffffff") + f"\nbuffer_store_dwordx4 v[{GO}:{GO+3}], v28, s[52:55], s8 offen {h2sf}")
    if tailprof or "wol" in dbg: stamp(2)
    if h2sync and not h2late: lds_signal(FLG + 24)
    a(f"""
s_mov_b64 exec, -1
s_cmp_lg_u32 {"s31, 3" if fin else "s3, 0"}
s_cbranch_scc1 L_hend
""")
    if fin >= 2:
        a("s_cmp_lg_u32 s27, 3\ns_cbranch_scc1 L_h2n\ns_waitcnt vmcnt(1)" if fin == 2 else "s_waitcnt vmcnt(1)")
        r_ = chk16([136, 140], 56, 12)
        a(f"v_cmp_ne_u32 vcc, 0, v{r_}\ns_mov_b32 s58, {spin}\ns_and_b64 exec, exec, vcc\ns_cbranch_execz L_h2_done\nL_h2n:")
    if h2sync and not h2late: lds_wait("L_hw", FLG + 24, 4)
    if h2e:
        a("s_waitcnt vmcnt(1)")
        r_ = chk16([136, 140], 56, 12)
        a(f"v_cmp_ne_u32 vcc, 0, v{r_}\ns_mov_b32 s58, {spin}\ns_and_b64 exec, exec, vcc\ns_cbranch_execz L_h2_done")
    if h2ack: a("s_waitcnt vmcnt(0)")
    if "h2it" in dbg: stamp(1)
    poll("L_h2", h2l, lambda: chk16([136, 140], 56, 12), st=3, pipe=pipe2, stag=stag2, sl=slp2, bnd="s30" if dry2 else None)
    if "h2it" in dbg: stamp(5); a(f"s_sub_u32 s90, {spin}, s58\ns_mov_b32 s91, 0")
    for i in range(8): a(f"v_and_b32 v{48+i}, 0xffffff00, v{136+i}")
    for i in range(4): a(f"v_add_f32 v{48+i}, v{48+i}, v{52+i}")
    a(f"""
v_permlane32_swap_b32 v48, v50
v_permlane32_swap_b32 v49, v51
v_add_f32 v48, v48, v50
v_add_f32 v49, v49, v51
v_permlane16_swap_b32 v48, v49
v_add_f32 v48, v48, v49
v_add_f32_dpp v48, v48, v48 row_ror:4 row_mask:0xf bank_mask:0xf
v_add_f32_dpp v48, v48, v48 row_ror:8 row_mask:0xf bank_mask:0xf
s_mov_b32 exec_lo, 0x000f000f
s_mov_b32 exec_hi, 0x000f000f
v_cvt_pk_bf16_f32 v48, v48, v48
v_lshlrev_b32 v48, 16, v48
v_mul_f32 v48, v48, v16
v_cvt_pk_bf16_f32 v48, v48, v48
v_lshlrev_b32 v48, 16, v48
v_add_f32 v48, v48, v14
v_cvt_pk_bf16_f32 v48, v48, v48
buffer_store_short v48, v30, s[64:67], s10 offen {"sc1" if clean else ""}
s_mov_b64 exec, 1
s_cmp_lg_u32 s2, 0
s_cbranch_scc1 L_hend
v_mov_b32 v60, s42
buffer_store_dword v60, v9, s[52:55], 0 offen sc1
L_hend:
{"s_cmp_lg_u32 s31, 0" if dry2 else ""}
{"s_cbranch_scc1 L_dry_ret" if dry2 else ""}
""")
    if "probe" in dbg: a("s_cmp_ge_u32 s3, 2\ns_cbranch_scc1 L_np7")
    if "h1vm" not in dbg: stamp(7)
    if "probe" in dbg: a("L_np7:")
    if endwait or prof or dbgt: a("s_waitcnt vmcnt(0)")
    if "endst" in dbg: stamp(1)
    if isinstance(dbgt, str):
        AMP = 96 << 20
        def red(op, r, steps, t=70):
            for n in steps:
                if n < 16: a(f"{op}_dpp v{r}, v{r}, v{r} row_ror:{n} row_mask:0xf bank_mask:0xf")
                else: a(f"v_mov_b32 v{t}, v{r}\nv_permlane{n}_swap_b32 v{r}, v{t}\n{op} v{r}, v{r}, v{t}")
        a(f"""
s_cmp_lg_u32 s3, 0
s_cbranch_scc1 L_dbgt
s_memrealtime s[88:89]
s_mov_b64 exec, 1
s_waitcnt lgkmcnt(0)
v_mov_b32 v12, s84
v_mov_b32 v13, s92
v_mov_b32 v14, s88
v_mov_b32 v15, s12
s_lshl_b32 s59, s2, 4
s_add_u32 s59, s59, {AMP}
buffer_store_dwordx4 v[12:15], v9, s[52:55], s59 offen sc1
s_waitcnt vmcnt(0)
s_mov_b64 exec, -1
s_cmp_lg_u32 s2, 0
s_cbranch_scc1 L_dbgt
v_lshlrev_b32 v2, 4, v1
s_mov_b32 s6, {AMP}
""")
        poll("L_amp", [f"buffer_load_dwordx4 v[{40+4*k}:{43+4*k}], v2, s[52:55], s6 offen offset:{1024*k} sc1" for k in range(4)], lambda: chk8([43, 47, 51, 55], 80), sl=8)
        for k in range(4):
            for c in range(3): a(f"v_subrev_u32 v{40+4*k+c}, s84, v{40+4*k+c}")
        ALL = [8, 4, 2, 1, 16, 32]
        def stat(op, c, dst, steps=ALL):
            a(f"{op} v{dst}, v{40+c}, v{44+c}\n{op} v71, v{48+c}, v{52+c}\n{op} v{dst}, v{dst}, v71")
            red(op, dst, steps)
        stat("v_min_i32", 0, 60)
        if dbgt == "startmax": stat("v_max_i32", 0, 61)
        if dbgt == "bmin": stat("v_min_i32", 1, 61)
        if dbgt == "bmax": stat("v_max_i32", 1, 61)
        if dbgt == "emax": stat("v_max_i32", 2, 61)
        if dbgt == "bmean": stat("v_add_u32", 1, 61); a("v_ashrrev_i32 v61, 8, v61")
        if dbgt == "xs":
            stat("v_add_u32", 1, 61, [8, 16, 32]); a("v_ashrrev_i32 v61, 5, v61\nv_mov_b32 v60, v61")
            red("v_max_i32", 61, [4, 2, 1]); red("v_min_i32", 60, [4, 2, 1])
        a(f"""
v_sub_u32 v61, v61, v60
s_nop 1
v_readfirstlane_b32 s59, v61
s_mul_i32 s59, s59, 10
s_add_u32 s59, s59, 5000
s_min_u32 s59, s59, 100000
L_dbgs:
s_memrealtime s[90:91]
s_waitcnt lgkmcnt(0)
s_sub_u32 s58, s90, s84
s_cmp_lt_u32 s58, s59
s_cbranch_scc1 L_dbgs
L_dbgt:
""")
    elif dbgt == 2:
        a(f"""
s_or_b32 s59, s2, s3
s_cmp_lg_u32 s59, 0
s_cbranch_scc1 L_dbgt
s_memrealtime s[88:89]
s_waitcnt lgkmcnt(0)
s_sub_u32 s59, s88, s84
s_mul_i32 s59, s59, 10
s_min_u32 s59, s59, 100000
L_dbgs:
s_memrealtime s[90:91]
s_waitcnt lgkmcnt(0)
s_sub_u32 s58, s90, s88
s_cmp_lt_u32 s58, s59
s_cbranch_scc1 L_dbgs
L_dbgt:
""")
    elif dbgt:
        a(f"""
s_memrealtime s[88:89]
s_memtime s[90:91]
s_mov_b32 s44, s38
s_mov_b32 s45, s39
s_mov_b32 s46, 256
s_mov_b32 s47, 0x20000
s_mov_b64 exec, 1
s_waitcnt lgkmcnt(0)
s_not_b32 s59, s84
v_mov_b32 v12, s88
v_mov_b32 v13, s59
buffer_atomic_umax v12, v9, s[44:47], 0 offen sc1
buffer_atomic_umax v13, v9, s[44:47], 0 offen offset:4 sc1
s_cmp_lg_u32 s3, 0
s_cbranch_scc1 L_dbgt
s_and_b32 s59, s2, 0x7f
s_cmp_lg_u32 s59, 0
s_cbranch_scc1 L_dbgt
s_lshr_b32 s59, s2, 3
v_mov_b32 v12, s84
v_mov_b32 v13, s88
v_mov_b32 v14, s86
v_mov_b32 v15, s90
buffer_store_dwordx4 v[12:15], v9, s[44:47], s59 offen offset:16 sc1
L_dbgt:
s_waitcnt vmcnt(0)
""")
    if prof:
        a(f"""
s_mov_b64 exec, 1
s_sleep 127
s_waitcnt lgkmcnt(0)
s_lshl_b32 s59, s2, 3
s_add_u32 s59, s59, s3
s_add_u32 s59, s59, 4
s_lshl_b32 s59, s59, 6
s_add_u32 s59, s59, {STAMP}
""")
        for i in range(0, 8):
            a(f"v_mov_b32 v12, s{84+2*i}\nv_mov_b32 v13, s{85+2*i}\nbuffer_store_dwordx2 v[12:13], v9, s[52:55], s59 offen offset:{8*i}\ns_waitcnt vmcnt(0)")
    a("L_end:\ns_endpgm")
    if not dp: a("""L_h1_far:
buffer_store_dwordx2 v[52:53], v25, s[52:55], s""" + ("28" if t2 else "6") + """ offen offset:128 sc1
s_branch L_h1_st
""")
    if h1e: a("L_h1e_far:\n" + ("s_cmp_lg_u32 s31, 0\n" if dry2 else "") + "s_waitcnt vmcnt(1)\ns_branch L_h1e_done")
    a("L_h1_farp:")
    h1poll("x", "sc1", 1)
    a("s_branch L_h1_got")
    if defer:
        a(f"""
L_dfr:
s_movk_i32 s58, 2000
L_dfr_l:
buffer_load_dword v93, v92, s[48:51], 0 offen nt
s_waitcnt vmcnt(0)
v_add_u32 v93, s28, v93
v_and_b32 v93, s29, v93
v_cmp_ne_u32 vcc, s29, v93
s_cbranch_vccz L_dfr_go
s_sub_u32 s58, s58, 1
s_cbranch_scc0 L_dfr_l
L_dfr_go:
""")
        for t in range(4): wodma(t, 90, 22, 23)
        a("s_waitcnt vmcnt(0)\ns_branch L_dfr_done")
    if near:
        assert near["nw"] in (1, 2)
        a(f"""L_meas:
s_cmp_lt_u32 s3, 2
s_cbranch_scc1 L_meas_done
s_and_b32 s4, s3, 1
s_lshl_b32 s4, s4, 13
s_lshl_b32 s5, s2, 7
s_add_u32 s4, s4, s5
s_memtime s[76:77]
s_waitcnt lgkmcnt(0)
s_load_dword s5, s[40:41], s4 offset:{MEAS}
s_waitcnt lgkmcnt(0)
s_memtime s[78:79]
s_lshl_b32 s4, s3, 2
v_mov_b32 v5, s4
s_waitcnt lgkmcnt(0)
s_sub_u32 s78, s78, s76
v_mov_b32 v6, s78
ds_write_b32 v5, v6 offset:{OP - 8}
s_waitcnt lgkmcnt(0)
s_branch L_meas_done
L_mpub:
ds_read_b64 v[94:95], v9 offset:{OP}
s_lshl_b32 s4, s2, 3
s_add_u32 s4, s4, {CWOFF}
s_movk_i32 s5, {near.get("cap", 600)}
s_mov_b64 exec, 1
s_waitcnt lgkmcnt(0)
v_sub_u32 v94, v94, v95
v_min_i32 v94, s5, v94
v_sub_u32 v95, 0, v94
v_min_i32 v95, s5, v95
v_sub_u32 v94, 0, v95
v_mov_b32 v95, s12
buffer_store_dwordx2 v[94:95], v9, s[52:55], s4 offen sc1
s_mov_b64 exec, -1
s_branch L_mpub_done
""")
    a("L_qs_far:\n" + (f"ds_write_b32 v9, v11 offset:{FLG+32}\n" if dp else "") + "buffer_store_dwordx4 v[132:135], v25, s[52:55], s72 offen sc1\n" + ("buffer_store_dwordx2 v[136:137], v138, s[52:55], s73 offen sc1\n" if qf else "") + "s_branch L_qs_done\nL_gq_far:")
    qpoll("x", "sc1")
    a("s_branch L_gq_got")
    if fc:
        lean = fc.get("tt", {}).get("notab") and fc["tt"].get("gl") == 2
        if not lean:
            a("L_cb:\ns_waitcnt lgkmcnt(0)\ns_mov_b32 s71, 0")
            for i in range(8): a(f"s_cmp_lg_u32 s{4+i}, s73\ns_addc_u32 s71, s71, 0")
        if not fc.get("wg"):
            a(f"""
s_cmp_lt_u32 s71, {fc['th1']}
s_cselect_b32 s62, 2, 0
s_cmp_ge_u32 s71, {fc['th2']}
s_cselect_b32 s62, 1, s62
""")
            if prof: a("s_lshl_b64 s[82:83], s[82:83], 2\ns_or_b32 s82, s82, s62")
            a("s_setpc_b64 s[80:81]")
        else:
            bias = 16 * fc["CW"]
            TSX = ""; DEC = ""
            if fc.get("dec"):
                DEC = f"s_cmp_eq_u32 s62, 1\ns_cselect_b32 s71, {-fc['dec'][0]}, 0\ns_cmp_eq_u32 s62, 2\ns_cselect_b32 s71, {fc['dec'][1]}, s71\ns_add_u32 s74, s74, s71"
            if fc.get("ts"):
                TSX = "L_cx:\ns_waitcnt lgkmcnt(0)\ns_mov_b32 s71, 0\n"
                for i in range(8): TSX += f"s_sub_u32 s{16+2*i}, s36, s{16+2*i}\ns_cmp_eq_u32 s{17+2*i}, s73\ns_cselect_b32 s{16+2*i}, s{16+2*i}, 0\ns_add_u32 s71, s71, s{16+2*i}\n"
                TSX += f"""s_sub_u32 s32, s36, s32
s_cmp_eq_u32 s33, s73
s_cselect_b32 s32, s32, 0
s_lshl_b32 s32, s32, 3
s_sub_u32 s32, s32, s71
s_mul_i32 s32, s32, {fc['tg']}
s_ashr_i32 s74, s32, 5
s_branch L_cc
"""
            if fc.get("tt"):
                tt = fc["tt"]
                RED = "\n".join(f"v_add_u32_dpp v85, v85, v85 row_ror:{n} row_mask:0xf bank_mask:0xf" for n in (4, 2, 1))
                CW_ = f"""{RED}
v_readfirstlane_b32 s69, v85
s_mul_i32 s69, s69, {round(tt['U'])}
s_lshr_b32 s69, s69, 5
s_sub_u32 s62, s62, s69
"""
                if tt.get("gl"):
                    SUMX = "s_waitcnt lgkmcnt(0)\ns_mov_b32 s71, 0\n"
                    for i in range(8): SUMX += f"s_sub_u32 s{16+2*i}, s36, s{16+2*i}\ns_cmp_eq_u32 s{17+2*i}, s73\ns_cselect_b32 s{16+2*i}, s{16+2*i}, {tt.get('inv', 0)}\ns_add_u32 s71, s71, s{16+2*i}\n"
                    SUMX += "s_ashr_i32 s71, s71, 3\ns_sub_u32 s71, s36, s71\n"
                    TSX = "L_cx:\n" + SUMX
                    if tt["gl"] == 2:
                        TSX = "L_cx:\ns_waitcnt lgkmcnt(0)\ns_add_u32 s62, s62, s70\ns_mov_b32 s71, 0\n"
                        if prof and tt.get("tv"): TSX += "s_lshl_b64 s[82:83], s[82:83], 4\n"
                        for i in range(8):
                            TSX += f"s_sub_u32 s{16+2*i}, s{16+2*i}, s62\ns_cmp_eq_u32 s{17+2*i}, s73\ns_cselect_b32 s{16+2*i}, s{16+2*i}, 0\n"
                            if prof and tt.get("tv"): TSX += "s_addc_u32 s82, s82, 0\n"
                            TSX += f"s_add_u32 s71, s71, s{16+2*i}\n"
                        TSX += f"s_ashr_i32 s71, s71, {3 + tt.get('gsm2', 0)}\ns_add_u32 s70, s70, s71\ns_setpc_b64 s[80:81]\n"
                        SUMX = None
                    if tt.get("gsm"): TSX += f"s_sub_u32 s71, s71, s62\ns_sub_u32 s71, s71, s70\ns_ashr_i32 s71, s71, {tt['gsm']}\ns_add_u32 s70, s70, s71\ns_setpc_b64 s[80:81]\nL_cx0:\n" + SUMX
                    if SUMX: TSX += "s_sub_u32 s70, s71, s62\ns_setpc_b64 s[80:81]\n"
                if lean: a("; re-centre the schedule on the mean of the published clocks (entries without this launch's tag are skipped)\n" + TSX)
                else: a(f"""
s_setpc_b64 s[80:81]
{TSX}
L_cw0:
{CW_}
s_sub_u32 s75, s62, {round(tt['U'] * fc['CW'] / 2)}
s_branch L_cc
L_cw:
{CW_}
s_sub_u32 s62, s62, {round(tt['U'] * fc['CW'] / 2)}
""" + (f"s_sub_u32 s62, s62, s75\ns_ashr_i32 s62, s62, {tt['sm']}\ns_add_u32 s75, s75, s62" if tt.get("sm") else "s_mov_b32 s75, s62") + """
L_cc:
""" + ("" if tt.get("gl") else "s_add_u32 s70, s75, s74") + """
s_setpc_b64 s[80:81]
""")
            else: a(f"""
s_mul_i32 s74, s71, {fc.get('kx', 0)}
{"s_lshl_b64 s[82:83], s[82:83], 4" if prof and fc.get("tm") else ""}
{"s_or_b32 s82, s82, s71" if prof and fc.get("tm") else ""}
s_branch L_cc
{TSX}
L_cw:
v_add_u32_dpp v85, v85, v85 row_ror:4 row_mask:0xf bank_mask:0xf
v_add_u32_dpp v85, v85, v85 row_ror:2 row_mask:0xf bank_mask:0xf
v_add_u32_dpp v85, v85, v85 row_ror:1 row_mask:0xf bank_mask:0xf
v_readfirstlane_b32 s69, v85
s_sub_u32 s75, s68, s69
s_sub_u32 s75, s75, {bias}
{DEC}
L_cc:
s_add_u32 s68, s75, s74
s_cmp_lt_i32 s68, {-fc['b']}
s_cselect_b32 s62, 2, 0
s_cmp_gt_i32 s68, {fc['a']}
s_cselect_b32 s62, 1, s62
""")
            if prof and not fc.get("tm") and not fc.get("tt"): a("s_lshl_b64 s[82:83], s[82:83], 2\ns_or_b32 s82, s82, s62")
            if not fc.get("tt"): a("s_setpc_b64 s[80:81]")
    a("; one output column of the token MLP: sum_f gelu_tanh(h*w1+b1)*w2 over this wave's quarter of F\nL_mlp:")
    if mr:
        a("; (the product, the biased sum and the activation are rounded to bf16 where the reference's bf16 tensors round them)")
        for t in range(7): a(f"v_mul_f32 v{U+t}, s4, v{W1+t}")
        for t in range(7): a(f"v_cvt_pk_bf16_f32 v{U+t}, 0, v{U+t}")
        for t in range(7): a(f"v_add_f32 v{U+t}, v{U+t}, v{B1+t}")
        for t in range(7): a(f"v_cvt_pk_bf16_f32 v{U+t}, 0, v{U+t}")
    else:
        for t in range(7): a(f"v_fma_f32 v{U+t}, s4, v{W1+t}, v{B1+t}")
    for t in range(7): a(f"v_mul_f32 v{AA+t}, v{U+t}, v{U+t}")
    for t in range(7): a(f"v_fmaak_f32 v{AA+t}, v{AA+t}, v{C1}, {f32(c0)}")
    for t in range(7): a(f"v_mul_f32 v{AA+t}, v{AA+t}, v{U+t}")
    for t in range(7): a(f"v_exp_f32 v{EE+t}, v{AA+t}")
    if not mr:
        for t in range(7): a(f"v_mul_f32 v{U+t}, v{U+t}, v{W2+t}")
    for t in range(7): a(f"v_add_f32 v{EE+t}, 1.0, v{EE+t}")
    for t in range(7): a(f"v_rcp_f32 v{EE+t}, v{EE+t}")
    if mr:
        for t in range(7): a(f"v_mul_f32 v{EE+t}, v{U+t}, v{EE+t}")
        for t in range(7): a(f"v_cvt_pk_bf16_f32 v{EE+t}, 0, v{EE+t}")
    M2 = W2 if mr else U
    a(f"v_mul_f32 v{ACC2}, v{M2}, v{EE}")
    a(f"v_mul_f32 v{AA}, v{M2+1}, v{EE+1}")
    for t in range(2, 7): a(f"v_fmac_f32 v{ACC2 if t % 2 == 0 else AA}, v{M2+t}, v{EE+t}")
    a(f"v_add_f32 v{ACC2}, v{ACC2}, v{AA}")
    for n in (8, 4, 2, 1): a(f"v_add_f32_dpp v{ACC2}, v{ACC2}, v{ACC2} row_ror:{n} row_mask:0xf bank_mask:0xf")
    swaps_add(ACC2, AA)
    a(f"""
s_mov_b64 exec, 1
ds_write_b32 v{YA}, v{ACC2} offset:{YP}
s_mov_b64 exec, -1
v_add_u32 v{YA}, 4, v{YA}
L_last:
s_setpc_b64 s[80:81]
""")
    body = a.render()
    if "allsc1st" in dbg:
        import re
        body = re.sub(r"(buffer_store_dwordx[24] v\[\d+:\d+\], v\d+, s\[52:55\], s(6|72) offen( offset:128)?)\n", r"\1 sc1\n", body)
    if "allsc1ld" in dbg:
        import re
        body = re.sub(r"(buffer_load_dwordx4 v\[\d+:\d+\], v\d+, s\[52:55\], s[67] offen( offset:\d+)?) nt\n", r"\1 sc1\n", body)
    txt = HDR + f"""; @launch grid=(256,1,1) block=(512,1,1) lds={LDSZ}
.amdgcn_target "amdgcn-amd-amdhsa--gfx950"
; ---------------------------------------------------------------------------------------------------------
; out = x + (softmax(q K^T / sqrt(128)) V) Wo * silu(token_mlp(LN(LN(x)))),  q = LN(x) Wq.   One launch, 256 workgroups.
; Workgroup id = b*32 + split*8 + x : batch b, kv head x, quarter `split` of the 4096 cached tokens.
;  waves 0-3 (stream): read the K and V rows of this workgroup once (nt), scores by MFMA, true max + exp, P.V by MFMA.
;  waves 4-7 (helper): LN, a 128x64 tile of Wq (partials exchanged through d_ws), the token MLP gate for 16 output
;                      columns, softmax statistics exchange, partial-O hand-off (hop 1), a 128x64 tile of Wo,
;                      hand-off of the projected partial sums (hop 2), final sum / gate / residual / store.
; Hand-offs: every granule in d_ws carries this launch's tag (ws[0]+1; workgroup 0 stores the tag back at the end), so
;  words left by earlier launches or by the harness are never taken for data.  All polls are bounded.
; Placement: hop 2 and the clock/vote words always use sc1 (memory-side) accesses.  The exchanges inside a group of 32
;  workgroups use plain stores only after the group has PROVEN (tagged table indexed by the hardware XCC id) that all
;  32 share one L2; otherwise they use sc1 stores/loads, so any placement gives the same result.
; Bandwidth sharing: HBM is saturated for the whole stream, and the launch ends with the slowest workgroup.  Each stream
;  wave compares its progress with the mean progress of all dies (clock values exchanged in d_ws, this launch only) and
;  keeps 4..12 loads in flight accordingly (behind: more, ahead: fewer).  This only selects s_waitcnt vmcnt depths;
;  nothing waits on the clock.  The s_memtime probe at the start picks which half of the hop-2 area is closer to its
;  readers (all workgroups read the same 16 votes, so they agree); either choice is correct.
; ---------------------------------------------------------------------------------------------------------
.text
.globl {KN}_kernel
.p2align 8
.type {KN}_kernel,@function
{KN}_kernel:
""" + body + f""".section .rodata,"a"
.p2align 6
.amdhsa_kernel {KN}_kernel
  .amdhsa_next_free_vgpr 256
  .amdhsa_next_free_sgpr 102
  .amdhsa_accum_offset 256
  .amdhsa_group_segment_fixed_size 0
  .amdhsa_kernarg_size 104
  .amdhsa_user_sgpr_count 2
  .amdhsa_user_sgpr_kernarg_segment_ptr 1
  .amdhsa_system_sgpr_workgroup_id_x 1
.end_amdhsa_kernel
"""
    open(fname, "w").write(txt)
if __name__ == "__main__":
    import glob, os
    for f in glob.glob("kp_*.s"): os.remove(f)
    gen("k1.s", mlp1=4, slp=0)
    kw = dict(prof=True, tailprof=True, mlp1=4, slp=0, rq=1, wolate=[5, 7, 9, 11])
    gen("kp_00.s", **kw)
    F = dict(wg=1, x=1, G=2, kx=24, a=64, b=-16, W=(4,6,12), d=6, C=3, CW=2)
    gen("kp_01.s", fc=F, **kw)
    gen("kp_02_nowork.s", fc=F, dbg="nok nosm nov", **kw)
    gen("kp_03_nosm.s", fc=F, dbg="nosm", **kw)
    gen("kp_04_nowq.s", fc=F, dbg="nowq", **kw)
    gen("kp_05_nowork_nowq.s", fc=F, dbg="nok nosm nov nowq", **kw)
    gen("kp_06_nowork_nowq_nomlp.s", fc=F, dbg="nok nosm nov nowq nomlp", **kw)
    gen("kp_07_nofc_nowork.s", dbg="nok nosm nov", **kw)
    gen("kp_08_nofc_nowork_nowq.s", dbg="nok nosm nov nowq", **kw)
```

```python
import gen
kw = dict(mlp1=2, slp=0, rq=1, wolate=[5, 7, 9, 11], palign=7, near=dict(nw=2), wotrig=203, wosw=1, t2=1, b3=1, wosl=1, h1e=(1,0,[4]), h1m=1, h2pre=("z", 64), wbar=1, own1=True)
F = dict(wg=1, x=0, G=2, kx=24, a=64, b=40, W=(4,6,12), d=5, C=3, CW=2, stop=0, tg=4, dl=3)
T6 = [4, 13, 22, 31, 40, 49]
P2 = [(12,-40),(8,-15),(6,15),(5,40),(4,0)]
def g(n, U=28, lv=P2, **kw2): gen.gen(n, fc={**F, "tt": dict(gl=2, notab=1, U=U, lv=lv), "ts": T6}, **{**kw, **kw2})
g("k13a.s"); g("k13_mixw.s", dbg="mixw"); g("k13_mixj.s", dbg="mixj"); g("k13_clean.s", clean=True)

g("k14a.s", mr=1); g("k14_mixw.s", dbg="mixw", mr=1); g("k14_mixj.s", dbg="mixj", mr=1); g("k14_clean.s", clean=True, mr=1)

g("k15a.s", mr=1, qf=1); g("k15_mixw.s", dbg="mixw", mr=1, qf=1); g("k15_mixj.s", dbg="mixj", mr=1, qf=1); g("k15_clean.s", clean=True, mr=1, qf=1)

K16 = dict(mr=1, qf=1, dry2=1)
g("k16a.s", **K16); g("k16_mixw.s", dbg="mixw", **K16); g("k16_mixj.s", dbg="mixj", **K16); g("k16_clean.s", clean=True, **K16)

g("k17a.s", mr=1, qf=1, cpf=1); g("k17b.s", mr=1, qf=1, cpf=1, dry2=1)

g("k17c.s", mr=1, qf=1, cpf=3, palign=0)
```

```python
import sys, struct, math
from asmlib import Asm
KN = "recurrent_scan__gqa_block_cached__mixer_token_mlp__decode"
def f32(x): return "0x%08x" % struct.unpack("<I", struct.pack("<f", x))[0]
LOG2E = 1.4426950408889634
FLG = 0; QL = 64; ST = QL + 1024; YP = ST + 128; OP = YP + 256; XN = OP + 4 * 2304; XRS = 1040; WQL = XN + 8 * XRS; KL = WQL + 32768
QOFF = 64 << 10; H1OFF = QOFF + (1 << 20); H1S = 4224; H2OFF = H1OFF + (640 << 10); BD = 4 << 20; PGOFF = 8 << 10; LOCOFF = 32 << 10; STAMP = 128 << 20
HDR = open("cdna_kernels/" + KN + ".s.ref").read().split("; Override launch")[0]

def gen(fname, WIN=6, G=2, RING=40, prof=False, wo_thr=4, ntw="", woflags="", spin=400000, dbg="", WPS=1, dry=False, tailprof=False, NLT=6, slp=2, wqdma=True, sprio=2, bgprio=0, mlp1=8, local=True, fb=31, deferB=True, pretouch=False, pat=None, pat2=None, rot=None, cmap=0, light=False, lslp=0, h1fl='nt', h2sync=True, fc=None, est=None, rq=0, ro=0, sE=True, wolate=None, n0=64, pipe1=1, pipe2=1, stag1=3, stag2=3, h2late=True, h2ack=True, h2pre=False, h2full=False, slp2=0, dbgt=False, dirty=0, clean=False, qslp=None, nloc=200, tmap=(14, 16, None), wotrig=None, wothr=2, wosl=2, womid=True, palign=0, defer=None, h2off=None, tlbw=False, near=None, endwait=False, lastopt=True, pkc=True, warm='', hdel=0, wqdel=0, dp=False, dpt='c3', dpf=4, dpw=0, dpc=6, dpfl="nt", dpp=0, hp=3, hp2=None, h1e=None, wosw=False, t2=False, prew=True, b3=False, wodl=None, t3=False, h1m=0, h2fl='sc1', h2e=False, h2sf='sc1', qprew=False, trot=None, trotw=0, wbar=0, own1=False, lbar=False, fin=0, mr=0, qf=0, dry2=0, cpf=0):
    if fin: assert h2late and not h2e
    if lbar: h2late = False; h2sync = False
    if t3: t2 = True; h2late = False; h2sync = False; assert womid and wotrig is not None
    if t2: assert not dp and lastopt and wosw and not h2full and pkc and not defer
    if dp: assert fc and tmap[2] is None and wotrig is not None and wotrig >= 200
    H2OFF = (576 << 10) if h2off is None else h2off
    MEAS = 48 << 10; CWOFF = 16 << 10
    a = Asm()
    LDSZ = KL + 4 * NLT * 4096
    NLL = 4 * NLT
    NST = 8
    def stamp(i):
        if prof: a(f"s_memrealtime s[{84+2*i}:{85+2*i}]")
    stamp(0)
    if dbgt: a("s_memrealtime s[84:85]\ns_memtime s[86:87]")
    if cpf == 4:
        assert tmap == (14, 16, None) and not trot and not trotw and rot is None
        a(f"""
s_load_dwordx2 s[44:45], s[0:1], 8
v_lshrrev_b32 v2, 6, v0
s_lshr_b32 s53, s2, 5
v_and_b32 v1, 63, v0
v_readfirstlane_b32 s3, v2
s_cmp_ge_u32 s53, 8
s_cbranch_scc1 L_end
s_cmp_ge_u32 s3, 4
s_cbranch_scc1 L_hstub
s_lshl_b32 s46, 1, 26
s_lshl_b32 s47, 1, 17
s_and_b32 s52, s2, 7
s_lshl3_add_u32 s52, s53, s52
s_lshl_b32 s52, s52, 20
s_and_b32 s53, s2, 24
s_lshl1_add_u32 s53, s3, s53
s_lshl_b32 s53, s53, 11
s_or_b32 s52, s52, s53
s_mul_i32 s60, s3, {NLT*4096}
s_add_u32 s60, s60, {KL}
s_mov_b32 m0, s60
v_lshrrev_b32 v5, 4, v1
v_bfe_u32 v6, v1, 2, 2
v_and_b32 v7, 3, v1
v_lshlrev_b32 v2, 8, v6
v_lshl_add_u32 v2, v5, 6, v2
v_lshl_add_u32 v2, v7, 4, v2
""")
    else: a(f"""
s_load_dwordx2 s[44:45], s[0:1], 8
s_load_dwordx2 s[48:49], s[0:1], 16
v_lshrrev_b32 v2, 6, v0
s_cmp_ge_u32 s2, 256
v_and_b32 v1, 63, v0
v_readfirstlane_b32 s3, v2
s_cbranch_scc1 L_end
s_cmp_ge_u32 s3, 4
s_cbranch_scc1 {"L_hstub" if cpf else "L_helper"}
""")
    if cpf != 4: a(f"""
s_setprio {sprio}
s_mov_b32 s46, 0x4000000
s_mov_b32 s47, 0x20000
s_and_b32 s52, s2, 7
s_lshl_b32 s52, s52, 20
s_lshr_b32 s53, s2, 5
s_lshl_b32 s53, s53, 23
s_or_b32 s52, s52, s53
s_bfe_u32 s53, s2, 0x20003
s_lshl_b32 s53, s53, {tmap[0]}
s_or_b32 s52, s52, s53
s_lshl_b32 s53, s3, 12
s_or_b32 s52, s52, s53
s_mul_i32 s60, s3, {NLT*4096}
s_add_u32 s60, s60, {KL}
v_lshrrev_b32 v5, 4, v1
v_bfe_u32 v6, v1, 2, 2
v_and_b32 v7, 3, v1
v_lshlrev_b32 v2, 8, v6
v_lshl_add_u32 v2, v5, 6, v2
v_lshl_add_u32 v2, v7, 4, v2
""")
    if trot: a(f"s_bfe_u32 s53, s2, {hex((trot[1] << 16) | trot[0])}\ns_lshl_b32 s53, s53, {trot[2]}\ns_xor_b32 s52, s52, s53")
    if trotw: a(f"s_lshl_b32 s53, s3, {trotw}\ns_xor_b32 s52, s52, s53")
    if tmap[2]: a(f"s_and_b32 s53, s2, 7\ns_lshl_b32 s53, s53, {tmap[2]}\ns_xor_b32 s52, s52, s53")
    def late_setup():
        a(f"""
{"" if fc and fc.get("tt", {}).get("notab") else "s_load_dwordx2 s[38:39], s[0:1], 88"}
s_load_dwordx2 s[40:41], s[0:1], 96
s_mov_b32 s50, 0x4000000
s_mov_b32 s51, 0x20000
v_lshlrev_b32 v3, 4, v1
""")
        if fc and fc.get("tt", {}).get("notab"): a(f"""
; schedule exchange: wave 0 of one workgroup per group publishes its clock at a few steps (slot = id&7)
s_lshr_b32 s64, s2, 3
s_cmp_eq_u32 s3, 0
s_cselect_b32 s64, s64, 64
s_and_b32 s65, s2, 7
s_lshl_b32 s65, s65, 3
v_mov_b32 v83, s65
{"s_mov_b64 s[82:83], 0" if prof else ""}
{"s_cselect_b64 vcc, 1, 0" if fc.get("vw") else ""}
s_waitcnt lgkmcnt(0)
s_load_dword s73, s[40:41], 0
s_mov_b32 s76, s40
s_mov_b32 s77, s41
s_mov_b32 s78, 0x10000000
s_mov_b32 s79, 0x20000
""")
        elif fc: a(f"""
s_lshr_b32 s64, s2, 3
s_cmp_eq_u32 s3, 0
s_cselect_b32 s64, s64, 64
s_and_b32 s65, s2, 7
s_lshl_b32 s63, s65, 3
s_lshl_b32 s65, s65, {3 if fc.get("ts") else 2}
v_mov_b32 v83, s65
s_mov_b32 s62, {fc.get('l0', 0)}
s_mov_b64 s[82:83], 0
s_getreg_b32 s66, hwreg(HW_REG_XCC_ID, 0, 3)
s_lshl_b32 s66, s66, 5
s_lshr_b32 s67, s2, 3
s_add_u32 s67, s67, s66
v_mov_b32 v88, s67
v_and_b32 v87, 7, v1
v_lshl_add_u32 v87, v87, 2, s66
s_mov_b32 s74, 0
s_mov_b32 s75, 0
s_cmp_eq_u32 s3, 0
s_cselect_b64 vcc, 1, 0
s_waitcnt lgkmcnt(0)
s_load_dword s73, s[40:41], 0
s_mov_b32 s76, s40
s_mov_b32 s77, s41
s_mov_b32 s78, 0x10000000
s_mov_b32 s79, 0x20000
s_mov_b32 s12, s38
s_mov_b32 s13, s39
s_mov_b32 s14, 256
s_mov_b32 s15, 0x20000
""")
    RB = 256 - RING * 4
    def rreg(n): return RB + ((n - NLL) % RING) * 4
    NL = 128
    st = {"tile": None}
    def stub(): a(f"""
s_branch L_go
L_hstub:
; one helper wave per workgroup reads a quarter of this kernel's code as data, so later instruction fetches find it in L2
{"s_bfe_u32 s4, s2, 0x20003" if cpf != 2 else ""}
{"s_add_u32 s4, s4, 4" if cpf != 2 else ""}
{"s_cmp_lg_u32 s4, s3" if cpf != 2 else ""}
{"s_cbranch_scc1 L_helper" if cpf != 2 else ""}
s_getpc_b64 s[4:5]
L_pc:
v_lshlrev_b32 v2, 7, v0
s_sub_u32 s4, s4, 32768+L_pc-{KN}_kernel
s_subb_u32 s5, s5, 0
v_min_u32 v2, 32768+L_last-{KN}_kernel, v2
global_load_dword v255, v2, s[4:5]
s_branch L_helper
""")
    def stub4(): a(f"""
s_branch L_go
L_hstub:
; one helper wave per workgroup reads a quarter of this kernel's code as data, so later instruction fetches find it in L2
s_lshr_b32 s4, s2, 3
s_xor_b32 s4, s4, s3
s_and_b32 s4, s4, 3
s_cbranch_scc1 L_helper
s_getpc_b64 s[4:5]
L_pc:
v_lshlrev_b32 v2, 7, v0
v_add_u32 v2, -32768, v2
v_min_u32 v2, L_last-L_pc, v2
global_load_dword v255, v2, s[4:5]
s_branch L_helper
L_go:
s_setprio {sprio}
s_load_dwordx2 s[48:49], s[0:1], 16
""")
    def issue(n):
        isv = n >= 64; t = (n & 63) >> 2; q = n & 3
        if cpf == 4 and n < 4:
            if n == 0:
                a("s_waitcnt lgkmcnt(0)")
                if st.get("ks"): stamp(7)
            st["tile"] = (isv, t)
            a(f"buffer_load_dwordx4 v2, s[44:47], s52 offen offset:{q*1024} nt lds"); return
        if cpf == 4 and n == 4:
            st["tile"] = (isv, t)
            a(f"s_add_u32 m0, s60, {t*4096}\ns_xor_b32 s53, s52, {t << tmap[1]}")
        if st["tile"] != (isv, t):
            st["tile"] = (isv, t)
            if tmap: a(f"s_xor_b32 s53, s52, {t << tmap[1]}")
            elif rot is None: a(f"s_add_u32 s53, s52, {t*16384}")
            else: a(f"s_add_u32 s53, s61, {t*16384}\ns_and_b32 s53, s53, 0x3ffff\ns_add_u32 s53, s53, s52")
            if n < NLL: a(f"s_add_u32 m0, s60, {t*4096}\ns_nop 0")
            if n == 0:
                if cpf in (1, 2): stub()
                if palign: a(f".p2align {palign}")
                if cpf in (1, 2): a("L_go:")
                a("s_waitcnt lgkmcnt(0)")
                if st.get("ks"): stamp(7)
        if n < NLL:
            a(f"buffer_load_dwordx4 v2, s[44:47], s53 offen offset:{q*1024} nt lds"); return
        r = rreg(n)
        a(f"buffer_load_dwordx4 v[{r}:{r+3}], {'v3' if isv else 'v2'}, {'s[48:51]' if isv else 's[44:47]'}, s53 offen offset:{q*1024} nt")
    TSR = 6
    QB = 8; Y = 12; ACC = 28; DT = 28; TT = 44; PT = 60; PA = 76; M = 80
    def setup_consts():
        a(f"""
s_mov_b32 s54, 0x05040100
s_mov_b32 s55, 0x07060302
s_mov_b32 s56, {f32(128**-0.5)}
s_mov_b32 s57, {f32(LOG2E)}
v_lshlrev_b32 v4, 8, v7
v_lshl_add_u32 v4, v5, 6, v4
v_lshl_add_u32 v4, v6, 4, v4
v_mov_b32 v84, 0
v_add_u32 v86, s60, v3
""")
    def wait_q():
        stamp(1)
        if "noq" in dbg:
            a(f"ds_read_b128 v[{QB}:{QB+3}], v4 offset:{QL}\ns_waitcnt lgkmcnt(0)"); stamp(2); return
        a(f"""
s_mov_b32 s58, {spin*8}
L_sq:
ds_read_b32 v85, v84 offset:{FLG+4}
s_waitcnt lgkmcnt(0)
v_readfirstlane_b32 s59, v85
s_sub_u32 s58, s58, 1
s_cbranch_scc1 L_sq_done
s_cmp_ge_u32 s59, 4
s_cbranch_scc1 L_sq_done
s_sleep 1
s_branch L_sq
L_sq_done:
ds_read_b128 v[{QB}:{QB+3}], v4 offset:{QL}
{f"ds_read_b32 v85, v84 offset:{FLG+32}" if dp else ""}
s_waitcnt lgkmcnt(0)
{"v_readfirstlane_b32 s42, v85" if dp else ""}
""")
        stamp(2)
        if prof: a("s_waitcnt lgkmcnt(0)")
    def ktile(t):
        if t < NLT:
            for q in range(4): a(f"ds_read_b128 v[{PT+4*q}:{PT+4*q+3}], v86 offset:{t*4096+q*1024}")
        for q in range(4):
            r = rreg(4 * t + q) if t >= NLT else PT + 4 * q
            if t < NLT: a(f"s_waitcnt lgkmcnt({3-q})")
            a(f"v_mfma_f32_16x16x32_bf16 v[{DT+4*q}:{DT+4*q+3}], v[{r}:{r+3}], v[{QB}:{QB+3}], 0")
        for c in range(4):
            for r in range(4):
                n = 4 * ((c - r) % 4)
                ctl = f"row_ror:{n}" if n else "quad_perm:[0,1,2,3]"
                a(f"v_mov_b32_dpp v{TT+r}, v{DT+4*c+r} {ctl} row_mask:0xf bank_mask:{hex(1<<c)}")
        y = Y + t
        a(f"""
v_add_f32 v{TT}, v{TT}, v{TT+1}
v_add_f32 v{TT+2}, v{TT+2}, v{TT+3}
v_add_f32 v{y}, v{TT}, v{TT+2}
v_cvt_pk_bf16_f32 v{y}, v{y}, v{y}
v_lshlrev_b32 v{y}, 16, v{y}
v_mul_f32 v{y}, s56, v{y}
v_cvt_pk_bf16_f32 v{y}, v{y}, v{y}
v_lshlrev_b32 v{y}, 16, v{y}
""")
    def xlane(op, r, t):
        a(f"""
{op}_dpp v{r}, v{r}, v{r} row_ror:4 row_mask:0xf bank_mask:0xf
""") if op != "v_add_f32" else a(f"""
v_add_f32_dpp v{r}, v{r}, v{r} row_ror:4 row_mask:0xf bank_mask:0xf
""")
        a(f"""
{op}_dpp v{r}, v{r}, v{r} row_ror:8 row_mask:0xf bank_mask:0xf
v_mov_b32 v{t}, v{r}
v_permlane16_swap_b32 v{r}, v{t}
{op} v{r}, v{r}, v{t}
v_mov_b32 v{t}, v{r}
v_permlane32_swap_b32 v{r}, v{t}
{op} v{r}, v{r}, v{t}
""")
    def softmax():
        m = M; l = M + 1; t = M + 2
        a(f"v_max3_f32 v{m}, v{Y}, v{Y+1}, v{Y+2}")
        for i in range(3, 15, 2): a(f"v_max3_f32 v{m}, v{m}, v{Y+i}, v{Y+i+1}")
        a(f"v_max_f32 v{m}, v{m}, v{Y+15}")
        xlane("v_max_f32", m, t)
        a(f"v_mul_f32 v{m}, s57, v{m}")
        for i in range(16): a(f"v_fma_f32 v{Y+i}, v{Y+i}, s57, -v{m}")
        for i in range(16): a(f"v_exp_f32 v{Y+i}, v{Y+i}")
        a(f"v_add_f32 v{l}, v{Y}, v{Y+1}")
        a(f"v_add_f32 v{t}, v{Y+2}, v{Y+3}")
        for i in range(4, 16, 2):
            a(f"v_add_f32 v{l}, v{l}, v{Y+i}")
            a(f"v_add_f32 v{t}, v{t}, v{Y+i+1}")
        a(f"v_add_f32 v{l}, v{l}, v{t}")
        for v in range(8): a(f"v_cvt_pk_bf16_f32 v{Y+v}, v{Y+2*v}, v{Y+2*v+1}")
        if t2:
            for i in range(16): a(f"v_mov_b32 v{PA4+i}, 0")
        xlane("v_add_f32", l, t)
        a(f"""
s_lshl_b32 s59, s3, 5
v_lshl_add_u32 v{t}, v1, 3, s59
s_mov_b64 exec, 15
ds_write_b64 v{t}, v[{m}:{m+1}] offset:{ST}
s_mov_b64 exec, 1
v_mov_b32 v{t}, 1
ds_add_u32 v84, v{t} offset:{FLG+16}
s_mov_b64 exec, -1
""")
    PA4 = 36
    def mkpa(v):
        if t2:
            for c in range(4):
                for p in range(4):
                    n = 4 * ((c - p) % 4)
                    a(f"v_mov_b32_dpp v{PA4+4*c+p}, v{Y+v} {f'row_ror:{n}' if n else 'quad_perm:[0,1,2,3]'} row_mask:0xf bank_mask:{hex(1<<c)}")
            return
        a(f"v_mov_b32 v{PA}, v{Y+v}")
        for p in (1, 2, 3):
            a(f"v_mov_b32_dpp v{PA+p}, v{Y+v} row_ror:{4*((0-p)%4)} row_mask:0xf bank_mask:0xf")
    def vchunk(v):
        mkpa(v)
        for half in range(2):
            for jj in range(4 * half, 4 * half + 4):
                o = PT + 4 * (jj & 3)
                for p in range(4):
                    lo = rreg(64 + 8 * v + p) + (jj >> 1); hi = rreg(64 + 8 * v + 4 + p) + (jj >> 1)
                    a(f"v_perm_b32 v{o+p}, v{hi}, v{lo}, {'s55' if jj & 1 else 's54'}")
            for jj in range(4 * half, 4 * half + 4):
                o = PT + 4 * (jj & 3); d = ACC + 4 * jj
                pa = PA
                if t2: d = ACC + 4 * half; pa = PA4 + 4 * (jj & 3)
                c = "0" if (v == 0 and (not t2 or jj & 3 == 0)) else f"v[{d}:{d+3}]"
                a(f"v_mfma_f32_16x16x32_bf16 v[{d}:{d+3}], v[{pa}:{pa+3}], v[{o}:{o+3}], {c}")
    def s_wait(lbl, off, cnt):
        a(f"""
s_mov_b32 s58, {spin*8}
{lbl}:
ds_read_b32 v85, v84 offset:{off}
s_waitcnt lgkmcnt(0)
v_readfirstlane_b32 s59, v85
s_sub_u32 s58, s58, 1
s_cbranch_scc1 {lbl}_done
s_cmp_lt_u32 s59, {cnt}
s_cbranch_scc1 {lbl}
{lbl}_done:
""")
    def s_sig(off): a(f"s_mov_b64 exec, 1\nv_mov_b32 v82, 1\nds_add_u32 v84, v82 offset:{off}\ns_mov_b64 exec, -1")
    AQ = [20, 24, 12, PA]
    def fitem(v0):
        T_ = PT
        s_wait("L_d1", FLG + 16, 4)
        a(f"""
v_and_b32 v4, 3, v1
v_lshlrev_b32 v4, 3, v4
ds_read_b32 v{T_}, v4 offset:{ST}
ds_read_b32 v{T_+1}, v4 offset:{ST+32}
ds_read_b32 v{T_+2}, v4 offset:{ST+64}
ds_read_b32 v{T_+3}, v4 offset:{ST+96}
v_lshlrev_b32 v4, 1, v4
v_lshrrev_b32 v10, 4, v1
v_lshl_add_u32 v4, v10, 6, v4
v_bfe_u32 v11, v1, 2, 2
v_lshl_add_u32 v4, v11, 2, v4
s_lshl_b32 s59, s3, 8
v_add_u32 v4, s59, v4
s_waitcnt lgkmcnt(0)
v_max3_f32 v{T_}, v{T_}, v{T_+1}, v{T_+2}
v_max_f32 v{T_}, v{T_}, v{T_+3}
v_sub_f32 v{T_}, v{M}, v{T_}
v_exp_f32 v{T_}, v{T_}
""")
        for v in range(v0, 8): a(f"v_lshlrev_b32 v{T_+8+2*(v-v0)}, 16, v{Y+v}\nv_and_b32 v{T_+9+2*(v-v0)}, 0xffff0000, v{Y+v}")
        for i in range(4): a(f"v_mov_b32_dpp v{T_+4+i}, v{T_} quad_perm:[{i},{i},{i},{i}] row_mask:0xf bank_mask:0xf")
        for v in range(v0, 8): a(f"v_pk_mul_f32 v[{T_+8+2*(v-v0)}:{T_+9+2*(v-v0)}], v[{T_+8+2*(v-v0)}:{T_+9+2*(v-v0)}], v[{T_}:{T_+1}] op_sel_hi:[1,0]")
        for v in range(v0, 8): a(f"v_cvt_pk_bf16_f32 v{Y+v}, v{T_+8+2*(v-v0)}, v{T_+9+2*(v-v0)}")
        a(f"ds_write_b32 v4, v{Y+7} offset:{QL}")
        s_sig(FLG + 44)
        for jj in range(8):
            d_ = ACC + 4 * jj
            a(f"v_pk_mul_f32 v[{d_}:{d_+1}], v[{d_}:{d_+1}], v[{T_+4}:{T_+5}]\nv_pk_mul_f32 v[{d_+2}:{d_+3}], v[{d_+2}:{d_+3}], v[{T_+6}:{T_+7}]")
        a(f"""
v_lshlrev_b32 v9, 6, v10
v_lshl_add_u32 v9, v11, 4, v9
s_lshl_b32 s59, s3, 2
v_add_u32 v4, s59, v11
v_mul_u32_u24 v4, 144, v4
v_lshl_add_u32 v4, v10, 2, v4
v_and_b32 v8, 3, v1
v_lshl_add_u32 v4, v8, 5, v4
v_mul_u32_u24 v10, {4*H1S}, v10
v_lshl_add_u32 v10, v11, 8, v10
v_bfe_u32 v8, v1, 1, 1
v_lshl_add_u32 v10, v8, 10, v10
v_and_b32 v8, 1, v1
v_lshl_add_u32 v10, v8, 3, v10
v_mov_b32 v11, v9
s_and_b32 s43, s2, 7
s_lshl_b32 s43, s43, 4
s_lshr_b32 s59, s2, 6
s_add_u32 s43, s43, s59
s_mul_i32 s43, s43, {H1S}
s_bfe_u32 s59, s2, 0x30003
s_lshl_b32 s59, s59, 4
s_add_u32 s43, s43, s59
s_lshr_b32 s59, s3, 1
s_lshl_b32 s59, s59, 7
s_add_u32 s43, s43, s59
s_and_b32 s59, s3, 1
s_lshl_b32 s59, s59, 11
s_add_u32 s43, s43, s59
s_add_u32 s43, s43, {H1OFF + 128}
s_mul_i32 s72, s73, 0x01010101
v_mov_b32 v9, s72
s_mul_i32 s59, s3, 2304
v_mul_u32_u24 v8, 144, v1
v_add_u32 v8, s59, v8
""")
    work = [("K", t, 4 * t + 3) for t in list(range(NLT, 16)) + list(range(NLT))] + [("S", 0, 63)] + [("V", v, 64 + 8 * v + 7) for v in range(8)]
    if dp: work.insert(17 + dpf, ("F", dpf, 0))
    consumed = NLL - 1
    wi = 0
    def do_work():
        nonlocal wi, consumed
        k, i, last = work[wi]
        if k == "K":
            if wi == 0: wait_q()
            if "nok" not in dbg: ktile(i)
            consumed = max(consumed, last)
        elif k == "S":
            if "nosm" in dbg: a(f"s_mov_b64 exec, 1\nv_mov_b32 v82, 1\nds_add_u32 v84, v82 offset:{FLG+16}\ns_mov_b64 exec, -1")
            else: softmax()
            stamp(3)
        elif k == "F": fitem(i)
        else:
            if "nov" not in dbg: vchunk(i)
            consumed = last
        wi += 1
    def ztouch():
        a("; prefetch this workgroup's hop-2 inbox lines into the memory-side cache (loaded values are not used)")
        a(f"s_lshl_b32 s4, s2, 2\ns_add_u32 s4, s4, s3\ns_lshl_b32 s4, s4, 9\ns_add_u32 s4, s4, {H2OFF}")
        for i in range(512 // h2pre[1]): a(f"s_load_dword s{16 + i}, s[40:41], s4 offset:{i * h2pre[1]}")
    issued = 0
    ops = []
    def iss(n):
        if dp == 1 and n >= 120:
            i = n - 120; u = i >> 1
            if n == 120: a(f"s_andn2_b32 s70, s52, 0x3000\nv_lshrrev_b32 v2, 4, v1\nv_lshlrev_b32 v2, 8, v2\nv_and_b32 v85, 15, v1\nv_lshl_add_u32 v2, v85, 2, v2\ns_lshl_b32 s59, s3, 6\nv_add_u32 v2, s59, v2")
            if i & 1 == 0: a(f"s_xor_b32 s53, s70, {(14 << tmap[1]) | (u << 12)}\ns_xor_b32 s61, s70, {(15 << tmap[1]) | (u << 12)}")
            for p in (2 * (i & 1), 2 * (i & 1) + 1):
                for hi in range(2):
                    a(f"buffer_load_dword v{rreg(120) + 8*u + 2*p + hi}, v2, s[48:51], s{61 if hi else 53} offen offset:{p*1024} {dpfl}")
                    ops.append(("L", n) if (p & 1 and hi) else ("s", n))
            return
        issue(n); ops.append(("L", n))
    def vm_for(X):
        li = [i for i, o in enumerate(ops) if o[0] == "L"]
        if len(li) <= X: return None
        p = li[len(li) - X - 1]
        return len(ops) - 1 - p, p
    if pat is None: pat = [(WIN, G)]
    if fc: pat = [(fc.get("w0", fc["W"][1]), fc["G"])]
    if est == [-1, -1]: stamp(5); st["ks"] = 1
    for n in range(pat[0][0]): iss(n)
    if est == [-1, -1]: stamp(6); est = [None, None]
    issued = pat[0][0]
    if cpf == 3: stub(); a("L_go:")
    if cpf == 4: stub4()
    late_setup()
    a("s_barrier")
    setup_consts()
    arrived = -1
    step = 0
    done_op = -1; nw = 0; ph = 0; nctl = 0; evalq = []; PAIRS = [88, 92, 94]; tagdone = False
    while issued < NL:
        pp = pat2 if (pat2 is not None and issued >= n0) else pat
        WIN, G = pp[step % len(pp)]; step += 1
        if not fc:
            if issued - (WIN - G) - 1 > arrived: a(f"s_waitcnt vmcnt({WIN-G})")
            arrived = max(arrived, issued - (WIN - G) - 1)
        else:
            Wl, Wm, Wh = fc["W"]
            opened = False
            for n_, W_ in fc.get("open", []):
                if issued >= n_: Wl, Wm, Wh = W_; opened = Wl == Wh
            while issued + G - 1 - RING > consumed and work[wi][2] > max(arrived, issued - (Wh - G) - 1): Wh -= 1; Wm = min(Wm, Wh); Wl = min(Wl, Wh)
            r = vm_for(Wh - G)
            if r and issued - (Wh - G) - 1 > arrived: a(f"s_waitcnt vmcnt({r[0]})"); done_op = max(done_op, r[1]); arrived = max(arrived, issued - (Wh - G) - 1)
            tt = fc.get("tt")
            if tt:
                if not st.get("ev"):
                    r_ = vm_for(min(tt.get("wp", Wm), Wh) - G)
                    if r_: a(f"s_waitcnt vmcnt({r_[0]}) ;nc")
                else:
                    if not st.get("sl"):
                        a(f"s_waitcnt lgkmcnt(0)\ns_add_u32 s68, s70, {round(tt['U'] * (step - 1))}\ns_sub_u32 s68, s68, s{st['cur']}"); st["ok"] |= st["pend"]; st["pend"] = set()
                    lv = tt["lv"]
                    for n_, l_ in tt.get("lv2", []):
                        if issued >= n_: lv = l_
                    pw = Wh
                    for i_ in range(len(lv) - 1):
                        w_ = min(lv[i_ + 1][0], Wh)
                        if w_ >= pw: continue
                        pw = w_
                        a(f"s_cmpk_lt_i32 s68, {lv[i_][1] & 0xffff} ;nc\ns_cbranch_scc1 L_fs{step} ;nc\ns_waitcnt vmcnt({vm_for(w_ - G)[0]}) ;nc")
                    a(f"L_fs{step}:")
                    if prof and tt.get("tr") and step in tt["tr"]: a("s_lshl_b64 s[82:83], s[82:83], 16\ns_and_b32 s69, s68, 0xffff\ns_or_b32 s82, s82, s69")
            elif not opened: a(f"""
s_cmp_eq_u32 s62, 2 ;nc
s_cbranch_scc1 L_fs{step} ;nc
s_waitcnt vmcnt({vm_for(Wm - G)[0]}) ;nc
s_cmp_eq_u32 s62, 0 ;nc
s_cbranch_scc1 L_fs{step} ;nc
s_waitcnt vmcnt({vm_for(Wl - G)[0]}) ;nc
L_fs{step}:
""")
        if est:
            for i_, e_ in enumerate(est):
                if e_ is not None and arrived >= e_: stamp(5 + i_); est[i_] = None
        g = min(G, NL - issued)
        while issued + g - 1 - RING > consumed:
            if work[wi][2] > arrived:
                assert not fc
                a(f"s_waitcnt vmcnt({issued - 1 - work[wi][2]})"); arrived = work[wi][2]
            do_work()
        for n in range(issued, issued + g): iss(n)
        if wotrig is not None and wotrig >= 0 and issued <= wotrig < issued + g:
            a(f"s_mov_b64 exec, 1\nv_mov_b32 v82, 1\nds_add_u32 v84, v82 offset:{FLG+28}\ns_mov_b64 exec, -1")
        if fc:
            d = fc["d"]; k0 = fc.get("k0", 2); last = (NL - fc.get("stop", 8) - fc["W"][1]) // G
            if step == k0:
                a("s_waitcnt lgkmcnt(0)\ns_add_u32 s73, s73, 1" + ("" if fc.get("tt", {}).get("notab") else "\nv_mov_b32 v90, s73"))
            if step == fc.get("vw"):
                a("s_mov_b64 exec, vcc\nbuffer_load_dword v91, v84, s[48:51], s52 offen nt\ns_mov_b64 exec, -1"); ops.append(("C", 0))
            if fc.get("wg"):
                tt = fc.get("tt")
                tab = step >= fc.get("kw", 4) and step % fc["CW"] == 0 and step <= last and not opened
                if tt and tt.get("notab"): tab = False
                if tt:
                    st.setdefault("ok", set()); st.setdefault("pend", set())
                    if step >= fc.get("kw", 4):
                        st["cur"] = [6, 8, 10, 34, 42][nw % 5] if tab else 4; assert len(evalq) < 5
                        if tab or not st.get("sl"):
                            a(f"s_memrealtime s[{st['cur']}:{st['cur']+1}]"); st["pend"].add(st["cur"]); st["ok"].discard(st["cur"])
                    if prof and step in tt.get("trt", []): stamp([5, 6, 7][tt["trt"].index(step)])
                for e in [e for e in evalq if e[0] <= done_op]:
                    evalq.remove(e)
                    if tt:
                        if e[2] > tt.get("kstop", 99): continue
                        if e[3] not in st["ok"]:
                            assert not st.get("sl"); a("s_waitcnt lgkmcnt(0)"); st["ok"] |= st["pend"]; st["pend"] = set()
                        a(f"v_sad_u8 v85, v{e[1]}, 0, 0\ns_mov_b32 s62, s{e[3]}\ns_call_b64 s[80:81], {'L_cw' if st.get('ev1') else 'L_cw0'}"); st["ev"] = 1; st["ev1"] = 1
                        if tt.get("gl") and not st.get("gx"): a("s_mov_b32 s70, s75")
                    else: a(f"v_sad_u8 v85, v{e[1]}, 0, 0\ns_movk_i32 s68, {32 * e[2]}\ns_call_b64 s[80:81], L_cw")
                if tab and tt and step > tt.get("kstop", 99):
                    a(f"v_mov_b32 v89, {step}\ns_mov_b64 exec, vcc\nbuffer_store_byte v89, v88, s[12:15], 0 offen\ns_mov_b64 exec, -1"); ops.append(("S", 0))
                elif tab:
                    r_ = [91, 92, 93, 94, 95, 86 if NLT == 0 else 5][nw % 6]; nw += 1; assert len(evalq) < 6
                    a(f"""
v_mov_b32 v89, {step}
s_mov_b64 exec, vcc
buffer_store_byte v89, v88, s[12:15], 0 offen
s_mov_b64 exec, -1
buffer_load_dword v{r_}, v87, s[12:15], 0 offen nt
""")
                    ops.append(("S", 0)); ops.append(("C", 0)); evalq.append((len(ops) - 1, r_, step, st.get("cur")))
            if fc.get("ts"):
                for i_, k_ in enumerate(fc["ts"]):
                    if step == k_ - 1 and not fc.get("tt"): a("s_memrealtime s[34:35]")
                    if step == k_:
                        if not fc.get("tt"): a("s_waitcnt lgkmcnt(0)\ns_add_u32 s34, s34, s75\nv_mov_b32 v{TSR}, s34".replace("{TSR}", str(TSR)))
                        elif st.get("ev1"): a(f"s_add_u32 s65, s75, {round(fc['tt']['U'] * step)}\nv_mov_b32 v{TSR}, s65")
                        else:
                            a(f"s_waitcnt lgkmcnt(0)\nv_mov_b32 v{TSR}, s{st['cur']}"); st["ok"] |= st["pend"]; st["pend"] = set()
                            if fc["tt"].get("gl") == 2 and i_ == 0: a(f"s_sub_u32 s70, s{st['cur']}, {round(fc['tt']['U'] * step)}")
                        a(f"""
v_mov_b32 v97, s73
s_movk_i32 s65, {PGOFF + i_ * 256}
s_cmp_eq_u32 s64, {(5 * i_ + 3) % 32}
s_cselect_b64 exec, 1, 0
buffer_store_dwordx2 v[96:97], v83, s[76:79], s65 offen sc1
s_mov_b64 exec, -1
""".replace("v96", f"v{TSR}").replace("v97", f"v{TSR+1}").replace("v[96:97]", f"v[{TSR}:{TSR+1}]"))
                        ops.append(("S", 0))
                    if step == k_ + d:
                        a(f"s_load_dwordx16 s[16:31], s[40:41], {PGOFF + i_ * 256}\ns_load_dwordx2 s[32:33], s[40:41], s63 offset:{PGOFF + i_ * 256}\ns_memrealtime s[36:37]" if fc.get("tt", {}).get("gl") != 2 else f"s_load_dwordx16 s[16:31], s[40:41], {PGOFF + i_ * 256}"); st["sl"] = 1
                    if step == k_ + d + fc.get("dl", 3):
                        if fc.get("tt", {}).get("gl"):
                            a(f"s_movk_i32 s62, {round(fc['tt']['U'] * k_)}\ns_call_b64 s[80:81], {'L_cx' if st.get('gx') or not fc['tt'].get('gsm') else 'L_cx0'}"); st["gx"] = 1; st["ev"] = 1
                        else: a("s_call_b64 s[80:81], L_cx")
                        st["sl"] = 0
                        if wodl is not None and i_ == len(fc["ts"]) - 1:
                            a(f"s_add_u32 s69, s70, {round(fc['tt']['U'] * ((NL - pat[0][0]) // G)) + wodl}\ns_mov_b64 exec, 1\nv_mov_b32 v82, s69\nds_write_b32 v84, v82 offset:{FLG+48}\ns_mov_b64 exec, -1")
                        if fc.get("tt"):
                            st["ok"] |= st["pend"]; st["pend"] = set()
                            if st["cur"] == 4: a("s_memrealtime s[4:5]"); st["pend"].add(4)
            if k0 <= step <= last - d and fc.get("x", 1):
                a(f"""
s_movk_i32 s65, {PGOFF + step * 256}
s_cmp_eq_u32 s64, {step % 32}
s_cselect_b64 exec, 1, 0
buffer_store_dword v90, v83, s[76:79], s65 offen sc1
s_mov_b64 exec, -1
""")
                ops.append(("S", 0))
            if step >= k0 + d and (step - k0 - d) % fc["C"] == 0:
                if nctl > 0: a("s_call_b64 s[80:81], L_cb"); nctl = 0
                if step <= last and fc.get("x", 1):
                    a(f"s_load_dwordx8 s[4:11], s[40:41], {PGOFF + (step - d) * 256}"); nctl = 1
        issued += g
        for _ in range(WPS):
            if wi < len(work) and work[wi][2] <= arrived and (wi > 0 or issued + G - 1 - RING > consumed):
                do_work()
    if "dpst" in dbg: stamp(5); print("drain work:", work[wi:])
    while wi < len(work):
        need_ = work[wi][2]
        if dp == 1 and wi == len(work) - 1:
            if "dpst" in dbg: stamp(6)
            if dpt == "a": s_sig(FLG + 28)
            a("s_mov_b64 exec, 0xffff")
            for jj in range(8): a(f"ds_write_b128 v8, v[{ACC+4*jj}:{ACC+4*jj+3}] offset:{OP+16*jj}")
            s_sig(FLG + 36)
            s_wait("L_d3", FLG + 44, 4)
            for u in range(4): a(f"ds_read_b128 v[{AQ[u]}:{AQ[u]+3}], v11 offset:{QL+256*u}")
            if dpt == "b": s_sig(FLG + 28)
            R0 = rreg(120)
            def dperm(u, p):
                a(f"v_perm_b32 v{PT+8*(u&1)+p}, v{R0+8*u+2*p+1}, v{R0+8*u+2*p}, s54\nv_perm_b32 v{PT+8*(u&1)+4+p}, v{R0+8*u+2*p+1}, v{R0+8*u+2*p}, s55")
            for i in range(8):
                u = i >> 1
                if i == dpc:
                    s_wait("L_d2", FLG + 36, 4)
                    for u_ in range(4): a(f"ds_read_b32 v{36+2*u_}, v4 offset:{OP+2304*u_}\nds_read_b32 v{37+2*u_}, v4 offset:{OP+2304*u_+16}")
                    if "dpst" in dbg: stamp(7)
                if i == 7: a("s_waitcnt lgkmcnt(0)\nv_pk_add_f32 v[36:37], v[36:37], v[38:39]\nv_pk_add_f32 v[40:41], v[40:41], v[42:43]\nv_pk_add_f32 v[36:37], v[36:37], v[40:41]")
                if i < 7:
                    a(f"s_waitcnt vmcnt({vm_for(7 - i)[0]})")
                    if dpt == f"c{7 - i}": s_sig(FLG + 28)
                    dperm(u, 2 * (i & 1)); dperm(u, 2 * (i & 1) + 1)
                else:
                    a("s_waitcnt vmcnt(2)"); dperm(u, 2); a("s_cmp_lg_u32 s42, 0\ns_waitcnt vmcnt(0)"); dperm(u, 3)
                if i == 1: a("s_waitcnt lgkmcnt(0)")
                if i & 1:
                    for e in range(2): a(f"v_mfma_f32_16x16x32_bf16 v[{28+4*e}:{31+4*e}], v[{AQ[u]}:{AQ[u]+3}], v[{PT+8*(u&1)+4*e}:{PT+8*(u&1)+4*e+3}], {f'v[{28+4*e}:{31+4*e}]' if u else '0'}")
            a("v_add_f32 v28, v28, v36\nv_add_f32 v32, v32, v37")
            assert ops[-1] == ("L", 127)
            a(f"""
v_cvt_pk_bf16_f32 v8, v28, v32
s_cbranch_scc1 L_dp_far
buffer_store_dwordx2 v[8:9], v10, s[76:79], s43 offen
L_dp_done:
""")
            stamp(4)
            if dpw: s_sig(FLG + 40)
            break
        if wi == len(work) - 1 and wotrig is not None and wotrig >= 200:
            a(f"s_waitcnt vmcnt({vm_for(wotrig - 200)[0]})")
            if defer:
                a(f"s_cmp_gt_i32 s75, {defer[0]}\ns_cselect_b32 s59, 0x101, 1\ns_mov_b64 exec, 1\nv_mov_b32 v82, s59\nds_add_u32 v84, v82 offset:{FLG+28}")
                if defer[2] > 60:
                    a("v_mov_b32 v89, 62\ns_mov_b64 exec, vcc\nbuffer_store_byte v89, v88, s[12:15], 0 offen"); ops.append(("S", 0))
                a("s_mov_b64 exec, -1")
            else: a(f"s_mov_b64 exec, 1\nv_mov_b32 v82, 1\nds_add_u32 v84, v82 offset:{FLG+28}\ns_mov_b64 exec, -1")
        if wi == len(work) - 1 and lastopt and "nov" not in dbg:
            v = 7; OB = rreg(112)
            def lp(p, jj): a(f"v_perm_b32 v{OB+4*jj+p}, v{rreg(124+p)+(jj>>1)}, v{rreg(120+p)+(jj>>1)}, {'s55' if jj & 1 else 's54'}")
            def lm(jj): a(f"v_mfma_f32_16x16x32_bf16 v[{ACC+4*jj}:{ACC+4*jj+3}], v[{PA}:{PA+3}], v[{OB+4*jj}:{OB+4*jj+3}], v[{ACC+4*jj}:{ACC+4*jj+3}]")
            def lw(jj): a(f"ds_write_b128 v{8 if dp else 4}, v[{ACC+4*jj}:{ACC+4*jj+3}] offset:{OP+16*jj}")
            if t2:
                def lm(jj): a(f"v_mfma_f32_16x16x32_bf16 v[{ACC+4*(jj>>2)}:{ACC+4*(jj>>2)+3}], v[{PA4+4*(jj&3)}:{PA4+4*(jj&3)+3}], v[{OB+4*jj}:{OB+4*jj+3}], v[{ACC+4*(jj>>2)}:{ACC+4*(jj>>2)+3}]")
                a(f"s_lshl_b32 s59, s3, 11\nv_add_u32 v4, s59, v3")
            elif not dp: a(f"s_mul_i32 s59, s3, 2304\nv_mul_u32_u24 v4, 144, v1\nv_add_u32 v4, s59, v4")
            a("v_mov_b32 v82, 1"); mkpa(v)
            if h2pre and h2pre is not True and h2pre[0] == "y": ztouch()
            for p in range(3):
                a(f"s_waitcnt vmcnt({vm_for(3 - p)[0]})")
                for jj in range(8): lp(p, jj)
            a("s_waitcnt vmcnt(0)")
            if dpp: a(f"s_setprio {dpp}")
            lp(3, 0); lp(3, 1)
            for jj in range(6): lp(3, jj + 2); lm(jj)
            stamp(4)
            if t2:
                lm(6); lm(7)
                a(f"ds_write_b128 v4, v[{ACC}:{ACC+3}] offset:{OP}\nds_write_b128 v4, v[{ACC+4}:{ACC+7}] offset:{OP+1024}")
            else:
                a("s_mov_b64 exec, 0xffff"); lw(0); lm(6); lw(1); lm(7)
                for jj in range(2, 8): lw(jj)
            if dp:
                a(f"""
s_mov_b64 exec, 1
ds_add_u32 v84, v82 offset:{FLG+36}
s_mov_b64 exec, -1
s_mov_b32 s58, {spin*8}
L_d2:
ds_read_b32 v85, v84 offset:{FLG+36}
""")
                for u_ in range(4): a(f"ds_read_b32 v{PT+2*u_}, v4 offset:{OP+2304*u_}\nds_read_b32 v{PT+1+2*u_}, v4 offset:{OP+2304*u_+16}")
                a(f"""
s_waitcnt lgkmcnt(8)
v_readfirstlane_b32 s59, v85
s_sub_u32 s58, s58, 1
s_cbranch_scc1 L_d2_done
s_cmp_lt_u32 s59, 4
s_cbranch_scc1 L_d2
L_d2_done:
s_cmp_lg_u32 s42, 0
s_waitcnt lgkmcnt(4)
v_pk_add_f32 v[{PT}:{PT+1}], v[{PT}:{PT+1}], v[{PT+2}:{PT+3}]
s_waitcnt lgkmcnt(0)
v_pk_add_f32 v[{PT+4}:{PT+5}], v[{PT+4}:{PT+5}], v[{PT+6}:{PT+7}]
v_pk_add_f32 v[{PT}:{PT+1}], v[{PT}:{PT+1}], v[{PT+4}:{PT+5}]
v_cvt_pk_bf16_f32 v8, v{PT}, v{PT+1}
s_cbranch_scc1 L_dp_far
buffer_store_dwordx2 v[8:9], v10, s[76:79], s43 offen
L_dp_done:
""")
                if est: stamp(7)
                if dpw: s_sig(FLG + 40)
            break
        if need_ > arrived:
            r = vm_for(NL - 1 - need_) if fc else (NL - 1 - need_,)
            a(f"s_waitcnt vmcnt({r[0]})"); arrived = need_
        do_work()
    else:
        stamp(4)
        a(f"""
s_mul_i32 s59, s3, 2304
v_mul_u32_u24 v4, 144, v1
v_add_u32 v4, s59, v4
s_mov_b64 exec, 0xffff
""")
        for jj in range(8):
            a(f"ds_write_b128 v4, v[{ACC+4*jj}:{ACC+4*jj+3}] offset:{OP+16*jj}")
    if not dp: a("""
s_mov_b64 exec, -1
s_waitcnt lgkmcnt(0)
s_barrier
""")
    if h2pre and h2pre is not True and h2pre[0] == "z": ztouch()
    if t3: a("s_barrier")
    if wbar: a("s_barrier")
    if lbar: a("s_barrier")
    if dirty:
        a(f"""
s_mov_b32 s44, s40
s_mov_b32 s45, s41
s_mov_b32 s46, 0x10000000
s_mov_b32 s47, 0x20000
s_lshl_b32 s59, s2, 2
s_add_u32 s59, s59, s3
s_mul_i32 s59, s59, {dirty*1024}
s_add_u32 s59, s59, {64 << 20}
s_sleep 64
""")
        for i in range(dirty): a(f"buffer_store_dwordx4 v[28:31], v3, s[44:47], s59 offen\ns_add_u32 s59, s59, 1024")
    if prof:
        a(f"""
s_mov_b32 s44, s40
s_mov_b32 s45, s41
s_mov_b32 s46, 0x10000000
s_mov_b32 s47, 0x20000
s_sleep 127
s_sleep 127
s_sleep 127
s_waitcnt lgkmcnt(0)
s_lshl_b32 s59, s2, 3
s_add_u32 s59, s59, s3
s_lshl_b32 s59, s59, 6
s_add_u32 s59, s59, {STAMP}
v_mov_b32 v4, 0
s_mov_b64 exec, 1
""")
        for i in range(8):
            trt = fc and fc.get("tt", {}).get("trt")
            sr = 82 if (i == 5 and fc and not est and not trt) else 84 + 2 * (i if est or trt else min(i, 4))
            a(f"v_mov_b32 v8, s{sr}\nv_mov_b32 v9, s{sr+1}\nbuffer_store_dwordx2 v[8:9], v4, s[44:47], s59 offen offset:{8*i}\ns_waitcnt vmcnt(0)")
    a("s_endpgm")
    if dp: a("L_dp_far:\nbuffer_store_dwordx2 v[8:9], v10, s[76:79], s43 offen sc1\ns_branch L_dp_done")
    X = 32
    S1 = 12; S2 = 13; T0 = 14; T1 = 15; NM = 16; RS = 18
    W1 = 40; B1 = 47; W2 = 54; HX = 62; U = 66; AA = 73; EE = 80; ACC2 = 87; C1 = 88; YA = 89
    WB = 192
    def srd(base, lo, size): a(f"s_mov_b32 s{base}, s{lo}\ns_mov_b32 s{base+1}, s{lo+1}\ns_mov_b32 s{base+2}, {size}\ns_mov_b32 s{base+3}, 0x20000")
    def bfround(r): a(f"v_cvt_pk_bf16_f32 v{r}, v{r}, v{r}\nv_lshlrev_b32 v{r}, 16, v{r}")
    def stats_finish():
        a(f"""
v_mul_f32 v{S1}, {f32(1/512)}, v{S1}
v_mul_f32 v{S2}, {f32(1/512)}, v{S2}
v_fma_f32 v{S2}, -v{S1}, v{S1}, v{S2}
v_max_f32 v{S2}, 0, v{S2}
""")
        bfround(S1); bfround(S2)
        a(f"v_add_f32 v{S2}, {f32(1e-5)}, v{S2}")
        bfround(S2)
        a(f"v_sqrt_f32 v{S2}, v{S2}")
        bfround(S2)
        a(f"""
v_rcp_f32 v{RS}, v{S2}
v_sub_f32 v{NM}, 0, v{S1}
v_sub_f32 v{NM+1}, 0, v{S1}
v_mov_b32 v{RS+1}, v{RS}
""")
    def swaps_add(r, t):
        a(f"""
v_mov_b32 v{t}, v{r}
v_permlane16_swap_b32 v{r}, v{t}
v_add_f32 v{r}, v{r}, v{t}
v_mov_b32 v{t}, v{r}
v_permlane32_swap_b32 v{r}, v{t}
v_add_f32 v{r}, v{r}, v{t}
""")
    def normalize(src, dst, n, tmp):
        for i0 in range(0, n, 4):
            idx = list(range(i0, min(n, i0 + 4)))
            for i in idx:
                t = tmp + 2 * (i - i0)
                a(f"v_lshlrev_b32 v{t}, 16, v{src+i}\nv_and_b32 v{t+1}, 0xffff0000, v{src+i}")
            for i in idx:
                t = tmp + 2 * (i - i0)
                a(f"v_pk_add_f32 v[{t}:{t+1}], v[{t}:{t+1}], v[{NM}:{NM+1}]")
            for i in idx:
                t = tmp + 2 * (i - i0)
                a(f"v_cvt_pk_bf16_f32 v{t}, v{t}, v{t+1}")
            for i in idx:
                t = tmp + 2 * (i - i0)
                a(f"v_and_b32 v{t+1}, 0xffff0000, v{t}\nv_lshlrev_b32 v{t}, 16, v{t}")
            for i in idx:
                t = tmp + 2 * (i - i0)
                a(f"v_pk_mul_f32 v[{t}:{t+1}], v[{t}:{t+1}], v[{RS}:{RS+1}]")
            for i in idx:
                t = tmp + 2 * (i - i0)
                a(f"v_cvt_pk_bf16_f32 v{dst+i}, v{t}, v{t+1}")
    def lds_wait(lbl, off, cnt, sl=0, msk=False, bnd=None):
        a(f"""
s_mov_b32 s58, {bnd or spin*8}
{lbl}:
ds_read_b32 v4, v9 offset:{off}
s_waitcnt lgkmcnt(0)
v_readfirstlane_b32 s59, v4
s_sub_u32 s58, s58, 1
s_cbranch_scc1 {lbl}_done
{"s_and_b32 s27, s59, 255" if msk else ""}
s_cmp_lt_u32 {"s27" if msk else "s59"}, {cnt}
{f"s_sleep {sl}" if sl else ""}
s_cbranch_scc1 {lbl}
{lbl}_done:
""")
    def lds_signal(off):
        a(f"""
s_mov_b64 exec, 1
ds_add_u32 v9, v11 offset:{off}
s_mov_b64 exec, -1
""")
    def orred(ts):
        ts = list(ts)
        while len(ts) > 1:
            if len(ts) >= 3:
                a(f"v_or3_b32 v{ts[0]}, v{ts[0]}, v{ts[1]}, v{ts[2]}"); ts = ts[3:] + [ts[0]]
            else:
                a(f"v_or_b32 v{ts[0]}, v{ts[0]}, v{ts[1]}"); ts = [ts[0]]
        return ts[0]
    def chk8(tags, tmp):
        if b3 and len(tags) % 2 == 0:
            for i in range(len(tags) // 2): a(f"v_bitop3_b32 v{tmp+i}, v{tags[2*i]}, v{tags[2*i+1]}, s12 bitop3:0x7e")
            return orred([tmp + i for i in range(len(tags) // 2)])
        for i, t in enumerate(tags): a(f"v_xor_b32 v{tmp+i}, s12, v{t}")
        return orred([tmp + i for i in range(len(tags))])
    def chk16(bases, tmp, tagreg):
        out = []
        for i, b in enumerate(bases):
            a(f"v_perm_b32 v{tmp+2*i}, v{b+1}, v{b}, s20\nv_perm_b32 v{tmp+2*i+1}, v{b+3}, v{b+2}, s21")
        for i, b in enumerate(bases):
            a(f"v_or_b32 v{tmp+2*i}, v{tmp+2*i}, v{tmp+2*i+1}")
        for i, b in enumerate(bases):
            a(f"v_xor_b32 v{tmp+2*i}, s{tagreg}, v{tmp+2*i}"); out.append(tmp + 2 * i)
        return orred(out)
    def pack16(dst, srcs, tagv):
        for i, r in enumerate(srcs): a(f"v_perm_b32 v{dst+i}, v{r}, v{tagv}, s{16+i}")
    def poll(lbl, loads, chk, fbr=None, post=None, st=None, pipe=1, stag=0, sl=None, mid=None, pre=False, bnd=None):
        if sl is None: sl = slp
        if fbr is not None: a(f"s_mov_b32 s82, s{fbr}\ns_add_u32 s83, s{fbr}, {BD}")
        a(f"s_mov_b32 s58, {bnd or spin}")
        for _ in range(pipe - 1):
            for l in loads: a(l)
            if stag: a(f"s_sleep {stag}")
        if mid:
            if not pre:
                for l in loads: a(l)
            mid()
            if "h1vm" in dbg: stamp(4)
            a(f"s_branch {lbl}_chk")
        a(f"{lbl}:")
        if st is not None and (tailprof or (st == 4 and "h1it" in dbg) or (st == 3 and "h2it" in dbg)): stamp(4 if "h2it" in dbg else st)
        for l in loads: a(l)
        if mid: a(f"{lbl}_chk:")
        a(f"s_waitcnt vmcnt({len(loads) * (pipe - 1)})")
        r = chk()
        if post: r = post(r)
        a(f"""
v_cmp_ne_u32 vcc, 0, v{r}
s_sub_u32 s58, s58, 1
s_cbranch_scc1 {lbl}_done
s_and_b64 exec, exec, vcc
s_cbranch_execz {lbl}_done
""")
        if fbr is not None: a(f"s_and_b32 s59, s58, {fb}\ns_cselect_b32 s{fbr}, s82, s83")
        if sl: a(f"s_sleep {sl}")
        a(f"""
s_branch {lbl}
{lbl}_done:
s_mov_b64 exec, -1
""")
    a("""; ---------------- helper waves
L_helper:
s_load_dwordx16 s[16:31], s[0:1], 0
s_load_dwordx8 s[32:39], s[0:1], 64
s_load_dwordx2 s[40:41], s[0:1], 96
v_and_b32 v3, 15, v0
v_lshlrev_b32 v3, 2, v3
v_mov_b32 v4, 0
ds_write_b32 v3, v4
s_setprio 3
s_sub_u32 s3, s3, 4
s_waitcnt lgkmcnt(0)
""")
    if "probe" in dbg:
        srd(52, 40, 0x10000000)
        pl = "probel" in dbg
        a(f"""
s_cmp_lt_u32 s3, 2
s_cbranch_scc1 L_noprobe
s_and_b32 s4, s3, 1
s_lshl_b32 s4, s4, 13
s_lshl_b32 s5, s2, 14
s_add_u32 s4, s4, s5
s_add_u32 s4, s4, {8 << 20}
s_mov_b64 exec, 1
s_memtime s[76:77]
s_waitcnt lgkmcnt(0)
{"s_load_dword s5, s[40:41], s4 offset:128" if "probew" in dbg else ""}
s_waitcnt lgkmcnt(0)
{"s_memtime s[76:77]" if "probew" in dbg else ""}
s_waitcnt lgkmcnt(0)
{"s_load_dword s5, s[40:41], s4" if "probes" in dbg else "buffer_load_dword v5, v4, s[52:55], s4 offen sc1" if pl else "buffer_store_dword v4, v4, s[52:55], s4 offen sc1"}
s_waitcnt vmcnt(0) lgkmcnt(0)
s_memtime s[78:79]
s_waitcnt lgkmcnt(0)
s_sub_u32 s98, s78, s76
s_mov_b32 s99, 0
s_mov_b64 exec, -1
L_noprobe:
""")
    if near: a(f"s_cmp_lt_u32 s2, {8 * near['nw']}\ns_cbranch_scc1 L_meas\nL_meas_done:")
    if "s" in warm:
        a("""
s_and_b32 s4, s2, 7
s_lshl_b32 s4, s4, 20
s_lshr_b32 s5, s2, 5
s_lshl_b32 s5, s5, 23
s_or_b32 s4, s4, s5
s_load_dword s76, s[20:21], s4
s_and_b32 s4, s2, 4
s_lshl_b32 s4, s4, 19
s_load_dword s77, s[24:25], s4
s_load_dword s78, s[36:37], 0
s_load_dword s79, s[38:39], 0
""")
    if "m" in warm:
        a("""
s_load_dword s76, s[16:17], 0
s_load_dword s77, s[22:23], 0
s_load_dword s78, s[22:23], 0x200000
s_load_dword s79, s[28:29], 0
s_load_dword s76, s[30:31], 0
s_load_dword s77, s[32:33], 0
s_load_dword s78, s[34:35], 0
""".replace("0x200000", "0xffffc"))
    srd(44, 16, 8192); srd(48, 22, 0x400000); srd(52, 40, 0x10000000); srd(56, 24, 0x400000)
    srd(60, 28, 3584); srd(64, 30, 3584); srd(68, 32, 3584)
    a(f"""
v_lshrrev_b32 v5, 4, v1
v_and_b32 v6, 7, v1
v_and_b32 v8, 15, v1
v_lshrrev_b32 v7, 5, v1
v_and_b32 v4, 31, v1
v_lshlrev_b32 v4, 4, v4
v_lshl_add_u32 v2, v7, 10, v4
s_lshl_b32 s6, s3, 11
v_mov_b32 v9, 0
v_mov_b32 v11, 1
v_lshrrev_b32 v20, 3, v1
v_lshlrev_b32 v21, 13, v20
v_lshl_add_u32 v21, v6, 4, v21
v_lshlrev_b32 v22, {12 if t2 else 10}, v20
v_lshl_add_u32 v22, v6, 4, v22
s_and_b32 s15, s2, 7
s_lshr_b32 s14, s2, 3
s_add_u32 s4, s14, {rq}
s_and_b32 s4, s4, 7
s_add_u32 s14, s14, {ro}
s_and_b32 s14, s14, 7
s_lshl_b32 s8, s15, 3
s_add_u32 s8, s8, s4
s_lshr_b32 s9, s2, 6
s_lshl_b32 s4, s9, 2
s_add_u32 s4, s4, s3
s_lshl_b32 s4, s4, 18
s_lshl_b32 s5, s8, 7
s_add_u32 s72, s4, s5
s_lshl_b32 s13, s15, 2
s_add_u32 s13, s13, s9
s_lshl_b32 s4, s13, {7 if t3 else 2}
s_add_u32 s4, s4, s3
s_lshl_b32 s4, s4, {10 if t3 else 15}
s_lshl_b32 s5, s14, 7
s_add_u32 s73, s4, s5
s_lshl_b32 s4, s3, 12
s_add_u32 s74, s4, {WQL}
s_mul_i32 s75, s3, 896
v_lshlrev_b32 v23, 1, v1
s_barrier
""")
    if "nohelp" in dbg: a("s_branch L_pre2")
    if hdel: a(f"s_sleep {hdel}")
    a(f"""
buffer_load_dwordx4 v[{X}:{X+3}], v2, s[44:47], s6 offen
buffer_load_dwordx4 v[{X+4}:{X+7}], v2, s[44:47], s6 offen offset:512
{"s_load_dword s42, s[40:41], 0" if sE else "buffer_load_dword v10, v9, s[52:55], 0 offen sc1"}
""")
    def h2touch():
        stp = h2pre[1]
        if stp == "v":
            a(f"s_lshl_b32 s4, s2, 2\ns_add_u32 s4, s4, s3\ns_lshl_b32 s4, s4, 9\ns_add_u32 s4, s4, {H2OFF}\nv_lshlrev_b32 v94, 3, v1\nbuffer_load_dwordx2 v[94:95], v94, s[52:55], s4 offen {h2pre[2]}")
            return
        a(f"s_lshl_b32 s4, s2, 2\ns_add_u32 s4, s4, s3\ns_lshl_b32 s4, s4, 9\ns_add_u32 s4, s4, {H2OFF}")
        for i in range(512 // stp): a(f"s_load_dword s{96 + (i & 3) if not prof else 27}, s[40:41], s4 offset:{i * stp}")
    if h2pre and h2pre is not True and h2pre[0] == "e": h2touch()
    if "nowq" in dbg: a("s_mov_b32 s50, 0\ns_mov_b32 s58, 0")
    if wqdel: a(f"s_sleep {wqdel}")
    for t in range(4):
        a(f"s_add_u32 m0, s74, {t*1024}\ns_nop 0\nbuffer_load_dwordx4 v21, s[48:51], s72 offen nt lds")
        if t < 3: a(f"s_add_u32 s72, s72, {8*8192}")
    def wodma(t, vr, so, sl):
        if wosw and t & 1: vr = 152
        a(f"s_add_u32 m0, s{sl}, {16384+t*1024}\ns_nop 0\nbuffer_load_dwordx4 v{vr}, {'s[56:59]' if wolate is None else 's[68:71]'}, s{so} offen nt lds")
        if t < 3: a(f"s_add_u32 s{so}, s{so}, {32768 if t3 else 1024 if t2 else 8*1024}")
    if wolate is None:
        for t in range(4): wodma(t, 22, 73, 74)
    else:
        if wosw: a("v_and_b32 v90, 1, v5\nv_lshlrev_b32 v90, 5, v90\nv_xor_b32 v90, v90, v22\nv_xor_b32 v152, 64, v90\ns_mov_b32 s22, s73\ns_mov_b32 s23, s74")
        else: a("v_mov_b32 v90, v22\ns_mov_b32 s22, s73\ns_mov_b32 s23, s74")
    NW = 0 if wolate is None else 4
    for t in range(7):
        a(f"buffer_load_ushort v{W1+t}, v23, s[60:63], s75 offen offset:{128*t}")
        a(f"buffer_load_ushort v{B1+t}, v23, s[64:67], s75 offen offset:{128*t}")
        a(f"buffer_load_ushort v{W2+t}, v23, s[68:71], s75 offen offset:{128*t}")
    srd(60, 34, 2); srd(64, 36, 8192); srd(68, 24, 0 if ('nowq' in dbg or 'nowo2' in dbg) else 0x400000)
    a(f"""
v_and_b32 v30, 3, v1
v_lshlrev_b32 v30, {3 if t3 else 1}, v30
v_lshl_add_u32 v30, v5, {1 if t3 else 5}, v30
""" + ("s_lshl_b32 s10, s2, 5" if t3 else """s_lshr_b32 s10, s2, 2
s_lshl_b32 s10, s10, 7
s_and_b32 s4, s2, 3
s_lshl_b32 s4, s4, 3
s_add_u32 s10, s10, s4""") + f"""
buffer_load_ushort v31, v9, s[60:63], 0 offen
buffer_load_ushort v29, v30, s[44:47], s10 offen
s_mov_b32 s16, 0x07060500
s_mov_b32 s17, 0x07060501
s_mov_b32 s18, 0x07060502
s_mov_b32 s19, 0x07060503
s_mov_b32 s20, 0x0c0c0400
s_mov_b32 s21, 0x04000c0c
s_getreg_b32 s43, hwreg(HW_REG_XCC_ID, 0, 4)
s_lshl_b32 s43, s43, 3
s_add_u32 s43, s43, s15
s_lshl_b32 s43, s43, 7
s_add_u32 s43, s43, {LOCOFF}
s_lshr_b32 s59, s2, 3
s_lshl_b32 s59, s59, 2
s_add_u32 s59, s59, s43
s_mov_b32 s11, 0x3f803f80
v_mov_b32 v{S1}, 0
v_mov_b32 v{S2}, 0
s_waitcnt lgkmcnt(0)
s_add_u32 s42, s42, 1
s_mul_i32 s12, s42, 0x01010101
v_mov_b32 v10, s12
s_cmp_eq_u32 s3, 0
s_cselect_b64 exec, 1, 0
buffer_store_dword v10, v9, s[52:55], s59 offen
s_mov_b64 exec, -1
s_waitcnt vmcnt({32 - NW + (1 if h2pre and h2pre is not True and h2pre[:2] == ('e', 'v') else 0)})
""")
    for i in range(8):
        a(f"v_dot2_f32_bf16 v{S1}, v{X+i}, s11, v{S1}")
        a(f"v_dot2_f32_bf16 v{S2}, v{X+i}, v{X+i}, v{S2}")
    for n in (8, 4, 2, 1):
        a(f"v_add_f32_dpp v{S1}, v{S1}, v{S1} row_ror:{n} row_mask:0xf bank_mask:0xf")
        a(f"v_add_f32_dpp v{S2}, v{S2}, v{S2} row_ror:{n} row_mask:0xf bank_mask:0xf")
    a(f"""
v_mov_b32 v{T0}, v{S1}
v_mov_b32 v{T1}, v{S2}
v_permlane16_swap_b32 v{S1}, v{T0}
v_permlane16_swap_b32 v{S2}, v{T1}
v_add_f32 v{S1}, v{S1}, v{T0}
v_add_f32 v{S2}, v{S2}, v{T1}
""")
    stats_finish()
    normalize(X, X, 8, 20)
    a(f"""
s_mul_i32 s4, s3, {2*XRS}
v_mul_u32_u24 v2, {XRS}, v7
v_add3_u32 v2, v2, v4, s4
ds_write_b128 v2, v[{X}:{X+3}] offset:{XN}
ds_write_b128 v2, v[{X+4}:{X+7}] offset:{XN+512}
v_mul_u32_u24 v2, {XRS}, v6
v_lshl_add_u32 v2, v5, 4, v2
s_lshl_b32 s4, s9, 8
v_add_u32 v2, s4, v2
v_bfe_u32 v3, v1, 2, 2
v_lshl_add_u32 v3, v5, 3, v3
v_lshlrev_b32 v3, 7, v3
v_and_b32 v20, 3, v1
v_lshl_add_u32 v3, v20, 3, v3
s_lshl_b32 s4, s3, 5
v_add_u32 v24, s4, v3
s_waitcnt vmcnt(24) lgkmcnt(0)
""")
    lds_signal(FLG + 8)
    a(f"""
v_and_b32 v27, 31, v1
v_lshlrev_b32 v27, 2, v27
buffer_load_dword v150, v27, s[52:55], s43 offen nt
v_lshlrev_b32 v25, 4, v5
v_lshl_add_u32 v25, v6, 11, v25
s_lshr_b32 s4, s8, 1
s_lshl_b32 s4, s4, 5
s_add_u32 s4, s4, s9
s_lshl_b32 s4, s4, 1
s_and_b32 s5, s8, 1
s_add_u32 s4, s4, s5
s_lshl_b32 s4, s4, 2
s_add_u32 s4, s4, s3
s_lshl_b32 s4, s4, 6
s_add_u32 s72, s4, {QOFF}
s_mov_b32 s26, 0
""")
    if qprew: a("v_not_b32 v132, v10\nv_not_b32 v133, v10\nv_not_b32 v134, v10\nv_not_b32 v135, v10\ns_mov_b32 exec_lo, 0x00ff00ff\ns_mov_b32 exec_hi, 0x00ff00ff\nbuffer_store_dwordx4 v[132:135], v25, s[52:55], s72 offen\ns_mov_b64 exec, -1")
    lds_wait("L_xw", FLG + 8, 4)
    for t in range(4):
        a(f"ds_read_b128 v[{96+4*t}:{99+4*t}], v2 offset:{XN+64*t}")
        for u in range(2): a(f"ds_read_b64_tr_b16 v[{112+4*t+2*u}:{113+4*t+2*u}], v24 offset:{WQL+t*4096+u*512}")
    a("s_waitcnt lgkmcnt(0)")
    stamp(1)
    for t in range(4):
        a(f"v_mfma_f32_16x16x32_bf16 v[128:131], v[{112+4*t}:{115+4*t}], v[{96+4*t}:{99+4*t}], {'0' if t == 0 else 'v[128:131]'}")
    pack16(132, [128, 129, 130, 131], 10)
    Q2OFF = H1OFF + 128 * H1S
    if qf: a(f"""
v_perm_b32 v136, v129, v128, s20
v_perm_b32 v137, v131, v130, s21
v_lshrrev_b32 v138, 1, v25
v_or_b32 v136, v136, v137
v_mov_b32 v137, v10
s_lshr_b32 s73, s72, 1
s_add_u32 s73, s73, {Q2OFF - QOFF // 2}
""")
    if "cutq" in dbg: a("s_branch L_pre2")
    a(f"""
s_movk_i32 s58, {nloc}
L_lc:
s_waitcnt vmcnt(0)
v_cmp_ne_u32 vcc, s12, v150
s_cbranch_vccz L_lc_done
buffer_load_dword v150, v27, s[52:55], s43 offen nt
s_sub_u32 s58, s58, 1
s_cbranch_scc0 L_lc
s_mov_b32 s26, 1
L_lc_done:
{"s_mov_b32 s26, 1" if clean else ""}
{"s_and_b32 s26, s3, 1" if "mixw" in dbg else ""}
{"s_bfe_u32 s26, s2, 0x10003" if "mixj" in dbg else ""}
s_mov_b32 exec_lo, 0x00ff00ff
s_mov_b32 exec_hi, 0x00ff00ff
s_cmp_lg_u32 s26, 0
s_cbranch_scc1 L_qs_far
buffer_store_dwordx4 v[132:135], v25, s[52:55], s72 offen
{"buffer_store_dwordx2 v[136:137], v138, s[52:55], s73 offen" if qf else ""}
L_qs_done:
s_mov_b64 exec, -1
""")
    if near: a(f"s_lshl_b32 s4, s3, 8\ns_add_u32 s4, s4, s2\ns_sub_u32 s4, s4, 512\ns_cmp_lt_u32 s4, {8 * near['nw']}\ns_cbranch_scc1 L_mpub\nL_mpub_done:")
    if "cutp" in dbg: a("s_branch L_pre2")
    stamp(2)
    a(f"s_setprio {bgprio}")
    def woread(vr, kks=None):
        if own1:
            for kk in (kks or [1, 2, 3]):
                for nt_ in range(4):
                    for u in range(2): a(f"ds_read_b64_tr_b16 v[{WB+16*nt_+4*kk+2*u}:{WB+16*nt_+4*kk+2*u+1}], v{176+4*kk+nt_} offset:{WQL+16384+u*512}")
            return
        if t3:
            for nt_ in range(4):
                for u in range(2): a(f"ds_read_b64_tr_b16 v[{WB+4*nt_+2*u}:{WB+4*nt_+2*u+1}], v{153+nt_} offset:{WQL+16384+u*512}")
            return
        for nt_ in range(4):
            for kk in range(4):
                for u in range(2):
                    r = WB + 16 * nt_ + 4 * kk + 2 * u
                    if wosw: a(f"ds_read_b64_tr_b16 v[{r}:{r+1}], v{153+nt_} offset:{WQL+16384+kk*4096+u*512}")
                    else: a(f"ds_read_b64_tr_b16 v[{r}:{r+1}], v{vr} offset:{WQL+16384+kk*4096+u*512+nt_*32}")
    if wolate is None: woread(3)
    elif wosw: a("v_bfe_u32 v153, v1, 3, 2\nv_lshl_add_u32 v153, v153, 5, v3\n" + ("s_lshl_b32 s4, s3, 12\nv_add_u32 v153, s4, v153\n" if t3 else "") + "v_xor_b32 v154, 32, v153\nv_xor_b32 v155, 64, v153\nv_xor_b32 v156, 0x60, v153")
    else: a("v_mov_b32 v91, v3")
    a(f"""
s_lshr_b32 s4, s2, 5
s_mul_i32 s4, s4, {XRS}
v_lshl_add_u32 v2, v1, 4, s4
ds_read_b128 v[{HX}:{HX+3}], v2 offset:{XN}
v_mov_b32 v{S1}, 0
v_mov_b32 v{S2}, 0
s_waitcnt lgkmcnt(0)
""")
    for i in range(4):
        a(f"v_dot2_f32_bf16 v{S1}, v{HX+i}, s11, v{S1}")
        a(f"v_dot2_f32_bf16 v{S2}, v{HX+i}, v{HX+i}, v{S2}")
    for n in (8, 4, 2, 1):
        a(f"v_add_f32_dpp v{S1}, v{S1}, v{S1} row_ror:{n} row_mask:0xf bank_mask:0xf")
        a(f"v_add_f32_dpp v{S2}, v{S2}, v{S2} row_ror:{n} row_mask:0xf bank_mask:0xf")
    swaps_add(S1, T0); swaps_add(S2, T1)
    stats_finish()
    normalize(HX, HX, 4, 20)
    if t3:
        a("s_and_b32 s4, s2, 31\ns_lshl_b32 s4, s4, 1")
        for i in range(4): a(f"v_readlane_b32 s{72+i}, v{HX+i}, s4")
        a("s_add_u32 s4, s4, 1")
        for i in range(4): a(f"v_readlane_b32 s{76+i}, v{HX+i}, s4")
    else: a(f"""
s_bitcmp1_b32 s2, 0
s_cselect_b64 vcc, -1, 0
s_bfe_u32 s4, s2, 0x30002
s_lshl_b32 s4, s4, 3
s_bfe_u32 s5, s2, 0x10001
s_add_u32 s4, s4, s5
v_cndmask_b32 v{HX}, v{HX}, v{HX+2}, vcc
v_cndmask_b32 v{HX+1}, v{HX+1}, v{HX+3}, vcc
""")
    for i in range(0 if t3 else 4):
        a(f"v_readlane_b32 s{72+2*i}, v{HX}, s4\nv_readlane_b32 s{73+2*i}, v{HX+1}, s4")
        if i < 3: a("s_add_u32 s4, s4, 2")
    a("s_waitcnt vmcnt(2)")
    for i in range(21): a(f"v_lshlrev_b32 v{W1+i}, 16, v{W1+i}")
    c0 = -2 * LOG2E * math.sqrt(2 / math.pi); c1 = c0 * 0.044715
    a(f"""
v_mov_b32 v{C1}, {f32(c1)}
s_lshl_b32 s4, s3, 6
v_mov_b32 v{YA}, s4
""")
    def mlp_steps(lo, hi):
        for d in range(lo, hi):
            if d & 1: a(f"s_and_b32 s4, s{72+(d>>1)}, 0xffff0000")
            else: a(f"s_lshl_b32 s4, s{72+(d>>1)}, 16")
            if "nomlp" not in dbg: a("s_call_b64 s[80:81], L_mlp")
            if wolate is not None and wotrig is None and d in wolate: wodma(wolate.index(d), 90, 22, 23)
    mlp_steps(0, mlp1)
    a("; gather the four K-split partials of q (head = helper index) and hand q to the stream waves through LDS")
    a(f"""
s_setprio 3
s_lshr_b32 s4, s2, 5
s_lshl_b32 s4, s4, 11
s_lshl_b32 s5, s15, 2
s_add_u32 s5, s5, s3
s_lshl_b32 s5, s5, 14
s_add_u32 s4, s4, s5
s_add_u32 s6, s4, {QOFF}
v_lshlrev_b32 v2, 4, v1
{f"v_lshlrev_b32 v138, 3, v1" if qf else ""}
{f"s_lshr_b32 s7, s4, 1" if qf else ""}
{f"s_add_u32 s7, s7, {Q2OFF}" if qf else ""}
s_cmp_lg_u32 s26, 0
s_cbranch_scc1 L_gq_far
""")
    def qchk():
        r = chk16([96, 100], 104, 12)
        if qf: a(f"v_bitop3_b32 v108, v113, v115, s12 bitop3:0x7e\nv_or_b32 v{r}, v{r}, v108")
        return r
    def qpoll(sfx, fl):
        poll("L_gq" + sfx, [f"buffer_load_dwordx4 v[{96+4*k}:{99+4*k}], v2, s[52:55], s6 offen offset:{1024*k} {fl}" for k in range(2)]
             + ([f"buffer_load_dwordx2 v[{112+2*k}:{113+2*k}], v138, s[52:55], s7 offen offset:{512*k} {fl}" for k in range(2)] if qf else []),
             qchk, sl=qslp)
    qpoll("", "nt")
    a("L_gq_got:")
    if qf:
        a("; put the low mantissa bytes (sent in their own tagged granule) back: the partials are summed in full f32")
        for i in range(8): a(f"v_perm_b32 v{96+i}, v{96+i}, v{112+2*(i>>2)}, s{16+(i&3)}")
    else:
        for i in range(8): a(f"v_and_b32 v{96+i}, 0xffffff00, v{96+i}")
    for i in range(4): a(f"v_add_f32 v{96+i}, v{96+i}, v{100+i}")
    a(f"""
s_lshl_b32 s4, s3, 8
v_and_b32 v2, 31, v1
v_lshl_add_u32 v2, v2, 3, s4
v_lshl_add_u32 v2, v7, 2, v2
v_permlane32_swap_b32 v96, v98
v_permlane32_swap_b32 v97, v99
v_add_f32 v96, v96, v98
v_add_f32 v97, v97, v99
v_cvt_pk_bf16_f32 v96, v96, v97
ds_write_b32 v2, v96 offset:{QL}
s_waitcnt lgkmcnt(0)
""")
    lds_signal(FLG + 4)
    stamp(3)
    if "cutg" in dbg: a("s_branch L_pre2")
    a(f"s_setprio {bgprio}")
    if h2pre and h2pre is not True and h2pre[0] == "q": h2touch()
    mlp_steps(mlp1, 16)
    a("s_waitcnt vmcnt(0) lgkmcnt(0)")
    lds_signal(FLG + 12)
    a(f"""
v_lshrrev_b32 v2, 2, v1
v_mul_u32_u24 v20, 144, v2
v_and_b32 v3, 3, v1
v_lshl_add_u32 v20, v3, 5, v20
s_lshl_b32 s4, s3, 2
s_add_u32 s4, s4, {OP}
v_add_u32 v20, s4, v20
v_add_u32 v21, 2304, v20
v_add_u32 v22, 4608, v20
v_add_u32 v23, 6912, v20
s_lshl_b32 s4, s3, 3
v_mov_b32 v24, s4
v_lshrrev_b32 v25, 5, v1
v_lshlrev_b32 v25, 7, v25
v_bfe_u32 v2, v1, 4, 1
v_lshl_add_u32 v25, v2, 11, v25
v_bfe_u32 v2, v1, 1, 1
v_lshl_add_u32 v25, v2, 10, v25
v_bfe_u32 v2, v1, 2, 2
v_lshl_add_u32 v25, v2, 8, v25
v_and_b32 v2, 1, v1
v_lshl_add_u32 v25, v2, 3, v25
v_lshlrev_b32 v26, 4, v1
v_and_b32 v2, 1, v5
v_lshl_add_u32 v27, v2, 2, v3
v_lshlrev_b32 v27, 4, v27
v_lshlrev_b32 v28, {6 if h2full else 16}, v2
v_bfe_u32 v2, v1, 2, 2
v_lshl_add_u32 v28, v2, {12 if h2full else 11}, v28
v_lshl_add_u32 v28, v3, 4, v28
v_lshrrev_b32 v19, 2, v1
v_lshlrev_b32 v19, {7 if h2full else 6}, v19
v_lshl_add_u32 v19, v3, 4, v19
s_lshl_b32 s4, s15, 2
s_add_u32 s4, s4, s3
s_lshl_b32 s4, s4, 2
s_add_u32 s4, s4, s9
s_mul_i32 s4, s4, {H1S}
s_bfe_u32 s5, s2, 0x30003
s_lshl_b32 s5, s5, 4
s_add_u32 s4, s4, s5
s_add_u32 s6, s4, {H1OFF}
s_lshl_b32 s4, s13, 2
s_add_u32 s4, s4, s3
s_mul_i32 s4, s4, {H1S}
s_add_u32 s7, s4, {H1OFF}
s_lshl_b32 s4, s3, {5 if h2full else 6}
s_lshl_b32 s5, s14, 2
s_add_u32 s4, s4, s5
s_lshl_b32 s4, s4, {12 if h2full else 11}
s_lshl_b32 s5, s13, {7 if h2full else 6}
s_add_u32 s4, s4, s5
s_add_u32 s8, s4, {H2OFF}
""")
    if t2: a(f"""
v_lshlrev_b32 v20, 4, v8
v_lshl_add_u32 v20, v5, 2, v20
s_lshl_b32 s4, s3, 8
s_add_u32 s4, s4, {OP}
v_add_u32 v20, s4, v20
v_lshlrev_b32 v24, 3, v5
v_mul_u32_u24 v25, {4*H1S}, v5
v_lshl_add_u32 v25, v8, 3, v25
s_lshl_b32 s4, s15, 4
s_add_u32 s4, s4, s9
s_mul_i32 s4, s4, {H1S}
s_bfe_u32 s5, s2, 0x30003
s_lshl_b32 s5, s5, 9
s_add_u32 s4, s4, s5
s_lshl_b32 s5, s3, 7
s_add_u32 s4, s4, s5
s_add_u32 s28, s4, {H1OFF}
v_bfe_u32 v2, v1, 3, 1
v_lshlrev_b32 v26, 11, v2
v_lshl_add_u32 v26, v5, 7, v26
v_lshl_add_u32 v26, v6, 4, v26
v_lshl_add_u32 v27, v2, 2, v3
v_lshlrev_b32 v27, 4, v27
v_lshlrev_b32 v28, 16, v7
v_bfe_u32 v2, v1, 2, 2
v_lshl_add_u32 v28, v2, 11, v28
v_lshl_add_u32 v28, v3, 4, v28
s_lshl_b32 s29, s3, 4
""")
    if own1:
        a("s_lshl_b32 s4, s3, 1\nv_add_u32 v2, s4, v6\nv_and_b32 v2, 7, v2\nv_and_b32 v26, 0xffffff8f, v26\nv_lshl_add_u32 v26, v2, 4, v26")
        for kk in range(4):
            a(f"s_add_u32 s4, s3, {kk}\ns_and_b32 s4, s4, 3\ns_lshl_b32 s4, s4, 12")
            for nt_ in range(4): a(f"v_add_u32 v{176+4*kk+nt_}, s4, v{153+nt_}")
    RBB = WQL
    if t3:
        a(f"""
v_mul_u32_u24 v25, {4*H1S}, v5
v_lshrrev_b32 v2, 1, v8
v_lshl_add_u32 v25, v2, 7, v25
v_and_b32 v2, 1, v1
v_lshl_add_u32 v25, v2, 3, v25
s_lshl_b32 s4, s15, 4
s_add_u32 s4, s4, s3
s_mul_i32 s4, s4, {H1S}
s_bfe_u32 s5, s2, 0x20003
s_lshl_b32 s5, s5, 10
s_add_u32 s4, s4, s5
s_lshr_b32 s5, s2, 5
s_lshl_b32 s5, s5, 4
s_add_u32 s4, s4, s5
s_add_u32 s28, s4, {H1OFF}
v_lshlrev_b32 v26, 4, v1
v_bfe_u32 v2, v1, 3, 2
v_mul_u32_u24 v27, {H1S}, v2
v_lshl_add_u32 v27, v6, 4, v27
s_mul_i32 s30, s13, {4*H1S}
s_add_u32 s30, s30, {H1OFF}
v_lshrrev_b32 v2, 2, v1
v_lshlrev_b32 v28, 16, v2
v_lshl_add_u32 v28, v3, 4, v28
s_lshl_b32 s4, s14, 2
s_add_u32 s4, s4, s3
s_lshl_b32 s4, s4, 11
s_lshl_b32 s5, s13, 6
s_add_u32 s4, s4, s5
s_add_u32 s8, s4, {H2OFF}
v_mul_u32_u24 v21, 320, v5
v_lshl_add_u32 v21, v8, 4, v21
s_mul_i32 s4, s3, 2560
v_add_u32 v21, s4, v21
v_mul_u32_u24 v22, 320, v3
v_and_b32 v2, 7, v2
v_lshl_add_u32 v22, v2, 4, v22
s_lshr_b32 s4, s3, 1
s_mul_i32 s4, s4, 1280
s_and_b32 s5, s3, 1
s_lshl_b32 s5, s5, 7
s_add_u32 s4, s4, s5
v_add_u32 v22, s4, v22
v_lshlrev_b32 v23, 4, v6
""")
        if t3 == 2: a(f"""
v_mul_u32_u24 v25, {4*H1S}, v5
v_lshl_add_u32 v25, v8, 3, v25
s_lshr_b32 s5, s2, 5
s_mul_i32 s5, s5, 112
s_add_u32 s28, s28, s5
v_lshrrev_b32 v23, 3, v1
v_lshlrev_b32 v23, 4, v23
v_lshlrev_b32 v184, 5, v6
v_lshl_add_u32 v184, v5, 3, v184
v_add_u32 v185, 4, v184
s_mov_b32 s32, 0x00ff00ff
s_mov_b32 s33, 0x00ff00ff
""")
        for i in range(8 if t3 == 1 else 0): a(f"v_mov_b32 v{176+i}, 0")
    if not h2full: a("s_lshl_b32 s9, s2, 11")
    else: a("""
s_lshr_b32 s9, s2, 6
s_lshl_b32 s9, s9, 5
s_and_b32 s4, s2, 31
s_add_u32 s9, s9, s4
s_lshl_b32 s9, s9, 12
s_bfe_u32 s4, s2, 0x10005
s_lshl_b32 s4, s4, 6
s_add_u32 s9, s9, s4
""")
    h2l = [f"buffer_load_dwordx4 v[{136+4*k}:{139+4*k}], v19, s[52:55], s9 offen offset:{(2048 if h2full else 1024)*k} {h2fl}" for k in range(2)]
    a(f"""
s_add_u32 s9, s9, {H2OFF}
""")
    if near:
        a(f"s_mov_b32 s5, {CWOFF}\nv_and_b32 v2, {8 * near['nw'] - 1}, v1\nv_lshlrev_b32 v2, 3, v2")
        poll("L_cwp", ["buffer_load_dwordx2 v[94:95], v2, s[52:55], s5 offen sc1"], lambda: chk8([95], 80), sl=4)
        a(f"""
v_sub_u32 v95, 0, v94
v_cmp_gt_u32 vcc, 4, v6
v_cndmask_b32 v94, v95, v94, vcc
v_add_u32_dpp v94, v94, v94 row_ror:8 row_mask:0xf bank_mask:0xf
v_add_u32_dpp v94, v94, v94 row_ror:4 row_mask:0xf bank_mask:0xf
v_add_u32_dpp v94, v94, v94 row_ror:2 row_mask:0xf bank_mask:0xf
v_add_u32_dpp v94, v94, v94 row_ror:1 row_mask:0xf bank_mask:0xf
v_readfirstlane_b32 s4, v94
s_cmp_gt_i32 s4, 0
s_cselect_b32 s4, {0x2000 if not near.get("inv") else 0}, {0x2000 if near.get("inv") else 0}
s_xor_b32 s8, s8, s4
s_xor_b32 s9, s9, s4
""")
    if h2pre and h2pre is not True and h2pre[0] == "m": h2touch()
    if wolate is not None and wotrig is None:
        lds_wait("L_yw", FLG + 12, 4); woread(91)
    if not fin: a("""
s_cmp_lg_u32 s3, 0
s_cbranch_scc1 L_ready
""")
    if wolate is None or wotrig is not None: lds_wait("L_yw", FLG + 12, 4)
    if h2pre is True:
        for l in h2l: a(l)
    if "o" in warm: a("buffer_load_ushort v94, v30, s[64:67], s10 offen")
    if tlbw: a(f"s_mov_b32 s4, {H2OFF + (1 << 20) - 4096}\nbuffer_load_dword v94, v9, s[52:55], s4 offen")
    DRYIN = DRYSET = ""
    if dry2:
        assert t2 and not t3 and not fin and wbar and h1m == 1 and h2late
        DRYIN = f"""; first pass through the hand-off code with empty buffer ranges (loads give 0, stores are dropped): fills the instruction cache
s_mov_b32 s30, 0
s_mov_b32 s31, 1
s_mov_b32 s27, s26
s_mov_b32 s26, 0
s_mov_b32 s54, 0
s_mov_b32 s66, 0
v_mov_b32 v11, 0
s_waitcnt vmcnt(0) lgkmcnt(0)
{"s_memrealtime s[86:87]" if "drst" in dbg else ""}
s_branch L_dry_in
L_dry_ret:
s_mov_b64 exec, -1
s_waitcnt vmcnt(0) lgkmcnt(0)
{"s_memrealtime s[90:91]" if "drst" in dbg else ""}
s_mov_b32 s26, s27
s_mov_b32 s54, 0x10000000
s_mov_b32 s66, 8192
v_mov_b32 v11, 1"""
        DRYSET = f"s_mov_b32 s30, {spin}\ns_mov_b32 s31, 0"
    a(f"""
{"v_lshl_add_u32 v2, v3, 2, v5" if t3 else "v_lshl_add_u32 v2, v5, 2, v3"}
v_lshlrev_b32 v2, 2, v2
ds_read_b32 v32, v2 offset:{YP}
ds_read_b32 v33, v2 offset:{YP+64}
ds_read_b32 v34, v2 offset:{YP+128}
ds_read_b32 v35, v2 offset:{YP+192}
v_lshlrev_b32 v31, 16, v31
s_waitcnt lgkmcnt(0)
v_add_f32 v32, v32, v33
v_add_f32 v34, v34, v35
v_add_f32 v32, v32, v34
v_cvt_pk_bf16_f32 v32, v32, v32
v_lshlrev_b32 v32, 16, v32
v_add_f32 v32, v32, v31
v_cvt_pk_bf16_f32 v32, v32, v32
v_lshlrev_b32 v32, 16, v32
v_mul_f32 v34, {f32(-LOG2E)}, v32
v_exp_f32 v34, v34
v_add_f32 v34, 1.0, v34
v_rcp_f32 v34, v34
v_mul_f32 v32, v32, v34
v_cvt_pk_bf16_f32 v32, v32, v32
v_lshlrev_b32 v16, 16, v32
v_lshlrev_b32 v14, 16, v29
{DRYIN}
L_ready:
{DRYSET}
""")
    if "cuts" in dbg: a("s_branch L_pre2")
    a("; softmax statistics: merge the four waves, publish {max, sum}, fetch the group's statistics, form the split weights")
    lds_wait("L_sw", FLG + 16, 4, sl=8)
    a(f"""
ds_read_b64 v[32:33], v24 offset:{ST}
ds_read_b64 v[34:35], v24 offset:{ST+32}
ds_read_b64 v[36:37], v24 offset:{ST+64}
ds_read_b64 v[38:39], v24 offset:{ST+96}
s_waitcnt lgkmcnt(0)
v_max3_f32 v48, v32, v34, v36
v_max_f32 v48, v48, v38
v_sub_f32 v32, v32, v48
v_sub_f32 v34, v34, v48
v_sub_f32 v36, v36, v48
v_sub_f32 v38, v38, v48
v_exp_f32 v32, v32
v_exp_f32 v34, v34
v_exp_f32 v36, v36
v_exp_f32 v38, v38
v_mov_b32 v49, v10
v_mov_b32 v51, v10
v_mul_f32 v50, v32, v33
v_fmac_f32 v50, v34, v35
v_fmac_f32 v50, v36, v37
v_fmac_f32 v50, v38, v39
v_mov_b32 v53, v10
{"s_lshl_b64 exec, 1, s29" if t2 else "s_mov_b64 exec, 1"}
s_cmp_lg_u32 s26, 0
s_cbranch_scc1 L_st_far
buffer_store_dwordx4 v[48:51], v9, s[52:55], s6 offen
s_mov_b64 exec, -1
""")
    if t2 and prew: a("v_not_b32 v60, v10\nv_not_b32 v61, v10\nbuffer_store_dwordx2 v[60:61], v25, s[52:55], s28 offen offset:128")
    poll("L_sp", [f"buffer_load_dwordx4 v[40:43], v27, s[52:55], s{30 if t3 else 7} offen {h1fl}"], lambda: chk8([41, 43], 80), sl=8)
    a(f"""
s_branch L_st_done
L_st_far:
buffer_store_dwordx4 v[48:51], v9, s[52:55], s6 offen sc1
s_mov_b64 exec, -1
""")
    poll("L_spx", [f"buffer_load_dwordx4 v[40:43], v27, s[52:55], s{30 if t3 else 7} offen sc1"], lambda: chk8([41, 43], 80), sl=8)
    a("L_st_done:")
    def ptouch(mode, fl):
        if mode == 8: a(f"s_lshl_b32 s4, s14, 9\ns_add_u32 s4, s4, s7\ns_mov_b64 exec, 0xffffffff\nbuffer_load_dwordx4 v[64:67], v26, s[52:55], s4 offen offset:128 {fl}\ns_mov_b64 exec, -1")
        else:
            for k in range(4): a(f"buffer_load_dwordx4 v[{64+4*k}:{67+4*k}], v26, s[52:55], s7 offen offset:{128+k*1024} {fl}")
    if pretouch and pretouch[0] == "s": ptouch(pretouch[1], pretouch[2])
    a("""
v_max_f32_dpp v44, v40, v40 quad_perm:[1,0,3,2] row_mask:0xf bank_mask:0xf
v_max_f32_dpp v45, v44, v44 quad_perm:[2,3,0,1] row_mask:0xf bank_mask:0xf
v_sub_f32 v40, v40, v45
v_exp_f32 v40, v40
v_mul_f32 v42, v40, v42
v_add_f32_dpp v44, v42, v42 quad_perm:[1,0,3,2] row_mask:0xf bank_mask:0xf
v_add_f32_dpp v45, v44, v44 quad_perm:[2,3,0,1] row_mask:0xf bank_mask:0xf
v_rcp_f32 v45, v45
v_mul_f32 v40, v40, v45
v_mov_b32_dpp v56, v40 quad_perm:[0,0,0,0] row_mask:0xf bank_mask:0xf
v_mov_b32_dpp v57, v40 quad_perm:[1,1,1,1] row_mask:0xf bank_mask:0xf
v_mov_b32_dpp v58, v40 quad_perm:[2,2,2,2] row_mask:0xf bank_mask:0xf
v_mov_b32_dpp v59, v40 quad_perm:[3,3,3,3] row_mask:0xf bank_mask:0xf
""" + ("\n".join(f"ds_bpermute_b32 v{56+i}, v23, v{56+i}" for i in range(4)) if t3 else "") + """
L_pre2:
s_setprio """ + str(hp) + """
s_waitcnt vmcnt(0) lgkmcnt(0)
""")
    if wotrig is not None and wotrig >= 0:
        if defer:
            srd(48, 38, 256)
            a(f"""
s_getreg_b32 s4, hwreg(HW_REG_XCC_ID, 0, 3)
s_lshl_b32 s4, s4, 5
v_lshl_add_u32 v92, v6, 2, s4
s_mov_b32 s28, {(0x80 - defer[2]) * 0x01010101}
s_mov_b32 s29, 0x80808080
""")
        if wodl is not None: a(f"""
s_mov_b32 s58, {spin*8}
L_wt:
ds_read2_b32 v[60:61], v9 offset0:{(FLG+28)//4} offset1:{(FLG+48)//4}
s_memrealtime s[76:77]
{f"s_sleep {wosl}" if wosl else ""}
s_waitcnt lgkmcnt(0)
v_readfirstlane_b32 s59, v60
v_readfirstlane_b32 s27, v61
s_sub_u32 s58, s58, 1
s_cbranch_scc1 L_wt_done
s_cmp_ge_u32 s59, {wothr}
s_cbranch_scc1 L_wt_done
s_cmp_eq_u32 s27, 0
s_cbranch_scc1 L_wt
s_sub_u32 s27, s76, s27
s_cmp_lt_i32 s27, 0
s_cbranch_scc1 L_wt
L_wt_done:
""")
        else:
            a("; Wo tile is fetched when this workgroup's V stream is nearly drained, so it overlaps the hop-1 hand-off")
            lds_wait("L_wt", FLG + 28, wothr, sl=wosl, msk=bool(defer))
        if defer: a(f"s_lshr_b32 s27, s59, 8\ns_cmp_ge_u32 s27, {defer[1]}\ns_cselect_b32 s27, 1, 0\ns_andn2_b32 s27, s27, s26\ns_cbranch_scc1 L_wt_skip")
        if pretouch and pretouch[0] == "b": ptouch(pretouch[1], pretouch[2])
        for t in range(4): wodma(t, 90, 22, 23)
        if pretouch and pretouch[0] == "a": ptouch(pretouch[1], pretouch[2])
        if defer: a("L_wt_skip:")
    stamp(4)
    if not dp: a("s_barrier")
    if dry2: a("L_dry_in:")
    if wotrig is not None and wotrig < 0:
        for t in range(4): wodma(t, 90, 22, 23)
    if isinstance(dbgt, str): a("s_memrealtime s[92:93]")
    if prof: a("s_waitcnt lgkmcnt(0)")
    if "notail" in dbg:
        stamp(5); stamp(6); a("s_branch L_hend")
    if tailprof: stamp(1); a("s_waitcnt lgkmcnt(0)")
    PKC = """s_waitcnt lgkmcnt(2)
v_mul_f32 v40, v32, v40
v_mul_f32 v41, v32, v41
v_fmac_f32 v40, v34, v42
v_fmac_f32 v41, v34, v43
s_waitcnt lgkmcnt(0)
v_mul_f32 v44, v36, v44
v_mul_f32 v45, v36, v45
v_fmac_f32 v40, v38, v46
v_fmac_f32 v41, v38, v47
v_add_f32 v40, v40, v44
v_add_f32 v41, v41, v45""" if not pkc else """s_waitcnt lgkmcnt(3)
v_pk_mul_f32 v[40:41], v[40:41], v[32:33] op_sel_hi:[1,0]
s_waitcnt lgkmcnt(2)
v_pk_fma_f32 v[40:41], v[42:43], v[34:35], v[40:41] op_sel_hi:[1,0,1]
s_waitcnt lgkmcnt(1)
v_pk_fma_f32 v[40:41], v[44:45], v[36:37], v[40:41] op_sel_hi:[1,0,1]
s_waitcnt lgkmcnt(0)
v_pk_fma_f32 v[40:41], v[46:47], v[38:39], v[40:41] op_sel_hi:[1,0,1]"""
    if t2:
        for w_ in range(4): a(f"ds_read2st64_b32 v[{40+2*w_}:{41+2*w_}], v20 offset0:{8*w_} offset1:{8*w_+4}")
    elif not dp: a("""
ds_read2_b32 v[40:41], v20 offset0:0 offset1:4
ds_read2_b32 v[42:43], v21 offset0:0 offset1:4
ds_read2_b32 v[44:45], v22 offset0:0 offset1:4
ds_read2_b32 v[46:47], v23 offset0:0 offset1:4
""")
    if not dp: a(f"""
{PKC}
s_cmp_lg_u32 s26, 0
v_cvt_pk_bf16_f32 v52, v40, v41
s_cbranch_scc1 L_h1_far
buffer_store_dwordx2 v[52:53], v25, s[52:55], s{28 if t2 else 6} offen offset:128
L_h1_st:
""")
    stamp(5)
    if wotrig is not None:
        if defer: a("s_cmp_lg_u32 s27, 0\ns_cbranch_scc1 L_dfr")
        if h1e:
            a("s_cmp_lg_u32 s26, 0\ns_cbranch_scc1 L_h1e_far")
            if dry2: a("s_cmp_lg_u32 s31, 0")
            for e_ in range(h1e[0]):
                if len(h1e) > 2: a(f"s_waitcnt vmcnt({h1e[2][e_] + 4 * e_})")
                elif e_: a(f"s_sleep {h1e[1]}")
                for k in range(4): a(f"buffer_load_dwordx4 v[{64+4*k}:{67+4*k}], v26, s[52:55], s7 offen offset:{128+k*(512 if t2 and not t3 else 1024)} {h1fl}")
            a(f"s_waitcnt vmcnt({1 + 4 * h1e[0]})\nL_h1e_done:")
        else: a(f"s_waitcnt vmcnt({0 if dp else 1})")
        if defer: a("L_dfr_done:")
        if dp: stamp(5)
        if "wol" in dbg and "h1it" not in dbg and "h1vm" not in dbg: stamp(3)
        if own1: woread(91, [0])
        if wbar: a(("s_cbranch_scc1 L_nobar\n" if dry2 else "") + "s_barrier" + ("\nL_nobar:" if dry2 else ""))
        elif not t3:
            lds_signal(FLG + 20)
            lds_wait("L_wl", FLG + 20, 4)
        if "wol" in dbg: stamp(1)
        if not womid: woread(91)
        if dp and dpw: lds_wait("L_pw", FLG + 40, dpw)
    a("s_cmp_lg_u32 s26, 0\ns_cbranch_scc1 L_h1_farp")
    def h1poll(sfx, fl, pipe):
        full = [f"buffer_load_dwordx4 v[{64+4*k}:{67+4*k}], v26, s[52:55], s7 offen offset:{128+k*(512 if t2 and not t3 else 1024)} {fl}" for k in range(4)]
        if h1m and sfx == "":
            assert h1e
            a(f"s_mov_b32 s58, {'s30' if dry2 else spin}"); woread(91)
            a("L_h1_chk:\ns_waitcnt vmcnt(0)" if h1m == 1 else "s_waitcnt vmcnt(0)\nL_h1_chk:")
            for k in range(4): a(f"v_bitop3_b32 v{80+k}, v{65+4*k}, v{67+4*k}, s12 bitop3:0x7e")
            for k in range(4): a(f"v_cmp_ne_u32 s[{72+2*k}:{73+2*k}], 0, v{80+k}")
            a("s_or_b64 vcc, s[72:73], s[74:75]\ns_or_b64 s[82:83], s[76:77], s[78:79]\ns_or_b64 vcc, vcc, s[82:83]\ns_cbranch_scc0 L_h1_got\ns_sub_u32 s58, s58, 1\ns_cbranch_scc1 L_h1_got")
            if "h1it" in dbg: stamp(4)
            for k in range(4): a(f"s_mov_b64 exec, s[{72+2*k}:{73+2*k}]\n" + full[k])
            a("s_mov_b64 exec, -1")
            if slp: a(f"s_sleep {slp}")
            if h1m > 1: a(f"s_waitcnt vmcnt({4 * (h1m - 1)})")
            a("s_branch L_h1_chk")
            return
        poll("L_h1" + sfx, full, lambda: chk8([65, 67, 69, 71, 73, 75, 77, 79], 80), st=4, pipe=pipe, stag=stag1, mid=(lambda: woread(91)) if (womid and wotrig is not None) else None, pre=bool(h1e) and sfx == "")
    h1poll("", h1fl, pipe1)
    a("L_h1_got:")
    if "h1it" in dbg: a(f"s_sub_u32 s90, {spin}, s58\ns_mov_b32 s91, 0")
    if "h1vm" in dbg: stamp(3); a(f"s_sub_u32 s98, {spin}, s58\ns_mov_b32 s99, 0")
    if hp2 is not None: a(f"s_setprio {hp2}")
    if wotrig is not None: a("s_waitcnt lgkmcnt(0)")
    stamp(6)
    AO = 96; DD = 112
    if h2e:
        a("s_cmp_lg_u32 s3, 0\ns_cbranch_scc1 L_h2e")
        for l in h2l: a(l)
        a("L_h2e:")
    if h2late and fin != 2: a(f"s_mov_b64 exec, 1\nds_add_rtn_u32 v54, v9, v11 offset:{FLG+24}\ns_mov_b64 exec, -1")
    if fin == 2: a(f"ds_read_b32 v54, v9 offset:{FLG+24}")
    if t2:
        for k in range(4):
            for g_ in range(2):
                a(f"v_lshlrev_b32 v{160+4*k+2*g_}, 16, v{64+4*k+2*g_}\nv_and_b32 v{161+4*k+2*g_}, 0xffff0000, v{64+4*k+2*g_}")
            for g_ in range(2):
                r_ = 160 + 4 * k + 2 * g_; w_ = 56 + (k & 2); sel = k & 1
                if k == 0: a(f"v_pk_mul_f32 v[{84+2*g_}:{85+2*g_}], v[{r_}:{r_+1}], v[{w_}:{w_+1}] op_sel:[0,{sel}] op_sel_hi:[1,{sel}]")
                else: a(f"v_pk_fma_f32 v[{84+2*g_}:{85+2*g_}], v[{r_}:{r_+1}], v[{w_}:{w_+1}], v[{84+2*g_}:{85+2*g_}] op_sel:[0,{sel},0] op_sel_hi:[1,{sel},1]")
        a("v_cvt_pk_bf16_f32 v88, v84, v85\nv_cvt_pk_bf16_f32 v89, v86, v87")
    if fin == 2:
        a("s_waitcnt lgkmcnt(0)\nv_readfirstlane_b32 s27, v54\ns_cmp_lg_u32 s27, 3\ns_cbranch_scc1 L_h2e")
        for l in h2l: a(l)
        a(f"L_h2e:\ns_mov_b64 exec, 1\nds_add_rtn_u32 v54, v9, v11 offset:{FLG+24}\ns_mov_b64 exec, -1")
    if fin == 3:
        a("s_waitcnt lgkmcnt(0)\nv_readfirstlane_b32 s27, v54\ns_cmp_lg_u32 s27, 3\ns_cbranch_scc1 L_h2e")
        for l in h2l: a(l)
        a(f"s_mov_b64 exec, 1\nds_add_u32 v9, v11 offset:{FLG+24}\ns_mov_b64 exec, -1\nL_h2e:")
    def mv(kk, p):
        if t2:
            j_ = 2 * kk + (p >> 1)
            if j_: a(f"v_mov_b32_dpp v{AO+4*kk+p}, v{88+(p&1)} row_ror:{16-j_} row_mask:0xf bank_mask:0xf")
            else: a(f"v_mov_b32 v{AO+4*kk+p}, v{88+(p&1)}")
            return
        src = 64 + 8 * (kk & 1) + 2 * p
        if kk >= 2: a(f"v_mov_b32_dpp v{AO+4*kk+p}, v{src} row_ror:8 row_mask:0xf bank_mask:0xf")
        else: a(f"v_mov_b32 v{AO+4*kk+p}, v{src}")
    if t3 == 2:
        for p in range(4): a(f"ds_bpermute_b32 v{176+p}, v{184+(p>>1)}, v{88+(p&1)}")
        a("s_waitcnt lgkmcnt(0)")
        for nt_ in (0, 2, 1, 3): a(f"v_mfma_f32_16x16x32_bf16 v[{DD+4*nt_}:{DD+4*nt_+3}], v[{WB+4*nt_}:{WB+4*nt_+3}], v[176:179], 0")
        a(f"""
s_mov_b64 exec, s[32:33]
ds_write_b128 v21, v[{DD}:{DD+3}] offset:{RBB}
ds_write_b128 v21, v[{DD+8}:{DD+11}] offset:{RBB+1280}
s_not_b64 exec, s[32:33]
ds_write_b128 v21, v[{DD+4}:{DD+7}] offset:{RBB}
ds_write_b128 v21, v[{DD+12}:{DD+15}] offset:{RBB+1280}
""")
    if t3 == 1:
        ID = "quad_perm:[0,1,2,3]"
        for p in range(4): a(f"v_mov_b32_dpp v{176+p}, v{88+(p&1)} {'row_ror:8' if p >> 1 else ID} row_mask:0xf bank_mask:0x3")
        for p in range(4): a(f"v_mov_b32_dpp v{180+p}, v{88+(p&1)} {ID if p >> 1 else 'row_ror:8'} row_mask:0xf bank_mask:0xc")
        for h_ in range(2):
            for a_ in range(2):
                d = DD + 4 * a_; w_ = WB + 4 * (2 * a_ + h_)
                a(f"v_mfma_f32_16x16x32_bf16 v[{d}:{d+3}], v[{w_}:{w_+3}], v[{176+4*h_}:{179+4*h_}], {'0' if h_ == 0 else f'v[{d}:{d+3}]'}")
        a(f"""
ds_write_b128 v21, v[{DD}:{DD+3}] offset:{RBB}
ds_write_b128 v21, v[{DD+4}:{DD+7}] offset:{RBB+1280}
""")
    if t3:
        a(f"""
s_mov_b64 exec, 0xffffffff
s_waitcnt lgkmcnt(0)
s_barrier
""")
        for w_ in range(4): a(f"ds_read_b128 v[{96+4*w_}:{99+4*w_}], v22 offset:{RBB+2560*w_}")
        a("""
s_waitcnt lgkmcnt(2)
v_pk_add_f32 v[96:97], v[96:97], v[100:101]
v_pk_add_f32 v[98:99], v[98:99], v[102:103]
s_waitcnt lgkmcnt(0)
v_pk_add_f32 v[104:105], v[104:105], v[108:109]
v_pk_add_f32 v[106:107], v[106:107], v[110:111]
v_pk_add_f32 v[96:97], v[96:97], v[104:105]
v_pk_add_f32 v[98:99], v[98:99], v[106:107]
""")
    for p in range(0 if t3 else 4): mv(0, p)
    for kk in range(0 if t3 else 4):
        for nt_ in range(4):
            d = DD + 4 * nt_; b = WB + 16 * nt_ + 4 * kk
            if kk < 3 and nt_ < 2: mv(kk + 1, 2 * nt_); mv(kk + 1, 2 * nt_ + 1)
            a(f"v_mfma_f32_16x16x32_bf16 v[{d}:{d+3}], v[{AO+4*kk}:{AO+4*kk+3}], v[{b}:{b+3}], {'0' if kk == 0 else f'v[{d}:{d+3}]'}")
    GO = 128
    if fin == 3: a("s_mov_b32 s59, s27")
    elif h2late: a("s_waitcnt lgkmcnt(0)\nv_readfirstlane_b32 s59, v54")
    if t3: pack16(GO, [96, 97, 98, 99], 10)
    elif t2: pack16(GO, [DD, DD + 4, DD + 8, DD + 12], 10)
    else:
        for t in range(4):
            a(f"v_mul_f32 v{GO+t}, v56, v{DD+4*t}")
            a(f"v_mul_f32 v{GO+4+t}, v58, v{DD+4*t+2}")
        for t in range(4):
            a(f"v_fmac_f32 v{GO+t}, v57, v{DD+4*t+1}")
            a(f"v_fmac_f32 v{GO+4+t}, v59, v{DD+4*t+3}")
        for t in range(4): a(f"v_add_f32 v{GO+t}, v{GO+t}, v{GO+4+t}")
        pack16(GO, [GO, GO + 1, GO + 2, GO + 3], 10)
    if lbar: a("s_barrier")
    if h2late:
        a(("s_mov_b32 s31, s59\n" if fin else "") + "s_cmp_eq_u32 s59, 3\ns_cbranch_scc1 L_hl_done")
        lds_wait("L_hl", FLG + 24, 5 if fin == 3 else 4, bnd="s30" if dry2 else None)
    a(("" if t3 else "s_mov_b32 exec_lo, 0xffff\ns_mov_b32 exec_hi, 0xffff" if t2 else "s_mov_b64 exec, 0xffffffff") + f"\nbuffer_store_dwordx4 v[{GO}:{GO+3}], v28, s[52:55], s8 offen {h2sf}")
    if tailprof or "wol" in dbg: stamp(2)
    if h2sync and not h2late: lds_signal(FLG + 24)
    a(f"""
s_mov_b64 exec, -1
s_cmp_lg_u32 {"s31, 3" if fin else "s3, 0"}
s_cbranch_scc1 L_hend
""")
    if fin >= 2:
        a("s_cmp_lg_u32 s27, 3\ns_cbranch_scc1 L_h2n\ns_waitcnt vmcnt(1)" if fin == 2 else "s_waitcnt vmcnt(1)")
        r_ = chk16([136, 140], 56, 12)
        a(f"v_cmp_ne_u32 vcc, 0, v{r_}\ns_mov_b32 s58, {spin}\ns_and_b64 exec, exec, vcc\ns_cbranch_execz L_h2_done\nL_h2n:")
    if h2sync and not h2late: lds_wait("L_hw", FLG + 24, 4)
    if h2e:
        a("s_waitcnt vmcnt(1)")
        r_ = chk16([136, 140], 56, 12)
        a(f"v_cmp_ne_u32 vcc, 0, v{r_}\ns_mov_b32 s58, {spin}\ns_and_b64 exec, exec, vcc\ns_cbranch_execz L_h2_done")
    if h2ack: a("s_waitcnt vmcnt(0)")
    if "h2it" in dbg: stamp(1)
    poll("L_h2", h2l, lambda: chk16([136, 140], 56, 12), st=3, pipe=pipe2, stag=stag2, sl=slp2, bnd="s30" if dry2 else None)
    if "h2it" in dbg: stamp(5); a(f"s_sub_u32 s90, {spin}, s58\ns_mov_b32 s91, 0")
    for i in range(8): a(f"v_and_b32 v{48+i}, 0xffffff00, v{136+i}")
    for i in range(4): a(f"v_add_f32 v{48+i}, v{48+i}, v{52+i}")
    a(f"""
v_permlane32_swap_b32 v48, v50
v_permlane32_swap_b32 v49, v51
v_add_f32 v48, v48, v50
v_add_f32 v49, v49, v51
v_permlane16_swap_b32 v48, v49
v_add_f32 v48, v48, v49
v_add_f32_dpp v48, v48, v48 row_ror:4 row_mask:0xf bank_mask:0xf
v_add_f32_dpp v48, v48, v48 row_ror:8 row_mask:0xf bank_mask:0xf
s_mov_b32 exec_lo, 0x000f000f
s_mov_b32 exec_hi, 0x000f000f
v_cvt_pk_bf16_f32 v48, v48, v48
v_lshlrev_b32 v48, 16, v48
v_mul_f32 v48, v48, v16
v_cvt_pk_bf16_f32 v48, v48, v48
v_lshlrev_b32 v48, 16, v48
v_add_f32 v48, v48, v14
v_cvt_pk_bf16_f32 v48, v48, v48
buffer_store_short v48, v30, s[64:67], s10 offen {"sc1" if clean else ""}
s_mov_b64 exec, 1
s_cmp_lg_u32 s2, 0
s_cbranch_scc1 L_hend
v_mov_b32 v60, s42
buffer_store_dword v60, v9, s[52:55], 0 offen sc1
L_hend:
{"s_cmp_lg_u32 s31, 0" if dry2 else ""}
{"s_cbranch_scc1 L_dry_ret" if dry2 else ""}
""")
    if "probe" in dbg: a("s_cmp_ge_u32 s3, 2\ns_cbranch_scc1 L_np7")
    if "h1vm" not in dbg: stamp(7)
    if "probe" in dbg: a("L_np7:")
    if endwait or prof or dbgt: a("s_waitcnt vmcnt(0)")
    if "endst" in dbg: stamp(1)
    if isinstance(dbgt, str):
        AMP = 96 << 20
        def red(op, r, steps, t=70):
            for n in steps:
                if n < 16: a(f"{op}_dpp v{r}, v{r}, v{r} row_ror:{n} row_mask:0xf bank_mask:0xf")
                else: a(f"v_mov_b32 v{t}, v{r}\nv_permlane{n}_swap_b32 v{r}, v{t}\n{op} v{r}, v{r}, v{t}")
        a(f"""
s_cmp_lg_u32 s3, 0
s_cbranch_scc1 L_dbgt
s_memrealtime s[88:89]
s_mov_b64 exec, 1
s_waitcnt lgkmcnt(0)
v_mov_b32 v12, s84
v_mov_b32 v13, s92
v_mov_b32 v14, s88
v_mov_b32 v15, s12
s_lshl_b32 s59, s2, 4
s_add_u32 s59, s59, {AMP}
buffer_store_dwordx4 v[12:15], v9, s[52:55], s59 offen sc1
s_waitcnt vmcnt(0)
s_mov_b64 exec, -1
s_cmp_lg_u32 s2, 0
s_cbranch_scc1 L_dbgt
v_lshlrev_b32 v2, 4, v1
s_mov_b32 s6, {AMP}
""")
        poll("L_amp", [f"buffer_load_dwordx4 v[{40+4*k}:{43+4*k}], v2, s[52:55], s6 offen offset:{1024*k} sc1" for k in range(4)], lambda: chk8([43, 47, 51, 55], 80), sl=8)
        for k in range(4):
            for c in range(3): a(f"v_subrev_u32 v{40+4*k+c}, s84, v{40+4*k+c}")
        ALL = [8, 4, 2, 1, 16, 32]
        def stat(op, c, dst, steps=ALL):
            a(f"{op} v{dst}, v{40+c}, v{44+c}\n{op} v71, v{48+c}, v{52+c}\n{op} v{dst}, v{dst}, v71")
            red(op, dst, steps)
        stat("v_min_i32", 0, 60)
        if dbgt == "startmax": stat("v_max_i32", 0, 61)
        if dbgt == "bmin": stat("v_min_i32", 1, 61)
        if dbgt == "bmax": stat("v_max_i32", 1, 61)
        if dbgt == "emax": stat("v_max_i32", 2, 61)
        if dbgt == "bmean": stat("v_add_u32", 1, 61); a("v_ashrrev_i32 v61, 8, v61")
        if dbgt == "xs":
            stat("v_add_u32", 1, 61, [8, 16, 32]); a("v_ashrrev_i32 v61, 5, v61\nv_mov_b32 v60, v61")
            red("v_max_i32", 61, [4, 2, 1]); red("v_min_i32", 60, [4, 2, 1])
        a(f"""
v_sub_u32 v61, v61, v60
s_nop 1
v_readfirstlane_b32 s59, v61
s_mul_i32 s59, s59, 10
s_add_u32 s59, s59, 5000
s_min_u32 s59, s59, 100000
L_dbgs:
s_memrealtime s[90:91]
s_waitcnt lgkmcnt(0)
s_sub_u32 s58, s90, s84
s_cmp_lt_u32 s58, s59
s_cbranch_scc1 L_dbgs
L_dbgt:
""")
    elif dbgt == 2:
        a(f"""
s_or_b32 s59, s2, s3
s_cmp_lg_u32 s59, 0
s_cbranch_scc1 L_dbgt
s_memrealtime s[88:89]
s_waitcnt lgkmcnt(0)
s_sub_u32 s59, s88, s84
s_mul_i32 s59, s59, 10
s_min_u32 s59, s59, 100000
L_dbgs:
s_memrealtime s[90:91]
s_waitcnt lgkmcnt(0)
s_sub_u32 s58, s90, s88
s_cmp_lt_u32 s58, s59
s_cbranch_scc1 L_dbgs
L_dbgt:
""")
    elif dbgt:
        a(f"""
s_memrealtime s[88:89]
s_memtime s[90:91]
s_mov_b32 s44, s38
s_mov_b32 s45, s39
s_mov_b32 s46, 256
s_mov_b32 s47, 0x20000
s_mov_b64 exec, 1
s_waitcnt lgkmcnt(0)
s_not_b32 s59, s84
v_mov_b32 v12, s88
v_mov_b32 v13, s59
buffer_atomic_umax v12, v9, s[44:47], 0 offen sc1
buffer_atomic_umax v13, v9, s[44:47], 0 offen offset:4 sc1
s_cmp_lg_u32 s3, 0
s_cbranch_scc1 L_dbgt
s_and_b32 s59, s2, 0x7f
s_cmp_lg_u32 s59, 0
s_cbranch_scc1 L_dbgt
s_lshr_b32 s59, s2, 3
v_mov_b32 v12, s84
v_mov_b32 v13, s88
v_mov_b32 v14, s86
v_mov_b32 v15, s90
buffer_store_dwordx4 v[12:15], v9, s[44:47], s59 offen offset:16 sc1
L_dbgt:
s_waitcnt vmcnt(0)
""")
    if prof:
        a(f"""
s_mov_b64 exec, 1
s_sleep 127
s_waitcnt lgkmcnt(0)
s_lshl_b32 s59, s2, 3
s_add_u32 s59, s59, s3
s_add_u32 s59, s59, 4
s_lshl_b32 s59, s59, 6
s_add_u32 s59, s59, {STAMP}
""")
        for i in range(0, 8):
            a(f"v_mov_b32 v12, s{84+2*i}\nv_mov_b32 v13, s{85+2*i}\nbuffer_store_dwordx2 v[12:13], v9, s[52:55], s59 offen offset:{8*i}\ns_waitcnt vmcnt(0)")
    a("L_end:\ns_endpgm")
    if not dp: a("""L_h1_far:
buffer_store_dwordx2 v[52:53], v25, s[52:55], s""" + ("28" if t2 else "6") + """ offen offset:128 sc1
s_branch L_h1_st
""")
    if h1e: a("L_h1e_far:\n" + ("s_cmp_lg_u32 s31, 0\n" if dry2 else "") + "s_waitcnt vmcnt(1)\ns_branch L_h1e_done")
    a("L_h1_farp:")
    h1poll("x", "sc1", 1)
    a("s_branch L_h1_got")
    if defer:
        a(f"""
L_dfr:
s_movk_i32 s58, 2000
L_dfr_l:
buffer_load_dword v93, v92, s[48:51], 0 offen nt
s_waitcnt vmcnt(0)
v_add_u32 v93, s28, v93
v_and_b32 v93, s29, v93
v_cmp_ne_u32 vcc, s29, v93
s_cbranch_vccz L_dfr_go
s_sub_u32 s58, s58, 1
s_cbranch_scc0 L_dfr_l
L_dfr_go:
""")
        for t in range(4): wodma(t, 90, 22, 23)
        a("s_waitcnt vmcnt(0)\ns_branch L_dfr_done")
    if near:
        assert near["nw"] in (1, 2)
        a(f"""L_meas:
s_cmp_lt_u32 s3, 2
s_cbranch_scc1 L_meas_done
s_and_b32 s4, s3, 1
s_lshl_b32 s4, s4, 13
s_lshl_b32 s5, s2, 7
s_add_u32 s4, s4, s5
s_memtime s[76:77]
s_waitcnt lgkmcnt(0)
s_load_dword s5, s[40:41], s4 offset:{MEAS}
s_waitcnt lgkmcnt(0)
s_memtime s[78:79]
s_lshl_b32 s4, s3, 2
v_mov_b32 v5, s4
s_waitcnt lgkmcnt(0)
s_sub_u32 s78, s78, s76
v_mov_b32 v6, s78
ds_write_b32 v5, v6 offset:{OP - 8}
s_waitcnt lgkmcnt(0)
s_branch L_meas_done
L_mpub:
ds_read_b64 v[94:95], v9 offset:{OP}
s_lshl_b32 s4, s2, 3
s_add_u32 s4, s4, {CWOFF}
s_movk_i32 s5, {near.get("cap", 600)}
s_mov_b64 exec, 1
s_waitcnt lgkmcnt(0)
v_sub_u32 v94, v94, v95
v_min_i32 v94, s5, v94
v_sub_u32 v95, 0, v94
v_min_i32 v95, s5, v95
v_sub_u32 v94, 0, v95
v_mov_b32 v95, s12
buffer_store_dwordx2 v[94:95], v9, s[52:55], s4 offen sc1
s_mov_b64 exec, -1
s_branch L_mpub_done
""")
    a("L_qs_far:\n" + (f"ds_write_b32 v9, v11 offset:{FLG+32}\n" if dp else "") + "buffer_store_dwordx4 v[132:135], v25, s[52:55], s72 offen sc1\n" + ("buffer_store_dwordx2 v[136:137], v138, s[52:55], s73 offen sc1\n" if qf else "") + "s_branch L_qs_done\nL_gq_far:")
    qpoll("x", "sc1")
    a("s_branch L_gq_got")
    if fc:
        lean = fc.get("tt", {}).get("notab") and fc["tt"].get("gl") == 2
        if not lean:
            a("L_cb:\ns_waitcnt lgkmcnt(0)\ns_mov_b32 s71, 0")
            for i in range(8): a(f"s_cmp_lg_u32 s{4+i}, s73\ns_addc_u32 s71, s71, 0")
        if not fc.get("wg"):
            a(f"""
s_cmp_lt_u32 s71, {fc['th1']}
s_cselect_b32 s62, 2, 0
s_cmp_ge_u32 s71, {fc['th2']}
s_cselect_b32 s62, 1, s62
""")
            if prof: a("s_lshl_b64 s[82:83], s[82:83], 2\ns_or_b32 s82, s82, s62")
            a("s_setpc_b64 s[80:81]")
        else:
            bias = 16 * fc["CW"]
            TSX = ""; DEC = ""
            if fc.get("dec"):
                DEC = f"s_cmp_eq_u32 s62, 1\ns_cselect_b32 s71, {-fc['dec'][0]}, 0\ns_cmp_eq_u32 s62, 2\ns_cselect_b32 s71, {fc['dec'][1]}, s71\ns_add_u32 s74, s74, s71"
            if fc.get("ts"):
                TSX = "L_cx:\ns_waitcnt lgkmcnt(0)\ns_mov_b32 s71, 0\n"
                for i in range(8): TSX += f"s_sub_u32 s{16+2*i}, s36, s{16+2*i}\ns_cmp_eq_u32 s{17+2*i}, s73\ns_cselect_b32 s{16+2*i}, s{16+2*i}, 0\ns_add_u32 s71, s71, s{16+2*i}\n"
                TSX += f"""s_sub_u32 s32, s36, s32
s_cmp_eq_u32 s33, s73
s_cselect_b32 s32, s32, 0
s_lshl_b32 s32, s32, 3
s_sub_u32 s32, s32, s71
s_mul_i32 s32, s32, {fc['tg']}
s_ashr_i32 s74, s32, 5
s_branch L_cc
"""
            if fc.get("tt"):
                tt = fc["tt"]
                RED = "\n".join(f"v_add_u32_dpp v85, v85, v85 row_ror:{n} row_mask:0xf bank_mask:0xf" for n in (4, 2, 1))
                CW_ = f"""{RED}
v_readfirstlane_b32 s69, v85
s_mul_i32 s69, s69, {round(tt['U'])}
s_lshr_b32 s69, s69, 5
s_sub_u32 s62, s62, s69
"""
                if tt.get("gl"):
                    SUMX = "s_waitcnt lgkmcnt(0)\ns_mov_b32 s71, 0\n"
                    for i in range(8): SUMX += f"s_sub_u32 s{16+2*i}, s36, s{16+2*i}\ns_cmp_eq_u32 s{17+2*i}, s73\ns_cselect_b32 s{16+2*i}, s{16+2*i}, {tt.get('inv', 0)}\ns_add_u32 s71, s71, s{16+2*i}\n"
                    SUMX += "s_ashr_i32 s71, s71, 3\ns_sub_u32 s71, s36, s71\n"
                    TSX = "L_cx:\n" + SUMX
                    if tt["gl"] == 2:
                        TSX = "L_cx:\ns_waitcnt lgkmcnt(0)\ns_add_u32 s62, s62, s70\ns_mov_b32 s71, 0\n"
                        if prof and tt.get("tv"): TSX += "s_lshl_b64 s[82:83], s[82:83], 4\n"
                        for i in range(8):
                            TSX += f"s_sub_u32 s{16+2*i}, s{16+2*i}, s62\ns_cmp_eq_u32 s{17+2*i}, s73\ns_cselect_b32 s{16+2*i}, s{16+2*i}, 0\n"
                            if prof and tt.get("tv"): TSX += "s_addc_u32 s82, s82, 0\n"
                            TSX += f"s_add_u32 s71, s71, s{16+2*i}\n"
                        TSX += f"s_ashr_i32 s71, s71, {3 + tt.get('gsm2', 0)}\ns_add_u32 s70, s70, s71\ns_setpc_b64 s[80:81]\n"
                        SUMX = None
                    if tt.get("gsm"): TSX += f"s_sub_u32 s71, s71, s62\ns_sub_u32 s71, s71, s70\ns_ashr_i32 s71, s71, {tt['gsm']}\ns_add_u32 s70, s70, s71\ns_setpc_b64 s[80:81]\nL_cx0:\n" + SUMX
                    if SUMX: TSX += "s_sub_u32 s70, s71, s62\ns_setpc_b64 s[80:81]\n"
                if lean: a("; re-centre the schedule on the mean of the published clocks (entries without this launch's tag are skipped)\n" + TSX)
                else: a(f"""
s_setpc_b64 s[80:81]
{TSX}
L_cw0:
{CW_}
s_sub_u32 s75, s62, {round(tt['U'] * fc['CW'] / 2)}
s_branch L_cc
L_cw:
{CW_}
s_sub_u32 s62, s62, {round(tt['U'] * fc['CW'] / 2)}
""" + (f"s_sub_u32 s62, s62, s75\ns_ashr_i32 s62, s62, {tt['sm']}\ns_add_u32 s75, s75, s62" if tt.get("sm") else "s_mov_b32 s75, s62") + """
L_cc:
""" + ("" if tt.get("gl") else "s_add_u32 s70, s75, s74") + """
s_setpc_b64 s[80:81]
""")
            else: a(f"""
s_mul_i32 s74, s71, {fc.get('kx', 0)}
{"s_lshl_b64 s[82:83], s[82:83], 4" if prof and fc.get("tm") else ""}
{"s_or_b32 s82, s82, s71" if prof and fc.get("tm") else ""}
s_branch L_cc
{TSX}
L_cw:
v_add_u32_dpp v85, v85, v85 row_ror:4 row_mask:0xf bank_mask:0xf
v_add_u32_dpp v85, v85, v85 row_ror:2 row_mask:0xf bank_mask:0xf
v_add_u32_dpp v85, v85, v85 row_ror:1 row_mask:0xf bank_mask:0xf
v_readfirstlane_b32 s69, v85
s_sub_u32 s75, s68, s69
s_sub_u32 s75, s75, {bias}
{DEC}
L_cc:
s_add_u32 s68, s75, s74
s_cmp_lt_i32 s68, {-fc['b']}
s_cselect_b32 s62, 2, 0
s_cmp_gt_i32 s68, {fc['a']}
s_cselect_b32 s62, 1, s62
""")
            if prof and not fc.get("tm") and not fc.get("tt"): a("s_lshl_b64 s[82:83], s[82:83], 2\ns_or_b32 s82, s82, s62")
            if not fc.get("tt"): a("s_setpc_b64 s[80:81]")
    a("; one output column of the token MLP: sum_f gelu_tanh(h*w1+b1)*w2 over this wave's quarter of F\nL_mlp:")
    if mr:
        a("; (the product, the biased sum and the activation are rounded to bf16 where the reference's bf16 tensors round them)")
        for t in range(7): a(f"v_mul_f32 v{U+t}, s4, v{W1+t}")
        for t in range(7): a(f"v_cvt_pk_bf16_f32 v{U+t}, 0, v{U+t}")
        for t in range(7): a(f"v_add_f32 v{U+t}, v{U+t}, v{B1+t}")
        for t in range(7): a(f"v_cvt_pk_bf16_f32 v{U+t}, 0, v{U+t}")
    else:
        for t in range(7): a(f"v_fma_f32 v{U+t}, s4, v{W1+t}, v{B1+t}")
    for t in range(7): a(f"v_mul_f32 v{AA+t}, v{U+t}, v{U+t}")
    for t in range(7): a(f"v_fmaak_f32 v{AA+t}, v{AA+t}, v{C1}, {f32(c0)}")
    for t in range(7): a(f"v_mul_f32 v{AA+t}, v{AA+t}, v{U+t}")
    for t in range(7): a(f"v_exp_f32 v{EE+t}, v{AA+t}")
    if not mr:
        for t in range(7): a(f"v_mul_f32 v{U+t}, v{U+t}, v{W2+t}")
    for t in range(7): a(f"v_add_f32 v{EE+t}, 1.0, v{EE+t}")
    for t in range(7): a(f"v_rcp_f32 v{EE+t}, v{EE+t}")
    if mr:
        for t in range(7): a(f"v_mul_f32 v{EE+t}, v{U+t}, v{EE+t}")
        for t in range(7): a(f"v_cvt_pk_bf16_f32 v{EE+t}, 0, v{EE+t}")
    M2 = W2 if mr else U
    a(f"v_mul_f32 v{ACC2}, v{M2}, v{EE}")
    a(f"v_mul_f32 v{AA}, v{M2+1}, v{EE+1}")
    for t in range(2, 7): a(f"v_fmac_f32 v{ACC2 if t % 2 == 0 else AA}, v{M2+t}, v{EE+t}")
    a(f"v_add_f32 v{ACC2}, v{ACC2}, v{AA}")
    for n in (8, 4, 2, 1): a(f"v_add_f32_dpp v{ACC2}, v{ACC2}, v{ACC2} row_ror:{n} row_mask:0xf bank_mask:0xf")
    swaps_add(ACC2, AA)
    a(f"""
s_mov_b64 exec, 1
ds_write_b32 v{YA}, v{ACC2} offset:{YP}
s_mov_b64 exec, -1
v_add_u32 v{YA}, 4, v{YA}
L_last:
s_setpc_b64 s[80:81]
""")
    body = a.render()
    if "allsc1st" in dbg:
        import re
        body = re.sub(r"(buffer_store_dwordx[24] v\[\d+:\d+\], v\d+, s\[52:55\], s(6|72) offen( offset:128)?)\n", r"\1 sc1\n", body)
    if "allsc1ld" in dbg:
        import re
        body = re.sub(r"(buffer_load_dwordx4 v\[\d+:\d+\], v\d+, s\[52:55\], s[67] offen( offset:\d+)?) nt\n", r"\1 sc1\n", body)
    txt = HDR + f"""; @launch grid=(256,1,1) block=(512,1,1) lds={LDSZ}
.amdgcn_target "amdgcn-amd-amdhsa--gfx950"
; ---------------------------------------------------------------------------------------------------------
; out = x + (softmax(q K^T / sqrt(128)) V) Wo * silu(token_mlp(LN(LN(x)))),  q = LN(x) Wq.   One launch, 256 workgroups.
; Workgroup id = b*32 + split*8 + x : batch b, kv head x, quarter `split` of the 4096 cached tokens.
;  waves 0-3 (stream): read the K and V rows of this workgroup once (nt), scores by MFMA, true max + exp, P.V by MFMA.
;  waves 4-7 (helper): LN, a 128x64 tile of Wq (partials exchanged through d_ws), the token MLP gate for 16 output
;                      columns, softmax statistics exchange, partial-O hand-off (hop 1), a 128x64 tile of Wo,
;                      hand-off of the projected partial sums (hop 2), final sum / gate / residual / store.
; Hand-offs: every granule in d_ws carries this launch's tag (ws[0]+1; workgroup 0 stores the tag back at the end), so
;  words left by earlier launches or by the harness are never taken for data.  All polls are bounded.
; Placement: hop 2 and the clock/vote words always use sc1 (memory-side) accesses.  The exchanges inside a group of 32
;  workgroups use plain stores only after the group has PROVEN (tagged table indexed by the hardware XCC id) that all
;  32 share one L2; otherwise they use sc1 stores/loads, so any placement gives the same result.
; Bandwidth sharing: HBM is saturated for the whole stream, and the launch ends with the slowest workgroup.  Each stream
;  wave compares its progress with the mean progress of all dies (clock values exchanged in d_ws, this launch only) and
;  keeps 4..12 loads in flight accordingly (behind: more, ahead: fewer).  This only selects s_waitcnt vmcnt depths;
;  nothing waits on the clock.  The s_memtime probe at the start picks which half of the hop-2 area is closer to its
;  readers (all workgroups read the same 16 votes, so they agree); either choice is correct.
; ---------------------------------------------------------------------------------------------------------
.text
.globl {KN}_kernel
.p2align 8
.type {KN}_kernel,@function
{KN}_kernel:
""" + body + f""".section .rodata,"a"
.p2align 6
.amdhsa_kernel {KN}_kernel
  .amdhsa_next_free_vgpr 256
  .amdhsa_next_free_sgpr 102
  .amdhsa_accum_offset 256
  .amdhsa_group_segment_fixed_size 0
  .amdhsa_kernarg_size 104
  .amdhsa_user_sgpr_count 2
  .amdhsa_user_sgpr_kernarg_segment_ptr 1
  .amdhsa_system_sgpr_workgroup_id_x 1
.end_amdhsa_kernel
"""
    open(fname, "w").write(txt)
if __name__ == "__main__":
    import glob, os
    for f in glob.glob("kp_*.s"): os.remove(f)
    gen("k1.s", mlp1=4, slp=0)
    kw = dict(prof=True, tailprof=True, mlp1=4, slp=0, rq=1, wolate=[5, 7, 9, 11])
    gen("kp_00.s", **kw)
    F = dict(wg=1, x=1, G=2, kx=24, a=64, b=-16, W=(4,6,12), d=6, C=3, CW=2)
    gen("kp_01.s", fc=F, **kw)
    gen("kp_02_nowork.s", fc=F, dbg="nok nosm nov", **kw)
    gen("kp_03_nosm.s", fc=F, dbg="nosm", **kw)
    gen("kp_04_nowq.s", fc=F, dbg="nowq", **kw)
    gen("kp_05_nowork_nowq.s", fc=F, dbg="nok nosm nov nowq", **kw)
    gen("kp_06_nowork_nowq_nomlp.s", fc=F, dbg="nok nosm nov nowq nomlp", **kw)
    gen("kp_07_nofc_nowork.s", dbg="nok nosm nov", **kw)
    gen("kp_08_nofc_nowork_nowq.s", dbg="nok nosm nov nowq", **kw)
```

```python
import gen
kw = dict(mlp1=2, slp=0, rq=1, wolate=[5, 7, 9, 11], palign=7, near=dict(nw=2), wotrig=203, wosw=1, t2=1, b3=1, wosl=1, h1e=(1,0,[4]), h1m=1, h2pre=("z", 64), wbar=1, own1=True)
F = dict(wg=1, x=0, G=2, kx=24, a=64, b=40, W=(4,6,12), d=5, C=3, CW=2, stop=0, tg=4, dl=3)
T6 = [4, 13, 22, 31, 40, 49]
P2 = [(12,-40),(8,-15),(6,15),(5,40),(4,0)]
def g(n, U=28, lv=P2, **kw2): gen.gen(n, fc={**F, "tt": dict(gl=2, notab=1, U=U, lv=lv), "ts": T6}, **{**kw, **kw2})
g("k13a.s"); g("k13_mixw.s", dbg="mixw"); g("k13_mixj.s", dbg="mixj"); g("k13_clean.s", clean=True)

g("k14a.s", mr=1); g("k14_mixw.s", dbg="mixw", mr=1); g("k14_mixj.s", dbg="mixj", mr=1); g("k14_clean.s", clean=True, mr=1)

g("k15a.s", mr=1, qf=1); g("k15_mixw.s", dbg="mixw", mr=1, qf=1); g("k15_mixj.s", dbg="mixj", mr=1, qf=1); g("k15_clean.s", clean=True, mr=1, qf=1)

K16 = dict(mr=1, qf=1, dry2=1)
g("k16a.s", **K16); g("k16_mixw.s", dbg="mixw", **K16); g("k16_mixj.s", dbg="mixj", **K16); g("k16_clean.s", clean=True, **K16)

g("k17a.s", mr=1, qf=1, cpf=1); g("k17b.s", mr=1, qf=1, cpf=1, dry2=1)

g("k17c.s", mr=1, qf=1, cpf=3, palign=0)

g("k17d.s", mr=1, qf=1, cpf=4, palign=0)
K17 = dict(mr=1, qf=1, cpf=4, palign=0)
g("k17_mixw.s", dbg="mixw", **K17); g("k17_mixj.s", dbg="mixj", **K17); g("k17_clean.s", clean=True, **K17)
```

```python
import sys, struct, math
from asmlib import Asm
KN = "recurrent_scan__gqa_block_cached__mixer_token_mlp__decode"
def f32(x): return "0x%08x" % struct.unpack("<I", struct.pack("<f", x))[0]
LOG2E = 1.4426950408889634
FLG = 0; QL = 64; ST = QL + 1024; YP = ST + 128; OP = YP + 256; XN = OP + 4 * 2304; XRS = 1040; WQL = XN + 8 * XRS; KL = WQL + 32768
QOFF = 64 << 10; H1OFF = QOFF + (1 << 20); H1S = 4224; H2OFF = H1OFF + (640 << 10); BD = 4 << 20; PGOFF = 8 << 10; LOCOFF = 32 << 10; STAMP = 128 << 20
HDR = open("cdna_kernels/" + KN + ".s.ref").read().split("; Override launch")[0]

def gen(fname, WIN=6, G=2, RING=40, prof=False, wo_thr=4, ntw="", woflags="", spin=400000, dbg="", WPS=1, dry=False, tailprof=False, NLT=6, slp=2, wqdma=True, sprio=2, bgprio=0, mlp1=8, local=True, fb=31, deferB=True, pretouch=False, pat=None, pat2=None, rot=None, cmap=0, light=False, lslp=0, h1fl='nt', h2sync=True, fc=None, est=None, rq=0, ro=0, sE=True, wolate=None, n0=64, pipe1=1, pipe2=1, stag1=3, stag2=3, h2late=True, h2ack=True, h2pre=False, h2full=False, slp2=0, dbgt=False, dirty=0, clean=False, qslp=None, nloc=200, tmap=(14, 16, None), wotrig=None, wothr=2, wosl=2, womid=True, palign=0, defer=None, h2off=None, tlbw=False, near=None, endwait=False, lastopt=True, pkc=True, warm='', hdel=0, wqdel=0, dp=False, dpt='c3', dpf=4, dpw=0, dpc=6, dpfl="nt", dpp=0, hp=3, hp2=None, h1e=None, wosw=False, t2=False, prew=True, b3=False, wodl=None, t3=False, h1m=0, h2fl='sc1', h2e=False, h2sf='sc1', qprew=False, trot=None, trotw=0, wbar=0, own1=False, lbar=False, fin=0, mr=0, qf=0, dry2=0, cpf=0, lkw=0, dsl=64, prer=None, prp='s', pwe=None, h1sl=0, qk=0, wqfl='nt', eb=0):
    if fin: assert h2late and not h2e
    if lbar: h2late = False; h2sync = False
    if t3: t2 = True; h2late = False; h2sync = False; assert womid and wotrig is not None
    if t2: assert not dp and lastopt and wosw and not h2full and pkc and not defer
    if dp: assert fc and tmap[2] is None and wotrig is not None and wotrig >= 200
    H2OFF = (576 << 10) if h2off is None else h2off
    MEAS = 48 << 10; CWOFF = 16 << 10
    a = Asm()
    LDSZ = KL + 4 * NLT * 4096
    NLL = 4 * NLT
    NST = 8
    def stamp(i):
        if prof: a(f"s_memrealtime s[{84+2*i}:{85+2*i}]")
    stamp(0)
    if dbgt: a("s_memrealtime s[84:85]\ns_memtime s[86:87]")
    if cpf == 4:
        assert tmap == (14, 16, None) and not trot and not trotw and rot is None
        a(f"""
s_load_dwordx2 s[44:45], s[0:1], 8
v_lshrrev_b32 v2, 6, v0
s_lshr_b32 s53, s2, 5
v_and_b32 v1, 63, v0
v_readfirstlane_b32 s3, v2
s_cmp_ge_u32 s53, 8
s_cbranch_scc1 L_end
s_cmp_ge_u32 s3, 4
s_cbranch_scc1 L_hstub
s_lshl_b32 s46, 1, 26
s_lshl_b32 s47, 1, 17
s_and_b32 s52, s2, 7
s_lshl3_add_u32 s52, s53, s52
s_lshl_b32 s52, s52, 20
s_and_b32 s53, s2, 24
s_lshl1_add_u32 s53, s3, s53
s_lshl_b32 s53, s53, 11
s_or_b32 s52, s52, s53
s_mul_i32 s60, s3, {NLT*4096}
s_add_u32 s60, s60, {KL}
s_mov_b32 m0, s60
v_lshrrev_b32 v5, 4, v1
v_bfe_u32 v6, v1, 2, 2
v_and_b32 v7, 3, v1
v_lshlrev_b32 v2, 8, v6
v_lshl_add_u32 v2, v5, 6, v2
v_lshl_add_u32 v2, v7, 4, v2
""")
    else: a(f"""
s_load_dwordx2 s[44:45], s[0:1], 8
s_load_dwordx2 s[48:49], s[0:1], 16
v_lshrrev_b32 v2, 6, v0
s_cmp_ge_u32 s2, 256
v_and_b32 v1, 63, v0
v_readfirstlane_b32 s3, v2
s_cbranch_scc1 L_end
s_cmp_ge_u32 s3, 4
s_cbranch_scc1 {"L_hstub" if cpf else "L_helper"}
""")
    if cpf != 4: a(f"""
s_setprio {sprio}
s_mov_b32 s46, 0x4000000
s_mov_b32 s47, 0x20000
s_and_b32 s52, s2, 7
s_lshl_b32 s52, s52, 20
s_lshr_b32 s53, s2, 5
s_lshl_b32 s53, s53, 23
s_or_b32 s52, s52, s53
s_bfe_u32 s53, s2, 0x20003
s_lshl_b32 s53, s53, {tmap[0]}
s_or_b32 s52, s52, s53
s_lshl_b32 s53, s3, 12
s_or_b32 s52, s52, s53
s_mul_i32 s60, s3, {NLT*4096}
s_add_u32 s60, s60, {KL}
v_lshrrev_b32 v5, 4, v1
v_bfe_u32 v6, v1, 2, 2
v_and_b32 v7, 3, v1
v_lshlrev_b32 v2, 8, v6
v_lshl_add_u32 v2, v5, 6, v2
v_lshl_add_u32 v2, v7, 4, v2
""")
    if trot: a(f"s_bfe_u32 s53, s2, {hex((trot[1] << 16) | trot[0])}\ns_lshl_b32 s53, s53, {trot[2]}\ns_xor_b32 s52, s52, s53")
    if trotw: a(f"s_lshl_b32 s53, s3, {trotw}\ns_xor_b32 s52, s52, s53")
    if tmap[2]: a(f"s_and_b32 s53, s2, 7\ns_lshl_b32 s53, s53, {tmap[2]}\ns_xor_b32 s52, s52, s53")
    LATEB = """
s_waitcnt lgkmcnt(0)
s_load_dword s73, s[40:41], 0
s_mov_b32 s76, s40
s_mov_b32 s77, s41
s_mov_b32 s78, 0x10000000
s_mov_b32 s79, 0x20000
"""
    if eb: assert cpf == 4 and fc.get("tt", {}).get("notab") and fc.get("k0", 2) > eb
    def late_setup():
        a(f"""
{"" if fc and fc.get("tt", {}).get("notab") else "s_load_dwordx2 s[38:39], s[0:1], 88"}
s_load_dwordx2 s[40:41], s[0:1], 96
s_mov_b32 s50, 0x4000000
s_mov_b32 s51, 0x20000
v_lshlrev_b32 v3, 4, v1
""")
        if fc and fc.get("tt", {}).get("notab"): a(f"""
; schedule exchange: wave 0 of one workgroup per group publishes its clock at a few steps (slot = id&7)
s_lshr_b32 s64, s2, 3
s_cmp_eq_u32 s3, 0
s_cselect_b32 s64, s64, 64
s_and_b32 s65, s2, 7
s_lshl_b32 s65, s65, 3
v_mov_b32 v83, s65
{"s_mov_b64 s[82:83], 0" if prof else ""}
{"s_cselect_b64 vcc, 1, 0" if fc.get("vw") else ""}
""" + ("" if eb else LATEB))
        elif fc: a(f"""
s_lshr_b32 s64, s2, 3
s_cmp_eq_u32 s3, 0
s_cselect_b32 s64, s64, 64
s_and_b32 s65, s2, 7
s_lshl_b32 s63, s65, 3
s_lshl_b32 s65, s65, {3 if fc.get("ts") else 2}
v_mov_b32 v83, s65
s_mov_b32 s62, {fc.get('l0', 0)}
s_mov_b64 s[82:83], 0
s_getreg_b32 s66, hwreg(HW_REG_XCC_ID, 0, 3)
s_lshl_b32 s66, s66, 5
s_lshr_b32 s67, s2, 3
s_add_u32 s67, s67, s66
v_mov_b32 v88, s67
v_and_b32 v87, 7, v1
v_lshl_add_u32 v87, v87, 2, s66
s_mov_b32 s74, 0
s_mov_b32 s75, 0
s_cmp_eq_u32 s3, 0
s_cselect_b64 vcc, 1, 0
s_waitcnt lgkmcnt(0)
s_load_dword s73, s[40:41], 0
s_mov_b32 s76, s40
s_mov_b32 s77, s41
s_mov_b32 s78, 0x10000000
s_mov_b32 s79, 0x20000
s_mov_b32 s12, s38
s_mov_b32 s13, s39
s_mov_b32 s14, 256
s_mov_b32 s15, 0x20000
""")
    RB = 256 - RING * 4
    def rreg(n): return RB + ((n - NLL) % RING) * 4
    NL = 128
    st = {"tile": None}
    def stub(): a(f"""
s_branch L_go
L_hstub:
; one helper wave per workgroup reads a quarter of this kernel's code as data, so later instruction fetches find it in L2
{"s_bfe_u32 s4, s2, 0x20003" if cpf != 2 else ""}
{"s_add_u32 s4, s4, 4" if cpf != 2 else ""}
{"s_cmp_lg_u32 s4, s3" if cpf != 2 else ""}
{"s_cbranch_scc1 L_helper" if cpf != 2 else ""}
s_getpc_b64 s[4:5]
L_pc:
v_lshlrev_b32 v2, 7, v0
s_sub_u32 s4, s4, 32768+L_pc-{KN}_kernel
s_subb_u32 s5, s5, 0
v_min_u32 v2, 32768+L_last-{KN}_kernel, v2
global_load_dword v255, v2, s[4:5]
s_branch L_helper
""")
    def stub4(): a(f"""
s_branch L_go
L_hstub:
; one helper wave per workgroup reads a quarter of this kernel's code as data, so later instruction fetches find it in L2
s_lshr_b32 s4, s2, 3
s_xor_b32 s4, s4, s3
s_and_b32 s4, s4, 3
s_cbranch_scc1 L_helper
s_getpc_b64 s[4:5]
L_pc:
v_lshlrev_b32 v2, 7, v0
v_add_u32 v2, -32768, v2
v_min_u32 v2, L_last-L_pc, v2
global_load_dword v255, v2, s[4:5]
s_branch L_helper
L_go:
{"s_barrier" if eb else ""}
s_setprio {sprio}
s_load_dwordx2 s[48:49], s[0:1], 16
""")
    def issue(n):
        isv = n >= 64; t = (n & 63) >> 2; q = n & 3
        if cpf == 4 and n < 4:
            if n == 0:
                a("s_waitcnt lgkmcnt(0)")
                if st.get("ks"): stamp(7)
            st["tile"] = (isv, t)
            a(f"buffer_load_dwordx4 v2, s[44:47], s52 offen offset:{q*1024} nt lds"); return
        if cpf == 4 and n == 4:
            st["tile"] = (isv, t)
            a(f"s_add_u32 m0, s60, {t*4096}\ns_xor_b32 s53, s52, {t << tmap[1]}")
        if st["tile"] != (isv, t):
            st["tile"] = (isv, t)
            if tmap: a(f"s_xor_b32 s53, s52, {t << tmap[1]}")
            elif rot is None: a(f"s_add_u32 s53, s52, {t*16384}")
            else: a(f"s_add_u32 s53, s61, {t*16384}\ns_and_b32 s53, s53, 0x3ffff\ns_add_u32 s53, s53, s52")
            if n < NLL: a(f"s_add_u32 m0, s60, {t*4096}\ns_nop 0")
            if n == 0:
                if cpf in (1, 2): stub()
                if palign: a(f".p2align {palign}")
                if cpf in (1, 2): a("L_go:")
                a("s_waitcnt lgkmcnt(0)")
                if st.get("ks"): stamp(7)
        if n < NLL:
            a(f"buffer_load_dwordx4 v2, s[44:47], s53 offen offset:{q*1024} nt lds"); return
        r = rreg(n)
        a(f"buffer_load_dwordx4 v[{r}:{r+3}], {'v3' if isv else 'v2'}, {'s[48:51]' if isv else 's[44:47]'}, s53 offen offset:{q*1024} nt")
    TSR = 6
    QB = 8; Y = 12; ACC = 28; DT = 28; TT = 44; PT = 60; PA = 76; M = 80
    def setup_consts():
        a(f"""
s_mov_b32 s54, 0x05040100
s_mov_b32 s55, 0x07060302
s_mov_b32 s56, {f32(128**-0.5)}
s_mov_b32 s57, {f32(LOG2E)}
v_lshlrev_b32 v4, 8, v7
v_lshl_add_u32 v4, v5, 6, v4
v_lshl_add_u32 v4, v6, 4, v4
v_mov_b32 v84, 0
v_add_u32 v86, s60, v3
""")
    def wait_q():
        stamp(1)
        if "noq" in dbg:
            a(f"ds_read_b128 v[{QB}:{QB+3}], v4 offset:{QL}\ns_waitcnt lgkmcnt(0)"); stamp(2); return
        a(f"""
s_mov_b32 s58, {spin*8}
L_sq:
ds_read_b32 v85, v84 offset:{FLG+4}
s_waitcnt lgkmcnt(0)
v_readfirstlane_b32 s59, v85
s_sub_u32 s58, s58, 1
s_cbranch_scc1 L_sq_done
s_cmp_ge_u32 s59, 4
s_cbranch_scc1 L_sq_done
s_sleep 1
s_branch L_sq
L_sq_done:
ds_read_b128 v[{QB}:{QB+3}], v4 offset:{QL}
{f"ds_read_b32 v85, v84 offset:{FLG+32}" if dp else ""}
s_waitcnt lgkmcnt(0)
{"v_readfirstlane_b32 s42, v85" if dp else ""}
""")
        stamp(2)
        if prof: a("s_waitcnt lgkmcnt(0)")
    def ktile(t):
        if t < NLT:
            for q in range(4): a(f"ds_read_b128 v[{PT+4*q}:{PT+4*q+3}], v86 offset:{t*4096+q*1024}")
        for q in range(4):
            r = rreg(4 * t + q) if t >= NLT else PT + 4 * q
            if t < NLT: a(f"s_waitcnt lgkmcnt({3-q})")
            a(f"v_mfma_f32_16x16x32_bf16 v[{DT+4*q}:{DT+4*q+3}], v[{r}:{r+3}], v[{QB}:{QB+3}], 0")
        for c in range(4):
            for r in range(4):
                n = 4 * ((c - r) % 4)
                ctl = f"row_ror:{n}" if n else "quad_perm:[0,1,2,3]"
                a(f"v_mov_b32_dpp v{TT+r}, v{DT+4*c+r} {ctl} row_mask:0xf bank_mask:{hex(1<<c)}")
        y = Y + t
        a(f"""
v_add_f32 v{TT}, v{TT}, v{TT+1}
v_add_f32 v{TT+2}, v{TT+2}, v{TT+3}
v_add_f32 v{y}, v{TT}, v{TT+2}
v_cvt_pk_bf16_f32 v{y}, v{y}, v{y}
v_lshlrev_b32 v{y}, 16, v{y}
v_mul_f32 v{y}, s56, v{y}
v_cvt_pk_bf16_f32 v{y}, v{y}, v{y}
v_lshlrev_b32 v{y}, 16, v{y}
""")
    def xlane(op, r, t):
        a(f"""
{op}_dpp v{r}, v{r}, v{r} row_ror:4 row_mask:0xf bank_mask:0xf
""") if op != "v_add_f32" else a(f"""
v_add_f32_dpp v{r}, v{r}, v{r} row_ror:4 row_mask:0xf bank_mask:0xf
""")
        a(f"""
{op}_dpp v{r}, v{r}, v{r} row_ror:8 row_mask:0xf bank_mask:0xf
v_mov_b32 v{t}, v{r}
v_permlane16_swap_b32 v{r}, v{t}
{op} v{r}, v{r}, v{t}
v_mov_b32 v{t}, v{r}
v_permlane32_swap_b32 v{r}, v{t}
{op} v{r}, v{r}, v{t}
""")
    def softmax():
        m = M; l = M + 1; t = M + 2
        a(f"v_max3_f32 v{m}, v{Y}, v{Y+1}, v{Y+2}")
        for i in range(3, 15, 2): a(f"v_max3_f32 v{m}, v{m}, v{Y+i}, v{Y+i+1}")
        a(f"v_max_f32 v{m}, v{m}, v{Y+15}")
        xlane("v_max_f32", m, t)
        a(f"v_mul_f32 v{m}, s57, v{m}")
        for i in range(16): a(f"v_fma_f32 v{Y+i}, v{Y+i}, s57, -v{m}")
        for i in range(16): a(f"v_exp_f32 v{Y+i}, v{Y+i}")
        a(f"v_add_f32 v{l}, v{Y}, v{Y+1}")
        a(f"v_add_f32 v{t}, v{Y+2}, v{Y+3}")
        for i in range(4, 16, 2):
            a(f"v_add_f32 v{l}, v{l}, v{Y+i}")
            a(f"v_add_f32 v{t}, v{t}, v{Y+i+1}")
        a(f"v_add_f32 v{l}, v{l}, v{t}")
        for v in range(8): a(f"v_cvt_pk_bf16_f32 v{Y+v}, v{Y+2*v}, v{Y+2*v+1}")
        if t2:
            for i in range(16): a(f"v_mov_b32 v{PA4+i}, 0")
        xlane("v_add_f32", l, t)
        a(f"""
s_lshl_b32 s59, s3, 5
v_lshl_add_u32 v{t}, v1, 3, s59
s_mov_b64 exec, 15
ds_write_b64 v{t}, v[{m}:{m+1}] offset:{ST}
s_mov_b64 exec, 1
v_mov_b32 v{t}, 1
ds_add_u32 v84, v{t} offset:{FLG+16}
s_mov_b64 exec, -1
""")
    PA4 = 36
    def mkpa(v):
        if t2:
            for c in range(4):
                for p in range(4):
                    n = 4 * ((c - p) % 4)
                    a(f"v_mov_b32_dpp v{PA4+4*c+p}, v{Y+v} {f'row_ror:{n}' if n else 'quad_perm:[0,1,2,3]'} row_mask:0xf bank_mask:{hex(1<<c)}")
            return
        a(f"v_mov_b32 v{PA}, v{Y+v}")
        for p in (1, 2, 3):
            a(f"v_mov_b32_dpp v{PA+p}, v{Y+v} row_ror:{4*((0-p)%4)} row_mask:0xf bank_mask:0xf")
    def vchunk(v):
        mkpa(v)
        for half in range(2):
            for jj in range(4 * half, 4 * half + 4):
                o = PT + 4 * (jj & 3)
                for p in range(4):
                    lo = rreg(64 + 8 * v + p) + (jj >> 1); hi = rreg(64 + 8 * v + 4 + p) + (jj >> 1)
                    a(f"v_perm_b32 v{o+p}, v{hi}, v{lo}, {'s55' if jj & 1 else 's54'}")
            for jj in range(4 * half, 4 * half + 4):
                o = PT + 4 * (jj & 3); d = ACC + 4 * jj
                pa = PA
                if t2: d = ACC + 4 * half; pa = PA4 + 4 * (jj & 3)
                c = "0" if (v == 0 and (not t2 or jj & 3 == 0)) else f"v[{d}:{d+3}]"
                a(f"v_mfma_f32_16x16x32_bf16 v[{d}:{d+3}], v[{pa}:{pa+3}], v[{o}:{o+3}], {c}")
    def s_wait(lbl, off, cnt):
        a(f"""
s_mov_b32 s58, {spin*8}
{lbl}:
ds_read_b32 v85, v84 offset:{off}
s_waitcnt lgkmcnt(0)
v_readfirstlane_b32 s59, v85
s_sub_u32 s58, s58, 1
s_cbranch_scc1 {lbl}_done
s_cmp_lt_u32 s59, {cnt}
s_cbranch_scc1 {lbl}
{lbl}_done:
""")
    def s_sig(off): a(f"s_mov_b64 exec, 1\nv_mov_b32 v82, 1\nds_add_u32 v84, v82 offset:{off}\ns_mov_b64 exec, -1")
    AQ = [20, 24, 12, PA]
    def fitem(v0):
        T_ = PT
        s_wait("L_d1", FLG + 16, 4)
        a(f"""
v_and_b32 v4, 3, v1
v_lshlrev_b32 v4, 3, v4
ds_read_b32 v{T_}, v4 offset:{ST}
ds_read_b32 v{T_+1}, v4 offset:{ST+32}
ds_read_b32 v{T_+2}, v4 offset:{ST+64}
ds_read_b32 v{T_+3}, v4 offset:{ST+96}
v_lshlrev_b32 v4, 1, v4
v_lshrrev_b32 v10, 4, v1
v_lshl_add_u32 v4, v10, 6, v4
v_bfe_u32 v11, v1, 2, 2
v_lshl_add_u32 v4, v11, 2, v4
s_lshl_b32 s59, s3, 8
v_add_u32 v4, s59, v4
s_waitcnt lgkmcnt(0)
v_max3_f32 v{T_}, v{T_}, v{T_+1}, v{T_+2}
v_max_f32 v{T_}, v{T_}, v{T_+3}
v_sub_f32 v{T_}, v{M}, v{T_}
v_exp_f32 v{T_}, v{T_}
""")
        for v in range(v0, 8): a(f"v_lshlrev_b32 v{T_+8+2*(v-v0)}, 16, v{Y+v}\nv_and_b32 v{T_+9+2*(v-v0)}, 0xffff0000, v{Y+v}")
        for i in range(4): a(f"v_mov_b32_dpp v{T_+4+i}, v{T_} quad_perm:[{i},{i},{i},{i}] row_mask:0xf bank_mask:0xf")
        for v in range(v0, 8): a(f"v_pk_mul_f32 v[{T_+8+2*(v-v0)}:{T_+9+2*(v-v0)}], v[{T_+8+2*(v-v0)}:{T_+9+2*(v-v0)}], v[{T_}:{T_+1}] op_sel_hi:[1,0]")
        for v in range(v0, 8): a(f"v_cvt_pk_bf16_f32 v{Y+v}, v{T_+8+2*(v-v0)}, v{T_+9+2*(v-v0)}")
        a(f"ds_write_b32 v4, v{Y+7} offset:{QL}")
        s_sig(FLG + 44)
        for jj in range(8):
            d_ = ACC + 4 * jj
            a(f"v_pk_mul_f32 v[{d_}:{d_+1}], v[{d_}:{d_+1}], v[{T_+4}:{T_+5}]\nv_pk_mul_f32 v[{d_+2}:{d_+3}], v[{d_+2}:{d_+3}], v[{T_+6}:{T_+7}]")
        a(f"""
v_lshlrev_b32 v9, 6, v10
v_lshl_add_u32 v9, v11, 4, v9
s_lshl_b32 s59, s3, 2
v_add_u32 v4, s59, v11
v_mul_u32_u24 v4, 144, v4
v_lshl_add_u32 v4, v10, 2, v4
v_and_b32 v8, 3, v1
v_lshl_add_u32 v4, v8, 5, v4
v_mul_u32_u24 v10, {4*H1S}, v10
v_lshl_add_u32 v10, v11, 8, v10
v_bfe_u32 v8, v1, 1, 1
v_lshl_add_u32 v10, v8, 10, v10
v_and_b32 v8, 1, v1
v_lshl_add_u32 v10, v8, 3, v10
v_mov_b32 v11, v9
s_and_b32 s43, s2, 7
s_lshl_b32 s43, s43, 4
s_lshr_b32 s59, s2, 6
s_add_u32 s43, s43, s59
s_mul_i32 s43, s43, {H1S}
s_bfe_u32 s59, s2, 0x30003
s_lshl_b32 s59, s59, 4
s_add_u32 s43, s43, s59
s_lshr_b32 s59, s3, 1
s_lshl_b32 s59, s59, 7
s_add_u32 s43, s43, s59
s_and_b32 s59, s3, 1
s_lshl_b32 s59, s59, 11
s_add_u32 s43, s43, s59
s_add_u32 s43, s43, {H1OFF + 128}
s_mul_i32 s72, s73, 0x01010101
v_mov_b32 v9, s72
s_mul_i32 s59, s3, 2304
v_mul_u32_u24 v8, 144, v1
v_add_u32 v8, s59, v8
""")
    work = [("K", t, 4 * t + 3) for t in list(range(NLT, 16)) + list(range(NLT))] + [("S", 0, 63)] + [("V", v, 64 + 8 * v + 7) for v in range(8)]
    if dp: work.insert(17 + dpf, ("F", dpf, 0))
    consumed = NLL - 1
    wi = 0
    def do_work():
        nonlocal wi, consumed
        k, i, last = work[wi]
        if k == "K":
            if wi == 0: wait_q()
            if "nok" not in dbg: ktile(i)
            consumed = max(consumed, last)
        elif k == "S":
            if "nosm" in dbg: a(f"s_mov_b64 exec, 1\nv_mov_b32 v82, 1\nds_add_u32 v84, v82 offset:{FLG+16}\ns_mov_b64 exec, -1")
            else: softmax()
            stamp(3)
        elif k == "F": fitem(i)
        else:
            if "nov" not in dbg: vchunk(i)
            consumed = last
        wi += 1
    def ztouch():
        a("; prefetch this workgroup's hop-2 inbox lines into the memory-side cache (loaded values are not used)")
        a(f"s_lshl_b32 s4, s2, 2\ns_add_u32 s4, s4, s3\ns_lshl_b32 s4, s4, 9\ns_add_u32 s4, s4, {H2OFF}")
        for i in range(512 // h2pre[1]): a(f"s_load_dword s{16 + i}, s[40:41], s4 offset:{i * h2pre[1]}")
    issued = 0
    ops = []
    def iss(n):
        if dp == 1 and n >= 120:
            i = n - 120; u = i >> 1
            if n == 120: a(f"s_andn2_b32 s70, s52, 0x3000\nv_lshrrev_b32 v2, 4, v1\nv_lshlrev_b32 v2, 8, v2\nv_and_b32 v85, 15, v1\nv_lshl_add_u32 v2, v85, 2, v2\ns_lshl_b32 s59, s3, 6\nv_add_u32 v2, s59, v2")
            if i & 1 == 0: a(f"s_xor_b32 s53, s70, {(14 << tmap[1]) | (u << 12)}\ns_xor_b32 s61, s70, {(15 << tmap[1]) | (u << 12)}")
            for p in (2 * (i & 1), 2 * (i & 1) + 1):
                for hi in range(2):
                    a(f"buffer_load_dword v{rreg(120) + 8*u + 2*p + hi}, v2, s[48:51], s{61 if hi else 53} offen offset:{p*1024} {dpfl}")
                    ops.append(("L", n) if (p & 1 and hi) else ("s", n))
            return
        issue(n); ops.append(("L", n))
    def vm_for(X):
        li = [i for i, o in enumerate(ops) if o[0] == "L"]
        if len(li) <= X: return None
        p = li[len(li) - X - 1]
        return len(ops) - 1 - p, p
    if pat is None: pat = [(WIN, G)]
    if fc: pat = [(fc.get("w0", fc["W"][1]), fc["G"])]
    if est == [-1, -1]: stamp(5); st["ks"] = 1
    for n in range(pat[0][0]): iss(n)
    if est == [-1, -1]: stamp(6); est = [None, None]
    issued = pat[0][0]
    if cpf == 3: stub(); a("L_go:")
    if cpf == 4: stub4()
    late_setup()
    if "bst" in dbg: stamp(7)
    if not eb: a("s_barrier")
    if "bst" in dbg: stamp(5)
    setup_consts()
    arrived = -1
    step = 0
    done_op = -1; nw = 0; ph = 0; nctl = 0; evalq = []; PAIRS = [88, 92, 94]; tagdone = False
    while issued < NL:
        pp = pat2 if (pat2 is not None and issued >= n0) else pat
        WIN, G = pp[step % len(pp)]; step += 1
        if not fc:
            if issued - (WIN - G) - 1 > arrived: a(f"s_waitcnt vmcnt({WIN-G})")
            arrived = max(arrived, issued - (WIN - G) - 1)
        else:
            Wl, Wm, Wh = fc["W"]
            opened = False
            for n_, W_ in fc.get("open", []):
                if issued >= n_: Wl, Wm, Wh = W_; opened = Wl == Wh
            while issued + G - 1 - RING > consumed and work[wi][2] > max(arrived, issued - (Wh - G) - 1): Wh -= 1; Wm = min(Wm, Wh); Wl = min(Wl, Wh)
            r = vm_for(Wh - G)
            if r and issued - (Wh - G) - 1 > arrived: a(f"s_waitcnt vmcnt({r[0]})"); done_op = max(done_op, r[1]); arrived = max(arrived, issued - (Wh - G) - 1)
            tt = fc.get("tt")
            if tt:
                if not st.get("ev"):
                    r_ = vm_for(min(tt.get("wp", Wm), Wh) - G)
                    if r_: a(f"s_waitcnt vmcnt({r_[0]}) ;nc")
                else:
                    if not st.get("sl"):
                        a(f"s_waitcnt lgkmcnt(0)\ns_add_u32 s68, s70, {round(tt['U'] * (step - 1))}\ns_sub_u32 s68, s68, s{st['cur']}"); st["ok"] |= st["pend"]; st["pend"] = set()
                    lv = tt["lv"]
                    for n_, l_ in tt.get("lv2", []):
                        if issued >= n_: lv = l_
                    pw = Wh
                    for i_ in range(len(lv) - 1):
                        w_ = min(lv[i_ + 1][0], Wh)
                        if w_ >= pw: continue
                        pw = w_
                        a(f"s_cmpk_lt_i32 s68, {lv[i_][1] & 0xffff} ;nc\ns_cbranch_scc1 L_fs{step} ;nc\ns_waitcnt vmcnt({vm_for(w_ - G)[0]}) ;nc")
                    a(f"L_fs{step}:")
                    if prof and tt.get("tr") and step in tt["tr"]: a("s_lshl_b64 s[82:83], s[82:83], 16\ns_and_b32 s69, s68, 0xffff\ns_or_b32 s82, s82, s69")
            elif not opened: a(f"""
s_cmp_eq_u32 s62, 2 ;nc
s_cbranch_scc1 L_fs{step} ;nc
s_waitcnt vmcnt({vm_for(Wm - G)[0]}) ;nc
s_cmp_eq_u32 s62, 0 ;nc
s_cbranch_scc1 L_fs{step} ;nc
s_waitcnt vmcnt({vm_for(Wl - G)[0]}) ;nc
L_fs{step}:
""")
        if "bst" in dbg and step == 1: stamp(6)
        if est:
            for i_, e_ in enumerate(est):
                if e_ is not None and arrived >= e_: stamp(5 + i_); est[i_] = None
        g = min(G, NL - issued)
        while issued + g - 1 - RING > consumed:
            if work[wi][2] > arrived:
                assert not fc
                a(f"s_waitcnt vmcnt({issued - 1 - work[wi][2]})"); arrived = work[wi][2]
            do_work()
        for n in range(issued, issued + g): iss(n)
        if eb and step == eb: a(LATEB)
        if wotrig is not None and wotrig >= 0 and issued <= wotrig < issued + g:
            a(f"s_mov_b64 exec, 1\nv_mov_b32 v82, 1\nds_add_u32 v84, v82 offset:{FLG+28}\ns_mov_b64 exec, -1")
        if fc:
            d = fc["d"]; k0 = fc.get("k0", 2); last = (NL - fc.get("stop", 8) - fc["W"][1]) // G
            if step == k0:
                a("s_waitcnt lgkmcnt(0)\ns_add_u32 s73, s73, 1" + ("" if fc.get("tt", {}).get("notab") else "\nv_mov_b32 v90, s73"))
            if step == fc.get("vw"):
                a("s_mov_b64 exec, vcc\nbuffer_load_dword v91, v84, s[48:51], s52 offen nt\ns_mov_b64 exec, -1"); ops.append(("C", 0))
            if fc.get("wg"):
                tt = fc.get("tt")
                tab = step >= fc.get("kw", 4) and step % fc["CW"] == 0 and step <= last and not opened
                if tt and tt.get("notab"): tab = False
                if tt:
                    st.setdefault("ok", set()); st.setdefault("pend", set())
                    if step >= fc.get("kw", 4):
                        st["cur"] = [6, 8, 10, 34, 42][nw % 5] if tab else 4; assert len(evalq) < 5
                        if tab or not st.get("sl"):
                            a(f"s_memrealtime s[{st['cur']}:{st['cur']+1}]"); st["pend"].add(st["cur"]); st["ok"].discard(st["cur"])
                    if prof and step in tt.get("trt", []): stamp([5, 6, 7][tt["trt"].index(step)])
                for e in [e for e in evalq if e[0] <= done_op]:
                    evalq.remove(e)
                    if tt:
                        if e[2] > tt.get("kstop", 99): continue
                        if e[3] not in st["ok"]:
                            assert not st.get("sl"); a("s_waitcnt lgkmcnt(0)"); st["ok"] |= st["pend"]; st["pend"] = set()
                        a(f"v_sad_u8 v85, v{e[1]}, 0, 0\ns_mov_b32 s62, s{e[3]}\ns_call_b64 s[80:81], {'L_cw' if st.get('ev1') else 'L_cw0'}"); st["ev"] = 1; st["ev1"] = 1
                        if tt.get("gl") and not st.get("gx"): a("s_mov_b32 s70, s75")
                    else: a(f"v_sad_u8 v85, v{e[1]}, 0, 0\ns_movk_i32 s68, {32 * e[2]}\ns_call_b64 s[80:81], L_cw")
                if tab and tt and step > tt.get("kstop", 99):
                    a(f"v_mov_b32 v89, {step}\ns_mov_b64 exec, vcc\nbuffer_store_byte v89, v88, s[12:15], 0 offen\ns_mov_b64 exec, -1"); ops.append(("S", 0))
                elif tab:
                    r_ = [91, 92, 93, 94, 95, 86 if NLT == 0 else 5][nw % 6]; nw += 1; assert len(evalq) < 6
                    a(f"""
v_mov_b32 v89, {step}
s_mov_b64 exec, vcc
buffer_store_byte v89, v88, s[12:15], 0 offen
s_mov_b64 exec, -1
buffer_load_dword v{r_}, v87, s[12:15], 0 offen nt
""")
                    ops.append(("S", 0)); ops.append(("C", 0)); evalq.append((len(ops) - 1, r_, step, st.get("cur")))
            if fc.get("ts"):
                for i_, k_ in enumerate(fc["ts"]):
                    if step == k_ - 1 and not fc.get("tt"): a("s_memrealtime s[34:35]")
                    if step == k_:
                        if not fc.get("tt"): a("s_waitcnt lgkmcnt(0)\ns_add_u32 s34, s34, s75\nv_mov_b32 v{TSR}, s34".replace("{TSR}", str(TSR)))
                        elif st.get("ev1"): a(f"s_add_u32 s65, s75, {round(fc['tt']['U'] * step)}\nv_mov_b32 v{TSR}, s65")
                        else:
                            a(f"s_waitcnt lgkmcnt(0)\nv_mov_b32 v{TSR}, s{st['cur']}"); st["ok"] |= st["pend"]; st["pend"] = set()
                            if fc["tt"].get("gl") == 2 and i_ == 0: a(f"s_sub_u32 s70, s{st['cur']}, {round(fc['tt']['U'] * step)}")
                        a(f"""
v_mov_b32 v97, s73
s_movk_i32 s65, {PGOFF + i_ * 256}
s_cmp_eq_u32 s64, {(5 * i_ + 3) % 32}
s_cselect_b64 exec, 1, 0
buffer_store_dwordx2 v[96:97], v83, s[76:79], s65 offen sc1
s_mov_b64 exec, -1
""".replace("v96", f"v{TSR}").replace("v97", f"v{TSR+1}").replace("v[96:97]", f"v[{TSR}:{TSR+1}]"))
                        ops.append(("S", 0))
                    if step == k_ + d:
                        a(f"s_load_dwordx16 s[16:31], s[40:41], {PGOFF + i_ * 256}\ns_load_dwordx2 s[32:33], s[40:41], s63 offset:{PGOFF + i_ * 256}\ns_memrealtime s[36:37]" if fc.get("tt", {}).get("gl") != 2 else f"s_load_dwordx16 s[16:31], s[40:41], {PGOFF + i_ * 256}"); st["sl"] = 1
                    if step == k_ + d + fc.get("dl", 3):
                        if fc.get("tt", {}).get("gl"):
                            a(f"s_movk_i32 s62, {round(fc['tt']['U'] * k_)}\ns_call_b64 s[80:81], {'L_cx' if st.get('gx') or not fc['tt'].get('gsm') else 'L_cx0'}"); st["gx"] = 1; st["ev"] = 1
                        else: a("s_call_b64 s[80:81], L_cx")
                        st["sl"] = 0
                        if wodl is not None and i_ == len(fc["ts"]) - 1:
                            a(f"s_add_u32 s69, s70, {round(fc['tt']['U'] * ((NL - pat[0][0]) // G)) + wodl}\ns_mov_b64 exec, 1\nv_mov_b32 v82, s69\nds_write_b32 v84, v82 offset:{FLG+48}\ns_mov_b64 exec, -1")
                        if fc.get("tt"):
                            st["ok"] |= st["pend"]; st["pend"] = set()
                            if st["cur"] == 4: a("s_memrealtime s[4:5]"); st["pend"].add(4)
            if k0 <= step <= last - d and fc.get("x", 1):
                a(f"""
s_movk_i32 s65, {PGOFF + step * 256}
s_cmp_eq_u32 s64, {step % 32}
s_cselect_b64 exec, 1, 0
buffer_store_dword v90, v83, s[76:79], s65 offen sc1
s_mov_b64 exec, -1
""")
                ops.append(("S", 0))
            if step >= k0 + d and (step - k0 - d) % fc["C"] == 0:
                if nctl > 0: a("s_call_b64 s[80:81], L_cb"); nctl = 0
                if step <= last and fc.get("x", 1):
                    a(f"s_load_dwordx8 s[4:11], s[40:41], {PGOFF + (step - d) * 256}"); nctl = 1
        issued += g
        for _ in range(WPS):
            if wi < len(work) and work[wi][2] <= arrived and (wi > 0 or issued + G - 1 - RING > consumed):
                do_work()
    if "dpst" in dbg: stamp(5); print("drain work:", work[wi:])
    while wi < len(work):
        need_ = work[wi][2]
        if dp == 1 and wi == len(work) - 1:
            if "dpst" in dbg: stamp(6)
            if dpt == "a": s_sig(FLG + 28)
            a("s_mov_b64 exec, 0xffff")
            for jj in range(8): a(f"ds_write_b128 v8, v[{ACC+4*jj}:{ACC+4*jj+3}] offset:{OP+16*jj}")
            s_sig(FLG + 36)
            s_wait("L_d3", FLG + 44, 4)
            for u in range(4): a(f"ds_read_b128 v[{AQ[u]}:{AQ[u]+3}], v11 offset:{QL+256*u}")
            if dpt == "b": s_sig(FLG + 28)
            R0 = rreg(120)
            def dperm(u, p):
                a(f"v_perm_b32 v{PT+8*(u&1)+p}, v{R0+8*u+2*p+1}, v{R0+8*u+2*p}, s54\nv_perm_b32 v{PT+8*(u&1)+4+p}, v{R0+8*u+2*p+1}, v{R0+8*u+2*p}, s55")
            for i in range(8):
                u = i >> 1
                if i == dpc:
                    s_wait("L_d2", FLG + 36, 4)
                    for u_ in range(4): a(f"ds_read_b32 v{36+2*u_}, v4 offset:{OP+2304*u_}\nds_read_b32 v{37+2*u_}, v4 offset:{OP+2304*u_+16}")
                    if "dpst" in dbg: stamp(7)
                if i == 7: a("s_waitcnt lgkmcnt(0)\nv_pk_add_f32 v[36:37], v[36:37], v[38:39]\nv_pk_add_f32 v[40:41], v[40:41], v[42:43]\nv_pk_add_f32 v[36:37], v[36:37], v[40:41]")
                if i < 7:
                    a(f"s_waitcnt vmcnt({vm_for(7 - i)[0]})")
                    if dpt == f"c{7 - i}": s_sig(FLG + 28)
                    dperm(u, 2 * (i & 1)); dperm(u, 2 * (i & 1) + 1)
                else:
                    a("s_waitcnt vmcnt(2)"); dperm(u, 2); a("s_cmp_lg_u32 s42, 0\ns_waitcnt vmcnt(0)"); dperm(u, 3)
                if i == 1: a("s_waitcnt lgkmcnt(0)")
                if i & 1:
                    for e in range(2): a(f"v_mfma_f32_16x16x32_bf16 v[{28+4*e}:{31+4*e}], v[{AQ[u]}:{AQ[u]+3}], v[{PT+8*(u&1)+4*e}:{PT+8*(u&1)+4*e+3}], {f'v[{28+4*e}:{31+4*e}]' if u else '0'}")
            a("v_add_f32 v28, v28, v36\nv_add_f32 v32, v32, v37")
            assert ops[-1] == ("L", 127)
            a(f"""
v_cvt_pk_bf16_f32 v8, v28, v32
s_cbranch_scc1 L_dp_far
buffer_store_dwordx2 v[8:9], v10, s[76:79], s43 offen
L_dp_done:
""")
            stamp(4)
            if dpw: s_sig(FLG + 40)
            break
        if wi == len(work) - 1 and wotrig is not None and wotrig >= 200:
            a(f"s_waitcnt vmcnt({vm_for(wotrig - 200)[0]})")
            if defer:
                a(f"s_cmp_gt_i32 s75, {defer[0]}\ns_cselect_b32 s59, 0x101, 1\ns_mov_b64 exec, 1\nv_mov_b32 v82, s59\nds_add_u32 v84, v82 offset:{FLG+28}")
                if defer[2] > 60:
                    a("v_mov_b32 v89, 62\ns_mov_b64 exec, vcc\nbuffer_store_byte v89, v88, s[12:15], 0 offen"); ops.append(("S", 0))
                a("s_mov_b64 exec, -1")
            else: a(f"s_mov_b64 exec, 1\nv_mov_b32 v82, 1\nds_add_u32 v84, v82 offset:{FLG+28}\ns_mov_b64 exec, -1")
        if wi == len(work) - 1 and lastopt and "nov" not in dbg:
            v = 7; OB = rreg(112)
            def lp(p, jj): a(f"v_perm_b32 v{OB+4*jj+p}, v{rreg(124+p)+(jj>>1)}, v{rreg(120+p)+(jj>>1)}, {'s55' if jj & 1 else 's54'}")
            def lm(jj): a(f"v_mfma_f32_16x16x32_bf16 v[{ACC+4*jj}:{ACC+4*jj+3}], v[{PA}:{PA+3}], v[{OB+4*jj}:{OB+4*jj+3}], v[{ACC+4*jj}:{ACC+4*jj+3}]")
            def lw(jj): a(f"ds_write_b128 v{8 if dp else 4}, v[{ACC+4*jj}:{ACC+4*jj+3}] offset:{OP+16*jj}")
            if t2:
                def lm(jj): a(f"v_mfma_f32_16x16x32_bf16 v[{ACC+4*(jj>>2)}:{ACC+4*(jj>>2)+3}], v[{PA4+4*(jj&3)}:{PA4+4*(jj&3)+3}], v[{OB+4*jj}:{OB+4*jj+3}], v[{ACC+4*(jj>>2)}:{ACC+4*(jj>>2)+3}]")
                a(f"s_lshl_b32 s59, s3, 11\nv_add_u32 v4, s59, v3")
            elif not dp: a(f"s_mul_i32 s59, s3, 2304\nv_mul_u32_u24 v4, 144, v1\nv_add_u32 v4, s59, v4")
            a("v_mov_b32 v82, 1"); mkpa(v)
            if h2pre and h2pre is not True and h2pre[0] == "y": ztouch()
            for p in range(3):
                a(f"s_waitcnt vmcnt({vm_for(3 - p)[0]})")
                for jj in range(8): lp(p, jj)
            a("s_waitcnt vmcnt(0)")
            if dpp: a(f"s_setprio {dpp}")
            lp(3, 0); lp(3, 1)
            for jj in range(6): lp(3, jj + 2); lm(jj)
            stamp(4)
            if t2:
                lm(6); lm(7)
                a(f"ds_write_b128 v4, v[{ACC}:{ACC+3}] offset:{OP}\nds_write_b128 v4, v[{ACC+4}:{ACC+7}] offset:{OP+1024}")
            else:
                a("s_mov_b64 exec, 0xffff"); lw(0); lm(6); lw(1); lm(7)
                for jj in range(2, 8): lw(jj)
            if dp:
                a(f"""
s_mov_b64 exec, 1
ds_add_u32 v84, v82 offset:{FLG+36}
s_mov_b64 exec, -1
s_mov_b32 s58, {spin*8}
L_d2:
ds_read_b32 v85, v84 offset:{FLG+36}
""")
                for u_ in range(4): a(f"ds_read_b32 v{PT+2*u_}, v4 offset:{OP+2304*u_}\nds_read_b32 v{PT+1+2*u_}, v4 offset:{OP+2304*u_+16}")
                a(f"""
s_waitcnt lgkmcnt(8)
v_readfirstlane_b32 s59, v85
s_sub_u32 s58, s58, 1
s_cbranch_scc1 L_d2_done
s_cmp_lt_u32 s59, 4
s_cbranch_scc1 L_d2
L_d2_done:
s_cmp_lg_u32 s42, 0
s_waitcnt lgkmcnt(4)
v_pk_add_f32 v[{PT}:{PT+1}], v[{PT}:{PT+1}], v[{PT+2}:{PT+3}]
s_waitcnt lgkmcnt(0)
v_pk_add_f32 v[{PT+4}:{PT+5}], v[{PT+4}:{PT+5}], v[{PT+6}:{PT+7}]
v_pk_add_f32 v[{PT}:{PT+1}], v[{PT}:{PT+1}], v[{PT+4}:{PT+5}]
v_cvt_pk_bf16_f32 v8, v{PT}, v{PT+1}
s_cbranch_scc1 L_dp_far
buffer_store_dwordx2 v[8:9], v10, s[76:79], s43 offen
L_dp_done:
""")
                if est: stamp(7)
                if dpw: s_sig(FLG + 40)
            break
        if need_ > arrived:
            r = vm_for(NL - 1 - need_) if fc else (NL - 1 - need_,)
            a(f"s_waitcnt vmcnt({r[0]})"); arrived = need_
        do_work()
    else:
        stamp(4)
        a(f"""
s_mul_i32 s59, s3, 2304
v_mul_u32_u24 v4, 144, v1
v_add_u32 v4, s59, v4
s_mov_b64 exec, 0xffff
""")
        for jj in range(8):
            a(f"ds_write_b128 v4, v[{ACC+4*jj}:{ACC+4*jj+3}] offset:{OP+16*jj}")
    if not dp: a("""
s_mov_b64 exec, -1
s_waitcnt lgkmcnt(0)
s_barrier
""")
    if h2pre and h2pre is not True and h2pre[0] == "z": ztouch()
    if t3: a("s_barrier")
    if wbar: a("s_barrier")
    if lbar: a("s_barrier")
    if dirty:
        a(f"""
s_mov_b32 s44, s40
s_mov_b32 s45, s41
s_mov_b32 s46, 0x10000000
s_mov_b32 s47, 0x20000
s_lshl_b32 s59, s2, 2
s_add_u32 s59, s59, s3
s_mul_i32 s59, s59, {dirty*1024}
s_add_u32 s59, s59, {64 << 20}
s_sleep {dsl}
""")
        if "dx2" in dbg:
            a("v_lshrrev_b32 v3, 1, v3")
            for i in range(2 * dirty): a(f"buffer_store_dwordx2 v[28:29], v3, s[44:47], s59 offen\ns_add_u32 s59, s59, 512")
        elif "dhalf" in dbg:
            a("v_lshrrev_b32 v5, 2, v1\nv_lshlrev_b32 v5, 7, v5\nv_and_b32 v3, 48, v3\nv_add_u32 v3, v3, v5\ns_mov_b64 exec, 0xffffffff")
            for i in range(dirty): a(f"buffer_store_dwordx4 v[28:31], v3, s[44:47], s59 offen\nbuffer_store_dwordx4 v[28:31], v3, s[44:47], s59 offen offset:64\ns_add_u32 s59, s59, 1024")
            a("s_mov_b64 exec, -1")
        else:
            for i in range(dirty): a(f"buffer_store_dwordx4 v[28:31], v3, s[44:47], s59 offen\ns_add_u32 s59, s59, 1024")
        if "drd" in dbg:
            a(f"s_waitcnt vmcnt(0)\nv_lshlrev_b32 v3, 4, v1\ns_sub_u32 s59, s59, {dirty*1024}")
            for i in range(dirty): a(f"buffer_load_dwordx4 v[28:31], v3, s[44:47], s59 offen nt\ns_add_u32 s59, s59, 1024")
            a("s_waitcnt vmcnt(0)")
    if prof:
        a(f"""
s_mov_b32 s44, s40
s_mov_b32 s45, s41
s_mov_b32 s46, 0x10000000
s_mov_b32 s47, 0x20000
s_sleep 127
s_sleep 127
s_sleep 127
s_waitcnt lgkmcnt(0)
s_lshl_b32 s59, s2, 3
s_add_u32 s59, s59, s3
s_lshl_b32 s59, s59, 6
s_add_u32 s59, s59, {STAMP}
v_mov_b32 v4, 0
s_mov_b64 exec, 1
""")
        for i in range(8):
            trt = fc and fc.get("tt", {}).get("trt")
            sr = 82 if (i == 5 and fc and not est and not trt) else 84 + 2 * (i if est or trt else min(i, 4))
            a(f"v_mov_b32 v8, s{sr}\nv_mov_b32 v9, s{sr+1}\nbuffer_store_dwordx2 v[8:9], v4, s[44:47], s59 offen offset:{8*i}\ns_waitcnt vmcnt(0)")
    a("s_endpgm")
    if dp: a("L_dp_far:\nbuffer_store_dwordx2 v[8:9], v10, s[76:79], s43 offen sc1\ns_branch L_dp_done")
    X = 32
    S1 = 12; S2 = 13; T0 = 14; T1 = 15; NM = 16; RS = 18
    W1 = 40; B1 = 47; W2 = 54; HX = 62; U = 66; AA = 73; EE = 80; ACC2 = 87; C1 = 88; YA = 89
    WB = 192
    def srd(base, lo, size): a(f"s_mov_b32 s{base}, s{lo}\ns_mov_b32 s{base+1}, s{lo+1}\ns_mov_b32 s{base+2}, {size}\ns_mov_b32 s{base+3}, 0x20000")
    def bfround(r): a(f"v_cvt_pk_bf16_f32 v{r}, v{r}, v{r}\nv_lshlrev_b32 v{r}, 16, v{r}")
    def stats_finish():
        a(f"""
v_mul_f32 v{S1}, {f32(1/512)}, v{S1}
v_mul_f32 v{S2}, {f32(1/512)}, v{S2}
v_fma_f32 v{S2}, -v{S1}, v{S1}, v{S2}
v_max_f32 v{S2}, 0, v{S2}
""")
        bfround(S1); bfround(S2)
        a(f"v_add_f32 v{S2}, {f32(1e-5)}, v{S2}")
        bfround(S2)
        a(f"v_sqrt_f32 v{S2}, v{S2}")
        bfround(S2)
        a(f"""
v_rcp_f32 v{RS}, v{S2}
v_sub_f32 v{NM}, 0, v{S1}
v_sub_f32 v{NM+1}, 0, v{S1}
v_mov_b32 v{RS+1}, v{RS}
""")
    def swaps_add(r, t):
        a(f"""
v_mov_b32 v{t}, v{r}
v_permlane16_swap_b32 v{r}, v{t}
v_add_f32 v{r}, v{r}, v{t}
v_mov_b32 v{t}, v{r}
v_permlane32_swap_b32 v{r}, v{t}
v_add_f32 v{r}, v{r}, v{t}
""")
    def normalize(src, dst, n, tmp):
        for i0 in range(0, n, 4):
            idx = list(range(i0, min(n, i0 + 4)))
            for i in idx:
                t = tmp + 2 * (i - i0)
                a(f"v_lshlrev_b32 v{t}, 16, v{src+i}\nv_and_b32 v{t+1}, 0xffff0000, v{src+i}")
            for i in idx:
                t = tmp + 2 * (i - i0)
                a(f"v_pk_add_f32 v[{t}:{t+1}], v[{t}:{t+1}], v[{NM}:{NM+1}]")
            for i in idx:
                t = tmp + 2 * (i - i0)
                a(f"v_cvt_pk_bf16_f32 v{t}, v{t}, v{t+1}")
            for i in idx:
                t = tmp + 2 * (i - i0)
                a(f"v_and_b32 v{t+1}, 0xffff0000, v{t}\nv_lshlrev_b32 v{t}, 16, v{t}")
            for i in idx:
                t = tmp + 2 * (i - i0)
                a(f"v_pk_mul_f32 v[{t}:{t+1}], v[{t}:{t+1}], v[{RS}:{RS+1}]")
            for i in idx:
                t = tmp + 2 * (i - i0)
                a(f"v_cvt_pk_bf16_f32 v{dst+i}, v{t}, v{t+1}")
    def lds_wait(lbl, off, cnt, sl=0, msk=False, bnd=None):
        a(f"""
s_mov_b32 s58, {bnd or spin*8}
{lbl}:
ds_read_b32 v4, v9 offset:{off}
s_waitcnt lgkmcnt(0)
v_readfirstlane_b32 s59, v4
s_sub_u32 s58, s58, 1
s_cbranch_scc1 {lbl}_done
{"s_and_b32 s27, s59, 255" if msk else ""}
s_cmp_lt_u32 {"s27" if msk else "s59"}, {cnt}
{f"s_sleep {sl}" if sl else ""}
s_cbranch_scc1 {lbl}
{lbl}_done:
""")
    def lds_signal(off):
        a(f"""
s_mov_b64 exec, 1
ds_add_u32 v9, v11 offset:{off}
s_mov_b64 exec, -1
""")
    def orred(ts):
        ts = list(ts)
        while len(ts) > 1:
            if len(ts) >= 3:
                a(f"v_or3_b32 v{ts[0]}, v{ts[0]}, v{ts[1]}, v{ts[2]}"); ts = ts[3:] + [ts[0]]
            else:
                a(f"v_or_b32 v{ts[0]}, v{ts[0]}, v{ts[1]}"); ts = [ts[0]]
        return ts[0]
    def chk8(tags, tmp):
        if b3 and len(tags) % 2 == 0:
            for i in range(len(tags) // 2): a(f"v_bitop3_b32 v{tmp+i}, v{tags[2*i]}, v{tags[2*i+1]}, s12 bitop3:0x7e")
            return orred([tmp + i for i in range(len(tags) // 2)])
        for i, t in enumerate(tags): a(f"v_xor_b32 v{tmp+i}, s12, v{t}")
        return orred([tmp + i for i in range(len(tags))])
    def chk16(bases, tmp, tagreg):
        out = []
        for i, b in enumerate(bases):
            a(f"v_perm_b32 v{tmp+2*i}, v{b+1}, v{b}, s20\nv_perm_b32 v{tmp+2*i+1}, v{b+3}, v{b+2}, s21")
        for i, b in enumerate(bases):
            a(f"v_or_b32 v{tmp+2*i}, v{tmp+2*i}, v{tmp+2*i+1}")
        for i, b in enumerate(bases):
            a(f"v_xor_b32 v{tmp+2*i}, s{tagreg}, v{tmp+2*i}"); out.append(tmp + 2 * i)
        return orred(out)
    def pack16(dst, srcs, tagv):
        for i, r in enumerate(srcs): a(f"v_perm_b32 v{dst+i}, v{r}, v{tagv}, s{16+i}")
    def poll(lbl, loads, chk, fbr=None, post=None, st=None, pipe=1, stag=0, sl=None, mid=None, pre=False, bnd=None):
        if sl is None: sl = slp
        if fbr is not None: a(f"s_mov_b32 s82, s{fbr}\ns_add_u32 s83, s{fbr}, {BD}")
        a(f"s_mov_b32 s58, {bnd or spin}")
        for _ in range(pipe - 1):
            for l in loads: a(l)
            if stag: a(f"s_sleep {stag}")
        if mid:
            if not pre:
                for l in loads: a(l)
            mid()
            if "h1vm" in dbg: stamp(4)
            a(f"s_branch {lbl}_chk")
        a(f"{lbl}:")
        if st is not None and (tailprof or (st == 4 and "h1it" in dbg) or (st == 3 and "h2it" in dbg)): stamp(4 if "h2it" in dbg else st)
        for l in loads: a(l)
        if mid: a(f"{lbl}_chk:")
        a(f"s_waitcnt vmcnt({len(loads) * (pipe - 1)})")
        r = chk()
        if post: r = post(r)
        a(f"""
v_cmp_ne_u32 vcc, 0, v{r}
s_sub_u32 s58, s58, 1
s_cbranch_scc1 {lbl}_done
s_and_b64 exec, exec, vcc
s_cbranch_execz {lbl}_done
""")
        if fbr is not None: a(f"s_and_b32 s59, s58, {fb}\ns_cselect_b32 s{fbr}, s82, s83")
        if sl: a(f"s_sleep {sl}")
        a(f"""
s_branch {lbl}
{lbl}_done:
s_mov_b64 exec, -1
""")
    HLD = """s_load_dwordx16 s[16:31], s[0:1], 0
s_load_dwordx8 s[32:39], s[0:1], 64
s_load_dwordx2 s[40:41], s[0:1], 96
"""
    a("""; ---------------- helper waves
L_helper:
""" + ("" if eb else HLD) + """v_and_b32 v3, 15, v0
v_lshlrev_b32 v3, 2, v3
v_mov_b32 v4, 0
ds_write_b32 v3, v4
""" + ("s_waitcnt lgkmcnt(0)\ns_barrier\n" + HLD if eb else "") + """s_setprio 3
s_sub_u32 s3, s3, 4
s_waitcnt lgkmcnt(0)
""")
    if "probe" in dbg:
        srd(52, 40, 0x10000000)
        pl = "probel" in dbg
        a(f"""
s_cmp_lt_u32 s3, 2
s_cbranch_scc1 L_noprobe
s_and_b32 s4, s3, 1
s_lshl_b32 s4, s4, 13
s_lshl_b32 s5, s2, 14
s_add_u32 s4, s4, s5
s_add_u32 s4, s4, {8 << 20}
s_mov_b64 exec, 1
s_memtime s[76:77]
s_waitcnt lgkmcnt(0)
{"s_load_dword s5, s[40:41], s4 offset:128" if "probew" in dbg else ""}
s_waitcnt lgkmcnt(0)
{"s_memtime s[76:77]" if "probew" in dbg else ""}
s_waitcnt lgkmcnt(0)
{"s_load_dword s5, s[40:41], s4" if "probes" in dbg else "buffer_load_dword v5, v4, s[52:55], s4 offen sc1" if pl else "buffer_store_dword v4, v4, s[52:55], s4 offen sc1"}
s_waitcnt vmcnt(0) lgkmcnt(0)
s_memtime s[78:79]
s_waitcnt lgkmcnt(0)
s_sub_u32 s98, s78, s76
s_mov_b32 s99, 0
s_mov_b64 exec, -1
L_noprobe:
""")
    if near: a(f"s_cmp_lt_u32 s2, {8 * near['nw']}\ns_cbranch_scc1 L_meas\nL_meas_done:")
    if "s" in warm:
        a("""
s_and_b32 s4, s2, 7
s_lshl_b32 s4, s4, 20
s_lshr_b32 s5, s2, 5
s_lshl_b32 s5, s5, 23
s_or_b32 s4, s4, s5
s_load_dword s76, s[20:21], s4
s_and_b32 s4, s2, 4
s_lshl_b32 s4, s4, 19
s_load_dword s77, s[24:25], s4
s_load_dword s78, s[36:37], 0
s_load_dword s79, s[38:39], 0
""")
    if "m" in warm:
        a("""
s_load_dword s76, s[16:17], 0
s_load_dword s77, s[22:23], 0
s_load_dword s78, s[22:23], 0x200000
s_load_dword s79, s[28:29], 0
s_load_dword s76, s[30:31], 0
s_load_dword s77, s[32:33], 0
s_load_dword s78, s[34:35], 0
""".replace("0x200000", "0xffffc"))
    srd(44, 16, 8192); srd(48, 22, 0x400000); srd(52, 40, 0x10000000); srd(56, 24, 0x400000)
    srd(60, 28, 3584); srd(64, 30, 3584); srd(68, 32, 3584)
    a(f"""
v_lshrrev_b32 v5, 4, v1
v_and_b32 v6, 7, v1
v_and_b32 v8, 15, v1
v_lshrrev_b32 v7, 5, v1
v_and_b32 v4, 31, v1
v_lshlrev_b32 v4, 4, v4
v_lshl_add_u32 v2, v7, 10, v4
s_lshl_b32 s6, s3, 11
v_mov_b32 v9, 0
v_mov_b32 v11, 1
v_lshrrev_b32 v20, 3, v1
v_lshlrev_b32 v21, 13, v20
v_lshl_add_u32 v21, v6, 4, v21
v_lshlrev_b32 v22, {12 if t2 else 10}, v20
v_lshl_add_u32 v22, v6, 4, v22
s_and_b32 s15, s2, 7
s_lshr_b32 s14, s2, 3
s_add_u32 s4, s14, {rq}
s_and_b32 s4, s4, 7
s_add_u32 s14, s14, {ro}
s_and_b32 s14, s14, 7
s_lshl_b32 s8, s15, 3
s_add_u32 s8, s8, s4
s_lshr_b32 s9, s2, 6
s_lshl_b32 s4, s9, 2
s_add_u32 s4, s4, s3
s_lshl_b32 s4, s4, 18
s_lshl_b32 s5, s8, 7
s_add_u32 s72, s4, s5
s_lshl_b32 s13, s15, 2
s_add_u32 s13, s13, s9
s_lshl_b32 s4, s13, {7 if t3 else 2}
s_add_u32 s4, s4, s3
s_lshl_b32 s4, s4, {10 if t3 else 15}
s_lshl_b32 s5, s14, 7
s_add_u32 s73, s4, s5
s_lshl_b32 s4, s3, 12
s_add_u32 s74, s4, {WQL}
s_mul_i32 s75, s3, 896
v_lshlrev_b32 v23, 1, v1
""")
    if qk: a("""
v_lshrrev_b32 v21, 1, v1
v_lshlrev_b32 v21, 13, v21
v_and_b32 v20, 1, v1
v_lshl_add_u32 v21, v20, 4, v21
s_lshr_b32 s8, s2, 3
s_lshl_b32 s4, s15, 5
s_add_u32 s8, s8, s4
s_lshl_b32 s4, s3, 20
s_lshl_b32 s5, s8, 5
s_add_u32 s72, s4, s5
""")
    if not eb: a("s_barrier")
    if "nohelp" in dbg: a("s_branch L_pre2")
    if hdel: a(f"s_sleep {hdel}")
    a(f"""
buffer_load_dwordx4 v[{X}:{X+3}], v2, s[44:47], s6 offen
buffer_load_dwordx4 v[{X+4}:{X+7}], v2, s[44:47], s6 offen offset:512
{"s_load_dword s42, s[40:41], 0" if sE else "buffer_load_dword v10, v9, s[52:55], 0 offen sc1"}
""")
    def h2touch():
        stp = h2pre[1]
        if stp == "v":
            a(f"s_lshl_b32 s4, s2, 2\ns_add_u32 s4, s4, s3\ns_lshl_b32 s4, s4, 9\ns_add_u32 s4, s4, {H2OFF}\nv_lshlrev_b32 v94, 3, v1\nbuffer_load_dwordx2 v[94:95], v94, s[52:55], s4 offen {h2pre[2]}")
            return
        a(f"s_lshl_b32 s4, s2, 2\ns_add_u32 s4, s4, s3\ns_lshl_b32 s4, s4, 9\ns_add_u32 s4, s4, {H2OFF}")
        for i in range(512 // stp): a(f"s_load_dword s{96 + (i & 3) if not prof else 27}, s[40:41], s4 offset:{i * stp}")
    if h2pre and h2pre is not True and h2pre[0] == "e": h2touch()
    if "nowq" in dbg: a("s_mov_b32 s50, 0\ns_mov_b32 s58, 0")
    if wqdel: a(f"s_sleep {wqdel}")
    if "q64t" in dbg:
        a("""s_bfe_u32 s4, s2, 0x20003
s_cmp_eq_u32 s4, 3
s_cselect_b32 s50, s50, 0
s_lshr_b32 s4, s2, 5
s_lshl_b32 s5, s15, 3
s_add_u32 s4, s4, s5
s_lshl_b32 s4, s4, 7
s_lshl_b32 s5, s3, 18
s_add_u32 s72, s4, s5""")
        for k_ in range(3):
            for t in range(4): a(f"s_add_u32 m0, s74, {t*1024 + (k_ & 1) * 16384}\ns_add_u32 s4, s72, {(k_ + 1) * 128 * 8192 + t * 8 * 8192}\nbuffer_load_dwordx4 v21, s[48:51], s4 offen {wqfl} lds")
    for t in range(4):
        a(f"s_add_u32 m0, s74, {t*1024}\ns_nop 0\nbuffer_load_dwordx4 v21, s[48:51], s72 offen {wqfl} lds")
        if t < 3: a(f"s_add_u32 s72, s72, {(32 if qk else 8)*8192}")
    def wodma(t, vr, so, sl):
        if wosw and t & 1: vr = 152
        a(f"s_add_u32 m0, s{sl}, {16384+t*1024}\ns_nop 0\nbuffer_load_dwordx4 v{vr}, {'s[56:59]' if wolate is None else 's[68:71]'}, s{so} offen nt lds")
        if t < 3: a(f"s_add_u32 s{so}, s{so}, {32768 if t3 else 1024 if t2 else 8*1024}")
    if wolate is None:
        for t in range(4): wodma(t, 22, 73, 74)
    else:
        if wosw: a("v_and_b32 v90, 1, v5\nv_lshlrev_b32 v90, 5, v90\nv_xor_b32 v90, v90, v22\nv_xor_b32 v152, 64, v90\ns_mov_b32 s22, s73\ns_mov_b32 s23, s74")
        else: a("v_mov_b32 v90, v22\ns_mov_b32 s22, s73\ns_mov_b32 s23, s74")
    NW = 0 if wolate is None else 4
    for t in range(7):
        a(f"buffer_load_ushort v{W1+t}, v23, s[60:63], s75 offen offset:{128*t}")
        a(f"buffer_load_ushort v{B1+t}, v23, s[64:67], s75 offen offset:{128*t}")
        a(f"buffer_load_ushort v{W2+t}, v23, s[68:71], s75 offen offset:{128*t}")
    def preread(wr=False):
        a(f"""
; read this wave's hop-1 slots once so that their lines are complete in L2 before the hand-off (values unused)
v_mul_u32_u24 v142, {4*H1S}, v5
v_lshl_add_u32 v142, v8, 3, v142
s_lshl_b32 s4, s15, 4
s_add_u32 s4, s4, s9
s_mul_i32 s4, s4, {H1S}
s_bfe_u32 s5, s2, 0x30003
s_lshl_b32 s5, s5, 9
s_add_u32 s4, s4, s5
s_lshl_b32 s5, s3, 7
s_add_u32 s4, s4, s5
s_add_u32 s4, s4, {H1OFF}
{f"v_not_b32 v140, v10" if wr else ""}
{f"v_not_b32 v141, v10" if wr else ""}
{f"buffer_store_dwordx2 v[140:141], v142, s[52:55], s4 offen offset:128 {pwe}" if wr else f"buffer_load_dwordx2 v[140:141], v142, s[52:55], s4 offen offset:128 {prer}"}
""")
    srd(60, 34, 2); srd(64, 36, 8192); srd(68, 24, 0 if ('nowq' in dbg or 'nowo2' in dbg) else 0x400000)
    a(f"""
v_and_b32 v30, 3, v1
v_lshlrev_b32 v30, {3 if t3 else 1}, v30
v_lshl_add_u32 v30, v5, {1 if t3 else 5}, v30
""" + ("s_lshl_b32 s10, s2, 5" if t3 else """s_lshr_b32 s10, s2, 2
s_lshl_b32 s10, s10, 7
s_and_b32 s4, s2, 3
s_lshl_b32 s4, s4, 3
s_add_u32 s10, s10, s4""") + f"""
buffer_load_ushort v31, v9, s[60:63], 0 offen
buffer_load_ushort v29, v30, s[44:47], s10 offen
s_mov_b32 s16, 0x07060500
s_mov_b32 s17, 0x07060501
s_mov_b32 s18, 0x07060502
s_mov_b32 s19, 0x07060503
s_mov_b32 s20, 0x0c0c0400
s_mov_b32 s21, 0x04000c0c
s_getreg_b32 s43, hwreg(HW_REG_XCC_ID, 0, 4)
s_lshl_b32 s43, s43, 3
s_add_u32 s43, s43, s15
s_lshl_b32 s43, s43, 7
s_add_u32 s43, s43, {LOCOFF}
s_lshr_b32 s59, s2, 3
s_lshl_b32 s59, s59, 2
s_add_u32 s59, s59, s43
s_mov_b32 s11, 0x3f803f80
v_mov_b32 v{S1}, 0
v_mov_b32 v{S2}, 0
s_waitcnt lgkmcnt(0)
s_add_u32 s42, s42, 1
s_mul_i32 s12, s42, 0x01010101
v_mov_b32 v10, s12
s_cmp_eq_u32 s3, 0
s_cselect_b64 exec, 1, 0
buffer_store_dword v10, v9, s[52:55], s59 offen
s_mov_b64 exec, -1
s_waitcnt vmcnt({32 - NW + (12 if "q64t" in dbg else 0) + (1 if h2pre and h2pre is not True and h2pre[:2] == ('e', 'v') else 0)})
""")
    for i in range(8):
        a(f"v_dot2_f32_bf16 v{S1}, v{X+i}, s11, v{S1}")
        a(f"v_dot2_f32_bf16 v{S2}, v{X+i}, v{X+i}, v{S2}")
    for n in (8, 4, 2, 1):
        a(f"v_add_f32_dpp v{S1}, v{S1}, v{S1} row_ror:{n} row_mask:0xf bank_mask:0xf")
        a(f"v_add_f32_dpp v{S2}, v{S2}, v{S2} row_ror:{n} row_mask:0xf bank_mask:0xf")
    a(f"""
v_mov_b32 v{T0}, v{S1}
v_mov_b32 v{T1}, v{S2}
v_permlane16_swap_b32 v{S1}, v{T0}
v_permlane16_swap_b32 v{S2}, v{T1}
v_add_f32 v{S1}, v{S1}, v{T0}
v_add_f32 v{S2}, v{S2}, v{T1}
""")
    stats_finish()
    normalize(X, X, 8, 20)
    a(f"""
s_mul_i32 s4, s3, {2*XRS}
v_mul_u32_u24 v2, {XRS}, v7
v_add3_u32 v2, v2, v4, s4
ds_write_b128 v2, v[{X}:{X+3}] offset:{XN}
ds_write_b128 v2, v[{X+4}:{X+7}] offset:{XN+512}
v_mul_u32_u24 v2, {XRS}, v6
v_lshl_add_u32 v2, v5, 4, v2
s_lshl_b32 s4, s9, 8
v_add_u32 v2, s4, v2
v_bfe_u32 v3, v1, 2, 2
v_lshl_add_u32 v3, v5, 3, v3
v_lshlrev_b32 v3, 7, v3
v_and_b32 v20, 3, v1
v_lshl_add_u32 v3, v20, 3, v3
s_lshl_b32 s4, s3, 5
v_add_u32 v24, s4, v3
s_waitcnt vmcnt(24) lgkmcnt(0)
""")
    lds_signal(FLG + 8)
    a(f"""
v_and_b32 v27, 31, v1
v_lshlrev_b32 v27, 2, v27
buffer_load_dword v150, v27, s[52:55], s43 offen nt
v_lshlrev_b32 v25, 4, v5
v_lshl_add_u32 v25, v6, 11, v25
s_lshr_b32 s4, s8, 1
s_lshl_b32 s4, s4, 5
s_add_u32 s4, s4, s9
s_lshl_b32 s4, s4, 1
s_and_b32 s5, s8, 1
s_add_u32 s4, s4, s5
s_lshl_b32 s4, s4, 2
s_add_u32 s4, s4, s3
s_lshl_b32 s4, s4, 6
s_add_u32 s72, s4, {QOFF}
s_mov_b32 s26, 0
""")
    if prer is not None and prp == 'e': preread()
    if pwe is not None: preread(True)
    if qprew: a("v_not_b32 v132, v10\nv_not_b32 v133, v10\nv_not_b32 v134, v10\nv_not_b32 v135, v10\ns_mov_b32 exec_lo, 0x00ff00ff\ns_mov_b32 exec_hi, 0x00ff00ff\nbuffer_store_dwordx4 v[132:135], v25, s[52:55], s72 offen\ns_mov_b64 exec, -1")
    lds_wait("L_xw", FLG + 8, 4)
    for t in range(4):
        a(f"ds_read_b128 v[{96+4*t}:{99+4*t}], v2 offset:{XN+64*t}")
        for u in range(2): a(f"ds_read_b64_tr_b16 v[{112+4*t+2*u}:{113+4*t+2*u}], v24 offset:{WQL+t*4096+u*512}")
    a("s_waitcnt lgkmcnt(0)")
    stamp(1)
    for t in range(4):
        a(f"v_mfma_f32_16x16x32_bf16 v[128:131], v[{112+4*t}:{115+4*t}], v[{96+4*t}:{99+4*t}], {'0' if t == 0 else 'v[128:131]'}")
    pack16(132, [128, 129, 130, 131], 10)
    Q2OFF = H1OFF + 128 * H1S
    if qf: a(f"""
v_perm_b32 v136, v129, v128, s20
v_perm_b32 v137, v131, v130, s21
v_lshrrev_b32 v138, 1, v25
v_or_b32 v136, v136, v137
v_mov_b32 v137, v10
s_lshr_b32 s73, s72, 1
s_add_u32 s73, s73, {Q2OFF - QOFF // 2}
""")
    if "cutq" in dbg: a("s_branch L_pre2")
    a(f"""
s_movk_i32 s58, {nloc}
L_lc:
s_waitcnt vmcnt(0)
v_cmp_ne_u32 vcc, s12, v150
s_cbranch_vccz L_lc_done
buffer_load_dword v150, v27, s[52:55], s43 offen nt
s_sub_u32 s58, s58, 1
s_cbranch_scc0 L_lc
s_mov_b32 s26, 1
L_lc_done:
{"s_mov_b32 s26, 1" if clean else ""}
{"s_and_b32 s26, s3, 1" if "mixw" in dbg else ""}
{"s_bfe_u32 s26, s2, 0x10003" if "mixj" in dbg else ""}
s_mov_b32 exec_lo, 0x00ff00ff
s_mov_b32 exec_hi, 0x00ff00ff
s_cmp_lg_u32 s26, 0
s_cbranch_scc1 L_qs_far
{"buffer_store_dwordx4 v[132:135], v25, s[52:55], s72 offen" if "noqs" not in dbg else ""}
{"buffer_store_dwordx2 v[136:137], v138, s[52:55], s73 offen" if qf and "noqs" not in dbg else ""}
L_qs_done:
s_mov_b64 exec, -1
""")
    if near: a(f"s_lshl_b32 s4, s3, 8\ns_add_u32 s4, s4, s2\ns_sub_u32 s4, s4, 512\ns_cmp_lt_u32 s4, {8 * near['nw']}\ns_cbranch_scc1 L_mpub\nL_mpub_done:")
    if "cutp" in dbg: a("s_branch L_pre2")
    stamp(2)
    a(f"s_setprio {bgprio}")
    def woread(vr, kks=None):
        if own1:
            for kk in (kks or [1, 2, 3]):
                for nt_ in range(4):
                    for u in range(2): a(f"ds_read_b64_tr_b16 v[{WB+16*nt_+4*kk+2*u}:{WB+16*nt_+4*kk+2*u+1}], v{176+4*kk+nt_} offset:{WQL+16384+u*512}")
            return
        if t3:
            for nt_ in range(4):
                for u in range(2): a(f"ds_read_b64_tr_b16 v[{WB+4*nt_+2*u}:{WB+4*nt_+2*u+1}], v{153+nt_} offset:{WQL+16384+u*512}")
            return
        for nt_ in range(4):
            for kk in range(4):
                for u in range(2):
                    r = WB + 16 * nt_ + 4 * kk + 2 * u
                    if wosw: a(f"ds_read_b64_tr_b16 v[{r}:{r+1}], v{153+nt_} offset:{WQL+16384+kk*4096+u*512}")
                    else: a(f"ds_read_b64_tr_b16 v[{r}:{r+1}], v{vr} offset:{WQL+16384+kk*4096+u*512+nt_*32}")
    if wolate is None: woread(3)
    elif wosw: a("v_bfe_u32 v153, v1, 3, 2\nv_lshl_add_u32 v153, v153, 5, v3\n" + ("s_lshl_b32 s4, s3, 12\nv_add_u32 v153, s4, v153\n" if t3 else "") + "v_xor_b32 v154, 32, v153\nv_xor_b32 v155, 64, v153\nv_xor_b32 v156, 0x60, v153")
    else: a("v_mov_b32 v91, v3")
    a(f"""
s_lshr_b32 s4, s2, 5
s_mul_i32 s4, s4, {XRS}
v_lshl_add_u32 v2, v1, 4, s4
ds_read_b128 v[{HX}:{HX+3}], v2 offset:{XN}
v_mov_b32 v{S1}, 0
v_mov_b32 v{S2}, 0
s_waitcnt lgkmcnt(0)
""")
    for i in range(4):
        a(f"v_dot2_f32_bf16 v{S1}, v{HX+i}, s11, v{S1}")
        a(f"v_dot2_f32_bf16 v{S2}, v{HX+i}, v{HX+i}, v{S2}")
    for n in (8, 4, 2, 1):
        a(f"v_add_f32_dpp v{S1}, v{S1}, v{S1} row_ror:{n} row_mask:0xf bank_mask:0xf")
        a(f"v_add_f32_dpp v{S2}, v{S2}, v{S2} row_ror:{n} row_mask:0xf bank_mask:0xf")
    swaps_add(S1, T0); swaps_add(S2, T1)
    stats_finish()
    normalize(HX, HX, 4, 20)
    if t3:
        a("s_and_b32 s4, s2, 31\ns_lshl_b32 s4, s4, 1")
        for i in range(4): a(f"v_readlane_b32 s{72+i}, v{HX+i}, s4")
        a("s_add_u32 s4, s4, 1")
        for i in range(4): a(f"v_readlane_b32 s{76+i}, v{HX+i}, s4")
    else: a(f"""
s_bitcmp1_b32 s2, 0
s_cselect_b64 vcc, -1, 0
s_bfe_u32 s4, s2, 0x30002
s_lshl_b32 s4, s4, 3
s_bfe_u32 s5, s2, 0x10001
s_add_u32 s4, s4, s5
v_cndmask_b32 v{HX}, v{HX}, v{HX+2}, vcc
v_cndmask_b32 v{HX+1}, v{HX+1}, v{HX+3}, vcc
""")
    for i in range(0 if t3 else 4):
        a(f"v_readlane_b32 s{72+2*i}, v{HX}, s4\nv_readlane_b32 s{73+2*i}, v{HX+1}, s4")
        if i < 3: a("s_add_u32 s4, s4, 2")
    a("s_waitcnt vmcnt(2)")
    for i in range(21): a(f"v_lshlrev_b32 v{W1+i}, 16, v{W1+i}")
    c0 = -2 * LOG2E * math.sqrt(2 / math.pi); c1 = c0 * 0.044715
    a(f"""
v_mov_b32 v{C1}, {f32(c1)}
s_lshl_b32 s4, s3, 6
v_mov_b32 v{YA}, s4
""")
    def mlp_steps(lo, hi):
        for d in range(lo, hi):
            if d & 1: a(f"s_and_b32 s4, s{72+(d>>1)}, 0xffff0000")
            else: a(f"s_lshl_b32 s4, s{72+(d>>1)}, 16")
            if "nomlp" not in dbg: a("s_call_b64 s[80:81], L_mlp")
            if wolate is not None and wotrig is None and d in wolate: wodma(wolate.index(d), 90, 22, 23)
    mlp_steps(0, mlp1)
    a("; gather the four K-split partials of q (head = helper index) and hand q to the stream waves through LDS")
    a(f"""
s_setprio 3
s_lshr_b32 s4, s2, 5
s_lshl_b32 s4, s4, 11
s_lshl_b32 s5, s15, 2
s_add_u32 s5, s5, s3
s_lshl_b32 s5, s5, 14
s_add_u32 s4, s4, s5
s_add_u32 s6, s4, {QOFF}
v_lshlrev_b32 v2, 4, v1
{f"v_lshlrev_b32 v138, 3, v1" if qf else ""}
{f"s_lshr_b32 s7, s4, 1" if qf else ""}
{f"s_add_u32 s7, s7, {Q2OFF}" if qf else ""}
s_cmp_lg_u32 s26, 0
s_cbranch_scc1 L_gq_far
""")
    def qchk():
        r = chk16([96, 100], 104, 12)
        if qf: a(f"v_bitop3_b32 v108, v113, v115, s12 bitop3:0x7e\nv_or_b32 v{r}, v{r}, v108")
        return r
    def qpoll(sfx, fl):
        poll("L_gq" + sfx, [f"buffer_load_dwordx4 v[{96+4*k}:{99+4*k}], v2, s[52:55], s6 offen offset:{1024*k} {fl}" for k in range(2)]
             + ([f"buffer_load_dwordx2 v[{112+2*k}:{113+2*k}], v138, s[52:55], s7 offen offset:{512*k} {fl}" for k in range(2)] if qf else []),
             qchk, sl=qslp)
    if "q3rd" in dbg: poll("L_gq", ["buffer_load_dwordx4 v[96:99], v2, s[52:55], s6 offen nt"], lambda: chk16([96], 104, 12), sl=qslp)
    elif "q12th" in dbg:
        a("v_and_b32 v2, 0xff, v2"); poll("L_gq", ["buffer_load_dwordx4 v[96:99], v2, s[52:55], s6 offen nt"], lambda: chk16([96], 104, 12), sl=qslp)
    elif "noqg" not in dbg: qpoll("", "nt")
    a("L_gq_got:")
    if qf:
        a("; put the low mantissa bytes (sent in their own tagged granule) back: the partials are summed in full f32")
        for i in range(8): a(f"v_perm_b32 v{96+i}, v{96+i}, v{112+2*(i>>2)}, s{16+(i&3)}")
    else:
        for i in range(8): a(f"v_and_b32 v{96+i}, 0xffffff00, v{96+i}")
    for i in range(4): a(f"v_add_f32 v{96+i}, v{96+i}, v{100+i}")
    a(f"""
s_lshl_b32 s4, s3, 8
v_and_b32 v2, 31, v1
v_lshl_add_u32 v2, v2, 3, s4
v_lshl_add_u32 v2, v7, 2, v2
v_permlane32_swap_b32 v96, v98
v_permlane32_swap_b32 v97, v99
v_add_f32 v96, v96, v98
v_add_f32 v97, v97, v99
v_cvt_pk_bf16_f32 v96, v96, v97
ds_write_b32 v2, v96 offset:{QL}
s_waitcnt lgkmcnt(0)
""")
    lds_signal(FLG + 4)
    stamp(3)
    if "cutg" in dbg: a("s_branch L_pre2")
    a(f"s_setprio {bgprio}")
    if prer is not None and prp == 'q': preread()
    if h2pre and h2pre is not True and h2pre[0] == "q": h2touch()
    mlp_steps(mlp1, 16)
    a("s_waitcnt vmcnt(0) lgkmcnt(0)")
    lds_signal(FLG + 12)
    a(f"""
v_lshrrev_b32 v2, 2, v1
v_mul_u32_u24 v20, 144, v2
v_and_b32 v3, 3, v1
v_lshl_add_u32 v20, v3, 5, v20
s_lshl_b32 s4, s3, 2
s_add_u32 s4, s4, {OP}
v_add_u32 v20, s4, v20
v_add_u32 v21, 2304, v20
v_add_u32 v22, 4608, v20
v_add_u32 v23, 6912, v20
s_lshl_b32 s4, s3, 3
v_mov_b32 v24, s4
v_lshrrev_b32 v25, 5, v1
v_lshlrev_b32 v25, 7, v25
v_bfe_u32 v2, v1, 4, 1
v_lshl_add_u32 v25, v2, 11, v25
v_bfe_u32 v2, v1, 1, 1
v_lshl_add_u32 v25, v2, 10, v25
v_bfe_u32 v2, v1, 2, 2
v_lshl_add_u32 v25, v2, 8, v25
v_and_b32 v2, 1, v1
v_lshl_add_u32 v25, v2, 3, v25
v_lshlrev_b32 v26, 4, v1
v_and_b32 v2, 1, v5
v_lshl_add_u32 v27, v2, 2, v3
v_lshlrev_b32 v27, 4, v27
v_lshlrev_b32 v28, {6 if h2full else 16}, v2
v_bfe_u32 v2, v1, 2, 2
v_lshl_add_u32 v28, v2, {12 if h2full else 11}, v28
v_lshl_add_u32 v28, v3, 4, v28
v_lshrrev_b32 v19, 2, v1
v_lshlrev_b32 v19, {7 if h2full else 6}, v19
v_lshl_add_u32 v19, v3, 4, v19
s_lshl_b32 s4, s15, 2
s_add_u32 s4, s4, s3
s_lshl_b32 s4, s4, 2
s_add_u32 s4, s4, s9
s_mul_i32 s4, s4, {H1S}
s_bfe_u32 s5, s2, 0x30003
s_lshl_b32 s5, s5, 4
s_add_u32 s4, s4, s5
s_add_u32 s6, s4, {H1OFF}
s_lshl_b32 s4, s13, 2
s_add_u32 s4, s4, s3
s_mul_i32 s4, s4, {H1S}
s_add_u32 s7, s4, {H1OFF}
s_lshl_b32 s4, s3, {5 if h2full else 6}
s_lshl_b32 s5, s14, 2
s_add_u32 s4, s4, s5
s_lshl_b32 s4, s4, {12 if h2full else 11}
s_lshl_b32 s5, s13, {7 if h2full else 6}
s_add_u32 s4, s4, s5
s_add_u32 s8, s4, {H2OFF}
""")
    if t2: a(f"""
v_lshlrev_b32 v20, 4, v8
v_lshl_add_u32 v20, v5, 2, v20
s_lshl_b32 s4, s3, 8
s_add_u32 s4, s4, {OP}
v_add_u32 v20, s4, v20
v_lshlrev_b32 v24, 3, v5
v_mul_u32_u24 v25, {4*H1S}, v5
v_lshl_add_u32 v25, v8, 3, v25
s_lshl_b32 s4, s15, 4
s_add_u32 s4, s4, s9
s_mul_i32 s4, s4, {H1S}
s_bfe_u32 s5, s2, 0x30003
s_lshl_b32 s5, s5, 9
s_add_u32 s4, s4, s5
s_lshl_b32 s5, s3, 7
s_add_u32 s4, s4, s5
s_add_u32 s28, s4, {H1OFF}
v_bfe_u32 v2, v1, 3, 1
v_lshlrev_b32 v26, 11, v2
v_lshl_add_u32 v26, v5, 7, v26
v_lshl_add_u32 v26, v6, 4, v26
v_lshl_add_u32 v27, v2, 2, v3
v_lshlrev_b32 v27, 4, v27
v_lshlrev_b32 v28, 16, v7
v_bfe_u32 v2, v1, 2, 2
v_lshl_add_u32 v28, v2, 11, v28
v_lshl_add_u32 v28, v3, 4, v28
s_lshl_b32 s29, s3, 4
""")
    if own1:
        a("s_lshl_b32 s4, s3, 1\nv_add_u32 v2, s4, v6\nv_and_b32 v2, 7, v2\nv_and_b32 v26, 0xffffff8f, v26\nv_lshl_add_u32 v26, v2, 4, v26")
        for kk in range(4):
            a(f"s_add_u32 s4, s3, {kk}\ns_and_b32 s4, s4, 3\ns_lshl_b32 s4, s4, 12")
            for nt_ in range(4): a(f"v_add_u32 v{176+4*kk+nt_}, s4, v{153+nt_}")
    RBB = WQL
    if t3:
        a(f"""
v_mul_u32_u24 v25, {4*H1S}, v5
v_lshrrev_b32 v2, 1, v8
v_lshl_add_u32 v25, v2, 7, v25
v_and_b32 v2, 1, v1
v_lshl_add_u32 v25, v2, 3, v25
s_lshl_b32 s4, s15, 4
s_add_u32 s4, s4, s3
s_mul_i32 s4, s4, {H1S}
s_bfe_u32 s5, s2, 0x20003
s_lshl_b32 s5, s5, 10
s_add_u32 s4, s4, s5
s_lshr_b32 s5, s2, 5
s_lshl_b32 s5, s5, 4
s_add_u32 s4, s4, s5
s_add_u32 s28, s4, {H1OFF}
v_lshlrev_b32 v26, 4, v1
v_bfe_u32 v2, v1, 3, 2
v_mul_u32_u24 v27, {H1S}, v2
v_lshl_add_u32 v27, v6, 4, v27
s_mul_i32 s30, s13, {4*H1S}
s_add_u32 s30, s30, {H1OFF}
v_lshrrev_b32 v2, 2, v1
v_lshlrev_b32 v28, 16, v2
v_lshl_add_u32 v28, v3, 4, v28
s_lshl_b32 s4, s14, 2
s_add_u32 s4, s4, s3
s_lshl_b32 s4, s4, 11
s_lshl_b32 s5, s13, 6
s_add_u32 s4, s4, s5
s_add_u32 s8, s4, {H2OFF}
v_mul_u32_u24 v21, 320, v5
v_lshl_add_u32 v21, v8, 4, v21
s_mul_i32 s4, s3, 2560
v_add_u32 v21, s4, v21
v_mul_u32_u24 v22, 320, v3
v_and_b32 v2, 7, v2
v_lshl_add_u32 v22, v2, 4, v22
s_lshr_b32 s4, s3, 1
s_mul_i32 s4, s4, 1280
s_and_b32 s5, s3, 1
s_lshl_b32 s5, s5, 7
s_add_u32 s4, s4, s5
v_add_u32 v22, s4, v22
v_lshlrev_b32 v23, 4, v6
""")
        if t3 == 2: a(f"""
v_mul_u32_u24 v25, {4*H1S}, v5
v_lshl_add_u32 v25, v8, 3, v25
s_lshr_b32 s5, s2, 5
s_mul_i32 s5, s5, 112
s_add_u32 s28, s28, s5
v_lshrrev_b32 v23, 3, v1
v_lshlrev_b32 v23, 4, v23
v_lshlrev_b32 v184, 5, v6
v_lshl_add_u32 v184, v5, 3, v184
v_add_u32 v185, 4, v184
s_mov_b32 s32, 0x00ff00ff
s_mov_b32 s33, 0x00ff00ff
""")
        for i in range(8 if t3 == 1 else 0): a(f"v_mov_b32 v{176+i}, 0")
    if not h2full: a("s_lshl_b32 s9, s2, 11")
    else: a("""
s_lshr_b32 s9, s2, 6
s_lshl_b32 s9, s9, 5
s_and_b32 s4, s2, 31
s_add_u32 s9, s9, s4
s_lshl_b32 s9, s9, 12
s_bfe_u32 s4, s2, 0x10005
s_lshl_b32 s4, s4, 6
s_add_u32 s9, s9, s4
""")
    h2l = [f"buffer_load_dwordx4 v[{136+4*k}:{139+4*k}], v19, s[52:55], s9 offen offset:{(2048 if h2full else 1024)*k} {h2fl}" for k in range(2)]
    a(f"""
s_add_u32 s9, s9, {H2OFF}
""")
    if near:
        a(f"s_mov_b32 s5, {CWOFF}\nv_and_b32 v2, {8 * near['nw'] - 1}, v1\nv_lshlrev_b32 v2, 3, v2")
        poll("L_cwp", ["buffer_load_dwordx2 v[94:95], v2, s[52:55], s5 offen sc1"], lambda: chk8([95], 80), sl=4)
        a(f"""
v_sub_u32 v95, 0, v94
v_cmp_gt_u32 vcc, 4, v6
v_cndmask_b32 v94, v95, v94, vcc
v_add_u32_dpp v94, v94, v94 row_ror:8 row_mask:0xf bank_mask:0xf
v_add_u32_dpp v94, v94, v94 row_ror:4 row_mask:0xf bank_mask:0xf
v_add_u32_dpp v94, v94, v94 row_ror:2 row_mask:0xf bank_mask:0xf
v_add_u32_dpp v94, v94, v94 row_ror:1 row_mask:0xf bank_mask:0xf
v_readfirstlane_b32 s4, v94
s_cmp_gt_i32 s4, 0
s_cselect_b32 s4, {0x2000 if not near.get("inv") else 0}, {0x2000 if near.get("inv") else 0}
s_xor_b32 s8, s8, s4
s_xor_b32 s9, s9, s4
""")
    if h2pre and h2pre is not True and h2pre[0] == "m": h2touch()
    if wolate is not None and wotrig is None:
        lds_wait("L_yw", FLG + 12, 4); woread(91)
    if not fin: a("""
s_cmp_lg_u32 s3, 0
s_cbranch_scc1 L_ready
""")
    if wolate is None or wotrig is not None: lds_wait("L_yw", FLG + 12, 4)
    if h2pre is True:
        for l in h2l: a(l)
    if "o" in warm: a("buffer_load_ushort v94, v30, s[64:67], s10 offen")
    if tlbw: a(f"s_mov_b32 s4, {H2OFF + (1 << 20) - 4096}\nbuffer_load_dword v94, v9, s[52:55], s4 offen")
    DRYIN = DRYSET = ""
    if dry2:
        assert t2 and not t3 and not fin and wbar and h1m == 1 and h2late
        DRYIN = f"""; first pass through the hand-off code with empty buffer ranges (loads give 0, stores are dropped): fills the instruction cache
s_mov_b32 s30, 0
s_mov_b32 s31, 1
s_mov_b32 s27, s26
s_mov_b32 s26, 0
s_mov_b32 s54, 0
s_mov_b32 s66, 0
v_mov_b32 v11, 0
s_waitcnt vmcnt(0) lgkmcnt(0)
{"s_memrealtime s[86:87]" if "drst" in dbg else ""}
s_branch L_dry_in
L_dry_ret:
s_mov_b64 exec, -1
s_waitcnt vmcnt(0) lgkmcnt(0)
{"s_memrealtime s[90:91]" if "drst" in dbg else ""}
s_mov_b32 s26, s27
s_mov_b32 s54, 0x10000000
s_mov_b32 s66, 8192
v_mov_b32 v11, 1"""
        DRYSET = f"s_mov_b32 s30, {spin}\ns_mov_b32 s31, 0"
    a(f"""
{"v_lshl_add_u32 v2, v3, 2, v5" if t3 else "v_lshl_add_u32 v2, v5, 2, v3"}
v_lshlrev_b32 v2, 2, v2
ds_read_b32 v32, v2 offset:{YP}
ds_read_b32 v33, v2 offset:{YP+64}
ds_read_b32 v34, v2 offset:{YP+128}
ds_read_b32 v35, v2 offset:{YP+192}
v_lshlrev_b32 v31, 16, v31
s_waitcnt lgkmcnt(0)
v_add_f32 v32, v32, v33
v_add_f32 v34, v34, v35
v_add_f32 v32, v32, v34
v_cvt_pk_bf16_f32 v32, v32, v32
v_lshlrev_b32 v32, 16, v32
v_add_f32 v32, v32, v31
v_cvt_pk_bf16_f32 v32, v32, v32
v_lshlrev_b32 v32, 16, v32
v_mul_f32 v34, {f32(-LOG2E)}, v32
v_exp_f32 v34, v34
v_add_f32 v34, 1.0, v34
v_rcp_f32 v34, v34
v_mul_f32 v32, v32, v34
v_cvt_pk_bf16_f32 v32, v32, v32
v_lshlrev_b32 v16, 16, v32
v_lshlrev_b32 v14, 16, v29
{DRYIN}
L_ready:
{DRYSET}
""")
    if "p2st" in dbg: stamp(2)
    if "cuts" in dbg: a("s_branch L_pre2")
    a("; softmax statistics: merge the four waves, publish {max, sum}, fetch the group's statistics, form the split weights")
    lds_wait("L_sw", FLG + 16, 4, sl=8)
    a(f"""
ds_read_b64 v[32:33], v24 offset:{ST}
ds_read_b64 v[34:35], v24 offset:{ST+32}
ds_read_b64 v[36:37], v24 offset:{ST+64}
ds_read_b64 v[38:39], v24 offset:{ST+96}
s_waitcnt lgkmcnt(0)
v_max3_f32 v48, v32, v34, v36
v_max_f32 v48, v48, v38
v_sub_f32 v32, v32, v48
v_sub_f32 v34, v34, v48
v_sub_f32 v36, v36, v48
v_sub_f32 v38, v38, v48
v_exp_f32 v32, v32
v_exp_f32 v34, v34
v_exp_f32 v36, v36
v_exp_f32 v38, v38
v_mov_b32 v49, v10
v_mov_b32 v51, v10
v_mul_f32 v50, v32, v33
v_fmac_f32 v50, v34, v35
v_fmac_f32 v50, v36, v37
v_fmac_f32 v50, v38, v39
v_mov_b32 v53, v10
{"s_lshl_b64 exec, 1, s29" if t2 else "s_mov_b64 exec, 1"}
s_cmp_lg_u32 s26, 0
s_cbranch_scc1 L_st_far
buffer_store_dwordx4 v[48:51], v9, s[52:55], s6 offen
s_mov_b64 exec, -1
""")
    if t2 and prew: a("v_not_b32 v60, v10\nv_not_b32 v61, v10\nbuffer_store_dwordx2 v[60:61], v25, s[52:55], s28 offen offset:128")
    if prer is not None and prp == 's': a(f"buffer_load_dwordx2 v[62:63], v25, s[52:55], s28 offen offset:128 {prer}")
    poll("L_sp", [f"buffer_load_dwordx4 v[40:43], v27, s[52:55], s{30 if t3 else 7} offen {h1fl}"], lambda: chk8([41, 43], 80), sl=8)
    a(f"""
s_branch L_st_done
L_st_far:
buffer_store_dwordx4 v[48:51], v9, s[52:55], s6 offen sc1
s_mov_b64 exec, -1
""")
    poll("L_spx", [f"buffer_load_dwordx4 v[40:43], v27, s[52:55], s{30 if t3 else 7} offen sc1"], lambda: chk8([41, 43], 80), sl=8)
    a("L_st_done:")
    def ptouch(mode, fl):
        if mode == 8: a(f"s_lshl_b32 s4, s14, 9\ns_add_u32 s4, s4, s7\ns_mov_b64 exec, 0xffffffff\nbuffer_load_dwordx4 v[64:67], v26, s[52:55], s4 offen offset:128 {fl}\ns_mov_b64 exec, -1")
        else:
            for k in range(4): a(f"buffer_load_dwordx4 v[{64+4*k}:{67+4*k}], v26, s[52:55], s7 offen offset:{128+k*1024} {fl}")
    if pretouch and pretouch[0] == "s": ptouch(pretouch[1], pretouch[2])
    a("""
v_max_f32_dpp v44, v40, v40 quad_perm:[1,0,3,2] row_mask:0xf bank_mask:0xf
v_max_f32_dpp v45, v44, v44 quad_perm:[2,3,0,1] row_mask:0xf bank_mask:0xf
v_sub_f32 v40, v40, v45
v_exp_f32 v40, v40
v_mul_f32 v42, v40, v42
v_add_f32_dpp v44, v42, v42 quad_perm:[1,0,3,2] row_mask:0xf bank_mask:0xf
v_add_f32_dpp v45, v44, v44 quad_perm:[2,3,0,1] row_mask:0xf bank_mask:0xf
v_rcp_f32 v45, v45
v_mul_f32 v40, v40, v45
v_mov_b32_dpp v56, v40 quad_perm:[0,0,0,0] row_mask:0xf bank_mask:0xf
v_mov_b32_dpp v57, v40 quad_perm:[1,1,1,1] row_mask:0xf bank_mask:0xf
v_mov_b32_dpp v58, v40 quad_perm:[2,2,2,2] row_mask:0xf bank_mask:0xf
v_mov_b32_dpp v59, v40 quad_perm:[3,3,3,3] row_mask:0xf bank_mask:0xf
""" + ("\n".join(f"ds_bpermute_b32 v{56+i}, v23, v{56+i}" for i in range(4)) if t3 else "") + """
L_pre2:
s_setprio """ + str(hp) + """
s_waitcnt vmcnt(0) lgkmcnt(0)
""")
    if "p2st" in dbg: stamp(1)
    if prer is not None and prp == 'p': a(f"buffer_load_dwordx2 v[62:63], v25, s[52:55], s28 offen offset:128 {prer}")
    if wotrig is not None and wotrig >= 0:
        if defer:
            srd(48, 38, 256)
            a(f"""
s_getreg_b32 s4, hwreg(HW_REG_XCC_ID, 0, 3)
s_lshl_b32 s4, s4, 5
v_lshl_add_u32 v92, v6, 2, s4
s_mov_b32 s28, {(0x80 - defer[2]) * 0x01010101}
s_mov_b32 s29, 0x80808080
""")
        if wodl is not None: a(f"""
s_mov_b32 s58, {spin*8}
L_wt:
ds_read2_b32 v[60:61], v9 offset0:{(FLG+28)//4} offset1:{(FLG+48)//4}
s_memrealtime s[76:77]
{f"s_sleep {wosl}" if wosl else ""}
s_waitcnt lgkmcnt(0)
v_readfirstlane_b32 s59, v60
v_readfirstlane_b32 s27, v61
s_sub_u32 s58, s58, 1
s_cbranch_scc1 L_wt_done
s_cmp_ge_u32 s59, {wothr}
s_cbranch_scc1 L_wt_done
s_cmp_eq_u32 s27, 0
s_cbranch_scc1 L_wt
s_sub_u32 s27, s76, s27
s_cmp_lt_i32 s27, 0
s_cbranch_scc1 L_wt
L_wt_done:
""")
        else:
            a("; Wo tile is fetched when this workgroup's V stream is nearly drained, so it overlaps the hop-1 hand-off")
            lds_wait("L_wt", FLG + 28, wothr, sl=wosl, msk=bool(defer))
        if defer: a(f"s_lshr_b32 s27, s59, 8\ns_cmp_ge_u32 s27, {defer[1]}\ns_cselect_b32 s27, 1, 0\ns_andn2_b32 s27, s27, s26\ns_cbranch_scc1 L_wt_skip")
        if prer is not None and prp == 't': a(f"buffer_load_dwordx2 v[62:63], v25, s[52:55], s28 offen offset:128 {prer}")
        if pretouch and pretouch[0] == "b": ptouch(pretouch[1], pretouch[2])
        for t in range(4): wodma(t, 90, 22, 23)
        if pretouch and pretouch[0] == "a": ptouch(pretouch[1], pretouch[2])
        if defer: a("L_wt_skip:")
    stamp(4)
    if not dp: a("s_barrier")
    if dry2: a("L_dry_in:")
    if wotrig is not None and wotrig < 0:
        for t in range(4): wodma(t, 90, 22, 23)
    if isinstance(dbgt, str): a("s_memrealtime s[92:93]")
    if prof: a("s_waitcnt lgkmcnt(0)")
    if "notail" in dbg:
        stamp(5); stamp(6); a("s_branch L_hend")
    if tailprof: stamp(1); a("s_waitcnt lgkmcnt(0)")
    PKC = """s_waitcnt lgkmcnt(2)
v_mul_f32 v40, v32, v40
v_mul_f32 v41, v32, v41
v_fmac_f32 v40, v34, v42
v_fmac_f32 v41, v34, v43
s_waitcnt lgkmcnt(0)
v_mul_f32 v44, v36, v44
v_mul_f32 v45, v36, v45
v_fmac_f32 v40, v38, v46
v_fmac_f32 v41, v38, v47
v_add_f32 v40, v40, v44
v_add_f32 v41, v41, v45""" if not pkc else """s_waitcnt lgkmcnt(3)
v_pk_mul_f32 v[40:41], v[40:41], v[32:33] op_sel_hi:[1,0]
s_waitcnt lgkmcnt(2)
v_pk_fma_f32 v[40:41], v[42:43], v[34:35], v[40:41] op_sel_hi:[1,0,1]
s_waitcnt lgkmcnt(1)
v_pk_fma_f32 v[40:41], v[44:45], v[36:37], v[40:41] op_sel_hi:[1,0,1]
s_waitcnt lgkmcnt(0)
v_pk_fma_f32 v[40:41], v[46:47], v[38:39], v[40:41] op_sel_hi:[1,0,1]"""
    if t2:
        for w_ in range(4): a(f"ds_read2st64_b32 v[{40+2*w_}:{41+2*w_}], v20 offset0:{8*w_} offset1:{8*w_+4}")
    elif not dp: a("""
ds_read2_b32 v[40:41], v20 offset0:0 offset1:4
ds_read2_b32 v[42:43], v21 offset0:0 offset1:4
ds_read2_b32 v[44:45], v22 offset0:0 offset1:4
ds_read2_b32 v[46:47], v23 offset0:0 offset1:4
""")
    if not dp: a(f"""
{PKC}
s_cmp_lg_u32 s26, 0
v_cvt_pk_bf16_f32 v52, v40, v41
s_cbranch_scc1 L_h1_far
buffer_store_dwordx2 v[52:53], v25, s[52:55], s{28 if t2 else 6} offen offset:128
L_h1_st:
""")
    stamp(5)
    if wotrig is not None:
        if defer: a("s_cmp_lg_u32 s27, 0\ns_cbranch_scc1 L_dfr")
        if h1e:
            a("s_cmp_lg_u32 s26, 0\ns_cbranch_scc1 L_h1e_far")
            if dry2: a("s_cmp_lg_u32 s31, 0")
            for e_ in range(h1e[0]):
                if len(h1e) > 2: a(f"s_waitcnt vmcnt({h1e[2][e_] + 4 * e_})")
                elif e_: a(f"s_sleep {h1e[1]}")
                if "h1d" in dbg: stamp(4)
                for k in range(4): a(f"buffer_load_dwordx4 v[{64+4*k}:{67+4*k}], v26, s[52:55], s7 offen offset:{128+k*(512 if t2 and not t3 else 1024)} {h1fl}")
            a(f"s_waitcnt vmcnt({1 + 4 * h1e[0]})\nL_h1e_done:")
        else: a(f"s_waitcnt vmcnt({0 if dp else 1})")
        if defer: a("L_dfr_done:")
        if dp: stamp(5)
        if "wol" in dbg and "h1it" not in dbg and "h1vm" not in dbg and "h1d" not in dbg: stamp(3)
        if own1: woread(91, [0])
        if wbar: a(("s_cbranch_scc1 L_nobar\n" if dry2 else "") + "s_barrier" + ("\nL_nobar:" if dry2 else ""))
        elif not t3:
            lds_signal(FLG + 20)
            lds_wait("L_wl", FLG + 20, 4)
        if "wol" in dbg: stamp(1)
        if not womid: woread(91)
        if dp and dpw: lds_wait("L_pw", FLG + 40, dpw)
    a("s_cmp_lg_u32 s26, 0\ns_cbranch_scc1 L_h1_farp")
    def h1poll(sfx, fl, pipe):
        full = [f"buffer_load_dwordx4 v[{64+4*k}:{67+4*k}], v26, s[52:55], s7 offen offset:{128+k*(512 if t2 and not t3 else 1024)} {fl}" for k in range(4)]
        if h1m and sfx == "":
            assert h1e
            a(f"s_mov_b32 s58, {'s30' if dry2 else spin}"); woread(91)
            if "h1d" in dbg: a("s_waitcnt vmcnt(0)"); stamp(3)
            a("L_h1_chk:\ns_waitcnt vmcnt(0)" if h1m == 1 else "s_waitcnt vmcnt(0)\nL_h1_chk:")
            for k in range(4): a(f"v_bitop3_b32 v{80+k}, v{65+4*k}, v{67+4*k}, s12 bitop3:0x7e")
            for k in range(4): a(f"v_cmp_ne_u32 s[{72+2*k}:{73+2*k}], 0, v{80+k}")
            a("s_or_b64 vcc, s[72:73], s[74:75]\ns_or_b64 s[82:83], s[76:77], s[78:79]\ns_or_b64 vcc, vcc, s[82:83]\ns_cbranch_scc0 L_h1_got\ns_sub_u32 s58, s58, 1\ns_cbranch_scc1 L_h1_got")
            if "h1it" in dbg: stamp(4)
            if h1sl: a(f"s_sleep {h1sl}")
            for k in range(4): a(f"s_mov_b64 exec, s[{72+2*k}:{73+2*k}]\n" + full[k])
            a("s_mov_b64 exec, -1")
            if slp: a(f"s_sleep {slp}")
            if h1m > 1: a(f"s_waitcnt vmcnt({4 * (h1m - 1)})")
            a("s_branch L_h1_chk")
            return
        poll("L_h1" + sfx, full, lambda: chk8([65, 67, 69, 71, 73, 75, 77, 79], 80), st=4, pipe=pipe, stag=stag1, mid=(lambda: woread(91)) if (womid and wotrig is not None) else None, pre=bool(h1e) and sfx == "")
    h1poll("", h1fl, pipe1)
    a("L_h1_got:")
    if "h1it" in dbg: a(f"s_sub_u32 s90, {spin}, s58\ns_mov_b32 s91, 0")
    if "h1d" in dbg: a(f"s_sub_u32 s98, {spin}, s58\ns_mov_b32 s99, 0")
    if "h1vm" in dbg: stamp(3); a(f"s_sub_u32 s98, {spin}, s58\ns_mov_b32 s99, 0")
    if hp2 is not None: a(f"s_setprio {hp2}")
    if lkw: assert own1 and t2 and not t3 and h2late and not fin
    if wotrig is not None and not lkw: a("s_waitcnt lgkmcnt(0)")
    stamp(6)
    AO = 96; DD = 112
    if h2e:
        a("s_cmp_lg_u32 s3, 0\ns_cbranch_scc1 L_h2e")
        for l in h2l: a(l)
        a("L_h2e:")
    if h2late and fin != 2: a(f"s_mov_b64 exec, 1\nds_add_rtn_u32 v54, v9, v11 offset:{FLG+24}\ns_mov_b64 exec, -1")
    if fin == 2: a(f"ds_read_b32 v54, v9 offset:{FLG+24}")
    if t2:
        for k in range(4):
            for g_ in range(2):
                a(f"v_lshlrev_b32 v{160+4*k+2*g_}, 16, v{64+4*k+2*g_}\nv_and_b32 v{161+4*k+2*g_}, 0xffff0000, v{64+4*k+2*g_}")
            for g_ in range(2):
                r_ = 160 + 4 * k + 2 * g_; w_ = 56 + (k & 2); sel = k & 1
                if k == 0: a(f"v_pk_mul_f32 v[{84+2*g_}:{85+2*g_}], v[{r_}:{r_+1}], v[{w_}:{w_+1}] op_sel:[0,{sel}] op_sel_hi:[1,{sel}]")
                else: a(f"v_pk_fma_f32 v[{84+2*g_}:{85+2*g_}], v[{r_}:{r_+1}], v[{w_}:{w_+1}], v[{84+2*g_}:{85+2*g_}] op_sel:[0,{sel},0] op_sel_hi:[1,{sel},1]")
        a("v_cvt_pk_bf16_f32 v88, v84, v85\nv_cvt_pk_bf16_f32 v89, v86, v87")
    if fin == 2:
        a("s_waitcnt lgkmcnt(0)\nv_readfirstlane_b32 s27, v54\ns_cmp_lg_u32 s27, 3\ns_cbranch_scc1 L_h2e")
        for l in h2l: a(l)
        a(f"L_h2e:\ns_mov_b64 exec, 1\nds_add_rtn_u32 v54, v9, v11 offset:{FLG+24}\ns_mov_b64 exec, -1")
    if fin == 3:
        a("s_waitcnt lgkmcnt(0)\nv_readfirstlane_b32 s27, v54\ns_cmp_lg_u32 s27, 3\ns_cbranch_scc1 L_h2e")
        for l in h2l: a(l)
        a(f"s_mov_b64 exec, 1\nds_add_u32 v9, v11 offset:{FLG+24}\ns_mov_b64 exec, -1\nL_h2e:")
    def mv(kk, p):
        if t2:
            j_ = 2 * kk + (p >> 1)
            if j_: a(f"v_mov_b32_dpp v{AO+4*kk+p}, v{88+(p&1)} row_ror:{16-j_} row_mask:0xf bank_mask:0xf")
            else: a(f"v_mov_b32 v{AO+4*kk+p}, v{88+(p&1)}")
            return
        src = 64 + 8 * (kk & 1) + 2 * p
        if kk >= 2: a(f"v_mov_b32_dpp v{AO+4*kk+p}, v{src} row_ror:8 row_mask:0xf bank_mask:0xf")
        else: a(f"v_mov_b32 v{AO+4*kk+p}, v{src}")
    if t3 == 2:
        for p in range(4): a(f"ds_bpermute_b32 v{176+p}, v{184+(p>>1)}, v{88+(p&1)}")
        a("s_waitcnt lgkmcnt(0)")
        for nt_ in (0, 2, 1, 3): a(f"v_mfma_f32_16x16x32_bf16 v[{DD+4*nt_}:{DD+4*nt_+3}], v[{WB+4*nt_}:{WB+4*nt_+3}], v[176:179], 0")
        a(f"""
s_mov_b64 exec, s[32:33]
ds_write_b128 v21, v[{DD}:{DD+3}] offset:{RBB}
ds_write_b128 v21, v[{DD+8}:{DD+11}] offset:{RBB+1280}
s_not_b64 exec, s[32:33]
ds_write_b128 v21, v[{DD+4}:{DD+7}] offset:{RBB}
ds_write_b128 v21, v[{DD+12}:{DD+15}] offset:{RBB+1280}
""")
    if t3 == 1:
        ID = "quad_perm:[0,1,2,3]"
        for p in range(4): a(f"v_mov_b32_dpp v{176+p}, v{88+(p&1)} {'row_ror:8' if p >> 1 else ID} row_mask:0xf bank_mask:0x3")
        for p in range(4): a(f"v_mov_b32_dpp v{180+p}, v{88+(p&1)} {ID if p >> 1 else 'row_ror:8'} row_mask:0xf bank_mask:0xc")
        for h_ in range(2):
            for a_ in range(2):
                d = DD + 4 * a_; w_ = WB + 4 * (2 * a_ + h_)
                a(f"v_mfma_f32_16x16x32_bf16 v[{d}:{d+3}], v[{w_}:{w_+3}], v[{176+4*h_}:{179+4*h_}], {'0' if h_ == 0 else f'v[{d}:{d+3}]'}")
        a(f"""
ds_write_b128 v21, v[{DD}:{DD+3}] offset:{RBB}
ds_write_b128 v21, v[{DD+4}:{DD+7}] offset:{RBB+1280}
""")
    if t3:
        a(f"""
s_mov_b64 exec, 0xffffffff
s_waitcnt lgkmcnt(0)
s_barrier
""")
        for w_ in range(4): a(f"ds_read_b128 v[{96+4*w_}:{99+4*w_}], v22 offset:{RBB+2560*w_}")
        a("""
s_waitcnt lgkmcnt(2)
v_pk_add_f32 v[96:97], v[96:97], v[100:101]
v_pk_add_f32 v[98:99], v[98:99], v[102:103]
s_waitcnt lgkmcnt(0)
v_pk_add_f32 v[104:105], v[104:105], v[108:109]
v_pk_add_f32 v[106:107], v[106:107], v[110:111]
v_pk_add_f32 v[96:97], v[96:97], v[104:105]
v_pk_add_f32 v[98:99], v[98:99], v[106:107]
""")
    for p in range(0 if t3 else 4): mv(0, p)
    for kk in range(0 if t3 else 4):
        for nt_ in range(4):
            d = DD + 4 * nt_; b = WB + 16 * nt_ + 4 * kk
            if kk < 3 and nt_ < 2: mv(kk + 1, 2 * nt_); mv(kk + 1, 2 * nt_ + 1)
            if lkw and nt_ == 0 and kk != 1: a(f"s_waitcnt lgkmcnt({[15, 0, 9, 1][kk]})")
            a(f"v_mfma_f32_16x16x32_bf16 v[{d}:{d+3}], v[{AO+4*kk}:{AO+4*kk+3}], v[{b}:{b+3}], {'0' if kk == 0 else f'v[{d}:{d+3}]'}")
    GO = 128
    if fin == 3: a("s_mov_b32 s59, s27")
    elif h2late: a("s_waitcnt lgkmcnt(0)\nv_readfirstlane_b32 s59, v54")
    if t3: pack16(GO, [96, 97, 98, 99], 10)
    elif t2: pack16(GO, [DD, DD + 4, DD + 8, DD + 12], 10)
    else:
        for t in range(4):
            a(f"v_mul_f32 v{GO+t}, v56, v{DD+4*t}")
            a(f"v_mul_f32 v{GO+4+t}, v58, v{DD+4*t+2}")
        for t in range(4):
            a(f"v_fmac_f32 v{GO+t}, v57, v{DD+4*t+1}")
            a(f"v_fmac_f32 v{GO+4+t}, v59, v{DD+4*t+3}")
        for t in range(4): a(f"v_add_f32 v{GO+t}, v{GO+t}, v{GO+4+t}")
        pack16(GO, [GO, GO + 1, GO + 2, GO + 3], 10)
    if lbar: a("s_barrier")
    if h2late:
        a(("s_mov_b32 s31, s59\n" if fin else "") + "s_cmp_eq_u32 s59, 3\ns_cbranch_scc1 L_hl_done")
        lds_wait("L_hl", FLG + 24, 5 if fin == 3 else 4, bnd="s30" if dry2 else None)
    a(("" if t3 else "s_mov_b32 exec_lo, 0xffff\ns_mov_b32 exec_hi, 0xffff" if t2 else "s_mov_b64 exec, 0xffffffff") + f"\nbuffer_store_dwordx4 v[{GO}:{GO+3}], v28, s[52:55], s8 offen {h2sf}")
    if tailprof or "wol" in dbg: stamp(2)
    if h2sync and not h2late: lds_signal(FLG + 24)
    a(f"""
s_mov_b64 exec, -1
s_cmp_lg_u32 {"s31, 3" if fin else "s3, 0"}
s_cbranch_scc1 L_hend
""")
    if fin >= 2:
        a("s_cmp_lg_u32 s27, 3\ns_cbranch_scc1 L_h2n\ns_waitcnt vmcnt(1)" if fin == 2 else "s_waitcnt vmcnt(1)")
        r_ = chk16([136, 140], 56, 12)
        a(f"v_cmp_ne_u32 vcc, 0, v{r_}\ns_mov_b32 s58, {spin}\ns_and_b64 exec, exec, vcc\ns_cbranch_execz L_h2_done\nL_h2n:")
    if h2sync and not h2late: lds_wait("L_hw", FLG + 24, 4)
    if h2e:
        a("s_waitcnt vmcnt(1)")
        r_ = chk16([136, 140], 56, 12)
        a(f"v_cmp_ne_u32 vcc, 0, v{r_}\ns_mov_b32 s58, {spin}\ns_and_b64 exec, exec, vcc\ns_cbranch_execz L_h2_done")
    if h2ack: a("s_waitcnt vmcnt(0)")
    if "h2it" in dbg: stamp(1)
    poll("L_h2", h2l, lambda: chk16([136, 140], 56, 12), st=3, pipe=pipe2, stag=stag2, sl=slp2, bnd="s30" if dry2 else None)
    if "h2it" in dbg: stamp(5); a(f"s_sub_u32 s90, {spin}, s58\ns_mov_b32 s91, 0")
    for i in range(8): a(f"v_and_b32 v{48+i}, 0xffffff00, v{136+i}")
    for i in range(4): a(f"v_add_f32 v{48+i}, v{48+i}, v{52+i}")
    a(f"""
v_permlane32_swap_b32 v48, v50
v_permlane32_swap_b32 v49, v51
v_add_f32 v48, v48, v50
v_add_f32 v49, v49, v51
v_permlane16_swap_b32 v48, v49
v_add_f32 v48, v48, v49
v_add_f32_dpp v48, v48, v48 row_ror:4 row_mask:0xf bank_mask:0xf
v_add_f32_dpp v48, v48, v48 row_ror:8 row_mask:0xf bank_mask:0xf
s_mov_b32 exec_lo, 0x000f000f
s_mov_b32 exec_hi, 0x000f000f
v_cvt_pk_bf16_f32 v48, v48, v48
v_lshlrev_b32 v48, 16, v48
v_mul_f32 v48, v48, v16
v_cvt_pk_bf16_f32 v48, v48, v48
v_lshlrev_b32 v48, 16, v48
v_add_f32 v48, v48, v14
v_cvt_pk_bf16_f32 v48, v48, v48
buffer_store_short v48, v30, s[64:67], s10 offen {"sc1" if clean else ""}
s_mov_b64 exec, 1
s_cmp_lg_u32 s2, 0
s_cbranch_scc1 L_hend
v_mov_b32 v60, s42
buffer_store_dword v60, v9, s[52:55], 0 offen sc1
L_hend:
{"s_cmp_lg_u32 s31, 0" if dry2 else ""}
{"s_cbranch_scc1 L_dry_ret" if dry2 else ""}
""")
    if "probe" in dbg: a("s_cmp_ge_u32 s3, 2\ns_cbranch_scc1 L_np7")
    if "h1vm" not in dbg and "h1d" not in dbg: stamp(7)
    if "probe" in dbg: a("L_np7:")
    if endwait or prof or dbgt: a("s_waitcnt vmcnt(0)")
    if "endst" in dbg: stamp(1)
    if isinstance(dbgt, str):
        AMP = 96 << 20
        def red(op, r, steps, t=70):
            for n in steps:
                if n < 16: a(f"{op}_dpp v{r}, v{r}, v{r} row_ror:{n} row_mask:0xf bank_mask:0xf")
                else: a(f"v_mov_b32 v{t}, v{r}\nv_permlane{n}_swap_b32 v{r}, v{t}\n{op} v{r}, v{r}, v{t}")
        a(f"""
s_cmp_lg_u32 s3, 0
s_cbranch_scc1 L_dbgt
s_memrealtime s[88:89]
s_mov_b64 exec, 1
s_waitcnt lgkmcnt(0)
v_mov_b32 v12, s84
v_mov_b32 v13, s92
v_mov_b32 v14, s88
v_mov_b32 v15, s12
s_lshl_b32 s59, s2, 4
s_add_u32 s59, s59, {AMP}
buffer_store_dwordx4 v[12:15], v9, s[52:55], s59 offen sc1
s_waitcnt vmcnt(0)
s_mov_b64 exec, -1
s_cmp_lg_u32 s2, 0
s_cbranch_scc1 L_dbgt
v_lshlrev_b32 v2, 4, v1
s_mov_b32 s6, {AMP}
""")
        poll("L_amp", [f"buffer_load_dwordx4 v[{40+4*k}:{43+4*k}], v2, s[52:55], s6 offen offset:{1024*k} sc1" for k in range(4)], lambda: chk8([43, 47, 51, 55], 80), sl=8)
        for k in range(4):
            for c in range(3): a(f"v_subrev_u32 v{40+4*k+c}, s84, v{40+4*k+c}")
        ALL = [8, 4, 2, 1, 16, 32]
        def stat(op, c, dst, steps=ALL):
            a(f"{op} v{dst}, v{40+c}, v{44+c}\n{op} v71, v{48+c}, v{52+c}\n{op} v{dst}, v{dst}, v71")
            red(op, dst, steps)
        stat("v_min_i32", 0, 60)
        if dbgt == "startmax": stat("v_max_i32", 0, 61)
        if dbgt == "bmin": stat("v_min_i32", 1, 61)
        if dbgt == "bmax": stat("v_max_i32", 1, 61)
        if dbgt == "emax": stat("v_max_i32", 2, 61)
        if dbgt == "bmean": stat("v_add_u32", 1, 61); a("v_ashrrev_i32 v61, 8, v61")
        if dbgt == "xs":
            stat("v_add_u32", 1, 61, [8, 16, 32]); a("v_ashrrev_i32 v61, 5, v61\nv_mov_b32 v60, v61")
            red("v_max_i32", 61, [4, 2, 1]); red("v_min_i32", 60, [4, 2, 1])
        a(f"""
v_sub_u32 v61, v61, v60
s_nop 1
v_readfirstlane_b32 s59, v61
s_mul_i32 s59, s59, 10
s_add_u32 s59, s59, 5000
s_min_u32 s59, s59, 100000
L_dbgs:
s_memrealtime s[90:91]
s_waitcnt lgkmcnt(0)
s_sub_u32 s58, s90, s84
s_cmp_lt_u32 s58, s59
s_cbranch_scc1 L_dbgs
L_dbgt:
""")
    elif dbgt == 2:
        a(f"""
s_or_b32 s59, s2, s3
s_cmp_lg_u32 s59, 0
s_cbranch_scc1 L_dbgt
s_memrealtime s[88:89]
s_waitcnt lgkmcnt(0)
s_sub_u32 s59, s88, s84
s_mul_i32 s59, s59, 10
s_min_u32 s59, s59, 100000
L_dbgs:
s_memrealtime s[90:91]
s_waitcnt lgkmcnt(0)
s_sub_u32 s58, s90, s88
s_cmp_lt_u32 s58, s59
s_cbranch_scc1 L_dbgs
L_dbgt:
""")
    elif dbgt:
        a(f"""
s_memrealtime s[88:89]
s_memtime s[90:91]
s_mov_b32 s44, s38
s_mov_b32 s45, s39
s_mov_b32 s46, 256
s_mov_b32 s47, 0x20000
s_mov_b64 exec, 1
s_waitcnt lgkmcnt(0)
s_not_b32 s59, s84
v_mov_b32 v12, s88
v_mov_b32 v13, s59
buffer_atomic_umax v12, v9, s[44:47], 0 offen sc1
buffer_atomic_umax v13, v9, s[44:47], 0 offen offset:4 sc1
s_cmp_lg_u32 s3, 0
s_cbranch_scc1 L_dbgt
s_and_b32 s59, s2, 0x7f
s_cmp_lg_u32 s59, 0
s_cbranch_scc1 L_dbgt
s_lshr_b32 s59, s2, 3
v_mov_b32 v12, s84
v_mov_b32 v13, s88
v_mov_b32 v14, s86
v_mov_b32 v15, s90
buffer_store_dwordx4 v[12:15], v9, s[44:47], s59 offen offset:16 sc1
L_dbgt:
s_waitcnt vmcnt(0)
""")
    if prof:
        a(f"""
s_mov_b64 exec, 1
s_sleep 127
s_waitcnt lgkmcnt(0)
s_lshl_b32 s59, s2, 3
s_add_u32 s59, s59, s3
s_add_u32 s59, s59, 4
s_lshl_b32 s59, s59, 6
s_add_u32 s59, s59, {STAMP}
""")
        for i in range(0, 8):
            a(f"v_mov_b32 v12, s{84+2*i}\nv_mov_b32 v13, s{85+2*i}\nbuffer_store_dwordx2 v[12:13], v9, s[52:55], s59 offen offset:{8*i}\ns_waitcnt vmcnt(0)")
    a("L_end:\ns_endpgm")
    if not dp: a("""L_h1_far:
buffer_store_dwordx2 v[52:53], v25, s[52:55], s""" + ("28" if t2 else "6") + """ offen offset:128 sc1
s_branch L_h1_st
""")
    if h1e: a("L_h1e_far:\n" + ("s_cmp_lg_u32 s31, 0\n" if dry2 else "") + "s_waitcnt vmcnt(1)\ns_branch L_h1e_done")
    a("L_h1_farp:")
    h1poll("x", "sc1", 1)
    a("s_branch L_h1_got")
    if defer:
        a(f"""
L_dfr:
s_movk_i32 s58, 2000
L_dfr_l:
buffer_load_dword v93, v92, s[48:51], 0 offen nt
s_waitcnt vmcnt(0)
v_add_u32 v93, s28, v93
v_and_b32 v93, s29, v93
v_cmp_ne_u32 vcc, s29, v93
s_cbranch_vccz L_dfr_go
s_sub_u32 s58, s58, 1
s_cbranch_scc0 L_dfr_l
L_dfr_go:
""")
        for t in range(4): wodma(t, 90, 22, 23)
        a("s_waitcnt vmcnt(0)\ns_branch L_dfr_done")
    if near:
        assert near["nw"] in (1, 2)
        a(f"""L_meas:
s_cmp_lt_u32 s3, 2
s_cbranch_scc1 L_meas_done
s_and_b32 s4, s3, 1
s_lshl_b32 s4, s4, 13
s_lshl_b32 s5, s2, 7
s_add_u32 s4, s4, s5
s_memtime s[76:77]
s_waitcnt lgkmcnt(0)
s_load_dword s5, s[40:41], s4 offset:{MEAS}
s_waitcnt lgkmcnt(0)
s_memtime s[78:79]
s_lshl_b32 s4, s3, 2
v_mov_b32 v5, s4
s_waitcnt lgkmcnt(0)
s_sub_u32 s78, s78, s76
v_mov_b32 v6, s78
ds_write_b32 v5, v6 offset:{OP - 8}
s_waitcnt lgkmcnt(0)
s_branch L_meas_done
L_mpub:
ds_read_b64 v[94:95], v9 offset:{OP}
s_lshl_b32 s4, s2, 3
s_add_u32 s4, s4, {CWOFF}
s_movk_i32 s5, {near.get("cap", 600)}
s_mov_b64 exec, 1
s_waitcnt lgkmcnt(0)
v_sub_u32 v94, v94, v95
v_min_i32 v94, s5, v94
v_sub_u32 v95, 0, v94
v_min_i32 v95, s5, v95
v_sub_u32 v94, 0, v95
v_mov_b32 v95, s12
buffer_store_dwordx2 v[94:95], v9, s[52:55], s4 offen sc1
s_mov_b64 exec, -1
s_branch L_mpub_done
""")
    a("L_qs_far:\n" + (f"ds_write_b32 v9, v11 offset:{FLG+32}\n" if dp else "") + "buffer_store_dwordx4 v[132:135], v25, s[52:55], s72 offen sc1\n" + ("buffer_store_dwordx2 v[136:137], v138, s[52:55], s73 offen sc1\n" if qf else "") + "s_branch L_qs_done\nL_gq_far:")
    qpoll("x", "sc1")
    a("s_branch L_gq_got")
    if fc:
        lean = fc.get("tt", {}).get("notab") and fc["tt"].get("gl") == 2
        if not lean:
            a("L_cb:\ns_waitcnt lgkmcnt(0)\ns_mov_b32 s71, 0")
            for i in range(8): a(f"s_cmp_lg_u32 s{4+i}, s73\ns_addc_u32 s71, s71, 0")
        if not fc.get("wg"):
            a(f"""
s_cmp_lt_u32 s71, {fc['th1']}
s_cselect_b32 s62, 2, 0
s_cmp_ge_u32 s71, {fc['th2']}
s_cselect_b32 s62, 1, s62
""")
            if prof: a("s_lshl_b64 s[82:83], s[82:83], 2\ns_or_b32 s82, s82, s62")
            a("s_setpc_b64 s[80:81]")
        else:
            bias = 16 * fc["CW"]
            TSX = ""; DEC = ""
            if fc.get("dec"):
                DEC = f"s_cmp_eq_u32 s62, 1\ns_cselect_b32 s71, {-fc['dec'][0]}, 0\ns_cmp_eq_u32 s62, 2\ns_cselect_b32 s71, {fc['dec'][1]}, s71\ns_add_u32 s74, s74, s71"
            if fc.get("ts"):
                TSX = "L_cx:\ns_waitcnt lgkmcnt(0)\ns_mov_b32 s71, 0\n"
                for i in range(8): TSX += f"s_sub_u32 s{16+2*i}, s36, s{16+2*i}\ns_cmp_eq_u32 s{17+2*i}, s73\ns_cselect_b32 s{16+2*i}, s{16+2*i}, 0\ns_add_u32 s71, s71, s{16+2*i}\n"
                TSX += f"""s_sub_u32 s32, s36, s32
s_cmp_eq_u32 s33, s73
s_cselect_b32 s32, s32, 0
s_lshl_b32 s32, s32, 3
s_sub_u32 s32, s32, s71
s_mul_i32 s32, s32, {fc['tg']}
s_ashr_i32 s74, s32, 5
s_branch L_cc
"""
            if fc.get("tt"):
                tt = fc["tt"]
                RED = "\n".join(f"v_add_u32_dpp v85, v85, v85 row_ror:{n} row_mask:0xf bank_mask:0xf" for n in (4, 2, 1))
                CW_ = f"""{RED}
v_readfirstlane_b32 s69, v85
s_mul_i32 s69, s69, {round(tt['U'])}
s_lshr_b32 s69, s69, 5
s_sub_u32 s62, s62, s69
"""
                if tt.get("gl"):
                    SUMX = "s_waitcnt lgkmcnt(0)\ns_mov_b32 s71, 0\n"
                    for i in range(8): SUMX += f"s_sub_u32 s{16+2*i}, s36, s{16+2*i}\ns_cmp_eq_u32 s{17+2*i}, s73\ns_cselect_b32 s{16+2*i}, s{16+2*i}, {tt.get('inv', 0)}\ns_add_u32 s71, s71, s{16+2*i}\n"
                    SUMX += "s_ashr_i32 s71, s71, 3\ns_sub_u32 s71, s36, s71\n"
                    TSX = "L_cx:\n" + SUMX
                    if tt["gl"] == 2:
                        TSX = "L_cx:\ns_waitcnt lgkmcnt(0)\ns_add_u32 s62, s62, s70\ns_mov_b32 s71, 0\n"
                        if prof and tt.get("tv"): TSX += "s_lshl_b64 s[82:83], s[82:83], 4\n"
                        for i in range(8):
                            TSX += f"s_sub_u32 s{16+2*i}, s{16+2*i}, s62\ns_cmp_eq_u32 s{17+2*i}, s73\ns_cselect_b32 s{16+2*i}, s{16+2*i}, 0\n"
                            if prof and tt.get("tv"): TSX += "s_addc_u32 s82, s82, 0\n"
                            TSX += f"s_add_u32 s71, s71, s{16+2*i}\n"
                        TSX += f"s_ashr_i32 s71, s71, {3 + tt.get('gsm2', 0)}\ns_add_u32 s70, s70, s71\ns_setpc_b64 s[80:81]\n"
                        SUMX = None
                    if tt.get("gsm"): TSX += f"s_sub_u32 s71, s71, s62\ns_sub_u32 s71, s71, s70\ns_ashr_i32 s71, s71, {tt['gsm']}\ns_add_u32 s70, s70, s71\ns_setpc_b64 s[80:81]\nL_cx0:\n" + SUMX
                    if SUMX: TSX += "s_sub_u32 s70, s71, s62\ns_setpc_b64 s[80:81]\n"
                if lean: a("; re-centre the schedule on the mean of the published clocks (entries without this launch's tag are skipped)\n" + TSX)
                else: a(f"""
s_setpc_b64 s[80:81]
{TSX}
L_cw0:
{CW_}
s_sub_u32 s75, s62, {round(tt['U'] * fc['CW'] / 2)}
s_branch L_cc
L_cw:
{CW_}
s_sub_u32 s62, s62, {round(tt['U'] * fc['CW'] / 2)}
""" + (f"s_sub_u32 s62, s62, s75\ns_ashr_i32 s62, s62, {tt['sm']}\ns_add_u32 s75, s75, s62" if tt.get("sm") else "s_mov_b32 s75, s62") + """
L_cc:
""" + ("" if tt.get("gl") else "s_add_u32 s70, s75, s74") + """
s_setpc_b64 s[80:81]
""")
            else: a(f"""
s_mul_i32 s74, s71, {fc.get('kx', 0)}
{"s_lshl_b64 s[82:83], s[82:83], 4" if prof and fc.get("tm") else ""}
{"s_or_b32 s82, s82, s71" if prof and fc.get("tm") else ""}
s_branch L_cc
{TSX}
L_cw:
v_add_u32_dpp v85, v85, v85 row_ror:4 row_mask:0xf bank_mask:0xf
v_add_u32_dpp v85, v85, v85 row_ror:2 row_mask:0xf bank_mask:0xf
v_add_u32_dpp v85, v85, v85 row_ror:1 row_mask:0xf bank_mask:0xf
v_readfirstlane_b32 s69, v85
s_sub_u32 s75, s68, s69
s_sub_u32 s75, s75, {bias}
{DEC}
L_cc:
s_add_u32 s68, s75, s74
s_cmp_lt_i32 s68, {-fc['b']}
s_cselect_b32 s62, 2, 0
s_cmp_gt_i32 s68, {fc['a']}
s_cselect_b32 s62, 1, s62
""")
            if prof and not fc.get("tm") and not fc.get("tt"): a("s_lshl_b64 s[82:83], s[82:83], 2\ns_or_b32 s82, s82, s62")
            if not fc.get("tt"): a("s_setpc_b64 s[80:81]")
    a("; one output column of the token MLP: sum_f gelu_tanh(h*w1+b1)*w2 over this wave's quarter of F\nL_mlp:")
    if mr:
        a("; (the product, the biased sum and the activation are rounded to bf16 where the reference's bf16 tensors round them)")
        for t in range(7): a(f"v_mul_f32 v{U+t}, s4, v{W1+t}")
        for t in range(7): a(f"v_cvt_pk_bf16_f32 v{U+t}, 0, v{U+t}")
        for t in range(7): a(f"v_add_f32 v{U+t}, v{U+t}, v{B1+t}")
        for t in range(7): a(f"v_cvt_pk_bf16_f32 v{U+t}, 0, v{U+t}")
    else:
        for t in range(7): a(f"v_fma_f32 v{U+t}, s4, v{W1+t}, v{B1+t}")
    for t in range(7): a(f"v_mul_f32 v{AA+t}, v{U+t}, v{U+t}")
    for t in range(7): a(f"v_fmaak_f32 v{AA+t}, v{AA+t}, v{C1}, {f32(c0)}")
    for t in range(7): a(f"v_mul_f32 v{AA+t}, v{AA+t}, v{U+t}")
    for t in range(7): a(f"v_exp_f32 v{EE+t}, v{AA+t}")
    if not mr:
        for t in range(7): a(f"v_mul_f32 v{U+t}, v{U+t}, v{W2+t}")
    for t in range(7): a(f"v_add_f32 v{EE+t}, 1.0, v{EE+t}")
    for t in range(7): a(f"v_rcp_f32 v{EE+t}, v{EE+t}")
    if mr:
        for t in range(7): a(f"v_mul_f32 v{EE+t}, v{U+t}, v{EE+t}")
        for t in range(7): a(f"v_cvt_pk_bf16_f32 v{EE+t}, 0, v{EE+t}")
    M2 = W2 if mr else U
    a(f"v_mul_f32 v{ACC2}, v{M2}, v{EE}")
    a(f"v_mul_f32 v{AA}, v{M2+1}, v{EE+1}")
    for t in range(2, 7): a(f"v_fmac_f32 v{ACC2 if t % 2 == 0 else AA}, v{M2+t}, v{EE+t}")
    a(f"v_add_f32 v{ACC2}, v{ACC2}, v{AA}")
    for n in (8, 4, 2, 1): a(f"v_add_f32_dpp v{ACC2}, v{ACC2}, v{ACC2} row_ror:{n} row_mask:0xf bank_mask:0xf")
    swaps_add(ACC2, AA)
    a(f"""
s_mov_b64 exec, 1
ds_write_b32 v{YA}, v{ACC2} offset:{YP}
s_mov_b64 exec, -1
v_add_u32 v{YA}, 4, v{YA}
L_last:
s_setpc_b64 s[80:81]
""")
    body = a.render()
    if "allsc1st" in dbg:
        import re
        body = re.sub(r"(buffer_store_dwordx[24] v\[\d+:\d+\], v\d+, s\[52:55\], s(6|72) offen( offset:128)?)\n", r"\1 sc1\n", body)
    if "allsc1ld" in dbg:
        import re
        body = re.sub(r"(buffer_load_dwordx4 v\[\d+:\d+\], v\d+, s\[52:55\], s[67] offen( offset:\d+)?) nt\n", r"\1 sc1\n", body)
    txt = HDR + f"""; @launch grid=(256,1,1) block=(512,1,1) lds={LDSZ}
.amdgcn_target "amdgcn-amd-amdhsa--gfx950"
; ---------------------------------------------------------------------------------------------------------
; out = x + (softmax(q K^T / sqrt(128)) V) Wo * silu(token_mlp(LN(LN(x)))),  q = LN(x) Wq.   One launch, 256 workgroups.
; Workgroup id = b*32 + split*8 + x : batch b, kv head x, quarter `split` of the 4096 cached tokens.
;  waves 0-3 (stream): read the K and V rows of this workgroup once (nt), scores by MFMA, true max + exp, P.V by MFMA.
;  waves 4-7 (helper): LN, a 128x64 tile of Wq (f32 partials exchanged through d_ws), the token MLP gate for 16 output
;                      columns, softmax statistics exchange, partial-O hand-off (hop 1), a 128x64 tile of Wo,
;                      hand-off of the projected partial sums (hop 2), final sum / gate / residual / store.
; Hand-offs: every granule in d_ws carries this launch's tag (ws[0]+1; workgroup 0 stores the tag back at the end), so
;  words left by earlier launches or by the harness are never taken for data.  All polls are bounded.
; Placement: hop 2 and the clock/vote words always use sc1 (memory-side) accesses.  The exchanges inside a group of 32
;  workgroups use plain stores only after the group has PROVEN (tagged table indexed by the hardware XCC id) that all
;  32 share one L2; otherwise they use sc1 stores/loads, so any placement gives the same result.
; Bandwidth sharing: HBM is saturated for the whole stream, and the launch ends with the slowest workgroup.  Each stream
;  wave compares its progress with the mean progress of all dies (clock values exchanged in d_ws, this launch only) and
;  keeps 4..12 loads in flight accordingly (behind: more, ahead: fewer).  This only selects s_waitcnt vmcnt depths;
;  nothing waits on the clock.  The s_memtime probe at the start picks which half of the hop-2 area is closer to its
;  readers (all workgroups read the same 16 votes, so they agree); either choice is correct.
; Rounding: intermediate values are rounded to bf16 at the points where the reference's bf16 tensors round them.
; ---------------------------------------------------------------------------------------------------------
.text
.globl {KN}_kernel
.p2align 8
.type {KN}_kernel,@function
{KN}_kernel:
""" + body + f""".section .rodata,"a"
.p2align 6
.amdhsa_kernel {KN}_kernel
  .amdhsa_next_free_vgpr 256
  .amdhsa_next_free_sgpr 102
  .amdhsa_accum_offset 256
  .amdhsa_group_segment_fixed_size 0
  .amdhsa_kernarg_size 104
  .amdhsa_user_sgpr_count 2
  .amdhsa_user_sgpr_kernarg_segment_ptr 1
  .amdhsa_system_sgpr_workgroup_id_x 1
.end_amdhsa_kernel
"""
    open(fname, "w").write(txt)
if __name__ == "__main__":
    import glob, os
    for f in glob.glob("kp_*.s"): os.remove(f)
    gen("k1.s", mlp1=4, slp=0)
    kw = dict(prof=True, tailprof=True, mlp1=4, slp=0, rq=1, wolate=[5, 7, 9, 11])
    gen("kp_00.s", **kw)
    F = dict(wg=1, x=1, G=2, kx=24, a=64, b=-16, W=(4,6,12), d=6, C=3, CW=2)
    gen("kp_01.s", fc=F, **kw)
    gen("kp_02_nowork.s", fc=F, dbg="nok nosm nov", **kw)
    gen("kp_03_nosm.s", fc=F, dbg="nosm", **kw)
    gen("kp_04_nowq.s", fc=F, dbg="nowq", **kw)
    gen("kp_05_nowork_nowq.s", fc=F, dbg="nok nosm nov nowq", **kw)
    gen("kp_06_nowork_nowq_nomlp.s", fc=F, dbg="nok nosm nov nowq nomlp", **kw)
    gen("kp_07_nofc_nowork.s", dbg="nok nosm nov", **kw)
    gen("kp_08_nofc_nowork_nowq.s", dbg="nok nosm nov nowq", **kw)
```

```python
import gen
kw = dict(mlp1=2, slp=0, rq=1, wolate=[5, 7, 9, 11], palign=7, near=dict(nw=2), wotrig=203, wosw=1, t2=1, b3=1, wosl=1, h1e=(1,0,[4]), h1m=1, h2pre=("z", 64), wbar=1, own1=True)
F = dict(wg=1, x=0, G=2, kx=24, a=64, b=40, W=(4,6,12), d=5, C=3, CW=2, stop=0, tg=4, dl=3)
T6 = [4, 13, 22, 31, 40, 49]
P2 = [(12,-40),(8,-15),(6,15),(5,40),(4,0)]
def g(n, U=28, lv=P2, **kw2): gen.gen(n, fc={**F, "tt": dict(gl=2, notab=1, U=U, lv=lv), "ts": T6}, **{**kw, **kw2})
g("k13a.s"); g("k13_mixw.s", dbg="mixw"); g("k13_mixj.s", dbg="mixj"); g("k13_clean.s", clean=True)

g("k14a.s", mr=1); g("k14_mixw.s", dbg="mixw", mr=1); g("k14_mixj.s", dbg="mixj", mr=1); g("k14_clean.s", clean=True, mr=1)

g("k15a.s", mr=1, qf=1); g("k15_mixw.s", dbg="mixw", mr=1, qf=1); g("k15_mixj.s", dbg="mixj", mr=1, qf=1); g("k15_clean.s", clean=True, mr=1, qf=1)

K16 = dict(mr=1, qf=1, dry2=1)
g("k16a.s", **K16); g("k16_mixw.s", dbg="mixw", **K16); g("k16_mixj.s", dbg="mixj", **K16); g("k16_clean.s", clean=True, **K16)

g("k17a.s", mr=1, qf=1, cpf=1); g("k17b.s", mr=1, qf=1, cpf=1, dry2=1)

g("k17c.s", mr=1, qf=1, cpf=3, palign=0)

g("k17d.s", mr=1, qf=1, cpf=4, palign=0)
K17 = dict(mr=1, qf=1, cpf=4, palign=0)
g("k17_mixw.s", dbg="mixw", **K17); g("k17_mixj.s", dbg="mixj", **K17); g("k17_clean.s", clean=True, **K17)

F["k0"] = 4
K18 = dict(mr=1, qf=1, cpf=4, palign=0, eb=2)
g("k18a.s", **K18); g("k18_mixw.s", dbg="mixw", **K18); g("k18_mixj.s", dbg="mixj", **K18); g("k18_clean.s", clean=True, **K18)
```

```python
import sys, struct, math
from asmlib import Asm
KN = "recurrent_scan__gqa_block_cached__mixer_token_mlp__decode"
def f32(x): return "0x%08x" % struct.unpack("<I", struct.pack("<f", x))[0]
LOG2E = 1.4426950408889634
FLG = 0; QL = 64; ST = QL + 1024; YP = ST + 128; OP = YP + 256; XN = OP + 4 * 2304; XRS = 1040; WQL = XN + 8 * XRS; KL = WQL + 32768
QOFF = 64 << 10; H1OFF = QOFF + (1 << 20); H1S = 4224; H2OFF = H1OFF + (640 << 10); BD = 4 << 20; PGOFF = 8 << 10; LOCOFF = 32 << 10; STAMP = 128 << 20
HDR = open("cdna_kernels/" + KN + ".s.ref").read().split("; Override launch")[0]

def gen(fname, WIN=6, G=2, RING=40, prof=False, wo_thr=4, ntw="", woflags="", spin=400000, dbg="", WPS=1, dry=False, tailprof=False, NLT=6, slp=2, wqdma=True, sprio=2, bgprio=0, mlp1=8, local=True, fb=31, deferB=True, pretouch=False, pat=None, pat2=None, rot=None, cmap=0, light=False, lslp=0, h1fl='nt', h2sync=True, fc=None, est=None, rq=0, ro=0, sE=True, wolate=None, n0=64, pipe1=1, pipe2=1, stag1=3, stag2=3, h2late=True, h2ack=True, h2pre=False, h2full=False, slp2=0, dbgt=False, dirty=0, clean=False, qslp=None, nloc=200, tmap=(14, 16, None), wotrig=None, wothr=2, wosl=2, womid=True, palign=0, defer=None, h2off=None, tlbw=False, near=None, endwait=False, lastopt=True, pkc=True, warm='', hdel=0, wqdel=0, dp=False, dpt='c3', dpf=4, dpw=0, dpc=6, dpfl="nt", dpp=0, hp=3, hp2=None, h1e=None, wosw=False, t2=False, prew=True, b3=False, wodl=None, t3=False, h1m=0, h2fl='sc1', h2e=False, h2sf='sc1', qprew=False, trot=None, trotw=0, wbar=0, own1=False, lbar=False, fin=0, mr=0, qf=0, dry2=0, cpf=0, lkw=0, dsl=64, prer=None, prp='s', pwe=None, h1sl=0, qk=0, wqfl='nt', eb=0, h1q=0, qfl='nt', h1p=0, mo=0, h2d=0):
    if fin: assert h2late and not h2e
    if lbar: h2late = False; h2sync = False
    if t3: t2 = True; h2late = False; h2sync = False; assert womid and wotrig is not None
    if t2: assert not dp and lastopt and wosw and not h2full and pkc and not defer
    if dp: assert fc and tmap[2] is None and wotrig is not None and wotrig >= 200
    H2OFF = (576 << 10) if h2off is None else h2off
    MEAS = 48 << 10; CWOFF = 16 << 10
    a = Asm()
    LDSZ = KL + 4 * NLT * 4096
    NLL = 4 * NLT
    NST = 8
    def stamp(i):
        if prof: a(f"s_memrealtime s[{84+2*i}:{85+2*i}]")
    stamp(0)
    if dbgt: a("s_memrealtime s[84:85]\ns_memtime s[86:87]")
    if cpf == 4:
        assert tmap == (14, 16, None) and not trot and not trotw and rot is None
        a(f"""
s_load_dwordx2 s[44:45], s[0:1], 8
v_lshrrev_b32 v2, 6, v0
s_lshr_b32 s53, s2, 5
v_and_b32 v1, 63, v0
v_readfirstlane_b32 s3, v2
s_cmp_ge_u32 s53, 8
s_cbranch_scc1 L_end
s_cmp_ge_u32 s3, 4
s_cbranch_scc1 L_hstub
s_lshl_b32 s46, 1, 26
s_lshl_b32 s47, 1, 17
s_and_b32 s52, s2, 7
s_lshl3_add_u32 s52, s53, s52
s_lshl_b32 s52, s52, 20
s_and_b32 s53, s2, 24
s_lshl1_add_u32 s53, s3, s53
s_lshl_b32 s53, s53, 11
s_or_b32 s52, s52, s53
s_mul_i32 s60, s3, {NLT*4096}
s_add_u32 s60, s60, {KL}
s_mov_b32 m0, s60
v_lshrrev_b32 v5, 4, v1
v_bfe_u32 v6, v1, 2, 2
v_and_b32 v7, 3, v1
v_lshlrev_b32 v2, 8, v6
v_lshl_add_u32 v2, v5, 6, v2
v_lshl_add_u32 v2, v7, 4, v2
""")
    else: a(f"""
s_load_dwordx2 s[44:45], s[0:1], 8
s_load_dwordx2 s[48:49], s[0:1], 16
v_lshrrev_b32 v2, 6, v0
s_cmp_ge_u32 s2, 256
v_and_b32 v1, 63, v0
v_readfirstlane_b32 s3, v2
s_cbranch_scc1 L_end
s_cmp_ge_u32 s3, 4
s_cbranch_scc1 {"L_hstub" if cpf else "L_helper"}
""")
    if cpf != 4: a(f"""
s_setprio {sprio}
s_mov_b32 s46, 0x4000000
s_mov_b32 s47, 0x20000
s_and_b32 s52, s2, 7
s_lshl_b32 s52, s52, 20
s_lshr_b32 s53, s2, 5
s_lshl_b32 s53, s53, 23
s_or_b32 s52, s52, s53
s_bfe_u32 s53, s2, 0x20003
s_lshl_b32 s53, s53, {tmap[0]}
s_or_b32 s52, s52, s53
s_lshl_b32 s53, s3, 12
s_or_b32 s52, s52, s53
s_mul_i32 s60, s3, {NLT*4096}
s_add_u32 s60, s60, {KL}
v_lshrrev_b32 v5, 4, v1
v_bfe_u32 v6, v1, 2, 2
v_and_b32 v7, 3, v1
v_lshlrev_b32 v2, 8, v6
v_lshl_add_u32 v2, v5, 6, v2
v_lshl_add_u32 v2, v7, 4, v2
""")
    if trot: a(f"s_bfe_u32 s53, s2, {hex((trot[1] << 16) | trot[0])}\ns_lshl_b32 s53, s53, {trot[2]}\ns_xor_b32 s52, s52, s53")
    if trotw: a(f"s_lshl_b32 s53, s3, {trotw}\ns_xor_b32 s52, s52, s53")
    if tmap[2]: a(f"s_and_b32 s53, s2, 7\ns_lshl_b32 s53, s53, {tmap[2]}\ns_xor_b32 s52, s52, s53")
    LATEB = """
s_waitcnt lgkmcnt(0)
s_load_dword s73, s[40:41], 0
s_mov_b32 s76, s40
s_mov_b32 s77, s41
s_mov_b32 s78, 0x10000000
s_mov_b32 s79, 0x20000
"""
    if eb: assert cpf == 4 and fc.get("tt", {}).get("notab") and fc.get("k0", 2) > eb
    def late_setup():
        a(f"""
{"" if fc and fc.get("tt", {}).get("notab") else "s_load_dwordx2 s[38:39], s[0:1], 88"}
s_load_dwordx2 s[40:41], s[0:1], 96
s_mov_b32 s50, 0x4000000
s_mov_b32 s51, 0x20000
v_lshlrev_b32 v3, 4, v1
""")
        if fc and fc.get("tt", {}).get("notab"): a(f"""
; schedule exchange: wave 0 of one workgroup per group publishes its clock at a few steps (slot = id&7)
s_lshr_b32 s64, s2, 3
s_cmp_eq_u32 s3, 0
s_cselect_b32 s64, s64, 64
s_and_b32 s65, s2, 7
s_lshl_b32 s65, s65, 3
v_mov_b32 v83, s65
{"s_mov_b64 s[82:83], 0" if prof else ""}
{"s_cselect_b64 vcc, 1, 0" if fc.get("vw") else ""}
""" + ("" if eb else LATEB))
        elif fc: a(f"""
s_lshr_b32 s64, s2, 3
s_cmp_eq_u32 s3, 0
s_cselect_b32 s64, s64, 64
s_and_b32 s65, s2, 7
s_lshl_b32 s63, s65, 3
s_lshl_b32 s65, s65, {3 if fc.get("ts") else 2}
v_mov_b32 v83, s65
s_mov_b32 s62, {fc.get('l0', 0)}
s_mov_b64 s[82:83], 0
s_getreg_b32 s66, hwreg(HW_REG_XCC_ID, 0, 3)
s_lshl_b32 s66, s66, 5
s_lshr_b32 s67, s2, 3
s_add_u32 s67, s67, s66
v_mov_b32 v88, s67
v_and_b32 v87, 7, v1
v_lshl_add_u32 v87, v87, 2, s66
s_mov_b32 s74, 0
s_mov_b32 s75, 0
s_cmp_eq_u32 s3, 0
s_cselect_b64 vcc, 1, 0
s_waitcnt lgkmcnt(0)
s_load_dword s73, s[40:41], 0
s_mov_b32 s76, s40
s_mov_b32 s77, s41
s_mov_b32 s78, 0x10000000
s_mov_b32 s79, 0x20000
s_mov_b32 s12, s38
s_mov_b32 s13, s39
s_mov_b32 s14, 256
s_mov_b32 s15, 0x20000
""")
    RB = 256 - RING * 4
    def rreg(n): return RB + ((n - NLL) % RING) * 4
    NL = 128
    st = {"tile": None}
    def stub(): a(f"""
s_branch L_go
L_hstub:
; one helper wave per workgroup reads a quarter of this kernel's code as data, so later instruction fetches find it in L2
{"s_bfe_u32 s4, s2, 0x20003" if cpf != 2 else ""}
{"s_add_u32 s4, s4, 4" if cpf != 2 else ""}
{"s_cmp_lg_u32 s4, s3" if cpf != 2 else ""}
{"s_cbranch_scc1 L_helper" if cpf != 2 else ""}
s_getpc_b64 s[4:5]
L_pc:
v_lshlrev_b32 v2, 7, v0
s_sub_u32 s4, s4, 32768+L_pc-{KN}_kernel
s_subb_u32 s5, s5, 0
v_min_u32 v2, 32768+L_last-{KN}_kernel, v2
global_load_dword v255, v2, s[4:5]
s_branch L_helper
""")
    def stub4(): a(f"""
s_branch L_go
L_hstub:
; one helper wave per workgroup reads a quarter of this kernel's code as data, so later instruction fetches find it in L2
s_lshr_b32 s4, s2, 3
s_xor_b32 s4, s4, s3
s_and_b32 s4, s4, 3
s_cbranch_scc1 L_helper
s_getpc_b64 s[4:5]
L_pc:
v_lshlrev_b32 v2, 7, v0
v_add_u32 v2, -32768, v2
v_min_u32 v2, L_last-L_pc, v2
global_load_dword v255, v2, s[4:5]
s_branch L_helper
L_go:
{"s_barrier" if eb else ""}
s_setprio {sprio}
s_load_dwordx2 s[48:49], s[0:1], 16
""")
    def issue(n):
        isv = n >= 64; t = (n & 63) >> 2; q = n & 3
        if cpf == 4 and n < 4:
            if n == 0:
                a("s_waitcnt lgkmcnt(0)")
                if st.get("ks"): stamp(7)
            st["tile"] = (isv, t)
            a(f"buffer_load_dwordx4 v2, s[44:47], s52 offen offset:{q*1024} nt lds"); return
        if cpf == 4 and n == 4:
            st["tile"] = (isv, t)
            a(f"s_add_u32 m0, s60, {t*4096}\ns_xor_b32 s53, s52, {t << tmap[1]}")
        if st["tile"] != (isv, t):
            st["tile"] = (isv, t)
            if tmap: a(f"s_xor_b32 s53, s52, {t << tmap[1]}")
            elif rot is None: a(f"s_add_u32 s53, s52, {t*16384}")
            else: a(f"s_add_u32 s53, s61, {t*16384}\ns_and_b32 s53, s53, 0x3ffff\ns_add_u32 s53, s53, s52")
            if n < NLL: a(f"s_add_u32 m0, s60, {t*4096}\ns_nop 0")
            if n == 0:
                if cpf in (1, 2): stub()
                if palign: a(f".p2align {palign}")
                if cpf in (1, 2): a("L_go:")
                a("s_waitcnt lgkmcnt(0)")
                if st.get("ks"): stamp(7)
        if n < NLL:
            a(f"buffer_load_dwordx4 v2, s[44:47], s53 offen offset:{q*1024} nt lds"); return
        r = rreg(n)
        a(f"buffer_load_dwordx4 v[{r}:{r+3}], {'v3' if isv else 'v2'}, {'s[48:51]' if isv else 's[44:47]'}, s53 offen offset:{q*1024} nt")
    TSR = 6
    QB = 8; Y = 12; ACC = 28; DT = 28; TT = 44; PT = 60; PA = 76; M = 80
    def setup_consts():
        a(f"""
s_mov_b32 s54, 0x05040100
s_mov_b32 s55, 0x07060302
s_mov_b32 s56, {f32(128**-0.5)}
s_mov_b32 s57, {f32(LOG2E)}
v_lshlrev_b32 v4, 8, v7
v_lshl_add_u32 v4, v5, 6, v4
v_lshl_add_u32 v4, v6, 4, v4
v_mov_b32 v84, 0
v_add_u32 v86, s60, v3
""")
    def wait_q():
        stamp(1)
        if "noq" in dbg:
            a(f"ds_read_b128 v[{QB}:{QB+3}], v4 offset:{QL}\ns_waitcnt lgkmcnt(0)"); stamp(2); return
        a(f"""
s_mov_b32 s58, {spin*8}
L_sq:
ds_read_b32 v85, v84 offset:{FLG+4}
s_waitcnt lgkmcnt(0)
v_readfirstlane_b32 s59, v85
s_sub_u32 s58, s58, 1
s_cbranch_scc1 L_sq_done
s_cmp_ge_u32 s59, 4
s_cbranch_scc1 L_sq_done
s_sleep 1
s_branch L_sq
L_sq_done:
ds_read_b128 v[{QB}:{QB+3}], v4 offset:{QL}
{f"ds_read_b32 v85, v84 offset:{FLG+32}" if dp else ""}
s_waitcnt lgkmcnt(0)
{"v_readfirstlane_b32 s42, v85" if dp else ""}
""")
        stamp(2)
        if prof: a("s_waitcnt lgkmcnt(0)")
    def ktile(t):
        if t < NLT:
            for q in range(4): a(f"ds_read_b128 v[{PT+4*q}:{PT+4*q+3}], v86 offset:{t*4096+q*1024}")
        for q in range(4):
            r = rreg(4 * t + q) if t >= NLT else PT + 4 * q
            if t < NLT: a(f"s_waitcnt lgkmcnt({3-q})")
            a(f"v_mfma_f32_16x16x32_bf16 v[{DT+4*q}:{DT+4*q+3}], v[{r}:{r+3}], v[{QB}:{QB+3}], 0")
        for c in range(4):
            for r in range(4):
                n = 4 * ((c - r) % 4)
                ctl = f"row_ror:{n}" if n else "quad_perm:[0,1,2,3]"
                a(f"v_mov_b32_dpp v{TT+r}, v{DT+4*c+r} {ctl} row_mask:0xf bank_mask:{hex(1<<c)}")
        y = Y + t
        a(f"""
v_add_f32 v{TT}, v{TT}, v{TT+1}
v_add_f32 v{TT+2}, v{TT+2}, v{TT+3}
v_add_f32 v{y}, v{TT}, v{TT+2}
v_cvt_pk_bf16_f32 v{y}, v{y}, v{y}
v_lshlrev_b32 v{y}, 16, v{y}
v_mul_f32 v{y}, s56, v{y}
v_cvt_pk_bf16_f32 v{y}, v{y}, v{y}
v_lshlrev_b32 v{y}, 16, v{y}
""")
    def xlane(op, r, t):
        a(f"""
{op}_dpp v{r}, v{r}, v{r} row_ror:4 row_mask:0xf bank_mask:0xf
""") if op != "v_add_f32" else a(f"""
v_add_f32_dpp v{r}, v{r}, v{r} row_ror:4 row_mask:0xf bank_mask:0xf
""")
        a(f"""
{op}_dpp v{r}, v{r}, v{r} row_ror:8 row_mask:0xf bank_mask:0xf
v_mov_b32 v{t}, v{r}
v_permlane16_swap_b32 v{r}, v{t}
{op} v{r}, v{r}, v{t}
v_mov_b32 v{t}, v{r}
v_permlane32_swap_b32 v{r}, v{t}
{op} v{r}, v{r}, v{t}
""")
    def softmax():
        m = M; l = M + 1; t = M + 2
        a(f"v_max3_f32 v{m}, v{Y}, v{Y+1}, v{Y+2}")
        for i in range(3, 15, 2): a(f"v_max3_f32 v{m}, v{m}, v{Y+i}, v{Y+i+1}")
        a(f"v_max_f32 v{m}, v{m}, v{Y+15}")
        xlane("v_max_f32", m, t)
        a(f"v_mul_f32 v{m}, s57, v{m}")
        for i in range(16): a(f"v_fma_f32 v{Y+i}, v{Y+i}, s57, -v{m}")
        for i in range(16): a(f"v_exp_f32 v{Y+i}, v{Y+i}")
        a(f"v_add_f32 v{l}, v{Y}, v{Y+1}")
        a(f"v_add_f32 v{t}, v{Y+2}, v{Y+3}")
        for i in range(4, 16, 2):
            a(f"v_add_f32 v{l}, v{l}, v{Y+i}")
            a(f"v_add_f32 v{t}, v{t}, v{Y+i+1}")
        a(f"v_add_f32 v{l}, v{l}, v{t}")
        for v in range(8): a(f"v_cvt_pk_bf16_f32 v{Y+v}, v{Y+2*v}, v{Y+2*v+1}")
        if t2:
            for i in range(16): a(f"v_mov_b32 v{PA4+i}, 0")
        xlane("v_add_f32", l, t)
        a(f"""
s_lshl_b32 s59, s3, 5
v_lshl_add_u32 v{t}, v1, 3, s59
s_mov_b64 exec, 15
ds_write_b64 v{t}, v[{m}:{m+1}] offset:{ST}
s_mov_b64 exec, 1
v_mov_b32 v{t}, 1
ds_add_u32 v84, v{t} offset:{FLG+16}
s_mov_b64 exec, -1
""")
    PA4 = 36
    def mkpa(v):
        if t2:
            for c in range(4):
                for p in range(4):
                    n = 4 * ((c - p) % 4)
                    a(f"v_mov_b32_dpp v{PA4+4*c+p}, v{Y+v} {f'row_ror:{n}' if n else 'quad_perm:[0,1,2,3]'} row_mask:0xf bank_mask:{hex(1<<c)}")
            return
        a(f"v_mov_b32 v{PA}, v{Y+v}")
        for p in (1, 2, 3):
            a(f"v_mov_b32_dpp v{PA+p}, v{Y+v} row_ror:{4*((0-p)%4)} row_mask:0xf bank_mask:0xf")
    def vchunk(v):
        mkpa(v)
        for half in range(2):
            for jj in range(4 * half, 4 * half + 4):
                o = PT + 4 * (jj & 3)
                for p in range(4):
                    lo = rreg(64 + 8 * v + p) + (jj >> 1); hi = rreg(64 + 8 * v + 4 + p) + (jj >> 1)
                    a(f"v_perm_b32 v{o+p}, v{hi}, v{lo}, {'s55' if jj & 1 else 's54'}")
            for jj in range(4 * half, 4 * half + 4):
                o = PT + 4 * (jj & 3); d = ACC + 4 * jj
                pa = PA
                if t2: d = ACC + 4 * half; pa = PA4 + 4 * (jj & 3)
                c = "0" if (v == 0 and (not t2 or jj & 3 == 0)) else f"v[{d}:{d+3}]"
                a(f"v_mfma_f32_16x16x32_bf16 v[{d}:{d+3}], v[{pa}:{pa+3}], v[{o}:{o+3}], {c}")
    def s_wait(lbl, off, cnt):
        a(f"""
s_mov_b32 s58, {spin*8}
{lbl}:
ds_read_b32 v85, v84 offset:{off}
s_waitcnt lgkmcnt(0)
v_readfirstlane_b32 s59, v85
s_sub_u32 s58, s58, 1
s_cbranch_scc1 {lbl}_done
s_cmp_lt_u32 s59, {cnt}
s_cbranch_scc1 {lbl}
{lbl}_done:
""")
    def s_sig(off): a(f"s_mov_b64 exec, 1\nv_mov_b32 v82, 1\nds_add_u32 v84, v82 offset:{off}\ns_mov_b64 exec, -1")
    AQ = [20, 24, 12, PA]
    def fitem(v0):
        T_ = PT
        s_wait("L_d1", FLG + 16, 4)
        a(f"""
v_and_b32 v4, 3, v1
v_lshlrev_b32 v4, 3, v4
ds_read_b32 v{T_}, v4 offset:{ST}
ds_read_b32 v{T_+1}, v4 offset:{ST+32}
ds_read_b32 v{T_+2}, v4 offset:{ST+64}
ds_read_b32 v{T_+3}, v4 offset:{ST+96}
v_lshlrev_b32 v4, 1, v4
v_lshrrev_b32 v10, 4, v1
v_lshl_add_u32 v4, v10, 6, v4
v_bfe_u32 v11, v1, 2, 2
v_lshl_add_u32 v4, v11, 2, v4
s_lshl_b32 s59, s3, 8
v_add_u32 v4, s59, v4
s_waitcnt lgkmcnt(0)
v_max3_f32 v{T_}, v{T_}, v{T_+1}, v{T_+2}
v_max_f32 v{T_}, v{T_}, v{T_+3}
v_sub_f32 v{T_}, v{M}, v{T_}
v_exp_f32 v{T_}, v{T_}
""")
        for v in range(v0, 8): a(f"v_lshlrev_b32 v{T_+8+2*(v-v0)}, 16, v{Y+v}\nv_and_b32 v{T_+9+2*(v-v0)}, 0xffff0000, v{Y+v}")
        for i in range(4): a(f"v_mov_b32_dpp v{T_+4+i}, v{T_} quad_perm:[{i},{i},{i},{i}] row_mask:0xf bank_mask:0xf")
        for v in range(v0, 8): a(f"v_pk_mul_f32 v[{T_+8+2*(v-v0)}:{T_+9+2*(v-v0)}], v[{T_+8+2*(v-v0)}:{T_+9+2*(v-v0)}], v[{T_}:{T_+1}] op_sel_hi:[1,0]")
        for v in range(v0, 8): a(f"v_cvt_pk_bf16_f32 v{Y+v}, v{T_+8+2*(v-v0)}, v{T_+9+2*(v-v0)}")
        a(f"ds_write_b32 v4, v{Y+7} offset:{QL}")
        s_sig(FLG + 44)
        for jj in range(8):
            d_ = ACC + 4 * jj
            a(f"v_pk_mul_f32 v[{d_}:{d_+1}], v[{d_}:{d_+1}], v[{T_+4}:{T_+5}]\nv_pk_mul_f32 v[{d_+2}:{d_+3}], v[{d_+2}:{d_+3}], v[{T_+6}:{T_+7}]")
        a(f"""
v_lshlrev_b32 v9, 6, v10
v_lshl_add_u32 v9, v11, 4, v9
s_lshl_b32 s59, s3, 2
v_add_u32 v4, s59, v11
v_mul_u32_u24 v4, 144, v4
v_lshl_add_u32 v4, v10, 2, v4
v_and_b32 v8, 3, v1
v_lshl_add_u32 v4, v8, 5, v4
v_mul_u32_u24 v10, {4*H1S}, v10
v_lshl_add_u32 v10, v11, 8, v10
v_bfe_u32 v8, v1, 1, 1
v_lshl_add_u32 v10, v8, 10, v10
v_and_b32 v8, 1, v1
v_lshl_add_u32 v10, v8, 3, v10
v_mov_b32 v11, v9
s_and_b32 s43, s2, 7
s_lshl_b32 s43, s43, 4
s_lshr_b32 s59, s2, 6
s_add_u32 s43, s43, s59
s_mul_i32 s43, s43, {H1S}
s_bfe_u32 s59, s2, 0x30003
s_lshl_b32 s59, s59, 4
s_add_u32 s43, s43, s59
s_lshr_b32 s59, s3, 1
s_lshl_b32 s59, s59, 7
s_add_u32 s43, s43, s59
s_and_b32 s59, s3, 1
s_lshl_b32 s59, s59, 11
s_add_u32 s43, s43, s59
s_add_u32 s43, s43, {H1OFF + 128}
s_mul_i32 s72, s73, 0x01010101
v_mov_b32 v9, s72
s_mul_i32 s59, s3, 2304
v_mul_u32_u24 v8, 144, v1
v_add_u32 v8, s59, v8
""")
    work = [("K", t, 4 * t + 3) for t in list(range(NLT, 16)) + list(range(NLT))] + [("S", 0, 63)] + [("V", v, 64 + 8 * v + 7) for v in range(8)]
    if dp: work.insert(17 + dpf, ("F", dpf, 0))
    consumed = NLL - 1
    wi = 0
    def do_work():
        nonlocal wi, consumed
        k, i, last = work[wi]
        if k == "K":
            if wi == 0: wait_q()
            if "nok" not in dbg: ktile(i)
            consumed = max(consumed, last)
        elif k == "S":
            if "nosm" in dbg: a(f"s_mov_b64 exec, 1\nv_mov_b32 v82, 1\nds_add_u32 v84, v82 offset:{FLG+16}\ns_mov_b64 exec, -1")
            else: softmax()
            stamp(3)
        elif k == "F": fitem(i)
        else:
            if "nov" not in dbg: vchunk(i)
            consumed = last
        wi += 1
    def ztouch():
        a("; prefetch this workgroup's hop-2 inbox lines into the memory-side cache (loaded values are not used)")
        a(f"s_lshl_b32 s4, s2, 2\ns_add_u32 s4, s4, s3\ns_lshl_b32 s4, s4, 9\ns_add_u32 s4, s4, {H2OFF}")
        for i in range(512 // h2pre[1]): a(f"s_load_dword s{16 + i}, s[40:41], s4 offset:{i * h2pre[1]}")
    issued = 0
    ops = []
    def iss(n):
        if dp == 1 and n >= 120:
            i = n - 120; u = i >> 1
            if n == 120: a(f"s_andn2_b32 s70, s52, 0x3000\nv_lshrrev_b32 v2, 4, v1\nv_lshlrev_b32 v2, 8, v2\nv_and_b32 v85, 15, v1\nv_lshl_add_u32 v2, v85, 2, v2\ns_lshl_b32 s59, s3, 6\nv_add_u32 v2, s59, v2")
            if i & 1 == 0: a(f"s_xor_b32 s53, s70, {(14 << tmap[1]) | (u << 12)}\ns_xor_b32 s61, s70, {(15 << tmap[1]) | (u << 12)}")
            for p in (2 * (i & 1), 2 * (i & 1) + 1):
                for hi in range(2):
                    a(f"buffer_load_dword v{rreg(120) + 8*u + 2*p + hi}, v2, s[48:51], s{61 if hi else 53} offen offset:{p*1024} {dpfl}")
                    ops.append(("L", n) if (p & 1 and hi) else ("s", n))
            return
        issue(n); ops.append(("L", n))
    def vm_for(X):
        li = [i for i, o in enumerate(ops) if o[0] == "L"]
        if len(li) <= X: return None
        p = li[len(li) - X - 1]
        return len(ops) - 1 - p, p
    if pat is None: pat = [(WIN, G)]
    if fc: pat = [(fc.get("w0", fc["W"][1]), fc["G"])]
    if est == [-1, -1]: stamp(5); st["ks"] = 1
    for n in range(pat[0][0]): iss(n)
    if est == [-1, -1]: stamp(6); est = [None, None]
    issued = pat[0][0]
    if cpf == 3: stub(); a("L_go:")
    if cpf == 4: stub4()
    late_setup()
    if "bst" in dbg: stamp(7)
    if not eb: a("s_barrier")
    if "bst" in dbg: stamp(5)
    setup_consts()
    arrived = -1
    step = 0
    done_op = -1; nw = 0; ph = 0; nctl = 0; evalq = []; PAIRS = [88, 92, 94]; tagdone = False
    while issued < NL:
        pp = pat2 if (pat2 is not None and issued >= n0) else pat
        WIN, G = pp[step % len(pp)]; step += 1
        if not fc:
            if issued - (WIN - G) - 1 > arrived: a(f"s_waitcnt vmcnt({WIN-G})")
            arrived = max(arrived, issued - (WIN - G) - 1)
        else:
            Wl, Wm, Wh = fc["W"]
            opened = False
            for n_, W_ in fc.get("open", []):
                if issued >= n_: Wl, Wm, Wh = W_; opened = Wl == Wh
            while issued + G - 1 - RING > consumed and work[wi][2] > max(arrived, issued - (Wh - G) - 1): Wh -= 1; Wm = min(Wm, Wh); Wl = min(Wl, Wh)
            r = vm_for(Wh - G)
            if r and issued - (Wh - G) - 1 > arrived: a(f"s_waitcnt vmcnt({r[0]})"); done_op = max(done_op, r[1]); arrived = max(arrived, issued - (Wh - G) - 1)
            tt = fc.get("tt")
            if tt:
                if not st.get("ev"):
                    r_ = vm_for(min(tt.get("wp", Wm), Wh) - G)
                    if r_: a(f"s_waitcnt vmcnt({r_[0]}) ;nc")
                else:
                    if not st.get("sl"):
                        a(f"s_waitcnt lgkmcnt(0)\ns_add_u32 s68, s70, {round(tt['U'] * (step - 1))}\ns_sub_u32 s68, s68, s{st['cur']}"); st["ok"] |= st["pend"]; st["pend"] = set()
                    lv = tt["lv"]
                    for n_, l_ in tt.get("lv2", []):
                        if issued >= n_: lv = l_
                    pw = Wh
                    for i_ in range(len(lv) - 1):
                        w_ = min(lv[i_ + 1][0], Wh)
                        if w_ >= pw: continue
                        pw = w_
                        a(f"s_cmpk_lt_i32 s68, {lv[i_][1] & 0xffff} ;nc\ns_cbranch_scc1 L_fs{step} ;nc\ns_waitcnt vmcnt({vm_for(w_ - G)[0]}) ;nc")
                    a(f"L_fs{step}:")
                    if prof and tt.get("tr") and step in tt["tr"]: a("s_lshl_b64 s[82:83], s[82:83], 16\ns_and_b32 s69, s68, 0xffff\ns_or_b32 s82, s82, s69")
            elif not opened: a(f"""
s_cmp_eq_u32 s62, 2 ;nc
s_cbranch_scc1 L_fs{step} ;nc
s_waitcnt vmcnt({vm_for(Wm - G)[0]}) ;nc
s_cmp_eq_u32 s62, 0 ;nc
s_cbranch_scc1 L_fs{step} ;nc
s_waitcnt vmcnt({vm_for(Wl - G)[0]}) ;nc
L_fs{step}:
""")
        if "bst" in dbg and step == 1: stamp(6)
        if est:
            for i_, e_ in enumerate(est):
                if e_ is not None and arrived >= e_: stamp(5 + i_); est[i_] = None
        g = min(G, NL - issued)
        while issued + g - 1 - RING > consumed:
            if work[wi][2] > arrived:
                assert not fc
                a(f"s_waitcnt vmcnt({issued - 1 - work[wi][2]})"); arrived = work[wi][2]
            do_work()
        for n in range(issued, issued + g): iss(n)
        if eb and step == eb: a(LATEB)
        if wotrig is not None and wotrig >= 0 and issued <= wotrig < issued + g:
            a(f"s_mov_b64 exec, 1\nv_mov_b32 v82, 1\nds_add_u32 v84, v82 offset:{FLG+28}\ns_mov_b64 exec, -1")
        if fc:
            d = fc["d"]; k0 = fc.get("k0", 2); last = (NL - fc.get("stop", 8) - fc["W"][1]) // G
            if step == k0:
                a("s_waitcnt lgkmcnt(0)\ns_add_u32 s73, s73, 1" + ("" if fc.get("tt", {}).get("notab") else "\nv_mov_b32 v90, s73"))
            if step == fc.get("vw"):
                a("s_mov_b64 exec, vcc\nbuffer_load_dword v91, v84, s[48:51], s52 offen nt\ns_mov_b64 exec, -1"); ops.append(("C", 0))
            if fc.get("wg"):
                tt = fc.get("tt")
                tab = step >= fc.get("kw", 4) and step % fc["CW"] == 0 and step <= last and not opened
                if tt and tt.get("notab"): tab = False
                if tt:
                    st.setdefault("ok", set()); st.setdefault("pend", set())
                    if step >= fc.get("kw", 4):
                        st["cur"] = [6, 8, 10, 34, 42][nw % 5] if tab else 4; assert len(evalq) < 5
                        if tab or not st.get("sl"):
                            a(f"s_memrealtime s[{st['cur']}:{st['cur']+1}]"); st["pend"].add(st["cur"]); st["ok"].discard(st["cur"])
                    if prof and step in tt.get("trt", []): stamp([5, 6, 7][tt["trt"].index(step)])
                for e in [e for e in evalq if e[0] <= done_op]:
                    evalq.remove(e)
                    if tt:
                        if e[2] > tt.get("kstop", 99): continue
                        if e[3] not in st["ok"]:
                            assert not st.get("sl"); a("s_waitcnt lgkmcnt(0)"); st["ok"] |= st["pend"]; st["pend"] = set()
                        a(f"v_sad_u8 v85, v{e[1]}, 0, 0\ns_mov_b32 s62, s{e[3]}\ns_call_b64 s[80:81], {'L_cw' if st.get('ev1') else 'L_cw0'}"); st["ev"] = 1; st["ev1"] = 1
                        if tt.get("gl") and not st.get("gx"): a("s_mov_b32 s70, s75")
                    else: a(f"v_sad_u8 v85, v{e[1]}, 0, 0\ns_movk_i32 s68, {32 * e[2]}\ns_call_b64 s[80:81], L_cw")
                if tab and tt and step > tt.get("kstop", 99):
                    a(f"v_mov_b32 v89, {step}\ns_mov_b64 exec, vcc\nbuffer_store_byte v89, v88, s[12:15], 0 offen\ns_mov_b64 exec, -1"); ops.append(("S", 0))
                elif tab:
                    r_ = [91, 92, 93, 94, 95, 86 if NLT == 0 else 5][nw % 6]; nw += 1; assert len(evalq) < 6
                    a(f"""
v_mov_b32 v89, {step}
s_mov_b64 exec, vcc
buffer_store_byte v89, v88, s[12:15], 0 offen
s_mov_b64 exec, -1
buffer_load_dword v{r_}, v87, s[12:15], 0 offen nt
""")
                    ops.append(("S", 0)); ops.append(("C", 0)); evalq.append((len(ops) - 1, r_, step, st.get("cur")))
            if fc.get("ts"):
                for i_, k_ in enumerate(fc["ts"]):
                    if step == k_ - 1 and not fc.get("tt"): a("s_memrealtime s[34:35]")
                    if step == k_:
                        if not fc.get("tt"): a("s_waitcnt lgkmcnt(0)\ns_add_u32 s34, s34, s75\nv_mov_b32 v{TSR}, s34".replace("{TSR}", str(TSR)))
                        elif st.get("ev1"): a(f"s_add_u32 s65, s75, {round(fc['tt']['U'] * step)}\nv_mov_b32 v{TSR}, s65")
                        else:
                            a(f"s_waitcnt lgkmcnt(0)\nv_mov_b32 v{TSR}, s{st['cur']}"); st["ok"] |= st["pend"]; st["pend"] = set()
                            if fc["tt"].get("gl") == 2 and i_ == 0: a(f"s_sub_u32 s70, s{st['cur']}, {round(fc['tt']['U'] * step)}")
                        a(f"""
v_mov_b32 v97, s73
s_movk_i32 s65, {PGOFF + i_ * 256}
s_cmp_eq_u32 s64, {(5 * i_ + 3) % 32}
s_cselect_b64 exec, 1, 0
buffer_store_dwordx2 v[96:97], v83, s[76:79], s65 offen sc1
s_mov_b64 exec, -1
""".replace("v96", f"v{TSR}").replace("v97", f"v{TSR+1}").replace("v[96:97]", f"v[{TSR}:{TSR+1}]"))
                        ops.append(("S", 0))
                    if step == k_ + d:
                        a(f"s_load_dwordx16 s[16:31], s[40:41], {PGOFF + i_ * 256}\ns_load_dwordx2 s[32:33], s[40:41], s63 offset:{PGOFF + i_ * 256}\ns_memrealtime s[36:37]" if fc.get("tt", {}).get("gl") != 2 else f"s_load_dwordx16 s[16:31], s[40:41], {PGOFF + i_ * 256}"); st["sl"] = 1
                    if step == k_ + d + fc.get("dl", 3):
                        if fc.get("tt", {}).get("gl"):
                            a(f"s_movk_i32 s62, {round(fc['tt']['U'] * k_)}\ns_call_b64 s[80:81], {'L_cx' if st.get('gx') or not fc['tt'].get('gsm') else 'L_cx0'}"); st["gx"] = 1; st["ev"] = 1
                        else: a("s_call_b64 s[80:81], L_cx")
                        st["sl"] = 0
                        if wodl is not None and i_ == len(fc["ts"]) - 1:
                            a(f"s_add_u32 s69, s70, {round(fc['tt']['U'] * ((NL - pat[0][0]) // G)) + wodl}\ns_mov_b64 exec, 1\nv_mov_b32 v82, s69\nds_write_b32 v84, v82 offset:{FLG+48}\ns_mov_b64 exec, -1")
                        if fc.get("tt"):
                            st["ok"] |= st["pend"]; st["pend"] = set()
                            if st["cur"] == 4: a("s_memrealtime s[4:5]"); st["pend"].add(4)
            if k0 <= step <= last - d and fc.get("x", 1):
                a(f"""
s_movk_i32 s65, {PGOFF + step * 256}
s_cmp_eq_u32 s64, {step % 32}
s_cselect_b64 exec, 1, 0
buffer_store_dword v90, v83, s[76:79], s65 offen sc1
s_mov_b64 exec, -1
""")
                ops.append(("S", 0))
            if step >= k0 + d and (step - k0 - d) % fc["C"] == 0:
                if nctl > 0: a("s_call_b64 s[80:81], L_cb"); nctl = 0
                if step <= last and fc.get("x", 1):
                    a(f"s_load_dwordx8 s[4:11], s[40:41], {PGOFF + (step - d) * 256}"); nctl = 1
        issued += g
        for _ in range(WPS):
            if wi < len(work) and work[wi][2] <= arrived and (wi > 0 or issued + G - 1 - RING > consumed):
                do_work()
    if "dpst" in dbg: stamp(5); print("drain work:", work[wi:])
    while wi < len(work):
        need_ = work[wi][2]
        if dp == 1 and wi == len(work) - 1:
            if "dpst" in dbg: stamp(6)
            if dpt == "a": s_sig(FLG + 28)
            a("s_mov_b64 exec, 0xffff")
            for jj in range(8): a(f"ds_write_b128 v8, v[{ACC+4*jj}:{ACC+4*jj+3}] offset:{OP+16*jj}")
            s_sig(FLG + 36)
            s_wait("L_d3", FLG + 44, 4)
            for u in range(4): a(f"ds_read_b128 v[{AQ[u]}:{AQ[u]+3}], v11 offset:{QL+256*u}")
            if dpt == "b": s_sig(FLG + 28)
            R0 = rreg(120)
            def dperm(u, p):
                a(f"v_perm_b32 v{PT+8*(u&1)+p}, v{R0+8*u+2*p+1}, v{R0+8*u+2*p}, s54\nv_perm_b32 v{PT+8*(u&1)+4+p}, v{R0+8*u+2*p+1}, v{R0+8*u+2*p}, s55")
            for i in range(8):
                u = i >> 1
                if i == dpc:
                    s_wait("L_d2", FLG + 36, 4)
                    for u_ in range(4): a(f"ds_read_b32 v{36+2*u_}, v4 offset:{OP+2304*u_}\nds_read_b32 v{37+2*u_}, v4 offset:{OP+2304*u_+16}")
                    if "dpst" in dbg: stamp(7)
                if i == 7: a("s_waitcnt lgkmcnt(0)\nv_pk_add_f32 v[36:37], v[36:37], v[38:39]\nv_pk_add_f32 v[40:41], v[40:41], v[42:43]\nv_pk_add_f32 v[36:37], v[36:37], v[40:41]")
                if i < 7:
                    a(f"s_waitcnt vmcnt({vm_for(7 - i)[0]})")
                    if dpt == f"c{7 - i}": s_sig(FLG + 28)
                    dperm(u, 2 * (i & 1)); dperm(u, 2 * (i & 1) + 1)
                else:
                    a("s_waitcnt vmcnt(2)"); dperm(u, 2); a("s_cmp_lg_u32 s42, 0\ns_waitcnt vmcnt(0)"); dperm(u, 3)
                if i == 1: a("s_waitcnt lgkmcnt(0)")
                if i & 1:
                    for e in range(2): a(f"v_mfma_f32_16x16x32_bf16 v[{28+4*e}:{31+4*e}], v[{AQ[u]}:{AQ[u]+3}], v[{PT+8*(u&1)+4*e}:{PT+8*(u&1)+4*e+3}], {f'v[{28+4*e}:{31+4*e}]' if u else '0'}")
            a("v_add_f32 v28, v28, v36\nv_add_f32 v32, v32, v37")
            assert ops[-1] == ("L", 127)
            a(f"""
v_cvt_pk_bf16_f32 v8, v28, v32
s_cbranch_scc1 L_dp_far
buffer_store_dwordx2 v[8:9], v10, s[76:79], s43 offen
L_dp_done:
""")
            stamp(4)
            if dpw: s_sig(FLG + 40)
            break
        if wi == len(work) - 1 and wotrig is not None and wotrig >= 200:
            a(f"s_waitcnt vmcnt({vm_for(wotrig - 200)[0]})")
            if defer:
                a(f"s_cmp_gt_i32 s75, {defer[0]}\ns_cselect_b32 s59, 0x101, 1\ns_mov_b64 exec, 1\nv_mov_b32 v82, s59\nds_add_u32 v84, v82 offset:{FLG+28}")
                if defer[2] > 60:
                    a("v_mov_b32 v89, 62\ns_mov_b64 exec, vcc\nbuffer_store_byte v89, v88, s[12:15], 0 offen"); ops.append(("S", 0))
                a("s_mov_b64 exec, -1")
            else: a(f"s_mov_b64 exec, 1\nv_mov_b32 v82, 1\nds_add_u32 v84, v82 offset:{FLG+28}\ns_mov_b64 exec, -1")
        if wi == len(work) - 1 and lastopt and "nov" not in dbg:
            v = 7; OB = rreg(112)
            def lp(p, jj): a(f"v_perm_b32 v{OB+4*jj+p}, v{rreg(124+p)+(jj>>1)}, v{rreg(120+p)+(jj>>1)}, {'s55' if jj & 1 else 's54'}")
            def lm(jj): a(f"v_mfma_f32_16x16x32_bf16 v[{ACC+4*jj}:{ACC+4*jj+3}], v[{PA}:{PA+3}], v[{OB+4*jj}:{OB+4*jj+3}], v[{ACC+4*jj}:{ACC+4*jj+3}]")
            def lw(jj): a(f"ds_write_b128 v{8 if dp else 4}, v[{ACC+4*jj}:{ACC+4*jj+3}] offset:{OP+16*jj}")
            if t2:
                def lm(jj): a(f"v_mfma_f32_16x16x32_bf16 v[{ACC+4*(jj>>2)}:{ACC+4*(jj>>2)+3}], v[{PA4+4*(jj&3)}:{PA4+4*(jj&3)+3}], v[{OB+4*jj}:{OB+4*jj+3}], v[{ACC+4*(jj>>2)}:{ACC+4*(jj>>2)+3}]")
                a(f"s_lshl_b32 s59, s3, 11\nv_add_u32 v4, s59, v3")
            elif not dp: a(f"s_mul_i32 s59, s3, 2304\nv_mul_u32_u24 v4, 144, v1\nv_add_u32 v4, s59, v4")
            a("v_mov_b32 v82, 1"); mkpa(v)
            if h2pre and h2pre is not True and h2pre[0] == "y": ztouch()
            for p in range(3):
                a(f"s_waitcnt vmcnt({vm_for(3 - p)[0]})")
                for jj in range(8): lp(p, jj)
            a("s_waitcnt vmcnt(0)")
            if dpp: a(f"s_setprio {dpp}")
            lp(3, 0); lp(3, 1)
            for jj in range(6): lp(3, jj + 2); lm(jj)
            stamp(4)
            if t2:
                lm(6); lm(7)
                a(f"ds_write_b128 v4, v[{ACC}:{ACC+3}] offset:{OP}\nds_write_b128 v4, v[{ACC+4}:{ACC+7}] offset:{OP+1024}")
            else:
                a("s_mov_b64 exec, 0xffff"); lw(0); lm(6); lw(1); lm(7)
                for jj in range(2, 8): lw(jj)
            if dp:
                a(f"""
s_mov_b64 exec, 1
ds_add_u32 v84, v82 offset:{FLG+36}
s_mov_b64 exec, -1
s_mov_b32 s58, {spin*8}
L_d2:
ds_read_b32 v85, v84 offset:{FLG+36}
""")
                for u_ in range(4): a(f"ds_read_b32 v{PT+2*u_}, v4 offset:{OP+2304*u_}\nds_read_b32 v{PT+1+2*u_}, v4 offset:{OP+2304*u_+16}")
                a(f"""
s_waitcnt lgkmcnt(8)
v_readfirstlane_b32 s59, v85
s_sub_u32 s58, s58, 1
s_cbranch_scc1 L_d2_done
s_cmp_lt_u32 s59, 4
s_cbranch_scc1 L_d2
L_d2_done:
s_cmp_lg_u32 s42, 0
s_waitcnt lgkmcnt(4)
v_pk_add_f32 v[{PT}:{PT+1}], v[{PT}:{PT+1}], v[{PT+2}:{PT+3}]
s_waitcnt lgkmcnt(0)
v_pk_add_f32 v[{PT+4}:{PT+5}], v[{PT+4}:{PT+5}], v[{PT+6}:{PT+7}]
v_pk_add_f32 v[{PT}:{PT+1}], v[{PT}:{PT+1}], v[{PT+4}:{PT+5}]
v_cvt_pk_bf16_f32 v8, v{PT}, v{PT+1}
s_cbranch_scc1 L_dp_far
buffer_store_dwordx2 v[8:9], v10, s[76:79], s43 offen
L_dp_done:
""")
                if est: stamp(7)
                if dpw: s_sig(FLG + 40)
            break
        if need_ > arrived:
            r = vm_for(NL - 1 - need_) if fc else (NL - 1 - need_,)
            a(f"s_waitcnt vmcnt({r[0]})"); arrived = need_
        do_work()
    else:
        stamp(4)
        a(f"""
s_mul_i32 s59, s3, 2304
v_mul_u32_u24 v4, 144, v1
v_add_u32 v4, s59, v4
s_mov_b64 exec, 0xffff
""")
        for jj in range(8):
            a(f"ds_write_b128 v4, v[{ACC+4*jj}:{ACC+4*jj+3}] offset:{OP+16*jj}")
    if not dp: a("""
s_mov_b64 exec, -1
s_waitcnt lgkmcnt(0)
s_barrier
""")
    if h2pre and h2pre is not True and h2pre[0] == "z": ztouch()
    if t3: a("s_barrier")
    if wbar and not (h2pre is False and "nowb" in dbg): a("s_barrier")
    if h2pre and h2pre is not True and h2pre[0] == "w": ztouch()
    if lbar: a("s_barrier")
    if dirty:
        a(f"""
s_mov_b32 s44, s40
s_mov_b32 s45, s41
s_mov_b32 s46, 0x10000000
s_mov_b32 s47, 0x20000
s_lshl_b32 s59, s2, 2
s_add_u32 s59, s59, s3
s_mul_i32 s59, s59, {dirty*1024}
s_add_u32 s59, s59, {64 << 20}
s_sleep {dsl}
""")
        if "dx2" in dbg:
            a("v_lshrrev_b32 v3, 1, v3")
            for i in range(2 * dirty): a(f"buffer_store_dwordx2 v[28:29], v3, s[44:47], s59 offen\ns_add_u32 s59, s59, 512")
        elif "dhalf" in dbg:
            a("v_lshrrev_b32 v5, 2, v1\nv_lshlrev_b32 v5, 7, v5\nv_and_b32 v3, 48, v3\nv_add_u32 v3, v3, v5\ns_mov_b64 exec, 0xffffffff")
            for i in range(dirty): a(f"buffer_store_dwordx4 v[28:31], v3, s[44:47], s59 offen\nbuffer_store_dwordx4 v[28:31], v3, s[44:47], s59 offen offset:64\ns_add_u32 s59, s59, 1024")
            a("s_mov_b64 exec, -1")
        else:
            for i in range(dirty): a(f"buffer_store_dwordx4 v[28:31], v3, s[44:47], s59 offen\ns_add_u32 s59, s59, 1024")
        if "drd" in dbg:
            a(f"s_waitcnt vmcnt(0)\nv_lshlrev_b32 v3, 4, v1\ns_sub_u32 s59, s59, {dirty*1024}")
            for i in range(dirty): a(f"buffer_load_dwordx4 v[28:31], v3, s[44:47], s59 offen nt\ns_add_u32 s59, s59, 1024")
            a("s_waitcnt vmcnt(0)")
    if prof:
        a(f"""
s_mov_b32 s44, s40
s_mov_b32 s45, s41
s_mov_b32 s46, 0x10000000
s_mov_b32 s47, 0x20000
s_sleep 127
s_sleep 127
s_sleep 127
s_waitcnt lgkmcnt(0)
s_lshl_b32 s59, s2, 3
s_add_u32 s59, s59, s3
s_lshl_b32 s59, s59, 6
s_add_u32 s59, s59, {STAMP}
v_mov_b32 v4, 0
s_mov_b64 exec, 1
""")
        for i in range(8):
            trt = fc and fc.get("tt", {}).get("trt")
            sr = 82 if (i == 5 and fc and not est and not trt) else 84 + 2 * (i if est or trt else min(i, 4))
            a(f"v_mov_b32 v8, s{sr}\nv_mov_b32 v9, s{sr+1}\nbuffer_store_dwordx2 v[8:9], v4, s[44:47], s59 offen offset:{8*i}\ns_waitcnt vmcnt(0)")
    a("s_endpgm")
    if dp: a("L_dp_far:\nbuffer_store_dwordx2 v[8:9], v10, s[76:79], s43 offen sc1\ns_branch L_dp_done")
    X = 32
    S1 = 12; S2 = 13; T0 = 14; T1 = 15; NM = 16; RS = 18
    W1 = 40; B1 = 47; W2 = 54; HX = 62; U = 66; AA = 73; EE = 80; ACC2 = 87; C1 = 88; YA = 89
    WB = 192
    def srd(base, lo, size): a(f"s_mov_b32 s{base}, s{lo}\ns_mov_b32 s{base+1}, s{lo+1}\ns_mov_b32 s{base+2}, {size}\ns_mov_b32 s{base+3}, 0x20000")
    def bfround(r): a(f"v_cvt_pk_bf16_f32 v{r}, v{r}, v{r}\nv_lshlrev_b32 v{r}, 16, v{r}")
    def stats_finish():
        a(f"""
v_mul_f32 v{S1}, {f32(1/512)}, v{S1}
v_mul_f32 v{S2}, {f32(1/512)}, v{S2}
v_fma_f32 v{S2}, -v{S1}, v{S1}, v{S2}
v_max_f32 v{S2}, 0, v{S2}
""")
        bfround(S1); bfround(S2)
        a(f"v_add_f32 v{S2}, {f32(1e-5)}, v{S2}")
        bfround(S2)
        a(f"v_sqrt_f32 v{S2}, v{S2}")
        bfround(S2)
        a(f"""
v_rcp_f32 v{RS}, v{S2}
v_sub_f32 v{NM}, 0, v{S1}
v_sub_f32 v{NM+1}, 0, v{S1}
v_mov_b32 v{RS+1}, v{RS}
""")
    def swaps_add(r, t):
        a(f"""
v_mov_b32 v{t}, v{r}
v_permlane16_swap_b32 v{r}, v{t}
v_add_f32 v{r}, v{r}, v{t}
v_mov_b32 v{t}, v{r}
v_permlane32_swap_b32 v{r}, v{t}
v_add_f32 v{r}, v{r}, v{t}
""")
    def normalize(src, dst, n, tmp):
        for i0 in range(0, n, 4):
            idx = list(range(i0, min(n, i0 + 4)))
            for i in idx:
                t = tmp + 2 * (i - i0)
                a(f"v_lshlrev_b32 v{t}, 16, v{src+i}\nv_and_b32 v{t+1}, 0xffff0000, v{src+i}")
            for i in idx:
                t = tmp + 2 * (i - i0)
                a(f"v_pk_add_f32 v[{t}:{t+1}], v[{t}:{t+1}], v[{NM}:{NM+1}]")
            for i in idx:
                t = tmp + 2 * (i - i0)
                a(f"v_cvt_pk_bf16_f32 v{t}, v{t}, v{t+1}")
            for i in idx:
                t = tmp + 2 * (i - i0)
                a(f"v_and_b32 v{t+1}, 0xffff0000, v{t}\nv_lshlrev_b32 v{t}, 16, v{t}")
            for i in idx:
                t = tmp + 2 * (i - i0)
                a(f"v_pk_mul_f32 v[{t}:{t+1}], v[{t}:{t+1}], v[{RS}:{RS+1}]")
            for i in idx:
                t = tmp + 2 * (i - i0)
                a(f"v_cvt_pk_bf16_f32 v{dst+i}, v{t}, v{t+1}")
    def lds_wait(lbl, off, cnt, sl=0, msk=False, bnd=None):
        a(f"""
s_mov_b32 s58, {bnd or spin*8}
{lbl}:
ds_read_b32 v4, v9 offset:{off}
s_waitcnt lgkmcnt(0)
v_readfirstlane_b32 s59, v4
s_sub_u32 s58, s58, 1
s_cbranch_scc1 {lbl}_done
{"s_and_b32 s27, s59, 255" if msk else ""}
s_cmp_lt_u32 {"s27" if msk else "s59"}, {cnt}
{f"s_sleep {sl}" if sl else ""}
s_cbranch_scc1 {lbl}
{lbl}_done:
""")
    def lds_signal(off):
        a(f"""
s_mov_b64 exec, 1
ds_add_u32 v9, v11 offset:{off}
s_mov_b64 exec, -1
""")
    def orred(ts):
        ts = list(ts)
        while len(ts) > 1:
            if len(ts) >= 3:
                a(f"v_or3_b32 v{ts[0]}, v{ts[0]}, v{ts[1]}, v{ts[2]}"); ts = ts[3:] + [ts[0]]
            else:
                a(f"v_or_b32 v{ts[0]}, v{ts[0]}, v{ts[1]}"); ts = [ts[0]]
        return ts[0]
    def chk8(tags, tmp, tr=12):
        if b3 and len(tags) % 2 == 0:
            for i in range(len(tags) // 2): a(f"v_bitop3_b32 v{tmp+i}, v{tags[2*i]}, v{tags[2*i+1]}, s{tr} bitop3:0x7e")
            return orred([tmp + i for i in range(len(tags) // 2)])
        for i, t in enumerate(tags): a(f"v_xor_b32 v{tmp+i}, s{tr}, v{t}")
        return orred([tmp + i for i in range(len(tags))])
    def chk16(bases, tmp, tagreg):
        out = []
        for i, b in enumerate(bases):
            a(f"v_perm_b32 v{tmp+2*i}, v{b+1}, v{b}, s20\nv_perm_b32 v{tmp+2*i+1}, v{b+3}, v{b+2}, s21")
        if mo:
            for i, b in enumerate(bases):
                a(f"v_bitop3_b32 v{tmp+2*i}, v{tmp+2*i}, v{tmp+2*i+1}, s{tagreg} bitop3:0x56"); out.append(tmp + 2 * i)
            return orred(out)
        for i, b in enumerate(bases):
            a(f"v_or_b32 v{tmp+2*i}, v{tmp+2*i}, v{tmp+2*i+1}")
        for i, b in enumerate(bases):
            a(f"v_xor_b32 v{tmp+2*i}, s{tagreg}, v{tmp+2*i}"); out.append(tmp + 2 * i)
        return orred(out)
    def pack16(dst, srcs, tagv):
        for i, r in enumerate(srcs): a(f"v_perm_b32 v{dst+i}, v{r}, v{tagv}, s{16+i}")
    def poll(lbl, loads, chk, fbr=None, post=None, st=None, pipe=1, stag=0, sl=None, mid=None, pre=False, bnd=None):
        if sl is None: sl = slp
        if fbr is not None: a(f"s_mov_b32 s82, s{fbr}\ns_add_u32 s83, s{fbr}, {BD}")
        a(f"s_mov_b32 s58, {bnd or spin}")
        for _ in range(pipe - 1):
            for l in loads: a(l)
            if stag: a(f"s_sleep {stag}")
        if mid:
            if not pre:
                for l in loads: a(l)
            mid()
            if "h1vm" in dbg: stamp(4)
            a(f"s_branch {lbl}_chk")
        a(f"{lbl}:")
        if st is not None and (tailprof or (st == 4 and "h1it" in dbg) or (st == 3 and "h2it" in dbg)): stamp(4 if "h2it" in dbg else st)
        for l in loads: a(l)
        if mid: a(f"{lbl}_chk:")
        a(f"s_waitcnt vmcnt({len(loads) * (pipe - 1)})")
        r = chk()
        if post: r = post(r)
        a(f"""
v_cmp_ne_u32 vcc, 0, v{r}
{f"s_cbranch_vccz {lbl}_done" if mo else ""}
s_sub_u32 s58, s58, 1
s_cbranch_scc1 {lbl}_done
s_and_b64 exec, exec, vcc
{f"s_cbranch_execz {lbl}_done" if not mo else ""}
""")
        if fbr is not None: a(f"s_and_b32 s59, s58, {fb}\ns_cselect_b32 s{fbr}, s82, s83")
        if sl: a(f"s_sleep {sl}")
        a(f"""
s_branch {lbl}
{lbl}_done:
s_mov_b64 exec, -1
""")
    HLD = """s_load_dwordx16 s[16:31], s[0:1], 0
s_load_dwordx8 s[32:39], s[0:1], 64
s_load_dwordx2 s[40:41], s[0:1], 96
"""
    a("""; ---------------- helper waves
L_helper:
""" + ("" if eb else HLD) + """v_and_b32 v3, 15, v0
v_lshlrev_b32 v3, 2, v3
v_mov_b32 v4, 0
ds_write_b32 v3, v4
""" + ("s_waitcnt lgkmcnt(0)\ns_barrier\n" + HLD if eb else "") + """s_setprio 3
s_sub_u32 s3, s3, 4
s_waitcnt lgkmcnt(0)
""")
    if "probe" in dbg:
        srd(52, 40, 0x10000000)
        pl = "probel" in dbg
        a(f"""
s_cmp_lt_u32 s3, 2
s_cbranch_scc1 L_noprobe
s_and_b32 s4, s3, 1
s_lshl_b32 s4, s4, 13
s_lshl_b32 s5, s2, 14
s_add_u32 s4, s4, s5
s_add_u32 s4, s4, {8 << 20}
s_mov_b64 exec, 1
s_memtime s[76:77]
s_waitcnt lgkmcnt(0)
{"s_load_dword s5, s[40:41], s4 offset:128" if "probew" in dbg else ""}
s_waitcnt lgkmcnt(0)
{"s_memtime s[76:77]" if "probew" in dbg else ""}
s_waitcnt lgkmcnt(0)
{"s_load_dword s5, s[40:41], s4" if "probes" in dbg else "buffer_load_dword v5, v4, s[52:55], s4 offen sc1" if pl else "buffer_store_dword v4, v4, s[52:55], s4 offen sc1"}
s_waitcnt vmcnt(0) lgkmcnt(0)
s_memtime s[78:79]
s_waitcnt lgkmcnt(0)
s_sub_u32 s98, s78, s76
s_mov_b32 s99, 0
s_mov_b64 exec, -1
L_noprobe:
""")
    if near: a(f"s_cmp_lt_u32 s2, {8 * near['nw']}\ns_cbranch_scc1 L_meas\nL_meas_done:")
    if "s" in warm:
        a("""
s_and_b32 s4, s2, 7
s_lshl_b32 s4, s4, 20
s_lshr_b32 s5, s2, 5
s_lshl_b32 s5, s5, 23
s_or_b32 s4, s4, s5
s_load_dword s76, s[20:21], s4
s_and_b32 s4, s2, 4
s_lshl_b32 s4, s4, 19
s_load_dword s77, s[24:25], s4
s_load_dword s78, s[36:37], 0
s_load_dword s79, s[38:39], 0
""")
    if "m" in warm:
        a("""
s_load_dword s76, s[16:17], 0
s_load_dword s77, s[22:23], 0
s_load_dword s78, s[22:23], 0x200000
s_load_dword s79, s[28:29], 0
s_load_dword s76, s[30:31], 0
s_load_dword s77, s[32:33], 0
s_load_dword s78, s[34:35], 0
""".replace("0x200000", "0xffffc"))
    srd(44, 16, 8192); srd(48, 22, 0x400000); srd(52, 40, 0x10000000); srd(56, 24, 0x400000)
    srd(60, 28, 3584); srd(64, 30, 3584); srd(68, 32, 3584)
    a(f"""
v_lshrrev_b32 v5, 4, v1
v_and_b32 v6, 7, v1
v_and_b32 v8, 15, v1
v_lshrrev_b32 v7, 5, v1
v_and_b32 v4, 31, v1
v_lshlrev_b32 v4, 4, v4
v_lshl_add_u32 v2, v7, 10, v4
s_lshl_b32 s6, s3, 11
v_mov_b32 v9, 0
v_mov_b32 v11, 1
v_lshrrev_b32 v20, 3, v1
v_lshlrev_b32 v21, 13, v20
v_lshl_add_u32 v21, v6, 4, v21
v_lshlrev_b32 v22, {12 if t2 else 10}, v20
v_lshl_add_u32 v22, v6, 4, v22
s_and_b32 s15, s2, 7
s_lshr_b32 s14, s2, 3
s_add_u32 s4, s14, {rq}
s_and_b32 s4, s4, 7
s_add_u32 s14, s14, {ro}
s_and_b32 s14, s14, 7
s_lshl_b32 s8, s15, 3
s_add_u32 s8, s8, s4
s_lshr_b32 s9, s2, 6
s_lshl_b32 s4, s9, 2
s_add_u32 s4, s4, s3
s_lshl_b32 s4, s4, 18
s_lshl_b32 s5, s8, 7
s_add_u32 s72, s4, s5
s_lshl_b32 s13, s15, 2
s_add_u32 s13, s13, s9
s_lshl_b32 s4, s13, {7 if t3 else 2}
s_add_u32 s4, s4, s3
s_lshl_b32 s4, s4, {10 if t3 else 15}
s_lshl_b32 s5, s14, 7
s_add_u32 s73, s4, s5
s_lshl_b32 s4, s3, 12
s_add_u32 s74, s4, {WQL}
s_mul_i32 s75, s3, 896
v_lshlrev_b32 v23, 1, v1
""")
    if qk: a("""
v_lshrrev_b32 v21, 1, v1
v_lshlrev_b32 v21, 13, v21
v_and_b32 v20, 1, v1
v_lshl_add_u32 v21, v20, 4, v21
s_lshr_b32 s8, s2, 3
s_lshl_b32 s4, s15, 5
s_add_u32 s8, s8, s4
s_lshl_b32 s4, s3, 20
s_lshl_b32 s5, s8, 5
s_add_u32 s72, s4, s5
""")
    if not eb: a("s_barrier")
    if "nohelp" in dbg: a("s_branch L_pre2")
    if hdel: a(f"s_sleep {hdel}")
    a(f"""
buffer_load_dwordx4 v[{X}:{X+3}], v2, s[44:47], s6 offen
buffer_load_dwordx4 v[{X+4}:{X+7}], v2, s[44:47], s6 offen offset:512
{"s_load_dword s42, s[40:41], 0" if sE else "buffer_load_dword v10, v9, s[52:55], 0 offen sc1"}
""")
    def h2touch():
        stp = h2pre[1]
        if stp == "v":
            a(f"s_lshl_b32 s4, s2, 2\ns_add_u32 s4, s4, s3\ns_lshl_b32 s4, s4, 9\ns_add_u32 s4, s4, {H2OFF}\nv_lshlrev_b32 v94, 3, v1\nbuffer_load_dwordx2 v[94:95], v94, s[52:55], s4 offen {h2pre[2]}")
            return
        a(f"s_lshl_b32 s4, s2, 2\ns_add_u32 s4, s4, s3\ns_lshl_b32 s4, s4, 9\ns_add_u32 s4, s4, {H2OFF}")
        for i in range(512 // stp): a(f"s_load_dword s{96 + (i & 3) if not prof else 27}, s[40:41], s4 offset:{i * stp}")
    if h2pre and h2pre is not True and h2pre[0] == "e": h2touch()
    if "nowq" in dbg: a("s_mov_b32 s50, 0\ns_mov_b32 s58, 0")
    if wqdel: a(f"s_sleep {wqdel}")
    if "q64t" in dbg:
        a("""s_bfe_u32 s4, s2, 0x20003
s_cmp_eq_u32 s4, 3
s_cselect_b32 s50, s50, 0
s_lshr_b32 s4, s2, 5
s_lshl_b32 s5, s15, 3
s_add_u32 s4, s4, s5
s_lshl_b32 s4, s4, 7
s_lshl_b32 s5, s3, 18
s_add_u32 s72, s4, s5""")
        for k_ in range(3):
            for t in range(4): a(f"s_add_u32 m0, s74, {t*1024 + (k_ & 1) * 16384}\ns_add_u32 s4, s72, {(k_ + 1) * 128 * 8192 + t * 8 * 8192}\nbuffer_load_dwordx4 v21, s[48:51], s4 offen {wqfl} lds")
    for t in range(4):
        a(f"s_add_u32 m0, s74, {t*1024}\ns_nop 0\nbuffer_load_dwordx4 v21, s[48:51], s72 offen {wqfl} lds")
        if t < 3: a(f"s_add_u32 s72, s72, {(32 if qk else 8)*8192}")
    def wodma(t, vr, so, sl):
        if wosw and t & 1: vr = 152
        a(f"s_add_u32 m0, s{sl}, {16384+t*1024}\ns_nop 0\nbuffer_load_dwordx4 v{vr}, {'s[56:59]' if wolate is None else 's[68:71]'}, s{so} offen nt lds")
        if t < 3: a(f"s_add_u32 s{so}, s{so}, {32768 if t3 else 1024 if t2 else 8*1024}")
    if wolate is None:
        for t in range(4): wodma(t, 22, 73, 74)
    else:
        if wosw: a("v_and_b32 v90, 1, v5\nv_lshlrev_b32 v90, 5, v90\nv_xor_b32 v90, v90, v22\nv_xor_b32 v152, 64, v90\ns_mov_b32 s22, s73\ns_mov_b32 s23, s74")
        else: a("v_mov_b32 v90, v22\ns_mov_b32 s22, s73\ns_mov_b32 s23, s74")
    NW = 0 if wolate is None else 4
    for t in range(7):
        a(f"buffer_load_ushort v{W1+t}, v23, s[60:63], s75 offen offset:{128*t}")
        a(f"buffer_load_ushort v{B1+t}, v23, s[64:67], s75 offen offset:{128*t}")
        a(f"buffer_load_ushort v{W2+t}, v23, s[68:71], s75 offen offset:{128*t}")
    def preread(wr=False):
        a(f"""
; read this wave's hop-1 slots once so that their lines are complete in L2 before the hand-off (values unused)
v_mul_u32_u24 v142, {4*H1S}, v5
v_lshl_add_u32 v142, v8, 3, v142
s_lshl_b32 s4, s15, 4
s_add_u32 s4, s4, s9
s_mul_i32 s4, s4, {H1S}
s_bfe_u32 s5, s2, 0x30003
s_lshl_b32 s5, s5, 9
s_add_u32 s4, s4, s5
s_lshl_b32 s5, s3, 7
s_add_u32 s4, s4, s5
s_add_u32 s4, s4, {H1OFF}
{f"v_not_b32 v140, v10" if wr else ""}
{f"v_not_b32 v141, v10" if wr else ""}
{f"buffer_store_dwordx2 v[140:141], v142, s[52:55], s4 offen offset:128 {pwe}" if wr else f"buffer_load_dwordx2 v[140:141], v142, s[52:55], s4 offen offset:128 {prer}"}
""")
    srd(60, 34, 2); srd(64, 36, 8192); srd(68, 24, 0 if ('nowq' in dbg or 'nowo2' in dbg) else 0x400000)
    a(f"""
v_and_b32 v30, 3, v1
v_lshlrev_b32 v30, {3 if t3 else 1}, v30
v_lshl_add_u32 v30, v5, {1 if t3 else 5}, v30
""" + ("s_lshl_b32 s10, s2, 5" if t3 else """s_lshr_b32 s10, s2, 2
s_lshl_b32 s10, s10, 7
s_and_b32 s4, s2, 3
s_lshl_b32 s4, s4, 3
s_add_u32 s10, s10, s4""") + f"""
buffer_load_ushort v31, v9, s[60:63], 0 offen
buffer_load_ushort v29, v30, s[44:47], s10 offen
s_mov_b32 s16, 0x07060500
s_mov_b32 s17, 0x07060501
s_mov_b32 s18, 0x07060502
s_mov_b32 s19, 0x07060503
s_mov_b32 s20, 0x0c0c0400
s_mov_b32 s21, 0x04000c0c
s_getreg_b32 s43, hwreg(HW_REG_XCC_ID, 0, 4)
s_lshl_b32 s43, s43, 3
s_add_u32 s43, s43, s15
s_lshl_b32 s43, s43, 7
s_add_u32 s43, s43, {LOCOFF}
s_lshr_b32 s59, s2, 3
s_lshl_b32 s59, s59, 2
s_add_u32 s59, s59, s43
s_mov_b32 s11, 0x3f803f80
v_mov_b32 v{S1}, 0
v_mov_b32 v{S2}, 0
s_waitcnt lgkmcnt(0)
s_add_u32 s42, s42, 1
s_mul_i32 s12, s42, 0x01010101
v_mov_b32 v10, s12
s_cmp_eq_u32 s3, 0
s_cselect_b64 exec, 1, 0
buffer_store_dword v10, v9, s[52:55], s59 offen
s_mov_b64 exec, -1
s_waitcnt vmcnt({32 - NW + (12 if "q64t" in dbg else 0) + (1 if h2pre and h2pre is not True and h2pre[:2] == ('e', 'v') else 0)})
""")
    for i in range(8):
        a(f"v_dot2_f32_bf16 v{S1}, v{X+i}, s11, v{S1}")
        a(f"v_dot2_f32_bf16 v{S2}, v{X+i}, v{X+i}, v{S2}")
    for n in (8, 4, 2, 1):
        a(f"v_add_f32_dpp v{S1}, v{S1}, v{S1} row_ror:{n} row_mask:0xf bank_mask:0xf")
        a(f"v_add_f32_dpp v{S2}, v{S2}, v{S2} row_ror:{n} row_mask:0xf bank_mask:0xf")
    a(f"""
v_mov_b32 v{T0}, v{S1}
v_mov_b32 v{T1}, v{S2}
v_permlane16_swap_b32 v{S1}, v{T0}
v_permlane16_swap_b32 v{S2}, v{T1}
v_add_f32 v{S1}, v{S1}, v{T0}
v_add_f32 v{S2}, v{S2}, v{T1}
""")
    stats_finish()
    normalize(X, X, 8, 20)
    a(f"""
s_mul_i32 s4, s3, {2*XRS}
v_mul_u32_u24 v2, {XRS}, v7
v_add3_u32 v2, v2, v4, s4
ds_write_b128 v2, v[{X}:{X+3}] offset:{XN}
ds_write_b128 v2, v[{X+4}:{X+7}] offset:{XN+512}
v_mul_u32_u24 v2, {XRS}, v6
v_lshl_add_u32 v2, v5, 4, v2
s_lshl_b32 s4, s9, 8
v_add_u32 v2, s4, v2
v_bfe_u32 v3, v1, 2, 2
v_lshl_add_u32 v3, v5, 3, v3
v_lshlrev_b32 v3, 7, v3
v_and_b32 v20, 3, v1
v_lshl_add_u32 v3, v20, 3, v3
s_lshl_b32 s4, s3, 5
v_add_u32 v24, s4, v3
s_waitcnt vmcnt(24) lgkmcnt(0)
""")
    lds_signal(FLG + 8)
    a(f"""
v_and_b32 v27, 31, v1
v_lshlrev_b32 v27, 2, v27
buffer_load_dword v150, v27, s[52:55], s43 offen nt
v_lshlrev_b32 v25, 4, v5
v_lshl_add_u32 v25, v6, 11, v25
s_lshr_b32 s4, s8, 1
s_lshl_b32 s4, s4, 5
s_add_u32 s4, s4, s9
s_lshl_b32 s4, s4, 1
s_and_b32 s5, s8, 1
s_add_u32 s4, s4, s5
s_lshl_b32 s4, s4, 2
s_add_u32 s4, s4, s3
s_lshl_b32 s4, s4, 6
s_add_u32 s72, s4, {QOFF}
s_mov_b32 s26, 0
""")
    if prer is not None and prp == 'e': preread()
    if pwe is not None: preread(True)
    if qprew: a("v_not_b32 v132, v10\nv_not_b32 v133, v10\nv_not_b32 v134, v10\nv_not_b32 v135, v10\ns_mov_b32 exec_lo, 0x00ff00ff\ns_mov_b32 exec_hi, 0x00ff00ff\nbuffer_store_dwordx4 v[132:135], v25, s[52:55], s72 offen\ns_mov_b64 exec, -1")
    lds_wait("L_xw", FLG + 8, 4)
    for t in range(4):
        a(f"ds_read_b128 v[{96+4*t}:{99+4*t}], v2 offset:{XN+64*t}")
        for u in range(2): a(f"ds_read_b64_tr_b16 v[{112+4*t+2*u}:{113+4*t+2*u}], v24 offset:{WQL+t*4096+u*512}")
    a("s_waitcnt lgkmcnt(0)")
    stamp(1)
    for t in range(4):
        a(f"v_mfma_f32_16x16x32_bf16 v[128:131], v[{112+4*t}:{115+4*t}], v[{96+4*t}:{99+4*t}], {'0' if t == 0 else 'v[128:131]'}")
    pack16(132, [128, 129, 130, 131], 10)
    Q2OFF = H1OFF + 128 * H1S
    if qf: a(f"""
v_perm_b32 v136, v129, v128, s20
v_perm_b32 v137, v131, v130, s21
v_lshrrev_b32 v138, 1, v25
v_or_b32 v136, v136, v137
v_mov_b32 v137, v10
s_lshr_b32 s73, s72, 1
s_add_u32 s73, s73, {Q2OFF - QOFF // 2}
""")
    if "cutq" in dbg: a("s_branch L_pre2")
    a(f"""
s_movk_i32 s58, {nloc}
L_lc:
s_waitcnt vmcnt(0)
v_cmp_ne_u32 vcc, s12, v150
s_cbranch_vccz L_lc_done
buffer_load_dword v150, v27, s[52:55], s43 offen nt
s_sub_u32 s58, s58, 1
s_cbranch_scc0 L_lc
s_mov_b32 s26, 1
L_lc_done:
{"s_mov_b32 s26, 1" if clean else ""}
{"s_and_b32 s26, s3, 1" if "mixw" in dbg else ""}
{"s_bfe_u32 s26, s2, 0x10003" if "mixj" in dbg else ""}
s_mov_b32 exec_lo, 0x00ff00ff
s_mov_b32 exec_hi, 0x00ff00ff
s_cmp_lg_u32 s26, 0
s_cbranch_scc1 L_qs_far
{"buffer_store_dwordx4 v[132:135], v25, s[52:55], s72 offen" if "noqs" not in dbg else ""}
{"buffer_store_dwordx2 v[136:137], v138, s[52:55], s73 offen" if qf and "noqs" not in dbg else ""}
L_qs_done:
s_mov_b64 exec, -1
""")
    if near: a(f"s_lshl_b32 s4, s3, 8\ns_add_u32 s4, s4, s2\ns_sub_u32 s4, s4, 512\ns_cmp_lt_u32 s4, {8 * near['nw']}\ns_cbranch_scc1 L_mpub\nL_mpub_done:")
    if "cutp" in dbg: a("s_branch L_pre2")
    stamp(2)
    a(f"s_setprio {bgprio}")
    def woread(vr, kks=None):
        if own1:
            for kk in (kks or [1, 2, 3]):
                for nt_ in range(4):
                    for u in range(2): a(f"ds_read_b64_tr_b16 v[{WB+16*nt_+4*kk+2*u}:{WB+16*nt_+4*kk+2*u+1}], v{176+4*kk+nt_} offset:{WQL+16384+u*512}")
            return
        if t3:
            for nt_ in range(4):
                for u in range(2): a(f"ds_read_b64_tr_b16 v[{WB+4*nt_+2*u}:{WB+4*nt_+2*u+1}], v{153+nt_} offset:{WQL+16384+u*512}")
            return
        for nt_ in range(4):
            for kk in range(4):
                for u in range(2):
                    r = WB + 16 * nt_ + 4 * kk + 2 * u
                    if wosw: a(f"ds_read_b64_tr_b16 v[{r}:{r+1}], v{153+nt_} offset:{WQL+16384+kk*4096+u*512}")
                    else: a(f"ds_read_b64_tr_b16 v[{r}:{r+1}], v{vr} offset:{WQL+16384+kk*4096+u*512+nt_*32}")
    if wolate is None: woread(3)
    elif wosw: a("v_bfe_u32 v153, v1, 3, 2\nv_lshl_add_u32 v153, v153, 5, v3\n" + ("s_lshl_b32 s4, s3, 12\nv_add_u32 v153, s4, v153\n" if t3 else "") + "v_xor_b32 v154, 32, v153\nv_xor_b32 v155, 64, v153\nv_xor_b32 v156, 0x60, v153")
    else: a("v_mov_b32 v91, v3")
    a(f"""
s_lshr_b32 s4, s2, 5
s_mul_i32 s4, s4, {XRS}
v_lshl_add_u32 v2, v1, 4, s4
ds_read_b128 v[{HX}:{HX+3}], v2 offset:{XN}
v_mov_b32 v{S1}, 0
v_mov_b32 v{S2}, 0
s_waitcnt lgkmcnt(0)
""")
    for i in range(4):
        a(f"v_dot2_f32_bf16 v{S1}, v{HX+i}, s11, v{S1}")
        a(f"v_dot2_f32_bf16 v{S2}, v{HX+i}, v{HX+i}, v{S2}")
    for n in (8, 4, 2, 1):
        a(f"v_add_f32_dpp v{S1}, v{S1}, v{S1} row_ror:{n} row_mask:0xf bank_mask:0xf")
        a(f"v_add_f32_dpp v{S2}, v{S2}, v{S2} row_ror:{n} row_mask:0xf bank_mask:0xf")
    swaps_add(S1, T0); swaps_add(S2, T1)
    stats_finish()
    normalize(HX, HX, 4, 20)
    if t3:
        a("s_and_b32 s4, s2, 31\ns_lshl_b32 s4, s4, 1")
        for i in range(4): a(f"v_readlane_b32 s{72+i}, v{HX+i}, s4")
        a("s_add_u32 s4, s4, 1")
        for i in range(4): a(f"v_readlane_b32 s{76+i}, v{HX+i}, s4")
    else: a(f"""
s_bitcmp1_b32 s2, 0
s_cselect_b64 vcc, -1, 0
s_bfe_u32 s4, s2, 0x30002
s_lshl_b32 s4, s4, 3
s_bfe_u32 s5, s2, 0x10001
s_add_u32 s4, s4, s5
v_cndmask_b32 v{HX}, v{HX}, v{HX+2}, vcc
v_cndmask_b32 v{HX+1}, v{HX+1}, v{HX+3}, vcc
""")
    for i in range(0 if t3 else 4):
        a(f"v_readlane_b32 s{72+2*i}, v{HX}, s4\nv_readlane_b32 s{73+2*i}, v{HX+1}, s4")
        if i < 3: a("s_add_u32 s4, s4, 2")
    a("s_waitcnt vmcnt(2)")
    for i in range(21): a(f"v_lshlrev_b32 v{W1+i}, 16, v{W1+i}")
    c0 = -2 * LOG2E * math.sqrt(2 / math.pi); c1 = c0 * 0.044715
    a(f"""
v_mov_b32 v{C1}, {f32(c1)}
s_lshl_b32 s4, s3, 6
v_mov_b32 v{YA}, s4
""")
    def mlp_steps(lo, hi):
        for d in range(lo, hi):
            if d & 1: a(f"s_and_b32 s4, s{72+(d>>1)}, 0xffff0000")
            else: a(f"s_lshl_b32 s4, s{72+(d>>1)}, 16")
            if "nomlp" not in dbg: a("s_call_b64 s[80:81], L_mlp")
            if wolate is not None and wotrig is None and d in wolate: wodma(wolate.index(d), 90, 22, 23)
    mlp_steps(0, mlp1)
    a("; gather the four K-split partials of q (head = helper index) and hand q to the stream waves through LDS")
    a(f"""
s_setprio 3
s_lshr_b32 s4, s2, 5
s_lshl_b32 s4, s4, 11
s_lshl_b32 s5, s15, 2
s_add_u32 s5, s5, s3
s_lshl_b32 s5, s5, 14
s_add_u32 s4, s4, s5
s_add_u32 s6, s4, {QOFF}
v_lshlrev_b32 v2, 4, v1
{f"v_lshlrev_b32 v138, 3, v1" if qf else ""}
{f"s_lshr_b32 s7, s4, 1" if qf else ""}
{f"s_add_u32 s7, s7, {Q2OFF}" if qf else ""}
s_cmp_lg_u32 s26, 0
s_cbranch_scc1 L_gq_far
""")
    def qchk():
        r = chk16([96, 100], 104, 12)
        if qf: a(f"v_bitop3_b32 v108, v113, v115, s12 bitop3:0x7e\nv_or_b32 v{r}, v{r}, v108")
        return r
    def qpoll(sfx, fl):
        poll("L_gq" + sfx, [f"buffer_load_dwordx4 v[{96+4*k}:{99+4*k}], v2, s[52:55], s6 offen offset:{1024*k} {fl}" for k in range(2)]
             + ([f"buffer_load_dwordx2 v[{112+2*k}:{113+2*k}], v138, s[52:55], s7 offen offset:{512*k} {fl}" for k in range(2)] if qf else []),
             qchk, sl=qslp)
    if "q3rd" in dbg: poll("L_gq", ["buffer_load_dwordx4 v[96:99], v2, s[52:55], s6 offen nt"], lambda: chk16([96], 104, 12), sl=qslp)
    elif "q12th" in dbg:
        a("v_and_b32 v2, 0xff, v2"); poll("L_gq", ["buffer_load_dwordx4 v[96:99], v2, s[52:55], s6 offen nt"], lambda: chk16([96], 104, 12), sl=qslp)
    elif "noqg" not in dbg: qpoll("", qfl)
    a("L_gq_got:")
    if qf:
        a("; put the low mantissa bytes (sent in their own tagged granule) back: the partials are summed in full f32")
        for i in range(8): a(f"v_perm_b32 v{96+i}, v{96+i}, v{112+2*(i>>2)}, s{16+(i&3)}")
    else:
        for i in range(8): a(f"v_and_b32 v{96+i}, 0xffffff00, v{96+i}")
    for i in range(4): a(f"v_add_f32 v{96+i}, v{96+i}, v{100+i}")
    a(f"""
s_lshl_b32 s4, s3, 8
v_and_b32 v2, 31, v1
v_lshl_add_u32 v2, v2, 3, s4
v_lshl_add_u32 v2, v7, 2, v2
v_permlane32_swap_b32 v96, v98
v_permlane32_swap_b32 v97, v99
v_add_f32 v96, v96, v98
v_add_f32 v97, v97, v99
v_cvt_pk_bf16_f32 v96, v96, v97
ds_write_b32 v2, v96 offset:{QL}
s_waitcnt lgkmcnt(0)
""")
    lds_signal(FLG + 4)
    stamp(3)
    if "cutg" in dbg: a("s_branch L_pre2")
    a(f"s_setprio {bgprio}")
    if prer is not None and prp == 'q': preread()
    if h2pre and h2pre is not True and h2pre[0] == "q": h2touch()
    mlp_steps(mlp1, 16)
    a("s_waitcnt vmcnt(0) lgkmcnt(0)")
    lds_signal(FLG + 12)
    a(f"""
v_lshrrev_b32 v2, 2, v1
v_mul_u32_u24 v20, 144, v2
v_and_b32 v3, 3, v1
v_lshl_add_u32 v20, v3, 5, v20
s_lshl_b32 s4, s3, 2
s_add_u32 s4, s4, {OP}
v_add_u32 v20, s4, v20
v_add_u32 v21, 2304, v20
v_add_u32 v22, 4608, v20
v_add_u32 v23, 6912, v20
s_lshl_b32 s4, s3, 3
v_mov_b32 v24, s4
v_lshrrev_b32 v25, 5, v1
v_lshlrev_b32 v25, 7, v25
v_bfe_u32 v2, v1, 4, 1
v_lshl_add_u32 v25, v2, 11, v25
v_bfe_u32 v2, v1, 1, 1
v_lshl_add_u32 v25, v2, 10, v25
v_bfe_u32 v2, v1, 2, 2
v_lshl_add_u32 v25, v2, 8, v25
v_and_b32 v2, 1, v1
v_lshl_add_u32 v25, v2, 3, v25
v_lshlrev_b32 v26, 4, v1
v_and_b32 v2, 1, v5
v_lshl_add_u32 v27, v2, 2, v3
v_lshlrev_b32 v27, 4, v27
v_lshlrev_b32 v28, {6 if h2full else 16}, v2
v_bfe_u32 v2, v1, 2, 2
v_lshl_add_u32 v28, v2, {12 if h2full else 11}, v28
v_lshl_add_u32 v28, v3, 4, v28
v_lshrrev_b32 v19, 2, v1
v_lshlrev_b32 v19, {7 if h2full else 6}, v19
v_lshl_add_u32 v19, v3, 4, v19
s_lshl_b32 s4, s15, 2
s_add_u32 s4, s4, s3
s_lshl_b32 s4, s4, 2
s_add_u32 s4, s4, s9
s_mul_i32 s4, s4, {H1S}
s_bfe_u32 s5, s2, 0x30003
s_lshl_b32 s5, s5, 4
s_add_u32 s4, s4, s5
s_add_u32 s6, s4, {H1OFF}
s_lshl_b32 s4, s13, 2
s_add_u32 s4, s4, s3
s_mul_i32 s4, s4, {H1S}
s_add_u32 s7, s4, {H1OFF}
s_lshl_b32 s4, s3, {5 if h2full else 6}
s_lshl_b32 s5, s14, 2
s_add_u32 s4, s4, s5
s_lshl_b32 s4, s4, {12 if h2full else 11}
s_lshl_b32 s5, s13, {7 if h2full else 6}
s_add_u32 s4, s4, s5
s_add_u32 s8, s4, {H2OFF}
""")
    DS, DO, SD = (4096, QOFF - 128, 30) if h1q else (H1S, H1OFF, 7)
    if h1q: assert t2 and not t3 and not dry2 and not prew and not fin
    TH = 31 if h1q else 12
    H1TAG = """; hop 1 re-uses the lines of the q exchange (every workgroup of the group has read its q before any hop-1 store: the
; statistics exchange and the workgroup barrier order them).  Its tag word differs from the q granules' tag byte 1.
s_lshr_b32 s31, s12, 8
s_lshl_b32 s4, s12, 24
s_or_b32 s31, s31, s4
s_xor_b32 s31, s31, 0x80""" if h1q else ""
    if t2: a(f"""
v_lshlrev_b32 v20, 4, v8
v_lshl_add_u32 v20, v5, 2, v20
s_lshl_b32 s4, s3, 8
s_add_u32 s4, s4, {OP}
v_add_u32 v20, s4, v20
v_lshlrev_b32 v24, 3, v5
v_mul_u32_u24 v25, {4*DS}, v5
v_lshl_add_u32 v25, v8, 3, v25
s_lshl_b32 s4, s15, 4
s_add_u32 s4, s4, s9
s_mul_i32 s4, s4, {DS}
s_bfe_u32 s5, s2, 0x30003
s_lshl_b32 s5, s5, 9
s_add_u32 s4, s4, s5
s_lshl_b32 s5, s3, 7
s_add_u32 s4, s4, s5
s_add_u32 s28, s4, {DO}
{f"s_lshl_b32 s30, s13, 2" if h1q else ""}
{f"s_add_u32 s30, s30, s3" if h1q else ""}
{f"s_lshl_b32 s30, s30, 12" if h1q else ""}
{f"s_add_u32 s30, s30, {DO}" if h1q else ""}
{H1TAG}
v_bfe_u32 v2, v1, 3, 1
v_lshlrev_b32 v26, 11, v2
v_lshl_add_u32 v26, v5, 7, v26
v_lshl_add_u32 v26, v6, 4, v26
v_lshl_add_u32 v27, v2, 2, v3
v_lshlrev_b32 v27, 4, v27
v_lshlrev_b32 v28, 16, v7
v_bfe_u32 v2, v1, 2, 2
v_lshl_add_u32 v28, v2, 11, v28
v_lshl_add_u32 v28, v3, 4, v28
s_lshl_b32 s29, s3, 4
""")
    if h1q == 2: a("""
s_bfe_u32 s5, s2, 0x30003
v_xor_b32 v2, s5, v5
v_lshl_add_u32 v25, v2, 9, v25
s_lshl_b32 s5, s5, 9
s_sub_u32 s28, s28, s5
s_and_b32 s5, s13, 3
s_lshl_b32 s5, s5, 4
v_xor_b32 v27, s5, v27
""")
    if h1q == 3: a("""
v_xor_b32 v2, s3, v5
v_lshl_add_u32 v25, v2, 7, v25
s_lshl_b32 s5, s3, 7
s_sub_u32 s28, s28, s5
s_and_b32 s5, s13, 3
s_lshl_b32 s5, s5, 7
v_xor_b32 v26, s5, v26
""")
    if own1:
        a("s_lshl_b32 s4, s3, 1\nv_add_u32 v2, s4, v6\nv_and_b32 v2, 7, v2\nv_and_b32 v26, 0xffffff8f, v26\nv_lshl_add_u32 v26, v2, 4, v26")
        for kk in range(4):
            a(f"s_add_u32 s4, s3, {kk}\ns_and_b32 s4, s4, 3\ns_lshl_b32 s4, s4, 12")
            for nt_ in range(4): a(f"v_add_u32 v{176+4*kk+nt_}, s4, v{153+nt_}")
    RBB = WQL
    if t3:
        a(f"""
v_mul_u32_u24 v25, {4*H1S}, v5
v_lshrrev_b32 v2, 1, v8
v_lshl_add_u32 v25, v2, 7, v25
v_and_b32 v2, 1, v1
v_lshl_add_u32 v25, v2, 3, v25
s_lshl_b32 s4, s15, 4
s_add_u32 s4, s4, s3
s_mul_i32 s4, s4, {H1S}
s_bfe_u32 s5, s2, 0x20003
s_lshl_b32 s5, s5, 10
s_add_u32 s4, s4, s5
s_lshr_b32 s5, s2, 5
s_lshl_b32 s5, s5, 4
s_add_u32 s4, s4, s5
s_add_u32 s28, s4, {H1OFF}
v_lshlrev_b32 v26, 4, v1
v_bfe_u32 v2, v1, 3, 2
v_mul_u32_u24 v27, {H1S}, v2
v_lshl_add_u32 v27, v6, 4, v27
s_mul_i32 s30, s13, {4*H1S}
s_add_u32 s30, s30, {H1OFF}
v_lshrrev_b32 v2, 2, v1
v_lshlrev_b32 v28, 16, v2
v_lshl_add_u32 v28, v3, 4, v28
s_lshl_b32 s4, s14, 2
s_add_u32 s4, s4, s3
s_lshl_b32 s4, s4, 11
s_lshl_b32 s5, s13, 6
s_add_u32 s4, s4, s5
s_add_u32 s8, s4, {H2OFF}
v_mul_u32_u24 v21, 320, v5
v_lshl_add_u32 v21, v8, 4, v21
s_mul_i32 s4, s3, 2560
v_add_u32 v21, s4, v21
v_mul_u32_u24 v22, 320, v3
v_and_b32 v2, 7, v2
v_lshl_add_u32 v22, v2, 4, v22
s_lshr_b32 s4, s3, 1
s_mul_i32 s4, s4, 1280
s_and_b32 s5, s3, 1
s_lshl_b32 s5, s5, 7
s_add_u32 s4, s4, s5
v_add_u32 v22, s4, v22
v_lshlrev_b32 v23, 4, v6
""")
        if t3 == 2: a(f"""
v_mul_u32_u24 v25, {4*H1S}, v5
v_lshl_add_u32 v25, v8, 3, v25
s_lshr_b32 s5, s2, 5
s_mul_i32 s5, s5, 112
s_add_u32 s28, s28, s5
v_lshrrev_b32 v23, 3, v1
v_lshlrev_b32 v23, 4, v23
v_lshlrev_b32 v184, 5, v6
v_lshl_add_u32 v184, v5, 3, v184
v_add_u32 v185, 4, v184
s_mov_b32 s32, 0x00ff00ff
s_mov_b32 s33, 0x00ff00ff
""")
        for i in range(8 if t3 == 1 else 0): a(f"v_mov_b32 v{176+i}, 0")
    if not h2full: a("s_lshl_b32 s9, s2, 11")
    else: a("""
s_lshr_b32 s9, s2, 6
s_lshl_b32 s9, s9, 5
s_and_b32 s4, s2, 31
s_add_u32 s9, s9, s4
s_lshl_b32 s9, s9, 12
s_bfe_u32 s4, s2, 0x10005
s_lshl_b32 s4, s4, 6
s_add_u32 s9, s9, s4
""")
    h2l = [f"buffer_load_dwordx4 v[{136+4*k}:{139+4*k}], v19, s[52:55], s9 offen offset:{(2048 if h2full else 1024)*k} {h2fl}" for k in range(2)]
    a(f"""
s_add_u32 s9, s9, {H2OFF}
""")
    if near:
        a(f"s_mov_b32 s5, {CWOFF}\nv_and_b32 v2, {8 * near['nw'] - 1}, v1\nv_lshlrev_b32 v2, 3, v2")
        poll("L_cwp", ["buffer_load_dwordx2 v[94:95], v2, s[52:55], s5 offen sc1"], lambda: chk8([95], 80), sl=4)
        a(f"""
v_sub_u32 v95, 0, v94
v_cmp_gt_u32 vcc, 4, v6
v_cndmask_b32 v94, v95, v94, vcc
v_add_u32_dpp v94, v94, v94 row_ror:8 row_mask:0xf bank_mask:0xf
v_add_u32_dpp v94, v94, v94 row_ror:4 row_mask:0xf bank_mask:0xf
v_add_u32_dpp v94, v94, v94 row_ror:2 row_mask:0xf bank_mask:0xf
v_add_u32_dpp v94, v94, v94 row_ror:1 row_mask:0xf bank_mask:0xf
v_readfirstlane_b32 s4, v94
s_cmp_gt_i32 s4, 0
s_cselect_b32 s4, {0x2000 if not near.get("inv") else 0}, {0x2000 if near.get("inv") else 0}
s_xor_b32 s8, s8, s4
s_xor_b32 s9, s9, s4
""")
    if h2pre and h2pre is not True and h2pre[0] == "m": h2touch()
    if wolate is not None and wotrig is None:
        lds_wait("L_yw", FLG + 12, 4); woread(91)
    if not fin: a("""
s_cmp_lg_u32 s3, 0
s_cbranch_scc1 L_ready
""")
    if wolate is None or wotrig is not None: lds_wait("L_yw", FLG + 12, 4)
    if h2pre is True:
        for l in h2l: a(l)
    if "o" in warm: a("buffer_load_ushort v94, v30, s[64:67], s10 offen")
    if tlbw: a(f"s_mov_b32 s4, {H2OFF + (1 << 20) - 4096}\nbuffer_load_dword v94, v9, s[52:55], s4 offen")
    DRYIN = DRYSET = ""
    if dry2:
        assert t2 and not t3 and not fin and wbar and h1m == 1 and h2late
        DRYIN = f"""; first pass through the hand-off code with empty buffer ranges (loads give 0, stores are dropped): fills the instruction cache
s_mov_b32 s30, 0
s_mov_b32 s31, 1
s_mov_b32 s27, s26
s_mov_b32 s26, 0
s_mov_b32 s54, 0
s_mov_b32 s66, 0
v_mov_b32 v11, 0
s_waitcnt vmcnt(0) lgkmcnt(0)
{"s_memrealtime s[86:87]" if "drst" in dbg else ""}
s_branch L_dry_in
L_dry_ret:
s_mov_b64 exec, -1
s_waitcnt vmcnt(0) lgkmcnt(0)
{"s_memrealtime s[90:91]" if "drst" in dbg else ""}
s_mov_b32 s26, s27
s_mov_b32 s54, 0x10000000
s_mov_b32 s66, 8192
v_mov_b32 v11, 1"""
        DRYSET = f"s_mov_b32 s30, {spin}\ns_mov_b32 s31, 0"
    a(f"""
{"v_lshl_add_u32 v2, v3, 2, v5" if t3 else "v_lshl_add_u32 v2, v5, 2, v3"}
v_lshlrev_b32 v2, 2, v2
ds_read_b32 v32, v2 offset:{YP}
ds_read_b32 v33, v2 offset:{YP+64}
ds_read_b32 v34, v2 offset:{YP+128}
ds_read_b32 v35, v2 offset:{YP+192}
v_lshlrev_b32 v31, 16, v31
s_waitcnt lgkmcnt(0)
v_add_f32 v32, v32, v33
v_add_f32 v34, v34, v35
v_add_f32 v32, v32, v34
v_cvt_pk_bf16_f32 v32, v32, v32
v_lshlrev_b32 v32, 16, v32
v_add_f32 v32, v32, v31
v_cvt_pk_bf16_f32 v32, v32, v32
v_lshlrev_b32 v32, 16, v32
v_mul_f32 v34, {f32(-LOG2E)}, v32
v_exp_f32 v34, v34
v_add_f32 v34, 1.0, v34
v_rcp_f32 v34, v34
v_mul_f32 v32, v32, v34
v_cvt_pk_bf16_f32 v32, v32, v32
v_lshlrev_b32 v16, 16, v32
v_lshlrev_b32 v14, 16, v29
{DRYIN}
L_ready:
{DRYSET}
""")
    if "p2st" in dbg: stamp(2)
    if "cuts" in dbg: a("s_branch L_pre2")
    a("; softmax statistics: merge the four waves, publish {max, sum}, fetch the group's statistics, form the split weights")
    lds_wait("L_sw", FLG + 16, 4, sl=8)
    a(f"""
ds_read_b64 v[32:33], v24 offset:{ST}
ds_read_b64 v[34:35], v24 offset:{ST+32}
ds_read_b64 v[36:37], v24 offset:{ST+64}
ds_read_b64 v[38:39], v24 offset:{ST+96}
s_waitcnt lgkmcnt(0)
v_max3_f32 v48, v32, v34, v36
v_max_f32 v48, v48, v38
v_sub_f32 v32, v32, v48
v_sub_f32 v34, v34, v48
v_sub_f32 v36, v36, v48
v_sub_f32 v38, v38, v48
v_exp_f32 v32, v32
v_exp_f32 v34, v34
v_exp_f32 v36, v36
v_exp_f32 v38, v38
v_mov_b32 v49, v10
v_mov_b32 v51, v10
v_mul_f32 v50, v32, v33
v_fmac_f32 v50, v34, v35
v_fmac_f32 v50, v36, v37
v_fmac_f32 v50, v38, v39
v_mov_b32 v53, {"s31" if h1q else "v10"}
{"s_lshl_b64 exec, 1, s29" if t2 else "s_mov_b64 exec, 1"}
s_cmp_lg_u32 s26, 0
s_cbranch_scc1 L_st_far
buffer_store_dwordx4 v[48:51], v9, s[52:55], s6 offen
s_mov_b64 exec, -1
""")
    if t2 and prew: a("v_not_b32 v60, v10\nv_not_b32 v61, v10\nbuffer_store_dwordx2 v[60:61], v25, s[52:55], s28 offen offset:128")
    if prer is not None and prp == 's': a(f"buffer_load_dwordx2 v[62:63], v25, s[52:55], s28 offen offset:128 {prer}")
    poll("L_sp", [f"buffer_load_dwordx4 v[40:43], v27, s[52:55], s{30 if t3 else 7} offen {h1fl}"], lambda: chk8([41, 43], 80), sl=8)
    a(f"""
s_branch L_st_done
L_st_far:
buffer_store_dwordx4 v[48:51], v9, s[52:55], s6 offen sc1
s_mov_b64 exec, -1
""")
    poll("L_spx", [f"buffer_load_dwordx4 v[40:43], v27, s[52:55], s{30 if t3 else 7} offen sc1"], lambda: chk8([41, 43], 80), sl=8)
    a("L_st_done:")
    def ptouch(mode, fl):
        if mode == 8: a(f"s_lshl_b32 s4, s14, 9\ns_add_u32 s4, s4, s7\ns_mov_b64 exec, 0xffffffff\nbuffer_load_dwordx4 v[64:67], v26, s[52:55], s4 offen offset:128 {fl}\ns_mov_b64 exec, -1")
        else:
            for k in range(4): a(f"buffer_load_dwordx4 v[{64+4*k}:{67+4*k}], v26, s[52:55], s7 offen offset:{128+k*1024} {fl}")
    if pretouch and pretouch[0] == "s": ptouch(pretouch[1], pretouch[2])
    a("""
v_max_f32_dpp v44, v40, v40 quad_perm:[1,0,3,2] row_mask:0xf bank_mask:0xf
v_max_f32_dpp v45, v44, v44 quad_perm:[2,3,0,1] row_mask:0xf bank_mask:0xf
v_sub_f32 v40, v40, v45
v_exp_f32 v40, v40
v_mul_f32 v42, v40, v42
v_add_f32_dpp v44, v42, v42 quad_perm:[1,0,3,2] row_mask:0xf bank_mask:0xf
v_add_f32_dpp v45, v44, v44 quad_perm:[2,3,0,1] row_mask:0xf bank_mask:0xf
v_rcp_f32 v45, v45
v_mul_f32 v40, v40, v45
v_mov_b32_dpp v56, v40 quad_perm:[0,0,0,0] row_mask:0xf bank_mask:0xf
v_mov_b32_dpp v57, v40 quad_perm:[1,1,1,1] row_mask:0xf bank_mask:0xf
v_mov_b32_dpp v58, v40 quad_perm:[2,2,2,2] row_mask:0xf bank_mask:0xf
v_mov_b32_dpp v59, v40 quad_perm:[3,3,3,3] row_mask:0xf bank_mask:0xf
""" + ("\n".join(f"ds_bpermute_b32 v{56+i}, v23, v{56+i}" for i in range(4)) if t3 else "") + """
L_pre2:
s_setprio """ + str(hp) + """
s_waitcnt vmcnt(0) lgkmcnt(0)
""")
    if "p2st" in dbg: stamp(1)
    if prer is not None and prp == 'p': a(f"buffer_load_dwordx2 v[62:63], v25, s[52:55], s28 offen offset:128 {prer}")
    if wotrig is not None and wotrig >= 0:
        if defer:
            srd(48, 38, 256)
            a(f"""
s_getreg_b32 s4, hwreg(HW_REG_XCC_ID, 0, 3)
s_lshl_b32 s4, s4, 5
v_lshl_add_u32 v92, v6, 2, s4
s_mov_b32 s28, {(0x80 - defer[2]) * 0x01010101}
s_mov_b32 s29, 0x80808080
""")
        if wodl is not None: a(f"""
s_mov_b32 s58, {spin*8}
L_wt:
ds_read2_b32 v[60:61], v9 offset0:{(FLG+28)//4} offset1:{(FLG+48)//4}
s_memrealtime s[76:77]
{f"s_sleep {wosl}" if wosl else ""}
s_waitcnt lgkmcnt(0)
v_readfirstlane_b32 s59, v60
v_readfirstlane_b32 s27, v61
s_sub_u32 s58, s58, 1
s_cbranch_scc1 L_wt_done
s_cmp_ge_u32 s59, {wothr}
s_cbranch_scc1 L_wt_done
s_cmp_eq_u32 s27, 0
s_cbranch_scc1 L_wt
s_sub_u32 s27, s76, s27
s_cmp_lt_i32 s27, 0
s_cbranch_scc1 L_wt
L_wt_done:
""")
        else:
            a("; Wo tile is fetched when this workgroup's V stream is nearly drained, so it overlaps the hop-1 hand-off")
            lds_wait("L_wt", FLG + 28, wothr, sl=wosl, msk=bool(defer))
        if defer: a(f"s_lshr_b32 s27, s59, 8\ns_cmp_ge_u32 s27, {defer[1]}\ns_cselect_b32 s27, 1, 0\ns_andn2_b32 s27, s27, s26\ns_cbranch_scc1 L_wt_skip")
        if prer is not None and prp == 't': a(f"buffer_load_dwordx2 v[62:63], v25, s[52:55], s28 offen offset:128 {prer}")
        if pretouch and pretouch[0] == "b": ptouch(pretouch[1], pretouch[2])
        for t in range(4): wodma(t, 90, 22, 23)
        if pretouch and pretouch[0] == "a": ptouch(pretouch[1], pretouch[2])
        if defer: a("L_wt_skip:")
    stamp(4)
    if not dp: a("s_barrier")
    if dry2: a("L_dry_in:")
    if wotrig is not None and wotrig < 0:
        for t in range(4): wodma(t, 90, 22, 23)
    if isinstance(dbgt, str): a("s_memrealtime s[92:93]")
    if prof: a("s_waitcnt lgkmcnt(0)")
    if "notail" in dbg:
        stamp(5); stamp(6); a("s_branch L_hend")
    if tailprof: stamp(1); a("s_waitcnt lgkmcnt(0)")
    PKC = """s_waitcnt lgkmcnt(2)
v_mul_f32 v40, v32, v40
v_mul_f32 v41, v32, v41
v_fmac_f32 v40, v34, v42
v_fmac_f32 v41, v34, v43
s_waitcnt lgkmcnt(0)
v_mul_f32 v44, v36, v44
v_mul_f32 v45, v36, v45
v_fmac_f32 v40, v38, v46
v_fmac_f32 v41, v38, v47
v_add_f32 v40, v40, v44
v_add_f32 v41, v41, v45""" if not pkc else """s_waitcnt lgkmcnt(3)
v_pk_mul_f32 v[40:41], v[40:41], v[32:33] op_sel_hi:[1,0]
s_waitcnt lgkmcnt(2)
v_pk_fma_f32 v[40:41], v[42:43], v[34:35], v[40:41] op_sel_hi:[1,0,1]
s_waitcnt lgkmcnt(1)
v_pk_fma_f32 v[40:41], v[44:45], v[36:37], v[40:41] op_sel_hi:[1,0,1]
s_waitcnt lgkmcnt(0)
v_pk_fma_f32 v[40:41], v[46:47], v[38:39], v[40:41] op_sel_hi:[1,0,1]"""
    if t2:
        for w_ in range(4): a(f"ds_read2st64_b32 v[{40+2*w_}:{41+2*w_}], v20 offset0:{8*w_} offset1:{8*w_+4}")
    elif not dp: a("""
ds_read2_b32 v[40:41], v20 offset0:0 offset1:4
ds_read2_b32 v[42:43], v21 offset0:0 offset1:4
ds_read2_b32 v[44:45], v22 offset0:0 offset1:4
ds_read2_b32 v[46:47], v23 offset0:0 offset1:4
""")
    if not dp: a(f"""
{PKC}
s_cmp_lg_u32 s26, 0
v_cvt_pk_bf16_f32 v52, v40, v41
s_cbranch_scc1 L_h1_far
buffer_store_dwordx2 v[52:53], v25, s[52:55], s{28 if t2 else 6} offen offset:128
L_h1_st:
""")
    stamp(5)
    if wotrig is not None:
        if defer: a("s_cmp_lg_u32 s27, 0\ns_cbranch_scc1 L_dfr")
        if h1e:
            a("s_cmp_lg_u32 s26, 0\ns_cbranch_scc1 L_h1e_far")
            if dry2: a("s_cmp_lg_u32 s31, 0")
            for e_ in range(h1e[0]):
                if len(h1e) > 2: a(f"s_waitcnt vmcnt({h1e[2][e_] + 4 * e_})")
                elif e_: a(f"s_sleep {h1e[1]}")
                if "h1d" in dbg: stamp(4)
                for k in range(4): a(f"buffer_load_dwordx4 v[{64+4*k}:{67+4*k}], v26, s[52:55], s{SD} offen offset:{128+k*(512 if t2 and not t3 else 1024)} {h1fl}")
            a(f"s_waitcnt vmcnt({1 + 4 * h1e[0]})\nL_h1e_done:")
        else: a(f"s_waitcnt vmcnt({0 if dp else 1})")
        if defer: a("L_dfr_done:")
        if dp: stamp(5)
        if "wol" in dbg and "h1it" not in dbg and "h1vm" not in dbg and "h1d" not in dbg: stamp(3)
        if own1: woread(91, [0])
        if wbar: a(("s_cbranch_scc1 L_nobar\n" if dry2 else "") + "s_barrier" + ("\nL_nobar:" if dry2 else ""))
        elif not t3:
            lds_signal(FLG + 20)
            lds_wait("L_wl", FLG + 20, 4)
        if "wol" in dbg: stamp(1)
        if not womid: woread(91)
        if dp and dpw: lds_wait("L_pw", FLG + 40, dpw)
    a("s_cmp_lg_u32 s26, 0\ns_cbranch_scc1 L_h1_farp")
    def h1poll(sfx, fl, pipe):
        full = [f"buffer_load_dwordx4 v[{64+4*k}:{67+4*k}], v26, s[52:55], s{SD} offen offset:{128+k*(512 if t2 and not t3 else 1024)} {fl}" for k in range(4)]
        if h1m and sfx == "":
            assert h1e
            a(f"s_mov_b32 s58, {'s30' if dry2 else spin}")
            if h1p:
                for l in full: a(l)
            woread(91)
            if "h1d" in dbg: a("s_waitcnt vmcnt(0)"); stamp(3)
            a("L_h1_chk:\ns_waitcnt vmcnt(0)" if h1m == 1 else f"s_waitcnt vmcnt({4 if h1p == 1 else 0})\nL_h1_chk:")
            for k in range(4): a(f"v_bitop3_b32 v{80+k}, v{65+4*k}, v{67+4*k}, s{TH} bitop3:0x7e")
            if mo:
                a("v_or3_b32 v84, v80, v81, v82\nv_or_b32 v84, v84, v83\nv_cmp_ne_u32 vcc, 0, v84\ns_cbranch_vccz L_h1_got")
                for k in range(4): a(f"v_cmp_ne_u32 s[{72+2*k}:{73+2*k}], 0, v{80+k}")
                a("s_sub_u32 s58, s58, 1\ns_cbranch_scc1 L_h1_got")
            else:
                for k in range(4): a(f"v_cmp_ne_u32 s[{72+2*k}:{73+2*k}], 0, v{80+k}")
                a("s_or_b64 vcc, s[72:73], s[74:75]\ns_or_b64 s[82:83], s[76:77], s[78:79]\ns_or_b64 vcc, vcc, s[82:83]\ns_cbranch_scc0 L_h1_got\ns_sub_u32 s58, s58, 1\ns_cbranch_scc1 L_h1_got")
            if "h1it" in dbg: stamp(4)
            if h1sl: a(f"s_sleep {h1sl}")
            for k in range(4): a(f"s_mov_b64 exec, s[{72+2*k}:{73+2*k}]\n" + full[k])
            a("s_mov_b64 exec, -1")
            if slp: a(f"s_sleep {slp}")
            if h1m > 1: a(f"s_waitcnt vmcnt({4 * (h1m - 1)})")
            a("s_branch L_h1_chk")
            return
        poll("L_h1" + sfx, full, lambda: chk8([65, 67, 69, 71, 73, 75, 77, 79], 80, TH), st=4, pipe=pipe, stag=stag1, mid=(lambda: woread(91)) if (womid and wotrig is not None) else None, pre=bool(h1e) and sfx == "")
    h1poll("", h1fl, pipe1)
    a("L_h1_got:")
    if "h1it" in dbg: a(f"s_sub_u32 s90, {spin}, s58\ns_mov_b32 s91, 0")
    if "h1d" in dbg: a(f"s_sub_u32 s98, {spin}, s58\ns_mov_b32 s99, 0")
    if "h1vm" in dbg: stamp(3); a(f"s_sub_u32 s98, {spin}, s58\ns_mov_b32 s99, 0")
    if hp2 is not None: a(f"s_setprio {hp2}")
    if lkw: assert own1 and t2 and not t3 and h2late and not fin
    if wotrig is not None and not lkw: a("s_waitcnt lgkmcnt(0)")
    stamp(6)
    AO = 96; DD = 112
    if h2e:
        a("s_cmp_lg_u32 s3, 0\ns_cbranch_scc1 L_h2e")
        for l in h2l: a(l)
        a("L_h2e:")
    if h2late and fin != 2: a(f"s_mov_b64 exec, 1\nds_add_rtn_u32 v54, v9, v11 offset:{FLG+24}\ns_mov_b64 exec, -1")
    if fin == 2: a(f"ds_read_b32 v54, v9 offset:{FLG+24}")
    if t2:
        for k in range(4):
            for g_ in range(2):
                a(f"v_lshlrev_b32 v{160+4*k+2*g_}, 16, v{64+4*k+2*g_}\nv_and_b32 v{161+4*k+2*g_}, 0xffff0000, v{64+4*k+2*g_}")
            for g_ in range(2):
                r_ = 160 + 4 * k + 2 * g_; w_ = 56 + (k & 2); sel = k & 1
                if k == 0: a(f"v_pk_mul_f32 v[{84+2*g_}:{85+2*g_}], v[{r_}:{r_+1}], v[{w_}:{w_+1}] op_sel:[0,{sel}] op_sel_hi:[1,{sel}]")
                else: a(f"v_pk_fma_f32 v[{84+2*g_}:{85+2*g_}], v[{r_}:{r_+1}], v[{w_}:{w_+1}], v[{84+2*g_}:{85+2*g_}] op_sel:[0,{sel},0] op_sel_hi:[1,{sel},1]")
        a("v_cvt_pk_bf16_f32 v88, v84, v85\nv_cvt_pk_bf16_f32 v89, v86, v87")
    if fin == 2:
        a("s_waitcnt lgkmcnt(0)\nv_readfirstlane_b32 s27, v54\ns_cmp_lg_u32 s27, 3\ns_cbranch_scc1 L_h2e")
        for l in h2l: a(l)
        a(f"L_h2e:\ns_mov_b64 exec, 1\nds_add_rtn_u32 v54, v9, v11 offset:{FLG+24}\ns_mov_b64 exec, -1")
    if fin == 3:
        a("s_waitcnt lgkmcnt(0)\nv_readfirstlane_b32 s27, v54\ns_cmp_lg_u32 s27, 3\ns_cbranch_scc1 L_h2e")
        for l in h2l: a(l)
        a(f"s_mov_b64 exec, 1\nds_add_u32 v9, v11 offset:{FLG+24}\ns_mov_b64 exec, -1\nL_h2e:")
    def mv(kk, p):
        if t2:
            j_ = 2 * kk + (p >> 1)
            if j_: a(f"v_mov_b32_dpp v{AO+4*kk+p}, v{88+(p&1)} row_ror:{16-j_} row_mask:0xf bank_mask:0xf")
            else: a(f"v_mov_b32 v{AO+4*kk+p}, v{88+(p&1)}")
            return
        src = 64 + 8 * (kk & 1) + 2 * p
        if kk >= 2: a(f"v_mov_b32_dpp v{AO+4*kk+p}, v{src} row_ror:8 row_mask:0xf bank_mask:0xf")
        else: a(f"v_mov_b32 v{AO+4*kk+p}, v{src}")
    if t3 == 2:
        for p in range(4): a(f"ds_bpermute_b32 v{176+p}, v{184+(p>>1)}, v{88+(p&1)}")
        a("s_waitcnt lgkmcnt(0)")
        for nt_ in (0, 2, 1, 3): a(f"v_mfma_f32_16x16x32_bf16 v[{DD+4*nt_}:{DD+4*nt_+3}], v[{WB+4*nt_}:{WB+4*nt_+3}], v[176:179], 0")
        a(f"""
s_mov_b64 exec, s[32:33]
ds_write_b128 v21, v[{DD}:{DD+3}] offset:{RBB}
ds_write_b128 v21, v[{DD+8}:{DD+11}] offset:{RBB+1280}
s_not_b64 exec, s[32:33]
ds_write_b128 v21, v[{DD+4}:{DD+7}] offset:{RBB}
ds_write_b128 v21, v[{DD+12}:{DD+15}] offset:{RBB+1280}
""")
    if t3 == 1:
        ID = "quad_perm:[0,1,2,3]"
        for p in range(4): a(f"v_mov_b32_dpp v{176+p}, v{88+(p&1)} {'row_ror:8' if p >> 1 else ID} row_mask:0xf bank_mask:0x3")
        for p in range(4): a(f"v_mov_b32_dpp v{180+p}, v{88+(p&1)} {ID if p >> 1 else 'row_ror:8'} row_mask:0xf bank_mask:0xc")
        for h_ in range(2):
            for a_ in range(2):
                d = DD + 4 * a_; w_ = WB + 4 * (2 * a_ + h_)
                a(f"v_mfma_f32_16x16x32_bf16 v[{d}:{d+3}], v[{w_}:{w_+3}], v[{176+4*h_}:{179+4*h_}], {'0' if h_ == 0 else f'v[{d}:{d+3}]'}")
        a(f"""
ds_write_b128 v21, v[{DD}:{DD+3}] offset:{RBB}
ds_write_b128 v21, v[{DD+4}:{DD+7}] offset:{RBB+1280}
""")
    if t3:
        a(f"""
s_mov_b64 exec, 0xffffffff
s_waitcnt lgkmcnt(0)
s_barrier
""")
        for w_ in range(4): a(f"ds_read_b128 v[{96+4*w_}:{99+4*w_}], v22 offset:{RBB+2560*w_}")
        a("""
s_waitcnt lgkmcnt(2)
v_pk_add_f32 v[96:97], v[96:97], v[100:101]
v_pk_add_f32 v[98:99], v[98:99], v[102:103]
s_waitcnt lgkmcnt(0)
v_pk_add_f32 v[104:105], v[104:105], v[108:109]
v_pk_add_f32 v[106:107], v[106:107], v[110:111]
v_pk_add_f32 v[96:97], v[96:97], v[104:105]
v_pk_add_f32 v[98:99], v[98:99], v[106:107]
""")
    for p in range(0 if t3 else 4): mv(0, p)
    for kk in range(0 if t3 else 4):
        for nt_ in range(4):
            d = DD + 4 * nt_; b = WB + 16 * nt_ + 4 * kk
            if kk < 3 and nt_ < 2: mv(kk + 1, 2 * nt_); mv(kk + 1, 2 * nt_ + 1)
            if lkw and nt_ == 0 and kk != 1: a(f"s_waitcnt lgkmcnt({[15, 0, 9, 1][kk]})")
            a(f"v_mfma_f32_16x16x32_bf16 v[{d}:{d+3}], v[{AO+4*kk}:{AO+4*kk+3}], v[{b}:{b+3}], {'0' if kk == 0 else f'v[{d}:{d+3}]'}")
    GO = 128
    if fin == 3: a("s_mov_b32 s59, s27")
    elif h2late: a("s_waitcnt lgkmcnt(0)\nv_readfirstlane_b32 s59, v54")
    if t3: pack16(GO, [96, 97, 98, 99], 10)
    elif t2: pack16(GO, [DD, DD + 4, DD + 8, DD + 12], 10)
    else:
        for t in range(4):
            a(f"v_mul_f32 v{GO+t}, v56, v{DD+4*t}")
            a(f"v_mul_f32 v{GO+4+t}, v58, v{DD+4*t+2}")
        for t in range(4):
            a(f"v_fmac_f32 v{GO+t}, v57, v{DD+4*t+1}")
            a(f"v_fmac_f32 v{GO+4+t}, v59, v{DD+4*t+3}")
        for t in range(4): a(f"v_add_f32 v{GO+t}, v{GO+t}, v{GO+4+t}")
        pack16(GO, [GO, GO + 1, GO + 2, GO + 3], 10)
    if lbar: a("s_barrier")
    if h2late:
        a(("s_mov_b32 s31, s59\n" if fin else "") + "s_cmp_eq_u32 s59, 3\ns_cbranch_scc1 L_hl_done")
        lds_wait("L_hl", FLG + 24, 5 if fin == 3 else 4, bnd="s30" if dry2 else None)
    a(("" if t3 else "s_mov_b32 exec_lo, 0xffff\ns_mov_b32 exec_hi, 0xffff" if t2 else "s_mov_b64 exec, 0xffffffff") + f"\nbuffer_store_dwordx4 v[{GO}:{GO+3}], v28, s[52:55], s8 offen {h2sf}")
    if tailprof or "wol" in dbg: stamp(2)
    if h2sync and not h2late: lds_signal(FLG + 24)
    a(f"""
s_mov_b64 exec, -1
s_cmp_lg_u32 {"s31, 3" if fin else "s3, 0"}
s_cbranch_scc1 L_hend
""")
    if fin >= 2:
        a("s_cmp_lg_u32 s27, 3\ns_cbranch_scc1 L_h2n\ns_waitcnt vmcnt(1)" if fin == 2 else "s_waitcnt vmcnt(1)")
        r_ = chk16([136, 140], 56, 12)
        a(f"v_cmp_ne_u32 vcc, 0, v{r_}\ns_mov_b32 s58, {spin}\ns_and_b64 exec, exec, vcc\ns_cbranch_execz L_h2_done\nL_h2n:")
    if h2sync and not h2late: lds_wait("L_hw", FLG + 24, 4)
    if h2e:
        a("s_waitcnt vmcnt(1)")
        r_ = chk16([136, 140], 56, 12)
        a(f"v_cmp_ne_u32 vcc, 0, v{r_}\ns_mov_b32 s58, {spin}\ns_and_b64 exec, exec, vcc\ns_cbranch_execz L_h2_done")
    if h2ack: a("s_waitcnt vmcnt(0)")
    if h2d: a(f"s_sleep {h2d}")
    if "h2it" in dbg: stamp(1)
    poll("L_h2", h2l, lambda: chk16([136, 140], 56, 12), st=3, pipe=pipe2, stag=stag2, sl=slp2, bnd="s30" if dry2 else None)
    if "h2it" in dbg: stamp(5); a(f"s_sub_u32 s90, {spin}, s58\ns_mov_b32 s91, 0")
    for i in range(8): a(f"v_and_b32 v{48+i}, 0xffffff00, v{136+i}")
    for i in range(4): a(f"v_add_f32 v{48+i}, v{48+i}, v{52+i}")
    a(f"""
v_permlane32_swap_b32 v48, v50
v_permlane32_swap_b32 v49, v51
v_add_f32 v48, v48, v50
v_add_f32 v49, v49, v51
v_permlane16_swap_b32 v48, v49
v_add_f32 v48, v48, v49
v_add_f32_dpp v48, v48, v48 row_ror:4 row_mask:0xf bank_mask:0xf
v_add_f32_dpp v48, v48, v48 row_ror:8 row_mask:0xf bank_mask:0xf
s_mov_b32 exec_lo, 0x000f000f
s_mov_b32 exec_hi, 0x000f000f
v_cvt_pk_bf16_f32 v48, {"0" if mo else "v48"}, v48
{"" if mo else "v_lshlrev_b32 v48, 16, v48"}
v_mul_f32 v48, v48, v16
v_cvt_pk_bf16_f32 v48, {"0" if mo else "v48"}, v48
{"" if mo else "v_lshlrev_b32 v48, 16, v48"}
v_add_f32 v48, v48, v14
v_cvt_pk_bf16_f32 v48, v48, v48
buffer_store_short v48, v30, s[64:67], s10 offen {"sc1" if clean else ""}
s_mov_b64 exec, 1
s_cmp_lg_u32 s2, 0
s_cbranch_scc1 L_hend
v_mov_b32 v60, s42
buffer_store_dword v60, v9, s[52:55], 0 offen sc1
L_hend:
{"s_cmp_lg_u32 s31, 0" if dry2 else ""}
{"s_cbranch_scc1 L_dry_ret" if dry2 else ""}
""")
    if "probe" in dbg: a("s_cmp_ge_u32 s3, 2\ns_cbranch_scc1 L_np7")
    if "h1vm" not in dbg and "h1d" not in dbg: stamp(7)
    if "probe" in dbg: a("L_np7:")
    if endwait or prof or dbgt: a("s_waitcnt vmcnt(0)")
    if "endst" in dbg: stamp(1)
    if isinstance(dbgt, str):
        AMP = 96 << 20
        def red(op, r, steps, t=70):
            for n in steps:
                if n < 16: a(f"{op}_dpp v{r}, v{r}, v{r} row_ror:{n} row_mask:0xf bank_mask:0xf")
                else: a(f"v_mov_b32 v{t}, v{r}\nv_permlane{n}_swap_b32 v{r}, v{t}\n{op} v{r}, v{r}, v{t}")
        a(f"""
s_cmp_lg_u32 s3, 0
s_cbranch_scc1 L_dbgt
s_memrealtime s[88:89]
s_mov_b64 exec, 1
s_waitcnt lgkmcnt(0)
v_mov_b32 v12, s84
v_mov_b32 v13, s92
v_mov_b32 v14, s88
v_mov_b32 v15, s12
s_lshl_b32 s59, s2, 4
s_add_u32 s59, s59, {AMP}
buffer_store_dwordx4 v[12:15], v9, s[52:55], s59 offen sc1
s_waitcnt vmcnt(0)
s_mov_b64 exec, -1
s_cmp_lg_u32 s2, 0
s_cbranch_scc1 L_dbgt
v_lshlrev_b32 v2, 4, v1
s_mov_b32 s6, {AMP}
""")
        poll("L_amp", [f"buffer_load_dwordx4 v[{40+4*k}:{43+4*k}], v2, s[52:55], s6 offen offset:{1024*k} sc1" for k in range(4)], lambda: chk8([43, 47, 51, 55], 80), sl=8)
        for k in range(4):
            for c in range(3): a(f"v_subrev_u32 v{40+4*k+c}, s84, v{40+4*k+c}")
        ALL = [8, 4, 2, 1, 16, 32]
        def stat(op, c, dst, steps=ALL):
            a(f"{op} v{dst}, v{40+c}, v{44+c}\n{op} v71, v{48+c}, v{52+c}\n{op} v{dst}, v{dst}, v71")
            red(op, dst, steps)
        stat("v_min_i32", 0, 60)
        if dbgt == "startmax": stat("v_max_i32", 0, 61)
        if dbgt == "bmin": stat("v_min_i32", 1, 61)
        if dbgt == "bmax": stat("v_max_i32", 1, 61)
        if dbgt == "emax": stat("v_max_i32", 2, 61)
        if dbgt == "bmean": stat("v_add_u32", 1, 61); a("v_ashrrev_i32 v61, 8, v61")
        if dbgt == "xs":
            stat("v_add_u32", 1, 61, [8, 16, 32]); a("v_ashrrev_i32 v61, 5, v61\nv_mov_b32 v60, v61")
            red("v_max_i32", 61, [4, 2, 1]); red("v_min_i32", 60, [4, 2, 1])
        a(f"""
v_sub_u32 v61, v61, v60
s_nop 1
v_readfirstlane_b32 s59, v61
s_mul_i32 s59, s59, 10
s_add_u32 s59, s59, 5000
s_min_u32 s59, s59, 100000
L_dbgs:
s_memrealtime s[90:91]
s_waitcnt lgkmcnt(0)
s_sub_u32 s58, s90, s84
s_cmp_lt_u32 s58, s59
s_cbranch_scc1 L_dbgs
L_dbgt:
""")
    elif dbgt == 2:
        a(f"""
s_or_b32 s59, s2, s3
s_cmp_lg_u32 s59, 0
s_cbranch_scc1 L_dbgt
s_memrealtime s[88:89]
s_waitcnt lgkmcnt(0)
s_sub_u32 s59, s88, s84
s_mul_i32 s59, s59, 10
s_min_u32 s59, s59, 100000
L_dbgs:
s_memrealtime s[90:91]
s_waitcnt lgkmcnt(0)
s_sub_u32 s58, s90, s88
s_cmp_lt_u32 s58, s59
s_cbranch_scc1 L_dbgs
L_dbgt:
""")
    elif dbgt:
        a(f"""
s_memrealtime s[88:89]
s_memtime s[90:91]
s_mov_b32 s44, s38
s_mov_b32 s45, s39
s_mov_b32 s46, 256
s_mov_b32 s47, 0x20000
s_mov_b64 exec, 1
s_waitcnt lgkmcnt(0)
s_not_b32 s59, s84
v_mov_b32 v12, s88
v_mov_b32 v13, s59
buffer_atomic_umax v12, v9, s[44:47], 0 offen sc1
buffer_atomic_umax v13, v9, s[44:47], 0 offen offset:4 sc1
s_cmp_lg_u32 s3, 0
s_cbranch_scc1 L_dbgt
s_and_b32 s59, s2, 0x7f
s_cmp_lg_u32 s59, 0
s_cbranch_scc1 L_dbgt
s_lshr_b32 s59, s2, 3
v_mov_b32 v12, s84
v_mov_b32 v13, s88
v_mov_b32 v14, s86
v_mov_b32 v15, s90
buffer_store_dwordx4 v[12:15], v9, s[44:47], s59 offen offset:16 sc1
L_dbgt:
s_waitcnt vmcnt(0)
""")
    if prof:
        a(f"""
s_mov_b64 exec, 1
s_sleep 127
s_waitcnt lgkmcnt(0)
s_lshl_b32 s59, s2, 3
s_add_u32 s59, s59, s3
s_add_u32 s59, s59, 4
s_lshl_b32 s59, s59, 6
s_add_u32 s59, s59, {STAMP}
""")
        for i in range(0, 8):
            a(f"v_mov_b32 v12, s{84+2*i}\nv_mov_b32 v13, s{85+2*i}\nbuffer_store_dwordx2 v[12:13], v9, s[52:55], s59 offen offset:{8*i}\ns_waitcnt vmcnt(0)")
    a("L_end:\ns_endpgm")
    if not dp: a("""L_h1_far:
buffer_store_dwordx2 v[52:53], v25, s[52:55], s""" + ("28" if t2 else "6") + """ offen offset:128 sc1
s_branch L_h1_st
""")
    if h1e: a("L_h1e_far:\n" + ("s_cmp_lg_u32 s31, 0\n" if dry2 else "") + "s_waitcnt vmcnt(1)\ns_branch L_h1e_done")
    a("L_h1_farp:")
    h1poll("x", "sc1", 1)
    a("s_branch L_h1_got")
    if defer:
        a(f"""
L_dfr:
s_movk_i32 s58, 2000
L_dfr_l:
buffer_load_dword v93, v92, s[48:51], 0 offen nt
s_waitcnt vmcnt(0)
v_add_u32 v93, s28, v93
v_and_b32 v93, s29, v93
v_cmp_ne_u32 vcc, s29, v93
s_cbranch_vccz L_dfr_go
s_sub_u32 s58, s58, 1
s_cbranch_scc0 L_dfr_l
L_dfr_go:
""")
        for t in range(4): wodma(t, 90, 22, 23)
        a("s_waitcnt vmcnt(0)\ns_branch L_dfr_done")
    if near:
        assert near["nw"] in (1, 2)
        a(f"""L_meas:
s_cmp_lt_u32 s3, 2
s_cbranch_scc1 L_meas_done
s_and_b32 s4, s3, 1
s_lshl_b32 s4, s4, 13
s_lshl_b32 s5, s2, 7
s_add_u32 s4, s4, s5
s_memtime s[76:77]
s_waitcnt lgkmcnt(0)
s_load_dword s5, s[40:41], s4 offset:{MEAS}
s_waitcnt lgkmcnt(0)
s_memtime s[78:79]
s_lshl_b32 s4, s3, 2
v_mov_b32 v5, s4
s_waitcnt lgkmcnt(0)
s_sub_u32 s78, s78, s76
v_mov_b32 v6, s78
ds_write_b32 v5, v6 offset:{OP - 8}
s_waitcnt lgkmcnt(0)
s_branch L_meas_done
L_mpub:
ds_read_b64 v[94:95], v9 offset:{OP}
s_lshl_b32 s4, s2, 3
s_add_u32 s4, s4, {CWOFF}
s_movk_i32 s5, {near.get("cap", 600)}
s_mov_b64 exec, 1
s_waitcnt lgkmcnt(0)
v_sub_u32 v94, v94, v95
v_min_i32 v94, s5, v94
v_sub_u32 v95, 0, v94
v_min_i32 v95, s5, v95
v_sub_u32 v94, 0, v95
v_mov_b32 v95, s12
buffer_store_dwordx2 v[94:95], v9, s[52:55], s4 offen sc1
s_mov_b64 exec, -1
s_branch L_mpub_done
""")
    a("L_qs_far:\n" + (f"ds_write_b32 v9, v11 offset:{FLG+32}\n" if dp else "") + "buffer_store_dwordx4 v[132:135], v25, s[52:55], s72 offen sc1\n" + ("buffer_store_dwordx2 v[136:137], v138, s[52:55], s73 offen sc1\n" if qf else "") + "s_branch L_qs_done\nL_gq_far:")
    qpoll("x", "sc1")
    a("s_branch L_gq_got")
    if fc:
        lean = fc.get("tt", {}).get("notab") and fc["tt"].get("gl") == 2
        if not lean:
            a("L_cb:\ns_waitcnt lgkmcnt(0)\ns_mov_b32 s71, 0")
            for i in range(8): a(f"s_cmp_lg_u32 s{4+i}, s73\ns_addc_u32 s71, s71, 0")
        if not fc.get("wg"):
            a(f"""
s_cmp_lt_u32 s71, {fc['th1']}
s_cselect_b32 s62, 2, 0
s_cmp_ge_u32 s71, {fc['th2']}
s_cselect_b32 s62, 1, s62
""")
            if prof: a("s_lshl_b64 s[82:83], s[82:83], 2\ns_or_b32 s82, s82, s62")
            a("s_setpc_b64 s[80:81]")
        else:
            bias = 16 * fc["CW"]
            TSX = ""; DEC = ""
            if fc.get("dec"):
                DEC = f"s_cmp_eq_u32 s62, 1\ns_cselect_b32 s71, {-fc['dec'][0]}, 0\ns_cmp_eq_u32 s62, 2\ns_cselect_b32 s71, {fc['dec'][1]}, s71\ns_add_u32 s74, s74, s71"
            if fc.get("ts"):
                TSX = "L_cx:\ns_waitcnt lgkmcnt(0)\ns_mov_b32 s71, 0\n"
                for i in range(8): TSX += f"s_sub_u32 s{16+2*i}, s36, s{16+2*i}\ns_cmp_eq_u32 s{17+2*i}, s73\ns_cselect_b32 s{16+2*i}, s{16+2*i}, 0\ns_add_u32 s71, s71, s{16+2*i}\n"
                TSX += f"""s_sub_u32 s32, s36, s32
s_cmp_eq_u32 s33, s73
s_cselect_b32 s32, s32, 0
s_lshl_b32 s32, s32, 3
s_sub_u32 s32, s32, s71
s_mul_i32 s32, s32, {fc['tg']}
s_ashr_i32 s74, s32, 5
s_branch L_cc
"""
            if fc.get("tt"):
                tt = fc["tt"]
                RED = "\n".join(f"v_add_u32_dpp v85, v85, v85 row_ror:{n} row_mask:0xf bank_mask:0xf" for n in (4, 2, 1))
                CW_ = f"""{RED}
v_readfirstlane_b32 s69, v85
s_mul_i32 s69, s69, {round(tt['U'])}
s_lshr_b32 s69, s69, 5
s_sub_u32 s62, s62, s69
"""
                if tt.get("gl"):
                    SUMX = "s_waitcnt lgkmcnt(0)\ns_mov_b32 s71, 0\n"
                    for i in range(8): SUMX += f"s_sub_u32 s{16+2*i}, s36, s{16+2*i}\ns_cmp_eq_u32 s{17+2*i}, s73\ns_cselect_b32 s{16+2*i}, s{16+2*i}, {tt.get('inv', 0)}\ns_add_u32 s71, s71, s{16+2*i}\n"
                    SUMX += "s_ashr_i32 s71, s71, 3\ns_sub_u32 s71, s36, s71\n"
                    TSX = "L_cx:\n" + SUMX
                    if tt["gl"] == 2:
                        TSX = "L_cx:\ns_waitcnt lgkmcnt(0)\ns_add_u32 s62, s62, s70\ns_mov_b32 s71, 0\n"
                        if prof and tt.get("tv"): TSX += "s_lshl_b64 s[82:83], s[82:83], 4\n"
                        for i in range(8):
                            TSX += f"s_sub_u32 s{16+2*i}, s{16+2*i}, s62\ns_cmp_eq_u32 s{17+2*i}, s73\ns_cselect_b32 s{16+2*i}, s{16+2*i}, 0\n"
                            if prof and tt.get("tv"): TSX += "s_addc_u32 s82, s82, 0\n"
                            TSX += f"s_add_u32 s71, s71, s{16+2*i}\n"
                        TSX += f"s_ashr_i32 s71, s71, {3 + tt.get('gsm2', 0)}\ns_add_u32 s70, s70, s71\ns_setpc_b64 s[80:81]\n"
                        SUMX = None
                    if tt.get("gsm"): TSX += f"s_sub_u32 s71, s71, s62\ns_sub_u32 s71, s71, s70\ns_ashr_i32 s71, s71, {tt['gsm']}\ns_add_u32 s70, s70, s71\ns_setpc_b64 s[80:81]\nL_cx0:\n" + SUMX
                    if SUMX: TSX += "s_sub_u32 s70, s71, s62\ns_setpc_b64 s[80:81]\n"
                if lean: a("; re-centre the schedule on the mean of the published clocks (entries without this launch's tag are skipped)\n" + TSX)
                else: a(f"""
s_setpc_b64 s[80:81]
{TSX}
L_cw0:
{CW_}
s_sub_u32 s75, s62, {round(tt['U'] * fc['CW'] / 2)}
s_branch L_cc
L_cw:
{CW_}
s_sub_u32 s62, s62, {round(tt['U'] * fc['CW'] / 2)}
""" + (f"s_sub_u32 s62, s62, s75\ns_ashr_i32 s62, s62, {tt['sm']}\ns_add_u32 s75, s75, s62" if tt.get("sm") else "s_mov_b32 s75, s62") + """
L_cc:
""" + ("" if tt.get("gl") else "s_add_u32 s70, s75, s74") + """
s_setpc_b64 s[80:81]
""")
            else: a(f"""
s_mul_i32 s74, s71, {fc.get('kx', 0)}
{"s_lshl_b64 s[82:83], s[82:83], 4" if prof and fc.get("tm") else ""}
{"s_or_b32 s82, s82, s71" if prof and fc.get("tm") else ""}
s_branch L_cc
{TSX}
L_cw:
v_add_u32_dpp v85, v85, v85 row_ror:4 row_mask:0xf bank_mask:0xf
v_add_u32_dpp v85, v85, v85 row_ror:2 row_mask:0xf bank_mask:0xf
v_add_u32_dpp v85, v85, v85 row_ror:1 row_mask:0xf bank_mask:0xf
v_readfirstlane_b32 s69, v85
s_sub_u32 s75, s68, s69
s_sub_u32 s75, s75, {bias}
{DEC}
L_cc:
s_add_u32 s68, s75, s74
s_cmp_lt_i32 s68, {-fc['b']}
s_cselect_b32 s62, 2, 0
s_cmp_gt_i32 s68, {fc['a']}
s_cselect_b32 s62, 1, s62
""")
            if prof and not fc.get("tm") and not fc.get("tt"): a("s_lshl_b64 s[82:83], s[82:83], 2\ns_or_b32 s82, s82, s62")
            if not fc.get("tt"): a("s_setpc_b64 s[80:81]")
    a("; one output column of the token MLP: sum_f gelu_tanh(h*w1+b1)*w2 over this wave's quarter of F\nL_mlp:")
    if mr:
        a("; (the product, the biased sum and the activation are rounded to bf16 where the reference's bf16 tensors round them)")
        for t in range(7): a(f"v_mul_f32 v{U+t}, s4, v{W1+t}")
        for t in range(7): a(f"v_cvt_pk_bf16_f32 v{U+t}, 0, v{U+t}")
        for t in range(7): a(f"v_add_f32 v{U+t}, v{U+t}, v{B1+t}")
        for t in range(7): a(f"v_cvt_pk_bf16_f32 v{U+t}, 0, v{U+t}")
    else:
        for t in range(7): a(f"v_fma_f32 v{U+t}, s4, v{W1+t}, v{B1+t}")
    for t in range(7): a(f"v_mul_f32 v{AA+t}, v{U+t}, v{U+t}")
    for t in range(7): a(f"v_fmaak_f32 v{AA+t}, v{AA+t}, v{C1}, {f32(c0)}")
    for t in range(7): a(f"v_mul_f32 v{AA+t}, v{AA+t}, v{U+t}")
    for t in range(7): a(f"v_exp_f32 v{EE+t}, v{AA+t}")
    if not mr:
        for t in range(7): a(f"v_mul_f32 v{U+t}, v{U+t}, v{W2+t}")
    for t in range(7): a(f"v_add_f32 v{EE+t}, 1.0, v{EE+t}")
    for t in range(7): a(f"v_rcp_f32 v{EE+t}, v{EE+t}")
    if mr:
        for t in range(7): a(f"v_mul_f32 v{EE+t}, v{U+t}, v{EE+t}")
        for t in range(7): a(f"v_cvt_pk_bf16_f32 v{EE+t}, 0, v{EE+t}")
    M2 = W2 if mr else U
    a(f"v_mul_f32 v{ACC2}, v{M2}, v{EE}")
    a(f"v_mul_f32 v{AA}, v{M2+1}, v{EE+1}")
    for t in range(2, 7): a(f"v_fmac_f32 v{ACC2 if t % 2 == 0 else AA}, v{M2+t}, v{EE+t}")
    a(f"v_add_f32 v{ACC2}, v{ACC2}, v{AA}")
    for n in (8, 4, 2, 1): a(f"v_add_f32_dpp v{ACC2}, v{ACC2}, v{ACC2} row_ror:{n} row_mask:0xf bank_mask:0xf")
    swaps_add(ACC2, AA)
    a(f"""
s_mov_b64 exec, 1
ds_write_b32 v{YA}, v{ACC2} offset:{YP}
s_mov_b64 exec, -1
v_add_u32 v{YA}, 4, v{YA}
L_last:
s_setpc_b64 s[80:81]
""")
    body = a.render()
    if "allsc1st" in dbg:
        import re
        body = re.sub(r"(buffer_store_dwordx[24] v\[\d+:\d+\], v\d+, s\[52:55\], s(6|72) offen( offset:128)?)\n", r"\1 sc1\n", body)
    if "allsc1ld" in dbg:
        import re
        body = re.sub(r"(buffer_load_dwordx4 v\[\d+:\d+\], v\d+, s\[52:55\], s[67] offen( offset:\d+)?) nt\n", r"\1 sc1\n", body)
    txt = HDR + f"""; @launch grid=(256,1,1) block=(512,1,1) lds={LDSZ}
.amdgcn_target "amdgcn-amd-amdhsa--gfx950"
; ---------------------------------------------------------------------------------------------------------
; out = x + (softmax(q K^T / sqrt(128)) V) Wo * silu(token_mlp(LN(LN(x)))),  q = LN(x) Wq.   One launch, 256 workgroups.
; Workgroup id = b*32 + split*8 + x : batch b, kv head x, quarter `split` of the 4096 cached tokens.
;  waves 0-3 (stream): read the K and V rows of this workgroup once (nt), scores by MFMA, true max + exp, P.V by MFMA.
;  waves 4-7 (helper): LN, a 128x64 tile of Wq (f32 partials exchanged through d_ws), the token MLP gate for 16 output
;                      columns, softmax statistics exchange, partial-O hand-off (hop 1), a 128x64 tile of Wo,
;                      hand-off of the projected partial sums (hop 2), final sum / gate / residual / store.
; Hand-offs: every granule in d_ws carries this launch's tag (ws[0]+1; workgroup 0 stores the tag back at the end), so
;  words left by earlier launches or by the harness are never taken for data.  All polls are bounded.
; Placement: hop 2 and the clock/vote words always use sc1 (memory-side) accesses.  The exchanges inside a group of 32
;  workgroups use plain stores only after the group has PROVEN (tagged table indexed by the hardware XCC id) that all
;  32 share one L2; otherwise they use sc1 stores/loads, so any placement gives the same result.
; Bandwidth sharing: HBM is saturated for the whole stream, and the launch ends with the slowest workgroup.  Each stream
;  wave compares its progress with the mean progress of all dies (clock values exchanged in d_ws, this launch only) and
;  keeps 4..12 loads in flight accordingly (behind: more, ahead: fewer).  This only selects s_waitcnt vmcnt depths;
;  nothing waits on the clock.  The s_memtime probe at the start picks which half of the hop-2 area is closer to its
;  readers (all workgroups read the same 16 votes, so they agree); either choice is correct.
; Rounding: intermediate values are rounded to bf16 at the points where the reference's bf16 tensors round them.
; ---------------------------------------------------------------------------------------------------------
.text
.globl {KN}_kernel
.p2align 8
.type {KN}_kernel,@function
{KN}_kernel:
""" + body + f""".section .rodata,"a"
.p2align 6
.amdhsa_kernel {KN}_kernel
  .amdhsa_next_free_vgpr 256
  .amdhsa_next_free_sgpr 102
  .amdhsa_accum_offset 256
  .amdhsa_group_segment_fixed_size 0
  .amdhsa_kernarg_size 104
  .amdhsa_user_sgpr_count 2
  .amdhsa_user_sgpr_kernarg_segment_ptr 1
  .amdhsa_system_sgpr_workgroup_id_x 1
.end_amdhsa_kernel
"""
    open(fname, "w").write(txt)
if __name__ == "__main__":
    import glob, os
    for f in glob.glob("kp_*.s"): os.remove(f)
    gen("k1.s", mlp1=4, slp=0)
    kw = dict(prof=True, tailprof=True, mlp1=4, slp=0, rq=1, wolate=[5, 7, 9, 11])
    gen("kp_00.s", **kw)
    F = dict(wg=1, x=1, G=2, kx=24, a=64, b=-16, W=(4,6,12), d=6, C=3, CW=2)
    gen("kp_01.s", fc=F, **kw)
    gen("kp_02_nowork.s", fc=F, dbg="nok nosm nov", **kw)
    gen("kp_03_nosm.s", fc=F, dbg="nosm", **kw)
    gen("kp_04_nowq.s", fc=F, dbg="nowq", **kw)
    gen("kp_05_nowork_nowq.s", fc=F, dbg="nok nosm nov nowq", **kw)
    gen("kp_06_nowork_nowq_nomlp.s", fc=F, dbg="nok nosm nov nowq nomlp", **kw)
    gen("kp_07_nofc_nowork.s", dbg="nok nosm nov", **kw)
    gen("kp_08_nofc_nowork_nowq.s", dbg="nok nosm nov nowq", **kw)
```

```python
import gen
kw = dict(mlp1=2, slp=0, rq=1, wolate=[5, 7, 9, 11], palign=7, near=dict(nw=2), wotrig=203, wosw=1, t2=1, b3=1, wosl=1, h1e=(1,0,[4]), h1m=1, h2pre=("z", 64), wbar=1, own1=True)
F = dict(wg=1, x=0, G=2, kx=24, a=64, b=40, W=(4,6,12), d=5, C=3, CW=2, stop=0, tg=4, dl=3)
T6 = [4, 13, 22, 31, 40, 49]
P2 = [(12,-40),(8,-15),(6,15),(5,40),(4,0)]
def g(n, U=28, lv=P2, **kw2): gen.gen(n, fc={**F, "tt": dict(gl=2, notab=1, U=U, lv=lv), "ts": T6}, **{**kw, **kw2})
g("k13a.s"); g("k13_mixw.s", dbg="mixw"); g("k13_mixj.s", dbg="mixj"); g("k13_clean.s", clean=True)

g("k14a.s", mr=1); g("k14_mixw.s", dbg="mixw", mr=1); g("k14_mixj.s", dbg="mixj", mr=1); g("k14_clean.s", clean=True, mr=1)

g("k15a.s", mr=1, qf=1); g("k15_mixw.s", dbg="mixw", mr=1, qf=1); g("k15_mixj.s", dbg="mixj", mr=1, qf=1); g("k15_clean.s", clean=True, mr=1, qf=1)

K16 = dict(mr=1, qf=1, dry2=1)
g("k16a.s", **K16); g("k16_mixw.s", dbg="mixw", **K16); g("k16_mixj.s", dbg="mixj", **K16); g("k16_clean.s", clean=True, **K16)

g("k17a.s", mr=1, qf=1, cpf=1); g("k17b.s", mr=1, qf=1, cpf=1, dry2=1)

g("k17c.s", mr=1, qf=1, cpf=3, palign=0)

g("k17d.s", mr=1, qf=1, cpf=4, palign=0)
K17 = dict(mr=1, qf=1, cpf=4, palign=0)
g("k17_mixw.s", dbg="mixw", **K17); g("k17_mixj.s", dbg="mixj", **K17); g("k17_clean.s", clean=True, **K17)

F["k0"] = 4
K18 = dict(mr=1, qf=1, cpf=4, palign=0, eb=2)
g("k18a.s", **K18); g("k18_mixw.s", dbg="mixw", **K18); g("k18_mixj.s", dbg="mixj", **K18); g("k18_clean.s", clean=True, **K18)

K19 = dict(K18, h1q=1, prew=False, lkw=1, h1e=(1,0,[1]), wothr=1)
g("k19a.s", **K19); g("k19_mixw.s", dbg="mixw", **K19); g("k19_mixj.s", dbg="mixj", **K19); g("k19_clean.s", clean=True, **K19)
g("k19b.s", **dict(K19, wothr=2))
K20 = dict(K19, mo=1)
g("k20a.s", **K20); g("k20_mixw.s", dbg="mixw", **K20); g("k20_mixj.s", dbg="mixj", **K20); g("k20_clean.s", clean=True, **K20)
g("k20b.s", **dict(K20, wothr=2))
```

```python
import glob, os
KN = "recurrent_scan__gqa_block_cached__mixer_token_mlp__decode"
def gen(fname, ptr=8, fl="nt", pre=None, st=False, stride=128, bg=0):
    L = []; e = L.append
    e(f"; @launch grid=(256,1,1) block=(128,1,1) lds=100000")
    e('.amdgcn_target "amdgcn-amd-amdhsa--gfx950"')
    e(".text"); e(f".globl {KN}_kernel"); e(".p2align 8"); e(f".type {KN}_kernel,@function"); e(f"{KN}_kernel:")
    e(f"""  s_cmp_ge_u32 s2, 256
  s_cbranch_scc1 L_end
  s_load_dwordx2 s[24:25], s[0:1], 96
  s_load_dwordx2 s[44:45], s[0:1], {ptr}
  s_load_dwordx2 s[48:49], s[0:1], 16
  v_lshrrev_b32 v2, 6, v0
  v_and_b32 v0, 63, v0
  v_readfirstlane_b32 s3, v2
  s_waitcnt lgkmcnt(0)
  s_mov_b32 s26, 0x10000000
  s_mov_b32 s27, 0x20000
  s_mov_b32 s46, 0x4000000
  s_mov_b32 s47, 0x20000
  s_mov_b32 s50, 0x4000000
  s_mov_b32 s51, 0x20000
  v_mov_b32 v9, 0
  v_lshlrev_b32 v1, 4, v0
  v_mov_b32 v10, 0
  s_cmp_ge_u32 s2, 128
  s_cbranch_scc1 L_bg
  s_cmp_lg_u32 s3, 0
  s_cbranch_scc1 L_end
  s_lshl_b32 s7, s2, 18
  s_add_u32 s7, s7, {1 << 22}
  s_mov_b32 s10, 0
  s_mov_b64 exec, 1
  s_add_u32 s11, s7, 0x30000
  buffer_load_dword v20, v9, s[44:47], s11 offen nt
  s_waitcnt vmcnt(0)
""")
    if pre:
        e(f"  s_mov_b64 exec, -1\n  v_mul_u32_u24 v3, {stride}, v0\n  {pre} v9, v3, s[44:47], s7 offen sc1\n  buffer_atomic_or v9, v3, s[44:47], s7 offen offset:64 sc1\n  s_waitcnt vmcnt(0)\n  s_sleep 64")
    e(f"""L_S:
  s_mov_b64 exec, 255
  s_memtime s[32:33]
  s_waitcnt lgkmcnt(0)
  {"buffer_store_dwordx4 v[20:23], v1, s[44:47], s7 offen " + fl if st else "buffer_load_dwordx4 v[20:23], v1, s[44:47], s7 offen " + fl}
  s_waitcnt vmcnt(0)
  s_memtime s[36:37]
  s_waitcnt lgkmcnt(0)
  s_sub_u32 s36, s36, s32
  s_mov_b64 exec, -1
  s_mov_b32 m0, s10
  s_nop 0
  v_writelane_b32 v10, s36, m0
  s_add_u32 s7, s7, {stride}
  s_add_u32 s10, s10, 1
  s_cmp_lt_u32 s10, 64
  s_cbranch_scc1 L_S
  s_lshl_b32 s4, s2, 8
  s_add_u32 s4, s4, 134217728
  v_lshlrev_b32 v1, 2, v0
  buffer_store_dword v10, v1, s[24:27], s4 offen
  s_waitcnt vmcnt(0)
  s_endpgm
L_bg:
""")
    if bg:
        e(f"""  s_sub_u32 s7, s2, 128
  s_lshl1_add_u32 s7, s7, s3
  s_lshl_b32 s7, s7, 18
  s_mov_b32 s10, {bg}
L_b:
  buffer_load_dwordx4 v[20:23], v1, s[48:51], s7 offen nt
  buffer_load_dwordx4 v[20:23], v1, s[48:51], s7 offen offset:1024 nt
  buffer_load_dwordx4 v[20:23], v1, s[48:51], s7 offen offset:2048 nt
  buffer_load_dwordx4 v[20:23], v1, s[48:51], s7 offen offset:3072 nt
  s_waitcnt vmcnt(20)
  s_add_u32 s7, s7, 4096
  s_sub_u32 s10, s10, 1
  s_cmp_gt_u32 s10, 0
  s_cbranch_scc1 L_b
""")
    e(f"""L_end:
  s_endpgm
.section .rodata,"a"
.p2align 6
.amdhsa_kernel {KN}_kernel
  .amdhsa_next_free_vgpr 64
  .amdhsa_next_free_sgpr 102
  .amdhsa_accum_offset 64
  .amdhsa_group_segment_fixed_size 0
  .amdhsa_kernarg_size 104
  .amdhsa_user_sgpr_count 2
  .amdhsa_user_sgpr_kernarg_segment_ptr 1
  .amdhsa_system_sgpr_workgroup_id_x 1
.end_amdhsa_kernel""")
    open(fname, "w").write("\n".join(L) + "\n")
for f in glob.glob("cl_*.s"): os.remove(f)
gen("cl_0k_nt.s")
gen("cl_1k_nt_s1152.s", stride=1152)
gen("cl_2ws_sc1_pre.s", ptr=96, fl="sc1", pre="buffer_atomic_or")
gen("cl_3ws_sc1_st.s", ptr=96, fl="sc1", pre="buffer_atomic_or", st=True)
gen("cl_4ws_sc1_cold.s", ptr=96, fl="sc1")
gen("cl_5k_nt_s1152_bg.s", stride=1152, bg=64)
```
